```python
import torch

def _softmax(x, axis=-1):
    return torch.softmax(x, dim=axis)
def _gelu(x):
    return torch.nn.functional.gelu(x, approximate="tanh")
def _silu(x):
    return torch.nn.functional.silu(x)
def _sigmoid(x):
    return torch.sigmoid(x)
def _layernorm(x, axis=-1, eps=1e-5):
    m = x.mean(dim=axis, keepdim=True)
    v = x.var(dim=axis, keepdim=True, unbiased=False)
    return (x - m) / torch.sqrt(v + eps)
def _scatter_add(tgt, idx, src, axis=0):
    return tgt.clone().index_add_(axis, idx, src)
def _segment_sum(src, seg, n):
    out = torch.zeros((n,) + src.shape[1:], dtype=src.dtype)
    return out.index_add_(0, seg, src)
def _pad(x, pw):
    flat = tuple(v for pair in reversed(pw) for v in pair)
    return torch.nn.functional.pad(x, flat)

kernel_name = 'recurrent_scan__ssm_conv_s5__glu_gated_swiglu__prompt'

def setup_inputs():

    _w = (lambda a: (lambda t: t.to(torch.bfloat16) if t.is_floating_point() else t)(torch.as_tensor(a)))
    def _A_setup():
        B, S, D = 1, 2048, 640
        P = D
        Lambda_re = -0.5 * (lambda _x: torch.exp(torch.as_tensor(_x)))((lambda *s: torch.randn(*s, dtype=torch.bfloat16) * 0.8)(P))
        Lambda_im = (lambda *s: torch.randn(*s, dtype=torch.bfloat16) * 0.8)(P) * 1.0
        B_re = (lambda *s: torch.randn(*s, dtype=torch.bfloat16) * 0.8)(P, D) * (D ** -0.5)
        B_im = (lambda *s: torch.randn(*s, dtype=torch.bfloat16) * 0.8)(P, D) * (D ** -0.5)
        C_re = (lambda *s: torch.randn(*s, dtype=torch.bfloat16) * 0.8)(D, P) * (P ** -0.5)
        C_im = (lambda *s: torch.randn(*s, dtype=torch.bfloat16) * 0.8)(D, P) * (P ** -0.5)
        log_dt = (lambda *s: torch.randn(*s, dtype=torch.bfloat16) * 0.8)(P) * 0.3 - 2.0
        Dskip = (lambda *s: torch.randn(*s, dtype=torch.bfloat16) * 0.8)(D)
        return {
            "x": _w((lambda *s: torch.randn(*s, dtype=torch.bfloat16) * 0.05)(B, S, D)),
            "Lambda_re": _w(Lambda_re),
            "Lambda_im": _w(Lambda_im),
            "B_re": _w(B_re),
            "B_im": _w(B_im),
            "C_re": _w(C_re),
            "C_im": _w(C_im),
            "log_dt": _w(log_dt),
            "Dskip": _w(Dskip),
        }
    _A_in = _A_setup()

    def _B_setup():
        B, S, D, F = 1, 2048, 640, 1536
        return {
            "x": _w((lambda *s: torch.randn(*s, dtype=torch.bfloat16) * 0.05)(B, S, D)),
            "w1": _w((lambda *s: torch.randn(*s, dtype=torch.bfloat16) * 0.2)(D, F) * (2.0 / D) ** 0.5),
            "w3": _w((lambda *s: torch.randn(*s, dtype=torch.bfloat16) * 0.2)(D, F) * (2.0 / D) ** 0.5),
            "w2": _w((lambda *s: torch.randn(*s, dtype=torch.bfloat16) * 0.2)(F, D) * (2.0 / F) ** 0.5),
        }
    _B_in = _B_setup()

    return {
        "A_x": _A_in["x"],
        "A_Lambda_re": _A_in["Lambda_re"],
        "A_Lambda_im": _A_in["Lambda_im"],
        "A_B_re": _A_in["B_re"],
        "A_B_im": _A_in["B_im"],
        "A_C_re": _A_in["C_re"],
        "A_C_im": _A_in["C_im"],
        "A_log_dt": _A_in["log_dt"],
        "A_Dskip": _A_in["Dskip"],
        "B_x": _B_in["x"],
        "B_w1": _B_in["w1"],
        "B_w3": _B_in["w3"],
        "B_w2": _B_in["w2"],
    }

def reference(A_x, A_Lambda_re, A_Lambda_im, A_B_re, A_B_im, A_C_re, A_C_im, A_log_dt, A_Dskip, B_x, B_w1, B_w3, B_w2):
    def _A_ref(x, Lambda_re, Lambda_im, B_re, B_im, C_re, C_im, log_dt, Dskip):
        Bsz, L, H = x.shape
        Lam = Lambda_re + 1j * Lambda_im
        Bmat = B_re + 1j * B_im
        Cmat = C_re + 1j * C_im
        dt = torch.exp(log_dt)
        Lam_bar = torch.exp(dt * Lam)
        B_bar = ((Lam_bar - 1.0) / Lam)[:, None] * Bmat
        Bu = torch.einsum("bld,pd->blp", x + 0j, B_bar)
        h = torch.zeros_like(Bu[:, 0, :])
        hs = []
        for t in range(L):
            h = Lam_bar[None, :] * h + Bu[:, t, :]
            hs.append(h)
        hseq = torch.stack(hs, 1)
        y = 2.0 * torch.einsum("blp,dp->bld", hseq, Cmat).real + x * Dskip[None, None, :]
        return y

    def _B_ref(x, w1, w3, w2):
        gate = torch.einsum("bsd,df->bsf", x, w1)
        up = torch.einsum("bsd,df->bsf", x, w3)
        h = _silu(gate) * up
        out = torch.einsum("bsf,fd->bsd", h, w2)
        return out

    x = A_x
    xn = _layernorm(x, axis=-1)
    s = _A_ref(xn, A_Lambda_re, A_Lambda_im, A_B_re, A_B_im, A_C_re, A_C_im, A_log_dt, A_Dskip)
    g = _silu(_B_ref(xn, B_w1, B_w3, B_w2))
    return x + s * g
```

```python
import re

REG_RE = re.compile(r"^(-|abs\()?\s*([vas])(\d+)\)?$")
RNG_RE = re.compile(r"^(-)?([vas])\[(\d+):(\d+)\]$")

def regs_of(tok):
    tok = tok.strip()
    m = RNG_RE.match(tok)
    if m:
        return [(m.group(2), i) for i in range(int(m.group(3)), int(m.group(4)) + 1)]
    m = REG_RE.match(tok)
    if m:
        return [(m.group(2), int(m.group(3)))]
    if tok == "vcc":
        return [("vcc", 0)]
    if tok == "m0":
        return [("m0", 0)]
    if tok == "exec":
        return [("exec", 0)]
    return []

TRANS = ("v_exp_f32", "v_log_f32", "v_rcp_f32", "v_rsq_f32", "v_sqrt_f32", "v_sin_f32", "v_cos_f32")
RMW = ("v_fmac_f32", "v_fmac_f32_dpp", "v_dot2c_f32_bf16", "v_pk_fmac")

class I:
    __slots__ = ("text", "op", "cls", "rd", "wr", "tok", "arg", "dpp", "a", "b", "c", "lds", "wide", "passes", "data")
    def __init__(self, text, tok=None):
        self.text = text
        self.tok = tok
        self.arg = None
        self.rd = set(); self.wr = set()
        self.dpp = False; self.a = self.b = self.c = None
        self.lds = False; self.wide = False; self.passes = 0; self.data = set()
        t = text.split(";")[0].strip()
        if t.endswith(":"):
            self.op = t; self.cls = "label"; return
        if t.startswith("."):
            self.op = t; self.cls = "dir"; return
        sp = t.split(None, 1)
        self.op = op = sp[0]
        rest = sp[1] if len(sp) > 1 else ""
        ops = [o.strip() for o in rest.split(",")] if rest else []
        mods = ""
        if ops:
            last = ops[-1].split(None, 1)
            if len(last) > 1 and not last[0].startswith("hwreg"):
                ops[-1] = last[0]; mods = last[1]
        R = [regs_of(o) for o in ops]
        if op.startswith("v_mfma"):
            self.cls = "mfma"
            self.wr = set(R[0]); self.a = set(R[1]); self.b = set(R[2]); self.c = set(R[3])
            self.rd = self.a | self.b | self.c
            self.passes = 4 if "16x16x32" in op else 8
        elif op.startswith("v_"):
            self.cls = "trans" if op in TRANS else "valu"
            self.dpp = ("_dpp" in op) or ("row_" in mods)
            if op.startswith("v_permlane"):
                self.wr = set(R[0]) | set(R[1]); self.rd = set(self.wr); self.cls = "perm"
            elif op.startswith("v_cmp"):
                self.wr = set(R[0]); self.rd = set().union(*R[1:])
            elif op.startswith("v_readfirstlane") or op.startswith("v_readlane"):
                self.wr = set(R[0]); self.rd = set().union(*R[1:]); self.cls = "rdlane"
            elif op.startswith("v_add_co") or op.startswith("v_addc_co"):
                self.wr = set(R[0]) | set(R[1]); self.rd = set().union(*R[2:])
            else:
                self.wr = set(R[0]); self.rd = set().union(*R[1:]) if len(R) > 1 else set()
                if op in RMW or op.startswith("v_fmac") or self.dpp:
                    self.rd |= self.wr
                if op.startswith("v_dot2"):
                    self.cls = "dot"
        elif op.startswith("ds_"):
            self.cls = "ds"
            if op.startswith("ds_read") or op.startswith("ds_bpermute"):
                self.wr = set(R[0]); self.rd = set().union(*R[1:])
            else:
                self.rd = set().union(*R); self.data = set().union(*R[1:])
        elif op.startswith("buffer_") or op.startswith("global_"):
            self.cls = "vmem"
            self.lds = (" lds" in " " + mods) or ("_lds_" in op)
            if "load" in op and not self.lds:
                self.wr = set(R[0]); self.rd = set().union(*R[1:])
            elif "load" in op:
                self.rd = set().union(*R); self.rd.add(("m0", 0))
            elif "store" in op:
                self.rd = set().union(*R)
                self.data = set(R[0]) if op.startswith("buffer_") else set(R[1])
                self.wide = op.endswith("x3") or op.endswith("x4")
            else:
                self.rd = set().union(*R) if R else set()
        elif op.startswith("s_load") or op in ("s_memtime", "s_memrealtime"):
            self.cls = "smem"
            self.wr = set(R[0]); self.rd = set().union(*R[1:]) if len(R) > 1 else set()
        elif op == "s_barrier":
            self.cls = "barrier"
        elif op == "s_waitcnt":
            self.cls = "wait"
        elif op == "s_nop":
            self.cls = "nop"; self.arg = int(ops[0])
        elif op.startswith("s_cbranch") or op in ("s_branch", "s_endpgm"):
            self.cls = "branch"
            if "vcc" in op: self.rd = {("vcc", 0)}
        elif op.startswith("s_cmp") or op.startswith("s_bitcmp"):
            self.cls = "salu"; self.rd = set().union(*R) if R else set()
        elif op in ("s_sleep", "s_setprio"):
            self.cls = "salu"
        elif op.startswith("s_"):
            self.cls = "salu"
            self.wr = set(R[0]); self.rd = set().union(*R[1:]) if len(R) > 1 else set()
        elif op.startswith("@"):
            self.cls = "pseudo"; self.arg = ops[0] if ops else None
        else:
            raise ValueError("cannot parse: " + text)

def is_valu(i):
    return i.cls in ("valu", "trans", "perm", "rdlane", "dot")

def resolve_waits(prog):
    out = []
    vm = []
    lg = []
    raw = False
    saved = []
    def emit_wait(nv, nl):
        nonlocal vm, lg
        parts = []
        if nv is not None:
            nv = min(nv, 63)
            if len(vm) > nv:
                parts.append(f"vmcnt({nv})")
                vm = vm[len(vm) - nv:] if nv else []
        if nl is not None:
            if any(o.cls == "smem" for o in lg):
                nl = 0
            nl = min(nl, 15)
            if len(lg) > nl:
                parts.append(f"lgkmcnt({nl})")
                lg = lg[len(lg) - nl:] if nl else []
        if parts:
            out.append(I("s_waitcnt " + " ".join(parts)))
    pendv = pendl = None
    for ins in prog:
        if ins.cls == "pseudo":
            if ins.op == "@raw_begin": raw = True
            elif ins.op == "@raw_end": raw = False
            elif ins.op == "@waitvm":
                idx = [k for k, o in enumerate(vm) if o.tok == ins.arg]
                if idx: emit_wait(len(vm) - 1 - idx[-1], None)
            elif ins.op == "@waitvm0": emit_wait(0, None)
            elif ins.op == "@waitds":
                idx = [k for k, o in enumerate(lg) if o.tok == ins.arg]
                if idx: emit_wait(None, len(lg) - 1 - idx[-1])
            elif ins.op == "@waitds0": emit_wait(None, 0)
            elif ins.op == "@waitboth":
                idx = [k for k, o in enumerate(vm) if o.tok == ins.arg]
                emit_wait(len(vm) - 1 - idx[-1] if idx else None, 0)
            elif ins.op == "@arm":
                emit_wait(None, 0)
                saved.append((list(vm), len(vm)))
            elif ins.op == "@else":
                assert not lg, "arm must end with @waitds0"
                assert all(o in saved[-1][0] for o in vm), "no vmem inside arms"
                vm = list(saved[-1][0])
            elif ins.op == "@endarm":
                assert not lg, "arm must end with @waitds0"
                assert all(o in saved[-1][0] for o in vm), "no vmem inside arms"
                vm = list(saved.pop()[0])
            else:
                raise ValueError(ins.text)
            continue
        if raw:
            out.append(ins); continue
        touch = ins.rd | ins.wr
        nv = nl = None
        if touch:
            for k in range(len(vm) - 1, -1, -1):
                if vm[k].wr & touch:
                    nv = len(vm) - 1 - k; break
            for k in range(len(lg) - 1, -1, -1):
                if lg[k].wr & touch:
                    nl = len(lg) - 1 - k; break
        if nv is not None or nl is not None:
            emit_wait(nv, nl)
        if ins.cls == "wait":
            m = re.search(r"vmcnt\((\d+)\)", ins.text)
            if m:
                n = int(m.group(1)); vm = vm[len(vm) - n:] if n and len(vm) > n else ([] if n == 0 else vm)
            m = re.search(r"lgkmcnt\((\d+)\)", ins.text)
            if m:
                n = int(m.group(1)); lg = lg[len(lg) - n:] if n and len(lg) > n else ([] if n == 0 else lg)
        out.append(ins)
        if ins.cls == "vmem": vm.append(ins)
        elif ins.cls in ("ds", "smem"): lg.append(ins)
    return out

def need_states(p, c):
    n = 0
    pv = is_valu(p)
    if pv:
        vw = {r for r in p.wr if r[0] in "va"}
        sw = {r for r in p.wr if r[0] in ("s", "vcc")}
        if c.cls == "mfma" and vw & c.rd: n = max(n, 2)
        if is_valu(c):
            if p.cls == "trans" and vw & c.rd: n = max(n, 1)
            if (c.dpp or c.cls == "perm") and vw & c.rd: n = max(n, 2)
            if c.cls == "rdlane" and vw & c.rd: n = max(n, 1)
            if sw & c.rd: n = max(n, 2)
            if p.cls == "dot" and vw & (c.rd | c.wr):
                same_c = (c.op == p.op) and (vw & c.wr) and not _dot_ab(c) & vw
                if not same_c: n = max(n, 3)
        if p.cls == "dot" and c.cls in ("vmem", "ds", "mfma") and vw & c.rd: n = max(n, 3)
        if c.cls == "vmem" and sw & c.rd: n = max(n, 5)
        if c.cls in ("salu",) and sw & c.rd: n = max(n, 1)
    if p.cls == "mfma":
        big = p.passes == 8
        if c.cls == "mfma":
            if p.wr & (c.a | c.b): n = max(n, 12 if big else 8)
            if p.wr & c.c and (p.wr != c.c or p.passes != c.passes): n = max(n, 10 if big else 6)
            if p.wr & c.wr and not (p.wr & c.c): n = max(n, 12 if big else 8)
        elif is_valu(c):
            if p.wr & (c.rd | c.wr): n = max(n, 12 if big else 8)
            if p.c & c.wr: n = max(n, 7 if big else 3)
        elif c.cls in ("vmem", "ds"):
            if p.wr & (c.rd | c.wr): n = max(n, 12 if big else 8)
    if p.cls == "salu" and ("m0", 0) in p.wr and c.cls == "vmem" and c.lds: n = max(n, 1)
    if p.cls == "vmem" and p.wide and p.data & c.wr:
        n = max(n, 2 if is_valu(c) else 1)
    return n

def _dot_ab(c):
    t = c.text.split(";")[0].split(None, 1)[1].split(",")
    return set(regs_of(t[1])) | set(regs_of(t[2].split()[0]))

def insert_nops(prog):
    out = []
    for ins in prog:
        if ins.cls not in ("label", "dir"):
            need = 0; dist = 0
            for p in reversed(out):
                if p.cls in ("label", "dir"): continue
                if dist >= 12: break
                k = need_states(p, ins)
                if k > dist: need = max(need, k - dist)
                dist += (p.arg + 1) if p.cls == "nop" else 1
            while need > 0:
                k = min(need, 16)
                out.append(I(f"s_nop {k-1}")); need -= k
        out.append(ins)
    return out

def finalize(prog):
    p = resolve_waits(prog)
    p = insert_nops(p)
    return p

def stats(p):
    from collections import Counter
    c = Counter(i.cls for i in p)
    nops = sum(i.arg + 1 for i in p if i.cls == "nop")
    return dict(c), nops
```

```python
import sys, os
sys.path.insert(0, os.path.dirname(os.path.abspath(__file__)))
from asmlib import I, finalize, stats

KNAME = "recurrent_scan__ssm_conv_s5__glu_gated_swiglu__prompt_kernel"

class Opt:
    stamps = False
    p1only = False
    codepf = True
    warm = True
    rateA = 1
    rateB = 3
    rateU = 4
    shadow_norm = True
    readspan = 0.7
    X_stage = 2
    L_stage = 6
    Y_stage = 8
    nWpre = 12
opt = Opt()

WS_A2 = 0
WS_W2P = 0xB00000
WS_S = 0xF00000
WS_STAT = 0xF40000
WS_FLW = 0xF50000
WS_FLH = 0xF51000
WS_FLHH = 0xF52000
WS_SEED = 0xF53000
WS_STAMP = 0xF60000
WS_SIZE = 0x1000000
OOB = 0x40000000

L_U4 = 81920
L_RL = 102400
L_PRIV = 122880
PV_COL, PV_CH, PV_E = 0, 1280, 4352
L_TT = 155648
L_LB = 159744
L_YP = 0
L_OP = 61440

sX, sWU, sWM, sWS, sOUT, sRL, sDBG = 36, 40, 44, 48, 52, 56, 60
(sW, sC, sG, sRT, sN, sNONCE, sT0, sT1, sT2, sT3, sXOFF, sUOFF, sMOFF, sMOFFB, sRLOFF, sRLST,
 sA2H, sKSA, sKSB, sSST, sLB0, sLB1, sLB2, sLB3, sEX0, sEX1, sEX2, sEX3, sM0, sM0A, sCNT, sP2A, sP2W, sT4, sT5, sSTATO) = range(64, 100)
sSTAMP = 100
sD0, sD1 = 22, 23
pX, pLRE, pLIM, pBRE, pBIM, pCRE, pCIM, pLDT = 4, 6, 8, 10, 12, 14, 16, 18
pDSK, pBX, pW1, pW3, pW2, pOUT, pDBG, pWS = 20, 22, 24, 26, 28, 30, 32, 34

vLANE, vL16 = 1, 2
vRX = [3, 4]; vRU = [5, 6]
vRA = [7, 8, 9, 10]; vRB = [11, 12]
vD = [13, 14, 15, 16]
vEW, vER, vCOLR, vCH, vTT, vLB, vTW, vTR, vHST, vSO = range(17, 27)
vWP0, vWP1, vFLAG, vNON = 27, 28, 29, 30
vT = list(range(32, 56))
def U(cf, f): return 56 + (cf * 2 + f) * 4
def X(f, s): return 96 + (f * 20 + s) * 4
def ACCA(mu, h, f): return ((mu * 4 + h) * 2 + f) * 4
def FB(par, fr): return 64 + par * 32 + fr * 4
def ACCB(mu, h, f): return 128 + ((mu * 2 + h) * 2 + f) * 4
aRL = 160
aS = 180

def vr(n, c=4): return f"v[{n}:{n+c-1}]"
def ar(n, c=4): return f"a[{n}:{n+c-1}]"
def sr(n, c=4): return f"s[{n}:{n+c-1}]"

P = []
def E(t, tok=None):
    i = I(t, tok); P.append(i); return i
def L(lst):
    for t in lst:
        P.append(t if isinstance(t, I) else I(t))

def srd(d, p, nbytes, bias=0):
    r = []
    if bias:
        r += [f"s_sub_u32 s{d}, s{p}, {bias}", f"s_subb_u32 s{d+1}, s{p+1}, 0", f"s_and_b32 s{d+1}, s{d+1}, 0xffff"]
    else:
        r += [f"s_mov_b32 s{d}, s{p}", f"s_and_b32 s{d+1}, s{p+1}, 0xffff"]
    r += [f"s_mov_b32 s{d+2}, {nbytes+bias}", f"s_mov_b32 s{d+3}, 0x20000"]
    return r

stamp_n = [0]
stamp_names = []
def stamp(name):
    if not opt.stamps: return []
    k = stamp_n[0]; stamp_n[0] += 1
    stamp_names.append(name)
    t = vT[23]
    return [f"s_memrealtime s[{sSTAMP}:{sSTAMP+1}]", "@waitds0",
            f"v_writelane_b32 v0, s{sSTAMP}, {k}"]

def cmul(dr, di, ar_, ai, br, bi, t):
    return [f"v_mul_f32 v{t}, v{ai}, v{bi}", f"v_mul_f32 v{di}, v{ai}, v{br}",
            f"v_fma_f32 v{dr}, v{ar_}, v{br}, -v{t}", f"v_fmac_f32 v{di}, v{ar_}, v{bi}"]
def csq(dr, di, r, i, t):
    return [f"v_mul_f32 v{t}, v{i}, v{i}", f"v_mul_f32 v{di}, v{r}, v{i}",
            f"v_fma_f32 v{dr}, v{r}, v{r}, -v{t}", f"v_add_f32 v{di}, v{di}, v{di}"]
def chorner(gr, gi, mr, mi, er, ei, t0, t1):
    return [f"v_fma_f32 v{t0}, v{mr}, v{gr}, v{er}", f"v_fma_f32 v{t1}, v{mr}, v{gi}, v{ei}",
            f"v_fma_f32 v{t0}, -v{mi}, v{gi}, v{t0}", f"v_fma_f32 v{gi}, v{mi}, v{gr}, v{t1}",
            f"v_mov_b32 v{gr}, v{t0}"]
def chorner2(dr, di, gr, gi, mr, mi, er, ei):
    return [f"v_fma_f32 v{dr}, v{mr}, v{gr}, v{er}", f"v_fma_f32 v{di}, v{mr}, v{gi}, v{ei}",
            f"v_fma_f32 v{dr}, -v{mi}, v{gi}, v{dr}", f"v_fma_f32 v{di}, v{mi}, v{gr}, v{di}"]

LOG2E = "0x3fb8aa3b"
NLOG2E = "0xbfb8aa3b"
INV2PI = "0.15915494"

def prologue():
    E(f"s_cmp_ge_u32 s2, 256")
    E("s_cbranch_scc1 L_exit")
    E("s_load_dwordx16 s[4:19], s[0:1], 0")
    E("s_load_dwordx16 s[20:35], s[0:1], 64")
    if opt.stamps:
        E(f"s_memrealtime s[{sSTAMP}:{sSTAMP+1}]")
    E(f"v_lshrrev_b32 v{vT[0]}, 6, v0")
    E(f"v_and_b32 v{vLANE}, 63, v0")
    E(f"v_readfirstlane_b32 s{sW}, v{vT[0]}")
    E(f"v_lshlrev_b32 v{vL16}, 4, v{vLANE}")
    L([f"s_and_b32 s{sT0}, s2, 7", f"s_lshr_b32 s{sT1}, s2, 3",
       f"s_and_b32 s{sC}, s{sT0}, 1", f"s_lshl_b32 s{sC}, s{sC}, 3", f"s_and_b32 s{sT2}, s{sT1}, 7", f"s_add_u32 s{sC}, s{sC}, s{sT2}",
       f"s_lshr_b32 s{sG}, s{sT0}, 1", f"s_lshl_b32 s{sG}, s{sG}, 2", f"s_lshr_b32 s{sT2}, s{sT1}, 3", f"s_add_u32 s{sG}, s{sG}, s{sT2}",
       f"s_lshl_b32 s{sRT}, s{sT0}, 2", f"s_and_b32 s{sT2}, s{sT1}, 3", f"s_add_u32 s{sRT}, s{sRT}, s{sT2}",
       f"s_lshr_b32 s{sN}, s{sT1}, 2"])
    t0, t1, t2, t3 = vT[0:4]
    vDX = vD[0]; vDU = vD[1]
    L([f"v_lshrrev_b32 v{t0}, 3, v{vLANE}", f"v_and_b32 v{t1}, 7, v{vLANE}", f"v_and_b32 v{t2}, 6, v{t0}",
       f"v_xor_b32 v{t1}, v{t1}, v{t2}", f"v_lshlrev_b32 v{t1}, 4, v{t1}",
       f"v_mul_u32_u24 v{vDU}, 1280, v{t0}", f"v_add_u32 v{vDU}, v{vDU}, v{t1}",
       f"v_lshrrev_b32 v{t2}, 2, v{t0}", f"v_lshlrev_b32 v{t2}, 2, v{t2}", f"v_add_u32 v{t2}, v{t2}, v{t0}",
       f"v_mul_u32_u24 v{vDX}, 1280, v{t2}", f"v_add_u32 v{vDX}, v{vDX}, v{t1}"])
    L([f"s_mul_i32 s{sT2}, s{sG}, 80", f"v_min_u32 v{t3}, 39, v{vLANE}", f"v_lshlrev_b32 v{t3}, 1, v{t3}",
       f"v_add_u32 v{t3}, s{sT2}, v{t3}"])
    L([f"s_lshl_b32 s{sXOFF}, s{sC}, 2", f"s_add_u32 s{sXOFF}, s{sXOFF}, s{sW}", f"s_mul_i32 s{sXOFF}, s{sXOFF}, {32*1280}",
       f"s_mul_i32 s{sM0}, s{sW}, 20480"])
    E("@waitds0")
    if opt.stamps:
        E(f"v_mov_b32 v0, 0")
        E(f"v_writelane_b32 v0, s{sSTAMP}, 0"); stamp_n[0] = 1; stamp_names.append("entry")
    L(srd(sX, pX, 2048*1280))
    if opt.codepf:
        L([f"s_getpc_b64 s[{sT2}:{sT3}]", "L_pc:",
           f"s_and_b32 s{sT4}, s{sT1}, 7", f"s_lshl_b32 s{sT4}, s{sT4}, 2", f"s_add_u32 s{sT4}, s{sT4}, s{sW}",
           f"s_lshl_b32 s{sT4}, s{sT4}, 13",
           f"s_cmp_lt_u32 s{sT4}, L_codeend-L_pc", "s_cbranch_scc0 L_nopf",
           f"s_add_u32 s{sT2}, s{sT2}, s{sT4}", f"s_addc_u32 s{sT3}, s{sT3}, 0",
           f"v_lshlrev_b32 v{t0}, 7, v{vLANE}", f"v_mov_b32 v{t1}, s{sT3}",
           f"v_add_co_u32 v{t0}, vcc, s{sT2}, v{t0}", f"v_addc_co_u32 v{t1}, vcc, 0, v{t1}, vcc",
           f"global_load_dword v{vT[22]}, v[{t0}:{t1}], off", "L_nopf:"])
    E(f"global_load_ushort v{vT[4]}, v{t3}, s[{pLRE}:{pLRE+1}]")
    E(f"global_load_ushort v{vT[5]}, v{t3}, s[{pLIM}:{pLIM+1}]")
    E(f"global_load_ushort v{vT[6]}, v{t3}, s[{pLDT}:{pLDT+1}]")
    L(srd(sWS, pWS, WS_SIZE))
    L([f"s_or_b32 s{sT2}, s2, s{sW}", f"s_cmp_eq_u32 s{sT2}, 0", f"s_mov_b32 s{sT3}, {WS_SEED}", f"s_cselect_b32 s{sT5}, s{sT3}, {OOB}"])
    E(f"buffer_load_dword v{vT[7]}, off, s[{sWS}:{sWS+3}], s{sT5} sc1")
    for f in range(2):
        for S in range(10):
            for ih in range(2):
                E(f"s_add_u32 m0, s{sM0}, {f*81920 + (2*S+ih)*1024}")
                E(f"s_add_u32 s{sT2}, s{sXOFF}, {(16*ih+4*f)*1280 + S*128}")
                E(f"buffer_load_dwordx4 v{vDX}, s[{sX}:{sX+3}], s{sT2} offen lds", tok=f"x{f}_{S}")
    L([f"s_bitcmp1_b32 s{sW}, 0",
       f"s_cselect_b32 s{sWU}, s{pBIM}, s{pBRE}", f"s_cselect_b32 s{sWU+1}, s{pBIM+1}, s{pBRE+1}",
       f"s_cselect_b32 s{sWM}, s{pW3}, s{pW1}", f"s_cselect_b32 s{sWM+1}, s{pW3+1}, s{pW1+1}",
       f"s_and_b32 s{sWU+1}, s{sWU+1}, 0xffff", f"s_and_b32 s{sWM+1}, s{sWM+1}, 0xffff",
       f"s_mov_b32 s{sWU+2}, {640*1280}", f"s_mov_b32 s{sWU+3}, 0x20000",
       f"s_mov_b32 s{sWM+2}, {640*3072}", f"s_mov_b32 s{sWM+3}, 0x20000"])
    L(srd(sOUT, pOUT, 2048*2560))
    L(srd(sDBG, pDBG, 256))
    L([f"s_mul_i32 s{sUOFF}, s{sG}, {40*1280}", f"s_lshr_b32 s{sT2}, s{sW}, 1", f"s_lshl_b32 s{sT2}, s{sT2}, 7", f"s_add_u32 s{sUOFF}, s{sUOFF}, s{sT2}"])
    L([f"s_mul_i32 s{sT2}, s{sG}, 192", f"s_bitcmp1_b32 s{sG}, 0",
       f"s_cselect_b32 s{sT3}, 64, 0", f"s_add_u32 s{sMOFF}, s{sT2}, s{sT3}",
       f"s_cselect_b32 s{sT3}, 0, 128", f"s_bitcmp1_b32 s{sG}, 0", f"s_cselect_b32 s{sT3}, 0, 128", f"s_add_u32 s{sMOFFB}, s{sT2}, s{sT3}",
       f"s_lshr_b32 s{sT2}, s{sW}, 1",
       f"s_mul_i32 s{sT3}, s{sT2}, {32*3072}", f"s_add_u32 s{sMOFF}, s{sMOFF}, s{sT3}",
       f"s_mul_i32 s{sT3}, s{sT2}, {64*3072}", f"s_add_u32 s{sMOFFB}, s{sMOFFB}, s{sT3}",
       f"s_lshl_b32 s{sM0A}, s{sW}, 12"])
    L([f"s_lshl_b32 s{sT3}, s{sC}, 1", f"s_add_u32 s{sT3}, s{sT3}, s{sT2}", f"s_mul_i32 s{sA2H}, s{sT3}, {88*4096}",
       f"s_and_b32 s{sT3}, s{sW}, 1", f"s_lshl_b32 s{sT3}, s{sT3}, 11", f"s_add_u32 s{sA2H}, s{sA2H}, s{sT3}",
       f"s_mul_i32 s{sT3}, s{sG}, 3", f"s_add_u32 s{sT3}, s{sT3}, 40", f"s_and_b32 s{sT4}, s{sG}, 1",
       f"s_add_u32 s{sKSA}, s{sT3}, s{sT4}", f"s_lshl_b32 s{sKSA}, s{sKSA}, 12", f"s_add_u32 s{sKSA}, s{sKSA}, s{sA2H}",
       f"s_xor_b32 s{sT4}, s{sT4}, 1", f"s_lshl_b32 s{sT4}, s{sT4}, 1",
       f"s_add_u32 s{sKSB}, s{sT3}, s{sT4}", f"s_lshl_b32 s{sKSB}, s{sKSB}, 12", f"s_add_u32 s{sKSB}, s{sKSB}, s{sA2H}"])
    L([f"s_lshl_b32 s{sT3}, s{sG}, 4", f"s_add_u32 s{sT4}, s{sT3}, s{sC}", f"s_mul_i32 s{sT4}, s{sT4}, 640", f"s_add_u32 s{sT4}, s{sT4}, {WS_S}",
       f"s_cmp_eq_u32 s{sW}, 3", f"s_cselect_b32 s{sSST}, s{sT4}, {OOB}"])
    for jj, sl in enumerate((sLB0, sLB1, sLB2, sLB3)):
        L([f"s_lshl_b32 s{sT4}, s{sW}, 2", f"s_add_u32 s{sT4}, s{sT4}, s{sC}", f"s_add_i32 s{sT4}, s{sT4}, {jj-16}",
           f"s_add_u32 s{sT5}, s{sT3}, s{sT4}", f"s_mul_i32 s{sT5}, s{sT5}, 640", f"s_add_u32 s{sT5}, s{sT5}, {WS_S}",
           f"s_cmp_ge_i32 s{sT4}, 0", f"s_cselect_b32 s{sl}, s{sT5}, {OOB}"])
    L([f"s_lshl_b32 s{sT3}, s{sC}, 2", f"s_add_u32 s{sT3}, s{sT3}, s{sW}", f"s_lshl_b32 s{sT3}, s{sT3}, 8", f"s_add_u32 s{sT3}, s{sT3}, {WS_STAT}",
       f"s_cmp_eq_u32 s{sG}, 0", f"s_cselect_b32 s{sSTATO}, s{sT3}, {OOB}"])
    i_, q_, a0, a1 = vT[8:12]
    L([f"v_and_b32 v{i_}, 15, v{vLANE}", f"v_lshrrev_b32 v{q_}, 4, v{vLANE}",
       f"v_and_b32 v{a0}, 7, v{i_}", f"v_and_b32 v{a1}, 6, v{i_}", f"v_xor_b32 v{a1}, v{a1}, v{q_}", f"v_lshlrev_b32 v{a1}, 4, v{a1}",
       f"v_lshl_add_u32 v{a1}, v{a0}, 7, v{a1}",
       f"v_lshrrev_b32 v{a0}, 3, v{i_}",
       f"v_mul_u32_u24 v{vRU[0]}, 5120, v{a0}", f"v_add_u32 v{vRU[0]}, v{vRU[0]}, v{a1}", f"v_xor_b32 v{vRU[1]}, 64, v{vRU[0]}",
       f"v_lshl_add_u32 v{vRX[0]}, v{a0}, 10, v{a1}", f"v_add_u32 v{vRX[0]}, s{sM0}, v{vRX[0]}", f"v_xor_b32 v{vRX[1]}, 64, v{vRX[0]}"])

cAR, cAI, cKR, cKI = 56, 57, 58, 59
cA8, cA32, cA32W, cA128, cOM = 60, 62, 64, 66, 68
def constants():
    lre, lim, ldt = vT[4], vT[5], vT[6]
    t = list(range(72, 96))
    L([f"v_lshlrev_b32 v{lre}, 16, v{lre}", f"v_lshlrev_b32 v{lim}, 16, v{lim}", f"v_lshlrev_b32 v{ldt}, 16, v{ldt}",
       f"v_mul_f32 v{t[0]}, {LOG2E}, v{ldt}", f"v_exp_f32 v{t[0]}, v{t[0]}",
       f"v_cvt_pk_bf16_f32 v{t[0]}, v{t[0]}, v{t[0]}", f"v_lshlrev_b32 v{t[0]}, 16, v{t[0]}",
       f"v_mul_f32 v{t[1]}, v{t[0]}, v{lre}", f"v_mul_f32 v{t[2]}, v{t[0]}, v{lim}",
       f"v_mul_f32 v{t[1]}, {LOG2E}, v{t[1]}", f"v_exp_f32 v{t[1]}, v{t[1]}",
       f"v_mul_f32 v{t[2]}, {INV2PI}, v{t[2]}", f"v_rndne_f32 v{t[3]}, v{t[2]}", f"v_sub_f32 v{t[2]}, v{t[2]}, v{t[3]}",
       f"v_cos_f32 v{t[3]}, v{t[2]}", f"v_sin_f32 v{t[4]}, v{t[2]}",
       f"v_mul_f32 v{cAR}, v{t[1]}, v{t[3]}", f"v_mul_f32 v{cAI}, v{t[1]}, v{t[4]}",
       f"v_add_f32 v{t[3]}, -1.0, v{cAR}",
       f"v_mul_f32 v{t[5]}, v{lre}, v{lre}", f"v_fmac_f32 v{t[5]}, v{lim}, v{lim}", f"v_rcp_f32 v{t[5]}, v{t[5]}",
       f"v_mul_f32 v{t[6]}, v{t[3]}, v{lre}", f"v_fmac_f32 v{t[6]}, v{cAI}, v{lim}",
       f"v_mul_f32 v{t[7]}, v{cAI}, v{lre}", f"v_fma_f32 v{t[7]}, -v{t[3]}, v{lim}, v{t[7]}",
       f"v_add_f32 v{t[5]}, v{t[5]}, v{t[5]}",
       f"v_mul_f32 v{cKR}, v{t[6]}, v{t[5]}", f"v_mul_f32 v{cKI}, v{t[7]}, v{t[5]}"])
    r, i, tt = t[8], t[9], t[0]
    L([f"v_mov_b32 v{r}, v{cAR}", f"v_sub_f32 v{i}, 0, v{cAI}"])
    L(csq(t[10], t[11], r, i, tt)); L(csq(r, i, t[10], t[11], tt))
    L(csq(cA8, cA8+1, r, i, tt))
    L(csq(r, i, cA8, cA8+1, tt))
    L(csq(cA32, cA32+1, r, i, tt))
    L(csq(t[12], t[13], cA32, cA32+1, tt))
    L(csq(cA128, cA128+1, t[12], t[13], tt))
    L(csq(r, i, cA128, cA128+1, tt))
    L(csq(t[14], t[15], r, i, tt))
    L(csq(t[16], t[17], t[14], t[15], tt))
    def sel(dst, src, mask, on):
        if on:
            return [f"v_cndmask_b32 v{dst}, 1.0, v{src}, s[{mask}:{mask+1}]", f"v_cndmask_b32 v{dst+1}, 0, v{src+1}, s[{mask}:{mask+1}]"]
        return [f"v_mov_b32 v{t[22]}, 1.0", f"v_mov_b32 v{t[23]}, 0",
                f"v_cndmask_b32 v{dst}, v{src}, v{t[22]}, s[{mask}:{mask+1}]", f"v_cndmask_b32 v{dst+1}, v{src+1}, v{t[23]}, s[{mask}:{mask+1}]"]
    L([f"s_bitcmp1_b32 s{sW}, 0", f"s_cselect_b64 s[{sEX0}:{sEX0+1}], -1, 0", f"s_bitcmp1_b32 s{sW}, 1", f"s_cselect_b64 s[{sEX2}:{sEX2+1}], -1, 0"])
    L(sel(t[18], cA32, sEX0, True)); L(sel(t[20], t[12], sEX2, True))
    L(cmul(cA32W, cA32W+1, t[18], t[19], t[20], t[21], tt))
    L(sel(t[18], t[14], sEX0, False)); L(sel(t[20], t[16], sEX2, False))
    L(cmul(cOM, cOM+1, t[18], t[19], t[20], t[21], tt))

def nonce_seed():
    sd = vT[7]
    L([f"s_mov_b32 s{sT2}, 1664525", f"v_mul_lo_u32 v{sd}, v{sd}, s{sT2}", f"v_add_u32 v{vNON}, 1013904223, v{sd}", f"v_mov_b32 v{vNON+1}, 1",
       f"s_or_b32 s{sT2}, s2, s{sW}", f"s_cmp_eq_u32 s{sT2}, 0", f"s_mov_b32 s{sT3}, {WS_SEED}", f"s_cselect_b32 s{sT5}, s{sT3}, {OOB}"])
    E(f"buffer_store_dword v{vNON}, off, s[{sWS}:{sWS+3}], s{sT5} sc1", tok="seed")

def nonce_publish():
    L([f"s_or_b32 s{sT2}, s2, s{sW}", f"s_cmp_eq_u32 s{sT2}, 0", f"s_cselect_b32 s{sT5}, 0, {OOB}", "@waitvm seed"])
    E(f"buffer_store_dwordx2 v[{vNON}:{vNON+1}], off, s[{sDBG}:{sDBG+3}], s{sT5} sc1")

lab = [0]
def poll(load_text, check, name):
    lab[0] += 1
    n = lab[0]
    r = list(check)
    r += [f"s_cbranch_vccz L_ok{n}", "@raw_begin", f"s_mov_b32 s{sCNT}, 0x40000", f"L_rt{n}:", "s_sleep 1"]
    r += list(load_text)
    r += ["s_waitcnt vmcnt(0)", "s_nop 1"] + list(check) + [f"s_cbranch_vccz L_ok{n}", f"s_sub_u32 s{sCNT}, s{sCNT}, 1",
          f"s_cmp_lg_u32 s{sCNT}, 0", f"s_cbranch_scc1 L_rt{n}", "s_nop 7", "@raw_end", f"L_ok{n}:"]
    return r

def nonce_load():
    return [f"buffer_load_dwordx2 v[{vNON}:{vNON+1}], off, s[{sDBG}:{sDBG+3}], 0 sc1"]
def nonce_get():
    ld = nonce_load()
    return poll(ld, [f"v_cmp_ne_u32 vcc, 1, v{vNON+1}"], "nonce") + [f"v_readfirstlane_b32 s{sNONCE}, v{vNON}"]

sS0, sS1, sQ0, sQ1 = vT[8], vT[9], vT[10], vT[11]
vR = [vT[12], vT[14]]; vNB = [vT[13], vT[15]]
vM = [vT[16], vT[17]]
vONES = vT[18]
def x_arrive(f, filler=None):
    filler = list(filler or [])
    per = (len(filler) + 9) // 10
    L([f"v_mov_b32 v{sS0}, 0", f"v_mov_b32 v{sS1}, 0", f"v_mov_b32 v{sQ0}, 0", f"v_mov_b32 v{sQ1}, 0"])
    def st(s):
        r = []
        for k in range(4):
            x = X(f, s) + k
            r += [f"v_dot2_f32_bf16 v{(sS0, sS1)[k&1]}, v{x}, v{vONES}, v{(sS0, sS1)[k&1]}",
                  f"v_dot2_f32_bf16 v{(sQ0, sQ1)[k&1]}, v{x}, v{x}, v{(sQ0, sQ1)[k&1]}"]
        return r
    for S in range(10):
        E(f"@waitvm x{f}_{S}")
        for sh in range(2):
            E(f"ds_read_b128 {vr(X(f, 2*S+sh))}, v{vRX[sh]} offset:{S*2048}", tok=f"xr{f}_{2*S+sh}")
        if S > 0:
            E(f"@waitds xr{f}_{2*S-1}")
            L(st(2*S-2)); L(st(2*S-1))
        L(filler[S*per:(S+1)*per])
    E("@waitds0")
    L(st(18)); L(st(19))
    L(filler[10*per:])

def x_stats(f):
    a, b = vT[19], vT[20]
    r = [f"v_add_f32 v{sS0}, v{sS0}, v{sS1}", f"v_add_f32 v{sQ0}, v{sQ0}, v{sQ1}"]
    for perm in ("v_permlane16_swap_b32", "v_permlane32_swap_b32"):
        r += [f"v_mov_b32 v{a}, v{sS0}", f"v_mov_b32 v{b}, v{sQ0}", f"{perm} v{a}, v{sS0}", f"{perm} v{b}, v{sQ0}",
              f"v_add_f32 v{sS0}, v{sS0}, v{a}", f"v_add_f32 v{sQ0}, v{sQ0}, v{b}"]
    inv = "0x3acccccd"
    r += [f"v_mul_f32 v{sS0}, {inv}, v{sS0}", f"v_mul_f32 v{sQ0}, {inv}, v{sQ0}",
          f"v_fma_f32 v{sQ0}, -v{sS0}, v{sS0}, v{sQ0}", f"v_max_f32 v{sQ0}, 0, v{sQ0}",
          f"v_cvt_pk_bf16_f32 v{a}, v{sS0}, v{sQ0}",
          f"v_lshlrev_b32 v{vM[f]}, 16, v{a}", f"v_and_b32 v{b}, 0xffff0000, v{a}",
          f"v_add_f32 v{b}, 0x3727c5ac, v{b}",
          f"v_cvt_pk_bf16_f32 v{b}, v{b}, v{b}", f"v_and_b32 v{b}, 0xffff0000, v{b}",
          f"v_sqrt_f32 v{b}, v{b}", f"v_cvt_pk_bf16_f32 v{b}, v{b}, v{b}", f"v_and_b32 v{b}, 0xffff0000, v{b}",
          f"v_rcp_f32 v{vR[f]}, v{b}", f"v_mul_f32 v{vNB[f]}, v{vM[f]}, v{vR[f]}", f"v_sub_f32 v{vNB[f]}, 0, v{vNB[f]}"]
    return r

def norm_step(f, s, packed, tmp):
    r = []
    for k in range(4):
        x = X(f, s) + k
        t = tmp[(k & 1) * 2]
        if packed:
            r += [f"v_lshlrev_b32 v{t}, 16, v{x}", f"v_and_b32 v{t+1}, 0xffff0000, v{x}",
                  f"v_pk_fma_f32 v[{t}:{t+1}], v[{t}:{t+1}], v[{vR[f]}:{vR[f]+1}], v[{vR[f]}:{vR[f]+1}] op_sel:[0,0,1] op_sel_hi:[1,0,1]",
                  f"v_cvt_pk_bf16_f32 v{x}, v{t}, v{t+1}"]
        else:
            r += [f"v_lshlrev_b32 v{t}, 16, v{x}", f"v_and_b32 v{t+1}, 0xffff0000, v{x}",
                  f"v_fma_f32 v{t}, v{t}, v{vR[f]}, v{vNB[f]}", f"v_fma_f32 v{t+1}, v{t+1}, v{vR[f]}, v{vNB[f]}",
                  f"v_cvt_pk_bf16_f32 v{x}, v{t}, v{t+1}"]
    return r

def stats_store(f):
    a, b = vT[19], vT[20]
    return [f"v_and_b32 v{a}, 12, v{vLANE}", f"v_add_u32 v{a}, v{a}, v{vLANE}", f"v_lshlrev_b32 v{a}, 3, v{a}",
            f"v_mov_b32 v{b}, {OOB}", f"v_cmp_gt_u32 vcc, 16, v{vLANE}", f"v_cndmask_b32 v{a}, v{b}, v{a}, vcc",
            I(f"buffer_store_dwordx2 v[{vR[f]}:{vR[f]+1}], v{a}, s[{sWS}:{sWS+3}], s{sSTATO} offen offset:{32*f} sc1", tok="stat")]

def dma_U(i):
    r = []
    base = i * 20480
    for cf in range(5):
        r += [f"s_mul_i32 s{sT2}, s{sW}, 5120", f"s_add_u32 m0, s{sT2}, {base + cf*1024}",
              f"s_add_u32 s{sT3}, s{sUOFF}, {cf*10240 + i*256}",
              I(f"buffer_load_dwordx4 v{vD[1]}, s[{sWU}:{sWU+3}], s{sT3} offen lds", tok=f"U{i}")]
    return r

def mlp_dma_addr(kind):
    t0, t1, t2 = vD[1], vD[2], vD[3]
    if kind == "A":
        r = [f"v_lshrrev_b32 v{t0}, 3, v{vLANE}", f"v_and_b32 v{t1}, 7, v{vLANE}", f"v_and_b32 v{t2}, 6, v{t0}",
             f"v_xor_b32 v{t1}, v{t1}, v{t2}", f"v_lshlrev_b32 v{t1}, 4, v{t1}",
             f"v_and_b32 v{t2}, 4, v{t0}", f"v_add_u32 v{t2}, v{t2}, v{t0}",
             f"v_mul_u32_u24 v{t2}, 3072, v{t2}", f"v_add_u32 v{vD[0]}, v{t2}, v{t1}"]
        for p in range(1, 4):
            j, hw = p >> 1, p & 1
            r.append(f"v_add_u32 v{vD[p]}, {(16*hw+4*j)*3072 - p*1024}, v{vD[0]}")
    else:
        r = [f"v_lshrrev_b32 v{t0}, 2, v{vLANE}", f"v_and_b32 v{t1}, 3, v{vLANE}", f"v_lshrrev_b32 v{t2}, 1, v{t0}", f"v_and_b32 v{t2}, 2, v{t2}",
             f"v_xor_b32 v{t1}, v{t1}, v{t2}", f"v_lshlrev_b32 v{t1}, 4, v{t1}",
             f"v_and_b32 v{t2}, 12, v{t0}", f"v_add_u32 v{t2}, v{t2}, v{t0}",
             f"v_mul_u32_u24 v{t2}, 3072, v{t2}", f"v_add_u32 v{vD[0]}, v{t2}, v{t1}"]
        for p in range(1, 4):
            spl, j = p >> 1, p & 1
            r.append(f"v_add_u32 v{vD[p]}, {(32*spl+4*j)*3072 - p*1024}, v{vD[0]}")
    return r

def dma_M(m):
    slot = m % 4
    if m < 10:
        so = f"s_add_u32 s{sD0}, s{sMOFF}, {m*64*3072}"
    else:
        so = f"s_add_u32 s{sD0}, s{sMOFFB}, {(m-10)*128*3072}"
    r = [f"s_add_u32 m0, s{sM0A}, {slot*16384}", so]
    for p in range(4):
        r.append(I(f"buffer_load_dwordx4 v{vD[p]}, s[{sWM}:{sWM+3}], s{sD0} offen offset:{p*1024} lds", tok=f"M{m}"))
    return r

def mlp_read_addr():
    q, r_, c, rho, t = vT[19], vT[20], vT[21], vT[22], vT[23]
    o = [f"v_lshrrev_b32 v{q}, 4, v{vLANE}", f"v_bfe_u32 v{r_}, v{vLANE}, 2, 2", f"v_and_b32 v{c}, 3, v{vLANE}",
         f"v_and_b32 v{rho}, 1, v{q}", f"v_lshl_add_u32 v{rho}, v{rho}, 2, v{r_}",
         f"v_lshrrev_b32 v{t}, 1, v{q}", f"v_lshlrev_b32 v{t}, 10, v{t}", f"v_lshl_add_u32 v{t}, v{rho}, 7, v{t}",
         f"v_and_b32 v{vRA[1]}, 1, v{c}", f"v_lshl_add_u32 v{t}, v{vRA[1]}, 3, v{t}",
         f"v_and_b32 v{rho}, 6, v{rho}", f"v_lshrrev_b32 v{vRA[1]}, 1, v{c}", f"v_xor_b32 v{rho}, v{rho}, v{vRA[1]}",
         f"v_lshl_add_u32 v{vRA[0]}, v{rho}, 4, v{t}"]
    for h in range(1, 4):
        o.append(f"v_xor_b32 v{vRA[h]}, {32*h}, v{vRA[0]}")
    o += [f"v_lshl_add_u32 v{t}, v{q}, 2, v{r_}", f"v_lshlrev_b32 v{t}, 6, v{t}",
          f"v_and_b32 v{rho}, 1, v{c}", f"v_lshl_add_u32 v{t}, v{rho}, 3, v{t}",
          f"v_and_b32 v{rho}, 1, v{q}", f"v_lshlrev_b32 v{rho}, 1, v{rho}", f"v_lshrrev_b32 v{c}, 1, v{c}", f"v_xor_b32 v{rho}, v{rho}, v{c}",
          f"v_lshl_add_u32 v{vRB[0]}, v{rho}, 4, v{t}", f"v_xor_b32 v{vRB[1]}, 32, v{vRB[0]}"]
    return o

def relayout_issue():
    u, t0, t1, t2 = sT2, vT[19], vT[20], vT[21]
    vo = vT[0:5]
    L([f"s_lshl_b32 s{u}, s{sW}, 5", f"s_add_u32 s{u}, s{u}, s{sRT}",
       f"s_mul_i32 s{sT3}, s{sN}, 88", f"s_add_u32 s{sT3}, s{sT3}, s{u}", f"s_mul_i32 s{sT3}, s{sT3}, 5120", f"s_add_u32 s{sT3}, s{sT3}, {WS_W2P}",
       f"s_cmp_lt_u32 s{u}, 88", f"s_cselect_b32 s{sRLST}, s{sT3}, {OOB}",
       f"s_mov_b32 s{sRL+3}, 0x20000", f"s_cmp_lt_u32 s{u}, 40", "@arm", "s_cbranch_scc0 L_rlw"])
    L([f"s_cmp_lt_u32 s{u}, 20", f"s_cselect_b32 s{sRL}, s{pCRE}, s{pCIM}", f"s_cselect_b32 s{sRL+1}, s{pCRE+1}, s{pCIM+1}",
       f"s_cselect_b32 s{sT3}, 0, 20", f"s_sub_u32 s{sT3}, s{u}, s{sT3}", f"s_lshl_b32 s{sT3}, s{sT3}, 6",
       f"s_mul_i32 s{sT4}, s{sN}, {80*1280}", f"s_add_u32 s{sRLOFF}, s{sT3}, s{sT4}",
       f"s_mov_b32 s{sRL+2}, {640*1280}",
       f"v_lshrrev_b32 v{t0}, 2, v{vLANE}", f"v_and_b32 v{t1}, 3, v{vLANE}", f"v_lshlrev_b32 v{t1}, 4, v{t1}",
       f"v_mul_u32_u24 v{t0}, 1280, v{t0}", f"v_add_u32 v{vo[0]}, v{t0}, v{t1}"])
    for e in range(1, 5): E(f"v_add_u32 v{vo[e]}, {e*16*1280}, v{vo[0]}")
    L(["s_branch L_rlj", "@else", "L_rlw:"])
    L([f"s_mov_b32 s{sRL}, s{pW2}", f"s_mov_b32 s{sRL+1}, s{pW2+1}",
       f"s_cmp_lt_u32 s{u}, 88", f"s_cselect_b32 s{sRL+2}, {1536*1280}, 0",
       f"s_sub_u32 s{sT3}, s{u}, 40", f"s_mul_i32 s{sT3}, s{sT3}, {32*1280}", f"s_mul_i32 s{sT4}, s{sN}, 160", f"s_add_u32 s{sRLOFF}, s{sT3}, s{sT4}",
       f"s_mov_b32 s{sT4}, 6554"])
    for p in range(5):
        L([f"v_add_u32 v{t0}, {64*p}, v{vLANE}", f"v_mul_u32_u24 v{t1}, s{sT4}, v{t0}", f"v_lshrrev_b32 v{t1}, 16, v{t1}",
           f"v_mul_u32_u24 v{t2}, 10, v{t1}", f"v_sub_u32 v{t2}, v{t0}, v{t2}", f"v_lshlrev_b32 v{t2}, 4, v{t2}",
           f"v_mul_u32_u24 v{t1}, 1280, v{t1}", f"v_add_u32 v{vo[p]}, v{t1}, v{t2}"])
    L(["@endarm", "L_rlj:", f"s_and_b32 s{sRL+1}, s{sRL+1}, 0xffff", f"s_mul_i32 s{sT3}, s{sW}, 5120"])
    for p in range(5):
        E(f"s_add_u32 m0, s{sT3}, {L_RL + p*1024}")
        E("s_nop 0")
        E(f"buffer_load_dwordx4 v{vo[p]}, s[{sRL}:{sRL+3}], s{sRLOFF} offen lds", tok="RL")

def relayout_finish():
    t0, t1, t2 = vT[0], vT[1], vT[2]
    r = ["@waitvm RL", f"s_lshl_b32 s{sT2}, s{sW}, 5", f"s_add_u32 s{sT2}, s{sT2}, s{sRT}", f"s_mul_i32 s{sT3}, s{sW}, 5120", f"s_add_u32 s{sT3}, s{sT3}, {L_RL}",
         f"s_cmp_lt_u32 s{sT2}, 40", "@arm", "s_cbranch_scc0 L_rfw",
         f"v_and_b32 v{t0}, 15, v{vLANE}", f"v_lshrrev_b32 v{t1}, 4, v{vLANE}", f"v_lshlrev_b32 v{t1}, 4, v{t1}",
         f"v_lshl_add_u32 v{t0}, v{t0}, 6, v{t1}", f"v_add_u32 v{t0}, s{sT3}, v{t0}"]
    for e in range(5): r.append(f"ds_read_b128 {ar(aRL+4*e)}, v{t0} offset:{e*1024}")
    r += ["@waitds0", "s_branch L_rfj", "@else", "L_rfw:",
          f"v_lshrrev_b32 v{t0}, 2, v{vLANE}", f"v_mul_u32_u24 v{t0}, 160, v{t0}", f"v_and_b32 v{t1}, 3, v{vLANE}",
          f"v_lshl_add_u32 v{t0}, v{t1}, 3, v{t0}", f"v_add_u32 v{t0}, s{sT3}, v{t0}"]
    for e in range(5):
        for jj in range(2):
            r.append(f"ds_read_b64_tr_b16 {ar(aRL+4*e+2*jj, 2)}, v{t0} offset:{jj*2560 + e*32}")
    r += ["@waitds0", "@endarm", "L_rfj:", f"v_add_u32 v{t0}, 4096, v{vL16}"]
    for e in range(5):
        if e < 4: r.append(I(f"buffer_store_dwordx4 {ar(aRL+4*e)}, v{vL16}, s[{sWS}:{sWS+3}], s{sRLST} offen offset:{e*1024} sc1", tok="RLS"))
        else: r.append(I(f"buffer_store_dwordx4 {ar(aRL+4*e)}, v{t0}, s[{sWS}:{sWS+3}], s{sRLST} offen sc1", tok="RLS"))
    return r

def flag_store(base, sline, sidx):
    return [f"s_lshl_b32 s{sD0}, s{sline}, 7", f"s_lshl_b32 s{sD1}, s{sidx}, 2", f"s_add_u32 s{sD0}, s{sD0}, s{sD1}", f"s_add_u32 s{sD0}, s{sD0}, {base}",
            f"s_cmp_eq_u32 s{sW}, 0", f"s_cselect_b32 s{sD0}, s{sD0}, {OOB}",
            f"buffer_store_dword v{vNON}, off, s[{sWS}:{sWS+3}], s{sD0} sc1"]

def scan_addr():
    col, q, ch, t = vT[19], vT[20], vT[21], vT[22]
    return [f"s_lshl_b32 s{sT2}, s{sW}, 13", f"s_add_u32 s{sT2}, s{sT2}, {L_PRIV}",
            f"v_and_b32 v{col}, 15, v{vLANE}", f"v_lshrrev_b32 v{q}, 4, v{vLANE}",
            f"v_lshl_add_u32 v{vCOLR}, v{col}, 4, s{sT2}",
            f"v_lshl_add_u32 v{vEW}, v{q}, 2, v{vCOLR}",
            f"v_min_u32 v{ch}, 39, v{vLANE}", f"v_lshrrev_b32 v{t}, 3, v{ch}", f"v_lshlrev_b32 v{t}, 3, v{t}", f"v_add_u32 v{t}, v{t}, v{ch}",
            f"v_lshl_add_u32 v{vER}, v{t}, 4, s{sT2}",
            f"v_add_u32 v{vCH}, s{sT2}, v{vL16}",
            f"s_lshl_b32 s{sT3}, s{sW}, 9", f"s_add_u32 s{sT3}, s{sT3}, {L_TT}", f"v_lshl_add_u32 v{vTT}, v{vLANE}, 3, s{sT3}",
            f"v_lshlrev_b32 v{vLB}, 5, v{vLANE}", f"v_add_u32 v{vLB}, {L_LB}, v{vLB}",
            f"s_mul_i32 s{sT3}, s{sW}, 5120", f"s_add_u32 s{sT3}, s{sT3}, {L_RL}",
            f"v_lshlrev_b32 v{vTW}, 5, v{col}", f"v_lshl_add_u32 v{vTW}, v{q}, 3, v{vTW}", f"v_add_u32 v{vTW}, s{sT3}, v{vTW}",
            f"v_bfe_u32 v{t}, v{vLANE}, 2, 2", f"v_lshlrev_b32 v{t}, 5, v{t}", f"v_lshl_add_u32 v{t}, v{q}, 8, v{t}",
            f"v_and_b32 v{ch}, 3, v{vLANE}", f"v_lshl_add_u32 v{t}, v{ch}, 3, v{t}", f"v_add_u32 v{vTR}, s{sT3}, v{t}",
            f"v_lshrrev_b32 v{t}, 1, v{q}", f"v_lshlrev_b32 v{t}, 10, v{t}", f"v_lshl_add_u32 v{vHST}, v{col}, 4, v{t}",
            f"v_and_b32 v{t}, 1, v{q}", f"v_mul_u32_u24 v{t}, {20*4096}, v{t}", f"v_add_u32 v{vHST}, v{vHST}, v{t}",
            f"v_min_u32 v{t}, 39, v{vLANE}", f"v_lshlrev_b32 v{vSO}, 4, v{t}"]

def const_tables():
    t = list(range(72, 84))
    L([f"v_mov_b32 v{t[0]}, v{cAR}", f"v_mov_b32 v{t[1]}, v{cAI}", f"v_mov_b32 v{t[2]}, v{cKR}", f"v_sub_f32 v{t[3]}, 0, v{cKI}",
       f"v_mov_b32 v{t[4]}, v{cAR}", f"v_sub_f32 v{t[5]}, 0, v{cAI}", f"v_sub_f32 v{t[6]}, 0, v{cKR}", f"v_sub_f32 v{t[7]}, 0, v{cKI}",
       f"ds_write_b128 v{vER}, {vr(t[0])} offset:{PV_COL}", f"ds_write_b128 v{vER}, {vr(t[4])} offset:{PV_COL+128}",
       f"ds_write_b128 v{vCH}, {vr(cA8)} offset:{PV_CH}", f"ds_write_b128 v{vCH}, {vr(cA32W)} offset:{PV_CH+1024}",
       f"ds_write_b64 v{vCH}, {vr(cOM, 2)} offset:{PV_CH+2048}",
       f"v_mov_b32 v{t[8]}, 0", f"v_mov_b32 v{t[9]}, 0",
       f"s_min_u32 s{sT2}, s{sW}, 2", f"s_lshl_b32 s{sT2}, s{sT2}, 9", f"s_add_u32 s{sT2}, s{sT2}, {L_TT}",
       f"v_lshl_add_u32 v{t[10]}, v{vLANE}, 3, s{sT2}", f"ds_write_b64 v{t[10]}, {vr(t[8], 2)}"])

def ureg(cf, tau): return U(cf, tau >> 2) + (tau & 3)
DPP = "row_ror:8 row_mask:0xf bank_mask:0xf"
def scan_P12():
    C = vT[0:20]
    r = [I(f"ds_read_b128 {vr(C[4*cf])}, v{vCOLR} offset:{PV_COL + cf*256}", tok="colr") for cf in range(5)]
    r.append("@gap 4")
    t = vT[20:24]
    k = 0
    for tau in range(8):
        for cf in range(5):
            u = ureg(cf, tau); tt = t[k % 4]; k += 1
            r += [f"v_mul_f32_dpp v{tt}, v{u}, v{C[4*cf+3]} {DPP}", f"v_fma_f32 v{u}, v{C[4*cf+2]}, v{u}, v{tt}"]
    for tau in range(1, 8):
        src = [(ureg(cf, 0) if tau == 1 else C[4*cf + 2 + (tau & 1)]) for cf in range(5)]
        dst = [C[4*cf + 2 + ((tau + 1) & 1)] for cf in range(5)]
        for cf in range(5): r.append(f"v_fma_f32 v{dst[cf]}, v{C[4*cf]}, v{src[cf]}, v{ureg(cf, tau)}")
        for cf in range(5): r.append(f"v_fmac_f32_dpp v{dst[cf]}, v{src[cf]}, v{C[4*cf+1]} {DPP}")
    for cf in range(5): r.append(f"ds_write_b32 v{vEW}, v{C[4*cf+2]} offset:{PV_E + cf*256}")
    er, ei, a8 = vT[0], vT[4], vT[8]
    r += [f"ds_read_b128 {vr(a8)}, v{vCH} offset:{PV_CH}",
          f"ds_read_b128 {vr(er)}, v{vER} offset:{PV_E}", I(f"ds_read_b128 {vr(ei)}, v{vER} offset:{PV_E+128}", tok="er"), "@gap 6"]
    g0, g1 = vT[12], vT[14]
    r += chorner2(g0, g0+1, er, ei, a8, a8+1, er+1, ei+1)
    r += chorner2(g1, g1+1, g0, g0+1, a8, a8+1, er+2, ei+2)
    r += chorner2(g0, g0+1, g1, g1+1, a8, a8+1, er+3, ei+3)
    r += [f"ds_write_b64 v{vTT}, {vr(g0, 2)} offset:{3*512}"]
    return r

def scan_P3():
    a32 = vT[8]; T = vT[0:8]
    r = [f"ds_read_b128 {vr(a32)}, v{vCH} offset:{PV_CH}"]
    for k in range(4): r.append(f"ds_read_b64 {vr(T[2*k], 2)}, v{vTT} offset:{k*512}")
    r.append("@gap 6")
    m = a32 + 2
    g = vT[12]
    r += chorner2(g, g+1, T[0], T[1], m, m+1, T[2], T[3])
    r += chorner2(vWP0, vWP1, g, g+1, m, m+1, T[4], T[5])
    r += chorner2(g, g+1, vWP0, vWP1, m, m+1, T[6], T[7])
    r += [f"v_mov_b32 v{g+2}, s{sNONCE}", f"v_mov_b32 v{g+3}, s{sNONCE}",
          f"buffer_store_dwordx4 {vr(g)}, v{vSO}, s[{sWS}:{sWS+3}], s{sSST} offen sc1"]
    return r

def lb_loads():
    return [f"buffer_load_dwordx4 {ar(aS+4*jj)}, v{vSO}, s[{sWS}:{sWS+3}], s{sl} offen sc1" for jj, sl in enumerate((sLB0, sLB1, sLB2, sLB3))]
def scan_P4():
    t = vT[0:8]
    chk = []
    for jj, sl in enumerate((sLB0, sLB1, sLB2, sLB3)):
        d = t[2] if jj == 0 else t[0]
        chk += [f"s_cmp_lt_u32 s{sl}, {OOB}", f"s_cselect_b32 s{sT2}, s{sNONCE}, 0", f"v_accvgpr_read_b32 v{d}, a{aS+4*jj+2}",
                f"v_xor_b32 v{d}, s{sT2}, v{d}"]
        if jj: chk += [f"v_or_b32 v{t[2]}, v{t[2]}, v{t[0]}"]
    chk += [f"v_cmp_ne_u32 vcc, 0, v{t[2]}"]
    r = poll(lb_loads(), pad_raw(chk), "lb")
    c = vT[8]
    r += [f"ds_read_b128 {vr(c)}, v{vCH} offset:{PV_CH+1024}", f"ds_read_b64 {vr(vT[12], 2)}, v{vCH} offset:{PV_CH+2048}"]
    for jj in range(4):
        r += [f"v_accvgpr_read_b32 v{t[2*jj]}, a{aS+4*jj}", f"v_accvgpr_read_b32 v{t[2*jj+1]}, a{aS+4*jj+1}"]
    m = c + 2; g0, g1 = vT[14], vT[16]
    r += chorner2(g0, g0+1, t[0], t[1], m, m+1, t[2], t[3])
    r += chorner2(g1, g1+1, g0, g0+1, m, m+1, t[4], t[5])
    r += chorner2(g0, g0+1, g1, g1+1, m, m+1, t[6], t[7])
    r += cmul(g1, g1+1, g0, g0+1, vT[12], vT[13], vT[18])
    r += [f"s_lshl_b32 s{sT2}, s{sW}, 3", f"v_add_u32 v{vT[18]}, s{sT2}, v{vLB}", f"ds_write_b64 v{vT[18]}, {vr(g1, 2)}"]
    return r

def pad_raw(lst):
    from asmlib import insert_nops
    return [i.text for i in insert_nops([I(t) for t in lst])]

def scan_P56():
    lb = vT[0]; er, ei = vT[8], vT[12]; c8, c32w = vT[16], vT[20]
    r = [f"ds_read_b128 {vr(lb)}, v{vLB}", f"ds_read_b128 {vr(lb+4)}, v{vLB} offset:16",
         f"ds_read_b128 {vr(c8)}, v{vCH} offset:{PV_CH}", f"ds_read_b64 {vr(c32w, 2)}, v{vCH} offset:{PV_CH+1024}",
         f"ds_read_b128 {vr(er)}, v{vER} offset:{PV_E}", f"ds_read_b128 {vr(ei)}, v{vER} offset:{PV_E+128}", "@gap 6",
         f"v_add_f32 v{lb}, v{lb}, v{lb+2}", f"v_add_f32 v{lb+1}, v{lb+1}, v{lb+3}",
         f"v_add_f32 v{lb+4}, v{lb+4}, v{lb+6}", f"v_add_f32 v{lb+5}, v{lb+5}, v{lb+7}",
         f"v_add_f32 v{lb}, v{lb}, v{lb+4}", f"v_add_f32 v{lb+1}, v{lb+1}, v{lb+5}"]
    hr, hi = vT[18], None
    R = [vT[2], vT[3], vT[22], vT[23]]
    q0, q1 = vT[4], vT[20]
    tmp = vT[2]
    r += chorner2(tmp, tmp+1, lb, lb+1, c32w, c32w+1, vWP0, vWP1)
    r += [f"v_mov_b32 v{q0}, v{tmp}", f"v_mov_b32 v{q1}, v{tmp+1}"]
    for k in range(3):
        r += chorner2(q0+k+1, q1+k+1, q0+k, q1+k, c8, c8+1, er+k, ei+k)
    r += [f"ds_write_b128 v{vER}, {vr(q0)} offset:{PV_E}", f"ds_write_b128 v{vER}, {vr(q1)} offset:{PV_E+128}"]
    C = vT[0:10]; Z = vT[10:15]
    for cf in range(5): r.append(f"ds_read_b32 v{Z[cf]}, v{vEW} offset:{PV_E + cf*256}")
    for cf in range(5): r.append(f"ds_read_b64 {vr(C[2*cf], 2)}, v{vCOLR} offset:{PV_COL + cf*256}")
    r.append("@gap 6")
    for tau in range(8):
        src = [(Z[cf] if tau == 0 else ureg(cf, tau-1)) for cf in range(5)]
        for cf in range(5): r.append(f"v_fma_f32 v{ureg(cf, tau)}, v{C[2*cf]}, v{src[cf]}, v{ureg(cf, tau)}")
        for cf in range(5): r.append(f"v_fmac_f32_dpp v{ureg(cf, tau)}, v{src[cf]}, v{C[2*cf+1]} {DPP}")
    k = 0
    for cf in range(5):
        for f in range(2):
            t = vT[16 + 2*(k % 4)]; k += 1
            u = U(cf, f)
            r += [f"v_cvt_pk_bf16_f32 v{t}, v{u}, v{u+1}", f"v_cvt_pk_bf16_f32 v{t+1}, v{u+2}, v{u+3}",
                  f"ds_write_b64 v{vTW}, {vr(t, 2)} offset:{(cf*2+f)*512}"]
    for cf in range(5):
        for jj in range(2):
            r.append(f"ds_read_b64_tr_b16 {vr(56 + 4*cf + 2*jj, 2)}, v{vTR} offset:{cf*1024 + jj*128}")
    r.append("@gap 6")
    for cf in range(5):
        r += [f"s_mul_i32 s{sT2}, s{sG}, 5", f"s_add_u32 s{sT2}, s{sT2}, {cf}", f"s_and_b32 s{sT3}, s{sT2}, 3", f"s_lshr_b32 s{sT2}, s{sT2}, 2",
              f"s_lshl_b32 s{sT2}, s{sT2}, 12", f"s_lshl_b32 s{sT3}, s{sT3}, 8", f"s_add_u32 s{sT2}, s{sT2}, s{sT3}", f"s_add_u32 s{sT2}, s{sT2}, s{sA2H}",
              I(f"buffer_store_dwordx4 {vr(56 + 4*cf)}, v{vHST}, s[{sWS}:{sWS+3}], s{sT2} offen sc1", tok="HST")]
    return r

def swiglu(acc, hs, sks, ksadd, tokname, packed=False):
    r = []
    for a, (h0, h1) in enumerate(hs):
        for f in range(2):
            G = vT[0:8]; Uu = vT[8:16]; T = vT[16:24];
            for j in range(8):
                h = (h0, h1)[j >> 2]
                r += [f"v_accvgpr_read_b32 v{G[j]}, a{acc(0, h, f) + (j & 3)}", f"v_accvgpr_read_b32 v{Uu[j]}, a{acc(1, h, f) + (j & 3)}"]
            for j in range(8): r.append(f"v_mul_f32 v{T[j]}, {NLOG2E}, v{G[j]}")
            for j in range(8): r += [f"v_exp_f32 v{T[j]}, v{T[j]}", f"v_mul_f32 v{G[j]}, v{G[j]}, v{Uu[j]}"]
            for j in range(8): r.append(f"v_add_f32 v{T[j]}, 1.0, v{T[j]}")
            for j in range(8): r.append(f"v_rcp_f32 v{T[j]}, v{T[j]}")
            for j in range(8): r.append(f"v_mul_f32 v{G[j]}, v{G[j]}, v{T[j]}")
            o = Uu[0] if (a*2+f) % 2 == 0 else Uu[4]
            for j in range(4): r.append(f"v_cvt_pk_bf16_f32 v{o+j}, v{G[2*j]}, v{G[2*j+1]}")
            r += [f"s_add_u32 s{sT2}, s{sks}, {(ksadd + a)*4096}",
                  I(f"buffer_store_dwordx4 {vr(o)}, v{vL16}, s[{sWS}:{sWS+3}], s{sT2} offen offset:{f*1024} sc1", tok=tokname)]
    return r

def step_reads(blk, s, par):
    r = []
    if blk == "U":
        i, sh2, sh = s // 4, (s >> 1) & 1, s & 1
        off = i*20480 + sh2*10240 - (61440 if i >= 3 else 0)
        for cf in range(5):
            r.append(f"ds_read_b128 {ar(FB(par, cf))}, v{vRU[sh]} offset:{off + cf*1024}")
    elif blk == "A":
        m, sp = s // 2, s & 1
        for h in range(4):
            for mu in range(2):
                for j in range(2):
                    r.append(f"ds_read_b64_tr_b16 {ar(FB(par, h*2+mu) + 2*j, 2)}, v{vRA[h]} offset:{(m % 4)*16384 + (2*sp+mu)*4096 + j*2048}")
    else:
        m, sp = 10 + s // 4, s & 3
        for h in range(2):
            for mu in range(2):
                for j in range(2):
                    r.append(f"ds_read_b64_tr_b16 {ar(FB(par, h*2+mu) + 2*j, 2)}, v{vRB[h]} offset:{(m % 4)*16384 + (2*(sp >> 1)+mu)*4096 + (2*(sp & 1)+j)*1024}")
    return r

def step_mfma(blk, s, par):
    r = []
    if blk == "U":
        for cf in range(5):
            for f in range(2):
                d = vr(U(cf, f)); c = "0" if s == 0 else d
                r.append(f"v_mfma_f32_16x16x32_bf16 {d}, {vr(X(f, s))}, {ar(FB(par, cf))}, {c}")
    else:
        nh = 4 if blk == "A" else 2
        acc = ACCA if blk == "A" else ACCB
        for h in range(nh):
            for mu in range(2):
                for f in range(2):
                    d = ar(acc(mu, h, f)); c = "0" if s == 0 else d
                    r.append(f"v_mfma_f32_16x16x32_bf16 {d}, {ar(FB(par, h*2+mu))}, {vr(X(f, s))}, {c}")
    return r

def stage_of(blk, s):
    return ("U", s // 4) if blk == "U" else (("M", s // 2) if blk == "A" else ("M", 10 + s // 4))

class Queue:
    def __init__(self): self.q = []; self.hold = 0
    def add(self, lst): self.q += [t if isinstance(t, I) else I(t) for t in lst]
    def _region(self, out):
        i = self.q[0]
        end = "@endarm" if i.op == "@arm" else "@raw_end"
        while True:
            j = self.q.pop(0); out.append(j)
            if j.cls == "pseudo" and j.op == end: break
        while self.q and self.q[0].cls == "label": out.append(self.q.pop(0))
    def pop(self, n):
        out = []
        if self.hold > 0:
            self.hold -= 1; return out
        while self.q and n > 0:
            i = self.q[0]
            if i.cls == "pseudo" and i.op == "@gap":
                self.q.pop(0); self.hold = int(i.arg); break
            if i.cls == "pseudo" and i.op in ("@arm", "@raw_begin"):
                self._region(out); n -= 4
                continue
            if i.cls == "branch" or i.op.startswith("s_cmp") or i.op.startswith("s_bitcmp"):
                out.append(self.q.pop(0))
                while self.q:
                    k = self.q[0]
                    if k.op.startswith("s_cselect") or k.cls == "branch": out.append(self.q.pop(0))
                    elif k.op in ("@arm", "@raw_begin"): self._region(out); n -= 4
                    else: break
                n -= 1
                continue
            self.q.pop(0); out.append(i)
            if i.cls not in ("pseudo", "label"): n -= 2 if i.cls == "trans" else 1
        return out
    def flush(self):
        out = [i for i in self.q if not (i.cls == "pseudo" and i.op == "@gap")]
        self.q = []; self.hold = 0
        return out

def phase1_blocks():
    Q = Queue()
    seq = [("U", s) for s in range(20)] + [("A", s) for s in range(20)] + [("B", s) for s in range(20)]
    L(["@waitvm U0", "s_barrier"])
    L(stamp("U start"))
    first = step_reads("U", 0, 0)
    L(first)
    if opt.shadow_norm:
        L(norm_step(1, 0, False, vT[20:24]))
    L(nonce_load())
    for n, (blk, s) in enumerate(seq):
        par = n & 1
        mf = step_mfma(blk, s, par)
        nxt = seq[n + 1] if n + 1 < len(seq) else None
        rd = [I(t) for t in step_reads(nxt[0], nxt[1], par ^ 1)] if nxt else []
        if rd: rd[-1].tok = f"rd{n+1}"
        boundary = nxt is None or stage_of(*nxt) != stage_of(blk, s)
        gaps = [[] for _ in mf]
        start = 0
        pre = []
        if blk == "U" and s == 11: pre += [f"v_add_u32 v{vRU[0]}, 61440, v{vRU[0]}"]
        if blk == "U" and s == 12: pre += [f"v_add_u32 v{vRU[1]}, 61440, v{vRU[1]}"]
        if boundary:
            kind, idx = stage_of(blk, s)
            start = 3 if len(mf) >= 10 else 2
            b = []
            flush = (kind == "M" and idx in (opt.X_stage, opt.Y_stage)) or nxt is None
            if kind == "U" and idx == 4: flush = True
            if flush: b += Q.flush()
            if nxt is not None:
                nk, ni = stage_of(*nxt)
                b.append(I(f"@waitboth {nk}{ni}"))
            else:
                b.append(I("@waitds0"))
            if kind == "M" and idx == 1: b.append(I("@waitvm RLS")); b.append(I("@waitvm stat"))
            b.append(I("s_barrier"))
            post = []
            if kind == "U" and idx < 4: post += dma_M(idx)
            if kind == "M" and idx + 4 <= 14: post += dma_M(idx + 4)
            if kind == "M" and idx == 5: post += mlp_dma_addr("B")
            if kind == "M" and idx == 1: post += flag_store(WS_FLW, sN, sRT)
            if kind == "M" and idx == opt.L_stage: post += lb_loads()
            if opt.stamps: post += stamp(f"{kind}{idx} end")
            gaps[start - 1] += b
            post = [t if isinstance(t, I) else I(t) for t in post]
            g = start - 1
            for t in post:
                gaps[min(g, len(mf) - 1)].append(t)
                if t.cls == "vmem": g += 1
            if kind == "M" and idx == opt.X_stage: Q.add(scan_P3())
            if kind == "M" and idx == opt.Y_stage - 1: Q.add(scan_P4())
            if kind == "M" and idx == opt.Y_stage: Q.add(scan_P56())
            if kind == "U" and idx == 0: Q.add(relayout_finish())
        if rd:
            span = max(1, int((len(mf) - start) * opt.readspan))
            for k, t in enumerate(rd):
                gaps[start + (k * span) // len(rd)].append(t)
        if blk == "U" and opt.shadow_norm and s < 19:
            nq = [I(t) for t in norm_step(1, s + 1, False, vT[20:24])]
            for k, t in enumerate(nq): gaps[(k * len(mf)) // len(nq)].append(t)
        if blk == "A" and s == 0:
            pre += nonce_get()
            Q.add(scan_P12())
        if blk == "B" and s == 0:
            Q.add(swiglu(ACCA, [(0, 1), (2, 3)], sKSA, 0, "HHA"))
        L(pre)
        E(f"@waitds rd{n}")
        rate = {"U": 1, "A": opt.rateA, "B": opt.rateB}[blk]
        for k, t in enumerate(mf):
            E(t)
            L(gaps[k])
            used = sum(1 for x in gaps[k] if x.cls not in ("pseudo",))
            if not (boundary and k < start):
                L(Q.pop(max(rate + 1 - used, 0 if rate == 1 else 1)))
    L(Q.flush())

P2ACC = [("a", 4*k) for k in range(20)]
A_SLOTS = [("a", 80 + 4*k) for k in range(20)]
W_SLOTS = [("v", 96 + 4*k) for k in range(40)] + [("a", 160 + 4*k) for k in range(24)]
def rg(t, c=4): return f"{t[0]}[{t[1]}:{t[1]+c-1}]"
vA2 = [3, 4, 5, 6]; vW4 = 7; vPW = [8, 9, 10]; vPR = 11; vOUT = 12; vXO = 13; vSTA = 14; vDS = 15
vXR = list(range(56, 76)); vY = list(range(76, 96)); vDK = [16, 17, 18, 19, 20]; vST = list(range(32, 40))
NSTEP = 22
def ks_off(st): return st if st < 10 else 40 - 10 + st
def p2_setup():
    t = vT[16]
    r = []
    for jj in range(4):
        r += [f"s_add_u32 s{sT2}, s{sW}, {jj}", f"s_and_b32 s{sT2}, s{sT2}, 3", f"s_lshl_b32 s{sT3}, s{sT2}, 10", f"v_add_u32 v{vA2[jj]}, s{sT3}, v{vL16}"]
        if jj:
            r += [f"s_mul_i32 s{sT3}, s{sT2}, 15360", f"s_add_u32 s{sT3}, s{sT3}, {(3-jj)*5120}", f"v_add_u32 v{vPW[jj-1]}, s{sT3}, v{vL16}"]
    r += [f"s_mul_i32 s{sT3}, s{sW}, 15360", f"v_add_u32 v{vPR}, s{sT3}, v{vL16}", f"v_add_u32 v{vW4}, 4096, v{vL16}",
          f"s_mul_i32 s{sP2A}, s{sRT}, {88*4096}", f"s_mul_i32 s{sP2W}, s{sN}, {88*5120}", f"s_add_u32 s{sP2W}, s{sP2W}, {WS_W2P}"]
    return r
def step_ks(st):
    return (10, st) if st < 10 else (12, 40 + st - 10)
def p2_wload(st):
    mul, c = step_ks(st)
    r = [f"s_mul_i32 s{sT2}, s{sW}, {mul*5120}", f"s_add_u32 s{sT2}, s{sT2}, s{sP2W}", f"s_add_u32 s{sT2}, s{sT2}, {c*5120}"]
    for e in range(5):
        slot = W_SLOTS[WMAP[st] * 5 + e]
        if e < 4: r.append(f"buffer_load_dwordx4 {rg(slot)}, v{vL16}, s[{sWS}:{sWS+3}], s{sT2} offen offset:{e*1024} sc1")
        else: r.append(f"buffer_load_dwordx4 {rg(slot)}, v{vW4}, s[{sWS}:{sWS+3}], s{sT2} offen sc1")
    return r
def p2_aload(st):
    mul, c = step_ks(st)
    r = [f"s_mul_i32 s{sT3}, s{sW}, {mul*4096}", f"s_add_u32 s{sT3}, s{sT3}, s{sP2A}", f"s_add_u32 s{sT3}, s{sT3}, {c*4096}"]
    for jj in range(4):
        r.append(f"buffer_load_dwordx4 {rg(A_SLOTS[(st % 5)*4 + jj])}, v{vA2[jj]}, s[{sWS}:{sWS+3}], s{sT3} offen sc1")
    return r
WMAP = [st % 12 for st in range(NSTEP)]
def flag_load(base, sline, shift, mask):
    return [f"s_lshr_b32 s{sT2}, s{sline}, {shift}", f"s_lshl_b32 s{sT2}, s{sT2}, 7", f"s_add_u32 s{sT2}, s{sT2}, {base}",
            f"v_and_b32 v{vFLAG}, {mask}, v{vLANE}", f"v_lshlrev_b32 v{vFLAG}, 2, v{vFLAG}",
            f"buffer_load_dword v{vFLAG}, v{vFLAG}, s[{sWS}:{sWS+3}], s{sT2} offen sc1"]
def flag_wait(base, sline, shift, mask, name):
    ld = flag_load(base, sline, shift, mask)
    return poll(ld, [f"v_cmp_ne_u32 vcc, s{sNONCE}, v{vFLAG}"], name)

def p2_mfma(st):
    r = []
    first = st in (0, 10)
    for jj in range(4):
        for e in range(5):
            d = rg(P2ACC[jj*5+e]); c = "0" if first else d
            r.append(f"v_mfma_f32_16x16x32_bf16 {d}, {rg(A_SLOTS[(st % 5)*4+jj])}, {rg(W_SLOTS[WMAP[st]*5+e])}, {c}")
    return r

def p2_partials(base):
    r = []
    for jj in range(1, 4):
        for e in range(5):
            r.append(f"ds_write_b128 v{vPW[jj-1]}, {rg(P2ACC[jj*5+e])} offset:{base + e*1024}")
    return r

def p2_epi_loads():
    dn, q, t = vT[0+8], vT[1+8], vT[2+8]
    r = [f"v_and_b32 v{dn}, 15, v{vLANE}", f"v_lshrrev_b32 v{q}, 4, v{vLANE}",
         f"s_lshl_b32 s{sT2}, s{sRT}, 6", f"s_lshr_b32 s{sT3}, s{sW}, 1", f"s_lshl_b32 s{sT3}, s{sT3}, 5", f"s_add_u32 s{sT2}, s{sT2}, s{sT3}",
         f"s_and_b32 s{sT3}, s{sW}, 1", f"s_lshl_b32 s{sT3}, s{sT3}, 2", f"s_add_u32 s{sT2}, s{sT2}, s{sT3}",
         f"v_lshl_add_u32 v{q}, v{q}, 3, s{sT2}",
         f"s_mul_i32 s{sT3}, s{sN}, 80", f"v_add_u32 v{dn}, s{sT3}, v{dn}",
         f"v_mul_u32_u24 v{t}, 640, v{q}", f"v_add_u32 v{t}, v{t}, v{dn}",
         f"v_lshlrev_b32 v{vXO}, 1, v{t}", f"v_lshlrev_b32 v{vOUT}, 2, v{t}", f"v_lshlrev_b32 v{vSTA}, 3, v{q}", f"v_lshlrev_b32 v{vDS}, 1, v{dn}"]
    for rr in range(4):
        r.append(f"s_mov_b32 s{sT2}, {rr*1280}")
        for e in range(5):
            r.append(f"buffer_load_ushort v{vXR[e*4+rr]}, v{vXO}, s[{sX}:{sX+3}], s{sT2} offen offset:{e*32}")
    for e in range(5):
        r.append(f"global_load_ushort v{vDK[e]}, v{vDS}, s[{pDSK}:{pDSK+1}] offset:{e*32}")
    return r
def p2_stat_loads():
    return [f"s_mov_b32 s{sT2}, {WS_STAT}",
            f"buffer_load_dwordx4 {vr(vST[0])}, v{vSTA}, s[{sWS}:{sWS+3}], s{sT2} offen sc1",
            f"buffer_load_dwordx4 {vr(vST[4])}, v{vSTA}, s[{sWS}:{sWS+3}], s{sT2} offen offset:16 sc1"]

def p2_yfinish():
    r = []
    T = vT[8:24]
    for e in range(5): r.append(f"v_lshlrev_b32 v{vDK[e]}, 16, v{vDK[e]}")
    for e in range(5):
        b = T[4*(e % 2)]; b2 = T[8 + 4*(e % 2)]
        for k in range(3):
            pass
        r.append(f"ds_read_b128 {vr(b)}, v{vPR} offset:{L_YP + e*1024}")
        r.append(f"ds_read_b128 {vr(b2)}, v{vPR} offset:{L_YP + 5120 + e*1024}")
        for rr in range(4): r.append(f"v_lshlrev_b32 v{vXR[e*4+rr]}, 16, v{vXR[e*4+rr]}")
        for rr in range(4): r.append(f"v_add_f32 v{vY[e*4+rr]}, v{vY[e*4+rr]}, v{b+rr}")
        r.append(f"ds_read_b128 {vr(b)}, v{vPR} offset:{L_YP + 10240 + e*1024}")
        for rr in range(4): r.append(f"v_add_f32 v{vY[e*4+rr]}, v{vY[e*4+rr]}, v{b2+rr}")
        for rr in range(4): r.append(f"v_fma_f32 v{b2+rr}, v{vXR[e*4+rr]}, v{vST[2*rr]}, v{vST[2*rr+1]}")
        for rr in range(4): r.append(f"v_fmac_f32 v{vY[e*4+rr]}, v{b2+rr}, v{vDK[e]}")
        for rr in range(4): r.append(f"v_add_f32 v{vY[e*4+rr]}, v{vY[e*4+rr]}, v{b+rr}")
    return r

def p2_final():
    r = []
    O = list(range(96, 116)); B = list(range(116, 176))
    for k in range(3):
        for e in range(5):
            r.append(f"ds_read_b128 {vr(B[k*20+e*4])}, v{vPR} offset:{k*5120 + e*1024}")
    for j in range(20): r.append(f"v_accvgpr_read_b32 v{O[j]}, a{j}")
    for k in range(3):
        for j in range(0, 20, 2):
            r.append(f"v_pk_add_f32 v[{O[j]}:{O[j]+1}], v[{O[j]}:{O[j]+1}], v[{B[k*20+j]}:{B[k*20+j]+1}]")
    T = B[0:20]
    for j in range(20): r.append(f"v_mul_f32 v{T[j]}, {NLOG2E}, v{O[j]}")
    for j in range(20): r += [f"v_exp_f32 v{T[j]}, v{T[j]}", f"v_mul_f32 v{O[j]}, v{O[j]}, v{vY[j]}"]
    for j in range(20): r.append(f"v_add_f32 v{T[j]}, 1.0, v{T[j]}")
    for j in range(20): r.append(f"v_rcp_f32 v{T[j]}, v{T[j]}")
    for rr in range(4):
        r.append(f"s_mov_b32 s{sT2}, {rr*2560}")
        for e in range(5):
            j = e*4 + rr
            r += [f"v_fma_f32 v{O[j]}, v{O[j]}, v{T[j]}, v{vXR[j]}",
                  f"buffer_store_dword v{O[j]}, v{vOUT}, s[{sOUT}:{sOUT+3}], s{sT2} offen offset:{e*64}"]
    return r

def phase2():
    L(stamp("B mfma end"))
    L(swiglu(ACCB, [(0, 1)], sKSB, 0, "HHB"))
    L(p2_setup())
    L(flag_load(WS_FLW, sN, 0, 31))
    L(["@waitvm HHB", "s_barrier"])
    L(flag_store(WS_FLH, sC, sG)); L(flag_store(WS_FLHH, sC, sG))
    L(stamp("flags out"))
    L(flag_wait(WS_FLW, sN, 0, 31, "w")[0:0])
    L(poll(flag_load(WS_FLW, sN, 0, 31), [f"v_cmp_ne_u32 vcc, s{sNONCE}, v{vFLAG}"], "w"))
    for st in range(opt.nWpre - 2): L(p2_wload(st))
    L(flag_load(WS_FLH, sRT, 1, 15))
    for st in range(opt.nWpre - 2, opt.nWpre): L(p2_wload(st))
    L(poll(flag_load(WS_FLH, sRT, 1, 15), [f"v_cmp_ne_u32 vcc, s{sNONCE}, v{vFLAG}"], "h"))
    L(stamp("h ready"))
    for st in range(5): L(p2_aload(st))
    L(p2_epi_loads()); L(p2_stat_loads())
    Q = Queue()
    for st in range(NSTEP):
        mf = p2_mfma(st)
        post = []
        if st == 10:
            for j in range(20): E(f"v_accvgpr_read_b32 v{vY[j]}, a{j}")
            L(p2_partials(L_YP))
            L(["@waitds0", "s_barrier"])
            L(stamp("y done"))
            L(poll(flag_load(WS_FLHH, sRT, 1, 15), [f"v_cmp_ne_u32 vcc, s{sNONCE}, v{vFLAG}"], "hh"))
            L(stamp("hh ready"))
            for s2 in range(10, 15): L(p2_aload(s2))
            L(p2_yfinish())
        if st == 7: Q.add(flag_load(WS_FLHH, sRT, 1, 15))
        for k, t in enumerate(mf):
            E(t)
            if k == 19 or k == 4:
                pass
        if st + 5 < NSTEP and not (st < 10 <= st + 5): L(p2_aload(st + 5))
        if st + 12 < NSTEP: L(p2_wload(st + 12))
        L(Q.flush())
    L([f"v_add_u32 v{v}, {L_OP}, v{v}" for v in vPW + [vPR]])
    L(p2_partials(0))
    L(["@waitds0", "s_barrier"])
    L(stamp("out done"))
    L(p2_final())
    L(stamp("end"))

def stamps_out():
    if not opt.stamps: return
    L([f"s_lshl_b32 s{sT2}, s2, 2", f"s_add_u32 s{sT2}, s{sT2}, s{sW}", f"s_lshl_b32 s{sT2}, s{sT2}, 8", f"s_add_u32 s{sT2}, s{sT2}, {WS_STAMP}",
       f"v_lshlrev_b32 v{vT[0]}, 2, v{vLANE}", f"buffer_store_dword v0, v{vT[0]}, s[{sWS}:{sWS+3}], s{sT2} offen"])

def build():
    global P
    P.clear(); lab[0] = 0; stamp_n[0] = 0; stamp_names.clear()
    prologue()
    E(f"v_mov_b32 v{vONES}, 0x3f803f80")
    constants()
    nonce_seed()
    x_arrive(0)
    L(stamp("x0 in"))
    E("s_barrier")
    for i in range(4): L(dma_U(i))
    L(x_stats(0))
    L([f"v_add_u32 v{vRX[0]}, 81920, v{vRX[0]}", f"v_add_u32 v{vRX[1]}, 81920, v{vRX[1]}"])
    nrm = []
    for s in range(20): nrm += norm_step(0, s, True, vT[20:24])
    x_arrive(1, nrm)
    L(stamp("x1 in"))
    E("s_barrier")
    L(dma_U(4))
    relayout_issue()
    nonce_publish()
    L(scan_addr())
    const_tables()
    L(x_stats(1))
    L(stats_store(0)); L(stats_store(1))
    L(mlp_dma_addr("A")); L(mlp_read_addr())
    if not opt.shadow_norm:
        for s in range(20): L(norm_step(1, s, True, vT[20:24]))
    phase1_blocks()
    phase2()
    stamps_out()
    E("s_endpgm")
    prog = finalize(P)
    return prog

HEADER = """; Kernarg layout for this problem (128 bytes, ptrs only, base s[0:1]):
; @launch grid=(256,1,1) block=(256,1,1) lds=163840
.amdgcn_target "amdgcn-amd-amdhsa--gfx950"
.text
.globl {k}
.p2align 8
.type {k},@function
{k}:
"""
FOOTER = """
L_exit:
    s_endpgm
L_codeend:
    .fill 2112, 4, 0xbf800000
.section .rodata,"a"
.p2align 6
.amdhsa_kernel {k}
  .amdhsa_next_free_vgpr 512
  .amdhsa_next_free_sgpr 102
  .amdhsa_accum_offset 256
  .amdhsa_group_segment_fixed_size 0
  .amdhsa_kernarg_size 128
  .amdhsa_user_sgpr_count 2
  .amdhsa_user_sgpr_kernarg_segment_ptr 1
  .amdhsa_system_sgpr_workgroup_id_x 1
  .amdhsa_float_denorm_mode_32 3
.end_amdhsa_kernel
"""
def text():
    prog = build()
    body = "\n".join(("" if i.cls == "label" else "    ") + i.text for i in prog)
    return HEADER.format(k=KNAME) + body + FOOTER.format(k=KNAME), prog

if __name__ == "__main__":
    out = sys.argv[1]
    for a in sys.argv[2:]:
        k, v = a.split("=")
        setattr(opt, k, type(getattr(opt, k))(float(v)) if not isinstance(getattr(opt, k), bool) else v in ("1", "True"))
    t, prog = text()
    open(out, "w").write(t)
    print(stats(prog), len(prog))
    if opt.stamps:
        import json
        json.dump(stamp_names, open(out + ".stamps.json", "w"))
```

```python
import sys, os
sys.path.insert(0, os.path.dirname(os.path.abspath(__file__)))
from asmlib import I, finalize, stats

KNAME = "recurrent_scan__ssm_conv_s5__glu_gated_swiglu__prompt_kernel"

class Opt:
    fine = False
    probe = ''
    stamps = False
    p1only = False
    codepf = True
    warm = True
    rateA = 1
    rateB = 3
    rateU = 4
    shadow_norm = True
    readspan = 0.7
    X_stage = 2
    L_stage = 6
    Y_stage = 8
    nWpre = 12
opt = Opt()

WS_A2 = 0
WS_W2P = 0xB00000
WS_S = 0xF00000
WS_STAT = 0xF40000
WS_FLW = 0xF50000
WS_FLH = 0xF51000
WS_FLHH = 0xF52000
WS_SEED = 0xF53000
WS_STAMP = 0xF60000
WS_SIZE = 0x1000000
OOB = 0x40000000

L_U4 = 81920
L_RL = 102400
L_PRIV = 122880
PV_COL, PV_CH, PV_E = 0, 1280, 4352
L_TT = 155648
L_LB = 159744
L_YP = 0
L_OP = 61440

sX, sWU, sWM, sWS, sOUT, sRL, sDBG = 36, 40, 44, 48, 52, 56, 60
(sW, sC, sG, sRT, sN, sNONCE, sT0, sT1, sT2, sT3, sXOFF, sUOFF, sMOFF, sMOFFB, sRLOFF, sRLST,
 sA2H, sKSA, sKSB, sSST, sLB0, sLB1, sLB2, sLB3, sEX0, sEX1, sEX2, sEX3, sM0, sM0A, sCNT, sP2A, sP2W, sT4, sT5, sSTATO) = range(64, 100)
sSTAMP = 100
sD0, sD1 = 22, 23
pX, pLRE, pLIM, pBRE, pBIM, pCRE, pCIM, pLDT = 4, 6, 8, 10, 12, 14, 16, 18
pDSK, pBX, pW1, pW3, pW2, pOUT, pDBG, pWS = 20, 22, 24, 26, 28, 30, 32, 34

vLANE, vL16 = 1, 2
vRX = [3, 4]; vRU = [5, 6]
vRA = [7, 8, 9, 10]; vRB = [11, 12]
vD = [13, 14, 15, 16]
vEW, vER, vCOLR, vCH, vTT, vLB, vTW, vTR, vHST, vSO = range(17, 27)
vWP0, vWP1, vFLAG, vNON = 27, 28, 29, 30
vT = list(range(32, 56))
def U(cf, f): return 56 + (cf * 2 + f) * 4
def X(f, s): return 96 + (f * 20 + s) * 4
def ACCA(mu, h, f): return ((mu * 4 + h) * 2 + f) * 4
def FB(par, fr): return 64 + par * 32 + fr * 4
def ACCB(mu, h, f): return 128 + ((mu * 2 + h) * 2 + f) * 4
aRL = 160
aS = 180

def vr(n, c=4): return f"v[{n}:{n+c-1}]"
def ar(n, c=4): return f"a[{n}:{n+c-1}]"
def sr(n, c=4): return f"s[{n}:{n+c-1}]"

P = []
def E(t, tok=None):
    i = I(t, tok); P.append(i); return i
def L(lst):
    for t in lst:
        P.append(t if isinstance(t, I) else I(t))

def srd(d, p, nbytes, bias=0):
    r = []
    if bias:
        r += [f"s_sub_u32 s{d}, s{p}, {bias}", f"s_subb_u32 s{d+1}, s{p+1}, 0", f"s_and_b32 s{d+1}, s{d+1}, 0xffff"]
    else:
        r += [f"s_mov_b32 s{d}, s{p}", f"s_and_b32 s{d+1}, s{p+1}, 0xffff"]
    r += [f"s_mov_b32 s{d+2}, {nbytes+bias}", f"s_mov_b32 s{d+3}, 0x20000"]
    return r

stamp_n = [0]
stamp_names = []
def stamp(name, cyc=False):
    if opt.probe:
        if name != opt.probe: return []
        return [f"s_memrealtime s[{sSTAMP}:{sSTAMP+1}]", "@waitds0", f"s_mov_b32 s3, s{sSTAMP}"]
    if not opt.stamps: return []
    k = stamp_n[0]; stamp_n[0] += 1
    stamp_names.append(name)
    return [f"s_memtime s[{sSTAMP}:{sSTAMP+1}]" if cyc else f"s_memrealtime s[{sSTAMP}:{sSTAMP+1}]", "@waitds0",
            f"v_writelane_b32 v0, s{sSTAMP}, {k}"]

def cmul(dr, di, ar_, ai, br, bi, t):
    return [f"v_mul_f32 v{t}, v{ai}, v{bi}", f"v_mul_f32 v{di}, v{ai}, v{br}",
            f"v_fma_f32 v{dr}, v{ar_}, v{br}, -v{t}", f"v_fmac_f32 v{di}, v{ar_}, v{bi}"]
def csq(dr, di, r, i, t):
    return [f"v_mul_f32 v{t}, v{i}, v{i}", f"v_mul_f32 v{di}, v{r}, v{i}",
            f"v_fma_f32 v{dr}, v{r}, v{r}, -v{t}", f"v_add_f32 v{di}, v{di}, v{di}"]
def chorner(gr, gi, mr, mi, er, ei, t0, t1):
    return [f"v_fma_f32 v{t0}, v{mr}, v{gr}, v{er}", f"v_fma_f32 v{t1}, v{mr}, v{gi}, v{ei}",
            f"v_fma_f32 v{t0}, -v{mi}, v{gi}, v{t0}", f"v_fma_f32 v{gi}, v{mi}, v{gr}, v{t1}",
            f"v_mov_b32 v{gr}, v{t0}"]
def chorner2(dr, di, gr, gi, mr, mi, er, ei):
    return [f"v_fma_f32 v{dr}, v{mr}, v{gr}, v{er}", f"v_fma_f32 v{di}, v{mr}, v{gi}, v{ei}",
            f"v_fma_f32 v{dr}, -v{mi}, v{gi}, v{dr}", f"v_fma_f32 v{di}, v{mi}, v{gr}, v{di}"]

LOG2E = "0x3fb8aa3b"
NLOG2E = "0xbfb8aa3b"
INV2PI = "0.15915494"

def prologue():
    E(f"s_cmp_ge_u32 s2, 256")
    E("s_cbranch_scc1 L_exit")
    E("s_load_dwordx16 s[4:19], s[0:1], 0")
    E("s_load_dwordx16 s[20:35], s[0:1], 64")
    if opt.stamps or opt.probe == "entry":
        E(f"s_memrealtime s[{sSTAMP}:{sSTAMP+1}]")
    E(f"v_lshrrev_b32 v{vT[0]}, 6, v0")
    E(f"v_and_b32 v{vLANE}, 63, v0")
    E(f"v_readfirstlane_b32 s{sW}, v{vT[0]}")
    E(f"v_lshlrev_b32 v{vL16}, 4, v{vLANE}")
    L([f"s_and_b32 s{sT0}, s2, 7", f"s_lshr_b32 s{sT1}, s2, 3",
       f"s_and_b32 s{sC}, s{sT0}, 1", f"s_lshl_b32 s{sC}, s{sC}, 3", f"s_and_b32 s{sT2}, s{sT1}, 7", f"s_add_u32 s{sC}, s{sC}, s{sT2}",
       f"s_lshr_b32 s{sG}, s{sT0}, 1", f"s_lshl_b32 s{sG}, s{sG}, 2", f"s_lshr_b32 s{sT2}, s{sT1}, 3", f"s_add_u32 s{sG}, s{sG}, s{sT2}",
       f"s_lshl_b32 s{sRT}, s{sT0}, 2", f"s_and_b32 s{sT2}, s{sT1}, 3", f"s_add_u32 s{sRT}, s{sRT}, s{sT2}",
       f"s_lshr_b32 s{sN}, s{sT1}, 2"])
    t0, t1, t2, t3 = vT[0:4]
    vDX = vD[0]; vDU = vD[1]
    L([f"v_lshrrev_b32 v{t0}, 3, v{vLANE}", f"v_and_b32 v{t1}, 7, v{vLANE}", f"v_and_b32 v{t2}, 6, v{t0}",
       f"v_xor_b32 v{t1}, v{t1}, v{t2}", f"v_lshlrev_b32 v{t1}, 4, v{t1}",
       f"v_mul_u32_u24 v{vDU}, 1280, v{t0}", f"v_add_u32 v{vDU}, v{vDU}, v{t1}",
       f"v_lshrrev_b32 v{t2}, 2, v{t0}", f"v_lshlrev_b32 v{t2}, 2, v{t2}", f"v_add_u32 v{t2}, v{t2}, v{t0}",
       f"v_mul_u32_u24 v{vDX}, 1280, v{t2}", f"v_add_u32 v{vDX}, v{vDX}, v{t1}"])
    L([f"s_mul_i32 s{sT2}, s{sG}, 80", f"v_min_u32 v{t3}, 39, v{vLANE}", f"v_lshlrev_b32 v{t3}, 1, v{t3}",
       f"v_add_u32 v{t3}, s{sT2}, v{t3}"])
    L([f"s_lshl_b32 s{sXOFF}, s{sC}, 2", f"s_add_u32 s{sXOFF}, s{sXOFF}, s{sW}", f"s_mul_i32 s{sXOFF}, s{sXOFF}, {32*1280}",
       f"s_mul_i32 s{sM0}, s{sW}, 20480"])
    E("@waitds0")
    if opt.probe == "entry": E(f"s_mov_b32 s3, s{sSTAMP}")
    if opt.stamps:
        E(f"v_mov_b32 v0, 0")
        E(f"v_writelane_b32 v0, s{sSTAMP}, 0"); stamp_n[0] = 1; stamp_names.append("entry")
    L(srd(sX, pX, 2048*1280))
    if opt.codepf:
        L([f"s_getpc_b64 s[{sT2}:{sT3}]", "L_pc:",
           f"s_and_b32 s{sT4}, s{sT1}, 7", f"s_lshl_b32 s{sT4}, s{sT4}, 2", f"s_add_u32 s{sT4}, s{sT4}, s{sW}",
           f"s_lshl_b32 s{sT4}, s{sT4}, 13",
           f"s_cmp_lt_u32 s{sT4}, L_codeend-L_pc", "s_cbranch_scc0 L_nopf",
           f"s_add_u32 s{sT2}, s{sT2}, s{sT4}", f"s_addc_u32 s{sT3}, s{sT3}, 0",
           f"v_lshlrev_b32 v{t0}, 7, v{vLANE}", f"v_mov_b32 v{t1}, s{sT3}",
           f"v_add_co_u32 v{t0}, vcc, s{sT2}, v{t0}", f"v_addc_co_u32 v{t1}, vcc, 0, v{t1}, vcc",
           f"global_load_dword v{vT[22]}, v[{t0}:{t1}], off", "L_nopf:"])
    E(f"global_load_ushort v{vT[4]}, v{t3}, s[{pLRE}:{pLRE+1}]")
    E(f"global_load_ushort v{vT[5]}, v{t3}, s[{pLIM}:{pLIM+1}]")
    E(f"global_load_ushort v{vT[6]}, v{t3}, s[{pLDT}:{pLDT+1}]")
    L(srd(sWS, pWS, WS_SIZE))
    L([f"s_or_b32 s{sT2}, s2, s{sW}", f"s_cmp_eq_u32 s{sT2}, 0", f"s_mov_b32 s{sT3}, {WS_SEED}", f"s_cselect_b32 s{sT5}, s{sT3}, {OOB}"])
    E(f"buffer_load_dword v{vT[7]}, off, s[{sWS}:{sWS+3}], s{sT5} sc1")
    for f in range(2):
        for S in range(10):
            for ih in range(2):
                E(f"s_add_u32 m0, s{sM0}, {f*81920 + (2*S+ih)*1024}")
                E(f"s_add_u32 s{sT2}, s{sXOFF}, {(16*ih+4*f)*1280 + S*128}")
                E(f"buffer_load_dwordx4 v{vDX}, s[{sX}:{sX+3}], s{sT2} offen lds", tok=f"x{f}_{S}")
    L([f"s_bitcmp1_b32 s{sW}, 0",
       f"s_cselect_b32 s{sWU}, s{pBIM}, s{pBRE}", f"s_cselect_b32 s{sWU+1}, s{pBIM+1}, s{pBRE+1}",
       f"s_cselect_b32 s{sWM}, s{pW3}, s{pW1}", f"s_cselect_b32 s{sWM+1}, s{pW3+1}, s{pW1+1}",
       f"s_and_b32 s{sWU+1}, s{sWU+1}, 0xffff", f"s_and_b32 s{sWM+1}, s{sWM+1}, 0xffff",
       f"s_mov_b32 s{sWU+2}, {640*1280}", f"s_mov_b32 s{sWU+3}, 0x20000",
       f"s_mov_b32 s{sWM+2}, {640*3072}", f"s_mov_b32 s{sWM+3}, 0x20000"])
    L(srd(sOUT, pOUT, 2048*2560))
    L(srd(sDBG, pDBG, 256))
    L([f"s_mul_i32 s{sUOFF}, s{sG}, {40*1280}", f"s_lshr_b32 s{sT2}, s{sW}, 1", f"s_lshl_b32 s{sT2}, s{sT2}, 7", f"s_add_u32 s{sUOFF}, s{sUOFF}, s{sT2}"])
    L([f"s_mul_i32 s{sT2}, s{sG}, 192", f"s_bitcmp1_b32 s{sG}, 0",
       f"s_cselect_b32 s{sT3}, 64, 0", f"s_add_u32 s{sMOFF}, s{sT2}, s{sT3}",
       f"s_cselect_b32 s{sT3}, 0, 128", f"s_bitcmp1_b32 s{sG}, 0", f"s_cselect_b32 s{sT3}, 0, 128", f"s_add_u32 s{sMOFFB}, s{sT2}, s{sT3}",
       f"s_lshr_b32 s{sT2}, s{sW}, 1",
       f"s_mul_i32 s{sT3}, s{sT2}, {32*3072}", f"s_add_u32 s{sMOFF}, s{sMOFF}, s{sT3}",
       f"s_mul_i32 s{sT3}, s{sT2}, {64*3072}", f"s_add_u32 s{sMOFFB}, s{sMOFFB}, s{sT3}",
       f"s_lshl_b32 s{sM0A}, s{sW}, 12"])
    L([f"s_lshl_b32 s{sT3}, s{sC}, 1", f"s_add_u32 s{sT3}, s{sT3}, s{sT2}", f"s_mul_i32 s{sA2H}, s{sT3}, {88*4096}",
       f"s_and_b32 s{sT3}, s{sW}, 1", f"s_lshl_b32 s{sT3}, s{sT3}, 11", f"s_add_u32 s{sA2H}, s{sA2H}, s{sT3}",
       f"s_mul_i32 s{sT3}, s{sG}, 3", f"s_add_u32 s{sT3}, s{sT3}, 40", f"s_and_b32 s{sT4}, s{sG}, 1",
       f"s_add_u32 s{sKSA}, s{sT3}, s{sT4}", f"s_lshl_b32 s{sKSA}, s{sKSA}, 12", f"s_add_u32 s{sKSA}, s{sKSA}, s{sA2H}",
       f"s_xor_b32 s{sT4}, s{sT4}, 1", f"s_lshl_b32 s{sT4}, s{sT4}, 1",
       f"s_add_u32 s{sKSB}, s{sT3}, s{sT4}", f"s_lshl_b32 s{sKSB}, s{sKSB}, 12", f"s_add_u32 s{sKSB}, s{sKSB}, s{sA2H}"])
    L([f"s_lshl_b32 s{sT3}, s{sG}, 4", f"s_add_u32 s{sT4}, s{sT3}, s{sC}", f"s_mul_i32 s{sT4}, s{sT4}, 640", f"s_add_u32 s{sT4}, s{sT4}, {WS_S}",
       f"s_cmp_eq_u32 s{sW}, 3", f"s_cselect_b32 s{sSST}, s{sT4}, {OOB}"])
    for jj, sl in enumerate((sLB0, sLB1, sLB2, sLB3)):
        L([f"s_lshl_b32 s{sT4}, s{sW}, 2", f"s_add_u32 s{sT4}, s{sT4}, s{sC}", f"s_add_i32 s{sT4}, s{sT4}, {jj-16}",
           f"s_add_u32 s{sT5}, s{sT3}, s{sT4}", f"s_mul_i32 s{sT5}, s{sT5}, 640", f"s_add_u32 s{sT5}, s{sT5}, {WS_S}",
           f"s_cmp_ge_i32 s{sT4}, 0", f"s_cselect_b32 s{sl}, s{sT5}, {OOB}"])
    L([f"s_lshl_b32 s{sT3}, s{sC}, 2", f"s_add_u32 s{sT3}, s{sT3}, s{sW}", f"s_lshl_b32 s{sT3}, s{sT3}, 8", f"s_add_u32 s{sT3}, s{sT3}, {WS_STAT}",
       f"s_cmp_eq_u32 s{sG}, 0", f"s_cselect_b32 s{sSTATO}, s{sT3}, {OOB}"])
    i_, q_, a0, a1 = vT[8:12]
    L([f"v_and_b32 v{i_}, 15, v{vLANE}", f"v_lshrrev_b32 v{q_}, 4, v{vLANE}",
       f"v_and_b32 v{a0}, 7, v{i_}", f"v_and_b32 v{a1}, 6, v{i_}", f"v_xor_b32 v{a1}, v{a1}, v{q_}", f"v_lshlrev_b32 v{a1}, 4, v{a1}",
       f"v_lshl_add_u32 v{a1}, v{a0}, 7, v{a1}",
       f"v_lshrrev_b32 v{a0}, 3, v{i_}",
       f"v_mul_u32_u24 v{vRU[0]}, 5120, v{a0}", f"v_add_u32 v{vRU[0]}, v{vRU[0]}, v{a1}", f"v_xor_b32 v{vRU[1]}, 64, v{vRU[0]}",
       f"v_lshl_add_u32 v{vRX[0]}, v{a0}, 10, v{a1}", f"v_add_u32 v{vRX[0]}, s{sM0}, v{vRX[0]}", f"v_xor_b32 v{vRX[1]}, 64, v{vRX[0]}"])

cAR, cAI, cKR, cKI = 56, 57, 58, 59
cA8, cA32, cA32W, cA128, cOM = 60, 62, 64, 66, 68
def constants():
    lre, lim, ldt = vT[4], vT[5], vT[6]
    t = list(range(72, 96))
    L([f"v_lshlrev_b32 v{lre}, 16, v{lre}", f"v_lshlrev_b32 v{lim}, 16, v{lim}", f"v_lshlrev_b32 v{ldt}, 16, v{ldt}",
       f"v_mul_f32 v{t[0]}, {LOG2E}, v{ldt}", f"v_exp_f32 v{t[0]}, v{t[0]}",
       f"v_cvt_pk_bf16_f32 v{t[0]}, v{t[0]}, v{t[0]}", f"v_lshlrev_b32 v{t[0]}, 16, v{t[0]}",
       f"v_mul_f32 v{t[1]}, v{t[0]}, v{lre}", f"v_mul_f32 v{t[2]}, v{t[0]}, v{lim}",
       f"v_mul_f32 v{t[1]}, {LOG2E}, v{t[1]}", f"v_exp_f32 v{t[1]}, v{t[1]}",
       f"v_mul_f32 v{t[2]}, {INV2PI}, v{t[2]}", f"v_rndne_f32 v{t[3]}, v{t[2]}", f"v_sub_f32 v{t[2]}, v{t[2]}, v{t[3]}",
       f"v_cos_f32 v{t[3]}, v{t[2]}", f"v_sin_f32 v{t[4]}, v{t[2]}",
       f"v_mul_f32 v{cAR}, v{t[1]}, v{t[3]}", f"v_mul_f32 v{cAI}, v{t[1]}, v{t[4]}",
       f"v_add_f32 v{t[3]}, -1.0, v{cAR}",
       f"v_mul_f32 v{t[5]}, v{lre}, v{lre}", f"v_fmac_f32 v{t[5]}, v{lim}, v{lim}", f"v_rcp_f32 v{t[5]}, v{t[5]}",
       f"v_mul_f32 v{t[6]}, v{t[3]}, v{lre}", f"v_fmac_f32 v{t[6]}, v{cAI}, v{lim}",
       f"v_mul_f32 v{t[7]}, v{cAI}, v{lre}", f"v_fma_f32 v{t[7]}, -v{t[3]}, v{lim}, v{t[7]}",
       f"v_add_f32 v{t[5]}, v{t[5]}, v{t[5]}",
       f"v_mul_f32 v{cKR}, v{t[6]}, v{t[5]}", f"v_mul_f32 v{cKI}, v{t[7]}, v{t[5]}"])
    r, i, tt = t[8], t[9], t[0]
    L([f"v_mov_b32 v{r}, v{cAR}", f"v_sub_f32 v{i}, 0, v{cAI}"])
    L(csq(t[10], t[11], r, i, tt)); L(csq(r, i, t[10], t[11], tt))
    L(csq(cA8, cA8+1, r, i, tt))
    L(csq(r, i, cA8, cA8+1, tt))
    L(csq(cA32, cA32+1, r, i, tt))
    L(csq(t[12], t[13], cA32, cA32+1, tt))
    L(csq(cA128, cA128+1, t[12], t[13], tt))
    L(csq(r, i, cA128, cA128+1, tt))
    L(csq(t[14], t[15], r, i, tt))
    L(csq(t[16], t[17], t[14], t[15], tt))
    def sel(dst, src, mask, on):
        if on:
            return [f"v_cndmask_b32 v{dst}, 1.0, v{src}, s[{mask}:{mask+1}]", f"v_cndmask_b32 v{dst+1}, 0, v{src+1}, s[{mask}:{mask+1}]"]
        return [f"v_mov_b32 v{t[22]}, 1.0", f"v_mov_b32 v{t[23]}, 0",
                f"v_cndmask_b32 v{dst}, v{src}, v{t[22]}, s[{mask}:{mask+1}]", f"v_cndmask_b32 v{dst+1}, v{src+1}, v{t[23]}, s[{mask}:{mask+1}]"]
    L([f"s_bitcmp1_b32 s{sW}, 0", f"s_cselect_b64 s[{sEX0}:{sEX0+1}], -1, 0", f"s_bitcmp1_b32 s{sW}, 1", f"s_cselect_b64 s[{sEX2}:{sEX2+1}], -1, 0"])
    L(sel(t[18], cA32, sEX0, True)); L(sel(t[20], t[12], sEX2, True))
    L(cmul(cA32W, cA32W+1, t[18], t[19], t[20], t[21], tt))
    L(sel(t[18], t[14], sEX0, False)); L(sel(t[20], t[16], sEX2, False))
    L(cmul(cOM, cOM+1, t[18], t[19], t[20], t[21], tt))

def nonce_seed():
    sd = vT[7]
    L([f"s_mov_b32 s{sT2}, 1664525", f"v_mul_lo_u32 v{sd}, v{sd}, s{sT2}", f"v_add_u32 v{vNON}, 1013904223, v{sd}", f"v_mov_b32 v{vNON+1}, 1",
       f"s_or_b32 s{sT2}, s2, s{sW}", f"s_cmp_eq_u32 s{sT2}, 0", f"s_mov_b32 s{sT3}, {WS_SEED}", f"s_cselect_b32 s{sT5}, s{sT3}, {OOB}"])
    E(f"buffer_store_dword v{vNON}, off, s[{sWS}:{sWS+3}], s{sT5} sc1", tok="seed")

def nonce_publish():
    L([f"s_or_b32 s{sT2}, s2, s{sW}", f"s_cmp_eq_u32 s{sT2}, 0", f"s_cselect_b32 s{sT5}, 0, {OOB}", "@waitvm seed"])
    E(f"buffer_store_dwordx2 v[{vNON}:{vNON+1}], off, s[{sDBG}:{sDBG+3}], s{sT5} sc1")

lab = [0]
def poll(load_text, check, name):
    lab[0] += 1
    n = lab[0]
    r = list(check)
    r += [f"s_cbranch_vccz L_ok{n}", "@raw_begin", f"s_mov_b32 s{sCNT}, 0x40000", f"L_rt{n}:", "s_sleep 1"]
    r += list(load_text)
    r += ["s_waitcnt vmcnt(0)", "s_nop 1"] + list(check) + [f"s_cbranch_vccz L_ok{n}", f"s_sub_u32 s{sCNT}, s{sCNT}, 1",
          f"s_cmp_lg_u32 s{sCNT}, 0", f"s_cbranch_scc1 L_rt{n}", "s_nop 7", "@raw_end", f"L_ok{n}:"]
    return r

def nonce_load():
    return [f"buffer_load_dwordx2 v[{vNON}:{vNON+1}], off, s[{sDBG}:{sDBG+3}], 0 sc1"]
def nonce_get():
    ld = nonce_load()
    return poll(ld, [f"v_cmp_ne_u32 vcc, 1, v{vNON+1}"], "nonce") + [f"v_readfirstlane_b32 s{sNONCE}, v{vNON}"]

sS0, sS1, sQ0, sQ1 = vT[8], vT[9], vT[10], vT[11]
vR = [vT[12], vT[14]]; vNB = [vT[13], vT[15]]
vM = [vT[16], vT[17]]
vONES = vT[18]
def x_arrive(f, filler=None):
    filler = list(filler or [])
    per = (len(filler) + 9) // 10
    L([f"v_mov_b32 v{sS0}, 0", f"v_mov_b32 v{sS1}, 0", f"v_mov_b32 v{sQ0}, 0", f"v_mov_b32 v{sQ1}, 0"])
    def st(s):
        r = []
        for k in range(4):
            x = X(f, s) + k
            r += [f"v_dot2_f32_bf16 v{(sS0, sS1)[k&1]}, v{x}, v{vONES}, v{(sS0, sS1)[k&1]}",
                  f"v_dot2_f32_bf16 v{(sQ0, sQ1)[k&1]}, v{x}, v{x}, v{(sQ0, sQ1)[k&1]}"]
        return r
    for S in range(10):
        E(f"@waitvm x{f}_{S}")
        for sh in range(2):
            E(f"ds_read_b128 {vr(X(f, 2*S+sh))}, v{vRX[sh]} offset:{S*2048}", tok=f"xr{f}_{2*S+sh}")
        if S > 0:
            E(f"@waitds xr{f}_{2*S-1}")
            L(st(2*S-2)); L(st(2*S-1))
        L(filler[S*per:(S+1)*per])
    E("@waitds0")
    L(st(18)); L(st(19))
    L(filler[10*per:])

def x_stats(f):
    a, b = vT[19], vT[20]
    r = [f"v_add_f32 v{sS0}, v{sS0}, v{sS1}", f"v_add_f32 v{sQ0}, v{sQ0}, v{sQ1}"]
    for perm in ("v_permlane16_swap_b32", "v_permlane32_swap_b32"):
        r += [f"v_mov_b32 v{a}, v{sS0}", f"v_mov_b32 v{b}, v{sQ0}", f"{perm} v{a}, v{sS0}", f"{perm} v{b}, v{sQ0}",
              f"v_add_f32 v{sS0}, v{sS0}, v{a}", f"v_add_f32 v{sQ0}, v{sQ0}, v{b}"]
    inv = "0x3acccccd"
    r += [f"v_mul_f32 v{sS0}, {inv}, v{sS0}", f"v_mul_f32 v{sQ0}, {inv}, v{sQ0}",
          f"v_fma_f32 v{sQ0}, -v{sS0}, v{sS0}, v{sQ0}", f"v_max_f32 v{sQ0}, 0, v{sQ0}",
          f"v_cvt_pk_bf16_f32 v{a}, v{sS0}, v{sQ0}",
          f"v_lshlrev_b32 v{vM[f]}, 16, v{a}", f"v_and_b32 v{b}, 0xffff0000, v{a}",
          f"v_add_f32 v{b}, 0x3727c5ac, v{b}",
          f"v_cvt_pk_bf16_f32 v{b}, v{b}, v{b}", f"v_and_b32 v{b}, 0xffff0000, v{b}",
          f"v_sqrt_f32 v{b}, v{b}", f"v_cvt_pk_bf16_f32 v{b}, v{b}, v{b}", f"v_and_b32 v{b}, 0xffff0000, v{b}",
          f"v_rcp_f32 v{vR[f]}, v{b}", f"v_mul_f32 v{vNB[f]}, v{vM[f]}, v{vR[f]}", f"v_sub_f32 v{vNB[f]}, 0, v{vNB[f]}"]
    return r

def norm_step(f, s, packed, tmp):
    r = []
    for k in range(4):
        x = X(f, s) + k
        t = tmp[(k & 1) * 2]
        if packed:
            r += [f"v_lshlrev_b32 v{t}, 16, v{x}", f"v_and_b32 v{t+1}, 0xffff0000, v{x}",
                  f"v_pk_fma_f32 v[{t}:{t+1}], v[{t}:{t+1}], v[{vR[f]}:{vR[f]+1}], v[{vR[f]}:{vR[f]+1}] op_sel:[0,0,1] op_sel_hi:[1,0,1]",
                  f"v_cvt_pk_bf16_f32 v{x}, v{t}, v{t+1}"]
        else:
            r += [f"v_lshlrev_b32 v{t}, 16, v{x}", f"v_and_b32 v{t+1}, 0xffff0000, v{x}",
                  f"v_fma_f32 v{t}, v{t}, v{vR[f]}, v{vNB[f]}", f"v_fma_f32 v{t+1}, v{t+1}, v{vR[f]}, v{vNB[f]}",
                  f"v_cvt_pk_bf16_f32 v{x}, v{t}, v{t+1}"]
    return r

def stats_store(f):
    a, b = vT[19], vT[20]
    return [f"v_and_b32 v{a}, 12, v{vLANE}", f"v_add_u32 v{a}, v{a}, v{vLANE}", f"v_lshlrev_b32 v{a}, 3, v{a}",
            f"v_mov_b32 v{b}, {OOB}", f"v_cmp_gt_u32 vcc, 16, v{vLANE}", f"v_cndmask_b32 v{a}, v{b}, v{a}, vcc",
            I(f"buffer_store_dwordx2 v[{vR[f]}:{vR[f]+1}], v{a}, s[{sWS}:{sWS+3}], s{sSTATO} offen offset:{32*f} sc1", tok="stat")]

def dma_U(i):
    r = []
    base = i * 20480
    for cf in range(5):
        r += [f"s_mul_i32 s{sT2}, s{sW}, 5120", f"s_add_u32 m0, s{sT2}, {base + cf*1024}",
              f"s_add_u32 s{sT3}, s{sUOFF}, {cf*10240 + i*256}",
              I(f"buffer_load_dwordx4 v{vD[1]}, s[{sWU}:{sWU+3}], s{sT3} offen lds", tok=f"U{i}")]
    return r

def mlp_dma_addr(kind):
    t0, t1, t2 = vD[1], vD[2], vD[3]
    if kind == "A":
        r = [f"v_lshrrev_b32 v{t0}, 3, v{vLANE}", f"v_and_b32 v{t1}, 7, v{vLANE}", f"v_and_b32 v{t2}, 6, v{t0}",
             f"v_xor_b32 v{t1}, v{t1}, v{t2}", f"v_lshlrev_b32 v{t1}, 4, v{t1}",
             f"v_and_b32 v{t2}, 4, v{t0}", f"v_add_u32 v{t2}, v{t2}, v{t0}",
             f"v_mul_u32_u24 v{t2}, 3072, v{t2}", f"v_add_u32 v{vD[0]}, v{t2}, v{t1}"]
        for p in range(1, 4):
            j, hw = p >> 1, p & 1
            r.append(f"v_add_u32 v{vD[p]}, {(16*hw+4*j)*3072 - p*1024}, v{vD[0]}")
    else:
        r = [f"v_lshrrev_b32 v{t0}, 2, v{vLANE}", f"v_and_b32 v{t1}, 3, v{vLANE}", f"v_lshrrev_b32 v{t2}, 1, v{t0}", f"v_and_b32 v{t2}, 2, v{t2}",
             f"v_xor_b32 v{t1}, v{t1}, v{t2}", f"v_lshlrev_b32 v{t1}, 4, v{t1}",
             f"v_and_b32 v{t2}, 12, v{t0}", f"v_add_u32 v{t2}, v{t2}, v{t0}",
             f"v_mul_u32_u24 v{t2}, 3072, v{t2}", f"v_add_u32 v{vD[0]}, v{t2}, v{t1}"]
        for p in range(1, 4):
            spl, j = p >> 1, p & 1
            r.append(f"v_add_u32 v{vD[p]}, {(32*spl+4*j)*3072 - p*1024}, v{vD[0]}")
    return r

def dma_M(m):
    slot = m % 4
    if m < 10:
        so = f"s_add_u32 s{sD0}, s{sMOFF}, {m*64*3072}"
    else:
        so = f"s_add_u32 s{sD0}, s{sMOFFB}, {(m-10)*128*3072}"
    r = [f"s_add_u32 m0, s{sM0A}, {slot*16384}", so]
    for p in range(4):
        r.append(I(f"buffer_load_dwordx4 v{vD[p]}, s[{sWM}:{sWM+3}], s{sD0} offen offset:{p*1024} lds", tok=f"M{m}"))
    return r

def mlp_read_addr():
    q, r_, c, rho, t = vT[19], vT[20], vT[21], vT[22], vT[23]
    o = [f"v_lshrrev_b32 v{q}, 4, v{vLANE}", f"v_bfe_u32 v{r_}, v{vLANE}, 2, 2", f"v_and_b32 v{c}, 3, v{vLANE}",
         f"v_and_b32 v{rho}, 1, v{q}", f"v_lshl_add_u32 v{rho}, v{rho}, 2, v{r_}",
         f"v_lshrrev_b32 v{t}, 1, v{q}", f"v_lshlrev_b32 v{t}, 10, v{t}", f"v_lshl_add_u32 v{t}, v{rho}, 7, v{t}",
         f"v_and_b32 v{vRA[1]}, 1, v{c}", f"v_lshl_add_u32 v{t}, v{vRA[1]}, 3, v{t}",
         f"v_and_b32 v{rho}, 6, v{rho}", f"v_lshrrev_b32 v{vRA[1]}, 1, v{c}", f"v_xor_b32 v{rho}, v{rho}, v{vRA[1]}",
         f"v_lshl_add_u32 v{vRA[0]}, v{rho}, 4, v{t}"]
    for h in range(1, 4):
        o.append(f"v_xor_b32 v{vRA[h]}, {32*h}, v{vRA[0]}")
    o += [f"v_lshl_add_u32 v{t}, v{q}, 2, v{r_}", f"v_lshlrev_b32 v{t}, 6, v{t}",
          f"v_and_b32 v{rho}, 1, v{c}", f"v_lshl_add_u32 v{t}, v{rho}, 3, v{t}",
          f"v_and_b32 v{rho}, 1, v{q}", f"v_lshlrev_b32 v{rho}, 1, v{rho}", f"v_lshrrev_b32 v{c}, 1, v{c}", f"v_xor_b32 v{rho}, v{rho}, v{c}",
          f"v_lshl_add_u32 v{vRB[0]}, v{rho}, 4, v{t}", f"v_xor_b32 v{vRB[1]}, 32, v{vRB[0]}"]
    return o

def relayout_issue():
    u, t0, t1, t2 = sT2, vT[19], vT[20], vT[21]
    vo = vT[0:5]
    L([f"s_lshl_b32 s{u}, s{sW}, 5", f"s_add_u32 s{u}, s{u}, s{sRT}",
       f"s_mul_i32 s{sT3}, s{sN}, 88", f"s_add_u32 s{sT3}, s{sT3}, s{u}", f"s_mul_i32 s{sT3}, s{sT3}, 5120", f"s_add_u32 s{sT3}, s{sT3}, {WS_W2P}",
       f"s_cmp_lt_u32 s{u}, 88", f"s_cselect_b32 s{sRLST}, s{sT3}, {OOB}",
       f"s_mov_b32 s{sRL+3}, 0x20000", f"s_cmp_lt_u32 s{u}, 40", "@arm", "s_cbranch_scc0 L_rlw"])
    L([f"s_cmp_lt_u32 s{u}, 20", f"s_cselect_b32 s{sRL}, s{pCRE}, s{pCIM}", f"s_cselect_b32 s{sRL+1}, s{pCRE+1}, s{pCIM+1}",
       f"s_cselect_b32 s{sT3}, 0, 20", f"s_sub_u32 s{sT3}, s{u}, s{sT3}", f"s_lshl_b32 s{sT3}, s{sT3}, 6",
       f"s_mul_i32 s{sT4}, s{sN}, {80*1280}", f"s_add_u32 s{sRLOFF}, s{sT3}, s{sT4}",
       f"s_mov_b32 s{sRL+2}, {640*1280}",
       f"v_lshrrev_b32 v{t0}, 2, v{vLANE}", f"v_and_b32 v{t1}, 3, v{vLANE}", f"v_lshlrev_b32 v{t1}, 4, v{t1}",
       f"v_mul_u32_u24 v{t0}, 1280, v{t0}", f"v_add_u32 v{vo[0]}, v{t0}, v{t1}"])
    for e in range(1, 5): E(f"v_add_u32 v{vo[e]}, {e*16*1280}, v{vo[0]}")
    L(["s_branch L_rlj", "@else", "L_rlw:"])
    L([f"s_mov_b32 s{sRL}, s{pW2}", f"s_mov_b32 s{sRL+1}, s{pW2+1}",
       f"s_cmp_lt_u32 s{u}, 88", f"s_cselect_b32 s{sRL+2}, {1536*1280}, 0",
       f"s_sub_u32 s{sT3}, s{u}, 40", f"s_mul_i32 s{sT3}, s{sT3}, {32*1280}", f"s_mul_i32 s{sT4}, s{sN}, 160", f"s_add_u32 s{sRLOFF}, s{sT3}, s{sT4}",
       f"s_mov_b32 s{sT4}, 6554"])
    for p in range(5):
        L([f"v_add_u32 v{t0}, {64*p}, v{vLANE}", f"v_mul_u32_u24 v{t1}, s{sT4}, v{t0}", f"v_lshrrev_b32 v{t1}, 16, v{t1}",
           f"v_mul_u32_u24 v{t2}, 10, v{t1}", f"v_sub_u32 v{t2}, v{t0}, v{t2}", f"v_lshlrev_b32 v{t2}, 4, v{t2}",
           f"v_mul_u32_u24 v{t1}, 1280, v{t1}", f"v_add_u32 v{vo[p]}, v{t1}, v{t2}"])
    L(["@endarm", "L_rlj:", f"s_and_b32 s{sRL+1}, s{sRL+1}, 0xffff", f"s_mul_i32 s{sT3}, s{sW}, 5120"])
    for p in range(5):
        E(f"s_add_u32 m0, s{sT3}, {L_RL + p*1024}")
        E("s_nop 0")
        E(f"buffer_load_dwordx4 v{vo[p]}, s[{sRL}:{sRL+3}], s{sRLOFF} offen lds", tok="RL")

def relayout_finish():
    t0, t1, t2 = vT[0], vT[1], vT[2]
    r = ["@waitvm RL", f"s_lshl_b32 s{sT2}, s{sW}, 5", f"s_add_u32 s{sT2}, s{sT2}, s{sRT}", f"s_mul_i32 s{sT3}, s{sW}, 5120", f"s_add_u32 s{sT3}, s{sT3}, {L_RL}",
         f"s_cmp_lt_u32 s{sT2}, 40", "@arm", "s_cbranch_scc0 L_rfw",
         f"v_and_b32 v{t0}, 15, v{vLANE}", f"v_lshrrev_b32 v{t1}, 4, v{vLANE}", f"v_lshlrev_b32 v{t1}, 4, v{t1}",
         f"v_lshl_add_u32 v{t0}, v{t0}, 6, v{t1}", f"v_add_u32 v{t0}, s{sT3}, v{t0}"]
    for e in range(5): r.append(f"ds_read_b128 {ar(aRL+4*e)}, v{t0} offset:{e*1024}")
    r += ["@waitds0", "s_branch L_rfj", "@else", "L_rfw:",
          f"v_lshrrev_b32 v{t0}, 2, v{vLANE}", f"v_mul_u32_u24 v{t0}, 160, v{t0}", f"v_and_b32 v{t1}, 3, v{vLANE}",
          f"v_lshl_add_u32 v{t0}, v{t1}, 3, v{t0}", f"v_add_u32 v{t0}, s{sT3}, v{t0}"]
    for e in range(5):
        for jj in range(2):
            r.append(f"ds_read_b64_tr_b16 {ar(aRL+4*e+2*jj, 2)}, v{t0} offset:{jj*2560 + e*32}")
    r += ["@waitds0", "@endarm", "L_rfj:", f"v_add_u32 v{t0}, 4096, v{vL16}"]
    for e in range(5):
        if e < 4: r.append(I(f"buffer_store_dwordx4 {ar(aRL+4*e)}, v{vL16}, s[{sWS}:{sWS+3}], s{sRLST} offen offset:{e*1024} sc1", tok="RLS"))
        else: r.append(I(f"buffer_store_dwordx4 {ar(aRL+4*e)}, v{t0}, s[{sWS}:{sWS+3}], s{sRLST} offen sc1", tok="RLS"))
    return r

def flag_store(base, sline, sidx):
    return [f"s_lshl_b32 s{sD0}, s{sline}, 7", f"s_lshl_b32 s{sD1}, s{sidx}, 2", f"s_add_u32 s{sD0}, s{sD0}, s{sD1}", f"s_add_u32 s{sD0}, s{sD0}, {base}",
            f"s_cmp_eq_u32 s{sW}, 0", f"s_cselect_b32 s{sD0}, s{sD0}, {OOB}",
            f"buffer_store_dword v{vNON}, off, s[{sWS}:{sWS+3}], s{sD0} sc1"]

def scan_addr():
    col, q, ch, t = vT[19], vT[20], vT[21], vT[22]
    return [f"s_lshl_b32 s{sT2}, s{sW}, 13", f"s_add_u32 s{sT2}, s{sT2}, {L_PRIV}",
            f"v_and_b32 v{col}, 15, v{vLANE}", f"v_lshrrev_b32 v{q}, 4, v{vLANE}",
            f"v_lshl_add_u32 v{vCOLR}, v{col}, 4, s{sT2}",
            f"v_lshl_add_u32 v{vEW}, v{q}, 2, v{vCOLR}",
            f"v_min_u32 v{ch}, 39, v{vLANE}", f"v_lshrrev_b32 v{t}, 3, v{ch}", f"v_lshlrev_b32 v{t}, 3, v{t}", f"v_add_u32 v{t}, v{t}, v{ch}",
            f"v_lshl_add_u32 v{vER}, v{t}, 4, s{sT2}",
            f"v_add_u32 v{vCH}, s{sT2}, v{vL16}",
            f"s_lshl_b32 s{sT3}, s{sW}, 9", f"s_add_u32 s{sT3}, s{sT3}, {L_TT}", f"v_lshl_add_u32 v{vTT}, v{vLANE}, 3, s{sT3}",
            f"v_lshlrev_b32 v{vLB}, 5, v{vLANE}", f"v_add_u32 v{vLB}, {L_LB}, v{vLB}",
            f"s_mul_i32 s{sT3}, s{sW}, 5120", f"s_add_u32 s{sT3}, s{sT3}, {L_RL}",
            f"v_lshlrev_b32 v{vTW}, 5, v{col}", f"v_lshl_add_u32 v{vTW}, v{q}, 3, v{vTW}", f"v_add_u32 v{vTW}, s{sT3}, v{vTW}",
            f"v_bfe_u32 v{t}, v{vLANE}, 2, 2", f"v_lshlrev_b32 v{t}, 5, v{t}", f"v_lshl_add_u32 v{t}, v{q}, 8, v{t}",
            f"v_and_b32 v{ch}, 3, v{vLANE}", f"v_lshl_add_u32 v{t}, v{ch}, 3, v{t}", f"v_add_u32 v{vTR}, s{sT3}, v{t}",
            f"v_lshrrev_b32 v{t}, 1, v{q}", f"v_lshlrev_b32 v{t}, 10, v{t}", f"v_lshl_add_u32 v{vHST}, v{col}, 4, v{t}",
            f"v_and_b32 v{t}, 1, v{q}", f"v_mul_u32_u24 v{t}, {20*4096}, v{t}", f"v_add_u32 v{vHST}, v{vHST}, v{t}",
            f"v_min_u32 v{t}, 39, v{vLANE}", f"v_lshlrev_b32 v{vSO}, 4, v{t}"]

def const_tables():
    t = list(range(72, 84))
    L([f"v_mov_b32 v{t[0]}, v{cAR}", f"v_mov_b32 v{t[1]}, v{cAI}", f"v_mov_b32 v{t[2]}, v{cKR}", f"v_sub_f32 v{t[3]}, 0, v{cKI}",
       f"v_mov_b32 v{t[4]}, v{cAR}", f"v_sub_f32 v{t[5]}, 0, v{cAI}", f"v_sub_f32 v{t[6]}, 0, v{cKR}", f"v_sub_f32 v{t[7]}, 0, v{cKI}",
       f"ds_write_b128 v{vER}, {vr(t[0])} offset:{PV_COL}", f"ds_write_b128 v{vER}, {vr(t[4])} offset:{PV_COL+128}",
       f"ds_write_b128 v{vCH}, {vr(cA8)} offset:{PV_CH}", f"ds_write_b128 v{vCH}, {vr(cA32W)} offset:{PV_CH+1024}",
       f"ds_write_b64 v{vCH}, {vr(cOM, 2)} offset:{PV_CH+2048}",
       f"v_mov_b32 v{t[8]}, 0", f"v_mov_b32 v{t[9]}, 0",
       f"s_min_u32 s{sT2}, s{sW}, 2", f"s_lshl_b32 s{sT2}, s{sT2}, 9", f"s_add_u32 s{sT2}, s{sT2}, {L_TT}",
       f"v_lshl_add_u32 v{t[10]}, v{vLANE}, 3, s{sT2}", f"ds_write_b64 v{t[10]}, {vr(t[8], 2)}"])

def ureg(cf, tau): return U(cf, tau >> 2) + (tau & 3)
DPP = "row_ror:8 row_mask:0xf bank_mask:0xf"
def scan_P12():
    C = vT[0:20]
    r = [I(f"ds_read_b128 {vr(C[4*cf])}, v{vCOLR} offset:{PV_COL + cf*256}", tok="colr") for cf in range(5)]
    r.append("@gap 4")
    t = vT[20:24]
    k = 0
    for tau in range(8):
        for cf in range(5):
            u = ureg(cf, tau); tt = t[k % 4]; k += 1
            r += [f"v_mul_f32_dpp v{tt}, v{u}, v{C[4*cf+3]} {DPP}", f"v_fma_f32 v{u}, v{C[4*cf+2]}, v{u}, v{tt}"]
    for tau in range(1, 8):
        src = [(ureg(cf, 0) if tau == 1 else C[4*cf + 2 + (tau & 1)]) for cf in range(5)]
        dst = [C[4*cf + 2 + ((tau + 1) & 1)] for cf in range(5)]
        for cf in range(5): r.append(f"v_fma_f32 v{dst[cf]}, v{C[4*cf]}, v{src[cf]}, v{ureg(cf, tau)}")
        for cf in range(5): r.append(f"v_fmac_f32_dpp v{dst[cf]}, v{src[cf]}, v{C[4*cf+1]} {DPP}")
    for cf in range(5): r.append(f"ds_write_b32 v{vEW}, v{C[4*cf+2]} offset:{PV_E + cf*256}")
    er, ei, a8 = vT[0], vT[4], vT[8]
    r += [f"ds_read_b128 {vr(a8)}, v{vCH} offset:{PV_CH}",
          f"ds_read_b128 {vr(er)}, v{vER} offset:{PV_E}", I(f"ds_read_b128 {vr(ei)}, v{vER} offset:{PV_E+128}", tok="er"), "@gap 6"]
    g0, g1 = vT[12], vT[14]
    r += chorner2(g0, g0+1, er, ei, a8, a8+1, er+1, ei+1)
    r += chorner2(g1, g1+1, g0, g0+1, a8, a8+1, er+2, ei+2)
    r += chorner2(g0, g0+1, g1, g1+1, a8, a8+1, er+3, ei+3)
    r += [f"ds_write_b64 v{vTT}, {vr(g0, 2)} offset:{3*512}"]
    return r

def scan_P3():
    a32 = vT[8]; T = vT[0:8]
    r = [f"ds_read_b128 {vr(a32)}, v{vCH} offset:{PV_CH}"]
    for k in range(4): r.append(f"ds_read_b64 {vr(T[2*k], 2)}, v{vTT} offset:{k*512}")
    r.append("@gap 6")
    m = a32 + 2
    g = vT[12]
    r += chorner2(g, g+1, T[0], T[1], m, m+1, T[2], T[3])
    r += chorner2(vWP0, vWP1, g, g+1, m, m+1, T[4], T[5])
    r += chorner2(g, g+1, vWP0, vWP1, m, m+1, T[6], T[7])
    r += [f"v_mov_b32 v{g+2}, s{sNONCE}", f"v_mov_b32 v{g+3}, s{sNONCE}",
          f"buffer_store_dwordx4 {vr(g)}, v{vSO}, s[{sWS}:{sWS+3}], s{sSST} offen sc1"]
    return r

def lb_loads():
    return [f"buffer_load_dwordx4 {ar(aS+4*jj)}, v{vSO}, s[{sWS}:{sWS+3}], s{sl} offen sc1" for jj, sl in enumerate((sLB0, sLB1, sLB2, sLB3))]
def scan_P4():
    t = vT[0:8]
    chk = []
    for jj, sl in enumerate((sLB0, sLB1, sLB2, sLB3)):
        d = t[2] if jj == 0 else t[0]
        chk += [f"s_cmp_lt_u32 s{sl}, {OOB}", f"s_cselect_b32 s{sT2}, s{sNONCE}, 0", f"v_accvgpr_read_b32 v{d}, a{aS+4*jj+2}",
                f"v_xor_b32 v{d}, s{sT2}, v{d}"]
        if jj: chk += [f"v_or_b32 v{t[2]}, v{t[2]}, v{t[0]}"]
    chk += [f"v_cmp_ne_u32 vcc, 0, v{t[2]}"]
    r = poll(lb_loads(), pad_raw(chk), "lb")
    c = vT[8]
    r += [f"ds_read_b128 {vr(c)}, v{vCH} offset:{PV_CH+1024}", f"ds_read_b64 {vr(vT[12], 2)}, v{vCH} offset:{PV_CH+2048}"]
    for jj in range(4):
        r += [f"v_accvgpr_read_b32 v{t[2*jj]}, a{aS+4*jj}", f"v_accvgpr_read_b32 v{t[2*jj+1]}, a{aS+4*jj+1}"]
    m = c + 2; g0, g1 = vT[14], vT[16]
    r += chorner2(g0, g0+1, t[0], t[1], m, m+1, t[2], t[3])
    r += chorner2(g1, g1+1, g0, g0+1, m, m+1, t[4], t[5])
    r += chorner2(g0, g0+1, g1, g1+1, m, m+1, t[6], t[7])
    r += cmul(g1, g1+1, g0, g0+1, vT[12], vT[13], vT[18])
    r += [f"s_lshl_b32 s{sT2}, s{sW}, 3", f"v_add_u32 v{vT[18]}, s{sT2}, v{vLB}", f"ds_write_b64 v{vT[18]}, {vr(g1, 2)}"]
    return r

def pad_raw(lst):
    from asmlib import insert_nops
    return [i.text for i in insert_nops([I(t) for t in lst])]

def scan_P56():
    lb = vT[0]; er, ei = vT[8], vT[12]; c8, c32w = vT[16], vT[20]
    r = [f"ds_read_b128 {vr(lb)}, v{vLB}", f"ds_read_b128 {vr(lb+4)}, v{vLB} offset:16",
         f"ds_read_b128 {vr(c8)}, v{vCH} offset:{PV_CH}", f"ds_read_b64 {vr(c32w, 2)}, v{vCH} offset:{PV_CH+1024}",
         f"ds_read_b128 {vr(er)}, v{vER} offset:{PV_E}", f"ds_read_b128 {vr(ei)}, v{vER} offset:{PV_E+128}", "@gap 6",
         f"v_add_f32 v{lb}, v{lb}, v{lb+2}", f"v_add_f32 v{lb+1}, v{lb+1}, v{lb+3}",
         f"v_add_f32 v{lb+4}, v{lb+4}, v{lb+6}", f"v_add_f32 v{lb+5}, v{lb+5}, v{lb+7}",
         f"v_add_f32 v{lb}, v{lb}, v{lb+4}", f"v_add_f32 v{lb+1}, v{lb+1}, v{lb+5}"]
    hr, hi = vT[18], None
    R = [vT[2], vT[3], vT[22], vT[23]]
    q0, q1 = vT[4], vT[20]
    tmp = vT[2]
    r += chorner2(tmp, tmp+1, lb, lb+1, c32w, c32w+1, vWP0, vWP1)
    r += [f"v_mov_b32 v{q0}, v{tmp}", f"v_mov_b32 v{q1}, v{tmp+1}"]
    for k in range(3):
        r += chorner2(q0+k+1, q1+k+1, q0+k, q1+k, c8, c8+1, er+k, ei+k)
    r += [f"ds_write_b128 v{vER}, {vr(q0)} offset:{PV_E}", f"ds_write_b128 v{vER}, {vr(q1)} offset:{PV_E+128}"]
    C = vT[0:10]; Z = vT[10:15]
    for cf in range(5): r.append(f"ds_read_b32 v{Z[cf]}, v{vEW} offset:{PV_E + cf*256}")
    for cf in range(5): r.append(f"ds_read_b64 {vr(C[2*cf], 2)}, v{vCOLR} offset:{PV_COL + cf*256}")
    r.append("@gap 6")
    for tau in range(8):
        src = [(Z[cf] if tau == 0 else ureg(cf, tau-1)) for cf in range(5)]
        for cf in range(5): r.append(f"v_fma_f32 v{ureg(cf, tau)}, v{C[2*cf]}, v{src[cf]}, v{ureg(cf, tau)}")
        for cf in range(5): r.append(f"v_fmac_f32_dpp v{ureg(cf, tau)}, v{src[cf]}, v{C[2*cf+1]} {DPP}")
    k = 0
    for cf in range(5):
        for f in range(2):
            t = vT[16 + 2*(k % 4)]; k += 1
            u = U(cf, f)
            r += [f"v_cvt_pk_bf16_f32 v{t}, v{u}, v{u+1}", f"v_cvt_pk_bf16_f32 v{t+1}, v{u+2}, v{u+3}",
                  f"ds_write_b64 v{vTW}, {vr(t, 2)} offset:{(cf*2+f)*512}"]
    for cf in range(5):
        for jj in range(2):
            r.append(f"ds_read_b64_tr_b16 {vr(56 + 4*cf + 2*jj, 2)}, v{vTR} offset:{cf*1024 + jj*128}")
    r.append("@gap 6")
    for cf in range(5):
        r += [f"s_mul_i32 s{sT2}, s{sG}, 5", f"s_add_u32 s{sT2}, s{sT2}, {cf}", f"s_and_b32 s{sT3}, s{sT2}, 3", f"s_lshr_b32 s{sT2}, s{sT2}, 2",
              f"s_lshl_b32 s{sT2}, s{sT2}, 12", f"s_lshl_b32 s{sT3}, s{sT3}, 8", f"s_add_u32 s{sT2}, s{sT2}, s{sT3}", f"s_add_u32 s{sT2}, s{sT2}, s{sA2H}",
              I(f"buffer_store_dwordx4 {vr(56 + 4*cf)}, v{vHST}, s[{sWS}:{sWS+3}], s{sT2} offen sc1", tok="HST")]
    return r

def swiglu(acc, hs, sks, ksadd, tokname, packed=False):
    r = []
    for a, (h0, h1) in enumerate(hs):
        for f in range(2):
            G = vT[0:8]; Uu = vT[8:16]; T = vT[16:24];
            for j in range(8):
                h = (h0, h1)[j >> 2]
                r += [f"v_accvgpr_read_b32 v{G[j]}, a{acc(0, h, f) + (j & 3)}", f"v_accvgpr_read_b32 v{Uu[j]}, a{acc(1, h, f) + (j & 3)}"]
            for j in range(8): r.append(f"v_mul_f32 v{T[j]}, {NLOG2E}, v{G[j]}")
            for j in range(8): r += [f"v_exp_f32 v{T[j]}, v{T[j]}", f"v_mul_f32 v{G[j]}, v{G[j]}, v{Uu[j]}"]
            for j in range(8): r.append(f"v_add_f32 v{T[j]}, 1.0, v{T[j]}")
            for j in range(8): r.append(f"v_rcp_f32 v{T[j]}, v{T[j]}")
            for j in range(8): r.append(f"v_mul_f32 v{G[j]}, v{G[j]}, v{T[j]}")
            o = Uu[0] if (a*2+f) % 2 == 0 else Uu[4]
            for j in range(4): r.append(f"v_cvt_pk_bf16_f32 v{o+j}, v{G[2*j]}, v{G[2*j+1]}")
            r += [f"s_add_u32 s{sT2}, s{sks}, {(ksadd + a)*4096}",
                  I(f"buffer_store_dwordx4 {vr(o)}, v{vL16}, s[{sWS}:{sWS+3}], s{sT2} offen offset:{f*1024} sc1", tok=tokname)]
    return r

def step_reads(blk, s, par):
    r = []
    if blk == "U":
        i, sh2, sh = s // 4, (s >> 1) & 1, s & 1
        off = i*20480 + sh2*10240 - (61440 if i >= 3 else 0)
        for cf in range(5):
            r.append(f"ds_read_b128 {ar(FB(par, cf))}, v{vRU[sh]} offset:{off + cf*1024}")
    elif blk == "A":
        m, sp = s // 2, s & 1
        for h in range(4):
            for mu in range(2):
                for j in range(2):
                    r.append(f"ds_read_b64_tr_b16 {ar(FB(par, h*2+mu) + 2*j, 2)}, v{vRA[h]} offset:{(m % 4)*16384 + (2*sp+mu)*4096 + j*2048}")
    else:
        m, sp = 10 + s // 4, s & 3
        for h in range(2):
            for mu in range(2):
                for j in range(2):
                    r.append(f"ds_read_b64_tr_b16 {ar(FB(par, h*2+mu) + 2*j, 2)}, v{vRB[h]} offset:{(m % 4)*16384 + (2*(sp >> 1)+mu)*4096 + (2*(sp & 1)+j)*1024}")
    return r

def step_mfma(blk, s, par):
    r = []
    if blk == "U":
        for cf in range(5):
            for f in range(2):
                d = vr(U(cf, f)); c = "0" if s == 0 else d
                r.append(f"v_mfma_f32_16x16x32_bf16 {d}, {vr(X(f, s))}, {ar(FB(par, cf))}, {c}")
    else:
        nh = 4 if blk == "A" else 2
        acc = ACCA if blk == "A" else ACCB
        for h in range(nh):
            for mu in range(2):
                for f in range(2):
                    d = ar(acc(mu, h, f)); c = "0" if s == 0 else d
                    r.append(f"v_mfma_f32_16x16x32_bf16 {d}, {ar(FB(par, h*2+mu))}, {vr(X(f, s))}, {c}")
    return r

def stage_of(blk, s):
    return ("U", s // 4) if blk == "U" else (("M", s // 2) if blk == "A" else ("M", 10 + s // 4))

class Queue:
    def __init__(self): self.q = []; self.hold = 0
    def add(self, lst): self.q += [t if isinstance(t, I) else I(t) for t in lst]
    def _region(self, out):
        i = self.q[0]
        end = "@endarm" if i.op == "@arm" else "@raw_end"
        while True:
            j = self.q.pop(0); out.append(j)
            if j.cls == "pseudo" and j.op == end: break
        while self.q and self.q[0].cls == "label": out.append(self.q.pop(0))
    def pop(self, n):
        out = []
        if self.hold > 0:
            self.hold -= 1; return out
        while self.q and n > 0:
            i = self.q[0]
            if i.cls == "pseudo" and i.op == "@gap":
                self.q.pop(0); self.hold = int(i.arg); break
            if i.cls == "pseudo" and i.op in ("@arm", "@raw_begin"):
                self._region(out); n -= 4
                continue
            if i.cls == "branch" or i.op.startswith("s_cmp") or i.op.startswith("s_bitcmp"):
                out.append(self.q.pop(0))
                while self.q:
                    k = self.q[0]
                    if k.op.startswith("s_cselect") or k.cls == "branch": out.append(self.q.pop(0))
                    elif k.op in ("@arm", "@raw_begin"): self._region(out); n -= 4
                    else: break
                n -= 1
                continue
            self.q.pop(0); out.append(i)
            if i.cls not in ("pseudo", "label"): n -= 2 if i.cls == "trans" else 1
        return out
    def flush(self):
        out = [i for i in self.q if not (i.cls == "pseudo" and i.op == "@gap")]
        self.q = []; self.hold = 0
        return out

def phase1_blocks():
    Q = Queue()
    seq = [("U", s) for s in range(20)] + [("A", s) for s in range(20)] + [("B", s) for s in range(20)]
    L(["@waitvm U0", "s_barrier"])
    L(stamp("U start"))
    first = step_reads("U", 0, 0)
    L(first)
    if opt.shadow_norm:
        L(norm_step(1, 0, False, vT[20:24]))
    L(nonce_load())
    for n, (blk, s) in enumerate(seq):
        par = n & 1
        mf = step_mfma(blk, s, par)
        nxt = seq[n + 1] if n + 1 < len(seq) else None
        rd = [I(t) for t in step_reads(nxt[0], nxt[1], par ^ 1)] if nxt else []
        if rd: rd[-1].tok = f"rd{n+1}"
        boundary = nxt is None or stage_of(*nxt) != stage_of(blk, s)
        gaps = [[] for _ in mf]
        start = 0
        pre = []
        if blk == "U" and s == 11: pre += [f"v_add_u32 v{vRU[0]}, 61440, v{vRU[0]}"]
        if blk == "U" and s == 12: pre += [f"v_add_u32 v{vRU[1]}, 61440, v{vRU[1]}"]
        if boundary:
            kind, idx = stage_of(blk, s)
            start = 3 if len(mf) >= 10 else 2
            b = []
            flush = (kind == "M" and idx in (opt.X_stage, opt.Y_stage)) or nxt is None
            if kind == "U" and idx == 4: flush = True
            if flush: b += Q.flush()
            if nxt is not None:
                nk, ni = stage_of(*nxt)
                b.append(I(f"@waitboth {nk}{ni}"))
            else:
                b.append(I("@waitds0"))
            if kind == "M" and idx == 1: b.append(I("@waitvm RLS")); b.append(I("@waitvm stat"))
            b.append(I("s_barrier"))
            post = []
            if kind == "U" and idx < 4: post += dma_M(idx)
            if kind == "M" and idx + 4 <= 14: post += dma_M(idx + 4)
            if kind == "M" and idx == 5: post += mlp_dma_addr("B")
            if kind == "M" and idx == 1: post += flag_store(WS_FLW, sN, sRT)
            if kind == "M" and idx == opt.L_stage: post += lb_loads()
            if (opt.stamps or opt.probe) and (opt.fine or (kind, idx) in (("U", 4), ("M", 9), ("M", 14))): post += stamp(f"{kind}{idx} end")
            gaps[start - 1] += b
            post = [t if isinstance(t, I) else I(t) for t in post]
            g = start - 1
            for t in post:
                gaps[min(g, len(mf) - 1)].append(t)
                if t.cls == "vmem": g += 1
            if kind == "M" and idx == opt.X_stage: Q.add(scan_P3())
            if kind == "M" and idx == opt.Y_stage - 1: Q.add(scan_P4())
            if kind == "M" and idx == opt.Y_stage: Q.add(scan_P56())
            if kind == "U" and idx == 0: Q.add(relayout_finish())
        if rd:
            span = max(1, int((len(mf) - start) * opt.readspan))
            for k, t in enumerate(rd):
                gaps[start + (k * span) // len(rd)].append(t)
        if blk == "U" and opt.shadow_norm and s < 19:
            nq = [I(t) for t in norm_step(1, s + 1, False, vT[20:24])]
            for k, t in enumerate(nq): gaps[(k * len(mf)) // len(nq)].append(t)
        if blk == "A" and s == 0:
            pre += nonce_get()
            Q.add(scan_P12())
        if blk == "B" and s == 0:
            Q.add(swiglu(ACCA, [(0, 1), (2, 3)], sKSA, 0, "HHA"))
        L(pre)
        E(f"@waitds rd{n}")
        rate = {"U": 1, "A": opt.rateA, "B": opt.rateB}[blk]
        for k, t in enumerate(mf):
            E(t)
            L(gaps[k])
            used = sum(1 for x in gaps[k] if x.cls not in ("pseudo",))
            if not (boundary and k < start):
                L(Q.pop(max(rate + 1 - used, 0 if rate == 1 else 1)))
    L(Q.flush())

P2ACC = [("a", 4*k) for k in range(20)]
A_SLOTS = [("a", 80 + 4*k) for k in range(20)]
W_SLOTS = [("v", 96 + 4*k) for k in range(40)] + [("a", 160 + 4*k) for k in range(24)]
def rg(t, c=4): return f"{t[0]}[{t[1]}:{t[1]+c-1}]"
vA2 = [3, 4, 5, 6]; vW4 = 7; vPW = [8, 9, 10]; vPR = 11; vOUT = 12; vXO = 13; vSTA = 14; vDS = 15
vXR = list(range(56, 76)); vY = list(range(76, 96)); vDK = [16, 17, 18, 19, 20]; vST = list(range(32, 40))
NSTEP = 22
def ks_off(st): return st if st < 10 else 40 - 10 + st
def p2_setup():
    t = vT[16]
    r = []
    for jj in range(4):
        r += [f"s_add_u32 s{sT2}, s{sW}, {jj}", f"s_and_b32 s{sT2}, s{sT2}, 3", f"s_lshl_b32 s{sT3}, s{sT2}, 10", f"v_add_u32 v{vA2[jj]}, s{sT3}, v{vL16}"]
        if jj:
            r += [f"s_mul_i32 s{sT3}, s{sT2}, 15360", f"s_add_u32 s{sT3}, s{sT3}, {(3-jj)*5120}", f"v_add_u32 v{vPW[jj-1]}, s{sT3}, v{vL16}"]
    r += [f"s_mul_i32 s{sT3}, s{sW}, 15360", f"v_add_u32 v{vPR}, s{sT3}, v{vL16}", f"v_add_u32 v{vW4}, 4096, v{vL16}",
          f"s_mul_i32 s{sP2A}, s{sRT}, {88*4096}", f"s_mul_i32 s{sP2W}, s{sN}, {88*5120}", f"s_add_u32 s{sP2W}, s{sP2W}, {WS_W2P}"]
    return r
def step_ks(st):
    return (10, st) if st < 10 else (12, 40 + st - 10)
def p2_wload(st):
    mul, c = step_ks(st)
    r = [f"s_mul_i32 s{sT2}, s{sW}, {mul*5120}", f"s_add_u32 s{sT2}, s{sT2}, s{sP2W}", f"s_add_u32 s{sT2}, s{sT2}, {c*5120}"]
    for e in range(5):
        slot = W_SLOTS[WMAP[st] * 5 + e]
        if e < 4: r.append(f"buffer_load_dwordx4 {rg(slot)}, v{vL16}, s[{sWS}:{sWS+3}], s{sT2} offen offset:{e*1024} sc1")
        else: r.append(f"buffer_load_dwordx4 {rg(slot)}, v{vW4}, s[{sWS}:{sWS+3}], s{sT2} offen sc1")
    return r
def p2_aload(st):
    mul, c = step_ks(st)
    r = [f"s_mul_i32 s{sT3}, s{sW}, {mul*4096}", f"s_add_u32 s{sT3}, s{sT3}, s{sP2A}", f"s_add_u32 s{sT3}, s{sT3}, {c*4096}"]
    for jj in range(4):
        r.append(f"buffer_load_dwordx4 {rg(A_SLOTS[(st % 5)*4 + jj])}, v{vA2[jj]}, s[{sWS}:{sWS+3}], s{sT3} offen sc1")
    return r
WMAP = [st % 12 for st in range(NSTEP)]
def flag_load(base, sline, shift, mask):
    return [f"s_lshr_b32 s{sT2}, s{sline}, {shift}", f"s_lshl_b32 s{sT2}, s{sT2}, 7", f"s_add_u32 s{sT2}, s{sT2}, {base}",
            f"v_and_b32 v{vFLAG}, {mask}, v{vLANE}", f"v_lshlrev_b32 v{vFLAG}, 2, v{vFLAG}",
            f"buffer_load_dword v{vFLAG}, v{vFLAG}, s[{sWS}:{sWS+3}], s{sT2} offen sc1"]
def flag_wait(base, sline, shift, mask, name):
    ld = flag_load(base, sline, shift, mask)
    return poll(ld, [f"v_cmp_ne_u32 vcc, s{sNONCE}, v{vFLAG}"], name)

def p2_mfma(st):
    r = []
    first = st in (0, 10)
    for jj in range(4):
        for e in range(5):
            d = rg(P2ACC[jj*5+e]); c = "0" if first else d
            r.append(f"v_mfma_f32_16x16x32_bf16 {d}, {rg(A_SLOTS[(st % 5)*4+jj])}, {rg(W_SLOTS[WMAP[st]*5+e])}, {c}")
    return r

def p2_partials(base):
    r = []
    for jj in range(1, 4):
        for e in range(5):
            r.append(f"ds_write_b128 v{vPW[jj-1]}, {rg(P2ACC[jj*5+e])} offset:{base + e*1024}")
    return r

def p2_epi_loads():
    dn, q, t = vT[0+8], vT[1+8], vT[2+8]
    r = [f"v_and_b32 v{dn}, 15, v{vLANE}", f"v_lshrrev_b32 v{q}, 4, v{vLANE}",
         f"s_lshl_b32 s{sT2}, s{sRT}, 6", f"s_lshr_b32 s{sT3}, s{sW}, 1", f"s_lshl_b32 s{sT3}, s{sT3}, 5", f"s_add_u32 s{sT2}, s{sT2}, s{sT3}",
         f"s_and_b32 s{sT3}, s{sW}, 1", f"s_lshl_b32 s{sT3}, s{sT3}, 2", f"s_add_u32 s{sT2}, s{sT2}, s{sT3}",
         f"v_lshl_add_u32 v{q}, v{q}, 3, s{sT2}",
         f"s_mul_i32 s{sT3}, s{sN}, 80", f"v_add_u32 v{dn}, s{sT3}, v{dn}",
         f"v_mul_u32_u24 v{t}, 640, v{q}", f"v_add_u32 v{t}, v{t}, v{dn}",
         f"v_lshlrev_b32 v{vXO}, 1, v{t}", f"v_lshlrev_b32 v{vOUT}, 2, v{t}", f"v_lshlrev_b32 v{vSTA}, 3, v{q}", f"v_lshlrev_b32 v{vDS}, 1, v{dn}"]
    for rr in range(4):
        r.append(f"s_mov_b32 s{sT2}, {rr*1280}")
        for e in range(5):
            r.append(f"buffer_load_ushort v{vXR[e*4+rr]}, v{vXO}, s[{sX}:{sX+3}], s{sT2} offen offset:{e*32}")
    for e in range(5):
        r.append(f"global_load_ushort v{vDK[e]}, v{vDS}, s[{pDSK}:{pDSK+1}] offset:{e*32}")
    return r
def p2_stat_loads():
    return [f"s_mov_b32 s{sT2}, {WS_STAT}",
            f"buffer_load_dwordx4 {vr(vST[0])}, v{vSTA}, s[{sWS}:{sWS+3}], s{sT2} offen sc1",
            f"buffer_load_dwordx4 {vr(vST[4])}, v{vSTA}, s[{sWS}:{sWS+3}], s{sT2} offen offset:16 sc1"]

def p2_yfinish():
    r = []
    T = vT[8:24]
    for e in range(5): r.append(f"v_lshlrev_b32 v{vDK[e]}, 16, v{vDK[e]}")
    for e in range(5):
        b = T[4*(e % 2)]; b2 = T[8 + 4*(e % 2)]
        for k in range(3):
            pass
        r.append(f"ds_read_b128 {vr(b)}, v{vPR} offset:{L_YP + e*1024}")
        r.append(f"ds_read_b128 {vr(b2)}, v{vPR} offset:{L_YP + 5120 + e*1024}")
        for rr in range(4): r.append(f"v_lshlrev_b32 v{vXR[e*4+rr]}, 16, v{vXR[e*4+rr]}")
        for rr in range(4): r.append(f"v_add_f32 v{vY[e*4+rr]}, v{vY[e*4+rr]}, v{b+rr}")
        r.append(f"ds_read_b128 {vr(b)}, v{vPR} offset:{L_YP + 10240 + e*1024}")
        for rr in range(4): r.append(f"v_add_f32 v{vY[e*4+rr]}, v{vY[e*4+rr]}, v{b2+rr}")
        for rr in range(4): r.append(f"v_fma_f32 v{b2+rr}, v{vXR[e*4+rr]}, v{vST[2*rr]}, v{vST[2*rr+1]}")
        for rr in range(4): r.append(f"v_fmac_f32 v{vY[e*4+rr]}, v{b2+rr}, v{vDK[e]}")
        for rr in range(4): r.append(f"v_add_f32 v{vY[e*4+rr]}, v{vY[e*4+rr]}, v{b+rr}")
    return r

def p2_final():
    r = []
    O = list(range(96, 116)); B = list(range(116, 176))
    for k in range(3):
        for e in range(5):
            r.append(f"ds_read_b128 {vr(B[k*20+e*4])}, v{vPR} offset:{k*5120 + e*1024}")
    for j in range(20): r.append(f"v_accvgpr_read_b32 v{O[j]}, a{j}")
    for k in range(3):
        for j in range(0, 20, 2):
            r.append(f"v_pk_add_f32 v[{O[j]}:{O[j]+1}], v[{O[j]}:{O[j]+1}], v[{B[k*20+j]}:{B[k*20+j]+1}]")
    T = B[0:20]
    for j in range(20): r.append(f"v_mul_f32 v{T[j]}, {NLOG2E}, v{O[j]}")
    for j in range(20): r += [f"v_exp_f32 v{T[j]}, v{T[j]}", f"v_mul_f32 v{O[j]}, v{O[j]}, v{vY[j]}"]
    for j in range(20): r.append(f"v_add_f32 v{T[j]}, 1.0, v{T[j]}")
    for j in range(20): r.append(f"v_rcp_f32 v{T[j]}, v{T[j]}")
    for rr in range(4):
        r.append(f"s_mov_b32 s{sT2}, {rr*2560}")
        for e in range(5):
            j = e*4 + rr
            r += [f"v_fma_f32 v{O[j]}, v{O[j]}, v{T[j]}, v{vXR[j]}",
                  f"buffer_store_dword v{O[j]}, v{vOUT}, s[{sOUT}:{sOUT+3}], s{sT2} offen offset:{e*64}"]
    return r

def phase2():
    L(stamp("B mfma end"))
    L(swiglu(ACCB, [(0, 1)], sKSB, 0, "HHB"))
    L(p2_setup())
    L(flag_load(WS_FLW, sN, 0, 31))
    L(["@waitvm HHB", "s_barrier"])
    L(flag_store(WS_FLH, sC, sG)); L(flag_store(WS_FLHH, sC, sG))
    L(stamp("flags out"))
    L(flag_wait(WS_FLW, sN, 0, 31, "w")[0:0])
    L(poll(flag_load(WS_FLW, sN, 0, 31), [f"v_cmp_ne_u32 vcc, s{sNONCE}, v{vFLAG}"], "w"))
    for st in range(opt.nWpre - 2): L(p2_wload(st))
    L(flag_load(WS_FLH, sRT, 1, 15))
    for st in range(opt.nWpre - 2, opt.nWpre): L(p2_wload(st))
    L(poll(flag_load(WS_FLH, sRT, 1, 15), [f"v_cmp_ne_u32 vcc, s{sNONCE}, v{vFLAG}"], "h"))
    L(stamp("h ready"))
    for st in range(5): L(p2_aload(st))
    L(p2_epi_loads()); L(p2_stat_loads())
    Q = Queue()
    for st in range(NSTEP):
        mf = p2_mfma(st)
        post = []
        if st == 10:
            for j in range(20): E(f"v_accvgpr_read_b32 v{vY[j]}, a{j}")
            L(p2_partials(L_YP))
            L(["@waitds0", "s_barrier"])
            L(stamp("y done"))
            L(poll(flag_load(WS_FLHH, sRT, 1, 15), [f"v_cmp_ne_u32 vcc, s{sNONCE}, v{vFLAG}"], "hh"))
            L(stamp("hh ready"))
            for s2 in range(10, 15): L(p2_aload(s2))
            L(p2_yfinish())
        if st == 7: Q.add(flag_load(WS_FLHH, sRT, 1, 15))
        for k, t in enumerate(mf):
            E(t)
            if k == 19 or k == 4:
                pass
        if st + 5 < NSTEP and not (st < 10 <= st + 5): L(p2_aload(st + 5))
        if st + 12 < NSTEP: L(p2_wload(st + 12))
        L(Q.flush())
    L([f"v_add_u32 v{v}, {L_OP}, v{v}" for v in vPW + [vPR]])
    L(p2_partials(0))
    L(["@waitds0", "s_barrier"])
    L(stamp("out done"))
    L(p2_final())
    L(stamp("end")); L(stamp("cyc1", True))

def stamps_out():
    if opt.probe:
        L(["@raw_begin", "L_spin:", f"s_memrealtime s[{sSTAMP}:{sSTAMP+1}]", "s_waitcnt lgkmcnt(0)", f"s_sub_u32 s{sT2}, s{sSTAMP}, s3",
           f"s_cmp_lt_u32 s{sT2}, 5000", "s_cbranch_scc1 L_spin", "@raw_end"])
    if not opt.stamps: return
    L([f"s_lshl_b32 s{sT2}, s2, 2", f"s_add_u32 s{sT2}, s{sT2}, s{sW}", f"s_lshl_b32 s{sT2}, s{sT2}, 8", f"s_add_u32 s{sT2}, s{sT2}, {WS_STAMP}",
       f"v_lshlrev_b32 v{vT[0]}, 2, v{vLANE}", f"buffer_store_dword v0, v{vT[0]}, s[{sWS}:{sWS+3}], s{sT2} offen"])

def build():
    global P
    P.clear(); lab[0] = 0; stamp_n[0] = 0; stamp_names.clear()
    prologue()
    L(stamp("issued")); L(stamp("cyc0", True))
    E(f"v_mov_b32 v{vONES}, 0x3f803f80")
    constants()
    L(stamp("consts"))
    nonce_seed()
    x_arrive(0)
    L(stamp("x0 in"))
    E("s_barrier")
    for i in range(4): L(dma_U(i))
    L(x_stats(0))
    L([f"v_add_u32 v{vRX[0]}, 81920, v{vRX[0]}", f"v_add_u32 v{vRX[1]}, 81920, v{vRX[1]}"])
    nrm = []
    for s in range(20): nrm += norm_step(0, s, True, vT[20:24])
    x_arrive(1, nrm)
    L(stamp("x1 in"))
    E("s_barrier")
    L(dma_U(4))
    relayout_issue()
    nonce_publish()
    L(scan_addr())
    const_tables()
    L(x_stats(1))
    L(stats_store(0)); L(stats_store(1))
    L(mlp_dma_addr("A")); L(mlp_read_addr())
    if not opt.shadow_norm:
        for s in range(20): L(norm_step(1, s, True, vT[20:24]))
    phase1_blocks()
    phase2()
    stamps_out()
    E("s_endpgm")
    prog = finalize(P)
    return prog

HEADER = """; Kernarg layout for this problem (128 bytes, ptrs only, base s[0:1]):
; @launch grid=(256,1,1) block=(256,1,1) lds=163840
.amdgcn_target "amdgcn-amd-amdhsa--gfx950"
.text
.globl {k}
.p2align 8
.type {k},@function
{k}:
"""
FOOTER = """
L_exit:
    s_endpgm
L_codeend:
    .fill 2112, 4, 0xbf800000
.section .rodata,"a"
.p2align 6
.amdhsa_kernel {k}
  .amdhsa_next_free_vgpr 512
  .amdhsa_next_free_sgpr 102
  .amdhsa_accum_offset 256
  .amdhsa_group_segment_fixed_size 0
  .amdhsa_kernarg_size 128
  .amdhsa_user_sgpr_count 2
  .amdhsa_user_sgpr_kernarg_segment_ptr 1
  .amdhsa_system_sgpr_workgroup_id_x 1
  .amdhsa_float_denorm_mode_32 3
.end_amdhsa_kernel
"""
def text():
    prog = build()
    body = "\n".join(("" if i.cls == "label" else "    ") + i.text for i in prog)
    return HEADER.format(k=KNAME) + body + FOOTER.format(k=KNAME), prog

if __name__ == "__main__":
    out = sys.argv[1]
    for a in sys.argv[2:]:
        k, v = a.split("=")
        cur = getattr(opt, k)
        setattr(opt, k, v.replace("_", " ") if isinstance(cur, str) else (v in ("1", "True") if isinstance(cur, bool) else type(cur)(float(v))))
    t, prog = text()
    open(out, "w").write(t)
    print(stats(prog), len(prog))
    if opt.stamps:
        import json
        json.dump(stamp_names, open(out + ".stamps.json", "w"))
```

```python
import re

REG_RE = re.compile(r"^(-|abs\()?\s*([vas])(\d+)\)?$")
RNG_RE = re.compile(r"^(-)?([vas])\[(\d+):(\d+)\]$")

def regs_of(tok):
    tok = tok.strip()
    m = RNG_RE.match(tok)
    if m:
        return [(m.group(2), i) for i in range(int(m.group(3)), int(m.group(4)) + 1)]
    m = REG_RE.match(tok)
    if m:
        return [(m.group(2), int(m.group(3)))]
    if tok == "vcc":
        return [("vcc", 0)]
    if tok == "m0":
        return [("m0", 0)]
    if tok == "exec":
        return [("exec", 0)]
    return []

TRANS = ("v_exp_f32", "v_log_f32", "v_rcp_f32", "v_rsq_f32", "v_sqrt_f32", "v_sin_f32", "v_cos_f32")
RMW = ("v_fmac_f32", "v_fmac_f32_dpp", "v_dot2c_f32_bf16", "v_pk_fmac")

class I:
    __slots__ = ("text", "op", "cls", "rd", "wr", "tok", "arg", "dpp", "a", "b", "c", "lds", "wide", "passes", "data")
    def __init__(self, text, tok=None):
        self.text = text
        self.tok = tok
        self.arg = None
        self.rd = set(); self.wr = set()
        self.dpp = False; self.a = self.b = self.c = None
        self.lds = False; self.wide = False; self.passes = 0; self.data = set()
        t = text.split(";")[0].strip()
        if t.endswith(":"):
            self.op = t; self.cls = "label"; return
        if t.startswith("."):
            self.op = t; self.cls = "dir"; return
        sp = t.split(None, 1)
        self.op = op = sp[0]
        rest = sp[1] if len(sp) > 1 else ""
        ops = [o.strip() for o in rest.split(",")] if rest else []
        mods = ""
        if ops:
            last = ops[-1].split(None, 1)
            if len(last) > 1 and not last[0].startswith("hwreg"):
                ops[-1] = last[0]; mods = last[1]
        R = [regs_of(o) for o in ops]
        if op.startswith("v_mfma"):
            self.cls = "mfma"
            self.wr = set(R[0]); self.a = set(R[1]); self.b = set(R[2]); self.c = set(R[3])
            self.rd = self.a | self.b | self.c
            self.passes = 4 if "16x16x32" in op else 8
        elif op.startswith("v_"):
            self.cls = "trans" if op in TRANS else "valu"
            self.dpp = ("_dpp" in op) or ("row_" in mods)
            if op.startswith("v_permlane"):
                self.wr = set(R[0]) | set(R[1]); self.rd = set(self.wr); self.cls = "perm"
            elif op.startswith("v_cmp"):
                self.wr = set(R[0]); self.rd = set().union(*R[1:])
            elif op.startswith("v_readfirstlane") or op.startswith("v_readlane"):
                self.wr = set(R[0]); self.rd = set().union(*R[1:]); self.cls = "rdlane"
            elif op.startswith("v_add_co") or op.startswith("v_addc_co"):
                self.wr = set(R[0]) | set(R[1]); self.rd = set().union(*R[2:])
            else:
                self.wr = set(R[0]); self.rd = set().union(*R[1:]) if len(R) > 1 else set()
                if op in RMW or op.startswith("v_fmac") or self.dpp:
                    self.rd |= self.wr
                if op.startswith("v_dot2"):
                    self.cls = "dot"
        elif op.startswith("ds_"):
            self.cls = "ds"
            if op.startswith("ds_read") or op.startswith("ds_bpermute"):
                self.wr = set(R[0]); self.rd = set().union(*R[1:])
            else:
                self.rd = set().union(*R); self.data = set().union(*R[1:])
        elif op.startswith("buffer_") or op.startswith("global_"):
            self.cls = "vmem"
            self.lds = (" lds" in " " + mods) or ("_lds_" in op)
            if "load" in op and not self.lds:
                self.wr = set(R[0]); self.rd = set().union(*R[1:])
            elif "load" in op:
                self.rd = set().union(*R); self.rd.add(("m0", 0))
            elif "store" in op:
                self.rd = set().union(*R)
                self.data = set(R[0]) if op.startswith("buffer_") else set(R[1])
                self.wide = op.endswith("x3") or op.endswith("x4")
            else:
                self.rd = set().union(*R) if R else set()
        elif op.startswith("s_load") or op in ("s_memtime", "s_memrealtime"):
            self.cls = "smem"
            self.wr = set(R[0]); self.rd = set().union(*R[1:]) if len(R) > 1 else set()
        elif op == "s_barrier":
            self.cls = "barrier"
        elif op == "s_waitcnt":
            self.cls = "wait"
        elif op == "s_nop":
            self.cls = "nop"; self.arg = int(ops[0])
        elif op.startswith("s_cbranch") or op in ("s_branch", "s_endpgm"):
            self.cls = "branch"
            if "vcc" in op: self.rd = {("vcc", 0)}
        elif op.startswith("s_cmp") or op.startswith("s_bitcmp"):
            self.cls = "salu"; self.rd = set().union(*R) if R else set()
        elif op in ("s_sleep", "s_setprio"):
            self.cls = "salu"
        elif op.startswith("s_"):
            self.cls = "salu"
            self.wr = set(R[0]); self.rd = set().union(*R[1:]) if len(R) > 1 else set()
        elif op.startswith("@"):
            self.cls = "pseudo"; self.arg = ops[0] if ops else None
        else:
            raise ValueError("cannot parse: " + text)

def is_valu(i):
    return i.cls in ("valu", "trans", "perm", "rdlane", "dot")

def resolve_waits(prog):
    out = []
    vm = []
    lg = []
    raw = False
    saved = []
    def emit_wait(nv, nl):
        nonlocal vm, lg
        parts = []
        if nv is not None:
            nv = min(nv, 63)
            if len(vm) > nv:
                parts.append(f"vmcnt({nv})")
                vm = vm[len(vm) - nv:] if nv else []
        if nl is not None:
            if any(o.cls == "smem" for o in lg):
                nl = 0
            nl = min(nl, 15)
            if len(lg) > nl:
                parts.append(f"lgkmcnt({nl})")
                lg = lg[len(lg) - nl:] if nl else []
        if parts:
            out.append(I("s_waitcnt " + " ".join(parts)))
    seen = set(); waited = set()
    for ins in prog:
        if ins.cls == "pseudo":
            if ins.op in ("@waitvm", "@waitboth", "@waitds"): waited.add(ins.arg)
            if ins.op == "@raw_begin": raw = True
            elif ins.op == "@raw_end": raw = False
            elif ins.op == "@waitvm":
                assert ins.arg in seen, "token never issued: " + ins.arg
                idx = [k for k, o in enumerate(vm) if o.tok == ins.arg]
                if idx: emit_wait(len(vm) - 1 - idx[-1], None)
            elif ins.op == "@waitvm0": emit_wait(0, None)
            elif ins.op == "@waitds":
                idx = [k for k, o in enumerate(lg) if o.tok == ins.arg]
                if idx: emit_wait(None, len(lg) - 1 - idx[-1])
            elif ins.op == "@waitds0": emit_wait(None, 0)
            elif ins.op == "@waitboth":
                assert ins.arg in seen, "token never issued: " + ins.arg
                idx = [k for k, o in enumerate(vm) if o.tok == ins.arg]
                emit_wait(len(vm) - 1 - idx[-1] if idx else None, 0)
            elif ins.op == "@arm":
                emit_wait(None, 0)
                saved.append((list(vm), len(vm)))
            elif ins.op == "@else":
                assert not lg, "arm must end with @waitds0"
                assert all(o in saved[-1][0] for o in vm), "no vmem inside arms"
                vm = list(saved[-1][0])
            elif ins.op == "@endarm":
                assert not lg, "arm must end with @waitds0"
                assert all(o in saved[-1][0] for o in vm), "no vmem inside arms"
                vm = list(saved.pop()[0])
            else:
                raise ValueError(ins.text)
            continue
        if raw:
            out.append(ins); continue
        touch = ins.rd | ins.wr
        nv = nl = None
        if touch:
            for k in range(len(vm) - 1, -1, -1):
                if vm[k].wr & touch:
                    nv = len(vm) - 1 - k; break
            for k in range(len(lg) - 1, -1, -1):
                if lg[k].wr & touch:
                    nl = len(lg) - 1 - k; break
        if nv is not None or nl is not None:
            emit_wait(nv, nl)
        if ins.cls == "wait":
            m = re.search(r"vmcnt\((\d+)\)", ins.text)
            if m:
                n = int(m.group(1)); vm = vm[len(vm) - n:] if n and len(vm) > n else ([] if n == 0 else vm)
            m = re.search(r"lgkmcnt\((\d+)\)", ins.text)
            if m:
                n = int(m.group(1)); lg = lg[len(lg) - n:] if n and len(lg) > n else ([] if n == 0 else lg)
        out.append(ins)
        if ins.tok:
            assert ins.tok not in waited, "token issued after its wait: " + ins.tok
            seen.add(ins.tok)
        if ins.cls == "vmem": vm.append(ins)
        elif ins.cls in ("ds", "smem"): lg.append(ins)
    return out

def need_states(p, c):
    n = 0
    pv = is_valu(p)
    if pv:
        vw = {r for r in p.wr if r[0] in "va"}
        sw = {r for r in p.wr if r[0] in ("s", "vcc")}
        if c.cls == "mfma" and vw & c.rd: n = max(n, 2)
        if is_valu(c):
            if p.cls == "trans" and vw & c.rd: n = max(n, 1)
            if (c.dpp or c.cls == "perm") and vw & c.rd: n = max(n, 2)
            if c.cls == "rdlane" and vw & c.rd: n = max(n, 1)
            if sw & c.rd: n = max(n, 2)
            if p.cls == "dot" and vw & (c.rd | c.wr):
                same_c = (c.op == p.op) and (vw & c.wr) and not _dot_ab(c) & vw
                if not same_c: n = max(n, 3)
        if p.cls == "dot" and c.cls in ("vmem", "ds", "mfma") and vw & c.rd: n = max(n, 3)
        if c.cls == "vmem" and sw & c.rd: n = max(n, 5)
        if c.cls in ("salu",) and sw & c.rd: n = max(n, 1)
    if p.cls == "mfma":
        big = p.passes == 8
        if c.cls == "mfma":
            if p.wr & (c.a | c.b): n = max(n, 12 if big else 8)
            if p.wr & c.c and (p.wr != c.c or p.passes != c.passes): n = max(n, 10 if big else 6)
            if p.wr & c.wr and not (p.wr & c.c): n = max(n, 12 if big else 8)
        elif is_valu(c):
            if p.wr & (c.rd | c.wr): n = max(n, 12 if big else 8)
            if p.c & c.wr: n = max(n, 7 if big else 3)
        elif c.cls in ("vmem", "ds"):
            if p.wr & (c.rd | c.wr): n = max(n, 12 if big else 8)
    if p.cls == "salu" and ("m0", 0) in p.wr and c.cls == "vmem" and c.lds: n = max(n, 1)
    if p.cls == "vmem" and p.wide and p.data & c.wr:
        n = max(n, 2 if is_valu(c) else 1)
    return n

def _dot_ab(c):
    t = c.text.split(";")[0].split(None, 1)[1].split(",")
    return set(regs_of(t[1])) | set(regs_of(t[2].split()[0]))

def insert_nops(prog):
    out = []
    for ins in prog:
        if ins.cls not in ("label", "dir"):
            need = 0; dist = 0
            for p in reversed(out):
                if p.cls in ("label", "dir"): continue
                if dist >= 12: break
                k = need_states(p, ins)
                if k > dist: need = max(need, k - dist)
                dist += (p.arg + 1) if p.cls == "nop" else 1
            while need > 0:
                k = min(need, 16)
                out.append(I(f"s_nop {k-1}")); need -= k
        out.append(ins)
    return out

def finalize(prog):
    p = resolve_waits(prog)
    p = insert_nops(p)
    return p

def stats(p):
    from collections import Counter
    c = Counter(i.cls for i in p)
    nops = sum(i.arg + 1 for i in p if i.cls == "nop")
    return dict(c), nops
```

```python
import sys, os
sys.path.insert(0, os.path.dirname(os.path.abspath(__file__)))
from asmlib import I, finalize, stats, insert_nops

KNAME = "recurrent_scan__ssm_conv_s5__glu_gated_swiglu__prompt_kernel"

class Opt:
    fine = False
    delay = 0
    diag = False
    cycles = False
    skip = ''
    probe = ''
    stamps = False
    codepf = True
    krot = True
    prot = True
    win = 8
    pre_norm = 1
    skew = True
    mstat = True
    t_x1 = True
    t_w13 = False
    rl_pos = 0
    capU = 2
    capM = 5
    span = 5
    X_stage = 1
    L_stage = 3
    C_stage = 5
    Y_stage = 6
    H_stage = 11
    F_stage = 3
    W_stage = 10
    nearly = 4
    rl_nt = True
    out_flags = ""
    x_flags = ""
    w_flags = ""
    p1map = 0
    p2map = 0
    p2pos = 2
opt = Opt()

WS_A2 = 0
WS_W2P = 0xB00000
WS_S = 0xF00000
WS_STAT = 0xF40000
WS_FLW = 0xF50000
WS_FLH = 0xF51000
WS_FLHH = 0xF52000
WS_SEED = 0xF53000
WS_STAMP = 0xF60000
WS_SIZE = 0x1000000
OOB = 0x40000000

L_RL = 102400
L_PRIV = 122880
PV_COL, PV_CH, PV_E = 0, 1280, 4352
L_TT = 155648
L_LB = 159744
L_YP = 0
L_OP = 61440

sX, sWU, sWM, sWS, sOUT, sRL, sDBG = 36, 40, 44, 48, 52, 56, 60
(sW, sC, sG, sRT, sN, sNONCE, sT0, sT1, sT2, sT3, sXOFF, sUOFF, sMOFF, sMOFFB, sRLOFF, sRLST,
 sA2H, sKSA, sKSB, sSST, sLB0, sLB1, sLB2, sLB3, sEX0, sEX1, sEX2, sEX3, sM0, sM0A, sCNT, sP2A, sP2W, sT4, sT5, sSTATO) = range(64, 100)
sSTAMP = 100
pX, pLRE, pLIM, pBRE, pBIM, pCRE, pCIM, pLDT = 4, 6, 8, 10, 12, 14, 16, 18
pDSK, pBX, pW1, pW3, pW2, pOUT, pDBG, pWS = 20, 22, 24, 26, 28, 30, 32, 34
sKU = [22, 23, 0, 1, 32]
sD0, sD1 = 4, 5
sRY, sRO = 6, 7
sAP, sAS, sAE, sWP, sWB, sWE = 8, 9, 10, 11, 12, 13
sM0U, sSEEDO = 18, 19

vLANE, vL16 = 1, 2
vRX = [3, 4]; vRU = [5, 6]
vRA = [7, 8]; vRB = 9; vHH = 10; vDU = 11; vW4 = 12
vD = [13, 14, 15, 16]
vXD = vD
vUD = [11, 27, 28, 29]
vEW, vER, vCOLR, vCH, vTT, vLB, vTW, vTR, vHST, vSO = range(17, 27)
vWP0, vWP1, vFLAG, vNON = 27, 28, 29, 30
vT = list(range(32, 56))
def U(cf, f): return 56 + (cf * 2 + f) * 4
def X(f, s): return 96 + (f * 20 + s) * 4
def ACCA(mu, h2): return (mu * 2 + h2) * 16
def FB(par, fr): return 64 + par * 32 + fr * 4
def ACCB(mu, h2=0): return 128 + mu * 16
aRL = 160
aS = 180

def vr(n, c=4): return f"v[{n}:{n+c-1}]"
def ar(n, c=4): return f"a[{n}:{n+c-1}]"
def sr(n, c=4): return f"s[{n}:{n+c-1}]"

P = []
def E(t, tok=None):
    i = I(t, tok); P.append(i); return i
def L(lst):
    for t in lst:
        P.append(t if isinstance(t, I) else I(t))
def II(lst): return [t if isinstance(t, I) else I(t) for t in lst]

def srd(d, p, nbytes):
    return [f"s_mov_b32 s{d}, s{p}", f"s_and_b32 s{d+1}, s{p+1}, 0xffff", f"s_mov_b32 s{d+2}, {nbytes}", f"s_mov_b32 s{d+3}, 0x20000"]

stamp_n = [0]
stamp_names = []
def stamp(name, cyc=False):
    if opt.probe:
        if name != opt.probe: return []
        return [f"s_memrealtime s[{sSTAMP}:{sSTAMP+1}]", "@waitds0", f"s_mov_b32 s3, s{sSTAMP}"]
    if not opt.stamps: return []
    k = stamp_n[0]; stamp_n[0] += 1
    stamp_names.append(name)
    return [f"s_memtime s[{sSTAMP}:{sSTAMP+1}]" if (cyc or opt.cycles) else f"s_memrealtime s[{sSTAMP}:{sSTAMP+1}]", "@waitds0",
            f"v_writelane_b32 v0, s{sSTAMP}, {k}"]

def cmul(dr, di, ar_, ai, br, bi, t):
    return [f"v_mul_f32 v{t}, v{ai}, v{bi}", f"v_mul_f32 v{di}, v{ai}, v{br}",
            f"v_fma_f32 v{dr}, v{ar_}, v{br}, -v{t}", f"v_fmac_f32 v{di}, v{ar_}, v{bi}"]
def csq(dr, di, r, i, t):
    return [f"v_mul_f32 v{t}, v{i}, v{i}", f"v_mul_f32 v{di}, v{r}, v{i}",
            f"v_fma_f32 v{dr}, v{r}, v{r}, -v{t}", f"v_add_f32 v{di}, v{di}, v{di}"]
def chorner2(dr, di, gr, gi, mr, mi, er, ei):
    return [f"v_fma_f32 v{dr}, v{mr}, v{gr}, v{er}", f"v_fma_f32 v{di}, v{mr}, v{gi}, v{ei}",
            f"v_fma_f32 v{dr}, -v{mi}, v{gi}, v{dr}", f"v_fma_f32 v{di}, v{mi}, v{gr}, v{di}"]

LOG2E = "0x3fb8aa3b"
NLOG2E = "0xbfb8aa3b"
INV2PI = "0.15915494"

def x_piece(n):
    f, S, ih = n // 20, (n % 20) // 2, n & 1
    p = n & 3
    r = []
    if p == 0:
        r = [f"s_add_u32 m0, s{sM0}, {f*81920 + (2*S)*1024}", f"s_add_u32 s{sD1}, s{sKU[S >> 1]}, s{sXOFF}"]
        if f: r.append(f"s_add_u32 s{sD1}, s{sD1}, {4*1280}")
    r.append(I(f"buffer_load_dwordx4 v{vXD[p]}, s[{sX}:{sX+3}], s{sD1} offen offset:{p*1024} {opt.x_flags} lds", tok=f"x{f}_{S}"))
    return r
def u_piece(i, cf):
    r = []
    if cf == 0: r = [f"s_add_u32 m0, s{sM0U}, {i*20480}", f"s_add_u32 s{sD1}, s{sKU[i]}, s{sUOFF}"]
    if cf == 4: r = [f"s_add_u32 m0, s{sM0U}, {i*20480 + 4096}", f"s_add_u32 s{sD1}, s{sD1}, {4*10240}"]
    r.append(I(f"buffer_load_dwordx4 v{vUD[cf & 3]}, s[{sWU}:{sWU+3}], s{sD1} offen offset:{(cf & 3)*1024} {opt.w_flags} lds", tok=f"U{i}"))
    return r
class Stream:
    def __init__(self): self.n = 0
    def next(self, k, limit=60):
        r = []
        for _ in range(k):
            if self.n >= limit: break
            r += x_piece(self.n) if self.n < 40 else u_piece((self.n - 40) // 5, (self.n - 40) % 5)
            self.n += 1
        return r
ST = Stream()

def prologue():
    E(f"s_cmp_ge_u32 s2, 256")
    E("s_cbranch_scc1 L_exit")
    E("s_load_dwordx16 s[4:19], s[0:1], 0")
    E("s_load_dwordx16 s[20:35], s[0:1], 64")
    if opt.stamps or opt.probe == "entry":
        E(f"s_{'memtime' if opt.cycles else 'memrealtime'} s[{sSTAMP}:{sSTAMP+1}]")
    E(f"v_lshrrev_b32 v{vT[0]}, 6, v0")
    E(f"v_and_b32 v{vLANE}, 63, v0")
    E(f"v_readfirstlane_b32 s{sW}, v{vT[0]}")
    E(f"v_lshlrev_b32 v{vL16}, 4, v{vLANE}")
    L([f"s_and_b32 s{sT0}, s2, 7", f"s_lshr_b32 s{sT1}, s2, 3"])
    if opt.p1map == 0:
        L([f"s_and_b32 s{sC}, s{sT0}, 1", f"s_lshl_b32 s{sC}, s{sC}, 3", f"s_and_b32 s{sT2}, s{sT1}, 7", f"s_add_u32 s{sC}, s{sC}, s{sT2}",
           f"s_lshr_b32 s{sG}, s{sT0}, 1", f"s_lshl_b32 s{sG}, s{sG}, 2", f"s_lshr_b32 s{sT2}, s{sT1}, 3", f"s_add_u32 s{sG}, s{sG}, s{sT2}"])
    else:
        L([f"s_and_b32 s{sC}, s{sT0}, 3", f"s_lshl_b32 s{sC}, s{sC}, 2", f"s_and_b32 s{sT2}, s{sT1}, 3", f"s_add_u32 s{sC}, s{sC}, s{sT2}",
           f"s_lshr_b32 s{sG}, s{sT0}, 2", f"s_lshl_b32 s{sG}, s{sG}, 3", f"s_lshr_b32 s{sT2}, s{sT1}, 2", f"s_add_u32 s{sG}, s{sG}, s{sT2}"])
    t0, t1, t2, t3 = vT[0:4]
    L([f"v_lshrrev_b32 v{t0}, 3, v{vLANE}", f"v_and_b32 v{t1}, 7, v{vLANE}", f"v_and_b32 v{t2}, 6, v{t0}",
       f"v_xor_b32 v{t1}, v{t1}, v{t2}", f"v_lshlrev_b32 v{t1}, 4, v{t1}",
       f"v_and_b32 v{t2}, 4, v{t0}", f"v_add_u32 v{t2}, v{t2}, v{t0}",
       f"v_mul_u32_u24 v{vD[0]}, 1280, v{t2}", f"v_add_u32 v{vD[0]}, v{vD[0]}, v{t1}",
       f"v_mul_u32_u24 v{vDU}, 1280, v{t0}", f"v_add_u32 v{vDU}, v{vDU}, v{t1}",
       f"v_add_u32 v{vD[0]}, 4096, v{vD[0]}", f"v_add_u32 v{vD[1]}, {16*1280 - 1024}, v{vD[0]}",
       f"v_add_u32 v{vD[2]}, {128 - 2048}, v{vD[0]}", f"v_add_u32 v{vD[3]}, {16*1280 + 128 - 3072}, v{vD[0]}"])
    L([f"s_mul_i32 s{sT2}, s{sG}, 80", f"v_min_u32 v{t3}, 39, v{vLANE}", f"v_lshlrev_b32 v{t3}, 1, v{t3}", f"v_add_u32 v{t3}, s{sT2}, v{t3}"])
    L([f"s_lshl_b32 s{sXOFF}, s{sC}, 2", f"s_add_u32 s{sXOFF}, s{sXOFF}, s{sW}", f"s_mul_i32 s{sXOFF}, s{sXOFF}, {32*1280}",
       f"s_mul_i32 s{sM0}, s{sW}, 20480"])
    if opt.krot:
        L([f"s_add_u32 s{sT4}, s{sC}, s{sG}", f"s_mul_i32 s{sT5}, s{sT4}, 52", f"s_lshr_b32 s{sT5}, s{sT5}, 8", f"s_mul_i32 s{sT5}, s{sT5}, 5",
           f"s_sub_u32 s{sT4}, s{sT4}, s{sT5}", f"s_lshl_b32 s{sT4}, s{sT4}, 8"])
    else:
        E(f"s_mov_b32 s{sT4}, 0")
    E("@waitds0")
    if opt.probe == "entry": E(f"s_mov_b32 s3, s{sSTAMP}")
    if opt.stamps:
        E(f"v_mov_b32 v0, 0")
        E(f"v_writelane_b32 v0, s{sSTAMP}, 0"); stamp_n[0] = 1; stamp_names.append("entry")
    E(f"global_load_ushort v{vT[4]}, v{t3}, s[{pLRE}:{pLRE+1}]")
    E(f"global_load_ushort v{vT[5]}, v{t3}, s[{pLIM}:{pLIM+1}]")
    E(f"global_load_ushort v{vT[6]}, v{t3}, s[{pLDT}:{pLDT+1}]")
    L([f"s_sub_u32 s{sX}, s{pX}, 4096", f"s_subb_u32 s{sX+1}, s{pX+1}, 0", f"s_and_b32 s{sX+1}, s{sX+1}, 0xffff",
       f"s_mov_b32 s{sX+2}, {2048*1280 + 4096}", f"s_mov_b32 s{sX+3}, 0x20000"])
    L(srd(sDBG, pDBG, 256))
    for j in range(5):
        L([f"s_add_u32 s{sKU[j]}, s{sT4}, {j*256}", f"s_cmp_ge_u32 s{sKU[j]}, 1280", f"s_cselect_b32 s{sT5}, 1280, 0", f"s_sub_u32 s{sKU[j]}, s{sKU[j]}, s{sT5}"])
        if j == 0: L(ST.next(4))
        if j == 1: L(ST.next(max(0, min(4, opt.win - 4))))
    L(ST.next(max(0, opt.win - 8)))
    if opt.t_x1:
        L([f"v_lshrrev_b32 v{t0}, 1, v{vLANE}", f"v_and_b32 v{t1}, 12, v{t0}", f"v_add_u32 v{t0}, v{t0}, v{t1}", f"v_mul_u32_u24 v{t0}, 1280, v{t0}",
           f"v_and_b32 v{t1}, 1, v{vLANE}", f"v_lshl_add_u32 v{t0}, v{t1}, 7, v{t0}", f"v_mov_b32 v{t1}, {OOB}", f"v_cmp_gt_u32 vcc, 32, v{vLANE}",
           f"v_cndmask_b32 v{t0}, v{t1}, v{t0}, vcc", f"s_add_u32 s{sT2}, s{sKU[0]}, s{sXOFF}", f"s_add_u32 s{sT2}, s{sT2}, {4096 + 4*1280}",
           f"buffer_load_dword a229, v{t0}, s[{sX}:{sX+3}], s{sT2} offen"])
    if opt.codepf:
        L([f"s_getpc_b64 s[{sT2}:{sT3}]", "L_pc:",
           f"s_and_b32 s{sT4}, s{sT1}, 7", f"s_lshl_b32 s{sT4}, s{sT4}, 2", f"s_add_u32 s{sT4}, s{sT4}, s{sW}",
           f"s_lshl_b32 s{sT4}, s{sT4}, 13",
           f"s_cmp_lt_u32 s{sT4}, L_codeend-L_pc", "@arm", "s_cbranch_scc0 L_nopf",
           f"s_add_u32 s{sT2}, s{sT2}, s{sT4}", f"s_addc_u32 s{sT3}, s{sT3}, 0",
           f"v_lshlrev_b32 v{t0}, 7, v{vLANE}", f"v_mov_b32 v{t1}, s{sT3}",
           f"v_add_co_u32 v{t0}, vcc, s{sT2}, v{t0}", f"v_addc_co_u32 v{t1}, vcc, 0, v{t1}, vcc",
           "@raw_begin", "s_nop 0", f"global_load_dword v{vNON+1}, v[{t0}:{t1}], off", "@raw_end", "@else", "@endarm", "L_nopf:"])
    L(srd(sWS, pWS, WS_SIZE))
    L([f"s_or_b32 s{sT2}, s2, s{sW}", f"s_cmp_eq_u32 s{sT2}, 0", f"s_mov_b32 s{sT3}, {WS_SEED}", f"s_cselect_b32 s{sSEEDO}, s{sT3}, {OOB}"])
    E(f"buffer_load_dword v{vT[7]}, off, s[{sWS}:{sWS+3}], s{sSEEDO} sc1")
    L([f"s_bitcmp1_b32 s{sW}, 0",
       f"s_cselect_b32 s{sWU}, s{pBIM}, s{pBRE}", f"s_cselect_b32 s{sWU+1}, s{pBIM+1}, s{pBRE+1}",
       f"s_cselect_b32 s{sWM}, s{pW3}, s{pW1}", f"s_cselect_b32 s{sWM+1}, s{pW3+1}, s{pW1+1}",
       f"s_and_b32 s{sWU+1}, s{sWU+1}, 0xffff", f"s_and_b32 s{sWM+1}, s{sWM+1}, 0xffff",
       f"s_mov_b32 s{sWU+2}, {640*1280}", f"s_mov_b32 s{sWU+3}, 0x20000",
       f"s_mov_b32 s{sWM+2}, {640*3072}", f"s_mov_b32 s{sWM+3}, 0x20000"])
    L(srd(sOUT, pOUT, 2048*2560))
    if opt.p2map == 0:
        L([f"s_lshl_b32 s{sRT}, s{sT0}, 2", f"s_and_b32 s{sT2}, s{sT1}, 3", f"s_add_u32 s{sRT}, s{sRT}, s{sT2}", f"s_lshr_b32 s{sN}, s{sT1}, 2"])
    else:
        L([f"s_and_b32 s{sRT}, s{sT0}, 3", f"s_lshl_b32 s{sRT}, s{sRT}, 3", f"s_and_b32 s{sT2}, s{sT1}, 7", f"s_add_u32 s{sRT}, s{sRT}, s{sT2}",
           f"s_lshr_b32 s{sN}, s{sT0}, 2", f"s_lshl_b32 s{sN}, s{sN}, 2", f"s_lshr_b32 s{sT2}, s{sT1}, 3", f"s_add_u32 s{sN}, s{sN}, s{sT2}"])
    L([f"s_mul_i32 s{sUOFF}, s{sG}, {40*1280}", f"s_lshr_b32 s{sT2}, s{sW}, 1", f"s_lshl_b32 s{sT2}, s{sT2}, 7", f"s_add_u32 s{sUOFF}, s{sUOFF}, s{sT2}",
       f"s_mul_i32 s{sM0U}, s{sW}, 5120"])
    L([f"s_mul_i32 s{sT2}, s{sG}, 192", f"s_bitcmp1_b32 s{sG}, 0",
       f"s_cselect_b32 s{sT3}, 64, 0", f"s_cselect_b32 s{sT4}, 0, 128", f"s_add_u32 s{sMOFF}, s{sT2}, s{sT3}", f"s_add_u32 s{sMOFFB}, s{sT2}, s{sT4}",
       f"s_lshr_b32 s{sT2}, s{sW}, 1",
       f"s_mul_i32 s{sT3}, s{sT2}, {32*3072}", f"s_add_u32 s{sMOFF}, s{sMOFF}, s{sT3}",
       f"s_mul_i32 s{sT3}, s{sT2}, {64*3072}", f"s_add_u32 s{sMOFFB}, s{sMOFFB}, s{sT3}",
       f"s_lshl_b32 s{sM0A}, s{sW}, 12"])
    L([f"s_lshl_b32 s{sT3}, s{sC}, 1", f"s_add_u32 s{sT3}, s{sT3}, s{sT2}", f"s_mul_i32 s{sA2H}, s{sT3}, {88*4096}",
       f"s_and_b32 s{sT3}, s{sW}, 1", f"s_lshl_b32 s{sT3}, s{sT3}, 11", f"s_add_u32 s{sA2H}, s{sA2H}, s{sT3}",
       f"s_mul_i32 s{sT3}, s{sG}, 3", f"s_add_u32 s{sT3}, s{sT3}, 40", f"s_and_b32 s{sT4}, s{sG}, 1",
       f"s_add_u32 s{sKSA}, s{sT3}, s{sT4}", f"s_lshl_b32 s{sKSA}, s{sKSA}, 12", f"s_add_u32 s{sKSA}, s{sKSA}, s{sA2H}",
       f"s_xor_b32 s{sT4}, s{sT4}, 1", f"s_lshl_b32 s{sT4}, s{sT4}, 1",
       f"s_add_u32 s{sKSB}, s{sT3}, s{sT4}", f"s_lshl_b32 s{sKSB}, s{sKSB}, 12", f"s_add_u32 s{sKSB}, s{sKSB}, s{sA2H}"])
    L([f"s_lshl_b32 s{sT3}, s{sG}, 4", f"s_add_u32 s{sT4}, s{sT3}, s{sC}", f"s_mul_i32 s{sT4}, s{sT4}, 640", f"s_add_u32 s{sT4}, s{sT4}, {WS_S}",
       f"s_cmp_eq_u32 s{sW}, 3", f"s_cselect_b32 s{sSST}, s{sT4}, {OOB}"])
    for jj, sl in enumerate((sLB0, sLB1, sLB2, sLB3)):
        L([f"s_lshl_b32 s{sT4}, s{sW}, 2", f"s_add_u32 s{sT4}, s{sT4}, s{sC}", f"s_add_i32 s{sT4}, s{sT4}, {jj-16}",
           f"s_add_u32 s{sT5}, s{sT3}, s{sT4}", f"s_mul_i32 s{sT5}, s{sT5}, 640", f"s_add_u32 s{sT5}, s{sT5}, {WS_S}",
           f"s_cmp_ge_i32 s{sT4}, 0", f"s_cselect_b32 s{sl}, s{sT5}, {OOB}"])
    L([f"s_lshl_b32 s{sT3}, s{sC}, 2", f"s_add_u32 s{sT3}, s{sT3}, s{sW}", f"s_lshl_b32 s{sT3}, s{sT3}, 8", f"s_add_u32 s{sT3}, s{sT3}, {WS_STAT}",
       f"s_cmp_eq_u32 s{sG}, 0", f"s_cselect_b32 s{sSTATO}, s{sT3}, {OOB}"])
    if opt.prot:
        sh, msk = (sRT, 3) if opt.p2map == 0 else (sRT, 7)
        if opt.p2map == 0:
            L([f"s_and_b32 s{sT3}, s{sRT}, 3", f"s_mul_i32 s{sT4}, s{sT3}, 3", f"s_add_u32 s{sT4}, s{sT4}, s{sN}"])
        else:
            L([f"s_and_b32 s{sT3}, s{sRT}, 7", f"s_and_b32 s{sT4}, s{sN}, 3", f"s_mul_i32 s{sT4}, s{sT4}, 3", f"s_add_u32 s{sT4}, s{sT4}, s{sT3}"])
        L([f"s_cmp_ge_u32 s{sT4}, 10", f"s_cselect_b32 s{sT5}, 10, 0", f"s_sub_u32 s{sRY}, s{sT4}, s{sT5}",
           f"s_cmp_ge_u32 s{sT4}, 12", f"s_cselect_b32 s{sT5}, 12, 0", f"s_sub_u32 s{sRO}, s{sT4}, s{sT5}"])
    else:
        L([f"s_mov_b32 s{sRY}, 0", f"s_mov_b32 s{sRO}, 0"])
    L([f"s_mul_i32 s{sP2A}, s{sRT}, {88*4096}", f"s_mul_i32 s{sP2W}, s{sN}, {88*5120}", f"s_add_u32 s{sP2W}, s{sP2W}, {WS_W2P}"])
    i_, q_, a0, a1 = vT[8:12]
    L([f"v_and_b32 v{i_}, 15, v{vLANE}", f"v_lshrrev_b32 v{q_}, 4, v{vLANE}",
       f"v_and_b32 v{a0}, 7, v{i_}", f"v_and_b32 v{a1}, 6, v{i_}", f"v_xor_b32 v{a1}, v{a1}, v{q_}", f"v_lshlrev_b32 v{a1}, 4, v{a1}",
       f"v_lshl_add_u32 v{a1}, v{a0}, 7, v{a1}",
       f"v_lshrrev_b32 v{a0}, 3, v{i_}",
       f"v_mul_u32_u24 v{vRU[0]}, 5120, v{a0}", f"v_add_u32 v{vRU[0]}, v{vRU[0]}, v{a1}", f"v_xor_b32 v{vRU[1]}, 64, v{vRU[0]}",
       f"v_lshl_add_u32 v{vRX[0]}, v{a0}, 10, v{a1}", f"v_add_u32 v{vRX[0]}, s{sM0}, v{vRX[0]}", f"v_xor_b32 v{vRX[1]}, 64, v{vRX[0]}",
       f"v_add_u32 v{vW4}, 4096, v{vL16}"])
    L([f"v_add_u32 v{vUD[p]}, {p*(10240 - 1024)}, v{vDU}" for p in range(1, 4)])

cAR, cAI, cKR, cKI = 56, 57, 58, 59
cA8, cA32, cA32W, cA128, cOM = 60, 62, 64, 66, 68
def constants():
    lre, lim, ldt = vT[4], vT[5], vT[6]
    t = list(range(72, 96))
    L([f"v_lshlrev_b32 v{lre}, 16, v{lre}", f"v_lshlrev_b32 v{lim}, 16, v{lim}", f"v_lshlrev_b32 v{ldt}, 16, v{ldt}",
       f"v_mul_f32 v{t[0]}, {LOG2E}, v{ldt}", f"v_exp_f32 v{t[0]}, v{t[0]}",
       f"v_cvt_pk_bf16_f32 v{t[0]}, v{t[0]}, v{t[0]}", f"v_lshlrev_b32 v{t[0]}, 16, v{t[0]}",
       f"v_mul_f32 v{t[1]}, v{t[0]}, v{lre}", f"v_mul_f32 v{t[2]}, v{t[0]}, v{lim}",
       f"v_mul_f32 v{t[1]}, {LOG2E}, v{t[1]}", f"v_exp_f32 v{t[1]}, v{t[1]}",
       f"v_mul_f32 v{t[2]}, {INV2PI}, v{t[2]}", f"v_rndne_f32 v{t[3]}, v{t[2]}", f"v_sub_f32 v{t[2]}, v{t[2]}, v{t[3]}",
       f"v_cos_f32 v{t[3]}, v{t[2]}", f"v_sin_f32 v{t[4]}, v{t[2]}",
       f"v_mul_f32 v{cAR}, v{t[1]}, v{t[3]}", f"v_mul_f32 v{cAI}, v{t[1]}, v{t[4]}",
       f"v_add_f32 v{t[3]}, -1.0, v{cAR}",
       f"v_mul_f32 v{t[5]}, v{lre}, v{lre}", f"v_fmac_f32 v{t[5]}, v{lim}, v{lim}", f"v_rcp_f32 v{t[5]}, v{t[5]}",
       f"v_mul_f32 v{t[6]}, v{t[3]}, v{lre}", f"v_fmac_f32 v{t[6]}, v{cAI}, v{lim}",
       f"v_mul_f32 v{t[7]}, v{cAI}, v{lre}", f"v_fma_f32 v{t[7]}, -v{t[3]}, v{lim}, v{t[7]}",
       f"v_add_f32 v{t[5]}, v{t[5]}, v{t[5]}",
       f"v_mul_f32 v{cKR}, v{t[6]}, v{t[5]}", f"v_mul_f32 v{cKI}, v{t[7]}, v{t[5]}"])
    r, i, tt = t[8], t[9], t[0]
    L([f"v_mov_b32 v{r}, v{cAR}", f"v_sub_f32 v{i}, 0, v{cAI}"])
    L(csq(t[10], t[11], r, i, tt)); L(csq(r, i, t[10], t[11], tt))
    L(csq(cA8, cA8+1, r, i, tt))
    L(csq(r, i, cA8, cA8+1, tt))
    L(csq(cA32, cA32+1, r, i, tt))
    L(csq(t[12], t[13], cA32, cA32+1, tt))
    L(csq(cA128, cA128+1, t[12], t[13], tt))
    L(csq(r, i, cA128, cA128+1, tt))
    L(csq(t[14], t[15], r, i, tt))
    L(csq(t[16], t[17], t[14], t[15], tt))
    def sel(dst, src, mask, on):
        if on:
            return [f"v_cndmask_b32 v{dst}, 1.0, v{src}, s[{mask}:{mask+1}]", f"v_cndmask_b32 v{dst+1}, 0, v{src+1}, s[{mask}:{mask+1}]"]
        return [f"v_mov_b32 v{t[22]}, 1.0", f"v_mov_b32 v{t[23]}, 0",
                f"v_cndmask_b32 v{dst}, v{src}, v{t[22]}, s[{mask}:{mask+1}]", f"v_cndmask_b32 v{dst+1}, v{src+1}, v{t[23]}, s[{mask}:{mask+1}]"]
    L([f"s_bitcmp1_b32 s{sW}, 0", f"s_cselect_b64 s[{sEX0}:{sEX0+1}], -1, 0", f"s_bitcmp1_b32 s{sW}, 1", f"s_cselect_b64 s[{sEX2}:{sEX2+1}], -1, 0"])
    L(sel(t[18], cA32, sEX0, True)); L(sel(t[20], t[12], sEX2, True))
    L(cmul(cA32W, cA32W+1, t[18], t[19], t[20], t[21], tt))
    L(sel(t[18], t[14], sEX0, False)); L(sel(t[20], t[16], sEX2, False))
    L(cmul(cOM, cOM+1, t[18], t[19], t[20], t[21], tt))

def nonce_seed():
    sd = vT[7]
    L([f"s_mov_b32 s{sT2}, 1664525", f"v_mul_lo_u32 v{sd}, v{sd}, s{sT2}", f"v_add_u32 v{vNON}, 1013904223, v{sd}", f"v_mov_b32 v{vNON+1}, 1"])
    E(f"buffer_store_dword v{vNON}, off, s[{sWS}:{sWS+3}], s{sSEEDO} sc1", tok="seed")
def nonce_publish():
    return [f"s_cmp_lt_u32 s{sSEEDO}, {OOB}", f"s_cselect_b32 s{sT5}, 0, {OOB}", "@waitvm seed",
            f"buffer_store_dwordx2 v[{vNON}:{vNON+1}], off, s[{sDBG}:{sDBG+3}], s{sT5} sc1"]

lab = [0]
def poll(load_text, check):
    lab[0] += 1
    n = lab[0]
    r = list(check)
    r += [f"s_cbranch_vccz L_ok{n}", "@raw_begin", f"s_mov_b32 s{sCNT}, {0x4000 if opt.diag else 0x40000}", f"L_rt{n}:", "s_sleep 1"]
    r += [t.text if isinstance(t, I) else t for t in load_text]
    r += ["s_waitcnt vmcnt(0)", "s_nop 1"] + list(check) + [f"s_cbranch_vccz L_ok{n}", f"s_sub_u32 s{sCNT}, s{sCNT}, 1",
          f"s_cmp_lg_u32 s{sCNT}, 0", f"s_cbranch_scc1 L_rt{n}"]
    if opt.diag: r += [f"buffer_store_dword v{vLANE}, off, s[{sDBG}:{sDBG+3}], 0 offset:{32+4*n} sc1", "s_waitcnt vmcnt(0)"]
    r += ["s_nop 7", "@raw_end", f"L_ok{n}:"]
    return r
def nonce_load():
    return [f"buffer_load_dwordx2 v[{vNON}:{vNON+1}], off, s[{sDBG}:{sDBG+3}], 0 sc1"]
def nonce_get():
    return poll(nonce_load(), [f"v_cmp_ne_u32 vcc, 1, v{vNON+1}"]) + [f"v_readfirstlane_b32 s{sNONCE}, v{vNON}"]

sS0, sS1, sQ0, sQ1 = vT[8], vT[9], vT[10], vT[11]
vR = [vT[12], vT[14]]; vNB = [vT[13], vT[15]]
vM = [vT[16], vT[17]]
vONES = vT[18]
def x_arrive(f, filler=None, limit=60):
    filler = II(filler or [])
    per = (len(filler) + 9) // 10
    if not opt.mstat: L([f"v_mov_b32 v{sS0}, 0", f"v_mov_b32 v{sS1}, 0", f"v_mov_b32 v{sQ0}, 0", f"v_mov_b32 v{sQ1}, 0"])
    def st(s):
        r = []
        if opt.mstat:
            c0 = "0" if s == 0 else ar(aSS); c1 = "0" if s == 0 else ar(aSQ)
            return [f"v_mfma_f32_16x16x32_bf16 {ar(aSS)}, {ar(aONE)}, {vr(X(f, s))}, {c0}",
                    f"v_mfma_f32_16x16x32_bf16 {ar(aSQ)}, {vr(X(f, s))}, {vr(X(f, s))}, {c1}"]
        for k in range(4):
            x = X(f, s) + k
            r += [f"v_dot2_f32_bf16 v{(sS0, sS1)[k&1]}, v{x}, v{vONES}, v{(sS0, sS1)[k&1]}",
                  f"v_dot2_f32_bf16 v{(sQ0, sQ1)[k&1]}, v{x}, v{x}, v{(sQ0, sQ1)[k&1]}"]
        return r
    for S in range(10):
        E(f"@waitvm x{f}_{S}")
        for sh in range(2):
            E(f"ds_read_b128 {vr(X(f, 2*S+sh))}, v{vRX[sh]} offset:{S*2048}", tok=f"xr{f}_{2*S+sh}")
        L(ST.next(2, limit))
        if S > 0:
            E(f"@waitds xr{f}_{2*S-1}")
            L(st(2*S-2)); L(st(2*S-1))
        L(filler[S*per:(S+1)*per])
    E("@waitds0")
    return st(18) + st(19) + filler[10*per:]

aONE, aSS, aSQ = 216, 220, 224
def x_stats(f):
    a, b = vT[19], vT[20]
    r = [f"v_add_f32 v{sS0}, v{sS0}, v{sS1}", f"v_add_f32 v{sQ0}, v{sQ0}, v{sQ1}"]
    if opt.mstat:
        t = vT[8:12]
        r = [f"v_and_b32 v{a}, 15, v{vLANE}", f"v_lshrrev_b32 v{b}, 2, v{a}", f"v_lshl_add_u32 v{b}, v{b}, 4, v{a}", f"v_lshlrev_b32 v{b}, 2, v{b}",
             f"v_and_b32 v{a}, 3, v{vLANE}", f"v_cmp_eq_u32 s[{sEX0}:{sEX0+1}], 1, v{a}", f"v_cmp_eq_u32 s[{sEX2}:{sEX2+1}], 2, v{a}", f"v_cmp_eq_u32 vcc, 3, v{a}"]
        r += [f"v_accvgpr_read_b32 v{t[k]}, a{aSQ+k}" for k in range(4)]
        r += [f"v_cndmask_b32 v{t[0]}, v{t[0]}, v{t[1]}, s[{sEX0}:{sEX0+1}]", f"v_cndmask_b32 v{t[2]}, v{t[2]}, v{t[3]}, vcc",
              f"v_cndmask_b32 v{t[0]}, v{t[0]}, v{t[2]}, s[{sEX2}:{sEX2+1}]", f"v_cndmask_b32 v{t[0]}, v{t[0]}, v{t[2]}, vcc",
              f"ds_bpermute_b32 v{sQ0}, v{b}, v{t[0]}", f"v_accvgpr_read_b32 v{sS0}, a{aSS}"]
    for perm in (() if opt.mstat else ("v_permlane16_swap_b32", "v_permlane32_swap_b32")):
        r += [f"v_mov_b32 v{a}, v{sS0}", f"v_mov_b32 v{b}, v{sQ0}", f"{perm} v{a}, v{sS0}", f"{perm} v{b}, v{sQ0}",
              f"v_add_f32 v{sS0}, v{sS0}, v{a}", f"v_add_f32 v{sQ0}, v{sQ0}, v{b}"]
    inv = "0x3acccccd"
    r += [f"v_mul_f32 v{sS0}, {inv}, v{sS0}", f"v_mul_f32 v{sQ0}, {inv}, v{sQ0}",
          f"v_fma_f32 v{sQ0}, -v{sS0}, v{sS0}, v{sQ0}", f"v_max_f32 v{sQ0}, 0, v{sQ0}",
          f"v_cvt_pk_bf16_f32 v{a}, v{sS0}, v{sQ0}",
          f"v_lshlrev_b32 v{vM[f]}, 16, v{a}", f"v_and_b32 v{b}, 0xffff0000, v{a}",
          f"v_add_f32 v{b}, 0x3727c5ac, v{b}",
          f"v_cvt_pk_bf16_f32 v{b}, v{b}, v{b}", f"v_and_b32 v{b}, 0xffff0000, v{b}",
          f"v_sqrt_f32 v{b}, v{b}", f"v_cvt_pk_bf16_f32 v{b}, v{b}, v{b}", f"v_and_b32 v{b}, 0xffff0000, v{b}",
          f"v_rcp_f32 v{vR[f]}, v{b}", f"v_mul_f32 v{vNB[f]}, v{vM[f]}, v{vR[f]}", f"v_sub_f32 v{vNB[f]}, 0, v{vNB[f]}"]
    return r

def norm_step(f, s, packed, tmp):
    r = []
    for k in range(4):
        x = X(f, s) + k
        t = tmp[(k & 1) * 2]
        if packed:
            r += [f"v_lshlrev_b32 v{t}, 16, v{x}", f"v_and_b32 v{t+1}, 0xffff0000, v{x}",
                  f"v_pk_fma_f32 v[{t}:{t+1}], v[{t}:{t+1}], v[{vR[f]}:{vR[f]+1}], v[{vR[f]}:{vR[f]+1}] op_sel:[0,0,1] op_sel_hi:[1,0,1]",
                  f"v_cvt_pk_bf16_f32 v{x}, v{t}, v{t+1}"]
        else:
            r += [f"v_lshlrev_b32 v{t}, 16, v{x}", f"v_and_b32 v{t+1}, 0xffff0000, v{x}",
                  f"v_fma_f32 v{t}, v{t}, v{vR[f]}, v{vNB[f]}", f"v_fma_f32 v{t+1}, v{t+1}, v{vR[f]}, v{vNB[f]}",
                  f"v_cvt_pk_bf16_f32 v{x}, v{t}, v{t+1}"]
    return r

def stats_store():
    a, b = vT[0], vT[1]
    r = [f"v_and_b32 v{a}, 12, v{vLANE}", f"v_add_u32 v{a}, v{a}, v{vLANE}", f"v_lshlrev_b32 v{a}, 3, v{a}",
         f"v_mov_b32 v{b}, {OOB}", f"v_cmp_gt_u32 vcc, 16, v{vLANE}", f"v_cndmask_b32 v{a}, v{b}, v{a}, vcc"]
    for f in range(2):
        r.append(I(f"buffer_store_dwordx2 v[{vR[f]}:{vR[f]+1}], v{a}, s[{sWS}:{sWS+3}], s{sSTATO} offen offset:{32*f} sc1", tok="stat"))
    return r

def mlp_dma_addr(kind):
    t0, t1, t2 = vD[1], vD[2], vD[3]
    if kind == "A":
        r = [f"v_lshrrev_b32 v{t0}, 3, v{vLANE}", f"v_and_b32 v{t1}, 7, v{vLANE}", f"v_and_b32 v{t2}, 2, v{t0}", f"v_lshlrev_b32 v{t2}, 1, v{t2}",
             f"v_xor_b32 v{t1}, v{t1}, v{t2}", f"v_lshlrev_b32 v{t1}, 4, v{t1}",
             f"v_mul_u32_u24 v{t0}, 3072, v{t0}", f"v_add_u32 v{vD[0]}, v{t0}, v{t1}"]
        rows = 8
    else:
        r = [f"v_lshrrev_b32 v{t0}, 2, v{vLANE}", f"v_and_b32 v{t1}, 3, v{vLANE}", f"v_lshlrev_b32 v{t1}, 4, v{t1}",
             f"v_mul_u32_u24 v{t0}, 3072, v{t0}", f"v_add_u32 v{vD[0]}, v{t0}, v{t1}"]
        rows = 16
    for p in range(1, 4):
        r.append(f"v_add_u32 v{vD[p]}, {p*(rows*3072 - 1024)}, v{vD[0]}")
    return r

def dma_M(m):
    slot = m % 4
    if m < 10:
        so = [f"s_mul_i32 s{sD0}, s{sKU[m >> 1]}, 1536", f"s_add_u32 s{sD0}, s{sD0}, s{sMOFF}"]
        if m & 1: so.append(f"s_add_u32 s{sD0}, s{sD0}, {64*3072}")
    else:
        so = [f"s_mul_i32 s{sD0}, s{sKU[m - 10]}, 1536", f"s_add_u32 s{sD0}, s{sD0}, s{sMOFFB}"]
    r = so + [f"s_add_u32 m0, s{sM0A}, {slot*16384}"]
    for p in range(4):
        r.append(I(f"buffer_load_dwordx4 v{vD[p]}, s[{sWM}:{sWM+3}], s{sD0} offen offset:{p*1024} {opt.w_flags} lds", tok=f"M{m}"))
    return r

def w13_touch():
    a, b = vT[5], vT[6]
    r = [f"v_lshrrev_b32 v{a}, 1, v{vLANE}", f"v_mul_u32_u24 v{a}, 3072, v{a}", f"v_and_b32 v{b}, 1, v{vLANE}", f"v_lshl_add_u32 v{a}, v{b}, 7, v{a}",
         f"s_and_b32 s{sT2}, s{sC}, 7", f"s_lshl_b32 s{sT2}, s{sT2}, 1", f"s_lshr_b32 s{sT3}, s{sW}, 1", f"s_add_u32 s{sT2}, s{sT2}, s{sT3}",
         f"s_mul_i32 s{sT2}, s{sT2}, {40*3072}", f"s_mul_i32 s{sT3}, s{sG}, 192", f"s_and_b32 s{sT3}, s{sT3}, 0xffffff80", f"s_add_u32 s{sT2}, s{sT2}, s{sT3}",
         f"buffer_load_dword a228, v{a}, s[{sWM}:{sWM+3}], s{sT2} offen",
         f"v_mov_b32 v{b}, {OOB}", f"v_cmp_gt_u32 vcc, 16, v{vLANE}", f"v_cndmask_b32 v{a}, v{b}, v{a}, vcc", f"s_add_u32 s{sT2}, s{sT2}, {32*3072}",
         f"buffer_load_dword a228, v{a}, s[{sWM}:{sWM+3}], s{sT2} offen"]
    return r

def delay(tag, mod, val, ticks):
    if not opt.delay: return []
    return ["@raw_begin", f"s_and_b32 s{sD0}, s2, {mod}", f"s_cmp_eq_u32 s{sD0}, {val}", f"s_cbranch_scc0 L_dl{tag}",
            f"s_memrealtime s[{sSTAMP}:{sSTAMP+1}]", "s_waitcnt lgkmcnt(0)", f"s_mov_b32 s{sD1}, s{sSTAMP}", f"L_dw{tag}:",
            f"s_memrealtime s[{sSTAMP}:{sSTAMP+1}]", "s_waitcnt lgkmcnt(0)", f"s_sub_u32 s{sD0}, s{sSTAMP}, s{sD1}",
            f"s_cmp_lt_u32 s{sD0}, {ticks*opt.delay}", f"s_cbranch_scc1 L_dw{tag}", f"L_dl{tag}:", "@raw_end"]

def skew(tag):
    if not opt.skew: return []
    return [f"s_bitcmp1_b32 s{sW}, 0", f"s_cbranch_scc1 L_sk{tag}a", "s_nop 0", f"L_sk{tag}a:", f"s_bitcmp1_b32 s{sW}, 1", f"s_cbranch_scc1 L_sk{tag}b", "s_nop 1", f"L_sk{tag}b:"]

def mlp_read_addr():
    G, r_, c, t, u = vT[19], vT[20], vT[21], vT[22], vT[23]
    return [f"v_lshrrev_b32 v{G}, 4, v{vLANE}", f"v_bfe_u32 v{r_}, v{vLANE}, 2, 2", f"v_and_b32 v{c}, 3, v{vLANE}",
         f"v_lshrrev_b32 v{t}, 1, v{G}", f"v_lshlrev_b32 v{t}, 11, v{t}", f"v_lshl_add_u32 v{t}, v{r_}, 7, v{t}",
         f"v_and_b32 v{u}, 1, v{c}", f"v_lshl_add_u32 v{t}, v{u}, 3, v{t}",
         f"v_and_b32 v{u}, 1, v{G}", f"v_lshlrev_b32 v{u}, 1, v{u}", f"v_lshrrev_b32 v{vRA[1]}, 1, v{c}", f"v_add_u32 v{u}, v{u}, v{vRA[1]}",
         f"v_lshrrev_b32 v{vRA[1]}, 1, v{r_}", f"v_lshlrev_b32 v{vRA[1]}, 2, v{vRA[1]}", f"v_xor_b32 v{u}, v{u}, v{vRA[1]}",
         f"v_lshl_add_u32 v{vRA[0]}, v{u}, 4, v{t}", f"v_xor_b32 v{vRA[1]}, 64, v{vRA[0]}",
         f"v_lshrrev_b32 v{t}, 1, v{G}", f"v_lshlrev_b32 v{t}, 10, v{t}", f"v_lshl_add_u32 v{t}, v{r_}, 6, v{t}",
         f"v_and_b32 v{u}, 1, v{G}", f"v_lshl_add_u32 v{t}, v{u}, 5, v{t}", f"v_lshl_add_u32 v{vRB}, v{c}, 3, v{t}",
         f"v_lshlrev_b32 v{u}, 10, v{u}", f"v_lshrrev_b32 v{t}, 1, v{G}", f"v_lshl_add_u32 v{u}, v{t}, 8, v{u}",
         f"v_and_b32 v{t}, 15, v{vLANE}", f"v_lshl_add_u32 v{vHH}, v{t}, 4, v{u}"]

def relayout_issue():
    u, t0, t1, t2 = sT2, vT[5], vT[6], vT[7]
    vo = vT[0:5]
    r = [f"s_lshl_b32 s{u}, s{sW}, 5", f"s_add_u32 s{u}, s{u}, s{sRT}",
       f"s_mul_i32 s{sT3}, s{sN}, 88", f"s_add_u32 s{sT3}, s{sT3}, s{u}", f"s_mul_i32 s{sT3}, s{sT3}, 5120", f"s_add_u32 s{sT3}, s{sT3}, {WS_W2P}",
       f"s_cmp_lt_u32 s{u}, 88", f"s_cselect_b32 s{sRLST}, s{sT3}, {OOB}",
       f"s_mov_b32 s{sRL+3}, 0x20000", f"s_cmp_lt_u32 s{u}, 40", "@arm", "s_cbranch_scc0 L_rlw",
       f"s_cmp_lt_u32 s{u}, 20", f"s_cselect_b32 s{sRL}, s{pCRE}, s{pCIM}", f"s_cselect_b32 s{sRL+1}, s{pCRE+1}, s{pCIM+1}",
       f"s_cselect_b32 s{sT3}, 0, 20", f"s_sub_u32 s{sT3}, s{u}, s{sT3}", f"s_lshl_b32 s{sT3}, s{sT3}, 6",
       f"s_mul_i32 s{sT4}, s{sN}, {80*1280}", f"s_add_u32 s{sRLOFF}, s{sT3}, s{sT4}",
       f"s_mov_b32 s{sRL+2}, {640*1280}",
       f"v_lshrrev_b32 v{t0}, 2, v{vLANE}", f"v_and_b32 v{t1}, 3, v{vLANE}", f"v_lshlrev_b32 v{t1}, 4, v{t1}",
       f"v_mul_u32_u24 v{t0}, 1280, v{t0}", f"v_add_u32 v{vo[0]}, v{t0}, v{t1}"]
    for e in range(1, 5): r.append(f"v_add_u32 v{vo[e]}, {e*16*1280}, v{vo[0]}")
    r += ["s_branch L_rlj", "@else", "L_rlw:",
       f"s_mov_b32 s{sRL}, s{pW2}", f"s_mov_b32 s{sRL+1}, s{pW2+1}",
       f"s_cmp_lt_u32 s{u}, 88", f"s_cselect_b32 s{sRL+2}, {1536*1280}, 0",
       f"s_sub_u32 s{sT3}, s{u}, 40", f"s_mul_i32 s{sT3}, s{sT3}, {32*1280}", f"s_mul_i32 s{sT4}, s{sN}, 160", f"s_add_u32 s{sRLOFF}, s{sT3}, s{sT4}",
       f"s_mov_b32 s{sT4}, 6554"]
    for p in range(5):
        r += [f"v_add_u32 v{t0}, {64*p}, v{vLANE}", f"v_mul_u32_u24 v{t1}, s{sT4}, v{t0}", f"v_lshrrev_b32 v{t1}, 16, v{t1}",
              f"v_mul_u32_u24 v{t2}, 10, v{t1}", f"v_sub_u32 v{t2}, v{t0}, v{t2}", f"v_lshlrev_b32 v{t2}, 4, v{t2}",
              f"v_mul_u32_u24 v{t1}, 1280, v{t1}", f"v_add_u32 v{vo[p]}, v{t1}, v{t2}"]
    r += ["@endarm", "L_rlj:", f"s_and_b32 s{sRL+1}, s{sRL+1}, 0xffff"]
    return r
def relayout_dma():
    vo = vT[0:5]
    r = []
    for p in range(5):
        r.append([f"s_add_u32 m0, s{sM0U}, {L_RL + p*1024}", "s_nop 0",
                  I(f"buffer_load_dwordx4 v{vo[p]}, s[{sRL}:{sRL+3}], s{sRLOFF} offen {'nt' if opt.rl_nt else ''} lds", tok="RL")])
    return r

def relayout_finish():
    t0, t1 = vT[0], vT[1]
    r = ["@waitvm RL", f"s_lshl_b32 s{sT2}, s{sW}, 5", f"s_add_u32 s{sT2}, s{sT2}, s{sRT}", f"s_add_u32 s{sT3}, s{sM0U}, {L_RL}",
         f"s_cmp_lt_u32 s{sT2}, 40", "@arm", "s_cbranch_scc0 L_rfw",
         f"v_and_b32 v{t0}, 15, v{vLANE}", f"v_lshrrev_b32 v{t1}, 4, v{vLANE}", f"v_lshlrev_b32 v{t1}, 4, v{t1}",
         f"v_lshl_add_u32 v{t0}, v{t0}, 6, v{t1}", f"v_add_u32 v{t0}, s{sT3}, v{t0}"]
    for e in range(5): r.append(f"ds_read_b128 {ar(aRL+4*e)}, v{t0} offset:{e*1024}")
    r += ["@waitds0", "s_branch L_rfj", "@else", "L_rfw:",
          f"v_lshrrev_b32 v{t0}, 2, v{vLANE}", f"v_and_b32 v{t1}, 8, v{t0}", f"v_add_u32 v{t0}, v{t0}, v{t1}",
          f"v_mul_u32_u24 v{t0}, 160, v{t0}", f"v_and_b32 v{t1}, 3, v{vLANE}",
          f"v_lshl_add_u32 v{t0}, v{t1}, 3, v{t0}", f"v_add_u32 v{t0}, s{sT3}, v{t0}"]
    for e in range(5):
        for jj in range(2):
            r.append(f"ds_read_b64_tr_b16 {ar(aRL+4*e+2*jj, 2)}, v{t0} offset:{jj*1280 + e*32}")
    r += ["@waitds0", "@endarm", "L_rfj:"]
    for e in range(5):
        if e < 4: r.append(I(f"buffer_store_dwordx4 {ar(aRL+4*e)}, v{vL16}, s[{sWS}:{sWS+3}], s{sRLST} offen offset:{e*1024} sc1", tok="RLS"))
        else: r.append(I(f"buffer_store_dwordx4 {ar(aRL+4*e)}, v{vW4}, s[{sWS}:{sWS+3}], s{sRLST} offen sc1", tok="RLS"))
    return r

def flag_store(base, sline, sidx):
    return [f"s_lshl_b32 s{sD0}, s{sline}, 7", f"s_lshl_b32 s{sD1}, s{sidx}, 2", f"s_add_u32 s{sD0}, s{sD0}, s{sD1}", f"s_add_u32 s{sD0}, s{sD0}, {base}",
            f"s_cmp_eq_u32 s{sW}, 0", f"s_cselect_b32 s{sD0}, s{sD0}, {OOB}",
            f"buffer_store_dword v{vNON}, off, s[{sWS}:{sWS+3}], s{sD0} sc1"]
def flag_load(base, sline, shift, mask, st=None):
    st = sD0 if st is None else st
    return [f"s_lshr_b32 s{st}, s{sline}, {shift}", f"s_lshl_b32 s{st}, s{st}, 7", f"s_add_u32 s{st}, s{st}, {base}",
            f"v_and_b32 v{vFLAG}, {mask}, v{vLANE}", f"v_lshlrev_b32 v{vFLAG}, 2, v{vFLAG}",
            f"buffer_load_dword v{vFLAG}, v{vFLAG}, s[{sWS}:{sWS+3}], s{st} offen sc1"]
def flag_check(base, sline, shift, mask):
    return poll(flag_load(base, sline, shift, mask, sD0), [f"v_cmp_ne_u32 vcc, s{sNONCE}, v{vFLAG}"])

def scan_addr():
    col, q, ch, t = vT[19], vT[20], vT[21], vT[22]
    return [f"s_lshl_b32 s{sT2}, s{sW}, 13", f"s_add_u32 s{sT2}, s{sT2}, {L_PRIV}",
            f"v_and_b32 v{col}, 15, v{vLANE}", f"v_lshrrev_b32 v{q}, 4, v{vLANE}",
            f"v_lshl_add_u32 v{vCOLR}, v{col}, 4, s{sT2}",
            f"v_lshl_add_u32 v{vEW}, v{q}, 2, v{vCOLR}",
            f"v_min_u32 v{ch}, 39, v{vLANE}", f"v_lshlrev_b32 v{vSO}, 4, v{ch}",
            f"v_lshrrev_b32 v{t}, 3, v{ch}", f"v_lshlrev_b32 v{t}, 3, v{t}", f"v_add_u32 v{t}, v{t}, v{ch}",
            f"v_lshl_add_u32 v{vER}, v{t}, 4, s{sT2}",
            f"v_add_u32 v{vCH}, s{sT2}, v{vL16}",
            f"s_lshl_b32 s{sT3}, s{sW}, 9", f"s_add_u32 s{sT3}, s{sT3}, {L_TT}", f"v_lshl_add_u32 v{vTT}, v{vLANE}, 3, s{sT3}",
            f"v_lshlrev_b32 v{vLB}, 5, v{vLANE}", f"v_add_u32 v{vLB}, {L_LB}, v{vLB}",
            f"s_add_u32 s{sT3}, s{sM0U}, {L_RL}",
            f"v_lshlrev_b32 v{vTW}, 5, v{col}", f"v_lshl_add_u32 v{vTW}, v{q}, 3, v{vTW}", f"v_add_u32 v{vTW}, s{sT3}, v{vTW}",
            f"v_bfe_u32 v{t}, v{vLANE}, 2, 2", f"v_lshlrev_b32 v{t}, 5, v{t}", f"v_lshl_add_u32 v{t}, v{q}, 8, v{t}",
            f"v_and_b32 v{ch}, 3, v{vLANE}", f"v_lshl_add_u32 v{t}, v{ch}, 3, v{t}", f"v_add_u32 v{vTR}, s{sT3}, v{t}",
            f"v_lshrrev_b32 v{t}, 1, v{q}", f"v_lshlrev_b32 v{t}, 10, v{t}", f"v_lshl_add_u32 v{vHST}, v{col}, 4, v{t}",
            f"v_and_b32 v{t}, 1, v{q}", f"v_mul_u32_u24 v{t}, {20*4096}, v{t}", f"v_add_u32 v{vHST}, v{vHST}, v{t}"]

def const_park():
    src = [cAR, cAI, cKR, cKI] + list(range(60, 70))
    return [f"v_accvgpr_write_b32 a{200+k}, v{s}" for k, s in enumerate(src)]
def const_tables():
    t = vT[0:8]
    r = [f"v_accvgpr_read_b32 v{t[0]}, a200", f"v_accvgpr_read_b32 v{t[1]}, a201", f"v_accvgpr_read_b32 v{t[2]}, a202", f"v_accvgpr_read_b32 v{t[3]}, a203",
         f"v_sub_f32 v{t[3]}, 0, v{t[3]}",
         f"v_mov_b32 v{t[4]}, v{t[0]}", f"v_sub_f32 v{t[5]}, 0, v{t[1]}", f"v_sub_f32 v{t[6]}, 0, v{t[2]}", f"v_mov_b32 v{t[7]}, v{t[3]}",
         f"ds_write_b128 v{vER}, {vr(t[0])} offset:{PV_COL}", f"ds_write_b128 v{vER}, {vr(t[4])} offset:{PV_COL+128}",
         f"ds_write_b128 v{vCH}, {ar(204)} offset:{PV_CH}", f"ds_write_b128 v{vCH}, {ar(208)} offset:{PV_CH+1024}",
         f"ds_write_b64 v{vCH}, {ar(212, 2)} offset:{PV_CH+2048}",
         f"v_mov_b32 v{t[0]}, 0", f"v_mov_b32 v{t[1]}, 0",
         f"s_min_u32 s{sT2}, s{sW}, 2", f"s_lshl_b32 s{sT2}, s{sT2}, 9", f"s_add_u32 s{sT2}, s{sT2}, {L_TT}",
         f"v_lshl_add_u32 v{t[2]}, v{vLANE}, 3, s{sT2}", f"ds_write_b64 v{t[2]}, {vr(t[0], 2)}"]
    return r

def ureg(cf, tau): return U(cf, tau >> 2) + (tau & 3)
DPP = "row_ror:8 row_mask:0xf bank_mask:0xf"
def scan_P12():
    C = vT[0:20]
    r = [I(f"ds_read_b128 {vr(C[4*cf])}, v{vCOLR} offset:{PV_COL + cf*256}", tok="colr") for cf in range(5)]
    r.append("@gap 1")
    t = vT[20:24]
    k = 0
    for tau in range(8):
        for cf in range(5):
            u = ureg(cf, tau); tt = t[k % 4]; k += 1
            r += [f"v_mul_f32_dpp v{tt}, v{u}, v{C[4*cf+3]} {DPP}", f"v_fma_f32 v{u}, v{C[4*cf+2]}, v{u}, v{tt}"]
    for tau in range(1, 8):
        src = [(ureg(cf, 0) if tau == 1 else C[4*cf + 2 + (tau & 1)]) for cf in range(5)]
        dst = [C[4*cf + 2 + ((tau + 1) & 1)] for cf in range(5)]
        for cf in range(5): r.append(f"v_fma_f32 v{dst[cf]}, v{C[4*cf]}, v{src[cf]}, v{ureg(cf, tau)}")
        for cf in range(5): r.append(f"v_fmac_f32_dpp v{dst[cf]}, v{src[cf]}, v{C[4*cf+1]} {DPP}")
    for cf in range(5): r.append(f"ds_write_b32 v{vEW}, v{C[4*cf+2]} offset:{PV_E + cf*256}")
    er, ei, a8 = vT[0], vT[4], vT[8]
    r += [f"ds_read_b128 {vr(a8)}, v{vCH} offset:{PV_CH}",
          f"ds_read_b128 {vr(er)}, v{vER} offset:{PV_E}", f"ds_read_b128 {vr(ei)}, v{vER} offset:{PV_E+128}", "@gap 2"]
    g0, g1 = vT[12], vT[14]
    r += chorner2(g0, g0+1, er, ei, a8, a8+1, er+1, ei+1)
    r += chorner2(g1, g1+1, g0, g0+1, a8, a8+1, er+2, ei+2)
    r += chorner2(g0, g0+1, g1, g1+1, a8, a8+1, er+3, ei+3)
    r += [f"ds_write_b64 v{vTT}, {vr(g0, 2)} offset:{3*512}"]
    return r

def scan_P3():
    a32 = vT[8]; T = vT[0:8]
    r = [f"ds_read_b128 {vr(a32)}, v{vCH} offset:{PV_CH}"]
    for k in range(4): r.append(f"ds_read_b64 {vr(T[2*k], 2)}, v{vTT} offset:{k*512}")
    r.append("@gap 2")
    m = a32 + 2
    g = vT[12]
    r += chorner2(g, g+1, T[0], T[1], m, m+1, T[2], T[3])
    r += chorner2(vWP0, vWP1, g, g+1, m, m+1, T[4], T[5])
    r += chorner2(g, g+1, vWP0, vWP1, m, m+1, T[6], T[7])
    r += [f"v_mov_b32 v{g+2}, s{sNONCE}", f"v_mov_b32 v{g+3}, s{sNONCE}",
          f"buffer_store_dwordx4 {vr(g)}, v{vSO}, s[{sWS}:{sWS+3}], s{sSST} offen sc1"]
    return r

def lb_loads():
    return [f"buffer_load_dwordx4 {ar(aS+4*jj)}, v{vSO}, s[{sWS}:{sWS+3}], s{sl} offen sc1" for jj, sl in enumerate((sLB0, sLB1, sLB2, sLB3))]
def scan_P4():
    t = vT[0:8]
    chk = []
    for jj, sl in enumerate((sLB0, sLB1, sLB2, sLB3)):
        d = t[2] if jj == 0 else t[0]
        chk += [f"s_cmp_lt_u32 s{sl}, {OOB}", f"s_cselect_b32 s{sT2}, s{sNONCE}, 0", f"v_accvgpr_read_b32 v{d}, a{aS+4*jj+2}",
                f"v_xor_b32 v{d}, s{sT2}, v{d}"]
        if jj: chk += [f"v_or_b32 v{t[2]}, v{t[2]}, v{t[0]}"]
    chk += [f"v_cmp_ne_u32 vcc, 0, v{t[2]}"]
    c = vT[8]
    r = [f"ds_read_b128 {vr(c)}, v{vCH} offset:{PV_CH+1024}", f"ds_read_b64 {vr(vT[12], 2)}, v{vCH} offset:{PV_CH+2048}"]
    r += poll(lb_loads(), [i.text for i in insert_nops(II(chk))])
    for jj in range(4):
        r += [f"v_accvgpr_read_b32 v{t[2*jj]}, a{aS+4*jj}", f"v_accvgpr_read_b32 v{t[2*jj+1]}, a{aS+4*jj+1}"]
    m = c + 2; g0, g1 = vT[14], vT[16]
    r += chorner2(g0, g0+1, t[0], t[1], m, m+1, t[2], t[3])
    r += chorner2(g1, g1+1, g0, g0+1, m, m+1, t[4], t[5])
    r += chorner2(g0, g0+1, g1, g1+1, m, m+1, t[6], t[7])
    r += cmul(g1, g1+1, g0, g0+1, vT[12], vT[13], vT[18])
    r += [f"s_lshl_b32 s{sT2}, s{sW}, 3", f"v_add_u32 v{vT[18]}, s{sT2}, v{vLB}", f"ds_write_b64 v{vT[18]}, {vr(g1, 2)}"]
    return r

def scan_P56():
    lb = vT[0]; er, ei = vT[8], vT[12]; c8, c32w = vT[16], vT[20]
    r = [f"ds_read_b128 {vr(lb)}, v{vLB}", f"ds_read_b128 {vr(lb+4)}, v{vLB} offset:16",
         f"ds_read_b64 {vr(c32w, 2)}, v{vCH} offset:{PV_CH+1024}", f"ds_read_b128 {vr(c8)}, v{vCH} offset:{PV_CH}",
         f"ds_read_b128 {vr(er)}, v{vER} offset:{PV_E}", f"ds_read_b128 {vr(ei)}, v{vER} offset:{PV_E+128}", "@gap 2",
         f"v_add_f32 v{lb}, v{lb}, v{lb+2}", f"v_add_f32 v{lb+1}, v{lb+1}, v{lb+3}",
         f"v_add_f32 v{lb+4}, v{lb+4}, v{lb+6}", f"v_add_f32 v{lb+5}, v{lb+5}, v{lb+7}",
         f"v_add_f32 v{lb}, v{lb}, v{lb+4}", f"v_add_f32 v{lb+1}, v{lb+1}, v{lb+5}"]
    q0, q1 = vT[4], vT[20]
    tmp = vT[2]
    r += chorner2(tmp, tmp+1, lb, lb+1, c32w, c32w+1, vWP0, vWP1)
    r += [f"v_mov_b32 v{q0}, v{tmp}", f"v_mov_b32 v{q1}, v{tmp+1}"]
    for k in range(3):
        r += chorner2(q0+k+1, q1+k+1, q0+k, q1+k, c8, c8+1, er+k, ei+k)
    r += [f"ds_write_b128 v{vER}, {vr(q0)} offset:{PV_E}", f"ds_write_b128 v{vER}, {vr(q1)} offset:{PV_E+128}"]
    C = vT[0:10]; Z = vT[10:15]
    for cf in range(5): r.append(f"ds_read_b32 v{Z[cf]}, v{vEW} offset:{PV_E + cf*256}")
    for cf in range(5): r.append(f"ds_read_b64 {vr(C[2*cf], 2)}, v{vCOLR} offset:{PV_COL + cf*256}")
    r.append("@gap 2")
    for tau in range(8):
        src = [(Z[cf] if tau == 0 else ureg(cf, tau-1)) for cf in range(5)]
        for cf in range(5): r.append(f"v_fma_f32 v{ureg(cf, tau)}, v{C[2*cf]}, v{src[cf]}, v{ureg(cf, tau)}")
        for cf in range(5): r.append(f"v_fmac_f32_dpp v{ureg(cf, tau)}, v{src[cf]}, v{C[2*cf+1]} {DPP}")
    k = 0
    for cf in range(5):
        for f in range(2):
            t = vT[16 + 2*(k % 4)]; k += 1
            u = U(cf, f)
            r += [f"v_cvt_pk_bf16_f32 v{t}, v{u}, v{u+1}", f"v_cvt_pk_bf16_f32 v{t+1}, v{u+2}, v{u+3}",
                  f"ds_write_b64 v{vTW}, {vr(t, 2)} offset:{(cf*2+f)*512}"]
    for cf in range(5):
        for jj in range(2):
            r.append(f"ds_read_b64_tr_b16 {vr(56 + 4*cf + 2*jj, 2)}, v{vTR} offset:{cf*1024 + jj*128}")
    r += [f"s_mul_i32 s{sT3}, s{sG}, 5", "@gap 2"]
    for cf in range(5):
        r += [f"s_add_u32 s{sT2}, s{sT3}, {cf}", f"s_and_b32 s{sT4}, s{sT2}, 3", f"s_lshr_b32 s{sT2}, s{sT2}, 2",
              f"s_lshl_b32 s{sT2}, s{sT2}, 12", f"s_lshl_b32 s{sT4}, s{sT4}, 8", f"s_add_u32 s{sT2}, s{sT2}, s{sT4}", f"s_add_u32 s{sT2}, s{sT2}, s{sA2H}",
              I(f"buffer_store_dwordx4 {vr(56 + 4*cf)}, v{vHST}, s[{sWS}:{sWS+3}], s{sT2} offen sc1", tok="HST")]
    return r

def swiglu(acc, h2s, sks, tokname, packed=False):
    r = []
    k = 0
    for h2 in h2s:
        for z in range(2):
            G = vT[0:8]; Uu = vT[8:16]; T = vT[16:24]
            for j in range(8):
                r += [f"v_accvgpr_read_b32 v{G[j]}, a{acc(0, h2) + 8*z + j}", f"v_accvgpr_read_b32 v{Uu[j]}, a{acc(1, h2) + 8*z + j}"]
            if packed:
                for j in range(0, 8, 2): r.append(f"v_pk_mul_f32 {vr(T[j], 2)}, {vr(G[j], 2)}, s[{sEX0}:{sEX0+1}]")
                for j in range(8):
                    r.append(f"v_exp_f32 v{T[j]}, v{T[j]}")
                for j in range(0, 8, 2): r.append(f"v_pk_mul_f32 {vr(G[j], 2)}, {vr(G[j], 2)}, {vr(Uu[j], 2)}")
                for j in range(0, 8, 2): r.append(f"v_pk_add_f32 {vr(T[j], 2)}, {vr(T[j], 2)}, s[{sEX2}:{sEX2+1}]")
                for j in range(8): r.append(f"v_rcp_f32 v{T[j]}, v{T[j]}")
                for j in range(0, 8, 2): r.append(f"v_pk_mul_f32 {vr(G[j], 2)}, {vr(G[j], 2)}, {vr(T[j], 2)}")
            else:
                for j in range(8): r.append(f"v_mul_f32 v{T[j]}, {NLOG2E}, v{G[j]}")
                for j in range(8): r += [f"v_exp_f32 v{T[j]}, v{T[j]}", f"v_mul_f32 v{G[j]}, v{G[j]}, v{Uu[j]}"]
                for j in range(8): r.append(f"v_add_f32 v{T[j]}, 1.0, v{T[j]}")
                for j in range(8): r.append(f"v_rcp_f32 v{T[j]}, v{T[j]}")
                for j in range(8): r.append(f"v_mul_f32 v{G[j]}, v{G[j]}, v{T[j]}")
            o = Uu[0] if k % 2 == 0 else Uu[4]; k += 1
            for j in range(4): r.append(f"v_cvt_pk_bf16_f32 v{o+j}, v{G[2*j]}, v{G[2*j+1]}")
            if z == 0: r.append(f"s_add_u32 s{sT2}, s{sks}, {h2*4096}")
            r.append(I(f"buffer_store_dwordx4 {vr(o)}, v{vHH}, s[{sWS}:{sWS+3}], s{sT2} offen offset:{z*512} sc1", tok=tokname))
    return r

def step_reads(blk, s, par):
    r = []
    if blk == "U":
        i, sh2, sh = s // 4, (s >> 1) & 1, s & 1
        off = i*20480 + sh2*10240 - (61440 if i >= 3 else 0)
        for cf in range(5):
            r.append(f"ds_read_b128 {ar(FB(par, cf))}, v{vRU[sh]} offset:{off + cf*1024}")
    elif blk == "A":
        m, sp = s // 2, s & 1
        for hf in range(2):
            for h2 in range(2):
                for mu in range(2):
                    for jj in range(2):
                        r.append(f"ds_read_b64_tr_b16 {ar(FB(par, hf*4+h2*2+mu) + 2*jj, 2)}, v{vRA[h2]} offset:{(m % 4)*16384 + (2*sp+mu)*4096 + hf*1024 + jj*512}")
    else:
        m, sd = 10 + s // 2, s & 1
        for s2 in range(2):
            for hf in range(2):
                for mu in range(2):
                    for jj in range(2):
                        r.append(f"ds_read_b64_tr_b16 {ar(FB(par, s2*4+hf*2+mu) + 2*jj, 2)}, v{vRB} offset:{(m % 4)*16384 + (2*sd+mu)*4096 + s2*2048 + hf*512 + jj*256}")
    return r

def step_mfma(blk, s, par):
    r = []
    if blk == "U":
        for cf in range(5):
            for f in range(2):
                d = vr(U(cf, f)); c = "0" if s == 0 else d
                r.append(f"v_mfma_f32_16x16x32_bf16 {d}, {vr(X(f, s))}, {ar(FB(par, cf))}, {c}")
    elif blk == "A":
        for hf in range(2):
            for h2 in range(2):
                for mu in range(2):
                    d = ar(ACCA(mu, h2), 16); c = "0" if (s == 0 and hf == 0) else d
                    r.append(f"v_mfma_f32_32x32x16_bf16 {d}, {ar(FB(par, hf*4+h2*2+mu))}, {vr(X(hf, s))}, {c}")
    else:
        for s2 in range(2):
            for hf in range(2):
                for mu in range(2):
                    d = ar(ACCB(mu), 16); c = "0" if (s == 0 and hf == 0 and s2 == 0) else d
                    r.append(f"v_mfma_f32_32x32x16_bf16 {d}, {ar(FB(par, s2*4+hf*2+mu))}, {vr(X(hf, 2*s+s2))}, {c}")
    return r

def swaps(s): return [f"v_permlane16_swap_b32 v{X(0, s)+k}, v{X(1, s)+k}" for k in range(4)]

def stage_of(blk, s):
    return ("U", s // 4) if blk == "U" else (("M", s // 2) if blk == "A" else ("M", 10 + s // 2))

def cost(i):
    if i.cls in ("pseudo", "label"): return 0
    if i.cls == "trans": return 2
    if i.cls == "vmem": return 2
    return 1

class Queue:
    def __init__(self): self.q = []; self.hold = 0
    def add(self, lst, deadline):
        if "q" in opt.skip:
            lst = [t for t in II(lst) if t.cls in ("vmem",) or t.op.startswith("s_") or t.cls in ("pseudo", "label") or t.op.startswith("v_cmp") or t.op.startswith("v_readfirst") or t.op.startswith("v_accvgpr_read") and "a18" in t.text + "a19"]
        for t in II(lst): self.q.append((t, deadline))
    def _region(self, out):
        i = self.q[0][0]
        end = "@endarm" if i.op == "@arm" else "@raw_end"
        while True:
            j = self.q.pop(0)[0]; out.append(j)
            if j.cls == "pseudo" and j.op == end: break
        while self.q and self.q[0][0].cls == "label": out.append(self.q.pop(0)[0])
    def need(self, gap):
        best = 0; acc = 0
        for t, d in self.q:
            acc += cost(t)
            left = d - gap + 1
            if left <= 0: best = max(best, acc)
            else: best = max(best, -(-acc // left))
        return best
    def pop(self, n, gap):
        out = []
        need = self.need(gap)
        if self.hold > 0 and (not self.q or self.q[0][1] > gap):
            self.hold -= 1; return out
        self.hold = 0
        n = max(n, need)
        while self.q and (n > 0 or self.q[0][1] <= gap):
            i = self.q[0][0]
            if i.cls == "pseudo" and i.op == "@gap":
                d = self.q.pop(0)[1]
                if d > gap:
                    self.hold = int(i.arg); break
                continue
            if i.cls == "pseudo" and i.op in ("@arm", "@raw_begin"):
                self._region(out); n -= 4
                continue
            if i.cls == "branch" or i.op.startswith("s_cmp") or i.op.startswith("s_bitcmp") or i.op.startswith("v_cmp"):
                out.append(self.q.pop(0)[0])
                while self.q:
                    k = self.q[0][0]
                    if k.op.startswith("s_cselect") or k.op.startswith("v_cndmask") or k.cls == "branch": out.append(self.q.pop(0)[0])
                    elif k.op in ("@arm", "@raw_begin"): self._region(out); n -= 4
                    else: break
                n -= 1
                continue
            self.q.pop(0); out.append(i)
            n -= cost(i)
        return out
    def flush(self):
        out = [i for i, d in self.q if not (i.cls == "pseudo" and i.op == "@gap")]
        self.q = []; self.hold = 0
        return out

P2ACC = [("a", 4*k) for k in range(20)]
A_SLOTS = [("a", 80 + 4*k) for k in range(20)]
W_SLOTS = [("a", 196 + 4*k) for k in range(15)] + [("a", 160 + 4*k) for k in range(5)] + [("v", 96 + 4*k) for k in range(40)]
def rg(t, c=4): return f"{t[0]}[{t[1]}:{t[1]+c-1}]"
vA2 = [3, 4, 5, 6]; vPW = [7, 8, 9]; vPR = 11; vOUT = 13; vXO = 14; vSTA = 15; vDS = 16
vXR = list(range(56, 76)); vY = list(range(76, 96)); vDK = [17, 18, 19, 20, 21]; vST = list(range(32, 40))
NSTEP = 22
def ptr_init(which, part, st):
    p, s0, e0 = (sAP, sAS, sAE) if which == "A" else (sWP, sWB, sWE)
    stride = 4096 if which == "A" else 5120
    base = sP2A if which == "A" else sP2W
    n, k0, rot = (10, 0, sRY) if part == "y" else (12, 40, sRO)
    return [f"s_mul_i32 s{s0}, s{sW}, {n*stride}", f"s_add_u32 s{s0}, s{s0}, s{base}", f"s_add_u32 s{s0}, s{s0}, {k0*stride}",
            f"s_add_u32 s{e0}, s{s0}, {n*stride}", f"s_mul_i32 s{p}, s{rot}, {stride}", f"s_add_u32 s{p}, s{p}, s{s0}"]
def ptr_step(which):
    p, s0, e0 = (sAP, sAS, sAE) if which == "A" else (sWP, sWB, sWE)
    stride = 4096 if which == "A" else 5120
    return [f"s_add_u32 s{p}, s{p}, {stride}", f"s_cmp_eq_u32 s{p}, s{e0}", f"s_cselect_b32 s{p}, s{s0}, s{p}"]
def p2_wload(st):
    r = []
    if st == 0: r += ptr_init("W", "y", st)
    elif st == 10: r += ptr_init("W", "o", st)
    else: r += ptr_step("W")
    for e in range(5):
        slot = W_SLOTS[(st % 12) * 5 + e]
        if e < 4: r.append(f"buffer_load_dwordx4 {rg(slot)}, v{vL16}, s[{sWS}:{sWS+3}], s{sWP} offen offset:{e*1024} sc1")
        else: r.append(f"buffer_load_dwordx4 {rg(slot)}, v{vW4}, s[{sWS}:{sWS+3}], s{sWP} offen sc1")
    return r
def p2_aload(st):
    r = []
    if st == 0: r += ptr_init("A", "y", st)
    elif st == 10: r += ptr_init("A", "o", st)
    else: r += ptr_step("A")
    for jj in range(4):
        r.append(f"buffer_load_dwordx4 {rg(A_SLOTS[(st % 5)*4 + jj])}, v{vA2[jj]}, s[{sWS}:{sWS+3}], s{sAP} offen sc1")
    return r
def p2_setup():
    r = []
    for jj in range(4):
        r += [f"s_add_u32 s{sT2}, s{sW}, {jj}", f"s_and_b32 s{sT2}, s{sT2}, 3", f"s_lshl_b32 s{sT3}, s{sT2}, 10", f"v_add_u32 v{vA2[jj]}, s{sT3}, v{vL16}"]
    return r
def p2_setup2():
    r = []
    for jj in range(1, 4):
        r += [f"s_add_u32 s{sT2}, s{sW}, {jj}", f"s_and_b32 s{sT2}, s{sT2}, 3",
              f"s_mul_i32 s{sT3}, s{sT2}, 15360", f"s_add_u32 s{sT3}, s{sT3}, {(3-jj)*5120}", f"v_add_u32 v{vPW[jj-1]}, s{sT3}, v{vL16}"]
    r += [f"s_mul_i32 s{sT3}, s{sW}, 15360", f"v_add_u32 v{vPR}, s{sT3}, v{vL16}"]
    return r

def phase1_blocks():
    Q = Queue(); wpre = []
    seq = [("U", s) for s in range(20)] + [("A", s) for s in range(20)] + [("B", s) for s in range(10)]
    gap0 = []; g = 0
    for blk, s in seq:
        gap0.append(g); g += {"U": 10, "A": 8, "B": 8}[blk]
    gap0.append(g)
    def stage_end(kind, idx):
        n = [k for k, (b, s) in enumerate(seq) if stage_of(b, s) == (kind, idx)][-1]
        return gap0[n] + bstart(seq[n][0]) - 1
    def bstart(blk): return {"U": 1, "A": 1, "B": 1}[blk]
    L(delay("a", 255, 0, 500)); L(delay("b", 31, 5, 700))
    L(["@waitvm U0", "s_barrier"])
    L(stamp("U start"))
    L(step_reads("U", 0, 0))
    later = []
    later += [nonce_publish()] + [u_piece(4, cf) for cf in range(5)] + relayout_dma()
    for n, (blk, s) in enumerate(seq):
        par = n & 1
        mf = step_mfma(blk, s, par)
        nxt = seq[n + 1] if n + 1 < len(seq) else None
        rd = II(step_reads(nxt[0], nxt[1], par ^ 1)) if nxt else []
        if rd: rd[-1].tok = f"rd{n+1}"
        boundary = nxt is None or stage_of(*nxt) != stage_of(blk, s)
        gaps = [[] for _ in mf]
        start = 0
        pre = []
        cap = opt.capU if blk == "U" else opt.capM
        if blk == "U" and s == 11: pre += [f"v_add_u32 v{vRU[0]}, 61440, v{vRU[0]}"]
        if blk == "U" and s == 12: pre += [f"v_add_u32 v{vRU[1]}, 61440, v{vRU[1]}"]
        if blk == "A" and s == 0:
            Q.add(nonce_get(), gap0[n] + 2)
            Q.add(scan_P12(), stage_end("M", opt.X_stage) - 2)
        if blk == "B" and s == 0:
            Q.add(swiglu(ACCA, [0, 1], sKSA, "HHA"), gap0[-1] - 6)
        post = []
        if boundary:
            kind, idx = stage_of(blk, s)
            start = bstart(blk)
            if kind == "U" and idx == 0:
                assert not later
                post += [(const_tables(), stage_end("U", 3)), (stats_store(), stage_end("U", 3)), (nonce_load(), stage_end("U", 4) - 4)]
            b = []
            if nxt is not None:
                nk, ni = stage_of(*nxt)
                b.append(I(f"@waitboth {nk}{ni}"))
            else:
                b.append(I("@waitds0"))
            if kind == "M" and idx == opt.F_stage: b += II(["@waitvm RLS", "@waitvm stat"])
            if kind == "M" and idx == opt.H_stage: b += II(["@waitvm HST"])
            b.append(I("s_barrier"))
            if (opt.stamps or opt.probe) and (opt.fine or (kind, idx) in (("U", 4), ("M", 9), ("M", 14))): b += II(stamp(f"{kind}{idx} end"))
            gaps[start - 1] += b
            def groups(lst):
                out = []; cur = []
                for t in II(lst):
                    cur.append(t)
                    if t.cls == "vmem": out.append(cur); cur = []
                if cur: out.append(cur)
                return out
            if kind == "U" and idx < 4: later += groups(dma_M(idx))
            if kind == "M" and idx + 4 <= 14: later += groups(dma_M(idx + 4))
            if kind == "M" and idx == 5: later += [mlp_dma_addr("B")]
            if kind == "M" and idx == opt.F_stage: later += groups(flag_store(WS_FLW, sN, sRT))
            if kind == "M" and idx == opt.H_stage: later += groups(flag_store(WS_FLH, sC, sG))
            if kind == "M" and idx == opt.L_stage:
                later += groups(lb_loads())
            if kind == "M" and idx == opt.C_stage:
                post.append((scan_P4(), stage_end("M", opt.Y_stage) - 2))
            if kind == "M" and idx == opt.X_stage:
                post.append((scan_P3(), stage_end("M", opt.X_stage + 1)))
                post.append((relayout_finish(), stage_end("M", opt.F_stage - 1)))
            if kind == "M" and idx == opt.Y_stage: gaps[start - 1] += II(delay("d", 63, 17, 900))
            if kind == "M" and idx == opt.Y_stage: post.append((scan_P56(), stage_end("M", opt.H_stage - 1) - 1))
            if kind == "M" and idx == opt.W_stage - 1 and opt.nearly:
                later += groups(flag_load(WS_FLW, sN, 0, 31, sD0))
            if kind == "M" and idx == opt.W_stage and opt.nearly:
                wpre.append(flag_check(WS_FLW, sN, 0, 31))
                for st in range(opt.nearly): wpre.extend(groups(p2_wload(st)))
        ng = len(mf)
        if rd:
            if nxt[0] == "U": span = 5
            elif blk == "U": span = 7
            else: span = opt.span
            for k, t in enumerate(rd): gaps[start + (k * span) // len(rd)].append(t)
        if nxt and nxt[0] == "A":
            for k, t in enumerate(II(swaps(nxt[1]))): gaps[ng - 5 + k].append(t)
        if blk == "U" and opt.pre_norm <= s + 1 < 20 and "n" not in opt.skip:
            nq = II(norm_step(1, s + 1, False, vT[20:24]))
            for k, t in enumerate(nq): gaps[(k * ng) // len(nq)].append(t)
        L(pre)
        E(f"@waitds rd{n}")
        for k, t in enumerate(mf):
            E(t)
            L(gaps[k])
            used = sum(cost(x) for x in gaps[k])
            before_bar = boundary and k < start - 1
            slot = k % 2 == 1 if blk == "U" else (k >= ng - 3 or (k == 4 and not boundary))
            if slot and not before_bar:
                if later:
                    grp = II(later.pop(0)); L(grp); used += sum(cost(x) for x in grp)
                elif wpre and (k >= ng - 2):
                    grp = II(wpre.pop(0)); L(grp); used += sum(cost(x) for x in grp)
            if boundary and k == start - 1:
                for lst, dl in post: Q.add(lst, dl)
                post = []
            else:
                L(Q.pop(cap - used, gap0[n] + k))
    assert not later, len(later)
    for grp in wpre: L(grp)
    L(Q.flush())

def p2_mfma(st):
    r = []
    first = st in (0, 10)
    for jj in range(4):
        for e in range(5):
            d = rg(P2ACC[jj*5+e]); c = "0" if first else d
            r.append(f"v_mfma_f32_16x16x32_bf16 {d}, {rg(A_SLOTS[(st % 5)*4+jj])}, {rg(W_SLOTS[(st % 12)*5+e])}, {c}")
    return r

def p2_partials(base):
    return [f"ds_write_b128 v{vPW[jj-1]}, {rg(P2ACC[jj*5+e])} offset:{base + e*1024}" for jj in range(1, 4) for e in range(5)]

def p2_epi_loads():
    dn, q, t = vT[8], vT[9], vT[10]
    r = [f"v_and_b32 v{dn}, 15, v{vLANE}", f"v_lshrrev_b32 v{q}, 4, v{vLANE}",
         f"s_lshl_b32 s{sT2}, s{sRT}, 6", f"s_lshr_b32 s{sT3}, s{sW}, 1", f"s_lshl_b32 s{sT3}, s{sT3}, 5", f"s_add_u32 s{sT2}, s{sT2}, s{sT3}",
         f"s_and_b32 s{sT3}, s{sW}, 1", f"s_lshl_b32 s{sT3}, s{sT3}, 2", f"s_add_u32 s{sT2}, s{sT2}, s{sT3}",
         f"v_lshl_add_u32 v{q}, v{q}, 3, s{sT2}",
         f"s_mul_i32 s{sT3}, s{sN}, 80", f"v_add_u32 v{dn}, s{sT3}, v{dn}",
         f"v_mul_u32_u24 v{t}, 640, v{q}", f"v_add_u32 v{t}, v{t}, v{dn}",
         f"v_lshlrev_b32 v{vXO}, 1, v{t}", f"v_lshlrev_b32 v{vOUT}, 2, v{t}", f"v_lshlrev_b32 v{vSTA}, 3, v{q}", f"v_lshlrev_b32 v{vDS}, 1, v{dn}"]
    for rr in range(4):
        r.append(f"s_mov_b32 s{sT2}, {rr*1280 + 4096}")
        for e in range(5):
            r.append(f"buffer_load_ushort v{vXR[e*4+rr]}, v{vXO}, s[{sX}:{sX+3}], s{sT2} offen offset:{e*32}")
    for e in range(5):
        r.append(f"global_load_ushort v{vDK[e]}, v{vDS}, s[{pDSK}:{pDSK+1}] offset:{e*32}")
    r += [f"s_mov_b32 s{sT2}, {WS_STAT}",
          f"buffer_load_dwordx4 {vr(vST[0])}, v{vSTA}, s[{sWS}:{sWS+3}], s{sT2} offen sc1",
          f"buffer_load_dwordx4 {vr(vST[4])}, v{vSTA}, s[{sWS}:{sWS+3}], s{sT2} offen offset:16 sc1"]
    return r

def p2_yfinish():
    r = []
    T = vT[8:24]
    for e in range(5): r.append(f"v_lshlrev_b32 v{vDK[e]}, 16, v{vDK[e]}")
    for e in range(5):
        b = T[4*(e % 2)]; b2 = T[8 + 4*(e % 2)]
        r.append(f"ds_read_b128 {vr(b)}, v{vPR} offset:{L_YP + e*1024}")
        r.append(f"ds_read_b128 {vr(b2)}, v{vPR} offset:{L_YP + 5120 + e*1024}")
        for rr in range(4): r.append(f"v_lshlrev_b32 v{vXR[e*4+rr]}, 16, v{vXR[e*4+rr]}")
        r.append("@gap 2")
        for rr in range(4): r.append(f"v_add_f32 v{vY[e*4+rr]}, v{vY[e*4+rr]}, v{b+rr}")
        r.append(f"ds_read_b128 {vr(b)}, v{vPR} offset:{L_YP + 10240 + e*1024}")
        for rr in range(4): r.append(f"v_add_f32 v{vY[e*4+rr]}, v{vY[e*4+rr]}, v{b2+rr}")
        for rr in range(4): r.append(f"v_fma_f32 v{b2+rr}, v{vXR[e*4+rr]}, v{vST[2*rr]}, v{vST[2*rr+1]}")
        for rr in range(4): r.append(f"v_fmac_f32 v{vY[e*4+rr]}, v{b2+rr}, v{vDK[e]}")
        for rr in range(4): r.append(f"v_add_f32 v{vY[e*4+rr]}, v{vY[e*4+rr]}, v{b+rr}")
    r += [f"v_add_u32 v{v}, {L_OP}, v{v}" for v in vPW + [vPR]]
    return r

def p2_final():
    r = []
    O = list(range(96, 116)); B = list(range(116, 176))
    for k in range(3):
        for e in range(5):
            r.append(f"ds_read_b128 {vr(B[k*20+e*4])}, v{vPR} offset:{k*5120 + e*1024}")
    for j in range(20): r.append(f"v_accvgpr_read_b32 v{O[j]}, a{j}")
    for k in range(3):
        for j in range(0, 20, 2):
            r.append(f"v_pk_add_f32 {vr(O[j], 2)}, {vr(O[j], 2)}, {vr(B[k*20+j], 2)}")
    T = B[0:20]
    for j in range(0, 20, 2): r.append(f"v_pk_mul_f32 {vr(T[j], 2)}, {vr(O[j], 2)}, s[{sEX0}:{sEX0+1}]")
    for j in range(20): r.append(f"v_exp_f32 v{T[j]}, v{T[j]}")
    for j in range(0, 20, 2): r.append(f"v_pk_mul_f32 {vr(O[j], 2)}, {vr(O[j], 2)}, {vr(vY[j], 2)}")
    for j in range(0, 20, 2): r.append(f"v_pk_add_f32 {vr(T[j], 2)}, {vr(T[j], 2)}, s[{sEX2}:{sEX2+1}]")
    for rr in range(4):
        r.append(f"s_mov_b32 s{sT2}, {rr*2560}")
        for e in range(5): r.append(f"v_rcp_f32 v{T[e*4+rr]}, v{T[e*4+rr]}")
        for e in range(5):
            j = e*4 + rr
            r += [f"v_fma_f32 v{O[j]}, v{O[j]}, v{T[j]}, v{vXR[j]}",
                  f"buffer_store_dword v{O[j]}, v{vOUT}, s[{sOUT}:{sOUT+3}], s{sT2} offen offset:{e*64} {opt.out_flags}"]
    return r

def weave(main, extra, every=1):
    groups = []; cur = []
    for t in II(extra):
        cur.append(t)
        if t.cls == "vmem": groups.append(cur); cur = []
    if cur: groups.append(cur)
    out = []
    for k, t in enumerate(II(main)):
        out.append(t)
        if groups and k % every == every - 1: out += groups.pop(0)
    for g_ in groups: out += g_
    return out

def phase2():
    L(stamp("B mfma end"))
    L(delay("c", 15, 9, 600))
    L([f"s_mov_b32 s{sEX0}, {NLOG2E}", f"s_mov_b32 s{sEX1}, {NLOG2E}", f"s_mov_b32 s{sEX2}, 1.0", f"s_mov_b32 s{sEX3}, 1.0"])
    L(p2_setup())
    L(flag_load(WS_FLH, sRT, 1, 15))
    if not opt.nearly:
        L(flag_load(WS_FLW, sN, 0, 31)); L(flag_check(WS_FLW, sN, 0, 31)); L(flag_load(WS_FLH, sRT, 1, 15))
    wl = []
    nx = opt.nearly
    while nx < opt.nearly + 2: wl += p2_wload(nx); nx += 1
    sw = swiglu(ACCB, [0], sKSB, "HHB", packed=True)
    L(weave(sw[:50], wl, 5));
    L(flag_check(WS_FLH, sRT, 1, 15))
    al = p2_aload(0) + p2_aload(1) + p2_aload(2)
    L(weave(sw[50:], al, 4))
    L(stamp("epi B done"))
    L(p2_aload(3)); L(p2_aload(4))
    L(p2_setup2())
    Q = Queue()
    nextW = nx; nextA = 5
    g = 0
    for st in range(NSTEP):
        mf = p2_mfma(st)
        if st == 10:
            for j in range(20): E(f"v_accvgpr_read_b32 v{vY[j]}, a{j}")
            L(p2_partials(L_YP))
            L(flag_check(WS_FLHH, sRT, 1, 15))
            L(stamp("hh ready"))
            while nextA < 15: L(p2_aload(nextA)); nextA += 1
            L(["@waitds0", "s_barrier"])
            L(stamp("y done"))
            Q.add(p2_yfinish(), g + 150)
        ld = []
        while nextW < NSTEP and nextW < st + 12 and len(ld) < 14: ld += p2_wload(nextW); nextW += 1
        lim = 10 if st < 10 else NSTEP
        if nextA < lim and nextA < st + 5: ld += p2_aload(nextA); nextA += 1
        if st == 1: ld += p2_epi_loads()
        if st == 8: ld += flag_load(WS_FLHH, sRT, 1, 15, sD0)
        groups = []; cur = []
        for t in II(ld):
            cur.append(t)
            if t.cls == "vmem": groups.append(cur); cur = []
        if cur: groups.append(cur)
        per = -(-len(groups) // 18) if groups else 0
        for k, t in enumerate(mf):
            E(t)
            used = 0
            if k >= 1:
                for _ in range(per):
                    if groups:
                        grp = groups.pop(0); L(grp); used += 2
            if st == opt.p2pos and k == 19:
                L(["@waitvm HHB", "s_barrier"]); L(flag_store(WS_FLHH, sC, sG)); L(stamp("flags out"))
            L(Q.pop(2 - used, g)); g += 1
        for grp in groups: L(grp)
    L(Q.flush())
    L(p2_partials(0))
    L(["@waitds0", "s_barrier"])
    L(stamp("out done"))
    L(p2_final())
    L(stamp("end")); L(stamp("cyc1", True))

def diag_out():
    if not opt.diag: return
    L([f"s_lshl_b32 s{sT2}, s2, 2", f"s_add_u32 s{sT2}, s{sT2}, s{sW}", f"s_lshl_b32 s{sT2}, s{sT2}, 2", f"s_add_u32 s{sT2}, s{sT2}, {WS_STAMP}",
       f"v_mov_b32 v{vT[0]}, s{sNONCE}", f"buffer_store_dword v{vT[0]}, off, s[{sWS}:{sWS+3}], s{sT2}"])

def stamps_out():
    if opt.probe:
        L(["@raw_begin", "L_spin:", f"s_memrealtime s[{sSTAMP}:{sSTAMP+1}]", "s_waitcnt lgkmcnt(0)", f"s_sub_u32 s{sT2}, s{sSTAMP}, s3",
           f"s_cmp_lt_u32 s{sT2}, 5000", "s_cbranch_scc1 L_spin", "@raw_end"])
    if not opt.stamps: return
    L([f"s_lshl_b32 s{sT2}, s2, 2", f"s_add_u32 s{sT2}, s{sT2}, s{sW}", f"s_lshl_b32 s{sT2}, s{sT2}, 8", f"s_add_u32 s{sT2}, s{sT2}, {WS_STAMP}",
       f"v_lshlrev_b32 v{vT[0]}, 2, v{vLANE}", f"buffer_store_dword v0, v{vT[0]}, s[{sWS}:{sWS+3}], s{sT2} offen"])

def build():
    P.clear(); lab[0] = 0; stamp_n[0] = 0; stamp_names.clear(); ST.n = 0
    prologue()
    L(scan_addr()); L(mlp_read_addr())
    L(stamp("issued")); L(stamp("cyc0", True))
    E(f"v_mov_b32 v{vONES}, 0x3f803f80")
    if opt.mstat: L([f"v_accvgpr_write_b32 a{aONE+k}, v{vONES}" for k in range(4)])
    constants()
    L(const_park())
    nonce_seed()
    L(relayout_issue())
    L(stamp("consts"))
    tail = x_arrive(0, None, 40)
    L(stamp("x0 in"))
    E("s_barrier")
    L(skew("0"))
    L(tail)
    L(x_stats(0))
    L([f"v_add_u32 v{vRX[0]}, 81920, v{vRX[0]}", f"v_add_u32 v{vRX[1]}, 81920, v{vRX[1]}"])
    nrm = []
    for s in range(20): nrm += norm_step(0, s, True, vT[20:24])
    tail = x_arrive(1, nrm)
    L(stamp("x1 in"))
    L(weave(tail, ST.next(4), 4))
    L(weave(x_stats(1), ST.next(4), 8))
    L(mlp_dma_addr("A"))
    pn = []
    for s in range(opt.pre_norm): pn += norm_step(1, s, True, vT[20:24])
    L(weave(pn, ST.next(20), 8))
    assert ST.n == 60
    if opt.t_w13: L(w13_touch())
    phase1_blocks()
    phase2()
    diag_out()
    stamps_out()
    E("s_endpgm")
    return finalize(P)

HEADER = """; Kernarg layout for this problem (128 bytes, ptrs only, base s[0:1]):
; @launch grid=(256,1,1) block=(256,1,1) lds=163840
.amdgcn_target "amdgcn-amd-amdhsa--gfx950"
.text
.globl {k}
.p2align 8
.type {k},@function
{k}:
"""
FOOTER = """
L_exit:
    s_endpgm
L_codeend:
    .fill 2112, 4, 0xbf800000
.section .rodata,"a"
.p2align 6
.amdhsa_kernel {k}
  .amdhsa_next_free_vgpr 512
  .amdhsa_next_free_sgpr 102
  .amdhsa_accum_offset 256
  .amdhsa_group_segment_fixed_size 0
  .amdhsa_kernarg_size 128
  .amdhsa_user_sgpr_count 2
  .amdhsa_user_sgpr_kernarg_segment_ptr 1
  .amdhsa_system_sgpr_workgroup_id_x 1
  .amdhsa_float_denorm_mode_32 3
.end_amdhsa_kernel
"""
def text():
    prog = build()
    body = "\n".join(("" if i.cls == "label" else "    ") + i.text for i in prog)
    return HEADER.format(k=KNAME) + body + FOOTER.format(k=KNAME), prog

if __name__ == "__main__":
    out = sys.argv[1]
    for a in sys.argv[2:]:
        k, v = a.split("=")
        cur = getattr(opt, k)
        setattr(opt, k, v.replace("_", " ") if isinstance(cur, str) else (v in ("1", "True") if isinstance(cur, bool) else type(cur)(float(v))))
    t, prog = text()
    open(out, "w").write(t)
    print(stats(prog), len(prog))
    if opt.stamps:
        import json
        json.dump(stamp_names, open(out + ".stamps.json", "w"))
```

```python
import re

REG_RE = re.compile(r"^(-|abs\()?\s*([vas])(\d+)\)?$")
RNG_RE = re.compile(r"^(-)?([vas])\[(\d+):(\d+)\]$")

def regs_of(tok):
    tok = tok.strip()
    m = RNG_RE.match(tok)
    if m:
        return [(m.group(2), i) for i in range(int(m.group(3)), int(m.group(4)) + 1)]
    m = REG_RE.match(tok)
    if m:
        return [(m.group(2), int(m.group(3)))]
    if tok == "vcc":
        return [("vcc", 0)]
    if tok == "m0":
        return [("m0", 0)]
    if tok == "exec":
        return [("exec", 0)]
    return []

TRANS = ("v_exp_f32", "v_log_f32", "v_rcp_f32", "v_rsq_f32", "v_sqrt_f32", "v_sin_f32", "v_cos_f32")
RMW = ("v_fmac_f32", "v_fmac_f32_dpp", "v_dot2c_f32_bf16", "v_pk_fmac")

class I:
    __slots__ = ("text", "op", "cls", "rd", "wr", "tok", "arg", "dpp", "a", "b", "c", "lds", "wide", "passes", "data", "done", "lines", "lat")
    def __init__(self, text, tok=None):
        self.text = text
        self.tok = tok
        self.arg = None
        self.rd = set(); self.wr = set()
        self.dpp = False; self.a = self.b = self.c = None
        self.lds = False; self.wide = False; self.passes = 0; self.data = set()
        self.done = 0; self.lines = None; self.lat = None
        t = text.split(";")[0].strip()
        if t.endswith(":"):
            self.op = t; self.cls = "label"; return
        if t.startswith("."):
            self.op = t; self.cls = "dir"; return
        sp = t.split(None, 1)
        self.op = op = sp[0]
        rest = sp[1] if len(sp) > 1 else ""
        ops = [o.strip() for o in rest.split(",")] if rest else []
        mods = ""
        if ops:
            last = ops[-1].split(None, 1)
            if len(last) > 1 and not last[0].startswith("hwreg"):
                ops[-1] = last[0]; mods = last[1]
        R = [regs_of(o) for o in ops]
        if op.startswith("v_mfma"):
            self.cls = "mfma"
            self.wr = set(R[0]); self.a = set(R[1]); self.b = set(R[2]); self.c = set(R[3])
            self.rd = self.a | self.b | self.c
            self.passes = 4 if "16x16x32" in op else 8
        elif op.startswith("v_"):
            self.cls = "trans" if op in TRANS else "valu"
            self.dpp = ("_dpp" in op) or ("row_" in mods)
            if op.startswith("v_permlane"):
                self.wr = set(R[0]) | set(R[1]); self.rd = set(self.wr); self.cls = "perm"
            elif op.startswith("v_cmp"):
                self.wr = set(R[0]); self.rd = set().union(*R[1:])
            elif op.startswith("v_readfirstlane") or op.startswith("v_readlane"):
                self.wr = set(R[0]); self.rd = set().union(*R[1:]); self.cls = "rdlane"
            elif op.startswith("v_add_co") or op.startswith("v_addc_co"):
                self.wr = set(R[0]) | set(R[1]); self.rd = set().union(*R[2:])
            else:
                self.wr = set(R[0]); self.rd = set().union(*R[1:]) if len(R) > 1 else set()
                if op in RMW or op.startswith("v_fmac") or self.dpp:
                    self.rd |= self.wr
                if op.startswith("v_dot2"):
                    self.cls = "dot"
        elif op.startswith("ds_"):
            self.cls = "ds"
            if op.startswith("ds_read") or op.startswith("ds_bpermute"):
                self.wr = set(R[0]); self.rd = set().union(*R[1:])
            else:
                self.rd = set().union(*R); self.data = set().union(*R[1:])
        elif op.startswith("buffer_") or op.startswith("global_"):
            self.cls = "vmem"
            self.lds = (" lds" in " " + mods) or ("_lds_" in op)
            if "load" in op and not self.lds:
                self.wr = set(R[0]); self.rd = set().union(*R[1:])
            elif "load" in op:
                self.rd = set().union(*R); self.rd.add(("m0", 0))
            elif "store" in op:
                self.rd = set().union(*R)
                self.data = set(R[0]) if op.startswith("buffer_") else set(R[1])
                self.wide = op.endswith("x3") or op.endswith("x4")
            else:
                self.rd = set().union(*R) if R else set()
        elif op.startswith("s_load") or op in ("s_memtime", "s_memrealtime"):
            self.cls = "smem"
            self.wr = set(R[0]); self.rd = set().union(*R[1:]) if len(R) > 1 else set()
        elif op == "s_barrier":
            self.cls = "barrier"
        elif op == "s_waitcnt":
            self.cls = "wait"
        elif op == "s_nop":
            self.cls = "nop"; self.arg = int(ops[0])
        elif op.startswith("s_cbranch") or op in ("s_branch", "s_endpgm"):
            self.cls = "branch"
            if "vcc" in op: self.rd = {("vcc", 0)}
        elif op.startswith("s_cmp") or op.startswith("s_bitcmp"):
            self.cls = "salu"; self.rd = set().union(*R) if R else set()
        elif op in ("s_sleep", "s_setprio"):
            self.cls = "salu"
        elif op.startswith("s_"):
            self.cls = "salu"
            self.wr = set(R[0]); self.rd = set().union(*R[1:]) if len(R) > 1 else set()
        elif op.startswith("@"):
            self.cls = "pseudo"; self.arg = ops[0] if ops else None
        else:
            raise ValueError("cannot parse: " + text)

def is_valu(i):
    return i.cls in ("valu", "trans", "perm", "rdlane", "dot")

def resolve_waits(prog):
    out = []
    vm = []
    lg = []
    raw = False
    saved = []
    def emit_wait(nv, nl):
        nonlocal vm, lg
        parts = []
        if nv is not None:
            nv = min(nv, 63)
            if len(vm) > nv:
                parts.append(f"vmcnt({nv})")
                vm = vm[len(vm) - nv:] if nv else []
        if nl is not None:
            if any(o.cls == "smem" for o in lg):
                nl = 0
            nl = min(nl, 15)
            if len(lg) > nl:
                parts.append(f"lgkmcnt({nl})")
                lg = lg[len(lg) - nl:] if nl else []
        if parts:
            out.append(I("s_waitcnt " + " ".join(parts)))
    seen = set(); waited = set()
    for ins in prog:
        if ins.cls == "pseudo":
            if ins.op in ("@waitvm", "@waitboth", "@waitds"): waited.add(ins.arg)
            if ins.op == "@raw_begin": raw = True
            elif ins.op == "@raw_end": raw = False
            elif ins.op == "@waitvm":
                assert ins.arg in seen, "token never issued: " + ins.arg
                idx = [k for k, o in enumerate(vm) if o.tok == ins.arg]
                if idx: emit_wait(len(vm) - 1 - idx[-1], None)
            elif ins.op == "@waitvm0": emit_wait(0, None)
            elif ins.op == "@waitds":
                idx = [k for k, o in enumerate(lg) if o.tok == ins.arg]
                if idx: emit_wait(None, len(lg) - 1 - idx[-1])
            elif ins.op == "@waitds0": emit_wait(None, 0)
            elif ins.op == "@waitboth":
                assert ins.arg in seen, "token never issued: " + ins.arg
                idx = [k for k, o in enumerate(vm) if o.tok == ins.arg]
                emit_wait(len(vm) - 1 - idx[-1] if idx else None, 0)
            elif ins.op == "@arm":
                emit_wait(None, 0)
                saved.append((list(vm), len(vm)))
            elif ins.op == "@else":
                assert not lg, "arm must end with @waitds0"
                assert all(o in saved[-1][0] for o in vm), "no vmem inside arms"
                vm = list(saved[-1][0])
            elif ins.op == "@endarm":
                assert not lg, "arm must end with @waitds0"
                assert all(o in saved[-1][0] for o in vm), "no vmem inside arms"
                vm = list(saved.pop()[0])
            else:
                raise ValueError(ins.text)
            continue
        if raw:
            out.append(ins); continue
        touch = ins.rd | ins.wr
        nv = nl = None
        if touch:
            for k in range(len(vm) - 1, -1, -1):
                if vm[k].wr & touch:
                    nv = len(vm) - 1 - k; break
            for k in range(len(lg) - 1, -1, -1):
                if lg[k].wr & touch:
                    nl = len(lg) - 1 - k; break
        if nv is not None or nl is not None:
            emit_wait(nv, nl)
        if ins.cls == "wait":
            m = re.search(r"vmcnt\((\d+)\)", ins.text)
            if m:
                n = int(m.group(1)); vm = vm[len(vm) - n:] if n and len(vm) > n else ([] if n == 0 else vm)
            m = re.search(r"lgkmcnt\((\d+)\)", ins.text)
            if m:
                n = int(m.group(1)); lg = lg[len(lg) - n:] if n and len(lg) > n else ([] if n == 0 else lg)
        out.append(ins)
        if ins.tok:
            assert ins.tok not in waited, "token issued after its wait: " + ins.tok
            seen.add(ins.tok)
        if ins.cls == "vmem": vm.append(ins)
        elif ins.cls in ("ds", "smem"): lg.append(ins)
    return out

def need_states(p, c):
    n = 0
    pv = is_valu(p)
    if pv:
        vw = {r for r in p.wr if r[0] in "va"}
        sw = {r for r in p.wr if r[0] in ("s", "vcc")}
        if c.cls == "mfma" and vw & c.rd: n = max(n, 2)
        if is_valu(c):
            if p.cls == "trans" and vw & c.rd: n = max(n, 1)
            if (c.dpp or c.cls == "perm") and vw & c.rd: n = max(n, 2)
            if c.cls == "rdlane" and vw & c.rd: n = max(n, 1)
            if sw & c.rd: n = max(n, 2)
            if p.cls == "dot" and vw & (c.rd | c.wr):
                same_c = (c.op == p.op) and (vw & c.wr) and not _dot_ab(c) & vw
                if not same_c: n = max(n, 3)
        if p.cls == "dot" and c.cls in ("vmem", "ds", "mfma") and vw & c.rd: n = max(n, 3)
        if c.cls == "vmem" and sw & c.rd: n = max(n, 5)
        if c.cls in ("salu",) and sw & c.rd: n = max(n, 1)
    if p.cls == "mfma":
        big = p.passes == 8
        if c.cls == "mfma":
            if p.wr & (c.a | c.b): n = max(n, 12 if big else 8)
            if p.wr & c.c and (p.wr != c.c or p.passes != c.passes): n = max(n, 10 if big else 6)
            if p.wr & c.wr and not (p.wr & c.c): n = max(n, 12 if big else 8)
        elif is_valu(c):
            if p.wr & (c.rd | c.wr): n = max(n, 12 if big else 8)
            if p.c & c.wr: n = max(n, 7 if big else 3)
        elif c.cls in ("vmem", "ds"):
            if p.wr & (c.rd | c.wr): n = max(n, 12 if big else 8)
    if p.cls == "salu" and ("m0", 0) in p.wr and c.cls == "vmem" and c.lds: n = max(n, 1)
    if p.cls == "vmem" and p.wide and p.data & c.wr:
        n = max(n, 2 if is_valu(c) else 1)
    return n

def _dot_ab(c):
    t = c.text.split(";")[0].split(None, 1)[1].split(",")
    return set(regs_of(t[1])) | set(regs_of(t[2].split()[0]))

def insert_nops(prog):
    out = []
    for ins in prog:
        if ins.cls not in ("label", "dir"):
            need = 0; dist = 0
            for p in reversed(out):
                if p.cls in ("label", "dir"): continue
                if dist >= 12: break
                k = need_states(p, ins)
                if k > dist: need = max(need, k - dist)
                dist += (p.arg + 1) if p.cls == "nop" else 1
            while need > 0:
                k = min(need, 16)
                out.append(I(f"s_nop {k-1}")); need -= k
        out.append(ins)
    return out

def finalize(prog):
    p = resolve_waits(prog)
    p = insert_nops(p)
    return p

def stats(p):
    from collections import Counter
    c = Counter(i.cls for i in p)
    nops = sum(i.arg + 1 for i in p if i.cls == "nop")
    return dict(c), nops


DSCOST = {"ds_read_b64_tr_b16": 8, "ds_read_b128": 16, "ds_read_b64": 8, "ds_read_b32": 8, "ds_write_b128": 52, "ds_write_b64": 24,
          "ds_write_b32": 16, "ds_bpermute_b32": 16, "ds_read_u16": 8}

class Emitter:
    def __init__(self, lines_of, lat_of, lpc=9.2, win=64, dslat=70, bar=30):
        self.out = []; self.vm = []; self.lg = []; self.raw = False; self.saved = []
        self.seen = set(); self.waited = set()
        self.t = 0; self.mf = 0; self.vm_last = 0; self.ds_last = 0; self.all_vm = []
        self.lines_of = lines_of; self.lat_of = lat_of; self.lpc = lpc; self.win = win; self.dslat = dslat; self.bar = bar
        self.skip = None; self.marks = []; self.stalls = []
    def _time(self, i):
        if self.skip:
            if i.cls == "label" and i.op == self.skip + ":": self.skip = None
            return
        if i.cls in ("label", "dir"): return
        t0 = self.t
        if i.cls == "branch":
            m = re.match(r"s_cbranch_(?:vccz|scc0) (L_ok\d+)", i.text) or re.match(r"s_branch (L_\w+)", i.text) or re.match(r"s_cbranch_scc0 (L_nopf)", i.text)
            if m: self.skip = m.group(1); self.t += 30
            else: self.t += 8
            return
        if i.op == "v_writelane_b32": self.marks.append(self.t)
        if i.cls == "mfma":
            self.t = max(self.t, self.mf); self.mf = self.t + 4*i.passes; self.t += 8
        elif i.cls == "smem":
            i.done = self.t + (1500 if "load" in i.op else 100); self.t += 4
        elif i.cls == "wait":
            self.t = max(self.t, i.done) + 4
        elif i.cls == "vmem":
            self.t = self.issue_time(i)
            i.done = max(self.t + i.lat, self.vm_last + i.lines*self.lpc)
            self.vm_last = i.done; self.all_vm.append(i); self.t += 8 if "store" in i.op else 4
        elif i.cls == "ds":
            i.done = max(self.t + self.dslat, self.ds_last + DSCOST.get(i.op, 16)); self.ds_last = i.done; self.t += 4
        elif i.cls == "barrier": self.t += self.bar
        elif i.cls == "nop": self.t += 4*(i.arg + 1)
        elif i.cls == "trans": self.t += 8
        else: self.t += 4
        if i.cls != "mfma" and self.t - t0 > 28: self.stalls.append((self.t - t0, len(self.marks), i.text))
    def prep(self, i):
        if i.cls == "vmem":
            if i.lines is None: i.lines = self.lines_of(i)
            if i.lat is None: i.lat = self.lat_of(i)
    def issue_time(self, i):
        t = self.t
        self.all_vm = [o for o in self.all_vm if o.done > t - 1]
        outs = list(self.all_vm)
        while outs and sum(o.lines for o in outs) + i.lines > self.win:
            t = max(t, outs[0].done); outs.pop(0)
        return t
    def _put(self, i):
        need = 0; dist = 0
        if i.cls not in ("label", "dir"):
            for p in reversed(self.out[-40:]):
                if p.cls in ("label", "dir"): continue
                if dist >= 12: break
                k = need_states(p, i)
                if k > dist: need = max(need, k - dist)
                dist += (p.arg + 1) if p.cls == "nop" else 1
            while need > 0:
                k = min(need, 16)
                n = I(f"s_nop {k-1}"); self.out.append(n); self._time(n); need -= k
        self.out.append(i); self._time(i)
    def _wait(self, nv, nl):
        parts = []; done = 0
        if nv is not None:
            nv = min(nv, 63)
            if len(self.vm) > nv:
                parts.append(f"vmcnt({nv})"); done = max(done, self.vm[len(self.vm)-nv-1].done)
                self.vm = self.vm[len(self.vm) - nv:] if nv else []
        if nl is not None:
            if any(o.cls == "smem" for o in self.lg): nl = 0
            nl = min(nl, 15)
            if len(self.lg) > nl:
                parts.append(f"lgkmcnt({nl})"); done = max([done] + [o.done for o in self.lg[:len(self.lg)-nl]])
                self.lg = self.lg[len(self.lg) - nl:] if nl else []
        if parts:
            w = I("s_waitcnt " + " ".join(parts)); w.done = done; self._put(w)
    def _needs(self, ins):
        touch = ins.rd | ins.wr
        nv = nl = None
        if touch:
            for k in range(len(self.vm) - 1, -1, -1):
                if self.vm[k].wr & touch: nv = len(self.vm) - 1 - k; break
            for k in range(len(self.lg) - 1, -1, -1):
                if self.lg[k].wr & touch: nl = len(self.lg) - 1 - k; break
        return nv, nl
    def stall(self, ins):
        if ins.cls == "pseudo":
            if ins.op == "@waitvm":
                idx = [o for o in self.vm if o.tok == ins.arg]
                return max(0, idx[-1].done - self.t) if idx else 0
            if ins.op in ("@waitds0", "@arm"):
                return max([0] + [o.done - self.t for o in self.lg])
            return 0
        nv, nl = self._needs(ins)
        d = 0
        if nv is not None: d = max(d, self.vm[len(self.vm)-min(nv, 63)-1].done - self.t)
        if nl is not None: d = max(d, max(o.done for o in self.lg[:len(self.lg)-min(nl, 15)]) - self.t)
        if ins.cls == "vmem":
            self.prep(ins); d = max(d, self.issue_time(ins) - self.t)
        return max(0, d)
    def feed(self, ins):
        if ins.cls == "pseudo":
            op = ins.op
            if op in ("@waitvm", "@waitboth", "@waitds"): self.waited.add(ins.arg)
            if op == "@raw_begin": self.raw = True
            elif op == "@raw_end": self.raw = False
            elif op in ("@waitvm", "@waitboth"):
                assert ins.arg in self.seen, "token never issued: " + ins.arg
                idx = [k for k, o in enumerate(self.vm) if o.tok == ins.arg]
                self._wait(len(self.vm) - 1 - idx[-1] if idx else None, 0 if op == "@waitboth" else None)
            elif op == "@waitvm0": self._wait(0, None)
            elif op == "@waitds":
                idx = [k for k, o in enumerate(self.lg) if o.tok == ins.arg]
                if idx: self._wait(None, len(self.lg) - 1 - idx[-1])
            elif op == "@waitds0": self._wait(None, 0)
            elif op == "@arm":
                self._wait(None, 0); self.saved.append(list(self.vm))
            elif op == "@else":
                assert not self.lg and all(o in self.saved[-1] for o in self.vm)
                self.vm = list(self.saved[-1])
            elif op == "@endarm":
                assert not self.lg and all(o in self.saved[-1] for o in self.vm)
                self.vm = list(self.saved.pop())
            elif op == "@gap": pass
            else: raise ValueError(ins.text)
            return
        if self.raw:
            self.prep(ins)
            self.out.append(ins); self._time(ins); return
        nv, nl = self._needs(ins)
        if nv is not None or nl is not None: self._wait(nv, nl)
        self.prep(ins)
        self._put(ins)
        if ins.tok:
            assert ins.tok not in self.waited, "token issued after its wait: " + ins.tok
            self.seen.add(ins.tok)
        if ins.cls == "vmem": self.vm.append(ins)
        elif ins.cls in ("ds", "smem"): self.lg.append(ins)
```

```python
import sys, os
sys.path.insert(0, os.path.dirname(os.path.abspath(__file__)))
from asmlib import I, stats, insert_nops, Emitter

KNAME = "recurrent_scan__ssm_conv_s5__glu_gated_swiglu__prompt_kernel"

class Opt:
    fine = False
    chain = 0
    sim = False
    fakehit = ''
    delay = 0
    diag = False
    cycles = False
    skip = ''
    probe = ''
    stamps = False
    codepf = True
    krot = True
    prot = False
    win = 8
    pre_norm = 1
    skew = True
    mstat = True
    t_x1 = True
    t_w13 = False
    rl_pos = 0
    capU = 2
    capM = 5
    span = 5
    X_stage = 2
    L_stage = 4
    C_stage = 6
    Y_stage = 7
    H_stage = 12
    F_stage = 4
    W_stage = 8
    nearly = 4
    rl_nt = True
    out_flags = ""
    x_flags = ""
    w_flags = ""
    p1map = 0
    p2map = 0
    p2pos = 1
    look = 2
    thr = 16
    latA = 800
    latW = 700
opt = Opt()

WS_A2 = 0
WS_W2P = 0xB00000
WS_S = 0xF00000
WS_STAT = 0xF40000
WS_FLW = 0xF50000
WS_FLH = 0xF51000
WS_FLHH = 0xF52000
WS_SEED = 0xF53000
WS_STAMP = 0xF60000
WS_SIZE = 0x1000000
OOB = 0x40000000

L_RL = 102400
L_PRIV = 122880
PV_COL, PV_CH, PV_E = 0, 1280, 4352
L_TT = 155648
L_LB = 159744
L_YP = 0
L_OP = 61440

sX, sWU, sWM, sWS, sOUT, sRL, sDBG = 36, 40, 44, 48, 52, 56, 60
(sW, sC, sG, sRT, sN, sNONCE, sT0, sT1, sT2, sT3, sXOFF, sUOFF, sMOFF, sMOFFB, sRLOFF, sRLST,
 sA2H, sKSA, sKSB, sSST, sLB0, sLB1, sLB2, sLB3, sEX0, sEX1, sEX2, sEX3, sM0, sM0A, sCNT, sP2A, sP2W, sT4, sT5, sSTATO) = range(64, 100)
sSTAMP = 100
pX, pLRE, pLIM, pBRE, pBIM, pCRE, pCIM, pLDT = 4, 6, 8, 10, 12, 14, 16, 18
pDSK, pBX, pW1, pW3, pW2, pOUT, pDBG, pWS = 20, 22, 24, 26, 28, 30, 32, 34
sKU = [22, 23, 0, 1, 32]
sD0, sD1 = 4, 5
sRY, sRO = 6, 7
sAP, sAS, sAE, sWP, sWB, sWE = 8, 9, 10, 11, 12, 13
sM0U, sSEEDO = 18, 19
sHO = [24, 25, 26, 27, 30]

vLANE, vL16 = 1, 2
vRX = [3, 4]; vRU = [5, 6]
vRA = [7, 8]; vRB = 9; vHH = 10; vDU = 11; vW4 = 12
vD = [13, 14, 15, 16]
vXD = vD
vDB = [3, 4, 5, 6]; vRB2 = 11
BSLOT = {10: 4, 11: 5, 12: 2, 13: 3, 14: 0}
BISSUE = {1: 10, 3: 11, 6: 12, 7: 13, 8: 14}
vUD = [11, 27, 28, 29]
vEW, vER, vCOLR, vCH, vTT, vLB, vTW, vTR, vHST, vSO = range(17, 27)
vWP0, vWP1, vFLAG, vNON = 27, 28, 29, 30
vT = list(range(32, 56))
def U(cf, f): return 56 + (cf * 2 + f) * 4
def X(f, s): return 96 + (f * 20 + s) * 4
def ACCA(mu, h2): return (mu * 2 + h2) * 16
def FB(par, fr): return 64 + par * 32 + fr * 4
def ACCB(mu, h2=0): return 128 + mu * 16
aRL = 160
aS = 180

def vr(n, c=4): return f"v[{n}:{n+c-1}]"
def ar(n, c=4): return f"a[{n}:{n+c-1}]"
def sr(n, c=4): return f"s[{n}:{n+c-1}]"

def lines_of(i):
    t = i.text
    if "ushort" in t: return 1
    if i.tok and i.tok[0] == "M" and int(i.tok[1:]) >= 10: return 16
    if i.tok == "RL": return 16
    if i.tok == "XR": return 11
    if " off," in t and "global" not in t: return 1
    if "dwordx2" in t: return 2
    if "load_dword " in t and "offen" in t: return 1 if "sc1" in t else 32
    if "global_load_dword" in t: return 0
    if "store_dword " in t: return 4 if "offen" in t else 1
    return 8
def lat_of(i):
    t = i.text; tok = i.tok or ""
    cold = 1500
    if "store" in t: return 820 if "sc1" in t else 330
    if tok.startswith("x"): return cold if tok in ("x0_0", "x0_1", "x1_0", "x1_1") else 800
    if tok.startswith("U"): return cold if tok == "U0" else 800
    if tok == "RL": return cold
    if tok.startswith("M"): return cold if tok in ("M0", "M1", "M10") else 520
    if tok == "W": return opt.latW
    if tok == "A": return opt.latA
    if "sc1" in t: return 1000
    return 700
EM = [None]
def E(t, tok=None):
    i = I(t, tok); EM[0].feed(i); return i
def L(lst):
    for t in lst: EM[0].feed(t if isinstance(t, I) else I(t))
def II(lst): return [t if isinstance(t, I) else I(t) for t in lst]

def srd(d, p, nbytes):
    return [f"s_mov_b32 s{d}, s{p}", f"s_and_b32 s{d+1}, s{p+1}, 0xffff", f"s_mov_b32 s{d+2}, {nbytes}", f"s_mov_b32 s{d+3}, 0x20000"]

stamp_n = [0]
stamp_names = []
def stamp(name, cyc=False):
    if opt.probe:
        if name != opt.probe: return []
        return [f"s_memrealtime s[{sSTAMP}:{sSTAMP+1}]", "@waitds0", f"s_mov_b32 s3, s{sSTAMP}"]
    if not opt.stamps: return []
    k = stamp_n[0]; stamp_n[0] += 1
    stamp_names.append(name)
    return [f"s_memtime s[{sSTAMP}:{sSTAMP+1}]" if (cyc or opt.cycles) else f"s_memrealtime s[{sSTAMP}:{sSTAMP+1}]", "@waitds0",
            f"v_writelane_b32 v0, s{sSTAMP}, {k}"]

def cmul(dr, di, ar_, ai, br, bi, t):
    return [f"v_mul_f32 v{t}, v{ai}, v{bi}", f"v_mul_f32 v{di}, v{ai}, v{br}",
            f"v_fma_f32 v{dr}, v{ar_}, v{br}, -v{t}", f"v_fmac_f32 v{di}, v{ar_}, v{bi}"]
def csq(dr, di, r, i, t):
    return [f"v_mul_f32 v{t}, v{i}, v{i}", f"v_mul_f32 v{di}, v{r}, v{i}",
            f"v_fma_f32 v{dr}, v{r}, v{r}, -v{t}", f"v_add_f32 v{di}, v{di}, v{di}"]
def chorner2(dr, di, gr, gi, mr, mi, er, ei):
    return [f"v_fma_f32 v{dr}, v{mr}, v{gr}, v{er}", f"v_fma_f32 v{di}, v{mr}, v{gi}, v{ei}",
            f"v_fma_f32 v{dr}, -v{mi}, v{gi}, v{dr}", f"v_fma_f32 v{di}, v{mi}, v{gr}, v{di}"]

LOG2E = "0x3fb8aa3b"
NLOG2E = "0xbfb8aa3b"
INV2PI = "0.15915494"

def x_piece(n):
    f, S, ih = n // 20, (n % 20) // 2, n & 1
    p = n & 3
    r = []
    if p == 0:
        r = [f"s_add_u32 m0, s{sM0}, {f*81920 + (2*S)*1024}", f"s_add_u32 s{sD1}, s{sKU[S >> 1]}, s{sXOFF}"]
        if f: r.append(f"s_add_u32 s{sD1}, s{sD1}, {4*1280}")
    r.append(I(f"buffer_load_dwordx4 v{vXD[p]}, s[{sX}:{sX+3}], s{sD1} offen offset:{p*1024} {opt.x_flags} lds", tok=f"x{f}_{S}"))
    return r
def u_piece(i, cf):
    r = []
    if cf == 0: r = [f"s_add_u32 m0, s{sM0U}, {i*20480}", f"s_add_u32 s{sD1}, s{sKU[i]}, s{sUOFF}"]
    if cf == 4: r = [f"s_add_u32 m0, s{sM0U}, {i*20480 + 4096}", f"s_add_u32 s{sD1}, s{sD1}, {4*10240}"]
    r.append(I(f"buffer_load_dwordx4 v{vUD[cf & 3]}, s[{sWU}:{sWU+3}], s{sD1} offen offset:{(cf & 3)*1024} {opt.w_flags} lds", tok=f"U{i}"))
    return r
class Stream:
    def __init__(self): self.n = 0
    def next(self, k, limit=60):
        r = []
        for _ in range(k):
            if self.n >= limit: break
            r += x_piece(self.n) if self.n < 40 else u_piece((self.n - 40) // 5, (self.n - 40) % 5)
            self.n += 1
        return r
ST = Stream()

def prologue():
    E(f"s_cmp_ge_u32 s2, 256")
    E("s_cbranch_scc1 L_exit")
    E("s_load_dwordx16 s[4:19], s[0:1], 0")
    E("s_load_dwordx16 s[20:35], s[0:1], 64")
    if opt.stamps or opt.probe == "entry":
        E(f"s_{'memtime' if opt.cycles else 'memrealtime'} s[{sSTAMP}:{sSTAMP+1}]")
    if opt.codepf:
        L(["@raw_begin", "s_cmp_lt_u32 s2, 32", "s_cbranch_scc0 L_nopf", f"s_getpc_b64 s[{sT2}:{sT3}]", "L_pc:",
           f"s_lshl_b32 s{sT4}, s2, 12", f"s_and_b32 s{sT4}, s{sT4}, 0x8000",
           f"v_lshlrev_b32 v{vT[0]}, 7, v0", f"v_add_u32 v{vT[0]}, s{sT4}, v{vT[0]}", f"v_min_u32 v{vT[0]}, L_codeend-L_pc-4, v{vT[0]}",
           f"v_mov_b32 v{vT[1]}, s{sT3}", f"v_add_co_u32 v{vT[0]}, vcc, s{sT2}, v{vT[0]}", "s_nop 1", f"v_addc_co_u32 v{vT[1]}, vcc, 0, v{vT[1]}, vcc",
           f"global_load_dword a230, v[{vT[0]}:{vT[1]}], off", "L_nopf:", "@raw_end"])
    E(f"v_lshrrev_b32 v{vT[0]}, 6, v0")
    E(f"v_and_b32 v{vLANE}, 63, v0")
    E(f"v_readfirstlane_b32 s{sW}, v{vT[0]}")
    E(f"v_lshlrev_b32 v{vL16}, 4, v{vLANE}")
    L([f"s_and_b32 s{sT0}, s2, 7", f"s_lshr_b32 s{sT1}, s2, 3"])
    if opt.p1map == 0:
        L([f"s_and_b32 s{sC}, s{sT0}, 1", f"s_lshl_b32 s{sC}, s{sC}, 3", f"s_and_b32 s{sT2}, s{sT1}, 7", f"s_add_u32 s{sC}, s{sC}, s{sT2}",
           f"s_lshr_b32 s{sG}, s{sT0}, 1", f"s_lshl_b32 s{sG}, s{sG}, 2", f"s_lshr_b32 s{sT2}, s{sT1}, 3", f"s_add_u32 s{sG}, s{sG}, s{sT2}"])
    else:
        L([f"s_and_b32 s{sC}, s{sT0}, 3", f"s_lshl_b32 s{sC}, s{sC}, 2", f"s_and_b32 s{sT2}, s{sT1}, 3", f"s_add_u32 s{sC}, s{sC}, s{sT2}",
           f"s_lshr_b32 s{sG}, s{sT0}, 2", f"s_lshl_b32 s{sG}, s{sG}, 3", f"s_lshr_b32 s{sT2}, s{sT1}, 2", f"s_add_u32 s{sG}, s{sG}, s{sT2}"])
    t0, t1, t2, t3 = vT[0:4]
    L([f"v_lshrrev_b32 v{t0}, 3, v{vLANE}", f"v_and_b32 v{t1}, 7, v{vLANE}", f"v_and_b32 v{t2}, 6, v{t0}",
       f"v_xor_b32 v{t1}, v{t1}, v{t2}", f"v_lshlrev_b32 v{t1}, 4, v{t1}",
       f"v_and_b32 v{t2}, 4, v{t0}", f"v_add_u32 v{t2}, v{t2}, v{t0}",
       f"v_mul_u32_u24 v{vD[0]}, 1280, v{t2}", f"v_add_u32 v{vD[0]}, v{vD[0]}, v{t1}",
       f"v_mul_u32_u24 v{vDU}, 1280, v{t0}", f"v_add_u32 v{vDU}, v{vDU}, v{t1}",
       f"v_add_u32 v{vD[0]}, 4096, v{vD[0]}", f"v_add_u32 v{vD[1]}, {16*1280 - 1024}, v{vD[0]}",
       f"v_add_u32 v{vD[2]}, {128 - 2048}, v{vD[0]}", f"v_add_u32 v{vD[3]}, {16*1280 + 128 - 3072}, v{vD[0]}"])
    L([f"s_mul_i32 s{sT2}, s{sG}, 80", f"v_min_u32 v{t3}, 39, v{vLANE}", f"v_lshlrev_b32 v{t3}, 1, v{t3}", f"v_add_u32 v{t3}, s{sT2}, v{t3}"])
    L([f"s_lshl_b32 s{sXOFF}, s{sC}, 2", f"s_add_u32 s{sXOFF}, s{sXOFF}, s{sW}", f"s_mul_i32 s{sXOFF}, s{sXOFF}, {32*1280}",
       f"s_mul_i32 s{sM0}, s{sW}, 20480"])
    if opt.krot:
        L([f"s_add_u32 s{sT4}, s{sC}, s{sG}", f"s_mul_i32 s{sT5}, s{sT4}, 52", f"s_lshr_b32 s{sT5}, s{sT5}, 8", f"s_mul_i32 s{sT5}, s{sT5}, 5",
           f"s_sub_u32 s{sT4}, s{sT4}, s{sT5}", f"s_lshl_b32 s{sT4}, s{sT4}, 8"])
    else:
        E(f"s_mov_b32 s{sT4}, 0")
    E("@waitds0")
    if opt.probe == "entry": E(f"s_mov_b32 s3, s{sSTAMP}")
    if opt.stamps:
        E(f"v_mov_b32 v0, 0")
        E(f"v_writelane_b32 v0, s{sSTAMP}, 0"); stamp_n[0] = 1; stamp_names.append("entry")
    if opt.chain:
        L([f"s_mul_i32 s{sT2}, s2, {60*128}", f"s_add_u32 s{sT2}, s{pW2}, s{sT2}", f"s_addc_u32 s{sT3}, s{pW2+1}, 0", f"v_mov_b32 v{vT[8]}, 0"])
        for k in range(opt.chain):
            L([f"global_load_dword v{vT[9]}, v{vT[8]}, s[{sT2}:{sT3}]", "@waitvm0", f"v_add_u32 v{vT[8]}, 128, v{vT[8]}"])
    E(f"global_load_ushort v{vT[4]}, v{t3}, s[{pLRE}:{pLRE+1}]")
    E(f"global_load_ushort v{vT[5]}, v{t3}, s[{pLIM}:{pLIM+1}]")
    E(f"global_load_ushort v{vT[6]}, v{t3}, s[{pLDT}:{pLDT+1}]")
    L([f"s_sub_u32 s{sX}, s{pX}, 4096", f"s_subb_u32 s{sX+1}, s{pX+1}, 0", f"s_and_b32 s{sX+1}, s{sX+1}, 0xffff",
       f"s_mov_b32 s{sX+2}, {2048*1280 + 4096}", f"s_mov_b32 s{sX+3}, 0x20000"])
    L(srd(sDBG, pDBG, 256))
    for j in range(5):
        L([f"s_add_u32 s{sKU[j]}, s{sT4}, {j*256}", f"s_cmp_ge_u32 s{sKU[j]}, 1280", f"s_cselect_b32 s{sT5}, 1280, 0", f"s_sub_u32 s{sKU[j]}, s{sKU[j]}, s{sT5}"])
        if j == 0: L(ST.next(4))
        if j == 1: L(ST.next(max(0, min(4, opt.win - 4))))
    L(ST.next(max(0, opt.win - 8)))
    if opt.t_x1:
        L([f"v_lshrrev_b32 v{t0}, 1, v{vLANE}", f"v_and_b32 v{t1}, 12, v{t0}", f"v_add_u32 v{t0}, v{t0}, v{t1}", f"v_mul_u32_u24 v{t0}, 1280, v{t0}",
           f"v_and_b32 v{t1}, 1, v{vLANE}", f"v_lshl_add_u32 v{t0}, v{t1}, 7, v{t0}", f"v_mov_b32 v{t1}, {OOB}", f"v_cmp_gt_u32 vcc, 32, v{vLANE}",
           f"v_cndmask_b32 v{t0}, v{t1}, v{t0}, vcc", f"s_add_u32 s{sT2}, s{sKU[0]}, s{sXOFF}", f"s_add_u32 s{sT2}, s{sT2}, {4096 + 4*1280}",
           f"buffer_load_dword a229, v{t0}, s[{sX}:{sX+3}], s{sT2} offen"])
    L(srd(sWS, pWS, WS_SIZE))
    L([f"s_or_b32 s{sT2}, s2, s{sW}", f"s_cmp_eq_u32 s{sT2}, 0", f"s_mov_b32 s{sT3}, {WS_SEED}", f"s_cselect_b32 s{sSEEDO}, s{sT3}, {OOB}"])
    E(f"buffer_load_dword v{vT[7]}, off, s[{sWS}:{sWS+3}], s{sSEEDO} sc1")
    L([f"s_bitcmp1_b32 s{sW}, 0",
       f"s_cselect_b32 s{sWU}, s{pBIM}, s{pBRE}", f"s_cselect_b32 s{sWU+1}, s{pBIM+1}, s{pBRE+1}",
       f"s_cselect_b32 s{sWM}, s{pW3}, s{pW1}", f"s_cselect_b32 s{sWM+1}, s{pW3+1}, s{pW1+1}",
       f"s_and_b32 s{sWU+1}, s{sWU+1}, 0xffff", f"s_and_b32 s{sWM+1}, s{sWM+1}, 0xffff",
       f"s_mov_b32 s{sWU+2}, {640*1280}", f"s_mov_b32 s{sWU+3}, 0x20000",
       f"s_mov_b32 s{sWM+2}, {640*3072}", f"s_mov_b32 s{sWM+3}, 0x20000"])
    L(srd(sOUT, pOUT, 2048*2560))
    if opt.p2map == 0:
        L([f"s_lshl_b32 s{sRT}, s{sT0}, 2", f"s_and_b32 s{sT2}, s{sT1}, 3", f"s_add_u32 s{sRT}, s{sRT}, s{sT2}", f"s_lshr_b32 s{sN}, s{sT1}, 2"])
    else:
        L([f"s_and_b32 s{sRT}, s{sT0}, 3", f"s_lshl_b32 s{sRT}, s{sRT}, 3", f"s_and_b32 s{sT2}, s{sT1}, 7", f"s_add_u32 s{sRT}, s{sRT}, s{sT2}",
           f"s_lshr_b32 s{sN}, s{sT0}, 2", f"s_lshl_b32 s{sN}, s{sN}, 2", f"s_lshr_b32 s{sT2}, s{sT1}, 3", f"s_add_u32 s{sN}, s{sN}, s{sT2}"])
    L([f"s_mul_i32 s{sUOFF}, s{sG}, {40*1280}", f"s_lshr_b32 s{sT2}, s{sW}, 1", f"s_lshl_b32 s{sT2}, s{sT2}, 7", f"s_add_u32 s{sUOFF}, s{sUOFF}, s{sT2}",
       f"s_mul_i32 s{sM0U}, s{sW}, 5120"])
    L([f"s_mul_i32 s{sT2}, s{sG}, 192", f"s_bitcmp1_b32 s{sG}, 0",
       f"s_cselect_b32 s{sT3}, 64, 0", f"s_cselect_b32 s{sT4}, 0, 128", f"s_add_u32 s{sMOFF}, s{sT2}, s{sT3}", f"s_add_u32 s{sMOFFB}, s{sT2}, s{sT4}",
       f"s_lshr_b32 s{sT2}, s{sW}, 1",
       f"s_mul_i32 s{sT3}, s{sT2}, {32*3072}", f"s_add_u32 s{sMOFF}, s{sMOFF}, s{sT3}",
       f"s_mul_i32 s{sT3}, s{sT2}, {64*3072}", f"s_add_u32 s{sMOFFB}, s{sMOFFB}, s{sT3}",
       f"s_lshl_b32 s{sM0A}, s{sW}, 12"])
    L([f"s_lshl_b32 s{sT3}, s{sC}, 1", f"s_add_u32 s{sT3}, s{sT3}, s{sT2}", f"s_mul_i32 s{sA2H}, s{sT3}, {88*4096}",
       f"s_and_b32 s{sT3}, s{sW}, 1", f"s_lshl_b32 s{sT3}, s{sT3}, 11", f"s_add_u32 s{sA2H}, s{sA2H}, s{sT3}",
       f"s_mul_i32 s{sT3}, s{sG}, 3", f"s_add_u32 s{sT3}, s{sT3}, 40", f"s_and_b32 s{sT4}, s{sG}, 1",
       f"s_add_u32 s{sKSA}, s{sT3}, s{sT4}", f"s_lshl_b32 s{sKSA}, s{sKSA}, 12", f"s_add_u32 s{sKSA}, s{sKSA}, s{sA2H}",
       f"s_xor_b32 s{sT4}, s{sT4}, 1", f"s_lshl_b32 s{sT4}, s{sT4}, 1",
       f"s_add_u32 s{sKSB}, s{sT3}, s{sT4}", f"s_lshl_b32 s{sKSB}, s{sKSB}, 12", f"s_add_u32 s{sKSB}, s{sKSB}, s{sA2H}"])
    L([f"s_lshl_b32 s{sT3}, s{sG}, 4", f"s_add_u32 s{sT4}, s{sT3}, s{sC}", f"s_mul_i32 s{sT4}, s{sT4}, 640", f"s_add_u32 s{sT4}, s{sT4}, {WS_S}",
       f"s_cmp_eq_u32 s{sW}, 3", f"s_cselect_b32 s{sSST}, s{sT4}, {OOB}"])
    for jj, sl in enumerate((sLB0, sLB1, sLB2, sLB3)):
        L([f"s_lshl_b32 s{sT4}, s{sW}, 2", f"s_add_u32 s{sT4}, s{sT4}, s{sC}", f"s_add_i32 s{sT4}, s{sT4}, {jj-16}",
           f"s_add_u32 s{sT5}, s{sT3}, s{sT4}", f"s_mul_i32 s{sT5}, s{sT5}, 640", f"s_add_u32 s{sT5}, s{sT5}, {WS_S}",
           f"s_cmp_ge_i32 s{sT4}, 0", f"s_cselect_b32 s{sl}, s{sT5}, {OOB}"])
    L([f"s_lshl_b32 s{sT3}, s{sC}, 2", f"s_add_u32 s{sT3}, s{sT3}, s{sW}", f"s_lshl_b32 s{sT3}, s{sT3}, 8", f"s_add_u32 s{sT3}, s{sT3}, {WS_STAT}",
       f"s_cmp_eq_u32 s{sG}, 0", f"s_cselect_b32 s{sSTATO}, s{sT3}, {OOB}"])
    for cf in range(5):
        L([f"s_mul_i32 s{sT2}, s{sG}, 5", f"s_add_u32 s{sT2}, s{sT2}, {cf}", f"s_and_b32 s{sT4}, s{sT2}, 3", f"s_lshr_b32 s{sT2}, s{sT2}, 2",
           f"s_lshl_b32 s{sT2}, s{sT2}, 12", f"s_lshl_b32 s{sT4}, s{sT4}, 8", f"s_add_u32 s{sT2}, s{sT2}, s{sT4}", f"s_add_u32 s{sHO[cf]}, s{sT2}, s{sA2H}"])
    if opt.prot:
        sh, msk = (sRT, 3) if opt.p2map == 0 else (sRT, 7)
        if opt.p2map == 0:
            L([f"s_and_b32 s{sT3}, s{sRT}, 3", f"s_mul_i32 s{sT4}, s{sT3}, 3", f"s_add_u32 s{sT4}, s{sT4}, s{sN}"])
        else:
            L([f"s_and_b32 s{sT3}, s{sRT}, 7", f"s_and_b32 s{sT4}, s{sN}, 3", f"s_mul_i32 s{sT4}, s{sT4}, 3", f"s_add_u32 s{sT4}, s{sT4}, s{sT3}"])
        L([f"s_cmp_ge_u32 s{sT4}, 10", f"s_cselect_b32 s{sT5}, 10, 0", f"s_sub_u32 s{sRY}, s{sT4}, s{sT5}",
           f"s_cmp_ge_u32 s{sT4}, 12", f"s_cselect_b32 s{sT5}, 12, 0", f"s_sub_u32 s{sRO}, s{sT4}, s{sT5}"])
    else:
        L([f"s_mov_b32 s{sRY}, 0", f"s_mov_b32 s{sRO}, 0"])
    L([f"s_mul_i32 s{sP2A}, s{sRT}, {88*4096}", f"s_mul_i32 s{sP2W}, s{sN}, {88*5120}", f"s_add_u32 s{sP2W}, s{sP2W}, {WS_W2P}"])
    if "A" in opt.fakehit: E(f"s_mov_b32 s{sP2A}, 0")
    if "W" in opt.fakehit: E(f"s_mov_b32 s{sP2W}, {WS_W2P}")
    i_, q_, a0, a1 = vT[8:12]
    L([f"v_and_b32 v{i_}, 15, v{vLANE}", f"v_lshrrev_b32 v{q_}, 4, v{vLANE}",
       f"v_and_b32 v{a0}, 7, v{i_}", f"v_and_b32 v{a1}, 6, v{i_}", f"v_xor_b32 v{a1}, v{a1}, v{q_}", f"v_lshlrev_b32 v{a1}, 4, v{a1}",
       f"v_lshl_add_u32 v{a1}, v{a0}, 7, v{a1}",
       f"v_lshrrev_b32 v{a0}, 3, v{i_}",
       f"v_mul_u32_u24 v{vRU[0]}, 5120, v{a0}", f"v_add_u32 v{vRU[0]}, v{vRU[0]}, v{a1}", f"v_xor_b32 v{vRU[1]}, 64, v{vRU[0]}",
       f"v_lshl_add_u32 v{vRX[0]}, v{a0}, 10, v{a1}", f"v_add_u32 v{vRX[0]}, s{sM0}, v{vRX[0]}", f"v_xor_b32 v{vRX[1]}, 64, v{vRX[0]}",
       f"v_add_u32 v{vW4}, 4096, v{vL16}"])
    L([f"v_add_u32 v{vUD[p]}, {p*(10240 - 1024)}, v{vDU}" for p in range(1, 4)])

cAR, cAI, cKR, cKI = 56, 57, 58, 59
cA8, cA32, cA32W, cA128, cOM = 60, 62, 64, 66, 68
def constants():
    lre, lim, ldt = vT[4], vT[5], vT[6]
    t = list(range(72, 96))
    L([f"v_lshlrev_b32 v{lre}, 16, v{lre}", f"v_lshlrev_b32 v{lim}, 16, v{lim}", f"v_lshlrev_b32 v{ldt}, 16, v{ldt}",
       f"v_mul_f32 v{t[0]}, {LOG2E}, v{ldt}", f"v_exp_f32 v{t[0]}, v{t[0]}",
       f"v_cvt_pk_bf16_f32 v{t[0]}, v{t[0]}, v{t[0]}", f"v_lshlrev_b32 v{t[0]}, 16, v{t[0]}",
       f"v_mul_f32 v{t[1]}, v{t[0]}, v{lre}", f"v_mul_f32 v{t[2]}, v{t[0]}, v{lim}",
       f"v_mul_f32 v{t[1]}, {LOG2E}, v{t[1]}", f"v_exp_f32 v{t[1]}, v{t[1]}",
       f"v_mul_f32 v{t[2]}, {INV2PI}, v{t[2]}", f"v_rndne_f32 v{t[3]}, v{t[2]}", f"v_sub_f32 v{t[2]}, v{t[2]}, v{t[3]}",
       f"v_cos_f32 v{t[3]}, v{t[2]}", f"v_sin_f32 v{t[4]}, v{t[2]}",
       f"v_mul_f32 v{cAR}, v{t[1]}, v{t[3]}", f"v_mul_f32 v{cAI}, v{t[1]}, v{t[4]}",
       f"v_add_f32 v{t[3]}, -1.0, v{cAR}",
       f"v_mul_f32 v{t[5]}, v{lre}, v{lre}", f"v_fmac_f32 v{t[5]}, v{lim}, v{lim}", f"v_rcp_f32 v{t[5]}, v{t[5]}",
       f"v_mul_f32 v{t[6]}, v{t[3]}, v{lre}", f"v_fmac_f32 v{t[6]}, v{cAI}, v{lim}",
       f"v_mul_f32 v{t[7]}, v{cAI}, v{lre}", f"v_fma_f32 v{t[7]}, -v{t[3]}, v{lim}, v{t[7]}",
       f"v_add_f32 v{t[5]}, v{t[5]}, v{t[5]}",
       f"v_mul_f32 v{cKR}, v{t[6]}, v{t[5]}", f"v_mul_f32 v{cKI}, v{t[7]}, v{t[5]}"])
    r, i, tt = t[8], t[9], t[0]
    L([f"v_mov_b32 v{r}, v{cAR}", f"v_sub_f32 v{i}, 0, v{cAI}"])
    L(csq(t[10], t[11], r, i, tt)); L(csq(r, i, t[10], t[11], tt))
    L(csq(cA8, cA8+1, r, i, tt))
    L(csq(r, i, cA8, cA8+1, tt))
    L(csq(cA32, cA32+1, r, i, tt))
    L(csq(t[12], t[13], cA32, cA32+1, tt))
    L(csq(cA128, cA128+1, t[12], t[13], tt))
    L(csq(r, i, cA128, cA128+1, tt))
    L(csq(t[14], t[15], r, i, tt))
    L(csq(t[16], t[17], t[14], t[15], tt))
    def sel(dst, src, mask, on):
        if on:
            return [f"v_cndmask_b32 v{dst}, 1.0, v{src}, s[{mask}:{mask+1}]", f"v_cndmask_b32 v{dst+1}, 0, v{src+1}, s[{mask}:{mask+1}]"]
        return [f"v_mov_b32 v{t[22]}, 1.0", f"v_mov_b32 v{t[23]}, 0",
                f"v_cndmask_b32 v{dst}, v{src}, v{t[22]}, s[{mask}:{mask+1}]", f"v_cndmask_b32 v{dst+1}, v{src+1}, v{t[23]}, s[{mask}:{mask+1}]"]
    L([f"s_bitcmp1_b32 s{sW}, 0", f"s_cselect_b64 s[{sEX0}:{sEX0+1}], -1, 0", f"s_bitcmp1_b32 s{sW}, 1", f"s_cselect_b64 s[{sEX2}:{sEX2+1}], -1, 0"])
    L(sel(t[18], cA32, sEX0, True)); L(sel(t[20], t[12], sEX2, True))
    L(cmul(cA32W, cA32W+1, t[18], t[19], t[20], t[21], tt))
    L(sel(t[18], t[14], sEX0, False)); L(sel(t[20], t[16], sEX2, False))
    L(cmul(cOM, cOM+1, t[18], t[19], t[20], t[21], tt))

def nonce_seed():
    sd = vT[7]
    L([f"s_mov_b32 s{sT2}, 1664525", f"v_mul_lo_u32 v{sd}, v{sd}, s{sT2}", f"v_add_u32 v{vNON}, 1013904223, v{sd}", f"v_mov_b32 v{vNON+1}, 1"])
    E(f"buffer_store_dword v{vNON}, off, s[{sWS}:{sWS+3}], s{sSEEDO} sc1", tok="seed")
def nonce_publish():
    return [f"s_cmp_lt_u32 s{sSEEDO}, {OOB}", f"s_cselect_b32 s{sT5}, 0, {OOB}", "@waitvm seed",
            f"buffer_store_dwordx2 v[{vNON}:{vNON+1}], off, s[{sDBG}:{sDBG+3}], s{sT5} sc1"]

lab = [0]
def poll(load_text, check):
    lab[0] += 1
    n = lab[0]
    r = list(check)
    r += [f"s_cbranch_vccz L_ok{n}", "@raw_begin", f"s_mov_b32 s{sCNT}, {0x4000 if opt.diag else 0x40000}", f"L_rt{n}:", "s_sleep 1"]
    r += [t.text if isinstance(t, I) else t for t in load_text]
    r += ["s_waitcnt vmcnt(0)", "s_nop 1"] + list(check) + [f"s_cbranch_vccz L_ok{n}", f"s_sub_u32 s{sCNT}, s{sCNT}, 1",
          f"s_cmp_lg_u32 s{sCNT}, 0", f"s_cbranch_scc1 L_rt{n}"]
    if opt.diag: r += [f"buffer_store_dword v{vLANE}, off, s[{sDBG}:{sDBG+3}], 0 offset:{32+4*n} sc1", "s_waitcnt vmcnt(0)"]
    r += ["s_nop 7", "@raw_end", f"L_ok{n}:"]
    return r
def nonce_load():
    return [f"buffer_load_dwordx2 v[{vNON}:{vNON+1}], off, s[{sDBG}:{sDBG+3}], 0 sc1"]
def nonce_get():
    return poll(nonce_load(), [f"v_cmp_ne_u32 vcc, 1, v{vNON+1}"]) + [f"v_readfirstlane_b32 s{sNONCE}, v{vNON}"]

sS0, sS1, sQ0, sQ1 = vT[8], vT[9], vT[10], vT[11]
vR = [vT[12], vT[14]]; vNB = [vT[13], vT[15]]
vM = [vT[16], vT[17]]
vONES = vT[18]
def x_arrive(f, filler=None, limit=60):
    filler = II(filler or [])
    per = (len(filler) + 9) // 10
    if not opt.mstat: L([f"v_mov_b32 v{sS0}, 0", f"v_mov_b32 v{sS1}, 0", f"v_mov_b32 v{sQ0}, 0", f"v_mov_b32 v{sQ1}, 0"])
    def st(s):
        r = []
        if opt.mstat:
            c0 = "0" if s == 0 else ar(aSS); c1 = "0" if s == 0 else ar(aSQ)
            return [f"v_mfma_f32_16x16x32_bf16 {ar(aSS)}, {ar(aONE)}, {vr(X(f, s))}, {c0}",
                    f"v_mfma_f32_16x16x32_bf16 {ar(aSQ)}, {vr(X(f, s))}, {vr(X(f, s))}, {c1}"]
        for k in range(4):
            x = X(f, s) + k
            r += [f"v_dot2_f32_bf16 v{(sS0, sS1)[k&1]}, v{x}, v{vONES}, v{(sS0, sS1)[k&1]}",
                  f"v_dot2_f32_bf16 v{(sQ0, sQ1)[k&1]}, v{x}, v{x}, v{(sQ0, sQ1)[k&1]}"]
        return r
    for S in range(10):
        E(f"@waitvm x{f}_{S}")
        for sh in range(2):
            E(f"ds_read_b128 {vr(X(f, 2*S+sh))}, v{vRX[sh]} offset:{S*2048}", tok=f"xr{f}_{2*S+sh}")
        L(ST.next(2, limit))
        if S > 0:
            E(f"@waitds xr{f}_{2*S-1}")
            L(st(2*S-2)); L(st(2*S-1))
        L(filler[S*per:(S+1)*per])
    E("@waitds0")
    return st(18) + st(19) + filler[10*per:]

aONE, aSS, aSQ = 216, 220, 224
def x_stats(f):
    a, b = vT[19], vT[20]
    r = [f"v_add_f32 v{sS0}, v{sS0}, v{sS1}", f"v_add_f32 v{sQ0}, v{sQ0}, v{sQ1}"]
    if opt.mstat:
        t = vT[8:12]
        r = [f"v_and_b32 v{a}, 15, v{vLANE}", f"v_lshrrev_b32 v{b}, 2, v{a}", f"v_lshl_add_u32 v{b}, v{b}, 4, v{a}", f"v_lshlrev_b32 v{b}, 2, v{b}",
             f"v_and_b32 v{a}, 3, v{vLANE}", f"v_cmp_eq_u32 s[{sEX0}:{sEX0+1}], 1, v{a}", f"v_cmp_eq_u32 s[{sEX2}:{sEX2+1}], 2, v{a}", f"v_cmp_eq_u32 vcc, 3, v{a}"]
        r += [f"v_accvgpr_read_b32 v{t[k]}, a{aSQ+k}" for k in range(4)]
        r += [f"v_cndmask_b32 v{t[0]}, v{t[0]}, v{t[1]}, s[{sEX0}:{sEX0+1}]", f"v_cndmask_b32 v{t[2]}, v{t[2]}, v{t[3]}, vcc",
              f"v_cndmask_b32 v{t[0]}, v{t[0]}, v{t[2]}, s[{sEX2}:{sEX2+1}]", f"v_cndmask_b32 v{t[0]}, v{t[0]}, v{t[2]}, vcc",
              f"ds_bpermute_b32 v{sQ0}, v{b}, v{t[0]}", f"v_accvgpr_read_b32 v{sS0}, a{aSS}"]
    for perm in (() if opt.mstat else ("v_permlane16_swap_b32", "v_permlane32_swap_b32")):
        r += [f"v_mov_b32 v{a}, v{sS0}", f"v_mov_b32 v{b}, v{sQ0}", f"{perm} v{a}, v{sS0}", f"{perm} v{b}, v{sQ0}",
              f"v_add_f32 v{sS0}, v{sS0}, v{a}", f"v_add_f32 v{sQ0}, v{sQ0}, v{b}"]
    inv = "0x3acccccd"
    r += [f"v_mul_f32 v{sS0}, {inv}, v{sS0}", f"v_mul_f32 v{sQ0}, {inv}, v{sQ0}",
          f"v_fma_f32 v{sQ0}, -v{sS0}, v{sS0}, v{sQ0}", f"v_max_f32 v{sQ0}, 0, v{sQ0}",
          f"v_cvt_pk_bf16_f32 v{a}, v{sS0}, v{sQ0}",
          f"v_lshlrev_b32 v{vM[f]}, 16, v{a}", f"v_and_b32 v{b}, 0xffff0000, v{a}",
          f"v_add_f32 v{b}, 0x3727c5ac, v{b}",
          f"v_cvt_pk_bf16_f32 v{b}, v{b}, v{b}", f"v_and_b32 v{b}, 0xffff0000, v{b}",
          f"v_sqrt_f32 v{b}, v{b}", f"v_cvt_pk_bf16_f32 v{b}, v{b}, v{b}", f"v_and_b32 v{b}, 0xffff0000, v{b}",
          f"v_rcp_f32 v{vR[f]}, v{b}", f"v_mul_f32 v{vNB[f]}, v{vM[f]}, v{vR[f]}", f"v_sub_f32 v{vNB[f]}, 0, v{vNB[f]}"]
    return r

def norm_step(f, s, packed, tmp):
    r = []
    for k in range(4):
        x = X(f, s) + k
        t = tmp[(k & 1) * 2]
        if packed:
            r += [f"v_lshlrev_b32 v{t}, 16, v{x}", f"v_and_b32 v{t+1}, 0xffff0000, v{x}",
                  f"v_pk_fma_f32 v[{t}:{t+1}], v[{t}:{t+1}], v[{vR[f]}:{vR[f]+1}], v[{vR[f]}:{vR[f]+1}] op_sel:[0,0,1] op_sel_hi:[1,0,1]",
                  f"v_cvt_pk_bf16_f32 v{x}, v{t}, v{t+1}"]
        else:
            r += [f"v_lshlrev_b32 v{t}, 16, v{x}", f"v_and_b32 v{t+1}, 0xffff0000, v{x}",
                  f"v_fma_f32 v{t}, v{t}, v{vR[f]}, v{vNB[f]}", f"v_fma_f32 v{t+1}, v{t+1}, v{vR[f]}, v{vNB[f]}",
                  f"v_cvt_pk_bf16_f32 v{x}, v{t}, v{t+1}"]
    return r

def stats_store():
    a, b = vT[0], vT[1]
    r = [f"v_and_b32 v{a}, 12, v{vLANE}", f"v_add_u32 v{a}, v{a}, v{vLANE}", f"v_lshlrev_b32 v{a}, 3, v{a}",
         f"v_mov_b32 v{b}, {OOB}", f"v_cmp_gt_u32 vcc, 16, v{vLANE}", f"v_cndmask_b32 v{a}, v{b}, v{a}, vcc"]
    for f in range(2):
        r.append(I(f"buffer_store_dwordx2 v[{vR[f]}:{vR[f]+1}], v{a}, s[{sWS}:{sWS+3}], s{sSTATO} offen offset:{32*f} sc1", tok="stat"))
    return r

def mlp_dma_addr(kind):
    vD = vDB if kind == "B" else globals()["vD"]
    t0, t1, t2 = vD[1], vD[2], vD[3]
    if kind == "A":
        r = [f"v_lshrrev_b32 v{t0}, 3, v{vLANE}", f"v_and_b32 v{t1}, 7, v{vLANE}", f"v_and_b32 v{t2}, 2, v{t0}", f"v_lshlrev_b32 v{t2}, 1, v{t2}",
             f"v_xor_b32 v{t1}, v{t1}, v{t2}", f"v_lshlrev_b32 v{t1}, 4, v{t1}",
             f"v_mul_u32_u24 v{t0}, 3072, v{t0}", f"v_add_u32 v{vD[0]}, v{t0}, v{t1}"]
        rows = 8
    else:
        r = [f"v_lshrrev_b32 v{t0}, 2, v{vLANE}", f"v_and_b32 v{t1}, 3, v{vLANE}", f"v_lshlrev_b32 v{t1}, 4, v{t1}",
             f"v_mul_u32_u24 v{t0}, 3072, v{t0}", f"v_add_u32 v{vD[0]}, v{t0}, v{t1}"]
        rows = 16
    for p in range(1, 4):
        r.append(f"v_add_u32 v{vD[p]}, {p*(rows*3072 - 1024)}, v{vD[0]}")
    if kind == "B": r.append(f"v_add_u32 v{vRB2}, 0x10000, v{vRB}")
    return r

def dma_M(m):
    slot = m % 4 if m < 10 else BSLOT[m]
    vD = globals()["vD"] if m < 10 else vDB
    if m < 10:
        so = [f"s_mul_i32 s{sD0}, s{sKU[m >> 1]}, 1536", f"s_add_u32 s{sD0}, s{sD0}, s{sMOFF}"]
        if m & 1: so.append(f"s_add_u32 s{sD0}, s{sD0}, {64*3072}")
    else:
        so = [f"s_mul_i32 s{sD0}, s{sKU[m - 10]}, 1536", f"s_add_u32 s{sD0}, s{sD0}, s{sMOFFB}"]
    r = so + [f"s_add_u32 m0, s{sM0A}, {slot*16384}"]
    for p in range(4):
        r.append(I(f"buffer_load_dwordx4 v{vD[p]}, s[{sWM}:{sWM+3}], s{sD0} offen offset:{p*1024} {opt.w_flags} lds", tok=f"M{m}"))
    return r

def w13_touch():
    a, b = vT[5], vT[6]
    r = [f"v_lshrrev_b32 v{a}, 1, v{vLANE}", f"v_mul_u32_u24 v{a}, 3072, v{a}", f"v_and_b32 v{b}, 1, v{vLANE}", f"v_lshl_add_u32 v{a}, v{b}, 7, v{a}",
         f"s_and_b32 s{sT2}, s{sC}, 7", f"s_lshl_b32 s{sT2}, s{sT2}, 1", f"s_lshr_b32 s{sT3}, s{sW}, 1", f"s_add_u32 s{sT2}, s{sT2}, s{sT3}",
         f"s_mul_i32 s{sT2}, s{sT2}, {40*3072}", f"s_mul_i32 s{sT3}, s{sG}, 192", f"s_and_b32 s{sT3}, s{sT3}, 0xffffff80", f"s_add_u32 s{sT2}, s{sT2}, s{sT3}",
         f"buffer_load_dword a228, v{a}, s[{sWM}:{sWM+3}], s{sT2} offen",
         f"v_mov_b32 v{b}, {OOB}", f"v_cmp_gt_u32 vcc, 16, v{vLANE}", f"v_cndmask_b32 v{a}, v{b}, v{a}, vcc", f"s_add_u32 s{sT2}, s{sT2}, {32*3072}",
         f"buffer_load_dword a228, v{a}, s[{sWM}:{sWM+3}], s{sT2} offen"]
    return r

def delay(tag, mod, val, ticks):
    if not opt.delay: return []
    return ["@raw_begin", f"s_and_b32 s{sD0}, s2, {mod}", f"s_cmp_eq_u32 s{sD0}, {val}", f"s_cbranch_scc0 L_dl{tag}",
            f"s_memrealtime s[{sSTAMP}:{sSTAMP+1}]", "s_waitcnt lgkmcnt(0)", f"s_mov_b32 s{sD1}, s{sSTAMP}", f"L_dw{tag}:",
            f"s_memrealtime s[{sSTAMP}:{sSTAMP+1}]", "s_waitcnt lgkmcnt(0)", f"s_sub_u32 s{sD0}, s{sSTAMP}, s{sD1}",
            f"s_cmp_lt_u32 s{sD0}, {ticks*opt.delay}", f"s_cbranch_scc1 L_dw{tag}", f"L_dl{tag}:", "@raw_end"]

def skew(tag):
    if not opt.skew: return []
    return [f"s_bitcmp1_b32 s{sW}, 0", f"s_cbranch_scc1 L_sk{tag}a", "s_nop 0", f"L_sk{tag}a:", f"s_bitcmp1_b32 s{sW}, 1", f"s_cbranch_scc1 L_sk{tag}b", "s_nop 1", f"L_sk{tag}b:"]

def mlp_read_addr():
    G, r_, c, t, u = vT[19], vT[20], vT[21], vT[22], vT[23]
    return [f"v_lshrrev_b32 v{G}, 4, v{vLANE}", f"v_bfe_u32 v{r_}, v{vLANE}, 2, 2", f"v_and_b32 v{c}, 3, v{vLANE}",
         f"v_lshrrev_b32 v{t}, 1, v{G}", f"v_lshlrev_b32 v{t}, 11, v{t}", f"v_lshl_add_u32 v{t}, v{r_}, 7, v{t}",
         f"v_and_b32 v{u}, 1, v{c}", f"v_lshl_add_u32 v{t}, v{u}, 3, v{t}",
         f"v_and_b32 v{u}, 1, v{G}", f"v_lshlrev_b32 v{u}, 1, v{u}", f"v_lshrrev_b32 v{vRA[1]}, 1, v{c}", f"v_add_u32 v{u}, v{u}, v{vRA[1]}",
         f"v_lshrrev_b32 v{vRA[1]}, 1, v{r_}", f"v_lshlrev_b32 v{vRA[1]}, 2, v{vRA[1]}", f"v_xor_b32 v{u}, v{u}, v{vRA[1]}",
         f"v_lshl_add_u32 v{vRA[0]}, v{u}, 4, v{t}", f"v_xor_b32 v{vRA[1]}, 64, v{vRA[0]}",
         f"v_lshrrev_b32 v{t}, 1, v{G}", f"v_lshlrev_b32 v{t}, 10, v{t}", f"v_lshl_add_u32 v{t}, v{r_}, 6, v{t}",
         f"v_and_b32 v{u}, 1, v{G}", f"v_lshl_add_u32 v{t}, v{u}, 5, v{t}", f"v_lshl_add_u32 v{vRB}, v{c}, 3, v{t}",
         f"v_lshlrev_b32 v{u}, 10, v{u}", f"v_lshrrev_b32 v{t}, 1, v{G}", f"v_lshl_add_u32 v{u}, v{t}, 8, v{u}",
         f"v_and_b32 v{t}, 15, v{vLANE}", f"v_lshl_add_u32 v{vHH}, v{t}, 4, v{u}"]

def relayout_issue():
    u, t0, t1, t2 = sT2, vT[5], vT[6], vT[7]
    vo = vT[0:5]
    r = [f"s_lshl_b32 s{u}, s{sW}, 5", f"s_add_u32 s{u}, s{u}, s{sRT}",
       f"s_mul_i32 s{sT3}, s{sN}, 88", f"s_add_u32 s{sT3}, s{sT3}, s{u}", f"s_mul_i32 s{sT3}, s{sT3}, 5120", f"s_add_u32 s{sT3}, s{sT3}, {WS_W2P}",
       f"s_cmp_lt_u32 s{u}, 88", f"s_cselect_b32 s{sRLST}, s{sT3}, {OOB}",
       f"s_mov_b32 s{sRL+3}, 0x20000", f"s_cmp_lt_u32 s{u}, 40", "@arm", "s_cbranch_scc0 L_rlw",
       f"s_cmp_lt_u32 s{u}, 20", f"s_cselect_b32 s{sRL}, s{pCRE}, s{pCIM}", f"s_cselect_b32 s{sRL+1}, s{pCRE+1}, s{pCIM+1}",
       f"s_cselect_b32 s{sT3}, 0, 20", f"s_sub_u32 s{sT3}, s{u}, s{sT3}", f"s_lshl_b32 s{sT3}, s{sT3}, 6",
       f"s_mul_i32 s{sT4}, s{sN}, {80*1280}", f"s_add_u32 s{sRLOFF}, s{sT3}, s{sT4}",
       f"s_mov_b32 s{sRL+2}, {640*1280}",
       f"v_lshrrev_b32 v{t0}, 2, v{vLANE}", f"v_and_b32 v{t1}, 3, v{vLANE}", f"v_lshlrev_b32 v{t1}, 4, v{t1}",
       f"v_mul_u32_u24 v{t0}, 1280, v{t0}", f"v_add_u32 v{vo[0]}, v{t0}, v{t1}"]
    for e in range(1, 5): r.append(f"v_add_u32 v{vo[e]}, {e*16*1280}, v{vo[0]}")
    r += ["s_branch L_rlj", "@else", "L_rlw:",
       f"s_mov_b32 s{sRL}, s{pW2}", f"s_mov_b32 s{sRL+1}, s{pW2+1}",
       f"s_cmp_lt_u32 s{u}, 88", f"s_cselect_b32 s{sRL+2}, {1536*1280}, 0",
       f"s_sub_u32 s{sT3}, s{u}, 40", f"s_mul_i32 s{sT3}, s{sT3}, {32*1280}", f"s_mul_i32 s{sT4}, s{sN}, 160", f"s_add_u32 s{sRLOFF}, s{sT3}, s{sT4}",
       f"s_mov_b32 s{sT4}, 6554"]
    for p in range(5):
        r += [f"v_add_u32 v{t0}, {64*p}, v{vLANE}", f"v_mul_u32_u24 v{t1}, s{sT4}, v{t0}", f"v_lshrrev_b32 v{t1}, 16, v{t1}",
              f"v_mul_u32_u24 v{t2}, 10, v{t1}", f"v_sub_u32 v{t2}, v{t0}, v{t2}", f"v_lshlrev_b32 v{t2}, 4, v{t2}",
              f"v_mul_u32_u24 v{t1}, 1280, v{t1}", f"v_add_u32 v{vo[p]}, v{t1}, v{t2}"]
    r += ["@endarm", "L_rlj:", f"s_and_b32 s{sRL+1}, s{sRL+1}, 0xffff"]
    return r
def relayout_dma():
    vo = vT[0:5]
    r = []
    for p in range(5):
        r.append([f"s_add_u32 m0, s{sM0U}, {L_RL + p*1024}", "s_nop 0",
                  I(f"buffer_load_dwordx4 v{vo[p]}, s[{sRL}:{sRL+3}], s{sRLOFF} offen {'nt' if opt.rl_nt else ''} lds", tok="RL")])
    return r

def relayout_finish():
    t0, t1 = vT[0], vT[1]
    r = ["@waitvm RL", f"s_lshl_b32 s{sT2}, s{sW}, 5", f"s_add_u32 s{sT2}, s{sT2}, s{sRT}", f"s_add_u32 s{sT3}, s{sM0U}, {L_RL}",
         f"s_cmp_lt_u32 s{sT2}, 40", "@arm", "s_cbranch_scc0 L_rfw",
         f"v_and_b32 v{t0}, 15, v{vLANE}", f"v_lshrrev_b32 v{t1}, 4, v{vLANE}", f"v_lshlrev_b32 v{t1}, 4, v{t1}",
         f"v_lshl_add_u32 v{t0}, v{t0}, 6, v{t1}", f"v_add_u32 v{t0}, s{sT3}, v{t0}"]
    for e in range(5): r.append(f"ds_read_b128 {ar(aRL+4*e)}, v{t0} offset:{e*1024}")
    r += ["@waitds0", "s_branch L_rfj", "@else", "L_rfw:",
          f"v_lshrrev_b32 v{t0}, 2, v{vLANE}", f"v_and_b32 v{t1}, 8, v{t0}", f"v_add_u32 v{t0}, v{t0}, v{t1}",
          f"v_mul_u32_u24 v{t0}, 160, v{t0}", f"v_and_b32 v{t1}, 3, v{vLANE}",
          f"v_lshl_add_u32 v{t0}, v{t1}, 3, v{t0}", f"v_add_u32 v{t0}, s{sT3}, v{t0}"]
    for e in range(5):
        for jj in range(2):
            r.append(f"ds_read_b64_tr_b16 {ar(aRL+4*e+2*jj, 2)}, v{t0} offset:{jj*1280 + e*32}")
    r += ["@waitds0", "@endarm", "L_rfj:"]
    for e in range(5):
        if e < 4: r.append(I(f"buffer_store_dwordx4 {ar(aRL+4*e)}, v{vL16}, s[{sWS}:{sWS+3}], s{sRLST} offen offset:{e*1024} sc1", tok="RLS"))
        else: r.append(I(f"buffer_store_dwordx4 {ar(aRL+4*e)}, v{vW4}, s[{sWS}:{sWS+3}], s{sRLST} offen sc1", tok="RLS"))
    return r

def flag_store(base, sline, sidx):
    return [f"s_lshl_b32 s{sD0}, s{sline}, 7", f"s_lshl_b32 s{sD1}, s{sidx}, 2", f"s_add_u32 s{sD0}, s{sD0}, s{sD1}", f"s_add_u32 s{sD0}, s{sD0}, {base}",
            f"s_cmp_eq_u32 s{sW}, 0", f"s_cselect_b32 s{sD0}, s{sD0}, {OOB}",
            f"buffer_store_dword v{vNON}, off, s[{sWS}:{sWS+3}], s{sD0} sc1"]
def flag_load(base, sline, shift, mask, st=None):
    st = sD0 if st is None else st
    return [f"s_lshr_b32 s{st}, s{sline}, {shift}", f"s_lshl_b32 s{st}, s{st}, 7", f"s_add_u32 s{st}, s{st}, {base}",
            f"v_and_b32 v{vFLAG}, {mask}, v{vLANE}", f"v_lshlrev_b32 v{vFLAG}, 2, v{vFLAG}",
            f"buffer_load_dword v{vFLAG}, v{vFLAG}, s[{sWS}:{sWS+3}], s{st} offen sc1"]
def flag_check(base, sline, shift, mask):
    return poll(flag_load(base, sline, shift, mask, sD0), [f"v_cmp_ne_u32 vcc, s{sNONCE}, v{vFLAG}"])

def scan_addr():
    col, q, ch, t = vT[19], vT[20], vT[21], vT[22]
    return [f"s_lshl_b32 s{sT2}, s{sW}, 13", f"s_add_u32 s{sT2}, s{sT2}, {L_PRIV}",
            f"v_and_b32 v{col}, 15, v{vLANE}", f"v_lshrrev_b32 v{q}, 4, v{vLANE}",
            f"v_lshl_add_u32 v{vCOLR}, v{col}, 4, s{sT2}",
            f"v_lshl_add_u32 v{vEW}, v{q}, 2, v{vCOLR}",
            f"v_min_u32 v{ch}, 39, v{vLANE}", f"v_lshlrev_b32 v{vSO}, 4, v{ch}",
            f"v_lshrrev_b32 v{t}, 3, v{ch}", f"v_lshlrev_b32 v{t}, 3, v{t}", f"v_add_u32 v{t}, v{t}, v{ch}",
            f"v_lshl_add_u32 v{vER}, v{t}, 4, s{sT2}",
            f"v_add_u32 v{vCH}, s{sT2}, v{vL16}",
            f"s_lshl_b32 s{sT3}, s{sW}, 9", f"s_add_u32 s{sT3}, s{sT3}, {L_TT}", f"v_lshl_add_u32 v{vTT}, v{vLANE}, 3, s{sT3}",
            f"v_lshlrev_b32 v{vLB}, 5, v{vLANE}", f"v_add_u32 v{vLB}, {L_LB}, v{vLB}",
            f"s_add_u32 s{sT3}, s{sM0U}, {L_RL}",
            f"v_lshlrev_b32 v{vTW}, 5, v{col}", f"v_lshl_add_u32 v{vTW}, v{q}, 3, v{vTW}", f"v_add_u32 v{vTW}, s{sT3}, v{vTW}",
            f"v_bfe_u32 v{t}, v{vLANE}, 2, 2", f"v_lshlrev_b32 v{t}, 5, v{t}", f"v_lshl_add_u32 v{t}, v{q}, 8, v{t}",
            f"v_and_b32 v{ch}, 3, v{vLANE}", f"v_lshl_add_u32 v{t}, v{ch}, 3, v{t}", f"v_add_u32 v{vTR}, s{sT3}, v{t}",
            f"v_lshrrev_b32 v{t}, 1, v{q}", f"v_lshlrev_b32 v{t}, 10, v{t}", f"v_lshl_add_u32 v{vHST}, v{col}, 4, v{t}",
            f"v_and_b32 v{t}, 1, v{q}", f"v_mul_u32_u24 v{t}, {20*4096}, v{t}", f"v_add_u32 v{vHST}, v{vHST}, v{t}"]

def const_park():
    src = [cAR, cAI, cKR, cKI] + list(range(60, 70))
    return [f"v_accvgpr_write_b32 a{200+k}, v{s}" for k, s in enumerate(src)]
def const_tables():
    t = vT[0:8]
    r = [f"v_accvgpr_read_b32 v{t[0]}, a200", f"v_accvgpr_read_b32 v{t[1]}, a201", f"v_accvgpr_read_b32 v{t[2]}, a202", f"v_accvgpr_read_b32 v{t[3]}, a203",
         f"v_sub_f32 v{t[3]}, 0, v{t[3]}",
         f"v_mov_b32 v{t[4]}, v{t[0]}", f"v_sub_f32 v{t[5]}, 0, v{t[1]}", f"v_sub_f32 v{t[6]}, 0, v{t[2]}", f"v_mov_b32 v{t[7]}, v{t[3]}",
         f"ds_write_b128 v{vER}, {vr(t[0])} offset:{PV_COL}", f"ds_write_b128 v{vER}, {vr(t[4])} offset:{PV_COL+128}",
         f"ds_write_b128 v{vCH}, {ar(204)} offset:{PV_CH}", f"ds_write_b128 v{vCH}, {ar(208)} offset:{PV_CH+1024}",
         f"ds_write_b64 v{vCH}, {ar(212, 2)} offset:{PV_CH+2048}",
         f"v_mov_b32 v{t[0]}, 0", f"v_mov_b32 v{t[1]}, 0",
         f"s_min_u32 s{sT2}, s{sW}, 2", f"s_lshl_b32 s{sT2}, s{sT2}, 9", f"s_add_u32 s{sT2}, s{sT2}, {L_TT}",
         f"v_lshl_add_u32 v{t[2]}, v{vLANE}, 3, s{sT2}", f"ds_write_b64 v{t[2]}, {vr(t[0], 2)}"]
    return r

def ureg(cf, tau): return U(cf, tau >> 2) + (tau & 3)
DPP = "row_ror:8 row_mask:0xf bank_mask:0xf"
def scan_P12():
    C = vT[0:20]
    r = [I(f"ds_read_b128 {vr(C[4*cf])}, v{vCOLR} offset:{PV_COL + cf*256}", tok="colr") for cf in range(5)]
    r.append("@gap 1")
    t = vT[20:24]
    k = 0
    for tau in range(8):
        for cf in range(5):
            u = ureg(cf, tau); tt = t[k % 4]; k += 1
            r += [f"v_mul_f32_dpp v{tt}, v{u}, v{C[4*cf+3]} {DPP}", f"v_fma_f32 v{u}, v{C[4*cf+2]}, v{u}, v{tt}"]
    for tau in range(1, 8):
        src = [(ureg(cf, 0) if tau == 1 else C[4*cf + 2 + (tau & 1)]) for cf in range(5)]
        dst = [C[4*cf + 2 + ((tau + 1) & 1)] for cf in range(5)]
        for cf in range(5): r.append(f"v_fma_f32 v{dst[cf]}, v{C[4*cf]}, v{src[cf]}, v{ureg(cf, tau)}")
        for cf in range(5): r.append(f"v_fmac_f32_dpp v{dst[cf]}, v{src[cf]}, v{C[4*cf+1]} {DPP}")
    for cf in range(5): r.append(f"ds_write_b32 v{vEW}, v{C[4*cf+2]} offset:{PV_E + cf*256}")
    er, ei, a8 = vT[0], vT[4], vT[8]
    r += [f"ds_read_b128 {vr(a8)}, v{vCH} offset:{PV_CH}",
          f"ds_read_b128 {vr(er)}, v{vER} offset:{PV_E}", f"ds_read_b128 {vr(ei)}, v{vER} offset:{PV_E+128}", "@gap 2"]
    g0, g1 = vT[12], vT[14]
    r += chorner2(g0, g0+1, er, ei, a8, a8+1, er+1, ei+1)
    r += chorner2(g1, g1+1, g0, g0+1, a8, a8+1, er+2, ei+2)
    r += chorner2(g0, g0+1, g1, g1+1, a8, a8+1, er+3, ei+3)
    r += [f"ds_write_b64 v{vTT}, {vr(g0, 2)} offset:{3*512}"]
    return r

def scan_P3():
    a32 = vT[8]; T = vT[0:8]
    r = [f"ds_read_b128 {vr(a32)}, v{vCH} offset:{PV_CH}"]
    for k in range(4): r.append(f"ds_read_b64 {vr(T[2*k], 2)}, v{vTT} offset:{k*512}")
    r.append("@gap 2")
    m = a32 + 2
    g = vT[12]
    r += chorner2(g, g+1, T[0], T[1], m, m+1, T[2], T[3])
    r += chorner2(vWP0, vWP1, g, g+1, m, m+1, T[4], T[5])
    r += chorner2(g, g+1, vWP0, vWP1, m, m+1, T[6], T[7])
    r += [f"v_mov_b32 v{g+2}, s{sNONCE}", f"v_mov_b32 v{g+3}, s{sNONCE}",
          f"buffer_store_dwordx4 {vr(g)}, v{vSO}, s[{sWS}:{sWS+3}], s{sSST} offen sc1"]
    return r

def lb_loads():
    return [f"buffer_load_dwordx4 {ar(aS+4*jj)}, v{vSO}, s[{sWS}:{sWS+3}], s{sl} offen sc1" for jj, sl in enumerate((sLB0, sLB1, sLB2, sLB3))]
def scan_P4():
    t = vT[0:8]
    chk = []
    for jj, sl in enumerate((sLB0, sLB1, sLB2, sLB3)):
        d = t[2] if jj == 0 else t[0]
        chk += [f"s_cmp_lt_u32 s{sl}, {OOB}", f"s_cselect_b32 s{sT2}, s{sNONCE}, 0", f"v_accvgpr_read_b32 v{d}, a{aS+4*jj+2}",
                f"v_xor_b32 v{d}, s{sT2}, v{d}"]
        if jj: chk += [f"v_or_b32 v{t[2]}, v{t[2]}, v{t[0]}"]
    chk += [f"v_cmp_ne_u32 vcc, 0, v{t[2]}"]
    c = vT[8]
    r = [f"ds_read_b128 {vr(c)}, v{vCH} offset:{PV_CH+1024}", f"ds_read_b64 {vr(vT[12], 2)}, v{vCH} offset:{PV_CH+2048}"]
    r += poll(lb_loads(), [i.text for i in insert_nops(II(chk))])
    for jj in range(4):
        r += [f"v_accvgpr_read_b32 v{t[2*jj]}, a{aS+4*jj}", f"v_accvgpr_read_b32 v{t[2*jj+1]}, a{aS+4*jj+1}"]
    m = c + 2; g0, g1 = vT[14], vT[16]
    r += chorner2(g0, g0+1, t[0], t[1], m, m+1, t[2], t[3])
    r += chorner2(g1, g1+1, g0, g0+1, m, m+1, t[4], t[5])
    r += chorner2(g0, g0+1, g1, g1+1, m, m+1, t[6], t[7])
    r += cmul(g1, g1+1, g0, g0+1, vT[12], vT[13], vT[18])
    r += [f"s_lshl_b32 s{sT2}, s{sW}, 3", f"v_add_u32 v{vT[18]}, s{sT2}, v{vLB}", f"ds_write_b64 v{vT[18]}, {vr(g1, 2)}"]
    return r

def scan_P56():
    lb = vT[0]; er, ei = vT[8], vT[12]; c8, c32w = vT[16], vT[20]
    r = [f"ds_read_b128 {vr(lb)}, v{vLB}", f"ds_read_b128 {vr(lb+4)}, v{vLB} offset:16",
         f"ds_read_b64 {vr(c32w, 2)}, v{vCH} offset:{PV_CH+1024}", f"ds_read_b128 {vr(c8)}, v{vCH} offset:{PV_CH}",
         f"ds_read_b128 {vr(er)}, v{vER} offset:{PV_E}", f"ds_read_b128 {vr(ei)}, v{vER} offset:{PV_E+128}", "@gap 2",
         f"v_add_f32 v{lb}, v{lb}, v{lb+2}", f"v_add_f32 v{lb+1}, v{lb+1}, v{lb+3}",
         f"v_add_f32 v{lb+4}, v{lb+4}, v{lb+6}", f"v_add_f32 v{lb+5}, v{lb+5}, v{lb+7}",
         f"v_add_f32 v{lb}, v{lb}, v{lb+4}", f"v_add_f32 v{lb+1}, v{lb+1}, v{lb+5}"]
    q0, q1 = vT[4], vT[20]
    tmp = vT[2]
    r += chorner2(tmp, tmp+1, lb, lb+1, c32w, c32w+1, vWP0, vWP1)
    r += [f"v_mov_b32 v{q0}, v{tmp}", f"v_mov_b32 v{q1}, v{tmp+1}"]
    for k in range(3):
        r += chorner2(q0+k+1, q1+k+1, q0+k, q1+k, c8, c8+1, er+k, ei+k)
    r += [f"ds_write_b128 v{vER}, {vr(q0)} offset:{PV_E}", f"ds_write_b128 v{vER}, {vr(q1)} offset:{PV_E+128}"]
    C = vT[0:10]; Z = vT[10:15]
    for cf in range(5): r.append(f"ds_read_b32 v{Z[cf]}, v{vEW} offset:{PV_E + cf*256}")
    for cf in range(5): r.append(f"ds_read_b64 {vr(C[2*cf], 2)}, v{vCOLR} offset:{PV_COL + cf*256}")
    r.append("@gap 2")
    for tau in range(8):
        src = [(Z[cf] if tau == 0 else ureg(cf, tau-1)) for cf in range(5)]
        for cf in range(5): r.append(f"v_fma_f32 v{ureg(cf, tau)}, v{C[2*cf]}, v{src[cf]}, v{ureg(cf, tau)}")
        for cf in range(5): r.append(f"v_fmac_f32_dpp v{ureg(cf, tau)}, v{src[cf]}, v{C[2*cf+1]} {DPP}")
    k = 0
    for cf in range(5):
        for f in range(2):
            t = vT[16 + 2*(k % 4)]; k += 1
            u = U(cf, f)
            r += [f"v_cvt_pk_bf16_f32 v{t}, v{u}, v{u+1}", f"v_cvt_pk_bf16_f32 v{t+1}, v{u+2}, v{u+3}",
                  f"ds_write_b64 v{vTW}, {vr(t, 2)} offset:{(cf*2+f)*512}"]
    for cf in range(5):
        for jj in range(2):
            r.append(f"ds_read_b64_tr_b16 {vr(56 + 4*cf + 2*jj, 2)}, v{vTR} offset:{cf*1024 + jj*128}")
    for cf in range(5):
        r.append(I(f"buffer_store_dwordx4 {vr(56 + 4*cf)}, v{vHST}, s[{sWS}:{sWS+3}], s{sHO[cf]} offen sc1", tok="HST"))
    return r

def swiglu(acc, h2s, sks, tokname, packed=False):
    r = []
    k = 0
    for h2 in h2s:
        for z in range(2):
            G = vT[0:8]; Uu = vT[8:16]; T = vT[16:24]
            for j in range(8):
                r += [f"v_accvgpr_read_b32 v{G[j]}, a{acc(0, h2) + 8*z + j}", f"v_accvgpr_read_b32 v{Uu[j]}, a{acc(1, h2) + 8*z + j}"]
            if packed:
                for j in range(0, 8, 2): r.append(f"v_pk_mul_f32 {vr(T[j], 2)}, {vr(G[j], 2)}, s[{sEX0}:{sEX0+1}]")
                for j in range(8):
                    r.append(f"v_exp_f32 v{T[j]}, v{T[j]}")
                for j in range(0, 8, 2): r.append(f"v_pk_mul_f32 {vr(G[j], 2)}, {vr(G[j], 2)}, {vr(Uu[j], 2)}")
                for j in range(0, 8, 2): r.append(f"v_pk_add_f32 {vr(T[j], 2)}, {vr(T[j], 2)}, s[{sEX2}:{sEX2+1}]")
                for j in range(8): r.append(f"v_rcp_f32 v{T[j]}, v{T[j]}")
                for j in range(0, 8, 2): r.append(f"v_pk_mul_f32 {vr(G[j], 2)}, {vr(G[j], 2)}, {vr(T[j], 2)}")
            else:
                for j in range(8): r.append(f"v_mul_f32 v{T[j]}, {NLOG2E}, v{G[j]}")
                for j in range(8): r += [f"v_exp_f32 v{T[j]}, v{T[j]}", f"v_mul_f32 v{G[j]}, v{G[j]}, v{Uu[j]}"]
                for j in range(8): r.append(f"v_add_f32 v{T[j]}, 1.0, v{T[j]}")
                for j in range(8): r.append(f"v_rcp_f32 v{T[j]}, v{T[j]}")
                for j in range(8): r.append(f"v_mul_f32 v{G[j]}, v{G[j]}, v{T[j]}")
            o = Uu[0] if k % 2 == 0 else Uu[4]; k += 1
            for j in range(4): r.append(f"v_cvt_pk_bf16_f32 v{o+j}, v{G[2*j]}, v{G[2*j+1]}")
            if z == 0: r.append(f"s_add_u32 s{sT2}, s{sks}, {h2*4096}")
            r.append(I(f"buffer_store_dwordx4 {vr(o)}, v{vHH}, s[{sWS}:{sWS+3}], s{sT2} offen offset:{z*512} sc1", tok=tokname))
    return r

def step_reads(blk, s, par):
    r = []
    if blk == "U":
        i, sh2, sh = s // 4, (s >> 1) & 1, s & 1
        off = i*20480 + sh2*10240 - (61440 if i >= 3 else 0)
        for cf in range(5):
            r.append(f"ds_read_b128 {ar(FB(par, cf))}, v{vRU[sh]} offset:{off + cf*1024}")
    elif blk == "A":
        m, sp = s // 2, s & 1
        for hf in range(2):
            for h2 in range(2):
                for mu in range(2):
                    for jj in range(2):
                        r.append(f"ds_read_b64_tr_b16 {ar(FB(par, hf*4+h2*2+mu) + 2*jj, 2)}, v{vRA[h2]} offset:{(m % 4)*16384 + (2*sp+mu)*4096 + hf*1024 + jj*512}")
    else:
        m, sd = 10 + s // 2, s & 1
        for s2 in range(2):
            for hf in range(2):
                for mu in range(2):
                    for jj in range(2):
                        r.append(f"ds_read_b64_tr_b16 {ar(FB(par, s2*4+hf*2+mu) + 2*jj, 2)}, v{vRB2 if BSLOT[m] >= 4 else vRB} offset:{(BSLOT[m] % 4)*16384 + (2*sd+mu)*4096 + s2*2048 + hf*512 + jj*256}")
    return r

def step_mfma(blk, s, par):
    r = []
    if blk == "U":
        for cf in range(5):
            for f in range(2):
                d = vr(U(cf, f)); c = "0" if s == 0 else d
                r.append(f"v_mfma_f32_16x16x32_bf16 {d}, {vr(X(f, s))}, {ar(FB(par, cf))}, {c}")
    elif blk == "A":
        for hf in range(2):
            for h2 in range(2):
                for mu in range(2):
                    d = ar(ACCA(mu, h2), 16); c = "0" if (s == 0 and hf == 0) else d
                    r.append(f"v_mfma_f32_32x32x16_bf16 {d}, {ar(FB(par, hf*4+h2*2+mu))}, {vr(X(hf, s))}, {c}")
    else:
        for s2 in range(2):
            for hf in range(2):
                for mu in range(2):
                    d = ar(ACCB(mu), 16); c = "0" if (s == 0 and hf == 0 and s2 == 0) else d
                    r.append(f"v_mfma_f32_32x32x16_bf16 {d}, {ar(FB(par, s2*4+hf*2+mu))}, {vr(X(hf, 2*s+s2))}, {c}")
    return r

def swaps(s): return [f"v_permlane16_swap_b32 v{X(0, s)+k}, v{X(1, s)+k}" for k in range(4)]

def stage_of(blk, s):
    return ("U", s // 4) if blk == "U" else (("M", s // 2) if blk == "A" else ("M", 10 + s // 2))

def cost(i):
    if i.cls in ("pseudo", "label"): return 0
    if i.cls == "trans": return 2
    if i.cls == "vmem": return 2
    return 1

class Feed(list):
    def append(self, i): EM[0].feed(i)

class Queue:
    def __init__(self): self.q = []; self.hold = 0
    def add(self, lst, deadline):
        if "q" in opt.skip:
            lst = [t for t in II(lst) if t.cls in ("vmem",) or t.op.startswith("s_") or t.cls in ("pseudo", "label") or t.op.startswith("v_cmp") or t.op.startswith("v_readfirst") or t.op.startswith("v_accvgpr_read") and "a18" in t.text + "a19"]
        for t in II(lst): self.q.append((t, deadline))
    def _region(self, out):
        i = self.q[0][0]
        end = "@endarm" if i.op == "@arm" else "@raw_end"
        while True:
            j = self.q.pop(0)[0]; out.append(j)
            if j.cls == "pseudo" and j.op == end: break
        while self.q and self.q[0][0].cls == "label": out.append(self.q.pop(0)[0])
    def need(self, gap):
        best = 0; acc = 0
        for t, d in self.q:
            acc += cost(t)
            left = d - gap + 1
            if left <= 0: best = max(best, acc)
            else: best = max(best, -(-acc // left))
        return best
    def pop(self, n, gap):
        out = Feed()
        n = max(n, self.need(gap))
        while self.q and (n > 0 or self.q[0][1] <= gap):
            i = self.q[0][0]
            if i.cls == "pseudo" and i.op == "@gap":
                self.q.pop(0); continue
            if self.q[0][1] > gap:
                look = [i] + ([x for x, d in self.q[1:12] if x.cls == "pseudo"][:1] if i.op.startswith("s_cmp") else [])
                if i.op.startswith("s_cmp"): look += [x for x, d in self.q[1:4]]
                if max(EM[0].stall(x) for x in look) > opt.thr: break
            if i.cls == "pseudo" and i.op in ("@arm", "@raw_begin"):
                self._region(out); n -= 4
                continue
            if i.cls == "branch" or i.op.startswith("s_cmp") or i.op.startswith("s_bitcmp") or i.op.startswith("v_cmp"):
                out.append(self.q.pop(0)[0])
                while self.q:
                    k = self.q[0][0]
                    if k.op.startswith("s_cselect") or k.op.startswith("v_cndmask") or k.cls == "branch": out.append(self.q.pop(0)[0])
                    elif k.op in ("@arm", "@raw_begin"): self._region(out); n -= 4
                    else: break
                n -= 1
                continue
            self.q.pop(0); out.append(i)
            n -= cost(i)
        return out
    def flush(self):
        out = [i for i, d in self.q if not (i.cls == "pseudo" and i.op == "@gap")]
        self.q = []; self.hold = 0
        return out

ACCY = [("a", 4*k) for k in range(20)]
ACCO = [("v", 96 + 4*k) for k in range(20)]
A_SLOTS = [("a", 80 + 4*k) for k in range(20)]
W_SLOTS = [("a", 196 + 4*k) for k in range(15)] + [("a", 160 + 4*k) for k in range(5)] + [("v", 176 + 4*k) for k in range(20)]
NWG = 8
def rg(t, c=4): return f"{t[0]}[{t[1]}:{t[1]+c-1}]"
vA2 = [3, 4, 5, 6]; vPW = [7, 8, 9]; vPR = 11; vOUT = 13; vXO = 14; vSTA = 15; vDS = 16
vXR = list(range(56, 76)); vY = list(range(76, 96)); vDK = [17, 18, 19, 20, 21]; vST = list(range(32, 40)); vXD2 = [22, 23, 24]; vXL = 25
L_X2 = L_PRIV
NSTEP = 22
def ptr_init(which, part, st):
    p, s0, e0 = (sAP, sAS, sAE) if which == "A" else (sWP, sWB, sWE)
    stride = 4096 if which == "A" else 5120
    base = sP2A if which == "A" else sP2W
    n, k0, rot = (10, 0, sRY) if part == "y" else (12, 40, sRO)
    return [f"s_mul_i32 s{s0}, s{sW}, {n*stride}", f"s_add_u32 s{s0}, s{s0}, s{base}", f"s_add_u32 s{s0}, s{s0}, {k0*stride}",
            f"s_add_u32 s{e0}, s{s0}, {n*stride}", f"s_mul_i32 s{p}, s{rot}, {stride}", f"s_add_u32 s{p}, s{p}, s{s0}"]
def ptr_step(which):
    p, s0, e0 = (sAP, sAS, sAE) if which == "A" else (sWP, sWB, sWE)
    stride = 4096 if which == "A" else 5120
    return [f"s_add_u32 s{p}, s{p}, {stride}", f"s_cmp_eq_u32 s{p}, s{e0}", f"s_cselect_b32 s{p}, s{s0}, s{p}"]
def p2_wload(st):
    r = []
    if st == 0: r += ptr_init("W", "y", st)
    elif st == 10: r += ptr_init("W", "o", st)
    else: r += ptr_step("W")
    for e in range(5):
        slot = W_SLOTS[(st % NWG) * 5 + e]
        if e < 4: r.append(I(f"buffer_load_dwordx4 {rg(slot)}, v{vL16}, s[{sWS}:{sWS+3}], s{sWP} offen offset:{e*1024} sc1", tok="W"))
        else: r.append(I(f"buffer_load_dwordx4 {rg(slot)}, v{vW4}, s[{sWS}:{sWS+3}], s{sWP} offen sc1", tok="W"))
    return r
def p2_aload(st):
    r = []
    if st == 0: r += ptr_init("A", "y", st)
    elif st == 10: r += ptr_init("A", "o", st)
    else: r += ptr_step("A")
    for jj in range(4):
        r.append(I(f"buffer_load_dwordx4 {rg(A_SLOTS[(st % 5)*4 + jj])}, v{vA2[jj]}, s[{sWS}:{sWS+3}], s{sAP} offen sc1", tok="A"))
    return r
def p2_setup():
    r = []
    for jj in range(4):
        r += [f"s_add_u32 s{sT2}, s{sW}, {jj}", f"s_and_b32 s{sT2}, s{sT2}, 3", f"s_lshl_b32 s{sT3}, s{sT2}, 10", f"v_add_u32 v{vA2[jj]}, s{sT3}, v{vL16}"]
    return r
def p2_setup2():
    r = []
    for jj in range(1, 4):
        r += [f"s_add_u32 s{sT2}, s{sW}, {jj}", f"s_and_b32 s{sT2}, s{sT2}, 3",
              f"s_mul_i32 s{sT3}, s{sT2}, 15360", f"s_add_u32 s{sT3}, s{sT3}, {(3-jj)*5120}", f"v_add_u32 v{vPW[jj-1]}, s{sT3}, v{vL16}"]
    r += [f"s_mul_i32 s{sT3}, s{sW}, 15360", f"v_add_u32 v{vPR}, s{sT3}, v{vL16}"]
    return r

def groups(lst):
    out = []; cur = []
    for t in II(lst):
        cur.append(t)
        if t.cls == "vmem": out.append(cur); cur = []
    if cur: out.append(cur)
    return out
def gstall(grp):
    return max([EM[0].stall(t) for t in grp if t.cls == "vmem" or t.op == "@waitvm"] + [0])

def phase1_blocks():
    Q = Queue()
    seq = [("U", s) for s in range(20)] + [("A", s) for s in range(20)] + [("B", s) for s in range(10)]
    gap0 = []; g = 0
    for blk, s in seq:
        gap0.append(g); g += {"U": 10, "A": 8, "B": 8}[blk]
    gap0.append(g)
    def stage_end(kind, idx):
        n = [k for k, (b, s) in enumerate(seq) if stage_of(b, s) == (kind, idx)][-1]
        return gap0[n]
    L(delay("a", 255, 0, 500)); L(delay("b", 31, 5, 700))
    L(["@waitvm U0", "s_barrier"])
    L(stamp("U start"))
    L(step_reads("U", 0, 0))
    later = []
    def lat(gs, dl):
        for x in gs: later.append((II(x), dl))
    lat([nonce_publish()], 4)
    lat([u_piece(4, cf) for cf in range(5)], stage_end("U", 1))
    for n, (blk, s) in enumerate(seq):
        par = n & 1
        mf = step_mfma(blk, s, par)
        nxt = seq[n + 1] if n + 1 < len(seq) else None
        rd = II(step_reads(nxt[0], nxt[1], par ^ 1)) if nxt else []
        if rd: rd[-1].tok = f"rd{n+1}"
        boundary = nxt is None or stage_of(*nxt) != stage_of(blk, s)
        gaps = [[] for _ in mf]
        start = 0
        pre = []
        cap = opt.capU if blk == "U" else opt.capM
        if blk == "U" and s == 11: pre += [f"v_add_u32 v{vRU[0]}, 61440, v{vRU[0]}"]
        if blk == "U" and s == 12: pre += [f"v_add_u32 v{vRU[1]}, 61440, v{vRU[1]}"]
        if blk == "A" and s == 0:
            Q.add(nonce_get(), gap0[n] + 6)
            Q.add(scan_P12(), stage_end("M", opt.X_stage) - 2)
        if blk == "B" and s == 0:
            Q.add(swiglu(ACCA, [0, 1], sKSA, "HHA"), gap0[-1] - 2)
        post = []; plat = []
        if boundary:
            kind, idx = stage_of(blk, s)
            start = 1
            here = gap0[n]; nx1 = here + (40 if blk == "U" else 16)
            if kind == "U" and idx == 2:
                assert not any(x.tok == "RL" for gq, d in later for x in gq)
                post += [(const_tables(), stage_end("U", 4) - 12), (stats_store(), stage_end("U", 4) - 8), (nonce_load(), stage_end("U", 4) - 4)]
            b = []
            if nxt is not None:
                nk, ni = stage_of(*nxt)
                b.append(I(f"@waitboth {nk}{ni}"))
            else:
                b.append(I("@waitds0"))
            if kind == "M" and idx == opt.F_stage: b += II(["@waitvm RLS", "@waitvm stat"])
            if kind == "M" and idx == opt.H_stage: b += II(["@waitvm HST"])
            b.append(I("s_barrier"))
            if (opt.stamps or opt.probe) and (opt.fine or (kind, idx) in (("U", 4), ("M", 9), ("M", 14))): b += II(stamp(f"{kind}{idx} end"))
            gaps[0] += b
            if kind == "U" and idx < 4: plat.append((groups(dma_M(idx)), nx1))
            if kind == "U" and idx == 0: plat.append((relayout_dma(), stage_end("U", 2) - 2))
            if kind == "M" and idx == opt.F_stage: plat.append((groups(flag_store(WS_FLW, sN, sRT)), here + 6))
            if kind == "M" and idx == opt.H_stage: plat.append((groups(flag_store(WS_FLH, sC, sG)), here + 6))
            if kind == "M" and idx + 4 <= 9: plat.append((groups(dma_M(idx + 4)), nx1))
            if kind == "M" and idx == 0: plat.append(([mlp_dma_addr("B")], nx1))
            if kind == "M" and idx == opt.L_stage: plat.append((groups(lb_loads()), nx1))
            if kind == "M" and idx in BISSUE: plat.append((groups(dma_M(BISSUE[idx])), nx1 + 8))
            if kind == "M" and idx == opt.C_stage:
                assert not any("a[180:183]" in x.text for gq, d in later for x in gq)
                post.append((scan_P4(), stage_end("M", opt.Y_stage) - 2))
            if kind == "M" and idx == opt.X_stage:
                post.append((scan_P3(), stage_end("M", opt.X_stage + 1) - 4))
                post.append((relayout_finish(), stage_end("M", opt.F_stage) - 10))
            if kind == "M" and idx == opt.Y_stage: gaps[0] += II(delay("d", 63, 17, 900))
            if kind == "M" and idx == opt.Y_stage: post.append((scan_P56(), stage_end("M", opt.H_stage) - 10))
            if kind == "M" and idx == opt.W_stage - 1 and opt.nearly:
                plat.append((groups(flag_load(WS_FLW, sN, 0, 31)), nx1))
            if kind == "M" and idx == opt.W_stage and opt.nearly:
                plat.append(([flag_check(WS_FLW, sN, 0, 31)], nx1 + 8))
                for st in range(opt.nearly): plat.append((groups(p2_wload(st)), 10**6))
            if kind == "M" and idx == 13: plat.insert(0, (groups(flag_load(WS_FLH, sRT, 1, 15)), 10**6))
        ng = len(mf)
        if rd:
            if nxt[0] == "U": span = 5
            elif blk == "U": span = 7
            else: span = opt.span
            for k, t in enumerate(rd): gaps[start + (k * span) // len(rd)].append(t)
        if nxt and nxt[0] == "A":
            for k, t in enumerate(II(swaps(nxt[1]))): gaps[ng - 5 + k].append(t)
        if blk == "U" and opt.pre_norm <= s + 1 < 20 and "n" not in opt.skip:
            nq = II(norm_step(1, s + 1, False, vT[20:24]))
            for k, t in enumerate(nq): gaps[(k * ng) // len(nq)].append(t)
        L(pre)
        E(f"@waitds rd{n}")
        for k, t in enumerate(mf):
            E(t)
            L(gaps[k])
            gap = gap0[n] + k
            used = sum(cost(x) for x in gaps[k])
            if boundary and k == 0:
                for lst, dl in post: Q.add(lst, dl)
                for gs, dl in plat:
                    if gs and any("v29" in x.text for x in II(gs[0])) and dl == 10**6:
                        cut_at = next((q for q, (gq, d) in enumerate(later) if gq[0].op.startswith("s_add_u32") and f"s{sWP}," in gq[0].text), len(later))
                        for x in reversed(gs): later.insert(cut_at, (II(x), here + 30))
                    else: lat(gs, dl)
                continue
            slot = (k % 2 == 1) if blk == "U" else (k >= opt.span - 1)
            overdue = any(d - gap <= q for q, (gq, d) in enumerate(later))
            if later and (slot or overdue):
                grp = later[0][0]
                if overdue or gstall(grp) <= opt.thr:
                    later.pop(0); L(grp); used += sum(cost(x) for x in grp)
            Q.pop(cap - used, gap)
    L(Q.flush())
    return [gq for gq, d in later]

def p2_mfma(st):
    r = []
    first = st in (0, 10)
    acc = ACCY if st < 10 else ACCO
    for jj in range(4):
        for e in range(5):
            d = rg(acc[jj*5+e]); c = "0" if first else d
            r.append(f"v_mfma_f32_16x16x32_bf16 {d}, {rg(A_SLOTS[(st % 5)*4+jj])}, {rg(W_SLOTS[(st % NWG)*5+e])}, {c}")
    return r

def p2_partials(base, acc):
    return [f"ds_write_b128 v{vPW[jj-1]}, {rg(acc[jj*5+e])} offset:{base + e*1024}" for jj in range(1, 4) for e in range(5)]

def p2_epi_addr():
    dn, q, t = vT[8], vT[9], vT[10]
    r = [f"v_and_b32 v{dn}, 15, v{vLANE}", f"v_lshrrev_b32 v{q}, 4, v{vLANE}",
         f"s_lshl_b32 s{sT2}, s{sRT}, 6", f"s_lshr_b32 s{sT3}, s{sW}, 1", f"s_lshl_b32 s{sT3}, s{sT3}, 5", f"s_add_u32 s{sT2}, s{sT2}, s{sT3}",
         f"s_and_b32 s{sT3}, s{sW}, 1", f"s_lshl_b32 s{sT3}, s{sT3}, 2", f"s_add_u32 s{sT2}, s{sT2}, s{sT3}",
         f"s_lshl_b32 s{sT4}, s{sW}, 13", f"s_add_u32 s{sT4}, s{sT4}, {L_X2}",
         f"v_mul_u32_u24 v{vXL}, 640, v{q}", f"v_lshl_add_u32 v{vXL}, v{dn}, 1, v{vXL}", f"v_add_u32 v{vXL}, s{sT4}, v{vXL}",
         f"v_lshl_add_u32 v{q}, v{q}, 3, s{sT2}",
         f"s_mul_i32 s{sT3}, s{sN}, 80", f"v_add_u32 v{dn}, s{sT3}, v{dn}",
         f"v_mul_u32_u24 v{t}, 640, v{q}", f"v_add_u32 v{t}, v{t}, v{dn}",
         f"v_lshlrev_b32 v{vOUT}, 2, v{t}", f"v_lshlrev_b32 v{vSTA}, 3, v{q}", f"v_lshlrev_b32 v{vDS}, 1, v{dn}",
         f"s_mul_i32 s{sT2}, s{sT2}, 1280", f"s_mul_i32 s{sT3}, s{sN}, 160", f"s_add_u32 s{sT5}, s{sT2}, s{sT3}", f"s_add_u32 s{sT5}, s{sT5}, 4096",
         f"s_mov_b32 s{sT3}, 6554"]
    a, b, c = vT[11], vT[12], vT[13]
    for p in range(3):
        r += [f"v_add_u32 v{a}, {64*p}, v{vLANE}", f"v_mul_u32_u24 v{b}, s{sT3}, v{a}", f"v_lshrrev_b32 v{b}, 16, v{b}",
              f"v_mul_u32_u24 v{c}, 10, v{b}", f"v_sub_u32 v{c}, v{a}, v{c}", f"v_lshlrev_b32 v{c}, 4, v{c}",
              f"v_and_b32 v{a}, 12, v{b}", f"v_add_u32 v{b}, v{a}, v{b}", f"v_mul_u32_u24 v{b}, 1280, v{b}", f"v_add_u32 v{vXD2[p]}, v{b}, v{c}"]
    r += [f"v_mov_b32 v{a}, {OOB}", f"v_cmp_gt_u32 vcc, 32, v{vLANE}", f"v_cndmask_b32 v{vXD2[2]}, v{a}, v{vXD2[2]}, vcc"]
    return r
def p2_epi_loads():
    r = []
    for p in range(3):
        r += [f"s_add_u32 m0, s{sT4}, {p*1024}", "s_nop 0", I(f"buffer_load_dwordx4 v{vXD2[p]}, s[{sX}:{sX+3}], s{sT5} offen lds", tok="XR")]
    for e in range(5):
        r.append(f"global_load_ushort v{vDK[e]}, v{vDS}, s[{pDSK}:{pDSK+1}] offset:{e*32}")
    r += [f"s_mov_b32 s{sD1}, {WS_STAT}",
          f"buffer_load_dwordx4 {vr(vST[0])}, v{vSTA}, s[{sWS}:{sWS+3}], s{sD1} offen sc1",
          f"buffer_load_dwordx4 {vr(vST[4])}, v{vSTA}, s[{sWS}:{sWS+3}], s{sD1} offen offset:16 sc1"]
    return r
def p2_xread():
    r = ["@waitvm XR"]
    for e in range(5):
        for rr in range(4):
            r.append(f"ds_read_u16 v{vXR[e*4+rr]}, v{vXL} offset:{rr*160 + e*32}")
    return r

def p2_yfinish():
    r = []
    T = vT[8:24]
    for e in range(5): r.append(f"v_lshlrev_b32 v{vDK[e]}, 16, v{vDK[e]}")
    for e in range(5):
        b = T[4*(e % 2)]; b2 = T[8 + 4*(e % 2)]
        r.append(f"ds_read_b128 {vr(b)}, v{vPR} offset:{L_YP + e*1024}")
        r.append(f"ds_read_b128 {vr(b2)}, v{vPR} offset:{L_YP + 5120 + e*1024}")
        for rr in range(4): r.append(f"v_lshlrev_b32 v{vXR[e*4+rr]}, 16, v{vXR[e*4+rr]}")
        r.append("@gap 2")
        for rr in range(4): r.append(f"v_add_f32 v{vY[e*4+rr]}, v{vY[e*4+rr]}, v{b+rr}")
        r.append(f"ds_read_b128 {vr(b)}, v{vPR} offset:{L_YP + 10240 + e*1024}")
        for rr in range(4): r.append(f"v_add_f32 v{vY[e*4+rr]}, v{vY[e*4+rr]}, v{b2+rr}")
        for rr in range(4): r.append(f"v_fma_f32 v{b2+rr}, v{vXR[e*4+rr]}, v{vST[2*rr]}, v{vST[2*rr+1]}")
        for rr in range(4): r.append(f"v_fmac_f32 v{vY[e*4+rr]}, v{b2+rr}, v{vDK[e]}")
        for rr in range(4): r.append(f"v_add_f32 v{vY[e*4+rr]}, v{vY[e*4+rr]}, v{b+rr}")
    r += [f"v_add_u32 v{v}, {L_OP}, v{v}" for v in vPW + [vPR]]
    return r

def p2_final():
    r = []
    O = list(range(96, 116)); B = list(range(176, 236))
    for k in range(3):
        for e in range(5):
            r.append(f"ds_read_b128 {vr(B[k*20+e*4])}, v{vPR} offset:{k*5120 + e*1024}")
    for k in range(3):
        for j in range(0, 20, 2):
            r.append(f"v_pk_add_f32 {vr(O[j], 2)}, {vr(O[j], 2)}, {vr(B[k*20+j], 2)}")
    T = B[0:20]
    for j in range(0, 20, 2): r.append(f"v_pk_mul_f32 {vr(T[j], 2)}, {vr(O[j], 2)}, s[{sEX0}:{sEX0+1}]")
    for j in range(20): r.append(f"v_exp_f32 v{T[j]}, v{T[j]}")
    for j in range(0, 20, 2): r.append(f"v_pk_mul_f32 {vr(O[j], 2)}, {vr(O[j], 2)}, {vr(vY[j], 2)}")
    for j in range(0, 20, 2): r.append(f"v_pk_add_f32 {vr(T[j], 2)}, {vr(T[j], 2)}, s[{sEX2}:{sEX2+1}]")
    for rr in range(4):
        r.append(f"s_mov_b32 s{sT2}, {rr*2560}")
        for e in range(5): r.append(f"v_rcp_f32 v{T[e*4+rr]}, v{T[e*4+rr]}")
        for e in range(5):
            j = e*4 + rr
            r += [f"v_fma_f32 v{O[j]}, v{O[j]}, v{T[j]}, v{vXR[j]}",
                  f"buffer_store_dword v{O[j]}, v{vOUT}, s[{sOUT}:{sOUT+3}], s{sT2} offen offset:{e*64} {opt.out_flags}"]
    return r

def weave(main, extra, every=1):
    groups = []; cur = []
    for t in II(extra):
        cur.append(t)
        if t.cls == "vmem": groups.append(cur); cur = []
    if cur: groups.append(cur)
    out = []
    for k, t in enumerate(II(main)):
        out.append(t)
        if groups and k % every == every - 1: out += groups.pop(0)
    for g_ in groups: out += g_
    return out

def phase2(left):
    L(stamp("B mfma end"))
    L(delay("c", 15, 9, 600))
    L([f"s_mov_b32 s{sEX0}, {NLOG2E}", f"s_mov_b32 s{sEX1}, {NLOG2E}", f"s_mov_b32 s{sEX2}, 1.0", f"s_mov_b32 s{sEX3}, 1.0"])
    L(p2_setup())
    pend = list(left)
    if not opt.nearly:
        L(flag_load(WS_FLW, sN, 0, 31)); L(flag_check(WS_FLW, sN, 0, 31)); L(flag_load(WS_FLH, sRT, 1, 15))
    while pend and any("v29" in x.text for gq in pend for x in gq): L(pend.pop(0))
    sw = II(swiglu(ACCB, [0], sKSB, "HHB", packed=True))
    L(sw[:16])
    L(flag_check(WS_FLH, sRT, 1, 15))
    nextW = opt.nearly; nextA = 0
    def want(upto, limW=None):
        nonlocal nextW, nextA
        while nextA <= upto or nextW <= (upto if limW is None else limW):
            if nextW <= min(nextA, NSTEP - 1) or nextA > upto:
                if nextW >= NSTEP: break
                pend.extend(groups(p2_wload(nextW))); nextW += 1
            else:
                pend.extend(groups(p2_aload(nextA))); nextA += 1
    want(opt.look - 1)
    for t in sw[16:]:
        L([t])
        if pend and t.cls != "vmem" and gstall(pend[0]) <= 0: L(pend.pop(0))
    L(stamp("epi B done"))
    L(p2_setup2()); L(p2_epi_addr())
    Q = Queue()
    g = 0
    for st in range(NSTEP):
        mf = p2_mfma(st)
        if st == 10 - opt.look:
            L(flag_check(WS_FLHH, sRT, 1, 15)); L(stamp("hh ready"))
        if st + opt.look < NSTEP: want(st + opt.look)
        if st == 2: pend.extend(groups(p2_epi_loads()))
        if st == 10 - opt.look - 2: pend.extend(groups(flag_load(WS_FLHH, sRT, 1, 15)))
        if st == 10:
            L(stamp("y done"))
            Q.add([f"v_accvgpr_read_b32 v{vY[j]}, a{j}" for j in range(20)] + p2_partials(L_YP, ACCY), g + 58)
            Q.add(p2_xread(), g + 78)
        if st == 13:
            L(Q.flush()); L(["@waitds0", "s_barrier"])
            Q.add(p2_yfinish(), g + 140)
        ng = len(pend)
        per = -(-ng // 19)
        for k, t in enumerate(mf):
            E(t)
            used = 0
            if k >= 1:
                for _ in range(per):
                    if pend: L(pend.pop(0)); used += 2
            if st == opt.p2pos and k == 19:
                L(["@waitvm HHB", "s_barrier"]); L(flag_store(WS_FLHH, sC, sG)); L(stamp("flags out"))
            Q.pop(2 - used, g); g += 1
        while pend: L(pend.pop(0))
    L(Q.flush())
    L(p2_partials(0, ACCO))
    L(["@waitds0", "s_barrier"])
    L(stamp("out done"))
    L(p2_final())
    L(stamp("end")); L(stamp("cyc1", True))

def diag_out():
    if not opt.diag: return
    L([f"s_lshl_b32 s{sT2}, s2, 2", f"s_add_u32 s{sT2}, s{sT2}, s{sW}", f"s_lshl_b32 s{sT2}, s{sT2}, 2", f"s_add_u32 s{sT2}, s{sT2}, {WS_STAMP}",
       f"v_mov_b32 v{vT[0]}, s{sNONCE}", f"buffer_store_dword v{vT[0]}, off, s[{sWS}:{sWS+3}], s{sT2}"])

def stamps_out():
    if opt.probe:
        L(["@raw_begin", "L_spin:", f"s_memrealtime s[{sSTAMP}:{sSTAMP+1}]", "s_waitcnt lgkmcnt(0)", f"s_sub_u32 s{sT2}, s{sSTAMP}, s3",
           f"s_cmp_lt_u32 s{sT2}, 5000", "s_cbranch_scc1 L_spin", "@raw_end"])
    if not opt.stamps: return
    L([f"s_lshl_b32 s{sT2}, s2, 2", f"s_add_u32 s{sT2}, s{sT2}, s{sW}", f"s_lshl_b32 s{sT2}, s{sT2}, 8", f"s_add_u32 s{sT2}, s{sT2}, {WS_STAMP}",
       f"v_lshlrev_b32 v{vT[0]}, 2, v{vLANE}", f"buffer_store_dword v0, v{vT[0]}, s[{sWS}:{sWS+3}], s{sT2} offen"])

def build():
    EM[0] = Emitter(lines_of, lat_of); lab[0] = 0; stamp_n[0] = 0; stamp_names.clear(); ST.n = 0
    prologue()
    L(scan_addr()); L(mlp_read_addr())
    L(stamp("issued")); L(stamp("cyc0", True))
    E(f"v_mov_b32 v{vONES}, 0x3f803f80")
    if opt.mstat: L([f"v_accvgpr_write_b32 a{aONE+k}, v{vONES}" for k in range(4)])
    constants()
    L(const_park())
    nonce_seed()
    L(relayout_issue())
    L(stamp("consts"))
    tail = x_arrive(0, None, 40)
    L(stamp("x0 in"))
    E("s_barrier")
    L(skew("0"))
    L(tail)
    L(x_stats(0))
    L([f"v_add_u32 v{vRX[0]}, 81920, v{vRX[0]}", f"v_add_u32 v{vRX[1]}, 81920, v{vRX[1]}"])
    nrm = []
    for s in range(20): nrm += norm_step(0, s, True, vT[20:24])
    tail = x_arrive(1, nrm)
    L(stamp("x1 in"))
    L(weave(tail, ST.next(4), 4))
    L(weave(x_stats(1), ST.next(4), 8))
    L(mlp_dma_addr("A"))
    pn = []
    for s in range(opt.pre_norm): pn += norm_step(1, s, True, vT[20:24])
    L(weave(pn, ST.next(20), 8))
    assert ST.n == 60
    if opt.t_w13: L(w13_touch())
    phase2(phase1_blocks())
    diag_out()
    stamps_out()
    E("s_endpgm")
    return EM[0].out

HEADER = """; Kernarg layout for this problem (128 bytes, ptrs only, base s[0:1]):
; @launch grid=(256,1,1) block=(256,1,1) lds=163840
.amdgcn_target "amdgcn-amd-amdhsa--gfx950"
.text
.globl {k}
.p2align 8
.type {k},@function
{k}:
"""
FOOTER = """
L_exit:
    s_endpgm
L_codeend:
    .fill 64, 4, 0xbf800000
.section .rodata,"a"
.p2align 6
.amdhsa_kernel {k}
  .amdhsa_next_free_vgpr 512
  .amdhsa_next_free_sgpr 102
  .amdhsa_accum_offset 256
  .amdhsa_group_segment_fixed_size 0
  .amdhsa_kernarg_size 128
  .amdhsa_user_sgpr_count 2
  .amdhsa_user_sgpr_kernarg_segment_ptr 1
  .amdhsa_system_sgpr_workgroup_id_x 1
  .amdhsa_float_denorm_mode_32 3
.end_amdhsa_kernel
"""
def text():
    prog = build()
    body = "\n".join(("" if i.cls == "label" else "    ") + i.text for i in prog)
    return HEADER.format(k=KNAME) + body + FOOTER.format(k=KNAME), prog

if __name__ == "__main__":
    out = sys.argv[1]
    for a in sys.argv[2:]:
        k, v = a.split("=")
        cur = getattr(opt, k)
        setattr(opt, k, v.replace("_", " ") if isinstance(cur, str) else (v in ("1", "True") if isinstance(cur, bool) else type(cur)(float(v))))
    t, prog = text()
    open(out, "w").write(t)
    print(stats(prog), len(prog))
    if opt.sim:
        em = EM[0]; prev = 0
        for j, (n, m) in enumerate(zip(stamp_names, em.marks)):
            big = sorted([x for x in em.stalls if x[1] == j], reverse=True)
            print(f"{n:12s} {m:7.0f} ({m-prev:5.0f}) stalls {sum(x[0] for x in big):5.0f} :", "; ".join(f"{x[0]:.0f} {x[2][:44]}" for x in big[:4]))
            prev = m
    if opt.stamps:
        import json
        json.dump(stamp_names, open(out + ".stamps.json", "w"))
```

```python
import sys, os
sys.path.insert(0, os.path.dirname(os.path.abspath(__file__)))
from asmlib import I, stats, insert_nops, Emitter

KNAME = "recurrent_scan__ssm_conv_s5__glu_gated_swiglu__prompt_kernel"

class Opt:
    fine = False
    pk0 = True
    xhit = False
    chain = 0
    sim = False
    fakehit = ''
    delay = 0
    diag = False
    cycles = False
    skip = ''
    probe = ''
    stamps = False
    codepf = True
    krot = True
    prot = False
    win = 8
    pre_norm = 1
    skew = True
    mstat = True
    t_x1 = False
    t_w13 = False
    b10 = 1
    slack = 22
    rl_pos = 0
    capU = 2
    capM = 5
    span = 5
    X_stage = 2
    L_stage = 5
    C_stage = 6
    Y_stage = 7
    H_stage = 12
    F_stage = 5
    W_stage = 8
    nearly = 10
    rl_nt = True
    out_flags = ""
    x_flags = ""
    w_flags = ""
    p1map = 0
    p2map = 0
    p2pos = 1
    hchk = 62
    HL_stage = 12
    look = 2
    lookW = 6
    thr = 16
    thrm = 100
    slot0 = 3
    earlyA = False
    roty = False
    latA = 640
    latW = 620
opt = Opt()

WS_A2 = 0
WS_W2P = 0xB00000
WS_S = 0xF00000
WS_STAT = 0xF40000
WS_FLW = 0xF50000
WS_FLH = 0xF51000
WS_FLHH = 0xF52000
WS_SEED = 0xF53000
WS_STAMP = 0xF60000
WS_SIZE = 0x1000000
OOB = 0x40000000

L_RL = 102400
L_PRIV = 122880
PV_COL, PV_CH, PV_E = 0, 1280, 4352
L_TT = 155648
L_LB = 159744
L_YP = 0
L_OP = 61440

sX, sWU, sWM, sWS, sOUT, sRL, sDBG = 36, 40, 44, 48, 52, 56, 60
(sW, sC, sG, sRT, sN, sNONCE, sT0, sT1, sT2, sT3, sXOFF, sUOFF, sMOFF, sMOFFB, sRLOFF, sRLST,
 sA2H, sKSA, sKSB, sSST, sLB0, sLB1, sLB2, sLB3, sEX0, sEX1, sEX2, sEX3, sM0, sM0A, sCNT, sP2A, sP2W, sT4, sT5, sSTATO) = range(64, 100)
sSTAMP = 100
pX, pLRE, pLIM, pBRE, pBIM, pCRE, pCIM, pLDT = 4, 6, 8, 10, 12, 14, 16, 18
pDSK, pBX, pW1, pW3, pW2, pOUT, pDBG, pWS = 20, 22, 24, 26, 28, 30, 32, 34
sKU = [22, 23, 0, 1, 32]
sD0, sD1 = 4, 5
sRY, sRO = 6, 7
sAP, sAS, sAE, sWP, sWB, sWE = 8, 9, 10, 11, 12, 13
sM0U, sSEEDO = 18, 19
sD2 = 31
sHO = [24, 25, 26, 27, 30]

vLANE, vL16 = 1, 2
vRX = [3, 4]; vRU = [5, 6]
vRA = [7, 8]; vRB = 9; vHH = 10; vDU = 11; vW4 = 12
vD = [13, 14, 15, 16]
vXD = vD
vDB = [3, 4, 5, 6]; vRB2 = 11
BSLOT = {10: 4, 11: 5, 12: 2, 13: 3, 14: 0}
BISSUE = {4: (11, 7), 6: (12, 8), 7: (13, 9), 8: (14, 10)}
vUD = [11, 27, 28, 29]
vEW, vER, vCOLR, vCH, vTT, vLB, vTW, vTR, vHST, vSO = range(17, 27)
vWP0, vWP1, vFLAG, vNON = 27, 28, 29, 30
vT = list(range(32, 56))
def U(cf, f): return 56 + (cf * 2 + f) * 4
def X(f, s): return 96 + (f * 20 + s) * 4
def ACCA(mu, h2): return (mu * 2 + h2) * 16
def FB(par, fr): return 64 + par * 32 + fr * 4
def ACCB(mu, h2=0): return 128 + mu * 16
aRL = 160
aS = 180

def vr(n, c=4): return f"v[{n}:{n+c-1}]"
def ar(n, c=4): return f"a[{n}:{n+c-1}]"
def sr(n, c=4): return f"s[{n}:{n+c-1}]"

def lines_of(i):
    t = i.text
    if "ushort" in t: return 1
    if i.tok and i.tok[0] == "M" and int(i.tok[1:]) >= 10: return 16
    if i.tok == "RL": return 16
    if i.tok == "XR": return 11
    if " off," in t and "global" not in t: return 1
    if "dwordx2" in t: return 2
    if "load_dword " in t and "offen" in t: return 1 if "sc1" in t else 32
    if "global_load_dword" in t: return 0
    if "store_dword " in t: return 4 if "offen" in t else 1
    return 8
def lat_of(i):
    t = i.text; tok = i.tok or ""
    cold = 1500
    if "store" in t: return 820 if "sc1" in t else 330
    if tok.startswith("x"): return cold if tok in ("x0_0", "x0_1", "x1_0", "x1_1") else 800
    if tok.startswith("U"): return cold if tok == "U0" else 800
    if tok == "RL": return cold
    if tok.startswith("M"): return cold if tok in ("M0", "M1", "M10") else 520
    if tok == "W": return opt.latW
    if tok == "A": return opt.latA
    if "sc1" in t: return 1000
    return 700
EM = [None]
def E(t, tok=None):
    i = I(t, tok); EM[0].feed(i); return i
def L(lst):
    for t in lst: EM[0].feed(t if isinstance(t, I) else I(t))
def II(lst): return [t if isinstance(t, I) else I(t) for t in lst]

def srd(d, p, nbytes):
    return [f"s_mov_b32 s{d}, s{p}", f"s_and_b32 s{d+1}, s{p+1}, 0xffff", f"s_mov_b32 s{d+2}, {nbytes}", f"s_mov_b32 s{d+3}, 0x20000"]

stamp_n = [0]
stamp_names = []
def stamp(name, cyc=False):
    if opt.probe:
        if name != opt.probe: return []
        return [f"s_memrealtime s[{sSTAMP}:{sSTAMP+1}]", "@waitds0", f"s_mov_b32 s3, s{sSTAMP}"]
    if not opt.stamps: return []
    k = stamp_n[0]; stamp_n[0] += 1
    stamp_names.append(name)
    return [f"s_memtime s[{sSTAMP}:{sSTAMP+1}]" if (cyc or opt.cycles) else f"s_memrealtime s[{sSTAMP}:{sSTAMP+1}]", "@waitds0",
            f"v_writelane_b32 v0, s{sSTAMP}, {k}"]

def cmul(dr, di, ar_, ai, br, bi, t):
    return [f"v_mul_f32 v{t}, v{ai}, v{bi}", f"v_mul_f32 v{di}, v{ai}, v{br}",
            f"v_fma_f32 v{dr}, v{ar_}, v{br}, -v{t}", f"v_fmac_f32 v{di}, v{ar_}, v{bi}"]
def csq(dr, di, r, i, t):
    return [f"v_mul_f32 v{t}, v{i}, v{i}", f"v_mul_f32 v{di}, v{r}, v{i}",
            f"v_fma_f32 v{dr}, v{r}, v{r}, -v{t}", f"v_add_f32 v{di}, v{di}, v{di}"]
def chorner2(dr, di, gr, gi, mr, mi, er, ei):
    return [f"v_fma_f32 v{dr}, v{mr}, v{gr}, v{er}", f"v_fma_f32 v{di}, v{mr}, v{gi}, v{ei}",
            f"v_fma_f32 v{dr}, -v{mi}, v{gi}, v{dr}", f"v_fma_f32 v{di}, v{mi}, v{gr}, v{di}"]

LOG2E = "0x3fb8aa3b"
NLOG2E = "0xbfb8aa3b"
INV2PI = "0.15915494"

def x_piece(n):
    f, S, ih = n // 20, (n % 20) // 2, n & 1
    p = n & 3
    r = []
    if p == 0:
        r = [f"s_add_u32 m0, s{sM0}, {f*81920 + (2*S)*1024}", f"s_add_u32 s{sD1}, s{sKU[S >> 1]}, s{sXOFF}"]
        if f: r.append(f"s_add_u32 s{sD1}, s{sD1}, {4*1280}")
    r.append(I(f"buffer_load_dwordx4 v{vXD[p]}, s[{sX}:{sX+3}], s{sD1} offen offset:{p*1024} {opt.x_flags} lds", tok=f"x{f}_{S}"))
    return r
def u_piece(i, cf):
    r = []
    if cf == 0: r = [f"s_add_u32 m0, s{sM0U}, {i*20480}", f"s_add_u32 s{sD1}, s{sKU[i]}, s{sUOFF}"]
    if cf == 4: r = [f"s_add_u32 m0, s{sM0U}, {i*20480 + 4096}", f"s_add_u32 s{sD1}, s{sD1}, {4*10240}"]
    r.append(I(f"buffer_load_dwordx4 v{vUD[cf & 3]}, s[{sWU}:{sWU+3}], s{sD1} offen offset:{(cf & 3)*1024} {opt.w_flags} lds", tok=f"U{i}"))
    return r
class Stream:
    def __init__(self): self.n = 0
    def next(self, k, limit=60):
        r = []
        for _ in range(k):
            if self.n >= limit: break
            r += x_piece(self.n) if self.n < 40 else u_piece((self.n - 40) // 5, (self.n - 40) % 5)
            self.n += 1
        return r
ST = Stream()

def prologue():
    E(f"s_cmp_ge_u32 s2, 256")
    E("s_cbranch_scc1 L_exit")
    E("s_load_dwordx16 s[4:19], s[0:1], 0")
    E("s_load_dwordx16 s[20:35], s[0:1], 64")
    if opt.stamps or opt.probe == "entry":
        E(f"s_{'memtime' if opt.cycles else 'memrealtime'} s[{sSTAMP}:{sSTAMP+1}]")
    if opt.codepf:
        L(["@raw_begin", "s_cmp_lt_u32 s2, 32", "s_cbranch_scc0 L_nopf", f"s_getpc_b64 s[{sT2}:{sT3}]", "L_pc:",
           f"s_lshl_b32 s{sT4}, s2, 12", f"s_and_b32 s{sT4}, s{sT4}, 0x8000",
           f"v_lshlrev_b32 v{vT[0]}, 7, v0", f"v_add_u32 v{vT[0]}, s{sT4}, v{vT[0]}", f"v_min_u32 v{vT[0]}, L_codeend-L_pc-4, v{vT[0]}",
           f"v_mov_b32 v{vT[1]}, s{sT3}", f"v_add_co_u32 v{vT[0]}, vcc, s{sT2}, v{vT[0]}", "s_nop 1", f"v_addc_co_u32 v{vT[1]}, vcc, 0, v{vT[1]}, vcc",
           f"global_load_dword a230, v[{vT[0]}:{vT[1]}], off", "L_nopf:", "@raw_end"])
    E(f"v_lshrrev_b32 v{vT[0]}, 6, v0")
    E(f"v_and_b32 v{vLANE}, 63, v0")
    E(f"v_readfirstlane_b32 s{sW}, v{vT[0]}")
    E(f"v_lshlrev_b32 v{vL16}, 4, v{vLANE}")
    L([f"s_and_b32 s{sT0}, s2, 7", f"s_lshr_b32 s{sT1}, s2, 3"])
    if opt.p1map == 0:
        L([f"s_and_b32 s{sC}, s{sT0}, 1", f"s_lshl_b32 s{sC}, s{sC}, 3", f"s_and_b32 s{sT2}, s{sT1}, 7", f"s_add_u32 s{sC}, s{sC}, s{sT2}",
           f"s_lshr_b32 s{sG}, s{sT0}, 1", f"s_lshl_b32 s{sG}, s{sG}, 2", f"s_lshr_b32 s{sT2}, s{sT1}, 3", f"s_add_u32 s{sG}, s{sG}, s{sT2}"])
    else:
        L([f"s_and_b32 s{sC}, s{sT0}, 3", f"s_lshl_b32 s{sC}, s{sC}, 2", f"s_and_b32 s{sT2}, s{sT1}, 3", f"s_add_u32 s{sC}, s{sC}, s{sT2}",
           f"s_lshr_b32 s{sG}, s{sT0}, 2", f"s_lshl_b32 s{sG}, s{sG}, 3", f"s_lshr_b32 s{sT2}, s{sT1}, 2", f"s_add_u32 s{sG}, s{sG}, s{sT2}"])
    t0, t1, t2, t3 = vT[0:4]
    L([f"v_lshrrev_b32 v{t0}, 3, v{vLANE}", f"v_and_b32 v{t1}, 7, v{vLANE}", f"v_and_b32 v{t2}, 6, v{t0}",
       f"v_xor_b32 v{t1}, v{t1}, v{t2}", f"v_lshlrev_b32 v{t1}, 4, v{t1}",
       f"v_and_b32 v{t2}, 4, v{t0}", f"v_add_u32 v{t2}, v{t2}, v{t0}",
       f"v_mul_u32_u24 v{vD[0]}, 1280, v{t2}", f"v_add_u32 v{vD[0]}, v{vD[0]}, v{t1}",
       f"v_mul_u32_u24 v{vDU}, 1280, v{t0}", f"v_add_u32 v{vDU}, v{vDU}, v{t1}",
       f"v_add_u32 v{vD[0]}, 4096, v{vD[0]}", f"v_add_u32 v{vD[1]}, {16*1280 - 1024}, v{vD[0]}",
       f"v_add_u32 v{vD[2]}, {128 - 2048}, v{vD[0]}", f"v_add_u32 v{vD[3]}, {16*1280 + 128 - 3072}, v{vD[0]}"])
    L([f"s_mul_i32 s{sT2}, s{sG}, 80", f"v_min_u32 v{t3}, 39, v{vLANE}", f"v_lshlrev_b32 v{t3}, 1, v{t3}", f"v_add_u32 v{t3}, s{sT2}, v{t3}"])
    L([f"s_lshl_b32 s{sXOFF}, s{sC}, 2", f"s_add_u32 s{sXOFF}, s{sXOFF}, s{sW}", f"s_mul_i32 s{sXOFF}, s{sXOFF}, {0 if opt.xhit else 32*1280}",
       f"s_mul_i32 s{sM0}, s{sW}, 20480"])
    if opt.krot:
        L([f"s_add_u32 s{sT4}, s{sC}, s{sG}", f"s_mul_i32 s{sT5}, s{sT4}, 52", f"s_lshr_b32 s{sT5}, s{sT5}, 8", f"s_mul_i32 s{sT5}, s{sT5}, 5",
           f"s_sub_u32 s{sT4}, s{sT4}, s{sT5}", f"s_lshl_b32 s{sT4}, s{sT4}, 8"])
    else:
        E(f"s_mov_b32 s{sT4}, 0")
    E("@waitds0")
    if opt.probe == "entry": E(f"s_mov_b32 s3, s{sSTAMP}")
    if opt.stamps:
        E(f"v_mov_b32 v0, 0")
        E(f"v_writelane_b32 v0, s{sSTAMP}, 0"); stamp_n[0] = 1; stamp_names.append("entry")
    if opt.chain:
        L([f"s_mul_i32 s{sT2}, s2, {60*128}", f"s_add_u32 s{sT2}, s{pW2}, s{sT2}", f"s_addc_u32 s{sT3}, s{pW2+1}, 0", f"v_mov_b32 v{vT[8]}, 0"])
        for k in range(opt.chain):
            L([f"global_load_dword v{vT[9]}, v{vT[8]}, s[{sT2}:{sT3}]", "@waitvm0", f"v_add_u32 v{vT[8]}, 128, v{vT[8]}"])
    E(f"global_load_ushort v{vT[4]}, v{t3}, s[{pLRE}:{pLRE+1}]")
    E(f"global_load_ushort v{vT[5]}, v{t3}, s[{pLIM}:{pLIM+1}]")
    E(f"global_load_ushort v{vT[6]}, v{t3}, s[{pLDT}:{pLDT+1}]")
    L([f"s_sub_u32 s{sX}, s{pX}, 4096", f"s_subb_u32 s{sX+1}, s{pX+1}, 0", f"s_and_b32 s{sX+1}, s{sX+1}, 0xffff",
       f"s_mov_b32 s{sX+2}, {2048*1280 + 4096}", f"s_mov_b32 s{sX+3}, 0x20000"])
    L(srd(sDBG, pDBG, 256))
    for j in range(5):
        L([f"s_add_u32 s{sKU[j]}, s{sT4}, {j*256}", f"s_cmp_ge_u32 s{sKU[j]}, 1280", f"s_cselect_b32 s{sT5}, 1280, 0", f"s_sub_u32 s{sKU[j]}, s{sKU[j]}, s{sT5}"])
        if j == 0: L(ST.next(4))
        if j == 1: L(ST.next(max(0, min(4, opt.win - 4))))
    L(ST.next(max(0, opt.win - 8)))
    if opt.t_x1:
        L([f"v_lshrrev_b32 v{t0}, 1, v{vLANE}", f"v_and_b32 v{t1}, 12, v{t0}", f"v_add_u32 v{t0}, v{t0}, v{t1}", f"v_mul_u32_u24 v{t0}, 1280, v{t0}",
           f"v_and_b32 v{t1}, 1, v{vLANE}", f"v_lshl_add_u32 v{t0}, v{t1}, 7, v{t0}", f"v_mov_b32 v{t1}, {OOB}", f"v_cmp_gt_u32 vcc, 32, v{vLANE}",
           f"v_cndmask_b32 v{t0}, v{t1}, v{t0}, vcc", f"s_add_u32 s{sT2}, s{sKU[0]}, s{sXOFF}", f"s_add_u32 s{sT2}, s{sT2}, {4096 + 4*1280}",
           f"buffer_load_dword a229, v{t0}, s[{sX}:{sX+3}], s{sT2} offen"])
    L(srd(sWS, pWS, WS_SIZE))
    L([f"s_or_b32 s{sT2}, s2, s{sW}", f"s_cmp_eq_u32 s{sT2}, 0", f"s_mov_b32 s{sT3}, {WS_SEED}", f"s_cselect_b32 s{sSEEDO}, s{sT3}, {OOB}"])
    E(f"buffer_load_dword v{vT[7]}, off, s[{sWS}:{sWS+3}], s{sSEEDO} sc1")
    L([f"s_bitcmp1_b32 s{sW}, 0",
       f"s_cselect_b32 s{sWU}, s{pBIM}, s{pBRE}", f"s_cselect_b32 s{sWU+1}, s{pBIM+1}, s{pBRE+1}",
       f"s_cselect_b32 s{sWM}, s{pW3}, s{pW1}", f"s_cselect_b32 s{sWM+1}, s{pW3+1}, s{pW1+1}",
       f"s_and_b32 s{sWU+1}, s{sWU+1}, 0xffff", f"s_and_b32 s{sWM+1}, s{sWM+1}, 0xffff",
       f"s_mov_b32 s{sWU+2}, {640*1280}", f"s_mov_b32 s{sWU+3}, 0x20000",
       f"s_mov_b32 s{sWM+2}, {640*3072}", f"s_mov_b32 s{sWM+3}, 0x20000"])
    L(srd(sOUT, pOUT, 2048*2560))
    if opt.p2map == 0:
        L([f"s_lshl_b32 s{sRT}, s{sT0}, 2", f"s_and_b32 s{sT2}, s{sT1}, 3", f"s_add_u32 s{sRT}, s{sRT}, s{sT2}", f"s_lshr_b32 s{sN}, s{sT1}, 2"])
    else:
        L([f"s_and_b32 s{sRT}, s{sT0}, 3", f"s_lshl_b32 s{sRT}, s{sRT}, 3", f"s_and_b32 s{sT2}, s{sT1}, 7", f"s_add_u32 s{sRT}, s{sRT}, s{sT2}",
           f"s_lshr_b32 s{sN}, s{sT0}, 2", f"s_lshl_b32 s{sN}, s{sN}, 2", f"s_lshr_b32 s{sT2}, s{sT1}, 3", f"s_add_u32 s{sN}, s{sN}, s{sT2}"])
    L([f"s_mul_i32 s{sUOFF}, s{sG}, {40*1280}", f"s_lshr_b32 s{sT2}, s{sW}, 1", f"s_lshl_b32 s{sT2}, s{sT2}, 7", f"s_add_u32 s{sUOFF}, s{sUOFF}, s{sT2}",
       f"s_mul_i32 s{sM0U}, s{sW}, 5120"])
    L([f"s_mul_i32 s{sT2}, s{sG}, 192", f"s_bitcmp1_b32 s{sG}, 0",
       f"s_cselect_b32 s{sT3}, 64, 0", f"s_cselect_b32 s{sT4}, 0, 128", f"s_add_u32 s{sMOFF}, s{sT2}, s{sT3}", f"s_add_u32 s{sMOFFB}, s{sT2}, s{sT4}",
       f"s_lshr_b32 s{sT2}, s{sW}, 1",
       f"s_mul_i32 s{sT3}, s{sT2}, {32*3072}", f"s_add_u32 s{sMOFF}, s{sMOFF}, s{sT3}",
       f"s_mul_i32 s{sT3}, s{sT2}, {64*3072}", f"s_add_u32 s{sMOFFB}, s{sMOFFB}, s{sT3}",
       f"s_lshl_b32 s{sM0A}, s{sW}, 12"])
    L([f"s_lshl_b32 s{sT3}, s{sC}, 1", f"s_add_u32 s{sT3}, s{sT3}, s{sT2}", f"s_mul_i32 s{sA2H}, s{sT3}, {88*4096}",
       f"s_and_b32 s{sT3}, s{sW}, 1", f"s_lshl_b32 s{sT3}, s{sT3}, 11", f"s_add_u32 s{sA2H}, s{sA2H}, s{sT3}",
       f"s_mul_i32 s{sT3}, s{sG}, 3", f"s_add_u32 s{sT3}, s{sT3}, 40", f"s_and_b32 s{sT4}, s{sG}, 1",
       f"s_add_u32 s{sKSA}, s{sT3}, s{sT4}", f"s_lshl_b32 s{sKSA}, s{sKSA}, 12", f"s_add_u32 s{sKSA}, s{sKSA}, s{sA2H}",
       f"s_xor_b32 s{sT4}, s{sT4}, 1", f"s_lshl_b32 s{sT4}, s{sT4}, 1",
       f"s_add_u32 s{sKSB}, s{sT3}, s{sT4}", f"s_lshl_b32 s{sKSB}, s{sKSB}, 12", f"s_add_u32 s{sKSB}, s{sKSB}, s{sA2H}"])
    L([f"s_lshl_b32 s{sT3}, s{sG}, 4", f"s_add_u32 s{sT4}, s{sT3}, s{sC}", f"s_mul_i32 s{sT4}, s{sT4}, 640", f"s_add_u32 s{sT4}, s{sT4}, {WS_S}",
       f"s_cmp_eq_u32 s{sW}, 3", f"s_cselect_b32 s{sSST}, s{sT4}, {OOB}"])
    for jj, sl in enumerate((sLB0, sLB1, sLB2, sLB3)):
        L([f"s_lshl_b32 s{sT4}, s{sW}, 2", f"s_add_u32 s{sT4}, s{sT4}, s{sC}", f"s_add_i32 s{sT4}, s{sT4}, {jj-16}",
           f"s_add_u32 s{sT5}, s{sT3}, s{sT4}", f"s_mul_i32 s{sT5}, s{sT5}, 640", f"s_add_u32 s{sT5}, s{sT5}, {WS_S}",
           f"s_cmp_ge_i32 s{sT4}, 0", f"s_cselect_b32 s{sl}, s{sT5}, {OOB}"])
    L([f"s_lshl_b32 s{sT3}, s{sC}, 2", f"s_add_u32 s{sT3}, s{sT3}, s{sW}", f"s_lshl_b32 s{sT3}, s{sT3}, 8", f"s_add_u32 s{sT3}, s{sT3}, {WS_STAT}",
       f"s_cmp_eq_u32 s{sG}, 0", f"s_cselect_b32 s{sSTATO}, s{sT3}, {OOB}"])
    for cf in range(5):
        L([f"s_mul_i32 s{sT2}, s{sG}, 5", f"s_add_u32 s{sT2}, s{sT2}, {cf}", f"s_and_b32 s{sT4}, s{sT2}, 3", f"s_lshr_b32 s{sT2}, s{sT2}, 2",
           f"s_lshl_b32 s{sT2}, s{sT2}, 12", f"s_lshl_b32 s{sT4}, s{sT4}, 8", f"s_add_u32 s{sT2}, s{sT2}, s{sT4}", f"s_add_u32 s{sHO[cf]}, s{sT2}, s{sA2H}"])
    if opt.prot or opt.roty:
        sh, msk = (sRT, 3) if opt.p2map == 0 else (sRT, 7)
        if opt.p2map == 0:
            L([f"s_and_b32 s{sT3}, s{sRT}, 3", f"s_mul_i32 s{sT4}, s{sT3}, 3", f"s_add_u32 s{sT4}, s{sT4}, s{sN}"])
        else:
            L([f"s_and_b32 s{sT3}, s{sRT}, 7", f"s_and_b32 s{sT4}, s{sN}, 3", f"s_mul_i32 s{sT4}, s{sT4}, 3", f"s_add_u32 s{sT4}, s{sT4}, s{sT3}"])
        L([f"s_cmp_ge_u32 s{sT4}, 10", f"s_cselect_b32 s{sT5}, 10, 0", f"s_sub_u32 s{sRY}, s{sT4}, s{sT5}",
           f"s_cmp_ge_u32 s{sT4}, 12", f"s_cselect_b32 s{sT5}, 12, 0", f"s_sub_u32 s{sRO}, s{sT4}, s{sT5}"])
        if not opt.prot: E(f"s_mov_b32 s{sRO}, 0")
    else:
        L([f"s_mov_b32 s{sRY}, 0", f"s_mov_b32 s{sRO}, 0"])
    L([f"s_mul_i32 s{sP2A}, s{sRT}, {88*4096}", f"s_mul_i32 s{sP2W}, s{sN}, {88*5120}", f"s_add_u32 s{sP2W}, s{sP2W}, {WS_W2P}"])
    if "A" in opt.fakehit: E(f"s_mov_b32 s{sP2A}, 0")
    if "W" in opt.fakehit: E(f"s_mov_b32 s{sP2W}, {WS_W2P}")
    i_, q_, a0, a1 = vT[8:12]
    L([f"v_and_b32 v{i_}, 15, v{vLANE}", f"v_lshrrev_b32 v{q_}, 4, v{vLANE}",
       f"v_and_b32 v{a0}, 7, v{i_}", f"v_and_b32 v{a1}, 6, v{i_}", f"v_xor_b32 v{a1}, v{a1}, v{q_}", f"v_lshlrev_b32 v{a1}, 4, v{a1}",
       f"v_lshl_add_u32 v{a1}, v{a0}, 7, v{a1}",
       f"v_lshrrev_b32 v{a0}, 3, v{i_}",
       f"v_mul_u32_u24 v{vRU[0]}, 5120, v{a0}", f"v_add_u32 v{vRU[0]}, v{vRU[0]}, v{a1}", f"v_xor_b32 v{vRU[1]}, 64, v{vRU[0]}",
       f"v_lshl_add_u32 v{vRX[0]}, v{a0}, 10, v{a1}", f"v_add_u32 v{vRX[0]}, s{sM0}, v{vRX[0]}", f"v_xor_b32 v{vRX[1]}, 64, v{vRX[0]}",
       f"v_add_u32 v{vW4}, 4096, v{vL16}"])
    L([f"v_add_u32 v{vUD[p]}, {p*(10240 - 1024)}, v{vDU}" for p in range(1, 4)])

cAR, cAI, cKR, cKI = 56, 57, 58, 59
cA8, cA32, cA32W, cA128, cOM = 60, 62, 64, 66, 68
def constants():
    lre, lim, ldt = vT[4], vT[5], vT[6]
    t = list(range(72, 96))
    L([f"v_lshlrev_b32 v{lre}, 16, v{lre}", f"v_lshlrev_b32 v{lim}, 16, v{lim}", f"v_lshlrev_b32 v{ldt}, 16, v{ldt}",
       f"v_mul_f32 v{t[0]}, {LOG2E}, v{ldt}", f"v_exp_f32 v{t[0]}, v{t[0]}",
       f"v_cvt_pk_bf16_f32 v{t[0]}, v{t[0]}, v{t[0]}", f"v_lshlrev_b32 v{t[0]}, 16, v{t[0]}",
       f"v_mul_f32 v{t[1]}, v{t[0]}, v{lre}", f"v_mul_f32 v{t[2]}, v{t[0]}, v{lim}",
       f"v_mul_f32 v{t[1]}, {LOG2E}, v{t[1]}", f"v_exp_f32 v{t[1]}, v{t[1]}",
       f"v_mul_f32 v{t[2]}, {INV2PI}, v{t[2]}", f"v_rndne_f32 v{t[3]}, v{t[2]}", f"v_sub_f32 v{t[2]}, v{t[2]}, v{t[3]}",
       f"v_cos_f32 v{t[3]}, v{t[2]}", f"v_sin_f32 v{t[4]}, v{t[2]}",
       f"v_mul_f32 v{cAR}, v{t[1]}, v{t[3]}", f"v_mul_f32 v{cAI}, v{t[1]}, v{t[4]}",
       f"v_add_f32 v{t[3]}, -1.0, v{cAR}",
       f"v_mul_f32 v{t[5]}, v{lre}, v{lre}", f"v_fmac_f32 v{t[5]}, v{lim}, v{lim}", f"v_rcp_f32 v{t[5]}, v{t[5]}",
       f"v_mul_f32 v{t[6]}, v{t[3]}, v{lre}", f"v_fmac_f32 v{t[6]}, v{cAI}, v{lim}",
       f"v_mul_f32 v{t[7]}, v{cAI}, v{lre}", f"v_fma_f32 v{t[7]}, -v{t[3]}, v{lim}, v{t[7]}",
       f"v_add_f32 v{t[5]}, v{t[5]}, v{t[5]}",
       f"v_mul_f32 v{cKR}, v{t[6]}, v{t[5]}", f"v_mul_f32 v{cKI}, v{t[7]}, v{t[5]}"])
    r, i, tt = t[8], t[9], t[0]
    L([f"v_mov_b32 v{r}, v{cAR}", f"v_sub_f32 v{i}, 0, v{cAI}"])
    L(csq(t[10], t[11], r, i, tt)); L(csq(r, i, t[10], t[11], tt))
    L(csq(cA8, cA8+1, r, i, tt))
    L(csq(r, i, cA8, cA8+1, tt))
    L(csq(cA32, cA32+1, r, i, tt))
    L(csq(t[12], t[13], cA32, cA32+1, tt))
    L(csq(cA128, cA128+1, t[12], t[13], tt))
    L(csq(r, i, cA128, cA128+1, tt))
    L(csq(t[14], t[15], r, i, tt))
    L(csq(t[16], t[17], t[14], t[15], tt))
    def sel(dst, src, mask, on):
        if on:
            return [f"v_cndmask_b32 v{dst}, 1.0, v{src}, s[{mask}:{mask+1}]", f"v_cndmask_b32 v{dst+1}, 0, v{src+1}, s[{mask}:{mask+1}]"]
        return [f"v_mov_b32 v{t[22]}, 1.0", f"v_mov_b32 v{t[23]}, 0",
                f"v_cndmask_b32 v{dst}, v{src}, v{t[22]}, s[{mask}:{mask+1}]", f"v_cndmask_b32 v{dst+1}, v{src+1}, v{t[23]}, s[{mask}:{mask+1}]"]
    L([f"s_bitcmp1_b32 s{sW}, 0", f"s_cselect_b64 s[{sEX0}:{sEX0+1}], -1, 0", f"s_bitcmp1_b32 s{sW}, 1", f"s_cselect_b64 s[{sEX2}:{sEX2+1}], -1, 0"])
    L(sel(t[18], cA32, sEX0, True)); L(sel(t[20], t[12], sEX2, True))
    L(cmul(cA32W, cA32W+1, t[18], t[19], t[20], t[21], tt))
    L(sel(t[18], t[14], sEX0, False)); L(sel(t[20], t[16], sEX2, False))
    L(cmul(cOM, cOM+1, t[18], t[19], t[20], t[21], tt))

def nonce_seed():
    sd = vT[7]
    L([f"s_mov_b32 s{sT2}, 1664525", f"v_mul_lo_u32 v{sd}, v{sd}, s{sT2}", f"v_add_u32 v{vNON}, 1013904223, v{sd}", f"v_mov_b32 v{vNON+1}, 1"])
    E(f"buffer_store_dword v{vNON}, off, s[{sWS}:{sWS+3}], s{sSEEDO} sc1", tok="seed")
def nonce_publish():
    return [f"s_cmp_lt_u32 s{sSEEDO}, {OOB}", f"s_cselect_b32 s{sT5}, 0, {OOB}", "@waitvm seed",
            f"buffer_store_dwordx2 v[{vNON}:{vNON+1}], off, s[{sDBG}:{sDBG+3}], s{sT5} sc1"]

lab = [0]
def poll(load_text, check):
    lab[0] += 1
    n = lab[0]
    r = list(check)
    r += [f"s_cbranch_vccz L_ok{n}", "@raw_begin", f"s_mov_b32 s{sCNT}, {0x4000 if opt.diag else 0x40000}", f"L_rt{n}:", "s_sleep 1"]
    r += [t.text if isinstance(t, I) else t for t in load_text]
    r += ["s_waitcnt vmcnt(0)", "s_nop 1"] + list(check) + [f"s_cbranch_vccz L_ok{n}", f"s_sub_u32 s{sCNT}, s{sCNT}, 1",
          f"s_cmp_lg_u32 s{sCNT}, 0", f"s_cbranch_scc1 L_rt{n}"]
    if opt.diag: r += [f"buffer_store_dword v{vLANE}, off, s[{sDBG}:{sDBG+3}], 0 offset:{32+4*n} sc1", "s_waitcnt vmcnt(0)"]
    r += ["s_nop 7", "@raw_end", f"L_ok{n}:"]
    return r
def nonce_load():
    return [f"buffer_load_dwordx2 v[{vNON}:{vNON+1}], off, s[{sDBG}:{sDBG+3}], 0 sc1"]
def nonce_get():
    return poll(nonce_load(), [f"v_cmp_ne_u32 vcc, 1, v{vNON+1}"]) + [f"v_readfirstlane_b32 s{sNONCE}, v{vNON}"]

sS0, sS1, sQ0, sQ1 = vT[8], vT[9], vT[10], vT[11]
vR = [vT[12], vT[14]]; vNB = [vT[13], vT[15]]
vM = [vT[16], vT[17]]
vONES = vT[18]
def x_arrive(f, filler=None, limit=60):
    filler = II(filler or [])
    per = (len(filler) + 9) // 10
    if not opt.mstat: L([f"v_mov_b32 v{sS0}, 0", f"v_mov_b32 v{sS1}, 0", f"v_mov_b32 v{sQ0}, 0", f"v_mov_b32 v{sQ1}, 0"])
    def st(s):
        r = []
        if opt.mstat:
            c0 = "0" if s == 0 else ar(aSS); c1 = "0" if s == 0 else ar(aSQ)
            return [f"v_mfma_f32_16x16x32_bf16 {ar(aSS)}, {ar(aONE)}, {vr(X(f, s))}, {c0}",
                    f"v_mfma_f32_16x16x32_bf16 {ar(aSQ)}, {vr(X(f, s))}, {vr(X(f, s))}, {c1}"]
        for k in range(4):
            x = X(f, s) + k
            r += [f"v_dot2_f32_bf16 v{(sS0, sS1)[k&1]}, v{x}, v{vONES}, v{(sS0, sS1)[k&1]}",
                  f"v_dot2_f32_bf16 v{(sQ0, sQ1)[k&1]}, v{x}, v{x}, v{(sQ0, sQ1)[k&1]}"]
        return r
    for S in range(10):
        E(f"@waitvm x{f}_{S}")
        for sh in range(2):
            E(f"ds_read_b128 {vr(X(f, 2*S+sh))}, v{vRX[sh]} offset:{S*2048}", tok=f"xr{f}_{2*S+sh}")
        L(ST.next(2, limit))
        if S > 0:
            E(f"@waitds xr{f}_{2*S-1}")
            L(st(2*S-2)); L(st(2*S-1))
        L(filler[S*per:(S+1)*per])
    E("@waitds0")
    return st(18) + st(19) + filler[10*per:]

aONE, aSS, aSQ = 216, 220, 224
def x_stats(f):
    a, b = vT[19], vT[20]
    r = [f"v_add_f32 v{sS0}, v{sS0}, v{sS1}", f"v_add_f32 v{sQ0}, v{sQ0}, v{sQ1}"]
    if opt.mstat:
        t = vT[8:12]
        r = [f"v_and_b32 v{a}, 15, v{vLANE}", f"v_lshrrev_b32 v{b}, 2, v{a}", f"v_lshl_add_u32 v{b}, v{b}, 4, v{a}", f"v_lshlrev_b32 v{b}, 2, v{b}",
             f"v_and_b32 v{a}, 3, v{vLANE}", f"v_cmp_eq_u32 s[{sEX0}:{sEX0+1}], 1, v{a}", f"v_cmp_eq_u32 s[{sEX2}:{sEX2+1}], 2, v{a}", f"v_cmp_eq_u32 vcc, 3, v{a}"]
        r += [f"v_accvgpr_read_b32 v{t[k]}, a{aSQ+k}" for k in range(4)]
        r += [f"v_cndmask_b32 v{t[0]}, v{t[0]}, v{t[1]}, s[{sEX0}:{sEX0+1}]", f"v_cndmask_b32 v{t[2]}, v{t[2]}, v{t[3]}, vcc",
              f"v_cndmask_b32 v{t[0]}, v{t[0]}, v{t[2]}, s[{sEX2}:{sEX2+1}]", f"v_cndmask_b32 v{t[0]}, v{t[0]}, v{t[2]}, vcc",
              f"ds_bpermute_b32 v{sQ0}, v{b}, v{t[0]}", f"v_accvgpr_read_b32 v{sS0}, a{aSS}"]
    for perm in (() if opt.mstat else ("v_permlane16_swap_b32", "v_permlane32_swap_b32")):
        r += [f"v_mov_b32 v{a}, v{sS0}", f"v_mov_b32 v{b}, v{sQ0}", f"{perm} v{a}, v{sS0}", f"{perm} v{b}, v{sQ0}",
              f"v_add_f32 v{sS0}, v{sS0}, v{a}", f"v_add_f32 v{sQ0}, v{sQ0}, v{b}"]
    inv = "0x3acccccd"
    r += [f"v_mul_f32 v{sS0}, {inv}, v{sS0}", f"v_mul_f32 v{sQ0}, {inv}, v{sQ0}",
          f"v_fma_f32 v{sQ0}, -v{sS0}, v{sS0}, v{sQ0}", f"v_max_f32 v{sQ0}, 0, v{sQ0}",
          f"v_cvt_pk_bf16_f32 v{a}, v{sS0}, v{sQ0}",
          f"v_lshlrev_b32 v{vM[f]}, 16, v{a}", f"v_and_b32 v{b}, 0xffff0000, v{a}",
          f"v_add_f32 v{b}, 0x3727c5ac, v{b}",
          f"v_cvt_pk_bf16_f32 v{b}, v{b}, v{b}", f"v_and_b32 v{b}, 0xffff0000, v{b}",
          f"v_sqrt_f32 v{b}, v{b}", f"v_cvt_pk_bf16_f32 v{b}, v{b}, v{b}", f"v_and_b32 v{b}, 0xffff0000, v{b}",
          f"v_rcp_f32 v{vR[f]}, v{b}", f"v_mul_f32 v{vNB[f]}, v{vM[f]}, v{vR[f]}", f"v_sub_f32 v{vNB[f]}, 0, v{vNB[f]}"]
    return r

def norm_step(f, s, packed, tmp):
    r = []
    for k in range(4):
        x = X(f, s) + k
        t = tmp[(k & 1) * 2]
        if packed:
            r += [f"v_lshlrev_b32 v{t}, 16, v{x}", f"v_and_b32 v{t+1}, 0xffff0000, v{x}",
                  f"v_pk_fma_f32 v[{t}:{t+1}], v[{t}:{t+1}], v[{vR[f]}:{vR[f]+1}], v[{vR[f]}:{vR[f]+1}] op_sel:[0,0,1] op_sel_hi:[1,0,1]",
                  f"v_cvt_pk_bf16_f32 v{x}, v{t}, v{t+1}"]
        else:
            r += [f"v_lshlrev_b32 v{t}, 16, v{x}", f"v_and_b32 v{t+1}, 0xffff0000, v{x}",
                  f"v_fma_f32 v{t}, v{t}, v{vR[f]}, v{vNB[f]}", f"v_fma_f32 v{t+1}, v{t+1}, v{vR[f]}, v{vNB[f]}",
                  f"v_cvt_pk_bf16_f32 v{x}, v{t}, v{t+1}"]
    return r

def stats_store():
    a, b = vT[0], vT[1]
    r = [f"v_and_b32 v{a}, 12, v{vLANE}", f"v_add_u32 v{a}, v{a}, v{vLANE}", f"v_lshlrev_b32 v{a}, 3, v{a}",
         f"v_mov_b32 v{b}, {OOB}", f"v_cmp_gt_u32 vcc, 16, v{vLANE}", f"v_cndmask_b32 v{a}, v{b}, v{a}, vcc"]
    for f in range(2):
        r.append(I(f"buffer_store_dwordx2 v[{vR[f]}:{vR[f]+1}], v{a}, s[{sWS}:{sWS+3}], s{sSTATO} offen offset:{32*f} sc1", tok="stat"))
    return r

def mlp_dma_addr(kind):
    vD = vDB if kind == "B" else globals()["vD"]
    t0, t1, t2 = vD[1], vD[2], vD[3]
    if kind == "A":
        r = [f"v_lshrrev_b32 v{t0}, 3, v{vLANE}", f"v_and_b32 v{t1}, 7, v{vLANE}", f"v_and_b32 v{t2}, 2, v{t0}", f"v_lshlrev_b32 v{t2}, 1, v{t2}",
             f"v_xor_b32 v{t1}, v{t1}, v{t2}", f"v_lshlrev_b32 v{t1}, 4, v{t1}",
             f"v_mul_u32_u24 v{t0}, 3072, v{t0}", f"v_add_u32 v{vD[0]}, v{t0}, v{t1}"]
        rows = 8
    else:
        r = [f"v_lshrrev_b32 v{t0}, 2, v{vLANE}", f"v_and_b32 v{t1}, 3, v{vLANE}", f"v_lshlrev_b32 v{t1}, 4, v{t1}",
             f"v_mul_u32_u24 v{t0}, 3072, v{t0}", f"v_add_u32 v{vD[0]}, v{t0}, v{t1}"]
        rows = 16
    for p in range(1, 4):
        r.append(f"v_add_u32 v{vD[p]}, {p*(rows*3072 - 1024)}, v{vD[0]}")
    if kind == "B": r.append(f"v_add_u32 v{vRB2}, 0x10000, v{vRB}")
    return r

def dma_M(m):
    slot = m % 4 if m < 10 else BSLOT[m]
    vD = globals()["vD"] if m < 10 else vDB
    if m < 10:
        so = [f"s_mul_i32 s{sD0}, s{sKU[m >> 1]}, 1536", f"s_add_u32 s{sD0}, s{sD0}, s{sMOFF}"]
        if m & 1: so.append(f"s_add_u32 s{sD0}, s{sD0}, {64*3072}")
    else:
        so = [f"s_mul_i32 s{sD0}, s{sKU[m - 10]}, 1536", f"s_add_u32 s{sD0}, s{sD0}, s{sMOFFB}"]
    if m >= 10:
        r = [t.replace(f"s{sD0}", f"s{sD2}") for t in so]
        for p in range(4):
            r += [f"s_add_u32 m0, s{sM0A}, {slot*16384}"] + (["s_nop 0"] if False else [])
            r.append(I(f"buffer_load_dwordx4 v{vD[p]}, s[{sWM}:{sWM+3}], s{sD2} offen offset:{p*1024} {opt.w_flags} lds", tok=f"M{m}"))
        return r
    r = so + [f"s_add_u32 m0, s{sM0A}, {slot*16384}"]
    for p in range(4):
        r.append(I(f"buffer_load_dwordx4 v{vD[p]}, s[{sWM}:{sWM+3}], s{sD0} offen offset:{p*1024} {opt.w_flags} lds", tok=f"M{m}"))
    return r

def w13_touch():
    a, b = vT[5], vT[6]
    r = [f"v_lshrrev_b32 v{a}, 1, v{vLANE}", f"v_mul_u32_u24 v{a}, 3072, v{a}", f"v_and_b32 v{b}, 1, v{vLANE}", f"v_lshl_add_u32 v{a}, v{b}, 7, v{a}",
         f"s_and_b32 s{sT2}, s{sC}, 7", f"s_lshl_b32 s{sT2}, s{sT2}, 1", f"s_lshr_b32 s{sT3}, s{sW}, 1", f"s_add_u32 s{sT2}, s{sT2}, s{sT3}",
         f"s_mul_i32 s{sT2}, s{sT2}, {40*3072}", f"s_mul_i32 s{sT3}, s{sG}, 192", f"s_and_b32 s{sT3}, s{sT3}, 0xffffff80", f"s_add_u32 s{sT2}, s{sT2}, s{sT3}",
         f"buffer_load_dword a228, v{a}, s[{sWM}:{sWM+3}], s{sT2} offen",
         f"v_mov_b32 v{b}, {OOB}", f"v_cmp_gt_u32 vcc, 16, v{vLANE}", f"v_cndmask_b32 v{a}, v{b}, v{a}, vcc", f"s_add_u32 s{sT2}, s{sT2}, {32*3072}",
         f"buffer_load_dword a228, v{a}, s[{sWM}:{sWM+3}], s{sT2} offen"]
    return r

def delay(tag, mod, val, ticks):
    if not opt.delay: return []
    return ["@raw_begin", f"s_and_b32 s{sD0}, s2, {mod}", f"s_cmp_eq_u32 s{sD0}, {val}", f"s_cbranch_scc0 L_dl{tag}",
            f"s_memrealtime s[{sSTAMP}:{sSTAMP+1}]", "s_waitcnt lgkmcnt(0)", f"s_mov_b32 s{sD1}, s{sSTAMP}", f"L_dw{tag}:",
            f"s_memrealtime s[{sSTAMP}:{sSTAMP+1}]", "s_waitcnt lgkmcnt(0)", f"s_sub_u32 s{sD0}, s{sSTAMP}, s{sD1}",
            f"s_cmp_lt_u32 s{sD0}, {ticks*opt.delay}", f"s_cbranch_scc1 L_dw{tag}", f"L_dl{tag}:", "@raw_end"]

def skew(tag):
    if not opt.skew: return []
    return [f"s_bitcmp1_b32 s{sW}, 0", f"s_cbranch_scc1 L_sk{tag}a", "s_nop 0", f"L_sk{tag}a:", f"s_bitcmp1_b32 s{sW}, 1", f"s_cbranch_scc1 L_sk{tag}b", "s_nop 1", f"L_sk{tag}b:"]

def mlp_read_addr():
    G, r_, c, t, u = vT[19], vT[20], vT[21], vT[22], vT[23]
    return [f"v_lshrrev_b32 v{G}, 4, v{vLANE}", f"v_bfe_u32 v{r_}, v{vLANE}, 2, 2", f"v_and_b32 v{c}, 3, v{vLANE}",
         f"v_lshrrev_b32 v{t}, 1, v{G}", f"v_lshlrev_b32 v{t}, 11, v{t}", f"v_lshl_add_u32 v{t}, v{r_}, 7, v{t}",
         f"v_and_b32 v{u}, 1, v{c}", f"v_lshl_add_u32 v{t}, v{u}, 3, v{t}",
         f"v_and_b32 v{u}, 1, v{G}", f"v_lshlrev_b32 v{u}, 1, v{u}", f"v_lshrrev_b32 v{vRA[1]}, 1, v{c}", f"v_add_u32 v{u}, v{u}, v{vRA[1]}",
         f"v_lshrrev_b32 v{vRA[1]}, 1, v{r_}", f"v_lshlrev_b32 v{vRA[1]}, 2, v{vRA[1]}", f"v_xor_b32 v{u}, v{u}, v{vRA[1]}",
         f"v_lshl_add_u32 v{vRA[0]}, v{u}, 4, v{t}", f"v_xor_b32 v{vRA[1]}, 64, v{vRA[0]}",
         f"v_lshrrev_b32 v{t}, 1, v{G}", f"v_lshlrev_b32 v{t}, 10, v{t}", f"v_lshl_add_u32 v{t}, v{r_}, 6, v{t}",
         f"v_and_b32 v{u}, 1, v{G}", f"v_lshl_add_u32 v{t}, v{u}, 5, v{t}", f"v_lshl_add_u32 v{vRB}, v{c}, 3, v{t}",
         f"v_lshlrev_b32 v{u}, 10, v{u}", f"v_lshrrev_b32 v{t}, 1, v{G}", f"v_lshl_add_u32 v{u}, v{t}, 8, v{u}",
         f"v_and_b32 v{t}, 15, v{vLANE}", f"v_lshl_add_u32 v{vHH}, v{t}, 4, v{u}"]

def relayout_issue():
    u, t0, t1, t2 = sT2, vT[5], vT[6], vT[7]
    vo = vT[0:5]
    r = [f"s_lshl_b32 s{u}, s{sW}, 5", f"s_add_u32 s{u}, s{u}, s{sRT}",
       f"s_mul_i32 s{sT3}, s{sN}, 88", f"s_add_u32 s{sT3}, s{sT3}, s{u}", f"s_mul_i32 s{sT3}, s{sT3}, 5120", f"s_add_u32 s{sT3}, s{sT3}, {WS_W2P}",
       f"s_cmp_lt_u32 s{u}, 88", f"s_cselect_b32 s{sRLST}, s{sT3}, {OOB}",
       f"s_mov_b32 s{sRL+3}, 0x20000", f"s_cmp_lt_u32 s{u}, 40", "@arm", "s_cbranch_scc0 L_rlw",
       f"s_cmp_lt_u32 s{u}, 20", f"s_cselect_b32 s{sRL}, s{pCRE}, s{pCIM}", f"s_cselect_b32 s{sRL+1}, s{pCRE+1}, s{pCIM+1}",
       f"s_cselect_b32 s{sT3}, 0, 20", f"s_sub_u32 s{sT3}, s{u}, s{sT3}", f"s_lshl_b32 s{sT3}, s{sT3}, 6",
       f"s_mul_i32 s{sT4}, s{sN}, {80*1280}", f"s_add_u32 s{sRLOFF}, s{sT3}, s{sT4}",
       f"s_mov_b32 s{sRL+2}, {640*1280}",
       f"v_lshrrev_b32 v{t0}, 2, v{vLANE}", f"v_and_b32 v{t1}, 3, v{vLANE}", f"v_lshlrev_b32 v{t1}, 4, v{t1}",
       f"v_mul_u32_u24 v{t0}, 1280, v{t0}", f"v_add_u32 v{vo[0]}, v{t0}, v{t1}"]
    for e in range(1, 5): r.append(f"v_add_u32 v{vo[e]}, {e*16*1280}, v{vo[0]}")
    r += ["s_branch L_rlj", "@else", "L_rlw:",
       f"s_mov_b32 s{sRL}, s{pW2}", f"s_mov_b32 s{sRL+1}, s{pW2+1}",
       f"s_cmp_lt_u32 s{u}, 88", f"s_cselect_b32 s{sRL+2}, {1536*1280}, 0",
       f"s_sub_u32 s{sT3}, s{u}, 40", f"s_mul_i32 s{sT3}, s{sT3}, {32*1280}", f"s_mul_i32 s{sT4}, s{sN}, 160", f"s_add_u32 s{sRLOFF}, s{sT3}, s{sT4}",
       f"s_mov_b32 s{sT4}, 6554"]
    for p in range(5):
        r += [f"v_add_u32 v{t0}, {64*p}, v{vLANE}", f"v_mul_u32_u24 v{t1}, s{sT4}, v{t0}", f"v_lshrrev_b32 v{t1}, 16, v{t1}",
              f"v_mul_u32_u24 v{t2}, 10, v{t1}", f"v_sub_u32 v{t2}, v{t0}, v{t2}", f"v_lshlrev_b32 v{t2}, 4, v{t2}",
              f"v_mul_u32_u24 v{t1}, 1280, v{t1}", f"v_add_u32 v{vo[p]}, v{t1}, v{t2}"]
    r += ["@endarm", "L_rlj:", f"s_and_b32 s{sRL+1}, s{sRL+1}, 0xffff"]
    r += [f"v_accvgpr_write_b32 a{232+p}, v{vo[p]}" for p in range(5)]
    return r
def relayout_dma():
    vo = vT[0:5]
    r = []
    if "r" in opt.skip: return r
    for p in range(5):
        r.append([f"s_add_u32 m0, s{sM0U}, {L_RL + p*1024}", f"v_accvgpr_read_b32 v{vFLAG}, a{232+p}",
                  I(f"buffer_load_dwordx4 v{vFLAG}, s[{sRL}:{sRL+3}], s{sRLOFF} offen {'nt' if opt.rl_nt else ''} lds", tok="RL")])
    return r

def relayout_finish():
    if "r" in opt.skip: return []
    t0, t1 = vT[0], vT[1]
    r = ["@waitvm RL", f"s_lshl_b32 s{sT2}, s{sW}, 5", f"s_add_u32 s{sT2}, s{sT2}, s{sRT}", f"s_add_u32 s{sT3}, s{sM0U}, {L_RL}",
         f"s_cmp_lt_u32 s{sT2}, 40", "@arm", "s_cbranch_scc0 L_rfw",
         f"v_and_b32 v{t0}, 15, v{vLANE}", f"v_lshrrev_b32 v{t1}, 4, v{vLANE}", f"v_lshlrev_b32 v{t1}, 4, v{t1}",
         f"v_lshl_add_u32 v{t0}, v{t0}, 6, v{t1}", f"v_add_u32 v{t0}, s{sT3}, v{t0}"]
    for e in range(5): r.append(f"ds_read_b128 {ar(aRL+4*e)}, v{t0} offset:{e*1024}")
    r += ["@waitds0", "s_branch L_rfj", "@else", "L_rfw:",
          f"v_lshrrev_b32 v{t0}, 2, v{vLANE}", f"v_and_b32 v{t1}, 8, v{t0}", f"v_add_u32 v{t0}, v{t0}, v{t1}",
          f"v_mul_u32_u24 v{t0}, 160, v{t0}", f"v_and_b32 v{t1}, 3, v{vLANE}",
          f"v_lshl_add_u32 v{t0}, v{t1}, 3, v{t0}", f"v_add_u32 v{t0}, s{sT3}, v{t0}"]
    for e in range(5):
        for jj in range(2):
            r.append(f"ds_read_b64_tr_b16 {ar(aRL+4*e+2*jj, 2)}, v{t0} offset:{jj*1280 + e*32}")
    r += ["@waitds0", "@endarm", "L_rfj:"]
    for e in range(5):
        if e < 4: r.append(I(f"buffer_store_dwordx4 {ar(aRL+4*e)}, v{vL16}, s[{sWS}:{sWS+3}], s{sRLST} offen offset:{e*1024} sc1", tok="RLS"))
        else: r.append(I(f"buffer_store_dwordx4 {ar(aRL+4*e)}, v{vW4}, s[{sWS}:{sWS+3}], s{sRLST} offen sc1", tok="RLS"))
    return r

def flag_store(base, sline, sidx):
    return [f"s_lshl_b32 s{sD0}, s{sline}, 7", f"s_lshl_b32 s{sD1}, s{sidx}, 2", f"s_add_u32 s{sD0}, s{sD0}, s{sD1}", f"s_add_u32 s{sD0}, s{sD0}, {base}",
            f"s_cmp_eq_u32 s{sW}, 0", f"s_cselect_b32 s{sD0}, s{sD0}, {OOB}",
            f"buffer_store_dword v{vNON}, off, s[{sWS}:{sWS+3}], s{sD0} sc1"]
def flag_load(base, sline, shift, mask, st=None):
    st = sD0 if st is None else st
    return [f"s_lshr_b32 s{st}, s{sline}, {shift}", f"s_lshl_b32 s{st}, s{st}, 7", f"s_add_u32 s{st}, s{st}, {base}",
            f"v_and_b32 v{vFLAG}, {mask}, v{vLANE}", f"v_lshlrev_b32 v{vFLAG}, 2, v{vFLAG}",
            f"buffer_load_dword v{vFLAG}, v{vFLAG}, s[{sWS}:{sWS+3}], s{st} offen sc1"]
def flag_check(base, sline, shift, mask):
    if "f" in opt.skip: return [f"v_mov_b32 v{vFLAG}, 0"]
    return poll(flag_load(base, sline, shift, mask, sD0), [f"v_cmp_ne_u32 vcc, s{sNONCE}, v{vFLAG}"])

def scan_addr():
    col, q, ch, t = vT[19], vT[20], vT[21], vT[22]
    return [f"s_lshl_b32 s{sT2}, s{sW}, 13", f"s_add_u32 s{sT2}, s{sT2}, {L_PRIV}",
            f"v_and_b32 v{col}, 15, v{vLANE}", f"v_lshrrev_b32 v{q}, 4, v{vLANE}",
            f"v_lshl_add_u32 v{vCOLR}, v{col}, 4, s{sT2}",
            f"v_lshl_add_u32 v{vEW}, v{q}, 2, v{vCOLR}",
            f"v_min_u32 v{ch}, 39, v{vLANE}", f"v_lshlrev_b32 v{vSO}, 4, v{ch}",
            f"v_lshrrev_b32 v{t}, 3, v{ch}", f"v_lshlrev_b32 v{t}, 3, v{t}", f"v_add_u32 v{t}, v{t}, v{ch}",
            f"v_lshl_add_u32 v{vER}, v{t}, 4, s{sT2}",
            f"v_add_u32 v{vCH}, s{sT2}, v{vL16}",
            f"s_lshl_b32 s{sT3}, s{sW}, 9", f"s_add_u32 s{sT3}, s{sT3}, {L_TT}", f"v_lshl_add_u32 v{vTT}, v{vLANE}, 3, s{sT3}",
            f"v_lshlrev_b32 v{vLB}, 5, v{vLANE}", f"v_add_u32 v{vLB}, {L_LB}, v{vLB}",
            f"s_add_u32 s{sT3}, s{sM0U}, {L_RL}",
            f"v_lshlrev_b32 v{vTW}, 5, v{col}", f"v_lshl_add_u32 v{vTW}, v{q}, 3, v{vTW}", f"v_add_u32 v{vTW}, s{sT3}, v{vTW}",
            f"v_bfe_u32 v{t}, v{vLANE}, 2, 2", f"v_lshlrev_b32 v{t}, 5, v{t}", f"v_lshl_add_u32 v{t}, v{q}, 8, v{t}",
            f"v_and_b32 v{ch}, 3, v{vLANE}", f"v_lshl_add_u32 v{t}, v{ch}, 3, v{t}", f"v_add_u32 v{vTR}, s{sT3}, v{t}",
            f"v_lshrrev_b32 v{t}, 1, v{q}", f"v_lshlrev_b32 v{t}, 10, v{t}", f"v_lshl_add_u32 v{vHST}, v{col}, 4, v{t}",
            f"v_and_b32 v{t}, 1, v{q}", f"v_mul_u32_u24 v{t}, {20*4096}, v{t}", f"v_add_u32 v{vHST}, v{vHST}, v{t}"]

def const_park():
    src = [cAR, cAI, cKR, cKI] + list(range(60, 70))
    return [f"v_accvgpr_write_b32 a{200+k}, v{s}" for k, s in enumerate(src)]
def const_tables():
    t = vT[0:8]
    r = [f"v_accvgpr_read_b32 v{t[0]}, a200", f"v_accvgpr_read_b32 v{t[1]}, a201", f"v_accvgpr_read_b32 v{t[2]}, a202", f"v_accvgpr_read_b32 v{t[3]}, a203",
         f"v_sub_f32 v{t[3]}, 0, v{t[3]}",
         f"v_mov_b32 v{t[4]}, v{t[0]}", f"v_sub_f32 v{t[5]}, 0, v{t[1]}", f"v_sub_f32 v{t[6]}, 0, v{t[2]}", f"v_mov_b32 v{t[7]}, v{t[3]}",
         f"ds_write_b128 v{vER}, {vr(t[0])} offset:{PV_COL}", f"ds_write_b128 v{vER}, {vr(t[4])} offset:{PV_COL+128}",
         f"ds_write_b128 v{vCH}, {ar(204)} offset:{PV_CH}", f"ds_write_b128 v{vCH}, {ar(208)} offset:{PV_CH+1024}",
         f"ds_write_b64 v{vCH}, {ar(212, 2)} offset:{PV_CH+2048}",
         f"v_mov_b32 v{t[0]}, 0", f"v_mov_b32 v{t[1]}, 0",
         f"s_min_u32 s{sT2}, s{sW}, 2", f"s_lshl_b32 s{sT2}, s{sT2}, 9", f"s_add_u32 s{sT2}, s{sT2}, {L_TT}",
         f"v_lshl_add_u32 v{t[2]}, v{vLANE}, 3, s{sT2}", f"ds_write_b64 v{t[2]}, {vr(t[0], 2)}"]
    return r

def ureg(cf, tau): return U(cf, tau >> 2) + (tau & 3)
DPP = "row_ror:8 row_mask:0xf bank_mask:0xf"
def scan_P12():
    C = vT[0:20]
    r = [I(f"ds_read_b128 {vr(C[4*cf])}, v{vCOLR} offset:{PV_COL + cf*256}", tok="colr") for cf in range(5)]
    r.append("@gap 1")
    t = vT[20:24]
    k = 0
    for tau in range(8):
        for cf in range(5):
            u = ureg(cf, tau); tt = t[k % 4]; k += 1
            r += [f"v_mul_f32_dpp v{tt}, v{u}, v{C[4*cf+3]} {DPP}", f"v_fma_f32 v{u}, v{C[4*cf+2]}, v{u}, v{tt}"]
    for tau in range(1, 8):
        src = [(ureg(cf, 0) if tau == 1 else C[4*cf + 2 + (tau & 1)]) for cf in range(5)]
        dst = [C[4*cf + 2 + ((tau + 1) & 1)] for cf in range(5)]
        for cf in range(5): r.append(f"v_fma_f32 v{dst[cf]}, v{C[4*cf]}, v{src[cf]}, v{ureg(cf, tau)}")
        for cf in range(5): r.append(f"v_fmac_f32_dpp v{dst[cf]}, v{src[cf]}, v{C[4*cf+1]} {DPP}")
    for cf in range(5): r.append(f"ds_write_b32 v{vEW}, v{C[4*cf+2]} offset:{PV_E + cf*256}")
    er, ei, a8 = vT[0], vT[4], vT[8]
    r += [f"ds_read_b128 {vr(a8)}, v{vCH} offset:{PV_CH}",
          f"ds_read_b128 {vr(er)}, v{vER} offset:{PV_E}", f"ds_read_b128 {vr(ei)}, v{vER} offset:{PV_E+128}", "@gap 2"]
    g0, g1 = vT[12], vT[14]
    r += chorner2(g0, g0+1, er, ei, a8, a8+1, er+1, ei+1)
    r += chorner2(g1, g1+1, g0, g0+1, a8, a8+1, er+2, ei+2)
    r += chorner2(g0, g0+1, g1, g1+1, a8, a8+1, er+3, ei+3)
    r += [f"ds_write_b64 v{vTT}, {vr(g0, 2)} offset:{3*512}"]
    return r

def scan_P3():
    a32 = vT[8]; T = vT[0:8]
    r = [f"ds_read_b128 {vr(a32)}, v{vCH} offset:{PV_CH}"]
    for k in range(4): r.append(f"ds_read_b64 {vr(T[2*k], 2)}, v{vTT} offset:{k*512}")
    r.append("@gap 2")
    m = a32 + 2
    g = vT[12]
    r += chorner2(g, g+1, T[0], T[1], m, m+1, T[2], T[3])
    r += chorner2(vWP0, vWP1, g, g+1, m, m+1, T[4], T[5])
    r += chorner2(g, g+1, vWP0, vWP1, m, m+1, T[6], T[7])
    r += [f"v_mov_b32 v{g+2}, s{sNONCE}", f"v_mov_b32 v{g+3}, s{sNONCE}",
          f"buffer_store_dwordx4 {vr(g)}, v{vSO}, s[{sWS}:{sWS+3}], s{sSST} offen sc1"]
    return r

def lb_loads():
    return [f"buffer_load_dwordx4 {ar(aS+4*jj)}, v{vSO}, s[{sWS}:{sWS+3}], s{sl} offen sc1" for jj, sl in enumerate((sLB0, sLB1, sLB2, sLB3))]
def scan_P4():
    t = vT[0:8]
    chk = []
    for jj, sl in enumerate((sLB0, sLB1, sLB2, sLB3)):
        d = t[2] if jj == 0 else t[0]
        chk += [f"s_cmp_lt_u32 s{sl}, {OOB}", f"s_cselect_b32 s{sT2}, s{sNONCE}, 0", f"v_accvgpr_read_b32 v{d}, a{aS+4*jj+2}",
                f"v_xor_b32 v{d}, s{sT2}, v{d}"]
        if jj: chk += [f"v_or_b32 v{t[2]}, v{t[2]}, v{t[0]}"]
    chk += [f"v_cmp_ne_u32 vcc, 0, v{t[2]}"]
    c = vT[8]
    r = [f"ds_read_b128 {vr(c)}, v{vCH} offset:{PV_CH+1024}", f"ds_read_b64 {vr(vT[12], 2)}, v{vCH} offset:{PV_CH+2048}"]
    if "f" not in opt.skip: r += poll(lb_loads(), [i.text for i in insert_nops(II(chk))])
    for jj in range(4):
        r += [f"v_accvgpr_read_b32 v{t[2*jj]}, a{aS+4*jj}", f"v_accvgpr_read_b32 v{t[2*jj+1]}, a{aS+4*jj+1}"]
    m = c + 2; g0, g1 = vT[14], vT[16]
    r += chorner2(g0, g0+1, t[0], t[1], m, m+1, t[2], t[3])
    r += chorner2(g1, g1+1, g0, g0+1, m, m+1, t[4], t[5])
    r += chorner2(g0, g0+1, g1, g1+1, m, m+1, t[6], t[7])
    r += cmul(g1, g1+1, g0, g0+1, vT[12], vT[13], vT[18])
    r += [f"s_lshl_b32 s{sT2}, s{sW}, 3", f"v_add_u32 v{vT[18]}, s{sT2}, v{vLB}", f"ds_write_b64 v{vT[18]}, {vr(g1, 2)}"]
    return r

def scan_P56():
    lb = vT[0]; er, ei = vT[8], vT[12]; c8, c32w = vT[16], vT[20]
    r = [f"ds_read_b128 {vr(lb)}, v{vLB}", f"ds_read_b128 {vr(lb+4)}, v{vLB} offset:16",
         f"ds_read_b64 {vr(c32w, 2)}, v{vCH} offset:{PV_CH+1024}", f"ds_read_b128 {vr(c8)}, v{vCH} offset:{PV_CH}",
         f"ds_read_b128 {vr(er)}, v{vER} offset:{PV_E}", f"ds_read_b128 {vr(ei)}, v{vER} offset:{PV_E+128}", "@gap 2",
         f"v_add_f32 v{lb}, v{lb}, v{lb+2}", f"v_add_f32 v{lb+1}, v{lb+1}, v{lb+3}",
         f"v_add_f32 v{lb+4}, v{lb+4}, v{lb+6}", f"v_add_f32 v{lb+5}, v{lb+5}, v{lb+7}",
         f"v_add_f32 v{lb}, v{lb}, v{lb+4}", f"v_add_f32 v{lb+1}, v{lb+1}, v{lb+5}"]
    q0, q1 = vT[4], vT[20]
    tmp = vT[2]
    r += chorner2(tmp, tmp+1, lb, lb+1, c32w, c32w+1, vWP0, vWP1)
    r += [f"v_mov_b32 v{q0}, v{tmp}", f"v_mov_b32 v{q1}, v{tmp+1}"]
    for k in range(3):
        r += chorner2(q0+k+1, q1+k+1, q0+k, q1+k, c8, c8+1, er+k, ei+k)
    r += [f"ds_write_b128 v{vER}, {vr(q0)} offset:{PV_E}", f"ds_write_b128 v{vER}, {vr(q1)} offset:{PV_E+128}"]
    C = vT[0:10]; Z = vT[10:15]
    for cf in range(5): r.append(f"ds_read_b32 v{Z[cf]}, v{vEW} offset:{PV_E + cf*256}")
    for cf in range(5): r.append(f"ds_read_b64 {vr(C[2*cf], 2)}, v{vCOLR} offset:{PV_COL + cf*256}")
    r.append("@gap 2")
    for tau in range(8):
        src = [(Z[cf] if tau == 0 else ureg(cf, tau-1)) for cf in range(5)]
        for cf in range(5): r.append(f"v_fma_f32 v{ureg(cf, tau)}, v{C[2*cf]}, v{src[cf]}, v{ureg(cf, tau)}")
        for cf in range(5): r.append(f"v_fmac_f32_dpp v{ureg(cf, tau)}, v{src[cf]}, v{C[2*cf+1]} {DPP}")
    k = 0
    for cf in range(5):
        for f in range(2):
            t = vT[16 + 2*(k % 4)]; k += 1
            u = U(cf, f)
            r += [f"v_cvt_pk_bf16_f32 v{t}, v{u}, v{u+1}", f"v_cvt_pk_bf16_f32 v{t+1}, v{u+2}, v{u+3}",
                  f"ds_write_b64 v{vTW}, {vr(t, 2)} offset:{(cf*2+f)*512}"]
    for cf in range(5):
        for jj in range(2):
            r.append(f"ds_read_b64_tr_b16 {vr(56 + 4*cf + 2*jj, 2)}, v{vTR} offset:{cf*1024 + jj*128}")
    for cf in range(5):
        r.append(I(f"buffer_store_dwordx4 {vr(56 + 4*cf)}, v{vHST}, s[{sWS}:{sWS+3}], s{sHO[cf]} offen sc1", tok="HST"))
    return r

def swiglu(acc, h2s, sks, tokname, packed=False):
    r = []
    k = 0
    for h2 in h2s:
        for z in range(2):
            G = vT[0:8]; Uu = vT[8:16]; T = vT[16:24]
            for j in range(8):
                r += [f"v_accvgpr_read_b32 v{G[j]}, a{acc(0, h2) + 8*z + j}", f"v_accvgpr_read_b32 v{Uu[j]}, a{acc(1, h2) + 8*z + j}"]
            if packed:
                for j in range(0, 8, 2): r.append(f"v_pk_mul_f32 {vr(T[j], 2)}, {vr(G[j], 2)}, s[{sEX0}:{sEX0+1}]")
                for j in range(8):
                    r.append(f"v_exp_f32 v{T[j]}, v{T[j]}")
                for j in range(0, 8, 2): r.append(f"v_pk_mul_f32 {vr(G[j], 2)}, {vr(G[j], 2)}, {vr(Uu[j], 2)}")
                for j in range(0, 8, 2): r.append(f"v_pk_add_f32 {vr(T[j], 2)}, {vr(T[j], 2)}, s[{sEX2}:{sEX2+1}]")
                for j in range(8): r.append(f"v_rcp_f32 v{T[j]}, v{T[j]}")
                for j in range(0, 8, 2): r.append(f"v_pk_mul_f32 {vr(G[j], 2)}, {vr(G[j], 2)}, {vr(T[j], 2)}")
            else:
                for j in range(8): r.append(f"v_mul_f32 v{T[j]}, {NLOG2E}, v{G[j]}")
                for j in range(8): r += [f"v_exp_f32 v{T[j]}, v{T[j]}", f"v_mul_f32 v{G[j]}, v{G[j]}, v{Uu[j]}"]
                for j in range(8): r.append(f"v_add_f32 v{T[j]}, 1.0, v{T[j]}")
                for j in range(8): r.append(f"v_rcp_f32 v{T[j]}, v{T[j]}")
                for j in range(8): r.append(f"v_mul_f32 v{G[j]}, v{G[j]}, v{T[j]}")
            o = Uu[0] if k % 2 == 0 else Uu[4]; k += 1
            for j in range(4): r.append(f"v_cvt_pk_bf16_f32 v{o+j}, v{G[2*j]}, v{G[2*j+1]}")
            if z == 0: r.append(f"s_add_u32 s{sT2}, s{sks}, {h2*4096}")
            r.append(I(f"buffer_store_dwordx4 {vr(o)}, v{vHH}, s[{sWS}:{sWS+3}], s{sT2} offen offset:{z*512} sc1", tok=tokname))
    return r

def step_reads(blk, s, par):
    r = []
    if blk == "U":
        i, sh2, sh = s // 4, (s >> 1) & 1, s & 1
        off = i*20480 + sh2*10240 - (61440 if i >= 3 else 0)
        for cf in range(5):
            r.append(f"ds_read_b128 {ar(FB(par, cf))}, v{vRU[sh]} offset:{off + cf*1024}")
    elif blk == "A":
        m, sp = s // 2, s & 1
        for hf in range(2):
            for h2 in range(2):
                for mu in range(2):
                    for jj in range(2):
                        r.append(f"ds_read_b64_tr_b16 {ar(FB(par, hf*4+h2*2+mu) + 2*jj, 2)}, v{vRA[h2]} offset:{(m % 4)*16384 + (2*sp+mu)*4096 + hf*1024 + jj*512}")
    else:
        m, sd = 10 + s // 2, s & 1
        for s2 in range(2):
            for hf in range(2):
                for mu in range(2):
                    for jj in range(2):
                        r.append(f"ds_read_b64_tr_b16 {ar(FB(par, s2*4+hf*2+mu) + 2*jj, 2)}, v{vRB2 if BSLOT[m] >= 4 else vRB} offset:{(BSLOT[m] % 4)*16384 + (2*sd+mu)*4096 + s2*2048 + hf*512 + jj*256}")
    return r

def step_mfma(blk, s, par):
    r = []
    if blk == "U":
        for cf in range(5):
            for f in range(2):
                d = vr(U(cf, f)); c = "0" if s == 0 else d
                r.append(f"v_mfma_f32_16x16x32_bf16 {d}, {vr(X(f, s))}, {ar(FB(par, cf))}, {c}")
    elif blk == "A":
        for hf in range(2):
            for h2 in range(2):
                for mu in range(2):
                    d = ar(ACCA(mu, h2), 16); c = "0" if (s == 0 and hf == 0) else d
                    r.append(f"v_mfma_f32_32x32x16_bf16 {d}, {ar(FB(par, hf*4+h2*2+mu))}, {vr(X(hf, s))}, {c}")
    else:
        for s2 in range(2):
            for hf in range(2):
                for mu in range(2):
                    d = ar(ACCB(mu), 16); c = "0" if (s == 0 and hf == 0 and s2 == 0) else d
                    r.append(f"v_mfma_f32_32x32x16_bf16 {d}, {ar(FB(par, s2*4+hf*2+mu))}, {vr(X(hf, 2*s+s2))}, {c}")
    return r

def swaps(s): return [] if "w" in opt.skip else [f"v_permlane16_swap_b32 v{X(0, s)+k}, v{X(1, s)+k}" for k in range(4)]

def stage_of(blk, s):
    return ("U", s // 4) if blk == "U" else (("M", s // 2) if blk == "A" else ("M", 10 + s // 2))

def cost(i):
    if i.cls in ("pseudo", "label"): return 0
    if i.cls == "trans": return 2
    if i.cls == "vmem": return 2
    return 1

class Feed(list):
    def append(self, i): EM[0].feed(i)

class Queue:
    def __init__(self): self.q = []; self.hold = 0
    def add(self, lst, deadline):
        if "q" in opt.skip:
            lst = [t for t in II(lst) if t.cls in ("vmem",) or t.op.startswith("s_") or t.cls in ("pseudo", "label") or t.op.startswith("v_cmp") or t.op.startswith("v_readfirst") or t.op.startswith("v_accvgpr_read") and "a18" in t.text + "a19"]
        for t in II(lst): self.q.append((t, deadline))
    def _region(self, out):
        i = self.q[0][0]
        end = "@endarm" if i.op == "@arm" else "@raw_end"
        while True:
            j = self.q.pop(0)[0]; out.append(j)
            if j.cls == "pseudo" and j.op == end: break
        while self.q and self.q[0][0].cls == "label": out.append(self.q.pop(0)[0])
    def need(self, gap):
        best = 0; acc = 0
        for t, d in self.q:
            acc += cost(t)
            left = d - gap + 1
            if left <= 0: best = max(best, acc)
            else: best = max(best, -(-acc // left))
        return best
    def pop(self, n, gap):
        out = Feed()
        n = max(n, self.need(gap))
        while self.q and (n > 0 or self.q[0][1] <= gap):
            i = self.q[0][0]
            if i.cls == "pseudo" and i.op == "@gap":
                self.q.pop(0); continue
            if self.q[0][1] > gap:
                look = [i] + ([x for x, d in self.q[1:12] if x.cls == "pseudo"][:1] if i.op.startswith("s_cmp") else [])
                if i.op.startswith("s_cmp"): look += [x for x, d in self.q[1:4]]
                if max(EM[0].stall(x) for x in look) > opt.thr: break
            if i.cls == "pseudo" and i.op in ("@arm", "@raw_begin"):
                self._region(out); n -= 4
                continue
            if i.cls == "branch" or i.op.startswith("s_cmp") or i.op.startswith("s_bitcmp") or i.op.startswith("v_cmp"):
                out.append(self.q.pop(0)[0])
                while self.q:
                    k = self.q[0][0]
                    if k.op.startswith("s_cselect") or k.op.startswith("v_cndmask") or k.cls == "branch": out.append(self.q.pop(0)[0])
                    elif k.op in ("@arm", "@raw_begin"): self._region(out); n -= 4
                    else: break
                n -= 1
                continue
            self.q.pop(0); out.append(i)
            n -= cost(i)
        return out
    def flush(self):
        out = [i for i, d in self.q if not (i.cls == "pseudo" and i.op == "@gap")]
        self.q = []; self.hold = 0
        return out

ACCY = [("a", 4*k) for k in range(20)]
ACCO = [("v", 96 + 4*k) for k in range(20)]
A_SLOTS = [("a", 180 + 4*k) for k in range(4)] + [("a", 80 + 4*k) for k in range(16)]
GA = [("a", 196 + 4*k) for k in range(15)] + [("a", 160 + 4*k) for k in range(5)]
XFREE = [("v", base + 8*d + 4*h) for d in range(10) for base in (96, 176) for h in range(2)]
HI = [("v", 176 + 4*k) for k in range(20)]
def wslot(st, e):
    if st < 4: return GA[st*5 + e]
    if st < 10: return XFREE[(st - 4)*5 + e]
    k = (st - 10) % 8
    return GA[k*5 + e] if k < 4 else HI[(k - 4)*5 + e]
def w_free_after_b(st):
    return -1 if st < 4 else ((st - 4)*5 + 4) // 4
def w_free_after_p(st):
    k = (st - 10) % 8
    if st >= 18: return st - 8
    return k if k < 4 else 9
def rg(t, c=4): return f"{t[0]}[{t[1]}:{t[1]+c-1}]"
vA2 = [3, 4, 5, 6]; vPW = [7, 8, 9]; vPR = 11; vOUT = 13; vXO = 14; vSTA = 15; vDS = 16
vXR = list(range(56, 76)); vY = list(range(76, 96)); vDK = [17, 18, 19, 20, 21]; vST = list(range(32, 40)); vXD2 = [22, 23, 24]; vXL = 25
L_X2 = L_PRIV
NSTEP = 22
def ptr_init(which, part, st):
    p, s0, e0 = (sAP, sAS, sAE) if which == "A" else (sWP, sWB, sWE)
    stride = 4096 if which == "A" else 5120
    base = sP2A if which == "A" else sP2W
    n, k0, rot = (10, 0, sRY) if part == "y" else (12, 40, sRO)
    return [f"s_mul_i32 s{s0}, s{sW}, {n*stride}", f"s_add_u32 s{s0}, s{s0}, s{base}", f"s_add_u32 s{s0}, s{s0}, {k0*stride}",
            f"s_add_u32 s{e0}, s{s0}, {n*stride}", f"s_mul_i32 s{p}, s{rot}, {stride}", f"s_add_u32 s{p}, s{p}, s{s0}"]
def ptr_step(which):
    p, s0, e0 = (sAP, sAS, sAE) if which == "A" else (sWP, sWB, sWE)
    stride = 4096 if which == "A" else 5120
    return [f"s_add_u32 s{p}, s{p}, {stride}", f"s_cmp_eq_u32 s{p}, s{e0}", f"s_cselect_b32 s{p}, s{s0}, s{p}"]
def p2_wload(st):
    r = []
    if st == 0: r += ptr_init("W", "y", st)
    elif st == 10: r += ptr_init("W", "o", st)
    else: r += ptr_step("W")
    for e in range(5):
        slot = wslot(st, e)
        if e < 4: r.append(I(f"buffer_load_dwordx4 {rg(slot)}, v{vL16}, s[{sWS}:{sWS+3}], s{sWP} offen offset:{e*1024} sc1", tok="W"))
        else: r.append(I(f"buffer_load_dwordx4 {rg(slot)}, v{vW4}, s[{sWS}:{sWS+3}], s{sWP} offen sc1", tok="W"))
    return r
def p2_aload(st):
    r = []
    if st == 0: r += ptr_init("A", "y", st)
    elif st == 10: r += ptr_init("A", "o", st)
    else: r += ptr_step("A")
    for jj in range(4):
        r.append(I(f"buffer_load_dwordx4 {rg(A_SLOTS[(st % 5)*4 + jj])}, v{vA2[jj]}, s[{sWS}:{sWS+3}], s{sAP} offen sc1", tok="A"))
    return r
def p2_setup():
    r = []
    for jj in range(4):
        r += [f"s_add_u32 s{sD0}, s{sW}, {jj}", f"s_and_b32 s{sD0}, s{sD0}, 3", f"v_lshl_add_u32 v{vA2[jj]}, s{sD0}, 10, v{vL16}"]
    return r
def p2_setup2():
    r = []
    for jj in range(1, 4):
        r += [f"s_add_u32 s{sT2}, s{sW}, {jj}", f"s_and_b32 s{sT2}, s{sT2}, 3",
              f"s_mul_i32 s{sT3}, s{sT2}, 15360", f"s_add_u32 s{sT3}, s{sT3}, {(3-jj)*5120}", f"v_add_u32 v{vPW[jj-1]}, s{sT3}, v{vL16}"]
    r += [f"s_mul_i32 s{sT3}, s{sW}, 15360", f"v_add_u32 v{vPR}, s{sT3}, v{vL16}"]
    return r

def groups(lst):
    out = []; cur = []
    for t in II(lst):
        cur.append(t)
        if t.cls == "vmem": out.append(cur); cur = []
    if cur: out.append(cur)
    return out
def gstall(grp):
    return max([EM[0].stall(t) for t in grp if t.cls == "vmem" or t.op == "@waitvm"] + [0])

def tagw(st):
    gs = groups(p2_wload(st))
    for gq in gs: gq[-1].lat = None; STEP[id(gq[-1])] = st
    return gs
def taga(st):
    gs = groups(p2_aload(st))
    for gq in gs: STEP[id(gq[-1])] = st
    return gs
STEP = {}

def phase1_blocks():
    Q = Queue()
    seq = [("U", s) for s in range(20)] + [("A", s) for s in range(20)] + [("B", s) for s in range(10)]
    gap0 = []; g = 0
    for blk, s in seq:
        gap0.append(g); g += {"U": 10, "A": 8, "B": 8}[blk]
    gap0.append(g)
    def stage_end(kind, idx):
        n = [k for k, (b, s) in enumerate(seq) if stage_of(b, s) == (kind, idx)][-1]
        return gap0[n]
    L(delay("a", 255, 0, 500)); L(delay("b", 31, 5, 700))
    L(["@waitvm U0", "s_barrier"])
    L(stamp("U start"))
    L(step_reads("U", 0, 0))
    later = []
    bulk = []
    def lat(gs, dl):
        for x in gs: later.append((II(x), dl))
    def blk_(gs, dl):
        for x in gs: bulk.append((II(x), dl))
    lat([u_piece(2, cf) for cf in range(5)], stage_end("U", 0) - 4)
    lat([nonce_publish()], stage_end("U", 0))
    lat([u_piece(3, cf) for cf in range(5)], stage_end("U", 1) - 10)
    lat([u_piece(4, cf) for cf in range(5)], stage_end("U", 2) - 20)
    for n, (blk, s) in enumerate(seq):
        par = n & 1
        mf = step_mfma(blk, s, par)
        nxt = seq[n + 1] if n + 1 < len(seq) else None
        rd = II(step_reads(nxt[0], nxt[1], par ^ 1)) if nxt else []
        if rd: rd[-1].tok = f"rd{n+1}"
        boundary = nxt is None or stage_of(*nxt) != stage_of(blk, s)
        gaps = [[] for _ in mf]
        start = 0
        pre = []
        cap = opt.capU if blk == "U" else opt.capM
        if blk == "U" and s == 11: pre += [f"v_add_u32 v{vRU[0]}, 61440, v{vRU[0]}"]
        if blk == "U" and s == 12: pre += [f"v_add_u32 v{vRU[1]}, 61440, v{vRU[1]}"]
        if blk == "A" and s == 0:
            Q.add(nonce_get(), gap0[n] + 6)
            Q.add(scan_P12(), stage_end("M", opt.X_stage) - 2)
        if blk == "B" and s == 0:
            Q.add(swiglu(ACCA, [0, 1], sKSA, "HHA"), gap0[-1] - 2)
        post = []; plat = []; urgent = []; pbulk = []
        if blk == "B":
            for st in range(4, opt.nearly):
                if w_free_after_b(st) == s - 1: blk_(tagw(st), 10**6)
        if boundary:
            kind, idx = stage_of(blk, s)
            start = 1
            here = gap0[n]; nx1 = here + (40 if blk == "U" else 16)
            if kind == "U" and idx == 1:
                post += [(const_tables(), stage_end("U", 4) - 12), (stats_store(), stage_end("U", 4) - 8), (nonce_load(), stage_end("U", 4) - 4)]
            b = []
            if nxt is not None:
                nk, ni = stage_of(*nxt)
                b.append(I(f"@waitboth {nk}{ni}"))
            else:
                b.append(I("@waitds0"))
            if kind == "M" and idx == opt.F_stage: b += II((["@waitvm RLS"] if "r" not in opt.skip else []) + ["@waitvm stat"])
            if kind == "M" and idx == opt.H_stage: b += II(["@waitvm HST"])
            b.append(I("s_barrier"))
            if (opt.stamps or opt.probe) and (opt.fine or (kind, idx) in (("U", 4), ("M", 9), ("M", 14))): b += II(stamp(f"{kind}{idx} end"))
            gaps[0] += b
            if kind == "U" and idx == 0 and opt.rl_pos == 0: plat.append((relayout_dma(), stage_end("U", 2) - 10))
            if kind == "U" and idx == 1: plat.append((groups(dma_M(0)) + groups(dma_M(1)), stage_end("U", 3) - 10))
            if kind == "U" and idx == 1 and opt.rl_pos == 1: plat.append((relayout_dma(), stage_end("U", 4) - 10))
            if kind == "U" and idx in (2, 3): plat.append((groups(dma_M(idx)), stage_end("M", idx - 1) - opt.slack))
            if kind == "U" and idx == 4:
                plat.append(([mlp_dma_addr("B")], here + 6))
                pbulk.append((groups(dma_M(10)), stage_end("M", opt.b10)))
            if kind == "M" and idx == opt.F_stage: plat.append((groups(flag_store(WS_FLW, sN, sRT)), here + 6))
            if kind == "M" and idx == opt.H_stage: plat.append((groups(flag_store(WS_FLH, sC, sG)), here + 6))
            if kind == "M" and idx + 4 <= 9: plat.append((groups(dma_M(idx + 4)), stage_end("M", idx + 3) - opt.slack))
            if kind == "M" and idx == opt.L_stage: plat.insert(0, (groups(lb_loads()), here + 8))
            if kind == "M" and idx in BISSUE: pbulk.append((groups(dma_M(BISSUE[idx][0])), stage_end("M", BISSUE[idx][0] - 1) - opt.slack))
            if kind == "M" and idx == opt.C_stage:
                assert not any("a[180:183]" in x.text for gq, d in later for x in gq)
                post.append((scan_P4(), stage_end("M", opt.Y_stage) - 2))
            if kind == "M" and idx == opt.X_stage:
                post.append((scan_P3(), stage_end("M", opt.X_stage + 1) - 4))
                post.append((relayout_finish(), stage_end("M", opt.F_stage - 1) - 2))
            if kind == "M" and idx == opt.Y_stage: gaps[0] += II(delay("d", 63, 17, 900))
            if kind == "M" and idx == opt.Y_stage: post.append((scan_P56(), stage_end("M", opt.H_stage - 1) - 6))
            if kind == "M" and idx == opt.W_stage - 1 and opt.nearly:
                plat.append((groups(flag_load(WS_FLW, sN, 0, 31)), nx1))
            if kind == "M" and idx == opt.W_stage and opt.nearly:
                plat.append(([flag_check(WS_FLW, sN, 0, 31)], nx1 + 8))
                for st in range(min(4, opt.nearly)): pbulk.append((tagw(st), 10**6))
            if kind == "M" and idx == 14: urgent += groups(flag_load(WS_FLH, sRT, 1, 15)) + [p2_setup()]
        ng = len(mf)
        if rd:
            if nxt[0] == "U": span = 5
            elif blk == "U": span = 7
            else: span = opt.span
            for k, t in enumerate(rd): gaps[start + (k * span) // len(rd)].append(t)
        if nxt and nxt[0] == "A":
            for k, t in enumerate(II(swaps(nxt[1]))): gaps[ng - 5 + k].append(t)
        if blk == "U" and opt.pre_norm <= s + 1 < 20 and "n" not in opt.skip:
            nq = II(norm_step(1, s + 1, False, vT[20:24]))
            for k, t in enumerate(nq): gaps[(k * ng) // len(nq)].append(t)
        L(pre)
        E(f"@waitds rd{n}")
        for k, t in enumerate(mf):
            E(t)
            L(gaps[k])
            gap = gap0[n] + k
            used = sum(cost(x) for x in gaps[k])
            if boundary and k == 0:
                for lst, dl in post: Q.add(lst, dl)
                for gs, dl in plat: lat(gs, dl)
                for gs, dl in pbulk: blk_(gs, dl)
                lat(urgent, here + 14)
                continue
            slot = (k % 2 == 1) if blk == "U" else (k >= opt.slot0)
            due_b = any(d - gap <= q + len(later) for q, (gq, d) in enumerate(bulk))
            overdue = due_b or any(d - gap <= q for q, (gq, d) in enumerate(later))
            q_ = later if later else bulk
            if q_ and (slot or overdue):
                grp = q_[0][0]
                if overdue or gstall(grp) <= opt.thrm:
                    q_.pop(0); L(grp); used += sum(cost(x) for x in grp)
            Q.pop(cap - used, gap)
    L(Q.flush())
    for gq, d in later: L(gq)
    return [gq for gq, d in bulk]

def p2_mfma(st):
    r = []
    first = st in (0, 10)
    acc = ACCY if st < 10 else ACCO
    for jj in range(4):
        for e in range(5):
            d = rg(acc[jj*5+e]); c = "0" if first else d
            r.append(f"v_mfma_f32_16x16x32_bf16 {d}, {rg(A_SLOTS[(st % 5)*4+jj])}, {rg(wslot(st, e))}, {c}")
    return r

def p2_partials(base, acc):
    return [f"ds_write_b128 v{vPW[jj-1]}, {rg(acc[jj*5+e])} offset:{base + e*1024}" for jj in range(1, 4) for e in range(5)]

def p2_epi_addr():
    dn, q, t = vT[8], vT[9], vT[10]
    r = [f"v_and_b32 v{dn}, 15, v{vLANE}", f"v_lshrrev_b32 v{q}, 4, v{vLANE}",
         f"s_lshl_b32 s{sT2}, s{sRT}, 6", f"s_lshr_b32 s{sT3}, s{sW}, 1", f"s_lshl_b32 s{sT3}, s{sT3}, 5", f"s_add_u32 s{sT2}, s{sT2}, s{sT3}",
         f"s_and_b32 s{sT3}, s{sW}, 1", f"s_lshl_b32 s{sT3}, s{sT3}, 2", f"s_add_u32 s{sT2}, s{sT2}, s{sT3}",
         f"s_lshl_b32 s{sT4}, s{sW}, 13", f"s_add_u32 s{sT4}, s{sT4}, {L_X2}",
         f"v_mul_u32_u24 v{vXL}, 640, v{q}", f"v_lshl_add_u32 v{vXL}, v{dn}, 1, v{vXL}", f"v_add_u32 v{vXL}, s{sT4}, v{vXL}",
         f"v_lshl_add_u32 v{q}, v{q}, 3, s{sT2}",
         f"s_mul_i32 s{sT3}, s{sN}, 80", f"v_add_u32 v{dn}, s{sT3}, v{dn}",
         f"v_mul_u32_u24 v{t}, 640, v{q}", f"v_add_u32 v{t}, v{t}, v{dn}",
         f"v_lshlrev_b32 v{vOUT}, 2, v{t}", f"v_lshlrev_b32 v{vSTA}, 3, v{q}", f"v_lshlrev_b32 v{vDS}, 1, v{dn}",
         f"s_mul_i32 s{sT2}, s{sT2}, 1280", f"s_mul_i32 s{sT3}, s{sN}, 160", f"s_add_u32 s{sT5}, s{sT2}, s{sT3}", f"s_add_u32 s{sT5}, s{sT5}, 4096",
         f"s_mov_b32 s{sT3}, 6554"]
    a, b, c = vT[11], vT[12], vT[13]
    for p in range(3):
        r += [f"v_add_u32 v{a}, {64*p}, v{vLANE}", f"v_mul_u32_u24 v{b}, s{sT3}, v{a}", f"v_lshrrev_b32 v{b}, 16, v{b}",
              f"v_mul_u32_u24 v{c}, 10, v{b}", f"v_sub_u32 v{c}, v{a}, v{c}", f"v_lshlrev_b32 v{c}, 4, v{c}",
              f"v_and_b32 v{a}, 12, v{b}", f"v_add_u32 v{b}, v{a}, v{b}", f"v_mul_u32_u24 v{b}, 1280, v{b}", f"v_add_u32 v{vXD2[p]}, v{b}, v{c}"]
    r += [f"v_mov_b32 v{a}, {OOB}", f"v_cmp_gt_u32 vcc, 32, v{vLANE}", f"v_cndmask_b32 v{vXD2[2]}, v{a}, v{vXD2[2]}, vcc"]
    return r
def p2_epi_loads():
    r = []
    for p in range(3):
        r += [f"s_add_u32 m0, s{sT4}, {p*1024}", "s_nop 0", I(f"buffer_load_dwordx4 v{vXD2[p]}, s[{sX}:{sX+3}], s{sT5} offen lds", tok="XR")]
    for e in range(5):
        r.append(f"global_load_ushort v{vDK[e]}, v{vDS}, s[{pDSK}:{pDSK+1}] offset:{e*32}")
    r += [f"s_mov_b32 s{sD1}, {WS_STAT}",
          f"buffer_load_dwordx4 {vr(vST[0])}, v{vSTA}, s[{sWS}:{sWS+3}], s{sD1} offen sc1",
          f"buffer_load_dwordx4 {vr(vST[4])}, v{vSTA}, s[{sWS}:{sWS+3}], s{sD1} offen offset:16 sc1"]
    return r
def p2_xread():
    r = ["@waitvm XR"]
    for e in range(5):
        for rr in range(4):
            r.append(f"ds_read_u16 v{vXR[e*4+rr]}, v{vXL} offset:{rr*160 + e*32}")
    return r

def p2_yfinish():
    r = []
    T = vT[8:24]
    for e in range(5): r.append(f"v_lshlrev_b32 v{vDK[e]}, 16, v{vDK[e]}")
    for e in range(5):
        b = T[4*(e % 2)]; b2 = T[8 + 4*(e % 2)]
        r.append(f"ds_read_b128 {vr(b)}, v{vPR} offset:{L_YP + e*1024}")
        r.append(f"ds_read_b128 {vr(b2)}, v{vPR} offset:{L_YP + 5120 + e*1024}")
        for rr in range(4): r.append(f"v_lshlrev_b32 v{vXR[e*4+rr]}, 16, v{vXR[e*4+rr]}")
        r.append("@gap 2")
        for rr in range(4): r.append(f"v_add_f32 v{vY[e*4+rr]}, v{vY[e*4+rr]}, v{b+rr}")
        r.append(f"ds_read_b128 {vr(b)}, v{vPR} offset:{L_YP + 10240 + e*1024}")
        for rr in range(4): r.append(f"v_add_f32 v{vY[e*4+rr]}, v{vY[e*4+rr]}, v{b2+rr}")
        for rr in range(4): r.append(f"v_fma_f32 v{b2+rr}, v{vXR[e*4+rr]}, v{vST[2*rr]}, v{vST[2*rr+1]}")
        for rr in range(4): r.append(f"v_fmac_f32 v{vY[e*4+rr]}, v{b2+rr}, v{vDK[e]}")
        for rr in range(4): r.append(f"v_add_f32 v{vY[e*4+rr]}, v{vY[e*4+rr]}, v{b+rr}")
    r += [f"v_add_u32 v{v}, {L_OP}, v{v}" for v in vPW + [vPR]]
    return r

def p2_final():
    r = []
    O = list(range(96, 116)); B = list(range(176, 236))
    for k in range(3):
        for e in range(5):
            r.append(f"ds_read_b128 {vr(B[k*20+e*4])}, v{vPR} offset:{k*5120 + e*1024}")
    for k in range(3):
        for j in range(0, 20, 2):
            r.append(f"v_pk_add_f32 {vr(O[j], 2)}, {vr(O[j], 2)}, {vr(B[k*20+j], 2)}")
    T = B[0:20]
    for j in range(0, 20, 2): r.append(f"v_pk_mul_f32 {vr(T[j], 2)}, {vr(O[j], 2)}, s[{sEX0}:{sEX0+1}]")
    for j in range(20): r.append(f"v_exp_f32 v{T[j]}, v{T[j]}")
    for j in range(0, 20, 2): r.append(f"v_pk_mul_f32 {vr(O[j], 2)}, {vr(O[j], 2)}, {vr(vY[j], 2)}")
    for j in range(0, 20, 2): r.append(f"v_pk_add_f32 {vr(T[j], 2)}, {vr(T[j], 2)}, s[{sEX2}:{sEX2+1}]")
    for rr in range(4):
        r.append(f"s_mov_b32 s{sT2}, {rr*2560}")
        for e in range(5): r.append(f"v_rcp_f32 v{T[e*4+rr]}, v{T[e*4+rr]}")
        for e in range(5):
            j = e*4 + rr
            r += [f"v_fma_f32 v{O[j]}, v{O[j]}, v{T[j]}, v{vXR[j]}",
                  f"buffer_store_dword v{O[j]}, v{vOUT}, s[{sOUT}:{sOUT+3}], s{sT2} offen offset:{e*64} {opt.out_flags}"]
    return r

def weave(main, extra, every=1):
    groups = []; cur = []
    for t in II(extra):
        cur.append(t)
        if t.cls == "vmem": groups.append(cur); cur = []
    if cur: groups.append(cur)
    out = []
    for k, t in enumerate(II(main)):
        out.append(t)
        if groups and k % every == every - 1: out += groups.pop(0)
    for g_ in groups: out += g_
    return out

def phase2(left):
    L(stamp("B mfma end"))
    L(delay("c", 15, 9, 600))
    L([f"s_mov_b32 s{sEX0}, {NLOG2E}", f"s_mov_b32 s{sEX1}, {NLOG2E}", f"s_mov_b32 s{sEX2}, 1.0", f"s_mov_b32 s{sEX3}, 1.0"])
    Wq = list(left); Aq = []
    assert all(id(gq[-1]) in STEP for gq in Wq)
    nextW = opt.nearly; nextA = 0
    def fill(st):
        nonlocal nextW, nextA
        while nextA <= min(st + opt.look, NSTEP - 1): Aq.extend(taga(nextA)); nextA += 1
        while nextW <= min(st + opt.lookW, NSTEP - 1) and (nextW < 10 or w_free_after_p(nextW) < st): Wq.extend(tagw(nextW)); nextW += 1
    def head():
        if Wq and (not Aq or STEP[id(Wq[0][-1])] <= STEP[id(Aq[0][-1])]): return Wq
        return Aq if Aq else None
    sw = II(swiglu(ACCB, [0], sKSB, "HHB", packed=True))
    for k, t in enumerate(sw):
        if k == opt.hchk:
            L(flag_check(WS_FLH, sRT, 1, 15)); fill(-1)
        L([t])
        h = head()
        if h and t.cls != "vmem" and gstall(h[0]) <= 0: L(h.pop(0))
    L(stamp("epi B done"))
    L(p2_setup2()); L(p2_epi_addr())
    Q = Queue(); misc = []
    g = 0
    for st in range(NSTEP):
        mf = p2_mfma(st)
        if st == 10 - opt.look:
            L(flag_check(WS_FLHH, sRT, 1, 15)); L(stamp("hh ready"))
        fill(st)
        if st == 2: misc.extend(groups(p2_epi_loads()))
        if st == 10 - opt.look - 2: misc.extend(groups(flag_load(WS_FLHH, sRT, 1, 15)))
        if st == 10:
            L(stamp("y done"))
            Q.add([f"v_accvgpr_read_b32 v{vY[j]}, a{j}" for j in range(20)] + p2_partials(L_YP, ACCY), g + 58)
            Q.add(p2_xread(), g + 78)
        if st == 13:
            L(Q.flush()); L(["@waitds0", "s_barrier"])
            Q.add(p2_yfinish(), g + 140)
        def must(q): return [gq for gq in q if STEP[id(gq[-1])] <= st + opt.look]
        ng = len(must(Wq)) + len(Aq) + len(misc)
        per = -(-ng // 19)
        for k, t in enumerate(mf):
            E(t)
            used = 0
            if k >= 1:
                for _ in range(max(per, 1)):
                    h = head()
                    if misc and (k % 2 == 0 or not h): L(misc.pop(0)); used += 2
                    elif h and (STEP[id(h[0][-1])] <= st + opt.look or gstall(h[0]) <= opt.thr): L(h.pop(0)); used += 2
            if st == opt.p2pos and k == 19:
                L(["@waitvm HHB", "s_barrier"]); L(flag_store(WS_FLHH, sC, sG)); L(stamp("flags out"))
            Q.pop(2 - used, g); g += 1
        while misc: L(misc.pop(0))
        while head() and STEP[id(head()[0][-1])] <= st + opt.look: L(head().pop(0))
    L(Q.flush())
    L(p2_partials(0, ACCO))
    L(["@waitds0", "s_barrier"])
    L(stamp("out done"))
    L(p2_final())
    L(stamp("end")); L(stamp("cyc1", True))

def diag_out():
    if not opt.diag: return
    L([f"s_lshl_b32 s{sT2}, s2, 2", f"s_add_u32 s{sT2}, s{sT2}, s{sW}", f"s_lshl_b32 s{sT2}, s{sT2}, 2", f"s_add_u32 s{sT2}, s{sT2}, {WS_STAMP}",
       f"v_mov_b32 v{vT[0]}, s{sNONCE}", f"buffer_store_dword v{vT[0]}, off, s[{sWS}:{sWS+3}], s{sT2}"])

def stamps_out():
    if opt.probe:
        L(["@raw_begin", "L_spin:", f"s_memrealtime s[{sSTAMP}:{sSTAMP+1}]", "s_waitcnt lgkmcnt(0)", f"s_sub_u32 s{sT2}, s{sSTAMP}, s3",
           f"s_cmp_lt_u32 s{sT2}, 5000", "s_cbranch_scc1 L_spin", "@raw_end"])
    if not opt.stamps: return
    L([f"s_lshl_b32 s{sT2}, s2, 2", f"s_add_u32 s{sT2}, s{sT2}, s{sW}", f"s_lshl_b32 s{sT2}, s{sT2}, 8", f"s_add_u32 s{sT2}, s{sT2}, {WS_STAMP}",
       f"v_lshlrev_b32 v{vT[0]}, 2, v{vLANE}", f"buffer_store_dword v0, v{vT[0]}, s[{sWS}:{sWS+3}], s{sT2} offen"])

def build():
    EM[0] = Emitter(lines_of, lat_of); lab[0] = 0; stamp_n[0] = 0; stamp_names.clear(); ST.n = 0
    prologue()
    L(scan_addr()); L(mlp_read_addr())
    L(stamp("issued")); L(stamp("cyc0", True))
    E(f"v_mov_b32 v{vONES}, 0x3f803f80")
    if opt.mstat: L([f"v_accvgpr_write_b32 a{aONE+k}, v{vONES}" for k in range(4)])
    constants()
    L(const_park())
    nonce_seed()
    L(relayout_issue())
    L(stamp("consts"))
    tail = x_arrive(0, None, 40)
    L(stamp("x0 in"))
    E("s_barrier")
    L(skew("0"))
    L(tail)
    L(x_stats(0))
    L([f"v_add_u32 v{vRX[0]}, 81920, v{vRX[0]}", f"v_add_u32 v{vRX[1]}, 81920, v{vRX[1]}"])
    nrm = []
    for s in range(20): nrm += norm_step(0, s, opt.pk0, vT[20:24]) if "N" not in opt.skip else []
    tail = x_arrive(1, nrm)
    L(stamp("x1 in"))
    L(weave(tail, ST.next(2, 50), 2))
    L(x_stats(1))
    L(mlp_dma_addr("A"))
    for s in range(opt.pre_norm): L(norm_step(1, s, True, vT[20:24]))
    assert ST.n == 50
    if opt.t_w13: L(w13_touch())
    phase2(phase1_blocks())
    diag_out()
    stamps_out()
    E("s_endpgm")
    return EM[0].out

HEADER = """; Kernarg layout for this problem (128 bytes, ptrs only, base s[0:1]):
; @launch grid=(256,1,1) block=(256,1,1) lds=163840
.amdgcn_target "amdgcn-amd-amdhsa--gfx950"
.text
.globl {k}
.p2align 8
.type {k},@function
{k}:
"""
FOOTER = """
L_exit:
    s_endpgm
L_codeend:
    .fill 64, 4, 0xbf800000
.section .rodata,"a"
.p2align 6
.amdhsa_kernel {k}
  .amdhsa_next_free_vgpr 512
  .amdhsa_next_free_sgpr 102
  .amdhsa_accum_offset 256
  .amdhsa_group_segment_fixed_size 0
  .amdhsa_kernarg_size 128
  .amdhsa_user_sgpr_count 2
  .amdhsa_user_sgpr_kernarg_segment_ptr 1
  .amdhsa_system_sgpr_workgroup_id_x 1
  .amdhsa_float_denorm_mode_32 3
.end_amdhsa_kernel
"""
def text():
    prog = build()
    body = "\n".join(("" if i.cls == "label" else "    ") + i.text for i in prog)
    return HEADER.format(k=KNAME) + body + FOOTER.format(k=KNAME), prog

if __name__ == "__main__":
    out = sys.argv[1]
    for a in sys.argv[2:]:
        k, v = a.split("=")
        cur = getattr(opt, k)
        setattr(opt, k, v.replace("_", " ") if isinstance(cur, str) else (v in ("1", "True") if isinstance(cur, bool) else type(cur)(float(v))))
    t, prog = text()
    open(out, "w").write(t)
    print(stats(prog), len(prog))
    if opt.sim:
        em = EM[0]; prev = 0
        for j, (n, m) in enumerate(zip(stamp_names, em.marks)):
            big = sorted([x for x in em.stalls if x[1] == j], reverse=True)
            print(f"{n:12s} {m:7.0f} ({m-prev:5.0f}) stalls {sum(x[0] for x in big):5.0f} :", "; ".join(f"{x[0]:.0f} {x[2][:44]}" for x in big[:4]))
            prev = m
    if opt.stamps:
        import json
        json.dump(stamp_names, open(out + ".stamps.json", "w"))
```

```python
import sys, os
sys.path.insert(0, os.path.dirname(os.path.abspath(__file__)))
from asmlib import I, stats, insert_nops, Emitter

KNAME = "recurrent_scan__ssm_conv_s5__glu_gated_swiglu__prompt_kernel"

class Opt:
    fine = False
    splitx = False
    fine2 = False
    pk0 = True
    xhit = False
    chain = 0
    sim = False
    fakehit = ''
    delay = 0
    diag = False
    cycles = False
    skip = ''
    probe = ''
    stamps = False
    codepf = True
    krot = True
    prot = False
    pre0 = 220
    win = 8
    pre_norm = 1
    skew = True
    mstat = True
    t_x1 = False
    t_w13 = False
    b10 = 1
    rf_stage = 3
    slack = 22
    rl_pos = 0
    capU = 2
    capM = 5
    span = 5
    X_stage = 2
    L_stage = 5
    C_stage = 7
    Y_stage = 8
    H_stage = 11
    F_stage = 2
    W_stage = 5
    nearly = 12
    rl_nt = True
    out_flags = "sc1"
    x_flags = ""
    w_flags = ""
    p1map = 0
    p2map = 0
    p2pos = 1
    epos = 4
    hack = 91
    haend = 18
    thrs = 100
    hhld = 50
    hhck = 130
    every = 10
    every2 = 4
    a0 = 3
    thrb = 40
    cad = 3
    cadA = 6
    pace = 11.0
    burst = 100
    coldpace = 1.5
    vmcost = 4
    ybar = 15
    hchk = 4
    HL_stage = 13
    look = 2
    lookW = 6
    thr = 16
    dsmax = 3
    interp = True
    vlat = 14
    chainq = True
    dslat = 130
    even = True
    thrm = 100
    slot0 = 5
    earlyA = False
    roty = False
    latA = 640
    latW = 620
opt = Opt()

WS_A2 = 0
WS_W2P = 0xB00000
WS_S = 0xF00000
WS_STAT = 0xF40000
WS_FLW = 0xF50000
WS_FLH = 0xF51000
WS_FLHH = 0xF52000
WS_FLHA = 0xF54000
WS_SEED = 0xF53000
WS_STAMP = 0xF60000
WS_SIZE = 0x1000000
OOB = 0x40000000

L_RL = 102400
L_PRIV = 122880
PV_COL, PV_CH, PV_E = 0, 1280, 4352
L_TT = 155648
L_LB = 159744
L_WY = 0
L_P1 = 81920
L_P2 = 0

sX, sWU, sWM, sWS, sOUT, sRL, sDBG = 36, 40, 44, 48, 52, 56, 60
(sW, sC, sG, sRT, sN, sNONCE, sT0, sT1, sT2, sT3, sXOFF, sUOFF, sMOFF, sMOFFB, sRLOFF, sRLST,
 sA2H, sKSA, sKSB, sSST, sLB0, sLB1, sLB2, sLB3, sEX0, sEX1, sEX2, sEX3, sM0, sM0A, sCNT, sP2A, sP2W, sT4, sT5, sSTATO) = range(64, 100)
sSTAMP = 100
pX, pLRE, pLIM, pBRE, pBIM, pCRE, pCIM, pLDT = 4, 6, 8, 10, 12, 14, 16, 18
pDSK, pBX, pW1, pW3, pW2, pOUT, pDBG, pWS = 20, 22, 24, 26, 28, 30, 32, 34
sKU = [22, 23, 0, 1, 32]
sD0, sD1 = 4, 5
sRY, sRO = 6, 7
sAP, sAS, sAE, sWP, sWB, sWE = 8, 9, 10, 11, 12, 13
sM0U, sSEEDO = 18, 19
sD2 = 31
sRLT = 33
sHO = [24, 25, 26, 27, 30]

vLANE, vL16 = 1, 2
vRX = [3, 4]; vRU = [5, 6]
vRA = [7, 8]; vRB = 9; vHH = 10; vDU = 11; vW4 = 12
vD = [13, 14, 15, 16]
vXD = vD
vDB = [3, 4, 5, 6]; vRB2 = 11
BSLOT = {10: 4, 11: 5, 12: 2, 13: 3, 14: 0}
BISSUE = {2: (11, 7), 6: (12, 8), 7: (13, 9), 8: (14, 10)}
vUD = [11, 27, 28, 29]
vEW, vER, vCOLR, vCH, vTT, vLB, vTW, vTR, vHST, vSO = range(17, 27)
vWP0, vWP1, vFLAG, vNON = 27, 28, 29, 30
vT = list(range(32, 56))
def U(cf, f): return 56 + (cf * 2 + f) * 4
def X(f, s): return 96 + (f * 20 + s) * 4
def ACCA(mu, h2): return (mu * 2 + h2) * 16
def FB(par, fr): return 64 + par * 32 + fr * 4
def ACCB(mu, h2=0): return 128 + mu * 16
aRL = 160
aS = 180

def vr(n, c=4): return f"v[{n}:{n+c-1}]"
def ar(n, c=4): return f"a[{n}:{n+c-1}]"
def sr(n, c=4): return f"s[{n}:{n+c-1}]"

def lines_of(i):
    t = i.text
    if "ushort" in t: return 1
    if i.tok and i.tok[0] == "M" and int(i.tok[1:]) >= 10: return 16
    if i.tok == "RL": return 16
    if i.tok == "XR": return 11
    if " off," in t and "global" not in t: return 1
    if "dwordx2" in t: return 2
    if "load_dword " in t and "offen" in t: return 1 if "sc1" in t else 32
    if "global_load_dword" in t: return 0
    if "store_dword " in t: return 4 if "offen" in t else 1
    return 8
def lat_of(i):
    t = i.text; tok = i.tok or ""
    cold = 1500
    if "store" in t: return 820 if "sc1" in t else 330
    if tok.startswith("x"): return cold if tok in ("x0_0", "x0_1", "x1_0", "x1_1") else 800
    if tok.startswith("U"): return cold if tok == "U0" else 800
    if tok == "RL" or tok == "TW": return cold
    if tok.startswith("M"): return cold if (tok in ("M0", "M1", "M10") and not opt.t_w13) else 520
    if tok == "W" or tok.startswith("WL"): return opt.latW
    if tok == "A": return opt.latA
    if "sc1" in t: return 1000
    return 700
EM = [None]
CAP = [None]
def E(t, tok=None):
    i = I(t, tok)
    if CAP[0] is not None: CAP[0].append(i)
    else: EM[0].feed(i)
    return i
def L(lst):
    for t in lst:
        i = t if isinstance(t, I) else I(t)
        if CAP[0] is not None: CAP[0].append(i)
        else: EM[0].feed(i)
def atoms(lst):
    out = []; depth = 0
    for i in lst:
        glue = depth > 0 or i.op.startswith(("s_cselect", "s_addc", "s_subb", "v_cndmask", "v_addc")) or i.cls in ("branch", "label") or i.op in ("@arm", "@else", "@endarm")
        if out and glue: out[-1].append(i)
        else: out.append([i])
        if i.op == "@arm": depth += 1
        if i.op == "@endarm": depth -= 1
    return out
def II(lst): return [t if isinstance(t, I) else I(t) for t in lst]

def srd(d, p, nbytes):
    return [f"s_mov_b32 s{d}, s{p}", f"s_and_b32 s{d+1}, s{p+1}, 0xffff", f"s_mov_b32 s{d+2}, {nbytes}", f"s_mov_b32 s{d+3}, 0x20000"]

stamp_n = [0]
stamp_names = []
def stamp(name, cyc=False):
    if opt.probe:
        if name != opt.probe: return []
        return [f"s_memrealtime s[{sSTAMP}:{sSTAMP+1}]", "@waitds0", f"s_mov_b32 s3, s{sSTAMP}"]
    if not opt.stamps: return []
    k = stamp_n[0]; stamp_n[0] += 1
    stamp_names.append(name)
    return [f"s_memtime s[{sSTAMP}:{sSTAMP+1}]" if (cyc or opt.cycles) else f"s_memrealtime s[{sSTAMP}:{sSTAMP+1}]", "@waitds0",
            f"v_writelane_b32 v0, s{sSTAMP}, {k}"]

def cmul(dr, di, ar_, ai, br, bi, t):
    return [f"v_mul_f32 v{t}, v{ai}, v{bi}", f"v_mul_f32 v{di}, v{ai}, v{br}",
            f"v_fma_f32 v{dr}, v{ar_}, v{br}, -v{t}", f"v_fmac_f32 v{di}, v{ar_}, v{bi}"]
def csq(dr, di, r, i, t):
    return [f"v_mul_f32 v{t}, v{i}, v{i}", f"v_mul_f32 v{di}, v{r}, v{i}",
            f"v_fma_f32 v{dr}, v{r}, v{r}, -v{t}", f"v_add_f32 v{di}, v{di}, v{di}"]
def chorner2(dr, di, gr, gi, mr, mi, er, ei):
    return [f"v_fma_f32 v{dr}, v{mr}, v{gr}, v{er}", f"v_fma_f32 v{di}, v{mr}, v{gi}, v{ei}",
            f"v_fma_f32 v{dr}, -v{mi}, v{gi}, v{dr}", f"v_fma_f32 v{di}, v{mi}, v{gr}, v{di}"]

LOG2E = "0x3fb8aa3b"
NLOG2E = "0xbfb8aa3b"
INV2PI = "0.15915494"

def x_piece(n):
    f, S, ih = n // 20, (n % 20) // 2, n & 1
    p = n & 3
    r = []
    if p == 0:
        r = [f"s_add_u32 m0, s{sM0}, {f*81920 + (2*S)*1024}", f"s_add_u32 s{sD1}, s{sKU[S >> 1]}, s{sXOFF}"]
        if f: r.append(f"s_add_u32 s{sD1}, s{sD1}, {4*1280}")
    r.append(I(f"buffer_load_dwordx4 v{vXD[p]}, s[{sX}:{sX+3}], s{sD1} offen offset:{p*1024} {opt.x_flags} lds", tok=f"x{f}_{S}"))
    return r
def u_piece(i, cf):
    r = []
    if cf == 0: r = [f"s_add_u32 m0, s{sM0U}, {i*20480}", f"s_add_u32 s{sD1}, s{sKU[i]}, s{sUOFF}"]
    if cf == 4: r = [f"s_add_u32 m0, s{sM0U}, {i*20480 + 4096}", f"s_add_u32 s{sD1}, s{sD1}, {4*10240}"]
    r.append(I(f"buffer_load_dwordx4 v{vUD[cf & 3]}, s[{sWU}:{sWU+3}], s{sD1} offen offset:{(cf & 3)*1024} {opt.w_flags} lds", tok=f"U{i}"))
    return r
class Stream:
    def __init__(self): self.n = 0
    def next(self, k, limit=60):
        r = []
        for _ in range(k):
            if self.n >= limit: break
            r += x_piece(self.n) if self.n < 40 else u_piece((self.n - 40) // 5, (self.n - 40) % 5)
            self.n += 1
        return r
ST = Stream()

def prologue():
    E(f"s_cmp_ge_u32 s2, 256")
    E("s_cbranch_scc1 L_exit")
    E("s_load_dwordx16 s[4:19], s[0:1], 0")
    E("s_load_dwordx16 s[20:35], s[0:1], 64")
    if opt.stamps or opt.probe == "entry":
        E(f"s_{'memtime' if opt.cycles else 'memrealtime'} s[{sSTAMP}:{sSTAMP+1}]")
    if opt.codepf:
        L(["@raw_begin", "s_cmp_lt_u32 s2, 32", "s_cbranch_scc0 L_nopf", f"s_getpc_b64 s[{sT2}:{sT3}]", "L_pc:",
           f"s_lshl_b32 s{sT4}, s2, 12", f"s_and_b32 s{sT4}, s{sT4}, 0x8000",
           f"v_lshlrev_b32 v{vT[0]}, 7, v0", f"v_add_u32 v{vT[0]}, s{sT4}, v{vT[0]}", f"v_min_u32 v{vT[0]}, L_codeend-L_pc-4, v{vT[0]}",
           f"v_mov_b32 v{vT[1]}, s{sT3}", f"v_add_co_u32 v{vT[0]}, vcc, s{sT2}, v{vT[0]}", "s_nop 1", f"v_addc_co_u32 v{vT[1]}, vcc, 0, v{vT[1]}, vcc",
           f"global_load_dword a230, v[{vT[0]}:{vT[1]}], off", "L_nopf:", "@raw_end"])
    E(f"v_lshrrev_b32 v{vT[0]}, 6, v0")
    E(f"v_and_b32 v{vLANE}, 63, v0")
    E(f"v_readfirstlane_b32 s{sW}, v{vT[0]}")
    E(f"v_lshlrev_b32 v{vL16}, 4, v{vLANE}")
    L([f"s_and_b32 s{sT0}, s2, 7", f"s_lshr_b32 s{sT1}, s2, 3"])
    if opt.p1map == 0:
        L([f"s_and_b32 s{sC}, s{sT0}, 1", f"s_lshl_b32 s{sC}, s{sC}, 3", f"s_and_b32 s{sT2}, s{sT1}, 7", f"s_add_u32 s{sC}, s{sC}, s{sT2}",
           f"s_lshr_b32 s{sG}, s{sT0}, 1", f"s_lshl_b32 s{sG}, s{sG}, 2", f"s_lshr_b32 s{sT2}, s{sT1}, 3", f"s_add_u32 s{sG}, s{sG}, s{sT2}"])
    else:
        L([f"s_and_b32 s{sC}, s{sT0}, 3", f"s_lshl_b32 s{sC}, s{sC}, 2", f"s_and_b32 s{sT2}, s{sT1}, 3", f"s_add_u32 s{sC}, s{sC}, s{sT2}",
           f"s_lshr_b32 s{sG}, s{sT0}, 2", f"s_lshl_b32 s{sG}, s{sG}, 3", f"s_lshr_b32 s{sT2}, s{sT1}, 2", f"s_add_u32 s{sG}, s{sG}, s{sT2}"])
    t0, t1, t2, t3 = vT[0:4]
    L([f"v_lshrrev_b32 v{t0}, 3, v{vLANE}", f"v_and_b32 v{t1}, 7, v{vLANE}", f"v_and_b32 v{t2}, 6, v{t0}",
       f"v_xor_b32 v{t1}, v{t1}, v{t2}", f"v_lshlrev_b32 v{t1}, 4, v{t1}",
       f"v_and_b32 v{t2}, 4, v{t0}", f"v_add_u32 v{t2}, v{t2}, v{t0}",
       f"v_mul_u32_u24 v{vD[0]}, 1280, v{t2}", f"v_add_u32 v{vD[0]}, v{vD[0]}, v{t1}",
       f"v_mul_u32_u24 v{vDU}, 1280, v{t0}", f"v_add_u32 v{vDU}, v{vDU}, v{t1}",
       f"v_add_u32 v{vD[0]}, 4096, v{vD[0]}", f"v_add_u32 v{vD[1]}, {16*1280 - 1024}, v{vD[0]}",
       f"v_add_u32 v{vD[2]}, {128 - 2048}, v{vD[0]}", f"v_add_u32 v{vD[3]}, {16*1280 + 128 - 3072}, v{vD[0]}"])
    L([f"s_mul_i32 s{sT2}, s{sG}, 80", f"v_min_u32 v{t3}, 39, v{vLANE}", f"v_lshlrev_b32 v{t3}, 1, v{t3}", f"v_add_u32 v{t3}, s{sT2}, v{t3}"])
    L([f"s_lshl_b32 s{sXOFF}, s{sC}, 2", f"s_add_u32 s{sXOFF}, s{sXOFF}, s{sW}", f"s_mul_i32 s{sXOFF}, s{sXOFF}, {0 if opt.xhit else 32*1280}",
       f"s_mul_i32 s{sM0}, s{sW}, 20480"])
    if opt.krot:
        L([f"s_add_u32 s{sT4}, s{sC}, s{sG}", f"s_mul_i32 s{sT5}, s{sT4}, 52", f"s_lshr_b32 s{sT5}, s{sT5}, 8", f"s_mul_i32 s{sT5}, s{sT5}, 5",
           f"s_sub_u32 s{sT4}, s{sT4}, s{sT5}", f"s_lshl_b32 s{sT4}, s{sT4}, 8"])
    else:
        E(f"s_mov_b32 s{sT4}, 0")
    E("@waitds0")
    if opt.probe == "entry": E(f"s_mov_b32 s3, s{sSTAMP}")
    if opt.stamps:
        E(f"v_mov_b32 v0, 0")
        E(f"v_writelane_b32 v0, s{sSTAMP}, 0"); stamp_n[0] = 1; stamp_names.append("entry")
    if opt.chain:
        L([f"s_mul_i32 s{sT2}, s2, {60*128}", f"s_add_u32 s{sT2}, s{pW2}, s{sT2}", f"s_addc_u32 s{sT3}, s{pW2+1}, 0", f"v_mov_b32 v{vT[8]}, 0"])
        for k in range(opt.chain):
            L([f"global_load_dword v{vT[9]}, v{vT[8]}, s[{sT2}:{sT3}]", "@waitvm0", f"v_add_u32 v{vT[8]}, 128, v{vT[8]}"])
    E(f"global_load_ushort v{vT[4]}, v{t3}, s[{pLRE}:{pLRE+1}]")
    E(f"global_load_ushort v{vT[5]}, v{t3}, s[{pLIM}:{pLIM+1}]")
    E(f"global_load_ushort v{vT[6]}, v{t3}, s[{pLDT}:{pLDT+1}]")
    L([f"s_sub_u32 s{sX}, s{pX}, 4096", f"s_subb_u32 s{sX+1}, s{pX+1}, 0", f"s_and_b32 s{sX+1}, s{sX+1}, 0xffff",
       f"s_mov_b32 s{sX+2}, {2048*1280 + 4096}", f"s_mov_b32 s{sX+3}, 0x20000"])
    L(srd(sDBG, pDBG, 256))
    def ku(j): return [f"s_add_u32 s{sKU[j]}, s{sT4}, {j*256}", f"s_cmp_ge_u32 s{sKU[j]}, 1280", f"s_cselect_b32 s{sT5}, 1280, 0", f"s_sub_u32 s{sKU[j]}, s{sKU[j]}, s{sT5}"]
    L(ku(0)); L(ST.next(4))
    L(srd(sWS, pWS, WS_SIZE))
    L([f"s_or_b32 s{sT2}, s2, s{sW}", f"s_cmp_eq_u32 s{sT2}, 0", f"s_mov_b32 s{sT3}, {WS_SEED}", f"s_cselect_b32 s{sSEEDO}, s{sT3}, {OOB}"])
    E(f"buffer_load_dword v{vT[7]}, off, s[{sWS}:{sWS+3}], s{sSEEDO} sc1")
    L(ku(1)); L(ST.next(opt.win - 4))
    for j in range(2, 5): L(ku(j))
    i_, q_, a0, a1 = vT[8:12]
    L([f"v_and_b32 v{i_}, 15, v{vLANE}", f"v_lshrrev_b32 v{q_}, 4, v{vLANE}",
       f"v_and_b32 v{a0}, 7, v{i_}", f"v_and_b32 v{a1}, 6, v{i_}", f"v_xor_b32 v{a1}, v{a1}, v{q_}", f"v_lshlrev_b32 v{a1}, 4, v{a1}",
       f"v_lshl_add_u32 v{a1}, v{a0}, 7, v{a1}",
       f"v_lshrrev_b32 v{a0}, 3, v{i_}",
       f"v_mul_u32_u24 v{vRU[0]}, 5120, v{a0}", f"v_add_u32 v{vRU[0]}, v{vRU[0]}, v{a1}", f"v_xor_b32 v{vRU[1]}, 64, v{vRU[0]}",
       f"v_lshl_add_u32 v{vRX[0]}, v{a0}, 10, v{a1}", f"v_add_u32 v{vRX[0]}, s{sM0}, v{vRX[0]}", f"v_xor_b32 v{vRX[1]}, 64, v{vRX[0]}",
       f"v_add_u32 v{vW4}, 4096, v{vL16}", f"v_mov_b32 v{vONES}, 0x3f803f80"])
    L([f"v_accvgpr_write_b32 a{aONE+k}, v{vONES}" for k in range(4)])
    L([f"v_add_u32 v{vUD[p]}, {p*(10240 - 1024)}, v{vDU}" for p in range(1, 4)])

def setup_rest():
    t0 = vT[0]
    L([f"s_bitcmp1_b32 s{sW}, 0",
       f"s_cselect_b32 s{sWU}, s{pBIM}, s{pBRE}", f"s_cselect_b32 s{sWU+1}, s{pBIM+1}, s{pBRE+1}",
       f"s_cselect_b32 s{sWM}, s{pW3}, s{pW1}", f"s_cselect_b32 s{sWM+1}, s{pW3+1}, s{pW1+1}",
       f"s_and_b32 s{sWU+1}, s{sWU+1}, 0xffff", f"s_and_b32 s{sWM+1}, s{sWM+1}, 0xffff",
       f"s_mov_b32 s{sWU+2}, {640*1280}", f"s_mov_b32 s{sWU+3}, 0x20000",
       f"s_mov_b32 s{sWM+2}, {640*3072}", f"s_mov_b32 s{sWM+3}, 0x20000"])
    L(srd(sOUT, pOUT, 2048*2560))
    if opt.p2map == 0:
        L([f"s_lshl_b32 s{sRT}, s{sT0}, 2", f"s_and_b32 s{sT2}, s{sT1}, 3", f"s_add_u32 s{sRT}, s{sRT}, s{sT2}", f"s_lshr_b32 s{sN}, s{sT1}, 2"])
    else:
        L([f"s_and_b32 s{sRT}, s{sT0}, 3", f"s_lshl_b32 s{sRT}, s{sRT}, 3", f"s_and_b32 s{sT2}, s{sT1}, 7", f"s_add_u32 s{sRT}, s{sRT}, s{sT2}",
           f"s_lshr_b32 s{sN}, s{sT0}, 2", f"s_lshl_b32 s{sN}, s{sN}, 2", f"s_lshr_b32 s{sT2}, s{sT1}, 3", f"s_add_u32 s{sN}, s{sN}, s{sT2}"])
    L([f"s_mul_i32 s{sUOFF}, s{sG}, {40*1280}", f"s_lshr_b32 s{sT2}, s{sW}, 1", f"s_lshl_b32 s{sT2}, s{sT2}, 7", f"s_add_u32 s{sUOFF}, s{sUOFF}, s{sT2}",
       f"s_mul_i32 s{sM0U}, s{sW}, 5120"])
    L([f"s_mul_i32 s{sT2}, s{sG}, 192", f"s_bitcmp1_b32 s{sG}, 0",
       f"s_cselect_b32 s{sT3}, 64, 0", f"s_cselect_b32 s{sT4}, 0, 128", f"s_add_u32 s{sMOFF}, s{sT2}, s{sT3}", f"s_add_u32 s{sMOFFB}, s{sT2}, s{sT4}",
       f"s_lshr_b32 s{sT2}, s{sW}, 1",
       f"s_mul_i32 s{sT3}, s{sT2}, {32*3072}", f"s_add_u32 s{sMOFF}, s{sMOFF}, s{sT3}",
       f"s_mul_i32 s{sT3}, s{sT2}, {64*3072}", f"s_add_u32 s{sMOFFB}, s{sMOFFB}, s{sT3}",
       f"s_lshl_b32 s{sM0A}, s{sW}, 12"])
    L([f"s_lshl_b32 s{sT3}, s{sC}, 1", f"s_add_u32 s{sT3}, s{sT3}, s{sT2}", f"s_mul_i32 s{sA2H}, s{sT3}, {88*4096}",
       f"s_and_b32 s{sT3}, s{sW}, 1", f"s_lshl_b32 s{sT3}, s{sT3}, 11", f"s_add_u32 s{sA2H}, s{sA2H}, s{sT3}",
       f"s_mul_i32 s{sT3}, s{sG}, 3", f"s_add_u32 s{sT3}, s{sT3}, 40", f"s_and_b32 s{sT4}, s{sG}, 1",
       f"s_add_u32 s{sKSA}, s{sT3}, s{sT4}", f"s_lshl_b32 s{sKSA}, s{sKSA}, 12", f"s_add_u32 s{sKSA}, s{sKSA}, s{sA2H}",
       f"s_xor_b32 s{sT4}, s{sT4}, 1", f"s_lshl_b32 s{sT4}, s{sT4}, 1",
       f"s_add_u32 s{sKSB}, s{sT3}, s{sT4}", f"s_lshl_b32 s{sKSB}, s{sKSB}, 12", f"s_add_u32 s{sKSB}, s{sKSB}, s{sA2H}"])
    L([f"s_lshl_b32 s{sT3}, s{sG}, 4", f"s_add_u32 s{sT4}, s{sT3}, s{sC}", f"s_mul_i32 s{sT4}, s{sT4}, 640", f"s_add_u32 s{sT4}, s{sT4}, {WS_S}",
       f"s_cmp_eq_u32 s{sW}, 3", f"s_cselect_b32 s{sSST}, s{sT4}, {OOB}"])
    for jj, sl in enumerate((sLB0, sLB1, sLB2, sLB3)):
        L([f"s_lshl_b32 s{sT4}, s{sW}, 2", f"s_add_u32 s{sT4}, s{sT4}, s{sC}", f"s_add_i32 s{sT4}, s{sT4}, {jj-16}",
           f"s_add_u32 s{sT5}, s{sT3}, s{sT4}", f"s_mul_i32 s{sT5}, s{sT5}, 640", f"s_add_u32 s{sT5}, s{sT5}, {WS_S}",
           f"s_cmp_ge_i32 s{sT4}, 0", f"s_cselect_b32 s{sl}, s{sT5}, {OOB}"])
    L([f"s_lshl_b32 s{sT3}, s{sC}, 2", f"s_add_u32 s{sT3}, s{sT3}, s{sW}", f"s_lshl_b32 s{sT3}, s{sT3}, 8", f"s_add_u32 s{sT3}, s{sT3}, {WS_STAT}",
       f"s_cmp_eq_u32 s{sG}, 0", f"s_cselect_b32 s{sSTATO}, s{sT3}, {OOB}"])
    for cf in range(5):
        L([f"s_mul_i32 s{sT2}, s{sG}, 5", f"s_add_u32 s{sT2}, s{sT2}, {cf}", f"s_and_b32 s{sT4}, s{sT2}, 3", f"s_lshr_b32 s{sT2}, s{sT2}, 2",
           f"s_lshl_b32 s{sT2}, s{sT2}, 12", f"s_lshl_b32 s{sT4}, s{sT4}, 8", f"s_add_u32 s{sT2}, s{sT2}, s{sT4}", f"s_add_u32 s{sHO[cf]}, s{sT2}, s{sA2H}"])
    L([f"s_mul_i32 s{sP2A}, s{sRT}, {88*4096}", f"s_mul_i32 s{sP2W}, s{sN}, {88*5120}", f"s_add_u32 s{sP2W}, s{sP2W}, {WS_W2P}"])
    if "A" in opt.fakehit: E(f"s_mov_b32 s{sP2A}, 0")
    if "W" in opt.fakehit: E(f"s_mov_b32 s{sP2W}, {WS_W2P}")
    L(ptr_bases())

cAR, cAI, cKR, cKI = 56, 57, 58, 59
cA8, cA32, cA32W, cA128, cOM = 60, 62, 64, 66, 68
def constants():
    lre, lim, ldt = vT[4], vT[5], vT[6]
    t = list(range(72, 96))
    L([f"v_lshlrev_b32 v{lre}, 16, v{lre}", f"v_lshlrev_b32 v{lim}, 16, v{lim}", f"v_lshlrev_b32 v{ldt}, 16, v{ldt}",
       f"v_mul_f32 v{t[0]}, {LOG2E}, v{ldt}", f"v_exp_f32 v{t[0]}, v{t[0]}",
       f"v_cvt_pk_bf16_f32 v{t[0]}, v{t[0]}, v{t[0]}", f"v_lshlrev_b32 v{t[0]}, 16, v{t[0]}",
       f"v_mul_f32 v{t[1]}, v{t[0]}, v{lre}", f"v_mul_f32 v{t[2]}, v{t[0]}, v{lim}",
       f"v_mul_f32 v{t[1]}, {LOG2E}, v{t[1]}", f"v_exp_f32 v{t[1]}, v{t[1]}",
       f"v_mul_f32 v{t[2]}, {INV2PI}, v{t[2]}", f"v_rndne_f32 v{t[3]}, v{t[2]}", f"v_sub_f32 v{t[2]}, v{t[2]}, v{t[3]}",
       f"v_cos_f32 v{t[3]}, v{t[2]}", f"v_sin_f32 v{t[4]}, v{t[2]}",
       f"v_mul_f32 v{cAR}, v{t[1]}, v{t[3]}", f"v_mul_f32 v{cAI}, v{t[1]}, v{t[4]}",
       f"v_add_f32 v{t[3]}, -1.0, v{cAR}",
       f"v_mul_f32 v{t[5]}, v{lre}, v{lre}", f"v_fmac_f32 v{t[5]}, v{lim}, v{lim}", f"v_rcp_f32 v{t[5]}, v{t[5]}",
       f"v_mul_f32 v{t[6]}, v{t[3]}, v{lre}", f"v_fmac_f32 v{t[6]}, v{cAI}, v{lim}",
       f"v_mul_f32 v{t[7]}, v{cAI}, v{lre}", f"v_fma_f32 v{t[7]}, -v{t[3]}, v{lim}, v{t[7]}",
       f"v_add_f32 v{t[5]}, v{t[5]}, v{t[5]}",
       f"v_mul_f32 v{cKR}, v{t[6]}, v{t[5]}", f"v_mul_f32 v{cKI}, v{t[7]}, v{t[5]}"])
    r, i, tt = t[8], t[9], t[0]
    L([f"v_mov_b32 v{r}, v{cAR}", f"v_sub_f32 v{i}, 0, v{cAI}"])
    L(csq(t[10], t[11], r, i, tt)); L(csq(r, i, t[10], t[11], tt))
    L(csq(cA8, cA8+1, r, i, tt))
    L(csq(r, i, cA8, cA8+1, tt))
    L(csq(cA32, cA32+1, r, i, tt))
    L(csq(t[12], t[13], cA32, cA32+1, tt))
    L(csq(cA128, cA128+1, t[12], t[13], tt))
    L(csq(r, i, cA128, cA128+1, tt))
    L(csq(t[14], t[15], r, i, tt))
    L(csq(t[16], t[17], t[14], t[15], tt))
    def sel(dst, src, mask, on):
        if on:
            return [f"v_cndmask_b32 v{dst}, 1.0, v{src}, s[{mask}:{mask+1}]", f"v_cndmask_b32 v{dst+1}, 0, v{src+1}, s[{mask}:{mask+1}]"]
        return [f"v_mov_b32 v{t[22]}, 1.0", f"v_mov_b32 v{t[23]}, 0",
                f"v_cndmask_b32 v{dst}, v{src}, v{t[22]}, s[{mask}:{mask+1}]", f"v_cndmask_b32 v{dst+1}, v{src+1}, v{t[23]}, s[{mask}:{mask+1}]"]
    L([f"s_bitcmp1_b32 s{sW}, 0", f"s_cselect_b64 s[{sEX0}:{sEX0+1}], -1, 0", f"s_bitcmp1_b32 s{sW}, 1", f"s_cselect_b64 s[{sEX2}:{sEX2+1}], -1, 0"])
    L(sel(t[18], cA32, sEX0, True)); L(sel(t[20], t[12], sEX2, True))
    L(cmul(cA32W, cA32W+1, t[18], t[19], t[20], t[21], tt))
    L(sel(t[18], t[14], sEX0, False)); L(sel(t[20], t[16], sEX2, False))
    L(cmul(cOM, cOM+1, t[18], t[19], t[20], t[21], tt))

def nonce_seed():
    sd = vT[7]
    L([f"s_mov_b32 s{sT2}, 1664525", f"v_mul_lo_u32 v{sd}, v{sd}, s{sT2}", f"v_add_u32 v{vNON}, 1013904223, v{sd}", f"v_mov_b32 v{vNON+1}, 1"])
    E(f"buffer_store_dword v{vNON}, off, s[{sWS}:{sWS+3}], s{sSEEDO} sc1", tok="seed")
def nonce_publish():
    return [f"s_cmp_lt_u32 s{sSEEDO}, {OOB}", f"s_cselect_b32 s{sT5}, 0, {OOB}", "@waitvm seed",
            f"buffer_store_dwordx2 v[{vNON}:{vNON+1}], off, s[{sDBG}:{sDBG+3}], s{sT5} sc1"]

lab = [0]
def poll(load_text, check):
    lab[0] += 1
    n = lab[0]
    r = list(check)
    r += [f"s_cbranch_vccz L_ok{n}", "@raw_begin", f"s_mov_b32 s{sCNT}, {0x4000 if opt.diag else 0x40000}", f"L_rt{n}:", "s_sleep 1"]
    r += [t.text if isinstance(t, I) else t for t in load_text]
    r += ["s_waitcnt vmcnt(0)", "s_nop 1"] + list(check) + [f"s_cbranch_vccz L_ok{n}", f"s_sub_u32 s{sCNT}, s{sCNT}, 1",
          f"s_cmp_lg_u32 s{sCNT}, 0", f"s_cbranch_scc1 L_rt{n}"]
    if opt.diag: r += [f"buffer_store_dword v{vLANE}, off, s[{sDBG}:{sDBG+3}], 0 offset:{32+4*n} sc1", "s_waitcnt vmcnt(0)"]
    r += ["s_nop 7", "@raw_end", f"L_ok{n}:"]
    return r
def nonce_load():
    return [f"buffer_load_dwordx2 v[{vNON}:{vNON+1}], off, s[{sDBG}:{sDBG+3}], 0 sc1"]
def nonce_get():
    return poll(nonce_load(), [f"v_cmp_ne_u32 vcc, 1, v{vNON+1}"]) + [f"v_readfirstlane_b32 s{sNONCE}, v{vNON}"]

sS0, sS1, sQ0, sQ1 = vT[8], vT[9], vT[10], vT[11]
vR = [vT[12], vT[14]]; vNB = [vT[13], vT[15]]
vM = [vT[16], vT[17]]
vONES = vT[18]
def x_arrive(f, filler=None, limit=60):
    fa = atoms(II(filler or []))
    tot = sum(len(a) for a in fa); chunks = [[] for _ in range(10)]; acc = 0
    for a in fa:
        chunks[min(9, acc * 10 // max(tot, 1))] += a; acc += len(a)
    if not opt.mstat: L([f"v_mov_b32 v{sS0}, 0", f"v_mov_b32 v{sS1}, 0", f"v_mov_b32 v{sQ0}, 0", f"v_mov_b32 v{sQ1}, 0"])
    def st(s):
        r = []
        if opt.mstat:
            c0 = "0" if s == 0 else ar(aSS); c1 = "0" if s == 0 else ar(aSQ)
            return [f"v_mfma_f32_16x16x32_bf16 {ar(aSS)}, {ar(aONE)}, {vr(X(f, s))}, {c0}",
                    f"v_mfma_f32_16x16x32_bf16 {ar(aSQ)}, {vr(X(f, s))}, {vr(X(f, s))}, {c1}"]
        for k in range(4):
            x = X(f, s) + k
            r += [f"v_dot2_f32_bf16 v{(sS0, sS1)[k&1]}, v{x}, v{vONES}, v{(sS0, sS1)[k&1]}",
                  f"v_dot2_f32_bf16 v{(sQ0, sQ1)[k&1]}, v{x}, v{x}, v{(sQ0, sQ1)[k&1]}"]
        return r
    for S in range(10):
        E(f"@waitvm x{f}_{S}")
        for sh in range(2):
            E(f"ds_read_b128 {vr(X(f, 2*S+sh))}, v{vRX[sh]} offset:{S*2048}", tok=f"xr{f}_{2*S+sh}")
        fl = chunks[S]
        L(ST.next(2 if ST.n % 2 == 0 or True else 1, limit))
        if S > 0:
            E(f"@waitds xr{f}_{2*S-1}")
            L(st(2*S-2)); L(st(2*S-1))
        L(fl)
    E("@waitds0")
    return st(18) + st(19)

aONE, aSS, aSQ = 216, 220, 224
def x_stats(f):
    a, b = vT[19], vT[20]
    r = [f"v_add_f32 v{sS0}, v{sS0}, v{sS1}", f"v_add_f32 v{sQ0}, v{sQ0}, v{sQ1}"]
    if opt.mstat:
        t = vT[8:12]
        r = [f"v_and_b32 v{a}, 15, v{vLANE}", f"v_lshrrev_b32 v{b}, 2, v{a}", f"v_lshl_add_u32 v{b}, v{b}, 4, v{a}", f"v_lshlrev_b32 v{b}, 2, v{b}",
             f"v_and_b32 v{a}, 3, v{vLANE}", f"v_cmp_eq_u32 s[{sEX0}:{sEX0+1}], 1, v{a}", f"v_cmp_eq_u32 s[{sEX2}:{sEX2+1}], 2, v{a}", f"v_cmp_eq_u32 vcc, 3, v{a}"]
        r += [f"v_accvgpr_read_b32 v{t[k]}, a{aSQ+k}" for k in range(4)]
        r += [f"v_cndmask_b32 v{t[0]}, v{t[0]}, v{t[1]}, s[{sEX0}:{sEX0+1}]", f"v_cndmask_b32 v{t[2]}, v{t[2]}, v{t[3]}, vcc",
              f"v_cndmask_b32 v{t[0]}, v{t[0]}, v{t[2]}, s[{sEX2}:{sEX2+1}]", f"v_cndmask_b32 v{t[0]}, v{t[0]}, v{t[2]}, vcc",
              f"ds_bpermute_b32 v{sQ0}, v{b}, v{t[0]}", f"v_accvgpr_read_b32 v{sS0}, a{aSS}"]
    for perm in (() if opt.mstat else ("v_permlane16_swap_b32", "v_permlane32_swap_b32")):
        r += [f"v_mov_b32 v{a}, v{sS0}", f"v_mov_b32 v{b}, v{sQ0}", f"{perm} v{a}, v{sS0}", f"{perm} v{b}, v{sQ0}",
              f"v_add_f32 v{sS0}, v{sS0}, v{a}", f"v_add_f32 v{sQ0}, v{sQ0}, v{b}"]
    inv = "0x3acccccd"
    r += [f"v_mul_f32 v{sS0}, {inv}, v{sS0}", f"v_mul_f32 v{sQ0}, {inv}, v{sQ0}",
          f"v_fma_f32 v{sQ0}, -v{sS0}, v{sS0}, v{sQ0}", f"v_max_f32 v{sQ0}, 0, v{sQ0}",
          f"v_cvt_pk_bf16_f32 v{a}, v{sS0}, v{sQ0}",
          f"v_lshlrev_b32 v{vM[f]}, 16, v{a}", f"v_and_b32 v{b}, 0xffff0000, v{a}",
          f"v_add_f32 v{b}, 0x3727c5ac, v{b}",
          f"v_cvt_pk_bf16_f32 v{b}, v{b}, v{b}", f"v_and_b32 v{b}, 0xffff0000, v{b}",
          f"v_sqrt_f32 v{b}, v{b}", f"v_cvt_pk_bf16_f32 v{b}, v{b}, v{b}", f"v_and_b32 v{b}, 0xffff0000, v{b}",
          f"v_rcp_f32 v{vR[f]}, v{b}", f"v_mul_f32 v{vNB[f]}, v{vM[f]}, v{vR[f]}", f"v_sub_f32 v{vNB[f]}, 0, v{vNB[f]}"]
    return r

def norm_step(f, s, packed, tmp):
    r = []
    for k in range(4):
        x = X(f, s) + k
        t = tmp[(k & 1) * 2]
        if packed:
            r += [f"v_lshlrev_b32 v{t}, 16, v{x}", f"v_and_b32 v{t+1}, 0xffff0000, v{x}",
                  f"v_pk_fma_f32 v[{t}:{t+1}], v[{t}:{t+1}], v[{vR[f]}:{vR[f]+1}], v[{vR[f]}:{vR[f]+1}] op_sel:[0,0,1] op_sel_hi:[1,0,1]",
                  f"v_cvt_pk_bf16_f32 v{x}, v{t}, v{t+1}"]
        else:
            r += [f"v_lshlrev_b32 v{t}, 16, v{x}", f"v_and_b32 v{t+1}, 0xffff0000, v{x}",
                  f"v_fma_f32 v{t}, v{t}, v{vR[f]}, v{vNB[f]}", f"v_fma_f32 v{t+1}, v{t+1}, v{vR[f]}, v{vNB[f]}",
                  f"v_cvt_pk_bf16_f32 v{x}, v{t}, v{t+1}"]
    return r

def stats_store():
    a, b = vT[0], vT[1]
    r = [f"v_and_b32 v{a}, 12, v{vLANE}", f"v_add_u32 v{a}, v{a}, v{vLANE}", f"v_lshlrev_b32 v{a}, 3, v{a}",
         f"v_mov_b32 v{b}, {OOB}", f"v_cmp_gt_u32 vcc, 16, v{vLANE}", f"v_cndmask_b32 v{a}, v{b}, v{a}, vcc"]
    for f in range(2):
        r.append(I(f"buffer_store_dwordx2 v[{vR[f]}:{vR[f]+1}], v{a}, s[{sWS}:{sWS+3}], s{sSTATO} offen offset:{32*f} sc1", tok="stat"))
    return r

def mlp_dma_addr(kind):
    vD = vDB if kind == "B" else globals()["vD"]
    t0, t1, t2 = vD[1], vD[2], vD[3]
    if kind == "A":
        r = [f"v_lshrrev_b32 v{t0}, 3, v{vLANE}", f"v_and_b32 v{t1}, 7, v{vLANE}", f"v_and_b32 v{t2}, 2, v{t0}", f"v_lshlrev_b32 v{t2}, 1, v{t2}",
             f"v_xor_b32 v{t1}, v{t1}, v{t2}", f"v_lshlrev_b32 v{t1}, 4, v{t1}",
             f"v_mul_u32_u24 v{t0}, 3072, v{t0}", f"v_add_u32 v{vD[0]}, v{t0}, v{t1}"]
        rows = 8
    else:
        r = [f"v_lshrrev_b32 v{t0}, 2, v{vLANE}", f"v_and_b32 v{t1}, 3, v{vLANE}", f"v_lshlrev_b32 v{t1}, 4, v{t1}",
             f"v_mul_u32_u24 v{t0}, 3072, v{t0}", f"v_add_u32 v{vD[0]}, v{t0}, v{t1}"]
        rows = 16
    for p in range(1, 4):
        r.append(f"v_add_u32 v{vD[p]}, {p*(rows*3072 - 1024)}, v{vD[0]}")
    if kind == "B": r.append(f"v_add_u32 v{vRB2}, 0x10000, v{vRB}")
    return r

def dma_M(m):
    slot = m % 4 if m < 10 else BSLOT[m]
    vD = globals()["vD"] if m < 10 else vDB
    if m < 10:
        so = [f"s_mul_i32 s{sD0}, s{sKU[m >> 1]}, 1536", f"s_add_u32 s{sD0}, s{sD0}, s{sMOFF}"]
        if m & 1: so.append(f"s_add_u32 s{sD0}, s{sD0}, {64*3072}")
    else:
        so = [f"s_mul_i32 s{sD0}, s{sKU[m - 10]}, 1536", f"s_add_u32 s{sD0}, s{sD0}, s{sMOFFB}"]
    if m >= 10:
        r = []
        for p in range(4):
            r += [f"s_add_u32 m0, s{sM0A}, {slot*16384}"] + ([t.replace(f"s{sD0}", f"s{sD2}") for t in so] if p == 0 else [f"s_add_u32 s{sD2}, s{sD2}, {0}"] if False else [])
            r.append(I(f"buffer_load_dwordx4 v{vD[p]}, s[{sWM}:{sWM+3}], s{sD2} offen offset:{p*1024} {opt.w_flags} lds", tok=f"M{m}"))
        return r
    r = [f"s_add_u32 m0, s{sM0A}, {slot*16384}"] + so
    for p in range(4):
        r.append(I(f"buffer_load_dwordx4 v{vD[p]}, s[{sWM}:{sWM+3}], s{sD0} offen offset:{p*1024} {opt.w_flags} lds", tok=f"M{m}"))
    return r

def w13_touch_addr():
    a, b = vT[5], vT[6]
    return [f"v_lshrrev_b32 v{a}, 1, v{vLANE}", f"v_mul_u32_u24 v{a}, 3072, v{a}", f"v_and_b32 v{b}, 1, v{vLANE}", f"v_lshl_add_u32 v{a}, v{b}, 7, v{a}",
            f"v_accvgpr_write_b32 a238, v{a}", f"v_mov_b32 v{b}, {OOB}", f"v_cmp_gt_u32 vcc, 16, v{vLANE}", f"v_cndmask_b32 v{a}, v{b}, v{a}, vcc",
            f"v_accvgpr_write_b32 a239, v{a}",
            f"s_and_b32 s{sT2}, s{sC}, 7", f"s_lshl_b32 s{sT2}, s{sT2}, 1", f"s_lshr_b32 s{sT3}, s{sW}, 1", f"s_add_u32 s{sT2}, s{sT2}, s{sT3}",
            f"s_mul_i32 s{sT2}, s{sT2}, {40*3072}", f"s_mul_i32 s{sT3}, s{sG}, 192", f"s_and_b32 s{sT3}, s{sT3}, 0xffffff80", f"s_add_u32 s{sD2}, s{sT2}, s{sT3}"]
def w13_touch():
    a = I(f"buffer_load_dword a228, v{vFLAG}, s[{sWM}:{sWM+3}], s{sD2} offen", tok="TW"); a.lines = 64
    b = I(f"buffer_load_dword a228, v{vFLAG}, s[{sWM}:{sWM+3}], s{sD2} offen", tok="TW"); b.lines = 16
    return [[f"v_accvgpr_read_b32 v{vFLAG}, a238", a], [f"v_accvgpr_read_b32 v{vFLAG}, a239", f"s_add_u32 s{sD2}, s{sD2}, {32*3072}", b]]

def delay(tag, mod, val, ticks):
    if not opt.delay: return []
    return ["@raw_begin", f"s_and_b32 s{sD0}, s2, {mod}", f"s_cmp_eq_u32 s{sD0}, {val}", f"s_cbranch_scc0 L_dl{tag}",
            f"s_memrealtime s[{sSTAMP}:{sSTAMP+1}]", "s_waitcnt lgkmcnt(0)", f"s_mov_b32 s{sD1}, s{sSTAMP}", f"L_dw{tag}:",
            f"s_memrealtime s[{sSTAMP}:{sSTAMP+1}]", "s_waitcnt lgkmcnt(0)", f"s_sub_u32 s{sD0}, s{sSTAMP}, s{sD1}",
            f"s_cmp_lt_u32 s{sD0}, {ticks*opt.delay}", f"s_cbranch_scc1 L_dw{tag}", f"L_dl{tag}:", "@raw_end"]

def skew(tag):
    if not opt.skew: return []
    return [f"s_bitcmp1_b32 s{sW}, 0", f"s_cbranch_scc1 L_sk{tag}a", "s_nop 0", f"L_sk{tag}a:", f"s_bitcmp1_b32 s{sW}, 1", f"s_cbranch_scc1 L_sk{tag}b", "s_nop 1", f"L_sk{tag}b:"]

def mlp_read_addr():
    G, r_, c, t, u = vT[19], vT[20], vT[21], vT[22], vT[23]
    return [f"v_lshrrev_b32 v{G}, 4, v{vLANE}", f"v_bfe_u32 v{r_}, v{vLANE}, 2, 2", f"v_and_b32 v{c}, 3, v{vLANE}",
         f"v_lshrrev_b32 v{t}, 1, v{G}", f"v_lshlrev_b32 v{t}, 11, v{t}", f"v_lshl_add_u32 v{t}, v{r_}, 7, v{t}",
         f"v_and_b32 v{u}, 1, v{c}", f"v_lshl_add_u32 v{t}, v{u}, 3, v{t}",
         f"v_and_b32 v{u}, 1, v{G}", f"v_lshlrev_b32 v{u}, 1, v{u}", f"v_lshrrev_b32 v{vRA[1]}, 1, v{c}", f"v_add_u32 v{u}, v{u}, v{vRA[1]}",
         f"v_lshrrev_b32 v{vRA[1]}, 1, v{r_}", f"v_lshlrev_b32 v{vRA[1]}, 2, v{vRA[1]}", f"v_xor_b32 v{u}, v{u}, v{vRA[1]}",
         f"v_lshl_add_u32 v{vRA[0]}, v{u}, 4, v{t}", f"v_xor_b32 v{vRA[1]}, 64, v{vRA[0]}",
         f"v_lshrrev_b32 v{t}, 1, v{G}", f"v_lshlrev_b32 v{t}, 10, v{t}", f"v_lshl_add_u32 v{t}, v{r_}, 6, v{t}",
         f"v_and_b32 v{u}, 1, v{G}", f"v_lshl_add_u32 v{t}, v{u}, 5, v{t}", f"v_lshl_add_u32 v{vRB}, v{c}, 3, v{t}",
         f"v_lshlrev_b32 v{u}, 10, v{u}", f"v_lshrrev_b32 v{t}, 1, v{G}", f"v_lshl_add_u32 v{u}, v{t}, 8, v{u}",
         f"v_and_b32 v{t}, 15, v{vLANE}", f"v_lshl_add_u32 v{vHH}, v{t}, 4, v{u}"]

def relayout_issue():
    u, t0, t1, t2 = sT2, vT[5], vT[6], vT[7]
    vo = vT[0:5]
    r = [f"s_lshl_b32 s{u}, s{sW}, 5", f"s_add_u32 s{u}, s{u}, s{sRT}",
       f"s_mul_i32 s{sT3}, s{sN}, 88", f"s_add_u32 s{sT3}, s{sT3}, s{u}", f"s_mul_i32 s{sT3}, s{sT3}, 5120", f"s_add_u32 s{sT3}, s{sT3}, {WS_W2P}",
       f"s_cmp_lt_u32 s{u}, 88", f"s_cselect_b32 s{sRLST}, s{sT3}, {OOB}",
       f"s_mov_b32 s{sRL+3}, 0x20000", f"s_cmp_lt_u32 s{u}, 40", "@arm", "s_cbranch_scc0 L_rlw",
       f"s_cmp_lt_u32 s{u}, 20", f"s_cselect_b32 s{sRL}, s{pCRE}, s{pCIM}", f"s_cselect_b32 s{sRL+1}, s{pCRE+1}, s{pCIM+1}",
       f"s_cselect_b32 s{sT3}, 0, 20", f"s_sub_u32 s{sT3}, s{u}, s{sT3}", f"s_lshl_b32 s{sT3}, s{sT3}, 6",
       f"s_mul_i32 s{sT4}, s{sN}, {80*1280}", f"s_add_u32 s{sRLOFF}, s{sT3}, s{sT4}",
       f"s_mov_b32 s{sRL+2}, {640*1280}",
       f"v_lshrrev_b32 v{t0}, 2, v{vLANE}", f"v_and_b32 v{t1}, 3, v{vLANE}", f"v_lshlrev_b32 v{t1}, 4, v{t1}",
       f"v_mul_u32_u24 v{t0}, 1280, v{t0}", f"v_add_u32 v{vo[0]}, v{t0}, v{t1}"]
    for e in range(1, 5): r.append(f"v_add_u32 v{vo[e]}, {e*16*1280}, v{vo[0]}")
    r += ["s_branch L_rlj", "@else", "L_rlw:",
       f"s_mov_b32 s{sRL}, s{pW2}", f"s_mov_b32 s{sRL+1}, s{pW2+1}",
       f"s_cmp_lt_u32 s{u}, 88", f"s_cselect_b32 s{sRL+2}, {1536*1280}, 0",
       f"s_sub_u32 s{sT3}, s{u}, 40", f"s_mul_i32 s{sT3}, s{sT3}, {32*1280}", f"s_mul_i32 s{sT4}, s{sN}, 160", f"s_add_u32 s{sRLOFF}, s{sT3}, s{sT4}",
       f"s_mov_b32 s{sT4}, 6554"]
    for p in range(5):
        r += [f"v_add_u32 v{t0}, {64*p}, v{vLANE}", f"v_mul_u32_u24 v{t1}, s{sT4}, v{t0}", f"v_lshrrev_b32 v{t1}, 16, v{t1}",
              f"v_mul_u32_u24 v{t2}, 10, v{t1}", f"v_sub_u32 v{t2}, v{t0}, v{t2}", f"v_lshlrev_b32 v{t2}, 4, v{t2}",
              f"v_mul_u32_u24 v{t1}, 1280, v{t1}", f"v_add_u32 v{vo[p]}, v{t1}, v{t2}"]
    r += ["@endarm", "L_rlj:", f"s_and_b32 s{sRL+1}, s{sRL+1}, 0xffff"]
    r += [f"v_accvgpr_write_b32 a{232+p}, v{vo[p]}" for p in range(5)]
    return r
def relayout_dma():
    vo = vT[0:5]
    r = []
    if "r" in opt.skip: return r
    for p in range(5):
        r.append([f"s_add_u32 m0, s{sM0U}, {L_RL + p*1024}", f"v_accvgpr_read_b32 v{vFLAG}, a{232+p}",
                  I(f"buffer_load_dwordx4 v{vFLAG}, s[{sRL}:{sRL+3}], s{sRLOFF} offen {'nt' if opt.rl_nt else ''} lds", tok="RL")])
    return r

def relayout_raddr():
    t0, t1, t2 = vT[5], vT[6], vT[7]
    return [f"v_and_b32 v{t0}, 15, v{vLANE}", f"v_lshrrev_b32 v{t1}, 4, v{vLANE}", f"v_lshlrev_b32 v{t1}, 4, v{t1}", f"v_lshl_add_u32 v{t0}, v{t0}, 6, v{t1}",
            f"v_lshrrev_b32 v{t1}, 2, v{vLANE}", f"v_and_b32 v{t2}, 8, v{t1}", f"v_add_u32 v{t1}, v{t1}, v{t2}", f"v_mul_u32_u24 v{t1}, 160, v{t1}",
            f"v_and_b32 v{t2}, 3, v{vLANE}", f"v_lshl_add_u32 v{t1}, v{t2}, 3, v{t1}",
            f"s_lshl_b32 s{sT2}, s{sW}, 5", f"s_add_u32 s{sT2}, s{sT2}, s{sRT}", f"s_cmp_lt_u32 s{sT2}, 40", f"s_cselect_b64 s[{sEX0}:{sEX0+1}], -1, 0",
            f"s_cselect_b32 s{sRLT}, 1, 0", f"s_add_u32 s{sT3}, s{sM0U}, {L_RL}",
            f"v_cndmask_b32 v{t0}, v{t1}, v{t0}, s[{sEX0}:{sEX0+1}]", f"v_add_u32 v{t0}, s{sT3}, v{t0}", f"v_accvgpr_write_b32 a237, v{t0}"]
def relayout_finish():
    if "r" in opt.skip: return []
    t0 = vT[0]
    r = [f"v_accvgpr_read_b32 v{t0}, a237", "@waitvm RL", f"s_cmp_eq_u32 s{sRLT}, 1", "s_cbranch_scc0 L_rfw"]
    for e in range(5):
        for h in range(2): r.append(f"ds_read_b64 {ar(aRL+4*e+2*h, 2)}, v{t0} offset:{e*1024 + 8*h}")
    r += ["@raw_begin", "s_branch L_rfj", "L_rfw:"]
    for e in range(5):
        for jj in range(2): r.append(f"ds_read_b64_tr_b16 {ar(aRL+4*e+2*jj, 2)}, v{t0} offset:{jj*1280 + e*32}")
    r += ["@raw_end", "L_rfj:"]
    for e in range(5):
        if e < 4: r.append(I(f"buffer_store_dwordx4 {ar(aRL+4*e)}, v{vL16}, s[{sWS}:{sWS+3}], s{sRLST} offen offset:{e*1024} sc1", tok="RLS"))
        else: r.append(I(f"buffer_store_dwordx4 {ar(aRL+4*e)}, v{vW4}, s[{sWS}:{sWS+3}], s{sRLST} offen sc1", tok="RLS"))
    return r

def flag_store(base, sline, sidx):
    return [f"s_lshl_b32 s{sD0}, s{sline}, 7", f"s_lshl_b32 s{sD1}, s{sidx}, 2", f"s_add_u32 s{sD0}, s{sD0}, s{sD1}", f"s_add_u32 s{sD0}, s{sD0}, {base}",
            f"s_cmp_eq_u32 s{sW}, 0", f"s_cselect_b32 s{sD0}, s{sD0}, {OOB}",
            f"buffer_store_dword v{vNON}, off, s[{sWS}:{sWS+3}], s{sD0} sc1"]
def flag_load(base, sline, shift, mask, st=None):
    st = sD0 if st is None else st
    return [f"s_lshr_b32 s{st}, s{sline}, {shift}", f"s_lshl_b32 s{st}, s{st}, 7", f"s_add_u32 s{st}, s{st}, {base}",
            f"v_and_b32 v{vFLAG}, {mask}, v{vLANE}", f"v_lshlrev_b32 v{vFLAG}, 2, v{vFLAG}",
            f"buffer_load_dword v{vFLAG}, v{vFLAG}, s[{sWS}:{sWS+3}], s{st} offen sc1"]
def flag_check(base, sline, shift, mask):
    if "f" in opt.skip: return [f"v_mov_b32 v{vFLAG}, 0"]
    return poll(flag_load(base, sline, shift, mask, sD0), [f"v_cmp_ne_u32 vcc, s{sNONCE}, v{vFLAG}"])

def scan_addr():
    col, q, ch, t = vT[19], vT[20], vT[21], vT[22]
    return [f"s_lshl_b32 s{sT2}, s{sW}, 13", f"s_add_u32 s{sT2}, s{sT2}, {L_PRIV}",
            f"v_and_b32 v{col}, 15, v{vLANE}", f"v_lshrrev_b32 v{q}, 4, v{vLANE}",
            f"v_lshl_add_u32 v{vCOLR}, v{col}, 4, s{sT2}",
            f"v_lshl_add_u32 v{vEW}, v{q}, 2, v{vCOLR}",
            f"v_min_u32 v{ch}, 39, v{vLANE}", f"v_lshlrev_b32 v{vSO}, 4, v{ch}",
            f"v_lshrrev_b32 v{t}, 3, v{ch}", f"v_lshlrev_b32 v{t}, 3, v{t}", f"v_add_u32 v{t}, v{t}, v{ch}",
            f"v_lshl_add_u32 v{vER}, v{t}, 4, s{sT2}",
            f"v_add_u32 v{vCH}, s{sT2}, v{vL16}",
            f"s_lshl_b32 s{sT3}, s{sW}, 9", f"s_add_u32 s{sT3}, s{sT3}, {L_TT}", f"v_lshl_add_u32 v{vTT}, v{vLANE}, 3, s{sT3}",
            f"v_lshlrev_b32 v{vLB}, 5, v{vLANE}", f"v_add_u32 v{vLB}, {L_LB}, v{vLB}",
            f"s_add_u32 s{sT3}, s{sM0U}, {L_RL}",
            f"v_lshlrev_b32 v{vTW}, 5, v{col}", f"v_lshl_add_u32 v{vTW}, v{q}, 3, v{vTW}", f"v_add_u32 v{vTW}, s{sT3}, v{vTW}",
            f"v_bfe_u32 v{t}, v{vLANE}, 2, 2", f"v_lshlrev_b32 v{t}, 5, v{t}", f"v_lshl_add_u32 v{t}, v{q}, 8, v{t}",
            f"v_and_b32 v{ch}, 3, v{vLANE}", f"v_lshl_add_u32 v{t}, v{ch}, 3, v{t}", f"v_add_u32 v{vTR}, s{sT3}, v{t}",
            f"v_lshrrev_b32 v{t}, 1, v{q}", f"v_lshlrev_b32 v{t}, 10, v{t}", f"v_lshl_add_u32 v{vHST}, v{col}, 4, v{t}",
            f"v_and_b32 v{t}, 1, v{q}", f"v_mul_u32_u24 v{t}, {20*4096}, v{t}", f"v_add_u32 v{vHST}, v{vHST}, v{t}"]

def const_park():
    src = [cAR, cAI, cKR, cKI] + list(range(60, 70))
    return [f"v_accvgpr_write_b32 a{200+k}, v{s}" for k, s in enumerate(src)]
def const_tables():
    t = vT[0:8]
    r = [f"v_accvgpr_read_b32 v{t[0]}, a200", f"v_accvgpr_read_b32 v{t[1]}, a201", f"v_accvgpr_read_b32 v{t[2]}, a202", f"v_accvgpr_read_b32 v{t[3]}, a203",
         f"v_sub_f32 v{t[3]}, 0, v{t[3]}",
         f"v_mov_b32 v{t[4]}, v{t[0]}", f"v_sub_f32 v{t[5]}, 0, v{t[1]}", f"v_sub_f32 v{t[6]}, 0, v{t[2]}", f"v_mov_b32 v{t[7]}, v{t[3]}",
         f"ds_write_b128 v{vER}, {vr(t[0])} offset:{PV_COL}", f"ds_write_b128 v{vER}, {vr(t[4])} offset:{PV_COL+128}",
         f"ds_write_b128 v{vCH}, {ar(204)} offset:{PV_CH}", f"ds_write_b128 v{vCH}, {ar(208)} offset:{PV_CH+1024}",
         f"ds_write_b64 v{vCH}, {ar(212, 2)} offset:{PV_CH+2048}",
         f"v_mov_b32 v{t[0]}, 0", f"v_mov_b32 v{t[1]}, 0",
         f"s_min_u32 s{sT2}, s{sW}, 2", f"s_lshl_b32 s{sT2}, s{sT2}, 9", f"s_add_u32 s{sT2}, s{sT2}, {L_TT}",
         f"v_lshl_add_u32 v{t[2]}, v{vLANE}, 3, s{sT2}", f"ds_write_b64 v{t[2]}, {vr(t[0], 2)}"]
    return r

def ureg(cf, tau): return U(cf, tau >> 2) + (tau & 3)
DPP = "row_ror:8 row_mask:0xf bank_mask:0xf"
def scan_P12():
    C = vT[0:20]
    r = [I(f"ds_read_b128 {vr(C[4*cf])}, v{vCOLR} offset:{PV_COL + cf*256}", tok="colr") for cf in range(5)]
    r.append("@gap 1")
    t = vT[20:24]
    k = 0
    for tau in range(8):
        for cf in range(5):
            u = ureg(cf, tau); tt = t[k % 4]; k += 1
            r += [f"v_mul_f32_dpp v{tt}, v{u}, v{C[4*cf+3]} {DPP}", f"v_fma_f32 v{u}, v{C[4*cf+2]}, v{u}, v{tt}"]
    for tau in range(1, 8):
        src = [(ureg(cf, 0) if tau == 1 else C[4*cf + 2 + (tau & 1)]) for cf in range(5)]
        dst = [C[4*cf + 2 + ((tau + 1) & 1)] for cf in range(5)]
        for cf in range(5): r.append(f"v_fma_f32 v{dst[cf]}, v{C[4*cf]}, v{src[cf]}, v{ureg(cf, tau)}")
        for cf in range(5): r.append(f"v_fmac_f32_dpp v{dst[cf]}, v{src[cf]}, v{C[4*cf+1]} {DPP}")
    for cf in range(5): r.append(f"ds_write_b32 v{vEW}, v{C[4*cf+2]} offset:{PV_E + cf*256}")
    er, ei, a8 = vT[0], vT[4], vT[8]
    r += [f"ds_read_b128 {vr(a8)}, v{vCH} offset:{PV_CH}",
          f"ds_read_b128 {vr(er)}, v{vER} offset:{PV_E}", f"ds_read_b128 {vr(ei)}, v{vER} offset:{PV_E+128}", "@gap 2"]
    g0, g1 = vT[12], vT[14]
    r += chorner2(g0, g0+1, er, ei, a8, a8+1, er+1, ei+1)
    r += chorner2(g1, g1+1, g0, g0+1, a8, a8+1, er+2, ei+2)
    r += chorner2(g0, g0+1, g1, g1+1, a8, a8+1, er+3, ei+3)
    r += [f"ds_write_b64 v{vTT}, {vr(g0, 2)} offset:{3*512}"]
    return r

def scan_P3():
    a32 = vT[8]; T = vT[0:8]
    r = [f"ds_read_b128 {vr(a32)}, v{vCH} offset:{PV_CH}"]
    for k in range(4): r.append(f"ds_read_b64 {vr(T[2*k], 2)}, v{vTT} offset:{k*512}")
    r.append("@gap 2")
    m = a32 + 2
    g = vT[12]
    r += chorner2(g, g+1, T[0], T[1], m, m+1, T[2], T[3])
    r += chorner2(vWP0, vWP1, g, g+1, m, m+1, T[4], T[5])
    r += chorner2(g, g+1, vWP0, vWP1, m, m+1, T[6], T[7])
    r += [f"v_mov_b32 v{g+2}, s{sNONCE}", f"v_mov_b32 v{g+3}, s{sNONCE}",
          f"buffer_store_dwordx4 {vr(g)}, v{vSO}, s[{sWS}:{sWS+3}], s{sSST} offen sc1"]
    return r

def lb_loads():
    return [f"buffer_load_dwordx4 {ar(aS+4*jj)}, v{vSO}, s[{sWS}:{sWS+3}], s{sl} offen sc1" for jj, sl in enumerate((sLB0, sLB1, sLB2, sLB3))]
def scan_P4():
    t = vT[0:8]
    chk = []
    for jj, sl in enumerate((sLB0, sLB1, sLB2, sLB3)):
        d = t[2] if jj == 0 else t[0]
        chk += [f"s_cmp_lt_u32 s{sl}, {OOB}", f"s_cselect_b32 s{sT2}, s{sNONCE}, 0", f"v_accvgpr_read_b32 v{d}, a{aS+4*jj+2}",
                f"v_xor_b32 v{d}, s{sT2}, v{d}"]
        if jj: chk += [f"v_or_b32 v{t[2]}, v{t[2]}, v{t[0]}"]
    chk += [f"v_cmp_ne_u32 vcc, 0, v{t[2]}"]
    c = vT[8]
    r = [f"ds_read_b128 {vr(c)}, v{vCH} offset:{PV_CH+1024}", f"ds_read_b64 {vr(vT[12], 2)}, v{vCH} offset:{PV_CH+2048}"]
    if "f" not in opt.skip: r += poll(lb_loads(), [i.text for i in insert_nops(II(chk))])
    for jj in range(4):
        r += [f"v_accvgpr_read_b32 v{t[2*jj]}, a{aS+4*jj}", f"v_accvgpr_read_b32 v{t[2*jj+1]}, a{aS+4*jj+1}"]
    m = c + 2; g0, g1 = vT[14], vT[16]
    r += chorner2(g0, g0+1, t[0], t[1], m, m+1, t[2], t[3])
    r += chorner2(g1, g1+1, g0, g0+1, m, m+1, t[4], t[5])
    r += chorner2(g0, g0+1, g1, g1+1, m, m+1, t[6], t[7])
    r += cmul(g1, g1+1, g0, g0+1, vT[12], vT[13], vT[18])
    r += [f"s_lshl_b32 s{sT2}, s{sW}, 3", f"v_add_u32 v{vT[18]}, s{sT2}, v{vLB}", f"ds_write_b64 v{vT[18]}, {vr(g1, 2)}"]
    return r

def scan_P56():
    lb = vT[0]; er, ei = vT[8], vT[12]; c8, c32w = vT[16], vT[20]
    r = [f"ds_read_b128 {vr(lb)}, v{vLB}", f"ds_read_b128 {vr(lb+4)}, v{vLB} offset:16",
         f"ds_read_b64 {vr(c32w, 2)}, v{vCH} offset:{PV_CH+1024}", f"ds_read_b128 {vr(c8)}, v{vCH} offset:{PV_CH}",
         f"ds_read_b128 {vr(er)}, v{vER} offset:{PV_E}", f"ds_read_b128 {vr(ei)}, v{vER} offset:{PV_E+128}", "@gap 2",
         f"v_add_f32 v{lb}, v{lb}, v{lb+2}", f"v_add_f32 v{lb+1}, v{lb+1}, v{lb+3}",
         f"v_add_f32 v{lb+4}, v{lb+4}, v{lb+6}", f"v_add_f32 v{lb+5}, v{lb+5}, v{lb+7}",
         f"v_add_f32 v{lb}, v{lb}, v{lb+4}", f"v_add_f32 v{lb+1}, v{lb+1}, v{lb+5}"]
    q0, q1 = vT[4], vT[20]
    tmp = vT[2]
    r += chorner2(tmp, tmp+1, lb, lb+1, c32w, c32w+1, vWP0, vWP1)
    r += [f"v_mov_b32 v{q0}, v{tmp}", f"v_mov_b32 v{q1}, v{tmp+1}"]
    for k in range(3):
        r += chorner2(q0+k+1, q1+k+1, q0+k, q1+k, c8, c8+1, er+k, ei+k)
    r += [f"ds_write_b128 v{vER}, {vr(q0)} offset:{PV_E}", f"ds_write_b128 v{vER}, {vr(q1)} offset:{PV_E+128}"]
    C = vT[0:10]; Z = vT[10:15]
    for cf in range(5): r.append(f"ds_read_b32 v{Z[cf]}, v{vEW} offset:{PV_E + cf*256}")
    for cf in range(5): r.append(f"ds_read_b64 {vr(C[2*cf], 2)}, v{vCOLR} offset:{PV_COL + cf*256}")
    r.append("@gap 2")
    for tau in range(8):
        src = [(Z[cf] if tau == 0 else ureg(cf, tau-1)) for cf in range(5)]
        for cf in range(5): r.append(f"v_fma_f32 v{ureg(cf, tau)}, v{C[2*cf]}, v{src[cf]}, v{ureg(cf, tau)}")
        for cf in range(5): r.append(f"v_fmac_f32_dpp v{ureg(cf, tau)}, v{src[cf]}, v{C[2*cf+1]} {DPP}")
    for cf in range(5):
        for f in range(2):
            t = vT[2*(cf*2+f)]; u = U(cf, f)
            r += [f"v_cvt_pk_bf16_f32 v{t}, v{u}, v{u+1}", f"v_cvt_pk_bf16_f32 v{t+1}, v{u+2}, v{u+3}"]
    for k in range(10): r.append(f"ds_write_b64 v{vTW}, {vr(vT[2*k], 2)} offset:{k*512}")
    for cf in range(5):
        for jj in range(2):
            r.append(f"ds_read_b64_tr_b16 {vr(56 + 4*cf + 2*jj, 2)}, v{vTR} offset:{cf*1024 + jj*128}")
    for cf in range(5):
        r.append(I(f"buffer_store_dwordx4 {vr(56 + 4*cf)}, v{vHST}, s[{sWS}:{sWS+3}], s{sHO[cf]} offen sc1", tok="HST"))
    return r

def swiglu(acc, h2s, sks, tokname, packed=False):
    r = []
    k = 0
    for h2 in h2s:
        for z in range(2):
            G = vT[0:8]; Uu = vT[8:16]; T = vT[16:24]
            for j in range(8):
                r += [f"v_accvgpr_read_b32 v{G[j]}, a{acc(0, h2) + 8*z + j}", f"v_accvgpr_read_b32 v{Uu[j]}, a{acc(1, h2) + 8*z + j}"]
            if packed:
                for j in range(0, 8, 2): r.append(f"v_pk_mul_f32 {vr(T[j], 2)}, {vr(G[j], 2)}, s[{sEX0}:{sEX0+1}]")
                for j in range(8):
                    r.append(f"v_exp_f32 v{T[j]}, v{T[j]}")
                for j in range(0, 8, 2): r.append(f"v_pk_mul_f32 {vr(G[j], 2)}, {vr(G[j], 2)}, {vr(Uu[j], 2)}")
                for j in range(0, 8, 2): r.append(f"v_pk_add_f32 {vr(T[j], 2)}, {vr(T[j], 2)}, s[{sEX2}:{sEX2+1}]")
                for j in range(8): r.append(f"v_rcp_f32 v{T[j]}, v{T[j]}")
                for j in range(0, 8, 2): r.append(f"v_pk_mul_f32 {vr(G[j], 2)}, {vr(G[j], 2)}, {vr(T[j], 2)}")
            else:
                for j in range(8): r.append(f"v_mul_f32 v{T[j]}, {NLOG2E}, v{G[j]}")
                for j in range(8): r += [f"v_exp_f32 v{T[j]}, v{T[j]}", f"v_mul_f32 v{G[j]}, v{G[j]}, v{Uu[j]}"]
                for j in range(8): r.append(f"v_add_f32 v{T[j]}, 1.0, v{T[j]}")
                for j in range(8): r.append(f"v_rcp_f32 v{T[j]}, v{T[j]}")
                for j in range(8): r.append(f"v_mul_f32 v{G[j]}, v{G[j]}, v{T[j]}")
            o = Uu[0] if k % 2 == 0 else Uu[4]; k += 1
            for j in range(4): r.append(f"v_cvt_pk_bf16_f32 v{o+j}, v{G[2*j]}, v{G[2*j+1]}")
            if z == 0: r.append(f"s_add_u32 s{sT2}, s{sks}, {h2*4096}")
            r.append(I(f"buffer_store_dwordx4 {vr(o)}, v{vHH}, s[{sWS}:{sWS+3}], s{sT2} offen offset:{z*512} sc1", tok=tokname))
    return r

def step_reads(blk, s, par):
    r = []
    if blk == "U":
        i, sh2, sh = s // 4, (s >> 1) & 1, s & 1
        off = i*20480 + sh2*10240 - (61440 if i >= 3 else 0)
        for cf in range(5):
            r.append(f"ds_read_b128 {ar(FB(par, cf))}, v{vRU[sh]} offset:{off + cf*1024}")
    elif blk == "A":
        m, sp = s // 2, s & 1
        for hf in range(2):
            for h2 in range(2):
                for mu in range(2):
                    for jj in range(2):
                        r.append(f"ds_read_b64_tr_b16 {ar(FB(par, hf*4+h2*2+mu) + 2*jj, 2)}, v{vRA[h2]} offset:{(m % 4)*16384 + (2*sp+mu)*4096 + hf*1024 + jj*512}")
    else:
        m, sd = 10 + s // 2, s & 1
        for s2 in range(2):
            for hf in range(2):
                for mu in range(2):
                    for jj in range(2):
                        r.append(f"ds_read_b64_tr_b16 {ar(FB(par, s2*4+hf*2+mu) + 2*jj, 2)}, v{vRB2 if BSLOT[m] >= 4 else vRB} offset:{(BSLOT[m] % 4)*16384 + (2*sd+mu)*4096 + s2*2048 + hf*512 + jj*256}")
    return r

def step_mfma(blk, s, par):
    r = []
    if blk == "U":
        for cf in range(5):
            for f in range(2):
                d = vr(U(cf, f)); c = "0" if s == 0 else d
                r.append(f"v_mfma_f32_16x16x32_bf16 {d}, {vr(X(f, s))}, {ar(FB(par, cf))}, {c}")
    elif blk == "A":
        for hf in range(2):
            for h2 in range(2):
                for mu in range(2):
                    d = ar(ACCA(mu, h2), 16); c = "0" if (s == 0 and hf == 0) else d
                    r.append(f"v_mfma_f32_32x32x16_bf16 {d}, {ar(FB(par, hf*4+h2*2+mu))}, {vr(X(hf, s))}, {c}")
    else:
        for s2 in range(2):
            for hf in range(2):
                for mu in range(2):
                    d = ar(ACCB(mu), 16); c = "0" if (s == 0 and hf == 0 and s2 == 0) else d
                    r.append(f"v_mfma_f32_32x32x16_bf16 {d}, {ar(FB(par, s2*4+hf*2+mu))}, {vr(X(hf, 2*s+s2))}, {c}")
    return r

def swaps(s): return [] if "w" in opt.skip else [f"v_permlane16_swap_b32 v{X(0, s)+k}, v{X(1, s)+k}" for k in range(4)]

def stage_of(blk, s):
    return ("U", s // 4) if blk == "U" else (("M", s // 2) if blk == "A" else ("M", 10 + s // 2))

def cost(i):
    if i.cls in ("pseudo", "label"): return 0
    if i.cls == "trans": return 2
    if i.cls == "vmem": return opt.vmcost
    return 1

PH = [1]
class Feed(list):
    def append(self, i): EM[0].feed(i)

class Queue:
    def __init__(self): self.q = []; self.hold = 0; self.now = 0
    def add(self, lst, deadline):
        if "q" in opt.skip:
            lst = [t for t in II(lst) if t.cls in ("vmem",) or t.op.startswith("s_") or t.cls in ("pseudo", "label") or t.op.startswith("v_cmp") or t.op.startswith("v_readfirst") or t.op.startswith("v_accvgpr_read") and "a18" in t.text + "a19"]
        lst = II(lst)
        if PH[0] == 1 and opt.skip and not any(t.op in ("@arm", "@raw_begin") for t in lst):
            if "D" in opt.skip: lst = [t for t in lst if not t.op.startswith("ds_write")]
            if "R" in opt.skip: lst = [t for t in lst if not t.op.startswith("ds_read")]
            if "V" in opt.skip: lst = [t for t in lst if t.cls not in ("valu", "trans") or t.op.startswith("v_cmp") or t.op.startswith("v_cndmask")]
            if "S" in opt.skip:
                for t in lst:
                    if t.cls == "vmem" and "store" in t.op and t.tok in ("HST", "HHA"): t.text = t.text.replace("offen", "offen").replace("dwordx4", "dword"); t.text = __import__("re").sub(r"v\[(\d+):\d+\]", r"v\1", t.text, 1); t.wide = False
        lst = II(lst)
        now = max(self.now, max([d for t, d in self.q] + [0]) if opt.chainq else 0)
        if not opt.interp or deadline <= now + 1:
            for t in lst: self.q.append((t, deadline))
            return
        pos = 0; P = []; wr = {}; lastw = -99
        for t in lst:
            if t.cls not in ("pseudo", "label"):
                dep = [wr[r] for r in (t.rd | t.wr) if r in wr]
                if dep: pos = max(pos, max(dep) + opt.vlat)
                if t.op.startswith("ds_read") and pos - lastw < opt.vlat // 2: pos = lastw + opt.vlat // 2
                for r in t.wr: wr.pop(r, None)
                if t.cls == "ds":
                    for r in t.wr: wr[r] = pos
                    if t.op.startswith("ds_write"): lastw = pos
            pos += cost(t) + (1 if t.cls == "ds" else 0)
            P.append(pos)
        prev = now
        for t, p in zip(lst, P):
            d = now + int((deadline - now) * p / max(pos, 1))
            if t.cls == "ds" and PH[0] == 1 and d >= 200:
                while d % 8 < opt.span and d < deadline: d += 1
            d = max(d, prev); prev = d
            self.q.append((t, min(d, deadline)))
    def _region(self, out):
        i = self.q[0][0]
        end = "@endarm" if i.op == "@arm" else "@raw_end"
        while True:
            j = self.q.pop(0)[0]; out.append(j)
            if j.cls == "pseudo" and j.op == end: break
        while self.q and self.q[0][0].cls == "label": out.append(self.q.pop(0)[0])
    def need(self, gap):
        best = 0; acc = 0
        for t, d in self.q:
            acc += cost(t)
            left = d - gap + 1
            if left <= 0: best = max(best, acc)
            else: best = max(best, -(-acc // left))
        return best
    def pop(self, n, gap, ds_ok=True):
        out = Feed(); nds = 0; self.now = gap
        n = max(n, self.need(gap)) if (opt.even and not opt.interp) else n
        while self.q and (n > 0 or self.q[0][1] <= gap):
            i = self.q[0][0]
            if i.cls == "pseudo" and i.op == "@gap":
                self.q.pop(0); continue
            if self.q[0][1] > gap:
                if i.cls == "ds" and (not ds_ok or nds >= opt.dsmax): break
                if i.cls == "ds": nds += 1
                look = [i] + ([x for x, d in self.q[1:12] if x.cls == "pseudo"][:1] if i.op.startswith("s_cmp") else [])
                if i.op.startswith("s_cmp"): look += [x for x, d in self.q[1:4]]
                if max(EM[0].stall(x) for x in look) > opt.thr: break
            if i.cls == "pseudo" and i.op in ("@arm", "@raw_begin"):
                self._region(out); n -= 4
                continue
            if i.cls == "branch" or i.op.startswith("s_cmp") or i.op.startswith("s_bitcmp") or i.op.startswith("v_cmp"):
                out.append(self.q.pop(0)[0])
                if self.q and "L_rfw" in self.q[0][0].text:
                    while self.q[0][0].op != "@raw_begin": out.append(self.q.pop(0)[0])
                    n -= 10
                while self.q:
                    k = self.q[0][0]
                    if k.op.startswith("s_cselect") or k.op.startswith("v_cndmask") or k.cls == "branch": out.append(self.q.pop(0)[0])
                    elif k.op in ("@arm", "@raw_begin"): self._region(out); n -= 4
                    else: break
                n -= 1
                continue
            self.q.pop(0); out.append(i)
            n -= cost(i)
        return out
    def flush(self):
        out = [i for i, d in self.q if not (i.cls == "pseudo" and i.op == "@gap")]
        self.q = []; self.hold = 0
        return out

ACC1 = [("a", 4*k) for k in range(20)]
ACC2 = [("v", 96 + 4*k) for k in range(20)]
A_SLOTS = [("a", 80 + 4*k) for k in range(20)]
GA = [("a", 196 + 4*k) for k in range(15)] + [("a", 160 + 4*k) for k in range(5)]
XFREE = [("v", base + 8*d + 4*h) for d in range(10) for base in (96, 176) for h in range(2)]
HI = [("v", 176 + 4*k) for k in range(20)]
N1 = 12
NLDS = 4
def wslot(st, e):
    if st < 4: return GA[st*5 + e]
    if st < 12: return XFREE[(st - 4)*5 + e]
    if st < 16: return HI[(st - 12)*5 + e]
    if st < 20: return GA[(st - 16)*5 + e]
    return HI[(st - 20)*5 + e]
def w_free_after_b(st):
    return -1 if st < 4 else ((st - 4)*5 + 4) // 4
def w_free_after_p(st):
    if st < 16:
        regs = {wslot(st, e) for e in range(5)}
        return max(o for o in range(4, 12) for e in range(5) if wslot(o, e) in regs)
    return st - 16 if st < 20 else st - 8
def rg(t, c=4): return f"{t[0]}[{t[1]}:{t[1]+c-1}]"
vA2 = [3, 4, 5, 6]; vPW = [7, 8, 9]; vPR = 11; vOUT = 13; vXO = 14; vSTA = 15; vDS = 16
vXR = list(range(56, 76)); vY = list(range(76, 96)); vDK = [17, 18, 19, 20, 21]; vST = list(range(32, 40)); vXD2 = [22, 23, 24]; vXL = 25; vWL = 26
L_X2 = 143360
NSTEP = 22
ORDER = [0, 1, 4, 5, 6, 7, 10, 11, 2, 3, 8, 9] + list(range(10))
def ptr_bases():
    return [f"s_mul_i32 s{sAS}, s{sW}, {12*4096}", f"s_add_u32 s{sAS}, s{sAS}, s{sP2A}", f"s_add_u32 s{sAS}, s{sAS}, {40*4096}",
            f"s_mul_i32 s{sAE}, s{sW}, {10*4096}", f"s_add_u32 s{sAE}, s{sAE}, s{sP2A}",
            f"s_mul_i32 s{sWB}, s{sW}, {12*5120}", f"s_add_u32 s{sWB}, s{sWB}, s{sP2W}", f"s_add_u32 s{sWB}, s{sWB}, {40*5120}",
            f"s_mul_i32 s{sWE}, s{sW}, {10*5120}", f"s_add_u32 s{sWE}, s{sWE}, s{sP2W}"]
def ptr_set(which, st):
    if which == "A": return [f"s_add_u32 s{sAP}, s{sAS if st < N1 else sAE}, {ORDER[st]*4096}"]
    return [f"s_add_u32 s{sWP}, s{sWB if st < N1 else sWE}, {ORDER[st]*5120}"]
def p2_wload(st):
    r = []
    r += ptr_set("W", st)
    for e in range(5):
        va, off = (vL16, e*1024) if e < 4 else (vW4, 0)
        if N1 <= st < N1 + NLDS:
            r += [f"s_add_u32 m0, s{sM0}, {L_WY + (st - N1)*5120 + (4096 if e == 4 else 0)}"] + (["s_nop 0"] if True else [])
            r.append(I(f"buffer_load_dwordx4 v{va}, s[{sWS}:{sWS+3}], s{sWP} offen offset:{off} sc1 lds", tok=f"WL{st}"))
        else:
            r.append(I(f"buffer_load_dwordx4 {rg(wslot(st, e))}, v{va}, s[{sWS}:{sWS+3}], s{sWP} offen offset:{off} sc1", tok="W"))
    return r
def p2_wread(st):
    return [f"@waitvm WL{st}"] + [f"ds_read_b128 {rg(wslot(st, e))}, v{vWL} offset:{L_WY + (st - N1)*5120 + e*1024}" for e in range(5)]
def p2_aload(st):
    r = []
    r += ptr_set("A", st)
    for jj in range(4):
        r.append(I(f"buffer_load_dwordx4 {rg(A_SLOTS[(st % 5)*4 + jj])}, v{vA2[jj]}, s[{sWS}:{sWS+3}], s{sAP} offen sc1", tok="A"))
    return r
def p2_setup():
    r = []
    for jj in range(4):
        r += [f"s_add_u32 s{sD0}, s{sW}, {jj}", f"s_and_b32 s{sD0}, s{sD0}, 3", f"v_lshl_add_u32 v{vA2[jj]}, s{sD0}, 10, v{vL16}"]
    return r
def p2_setup2():
    r = []
    for jj in range(1, 4):
        r += [f"s_add_u32 s{sT2}, s{sW}, {jj}", f"s_and_b32 s{sT2}, s{sT2}, 3",
              f"s_mul_i32 s{sT3}, s{sT2}, 15360", f"s_add_u32 s{sT3}, s{sT3}, {(3-jj)*5120}", f"v_add_u32 v{vPW[jj-1]}, s{sT3}, v{vL16}"]
    r += [f"s_mul_i32 s{sT3}, s{sW}, 15360", f"v_add_u32 v{vPR}, s{sT3}, v{vL16}", f"v_add_u32 v{vWL}, s{sM0}, v{vL16}"]
    r += [f"v_add_u32 v{v}, {L_P1}, v{v}" for v in vPW + [vPR]]
    return r

def groups(lst):
    out = []; cur = []
    for t in II(lst):
        cur.append(t)
        if t.cls == "vmem": out.append(cur); cur = []
    if cur: out.append(cur)
    return out
def gstall(grp):
    return max([EM[0].stall(t) for t in grp if t.cls == "vmem" or t.op == "@waitvm"] + [0])

def tagw(st):
    gs = groups(p2_wload(st))
    for gq in gs: gq[-1].lat = None; STEP[id(gq[-1])] = st
    return gs
def taga(st):
    gs = groups(p2_aload(st))
    for gq in gs: STEP[id(gq[-1])] = st
    return gs
STEP = {}

def phase1_blocks():
    Q = Queue()
    seq = [("U", s) for s in range(20)] + [("A", s) for s in range(20)] + [("B", s) for s in range(10)]
    gap0 = []; g = 0
    for blk, s in seq:
        gap0.append(g); g += {"U": 10, "A": 8, "B": 8}[blk]
    gap0.append(g)
    def stage_end(kind, idx):
        n = [k for k, (b, s) in enumerate(seq) if stage_of(b, s) == (kind, idx)][-1]
        return gap0[n]
    L(delay("a", 255, 0, 500)); L(delay("b", 31, 5, 700))
    L(["@waitvm U0", "s_barrier"])
    L(stamp("U start"))
    L(step_reads("U", 0, 0))
    later = []
    pace = [0, len(EM[0].out)]
    bulk = []
    def lat(gs, dl):
        for x in gs: later.append((II(x), dl))
    def blk_(gs, dl):
        at = len(bulk) if dl == 10**6 else next((q for q, (gq, d) in enumerate(bulk) if d == 10**6), len(bulk))
        bulk[at:at] = [(II(x), dl) for x in gs]
    lat([u_piece(2, cf) for cf in range(5)], stage_end("U", 0) - 4)
    lat([nonce_publish()], stage_end("U", 0))
    lat([u_piece(3, cf) for cf in range(5)], stage_end("U", 1) - 10)
    lat([u_piece(4, cf) for cf in range(5)], stage_end("U", 2) - 20)
    for n, (blk, s) in enumerate(seq):
        par = n & 1
        mf = step_mfma(blk, s, par)
        nxt = seq[n + 1] if n + 1 < len(seq) else None
        rd = II(step_reads(nxt[0], nxt[1], par ^ 1)) if nxt else []
        if rd: rd[-1].tok = f"rd{n+1}"
        boundary = nxt is None or stage_of(*nxt) != stage_of(blk, s)
        gaps = [[] for _ in mf]
        start = 0
        pre = []
        cap = opt.capU if blk == "U" else opt.capM
        if blk == "U" and s == 11: pre += [f"v_add_u32 v{vRU[0]}, 61440, v{vRU[0]}"]
        if blk == "U" and s == 12: pre += [f"v_add_u32 v{vRU[1]}, 61440, v{vRU[1]}"]
        if blk == "A" and s == 0:
            Q.add(nonce_get(), gap0[n] + 6)
            Q.add(scan_P12(), stage_end("M", opt.X_stage) - 2)
        if blk == "B" and s == 0:
            Q.add(swiglu(ACCA, [0, 1], sKSA, "HHA"), stage_end("M", 14) - opt.haend)
        post = []; plat = []; urgent = []; pbulk = []
        if blk == "B":
            for st in range(4, opt.nearly):
                if w_free_after_b(st) == s - 1: blk_(tagw(st), 10**6)
        if boundary:
            kind, idx = stage_of(blk, s)
            start = 1
            here = gap0[n]; nx1 = here + (40 if blk == "U" else 16)
            if kind == "U" and idx == 1:
                post += [(const_tables(), stage_end("U", 3) - 2), (stats_store(), stage_end("U", 3) + 10)]
            if kind == "U" and idx == opt.rf_stage: post.append((relayout_finish(), stage_end("M", opt.F_stage - 1) - 2))
            b = []
            if nxt is not None:
                nk, ni = stage_of(*nxt)
                b.append(I(f"@waitboth {nk}{ni}"))
            else:
                b.append(I("@waitds0"))
            if kind == "M" and idx == 14: b += II(["@waitvm HHA"])
            if kind == "M" and idx == 14: plat.append((groups(flag_store(WS_FLHA, sC, sG)), here + 2))
            if kind == "M" and idx == opt.F_stage: b += II((["@waitvm RLS"] if "r" not in opt.skip else []) + ["@waitvm stat"])
            b.append(I("s_barrier"))
            if (opt.stamps or opt.probe) and (opt.fine or (kind, idx) in (("U", 4), ("M", 9), ("M", 14))): b += II(stamp(f"{kind}{idx} end"))
            gaps[0] += b
            if kind == "U" and idx == 0 and opt.t_w13: plat.append((w13_touch(), stage_end("U", 1) + 10))
            if kind == "U" and idx == 0 and opt.rl_pos == 0: plat.append((relayout_dma(), stage_end("U", 2) - 10))
            if kind == "U" and idx == 1: plat.append((groups(dma_M(0)) + groups(dma_M(1)), stage_end("U", 3) - 10))
            if kind == "U" and idx == 1 and opt.rl_pos == 1: plat.append((relayout_dma(), stage_end("U", 4) - 10))
            if kind == "U" and idx == 3: plat.append(([nonce_load()], here + 10))
            if kind == "U" and idx in (2, 3): plat.append((groups(dma_M(idx)), stage_end("M", idx - 1) - opt.slack))
            if kind == "U" and idx == 4:
                plat.append(([mlp_dma_addr("B")], here + 6))
                pbulk.append((groups(dma_M(10)), stage_end("M", opt.b10)))
            if kind == "M" and idx == opt.F_stage: plat.append((groups(flag_store(WS_FLW, sN, sRT)), here + 6))
            if kind == "M" and idx + 4 <= 9: plat.append((groups(dma_M(idx + 4)), stage_end("M", idx + 3) - opt.slack))
            if kind == "M" and idx == opt.L_stage: plat.insert(0, (groups(lb_loads()), here + 8))
            if kind == "M" and idx in BISSUE: pbulk.append((groups(dma_M(BISSUE[idx][0])), stage_end("M", BISSUE[idx][0] - 1) - opt.slack))
            if kind == "M" and idx == opt.X_stage:
                post.append((scan_P3(), stage_end("M", opt.X_stage + 1) + 8))
            if kind == "M" and idx == opt.C_stage:
                assert not any("a[180:183]" in x.text for gq, d in later for x in gq)
                post.append((scan_P4(), stage_end("M", opt.Y_stage) - 2))
            if kind == "M" and idx == opt.Y_stage:
                gaps[0] += II(delay("d", 63, 17, 900))
                post.append((scan_P56()[:33], stage_end("M", opt.Y_stage + 1) - 2))
            if kind == "M" and idx == opt.W_stage - 1 and opt.nearly:
                plat.append((groups(flag_load(WS_FLW, sN, 0, 31)), nx1))
            if kind == "M" and idx == opt.W_stage and opt.nearly:
                plat.append(([flag_check(WS_FLW, sN, 0, 31)], nx1 + 8))
                for st in range(min(4, opt.nearly)): pbulk.append((tagw(st), 10**6))
            if kind == "M" and idx == 13: urgent += [p2_setup()]
            if kind == "U" and idx == 4: urgent += [[f"global_load_ushort a231, v{vLANE}, s[{pDSK}:{pDSK+1}]"]] if False else []
        ng = len(mf)
        if rd:
            if nxt[0] == "U": span = 5
            elif blk == "U": span = 7
            else: span = opt.span
            for k, t in enumerate(rd): gaps[start + (k * span) // len(rd)].append(t)
        if nxt and nxt[0] == "A":
            for k, t in enumerate(II(swaps(nxt[1]))): gaps[ng - 5 + k].append(t)
        if blk == "U" and opt.pre_norm <= s + 1 < 20 and "n" not in opt.skip:
            nq = II(norm_step(1, s + 1, False, vT[20:24]))
            for k, t in enumerate(nq): gaps[(k * ng) // len(nq)].append(t)
        L(pre)
        E(f"@waitds rd{n}")
        for k, t in enumerate(mf):
            E(t)
            L(gaps[k])
            gap = gap0[n] + k
            used = sum(cost(x) for x in gaps[k])
            if boundary and k == 0:
                for lst, dl in post: Q.add(lst, dl)
                for gs, dl in plat: lat(gs, dl)
                for gs, dl in pbulk: blk_(gs, dl)
                lat(urgent, here + 14)
                continue
            due_b = any(d - gap <= q + len(later) for q, (gq, d) in enumerate(bulk))
            overdue = due_b or any(d - gap <= q for q, (gq, d) in enumerate(later))
            q_ = later if later else bulk
            if q_ and (overdue or (EM[0].t >= pace[0] and k != 0)):
                grp = q_.pop(0)[0]; L(grp); used += sum(cost(x) for x in grp)
            for x in EM[0].out[pace[1]:]:
                if x.cls == "vmem" and x.lines is not None and not x.text.startswith("buffer_load_dword v29,"):
                    cold = (x.tok in (("RL", "TW") if opt.t_w13 else ("M0", "M1", "M10", "RL"))) and opt.coldpace or 1
                    pace[0] = max(pace[0], EM[0].t - opt.burst) + x.lines * opt.pace * cold
            pace[1] = len(EM[0].out)
            Q.pop(cap - used, gap, ds_ok=(k >= (opt.span if blk != "U" else 5)))
    L(Q.flush())
    for gq, d in later: L(gq)
    return [gq for gq, d in bulk]

def p2_mfma(st):
    r = []
    first = st in (0, N1)
    acc = ACC1 if st < N1 else ACC2
    for jj in range(4):
        for e in range(5):
            d = rg(acc[jj*5+e]); c = "0" if (first and not (st == N1 and jj == 0)) else d
            r.append(f"v_mfma_f32_16x16x32_bf16 {d}, {rg(A_SLOTS[(st % 5)*4+jj])}, {rg(wslot(st, e))}, {c}")
    return r

def p2_partials(base, acc):
    return [f"ds_write_b128 v{vPW[jj-1]}, {rg(acc[jj*5+e])} offset:{base + e*1024}" for jj in range(1, 4) for e in range(5)]

def p2_epi_addr():
    dn, q, t = vT[8], vT[9], vT[10]
    r = [f"v_and_b32 v{dn}, 15, v{vLANE}", f"v_lshrrev_b32 v{q}, 4, v{vLANE}",
         f"s_lshl_b32 s{sT2}, s{sRT}, 6", f"s_lshr_b32 s{sT3}, s{sW}, 1", f"s_lshl_b32 s{sT3}, s{sT3}, 5", f"s_add_u32 s{sT2}, s{sT2}, s{sT3}",
         f"s_and_b32 s{sT3}, s{sW}, 1", f"s_lshl_b32 s{sT3}, s{sT3}, 2", f"s_add_u32 s{sT2}, s{sT2}, s{sT3}",
         f"s_mul_i32 s{sT4}, s{sW}, 3072", f"s_add_u32 s{sT4}, s{sT4}, {L_X2}",
         f"v_mul_u32_u24 v{vXL}, 640, v{q}", f"v_lshl_add_u32 v{vXL}, v{dn}, 1, v{vXL}", f"v_add_u32 v{vXL}, s{sT4}, v{vXL}",
         f"v_lshl_add_u32 v{q}, v{q}, 3, s{sT2}",
         f"s_mul_i32 s{sT3}, s{sN}, 80", f"v_add_u32 v{dn}, s{sT3}, v{dn}",
         f"v_mul_u32_u24 v{t}, 640, v{q}", f"v_add_u32 v{t}, v{t}, v{dn}",
         f"v_lshlrev_b32 v{vOUT}, 2, v{t}", f"v_lshlrev_b32 v{vSTA}, 3, v{q}", f"v_lshlrev_b32 v{vDS}, 1, v{dn}",
         f"s_mul_i32 s{sT2}, s{sT2}, 1280", f"s_mul_i32 s{sT3}, s{sN}, 160", f"s_add_u32 s{sT5}, s{sT2}, s{sT3}", f"s_add_u32 s{sT5}, s{sT5}, 4096",
         f"s_mov_b32 s{sT3}, 6554"]
    a, b, c = vT[11], vT[12], vT[13]
    for p in range(3):
        r += [f"v_add_u32 v{a}, {64*p}, v{vLANE}", f"v_mul_u32_u24 v{b}, s{sT3}, v{a}", f"v_lshrrev_b32 v{b}, 16, v{b}",
              f"v_mul_u32_u24 v{c}, 10, v{b}", f"v_sub_u32 v{c}, v{a}, v{c}", f"v_lshlrev_b32 v{c}, 4, v{c}",
              f"v_and_b32 v{a}, 12, v{b}", f"v_add_u32 v{b}, v{a}, v{b}", f"v_mul_u32_u24 v{b}, 1280, v{b}", f"v_add_u32 v{vXD2[p]}, v{b}, v{c}"]
    r += [f"v_mov_b32 v{a}, {OOB}", f"v_cmp_gt_u32 vcc, 32, v{vLANE}", f"v_cndmask_b32 v{vXD2[2]}, v{a}, v{vXD2[2]}, vcc"]
    return r
def p2_epi_loads():
    r = []
    for p in range(3):
        r += [f"s_add_u32 m0, s{sT4}, {p*1024}", "s_nop 0", I(f"buffer_load_dwordx4 v{vXD2[p]}, s[{sX}:{sX+3}], s{sT5} offen lds", tok="XR")]
    for e in range(5):
        r.append(f"global_load_ushort v{vDK[e]}, v{vDS}, s[{pDSK}:{pDSK+1}] offset:{e*32}")
    r += [f"s_mov_b32 s{sD1}, {WS_STAT}",
          f"buffer_load_dwordx4 {vr(vST[0])}, v{vSTA}, s[{sWS}:{sWS+3}], s{sD1} offen sc1",
          f"buffer_load_dwordx4 {vr(vST[4])}, v{vSTA}, s[{sWS}:{sWS+3}], s{sD1} offen offset:16 sc1"]
    return r
def p2_xread():
    r = ["@waitvm XR"]
    for e in range(5):
        for rr in range(4):
            r.append(f"ds_read_u16 v{vXR[e*4+rr]}, v{vXL} offset:{rr*160 + e*32}")
    return r

def p2_skip():
    r = [f"v_lshlrev_b32 v{vDK[e]}, 16, v{vDK[e]}" for e in range(5)]
    for j in range(20): r.append(f"v_lshlrev_b32 v{vXR[j]}, 16, v{vXR[j]}")
    for e in range(5):
        for rr in range(4): r.append(f"v_fma_f32 v{96+e*4+rr}, v{vXR[e*4+rr]}, v{vST[2*rr]}, v{vST[2*rr+1]}")
        for rr in range(4): r.append(f"v_mul_f32 v{96+e*4+rr}, v{96+e*4+rr}, v{vDK[e]}")
    return r
def p2_gate():
    r = []
    T = vT[0:24]
    for e in range(5):
        b = T[12*(e % 2)]; b2 = b + 4; b3 = b + 8; Y = vY[e*4:e*4+4]
        r += [f"ds_read_b128 {vr(b)}, v{vPR} offset:{e*1024}", f"ds_read_b128 {vr(b2)}, v{vPR} offset:{5120 + e*1024}", f"ds_read_b128 {vr(b3)}, v{vPR} offset:{10240 + e*1024}"]
        if e > 0:
            p = T[12*((e-1) % 2)]; Yp = vY[(e-1)*4:e*4]
            for rr in range(4): r.append(f"v_mul_f32 v{Yp[rr]}, v{Yp[rr]}, v{p+rr}") if False else None
        for rr in range(4): r.append(f"v_add_f32 v{Y[rr]}, v{Y[rr]}, v{b+rr}")
        for rr in range(4): r.append(f"v_add_f32 v{b2+rr}, v{b2+rr}, v{b3+rr}")
        for rr in range(4): r.append(f"v_add_f32 v{Y[rr]}, v{Y[rr]}, v{b2+rr}")
        for rr in range(4): r.append(f"v_mul_f32 v{b+rr}, {NLOG2E}, v{Y[rr]}")
        for rr in range(4): r.append(f"v_exp_f32 v{b+rr}, v{b+rr}")
        for rr in range(4): r.append(f"v_add_f32 v{b+rr}, 1.0, v{b+rr}")
        for rr in range(4): r.append(f"v_rcp_f32 v{b+rr}, v{b+rr}")
        for rr in range(4): r.append(f"v_mul_f32 v{Y[rr]}, v{Y[rr]}, v{b+rr}")
    r += [f"v_add_u32 v{v}, {L_P2 - L_P1}, v{v}" for v in vPW + [vPR]]
    return r

def p2_final():
    r = []
    O = list(range(96, 116)); B = list(range(176, 236))
    for k in range(3):
        for e in range(5):
            r.append(f"ds_read_b128 {vr(B[k*20+e*4])}, v{vPR} offset:{k*5120 + e*1024}")
    for j in range(0, 20, 2): r.append(f"v_pk_fma_f32 {vr(vXR[j], 2)}, {vr(O[j], 2)}, {vr(vY[j], 2)}, {vr(vXR[j], 2)}")
    for j in range(0, 20, 2): r.append(f"v_pk_add_f32 {vr(B[j], 2)}, {vr(B[j], 2)}, {vr(B[20+j], 2)}")
    for j in range(0, 20, 2): r.append(f"v_pk_add_f32 {vr(B[j], 2)}, {vr(B[j], 2)}, {vr(B[40+j], 2)}")
    for j in range(0, 20, 2): r.append(f"v_pk_fma_f32 {vr(vXR[j], 2)}, {vr(B[j], 2)}, {vr(vY[j], 2)}, {vr(vXR[j], 2)}")
    for rr in range(4):
        r.append(f"s_mov_b32 s{sT2}, {rr*2560}")
        for e in range(5):
            r.append(f"buffer_store_dword v{vXR[e*4+rr]}, v{vOUT}, s[{sOUT}:{sOUT+3}], s{sT2} offen offset:{e*64} {opt.out_flags}")
    return r

def weave(main, extra, every=1):
    groups = []; cur = []
    for t in II(extra):
        cur.append(t)
        if t.cls == "vmem": groups.append(cur); cur = []
    if cur: groups.append(cur)
    out = []
    for k, t in enumerate(II(main)):
        out.append(t)
        if groups and k % every == every - 1: out += groups.pop(0)
    for g_ in groups: out += g_
    return out

def phase2(left):
    PH[0] = 2
    L(stamp("B mfma end"))
    L(delay("c", 15, 9, 600))
    L([f"s_mov_b32 s{sEX0}, {NLOG2E}", f"s_mov_b32 s{sEX1}, {NLOG2E}", f"s_mov_b32 s{sEX2}, 1.0", f"s_mov_b32 s{sEX3}, 1.0"])
    Wq = list(left); Aq = []
    assert all(id(gq[-1]) in STEP for gq in Wq)
    nextW = max([st for st in STEP.values()] + [-1]) + 1; nextA = 0
    while nextW < N1 + NLDS: Wq.extend(tagw(nextW)); nextW += 1
    def serial(lst, every, first=None):
        cnt = 0
        for t in II(lst):
            if t.cls == "pseudo" and t.op == "@gap": continue
            L([t])
            if t.cls in ("valu", "trans") and not t.op.startswith("v_cmp") and not INRAW[0]:
                cnt += 1
                q_ = first if first else Wq
                if q_ and cnt >= every and gstall(q_[0]) <= opt.thrs: L(q_.pop(0)); cnt = 0
            if t.op == "@raw_begin": INRAW[0] = True
            if t.op == "@raw_end": INRAW[0] = False
    serial(swiglu(ACCB, [0], sKSB, "HHB", packed=True), opt.every)
    L(stamp("epi B done"))
    L(flag_load(WS_FLHA, sRT, 1, 15))
    def fill(st):
        nonlocal nextW, nextA
        while nextA <= min(st + opt.look, NSTEP - 1): Aq.extend(taga(nextA)); nextA += 1
        while nextW <= min(st + opt.lookW, NSTEP - 1) and nextW >= N1 + NLDS and w_free_after_p(nextW) < st: Wq.extend(tagw(nextW)); nextW += 1
    def head():
        if Wq and (not Aq or STEP[id(Wq[0][-1])] <= STEP[id(Aq[0][-1])]): return Wq
        return Aq if Aq else None
    p56 = II(scan_P56())[33:]
    serial(p56[:10], opt.every)
    L(p2_setup2())
    serial(p56[10:opt.hack], opt.every)
    L(flag_check(WS_FLHA, sRT, 1, 15)); L(stamp("ha ready"))
    while nextA < opt.a0: Aq.extend(taga(nextA)); nextA += 1
    serial(p56[opt.hack:], opt.every2, Aq)
    L(stamp("h out"))
    while Aq: L(Aq.pop(0))
    L(["@waitvm HHB", "s_barrier"]); L(flag_store(WS_FLHH, sC, sG))
    L(stamp("flags out"))
    Q = Queue(); misc = []
    g = 0; nread = N1
    for st in range(NSTEP):
        mf = p2_mfma(st)
        if st == 8 - opt.look:
            L(flag_check(WS_FLHH, sRT, 1, 15))
        if st == N1 - opt.look:
            L(flag_check(WS_FLH, sRT, 1, 15)); L(stamp("h ready"))
        fill(st)
        if st == opt.p2pos + 1:
            Q.add(p2_epi_addr(), g + 30)
        if st == opt.epos: misc.extend(groups(p2_epi_loads()))
        if st == opt.epos + 3:
            assert not misc or all("v29" in gq[-1].text for gq in misc)
            Q.add(p2_xread() + p2_skip(), 20*N1 - 4)
        if st == 8 - opt.look - 2: misc[0:0] = groups(flag_load(WS_FLHH, sRT, 1, 15))
        if st == N1 - opt.look - 2: misc[0:0] = groups(flag_load(WS_FLH, sRT, 1, 15))
        while nread < N1 + NLDS and w_free_after_p(nread) < st and nread <= st + 3:
            assert not any(STEP.get(id(gq[-1])) == nread for gq in Wq)
            Q.add(p2_wread(nread), 20*(nread - 1) + 4); nread += 1
        if st == N1:
            L(stamp("out done"))
            yp = p2_partials(0, ACC1); rdy = [f"v_accvgpr_read_b32 v{vY[j]}, a{j}" for j in range(20)]
            mix = []
            for j in range(15): mix += [yp[j]] + rdy[j*4//3:(j+1)*4//3]
            Q.add(mix, 20*opt.ybar - 4)
        if st == opt.ybar:
            assert nread == N1 + NLDS
            L(Q.flush()); L(["@waitds0", "s_barrier"])
            Q.add(p2_gate(), 20*NSTEP - 24)
        def must(q): return [gq for gq in q if STEP[id(gq[-1])] <= st + opt.look]
        ng = len(must(Wq)) + len(Aq)
        per = -(-ng // 19)
        last = st == NSTEP - 1
        if last:
            L(Q.flush())
            mf = mf[5:] + mf[:5]
            wr = II(p2_partials(0, ACC2))
        for k, t in enumerate(mf):
            E(t)
            used = 0
            if k >= 1:
                for _ in range(max(per, 1)):
                    h = head()
                    if misc and (gstall(misc[0]) <= opt.thr or st >= opt.epos + 1 or "v29" in misc[0][-1].text) and (k % 2 == 0 or not h): L(misc.pop(0)); used += 2
                    elif h and (STEP[id(h[0][-1])] <= st + opt.look or gstall(h[0]) <= opt.thr): L(h.pop(0)); used += 2
            if st == opt.p2pos and k == 19:
                L(["@waitvm HST", "s_barrier"]); L(flag_store(WS_FLH, sC, sG))
            if last and k >= 7 and wr: L([wr.pop(0)])
            Q.pop(2 - used, g); g += 1
        if st >= opt.epos + 2:
            while misc: L(misc.pop(0))
        if opt.fine2: L(stamp(f"st{st}"))
        while head() and STEP[id(head()[0][-1])] <= st + opt.look: L(head().pop(0))
    L(wr)
    L(["@waitds0", "s_barrier"])
    L(stamp("y done"))
    L(p2_final())
    L(stamp("end")); L(stamp("cyc1", True))
INRAW = [False]

def diag_out():
    if not opt.diag: return
    L([f"s_lshl_b32 s{sT2}, s2, 2", f"s_add_u32 s{sT2}, s{sT2}, s{sW}", f"s_lshl_b32 s{sT2}, s{sT2}, 2", f"s_add_u32 s{sT2}, s{sT2}, {WS_STAMP}",
       f"v_mov_b32 v{vT[0]}, s{sNONCE}", f"buffer_store_dword v{vT[0]}, off, s[{sWS}:{sWS+3}], s{sT2}"])

def stamps_out():
    if opt.probe:
        L(["@raw_begin", "L_spin:", f"s_memrealtime s[{sSTAMP}:{sSTAMP+1}]", "s_waitcnt lgkmcnt(0)", f"s_sub_u32 s{sT2}, s{sSTAMP}, s3",
           f"s_cmp_lt_u32 s{sT2}, 5000", "s_cbranch_scc1 L_spin", "@raw_end"])
    if not opt.stamps: return
    L([f"s_lshl_b32 s{sT2}, s2, 2", f"s_add_u32 s{sT2}, s{sT2}, s{sW}", f"s_lshl_b32 s{sT2}, s{sT2}, 8", f"s_add_u32 s{sT2}, s{sT2}, {WS_STAMP}",
       f"v_lshlrev_b32 v{vT[0]}, 2, v{vLANE}", f"buffer_store_dword v0, v{vT[0]}, s[{sWS}:{sWS+3}], s{sT2} offen"])

def build():
    STEP.clear(); PH[0] = 1; EM[0] = Emitter(lines_of, lat_of, dslat=opt.dslat); lab[0] = 0; stamp_n[0] = 0; stamp_names.clear(); ST.n = 0
    prologue()
    L(stamp("issued")); L(stamp("cyc0", True))
    CAP[0] = rest = []
    setup_rest()
    L(scan_addr()); L(mlp_read_addr())
    constants()
    L(const_park())
    nonce_seed()
    L(relayout_issue()); L(relayout_raddr())
    if opt.t_w13: L(w13_touch_addr())
    L([f"v_min_u32 v{vT[0]}, 9, v{vLANE}", f"v_lshlrev_b32 v{vT[0]}, 7, v{vT[0]}", f"global_load_dword a231, v{vT[0]}, s[{pDSK}:{pDSK+1}]"])
    CAP[0] = None
    ra = atoms(rest); n0 = 0; k0 = 0
    while n0 < opt.pre0: L(ra[k0]); n0 += len(ra[k0]); k0 += 1
    L(stamp("consts"))
    tail = x_arrive(0, [i for a in ra[k0:] for i in a], 40)
    L(stamp("x0 in"))
    E("s_barrier")
    L(skew("0"))
    L(tail)
    L(x_stats(0))
    L([f"v_add_u32 v{vRX[0]}, 81920, v{vRX[0]}", f"v_add_u32 v{vRX[1]}, 81920, v{vRX[1]}"])
    nrm = []
    for s in range(20): nrm += norm_step(0, s, opt.pk0, vT[20:24]) if "N" not in opt.skip else []
    if "Z" in opt.skip: nrm = ["s_nop 0"] * len(nrm)
    if "Y" in opt.skip: nrm = [t if "v_pk_fma" not in t else "v_mov_b32 v52, v53" for t in nrm]
    if "M" in opt.skip: nrm = [x for k, t in enumerate(nrm) for x in ([t, "s_nop 0"] if k % 4 == 3 else [t])]
    tail = x_arrive(1, nrm)
    L(stamp("x1 in"))
    L(weave(tail, ST.next(50 - ST.n, 50), 1))
    L(x_stats(1))
    L(mlp_dma_addr("A"))
    for s in range(opt.pre_norm): L(norm_step(1, s, True, vT[20:24]))
    assert ST.n == 50
    phase2(phase1_blocks())
    diag_out()
    stamps_out()
    E("s_endpgm")
    return EM[0].out

HEADER = """; Kernarg layout for this problem (128 bytes, ptrs only, base s[0:1]):
; @launch grid=(256,1,1) block=(256,1,1) lds=163840
.amdgcn_target "amdgcn-amd-amdhsa--gfx950"
.text
.globl {k}
.p2align 8
.type {k},@function
{k}:
"""
FOOTER = """
L_exit:
    s_endpgm
L_codeend:
    .fill 64, 4, 0xbf800000
.section .rodata,"a"
.p2align 6
.amdhsa_kernel {k}
  .amdhsa_next_free_vgpr 512
  .amdhsa_next_free_sgpr 102
  .amdhsa_accum_offset 256
  .amdhsa_group_segment_fixed_size 0
  .amdhsa_kernarg_size 128
  .amdhsa_user_sgpr_count 2
  .amdhsa_user_sgpr_kernarg_segment_ptr 1
  .amdhsa_system_sgpr_workgroup_id_x 1
  .amdhsa_float_denorm_mode_32 3
.end_amdhsa_kernel
"""
def text():
    prog = build()
    body = "\n".join(("" if i.cls == "label" else "    ") + i.text for i in prog)
    return HEADER.format(k=KNAME) + body + FOOTER.format(k=KNAME), prog

if __name__ == "__main__":
    out = sys.argv[1]
    for a in sys.argv[2:]:
        k, v = a.split("=")
        cur = getattr(opt, k)
        setattr(opt, k, v.replace("_", " ") if isinstance(cur, str) else (v in ("1", "True") if isinstance(cur, bool) else type(cur)(float(v))))
    t, prog = text()
    open(out, "w").write(t)
    print(stats(prog), len(prog))
    if opt.sim:
        em = EM[0]; prev = 0
        for j, (n, m) in enumerate(zip(stamp_names, em.marks)):
            big = sorted([x for x in em.stalls if x[1] == j], reverse=True)
            print(f"{n:12s} {m:7.0f} ({m-prev:5.0f}) stalls {sum(x[0] for x in big):5.0f} :", "; ".join(f"{x[0]:.0f} {x[2][:44]}" for x in big[:4]))
            prev = m
    if opt.stamps:
        import json
        json.dump(stamp_names, open(out + ".stamps.json", "w"))
```

```python
import sys, os
sys.path.insert(0, os.path.dirname(os.path.abspath(__file__)))
from asmlib import I, stats, insert_nops, Emitter

KNAME = "recurrent_scan__ssm_conv_s5__glu_gated_swiglu__prompt_kernel"

class Opt:
    fine = False
    splitx = False
    fine2 = False
    pk0 = True
    xhit = False
    chain = 0
    sim = False
    fakehit = ''
    delay = 0
    diag = False
    cycles = False
    skip = ''
    probe = ''
    stamps = False
    codepf = True
    krot = True
    prot = False
    pre0 = 120
    pflines = 12
    win = 8
    pre_norm = 1
    skew = True
    mstat = True
    t_x1 = False
    t_w13 = False
    b10 = 1
    rf_stage = 3
    slack = 22
    rl_pos = 0
    capU = 3
    capM = 5
    span = 5
    X_stage = 2
    L_stage = 5
    C_stage = 7
    Y_stage = 8
    H_stage = 11
    F_stage = 2
    W_stage = 5
    nearly = 12
    rl_nt = False
    out_flags = "sc1"
    x_flags = ""
    w_flags = ""
    p1map = 0
    p2map = 0
    p2pos = 1
    epos = 5
    afirst = True
    hhpos = 1
    hack = 91
    haend = 18
    thrs = 100
    hhld = 50
    hhck = 130
    every = 10
    every2 = 2
    a0 = 3
    thrb = 40
    cad = 3
    cadA = 6
    pace = 11.0
    burst = 100
    coldpace = 1.5
    vmcost = 4
    ybar = 15
    hchk = 4
    HL_stage = 13
    look = 2
    lookW = 6
    thr = 16
    dsmax = 3
    interp = True
    vlat = 14
    chainq = True
    dslat = 130
    even = True
    thrm = 100
    slot0 = 5
    earlyA = False
    roty = False
    latA = 640
    latW = 620
opt = Opt()

WS_A2 = 0
WS_W2P = 0xB00000
WS_S = 0xF00000
WS_STAT = 0xF40000
WS_FLW = 0xF50000
WS_FLH = 0xF51000
WS_FLHH = 0xF52000
WS_FLHA = 0xF54000
WS_SEED = 0xF53000
WS_STAMP = 0xF60000
WS_SIZE = 0x1000000
OOB = 0x40000000

L_RL = 102400
L_PRIV = 122880
PV_COL, PV_CH, PV_E = 0, 1280, 4352
L_TT = 155648
L_LB = 159744
L_WY = 0
L_P1 = 81920
L_P2 = 0

sX, sWU, sWM, sWS, sOUT, sRL, sDBG = 36, 40, 44, 48, 52, 56, 60
(sW, sC, sG, sRT, sN, sNONCE, sT0, sT1, sT2, sT3, sXOFF, sUOFF, sMOFF, sMOFFB, sRLOFF, sRLST,
 sA2H, sKSA, sKSB, sSST, sLB0, sLB1, sLB2, sLB3, sEX0, sEX1, sEX2, sEX3, sM0, sM0A, sCNT, sP2A, sP2W, sT4, sT5, sSTATO) = range(64, 100)
sSTAMP = 100
pX, pLRE, pLIM, pBRE, pBIM, pCRE, pCIM, pLDT = 4, 6, 8, 10, 12, 14, 16, 18
pDSK, pBX, pW1, pW3, pW2, pOUT, pDBG, pWS = 20, 22, 24, 26, 28, 30, 32, 34
sKU = [22, 23, 0, 1, 32]
sD0, sD1 = 4, 5
sRY, sRO = 6, 7
sAP, sAS, sAE, sWP, sWB, sWE = 8, 9, 10, 11, 12, 13
sM0U, sSEEDO = 18, 19
sD2 = 31
sRLT = 33
sHO = [24, 25, 26, 27, 30]

vLANE, vL16 = 1, 2
vRX = [3, 4]; vRU = [5, 6]
vRA = [7, 8]; vRB = 9; vHH = 10; vDU = 11; vW4 = 12
vD = [13, 14, 15, 16]
vXD = vD
vDB = [3, 4, 5, 6]; vRB2 = 11
BSLOT = {10: 4, 11: 5, 12: 2, 13: 3, 14: 0}
BISSUE = {2: (11, 7), 6: (12, 8), 7: (13, 9), 8: (14, 10)}
vUD = [11, 27, 28, 29]
vEW, vER, vCOLR, vCH, vTT, vLB, vTW, vTR, vHST, vSO = range(17, 27)
vWP0, vWP1, vFLAG, vNON = 27, 28, 29, 30
vT = list(range(32, 56))
def U(cf, f): return 56 + (cf * 2 + f) * 4
def X(f, s): return 96 + (f * 20 + s) * 4
def ACCA(mu, h2): return (mu * 2 + h2) * 16
def FB(par, fr): return 64 + par * 32 + fr * 4
def ACCB(mu, h2=0): return 128 + mu * 16
aRL = 160
aS = 180

def vr(n, c=4): return f"v[{n}:{n+c-1}]"
def ar(n, c=4): return f"a[{n}:{n+c-1}]"
def sr(n, c=4): return f"s[{n}:{n+c-1}]"

def lines_of(i):
    t = i.text
    if "ushort" in t: return 1
    if i.tok and i.tok[0] == "M" and int(i.tok[1:]) >= 10: return 16
    if i.tok == "RL": return 16
    if i.tok == "XR": return 11
    if " off," in t and "global" not in t: return 1
    if "dwordx2" in t: return 2
    if "load_dword " in t and "offen" in t: return 1 if "sc1" in t else 32
    if "global_load_dword" in t: return 0
    if "store_dword " in t: return 4 if "offen" in t else 1
    return 8
def lat_of(i):
    t = i.text; tok = i.tok or ""
    cold = 1500
    if "store" in t: return 820 if "sc1" in t else 330
    if tok.startswith("x"): return cold if tok in ("x0_0", "x0_1", "x1_0", "x1_1") else 800
    if tok.startswith("U"): return cold if tok == "U0" else 800
    if tok == "RL" or tok == "TW": return cold
    if tok.startswith("M"): return cold if (tok in ("M0", "M1", "M10") and not opt.t_w13) else 520
    if tok == "W" or tok.startswith("WL"): return opt.latW
    if tok == "A": return opt.latA
    if "sc1" in t: return 1000
    return 700
EM = [None]
CAP = [None]
def E(t, tok=None):
    i = I(t, tok)
    if CAP[0] is not None: CAP[0].append(i)
    else: EM[0].feed(i)
    return i
def L(lst):
    for t in lst:
        i = t if isinstance(t, I) else I(t)
        if CAP[0] is not None: CAP[0].append(i)
        else: EM[0].feed(i)
def atoms(lst):
    out = []; depth = 0
    for i in lst:
        glue = depth > 0 or i.op.startswith(("s_cselect", "s_addc", "s_subb", "v_cndmask", "v_addc")) or i.cls in ("branch", "label") or i.op in ("@arm", "@else", "@endarm")
        if out and glue: out[-1].append(i)
        else: out.append([i])
        if i.op == "@arm": depth += 1
        if i.op == "@endarm": depth -= 1
    return out
def II(lst): return [t if isinstance(t, I) else I(t) for t in lst]

def srd(d, p, nbytes):
    return [f"s_mov_b32 s{d}, s{p}", f"s_and_b32 s{d+1}, s{p+1}, 0xffff", f"s_mov_b32 s{d+2}, {nbytes}", f"s_mov_b32 s{d+3}, 0x20000"]

stamp_n = [0]
stamp_names = []
def stamp(name, cyc=False):
    if opt.probe:
        if name != opt.probe: return []
        return [f"s_memrealtime s[{sSTAMP}:{sSTAMP+1}]", "@waitds0", f"s_mov_b32 s3, s{sSTAMP}"]
    if not opt.stamps: return []
    k = stamp_n[0]; stamp_n[0] += 1
    stamp_names.append(name)
    return [f"s_memtime s[{sSTAMP}:{sSTAMP+1}]" if (cyc or opt.cycles) else f"s_memrealtime s[{sSTAMP}:{sSTAMP+1}]", "@waitds0",
            f"v_writelane_b32 v0, s{sSTAMP}, {k}"]

def cmul(dr, di, ar_, ai, br, bi, t):
    return [f"v_mul_f32 v{t}, v{ai}, v{bi}", f"v_mul_f32 v{di}, v{ai}, v{br}",
            f"v_fma_f32 v{dr}, v{ar_}, v{br}, -v{t}", f"v_fmac_f32 v{di}, v{ar_}, v{bi}"]
def csq(dr, di, r, i, t):
    return [f"v_mul_f32 v{t}, v{i}, v{i}", f"v_mul_f32 v{di}, v{r}, v{i}",
            f"v_fma_f32 v{dr}, v{r}, v{r}, -v{t}", f"v_add_f32 v{di}, v{di}, v{di}"]
def chorner2(dr, di, gr, gi, mr, mi, er, ei):
    return [f"v_fma_f32 v{dr}, v{mr}, v{gr}, v{er}", f"v_fma_f32 v{di}, v{mr}, v{gi}, v{ei}",
            f"v_fma_f32 v{dr}, -v{mi}, v{gi}, v{dr}", f"v_fma_f32 v{di}, v{mi}, v{gr}, v{di}"]

LOG2E = "0x3fb8aa3b"
NLOG2E = "0xbfb8aa3b"
INV2PI = "0.15915494"

def x_piece(n):
    f, S, ih = n // 20, (n % 20) // 2, n & 1
    p = n & 3
    r = []
    if p == 0:
        r = [f"s_add_u32 m0, s{sM0}, {f*81920 + (2*S)*1024}", f"s_add_u32 s{sD1}, s{sKU[S >> 1]}, s{sXOFF}"]
        if f: r.append(f"s_add_u32 s{sD1}, s{sD1}, {4*1280}")
    r.append(I(f"buffer_load_dwordx4 v{vXD[p]}, s[{sX}:{sX+3}], s{sD1} offen offset:{p*1024} {opt.x_flags} lds", tok=f"x{f}_{S}"))
    return r
def u_piece(i, cf):
    r = []
    if cf == 0: r = [f"s_add_u32 m0, s{sM0U}, {i*20480}", f"s_add_u32 s{sD1}, s{sKU[i]}, s{sUOFF}"]
    if cf == 4: r = [f"s_add_u32 m0, s{sM0U}, {i*20480 + 4096}", f"s_add_u32 s{sD1}, s{sD1}, {4*10240}"]
    r.append(I(f"buffer_load_dwordx4 v{vUD[cf & 3]}, s[{sWU}:{sWU+3}], s{sD1} offen offset:{(cf & 3)*1024} {opt.w_flags} lds", tok=f"U{i}"))
    return r
class Stream:
    def __init__(self): self.n = 0
    def next(self, k, limit=60):
        r = []
        for _ in range(k):
            if self.n >= limit: break
            r += x_piece(self.n) if self.n < 40 else u_piece((self.n - 40) // 5, (self.n - 40) % 5)
            self.n += 1
        return r
ST = Stream()

def prologue():
    E(f"s_cmp_ge_u32 s2, 256")
    E("s_cbranch_scc1 L_exit")
    E("s_load_dwordx16 s[4:19], s[0:1], 0")
    E("s_load_dwordx16 s[20:35], s[0:1], 64")
    if opt.stamps or opt.probe == "entry":
        E(f"s_{'memtime' if opt.cycles else 'memrealtime'} s[{sSTAMP}:{sSTAMP+1}]")
    if opt.codepf:
        n = opt.pflines
        L(["@raw_begin", f"s_getpc_b64 s[{sT2}:{sT3}]", "L_pc:",
           f"s_lshr_b32 s{sT4}, s2, 3", f"s_mul_i32 s{sT4}, s{sT4}, {n*128}",
           f"v_min_u32 v{vT[0]}, {n-1}, v0", f"v_lshlrev_b32 v{vT[0]}, 7, v{vT[0]}", f"v_add_u32 v{vT[0]}, s{sT4}, v{vT[0]}",
           f"v_min_u32 v{vT[0]}, L_codeend-L_pc-4, v{vT[0]}",
           f"v_mov_b32 v{vT[1]}, s{sT3}", f"v_add_co_u32 v{vT[0]}, vcc, s{sT2}, v{vT[0]}", f"v_cmp_gt_u32 s[{sEX0}:{sEX0+1}], {n}, v0", "s_nop 0",
           f"v_addc_co_u32 v{vT[1]}, vcc, 0, v{vT[1]}, vcc", f"s_and_b64 s[{sEX0}:{sEX0+1}], s[{sEX0}:{sEX0+1}], exec",
           "s_cbranch_scc0 L_nopf", f"s_mov_b64 exec, s[{sEX0}:{sEX0+1}]",
           f"global_load_dword a230, v[{vT[0]}:{vT[1]}], off", "s_mov_b64 exec, -1", "L_nopf:", "@raw_end"])
    E(f"v_lshrrev_b32 v{vT[0]}, 6, v0")
    E(f"v_and_b32 v{vLANE}, 63, v0")
    E(f"v_readfirstlane_b32 s{sW}, v{vT[0]}")
    E(f"v_lshlrev_b32 v{vL16}, 4, v{vLANE}")
    L([f"s_and_b32 s{sT0}, s2, 7", f"s_lshr_b32 s{sT1}, s2, 3"])
    if opt.p1map == 0:
        L([f"s_and_b32 s{sC}, s{sT0}, 1", f"s_lshl_b32 s{sC}, s{sC}, 3", f"s_and_b32 s{sT2}, s{sT1}, 7", f"s_add_u32 s{sC}, s{sC}, s{sT2}",
           f"s_lshr_b32 s{sG}, s{sT0}, 1", f"s_lshl_b32 s{sG}, s{sG}, 2", f"s_lshr_b32 s{sT2}, s{sT1}, 3", f"s_add_u32 s{sG}, s{sG}, s{sT2}"])
    else:
        L([f"s_and_b32 s{sC}, s{sT0}, 3", f"s_lshl_b32 s{sC}, s{sC}, 2", f"s_and_b32 s{sT2}, s{sT1}, 3", f"s_add_u32 s{sC}, s{sC}, s{sT2}",
           f"s_lshr_b32 s{sG}, s{sT0}, 2", f"s_lshl_b32 s{sG}, s{sG}, 3", f"s_lshr_b32 s{sT2}, s{sT1}, 2", f"s_add_u32 s{sG}, s{sG}, s{sT2}"])
    t0, t1, t2, t3 = vT[0:4]
    L([f"v_lshrrev_b32 v{t0}, 3, v{vLANE}", f"v_and_b32 v{t1}, 7, v{vLANE}", f"v_and_b32 v{t2}, 6, v{t0}",
       f"v_xor_b32 v{t1}, v{t1}, v{t2}", f"v_lshlrev_b32 v{t1}, 4, v{t1}",
       f"v_and_b32 v{t2}, 4, v{t0}", f"v_add_u32 v{t2}, v{t2}, v{t0}",
       f"v_mul_u32_u24 v{vD[0]}, 1280, v{t2}", f"v_add_u32 v{vD[0]}, v{vD[0]}, v{t1}",
       f"v_mul_u32_u24 v{vDU}, 1280, v{t0}", f"v_add_u32 v{vDU}, v{vDU}, v{t1}",
       f"v_add_u32 v{vD[0]}, 4096, v{vD[0]}", f"v_add_u32 v{vD[1]}, {16*1280 - 1024}, v{vD[0]}",
       f"v_add_u32 v{vD[2]}, {128 - 2048}, v{vD[0]}", f"v_add_u32 v{vD[3]}, {16*1280 + 128 - 3072}, v{vD[0]}"])
    L([f"s_mul_i32 s{sT2}, s{sG}, 80", f"v_min_u32 v{t3}, 39, v{vLANE}", f"v_lshlrev_b32 v{t3}, 1, v{t3}", f"v_add_u32 v{t3}, s{sT2}, v{t3}"])
    L([f"s_lshl_b32 s{sXOFF}, s{sC}, 2", f"s_add_u32 s{sXOFF}, s{sXOFF}, s{sW}", f"s_mul_i32 s{sXOFF}, s{sXOFF}, {0 if opt.xhit else 32*1280}",
       f"s_mul_i32 s{sM0}, s{sW}, 20480"])
    if opt.krot:
        L([f"s_add_u32 s{sT4}, s{sC}, s{sG}", f"s_mul_i32 s{sT5}, s{sT4}, 52", f"s_lshr_b32 s{sT5}, s{sT5}, 8", f"s_mul_i32 s{sT5}, s{sT5}, 5",
           f"s_sub_u32 s{sT4}, s{sT4}, s{sT5}", f"s_lshl_b32 s{sT4}, s{sT4}, 8"])
    else:
        E(f"s_mov_b32 s{sT4}, 0")
    E("@waitds0")
    if opt.probe == "entry": E(f"s_mov_b32 s3, s{sSTAMP}")
    if opt.stamps:
        E(f"v_mov_b32 v0, 0")
        E(f"v_writelane_b32 v0, s{sSTAMP}, 0"); stamp_n[0] = 1; stamp_names.append("entry")
    if opt.chain:
        L([f"s_mul_i32 s{sT2}, s2, {60*128}", f"s_add_u32 s{sT2}, s{pW2}, s{sT2}", f"s_addc_u32 s{sT3}, s{pW2+1}, 0", f"v_mov_b32 v{vT[8]}, 0"])
        for k in range(opt.chain):
            L([f"global_load_dword v{vT[9]}, v{vT[8]}, s[{sT2}:{sT3}]", "@waitvm0", f"v_add_u32 v{vT[8]}, 128, v{vT[8]}"])
    E(f"global_load_ushort v{vT[4]}, v{t3}, s[{pLRE}:{pLRE+1}]")
    E(f"global_load_ushort v{vT[5]}, v{t3}, s[{pLIM}:{pLIM+1}]")
    E(f"global_load_ushort v{vT[6]}, v{t3}, s[{pLDT}:{pLDT+1}]")
    L([f"s_sub_u32 s{sX}, s{pX}, 4096", f"s_subb_u32 s{sX+1}, s{pX+1}, 0", f"s_and_b32 s{sX+1}, s{sX+1}, 0xffff",
       f"s_mov_b32 s{sX+2}, {2048*1280 + 4096}", f"s_mov_b32 s{sX+3}, 0x20000"])
    L(srd(sDBG, pDBG, 256))
    def ku(j): return [f"s_add_u32 s{sKU[j]}, s{sT4}, {j*256}", f"s_cmp_ge_u32 s{sKU[j]}, 1280", f"s_cselect_b32 s{sT5}, 1280, 0", f"s_sub_u32 s{sKU[j]}, s{sKU[j]}, s{sT5}"]
    L(ku(0)); L(ST.next(4))
    L(srd(sWS, pWS, WS_SIZE))
    L([f"s_or_b32 s{sT2}, s2, s{sW}", f"s_cmp_eq_u32 s{sT2}, 0", f"s_mov_b32 s{sT3}, {WS_SEED}", f"s_cselect_b32 s{sSEEDO}, s{sT3}, {OOB}"])
    E(f"buffer_load_dword v{vT[7]}, off, s[{sWS}:{sWS+3}], s{sSEEDO} sc1")
    L(ku(1)); L(ST.next(opt.win - 4))
    for j in range(2, 5): L(ku(j))
    i_, q_, a0, a1 = vT[8:12]
    L([f"v_and_b32 v{i_}, 15, v{vLANE}", f"v_lshrrev_b32 v{q_}, 4, v{vLANE}",
       f"v_and_b32 v{a0}, 7, v{i_}", f"v_and_b32 v{a1}, 6, v{i_}", f"v_xor_b32 v{a1}, v{a1}, v{q_}", f"v_lshlrev_b32 v{a1}, 4, v{a1}",
       f"v_lshl_add_u32 v{a1}, v{a0}, 7, v{a1}",
       f"v_lshrrev_b32 v{a0}, 3, v{i_}",
       f"v_mul_u32_u24 v{vRU[0]}, 5120, v{a0}", f"v_add_u32 v{vRU[0]}, v{vRU[0]}, v{a1}", f"v_xor_b32 v{vRU[1]}, 64, v{vRU[0]}",
       f"v_lshl_add_u32 v{vRX[0]}, v{a0}, 10, v{a1}", f"v_add_u32 v{vRX[0]}, s{sM0}, v{vRX[0]}", f"v_xor_b32 v{vRX[1]}, 64, v{vRX[0]}",
       f"v_add_u32 v{vW4}, 4096, v{vL16}", f"v_mov_b32 v{vONES}, 0x3f803f80"])
    L([f"v_accvgpr_write_b32 a{aONE+k}, v{vONES}" for k in range(4)])
    L([f"v_add_u32 v{vUD[p]}, {p*(10240 - 1024)}, v{vDU}" for p in range(1, 4)])

def setup_rest():
    t0 = vT[0]
    L([f"s_bitcmp1_b32 s{sW}, 0",
       f"s_cselect_b32 s{sWU}, s{pBIM}, s{pBRE}", f"s_cselect_b32 s{sWU+1}, s{pBIM+1}, s{pBRE+1}",
       f"s_cselect_b32 s{sWM}, s{pW3}, s{pW1}", f"s_cselect_b32 s{sWM+1}, s{pW3+1}, s{pW1+1}",
       f"s_and_b32 s{sWU+1}, s{sWU+1}, 0xffff", f"s_and_b32 s{sWM+1}, s{sWM+1}, 0xffff",
       f"s_mov_b32 s{sWU+2}, {640*1280}", f"s_mov_b32 s{sWU+3}, 0x20000",
       f"s_mov_b32 s{sWM+2}, {640*3072}", f"s_mov_b32 s{sWM+3}, 0x20000"])
    L(srd(sOUT, pOUT, 2048*2560))
    if opt.p2map == 0:
        L([f"s_lshl_b32 s{sRT}, s{sT0}, 2", f"s_and_b32 s{sT2}, s{sT1}, 3", f"s_add_u32 s{sRT}, s{sRT}, s{sT2}", f"s_lshr_b32 s{sN}, s{sT1}, 2"])
    else:
        L([f"s_and_b32 s{sRT}, s{sT0}, 3", f"s_lshl_b32 s{sRT}, s{sRT}, 3", f"s_and_b32 s{sT2}, s{sT1}, 7", f"s_add_u32 s{sRT}, s{sRT}, s{sT2}",
           f"s_lshr_b32 s{sN}, s{sT0}, 2", f"s_lshl_b32 s{sN}, s{sN}, 2", f"s_lshr_b32 s{sT2}, s{sT1}, 3", f"s_add_u32 s{sN}, s{sN}, s{sT2}"])
    L([f"s_mul_i32 s{sUOFF}, s{sG}, {40*1280}", f"s_lshr_b32 s{sT2}, s{sW}, 1", f"s_lshl_b32 s{sT2}, s{sT2}, 7", f"s_add_u32 s{sUOFF}, s{sUOFF}, s{sT2}",
       f"s_mul_i32 s{sM0U}, s{sW}, 5120"])
    L([f"s_mul_i32 s{sT2}, s{sG}, 192", f"s_bitcmp1_b32 s{sG}, 0",
       f"s_cselect_b32 s{sT3}, 64, 0", f"s_cselect_b32 s{sT4}, 0, 128", f"s_add_u32 s{sMOFF}, s{sT2}, s{sT3}", f"s_add_u32 s{sMOFFB}, s{sT2}, s{sT4}",
       f"s_lshr_b32 s{sT2}, s{sW}, 1",
       f"s_mul_i32 s{sT3}, s{sT2}, {32*3072}", f"s_add_u32 s{sMOFF}, s{sMOFF}, s{sT3}",
       f"s_mul_i32 s{sT3}, s{sT2}, {64*3072}", f"s_add_u32 s{sMOFFB}, s{sMOFFB}, s{sT3}",
       f"s_lshl_b32 s{sM0A}, s{sW}, 12"])
    L([f"s_lshl_b32 s{sT3}, s{sC}, 1", f"s_add_u32 s{sT3}, s{sT3}, s{sT2}", f"s_mul_i32 s{sA2H}, s{sT3}, {88*4096}",
       f"s_and_b32 s{sT3}, s{sW}, 1", f"s_lshl_b32 s{sT3}, s{sT3}, 11", f"s_add_u32 s{sA2H}, s{sA2H}, s{sT3}",
       f"s_mul_i32 s{sT3}, s{sG}, 3", f"s_add_u32 s{sT3}, s{sT3}, 40", f"s_and_b32 s{sT4}, s{sG}, 1",
       f"s_add_u32 s{sKSA}, s{sT3}, s{sT4}", f"s_lshl_b32 s{sKSA}, s{sKSA}, 12", f"s_add_u32 s{sKSA}, s{sKSA}, s{sA2H}",
       f"s_xor_b32 s{sT4}, s{sT4}, 1", f"s_lshl_b32 s{sT4}, s{sT4}, 1",
       f"s_add_u32 s{sKSB}, s{sT3}, s{sT4}", f"s_lshl_b32 s{sKSB}, s{sKSB}, 12", f"s_add_u32 s{sKSB}, s{sKSB}, s{sA2H}"])
    L([f"s_lshl_b32 s{sT3}, s{sG}, 4", f"s_add_u32 s{sT4}, s{sT3}, s{sC}", f"s_mul_i32 s{sT4}, s{sT4}, 640", f"s_add_u32 s{sT4}, s{sT4}, {WS_S}",
       f"s_cmp_eq_u32 s{sW}, 3", f"s_cselect_b32 s{sSST}, s{sT4}, {OOB}"])
    for jj, sl in enumerate((sLB0, sLB1, sLB2, sLB3)):
        L([f"s_lshl_b32 s{sT4}, s{sW}, 2", f"s_add_u32 s{sT4}, s{sT4}, s{sC}", f"s_add_i32 s{sT4}, s{sT4}, {jj-16}",
           f"s_add_u32 s{sT5}, s{sT3}, s{sT4}", f"s_mul_i32 s{sT5}, s{sT5}, 640", f"s_add_u32 s{sT5}, s{sT5}, {WS_S}",
           f"s_cmp_ge_i32 s{sT4}, 0", f"s_cselect_b32 s{sl}, s{sT5}, {OOB}"])
    L([f"s_lshl_b32 s{sT3}, s{sC}, 2", f"s_add_u32 s{sT3}, s{sT3}, s{sW}", f"s_lshl_b32 s{sT3}, s{sT3}, 8", f"s_add_u32 s{sT3}, s{sT3}, {WS_STAT}",
       f"s_cmp_eq_u32 s{sG}, 0", f"s_cselect_b32 s{sSTATO}, s{sT3}, {OOB}"])
    for cf in range(5):
        L([f"s_mul_i32 s{sT2}, s{sG}, 5", f"s_add_u32 s{sT2}, s{sT2}, {cf}", f"s_and_b32 s{sT4}, s{sT2}, 3", f"s_lshr_b32 s{sT2}, s{sT2}, 2",
           f"s_lshl_b32 s{sT2}, s{sT2}, 12", f"s_lshl_b32 s{sT4}, s{sT4}, 8", f"s_add_u32 s{sT2}, s{sT2}, s{sT4}", f"s_add_u32 s{sHO[cf]}, s{sT2}, s{sA2H}"])
    L([f"s_mul_i32 s{sP2A}, s{sRT}, {88*4096}", f"s_mul_i32 s{sP2W}, s{sN}, {88*5120}", f"s_add_u32 s{sP2W}, s{sP2W}, {WS_W2P}"])
    if "A" in opt.fakehit: E(f"s_mov_b32 s{sP2A}, 0")
    if "W" in opt.fakehit: E(f"s_mov_b32 s{sP2W}, {WS_W2P}")
    L(ptr_bases())

cAR, cAI, cKR, cKI = 56, 57, 58, 59
cA8, cA32, cA32W, cA128, cOM = 60, 62, 64, 66, 68
def constants():
    lre, lim, ldt = vT[4], vT[5], vT[6]
    t = list(range(72, 96))
    L([f"v_lshlrev_b32 v{lre}, 16, v{lre}", f"v_lshlrev_b32 v{lim}, 16, v{lim}", f"v_lshlrev_b32 v{ldt}, 16, v{ldt}",
       f"v_mul_f32 v{t[0]}, {LOG2E}, v{ldt}", f"v_exp_f32 v{t[0]}, v{t[0]}",
       f"v_cvt_pk_bf16_f32 v{t[0]}, v{t[0]}, v{t[0]}", f"v_lshlrev_b32 v{t[0]}, 16, v{t[0]}",
       f"v_mul_f32 v{t[1]}, v{t[0]}, v{lre}", f"v_mul_f32 v{t[2]}, v{t[0]}, v{lim}",
       f"v_mul_f32 v{t[1]}, {LOG2E}, v{t[1]}", f"v_exp_f32 v{t[1]}, v{t[1]}",
       f"v_mul_f32 v{t[2]}, {INV2PI}, v{t[2]}", f"v_rndne_f32 v{t[3]}, v{t[2]}", f"v_sub_f32 v{t[2]}, v{t[2]}, v{t[3]}",
       f"v_cos_f32 v{t[3]}, v{t[2]}", f"v_sin_f32 v{t[4]}, v{t[2]}",
       f"v_mul_f32 v{cAR}, v{t[1]}, v{t[3]}", f"v_mul_f32 v{cAI}, v{t[1]}, v{t[4]}",
       f"v_add_f32 v{t[3]}, -1.0, v{cAR}",
       f"v_mul_f32 v{t[5]}, v{lre}, v{lre}", f"v_fmac_f32 v{t[5]}, v{lim}, v{lim}", f"v_rcp_f32 v{t[5]}, v{t[5]}",
       f"v_mul_f32 v{t[6]}, v{t[3]}, v{lre}", f"v_fmac_f32 v{t[6]}, v{cAI}, v{lim}",
       f"v_mul_f32 v{t[7]}, v{cAI}, v{lre}", f"v_fma_f32 v{t[7]}, -v{t[3]}, v{lim}, v{t[7]}",
       f"v_add_f32 v{t[5]}, v{t[5]}, v{t[5]}",
       f"v_mul_f32 v{cKR}, v{t[6]}, v{t[5]}", f"v_mul_f32 v{cKI}, v{t[7]}, v{t[5]}"])
    r, i, tt = t[8], t[9], t[0]
    L([f"v_mov_b32 v{r}, v{cAR}", f"v_sub_f32 v{i}, 0, v{cAI}"])
    L(csq(t[10], t[11], r, i, tt)); L(csq(r, i, t[10], t[11], tt))
    L(csq(cA8, cA8+1, r, i, tt))
    L(csq(r, i, cA8, cA8+1, tt))
    L(csq(cA32, cA32+1, r, i, tt))
    L(csq(t[12], t[13], cA32, cA32+1, tt))
    L(csq(cA128, cA128+1, t[12], t[13], tt))
    L(csq(r, i, cA128, cA128+1, tt))
    L(csq(t[14], t[15], r, i, tt))
    L(csq(t[16], t[17], t[14], t[15], tt))
    def sel(dst, src, mask, on):
        if on:
            return [f"v_cndmask_b32 v{dst}, 1.0, v{src}, s[{mask}:{mask+1}]", f"v_cndmask_b32 v{dst+1}, 0, v{src+1}, s[{mask}:{mask+1}]"]
        return [f"v_mov_b32 v{t[22]}, 1.0", f"v_mov_b32 v{t[23]}, 0",
                f"v_cndmask_b32 v{dst}, v{src}, v{t[22]}, s[{mask}:{mask+1}]", f"v_cndmask_b32 v{dst+1}, v{src+1}, v{t[23]}, s[{mask}:{mask+1}]"]
    L([f"s_bitcmp1_b32 s{sW}, 0", f"s_cselect_b64 s[{sEX0}:{sEX0+1}], -1, 0", f"s_bitcmp1_b32 s{sW}, 1", f"s_cselect_b64 s[{sEX2}:{sEX2+1}], -1, 0"])
    L(sel(t[18], cA32, sEX0, True)); L(sel(t[20], t[12], sEX2, True))
    L(cmul(cA32W, cA32W+1, t[18], t[19], t[20], t[21], tt))
    L(sel(t[18], t[14], sEX0, False)); L(sel(t[20], t[16], sEX2, False))
    L(cmul(cOM, cOM+1, t[18], t[19], t[20], t[21], tt))

def nonce_seed():
    sd = vT[7]
    L([f"s_mov_b32 s{sT2}, 1664525", f"v_mul_lo_u32 v{sd}, v{sd}, s{sT2}", f"v_add_u32 v{vNON}, 1013904223, v{sd}", f"v_mov_b32 v{vNON+1}, 1"])
    E(f"buffer_store_dword v{vNON}, off, s[{sWS}:{sWS+3}], s{sSEEDO} sc1", tok="seed")
def nonce_publish():
    return [f"s_cmp_lt_u32 s{sSEEDO}, {OOB}", f"s_cselect_b32 s{sT5}, 0, {OOB}", "@waitvm seed",
            f"buffer_store_dwordx2 v[{vNON}:{vNON+1}], off, s[{sDBG}:{sDBG+3}], s{sT5} sc1"]

lab = [0]
def poll(load_text, check):
    lab[0] += 1
    n = lab[0]
    r = list(check)
    r += [f"s_cbranch_vccz L_ok{n}", "@raw_begin", f"s_mov_b32 s{sCNT}, {0x4000 if opt.diag else 0x40000}", f"L_rt{n}:", "s_sleep 1"]
    r += [t.text if isinstance(t, I) else t for t in load_text]
    r += ["s_waitcnt vmcnt(0)", "s_nop 1"] + list(check) + [f"s_cbranch_vccz L_ok{n}", f"s_sub_u32 s{sCNT}, s{sCNT}, 1",
          f"s_cmp_lg_u32 s{sCNT}, 0", f"s_cbranch_scc1 L_rt{n}"]
    if opt.diag: r += [f"buffer_store_dword v{vLANE}, off, s[{sDBG}:{sDBG+3}], 0 offset:{32+4*n} sc1", "s_waitcnt vmcnt(0)"]
    r += ["s_nop 7", "@raw_end", f"L_ok{n}:"]
    return r
def nonce_load():
    return [f"buffer_load_dwordx2 v[{vNON}:{vNON+1}], off, s[{sDBG}:{sDBG+3}], 0 sc1"]
def nonce_get():
    return poll(nonce_load(), [f"v_cmp_ne_u32 vcc, 1, v{vNON+1}"]) + [f"v_readfirstlane_b32 s{sNONCE}, v{vNON}"]

sS0, sS1, sQ0, sQ1 = vT[8], vT[9], vT[10], vT[11]
vR = [vT[12], vT[14]]; vNB = [vT[13], vT[15]]
vM = [vT[16], vT[17]]
vONES = vT[18]
def x_arrive(f, filler=None, limit=60):
    fa = atoms(II(filler or []))
    tot = sum(len(a) for a in fa); chunks = [[] for _ in range(10)]; acc = 0
    for a in fa:
        chunks[min(9, acc * 10 // max(tot, 1))] += a; acc += len(a)
    if not opt.mstat: L([f"v_mov_b32 v{sS0}, 0", f"v_mov_b32 v{sS1}, 0", f"v_mov_b32 v{sQ0}, 0", f"v_mov_b32 v{sQ1}, 0"])
    def st(s):
        r = []
        if opt.mstat:
            c0 = "0" if s == 0 else ar(aSS); c1 = "0" if s == 0 else ar(aSQ)
            return [f"v_mfma_f32_16x16x32_bf16 {ar(aSS)}, {ar(aONE)}, {vr(X(f, s))}, {c0}",
                    f"v_mfma_f32_16x16x32_bf16 {ar(aSQ)}, {vr(X(f, s))}, {vr(X(f, s))}, {c1}"]
        for k in range(4):
            x = X(f, s) + k
            r += [f"v_dot2_f32_bf16 v{(sS0, sS1)[k&1]}, v{x}, v{vONES}, v{(sS0, sS1)[k&1]}",
                  f"v_dot2_f32_bf16 v{(sQ0, sQ1)[k&1]}, v{x}, v{x}, v{(sQ0, sQ1)[k&1]}"]
        return r
    for S in range(10):
        E(f"@waitvm x{f}_{S}")
        for sh in range(2):
            E(f"ds_read_b128 {vr(X(f, 2*S+sh))}, v{vRX[sh]} offset:{S*2048}", tok=f"xr{f}_{2*S+sh}")
        fl = chunks[S]
        L(ST.next(2 if ST.n % 2 == 0 or True else 1, limit))
        if S > 0:
            E(f"@waitds xr{f}_{2*S-1}")
            L(st(2*S-2)); L(st(2*S-1))
        L(fl)
    E("@waitds0")
    return st(18) + st(19)

aONE, aSS, aSQ = 216, 220, 224
def x_stats(f):
    a, b = vT[19], vT[20]
    r = [f"v_add_f32 v{sS0}, v{sS0}, v{sS1}", f"v_add_f32 v{sQ0}, v{sQ0}, v{sQ1}"]
    if opt.mstat:
        t = vT[8:12]
        r = [f"v_and_b32 v{a}, 15, v{vLANE}", f"v_lshrrev_b32 v{b}, 2, v{a}", f"v_lshl_add_u32 v{b}, v{b}, 4, v{a}", f"v_lshlrev_b32 v{b}, 2, v{b}",
             f"v_and_b32 v{a}, 3, v{vLANE}", f"v_cmp_eq_u32 s[{sEX0}:{sEX0+1}], 1, v{a}", f"v_cmp_eq_u32 s[{sEX2}:{sEX2+1}], 2, v{a}", f"v_cmp_eq_u32 vcc, 3, v{a}"]
        r += [f"v_accvgpr_read_b32 v{t[k]}, a{aSQ+k}" for k in range(4)]
        r += [f"v_cndmask_b32 v{t[0]}, v{t[0]}, v{t[1]}, s[{sEX0}:{sEX0+1}]", f"v_cndmask_b32 v{t[2]}, v{t[2]}, v{t[3]}, vcc",
              f"v_cndmask_b32 v{t[0]}, v{t[0]}, v{t[2]}, s[{sEX2}:{sEX2+1}]", f"v_cndmask_b32 v{t[0]}, v{t[0]}, v{t[2]}, vcc",
              f"ds_bpermute_b32 v{sQ0}, v{b}, v{t[0]}", f"v_accvgpr_read_b32 v{sS0}, a{aSS}"]
    for perm in (() if opt.mstat else ("v_permlane16_swap_b32", "v_permlane32_swap_b32")):
        r += [f"v_mov_b32 v{a}, v{sS0}", f"v_mov_b32 v{b}, v{sQ0}", f"{perm} v{a}, v{sS0}", f"{perm} v{b}, v{sQ0}",
              f"v_add_f32 v{sS0}, v{sS0}, v{a}", f"v_add_f32 v{sQ0}, v{sQ0}, v{b}"]
    inv = "0x3acccccd"
    r += [f"v_mul_f32 v{sS0}, {inv}, v{sS0}", f"v_mul_f32 v{sQ0}, {inv}, v{sQ0}",
          f"v_fma_f32 v{sQ0}, -v{sS0}, v{sS0}, v{sQ0}", f"v_max_f32 v{sQ0}, 0, v{sQ0}",
          f"v_cvt_pk_bf16_f32 v{a}, v{sS0}, v{sQ0}",
          f"v_lshlrev_b32 v{vM[f]}, 16, v{a}", f"v_and_b32 v{b}, 0xffff0000, v{a}",
          f"v_add_f32 v{b}, 0x3727c5ac, v{b}",
          f"v_cvt_pk_bf16_f32 v{b}, v{b}, v{b}", f"v_and_b32 v{b}, 0xffff0000, v{b}",
          f"v_sqrt_f32 v{b}, v{b}", f"v_cvt_pk_bf16_f32 v{b}, v{b}, v{b}", f"v_and_b32 v{b}, 0xffff0000, v{b}",
          f"v_rcp_f32 v{vR[f]}, v{b}", f"v_mul_f32 v{vNB[f]}, v{vM[f]}, v{vR[f]}", f"v_sub_f32 v{vNB[f]}, 0, v{vNB[f]}"]
    return r

def norm_step(f, s, packed, tmp):
    r = []
    for k in range(4):
        x = X(f, s) + k
        t = tmp[(k & 1) * 2]
        if packed:
            r += [f"v_lshlrev_b32 v{t}, 16, v{x}", f"v_and_b32 v{t+1}, 0xffff0000, v{x}",
                  f"v_pk_fma_f32 v[{t}:{t+1}], v[{t}:{t+1}], v[{vR[f]}:{vR[f]+1}], v[{vR[f]}:{vR[f]+1}] op_sel:[0,0,1] op_sel_hi:[1,0,1]",
                  f"v_cvt_pk_bf16_f32 v{x}, v{t}, v{t+1}"]
        else:
            r += [f"v_lshlrev_b32 v{t}, 16, v{x}", f"v_and_b32 v{t+1}, 0xffff0000, v{x}",
                  f"v_fma_f32 v{t}, v{t}, v{vR[f]}, v{vNB[f]}", f"v_fma_f32 v{t+1}, v{t+1}, v{vR[f]}, v{vNB[f]}",
                  f"v_cvt_pk_bf16_f32 v{x}, v{t}, v{t+1}"]
    return r

def stats_store():
    a, b = vT[0], vT[1]
    r = [f"v_and_b32 v{a}, 12, v{vLANE}", f"v_add_u32 v{a}, v{a}, v{vLANE}", f"v_lshlrev_b32 v{a}, 3, v{a}",
         f"v_mov_b32 v{b}, {OOB}", f"v_cmp_gt_u32 vcc, 16, v{vLANE}", f"v_cndmask_b32 v{a}, v{b}, v{a}, vcc"]
    for f in range(2):
        r.append(I(f"buffer_store_dwordx2 v[{vR[f]}:{vR[f]+1}], v{a}, s[{sWS}:{sWS+3}], s{sSTATO} offen offset:{32*f} sc1", tok="stat"))
    return r

def mlp_dma_addr(kind):
    vD = vDB if kind == "B" else globals()["vD"]
    t0, t1, t2 = vD[1], vD[2], vD[3]
    if kind == "A":
        r = [f"v_lshrrev_b32 v{t0}, 3, v{vLANE}", f"v_and_b32 v{t1}, 7, v{vLANE}", f"v_and_b32 v{t2}, 2, v{t0}", f"v_lshlrev_b32 v{t2}, 1, v{t2}",
             f"v_xor_b32 v{t1}, v{t1}, v{t2}", f"v_lshlrev_b32 v{t1}, 4, v{t1}",
             f"v_mul_u32_u24 v{t0}, 3072, v{t0}", f"v_add_u32 v{vD[0]}, v{t0}, v{t1}"]
        rows = 8
    else:
        r = [f"v_lshrrev_b32 v{t0}, 2, v{vLANE}", f"v_and_b32 v{t1}, 3, v{vLANE}", f"v_lshlrev_b32 v{t1}, 4, v{t1}",
             f"v_mul_u32_u24 v{t0}, 3072, v{t0}", f"v_add_u32 v{vD[0]}, v{t0}, v{t1}"]
        rows = 16
    for p in range(1, 4):
        r.append(f"v_add_u32 v{vD[p]}, {p*(rows*3072 - 1024)}, v{vD[0]}")
    if kind == "B": r.append(f"v_add_u32 v{vRB2}, 0x10000, v{vRB}")
    return r

def dma_M(m):
    slot = m % 4 if m < 10 else BSLOT[m]
    vD = globals()["vD"] if m < 10 else vDB
    if m < 10:
        so = [f"s_mul_i32 s{sD0}, s{sKU[m >> 1]}, 1536", f"s_add_u32 s{sD0}, s{sD0}, s{sMOFF}"]
        if m & 1: so.append(f"s_add_u32 s{sD0}, s{sD0}, {64*3072}")
    else:
        so = [f"s_mul_i32 s{sD0}, s{sKU[m - 10]}, 1536", f"s_add_u32 s{sD0}, s{sD0}, s{sMOFFB}"]
    if m >= 10:
        r = []
        for p in range(4):
            r += [f"s_add_u32 m0, s{sM0A}, {slot*16384}"] + ([t.replace(f"s{sD0}", f"s{sD2}") for t in so] if p == 0 else [f"s_add_u32 s{sD2}, s{sD2}, {0}"] if False else [])
            r.append(I(f"buffer_load_dwordx4 v{vD[p]}, s[{sWM}:{sWM+3}], s{sD2} offen offset:{p*1024} {opt.w_flags} lds", tok=f"M{m}"))
        return r
    r = [f"s_add_u32 m0, s{sM0A}, {slot*16384}"] + so
    for p in range(4):
        r.append(I(f"buffer_load_dwordx4 v{vD[p]}, s[{sWM}:{sWM+3}], s{sD0} offen offset:{p*1024} {opt.w_flags} lds", tok=f"M{m}"))
    return r

def w13_touch_addr():
    a, b = vT[5], vT[6]
    return [f"v_lshrrev_b32 v{a}, 1, v{vLANE}", f"v_mul_u32_u24 v{a}, 3072, v{a}", f"v_and_b32 v{b}, 1, v{vLANE}", f"v_lshl_add_u32 v{a}, v{b}, 7, v{a}",
            f"v_accvgpr_write_b32 a238, v{a}", f"v_mov_b32 v{b}, {OOB}", f"v_cmp_gt_u32 vcc, 16, v{vLANE}", f"v_cndmask_b32 v{a}, v{b}, v{a}, vcc",
            f"v_accvgpr_write_b32 a239, v{a}",
            f"s_and_b32 s{sT2}, s{sC}, 7", f"s_lshl_b32 s{sT2}, s{sT2}, 1", f"s_lshr_b32 s{sT3}, s{sW}, 1", f"s_add_u32 s{sT2}, s{sT2}, s{sT3}",
            f"s_mul_i32 s{sT2}, s{sT2}, {40*3072}", f"s_mul_i32 s{sT3}, s{sG}, 192", f"s_and_b32 s{sT3}, s{sT3}, 0xffffff80", f"s_add_u32 s{sD2}, s{sT2}, s{sT3}"]
def w13_touch():
    a = I(f"buffer_load_dword a228, v{vFLAG}, s[{sWM}:{sWM+3}], s{sD2} offen", tok="TW"); a.lines = 64
    b = I(f"buffer_load_dword a228, v{vFLAG}, s[{sWM}:{sWM+3}], s{sD2} offen", tok="TW"); b.lines = 16
    return [[f"v_accvgpr_read_b32 v{vFLAG}, a238", a], [f"v_accvgpr_read_b32 v{vFLAG}, a239", f"s_add_u32 s{sD2}, s{sD2}, {32*3072}", b]]

def delay(tag, mod, val, ticks):
    if not opt.delay: return []
    return ["@raw_begin", f"s_and_b32 s{sD0}, s2, {mod}", f"s_cmp_eq_u32 s{sD0}, {val}", f"s_cbranch_scc0 L_dl{tag}",
            f"s_memrealtime s[{sSTAMP}:{sSTAMP+1}]", "s_waitcnt lgkmcnt(0)", f"s_mov_b32 s{sD1}, s{sSTAMP}", f"L_dw{tag}:",
            f"s_memrealtime s[{sSTAMP}:{sSTAMP+1}]", "s_waitcnt lgkmcnt(0)", f"s_sub_u32 s{sD0}, s{sSTAMP}, s{sD1}",
            f"s_cmp_lt_u32 s{sD0}, {ticks*opt.delay}", f"s_cbranch_scc1 L_dw{tag}", f"L_dl{tag}:", "@raw_end"]

def skew(tag):
    if not opt.skew: return []
    return [f"s_bitcmp1_b32 s{sW}, 0", f"s_cbranch_scc1 L_sk{tag}a", "s_nop 0", f"L_sk{tag}a:", f"s_bitcmp1_b32 s{sW}, 1", f"s_cbranch_scc1 L_sk{tag}b", "s_nop 1", f"L_sk{tag}b:"]

def mlp_read_addr():
    G, r_, c, t, u = vT[19], vT[20], vT[21], vT[22], vT[23]
    return [f"v_lshrrev_b32 v{G}, 4, v{vLANE}", f"v_bfe_u32 v{r_}, v{vLANE}, 2, 2", f"v_and_b32 v{c}, 3, v{vLANE}",
         f"v_lshrrev_b32 v{t}, 1, v{G}", f"v_lshlrev_b32 v{t}, 11, v{t}", f"v_lshl_add_u32 v{t}, v{r_}, 7, v{t}",
         f"v_and_b32 v{u}, 1, v{c}", f"v_lshl_add_u32 v{t}, v{u}, 3, v{t}",
         f"v_and_b32 v{u}, 1, v{G}", f"v_lshlrev_b32 v{u}, 1, v{u}", f"v_lshrrev_b32 v{vRA[1]}, 1, v{c}", f"v_add_u32 v{u}, v{u}, v{vRA[1]}",
         f"v_lshrrev_b32 v{vRA[1]}, 1, v{r_}", f"v_lshlrev_b32 v{vRA[1]}, 2, v{vRA[1]}", f"v_xor_b32 v{u}, v{u}, v{vRA[1]}",
         f"v_lshl_add_u32 v{vRA[0]}, v{u}, 4, v{t}", f"v_xor_b32 v{vRA[1]}, 64, v{vRA[0]}",
         f"v_lshrrev_b32 v{t}, 1, v{G}", f"v_lshlrev_b32 v{t}, 10, v{t}", f"v_lshl_add_u32 v{t}, v{r_}, 6, v{t}",
         f"v_and_b32 v{u}, 1, v{G}", f"v_lshl_add_u32 v{t}, v{u}, 5, v{t}", f"v_lshl_add_u32 v{vRB}, v{c}, 3, v{t}",
         f"v_lshlrev_b32 v{u}, 10, v{u}", f"v_lshrrev_b32 v{t}, 1, v{G}", f"v_lshl_add_u32 v{u}, v{t}, 8, v{u}",
         f"v_and_b32 v{t}, 15, v{vLANE}", f"v_lshl_add_u32 v{vHH}, v{t}, 4, v{u}"]

def relayout_issue():
    u, t0, t1, t2 = sT2, vT[5], vT[6], vT[7]
    vo = vT[0:5]
    r = [f"s_lshl_b32 s{u}, s{sW}, 5", f"s_add_u32 s{u}, s{u}, s{sRT}",
       f"s_mul_i32 s{sT3}, s{sN}, 88", f"s_add_u32 s{sT3}, s{sT3}, s{u}", f"s_mul_i32 s{sT3}, s{sT3}, 5120", f"s_add_u32 s{sT3}, s{sT3}, {WS_W2P}",
       f"s_cmp_lt_u32 s{u}, 88", f"s_cselect_b32 s{sRLST}, s{sT3}, {OOB}",
       f"s_mov_b32 s{sRL+3}, 0x20000", f"s_cmp_lt_u32 s{u}, 40", "@arm", "s_cbranch_scc0 L_rlw",
       f"s_cmp_lt_u32 s{u}, 20", f"s_cselect_b32 s{sRL}, s{pCRE}, s{pCIM}", f"s_cselect_b32 s{sRL+1}, s{pCRE+1}, s{pCIM+1}",
       f"s_cselect_b32 s{sT3}, 0, 20", f"s_sub_u32 s{sT3}, s{u}, s{sT3}", f"s_lshl_b32 s{sT3}, s{sT3}, 6",
       f"s_mul_i32 s{sT4}, s{sN}, {80*1280}", f"s_add_u32 s{sRLOFF}, s{sT3}, s{sT4}",
       f"s_mov_b32 s{sRL+2}, {640*1280}",
       f"v_lshrrev_b32 v{t0}, 2, v{vLANE}", f"v_and_b32 v{t1}, 3, v{vLANE}", f"v_lshlrev_b32 v{t1}, 4, v{t1}",
       f"v_mul_u32_u24 v{t0}, 1280, v{t0}", f"v_add_u32 v{vo[0]}, v{t0}, v{t1}"]
    for e in range(1, 5): r.append(f"v_add_u32 v{vo[e]}, {e*16*1280}, v{vo[0]}")
    r += ["s_branch L_rlj", "@else", "L_rlw:",
       f"s_mov_b32 s{sRL}, s{pW2}", f"s_mov_b32 s{sRL+1}, s{pW2+1}",
       f"s_cmp_lt_u32 s{u}, 88", f"s_cselect_b32 s{sRL+2}, {1536*1280}, 0",
       f"s_sub_u32 s{sT3}, s{u}, 40", f"s_mul_i32 s{sT3}, s{sT3}, {32*1280}", f"s_mul_i32 s{sT4}, s{sN}, 160", f"s_add_u32 s{sRLOFF}, s{sT3}, s{sT4}",
       f"s_mov_b32 s{sT4}, 6554"]
    for p in range(5):
        r += [f"v_add_u32 v{t0}, {64*p}, v{vLANE}", f"v_mul_u32_u24 v{t1}, s{sT4}, v{t0}", f"v_lshrrev_b32 v{t1}, 16, v{t1}",
              f"v_mul_u32_u24 v{t2}, 10, v{t1}", f"v_sub_u32 v{t2}, v{t0}, v{t2}", f"v_lshlrev_b32 v{t2}, 4, v{t2}",
              f"v_mul_u32_u24 v{t1}, 1280, v{t1}", f"v_add_u32 v{vo[p]}, v{t1}, v{t2}"]
    r += ["@endarm", "L_rlj:", f"s_and_b32 s{sRL+1}, s{sRL+1}, 0xffff"]
    r += [f"v_accvgpr_write_b32 a{232+p}, v{vo[p]}" for p in range(5)]
    return r
def relayout_dma():
    vo = vT[0:5]
    r = []
    if "r" in opt.skip: return r
    for p in range(5):
        r.append([f"s_add_u32 m0, s{sM0U}, {L_RL + p*1024}", f"v_accvgpr_read_b32 v{vFLAG}, a{232+p}",
                  I(f"buffer_load_dwordx4 v{vFLAG}, s[{sRL}:{sRL+3}], s{sRLOFF} offen {'nt' if opt.rl_nt else ''} lds", tok="RL")])
    return r

def relayout_raddr():
    t0, t1, t2 = vT[5], vT[6], vT[7]
    return [f"v_and_b32 v{t0}, 15, v{vLANE}", f"v_lshrrev_b32 v{t1}, 4, v{vLANE}", f"v_lshlrev_b32 v{t1}, 4, v{t1}", f"v_lshl_add_u32 v{t0}, v{t0}, 6, v{t1}",
            f"v_lshrrev_b32 v{t1}, 2, v{vLANE}", f"v_and_b32 v{t2}, 8, v{t1}", f"v_add_u32 v{t1}, v{t1}, v{t2}", f"v_mul_u32_u24 v{t1}, 160, v{t1}",
            f"v_and_b32 v{t2}, 3, v{vLANE}", f"v_lshl_add_u32 v{t1}, v{t2}, 3, v{t1}",
            f"s_lshl_b32 s{sT2}, s{sW}, 5", f"s_add_u32 s{sT2}, s{sT2}, s{sRT}", f"s_cmp_lt_u32 s{sT2}, 40", f"s_cselect_b64 s[{sEX0}:{sEX0+1}], -1, 0",
            f"s_cselect_b32 s{sRLT}, 1, 0", f"s_add_u32 s{sT3}, s{sM0U}, {L_RL}",
            f"v_cndmask_b32 v{t0}, v{t1}, v{t0}, s[{sEX0}:{sEX0+1}]", f"v_add_u32 v{t0}, s{sT3}, v{t0}", f"v_accvgpr_write_b32 a237, v{t0}"]
def relayout_finish():
    if "r" in opt.skip: return []
    t0 = vT[0]
    r = [f"v_accvgpr_read_b32 v{t0}, a237", "@waitvm RL", f"s_cmp_eq_u32 s{sRLT}, 1", "s_cbranch_scc0 L_rfw"]
    for e in range(5):
        for h in range(2): r.append(f"ds_read_b64 {ar(aRL+4*e+2*h, 2)}, v{t0} offset:{e*1024 + 8*h}")
    r += ["@raw_begin", "s_branch L_rfj", "L_rfw:"]
    for e in range(5):
        for jj in range(2): r.append(f"ds_read_b64_tr_b16 {ar(aRL+4*e+2*jj, 2)}, v{t0} offset:{jj*1280 + e*32}")
    r += ["@raw_end", "L_rfj:"]
    for e in range(5):
        if e < 4: r.append(I(f"buffer_store_dwordx4 {ar(aRL+4*e)}, v{vL16}, s[{sWS}:{sWS+3}], s{sRLST} offen offset:{e*1024} sc1", tok="RLS"))
        else: r.append(I(f"buffer_store_dwordx4 {ar(aRL+4*e)}, v{vW4}, s[{sWS}:{sWS+3}], s{sRLST} offen sc1", tok="RLS"))
    return r

def flag_store(base, sline, sidx):
    return [f"s_lshl_b32 s{sD0}, s{sline}, 7", f"s_lshl_b32 s{sD1}, s{sidx}, 2", f"s_add_u32 s{sD0}, s{sD0}, s{sD1}", f"s_add_u32 s{sD0}, s{sD0}, {base}",
            f"s_cmp_eq_u32 s{sW}, 0", f"s_cselect_b32 s{sD0}, s{sD0}, {OOB}",
            f"buffer_store_dword v{vNON}, off, s[{sWS}:{sWS+3}], s{sD0} sc1"]
def flag_load(base, sline, shift, mask, st=None):
    st = sD0 if st is None else st
    return [f"s_lshr_b32 s{st}, s{sline}, {shift}", f"s_lshl_b32 s{st}, s{st}, 7", f"s_add_u32 s{st}, s{st}, {base}",
            f"v_and_b32 v{vFLAG}, {mask}, v{vLANE}", f"v_lshlrev_b32 v{vFLAG}, 2, v{vFLAG}",
            f"buffer_load_dword v{vFLAG}, v{vFLAG}, s[{sWS}:{sWS+3}], s{st} offen sc1"]
def flag_check(base, sline, shift, mask):
    if "f" in opt.skip: return [f"v_mov_b32 v{vFLAG}, 0"]
    return poll(flag_load(base, sline, shift, mask, sD0), [f"v_cmp_ne_u32 vcc, s{sNONCE}, v{vFLAG}"])

def scan_addr():
    col, q, ch, t = vT[19], vT[20], vT[21], vT[22]
    return [f"s_lshl_b32 s{sT2}, s{sW}, 13", f"s_add_u32 s{sT2}, s{sT2}, {L_PRIV}",
            f"v_and_b32 v{col}, 15, v{vLANE}", f"v_lshrrev_b32 v{q}, 4, v{vLANE}",
            f"v_lshl_add_u32 v{vCOLR}, v{col}, 4, s{sT2}",
            f"v_lshl_add_u32 v{vEW}, v{q}, 2, v{vCOLR}",
            f"v_min_u32 v{ch}, 39, v{vLANE}", f"v_lshlrev_b32 v{vSO}, 4, v{ch}",
            f"v_lshrrev_b32 v{t}, 3, v{ch}", f"v_lshlrev_b32 v{t}, 3, v{t}", f"v_add_u32 v{t}, v{t}, v{ch}",
            f"v_lshl_add_u32 v{vER}, v{t}, 4, s{sT2}",
            f"v_add_u32 v{vCH}, s{sT2}, v{vL16}",
            f"s_lshl_b32 s{sT3}, s{sW}, 9", f"s_add_u32 s{sT3}, s{sT3}, {L_TT}", f"v_lshl_add_u32 v{vTT}, v{vLANE}, 3, s{sT3}",
            f"v_lshlrev_b32 v{vLB}, 5, v{vLANE}", f"v_add_u32 v{vLB}, {L_LB}, v{vLB}",
            f"s_add_u32 s{sT3}, s{sM0U}, {L_RL}",
            f"v_lshlrev_b32 v{vTW}, 5, v{col}", f"v_lshl_add_u32 v{vTW}, v{q}, 3, v{vTW}", f"v_add_u32 v{vTW}, s{sT3}, v{vTW}",
            f"v_bfe_u32 v{t}, v{vLANE}, 2, 2", f"v_lshlrev_b32 v{t}, 5, v{t}", f"v_lshl_add_u32 v{t}, v{q}, 8, v{t}",
            f"v_and_b32 v{ch}, 3, v{vLANE}", f"v_lshl_add_u32 v{t}, v{ch}, 3, v{t}", f"v_add_u32 v{vTR}, s{sT3}, v{t}",
            f"v_lshrrev_b32 v{t}, 1, v{q}", f"v_lshlrev_b32 v{t}, 10, v{t}", f"v_lshl_add_u32 v{vHST}, v{col}, 4, v{t}",
            f"v_and_b32 v{t}, 1, v{q}", f"v_mul_u32_u24 v{t}, {20*4096}, v{t}", f"v_add_u32 v{vHST}, v{vHST}, v{t}"]

def const_park():
    src = [cAR, cAI, cKR, cKI] + list(range(60, 70))
    return [f"v_accvgpr_write_b32 a{200+k}, v{s}" for k, s in enumerate(src)]
def const_tables():
    t = vT[0:8]
    r = [f"v_accvgpr_read_b32 v{t[0]}, a200", f"v_accvgpr_read_b32 v{t[1]}, a201", f"v_accvgpr_read_b32 v{t[2]}, a202", f"v_accvgpr_read_b32 v{t[3]}, a203",
         f"v_sub_f32 v{t[3]}, 0, v{t[3]}",
         f"v_mov_b32 v{t[4]}, v{t[0]}", f"v_sub_f32 v{t[5]}, 0, v{t[1]}", f"v_sub_f32 v{t[6]}, 0, v{t[2]}", f"v_mov_b32 v{t[7]}, v{t[3]}",
         f"ds_write_b128 v{vER}, {vr(t[0])} offset:{PV_COL}", f"ds_write_b128 v{vER}, {vr(t[4])} offset:{PV_COL+128}",
         f"ds_write_b128 v{vCH}, {ar(204)} offset:{PV_CH}", f"ds_write_b128 v{vCH}, {ar(208)} offset:{PV_CH+1024}",
         f"ds_write_b64 v{vCH}, {ar(212, 2)} offset:{PV_CH+2048}",
         f"v_mov_b32 v{t[0]}, 0", f"v_mov_b32 v{t[1]}, 0",
         f"s_min_u32 s{sT2}, s{sW}, 2", f"s_lshl_b32 s{sT2}, s{sT2}, 9", f"s_add_u32 s{sT2}, s{sT2}, {L_TT}",
         f"v_lshl_add_u32 v{t[2]}, v{vLANE}, 3, s{sT2}", f"ds_write_b64 v{t[2]}, {vr(t[0], 2)}"]
    return r

def ureg(cf, tau): return U(cf, tau >> 2) + (tau & 3)
DPP = "row_ror:8 row_mask:0xf bank_mask:0xf"
def scan_P12():
    C = vT[0:20]
    r = [I(f"ds_read_b128 {vr(C[4*cf])}, v{vCOLR} offset:{PV_COL + cf*256}", tok="colr") for cf in range(5)]
    r.append("@gap 1")
    t = vT[20:24]
    k = 0
    for tau in range(8):
        for cf in range(5):
            u = ureg(cf, tau); tt = t[k % 4]; k += 1
            r += [f"v_mul_f32_dpp v{tt}, v{u}, v{C[4*cf+3]} {DPP}", f"v_fma_f32 v{u}, v{C[4*cf+2]}, v{u}, v{tt}"]
    for tau in range(1, 8):
        src = [(ureg(cf, 0) if tau == 1 else C[4*cf + 2 + (tau & 1)]) for cf in range(5)]
        dst = [C[4*cf + 2 + ((tau + 1) & 1)] for cf in range(5)]
        for cf in range(5): r.append(f"v_fma_f32 v{dst[cf]}, v{C[4*cf]}, v{src[cf]}, v{ureg(cf, tau)}")
        for cf in range(5): r.append(f"v_fmac_f32_dpp v{dst[cf]}, v{src[cf]}, v{C[4*cf+1]} {DPP}")
    for cf in range(5): r.append(f"ds_write_b32 v{vEW}, v{C[4*cf+2]} offset:{PV_E + cf*256}")
    er, ei, a8 = vT[0], vT[4], vT[8]
    r += [f"ds_read_b128 {vr(a8)}, v{vCH} offset:{PV_CH}",
          f"ds_read_b128 {vr(er)}, v{vER} offset:{PV_E}", f"ds_read_b128 {vr(ei)}, v{vER} offset:{PV_E+128}", "@gap 2"]
    g0, g1 = vT[12], vT[14]
    r += chorner2(g0, g0+1, er, ei, a8, a8+1, er+1, ei+1)
    r += chorner2(g1, g1+1, g0, g0+1, a8, a8+1, er+2, ei+2)
    r += chorner2(g0, g0+1, g1, g1+1, a8, a8+1, er+3, ei+3)
    r += [f"ds_write_b64 v{vTT}, {vr(g0, 2)} offset:{3*512}"]
    return r

def scan_P3():
    a32 = vT[8]; T = vT[0:8]
    r = [f"ds_read_b128 {vr(a32)}, v{vCH} offset:{PV_CH}"]
    for k in range(4): r.append(f"ds_read_b64 {vr(T[2*k], 2)}, v{vTT} offset:{k*512}")
    r.append("@gap 2")
    m = a32 + 2
    g = vT[12]
    r += chorner2(g, g+1, T[0], T[1], m, m+1, T[2], T[3])
    r += chorner2(vWP0, vWP1, g, g+1, m, m+1, T[4], T[5])
    r += chorner2(g, g+1, vWP0, vWP1, m, m+1, T[6], T[7])
    r += [f"v_mov_b32 v{g+2}, s{sNONCE}", f"v_mov_b32 v{g+3}, s{sNONCE}",
          f"buffer_store_dwordx4 {vr(g)}, v{vSO}, s[{sWS}:{sWS+3}], s{sSST} offen sc1"]
    return r

def lb_loads():
    return [f"buffer_load_dwordx4 {ar(aS+4*jj)}, v{vSO}, s[{sWS}:{sWS+3}], s{sl} offen sc1" for jj, sl in enumerate((sLB0, sLB1, sLB2, sLB3))]
def scan_P4():
    t = vT[0:8]
    chk = []
    for jj, sl in enumerate((sLB0, sLB1, sLB2, sLB3)):
        d = t[2] if jj == 0 else t[0]
        chk += [f"s_cmp_lt_u32 s{sl}, {OOB}", f"s_cselect_b32 s{sT2}, s{sNONCE}, 0", f"v_accvgpr_read_b32 v{d}, a{aS+4*jj+2}",
                f"v_xor_b32 v{d}, s{sT2}, v{d}"]
        if jj: chk += [f"v_or_b32 v{t[2]}, v{t[2]}, v{t[0]}"]
    chk += [f"v_cmp_ne_u32 vcc, 0, v{t[2]}"]
    c = vT[8]
    r = [f"ds_read_b128 {vr(c)}, v{vCH} offset:{PV_CH+1024}", f"ds_read_b64 {vr(vT[12], 2)}, v{vCH} offset:{PV_CH+2048}"]
    if "f" not in opt.skip: r += poll(lb_loads(), [i.text for i in insert_nops(II(chk))])
    for jj in range(4):
        r += [f"v_accvgpr_read_b32 v{t[2*jj]}, a{aS+4*jj}", f"v_accvgpr_read_b32 v{t[2*jj+1]}, a{aS+4*jj+1}"]
    m = c + 2; g0, g1 = vT[14], vT[16]
    r += chorner2(g0, g0+1, t[0], t[1], m, m+1, t[2], t[3])
    r += chorner2(g1, g1+1, g0, g0+1, m, m+1, t[4], t[5])
    r += chorner2(g0, g0+1, g1, g1+1, m, m+1, t[6], t[7])
    r += cmul(g1, g1+1, g0, g0+1, vT[12], vT[13], vT[18])
    r += [f"s_lshl_b32 s{sT2}, s{sW}, 3", f"v_add_u32 v{vT[18]}, s{sT2}, v{vLB}", f"ds_write_b64 v{vT[18]}, {vr(g1, 2)}"]
    return r

def scan_P56():
    lb = vT[0]; er, ei = vT[8], vT[12]; c8, c32w = vT[16], vT[20]
    r = [f"ds_read_b128 {vr(lb)}, v{vLB}", f"ds_read_b128 {vr(lb+4)}, v{vLB} offset:16",
         f"ds_read_b64 {vr(c32w, 2)}, v{vCH} offset:{PV_CH+1024}", f"ds_read_b128 {vr(c8)}, v{vCH} offset:{PV_CH}",
         f"ds_read_b128 {vr(er)}, v{vER} offset:{PV_E}", f"ds_read_b128 {vr(ei)}, v{vER} offset:{PV_E+128}", "@gap 2",
         f"v_add_f32 v{lb}, v{lb}, v{lb+2}", f"v_add_f32 v{lb+1}, v{lb+1}, v{lb+3}",
         f"v_add_f32 v{lb+4}, v{lb+4}, v{lb+6}", f"v_add_f32 v{lb+5}, v{lb+5}, v{lb+7}",
         f"v_add_f32 v{lb}, v{lb}, v{lb+4}", f"v_add_f32 v{lb+1}, v{lb+1}, v{lb+5}"]
    q0, q1 = vT[4], vT[20]
    tmp = vT[2]
    r += chorner2(tmp, tmp+1, lb, lb+1, c32w, c32w+1, vWP0, vWP1)
    r += [f"v_mov_b32 v{q0}, v{tmp}", f"v_mov_b32 v{q1}, v{tmp+1}"]
    for k in range(3):
        r += chorner2(q0+k+1, q1+k+1, q0+k, q1+k, c8, c8+1, er+k, ei+k)
    r += [f"ds_write_b128 v{vER}, {vr(q0)} offset:{PV_E}", f"ds_write_b128 v{vER}, {vr(q1)} offset:{PV_E+128}"]
    C = vT[0:10]; Z = vT[10:15]
    for cf in range(5): r.append(f"ds_read_b32 v{Z[cf]}, v{vEW} offset:{PV_E + cf*256}")
    for cf in range(5): r.append(f"ds_read_b64 {vr(C[2*cf], 2)}, v{vCOLR} offset:{PV_COL + cf*256}")
    r.append("@gap 2")
    for tau in range(8):
        src = [(Z[cf] if tau == 0 else ureg(cf, tau-1)) for cf in range(5)]
        for cf in range(5): r.append(f"v_fma_f32 v{ureg(cf, tau)}, v{C[2*cf]}, v{src[cf]}, v{ureg(cf, tau)}")
        for cf in range(5): r.append(f"v_fmac_f32_dpp v{ureg(cf, tau)}, v{src[cf]}, v{C[2*cf+1]} {DPP}")
    for cf in range(5):
        for f in range(2):
            t = vT[2*(cf*2+f)]; u = U(cf, f)
            r += [f"v_cvt_pk_bf16_f32 v{t}, v{u}, v{u+1}", f"v_cvt_pk_bf16_f32 v{t+1}, v{u+2}, v{u+3}"]
    for k in range(10): r.append(f"ds_write_b64 v{vTW}, {vr(vT[2*k], 2)} offset:{k*512}")
    for cf in range(5):
        for jj in range(2):
            r.append(f"ds_read_b64_tr_b16 {vr(56 + 4*cf + 2*jj, 2)}, v{vTR} offset:{cf*1024 + jj*128}")
    for cf in range(5):
        r.append(I(f"buffer_store_dwordx4 {vr(56 + 4*cf)}, v{vHST}, s[{sWS}:{sWS+3}], s{sHO[cf]} offen sc1", tok="HST"))
    return r

def swiglu(acc, h2s, sks, tokname, packed=False):
    r = []
    k = 0
    for h2 in h2s:
        for z in range(2):
            G = vT[0:8]; Uu = vT[8:16]; T = vT[16:24]
            for j in range(8):
                r += [f"v_accvgpr_read_b32 v{G[j]}, a{acc(0, h2) + 8*z + j}", f"v_accvgpr_read_b32 v{Uu[j]}, a{acc(1, h2) + 8*z + j}"]
            if packed:
                for j in range(0, 8, 2): r.append(f"v_pk_mul_f32 {vr(T[j], 2)}, {vr(G[j], 2)}, s[{sEX0}:{sEX0+1}]")
                for j in range(8):
                    r.append(f"v_exp_f32 v{T[j]}, v{T[j]}")
                for j in range(0, 8, 2): r.append(f"v_pk_mul_f32 {vr(G[j], 2)}, {vr(G[j], 2)}, {vr(Uu[j], 2)}")
                for j in range(0, 8, 2): r.append(f"v_pk_add_f32 {vr(T[j], 2)}, {vr(T[j], 2)}, s[{sEX2}:{sEX2+1}]")
                for j in range(8): r.append(f"v_rcp_f32 v{T[j]}, v{T[j]}")
                for j in range(0, 8, 2): r.append(f"v_pk_mul_f32 {vr(G[j], 2)}, {vr(G[j], 2)}, {vr(T[j], 2)}")
            else:
                for j in range(8): r.append(f"v_mul_f32 v{T[j]}, {NLOG2E}, v{G[j]}")
                for j in range(8): r += [f"v_exp_f32 v{T[j]}, v{T[j]}", f"v_mul_f32 v{G[j]}, v{G[j]}, v{Uu[j]}"]
                for j in range(8): r.append(f"v_add_f32 v{T[j]}, 1.0, v{T[j]}")
                for j in range(8): r.append(f"v_rcp_f32 v{T[j]}, v{T[j]}")
                for j in range(8): r.append(f"v_mul_f32 v{G[j]}, v{G[j]}, v{T[j]}")
            o = Uu[0] if k % 2 == 0 else Uu[4]; k += 1
            for j in range(4): r.append(f"v_cvt_pk_bf16_f32 v{o+j}, v{G[2*j]}, v{G[2*j+1]}")
            if z == 0: r.append(f"s_add_u32 s{sT2}, s{sks}, {h2*4096}")
            r.append(I(f"buffer_store_dwordx4 {vr(o)}, v{vHH}, s[{sWS}:{sWS+3}], s{sT2} offen offset:{z*512} sc1", tok=tokname))
    return r

def step_reads(blk, s, par):
    r = []
    if blk == "U":
        i, sh2, sh = s // 4, (s >> 1) & 1, s & 1
        off = i*20480 + sh2*10240 - (61440 if i >= 3 else 0)
        for cf in range(5):
            r.append(f"ds_read_b128 {ar(FB(par, cf))}, v{vRU[sh]} offset:{off + cf*1024}")
    elif blk == "A":
        m, sp = s // 2, s & 1
        for hf in range(2):
            for h2 in range(2):
                for mu in range(2):
                    for jj in range(2):
                        r.append(f"ds_read_b64_tr_b16 {ar(FB(par, hf*4+h2*2+mu) + 2*jj, 2)}, v{vRA[h2]} offset:{(m % 4)*16384 + (2*sp+mu)*4096 + hf*1024 + jj*512}")
    else:
        m, sd = 10 + s // 2, s & 1
        for s2 in range(2):
            for hf in range(2):
                for mu in range(2):
                    for jj in range(2):
                        r.append(f"ds_read_b64_tr_b16 {ar(FB(par, s2*4+hf*2+mu) + 2*jj, 2)}, v{vRB2 if BSLOT[m] >= 4 else vRB} offset:{(BSLOT[m] % 4)*16384 + (2*sd+mu)*4096 + s2*2048 + hf*512 + jj*256}")
    return r

def step_mfma(blk, s, par):
    r = []
    if blk == "U":
        for cf in range(5):
            for f in range(2):
                d = vr(U(cf, f)); c = "0" if s == 0 else d
                r.append(f"v_mfma_f32_16x16x32_bf16 {d}, {vr(X(f, s))}, {ar(FB(par, cf))}, {c}")
    elif blk == "A":
        for hf in range(2):
            for h2 in range(2):
                for mu in range(2):
                    d = ar(ACCA(mu, h2), 16); c = "0" if (s == 0 and hf == 0) else d
                    r.append(f"v_mfma_f32_32x32x16_bf16 {d}, {ar(FB(par, hf*4+h2*2+mu))}, {vr(X(hf, s))}, {c}")
    else:
        for s2 in range(2):
            for hf in range(2):
                for mu in range(2):
                    d = ar(ACCB(mu), 16); c = "0" if (s == 0 and hf == 0 and s2 == 0) else d
                    r.append(f"v_mfma_f32_32x32x16_bf16 {d}, {ar(FB(par, s2*4+hf*2+mu))}, {vr(X(hf, 2*s+s2))}, {c}")
    return r

def swaps(s): return [] if "w" in opt.skip else [f"v_permlane16_swap_b32 v{X(0, s)+k}, v{X(1, s)+k}" for k in range(4)]

def stage_of(blk, s):
    return ("U", s // 4) if blk == "U" else (("M", s // 2) if blk == "A" else ("M", 10 + s // 2))

def cost(i):
    if i.cls in ("pseudo", "label"): return 0
    if i.cls == "trans": return 2
    if i.cls == "vmem": return opt.vmcost
    return 1

PH = [1]
class Feed(list):
    def append(self, i): EM[0].feed(i)

class Queue:
    def __init__(self): self.q = []; self.hold = 0; self.now = 0
    def add(self, lst, deadline):
        if "q" in opt.skip:
            lst = [t for t in II(lst) if t.cls in ("vmem",) or t.op.startswith("s_") or t.cls in ("pseudo", "label") or t.op.startswith("v_cmp") or t.op.startswith("v_readfirst") or t.op.startswith("v_accvgpr_read") and "a18" in t.text + "a19"]
        lst = II(lst)
        if PH[0] == 1 and opt.skip and not any(t.op in ("@arm", "@raw_begin") for t in lst):
            if "D" in opt.skip: lst = [t for t in lst if not t.op.startswith("ds_write")]
            if "R" in opt.skip: lst = [t for t in lst if not t.op.startswith("ds_read")]
            if "V" in opt.skip: lst = [t for t in lst if t.cls not in ("valu", "trans") or t.op.startswith("v_cmp") or t.op.startswith("v_cndmask")]
            if "S" in opt.skip:
                for t in lst:
                    if t.cls == "vmem" and "store" in t.op and t.tok in ("HST", "HHA"): t.text = t.text.replace("offen", "offen").replace("dwordx4", "dword"); t.text = __import__("re").sub(r"v\[(\d+):\d+\]", r"v\1", t.text, 1); t.wide = False
        lst = II(lst)
        now = max(self.now, max([d for t, d in self.q] + [0]) if opt.chainq else 0)
        if not opt.interp or deadline <= now + 1:
            for t in lst: self.q.append((t, deadline))
            return
        pos = 0; P = []; wr = {}; lastw = -99
        for t in lst:
            if t.cls not in ("pseudo", "label"):
                dep = [wr[r] for r in (t.rd | t.wr) if r in wr]
                if dep: pos = max(pos, max(dep) + opt.vlat)
                if t.op.startswith("ds_read") and pos - lastw < opt.vlat // 2: pos = lastw + opt.vlat // 2
                for r in t.wr: wr.pop(r, None)
                if t.cls == "ds":
                    for r in t.wr: wr[r] = pos
                    if t.op.startswith("ds_write"): lastw = pos
            pos += cost(t) + (1 if t.cls == "ds" else 0)
            P.append(pos)
        prev = now
        for t, p in zip(lst, P):
            d = now + int((deadline - now) * p / max(pos, 1))
            if t.cls == "ds" and PH[0] == 1 and d >= 200:
                while d % 8 < opt.span and d < deadline: d += 1
            d = max(d, prev); prev = d
            self.q.append((t, min(d, deadline)))
    def _region(self, out):
        i = self.q[0][0]
        end = "@endarm" if i.op == "@arm" else "@raw_end"
        while True:
            j = self.q.pop(0)[0]; out.append(j)
            if j.cls == "pseudo" and j.op == end: break
        while self.q and self.q[0][0].cls == "label": out.append(self.q.pop(0)[0])
    def need(self, gap):
        best = 0; acc = 0
        for t, d in self.q:
            acc += cost(t)
            left = d - gap + 1
            if left <= 0: best = max(best, acc)
            else: best = max(best, -(-acc // left))
        return best
    def pop(self, n, gap, ds_ok=True):
        out = Feed(); nds = 0; self.now = gap
        n = max(n, self.need(gap)) if (opt.even and not opt.interp) else n
        while self.q and (n > 0 or self.q[0][1] <= gap):
            i = self.q[0][0]
            if i.cls == "pseudo" and i.op == "@gap":
                self.q.pop(0); continue
            if self.q[0][1] > gap:
                if i.cls == "ds" and (not ds_ok or nds >= opt.dsmax): break
                if i.cls == "ds": nds += 1
                look = [i] + ([x for x, d in self.q[1:12] if x.cls == "pseudo"][:1] if i.op.startswith("s_cmp") else [])
                if i.op.startswith("s_cmp"): look += [x for x, d in self.q[1:4]]
                if max(EM[0].stall(x) for x in look) > opt.thr: break
            if i.cls == "pseudo" and i.op in ("@arm", "@raw_begin"):
                self._region(out); n -= 4
                continue
            if i.cls == "branch" or i.op.startswith("s_cmp") or i.op.startswith("s_bitcmp") or i.op.startswith("v_cmp"):
                out.append(self.q.pop(0)[0])
                if self.q and "L_rfw" in self.q[0][0].text:
                    while self.q[0][0].op != "@raw_begin": out.append(self.q.pop(0)[0])
                    n -= 10
                while self.q:
                    k = self.q[0][0]
                    if k.op.startswith("s_cselect") or k.op.startswith("v_cndmask") or k.cls == "branch": out.append(self.q.pop(0)[0])
                    elif k.op in ("@arm", "@raw_begin"): self._region(out); n -= 4
                    else: break
                n -= 1
                continue
            self.q.pop(0); out.append(i)
            n -= cost(i)
        return out
    def flush(self):
        out = [i for i, d in self.q if not (i.cls == "pseudo" and i.op == "@gap")]
        self.q = []; self.hold = 0
        return out

ACC1 = [("a", 4*k) for k in range(20)]
ACC2 = [("v", 96 + 4*k) for k in range(20)]
A_SLOTS = [("a", 80 + 4*k) for k in range(20)]
GA = [("a", 196 + 4*k) for k in range(15)] + [("a", 160 + 4*k) for k in range(5)]
XFREE = [("v", base + 8*d + 4*h) for d in range(10) for base in (96, 176) for h in range(2)]
HI = [("v", 176 + 4*k) for k in range(20)]
N1 = 12
NLDS = 4
def wslot(st, e):
    if st < 4: return GA[st*5 + e]
    if st < 12: return XFREE[(st - 4)*5 + e]
    if st < 16: return HI[(st - 12)*5 + e]
    if st < 20: return GA[(st - 16)*5 + e]
    return HI[(st - 20)*5 + e]
def w_free_after_b(st):
    return -1 if st < 4 else ((st - 4)*5 + 4) // 4
def w_free_after_p(st):
    if st < 16:
        regs = {wslot(st, e) for e in range(5)}
        return max(o for o in range(4, 12) for e in range(5) if wslot(o, e) in regs)
    return st - 16 if st < 20 else st - 8
def rg(t, c=4): return f"{t[0]}[{t[1]}:{t[1]+c-1}]"
vA2 = [3, 4, 5, 6]; vPW = [7, 8, 9]; vPR = 11; vOUT = 13; vXO = 14; vSTA = 15; vDS = 16
vXR = list(range(56, 76)); vY = list(range(76, 96)); vDK = [17, 18, 19, 20, 21]; vST = list(range(32, 40)); vXD2 = [22, 23, 24]; vXL = 25; vWL = 26
L_X2 = 143360
NSTEP = 22
ORDER = [0, 1, 4, 5, 6, 7, 10, 11, 2, 3, 8, 9] + list(range(10))
def ptr_bases():
    return [f"s_mul_i32 s{sAS}, s{sW}, {12*4096}", f"s_add_u32 s{sAS}, s{sAS}, s{sP2A}", f"s_add_u32 s{sAS}, s{sAS}, {40*4096}",
            f"s_mul_i32 s{sAE}, s{sW}, {10*4096}", f"s_add_u32 s{sAE}, s{sAE}, s{sP2A}",
            f"s_mul_i32 s{sWB}, s{sW}, {12*5120}", f"s_add_u32 s{sWB}, s{sWB}, s{sP2W}", f"s_add_u32 s{sWB}, s{sWB}, {40*5120}",
            f"s_mul_i32 s{sWE}, s{sW}, {10*5120}", f"s_add_u32 s{sWE}, s{sWE}, s{sP2W}"]
def ptr_set(which, st):
    if which == "A": return [f"s_add_u32 s{sAP}, s{sAS if st < N1 else sAE}, {ORDER[st]*4096}"]
    return [f"s_add_u32 s{sWP}, s{sWB if st < N1 else sWE}, {ORDER[st]*5120}"]
def p2_wload(st):
    r = []
    r += ptr_set("W", st)
    for e in range(5):
        va, off = (vL16, e*1024) if e < 4 else (vW4, 0)
        if N1 <= st < N1 + NLDS:
            r += [f"s_add_u32 m0, s{sM0}, {L_WY + (st - N1)*5120 + (4096 if e == 4 else 0)}"] + (["s_nop 0"] if True else [])
            r.append(I(f"buffer_load_dwordx4 v{va}, s[{sWS}:{sWS+3}], s{sWP} offen offset:{off} sc1 lds", tok=f"WL{st}"))
        else:
            r.append(I(f"buffer_load_dwordx4 {rg(wslot(st, e))}, v{va}, s[{sWS}:{sWS+3}], s{sWP} offen offset:{off} sc1", tok="W"))
    return r
def p2_wread(st):
    return [f"@waitvm WL{st}"] + [f"ds_read_b128 {rg(wslot(st, e))}, v{vWL} offset:{L_WY + (st - N1)*5120 + e*1024}" for e in range(5)]
def p2_aload(st):
    r = []
    r += ptr_set("A", st)
    for jj in range(4):
        r.append(I(f"buffer_load_dwordx4 {rg(A_SLOTS[(st % 5)*4 + jj])}, v{vA2[jj]}, s[{sWS}:{sWS+3}], s{sAP} offen sc1", tok="A"))
    return r
def p2_setup():
    r = []
    for jj in range(4):
        r += [f"s_add_u32 s{sD0}, s{sW}, {jj}", f"s_and_b32 s{sD0}, s{sD0}, 3", f"v_lshl_add_u32 v{vA2[jj]}, s{sD0}, 10, v{vL16}"]
    return r
def p2_setup2():
    r = []
    for jj in range(1, 4):
        r += [f"s_add_u32 s{sT2}, s{sW}, {jj}", f"s_and_b32 s{sT2}, s{sT2}, 3",
              f"s_mul_i32 s{sT3}, s{sT2}, 15360", f"s_add_u32 s{sT3}, s{sT3}, {(3-jj)*5120}", f"v_add_u32 v{vPW[jj-1]}, s{sT3}, v{vL16}"]
    r += [f"s_mul_i32 s{sT3}, s{sW}, 15360", f"v_add_u32 v{vPR}, s{sT3}, v{vL16}", f"v_add_u32 v{vWL}, s{sM0}, v{vL16}"]
    r += [f"v_add_u32 v{v}, {L_P1}, v{v}" for v in vPW + [vPR]]
    return r

def groups(lst):
    out = []; cur = []
    for t in II(lst):
        cur.append(t)
        if t.cls == "vmem": out.append(cur); cur = []
    if cur: out.append(cur)
    return out
def gstall(grp):
    return max([EM[0].stall(t) for t in grp if t.cls == "vmem" or t.op == "@waitvm"] + [0])

def tagw(st):
    gs = groups(p2_wload(st))
    for gq in gs: gq[-1].lat = None; STEP[id(gq[-1])] = st
    return gs
def taga(st):
    gs = groups(p2_aload(st))
    for gq in gs: STEP[id(gq[-1])] = st
    return gs
STEP = {}

def phase1_blocks():
    Q = Queue()
    seq = [("U", s) for s in range(20)] + [("A", s) for s in range(20)] + [("B", s) for s in range(10)]
    gap0 = []; g = 0
    for blk, s in seq:
        gap0.append(g); g += {"U": 10, "A": 8, "B": 8}[blk]
    gap0.append(g)
    def stage_end(kind, idx):
        n = [k for k, (b, s) in enumerate(seq) if stage_of(b, s) == (kind, idx)][-1]
        return gap0[n]
    L(delay("a", 255, 0, 500)); L(delay("b", 31, 5, 700))
    L(["@waitvm U0", "s_barrier"])
    L(stamp("U start"))
    L(step_reads("U", 0, 0))
    later = []
    pace = [0, len(EM[0].out)]
    bulk = []
    def lat(gs, dl):
        for x in gs: later.append((II(x), dl))
    def blk_(gs, dl):
        at = len(bulk) if dl == 10**6 else next((q for q, (gq, d) in enumerate(bulk) if d == 10**6), len(bulk))
        bulk[at:at] = [(II(x), dl) for x in gs]
    lat([u_piece(2, cf) for cf in range(5)], stage_end("U", 0) - 4)
    lat([nonce_publish()], stage_end("U", 0))
    lat([u_piece(3, cf) for cf in range(5)], stage_end("U", 1) - 10)
    lat([u_piece(4, cf) for cf in range(5)], stage_end("U", 2) - 20)
    for n, (blk, s) in enumerate(seq):
        par = n & 1
        mf = step_mfma(blk, s, par)
        nxt = seq[n + 1] if n + 1 < len(seq) else None
        rd = II(step_reads(nxt[0], nxt[1], par ^ 1)) if nxt else []
        if rd: rd[-1].tok = f"rd{n+1}"
        boundary = nxt is None or stage_of(*nxt) != stage_of(blk, s)
        gaps = [[] for _ in mf]
        start = 0
        pre = []
        cap = opt.capU if blk == "U" else opt.capM
        if blk == "U" and s == 11: pre += [f"v_add_u32 v{vRU[0]}, 61440, v{vRU[0]}"]
        if blk == "U" and s == 12: pre += [f"v_add_u32 v{vRU[1]}, 61440, v{vRU[1]}"]
        if blk == "A" and s == 0:
            Q.add(nonce_get(), gap0[n] + 6)
            Q.add(scan_P12(), stage_end("M", opt.X_stage) - 2)
        if blk == "B" and s == 0:
            Q.add(swiglu(ACCA, [0, 1], sKSA, "HHA"), stage_end("M", 14) - opt.haend)
        post = []; plat = []; urgent = []; pbulk = []
        if blk == "B":
            for st in range(4, opt.nearly):
                if w_free_after_b(st) == s - 1: blk_(tagw(st), 10**6)
        if boundary:
            kind, idx = stage_of(blk, s)
            start = 1
            here = gap0[n]; nx1 = here + (40 if blk == "U" else 16)
            if kind == "U" and idx == 1:
                post += [(const_tables(), stage_end("U", 3) - 2), (stats_store(), stage_end("U", 3) + 10)]
            if kind == "U" and idx == opt.rf_stage: post.append((relayout_finish(), stage_end("M", opt.F_stage - 1) - 2))
            b = []
            if nxt is not None:
                nk, ni = stage_of(*nxt)
                b.append(I(f"@waitboth {nk}{ni}"))
            else:
                b.append(I("@waitds0"))
            if kind == "M" and idx == 14: b += II(["@waitvm HHA"])
            if kind == "M" and idx == 14: plat.append((groups(flag_store(WS_FLHA, sC, sG)), here + 2))
            if kind == "M" and idx == opt.F_stage: b += II((["@waitvm RLS"] if "r" not in opt.skip else []) + ["@waitvm stat"])
            b.append(I("s_barrier"))
            if (opt.stamps or opt.probe) and (opt.fine or (kind, idx) in (("U", 4), ("M", 9), ("M", 14))): b += II(stamp(f"{kind}{idx} end"))
            gaps[0] += b
            if kind == "U" and idx == 0 and opt.t_w13: plat.append((w13_touch(), stage_end("U", 1) + 10))
            if kind == "U" and idx == 0 and opt.rl_pos == 0: plat.append((relayout_dma(), stage_end("U", 2) - 10))
            if kind == "U" and idx == 1: plat.append((groups(dma_M(0)) + groups(dma_M(1)), stage_end("U", 3) - 10))
            if kind == "U" and idx == 1 and opt.rl_pos == 1: plat.append((relayout_dma(), stage_end("U", 4) - 10))
            if kind == "U" and idx == 3: plat.append(([nonce_load()], here + 10))
            if kind == "U" and idx in (2, 3): plat.append((groups(dma_M(idx)), stage_end("M", idx - 1) - opt.slack))
            if kind == "U" and idx == 4:
                plat.append(([mlp_dma_addr("B")], here + 6))
                pbulk.append((groups(dma_M(10)), stage_end("M", opt.b10)))
            if kind == "M" and idx == opt.F_stage: plat.append((groups(flag_store(WS_FLW, sN, sRT)), here + 6))
            if kind == "M" and idx + 4 <= 9: plat.append((groups(dma_M(idx + 4)), stage_end("M", idx + 3) - opt.slack))
            if kind == "M" and idx == opt.L_stage: plat.insert(0, (groups(lb_loads()), here + 8))
            if kind == "M" and idx in BISSUE: pbulk.append((groups(dma_M(BISSUE[idx][0])), stage_end("M", BISSUE[idx][0] - 1) - opt.slack))
            if kind == "M" and idx == opt.X_stage:
                post.append((scan_P3(), stage_end("M", opt.X_stage + 1) + 8))
            if kind == "M" and idx == opt.C_stage:
                assert not any("a[180:183]" in x.text for gq, d in later for x in gq)
                post.append((scan_P4(), stage_end("M", opt.Y_stage) - 2))
            if kind == "M" and idx == opt.Y_stage:
                gaps[0] += II(delay("d", 63, 17, 900))
                post.append((scan_P56()[:33], stage_end("M", opt.Y_stage + 1) - 2))
            if kind == "M" and idx == opt.W_stage - 1 and opt.nearly:
                plat.append((groups(flag_load(WS_FLW, sN, 0, 31)), nx1))
            if kind == "M" and idx == opt.W_stage and opt.nearly:
                plat.append(([flag_check(WS_FLW, sN, 0, 31)], nx1 + 8))
                for st in range(min(4, opt.nearly)): pbulk.append((tagw(st), 10**6))
            if kind == "M" and idx == 13: urgent += [p2_setup()]
            if kind == "U" and idx == 4: urgent += [[f"global_load_ushort a231, v{vLANE}, s[{pDSK}:{pDSK+1}]"]] if False else []
        ng = len(mf)
        if rd:
            if nxt[0] == "U": span = 5
            elif blk == "U": span = 7
            else: span = opt.span
            for k, t in enumerate(rd): gaps[start + (k * span) // len(rd)].append(t)
        if nxt and nxt[0] == "A":
            for k, t in enumerate(II(swaps(nxt[1]))): gaps[ng - 5 + k].append(t)
        if blk == "U" and opt.pre_norm <= s + 1 < 20 and "n" not in opt.skip:
            nq = II(norm_step(1, s + 1, False, vT[20:24]))
            for k, t in enumerate(nq): gaps[(k * ng) // len(nq)].append(t)
        L(pre)
        E(f"@waitds rd{n}")
        for k, t in enumerate(mf):
            E(t)
            L(gaps[k])
            gap = gap0[n] + k
            used = sum(cost(x) for x in gaps[k])
            if boundary and k == 0:
                for lst, dl in post: Q.add(lst, dl)
                for gs, dl in plat: lat(gs, dl)
                for gs, dl in pbulk: blk_(gs, dl)
                lat(urgent, here + 14)
                continue
            due_b = any(d - gap <= q + len(later) for q, (gq, d) in enumerate(bulk))
            overdue = due_b or any(d - gap <= q for q, (gq, d) in enumerate(later))
            q_ = later if later else bulk
            if q_ and (overdue or (EM[0].t >= pace[0] and k != 0)):
                grp = q_.pop(0)[0]; L(grp); used += sum(cost(x) for x in grp)
            for x in EM[0].out[pace[1]:]:
                if x.cls == "vmem" and x.lines is not None and not x.text.startswith("buffer_load_dword v29,"):
                    cold = (x.tok in (("RL", "TW") if opt.t_w13 else ("M0", "M1", "M10", "RL"))) and opt.coldpace or 1
                    pace[0] = max(pace[0], EM[0].t - opt.burst) + x.lines * opt.pace * cold
            pace[1] = len(EM[0].out)
            Q.pop(cap - used, gap, ds_ok=(k >= (opt.span if blk != "U" else 5)))
    L(Q.flush())
    for gq, d in later: L(gq)
    return [gq for gq, d in bulk]

def p2_mfma(st):
    r = []
    first = st in (0, N1)
    acc = ACC1 if st < N1 else ACC2
    for jj in range(4):
        for e in range(5):
            d = rg(acc[jj*5+e]); c = "0" if (first and not (st == N1 and jj == 0)) else d
            r.append(f"v_mfma_f32_16x16x32_bf16 {d}, {rg(A_SLOTS[(st % 5)*4+jj])}, {rg(wslot(st, e))}, {c}")
    return r

def p2_partials(base, acc):
    return [f"ds_write_b128 v{vPW[jj-1]}, {rg(acc[jj*5+e])} offset:{base + e*1024}" for jj in range(1, 4) for e in range(5)]

def p2_epi_addr():
    dn, q, t = vT[8], vT[9], vT[10]
    r = [f"v_and_b32 v{dn}, 15, v{vLANE}", f"v_lshrrev_b32 v{q}, 4, v{vLANE}",
         f"s_lshl_b32 s{sT2}, s{sRT}, 6", f"s_lshr_b32 s{sT3}, s{sW}, 1", f"s_lshl_b32 s{sT3}, s{sT3}, 5", f"s_add_u32 s{sT2}, s{sT2}, s{sT3}",
         f"s_and_b32 s{sT3}, s{sW}, 1", f"s_lshl_b32 s{sT3}, s{sT3}, 2", f"s_add_u32 s{sT2}, s{sT2}, s{sT3}",
         f"s_mul_i32 s{sT4}, s{sW}, 3072", f"s_add_u32 s{sT4}, s{sT4}, {L_X2}",
         f"v_mul_u32_u24 v{vXL}, 640, v{q}", f"v_lshl_add_u32 v{vXL}, v{dn}, 1, v{vXL}", f"v_add_u32 v{vXL}, s{sT4}, v{vXL}",
         f"v_lshl_add_u32 v{q}, v{q}, 3, s{sT2}",
         f"s_mul_i32 s{sT3}, s{sN}, 80", f"v_add_u32 v{dn}, s{sT3}, v{dn}",
         f"v_mul_u32_u24 v{t}, 640, v{q}", f"v_add_u32 v{t}, v{t}, v{dn}",
         f"v_lshlrev_b32 v{vOUT}, 2, v{t}", f"v_lshlrev_b32 v{vSTA}, 3, v{q}", f"v_lshlrev_b32 v{vDS}, 1, v{dn}",
         f"s_mul_i32 s{sT2}, s{sT2}, 1280", f"s_mul_i32 s{sT3}, s{sN}, 160", f"s_add_u32 s{sT5}, s{sT2}, s{sT3}", f"s_add_u32 s{sT5}, s{sT5}, 4096",
         f"s_mov_b32 s{sT3}, 6554"]
    a, b, c = vT[11], vT[12], vT[13]
    for p in range(3):
        r += [f"v_add_u32 v{a}, {64*p}, v{vLANE}", f"v_mul_u32_u24 v{b}, s{sT3}, v{a}", f"v_lshrrev_b32 v{b}, 16, v{b}",
              f"v_mul_u32_u24 v{c}, 10, v{b}", f"v_sub_u32 v{c}, v{a}, v{c}", f"v_lshlrev_b32 v{c}, 4, v{c}",
              f"v_and_b32 v{a}, 12, v{b}", f"v_add_u32 v{b}, v{a}, v{b}", f"v_mul_u32_u24 v{b}, 1280, v{b}", f"v_add_u32 v{vXD2[p]}, v{b}, v{c}"]
    r += [f"v_mov_b32 v{a}, {OOB}", f"v_cmp_gt_u32 vcc, 32, v{vLANE}", f"v_cndmask_b32 v{vXD2[2]}, v{a}, v{vXD2[2]}, vcc"]
    return r
def p2_epi_loads():
    r = []
    for p in range(3):
        r += [f"s_add_u32 m0, s{sT4}, {p*1024}", "s_nop 0", I(f"buffer_load_dwordx4 v{vXD2[p]}, s[{sX}:{sX+3}], s{sT5} offen lds", tok="XR")]
    for e in range(5):
        r.append(f"global_load_ushort v{vDK[e]}, v{vDS}, s[{pDSK}:{pDSK+1}] offset:{e*32}")
    r += [f"s_mov_b32 s{sD1}, {WS_STAT}",
          f"buffer_load_dwordx4 {vr(vST[0])}, v{vSTA}, s[{sWS}:{sWS+3}], s{sD1} offen sc1",
          f"buffer_load_dwordx4 {vr(vST[4])}, v{vSTA}, s[{sWS}:{sWS+3}], s{sD1} offen offset:16 sc1"]
    return r
def p2_xread():
    r = ["@waitvm XR"]
    for e in range(5):
        for rr in range(4):
            r.append(f"ds_read_u16 v{vXR[e*4+rr]}, v{vXL} offset:{rr*160 + e*32}")
    return r

def p2_skip():
    r = [f"v_lshlrev_b32 v{vDK[e]}, 16, v{vDK[e]}" for e in range(5)]
    for j in range(20): r.append(f"v_lshlrev_b32 v{vXR[j]}, 16, v{vXR[j]}")
    for e in range(5):
        for rr in range(4): r.append(f"v_fma_f32 v{96+e*4+rr}, v{vXR[e*4+rr]}, v{vST[2*rr]}, v{vST[2*rr+1]}")
        for rr in range(4): r.append(f"v_mul_f32 v{96+e*4+rr}, v{96+e*4+rr}, v{vDK[e]}")
    return r
def p2_gate():
    r = []
    T = vT[0:24]
    for e in range(5):
        b = T[12*(e % 2)]; b2 = b + 4; b3 = b + 8; Y = vY[e*4:e*4+4]
        r += [f"ds_read_b128 {vr(b)}, v{vPR} offset:{e*1024}", f"ds_read_b128 {vr(b2)}, v{vPR} offset:{5120 + e*1024}", f"ds_read_b128 {vr(b3)}, v{vPR} offset:{10240 + e*1024}"]
        if e > 0:
            p = T[12*((e-1) % 2)]; Yp = vY[(e-1)*4:e*4]
            for rr in range(4): r.append(f"v_mul_f32 v{Yp[rr]}, v{Yp[rr]}, v{p+rr}") if False else None
        for rr in range(4): r.append(f"v_add_f32 v{Y[rr]}, v{Y[rr]}, v{b+rr}")
        for rr in range(4): r.append(f"v_add_f32 v{b2+rr}, v{b2+rr}, v{b3+rr}")
        for rr in range(4): r.append(f"v_add_f32 v{Y[rr]}, v{Y[rr]}, v{b2+rr}")
        for rr in range(4): r.append(f"v_mul_f32 v{b+rr}, {NLOG2E}, v{Y[rr]}")
        for rr in range(4): r.append(f"v_exp_f32 v{b+rr}, v{b+rr}")
        for rr in range(4): r.append(f"v_add_f32 v{b+rr}, 1.0, v{b+rr}")
        for rr in range(4): r.append(f"v_rcp_f32 v{b+rr}, v{b+rr}")
        for rr in range(4): r.append(f"v_mul_f32 v{Y[rr]}, v{Y[rr]}, v{b+rr}")
    r += [f"v_add_u32 v{v}, {L_P2 - L_P1}, v{v}" for v in vPW + [vPR]]
    return r

def p2_final():
    r = []
    O = list(range(96, 116)); B = list(range(176, 236))
    for k in range(3):
        for e in range(5):
            r.append(f"ds_read_b128 {vr(B[k*20+e*4])}, v{vPR} offset:{k*5120 + e*1024}")
    for j in range(0, 20, 2): r.append(f"v_pk_fma_f32 {vr(vXR[j], 2)}, {vr(O[j], 2)}, {vr(vY[j], 2)}, {vr(vXR[j], 2)}")
    for j in range(0, 20, 2): r.append(f"v_pk_add_f32 {vr(B[j], 2)}, {vr(B[j], 2)}, {vr(B[20+j], 2)}")
    for j in range(0, 20, 2): r.append(f"v_pk_add_f32 {vr(B[j], 2)}, {vr(B[j], 2)}, {vr(B[40+j], 2)}")
    for j in range(0, 20, 2): r.append(f"v_pk_fma_f32 {vr(vXR[j], 2)}, {vr(B[j], 2)}, {vr(vY[j], 2)}, {vr(vXR[j], 2)}")
    for rr in range(4):
        r.append(f"s_mov_b32 s{sT2}, {rr*2560}")
        for e in range(5):
            r.append(f"buffer_store_dword v{vXR[e*4+rr]}, v{vOUT}, s[{sOUT}:{sOUT+3}], s{sT2} offen offset:{e*64} {opt.out_flags}")
    return r

def weave(main, extra, every=1):
    groups = []; cur = []
    for t in II(extra):
        cur.append(t)
        if t.cls == "vmem": groups.append(cur); cur = []
    if cur: groups.append(cur)
    out = []
    for k, t in enumerate(II(main)):
        out.append(t)
        if groups and k % every == every - 1: out += groups.pop(0)
    for g_ in groups: out += g_
    return out

def phase2(left):
    PH[0] = 2
    L(stamp("B mfma end"))
    L(delay("c", 15, 9, 600))
    L([f"s_mov_b32 s{sEX0}, {NLOG2E}", f"s_mov_b32 s{sEX1}, {NLOG2E}", f"s_mov_b32 s{sEX2}, 1.0", f"s_mov_b32 s{sEX3}, 1.0"])
    Wq = list(left); Aq = []
    assert all(id(gq[-1]) in STEP for gq in Wq)
    nextW = max([st for st in STEP.values()] + [-1]) + 1; nextA = 0
    while nextW < N1 + NLDS: Wq.extend(tagw(nextW)); nextW += 1
    def serial(lst, every, first=None):
        cnt = 0
        for t in II(lst):
            if t.cls == "pseudo" and t.op == "@gap": continue
            L([t])
            if t.cls in ("valu", "trans") and not t.op.startswith("v_cmp") and not INRAW[0]:
                cnt += 1
                q_ = first if first else Wq
                if q_ and cnt >= every and gstall(q_[0]) <= opt.thrs: L(q_.pop(0)); cnt = 0
            if t.op == "@raw_begin": INRAW[0] = True
            if t.op == "@raw_end": INRAW[0] = False
    serial(swiglu(ACCB, [0], sKSB, "HHB", packed=True), opt.every)
    L(stamp("epi B done"))
    L(flag_load(WS_FLHA, sRT, 1, 15))
    def fill(st):
        nonlocal nextW, nextA
        while nextA <= min(st + opt.look, NSTEP - 1): Aq.extend(taga(nextA)); nextA += 1
        while nextW <= min(st + opt.lookW, NSTEP - 1) and nextW >= N1 + NLDS and w_free_after_p(nextW) < st: Wq.extend(tagw(nextW)); nextW += 1
    def head():
        if Wq and (not Aq or STEP[id(Wq[0][-1])] <= STEP[id(Aq[0][-1])]): return Wq
        return Aq if Aq else None
    p56 = II(scan_P56())[33:]
    serial(p56[:10], opt.every)
    L(p2_setup2())
    serial(p56[10:opt.hack], opt.every)
    L(flag_check(WS_FLHA, sRT, 1, 15)); L(stamp("ha ready"))
    while nextA < opt.a0: Aq.extend(taga(nextA)); nextA += 1
    cst = next(k for k, t in enumerate(p56) if t.cls == "vmem")
    if opt.afirst: L(Aq.pop(0)); L(Aq.pop(0)); L(Aq.pop(0)); L(Aq.pop(0))
    serial(p56[opt.hack:cst], opt.every2, Aq)
    if opt.afirst:
        while Aq: L(Aq.pop(0))
    L(p56[cst:])
    L(stamp("h out"))
    while Aq: L(Aq.pop(0))
    if opt.hhpos < 0:
        L(["@waitvm HHB", "s_barrier"]); L(flag_store(WS_FLHH, sC, sG))
    L(stamp("flags out"))
    Q = Queue(); misc = []
    g = 0; nread = N1
    for st in range(NSTEP):
        mf = p2_mfma(st)
        if st == 8 - opt.look:
            L(flag_check(WS_FLHH, sRT, 1, 15))
        if st == N1 - opt.look:
            L(flag_check(WS_FLH, sRT, 1, 15)); L(stamp("h ready"))
        fill(st)
        if st == opt.p2pos + 1:
            Q.add(p2_epi_addr(), g + 30)
        if st == opt.epos: misc.extend(groups(p2_epi_loads()))
        if st == opt.epos + 3:
            assert not misc or all("v29" in gq[-1].text for gq in misc)
            Q.add(p2_xread() + p2_skip(), 20*N1 - 4)
        if st == 8 - opt.look - 2: misc[0:0] = groups(flag_load(WS_FLHH, sRT, 1, 15))
        if st == N1 - opt.look - 2: misc[0:0] = groups(flag_load(WS_FLH, sRT, 1, 15))
        while nread < N1 + NLDS and w_free_after_p(nread) < st and nread <= st + 3:
            assert not any(STEP.get(id(gq[-1])) == nread for gq in Wq)
            Q.add(p2_wread(nread), 20*(nread - 1) + 4); nread += 1
        if st == N1:
            L(stamp("out done"))
            yp = p2_partials(0, ACC1); rdy = [f"v_accvgpr_read_b32 v{vY[j]}, a{j}" for j in range(20)]
            mix = []
            for j in range(15): mix += [yp[j]] + rdy[j*4//3:(j+1)*4//3]
            Q.add(mix, 20*opt.ybar - 4)
        if st == opt.ybar:
            assert nread == N1 + NLDS
            L(Q.flush()); L(["@waitds0", "s_barrier"])
            Q.add(p2_gate(), 20*NSTEP - 24)
        def must(q): return [gq for gq in q if STEP[id(gq[-1])] <= st + opt.look]
        ng = len(must(Wq)) + len(Aq)
        per = -(-ng // 19)
        last = st == NSTEP - 1
        if last:
            L(Q.flush())
            mf = mf[5:] + mf[:5]
            wr = II(p2_partials(0, ACC2))
        for k, t in enumerate(mf):
            E(t)
            used = 0
            if k >= 1:
                for _ in range(max(per, 1)):
                    h = head()
                    if misc and (gstall(misc[0]) <= opt.thr or st >= opt.epos + 1 or "v29" in misc[0][-1].text) and (k % 2 == 0 or not h): L(misc.pop(0)); used += 2
                    elif h and (STEP[id(h[0][-1])] <= st + opt.look or gstall(h[0]) <= opt.thr): L(h.pop(0)); used += 2
            if st == opt.hhpos and k == 19 and st != opt.p2pos:
                L(["@waitvm HHB", "s_barrier"]); L(flag_store(WS_FLHH, sC, sG))
            if st == opt.p2pos and k == 19:
                L(["@waitvm HST", "s_barrier"])
                if st == opt.hhpos: L(flag_store(WS_FLHH, sC, sG))
                L(flag_store(WS_FLH, sC, sG))
            if last and k >= 7 and wr: L([wr.pop(0)])
            Q.pop(2 - used, g); g += 1
        if st >= opt.epos + 2:
            while misc: L(misc.pop(0))
        if opt.fine2: L(stamp(f"st{st}"))
        while head() and STEP[id(head()[0][-1])] <= st + opt.look: L(head().pop(0))
    L(wr)
    L(["@waitds0", "s_barrier"])
    L(stamp("y done"))
    L(p2_final())
    L(stamp("end")); L(stamp("cyc1", True))
INRAW = [False]

def diag_out():
    if not opt.diag: return
    L([f"s_lshl_b32 s{sT2}, s2, 2", f"s_add_u32 s{sT2}, s{sT2}, s{sW}", f"s_lshl_b32 s{sT2}, s{sT2}, 2", f"s_add_u32 s{sT2}, s{sT2}, {WS_STAMP}",
       f"v_mov_b32 v{vT[0]}, s{sNONCE}", f"buffer_store_dword v{vT[0]}, off, s[{sWS}:{sWS+3}], s{sT2}"])

def stamps_out():
    if opt.probe:
        L(["@raw_begin", "L_spin:", f"s_memrealtime s[{sSTAMP}:{sSTAMP+1}]", "s_waitcnt lgkmcnt(0)", f"s_sub_u32 s{sT2}, s{sSTAMP}, s3",
           f"s_cmp_lt_u32 s{sT2}, 5000", "s_cbranch_scc1 L_spin", "@raw_end"])
    if not opt.stamps: return
    L([f"s_lshl_b32 s{sT2}, s2, 2", f"s_add_u32 s{sT2}, s{sT2}, s{sW}", f"s_lshl_b32 s{sT2}, s{sT2}, 8", f"s_add_u32 s{sT2}, s{sT2}, {WS_STAMP}",
       f"v_lshlrev_b32 v{vT[0]}, 2, v{vLANE}", f"buffer_store_dword v0, v{vT[0]}, s[{sWS}:{sWS+3}], s{sT2} offen"])

def build():
    STEP.clear(); PH[0] = 1; EM[0] = Emitter(lines_of, lat_of, dslat=opt.dslat); lab[0] = 0; stamp_n[0] = 0; stamp_names.clear(); ST.n = 0
    prologue()
    L(stamp("issued")); L(stamp("cyc0", True))
    CAP[0] = rest = []
    setup_rest()
    L(scan_addr()); L(mlp_read_addr())
    constants()
    L(const_park())
    nonce_seed()
    L(relayout_issue()); L(relayout_raddr())
    if opt.t_w13: L(w13_touch_addr())
    L([f"v_min_u32 v{vT[0]}, 9, v{vLANE}", f"v_lshlrev_b32 v{vT[0]}, 7, v{vT[0]}", f"global_load_dword a231, v{vT[0]}, s[{pDSK}:{pDSK+1}]"])
    CAP[0] = None
    ra = atoms(rest); n0 = 0; k0 = 0
    while n0 < opt.pre0: L(ra[k0]); n0 += len(ra[k0]); k0 += 1
    L(stamp("consts"))
    tail = x_arrive(0, [i for a in ra[k0:] for i in a], 40)
    L(stamp("x0 in"))
    E("s_barrier")
    L(skew("0"))
    L(tail)
    L(x_stats(0))
    L([f"v_add_u32 v{vRX[0]}, 81920, v{vRX[0]}", f"v_add_u32 v{vRX[1]}, 81920, v{vRX[1]}"])
    nrm = []
    for s in range(20): nrm += norm_step(0, s, opt.pk0, vT[20:24]) if "N" not in opt.skip else []
    if "Z" in opt.skip: nrm = ["s_nop 0"] * len(nrm)
    if "Y" in opt.skip: nrm = [t if "v_pk_fma" not in t else "v_mov_b32 v52, v53" for t in nrm]
    if "M" in opt.skip: nrm = [x for k, t in enumerate(nrm) for x in ([t, "s_nop 0"] if k % 4 == 3 else [t])]
    tail = x_arrive(1, nrm)
    L(stamp("x1 in"))
    L(weave(tail, ST.next(50 - ST.n, 50), 1))
    L(x_stats(1))
    L(mlp_dma_addr("A"))
    for s in range(opt.pre_norm): L(norm_step(1, s, True, vT[20:24]))
    assert ST.n == 50
    phase2(phase1_blocks())
    diag_out()
    stamps_out()
    E("s_endpgm")
    return EM[0].out

HEADER = """; Kernarg layout for this problem (128 bytes, ptrs only, base s[0:1]):
; @launch grid=(256,1,1) block=(256,1,1) lds=163840
.amdgcn_target "amdgcn-amd-amdhsa--gfx950"
.text
.globl {k}
.p2align 8
.type {k},@function
{k}:
"""
FOOTER = """
L_exit:
    s_endpgm
L_codeend:
    .fill 64, 4, 0xbf800000
.section .rodata,"a"
.p2align 6
.amdhsa_kernel {k}
  .amdhsa_next_free_vgpr 512
  .amdhsa_next_free_sgpr 102
  .amdhsa_accum_offset 256
  .amdhsa_group_segment_fixed_size 0
  .amdhsa_kernarg_size 128
  .amdhsa_user_sgpr_count 2
  .amdhsa_user_sgpr_kernarg_segment_ptr 1
  .amdhsa_system_sgpr_workgroup_id_x 1
  .amdhsa_float_denorm_mode_32 3
.end_amdhsa_kernel
"""
def text():
    prog = build()
    body = "\n".join(("" if i.cls == "label" else "    ") + i.text for i in prog)
    return HEADER.format(k=KNAME) + body + FOOTER.format(k=KNAME), prog

if __name__ == "__main__":
    out = sys.argv[1]
    for a in sys.argv[2:]:
        k, v = a.split("=")
        cur = getattr(opt, k)
        setattr(opt, k, v.replace("_", " ") if isinstance(cur, str) else (v in ("1", "True") if isinstance(cur, bool) else type(cur)(float(v))))
    t, prog = text()
    open(out, "w").write(t)
    print(stats(prog), len(prog))
    if opt.sim:
        em = EM[0]; prev = 0
        for j, (n, m) in enumerate(zip(stamp_names, em.marks)):
            big = sorted([x for x in em.stalls if x[1] == j], reverse=True)
            print(f"{n:12s} {m:7.0f} ({m-prev:5.0f}) stalls {sum(x[0] for x in big):5.0f} :", "; ".join(f"{x[0]:.0f} {x[2][:44]}" for x in big[:4]))
            prev = m
    if opt.stamps:
        import json
        json.dump(stamp_names, open(out + ".stamps.json", "w"))
```

```python
import sys, os
sys.path.insert(0, os.path.dirname(os.path.abspath(__file__)))
from asmlib import I, stats, insert_nops, Emitter

KNAME = "recurrent_scan__ssm_conv_s5__glu_gated_swiglu__prompt_kernel"

class Opt:
    fine = False
    splitx = False
    fine2 = False
    pk0 = True
    xhit = False
    chain = 0
    sim = False
    fakehit = ''
    delay = 0
    diag = False
    cycles = False
    skip = ''
    probe = ''
    stamps = False
    codepf = True
    krot = True
    prot = False
    pre0 = 120
    pflines = 12
    win = 8
    pre_norm = 1
    skew = True
    mstat = True
    t_x1 = False
    t_w13 = False
    b10 = 1
    rf_stage = 3
    slack = 22
    rl_pos = 0
    capU = 3
    capM = 5
    span = 5
    X_stage = 2
    L_stage = 5
    C_stage = 7
    Y_stage = 8
    H_stage = 11
    F_stage = 2
    W_stage = 4
    nearly = 12
    rl_nt = False
    out_flags = "sc1"
    x_flags = ""
    w_flags = ""
    p1map = 0
    p2map = 0
    p2pos = 1
    epos = 5
    afirst = True
    hhpos = 1
    hack = 91
    haend = 18
    thrs = 100
    hhld = 50
    hhck = 130
    every = 10
    every2 = 2
    a0 = 3
    thrb = 40
    cad = 3
    cadA = 6
    pace = 11.0
    burst = 100
    coldpace = 1.5
    vmcost = 4
    ybar = 15
    hchk = 4
    HL_stage = 13
    look = 2
    lookW = 6
    thr = 16
    dsmax = 3
    interp = True
    vlat = 14
    chainq = True
    dslat = 130
    even = True
    thrm = 100
    slot0 = 5
    earlyA = False
    roty = False
    latA = 640
    latW = 620
opt = Opt()

WS_A2 = 0
WS_W2P = 0xB00000
WS_S = 0xF00000
WS_STAT = 0xF40000
WS_FLW = 0xF50000
WS_FLH = 0xF51000
WS_FLHH = 0xF52000
WS_FLHA = 0xF54000
WS_SEED = 0xF53000
WS_STAMP = 0xF60000
WS_W13B = 0x1000000
WS_FL13 = 0xF55000
WS_SIZE = 0x1200000
OOB = 0x40000000

L_RL = 102400
L_PRIV = 126976
PV_COL, PV_CH, PV_E = 0, 1280, 4352
L_TT = 155648
L_LB = 159744
L_WY = 0
L_P1 = 81920
L_P2 = 0

sX, sWU, sWM, sWS, sOUT, sRL, sDBG = 36, 40, 44, 48, 52, 56, 60
(sW, sC, sG, sRT, sN, sNONCE, sT0, sT1, sT2, sT3, sXOFF, sUOFF, sMOFF, sMOFFB, sRLOFF, sRLST,
 sA2H, sKSA, sKSB, sSST, sLB0, sLB1, sLB2, sLB3, sEX0, sEX1, sEX2, sEX3, sM0, sM0A, sCNT, sP2A, sP2W, sT4, sT5, sSTATO) = range(64, 100)
sSTAMP = 100
pX, pLRE, pLIM, pBRE, pBIM, pCRE, pCIM, pLDT = 4, 6, 8, 10, 12, 14, 16, 18
pDSK, pBX, pW1, pW3, pW2, pOUT, pDBG, pWS = 20, 22, 24, 26, 28, 30, 32, 34
sKU = [22, 23, 0, 1, 32]
sD0, sD1 = 4, 5
sRY, sRO = 6, 7
sAP, sAS, sAE, sWP, sWB, sWE = 8, 9, 10, 11, 12, 13
sM0U, sSEEDO = 18, 19
sD2 = 31
sRLT = 33
sRS = [14, 15, 16, 17, 28, 29, 34, 35]
sRLM = 6
sHO = [24, 25, 26, 27, 30]

vLANE, vL16 = 1, 2
vRX = [3, 4]; vRU = [5, 6]
vRA = [7, 8]; vRB = 9; vHH = 10; vDU = 11; vW4 = 12
vD = [13, 14, 15, 16]
vXD = vD
vDB = [3, 4, 5, 6]; vRB2 = 11
BSLOT = {10: 4, 11: 5, 12: 2, 13: 3, 14: 0}
BISSUE = {2: (11, 7), 6: (12, 8), 7: (13, 9), 8: (14, 10)}
vUD = [11, 27, 28, 29]
vEW, vER, vCOLR, vCH, vTT, vLB, vTW, vTR, vHST, vSO = range(17, 27)
vWP0, vWP1, vFLAG, vNON = 27, 28, 29, 30
vT = list(range(32, 56))
def U(cf, f): return 56 + (cf * 2 + f) * 4
def X(f, s): return 96 + (f * 20 + s) * 4
def ACCA(mu, h2): return (mu * 2 + h2) * 16
def FB(par, fr): return 64 + par * 32 + fr * 4
def ACCB(mu, h2=0): return 128 + mu * 16
aRL = 160
aS = 180

def vr(n, c=4): return f"v[{n}:{n+c-1}]"
def ar(n, c=4): return f"a[{n}:{n+c-1}]"
def sr(n, c=4): return f"s[{n}:{n+c-1}]"

def lines_of(i):
    t = i.text
    if "ushort" in t: return 1
    if i.tok == "RL": return 16
    if i.tok == "XR": return 11
    if " off," in t and "global" not in t: return 1
    if "dwordx2" in t: return 2
    if "load_dword " in t and "offen" in t: return 1 if "sc1" in t else 32
    if "global_load_dword" in t: return 0
    if "store_dword " in t: return 4 if "offen" in t else 1
    return 8
def lat_of(i):
    t = i.text; tok = i.tok or ""
    cold = 1500
    if "store" in t: return 820 if "sc1" in t else 330
    if tok.startswith("x"): return cold if tok in ("x0_0", "x0_1", "x1_0", "x1_1") else 800
    if tok.startswith("U"): return cold if tok == "U0" else 800
    if tok == "RL" or tok == "TW": return cold
    if tok.startswith("M"): return cold if tok in ("M0", "M1") else (700 if int(tok[1:]) >= 10 else 520)
    if tok == "W" or tok.startswith("WL"): return opt.latW
    if tok == "A": return opt.latA
    if "sc1" in t: return 1000
    return 700
EM = [None]
CAP = [None]
def E(t, tok=None):
    i = I(t, tok)
    if CAP[0] is not None: CAP[0].append(i)
    else: EM[0].feed(i)
    return i
def L(lst):
    for t in lst:
        i = t if isinstance(t, I) else I(t)
        if CAP[0] is not None: CAP[0].append(i)
        else: EM[0].feed(i)
def atoms(lst):
    out = []; depth = 0
    for i in lst:
        glue = depth > 0 or i.op.startswith(("s_cselect", "s_addc", "s_subb", "v_cndmask", "v_addc")) or i.cls in ("branch", "label") or i.op in ("@arm", "@else", "@endarm")
        if out and glue: out[-1].append(i)
        else: out.append([i])
        if i.op == "@arm": depth += 1
        if i.op == "@endarm": depth -= 1
    return out
def II(lst): return [t if isinstance(t, I) else I(t) for t in lst]

def srd(d, p, nbytes):
    return [f"s_mov_b32 s{d}, s{p}", f"s_and_b32 s{d+1}, s{p+1}, 0xffff", f"s_mov_b32 s{d+2}, {nbytes}", f"s_mov_b32 s{d+3}, 0x20000"]

stamp_n = [0]
stamp_names = []
def stamp(name, cyc=False):
    if opt.probe:
        if name != opt.probe: return []
        return [f"s_memrealtime s[{sSTAMP}:{sSTAMP+1}]", "@waitds0", f"s_mov_b32 s3, s{sSTAMP}"]
    if not opt.stamps: return []
    k = stamp_n[0]; stamp_n[0] += 1
    stamp_names.append(name)
    return [f"s_memtime s[{sSTAMP}:{sSTAMP+1}]" if (cyc or opt.cycles) else f"s_memrealtime s[{sSTAMP}:{sSTAMP+1}]", "@waitds0",
            f"v_writelane_b32 v0, s{sSTAMP}, {k}"]

def cmul(dr, di, ar_, ai, br, bi, t):
    return [f"v_mul_f32 v{t}, v{ai}, v{bi}", f"v_mul_f32 v{di}, v{ai}, v{br}",
            f"v_fma_f32 v{dr}, v{ar_}, v{br}, -v{t}", f"v_fmac_f32 v{di}, v{ar_}, v{bi}"]
def csq(dr, di, r, i, t):
    return [f"v_mul_f32 v{t}, v{i}, v{i}", f"v_mul_f32 v{di}, v{r}, v{i}",
            f"v_fma_f32 v{dr}, v{r}, v{r}, -v{t}", f"v_add_f32 v{di}, v{di}, v{di}"]
def chorner2(dr, di, gr, gi, mr, mi, er, ei):
    return [f"v_fma_f32 v{dr}, v{mr}, v{gr}, v{er}", f"v_fma_f32 v{di}, v{mr}, v{gi}, v{ei}",
            f"v_fma_f32 v{dr}, -v{mi}, v{gi}, v{dr}", f"v_fma_f32 v{di}, v{mi}, v{gr}, v{di}"]

LOG2E = "0x3fb8aa3b"
NLOG2E = "0xbfb8aa3b"
INV2PI = "0.15915494"

def x_piece(n):
    f, S, ih = n // 20, (n % 20) // 2, n & 1
    p = n & 3
    r = []
    if p == 0:
        r = [f"s_add_u32 m0, s{sM0}, {f*81920 + (2*S)*1024}", f"s_add_u32 s{sD1}, s{sKU[S >> 1]}, s{sXOFF}"]
        if f: r.append(f"s_add_u32 s{sD1}, s{sD1}, {4*1280}")
    r.append(I(f"buffer_load_dwordx4 v{vXD[p]}, s[{sX}:{sX+3}], s{sD1} offen offset:{p*1024} {opt.x_flags} lds", tok=f"x{f}_{S}"))
    return r
def u_piece(i, cf):
    r = []
    if cf == 0: r = [f"s_add_u32 m0, s{sM0U}, {i*20480}", f"s_add_u32 s{sD1}, s{sKU[i]}, s{sUOFF}"]
    if cf == 4: r = [f"s_add_u32 m0, s{sM0U}, {i*20480 + 4096}", f"s_add_u32 s{sD1}, s{sD1}, {4*10240}"]
    r.append(I(f"buffer_load_dwordx4 v{vUD[cf & 3]}, s[{sWU}:{sWU+3}], s{sD1} offen offset:{(cf & 3)*1024} {opt.w_flags} lds", tok=f"U{i}"))
    return r
class Stream:
    def __init__(self): self.n = 0
    def next(self, k, limit=60):
        r = []
        for _ in range(k):
            if self.n >= limit: break
            r += x_piece(self.n) if self.n < 40 else u_piece((self.n - 40) // 5, (self.n - 40) % 5)
            self.n += 1
        return r
ST = Stream()

def prologue():
    E(f"s_cmp_ge_u32 s2, 256")
    E("s_cbranch_scc1 L_exit")
    E("s_load_dwordx16 s[4:19], s[0:1], 0")
    E("s_load_dwordx16 s[20:35], s[0:1], 64")
    if opt.stamps or opt.probe == "entry":
        E(f"s_{'memtime' if opt.cycles else 'memrealtime'} s[{sSTAMP}:{sSTAMP+1}]")
    if opt.codepf:
        n = opt.pflines
        L(["@raw_begin", f"s_getpc_b64 s[{sT2}:{sT3}]", "L_pc:",
           f"s_lshr_b32 s{sT4}, s2, 3", f"s_mul_i32 s{sT4}, s{sT4}, {n*128}",
           f"v_min_u32 v{vT[0]}, {n-1}, v0", f"v_lshlrev_b32 v{vT[0]}, 7, v{vT[0]}", f"v_add_u32 v{vT[0]}, s{sT4}, v{vT[0]}",
           f"v_min_u32 v{vT[0]}, L_codeend-L_pc-4, v{vT[0]}",
           f"v_mov_b32 v{vT[1]}, s{sT3}", f"v_add_co_u32 v{vT[0]}, vcc, s{sT2}, v{vT[0]}", f"v_cmp_gt_u32 s[{sEX0}:{sEX0+1}], {n}, v0", "s_nop 0",
           f"v_addc_co_u32 v{vT[1]}, vcc, 0, v{vT[1]}, vcc", f"s_and_b64 s[{sEX0}:{sEX0+1}], s[{sEX0}:{sEX0+1}], exec",
           "s_cbranch_scc0 L_nopf", f"s_mov_b64 exec, s[{sEX0}:{sEX0+1}]",
           f"global_load_dword a230, v[{vT[0]}:{vT[1]}], off", "s_mov_b64 exec, -1", "L_nopf:", "@raw_end"])
    E(f"v_lshrrev_b32 v{vT[0]}, 6, v0")
    E(f"v_and_b32 v{vLANE}, 63, v0")
    E(f"v_readfirstlane_b32 s{sW}, v{vT[0]}")
    E(f"v_lshlrev_b32 v{vL16}, 4, v{vLANE}")
    L([f"s_and_b32 s{sT0}, s2, 7", f"s_lshr_b32 s{sT1}, s2, 3"])
    if opt.p1map == 0:
        L([f"s_and_b32 s{sC}, s{sT0}, 1", f"s_lshl_b32 s{sC}, s{sC}, 3", f"s_and_b32 s{sT2}, s{sT1}, 7", f"s_add_u32 s{sC}, s{sC}, s{sT2}",
           f"s_lshr_b32 s{sG}, s{sT0}, 1", f"s_lshl_b32 s{sG}, s{sG}, 2", f"s_lshr_b32 s{sT2}, s{sT1}, 3", f"s_add_u32 s{sG}, s{sG}, s{sT2}"])
    else:
        L([f"s_and_b32 s{sC}, s{sT0}, 3", f"s_lshl_b32 s{sC}, s{sC}, 2", f"s_and_b32 s{sT2}, s{sT1}, 3", f"s_add_u32 s{sC}, s{sC}, s{sT2}",
           f"s_lshr_b32 s{sG}, s{sT0}, 2", f"s_lshl_b32 s{sG}, s{sG}, 3", f"s_lshr_b32 s{sT2}, s{sT1}, 2", f"s_add_u32 s{sG}, s{sG}, s{sT2}"])
    t0, t1, t2, t3 = vT[0:4]
    L([f"v_lshrrev_b32 v{t0}, 3, v{vLANE}", f"v_and_b32 v{t1}, 7, v{vLANE}", f"v_and_b32 v{t2}, 6, v{t0}",
       f"v_xor_b32 v{t1}, v{t1}, v{t2}", f"v_lshlrev_b32 v{t1}, 4, v{t1}",
       f"v_and_b32 v{t2}, 4, v{t0}", f"v_add_u32 v{t2}, v{t2}, v{t0}",
       f"v_mul_u32_u24 v{vD[0]}, 1280, v{t2}", f"v_add_u32 v{vD[0]}, v{vD[0]}, v{t1}",
       f"v_mul_u32_u24 v{vDU}, 1280, v{t0}", f"v_add_u32 v{vDU}, v{vDU}, v{t1}",
       f"v_add_u32 v{vD[0]}, 4096, v{vD[0]}", f"v_add_u32 v{vD[1]}, {16*1280 - 1024}, v{vD[0]}",
       f"v_add_u32 v{vD[2]}, {128 - 2048}, v{vD[0]}", f"v_add_u32 v{vD[3]}, {16*1280 + 128 - 3072}, v{vD[0]}"])
    L([f"s_mul_i32 s{sT2}, s{sG}, 80", f"v_min_u32 v{t3}, 39, v{vLANE}", f"v_lshlrev_b32 v{t3}, 1, v{t3}", f"v_add_u32 v{t3}, s{sT2}, v{t3}"])
    L([f"s_lshl_b32 s{sXOFF}, s{sC}, 2", f"s_add_u32 s{sXOFF}, s{sXOFF}, s{sW}", f"s_mul_i32 s{sXOFF}, s{sXOFF}, {0 if opt.xhit else 32*1280}",
       f"s_mul_i32 s{sM0}, s{sW}, 20480"])
    if opt.krot:
        L([f"s_add_u32 s{sT4}, s{sC}, s{sG}", f"s_mul_i32 s{sT5}, s{sT4}, 52", f"s_lshr_b32 s{sT5}, s{sT5}, 8", f"s_mul_i32 s{sT5}, s{sT5}, 5",
           f"s_sub_u32 s{sT4}, s{sT4}, s{sT5}", f"s_lshl_b32 s{sT4}, s{sT4}, 8"])
    else:
        E(f"s_mov_b32 s{sT4}, 0")
    E("@waitds0")
    if opt.probe == "entry": E(f"s_mov_b32 s3, s{sSTAMP}")
    if opt.stamps:
        E(f"v_mov_b32 v0, 0")
        E(f"v_writelane_b32 v0, s{sSTAMP}, 0"); stamp_n[0] = 1; stamp_names.append("entry")
    if opt.chain:
        L([f"s_mul_i32 s{sT2}, s2, {60*128}", f"s_add_u32 s{sT2}, s{pW2}, s{sT2}", f"s_addc_u32 s{sT3}, s{pW2+1}, 0", f"v_mov_b32 v{vT[8]}, 0"])
        for k in range(opt.chain):
            L([f"global_load_dword v{vT[9]}, v{vT[8]}, s[{sT2}:{sT3}]", "@waitvm0", f"v_add_u32 v{vT[8]}, 128, v{vT[8]}"])
    E(f"global_load_ushort v{vT[4]}, v{t3}, s[{pLRE}:{pLRE+1}]")
    E(f"global_load_ushort v{vT[5]}, v{t3}, s[{pLIM}:{pLIM+1}]")
    E(f"global_load_ushort v{vT[6]}, v{t3}, s[{pLDT}:{pLDT+1}]")
    L([f"s_sub_u32 s{sX}, s{pX}, 4096", f"s_subb_u32 s{sX+1}, s{pX+1}, 0", f"s_and_b32 s{sX+1}, s{sX+1}, 0xffff",
       f"s_mov_b32 s{sX+2}, {2048*1280 + 4096}", f"s_mov_b32 s{sX+3}, 0x20000"])
    L(srd(sDBG, pDBG, 256))
    def ku(j): return [f"s_add_u32 s{sKU[j]}, s{sT4}, {j*256}", f"s_cmp_ge_u32 s{sKU[j]}, 1280", f"s_cselect_b32 s{sT5}, 1280, 0", f"s_sub_u32 s{sKU[j]}, s{sKU[j]}, s{sT5}"]
    L(ku(0)); L(ST.next(4))
    L(srd(sWS, pWS, WS_SIZE))
    L([f"s_or_b32 s{sT2}, s2, s{sW}", f"s_cmp_eq_u32 s{sT2}, 0", f"s_mov_b32 s{sT3}, {WS_SEED}", f"s_cselect_b32 s{sSEEDO}, s{sT3}, {OOB}"])
    E(f"buffer_load_dword v{vT[7]}, off, s[{sWS}:{sWS+3}], s{sSEEDO} sc1")
    L(ku(1)); L(ST.next(opt.win - 4))
    for j in range(2, 5): L(ku(j))
    i_, q_, a0, a1 = vT[8:12]
    L([f"v_and_b32 v{i_}, 15, v{vLANE}", f"v_lshrrev_b32 v{q_}, 4, v{vLANE}",
       f"v_and_b32 v{a0}, 7, v{i_}", f"v_and_b32 v{a1}, 6, v{i_}", f"v_xor_b32 v{a1}, v{a1}, v{q_}", f"v_lshlrev_b32 v{a1}, 4, v{a1}",
       f"v_lshl_add_u32 v{a1}, v{a0}, 7, v{a1}",
       f"v_lshrrev_b32 v{a0}, 3, v{i_}",
       f"v_mul_u32_u24 v{vRU[0]}, 5120, v{a0}", f"v_add_u32 v{vRU[0]}, v{vRU[0]}, v{a1}", f"v_xor_b32 v{vRU[1]}, 64, v{vRU[0]}",
       f"v_lshl_add_u32 v{vRX[0]}, v{a0}, 10, v{a1}", f"v_add_u32 v{vRX[0]}, s{sM0}, v{vRX[0]}", f"v_xor_b32 v{vRX[1]}, 64, v{vRX[0]}",
       f"v_add_u32 v{vW4}, 4096, v{vL16}", f"v_mov_b32 v{vONES}, 0x3f803f80"])
    L([f"v_accvgpr_write_b32 a{aONE+k}, v{vONES}" for k in range(4)])
    L([f"v_add_u32 v{vUD[p]}, {p*(10240 - 1024)}, v{vDU}" for p in range(1, 4)])

def setup_rest():
    t0 = vT[0]
    L([f"s_bitcmp1_b32 s{sW}, 0",
       f"s_cselect_b32 s{sWU}, s{pBIM}, s{pBRE}", f"s_cselect_b32 s{sWU+1}, s{pBIM+1}, s{pBRE+1}",
       f"s_cselect_b32 s{sWM}, s{pW3}, s{pW1}", f"s_cselect_b32 s{sWM+1}, s{pW3+1}, s{pW1+1}",
       f"s_and_b32 s{sWU+1}, s{sWU+1}, 0xffff", f"s_and_b32 s{sWM+1}, s{sWM+1}, 0xffff",
       f"s_mov_b32 s{sWU+2}, {640*1280}", f"s_mov_b32 s{sWU+3}, 0x20000",
       f"s_mov_b32 s{sWM+2}, {640*3072}", f"s_mov_b32 s{sWM+3}, 0x20000"])
    L(srd(sOUT, pOUT, 2048*2560))
    if opt.p2map == 0:
        L([f"s_lshl_b32 s{sRT}, s{sT0}, 2", f"s_and_b32 s{sT2}, s{sT1}, 3", f"s_add_u32 s{sRT}, s{sRT}, s{sT2}", f"s_lshr_b32 s{sN}, s{sT1}, 2"])
    else:
        L([f"s_and_b32 s{sRT}, s{sT0}, 3", f"s_lshl_b32 s{sRT}, s{sRT}, 3", f"s_and_b32 s{sT2}, s{sT1}, 7", f"s_add_u32 s{sRT}, s{sRT}, s{sT2}",
           f"s_lshr_b32 s{sN}, s{sT0}, 2", f"s_lshl_b32 s{sN}, s{sN}, 2", f"s_lshr_b32 s{sT2}, s{sT1}, 3", f"s_add_u32 s{sN}, s{sN}, s{sT2}"])
    L([f"s_mul_i32 s{sUOFF}, s{sG}, {40*1280}", f"s_lshr_b32 s{sT2}, s{sW}, 1", f"s_lshl_b32 s{sT2}, s{sT2}, 7", f"s_add_u32 s{sUOFF}, s{sUOFF}, s{sT2}",
       f"s_mul_i32 s{sM0U}, s{sW}, 5120"])
    L([f"s_mul_i32 s{sT2}, s{sG}, 192", f"s_bitcmp1_b32 s{sG}, 0",
       f"s_cselect_b32 s{sT3}, 64, 0", f"s_cselect_b32 s{sT4}, 0, 128", f"s_add_u32 s{sMOFF}, s{sT2}, s{sT3}", f"s_add_u32 s{sMOFFB}, s{sT2}, s{sT4}",
       f"s_lshr_b32 s{sT2}, s{sW}, 1",
       f"s_mul_i32 s{sT3}, s{sT2}, {32*3072}", f"s_add_u32 s{sMOFF}, s{sMOFF}, s{sT3}",
       f"s_mul_i32 s{sMOFFB}, s{sG}, 81920", f"s_lshl_b32 s{sT3}, s{sW}, 12", f"s_add_u32 s{sMOFFB}, s{sMOFFB}, s{sT3}", f"s_add_u32 s{sMOFFB}, s{sMOFFB}, {WS_W13B}",
       f"s_lshl_b32 s{sM0A}, s{sW}, 12"])
    L([f"s_lshl_b32 s{sT3}, s{sC}, 1", f"s_add_u32 s{sT3}, s{sT3}, s{sT2}", f"s_mul_i32 s{sA2H}, s{sT3}, {88*4096}",
       f"s_and_b32 s{sT3}, s{sW}, 1", f"s_lshl_b32 s{sT3}, s{sT3}, 11", f"s_add_u32 s{sA2H}, s{sA2H}, s{sT3}",
       f"s_mul_i32 s{sT3}, s{sG}, 3", f"s_add_u32 s{sT3}, s{sT3}, 40", f"s_and_b32 s{sT4}, s{sG}, 1",
       f"s_add_u32 s{sKSA}, s{sT3}, s{sT4}", f"s_lshl_b32 s{sKSA}, s{sKSA}, 12", f"s_add_u32 s{sKSA}, s{sKSA}, s{sA2H}",
       f"s_xor_b32 s{sT4}, s{sT4}, 1", f"s_lshl_b32 s{sT4}, s{sT4}, 1",
       f"s_add_u32 s{sKSB}, s{sT3}, s{sT4}", f"s_lshl_b32 s{sKSB}, s{sKSB}, 12", f"s_add_u32 s{sKSB}, s{sKSB}, s{sA2H}"])
    L([f"s_lshl_b32 s{sT3}, s{sG}, 4", f"s_add_u32 s{sT4}, s{sT3}, s{sC}", f"s_mul_i32 s{sT4}, s{sT4}, 640", f"s_add_u32 s{sT4}, s{sT4}, {WS_S}",
       f"s_cmp_eq_u32 s{sW}, 3", f"s_cselect_b32 s{sSST}, s{sT4}, {OOB}"])
    for jj, sl in enumerate((sLB0, sLB1, sLB2, sLB3)):
        L([f"s_lshl_b32 s{sT4}, s{sW}, 2", f"s_add_u32 s{sT4}, s{sT4}, s{sC}", f"s_add_i32 s{sT4}, s{sT4}, {jj-16}",
           f"s_add_u32 s{sT5}, s{sT3}, s{sT4}", f"s_mul_i32 s{sT5}, s{sT5}, 640", f"s_add_u32 s{sT5}, s{sT5}, {WS_S}",
           f"s_cmp_ge_i32 s{sT4}, 0", f"s_cselect_b32 s{sl}, s{sT5}, {OOB}"])
    L([f"s_lshl_b32 s{sT3}, s{sC}, 2", f"s_add_u32 s{sT3}, s{sT3}, s{sW}", f"s_lshl_b32 s{sT3}, s{sT3}, 8", f"s_add_u32 s{sT3}, s{sT3}, {WS_STAT}",
       f"s_cmp_eq_u32 s{sG}, 0", f"s_cselect_b32 s{sSTATO}, s{sT3}, {OOB}"])
    L([f"s_mul_i32 s{sP2A}, s{sRT}, {88*4096}", f"s_mul_i32 s{sP2W}, s{sN}, {88*5120}", f"s_add_u32 s{sP2W}, s{sP2W}, {WS_W2P}"])
    if "A" in opt.fakehit: E(f"s_mov_b32 s{sP2A}, 0")
    if "W" in opt.fakehit: E(f"s_mov_b32 s{sP2W}, {WS_W2P}")
    L(ptr_bases())

def h_offsets():
    for cf in range(5):
        L([f"s_mul_i32 s{sT2}, s{sG}, 5", f"s_add_u32 s{sT2}, s{sT2}, {cf}", f"s_and_b32 s{sT4}, s{sT2}, 3", f"s_lshr_b32 s{sT2}, s{sT2}, 2",
           f"s_lshl_b32 s{sT2}, s{sT2}, 12", f"s_lshl_b32 s{sT4}, s{sT4}, 8", f"s_add_u32 s{sT2}, s{sT2}, s{sT4}", f"s_add_u32 s{sHO[cf]}, s{sT2}, s{sA2H}"])

cAR, cAI, cKR, cKI = 56, 57, 58, 59
cA8, cA32, cA32W, cA128, cOM = 60, 62, 64, 66, 68
def constants():
    lre, lim, ldt = vT[4], vT[5], vT[6]
    t = list(range(72, 96))
    L([f"v_lshlrev_b32 v{lre}, 16, v{lre}", f"v_lshlrev_b32 v{lim}, 16, v{lim}", f"v_lshlrev_b32 v{ldt}, 16, v{ldt}",
       f"v_mul_f32 v{t[0]}, {LOG2E}, v{ldt}", f"v_exp_f32 v{t[0]}, v{t[0]}",
       f"v_cvt_pk_bf16_f32 v{t[0]}, v{t[0]}, v{t[0]}", f"v_lshlrev_b32 v{t[0]}, 16, v{t[0]}",
       f"v_mul_f32 v{t[1]}, v{t[0]}, v{lre}", f"v_mul_f32 v{t[2]}, v{t[0]}, v{lim}",
       f"v_mul_f32 v{t[1]}, {LOG2E}, v{t[1]}", f"v_exp_f32 v{t[1]}, v{t[1]}",
       f"v_mul_f32 v{t[2]}, {INV2PI}, v{t[2]}", f"v_rndne_f32 v{t[3]}, v{t[2]}", f"v_sub_f32 v{t[2]}, v{t[2]}, v{t[3]}",
       f"v_cos_f32 v{t[3]}, v{t[2]}", f"v_sin_f32 v{t[4]}, v{t[2]}",
       f"v_mul_f32 v{cAR}, v{t[1]}, v{t[3]}", f"v_mul_f32 v{cAI}, v{t[1]}, v{t[4]}",
       f"v_add_f32 v{t[3]}, -1.0, v{cAR}",
       f"v_mul_f32 v{t[5]}, v{lre}, v{lre}", f"v_fmac_f32 v{t[5]}, v{lim}, v{lim}", f"v_rcp_f32 v{t[5]}, v{t[5]}",
       f"v_mul_f32 v{t[6]}, v{t[3]}, v{lre}", f"v_fmac_f32 v{t[6]}, v{cAI}, v{lim}",
       f"v_mul_f32 v{t[7]}, v{cAI}, v{lre}", f"v_fma_f32 v{t[7]}, -v{t[3]}, v{lim}, v{t[7]}",
       f"v_add_f32 v{t[5]}, v{t[5]}, v{t[5]}",
       f"v_mul_f32 v{cKR}, v{t[6]}, v{t[5]}", f"v_mul_f32 v{cKI}, v{t[7]}, v{t[5]}"])
    r, i, tt = t[8], t[9], t[0]
    L([f"v_mov_b32 v{r}, v{cAR}", f"v_sub_f32 v{i}, 0, v{cAI}"])
    L(csq(t[10], t[11], r, i, tt)); L(csq(r, i, t[10], t[11], tt))
    L(csq(cA8, cA8+1, r, i, tt))
    L(csq(r, i, cA8, cA8+1, tt))
    L(csq(cA32, cA32+1, r, i, tt))
    L(csq(t[12], t[13], cA32, cA32+1, tt))
    L(csq(cA128, cA128+1, t[12], t[13], tt))
    L(csq(r, i, cA128, cA128+1, tt))
    L(csq(t[14], t[15], r, i, tt))
    L(csq(t[16], t[17], t[14], t[15], tt))
    def sel(dst, src, mask, on):
        if on:
            return [f"v_cndmask_b32 v{dst}, 1.0, v{src}, s[{mask}:{mask+1}]", f"v_cndmask_b32 v{dst+1}, 0, v{src+1}, s[{mask}:{mask+1}]"]
        return [f"v_mov_b32 v{t[22]}, 1.0", f"v_mov_b32 v{t[23]}, 0",
                f"v_cndmask_b32 v{dst}, v{src}, v{t[22]}, s[{mask}:{mask+1}]", f"v_cndmask_b32 v{dst+1}, v{src+1}, v{t[23]}, s[{mask}:{mask+1}]"]
    L([f"s_bitcmp1_b32 s{sW}, 0", f"s_cselect_b64 s[{sEX0}:{sEX0+1}], -1, 0", f"s_bitcmp1_b32 s{sW}, 1", f"s_cselect_b64 s[{sEX2}:{sEX2+1}], -1, 0"])
    L(sel(t[18], cA32, sEX0, True)); L(sel(t[20], t[12], sEX2, True))
    L(cmul(cA32W, cA32W+1, t[18], t[19], t[20], t[21], tt))
    L(sel(t[18], t[14], sEX0, False)); L(sel(t[20], t[16], sEX2, False))
    L(cmul(cOM, cOM+1, t[18], t[19], t[20], t[21], tt))

def nonce_seed():
    sd = vT[7]
    L([f"s_mov_b32 s{sT2}, 1664525", f"v_mul_lo_u32 v{sd}, v{sd}, s{sT2}", f"v_add_u32 v{vNON}, 1013904223, v{sd}", f"v_mov_b32 v{vNON+1}, 1"])
    E(f"buffer_store_dword v{vNON}, off, s[{sWS}:{sWS+3}], s{sSEEDO} sc1", tok="seed")
def nonce_publish():
    return [f"s_cmp_lt_u32 s{sSEEDO}, {OOB}", f"s_cselect_b32 s{sT5}, 0, {OOB}", "@waitvm seed",
            f"buffer_store_dwordx2 v[{vNON}:{vNON+1}], off, s[{sDBG}:{sDBG+3}], s{sT5} sc1"]

lab = [0]
def poll(load_text, check):
    lab[0] += 1
    n = lab[0]
    r = list(check)
    r += [f"s_cbranch_vccz L_ok{n}", "@raw_begin", f"s_mov_b32 s{sCNT}, {0x4000 if opt.diag else 0x40000}", f"L_rt{n}:", "s_sleep 1"]
    r += [t.text if isinstance(t, I) else t for t in load_text]
    r += ["s_waitcnt vmcnt(0)", "s_nop 1"] + list(check) + [f"s_cbranch_vccz L_ok{n}", f"s_sub_u32 s{sCNT}, s{sCNT}, 1",
          f"s_cmp_lg_u32 s{sCNT}, 0", f"s_cbranch_scc1 L_rt{n}"]
    if opt.diag: r += [f"buffer_store_dword v{vLANE}, off, s[{sDBG}:{sDBG+3}], 0 offset:{32+4*n} sc1", "s_waitcnt vmcnt(0)"]
    r += ["s_nop 7", "@raw_end", f"L_ok{n}:"]
    return r
def nonce_load():
    return [f"buffer_load_dwordx2 v[{vNON}:{vNON+1}], off, s[{sDBG}:{sDBG+3}], 0 sc1"]
def nonce_get():
    return poll(nonce_load(), [f"v_cmp_ne_u32 vcc, 1, v{vNON+1}"]) + [f"v_readfirstlane_b32 s{sNONCE}, v{vNON}"]

sS0, sS1, sQ0, sQ1 = vT[8], vT[9], vT[10], vT[11]
vR = [vT[12], vT[14]]; vNB = [vT[13], vT[15]]
vM = [vT[16], vT[17]]
vONES = vT[18]
def x_arrive(f, filler=None, limit=60):
    fa = atoms(II(filler or []))
    tot = sum(len(a) for a in fa); chunks = [[] for _ in range(10)]; acc = 0
    for a in fa:
        chunks[min(9, acc * 10 // max(tot, 1))] += a; acc += len(a)
    if not opt.mstat: L([f"v_mov_b32 v{sS0}, 0", f"v_mov_b32 v{sS1}, 0", f"v_mov_b32 v{sQ0}, 0", f"v_mov_b32 v{sQ1}, 0"])
    def st(s):
        r = []
        if opt.mstat:
            c0 = "0" if s == 0 else ar(aSS); c1 = "0" if s == 0 else ar(aSQ)
            return [f"v_mfma_f32_16x16x32_bf16 {ar(aSS)}, {ar(aONE)}, {vr(X(f, s))}, {c0}",
                    f"v_mfma_f32_16x16x32_bf16 {ar(aSQ)}, {vr(X(f, s))}, {vr(X(f, s))}, {c1}"]
        for k in range(4):
            x = X(f, s) + k
            r += [f"v_dot2_f32_bf16 v{(sS0, sS1)[k&1]}, v{x}, v{vONES}, v{(sS0, sS1)[k&1]}",
                  f"v_dot2_f32_bf16 v{(sQ0, sQ1)[k&1]}, v{x}, v{x}, v{(sQ0, sQ1)[k&1]}"]
        return r
    for S in range(10):
        E(f"@waitvm x{f}_{S}")
        for sh in range(2):
            E(f"ds_read_b128 {vr(X(f, 2*S+sh))}, v{vRX[sh]} offset:{S*2048}", tok=f"xr{f}_{2*S+sh}")
        fl = chunks[S]
        L(ST.next(2 if ST.n % 2 == 0 or True else 1, limit))
        if S > 0:
            E(f"@waitds xr{f}_{2*S-1}")
            L(st(2*S-2)); L(st(2*S-1))
        L(fl)
    E("@waitds0")
    return st(18) + st(19)

aONE, aSS, aSQ = 216, 220, 224
def x_stats(f):
    a, b = vT[19], vT[20]
    r = [f"v_add_f32 v{sS0}, v{sS0}, v{sS1}", f"v_add_f32 v{sQ0}, v{sQ0}, v{sQ1}"]
    if opt.mstat:
        t = vT[8:12]
        r = [f"v_and_b32 v{a}, 15, v{vLANE}", f"v_lshrrev_b32 v{b}, 2, v{a}", f"v_lshl_add_u32 v{b}, v{b}, 4, v{a}", f"v_lshlrev_b32 v{b}, 2, v{b}",
             f"v_and_b32 v{a}, 3, v{vLANE}", f"v_cmp_eq_u32 s[{sEX0}:{sEX0+1}], 1, v{a}", f"v_cmp_eq_u32 s[{sEX2}:{sEX2+1}], 2, v{a}", f"v_cmp_eq_u32 vcc, 3, v{a}"]
        r += [f"v_accvgpr_read_b32 v{t[k]}, a{aSQ+k}" for k in range(4)]
        r += [f"v_cndmask_b32 v{t[0]}, v{t[0]}, v{t[1]}, s[{sEX0}:{sEX0+1}]", f"v_cndmask_b32 v{t[2]}, v{t[2]}, v{t[3]}, vcc",
              f"v_cndmask_b32 v{t[0]}, v{t[0]}, v{t[2]}, s[{sEX2}:{sEX2+1}]", f"v_cndmask_b32 v{t[0]}, v{t[0]}, v{t[2]}, vcc",
              f"ds_bpermute_b32 v{sQ0}, v{b}, v{t[0]}", f"v_accvgpr_read_b32 v{sS0}, a{aSS}"]
    for perm in (() if opt.mstat else ("v_permlane16_swap_b32", "v_permlane32_swap_b32")):
        r += [f"v_mov_b32 v{a}, v{sS0}", f"v_mov_b32 v{b}, v{sQ0}", f"{perm} v{a}, v{sS0}", f"{perm} v{b}, v{sQ0}",
              f"v_add_f32 v{sS0}, v{sS0}, v{a}", f"v_add_f32 v{sQ0}, v{sQ0}, v{b}"]
    inv = "0x3acccccd"
    r += [f"v_mul_f32 v{sS0}, {inv}, v{sS0}", f"v_mul_f32 v{sQ0}, {inv}, v{sQ0}",
          f"v_fma_f32 v{sQ0}, -v{sS0}, v{sS0}, v{sQ0}", f"v_max_f32 v{sQ0}, 0, v{sQ0}",
          f"v_cvt_pk_bf16_f32 v{a}, v{sS0}, v{sQ0}",
          f"v_lshlrev_b32 v{vM[f]}, 16, v{a}", f"v_and_b32 v{b}, 0xffff0000, v{a}",
          f"v_add_f32 v{b}, 0x3727c5ac, v{b}",
          f"v_cvt_pk_bf16_f32 v{b}, v{b}, v{b}", f"v_and_b32 v{b}, 0xffff0000, v{b}",
          f"v_sqrt_f32 v{b}, v{b}", f"v_cvt_pk_bf16_f32 v{b}, v{b}, v{b}", f"v_and_b32 v{b}, 0xffff0000, v{b}",
          f"v_rcp_f32 v{vR[f]}, v{b}", f"v_mul_f32 v{vNB[f]}, v{vM[f]}, v{vR[f]}", f"v_sub_f32 v{vNB[f]}, 0, v{vNB[f]}"]
    return r

def norm_step(f, s, packed, tmp):
    r = []
    for k in range(4):
        x = X(f, s) + k
        t = tmp[(k & 1) * 2]
        if packed:
            r += [f"v_lshlrev_b32 v{t}, 16, v{x}", f"v_and_b32 v{t+1}, 0xffff0000, v{x}",
                  f"v_pk_fma_f32 v[{t}:{t+1}], v[{t}:{t+1}], v[{vR[f]}:{vR[f]+1}], v[{vR[f]}:{vR[f]+1}] op_sel:[0,0,1] op_sel_hi:[1,0,1]",
                  f"v_cvt_pk_bf16_f32 v{x}, v{t}, v{t+1}"]
        else:
            r += [f"v_lshlrev_b32 v{t}, 16, v{x}", f"v_and_b32 v{t+1}, 0xffff0000, v{x}",
                  f"v_fma_f32 v{t}, v{t}, v{vR[f]}, v{vNB[f]}", f"v_fma_f32 v{t+1}, v{t+1}, v{vR[f]}, v{vNB[f]}",
                  f"v_cvt_pk_bf16_f32 v{x}, v{t}, v{t+1}"]
    return r

def stats_store():
    a, b = vT[0], vT[1]
    r = [f"v_and_b32 v{a}, 12, v{vLANE}", f"v_add_u32 v{a}, v{a}, v{vLANE}", f"v_lshlrev_b32 v{a}, 3, v{a}",
         f"v_mov_b32 v{b}, {OOB}", f"v_cmp_gt_u32 vcc, 16, v{vLANE}", f"v_cndmask_b32 v{a}, v{b}, v{a}, vcc"]
    for f in range(2):
        r.append(I(f"buffer_store_dwordx2 v[{vR[f]}:{vR[f]+1}], v{a}, s[{sWS}:{sWS+3}], s{sSTATO} offen offset:{32*f} sc1", tok="stat"))
    return r

def mlp_dma_addr(kind):
    vD = vDB if kind == "B" else globals()["vD"]
    t0, t1, t2 = vD[1], vD[2], vD[3]
    if kind == "A":
        r = [f"v_lshrrev_b32 v{t0}, 3, v{vLANE}", f"v_and_b32 v{t1}, 7, v{vLANE}", f"v_and_b32 v{t2}, 2, v{t0}", f"v_lshlrev_b32 v{t2}, 1, v{t2}",
             f"v_xor_b32 v{t1}, v{t1}, v{t2}", f"v_lshlrev_b32 v{t1}, 4, v{t1}",
             f"v_mul_u32_u24 v{t0}, 3072, v{t0}", f"v_add_u32 v{vD[0]}, v{t0}, v{t1}"]
        rows = 8
    else:
        r = [f"v_lshrrev_b32 v{t0}, 2, v{vLANE}", f"v_and_b32 v{t1}, 3, v{vLANE}", f"v_lshlrev_b32 v{t1}, 4, v{t1}",
             f"v_mul_u32_u24 v{t0}, 3072, v{t0}", f"v_add_u32 v{vD[0]}, v{t0}, v{t1}"]
        rows = 16
    for p in range(1, 4):
        r.append(f"v_add_u32 v{vD[p]}, {p*(rows*3072 - 1024)}, v{vD[0]}")
    if kind == "B": r.append(f"v_add_u32 v{vRB2}, 0x10000, v{vRB}")
    return r

def dma_M(m):
    slot = m % 4 if m < 10 else BSLOT[m]
    vD = globals()["vD"] if m < 10 else vDB
    if m < 10:
        so = [f"s_mul_i32 s{sD0}, s{sKU[m >> 1]}, 1536", f"s_add_u32 s{sD0}, s{sD0}, s{sMOFF}"]
        if m & 1: so.append(f"s_add_u32 s{sD0}, s{sD0}, {64*3072}")
    else:
        so = [f"s_mul_i32 s{sD0}, s{sKU[m - 10]}, 1536", f"s_add_u32 s{sD0}, s{sD0}, s{sMOFFB}"]
    if m >= 10:
        r = []
        for p in range(4):
            r += [f"s_add_u32 m0, s{sM0A}, {slot*16384}"]
            r += [f"s_lshl_b32 s{sD2}, s{sKU[m - 10]}, 6", f"s_add_u32 s{sD2}, s{sD2}, s{sMOFFB}"] if p == 0 else ["s_nop 0"]
            r.append(I(f"buffer_load_dwordx4 v{vL16}, s[{sWS}:{sWS+3}], s{sD2} offen offset:{p*1024} sc1 lds", tok=f"M{m}"))
        return r
    r = [f"s_add_u32 m0, s{sM0A}, {slot*16384}"] + so
    for p in range(4):
        r.append(I(f"buffer_load_dwordx4 v{vD[p]}, s[{sWM}:{sWM+3}], s{sD0} offen offset:{p*1024} {opt.w_flags} lds", tok=f"M{m}"))
    return r

def w13_touch_addr():
    a, b = vT[5], vT[6]
    return [f"v_lshrrev_b32 v{a}, 1, v{vLANE}", f"v_mul_u32_u24 v{a}, 3072, v{a}", f"v_and_b32 v{b}, 1, v{vLANE}", f"v_lshl_add_u32 v{a}, v{b}, 7, v{a}",
            f"v_accvgpr_write_b32 a238, v{a}", f"v_mov_b32 v{b}, {OOB}", f"v_cmp_gt_u32 vcc, 16, v{vLANE}", f"v_cndmask_b32 v{a}, v{b}, v{a}, vcc",
            f"v_accvgpr_write_b32 a239, v{a}",
            f"s_and_b32 s{sT2}, s{sC}, 7", f"s_lshl_b32 s{sT2}, s{sT2}, 1", f"s_lshr_b32 s{sT3}, s{sW}, 1", f"s_add_u32 s{sT2}, s{sT2}, s{sT3}",
            f"s_mul_i32 s{sT2}, s{sT2}, {40*3072}", f"s_mul_i32 s{sT3}, s{sG}, 192", f"s_and_b32 s{sT3}, s{sT3}, 0xffffff80", f"s_add_u32 s{sD2}, s{sT2}, s{sT3}"]
def w13_touch():
    a = I(f"buffer_load_dword a228, v{vFLAG}, s[{sWM}:{sWM+3}], s{sD2} offen", tok="TW"); a.lines = 64
    b = I(f"buffer_load_dword a228, v{vFLAG}, s[{sWM}:{sWM+3}], s{sD2} offen", tok="TW"); b.lines = 16
    return [[f"v_accvgpr_read_b32 v{vFLAG}, a238", a], [f"v_accvgpr_read_b32 v{vFLAG}, a239", f"s_add_u32 s{sD2}, s{sD2}, {32*3072}", b]]

def delay(tag, mod, val, ticks):
    if not opt.delay: return []
    return ["@raw_begin", f"s_and_b32 s{sD0}, s2, {mod}", f"s_cmp_eq_u32 s{sD0}, {val}", f"s_cbranch_scc0 L_dl{tag}",
            f"s_memrealtime s[{sSTAMP}:{sSTAMP+1}]", "s_waitcnt lgkmcnt(0)", f"s_mov_b32 s{sD1}, s{sSTAMP}", f"L_dw{tag}:",
            f"s_memrealtime s[{sSTAMP}:{sSTAMP+1}]", "s_waitcnt lgkmcnt(0)", f"s_sub_u32 s{sD0}, s{sSTAMP}, s{sD1}",
            f"s_cmp_lt_u32 s{sD0}, {ticks*opt.delay}", f"s_cbranch_scc1 L_dw{tag}", f"L_dl{tag}:", "@raw_end"]

def skew(tag):
    if not opt.skew: return []
    return [f"s_bitcmp1_b32 s{sW}, 0", f"s_cbranch_scc1 L_sk{tag}a", "s_nop 0", f"L_sk{tag}a:", f"s_bitcmp1_b32 s{sW}, 1", f"s_cbranch_scc1 L_sk{tag}b", "s_nop 1", f"L_sk{tag}b:"]

def mlp_read_addr():
    G, r_, c, t, u = vT[19], vT[20], vT[21], vT[22], vT[23]
    return [f"v_lshrrev_b32 v{G}, 4, v{vLANE}", f"v_bfe_u32 v{r_}, v{vLANE}, 2, 2", f"v_and_b32 v{c}, 3, v{vLANE}",
         f"v_lshrrev_b32 v{t}, 1, v{G}", f"v_lshlrev_b32 v{t}, 11, v{t}", f"v_lshl_add_u32 v{t}, v{r_}, 7, v{t}",
         f"v_and_b32 v{u}, 1, v{c}", f"v_lshl_add_u32 v{t}, v{u}, 3, v{t}",
         f"v_and_b32 v{u}, 1, v{G}", f"v_lshlrev_b32 v{u}, 1, v{u}", f"v_lshrrev_b32 v{vRA[1]}, 1, v{c}", f"v_add_u32 v{u}, v{u}, v{vRA[1]}",
         f"v_lshrrev_b32 v{vRA[1]}, 1, v{r_}", f"v_lshlrev_b32 v{vRA[1]}, 2, v{vRA[1]}", f"v_xor_b32 v{u}, v{u}, v{vRA[1]}",
         f"v_lshl_add_u32 v{vRA[0]}, v{u}, 4, v{t}", f"v_xor_b32 v{vRA[1]}, 64, v{vRA[0]}",
         f"v_lshrrev_b32 v{t}, 1, v{G}", f"v_lshlrev_b32 v{t}, 10, v{t}", f"v_lshl_add_u32 v{t}, v{r_}, 6, v{t}",
         f"v_and_b32 v{u}, 1, v{G}", f"v_lshl_add_u32 v{t}, v{u}, 5, v{t}", f"v_lshl_add_u32 v{vRB}, v{c}, 3, v{t}",
         f"v_lshlrev_b32 v{u}, 10, v{u}", f"v_lshrrev_b32 v{t}, 1, v{G}", f"v_lshl_add_u32 v{u}, v{t}, 8, v{u}",
         f"v_and_b32 v{t}, 15, v{vLANE}", f"v_lshl_add_u32 v{vHH}, v{t}, 4, v{u}"]

def relayout_issue():
    u, t0, t1, t2 = sT2, vT[5], vT[6], vT[7]
    vo = vT[0:5]; vx = [72, 73, 74]
    r = [f"s_mov_b32 s{sRL+3}, 0x20000", f"s_add_u32 s{sRLM}, s{sM0U}, {L_RL}", f"s_mov_b32 s{sRLT}, 0",
         f"s_lshl_b32 s{u}, s{sW}, 5", f"s_add_u32 s{u}, s{u}, s{sRT}",
         f"s_mul_i32 s{sT3}, s{sN}, 88", f"s_add_u32 s{sT3}, s{sT3}, s{u}", f"s_mul_i32 s{sT3}, s{sT3}, 5120", f"s_add_u32 s{sT3}, s{sT3}, {WS_W2P}",
         f"s_cmp_lt_u32 s{u}, 88", f"s_cselect_b32 s{sRLST}, s{sT3}, {OOB}",
         f"s_cmp_lt_u32 s{u}, 40", "@arm", "s_cbranch_scc0 L_rlw",
         f"s_mov_b32 s{sRLT}, 1",
         f"s_cmp_lt_u32 s{u}, 20", f"s_cselect_b32 s{sRL}, s{pCRE}, s{pCIM}", f"s_cselect_b32 s{sRL+1}, s{pCRE+1}, s{pCIM+1}",
         f"s_cselect_b32 s{sT3}, 0, 20", f"s_sub_u32 s{sT3}, s{u}, s{sT3}", f"s_lshl_b32 s{sT3}, s{sT3}, 6",
         f"s_mul_i32 s{sT4}, s{sN}, {80*1280}", f"s_add_u32 s{sRLOFF}, s{sT3}, s{sT4}",
         f"s_mov_b32 s{sRL+2}, {640*1280}",
         f"v_lshrrev_b32 v{t0}, 2, v{vLANE}", f"v_and_b32 v{t1}, 3, v{vLANE}", f"v_lshlrev_b32 v{t1}, 4, v{t1}",
         f"v_mul_u32_u24 v{t0}, 1280, v{t0}", f"v_add_u32 v{vo[0]}, v{t0}, v{t1}"]
    for e in range(1, 5): r.append(f"v_add_u32 v{vo[e]}, {e*16*1280}, v{vo[0]}")
    r += ["s_branch L_rlj", "@else", "L_rlw:", f"s_cmp_eq_u32 s{sW}, 3", "s_cbranch_scc1 L_rl3",
         f"s_mov_b32 s{sRL}, s{pW2}", f"s_mov_b32 s{sRL+1}, s{pW2+1}",
         f"s_cmp_lt_u32 s{u}, 88", f"s_cselect_b32 s{sRL+2}, {1536*1280}, 0",
         f"s_sub_u32 s{sT3}, s{u}, 40", f"s_mul_i32 s{sT3}, s{sT3}, {32*1280}", f"s_mul_i32 s{sT4}, s{sN}, 160", f"s_add_u32 s{sRLOFF}, s{sT3}, s{sT4}",
         f"s_mov_b32 s{sT4}, 6554"]
    for p in range(5):
        r += [f"v_add_u32 v{t0}, {64*p}, v{vLANE}", f"v_mul_u32_u24 v{t1}, s{sT4}, v{t0}", f"v_lshrrev_b32 v{t1}, 16, v{t1}",
              f"v_mul_u32_u24 v{t2}, 10, v{t1}", f"v_sub_u32 v{t2}, v{t0}, v{t2}", f"v_lshlrev_b32 v{t2}, 4, v{t2}",
              f"v_mul_u32_u24 v{t1}, 1280, v{t1}", f"v_add_u32 v{vo[p]}, v{t1}, v{t2}"]
    r += ["s_branch L_rlj", "L_rl3:",
         f"s_mov_b32 s{sRLT}, 2", f"s_add_u32 s{sRLM}, s{sRLM}, 3072",
         f"s_bitcmp1_b32 s{sG}, 0", f"s_cselect_b32 s{sRL}, s{pW3}, s{pW1}", f"s_cselect_b32 s{sRL+1}, s{pW3+1}, s{pW1+1}",
         f"s_mov_b32 s{sRL+2}, {640*3072}",
         f"s_lshr_b32 s{sT3}, s{sG}, 1", f"s_mul_i32 s{sRLOFF}, s{sT3}, 384", f"s_add_u32 s{sRLOFF}, s{sRLOFF}, 128",
         f"v_lshrrev_b32 v{t0}, 3, v{vLANE}", f"v_and_b32 v{t1}, 7, v{vLANE}", f"v_and_b32 v{t2}, 2, v{t0}", f"v_lshlrev_b32 v{t2}, 1, v{t2}",
         f"v_xor_b32 v{t1}, v{t1}, v{t2}", f"v_lshlrev_b32 v{t1}, 4, v{t1}", f"v_mul_u32_u24 v{t0}, 3072, v{t0}", f"v_add_u32 v{t0}, v{t0}, v{t1}",
         f"s_mul_i32 s{sT4}, s{sC}, {32*3072}", f"v_add_u32 v{vx[0]}, s{sT4}, v{t0}",
         f"v_add_u32 v{vx[1]}, {8*3072}, v{vx[0]}", f"v_add_u32 v{vx[2]}, {16*3072}, v{vx[0]}", f"v_add_u32 v{vo[0]}, {24*3072}, v{vx[0]}",
         f"s_cmp_lt_u32 s{sC}, 4", f"s_mov_b32 s{sT4}, {16*32*3072}", f"s_cselect_b32 s{sT4}, s{sT4}, {OOB}"]
    for p in range(4): r += [f"v_add_u32 v{vo[1+p]}, s{sT4}, v{vx[0]}", f"v_add_u32 v{vo[1+p]}, {p*8*3072}, v{vo[1+p]}"]
    r += [f"s_mul_i32 s{sT3}, s{sT3}, {2*81920}", f"s_lshr_b32 s{sT4}, s{sC}, 1", f"s_lshl_b32 s{sT4}, s{sT4}, 13", f"s_add_u32 s{sT3}, s{sT3}, s{sT4}",
          f"s_and_b32 s{sT4}, s{sG}, 1", f"s_lshl_b32 s{sT4}, s{sT4}, 12", f"s_add_u32 s{sT3}, s{sT3}, s{sT4}",
          f"s_and_b32 s{sT4}, s{sC}, 1", f"s_lshl_b32 s{sT4}, s{sT4}, 11", f"s_add_u32 s{sT3}, s{sT3}, s{sT4}", f"s_add_u32 s{sRLST}, s{sT3}, {WS_W13B}",
          f"s_add_u32 s{sT3}, s{sRLST}, {8*8192}", f"s_cmp_lt_u32 s{sC}, 4", f"s_cselect_b32 s{sT3}, s{sT3}, {OOB}"]
    for k in range(8):
        r.append(f"s_add_u32 s{sRS[k]}, s{sRLST if k < 4 else sT3}, {((k >> 1) & 1)*81920 + (k & 1)*1024}")
    r += [f"v_accvgpr_write_b32 a{240+p}, v{vx[p]}" for p in range(3)]
    r += ["s_branch L_rlk", "L_rlj:"]
    r += [f"s_add_u32 s{sRS[3+e]}, s{sRLST}, {e*1024}" for e in range(5)]
    r += ["L_rlk:", "@endarm", f"s_and_b32 s{sRL+1}, s{sRL+1}, 0xffff"]
    r += [f"v_accvgpr_write_b32 a{232+p}, v{vo[p]}" for p in range(5)]
    return r
def relayout_dma():
    if "r" in opt.skip: return []
    fl = 'nt' if opt.rl_nt else ''
    x = ["@raw_begin", f"s_cmp_eq_u32 s{sRLT}, 2", "s_cbranch_scc0 L_rdx"]
    for p in range(3):
        x += [f"s_add_u32 m0, s{sRLM}, {(p - 3)*1024}", f"v_accvgpr_read_b32 v{vFLAG}, a{240+p}",
              f"buffer_load_dwordx4 v{vFLAG}, s[{sRL}:{sRL+3}], s{sRLOFF} offen {fl} lds"]
    x += ["L_rdx:", "@raw_end"]
    r = []
    for p in range(5):
        r.append((x if p == 0 else []) + [f"s_add_u32 m0, s{sRLM}, {p*1024}", f"v_accvgpr_read_b32 v{vFLAG}, a{232+p}",
                  I(f"buffer_load_dwordx4 v{vFLAG}, s[{sRL}:{sRL+3}], s{sRLOFF} offen {fl} lds", tok="RL")])
    return r

def relayout_raddr():
    t0, t1, t2 = vT[5], vT[6], vT[7]
    return [f"v_and_b32 v{t0}, 15, v{vLANE}", f"v_lshrrev_b32 v{t1}, 4, v{vLANE}", f"v_lshlrev_b32 v{t1}, 4, v{t1}", f"v_lshl_add_u32 v{t0}, v{t0}, 6, v{t1}",
            f"v_lshrrev_b32 v{t1}, 2, v{vLANE}", f"v_and_b32 v{t2}, 8, v{t1}", f"v_add_u32 v{t1}, v{t1}, v{t2}", f"v_mul_u32_u24 v{t1}, 160, v{t1}",
            f"v_and_b32 v{t2}, 3, v{vLANE}", f"v_lshl_add_u32 v{t1}, v{t2}, 3, v{t1}",
            f"s_cmp_eq_u32 s{sRLT}, 1", f"s_cselect_b64 s[{sEX0}:{sEX0+1}], -1, 0", f"s_cmp_eq_u32 s{sRLT}, 2", f"s_cselect_b64 s[{sEX2}:{sEX2+1}], -1, 0",
            f"s_cselect_b32 s{sT3}, 3072, 0", f"s_sub_u32 s{sT3}, s{sRLM}, s{sT3}",
            f"v_cndmask_b32 v{t0}, v{t1}, v{t0}, s[{sEX0}:{sEX0+1}]", f"v_cndmask_b32 v{t0}, v{t0}, v{vRA[0]}, s[{sEX2}:{sEX2+1}]",
            f"v_add_u32 v{t0}, s{sT3}, v{t0}", f"v_accvgpr_write_b32 a237, v{t0}"]
def relayout_finish():
    if "r" in opt.skip: return []
    t0, t1 = vT[0], vT[1]
    def frag3(k, dst):
        return [f"ds_read_b64_tr_b16 {ar(dst + 2*jj, 2)}, v{t1 if (k >> 1) & 1 else t0} offset:{(k >> 2)*4096 + (k & 1)*1024 + jj*512}" for jj in range(2)]
    r = [f"v_accvgpr_read_b32 v{t0}, a237", "@waitvm RL", f"v_xor_b32 v{t1}, 64, v{t0}", f"s_cmp_eq_u32 s{sRLT}, 1", "s_cbranch_scc0 L_rfw"]
    for e in range(5):
        for h in range(2): r.append(f"ds_read_b64 {ar(aRL+4*e+2*h, 2)}, v{t0} offset:{e*1024 + 8*h}")
    r += ["@raw_begin", "s_branch L_rfj", "L_rfw:", f"s_cmp_eq_u32 s{sRLT}, 2", "s_cbranch_scc1 L_rf3"]
    for e in range(5):
        for jj in range(2): r.append(f"ds_read_b64_tr_b16 {ar(aRL+4*e+2*jj, 2)}, v{t0} offset:{jj*1280 + e*32}")
    r += ["s_branch L_rfj", "L_rf3:"]
    for k in range(3): r += frag3(k, 244 + 4*k)
    for k in range(3, 8): r += frag3(k, aRL + 4*(k - 3))
    r += ["@raw_end", "L_rfj:"]
    def st(reg, k): return f"buffer_store_dwordx4 {ar(reg)}, v{vL16}, s[{sWS}:{sWS+3}], s{sRS[k]} offen sc1"
    r.append(I(st(aRL, 3), tok="RLS"))
    r += [f"s_cmp_eq_u32 s{sRLT}, 2", "s_cbranch_scc0 L_rsx", "@raw_begin"] + [st(244 + 4*k, k) for k in range(3)] + ["@raw_end", "L_rsx:"]
    for e in range(1, 5): r.append(I(st(aRL + 4*e, 3 + e), tok="RLS"))
    return r

def flag_store(base, sline, sidx):
    return [f"s_lshl_b32 s{sD0}, s{sline}, 7", f"s_lshl_b32 s{sD1}, s{sidx}, 2", f"s_add_u32 s{sD0}, s{sD0}, s{sD1}", f"s_add_u32 s{sD0}, s{sD0}, {base}",
            f"s_cmp_eq_u32 s{sW}, 0", f"s_cselect_b32 s{sD0}, s{sD0}, {OOB}",
            f"buffer_store_dword v{vNON}, off, s[{sWS}:{sWS+3}], s{sD0} sc1"]
def flag13_store():
    return [f"s_lshr_b32 s{sD0}, s{sG}, 1", f"s_lshl_b32 s{sD0}, s{sD0}, 5", f"s_lshl_b32 s{sD1}, s{sC}, 1", f"s_add_u32 s{sD0}, s{sD0}, s{sD1}",
            f"s_and_b32 s{sD1}, s{sG}, 1", f"s_add_u32 s{sD0}, s{sD0}, s{sD1}", f"s_lshl_b32 s{sD0}, s{sD0}, 2", f"s_add_u32 s{sD0}, s{sD0}, {WS_FL13}",
            f"s_cmp_eq_u32 s{sW}, 0", f"s_cselect_b32 s{sD0}, s{sD0}, {OOB}",
            f"buffer_store_dword v{vNON}, off, s[{sWS}:{sWS+3}], s{sD0} sc1"]
def flag_load(base, sline, shift, mask, st=None):
    st = sD0 if st is None else st
    if base == WS_FLW:
        return [f"s_lshr_b32 s{st}, s{sG}, 1", f"s_lshl_b32 s{st}, s{st}, 7", f"s_add_u32 s{st}, s{st}, {WS_FL13 - WS_FLW - 128}", f"s_lshl_b32 s{sD1}, s{sN}, 7",
                f"s_sub_u32 s{st}, s{st}, s{sD1}", f"v_lshrrev_b32 v{vFLAG}, 5, v{vLANE}", f"v_mul_lo_u32 v{vFLAG}, v{vFLAG}, s{st}",
                f"v_lshl_add_u32 v{vFLAG}, v{vLANE}, 2, v{vFLAG}", f"s_add_u32 s{sD1}, s{sD1}, {WS_FLW}",
                f"buffer_load_dword v{vFLAG}, v{vFLAG}, s[{sWS}:{sWS+3}], s{sD1} offen sc1"]
    return [f"s_lshr_b32 s{st}, s{sline}, {shift}", f"s_lshl_b32 s{st}, s{st}, 7", f"s_add_u32 s{st}, s{st}, {base}",
            f"v_and_b32 v{vFLAG}, {mask}, v{vLANE}", f"v_lshlrev_b32 v{vFLAG}, 2, v{vFLAG}",
            f"buffer_load_dword v{vFLAG}, v{vFLAG}, s[{sWS}:{sWS+3}], s{st} offen sc1"]
def flag_check(base, sline, shift, mask):
    if "f" in opt.skip: return [f"v_mov_b32 v{vFLAG}, 0"]
    return poll(flag_load(base, sline, shift, mask, sD0), [f"v_cmp_ne_u32 vcc, s{sNONCE}, v{vFLAG}"])

def scan_addr():
    col, q, ch, t = vT[19], vT[20], vT[21], vT[22]
    return [f"s_mul_i32 s{sT2}, s{sW}, 6144", f"s_add_u32 s{sT2}, s{sT2}, {L_PRIV}",
            f"v_and_b32 v{col}, 15, v{vLANE}", f"v_lshrrev_b32 v{q}, 4, v{vLANE}",
            f"v_lshl_add_u32 v{vCOLR}, v{col}, 4, s{sT2}",
            f"v_lshl_add_u32 v{vEW}, v{q}, 2, v{vCOLR}",
            f"v_min_u32 v{ch}, 39, v{vLANE}", f"v_lshlrev_b32 v{vSO}, 4, v{ch}",
            f"v_lshrrev_b32 v{t}, 3, v{ch}", f"v_lshlrev_b32 v{t}, 3, v{t}", f"v_add_u32 v{t}, v{t}, v{ch}",
            f"v_lshl_add_u32 v{vER}, v{t}, 4, s{sT2}",
            f"v_add_u32 v{vCH}, s{sT2}, v{vL16}",
            f"s_lshl_b32 s{sT3}, s{sW}, 9", f"s_add_u32 s{sT3}, s{sT3}, {L_TT}", f"v_lshl_add_u32 v{vTT}, v{vLANE}, 3, s{sT3}",
            f"v_lshlrev_b32 v{vLB}, 5, v{vLANE}", f"v_add_u32 v{vLB}, {L_LB}, v{vLB}",
            f"s_add_u32 s{sT3}, s{sM0U}, {L_RL}",
            f"v_lshlrev_b32 v{vTW}, 5, v{col}", f"v_lshl_add_u32 v{vTW}, v{q}, 3, v{vTW}", f"v_add_u32 v{vTW}, s{sT3}, v{vTW}",
            f"v_bfe_u32 v{t}, v{vLANE}, 2, 2", f"v_lshlrev_b32 v{t}, 5, v{t}", f"v_lshl_add_u32 v{t}, v{q}, 8, v{t}",
            f"v_and_b32 v{ch}, 3, v{vLANE}", f"v_lshl_add_u32 v{t}, v{ch}, 3, v{t}", f"v_add_u32 v{vTR}, s{sT3}, v{t}",
            f"v_lshrrev_b32 v{t}, 1, v{q}", f"v_lshlrev_b32 v{t}, 10, v{t}", f"v_lshl_add_u32 v{vHST}, v{col}, 4, v{t}",
            f"v_and_b32 v{t}, 1, v{q}", f"v_mul_u32_u24 v{t}, {20*4096}, v{t}", f"v_add_u32 v{vHST}, v{vHST}, v{t}"]

def const_park():
    src = [cAR, cAI, cKR, cKI] + list(range(60, 70))
    return [f"v_accvgpr_write_b32 a{200+k}, v{s}" for k, s in enumerate(src)]
def const_tables():
    t = vT[0:8]
    r = [f"v_accvgpr_read_b32 v{t[0]}, a200", f"v_accvgpr_read_b32 v{t[1]}, a201", f"v_accvgpr_read_b32 v{t[2]}, a202", f"v_accvgpr_read_b32 v{t[3]}, a203",
         f"v_sub_f32 v{t[3]}, 0, v{t[3]}",
         f"v_mov_b32 v{t[4]}, v{t[0]}", f"v_sub_f32 v{t[5]}, 0, v{t[1]}", f"v_sub_f32 v{t[6]}, 0, v{t[2]}", f"v_mov_b32 v{t[7]}, v{t[3]}",
         f"ds_write_b128 v{vER}, {vr(t[0])} offset:{PV_COL}", f"ds_write_b128 v{vER}, {vr(t[4])} offset:{PV_COL+128}",
         f"ds_write_b128 v{vCH}, {ar(204)} offset:{PV_CH}", f"ds_write_b128 v{vCH}, {ar(208)} offset:{PV_CH+1024}",
         f"ds_write_b64 v{vCH}, {ar(212, 2)} offset:{PV_CH+2048}",
         f"v_mov_b32 v{t[0]}, 0", f"v_mov_b32 v{t[1]}, 0",
         f"s_min_u32 s{sT2}, s{sW}, 2", f"s_lshl_b32 s{sT2}, s{sT2}, 9", f"s_add_u32 s{sT2}, s{sT2}, {L_TT}",
         f"v_lshl_add_u32 v{t[2]}, v{vLANE}, 3, s{sT2}", f"ds_write_b64 v{t[2]}, {vr(t[0], 2)}"]
    return r

def ureg(cf, tau): return U(cf, tau >> 2) + (tau & 3)
DPP = "row_ror:8 row_mask:0xf bank_mask:0xf"
def scan_P12():
    C = vT[0:20]
    r = [I(f"ds_read_b128 {vr(C[4*cf])}, v{vCOLR} offset:{PV_COL + cf*256}", tok="colr") for cf in range(5)]
    r.append("@gap 1")
    t = vT[20:24]
    k = 0
    for tau in range(8):
        for cf in range(5):
            u = ureg(cf, tau); tt = t[k % 4]; k += 1
            r += [f"v_mul_f32_dpp v{tt}, v{u}, v{C[4*cf+3]} {DPP}", f"v_fma_f32 v{u}, v{C[4*cf+2]}, v{u}, v{tt}"]
    for tau in range(1, 8):
        src = [(ureg(cf, 0) if tau == 1 else C[4*cf + 2 + (tau & 1)]) for cf in range(5)]
        dst = [C[4*cf + 2 + ((tau + 1) & 1)] for cf in range(5)]
        for cf in range(5): r.append(f"v_fma_f32 v{dst[cf]}, v{C[4*cf]}, v{src[cf]}, v{ureg(cf, tau)}")
        for cf in range(5): r.append(f"v_fmac_f32_dpp v{dst[cf]}, v{src[cf]}, v{C[4*cf+1]} {DPP}")
    for cf in range(5): r.append(f"ds_write_b32 v{vEW}, v{C[4*cf+2]} offset:{PV_E + cf*256}")
    er, ei, a8 = vT[0], vT[4], vT[8]
    r += [f"ds_read_b128 {vr(a8)}, v{vCH} offset:{PV_CH}",
          f"ds_read_b128 {vr(er)}, v{vER} offset:{PV_E}", f"ds_read_b128 {vr(ei)}, v{vER} offset:{PV_E+128}", "@gap 2"]
    g0, g1 = vT[12], vT[14]
    r += chorner2(g0, g0+1, er, ei, a8, a8+1, er+1, ei+1)
    r += chorner2(g1, g1+1, g0, g0+1, a8, a8+1, er+2, ei+2)
    r += chorner2(g0, g0+1, g1, g1+1, a8, a8+1, er+3, ei+3)
    r += [f"ds_write_b64 v{vTT}, {vr(g0, 2)} offset:{3*512}"]
    return r

def scan_P3():
    a32 = vT[8]; T = vT[0:8]
    r = [f"ds_read_b128 {vr(a32)}, v{vCH} offset:{PV_CH}"]
    for k in range(4): r.append(f"ds_read_b64 {vr(T[2*k], 2)}, v{vTT} offset:{k*512}")
    r.append("@gap 2")
    m = a32 + 2
    g = vT[12]
    r += chorner2(g, g+1, T[0], T[1], m, m+1, T[2], T[3])
    r += chorner2(vWP0, vWP1, g, g+1, m, m+1, T[4], T[5])
    r += chorner2(g, g+1, vWP0, vWP1, m, m+1, T[6], T[7])
    r += [f"v_mov_b32 v{g+2}, s{sNONCE}", f"v_mov_b32 v{g+3}, s{sNONCE}",
          f"buffer_store_dwordx4 {vr(g)}, v{vSO}, s[{sWS}:{sWS+3}], s{sSST} offen sc1"]
    return r

def lb_loads():
    return [f"buffer_load_dwordx4 {ar(aS+4*jj)}, v{vSO}, s[{sWS}:{sWS+3}], s{sl} offen sc1" for jj, sl in enumerate((sLB0, sLB1, sLB2, sLB3))]
def scan_P4():
    t = vT[0:8]
    chk = []
    for jj, sl in enumerate((sLB0, sLB1, sLB2, sLB3)):
        d = t[2] if jj == 0 else t[0]
        chk += [f"s_cmp_lt_u32 s{sl}, {OOB}", f"s_cselect_b32 s{sT2}, s{sNONCE}, 0", f"v_accvgpr_read_b32 v{d}, a{aS+4*jj+2}",
                f"v_xor_b32 v{d}, s{sT2}, v{d}"]
        if jj: chk += [f"v_or_b32 v{t[2]}, v{t[2]}, v{t[0]}"]
    chk += [f"v_cmp_ne_u32 vcc, 0, v{t[2]}"]
    c = vT[8]
    r = [f"ds_read_b128 {vr(c)}, v{vCH} offset:{PV_CH+1024}", f"ds_read_b64 {vr(vT[12], 2)}, v{vCH} offset:{PV_CH+2048}"]
    if "f" not in opt.skip: r += poll(lb_loads(), [i.text for i in insert_nops(II(chk))])
    for jj in range(4):
        r += [f"v_accvgpr_read_b32 v{t[2*jj]}, a{aS+4*jj}", f"v_accvgpr_read_b32 v{t[2*jj+1]}, a{aS+4*jj+1}"]
    m = c + 2; g0, g1 = vT[14], vT[16]
    r += chorner2(g0, g0+1, t[0], t[1], m, m+1, t[2], t[3])
    r += chorner2(g1, g1+1, g0, g0+1, m, m+1, t[4], t[5])
    r += chorner2(g0, g0+1, g1, g1+1, m, m+1, t[6], t[7])
    r += cmul(g1, g1+1, g0, g0+1, vT[12], vT[13], vT[18])
    r += [f"s_lshl_b32 s{sT2}, s{sW}, 3", f"v_add_u32 v{vT[18]}, s{sT2}, v{vLB}", f"ds_write_b64 v{vT[18]}, {vr(g1, 2)}"]
    return r

def scan_P56():
    lb = vT[0]; er, ei = vT[8], vT[12]; c8, c32w = vT[16], vT[20]
    r = [f"ds_read_b128 {vr(lb)}, v{vLB}", f"ds_read_b128 {vr(lb+4)}, v{vLB} offset:16",
         f"ds_read_b64 {vr(c32w, 2)}, v{vCH} offset:{PV_CH+1024}", f"ds_read_b128 {vr(c8)}, v{vCH} offset:{PV_CH}",
         f"ds_read_b128 {vr(er)}, v{vER} offset:{PV_E}", f"ds_read_b128 {vr(ei)}, v{vER} offset:{PV_E+128}", "@gap 2",
         f"v_add_f32 v{lb}, v{lb}, v{lb+2}", f"v_add_f32 v{lb+1}, v{lb+1}, v{lb+3}",
         f"v_add_f32 v{lb+4}, v{lb+4}, v{lb+6}", f"v_add_f32 v{lb+5}, v{lb+5}, v{lb+7}",
         f"v_add_f32 v{lb}, v{lb}, v{lb+4}", f"v_add_f32 v{lb+1}, v{lb+1}, v{lb+5}"]
    q0, q1 = vT[4], vT[20]
    tmp = vT[2]
    r += chorner2(tmp, tmp+1, lb, lb+1, c32w, c32w+1, vWP0, vWP1)
    r += [f"v_mov_b32 v{q0}, v{tmp}", f"v_mov_b32 v{q1}, v{tmp+1}"]
    for k in range(3):
        r += chorner2(q0+k+1, q1+k+1, q0+k, q1+k, c8, c8+1, er+k, ei+k)
    r += [f"ds_write_b128 v{vER}, {vr(q0)} offset:{PV_E}", f"ds_write_b128 v{vER}, {vr(q1)} offset:{PV_E+128}"]
    C = vT[0:10]; Z = vT[10:15]
    for cf in range(5): r.append(f"ds_read_b32 v{Z[cf]}, v{vEW} offset:{PV_E + cf*256}")
    for cf in range(5): r.append(f"ds_read_b64 {vr(C[2*cf], 2)}, v{vCOLR} offset:{PV_COL + cf*256}")
    r.append("@gap 2")
    for tau in range(8):
        src = [(Z[cf] if tau == 0 else ureg(cf, tau-1)) for cf in range(5)]
        for cf in range(5): r.append(f"v_fma_f32 v{ureg(cf, tau)}, v{C[2*cf]}, v{src[cf]}, v{ureg(cf, tau)}")
        for cf in range(5): r.append(f"v_fmac_f32_dpp v{ureg(cf, tau)}, v{src[cf]}, v{C[2*cf+1]} {DPP}")
    for cf in range(5):
        for f in range(2):
            t = vT[2*(cf*2+f)]; u = U(cf, f)
            r += [f"v_cvt_pk_bf16_f32 v{t}, v{u}, v{u+1}", f"v_cvt_pk_bf16_f32 v{t+1}, v{u+2}, v{u+3}"]
    for k in range(10): r.append(f"ds_write_b64 v{vTW}, {vr(vT[2*k], 2)} offset:{k*512}")
    for cf in range(5):
        for jj in range(2):
            r.append(f"ds_read_b64_tr_b16 {vr(56 + 4*cf + 2*jj, 2)}, v{vTR} offset:{cf*1024 + jj*128}")
    for cf in range(5):
        r.append(I(f"buffer_store_dwordx4 {vr(56 + 4*cf)}, v{vHST}, s[{sWS}:{sWS+3}], s{sHO[cf]} offen sc1", tok="HST"))
    return r

def swiglu(acc, h2s, sks, tokname, packed=False):
    r = []
    k = 0
    for h2 in h2s:
        for z in range(2):
            G = vT[0:8]; Uu = vT[8:16]; T = vT[16:24]
            for j in range(8):
                r += [f"v_accvgpr_read_b32 v{G[j]}, a{acc(0, h2) + 8*z + j}", f"v_accvgpr_read_b32 v{Uu[j]}, a{acc(1, h2) + 8*z + j}"]
            if packed:
                for j in range(0, 8, 2): r.append(f"v_pk_mul_f32 {vr(T[j], 2)}, {vr(G[j], 2)}, s[{sEX0}:{sEX0+1}]")
                for j in range(8):
                    r.append(f"v_exp_f32 v{T[j]}, v{T[j]}")
                for j in range(0, 8, 2): r.append(f"v_pk_mul_f32 {vr(G[j], 2)}, {vr(G[j], 2)}, {vr(Uu[j], 2)}")
                for j in range(0, 8, 2): r.append(f"v_pk_add_f32 {vr(T[j], 2)}, {vr(T[j], 2)}, s[{sEX2}:{sEX2+1}]")
                for j in range(8): r.append(f"v_rcp_f32 v{T[j]}, v{T[j]}")
                for j in range(0, 8, 2): r.append(f"v_pk_mul_f32 {vr(G[j], 2)}, {vr(G[j], 2)}, {vr(T[j], 2)}")
            else:
                for j in range(8): r.append(f"v_mul_f32 v{T[j]}, {NLOG2E}, v{G[j]}")
                for j in range(8): r += [f"v_exp_f32 v{T[j]}, v{T[j]}", f"v_mul_f32 v{G[j]}, v{G[j]}, v{Uu[j]}"]
                for j in range(8): r.append(f"v_add_f32 v{T[j]}, 1.0, v{T[j]}")
                for j in range(8): r.append(f"v_rcp_f32 v{T[j]}, v{T[j]}")
                for j in range(8): r.append(f"v_mul_f32 v{G[j]}, v{G[j]}, v{T[j]}")
            o = Uu[0] if k % 2 == 0 else Uu[4]; k += 1
            for j in range(4): r.append(f"v_cvt_pk_bf16_f32 v{o+j}, v{G[2*j]}, v{G[2*j+1]}")
            if z == 0: r.append(f"s_add_u32 s{sT2}, s{sks}, {h2*4096}")
            r.append(I(f"buffer_store_dwordx4 {vr(o)}, v{vHH}, s[{sWS}:{sWS+3}], s{sT2} offen offset:{z*512} sc1", tok=tokname))
    return r

def step_reads(blk, s, par):
    r = []
    if blk == "U":
        i, sh2, sh = s // 4, (s >> 1) & 1, s & 1
        off = i*20480 + sh2*10240 - (61440 if i >= 3 else 0)
        for cf in range(5):
            r.append(f"ds_read_b128 {ar(FB(par, cf))}, v{vRU[sh]} offset:{off + cf*1024}")
    elif blk == "A":
        m, sp = s // 2, s & 1
        for hf in range(2):
            for h2 in range(2):
                for mu in range(2):
                    for jj in range(2):
                        r.append(f"ds_read_b64_tr_b16 {ar(FB(par, hf*4+h2*2+mu) + 2*jj, 2)}, v{vRA[h2]} offset:{(m % 4)*16384 + (2*sp+mu)*4096 + hf*1024 + jj*512}")
    else:
        m, sd = 10 + s // 2, s & 1
        for s2 in range(2):
            for hf in range(2):
                for mu in range(2):
                    r.append(f"ds_read_b128 {ar(FB(par, s2*4+hf*2+mu))}, v{vRB2 if BSLOT[m] >= 4 else vL16} offset:{(BSLOT[m] % 4)*16384 + (2*sd+mu)*4096 + (s2*2+hf)*1024}")
    return r

def step_mfma(blk, s, par):
    r = []
    if blk == "U":
        for cf in range(5):
            for f in range(2):
                d = vr(U(cf, f)); c = "0" if s == 0 else d
                r.append(f"v_mfma_f32_16x16x32_bf16 {d}, {vr(X(f, s))}, {ar(FB(par, cf))}, {c}")
    elif blk == "A":
        for hf in range(2):
            for h2 in range(2):
                for mu in range(2):
                    d = ar(ACCA(mu, h2), 16); c = "0" if (s == 0 and hf == 0) else d
                    r.append(f"v_mfma_f32_32x32x16_bf16 {d}, {ar(FB(par, hf*4+h2*2+mu))}, {vr(X(hf, s))}, {c}")
    else:
        for s2 in range(2):
            for hf in range(2):
                for mu in range(2):
                    d = ar(ACCB(mu), 16); c = "0" if (s == 0 and hf == 0 and s2 == 0) else d
                    r.append(f"v_mfma_f32_32x32x16_bf16 {d}, {ar(FB(par, s2*4+hf*2+mu))}, {vr(X(hf, 2*s+s2))}, {c}")
    return r

def swaps(s): return [] if "w" in opt.skip else [f"v_permlane16_swap_b32 v{X(0, s)+k}, v{X(1, s)+k}" for k in range(4)]

def stage_of(blk, s):
    return ("U", s // 4) if blk == "U" else (("M", s // 2) if blk == "A" else ("M", 10 + s // 2))

def cost(i):
    if i.cls in ("pseudo", "label"): return 0
    if i.cls == "trans": return 2
    if i.cls == "vmem": return opt.vmcost
    return 1

PH = [1]
class Feed(list):
    def append(self, i): EM[0].feed(i)

class Queue:
    def __init__(self): self.q = []; self.hold = 0; self.now = 0
    def add(self, lst, deadline):
        if "q" in opt.skip:
            lst = [t for t in II(lst) if t.cls in ("vmem",) or t.op.startswith("s_") or t.cls in ("pseudo", "label") or t.op.startswith("v_cmp") or t.op.startswith("v_readfirst") or t.op.startswith("v_accvgpr_read") and "a18" in t.text + "a19"]
        lst = II(lst)
        if PH[0] == 1 and opt.skip and not any(t.op in ("@arm", "@raw_begin") for t in lst):
            if "D" in opt.skip: lst = [t for t in lst if not t.op.startswith("ds_write")]
            if "R" in opt.skip: lst = [t for t in lst if not t.op.startswith("ds_read")]
            if "V" in opt.skip: lst = [t for t in lst if t.cls not in ("valu", "trans") or t.op.startswith("v_cmp") or t.op.startswith("v_cndmask")]
            if "S" in opt.skip:
                for t in lst:
                    if t.cls == "vmem" and "store" in t.op and t.tok in ("HST", "HHA"): t.text = t.text.replace("offen", "offen").replace("dwordx4", "dword"); t.text = __import__("re").sub(r"v\[(\d+):\d+\]", r"v\1", t.text, 1); t.wide = False
        lst = II(lst)
        now = max(self.now, max([d for t, d in self.q] + [0]) if opt.chainq else 0)
        if not opt.interp or deadline <= now + 1:
            for t in lst: self.q.append((t, deadline))
            return
        pos = 0; P = []; wr = {}; lastw = -99
        for t in lst:
            if t.cls not in ("pseudo", "label"):
                dep = [wr[r] for r in (t.rd | t.wr) if r in wr]
                if dep: pos = max(pos, max(dep) + opt.vlat)
                if t.op.startswith("ds_read") and pos - lastw < opt.vlat // 2: pos = lastw + opt.vlat // 2
                for r in t.wr: wr.pop(r, None)
                if t.cls == "ds":
                    for r in t.wr: wr[r] = pos
                    if t.op.startswith("ds_write"): lastw = pos
            pos += cost(t) + (1 if t.cls == "ds" else 0)
            P.append(pos)
        prev = now
        for t, p in zip(lst, P):
            d = now + int((deadline - now) * p / max(pos, 1))
            if t.cls == "ds" and PH[0] == 1 and d >= 200:
                while d % 8 < opt.span and d < deadline: d += 1
            d = max(d, prev); prev = d
            self.q.append((t, min(d, deadline)))
    def _region(self, out):
        i = self.q[0][0]
        end = "@endarm" if i.op == "@arm" else "@raw_end"
        while True:
            j = self.q.pop(0)[0]; out.append(j)
            if j.cls == "pseudo" and j.op == end: break
        while self.q and self.q[0][0].cls == "label": out.append(self.q.pop(0)[0])
    def need(self, gap):
        best = 0; acc = 0
        for t, d in self.q:
            acc += cost(t)
            left = d - gap + 1
            if left <= 0: best = max(best, acc)
            else: best = max(best, -(-acc // left))
        return best
    def pop(self, n, gap, ds_ok=True):
        out = Feed(); nds = 0; self.now = gap
        n = max(n, self.need(gap)) if (opt.even and not opt.interp) else n
        while self.q and (n > 0 or self.q[0][1] <= gap):
            i = self.q[0][0]
            if i.cls == "pseudo" and i.op == "@gap":
                self.q.pop(0); continue
            if self.q[0][1] > gap:
                if i.cls == "ds" and (not ds_ok or nds >= opt.dsmax): break
                if i.cls == "ds": nds += 1
                look = [i] + ([x for x, d in self.q[1:12] if x.cls == "pseudo"][:1] if i.op.startswith("s_cmp") else [])
                if i.op.startswith("s_cmp"): look += [x for x, d in self.q[1:4]]
                if max(EM[0].stall(x) for x in look) > opt.thr: break
            if i.cls == "pseudo" and i.op in ("@arm", "@raw_begin"):
                self._region(out); n -= 4
                continue
            if i.cls == "branch" or i.op.startswith("s_cmp") or i.op.startswith("s_bitcmp") or i.op.startswith("v_cmp"):
                out.append(self.q.pop(0)[0])
                if self.q and "L_rfw" in self.q[0][0].text:
                    while self.q[0][0].op != "@raw_begin": out.append(self.q.pop(0)[0])
                    n -= 10
                while self.q:
                    k = self.q[0][0]
                    if k.op.startswith("s_cselect") or k.op.startswith("v_cndmask") or k.cls == "branch": out.append(self.q.pop(0)[0])
                    elif k.op in ("@arm", "@raw_begin"): self._region(out); n -= 4
                    else: break
                n -= 1
                continue
            self.q.pop(0); out.append(i)
            n -= cost(i)
        return out
    def flush(self):
        out = [i for i, d in self.q if not (i.cls == "pseudo" and i.op == "@gap")]
        self.q = []; self.hold = 0
        return out

ACC1 = [("a", 4*k) for k in range(20)]
ACC2 = [("v", 96 + 4*k) for k in range(20)]
A_SLOTS = [("a", 80 + 4*k) for k in range(20)]
GA = [("a", 196 + 4*k) for k in range(15)] + [("a", 160 + 4*k) for k in range(5)]
XFREE = [("v", base + 8*d + 4*h) for d in range(10) for base in (96, 176) for h in range(2)]
HI = [("v", 176 + 4*k) for k in range(20)]
N1 = 12
NLDS = 4
def wslot(st, e):
    if st < 4: return GA[st*5 + e]
    if st < 12: return XFREE[(st - 4)*5 + e]
    if st < 16: return HI[(st - 12)*5 + e]
    if st < 20: return GA[(st - 16)*5 + e]
    return HI[(st - 20)*5 + e]
def w_free_after_b(st):
    return -1 if st < 4 else ((st - 4)*5 + 4) // 4
def w_free_after_p(st):
    if st < 16:
        regs = {wslot(st, e) for e in range(5)}
        return max(o for o in range(4, 12) for e in range(5) if wslot(o, e) in regs)
    return st - 16 if st < 20 else st - 8
def rg(t, c=4): return f"{t[0]}[{t[1]}:{t[1]+c-1}]"
vA2 = [3, 4, 5, 6]; vPW = [7, 8, 9]; vPR = 11; vOUT = 13; vXO = 14; vSTA = 15; vDS = 16
vXR = list(range(56, 76)); vY = list(range(76, 96)); vDK = [17, 18, 19, 20, 21]; vST = list(range(32, 40)); vXD2 = [22, 23, 24]; vXL = 25; vWL = 26
L_X2 = 143360
NSTEP = 22
ORDER = [0, 1, 4, 5, 6, 7, 10, 11, 2, 3, 8, 9] + list(range(10))
def ptr_bases():
    return [f"s_mul_i32 s{sAS}, s{sW}, {12*4096}", f"s_add_u32 s{sAS}, s{sAS}, s{sP2A}", f"s_add_u32 s{sAS}, s{sAS}, {40*4096}",
            f"s_mul_i32 s{sAE}, s{sW}, {10*4096}", f"s_add_u32 s{sAE}, s{sAE}, s{sP2A}",
            f"s_mul_i32 s{sWB}, s{sW}, {12*5120}", f"s_add_u32 s{sWB}, s{sWB}, s{sP2W}", f"s_add_u32 s{sWB}, s{sWB}, {40*5120}",
            f"s_mul_i32 s{sWE}, s{sW}, {10*5120}", f"s_add_u32 s{sWE}, s{sWE}, s{sP2W}"]
def ptr_set(which, st):
    if which == "A": return [f"s_add_u32 s{sAP}, s{sAS if st < N1 else sAE}, {ORDER[st]*4096}"]
    return [f"s_add_u32 s{sWP}, s{sWB if st < N1 else sWE}, {ORDER[st]*5120}"]
def p2_wload(st):
    r = []
    r += ptr_set("W", st)
    for e in range(5):
        va, off = (vL16, e*1024) if e < 4 else (vW4, 0)
        if N1 <= st < N1 + NLDS:
            r += [f"s_add_u32 m0, s{sM0}, {L_WY + (st - N1)*5120 + (4096 if e == 4 else 0)}"] + (["s_nop 0"] if True else [])
            r.append(I(f"buffer_load_dwordx4 v{va}, s[{sWS}:{sWS+3}], s{sWP} offen offset:{off} sc1 lds", tok=f"WL{st}"))
        else:
            r.append(I(f"buffer_load_dwordx4 {rg(wslot(st, e))}, v{va}, s[{sWS}:{sWS+3}], s{sWP} offen offset:{off} sc1", tok="W"))
    return r
def p2_wread(st):
    return [f"@waitvm WL{st}"] + [f"ds_read_b128 {rg(wslot(st, e))}, v{vWL} offset:{L_WY + (st - N1)*5120 + e*1024}" for e in range(5)]
def p2_aload(st):
    r = []
    r += ptr_set("A", st)
    for jj in range(4):
        r.append(I(f"buffer_load_dwordx4 {rg(A_SLOTS[(st % 5)*4 + jj])}, v{vA2[jj]}, s[{sWS}:{sWS+3}], s{sAP} offen sc1", tok="A"))
    return r
def p2_setup():
    r = []
    for jj in range(4):
        r += [f"s_add_u32 s{sD0}, s{sW}, {jj}", f"s_and_b32 s{sD0}, s{sD0}, 3", f"v_lshl_add_u32 v{vA2[jj]}, s{sD0}, 10, v{vL16}"]
    return r
def p2_setup2():
    r = []
    for jj in range(1, 4):
        r += [f"s_add_u32 s{sT2}, s{sW}, {jj}", f"s_and_b32 s{sT2}, s{sT2}, 3",
              f"s_mul_i32 s{sT3}, s{sT2}, 15360", f"s_add_u32 s{sT3}, s{sT3}, {(3-jj)*5120}", f"v_add_u32 v{vPW[jj-1]}, s{sT3}, v{vL16}"]
    r += [f"s_mul_i32 s{sT3}, s{sW}, 15360", f"v_add_u32 v{vPR}, s{sT3}, v{vL16}", f"v_add_u32 v{vWL}, s{sM0}, v{vL16}"]
    r += [f"v_add_u32 v{v}, {L_P1}, v{v}" for v in vPW + [vPR]]
    return r

def groups(lst):
    out = []; cur = []
    for t in II(lst):
        cur.append(t)
        if t.cls == "vmem": out.append(cur); cur = []
    if cur: out.append(cur)
    return out
def gstall(grp):
    return max([EM[0].stall(t) for t in grp if t.cls == "vmem" or t.op == "@waitvm"] + [0])

def tagw(st):
    gs = groups(p2_wload(st))
    for gq in gs: gq[-1].lat = None; STEP[id(gq[-1])] = st
    return gs
def taga(st):
    gs = groups(p2_aload(st))
    for gq in gs: STEP[id(gq[-1])] = st
    return gs
STEP = {}

def phase1_blocks():
    Q = Queue()
    seq = [("U", s) for s in range(20)] + [("A", s) for s in range(20)] + [("B", s) for s in range(10)]
    gap0 = []; g = 0
    for blk, s in seq:
        gap0.append(g); g += {"U": 10, "A": 8, "B": 8}[blk]
    gap0.append(g)
    def stage_end(kind, idx):
        n = [k for k, (b, s) in enumerate(seq) if stage_of(b, s) == (kind, idx)][-1]
        return gap0[n]
    L(delay("a", 255, 0, 500)); L(delay("b", 31, 5, 700))
    L(["@waitvm U0", "s_barrier"])
    L(stamp("U start"))
    L(step_reads("U", 0, 0))
    later = []
    pace = [0, len(EM[0].out)]
    bulk = []
    def lat(gs, dl):
        for x in gs: later.append((II(x), dl))
    def blk_(gs, dl):
        at = len(bulk) if dl == 10**6 else next((q for q, (gq, d) in enumerate(bulk) if d == 10**6), len(bulk))
        bulk[at:at] = [(II(x), dl) for x in gs]
    lat([u_piece(2, cf) for cf in range(5)], stage_end("U", 0) - 4)
    lat([nonce_publish()], stage_end("U", 0))
    lat([u_piece(3, cf) for cf in range(5)], stage_end("U", 1) - 10)
    lat([u_piece(4, cf) for cf in range(5)], stage_end("U", 2) - 20)
    for n, (blk, s) in enumerate(seq):
        par = n & 1
        mf = step_mfma(blk, s, par)
        nxt = seq[n + 1] if n + 1 < len(seq) else None
        rd = II(step_reads(nxt[0], nxt[1], par ^ 1)) if nxt else []
        if rd: rd[-1].tok = f"rd{n+1}"
        boundary = nxt is None or stage_of(*nxt) != stage_of(blk, s)
        gaps = [[] for _ in mf]
        start = 0
        pre = []
        cap = opt.capU if blk == "U" else opt.capM
        if blk == "U" and s == 11: pre += [f"v_add_u32 v{vRU[0]}, 61440, v{vRU[0]}"]
        if blk == "U" and s == 12: pre += [f"v_add_u32 v{vRU[1]}, 61440, v{vRU[1]}"]
        if blk == "A" and s == 0:
            Q.add(nonce_get(), gap0[n] + 6)
            Q.add(scan_P12(), stage_end("M", opt.X_stage) - 2)
        if blk == "B" and s == 0:
            Q.add(swiglu(ACCA, [0, 1], sKSA, "HHA"), stage_end("M", 14) - opt.haend)
        post = []; plat = []; urgent = []; pbulk = []
        if blk == "B":
            for st in range(4, opt.nearly):
                if w_free_after_b(st) == s - 1: blk_(tagw(st), 10**6)
        if boundary:
            kind, idx = stage_of(blk, s)
            start = 1
            here = gap0[n]; nx1 = here + (40 if blk == "U" else 16)
            if kind == "U" and idx == 1:
                post += [(const_tables(), stage_end("U", 3) - 2), (stats_store(), stage_end("U", 3) + 10)]
            if kind == "U" and idx == opt.rf_stage: post.append((relayout_finish(), stage_end("M", opt.F_stage - 1) - 2))
            b = []
            if nxt is not None:
                nk, ni = stage_of(*nxt)
                b.append(I(f"@waitboth {nk}{ni}"))
            else:
                b.append(I("@waitds0"))
            if kind == "M" and idx == 14: b += II(["@waitvm HHA"])
            if kind == "M" and idx == 14: plat.append((groups(flag_store(WS_FLHA, sC, sG)), here + 2))
            if kind == "M" and idx == opt.F_stage: b += II((["@waitvm RLS"] if "r" not in opt.skip else []) + ["@waitvm stat"])
            b.append(I("s_barrier"))
            if (opt.stamps or opt.probe) and (opt.fine or (kind, idx) in (("U", 4), ("M", 9), ("M", 14))): b += II(stamp(f"{kind}{idx} end"))
            gaps[0] += b
            if kind == "U" and idx == 0 and opt.t_w13: plat.append((w13_touch(), stage_end("U", 1) + 10))
            if kind == "U" and idx == 0 and opt.rl_pos == 0: plat.append((relayout_dma(), stage_end("U", 2) - 10))
            if kind == "U" and idx == 1: plat.append((groups(dma_M(0)) + groups(dma_M(1)), stage_end("U", 3) - 10))
            if kind == "U" and idx == 1 and opt.rl_pos == 1: plat.append((relayout_dma(), stage_end("U", 4) - 10))
            if kind == "U" and idx == 3: plat.append(([nonce_load()], here + 10))
            if kind == "U" and idx in (2, 3): plat.append((groups(dma_M(idx)), stage_end("M", idx - 1) - opt.slack))
            if kind == "U" and idx == 4:
                plat.append(([[f"v_add_u32 v{vRB2}, 0x10000, v{vL16}"]], here + 6))
            if kind == "M" and idx == opt.F_stage: plat.append((groups(flag_store(WS_FLW, sN, sRT)) + groups(flag13_store()), here + 6))
            if kind == "M" and idx + 4 <= 9: plat.append((groups(dma_M(idx + 4)), stage_end("M", idx + 3) - opt.slack))
            if kind == "M" and idx == opt.L_stage: plat.insert(0, (groups(lb_loads()), here + 8))
            if kind == "M" and idx == opt.X_stage:
                post.append((scan_P3(), stage_end("M", opt.X_stage + 1) + 8))
            if kind == "M" and idx == opt.C_stage:
                assert not any("a[180:183]" in x.text for gq, d in later for x in gq)
                post.append((scan_P4(), stage_end("M", opt.Y_stage) - 2))
            if kind == "M" and idx == opt.Y_stage:
                gaps[0] += II(delay("d", 63, 17, 900))
                post.append((scan_P56()[:33], stage_end("M", opt.Y_stage + 1) - 2))
            if kind == "M" and idx in (6, 7, 8): pbulk.append((groups(dma_M(idx + 6)), stage_end("M", idx + 5) - opt.slack))
            if kind == "M" and idx == opt.W_stage - 1 and opt.nearly:
                plat.append((groups(flag_load(WS_FLW, sN, 0, 31)), nx1))
            if kind == "M" and idx == opt.W_stage and opt.nearly:
                plat.append(([flag_check(WS_FLW, sN, 0, 31)], here + 10))
                pbulk.append((groups(dma_M(10)), stage_end("M", 9) - opt.slack))
                pbulk.append((groups(dma_M(11)), stage_end("M", 10) - opt.slack))
                for st in range(min(4, opt.nearly)): pbulk.append((tagw(st), 10**6))
            if kind == "M" and idx == 13: urgent += [p2_setup()]
            if kind == "U" and idx == 4: urgent += [[f"global_load_ushort a231, v{vLANE}, s[{pDSK}:{pDSK+1}]"]] if False else []
        ng = len(mf)
        if rd:
            if nxt[0] == "U": span = 5
            elif blk == "U": span = 7
            else: span = opt.span
            for k, t in enumerate(rd): gaps[start + (k * span) // len(rd)].append(t)
        if nxt and nxt[0] == "A":
            for k, t in enumerate(II(swaps(nxt[1]))): gaps[ng - 5 + k].append(t)
        if blk == "U" and opt.pre_norm <= s + 1 < 20 and "n" not in opt.skip:
            nq = II(norm_step(1, s + 1, False, vT[20:24]))
            for k, t in enumerate(nq): gaps[(k * ng) // len(nq)].append(t)
        L(pre)
        E(f"@waitds rd{n}")
        for k, t in enumerate(mf):
            E(t)
            L(gaps[k])
            gap = gap0[n] + k
            used = sum(cost(x) for x in gaps[k])
            if boundary and k == 0:
                for lst, dl in post: Q.add(lst, dl)
                for gs, dl in plat: lat(gs, dl)
                for gs, dl in pbulk: blk_(gs, dl)
                lat(urgent, here + 14)
                continue
            due_b = any(d - gap <= q + len(later) for q, (gq, d) in enumerate(bulk))
            overdue = due_b or any(d - gap <= q for q, (gq, d) in enumerate(later))
            q_ = later if later else bulk
            if q_ and (overdue or (EM[0].t >= pace[0] and k != 0)):
                grp = q_.pop(0)[0]; L(grp); used += sum(cost(x) for x in grp)
            for x in EM[0].out[pace[1]:]:
                if x.cls == "vmem" and x.lines is not None and not x.text.startswith("buffer_load_dword v29,"):
                    cold = (x.tok in (("RL", "TW") if opt.t_w13 else ("M0", "M1", "RL"))) and opt.coldpace or 1
                    pace[0] = max(pace[0], EM[0].t - opt.burst) + x.lines * opt.pace * cold
            pace[1] = len(EM[0].out)
            Q.pop(cap - used, gap, ds_ok=(k >= (opt.span if blk != "U" else 5)))
    L(Q.flush())
    for gq, d in later: L(gq)
    return [gq for gq, d in bulk]

def p2_mfma(st):
    r = []
    first = st in (0, N1)
    acc = ACC1 if st < N1 else ACC2
    for jj in range(4):
        for e in range(5):
            d = rg(acc[jj*5+e]); c = "0" if (first and not (st == N1 and jj == 0)) else d
            r.append(f"v_mfma_f32_16x16x32_bf16 {d}, {rg(A_SLOTS[(st % 5)*4+jj])}, {rg(wslot(st, e))}, {c}")
    return r

def p2_partials(base, acc):
    return [f"ds_write_b128 v{vPW[jj-1]}, {rg(acc[jj*5+e])} offset:{base + e*1024}" for jj in range(1, 4) for e in range(5)]

def p2_epi_addr():
    dn, q, t = vT[8], vT[9], vT[10]
    r = [f"v_and_b32 v{dn}, 15, v{vLANE}", f"v_lshrrev_b32 v{q}, 4, v{vLANE}",
         f"s_lshl_b32 s{sT2}, s{sRT}, 6", f"s_lshr_b32 s{sT3}, s{sW}, 1", f"s_lshl_b32 s{sT3}, s{sT3}, 5", f"s_add_u32 s{sT2}, s{sT2}, s{sT3}",
         f"s_and_b32 s{sT3}, s{sW}, 1", f"s_lshl_b32 s{sT3}, s{sT3}, 2", f"s_add_u32 s{sT2}, s{sT2}, s{sT3}",
         f"s_mul_i32 s{sT4}, s{sW}, 3072", f"s_add_u32 s{sT4}, s{sT4}, {L_X2}",
         f"v_mul_u32_u24 v{vXL}, 640, v{q}", f"v_lshl_add_u32 v{vXL}, v{dn}, 1, v{vXL}", f"v_add_u32 v{vXL}, s{sT4}, v{vXL}",
         f"v_lshl_add_u32 v{q}, v{q}, 3, s{sT2}",
         f"s_mul_i32 s{sT3}, s{sN}, 80", f"v_add_u32 v{dn}, s{sT3}, v{dn}",
         f"v_mul_u32_u24 v{t}, 640, v{q}", f"v_add_u32 v{t}, v{t}, v{dn}",
         f"v_lshlrev_b32 v{vOUT}, 2, v{t}", f"v_lshlrev_b32 v{vSTA}, 3, v{q}", f"v_lshlrev_b32 v{vDS}, 1, v{dn}",
         f"s_mul_i32 s{sT2}, s{sT2}, 1280", f"s_mul_i32 s{sT3}, s{sN}, 160", f"s_add_u32 s{sT5}, s{sT2}, s{sT3}", f"s_add_u32 s{sT5}, s{sT5}, 4096",
         f"s_mov_b32 s{sT3}, 6554"]
    a, b, c = vT[11], vT[12], vT[13]
    for p in range(3):
        r += [f"v_add_u32 v{a}, {64*p}, v{vLANE}", f"v_mul_u32_u24 v{b}, s{sT3}, v{a}", f"v_lshrrev_b32 v{b}, 16, v{b}",
              f"v_mul_u32_u24 v{c}, 10, v{b}", f"v_sub_u32 v{c}, v{a}, v{c}", f"v_lshlrev_b32 v{c}, 4, v{c}",
              f"v_and_b32 v{a}, 12, v{b}", f"v_add_u32 v{b}, v{a}, v{b}", f"v_mul_u32_u24 v{b}, 1280, v{b}", f"v_add_u32 v{vXD2[p]}, v{b}, v{c}"]
    r += [f"v_mov_b32 v{a}, {OOB}", f"v_cmp_gt_u32 vcc, 32, v{vLANE}", f"v_cndmask_b32 v{vXD2[2]}, v{a}, v{vXD2[2]}, vcc"]
    return r
def p2_epi_loads():
    r = []
    for p in range(3):
        r += [f"s_add_u32 m0, s{sT4}, {p*1024}", "s_nop 0", I(f"buffer_load_dwordx4 v{vXD2[p]}, s[{sX}:{sX+3}], s{sT5} offen lds", tok="XR")]
    for e in range(5):
        r.append(f"global_load_ushort v{vDK[e]}, v{vDS}, s[{pDSK}:{pDSK+1}] offset:{e*32}")
    r += [f"s_mov_b32 s{sD1}, {WS_STAT}",
          f"buffer_load_dwordx4 {vr(vST[0])}, v{vSTA}, s[{sWS}:{sWS+3}], s{sD1} offen sc1",
          f"buffer_load_dwordx4 {vr(vST[4])}, v{vSTA}, s[{sWS}:{sWS+3}], s{sD1} offen offset:16 sc1"]
    return r
def p2_xread():
    r = ["@waitvm XR"]
    for e in range(5):
        for rr in range(4):
            r.append(f"ds_read_u16 v{vXR[e*4+rr]}, v{vXL} offset:{rr*160 + e*32}")
    return r

def p2_skip():
    r = [f"v_lshlrev_b32 v{vDK[e]}, 16, v{vDK[e]}" for e in range(5)]
    for j in range(20): r.append(f"v_lshlrev_b32 v{vXR[j]}, 16, v{vXR[j]}")
    for e in range(5):
        for rr in range(4): r.append(f"v_fma_f32 v{96+e*4+rr}, v{vXR[e*4+rr]}, v{vST[2*rr]}, v{vST[2*rr+1]}")
        for rr in range(4): r.append(f"v_mul_f32 v{96+e*4+rr}, v{96+e*4+rr}, v{vDK[e]}")
    return r
def p2_gate():
    r = []
    T = vT[0:24]
    for e in range(5):
        b = T[12*(e % 2)]; b2 = b + 4; b3 = b + 8; Y = vY[e*4:e*4+4]
        r += [f"ds_read_b128 {vr(b)}, v{vPR} offset:{e*1024}", f"ds_read_b128 {vr(b2)}, v{vPR} offset:{5120 + e*1024}", f"ds_read_b128 {vr(b3)}, v{vPR} offset:{10240 + e*1024}"]
        if e > 0:
            p = T[12*((e-1) % 2)]; Yp = vY[(e-1)*4:e*4]
            for rr in range(4): r.append(f"v_mul_f32 v{Yp[rr]}, v{Yp[rr]}, v{p+rr}") if False else None
        for rr in range(4): r.append(f"v_add_f32 v{Y[rr]}, v{Y[rr]}, v{b+rr}")
        for rr in range(4): r.append(f"v_add_f32 v{b2+rr}, v{b2+rr}, v{b3+rr}")
        for rr in range(4): r.append(f"v_add_f32 v{Y[rr]}, v{Y[rr]}, v{b2+rr}")
        for rr in range(4): r.append(f"v_mul_f32 v{b+rr}, {NLOG2E}, v{Y[rr]}")
        for rr in range(4): r.append(f"v_exp_f32 v{b+rr}, v{b+rr}")
        for rr in range(4): r.append(f"v_add_f32 v{b+rr}, 1.0, v{b+rr}")
        for rr in range(4): r.append(f"v_rcp_f32 v{b+rr}, v{b+rr}")
        for rr in range(4): r.append(f"v_mul_f32 v{Y[rr]}, v{Y[rr]}, v{b+rr}")
    r += [f"v_add_u32 v{v}, {L_P2 - L_P1}, v{v}" for v in vPW + [vPR]]
    return r

def p2_final():
    r = []
    O = list(range(96, 116)); B = list(range(176, 236))
    for k in range(3):
        for e in range(5):
            r.append(f"ds_read_b128 {vr(B[k*20+e*4])}, v{vPR} offset:{k*5120 + e*1024}")
    for j in range(0, 20, 2): r.append(f"v_pk_fma_f32 {vr(vXR[j], 2)}, {vr(O[j], 2)}, {vr(vY[j], 2)}, {vr(vXR[j], 2)}")
    for j in range(0, 20, 2): r.append(f"v_pk_add_f32 {vr(B[j], 2)}, {vr(B[j], 2)}, {vr(B[20+j], 2)}")
    for j in range(0, 20, 2): r.append(f"v_pk_add_f32 {vr(B[j], 2)}, {vr(B[j], 2)}, {vr(B[40+j], 2)}")
    for j in range(0, 20, 2): r.append(f"v_pk_fma_f32 {vr(vXR[j], 2)}, {vr(B[j], 2)}, {vr(vY[j], 2)}, {vr(vXR[j], 2)}")
    for rr in range(4):
        r.append(f"s_mov_b32 s{sT2}, {rr*2560}")
        for e in range(5):
            r.append(f"buffer_store_dword v{vXR[e*4+rr]}, v{vOUT}, s[{sOUT}:{sOUT+3}], s{sT2} offen offset:{e*64} {opt.out_flags}")
    return r

def weave(main, extra, every=1):
    groups = []; cur = []
    for t in II(extra):
        cur.append(t)
        if t.cls == "vmem": groups.append(cur); cur = []
    if cur: groups.append(cur)
    out = []
    for k, t in enumerate(II(main)):
        out.append(t)
        if groups and k % every == every - 1: out += groups.pop(0)
    for g_ in groups: out += g_
    return out

def phase2(left):
    PH[0] = 2
    L(stamp("B mfma end"))
    L(delay("c", 15, 9, 600))
    L([f"s_mov_b32 s{sEX0}, {NLOG2E}", f"s_mov_b32 s{sEX1}, {NLOG2E}", f"s_mov_b32 s{sEX2}, 1.0", f"s_mov_b32 s{sEX3}, 1.0"])
    Wq = list(left); Aq = []
    assert all(id(gq[-1]) in STEP for gq in Wq)
    nextW = max([st for st in STEP.values()] + [-1]) + 1; nextA = 0
    while nextW < N1 + NLDS: Wq.extend(tagw(nextW)); nextW += 1
    def serial(lst, every, first=None):
        cnt = 0
        for t in II(lst):
            if t.cls == "pseudo" and t.op == "@gap": continue
            L([t])
            if t.cls in ("valu", "trans") and not t.op.startswith("v_cmp") and not INRAW[0]:
                cnt += 1
                q_ = first if first else Wq
                if q_ and cnt >= every and gstall(q_[0]) <= opt.thrs: L(q_.pop(0)); cnt = 0
            if t.op == "@raw_begin": INRAW[0] = True
            if t.op == "@raw_end": INRAW[0] = False
    serial(swiglu(ACCB, [0], sKSB, "HHB", packed=True), opt.every)
    L(stamp("epi B done"))
    L(flag_load(WS_FLHA, sRT, 1, 15))
    def fill(st):
        nonlocal nextW, nextA
        while nextA <= min(st + opt.look, NSTEP - 1): Aq.extend(taga(nextA)); nextA += 1
        while nextW <= min(st + opt.lookW, NSTEP - 1) and nextW >= N1 + NLDS and w_free_after_p(nextW) < st: Wq.extend(tagw(nextW)); nextW += 1
    def head():
        if Wq and (not Aq or STEP[id(Wq[0][-1])] <= STEP[id(Aq[0][-1])]): return Wq
        return Aq if Aq else None
    p56 = II(scan_P56())[33:]
    serial(p56[:10], opt.every)
    L(p2_setup2())
    serial(p56[10:opt.hack], opt.every)
    L(flag_check(WS_FLHA, sRT, 1, 15)); L(stamp("ha ready"))
    while nextA < opt.a0: Aq.extend(taga(nextA)); nextA += 1
    cst = next(k for k, t in enumerate(p56) if t.cls == "vmem")
    if opt.afirst: L(Aq.pop(0)); L(Aq.pop(0)); L(Aq.pop(0)); L(Aq.pop(0))
    serial(p56[opt.hack:cst], opt.every2, Aq)
    if opt.afirst:
        while Aq: L(Aq.pop(0))
    L(p56[cst:])
    L(stamp("h out"))
    while Aq: L(Aq.pop(0))
    if opt.hhpos < 0:
        L(["@waitvm HHB", "s_barrier"]); L(flag_store(WS_FLHH, sC, sG))
    L(stamp("flags out"))
    Q = Queue(); misc = []
    g = 0; nread = N1
    for st in range(NSTEP):
        mf = p2_mfma(st)
        if st == 8 - opt.look:
            L(flag_check(WS_FLHH, sRT, 1, 15))
        if st == N1 - opt.look:
            L(flag_check(WS_FLH, sRT, 1, 15)); L(stamp("h ready"))
        fill(st)
        if st == opt.p2pos + 1:
            Q.add(p2_epi_addr(), g + 30)
        if st == opt.epos: misc.extend(groups(p2_epi_loads()))
        if st == opt.epos + 3:
            assert not misc or all("v29" in gq[-1].text for gq in misc)
            Q.add(p2_xread() + p2_skip(), 20*N1 - 4)
        if st == 8 - opt.look - 2: misc[0:0] = groups(flag_load(WS_FLHH, sRT, 1, 15))
        if st == N1 - opt.look - 2: misc[0:0] = groups(flag_load(WS_FLH, sRT, 1, 15))
        while nread < N1 + NLDS and w_free_after_p(nread) < st and nread <= st + 3:
            assert not any(STEP.get(id(gq[-1])) == nread for gq in Wq)
            Q.add(p2_wread(nread), 20*(nread - 1) + 4); nread += 1
        if st == N1:
            L(stamp("out done"))
            yp = p2_partials(0, ACC1); rdy = [f"v_accvgpr_read_b32 v{vY[j]}, a{j}" for j in range(20)]
            mix = []
            for j in range(15): mix += [yp[j]] + rdy[j*4//3:(j+1)*4//3]
            Q.add(mix, 20*opt.ybar - 4)
        if st == opt.ybar:
            assert nread == N1 + NLDS
            L(Q.flush()); L(["@waitds0", "s_barrier"])
            Q.add(p2_gate(), 20*NSTEP - 24)
        def must(q): return [gq for gq in q if STEP[id(gq[-1])] <= st + opt.look]
        ng = len(must(Wq)) + len(Aq)
        per = -(-ng // 19)
        last = st == NSTEP - 1
        if last:
            L(Q.flush())
            mf = mf[5:] + mf[:5]
            wr = II(p2_partials(0, ACC2))
        for k, t in enumerate(mf):
            E(t)
            used = 0
            if k >= 1:
                for _ in range(max(per, 1)):
                    h = head()
                    if misc and (gstall(misc[0]) <= opt.thr or st >= opt.epos + 1 or "v29" in misc[0][-1].text) and (k % 2 == 0 or not h): L(misc.pop(0)); used += 2
                    elif h and (STEP[id(h[0][-1])] <= st + opt.look or gstall(h[0]) <= opt.thr): L(h.pop(0)); used += 2
            if st == opt.hhpos and k == 19 and st != opt.p2pos:
                L(["@waitvm HHB", "s_barrier"]); L(flag_store(WS_FLHH, sC, sG))
            if st == opt.p2pos and k == 19:
                L(["@waitvm HST", "s_barrier"])
                if st == opt.hhpos: L(flag_store(WS_FLHH, sC, sG))
                L(flag_store(WS_FLH, sC, sG))
            if last and k >= 7 and wr: L([wr.pop(0)])
            Q.pop(2 - used, g); g += 1
        if st >= opt.epos + 2:
            while misc: L(misc.pop(0))
        if opt.fine2: L(stamp(f"st{st}"))
        while head() and STEP[id(head()[0][-1])] <= st + opt.look: L(head().pop(0))
    L(wr)
    L(["@waitds0", "s_barrier"])
    L(stamp("y done"))
    L(p2_final())
    L(stamp("end")); L(stamp("cyc1", True))
INRAW = [False]

def diag_out():
    if not opt.diag: return
    L([f"s_lshl_b32 s{sT2}, s2, 2", f"s_add_u32 s{sT2}, s{sT2}, s{sW}", f"s_lshl_b32 s{sT2}, s{sT2}, 2", f"s_add_u32 s{sT2}, s{sT2}, {WS_STAMP}",
       f"v_mov_b32 v{vT[0]}, s{sNONCE}", f"buffer_store_dword v{vT[0]}, off, s[{sWS}:{sWS+3}], s{sT2}"])

def stamps_out():
    if opt.probe:
        L(["@raw_begin", "L_spin:", f"s_memrealtime s[{sSTAMP}:{sSTAMP+1}]", "s_waitcnt lgkmcnt(0)", f"s_sub_u32 s{sT2}, s{sSTAMP}, s3",
           f"s_cmp_lt_u32 s{sT2}, 5000", "s_cbranch_scc1 L_spin", "@raw_end"])
    if not opt.stamps: return
    L([f"s_lshl_b32 s{sT2}, s2, 2", f"s_add_u32 s{sT2}, s{sT2}, s{sW}", f"s_lshl_b32 s{sT2}, s{sT2}, 8", f"s_add_u32 s{sT2}, s{sT2}, {WS_STAMP}",
       f"v_lshlrev_b32 v{vT[0]}, 2, v{vLANE}", f"buffer_store_dword v0, v{vT[0]}, s[{sWS}:{sWS+3}], s{sT2} offen"])

def build():
    STEP.clear(); PH[0] = 1; EM[0] = Emitter(lines_of, lat_of, dslat=opt.dslat); lab[0] = 0; stamp_n[0] = 0; stamp_names.clear(); ST.n = 0
    prologue()
    L(stamp("issued")); L(stamp("cyc0", True))
    CAP[0] = rest = []
    setup_rest()
    L(scan_addr()); L(mlp_read_addr())
    constants()
    L(const_park())
    nonce_seed()
    L(relayout_issue()); L(relayout_raddr()); h_offsets()
    if opt.t_w13: L(w13_touch_addr())
    L([f"v_min_u32 v{vT[0]}, 9, v{vLANE}", f"v_lshlrev_b32 v{vT[0]}, 7, v{vT[0]}", f"global_load_dword a231, v{vT[0]}, s[{pDSK}:{pDSK+1}]"])
    CAP[0] = None
    ra = atoms(rest); n0 = 0; k0 = 0
    while n0 < opt.pre0: L(ra[k0]); n0 += len(ra[k0]); k0 += 1
    L(stamp("consts"))
    tail = x_arrive(0, [i for a in ra[k0:] for i in a], 40)
    L(stamp("x0 in"))
    E("s_barrier")
    L(skew("0"))
    L(tail)
    L(x_stats(0))
    L([f"v_add_u32 v{vRX[0]}, 81920, v{vRX[0]}", f"v_add_u32 v{vRX[1]}, 81920, v{vRX[1]}"])
    nrm = []
    for s in range(20): nrm += norm_step(0, s, opt.pk0, vT[20:24]) if "N" not in opt.skip else []
    if "Z" in opt.skip: nrm = ["s_nop 0"] * len(nrm)
    if "Y" in opt.skip: nrm = [t if "v_pk_fma" not in t else "v_mov_b32 v52, v53" for t in nrm]
    if "M" in opt.skip: nrm = [x for k, t in enumerate(nrm) for x in ([t, "s_nop 0"] if k % 4 == 3 else [t])]
    tail = x_arrive(1, nrm)
    L(stamp("x1 in"))
    L(weave(tail, ST.next(50 - ST.n, 50), 1))
    L(x_stats(1))
    L(mlp_dma_addr("A"))
    for s in range(opt.pre_norm): L(norm_step(1, s, True, vT[20:24]))
    assert ST.n == 50
    phase2(phase1_blocks())
    diag_out()
    stamps_out()
    E("s_endpgm")
    return EM[0].out

HEADER = """; Kernarg layout for this problem (128 bytes, ptrs only, base s[0:1]):
; @launch grid=(256,1,1) block=(256,1,1) lds=163840
.amdgcn_target "amdgcn-amd-amdhsa--gfx950"
.text
.globl {k}
.p2align 8
.type {k},@function
{k}:
"""
FOOTER = """
L_exit:
    s_endpgm
L_codeend:
    .fill 64, 4, 0xbf800000
.section .rodata,"a"
.p2align 6
.amdhsa_kernel {k}
  .amdhsa_next_free_vgpr 512
  .amdhsa_next_free_sgpr 102
  .amdhsa_accum_offset 256
  .amdhsa_group_segment_fixed_size 0
  .amdhsa_kernarg_size 128
  .amdhsa_user_sgpr_count 2
  .amdhsa_user_sgpr_kernarg_segment_ptr 1
  .amdhsa_system_sgpr_workgroup_id_x 1
  .amdhsa_float_denorm_mode_32 3
.end_amdhsa_kernel
"""
def text():
    prog = build()
    body = "\n".join(("" if i.cls == "label" else "    ") + i.text for i in prog)
    return HEADER.format(k=KNAME) + body + FOOTER.format(k=KNAME), prog

if __name__ == "__main__":
    out = sys.argv[1]
    for a in sys.argv[2:]:
        k, v = a.split("=")
        cur = getattr(opt, k)
        setattr(opt, k, v.replace("_", " ") if isinstance(cur, str) else (v in ("1", "True") if isinstance(cur, bool) else type(cur)(float(v))))
    t, prog = text()
    open(out, "w").write(t)
    print(stats(prog), len(prog))
    if opt.sim:
        em = EM[0]; prev = 0
        for j, (n, m) in enumerate(zip(stamp_names, em.marks)):
            big = sorted([x for x in em.stalls if x[1] == j], reverse=True)
            print(f"{n:12s} {m:7.0f} ({m-prev:5.0f}) stalls {sum(x[0] for x in big):5.0f} :", "; ".join(f"{x[0]:.0f} {x[2][:44]}" for x in big[:4]))
            prev = m
    if opt.stamps:
        import json
        json.dump(stamp_names, open(out + ".stamps.json", "w"))
```

```python
import sys, os
sys.path.insert(0, os.path.dirname(os.path.abspath(__file__)))
from asmlib import I, stats, insert_nops, Emitter

KNAME = "recurrent_scan__ssm_conv_s5__glu_gated_swiglu__prompt_kernel"

class Opt:
    fine = False
    splitx = False
    fine2 = False
    pk0 = True
    xhit = False
    chain = 0
    sim = False
    fakehit = ''
    delay = 0
    diag = False
    cycles = False
    skip = ''
    probe = ''
    stamps = False
    codepf = True
    krot = True
    prot = False
    pre0 = 120
    pflines = 12
    win = 8
    pre_norm = 1
    skew = False
    mstat = True
    t_x1 = False
    t_w13 = False
    b10 = 1
    rf_stage = 2
    slack = 22
    rl_pos = 0
    capU = 3
    capM = 5
    span = 5
    X_stage = 2
    L_stage = 5
    C_stage = 7
    Y_stage = 8
    H_stage = 11
    F_stage = 1
    W_stage = 4
    nearly = 12
    rl_nt = False
    out_flags = "sc1"
    x_flags = ""
    w_flags = ""
    p1map = 0
    p2map = 0
    p2pos = 2
    epos = 6
    afirst = True
    shadow56 = True
    t56 = 2
    hhpos = 0
    hack = 91
    haend = 18
    hast = 14
    hald = 0
    thrs = 200
    hhld = 50
    hhck = 130
    every = 7
    every2 = 2
    a0 = 3
    thrb = 40
    cad = 3
    cadA = 6
    pace = 10.0
    burst = 100
    coldpace = 1.5
    vmcost = 4
    ybar = 17
    hchk = 4
    HL_stage = 13
    look = 2
    lookW = 6
    thr = 16
    dsmax = 3
    interp = True
    vlat = 14
    chainq = True
    dslat = 130
    even = True
    thrm = 100
    slot0 = 5
    earlyA = False
    roty = False
    latA = 640
    latW = 620
opt = Opt()

WS_A2 = 0
WS_W2P = 0xB00000
WS_S = 0xF00000
WS_STAT = 0xF40000
WS_FLW = 0xF50000
WS_FLH = 0xF51000
WS_FLHH = 0xF52000
WS_FLHA = 0xF54000
WS_SEED = 0xF53000
WS_STAMP = 0xF60000
WS_SIZE = 0x1000000
OOB = 0x40000000

L_RL = 102400
L_PRIV = 122880
PV_COL, PV_CH, PV_E = 0, 1280, 4352
L_TT = 155648
L_LB = 159744
L_WY = 0
L_P1 = 81920
L_P2 = 0

sX, sWU, sWM, sWS, sOUT, sRL, sDBG = 36, 40, 44, 48, 52, 56, 60
(sW, sC, sG, sRT, sN, sNONCE, sT0, sT1, sT2, sT3, sXOFF, sUOFF, sMOFF, sMOFFB, sRLOFF, sRLST,
 sA2H, sKSA, sKSB, sSST, sLB0, sLB1, sLB2, sLB3, sEX0, sEX1, sEX2, sEX3, sM0, sM0A, sCNT, sP2A, sP2W, sT4, sT5, sSTATO) = range(64, 100)
sSTAMP = 100
pX, pLRE, pLIM, pBRE, pBIM, pCRE, pCIM, pLDT = 4, 6, 8, 10, 12, 14, 16, 18
pDSK, pBX, pW1, pW3, pW2, pOUT, pDBG, pWS = 20, 22, 24, 26, 28, 30, 32, 34
sKU = [22, 23, 0, 1, 32]
sD0, sD1 = 4, 5
sRY, sRO = 6, 7
sAP, sAS, sAE, sWP, sWB, sWE = 8, 9, 10, 11, 12, 13
sM0U, sSEEDO = 18, 19
sD2 = 31
sRLT = 33
sHO = [24, 25, 26, 27, 30]

vLANE, vL16 = 1, 2
vRX = [3, 4]; vRU = [5, 6]
vRA = [7, 8]; vRB = 9; vHH = 10; vDU = 11; vW4 = 12
vD = [13, 14, 15, 16]
vXD = vD
vDB = [3, 4, 5, 6]; vRB2 = 11
BSLOT = {10: 4, 11: 5, 12: 2, 13: 3, 14: 0}
BISSUE = {2: (11, 7), 6: (12, 8), 7: (13, 9), 8: (14, 10)}
vUD = [11, 27, 28, 29]
vEW, vER, vCOLR, vCH, vTT, vLB, vTW, vTR, vHST, vSO = range(17, 27)
vWP0, vWP1, vFLAG, vNON = 27, 28, 29, 30
vT = list(range(32, 56))
def U(cf, f): return 56 + (cf * 2 + f) * 4
def X(f, s): return 96 + (f * 20 + s) * 4
def ACCA(mu, h2): return (mu * 2 + h2) * 16
def FB(par, fr): return 64 + par * 32 + fr * 4
def ACCB(mu, h2=0): return 128 + mu * 16
aRL = 160
aS = 180

def vr(n, c=4): return f"v[{n}:{n+c-1}]"
def ar(n, c=4): return f"a[{n}:{n+c-1}]"
def sr(n, c=4): return f"s[{n}:{n+c-1}]"

def lines_of(i):
    t = i.text
    if "ushort" in t: return 1
    if i.tok and i.tok[0] == "M" and int(i.tok[1:]) >= 10: return 16
    if i.tok == "RL": return 16
    if i.tok == "XR": return 11
    if " off," in t and "global" not in t: return 1
    if "dwordx2" in t: return 2
    if "load_dword " in t and "offen" in t: return 1 if "sc1" in t else 32
    if "global_load_dword" in t: return 0
    if "store_dword " in t: return 4 if "offen" in t else 1
    return 8
def lat_of(i):
    t = i.text; tok = i.tok or ""
    cold = 1500
    if "store" in t: return 820 if "sc1" in t else 330
    if tok.startswith("x"): return cold if tok in ("x0_0", "x0_1", "x1_0", "x1_1") else 800
    if tok.startswith("U"): return cold if tok == "U0" else 800
    if tok == "RL" or tok == "TW": return cold
    if tok.startswith("M"): return cold if (tok in ("M0", "M1", "M10") and not opt.t_w13) else 520
    if tok == "W" or tok.startswith("WL"): return opt.latW
    if tok == "A": return opt.latA
    if "sc1" in t: return 1000
    return 700
EM = [None]
CAP = [None]
def E(t, tok=None):
    i = I(t, tok)
    if CAP[0] is not None: CAP[0].append(i)
    else: EM[0].feed(i)
    return i
def L(lst):
    for t in lst:
        i = t if isinstance(t, I) else I(t)
        if CAP[0] is not None: CAP[0].append(i)
        else: EM[0].feed(i)
def atoms(lst):
    out = []; depth = 0
    for i in lst:
        glue = depth > 0 or i.op.startswith(("s_cselect", "s_addc", "s_subb", "v_cndmask", "v_addc")) or i.cls in ("branch", "label") or i.op in ("@arm", "@else", "@endarm")
        if out and glue: out[-1].append(i)
        else: out.append([i])
        if i.op == "@arm": depth += 1
        if i.op == "@endarm": depth -= 1
    return out
def II(lst): return [t if isinstance(t, I) else I(t) for t in lst]

def srd(d, p, nbytes):
    return [f"s_mov_b32 s{d}, s{p}", f"s_and_b32 s{d+1}, s{p+1}, 0xffff", f"s_mov_b32 s{d+2}, {nbytes}", f"s_mov_b32 s{d+3}, 0x20000"]

stamp_n = [0]
stamp_names = []
def stamp(name, cyc=False):
    if opt.probe:
        if name != opt.probe: return []
        return [f"s_memrealtime s[{sSTAMP}:{sSTAMP+1}]", "@waitds0", f"s_mov_b32 s3, s{sSTAMP}"]
    if not opt.stamps: return []
    k = stamp_n[0]; stamp_n[0] += 1
    stamp_names.append(name)
    return [f"s_memtime s[{sSTAMP}:{sSTAMP+1}]" if (cyc or opt.cycles) else f"s_memrealtime s[{sSTAMP}:{sSTAMP+1}]", "@waitds0",
            f"v_writelane_b32 v0, s{sSTAMP}, {k}"]

def cmul(dr, di, ar_, ai, br, bi, t):
    return [f"v_mul_f32 v{t}, v{ai}, v{bi}", f"v_mul_f32 v{di}, v{ai}, v{br}",
            f"v_fma_f32 v{dr}, v{ar_}, v{br}, -v{t}", f"v_fmac_f32 v{di}, v{ar_}, v{bi}"]
def csq(dr, di, r, i, t):
    return [f"v_mul_f32 v{t}, v{i}, v{i}", f"v_mul_f32 v{di}, v{r}, v{i}",
            f"v_fma_f32 v{dr}, v{r}, v{r}, -v{t}", f"v_add_f32 v{di}, v{di}, v{di}"]
def chorner2(dr, di, gr, gi, mr, mi, er, ei):
    return [f"v_fma_f32 v{dr}, v{mr}, v{gr}, v{er}", f"v_fma_f32 v{di}, v{mr}, v{gi}, v{ei}",
            f"v_fma_f32 v{dr}, -v{mi}, v{gi}, v{dr}", f"v_fma_f32 v{di}, v{mi}, v{gr}, v{di}"]

LOG2E = "0x3fb8aa3b"
NLOG2E = "0xbfb8aa3b"
INV2PI = "0.15915494"

def x_piece(n):
    f, S, ih = n // 20, (n % 20) // 2, n & 1
    p = n & 3
    r = []
    if p == 0:
        r = [f"s_add_u32 m0, s{sM0}, {f*81920 + (2*S)*1024}", f"s_add_u32 s{sD1}, s{sKU[S >> 1]}, s{sXOFF}"]
        if f: r.append(f"s_add_u32 s{sD1}, s{sD1}, {4*1280}")
    r.append(I(f"buffer_load_dwordx4 v{vXD[p]}, s[{sX}:{sX+3}], s{sD1} offen offset:{p*1024} {opt.x_flags} lds", tok=f"x{f}_{S}"))
    return r
def u_piece(i, cf):
    r = []
    if cf == 0: r = [f"s_add_u32 m0, s{sM0U}, {i*20480}", f"s_add_u32 s{sD1}, s{sKU[i]}, s{sUOFF}"]
    if cf == 4: r = [f"s_add_u32 m0, s{sM0U}, {i*20480 + 4096}", f"s_add_u32 s{sD1}, s{sD1}, {4*10240}"]
    r.append(I(f"buffer_load_dwordx4 v{vUD[cf & 3]}, s[{sWU}:{sWU+3}], s{sD1} offen offset:{(cf & 3)*1024} {opt.w_flags} lds", tok=f"U{i}"))
    return r
class Stream:
    def __init__(self): self.n = 0
    def next(self, k, limit=60):
        r = []
        for _ in range(k):
            if self.n >= limit: break
            r += x_piece(self.n) if self.n < 40 else u_piece((self.n - 40) // 5, (self.n - 40) % 5)
            self.n += 1
        return r
ST = Stream()

def prologue():
    E(f"s_cmp_ge_u32 s2, 256")
    E("s_cbranch_scc1 L_exit")
    E("s_load_dwordx16 s[4:19], s[0:1], 0")
    E("s_load_dwordx16 s[20:35], s[0:1], 64")
    if opt.stamps or opt.probe == "entry":
        E(f"s_{'memtime' if opt.cycles else 'memrealtime'} s[{sSTAMP}:{sSTAMP+1}]")
    if opt.codepf:
        n = opt.pflines
        L(["@raw_begin", f"s_getpc_b64 s[{sT2}:{sT3}]", "L_pc:",
           f"s_lshr_b32 s{sT4}, s2, 3", f"s_mul_i32 s{sT4}, s{sT4}, {n*128}",
           f"v_min_u32 v{vT[0]}, {n-1}, v0", f"v_lshlrev_b32 v{vT[0]}, 7, v{vT[0]}", f"v_add_u32 v{vT[0]}, s{sT4}, v{vT[0]}",
           f"v_min_u32 v{vT[0]}, L_codeend-L_pc-4, v{vT[0]}",
           f"v_mov_b32 v{vT[1]}, s{sT3}", f"v_add_co_u32 v{vT[0]}, vcc, s{sT2}, v{vT[0]}", f"v_cmp_gt_u32 s[{sEX0}:{sEX0+1}], {n}, v0", "s_nop 0",
           f"v_addc_co_u32 v{vT[1]}, vcc, 0, v{vT[1]}, vcc", f"s_and_b64 s[{sEX0}:{sEX0+1}], s[{sEX0}:{sEX0+1}], exec",
           "s_cbranch_scc0 L_nopf", f"s_mov_b64 exec, s[{sEX0}:{sEX0+1}]",
           f"global_load_dword a230, v[{vT[0]}:{vT[1]}], off", "s_mov_b64 exec, -1", "L_nopf:", "@raw_end"])
    E(f"v_lshrrev_b32 v{vT[0]}, 6, v0")
    E(f"v_and_b32 v{vLANE}, 63, v0")
    E(f"v_readfirstlane_b32 s{sW}, v{vT[0]}")
    E(f"v_lshlrev_b32 v{vL16}, 4, v{vLANE}")
    L([f"s_and_b32 s{sT0}, s2, 7", f"s_lshr_b32 s{sT1}, s2, 3"])
    if opt.p1map == 0:
        L([f"s_and_b32 s{sC}, s{sT0}, 1", f"s_lshl_b32 s{sC}, s{sC}, 3", f"s_and_b32 s{sT2}, s{sT1}, 7", f"s_add_u32 s{sC}, s{sC}, s{sT2}",
           f"s_lshr_b32 s{sG}, s{sT0}, 1", f"s_lshl_b32 s{sG}, s{sG}, 2", f"s_lshr_b32 s{sT2}, s{sT1}, 3", f"s_add_u32 s{sG}, s{sG}, s{sT2}"])
    else:
        L([f"s_and_b32 s{sC}, s{sT0}, 3", f"s_lshl_b32 s{sC}, s{sC}, 2", f"s_and_b32 s{sT2}, s{sT1}, 3", f"s_add_u32 s{sC}, s{sC}, s{sT2}",
           f"s_lshr_b32 s{sG}, s{sT0}, 2", f"s_lshl_b32 s{sG}, s{sG}, 3", f"s_lshr_b32 s{sT2}, s{sT1}, 2", f"s_add_u32 s{sG}, s{sG}, s{sT2}"])
    t0, t1, t2, t3 = vT[0:4]
    L([f"v_lshrrev_b32 v{t0}, 3, v{vLANE}", f"v_and_b32 v{t1}, 7, v{vLANE}", f"v_and_b32 v{t2}, 6, v{t0}",
       f"v_xor_b32 v{t1}, v{t1}, v{t2}", f"v_lshlrev_b32 v{t1}, 4, v{t1}",
       f"v_and_b32 v{t2}, 4, v{t0}", f"v_add_u32 v{t2}, v{t2}, v{t0}",
       f"v_mul_u32_u24 v{vD[0]}, 1280, v{t2}", f"v_add_u32 v{vD[0]}, v{vD[0]}, v{t1}",
       f"v_mul_u32_u24 v{vDU}, 1280, v{t0}", f"v_add_u32 v{vDU}, v{vDU}, v{t1}",
       f"v_add_u32 v{vD[0]}, 4096, v{vD[0]}", f"v_add_u32 v{vD[1]}, {16*1280 - 1024}, v{vD[0]}",
       f"v_add_u32 v{vD[2]}, {128 - 2048}, v{vD[0]}", f"v_add_u32 v{vD[3]}, {16*1280 + 128 - 3072}, v{vD[0]}"])
    L([f"s_mul_i32 s{sT2}, s{sG}, 80", f"v_min_u32 v{t3}, 39, v{vLANE}", f"v_lshlrev_b32 v{t3}, 1, v{t3}", f"v_add_u32 v{t3}, s{sT2}, v{t3}"])
    L([f"s_lshl_b32 s{sXOFF}, s{sC}, 2", f"s_add_u32 s{sXOFF}, s{sXOFF}, s{sW}", f"s_mul_i32 s{sXOFF}, s{sXOFF}, {0 if opt.xhit else 32*1280}",
       f"s_mul_i32 s{sM0}, s{sW}, 20480"])
    if opt.krot:
        L([f"s_add_u32 s{sT4}, s{sC}, s{sG}", f"s_mul_i32 s{sT5}, s{sT4}, 52", f"s_lshr_b32 s{sT5}, s{sT5}, 8", f"s_mul_i32 s{sT5}, s{sT5}, 5",
           f"s_sub_u32 s{sT4}, s{sT4}, s{sT5}", f"s_lshl_b32 s{sT4}, s{sT4}, 8"])
    else:
        E(f"s_mov_b32 s{sT4}, 0")
    E("@waitds0")
    if opt.probe == "entry": E(f"s_mov_b32 s3, s{sSTAMP}")
    if opt.stamps:
        E(f"v_mov_b32 v0, 0")
        E(f"v_writelane_b32 v0, s{sSTAMP}, 0"); stamp_n[0] = 1; stamp_names.append("entry")
    if opt.chain:
        L([f"s_mul_i32 s{sT2}, s2, {60*128}", f"s_add_u32 s{sT2}, s{pW2}, s{sT2}", f"s_addc_u32 s{sT3}, s{pW2+1}, 0", f"v_mov_b32 v{vT[8]}, 0"])
        for k in range(opt.chain):
            L([f"global_load_dword v{vT[9]}, v{vT[8]}, s[{sT2}:{sT3}]", "@waitvm0", f"v_add_u32 v{vT[8]}, 128, v{vT[8]}"])
    E(f"global_load_ushort v{vT[4]}, v{t3}, s[{pLRE}:{pLRE+1}]")
    E(f"global_load_ushort v{vT[5]}, v{t3}, s[{pLIM}:{pLIM+1}]")
    E(f"global_load_ushort v{vT[6]}, v{t3}, s[{pLDT}:{pLDT+1}]")
    L([f"s_sub_u32 s{sX}, s{pX}, 4096", f"s_subb_u32 s{sX+1}, s{pX+1}, 0", f"s_and_b32 s{sX+1}, s{sX+1}, 0xffff",
       f"s_mov_b32 s{sX+2}, {2048*1280 + 4096}", f"s_mov_b32 s{sX+3}, 0x20000"])
    L(srd(sDBG, pDBG, 256))
    def ku(j): return [f"s_add_u32 s{sKU[j]}, s{sT4}, {j*256}", f"s_cmp_ge_u32 s{sKU[j]}, 1280", f"s_cselect_b32 s{sT5}, 1280, 0", f"s_sub_u32 s{sKU[j]}, s{sKU[j]}, s{sT5}"]
    L(ku(0)); L(ST.next(4))
    L(srd(sWS, pWS, WS_SIZE))
    L([f"s_or_b32 s{sT2}, s2, s{sW}", f"s_cmp_eq_u32 s{sT2}, 0", f"s_mov_b32 s{sT3}, {WS_SEED}", f"s_cselect_b32 s{sSEEDO}, s{sT3}, {OOB}"])
    E(f"buffer_load_dword v{vT[7]}, off, s[{sWS}:{sWS+3}], s{sSEEDO} sc1")
    L(ku(1)); L(ST.next(opt.win - 4))
    for j in range(2, 5): L(ku(j))
    i_, q_, a0, a1 = vT[8:12]
    L([f"v_and_b32 v{i_}, 15, v{vLANE}", f"v_lshrrev_b32 v{q_}, 4, v{vLANE}",
       f"v_and_b32 v{a0}, 7, v{i_}", f"v_and_b32 v{a1}, 6, v{i_}", f"v_xor_b32 v{a1}, v{a1}, v{q_}", f"v_lshlrev_b32 v{a1}, 4, v{a1}",
       f"v_lshl_add_u32 v{a1}, v{a0}, 7, v{a1}",
       f"v_lshrrev_b32 v{a0}, 3, v{i_}",
       f"v_mul_u32_u24 v{vRU[0]}, 5120, v{a0}", f"v_add_u32 v{vRU[0]}, v{vRU[0]}, v{a1}", f"v_xor_b32 v{vRU[1]}, 64, v{vRU[0]}",
       f"v_lshl_add_u32 v{vRX[0]}, v{a0}, 10, v{a1}", f"v_add_u32 v{vRX[0]}, s{sM0}, v{vRX[0]}", f"v_xor_b32 v{vRX[1]}, 64, v{vRX[0]}",
       f"v_add_u32 v{vW4}, 4096, v{vL16}", f"v_mov_b32 v{vONES}, 0x3f803f80"])
    L([f"v_accvgpr_write_b32 a{aONE+k}, v{vONES}" for k in range(4)])
    L([f"v_add_u32 v{vUD[p]}, {p*(10240 - 1024)}, v{vDU}" for p in range(1, 4)])

def setup_rest():
    t0 = vT[0]
    L([f"s_bitcmp1_b32 s{sW}, 0",
       f"s_cselect_b32 s{sWU}, s{pBIM}, s{pBRE}", f"s_cselect_b32 s{sWU+1}, s{pBIM+1}, s{pBRE+1}",
       f"s_cselect_b32 s{sWM}, s{pW3}, s{pW1}", f"s_cselect_b32 s{sWM+1}, s{pW3+1}, s{pW1+1}",
       f"s_and_b32 s{sWU+1}, s{sWU+1}, 0xffff", f"s_and_b32 s{sWM+1}, s{sWM+1}, 0xffff",
       f"s_mov_b32 s{sWU+2}, {640*1280}", f"s_mov_b32 s{sWU+3}, 0x20000",
       f"s_mov_b32 s{sWM+2}, {640*3072}", f"s_mov_b32 s{sWM+3}, 0x20000"])
    L(srd(sOUT, pOUT, 2048*2560))
    if opt.p2map == 0:
        L([f"s_lshl_b32 s{sRT}, s{sT0}, 2", f"s_and_b32 s{sT2}, s{sT1}, 3", f"s_add_u32 s{sRT}, s{sRT}, s{sT2}", f"s_lshr_b32 s{sN}, s{sT1}, 2"])
    else:
        L([f"s_and_b32 s{sRT}, s{sT0}, 3", f"s_lshl_b32 s{sRT}, s{sRT}, 3", f"s_and_b32 s{sT2}, s{sT1}, 7", f"s_add_u32 s{sRT}, s{sRT}, s{sT2}",
           f"s_lshr_b32 s{sN}, s{sT0}, 2", f"s_lshl_b32 s{sN}, s{sN}, 2", f"s_lshr_b32 s{sT2}, s{sT1}, 3", f"s_add_u32 s{sN}, s{sN}, s{sT2}"])
    L([f"s_mul_i32 s{sUOFF}, s{sG}, {40*1280}", f"s_lshr_b32 s{sT2}, s{sW}, 1", f"s_lshl_b32 s{sT2}, s{sT2}, 7", f"s_add_u32 s{sUOFF}, s{sUOFF}, s{sT2}",
       f"s_mul_i32 s{sM0U}, s{sW}, 5120"])
    L([f"s_mul_i32 s{sT2}, s{sG}, 192", f"s_bitcmp1_b32 s{sG}, 0",
       f"s_cselect_b32 s{sT3}, 64, 0", f"s_cselect_b32 s{sT4}, 0, 128", f"s_add_u32 s{sMOFF}, s{sT2}, s{sT3}", f"s_add_u32 s{sMOFFB}, s{sT2}, s{sT4}",
       f"s_lshr_b32 s{sT2}, s{sW}, 1",
       f"s_mul_i32 s{sT3}, s{sT2}, {32*3072}", f"s_add_u32 s{sMOFF}, s{sMOFF}, s{sT3}",
       f"s_mul_i32 s{sT3}, s{sT2}, {64*3072}", f"s_add_u32 s{sMOFFB}, s{sMOFFB}, s{sT3}",
       f"s_lshl_b32 s{sM0A}, s{sW}, 12"])
    L([f"s_lshl_b32 s{sT3}, s{sC}, 1", f"s_add_u32 s{sT3}, s{sT3}, s{sT2}", f"s_mul_i32 s{sA2H}, s{sT3}, {88*4096}",
       f"s_and_b32 s{sT3}, s{sW}, 1", f"s_lshl_b32 s{sT3}, s{sT3}, 11", f"s_add_u32 s{sA2H}, s{sA2H}, s{sT3}",
       f"s_mul_i32 s{sT3}, s{sG}, 3", f"s_add_u32 s{sT3}, s{sT3}, 40", f"s_and_b32 s{sT4}, s{sG}, 1",
       f"s_add_u32 s{sKSA}, s{sT3}, s{sT4}", f"s_lshl_b32 s{sKSA}, s{sKSA}, 12", f"s_add_u32 s{sKSA}, s{sKSA}, s{sA2H}",
       f"s_xor_b32 s{sT4}, s{sT4}, 1", f"s_lshl_b32 s{sT4}, s{sT4}, 1",
       f"s_add_u32 s{sKSB}, s{sT3}, s{sT4}", f"s_lshl_b32 s{sKSB}, s{sKSB}, 12", f"s_add_u32 s{sKSB}, s{sKSB}, s{sA2H}"])
    L([f"s_lshl_b32 s{sT3}, s{sG}, 4", f"s_add_u32 s{sT4}, s{sT3}, s{sC}", f"s_mul_i32 s{sT4}, s{sT4}, 640", f"s_add_u32 s{sT4}, s{sT4}, {WS_S}",
       f"s_cmp_eq_u32 s{sW}, 3", f"s_cselect_b32 s{sSST}, s{sT4}, {OOB}"])
    for jj, sl in enumerate((sLB0, sLB1, sLB2, sLB3)):
        L([f"s_lshl_b32 s{sT4}, s{sW}, 2", f"s_add_u32 s{sT4}, s{sT4}, s{sC}", f"s_add_i32 s{sT4}, s{sT4}, {jj-16}",
           f"s_add_u32 s{sT5}, s{sT3}, s{sT4}", f"s_mul_i32 s{sT5}, s{sT5}, 640", f"s_add_u32 s{sT5}, s{sT5}, {WS_S}",
           f"s_cmp_ge_i32 s{sT4}, 0", f"s_cselect_b32 s{sl}, s{sT5}, {OOB}"])
    L([f"s_lshl_b32 s{sT3}, s{sC}, 2", f"s_add_u32 s{sT3}, s{sT3}, s{sW}", f"s_lshl_b32 s{sT3}, s{sT3}, 8", f"s_add_u32 s{sT3}, s{sT3}, {WS_STAT}",
       f"s_cmp_eq_u32 s{sG}, 0", f"s_cselect_b32 s{sSTATO}, s{sT3}, {OOB}"])
    for cf in range(5):
        L([f"s_mul_i32 s{sT2}, s{sG}, 5", f"s_add_u32 s{sT2}, s{sT2}, {cf}", f"s_and_b32 s{sT4}, s{sT2}, 3", f"s_lshr_b32 s{sT2}, s{sT2}, 2",
           f"s_lshl_b32 s{sT2}, s{sT2}, 12", f"s_lshl_b32 s{sT4}, s{sT4}, 8", f"s_add_u32 s{sT2}, s{sT2}, s{sT4}", f"s_add_u32 s{sHO[cf]}, s{sT2}, s{sA2H}"])
    L([f"s_mul_i32 s{sP2A}, s{sRT}, {88*4096}", f"s_mul_i32 s{sP2W}, s{sN}, {88*5120}", f"s_add_u32 s{sP2W}, s{sP2W}, {WS_W2P}"])
    if "A" in opt.fakehit: E(f"s_mov_b32 s{sP2A}, 0")
    if "W" in opt.fakehit: E(f"s_mov_b32 s{sP2W}, {WS_W2P}")
    L(ptr_bases())

cAR, cAI, cKR, cKI = 56, 57, 58, 59
cA8, cA32, cA32W, cA128, cOM = 60, 62, 64, 66, 68
def constants():
    lre, lim, ldt = vT[4], vT[5], vT[6]
    t = list(range(72, 96))
    L([f"v_lshlrev_b32 v{lre}, 16, v{lre}", f"v_lshlrev_b32 v{lim}, 16, v{lim}", f"v_lshlrev_b32 v{ldt}, 16, v{ldt}",
       f"v_mul_f32 v{t[0]}, {LOG2E}, v{ldt}", f"v_exp_f32 v{t[0]}, v{t[0]}",
       f"v_cvt_pk_bf16_f32 v{t[0]}, v{t[0]}, v{t[0]}", f"v_lshlrev_b32 v{t[0]}, 16, v{t[0]}",
       f"v_mul_f32 v{t[1]}, v{t[0]}, v{lre}", f"v_mul_f32 v{t[2]}, v{t[0]}, v{lim}",
       f"v_mul_f32 v{t[1]}, {LOG2E}, v{t[1]}", f"v_exp_f32 v{t[1]}, v{t[1]}",
       f"v_mul_f32 v{t[2]}, {INV2PI}, v{t[2]}", f"v_rndne_f32 v{t[3]}, v{t[2]}", f"v_sub_f32 v{t[2]}, v{t[2]}, v{t[3]}",
       f"v_cos_f32 v{t[3]}, v{t[2]}", f"v_sin_f32 v{t[4]}, v{t[2]}",
       f"v_mul_f32 v{cAR}, v{t[1]}, v{t[3]}", f"v_mul_f32 v{cAI}, v{t[1]}, v{t[4]}",
       f"v_add_f32 v{t[3]}, -1.0, v{cAR}",
       f"v_mul_f32 v{t[5]}, v{lre}, v{lre}", f"v_fmac_f32 v{t[5]}, v{lim}, v{lim}", f"v_rcp_f32 v{t[5]}, v{t[5]}",
       f"v_mul_f32 v{t[6]}, v{t[3]}, v{lre}", f"v_fmac_f32 v{t[6]}, v{cAI}, v{lim}",
       f"v_mul_f32 v{t[7]}, v{cAI}, v{lre}", f"v_fma_f32 v{t[7]}, -v{t[3]}, v{lim}, v{t[7]}",
       f"v_add_f32 v{t[5]}, v{t[5]}, v{t[5]}",
       f"v_mul_f32 v{cKR}, v{t[6]}, v{t[5]}", f"v_mul_f32 v{cKI}, v{t[7]}, v{t[5]}"])
    r, i, tt = t[8], t[9], t[0]
    L([f"v_mov_b32 v{r}, v{cAR}", f"v_sub_f32 v{i}, 0, v{cAI}"])
    L(csq(t[10], t[11], r, i, tt)); L(csq(r, i, t[10], t[11], tt))
    L(csq(cA8, cA8+1, r, i, tt))
    L(csq(r, i, cA8, cA8+1, tt))
    L(csq(cA32, cA32+1, r, i, tt))
    L(csq(t[12], t[13], cA32, cA32+1, tt))
    L(csq(cA128, cA128+1, t[12], t[13], tt))
    L(csq(r, i, cA128, cA128+1, tt))
    L(csq(t[14], t[15], r, i, tt))
    L(csq(t[16], t[17], t[14], t[15], tt))
    def sel(dst, src, mask, on):
        if on:
            return [f"v_cndmask_b32 v{dst}, 1.0, v{src}, s[{mask}:{mask+1}]", f"v_cndmask_b32 v{dst+1}, 0, v{src+1}, s[{mask}:{mask+1}]"]
        return [f"v_mov_b32 v{t[22]}, 1.0", f"v_mov_b32 v{t[23]}, 0",
                f"v_cndmask_b32 v{dst}, v{src}, v{t[22]}, s[{mask}:{mask+1}]", f"v_cndmask_b32 v{dst+1}, v{src+1}, v{t[23]}, s[{mask}:{mask+1}]"]
    L([f"s_bitcmp1_b32 s{sW}, 0", f"s_cselect_b64 s[{sEX0}:{sEX0+1}], -1, 0", f"s_bitcmp1_b32 s{sW}, 1", f"s_cselect_b64 s[{sEX2}:{sEX2+1}], -1, 0"])
    L(sel(t[18], cA32, sEX0, True)); L(sel(t[20], t[12], sEX2, True))
    L(cmul(cA32W, cA32W+1, t[18], t[19], t[20], t[21], tt))
    L(sel(t[18], t[14], sEX0, False)); L(sel(t[20], t[16], sEX2, False))
    L(cmul(cOM, cOM+1, t[18], t[19], t[20], t[21], tt))

def nonce_seed():
    sd = vT[7]
    L([f"s_mov_b32 s{sT2}, 1664525", f"v_mul_lo_u32 v{sd}, v{sd}, s{sT2}", f"v_add_u32 v{vNON}, 1013904223, v{sd}", f"v_mov_b32 v{vNON+1}, 1"])
    E(f"buffer_store_dword v{vNON}, off, s[{sWS}:{sWS+3}], s{sSEEDO} sc1", tok="seed")
def nonce_publish():
    return [f"s_cmp_lt_u32 s{sSEEDO}, {OOB}", f"s_cselect_b32 s{sT5}, 0, {OOB}", "@waitvm seed",
            f"buffer_store_dwordx2 v[{vNON}:{vNON+1}], off, s[{sDBG}:{sDBG+3}], s{sT5} sc1"]

lab = [0]
def poll(load_text, check):
    lab[0] += 1
    n = lab[0]
    r = list(check)
    r += [f"s_cbranch_vccz L_ok{n}", "@raw_begin", f"s_mov_b32 s{sCNT}, {0x4000 if opt.diag else 0x40000}", f"L_rt{n}:", "s_sleep 1"]
    r += [t.text if isinstance(t, I) else t for t in load_text]
    r += ["s_waitcnt vmcnt(0)", "s_nop 1"] + list(check) + [f"s_cbranch_vccz L_ok{n}", f"s_sub_u32 s{sCNT}, s{sCNT}, 1",
          f"s_cmp_lg_u32 s{sCNT}, 0", f"s_cbranch_scc1 L_rt{n}"]
    if opt.diag: r += [f"buffer_store_dword v{vLANE}, off, s[{sDBG}:{sDBG+3}], 0 offset:{32+4*n} sc1", "s_waitcnt vmcnt(0)"]
    r += ["s_nop 7", "@raw_end", f"L_ok{n}:"]
    return r
def nonce_load():
    return [f"buffer_load_dwordx2 v[{vNON}:{vNON+1}], off, s[{sDBG}:{sDBG+3}], 0 sc1"]
def nonce_get():
    return poll(nonce_load(), [f"v_cmp_ne_u32 vcc, 1, v{vNON+1}"]) + [f"v_readfirstlane_b32 s{sNONCE}, v{vNON}"]

sS0, sS1, sQ0, sQ1 = vT[8], vT[9], vT[10], vT[11]
vR = [vT[12], vT[14]]; vNB = [vT[13], vT[15]]
vM = [vT[16], vT[17]]
vONES = vT[18]
def x_arrive(f, filler=None, limit=60):
    fa = atoms(II(filler or []))
    tot = sum(len(a) for a in fa); chunks = [[] for _ in range(10)]; acc = 0
    for a in fa:
        chunks[min(9, acc * 10 // max(tot, 1))] += a; acc += len(a)
    if not opt.mstat: L([f"v_mov_b32 v{sS0}, 0", f"v_mov_b32 v{sS1}, 0", f"v_mov_b32 v{sQ0}, 0", f"v_mov_b32 v{sQ1}, 0"])
    def st(s):
        r = []
        if opt.mstat:
            c0 = "0" if s == 0 else ar(aSS); c1 = "0" if s == 0 else ar(aSQ)
            return [f"v_mfma_f32_16x16x32_bf16 {ar(aSS)}, {ar(aONE)}, {vr(X(f, s))}, {c0}",
                    f"v_mfma_f32_16x16x32_bf16 {ar(aSQ)}, {vr(X(f, s))}, {vr(X(f, s))}, {c1}"]
        for k in range(4):
            x = X(f, s) + k
            r += [f"v_dot2_f32_bf16 v{(sS0, sS1)[k&1]}, v{x}, v{vONES}, v{(sS0, sS1)[k&1]}",
                  f"v_dot2_f32_bf16 v{(sQ0, sQ1)[k&1]}, v{x}, v{x}, v{(sQ0, sQ1)[k&1]}"]
        return r
    for S in range(10):
        E(f"@waitvm x{f}_{S}")
        for sh in range(2):
            E(f"ds_read_b128 {vr(X(f, 2*S+sh))}, v{vRX[sh]} offset:{S*2048}", tok=f"xr{f}_{2*S+sh}")
        fl = chunks[S]
        L(ST.next(2 if ST.n % 2 == 0 or True else 1, limit))
        if S > 0:
            E(f"@waitds xr{f}_{2*S-1}")
            L(st(2*S-2)); L(st(2*S-1))
        L(fl)
    E("@waitds0")
    return st(18) + st(19)

aONE, aSS, aSQ = 216, 220, 224
def x_stats(f):
    a, b = vT[19], vT[20]
    r = [f"v_add_f32 v{sS0}, v{sS0}, v{sS1}", f"v_add_f32 v{sQ0}, v{sQ0}, v{sQ1}"]
    if opt.mstat:
        t = vT[8:12]
        r = [f"v_and_b32 v{a}, 15, v{vLANE}", f"v_lshrrev_b32 v{b}, 2, v{a}", f"v_lshl_add_u32 v{b}, v{b}, 4, v{a}", f"v_lshlrev_b32 v{b}, 2, v{b}",
             f"v_and_b32 v{a}, 3, v{vLANE}", f"v_cmp_eq_u32 s[{sEX0}:{sEX0+1}], 1, v{a}", f"v_cmp_eq_u32 s[{sEX2}:{sEX2+1}], 2, v{a}", f"v_cmp_eq_u32 vcc, 3, v{a}"]
        r += [f"v_accvgpr_read_b32 v{t[k]}, a{aSQ+k}" for k in range(4)]
        r += [f"v_cndmask_b32 v{t[0]}, v{t[0]}, v{t[1]}, s[{sEX0}:{sEX0+1}]", f"v_cndmask_b32 v{t[2]}, v{t[2]}, v{t[3]}, vcc",
              f"v_cndmask_b32 v{t[0]}, v{t[0]}, v{t[2]}, s[{sEX2}:{sEX2+1}]", f"v_cndmask_b32 v{t[0]}, v{t[0]}, v{t[2]}, vcc",
              f"ds_bpermute_b32 v{sQ0}, v{b}, v{t[0]}", f"v_accvgpr_read_b32 v{sS0}, a{aSS}"]
    for perm in (() if opt.mstat else ("v_permlane16_swap_b32", "v_permlane32_swap_b32")):
        r += [f"v_mov_b32 v{a}, v{sS0}", f"v_mov_b32 v{b}, v{sQ0}", f"{perm} v{a}, v{sS0}", f"{perm} v{b}, v{sQ0}",
              f"v_add_f32 v{sS0}, v{sS0}, v{a}", f"v_add_f32 v{sQ0}, v{sQ0}, v{b}"]
    inv = "0x3acccccd"
    r += [f"v_mul_f32 v{sS0}, {inv}, v{sS0}", f"v_mul_f32 v{sQ0}, {inv}, v{sQ0}",
          f"v_fma_f32 v{sQ0}, -v{sS0}, v{sS0}, v{sQ0}", f"v_max_f32 v{sQ0}, 0, v{sQ0}",
          f"v_cvt_pk_bf16_f32 v{a}, v{sS0}, v{sQ0}",
          f"v_lshlrev_b32 v{vM[f]}, 16, v{a}", f"v_and_b32 v{b}, 0xffff0000, v{a}",
          f"v_add_f32 v{b}, 0x3727c5ac, v{b}",
          f"v_cvt_pk_bf16_f32 v{b}, v{b}, v{b}", f"v_and_b32 v{b}, 0xffff0000, v{b}",
          f"v_sqrt_f32 v{b}, v{b}", f"v_cvt_pk_bf16_f32 v{b}, v{b}, v{b}", f"v_and_b32 v{b}, 0xffff0000, v{b}",
          f"v_rcp_f32 v{vR[f]}, v{b}", f"v_mul_f32 v{vNB[f]}, v{vM[f]}, v{vR[f]}", f"v_sub_f32 v{vNB[f]}, 0, v{vNB[f]}"]
    return r

def norm_step(f, s, packed, tmp):
    r = []
    for k in range(4):
        x = X(f, s) + k
        t = tmp[(k & 1) * 2]
        if packed:
            r += [f"v_lshlrev_b32 v{t}, 16, v{x}", f"v_and_b32 v{t+1}, 0xffff0000, v{x}",
                  f"v_pk_fma_f32 v[{t}:{t+1}], v[{t}:{t+1}], v[{vR[f]}:{vR[f]+1}], v[{vR[f]}:{vR[f]+1}] op_sel:[0,0,1] op_sel_hi:[1,0,1]",
                  f"v_cvt_pk_bf16_f32 v{x}, v{t}, v{t+1}"]
        else:
            r += [f"v_lshlrev_b32 v{t}, 16, v{x}", f"v_and_b32 v{t+1}, 0xffff0000, v{x}",
                  f"v_fma_f32 v{t}, v{t}, v{vR[f]}, v{vNB[f]}", f"v_fma_f32 v{t+1}, v{t+1}, v{vR[f]}, v{vNB[f]}",
                  f"v_cvt_pk_bf16_f32 v{x}, v{t}, v{t+1}"]
    return r

def stats_store():
    a, b = vT[0], vT[1]
    r = [f"v_and_b32 v{a}, 12, v{vLANE}", f"v_add_u32 v{a}, v{a}, v{vLANE}", f"v_lshlrev_b32 v{a}, 3, v{a}",
         f"v_mov_b32 v{b}, {OOB}", f"v_cmp_gt_u32 vcc, 16, v{vLANE}", f"v_cndmask_b32 v{a}, v{b}, v{a}, vcc"]
    for f in range(2):
        r.append(I(f"buffer_store_dwordx2 v[{vR[f]}:{vR[f]+1}], v{a}, s[{sWS}:{sWS+3}], s{sSTATO} offen offset:{32*f} sc1", tok="stat"))
    return r

def mlp_dma_addr(kind):
    vD = vDB if kind == "B" else globals()["vD"]
    t0, t1, t2 = vD[1], vD[2], vD[3]
    if kind == "A":
        r = [f"v_lshrrev_b32 v{t0}, 3, v{vLANE}", f"v_and_b32 v{t1}, 7, v{vLANE}", f"v_and_b32 v{t2}, 2, v{t0}", f"v_lshlrev_b32 v{t2}, 1, v{t2}",
             f"v_xor_b32 v{t1}, v{t1}, v{t2}", f"v_lshlrev_b32 v{t1}, 4, v{t1}",
             f"v_mul_u32_u24 v{t0}, 3072, v{t0}", f"v_add_u32 v{vD[0]}, v{t0}, v{t1}"]
        rows = 8
    else:
        r = [f"v_lshrrev_b32 v{t0}, 2, v{vLANE}", f"v_and_b32 v{t1}, 3, v{vLANE}", f"v_lshlrev_b32 v{t1}, 4, v{t1}",
             f"v_mul_u32_u24 v{t0}, 3072, v{t0}", f"v_add_u32 v{vD[0]}, v{t0}, v{t1}"]
        rows = 16
    for p in range(1, 4):
        r.append(f"v_add_u32 v{vD[p]}, {p*(rows*3072 - 1024)}, v{vD[0]}")
    if kind == "B": r.append(f"v_add_u32 v{vRB2}, 0x10000, v{vRB}")
    return r

def dma_M(m):
    slot = m % 4 if m < 10 else BSLOT[m]
    vD = globals()["vD"] if m < 10 else vDB
    if m < 10:
        so = [f"s_mul_i32 s{sD0}, s{sKU[m >> 1]}, 1536", f"s_add_u32 s{sD0}, s{sD0}, s{sMOFF}"]
        if m & 1: so.append(f"s_add_u32 s{sD0}, s{sD0}, {64*3072}")
    else:
        so = [f"s_mul_i32 s{sD0}, s{sKU[m - 10]}, 1536", f"s_add_u32 s{sD0}, s{sD0}, s{sMOFFB}"]
    if m >= 10:
        r = []
        for p in range(4):
            r += [f"s_add_u32 m0, s{sM0A}, {slot*16384}"] + ([t.replace(f"s{sD0}", f"s{sD2}") for t in so] if p == 0 else [f"s_add_u32 s{sD2}, s{sD2}, {0}"] if False else [])
            r.append(I(f"buffer_load_dwordx4 v{vD[p]}, s[{sWM}:{sWM+3}], s{sD2} offen offset:{p*1024} {opt.w_flags} lds", tok=f"M{m}"))
        return r
    r = [f"s_add_u32 m0, s{sM0A}, {slot*16384}"] + so
    for p in range(4):
        r.append(I(f"buffer_load_dwordx4 v{vD[p]}, s[{sWM}:{sWM+3}], s{sD0} offen offset:{p*1024} {opt.w_flags} lds", tok=f"M{m}"))
    return r

def w13_touch_addr():
    a, b = vT[5], vT[6]
    return [f"v_lshrrev_b32 v{a}, 1, v{vLANE}", f"v_mul_u32_u24 v{a}, 3072, v{a}", f"v_and_b32 v{b}, 1, v{vLANE}", f"v_lshl_add_u32 v{a}, v{b}, 7, v{a}",
            f"v_accvgpr_write_b32 a238, v{a}", f"v_mov_b32 v{b}, {OOB}", f"v_cmp_gt_u32 vcc, 16, v{vLANE}", f"v_cndmask_b32 v{a}, v{b}, v{a}, vcc",
            f"v_accvgpr_write_b32 a239, v{a}",
            f"s_and_b32 s{sT2}, s{sC}, 7", f"s_lshl_b32 s{sT2}, s{sT2}, 1", f"s_lshr_b32 s{sT3}, s{sW}, 1", f"s_add_u32 s{sT2}, s{sT2}, s{sT3}",
            f"s_mul_i32 s{sT2}, s{sT2}, {40*3072}", f"s_mul_i32 s{sT3}, s{sG}, 192", f"s_and_b32 s{sT3}, s{sT3}, 0xffffff80", f"s_add_u32 s{sD2}, s{sT2}, s{sT3}"]
def w13_touch():
    a = I(f"buffer_load_dword a228, v{vFLAG}, s[{sWM}:{sWM+3}], s{sD2} offen", tok="TW"); a.lines = 64
    b = I(f"buffer_load_dword a228, v{vFLAG}, s[{sWM}:{sWM+3}], s{sD2} offen", tok="TW"); b.lines = 16
    return [[f"v_accvgpr_read_b32 v{vFLAG}, a238", a], [f"v_accvgpr_read_b32 v{vFLAG}, a239", f"s_add_u32 s{sD2}, s{sD2}, {32*3072}", b]]

def delay(tag, mod, val, ticks):
    if not opt.delay: return []
    return ["@raw_begin", f"s_and_b32 s{sD0}, s2, {mod}", f"s_cmp_eq_u32 s{sD0}, {val}", f"s_cbranch_scc0 L_dl{tag}",
            f"s_memrealtime s[{sSTAMP}:{sSTAMP+1}]", "s_waitcnt lgkmcnt(0)", f"s_mov_b32 s{sD1}, s{sSTAMP}", f"L_dw{tag}:",
            f"s_memrealtime s[{sSTAMP}:{sSTAMP+1}]", "s_waitcnt lgkmcnt(0)", f"s_sub_u32 s{sD0}, s{sSTAMP}, s{sD1}",
            f"s_cmp_lt_u32 s{sD0}, {ticks*opt.delay}", f"s_cbranch_scc1 L_dw{tag}", f"L_dl{tag}:", "@raw_end"]

def skew(tag):
    if not opt.skew: return []
    return [f"s_bitcmp1_b32 s{sW}, 0", f"s_cbranch_scc1 L_sk{tag}a", "s_nop 0", f"L_sk{tag}a:", f"s_bitcmp1_b32 s{sW}, 1", f"s_cbranch_scc1 L_sk{tag}b", "s_nop 1", f"L_sk{tag}b:"]

def mlp_read_addr():
    G, r_, c, t, u = vT[19], vT[20], vT[21], vT[22], vT[23]
    return [f"v_lshrrev_b32 v{G}, 4, v{vLANE}", f"v_bfe_u32 v{r_}, v{vLANE}, 2, 2", f"v_and_b32 v{c}, 3, v{vLANE}",
         f"v_lshrrev_b32 v{t}, 1, v{G}", f"v_lshlrev_b32 v{t}, 11, v{t}", f"v_lshl_add_u32 v{t}, v{r_}, 7, v{t}",
         f"v_and_b32 v{u}, 1, v{c}", f"v_lshl_add_u32 v{t}, v{u}, 3, v{t}",
         f"v_and_b32 v{u}, 1, v{G}", f"v_lshlrev_b32 v{u}, 1, v{u}", f"v_lshrrev_b32 v{vRA[1]}, 1, v{c}", f"v_add_u32 v{u}, v{u}, v{vRA[1]}",
         f"v_lshrrev_b32 v{vRA[1]}, 1, v{r_}", f"v_lshlrev_b32 v{vRA[1]}, 2, v{vRA[1]}", f"v_xor_b32 v{u}, v{u}, v{vRA[1]}",
         f"v_lshl_add_u32 v{vRA[0]}, v{u}, 4, v{t}", f"v_xor_b32 v{vRA[1]}, 64, v{vRA[0]}",
         f"v_lshrrev_b32 v{t}, 1, v{G}", f"v_lshlrev_b32 v{t}, 10, v{t}", f"v_lshl_add_u32 v{t}, v{r_}, 6, v{t}",
         f"v_and_b32 v{u}, 1, v{G}", f"v_lshl_add_u32 v{t}, v{u}, 5, v{t}", f"v_lshl_add_u32 v{vRB}, v{c}, 3, v{t}",
         f"v_lshlrev_b32 v{u}, 10, v{u}", f"v_lshrrev_b32 v{t}, 1, v{G}", f"v_lshl_add_u32 v{u}, v{t}, 8, v{u}",
         f"v_and_b32 v{t}, 15, v{vLANE}", f"v_lshl_add_u32 v{vHH}, v{t}, 4, v{u}"]

def relayout_issue():
    u, t0, t1, t2 = sT2, vT[5], vT[6], vT[7]
    vo = vT[0:5]
    r = [f"s_lshl_b32 s{u}, s{sW}, 5", f"s_add_u32 s{u}, s{u}, s{sRT}",
       f"s_mul_i32 s{sT3}, s{sN}, 88", f"s_add_u32 s{sT3}, s{sT3}, s{u}", f"s_mul_i32 s{sT3}, s{sT3}, 5120", f"s_add_u32 s{sT3}, s{sT3}, {WS_W2P}",
       f"s_cmp_lt_u32 s{u}, 88", f"s_cselect_b32 s{sRLST}, s{sT3}, {OOB}",
       f"s_mov_b32 s{sRL+3}, 0x20000", f"s_cmp_lt_u32 s{u}, 40", "@arm", "s_cbranch_scc0 L_rlw",
       f"s_cmp_lt_u32 s{u}, 20", f"s_cselect_b32 s{sRL}, s{pCRE}, s{pCIM}", f"s_cselect_b32 s{sRL+1}, s{pCRE+1}, s{pCIM+1}",
       f"s_cselect_b32 s{sT3}, 0, 20", f"s_sub_u32 s{sT3}, s{u}, s{sT3}", f"s_lshl_b32 s{sT3}, s{sT3}, 6",
       f"s_mul_i32 s{sT4}, s{sN}, {80*1280}", f"s_add_u32 s{sRLOFF}, s{sT3}, s{sT4}",
       f"s_mov_b32 s{sRL+2}, {640*1280}",
       f"v_lshrrev_b32 v{t0}, 2, v{vLANE}", f"v_and_b32 v{t1}, 3, v{vLANE}", f"v_lshlrev_b32 v{t1}, 4, v{t1}",
       f"v_mul_u32_u24 v{t0}, 1280, v{t0}", f"v_add_u32 v{vo[0]}, v{t0}, v{t1}"]
    for e in range(1, 5): r.append(f"v_add_u32 v{vo[e]}, {e*16*1280}, v{vo[0]}")
    r += ["s_branch L_rlj", "@else", "L_rlw:",
       f"s_mov_b32 s{sRL}, s{pW2}", f"s_mov_b32 s{sRL+1}, s{pW2+1}",
       f"s_cmp_lt_u32 s{u}, 88", f"s_cselect_b32 s{sRL+2}, {1536*1280}, 0",
       f"s_sub_u32 s{sT3}, s{u}, 40", f"s_mul_i32 s{sT3}, s{sT3}, {32*1280}", f"s_mul_i32 s{sT4}, s{sN}, 160", f"s_add_u32 s{sRLOFF}, s{sT3}, s{sT4}",
       f"s_mov_b32 s{sT4}, 6554"]
    for p in range(5):
        r += [f"v_add_u32 v{t0}, {64*p}, v{vLANE}", f"v_mul_u32_u24 v{t1}, s{sT4}, v{t0}", f"v_lshrrev_b32 v{t1}, 16, v{t1}",
              f"v_mul_u32_u24 v{t2}, 10, v{t1}", f"v_sub_u32 v{t2}, v{t0}, v{t2}", f"v_lshlrev_b32 v{t2}, 4, v{t2}",
              f"v_mul_u32_u24 v{t1}, 1280, v{t1}", f"v_add_u32 v{vo[p]}, v{t1}, v{t2}"]
    r += ["@endarm", "L_rlj:", f"s_and_b32 s{sRL+1}, s{sRL+1}, 0xffff"]
    r += [f"v_accvgpr_write_b32 a{232+p}, v{vo[p]}" for p in range(5)]
    return r
def relayout_dma():
    vo = vT[0:5]
    r = []
    if "r" in opt.skip: return r
    for p in range(5):
        r.append([f"s_add_u32 m0, s{sM0U}, {L_RL + p*1024}", f"v_accvgpr_read_b32 v3, a{232+p}",
                  I(f"buffer_load_dwordx4 v3, s[{sRL}:{sRL+3}], s{sRLOFF} offen {'nt' if opt.rl_nt else ''} lds", tok="RL")])
    return r

def relayout_raddr():
    t0, t1, t2 = vT[5], vT[6], vT[7]
    return [f"v_and_b32 v{t0}, 15, v{vLANE}", f"v_lshrrev_b32 v{t1}, 4, v{vLANE}", f"v_lshlrev_b32 v{t1}, 4, v{t1}", f"v_lshl_add_u32 v{t0}, v{t0}, 6, v{t1}",
            f"v_lshrrev_b32 v{t1}, 2, v{vLANE}", f"v_and_b32 v{t2}, 8, v{t1}", f"v_add_u32 v{t1}, v{t1}, v{t2}", f"v_mul_u32_u24 v{t1}, 160, v{t1}",
            f"v_and_b32 v{t2}, 3, v{vLANE}", f"v_lshl_add_u32 v{t1}, v{t2}, 3, v{t1}",
            f"s_lshl_b32 s{sT2}, s{sW}, 5", f"s_add_u32 s{sT2}, s{sT2}, s{sRT}", f"s_cmp_lt_u32 s{sT2}, 40", f"s_cselect_b64 s[{sEX0}:{sEX0+1}], -1, 0",
            f"s_cselect_b32 s{sRLT}, 1, 0", f"s_add_u32 s{sT3}, s{sM0U}, {L_RL}",
            f"v_cndmask_b32 v{t0}, v{t1}, v{t0}, s[{sEX0}:{sEX0+1}]", f"v_add_u32 v{t0}, s{sT3}, v{t0}", f"v_accvgpr_write_b32 a237, v{t0}"]
def relayout_finish():
    if "r" in opt.skip: return []
    t0 = vT[0]
    r = [f"v_accvgpr_read_b32 v{t0}, a237", "@waitvm RL", f"s_cmp_eq_u32 s{sRLT}, 1", "s_cbranch_scc0 L_rfw"]
    for e in range(5):
        for h in range(2): r.append(f"ds_read_b64 {ar(aRL+4*e+2*h, 2)}, v{t0} offset:{e*1024 + 8*h}")
    r += ["@raw_begin", "s_branch L_rfj", "L_rfw:"]
    for e in range(5):
        for jj in range(2): r.append(f"ds_read_b64_tr_b16 {ar(aRL+4*e+2*jj, 2)}, v{t0} offset:{jj*1280 + e*32}")
    r += ["@raw_end", "L_rfj:"]
    for e in range(5):
        if e < 4: r.append(I(f"buffer_store_dwordx4 {ar(aRL+4*e)}, v{vL16}, s[{sWS}:{sWS+3}], s{sRLST} offen offset:{e*1024} sc1", tok="RLS"))
        else: r.append(I(f"buffer_store_dwordx4 {ar(aRL+4*e)}, v{vW4}, s[{sWS}:{sWS+3}], s{sRLST} offen sc1", tok="RLS"))
    return r

def flag_store(base, sline, sidx):
    return [f"s_lshl_b32 s{sD0}, s{sline}, 7", f"s_lshl_b32 s{sD1}, s{sidx}, 2", f"s_add_u32 s{sD0}, s{sD0}, s{sD1}", f"s_add_u32 s{sD0}, s{sD0}, {base}",
            f"s_cmp_eq_u32 s{sW}, 0", f"s_cselect_b32 s{sD0}, s{sD0}, {OOB}",
            f"buffer_store_dword v{vNON}, off, s[{sWS}:{sWS+3}], s{sD0} sc1"]
def flag_load(base, sline, shift, mask, st=None):
    st = sD0 if st is None else st
    return [f"s_lshr_b32 s{st}, s{sline}, {shift}", f"s_lshl_b32 s{st}, s{st}, 7", f"s_add_u32 s{st}, s{st}, {base}",
            f"v_and_b32 v{vFLAG}, {mask}, v{vLANE}", f"v_lshlrev_b32 v{vFLAG}, 2, v{vFLAG}",
            f"buffer_load_dword v{vFLAG}, v{vFLAG}, s[{sWS}:{sWS+3}], s{st} offen sc1"]
def flag_check(base, sline, shift, mask):
    if "f" in opt.skip: return [f"v_mov_b32 v{vFLAG}, 0"]
    return poll(flag_load(base, sline, shift, mask, sD0), [f"v_cmp_ne_u32 vcc, s{sNONCE}, v{vFLAG}"])

def scan_addr():
    col, q, ch, t = vT[19], vT[20], vT[21], vT[22]
    return [f"s_lshl_b32 s{sT2}, s{sW}, 13", f"s_add_u32 s{sT2}, s{sT2}, {L_PRIV}",
            f"v_and_b32 v{col}, 15, v{vLANE}", f"v_lshrrev_b32 v{q}, 4, v{vLANE}",
            f"v_lshl_add_u32 v{vCOLR}, v{col}, 4, s{sT2}",
            f"v_lshl_add_u32 v{vEW}, v{q}, 2, v{vCOLR}",
            f"v_min_u32 v{ch}, 39, v{vLANE}", f"v_lshlrev_b32 v{vSO}, 4, v{ch}",
            f"v_lshrrev_b32 v{t}, 3, v{ch}", f"v_lshlrev_b32 v{t}, 3, v{t}", f"v_add_u32 v{t}, v{t}, v{ch}",
            f"v_lshl_add_u32 v{vER}, v{t}, 4, s{sT2}",
            f"v_add_u32 v{vCH}, s{sT2}, v{vL16}",
            f"s_lshl_b32 s{sT3}, s{sW}, 9", f"s_add_u32 s{sT3}, s{sT3}, {L_TT}", f"v_lshl_add_u32 v{vTT}, v{vLANE}, 3, s{sT3}",
            f"v_lshlrev_b32 v{vLB}, 5, v{vLANE}", f"v_add_u32 v{vLB}, {L_LB}, v{vLB}",
            f"s_add_u32 s{sT3}, s{sM0U}, {L_RL}",
            f"v_lshlrev_b32 v{vTW}, 5, v{col}", f"v_lshl_add_u32 v{vTW}, v{q}, 3, v{vTW}", f"v_add_u32 v{vTW}, s{sT3}, v{vTW}",
            f"v_bfe_u32 v{t}, v{vLANE}, 2, 2", f"v_lshlrev_b32 v{t}, 5, v{t}", f"v_lshl_add_u32 v{t}, v{q}, 8, v{t}",
            f"v_and_b32 v{ch}, 3, v{vLANE}", f"v_lshl_add_u32 v{t}, v{ch}, 3, v{t}", f"v_add_u32 v{vTR}, s{sT3}, v{t}",
            f"v_lshrrev_b32 v{t}, 1, v{q}", f"v_lshlrev_b32 v{t}, 10, v{t}", f"v_lshl_add_u32 v{vHST}, v{col}, 4, v{t}",
            f"v_and_b32 v{t}, 1, v{q}", f"v_mul_u32_u24 v{t}, {20*4096}, v{t}", f"v_add_u32 v{vHST}, v{vHST}, v{t}"]

def const_park():
    src = [cAR, cAI, cKR, cKI] + list(range(60, 70))
    return [f"v_accvgpr_write_b32 a{200+k}, v{s}" for k, s in enumerate(src)]
def const_tables():
    t = vT[0:8]
    r = [f"v_accvgpr_read_b32 v{t[0]}, a200", f"v_accvgpr_read_b32 v{t[1]}, a201", f"v_accvgpr_read_b32 v{t[2]}, a202", f"v_accvgpr_read_b32 v{t[3]}, a203",
         f"v_sub_f32 v{t[3]}, 0, v{t[3]}",
         f"v_mov_b32 v{t[4]}, v{t[0]}", f"v_sub_f32 v{t[5]}, 0, v{t[1]}", f"v_sub_f32 v{t[6]}, 0, v{t[2]}", f"v_mov_b32 v{t[7]}, v{t[3]}",
         f"ds_write_b128 v{vER}, {vr(t[0])} offset:{PV_COL}", f"ds_write_b128 v{vER}, {vr(t[4])} offset:{PV_COL+128}",
         f"ds_write_b128 v{vCH}, {ar(204)} offset:{PV_CH}", f"ds_write_b128 v{vCH}, {ar(208)} offset:{PV_CH+1024}",
         f"ds_write_b64 v{vCH}, {ar(212, 2)} offset:{PV_CH+2048}",
         f"v_mov_b32 v{t[0]}, 0", f"v_mov_b32 v{t[1]}, 0",
         f"s_min_u32 s{sT2}, s{sW}, 2", f"s_lshl_b32 s{sT2}, s{sT2}, 9", f"s_add_u32 s{sT2}, s{sT2}, {L_TT}",
         f"v_lshl_add_u32 v{t[2]}, v{vLANE}, 3, s{sT2}", f"ds_write_b64 v{t[2]}, {vr(t[0], 2)}"]
    return r

def ureg(cf, tau): return U(cf, tau >> 2) + (tau & 3)
DPP = "row_ror:8 row_mask:0xf bank_mask:0xf"
def scan_P12():
    C = vT[0:20]
    r = [I(f"ds_read_b128 {vr(C[4*cf])}, v{vCOLR} offset:{PV_COL + cf*256}", tok="colr") for cf in range(5)]
    r.append("@gap 1")
    t = vT[20:24]
    k = 0
    for tau in range(8):
        for cf in range(5):
            u = ureg(cf, tau); tt = t[k % 4]; k += 1
            r += [f"v_mul_f32_dpp v{tt}, v{u}, v{C[4*cf+3]} {DPP}", f"v_fma_f32 v{u}, v{C[4*cf+2]}, v{u}, v{tt}"]
    for tau in range(1, 8):
        src = [(ureg(cf, 0) if tau == 1 else C[4*cf + 2 + (tau & 1)]) for cf in range(5)]
        dst = [C[4*cf + 2 + ((tau + 1) & 1)] for cf in range(5)]
        for cf in range(5): r.append(f"v_fma_f32 v{dst[cf]}, v{C[4*cf]}, v{src[cf]}, v{ureg(cf, tau)}")
        for cf in range(5): r.append(f"v_fmac_f32_dpp v{dst[cf]}, v{src[cf]}, v{C[4*cf+1]} {DPP}")
    for cf in range(5): r.append(f"ds_write_b32 v{vEW}, v{C[4*cf+2]} offset:{PV_E + cf*256}")
    er, ei, a8 = vT[0], vT[4], vT[8]
    r += [f"ds_read_b128 {vr(a8)}, v{vCH} offset:{PV_CH}",
          f"ds_read_b128 {vr(er)}, v{vER} offset:{PV_E}", f"ds_read_b128 {vr(ei)}, v{vER} offset:{PV_E+128}", "@gap 2"]
    g0, g1 = vT[12], vT[14]
    r += chorner2(g0, g0+1, er, ei, a8, a8+1, er+1, ei+1)
    r += chorner2(g1, g1+1, g0, g0+1, a8, a8+1, er+2, ei+2)
    r += chorner2(g0, g0+1, g1, g1+1, a8, a8+1, er+3, ei+3)
    r += [f"ds_write_b64 v{vTT}, {vr(g0, 2)} offset:{3*512}"]
    return r

def scan_P3():
    a32 = vT[8]; T = vT[0:8]
    r = [f"ds_read_b128 {vr(a32)}, v{vCH} offset:{PV_CH}"]
    for k in range(4): r.append(f"ds_read_b64 {vr(T[2*k], 2)}, v{vTT} offset:{k*512}")
    r.append("@gap 2")
    m = a32 + 2
    g = vT[12]
    r += chorner2(g, g+1, T[0], T[1], m, m+1, T[2], T[3])
    r += chorner2(vWP0, vWP1, g, g+1, m, m+1, T[4], T[5])
    r += chorner2(g, g+1, vWP0, vWP1, m, m+1, T[6], T[7])
    r += [f"v_mov_b32 v{g+2}, s{sNONCE}", f"v_mov_b32 v{g+3}, s{sNONCE}",
          f"buffer_store_dwordx4 {vr(g)}, v{vSO}, s[{sWS}:{sWS+3}], s{sSST} offen sc1"]
    return r

def lb_loads():
    return [f"buffer_load_dwordx4 {ar(aS+4*jj)}, v{vSO}, s[{sWS}:{sWS+3}], s{sl} offen sc1" for jj, sl in enumerate((sLB0, sLB1, sLB2, sLB3))]
def scan_P4():
    t = vT[0:8]
    chk = []
    for jj, sl in enumerate((sLB0, sLB1, sLB2, sLB3)):
        d = t[2] if jj == 0 else t[0]
        chk += [f"s_cmp_lt_u32 s{sl}, {OOB}", f"s_cselect_b32 s{sT2}, s{sNONCE}, 0", f"v_accvgpr_read_b32 v{d}, a{aS+4*jj+2}",
                f"v_xor_b32 v{d}, s{sT2}, v{d}"]
        if jj: chk += [f"v_or_b32 v{t[2]}, v{t[2]}, v{t[0]}"]
    chk += [f"v_cmp_ne_u32 vcc, 0, v{t[2]}"]
    c = vT[8]
    r = [f"ds_read_b128 {vr(c)}, v{vCH} offset:{PV_CH+1024}", f"ds_read_b64 {vr(vT[12], 2)}, v{vCH} offset:{PV_CH+2048}"]
    if "f" not in opt.skip: r += poll(lb_loads(), [i.text for i in insert_nops(II(chk))])
    for jj in range(4):
        r += [f"v_accvgpr_read_b32 v{t[2*jj]}, a{aS+4*jj}", f"v_accvgpr_read_b32 v{t[2*jj+1]}, a{aS+4*jj+1}"]
    m = c + 2; g0, g1 = vT[14], vT[16]
    r += chorner2(g0, g0+1, t[0], t[1], m, m+1, t[2], t[3])
    r += chorner2(g1, g1+1, g0, g0+1, m, m+1, t[4], t[5])
    r += chorner2(g0, g0+1, g1, g1+1, m, m+1, t[6], t[7])
    r += cmul(g1, g1+1, g0, g0+1, vT[12], vT[13], vT[18])
    r += [f"s_lshl_b32 s{sT2}, s{sW}, 3", f"v_add_u32 v{vT[18]}, s{sT2}, v{vLB}", f"ds_write_b64 v{vT[18]}, {vr(g1, 2)}"]
    return r

def scan_P56():
    lb = vT[0]; er, ei = vT[8], vT[12]; c8, c32w = vT[16], vT[20]
    r = [f"ds_read_b128 {vr(lb)}, v{vLB}", f"ds_read_b128 {vr(lb+4)}, v{vLB} offset:16",
         f"ds_read_b64 {vr(c32w, 2)}, v{vCH} offset:{PV_CH+1024}", f"ds_read_b128 {vr(c8)}, v{vCH} offset:{PV_CH}",
         f"ds_read_b128 {vr(er)}, v{vER} offset:{PV_E}", f"ds_read_b128 {vr(ei)}, v{vER} offset:{PV_E+128}", "@gap 2",
         f"v_add_f32 v{lb}, v{lb}, v{lb+2}", f"v_add_f32 v{lb+1}, v{lb+1}, v{lb+3}",
         f"v_add_f32 v{lb+4}, v{lb+4}, v{lb+6}", f"v_add_f32 v{lb+5}, v{lb+5}, v{lb+7}",
         f"v_add_f32 v{lb}, v{lb}, v{lb+4}", f"v_add_f32 v{lb+1}, v{lb+1}, v{lb+5}"]
    q0, q1 = vT[4], vT[20]
    tmp = vT[2]
    r += chorner2(tmp, tmp+1, lb, lb+1, c32w, c32w+1, vWP0, vWP1)
    r += [f"v_mov_b32 v{q0}, v{tmp}", f"v_mov_b32 v{q1}, v{tmp+1}"]
    for k in range(3):
        r += chorner2(q0+k+1, q1+k+1, q0+k, q1+k, c8, c8+1, er+k, ei+k)
    r += [f"ds_write_b128 v{vER}, {vr(q0)} offset:{PV_E}", f"ds_write_b128 v{vER}, {vr(q1)} offset:{PV_E+128}"]
    C = vT[0:10]; Z = vT[10:15]
    for cf in range(5): r.append(f"ds_read_b32 v{Z[cf]}, v{vEW} offset:{PV_E + cf*256}")
    for cf in range(5): r.append(f"ds_read_b64 {vr(C[2*cf], 2)}, v{vCOLR} offset:{PV_COL + cf*256}")
    r.append("@gap 2")
    for tau in range(8):
        src = [(Z[cf] if tau == 0 else ureg(cf, tau-1)) for cf in range(5)]
        for cf in range(5): r.append(f"v_fma_f32 v{ureg(cf, tau)}, v{C[2*cf]}, v{src[cf]}, v{ureg(cf, tau)}")
        for cf in range(5): r.append(f"v_fmac_f32_dpp v{ureg(cf, tau)}, v{src[cf]}, v{C[2*cf+1]} {DPP}")
    for cf in range(5):
        for f in range(2):
            t = vT[2*(cf*2+f)]; u = U(cf, f)
            r += [f"v_cvt_pk_bf16_f32 v{t}, v{u}, v{u+1}", f"v_cvt_pk_bf16_f32 v{t+1}, v{u+2}, v{u+3}"]
    for k in range(10): r.append(f"ds_write_b64 v{vTW}, {vr(vT[2*k], 2)} offset:{k*512}")
    for cf in range(5):
        for jj in range(2):
            r.append(f"ds_read_b64_tr_b16 {vr(56 + 4*cf + 2*jj, 2)}, v{vTR} offset:{cf*1024 + jj*128}")
    for cf in range(5):
        r.append(I(f"buffer_store_dwordx4 {vr(56 + 4*cf)}, v{vHST}, s[{sWS}:{sWS+3}], s{sHO[cf]} offen sc1", tok="HST"))
    return r

def swiglu(acc, h2s, sks, tokname, packed=False):
    r = []
    k = 0
    for h2 in h2s:
        for z in range(2):
            G = vT[0:8]; Uu = vT[8:16]; T = vT[16:24]
            for j in range(8):
                r += [f"v_accvgpr_read_b32 v{G[j]}, a{acc(0, h2) + 8*z + j}", f"v_accvgpr_read_b32 v{Uu[j]}, a{acc(1, h2) + 8*z + j}"]
            if packed:
                for j in range(0, 8, 2): r.append(f"v_pk_mul_f32 {vr(T[j], 2)}, {vr(G[j], 2)}, s[{sEX0}:{sEX0+1}]")
                for j in range(8):
                    r.append(f"v_exp_f32 v{T[j]}, v{T[j]}")
                for j in range(0, 8, 2): r.append(f"v_pk_mul_f32 {vr(G[j], 2)}, {vr(G[j], 2)}, {vr(Uu[j], 2)}")
                for j in range(0, 8, 2): r.append(f"v_pk_add_f32 {vr(T[j], 2)}, {vr(T[j], 2)}, s[{sEX2}:{sEX2+1}]")
                for j in range(8): r.append(f"v_rcp_f32 v{T[j]}, v{T[j]}")
                for j in range(0, 8, 2): r.append(f"v_pk_mul_f32 {vr(G[j], 2)}, {vr(G[j], 2)}, {vr(T[j], 2)}")
            else:
                for j in range(8): r.append(f"v_mul_f32 v{T[j]}, {NLOG2E}, v{G[j]}")
                for j in range(8): r += [f"v_exp_f32 v{T[j]}, v{T[j]}", f"v_mul_f32 v{G[j]}, v{G[j]}, v{Uu[j]}"]
                for j in range(8): r.append(f"v_add_f32 v{T[j]}, 1.0, v{T[j]}")
                for j in range(8): r.append(f"v_rcp_f32 v{T[j]}, v{T[j]}")
                for j in range(8): r.append(f"v_mul_f32 v{G[j]}, v{G[j]}, v{T[j]}")
            o = Uu[0] if k % 2 == 0 else Uu[4]; k += 1
            for j in range(4): r.append(f"v_cvt_pk_bf16_f32 v{o+j}, v{G[2*j]}, v{G[2*j+1]}")
            if z == 0: r.append(f"s_add_u32 s{sT2}, s{sks}, {h2*4096}")
            r.append(I(f"buffer_store_dwordx4 {vr(o)}, v{vHH}, s[{sWS}:{sWS+3}], s{sT2} offen offset:{z*512} sc1", tok=tokname))
    return r

def step_reads(blk, s, par):
    r = []
    if blk == "U":
        i, sh2, sh = s // 4, (s >> 1) & 1, s & 1
        off = i*20480 + sh2*10240 - (61440 if i >= 3 else 0)
        for cf in range(5):
            r.append(f"ds_read_b128 {ar(FB(par, cf))}, v{vRU[sh]} offset:{off + cf*1024}")
    elif blk == "A":
        m, sp = s // 2, s & 1
        for hf in range(2):
            for h2 in range(2):
                for mu in range(2):
                    for jj in range(2):
                        r.append(f"ds_read_b64_tr_b16 {ar(FB(par, hf*4+h2*2+mu) + 2*jj, 2)}, v{vRA[h2]} offset:{(m % 4)*16384 + (2*sp+mu)*4096 + hf*1024 + jj*512}")
    else:
        m, sd = 10 + s // 2, s & 1
        for s2 in range(2):
            for hf in range(2):
                for mu in range(2):
                    for jj in range(2):
                        r.append(f"ds_read_b64_tr_b16 {ar(FB(par, s2*4+hf*2+mu) + 2*jj, 2)}, v{vRB2 if BSLOT[m] >= 4 else vRB} offset:{(BSLOT[m] % 4)*16384 + (2*sd+mu)*4096 + s2*2048 + hf*512 + jj*256}")
    return r

def step_mfma(blk, s, par):
    r = []
    if blk == "U":
        for cf in range(5):
            for f in range(2):
                d = vr(U(cf, f)); c = "0" if s == 0 else d
                r.append(f"v_mfma_f32_16x16x32_bf16 {d}, {vr(X(f, s))}, {ar(FB(par, cf))}, {c}")
    elif blk == "A":
        for hf in range(2):
            for h2 in range(2):
                for mu in range(2):
                    d = ar(ACCA(mu, h2), 16); c = "0" if (s == 0 and hf == 0) else d
                    r.append(f"v_mfma_f32_32x32x16_bf16 {d}, {ar(FB(par, hf*4+h2*2+mu))}, {vr(X(hf, s))}, {c}")
    else:
        for s2 in range(2):
            for hf in range(2):
                for mu in range(2):
                    d = ar(ACCB(mu), 16); c = "0" if (s == 0 and hf == 0 and s2 == 0) else d
                    r.append(f"v_mfma_f32_32x32x16_bf16 {d}, {ar(FB(par, s2*4+hf*2+mu))}, {vr(X(hf, 2*s+s2))}, {c}")
    return r

def swaps(s): return [] if "w" in opt.skip else [f"v_permlane16_swap_b32 v{X(0, s)+k}, v{X(1, s)+k}" for k in range(4)]

def stage_of(blk, s):
    return ("U", s // 4) if blk == "U" else (("M", s // 2) if blk == "A" else ("M", 10 + s // 2))

def cost(i):
    if i.cls in ("pseudo", "label"): return 0
    if i.cls == "trans": return 2
    if i.cls == "vmem": return opt.vmcost
    return 1

PH = [1]
class Feed(list):
    def append(self, i): EM[0].feed(i)

class Queue:
    def __init__(self): self.q = []; self.hold = 0; self.now = 0
    def add(self, lst, deadline):
        if "q" in opt.skip:
            lst = [t for t in II(lst) if t.cls in ("vmem",) or t.op.startswith("s_") or t.cls in ("pseudo", "label") or t.op.startswith("v_cmp") or t.op.startswith("v_readfirst") or t.op.startswith("v_accvgpr_read") and "a18" in t.text + "a19"]
        lst = II(lst)
        if PH[0] == 1 and opt.skip and not any(t.op in ("@arm", "@raw_begin") for t in lst):
            if "D" in opt.skip: lst = [t for t in lst if not t.op.startswith("ds_write")]
            if "R" in opt.skip: lst = [t for t in lst if not t.op.startswith("ds_read")]
            if "V" in opt.skip: lst = [t for t in lst if t.cls not in ("valu", "trans") or t.op.startswith("v_cmp") or t.op.startswith("v_cndmask")]
            if "S" in opt.skip:
                for t in lst:
                    if t.cls == "vmem" and "store" in t.op and t.tok in ("HST", "HHA"): t.text = t.text.replace("offen", "offen").replace("dwordx4", "dword"); t.text = __import__("re").sub(r"v\[(\d+):\d+\]", r"v\1", t.text, 1); t.wide = False
        lst = II(lst)
        now = max(self.now, max([d for t, d in self.q] + [0]) if opt.chainq else 0)
        if not opt.interp or deadline <= now + 1:
            for t in lst: self.q.append((t, deadline))
            return
        pos = 0; P = []; wr = {}; lastw = -99
        for t in lst:
            if t.cls not in ("pseudo", "label"):
                dep = [wr[r] for r in (t.rd | t.wr) if r in wr]
                if dep: pos = max(pos, max(dep) + opt.vlat)
                if t.op.startswith("ds_read") and pos - lastw < opt.vlat // 2: pos = lastw + opt.vlat // 2
                for r in t.wr: wr.pop(r, None)
                if t.cls == "ds":
                    for r in t.wr: wr[r] = pos
                    if t.op.startswith("ds_write"): lastw = pos
            pos += cost(t) + (1 if t.cls == "ds" else 0)
            P.append(pos)
        prev = now
        for t, p in zip(lst, P):
            d = now + int((deadline - now) * p / max(pos, 1))
            if t.cls == "ds" and PH[0] == 1 and d >= 200:
                while d % 8 < opt.span and d < deadline: d += 1
            d = max(d, prev); prev = d
            self.q.append((t, min(d, deadline)))
    def _region(self, out):
        i = self.q[0][0]
        end = "@endarm" if i.op == "@arm" else "@raw_end"
        while True:
            j = self.q.pop(0)[0]; out.append(j)
            if j.cls == "pseudo" and j.op == end: break
        while self.q and self.q[0][0].cls == "label": out.append(self.q.pop(0)[0])
    def need(self, gap):
        best = 0; acc = 0
        for t, d in self.q:
            acc += cost(t)
            left = d - gap + 1
            if left <= 0: best = max(best, acc)
            else: best = max(best, -(-acc // left))
        return best
    def pop(self, n, gap, ds_ok=True):
        out = Feed(); nds = 0; self.now = gap
        n = max(n, self.need(gap)) if (opt.even and not opt.interp) else n
        while self.q and (n > 0 or self.q[0][1] <= gap):
            i = self.q[0][0]
            if i.cls == "pseudo" and i.op == "@gap":
                self.q.pop(0); continue
            if self.q[0][1] > gap:
                if i.cls == "ds" and (not ds_ok or nds >= opt.dsmax): break
                if i.cls == "ds": nds += 1
                look = [i] + ([x for x, d in self.q[1:12] if x.cls == "pseudo"][:1] if i.op.startswith("s_cmp") else [])
                if i.op.startswith("s_cmp"): look += [x for x, d in self.q[1:4]]
                if max(EM[0].stall(x) for x in look) > opt.thr: break
            if i.cls == "pseudo" and i.op in ("@arm", "@raw_begin"):
                self._region(out); n -= 4
                continue
            if i.cls == "branch" or i.op.startswith("s_cmp") or i.op.startswith("s_bitcmp") or i.op.startswith("v_cmp"):
                out.append(self.q.pop(0)[0])
                if self.q and "L_rfw" in self.q[0][0].text:
                    while self.q[0][0].op != "@raw_begin": out.append(self.q.pop(0)[0])
                    n -= 10
                while self.q:
                    k = self.q[0][0]
                    if k.op.startswith("s_cselect") or k.op.startswith("v_cndmask") or k.cls == "branch": out.append(self.q.pop(0)[0])
                    elif k.op in ("@arm", "@raw_begin"): self._region(out); n -= 4
                    else: break
                n -= 1
                continue
            self.q.pop(0); out.append(i)
            n -= cost(i)
        return out
    def flush(self):
        out = [i for i, d in self.q if not (i.cls == "pseudo" and i.op == "@gap")]
        self.q = []; self.hold = 0
        return out

ACC1 = [("a", 4*k) for k in range(20)]
ACC2 = [("v", 96 + 4*k) for k in range(20)]
A_SLOTS = [("a", 80 + 4*k) for k in range(20)]
GA = [("a", 196 + 4*k) for k in range(15)] + [("a", 160 + 4*k) for k in range(5)]
XFREE = [("v", base + 8*d + 4*h) for d in range(10) for base in (96, 176) for h in range(2)]
HI = [("v", 176 + 4*k) for k in range(20)]
N1 = 12
NLDS = 4
def wslot(st, e):
    if st < 4: return GA[st*5 + e]
    if st < 12: return XFREE[(st - 4)*5 + e]
    if st < 16: return HI[(st - 12)*5 + e]
    if st < 20: return GA[(st - 16)*5 + e]
    return HI[(st - 20)*5 + e]
def w_free_after_b(st):
    return -1 if st < 4 else ((st - 4)*5 + 4) // 4
def w_free_after_p(st):
    if st < 16:
        regs = {wslot(st, e) for e in range(5)}
        return max(o for o in range(4, 12) for e in range(5) if wslot(o, e) in regs)
    return st - 16 if st < 20 else st - 8
def rg(t, c=4): return f"{t[0]}[{t[1]}:{t[1]+c-1}]"
vA2 = [3, 4, 5, 6]; vPW = [7, 8, 9]; vPR = 11; vOUT = 13; vXO = 14; vSTA = 15; vDS = 16
vXR = list(range(56, 76)); vY = list(range(76, 96)); vDK = [17, 18, 19, 20, 21]; vST = list(range(32, 40)); vXD2 = [22, 23, 24]; vXL = 25; vWL = 26
L_X2 = 143360
NSTEP = 22
ORDER = [0, 1, 4, 5, 6, 7, 10, 11, 2, 3, 8, 9] + list(range(10))
def ptr_bases():
    return [f"s_mul_i32 s{sAS}, s{sW}, {12*4096}", f"s_add_u32 s{sAS}, s{sAS}, s{sP2A}", f"s_add_u32 s{sAS}, s{sAS}, {40*4096}",
            f"s_mul_i32 s{sAE}, s{sW}, {10*4096}", f"s_add_u32 s{sAE}, s{sAE}, s{sP2A}",
            f"s_mul_i32 s{sWB}, s{sW}, {12*5120}", f"s_add_u32 s{sWB}, s{sWB}, s{sP2W}", f"s_add_u32 s{sWB}, s{sWB}, {40*5120}",
            f"s_mul_i32 s{sWE}, s{sW}, {10*5120}", f"s_add_u32 s{sWE}, s{sWE}, s{sP2W}"]
def ptr_set(which, st):
    if which == "A": return [f"s_add_u32 s{sAP}, s{sAS if st < N1 else sAE}, {ORDER[st]*4096}"]
    return [f"s_add_u32 s{sWP}, s{sWB if st < N1 else sWE}, {ORDER[st]*5120}"]
def p2_wload(st):
    r = []
    r += ptr_set("W", st)
    for e in range(5):
        va, off = (vL16, e*1024) if e < 4 else (vW4, 0)
        if N1 <= st < N1 + NLDS:
            r += [f"s_add_u32 m0, s{sM0}, {L_WY + (st - N1)*5120 + (4096 if e == 4 else 0)}"] + (["s_nop 0"] if True else [])
            r.append(I(f"buffer_load_dwordx4 v{va}, s[{sWS}:{sWS+3}], s{sWP} offen offset:{off} sc1 lds", tok=f"WL{st}"))
        else:
            r.append(I(f"buffer_load_dwordx4 {rg(wslot(st, e))}, v{va}, s[{sWS}:{sWS+3}], s{sWP} offen offset:{off} sc1", tok="W"))
    return r
def p2_wread(st):
    return [f"@waitvm WL{st}"] + [f"ds_read_b128 {rg(wslot(st, e))}, v{vWL} offset:{L_WY + (st - N1)*5120 + e*1024}" for e in range(5)]
def p2_aload(st):
    r = []
    r += ptr_set("A", st)
    for jj in range(4):
        r.append(I(f"buffer_load_dwordx4 {rg(A_SLOTS[(st % 5)*4 + jj])}, v{vA2[jj]}, s[{sWS}:{sWS+3}], s{sAP} offen sc1", tok="A"))
    return r
def p2_setup():
    r = []
    for jj in range(4):
        r += [f"s_add_u32 s{sD0}, s{sW}, {jj}", f"s_and_b32 s{sD0}, s{sD0}, 3", f"v_lshl_add_u32 v{vA2[jj]}, s{sD0}, 10, v{vL16}"]
    return r
def p2_setup2():
    r = []
    for jj in range(1, 4):
        r += [f"s_add_u32 s{sT2}, s{sW}, {jj}", f"s_and_b32 s{sT2}, s{sT2}, 3",
              f"s_mul_i32 s{sT3}, s{sT2}, 15360", f"s_add_u32 s{sT3}, s{sT3}, {(3-jj)*5120}", f"v_add_u32 v{vPW[jj-1]}, s{sT3}, v{vL16}"]
    r += [f"s_mul_i32 s{sT3}, s{sW}, 15360", f"v_add_u32 v{vPR}, s{sT3}, v{vL16}", f"v_add_u32 v{vWL}, s{sM0}, v{vL16}"]
    r += [f"v_add_u32 v{v}, {L_P1}, v{v}" for v in vPW + [vPR]]
    return r

def groups(lst):
    out = []; cur = []
    for t in II(lst):
        cur.append(t)
        if t.cls == "vmem": out.append(cur); cur = []
    if cur: out.append(cur)
    return out
def gstall(grp):
    return max([EM[0].stall(t) for t in grp if t.cls == "vmem" or t.op == "@waitvm"] + [0])

def tagw(st):
    gs = groups(p2_wload(st))
    for gq in gs: gq[-1].lat = None; STEP[id(gq[-1])] = st
    return gs
def taga(st):
    gs = groups(p2_aload(st))
    for gq in gs: STEP[id(gq[-1])] = st
    return gs
STEP = {}

def phase1_blocks():
    Q = Queue()
    seq = [("U", s) for s in range(20)] + [("A", s) for s in range(20)] + [("B", s) for s in range(10)]
    gap0 = []; g = 0
    for blk, s in seq:
        gap0.append(g); g += {"U": 10, "A": 8, "B": 8}[blk]
    gap0.append(g)
    def stage_end(kind, idx):
        n = [k for k, (b, s) in enumerate(seq) if stage_of(b, s) == (kind, idx)][-1]
        return gap0[n]
    L(delay("a", 255, 0, 500)); L(delay("b", 31, 5, 700))
    L(["@waitvm U0", "s_barrier"])
    L(stamp("U start"))
    L(step_reads("U", 0, 0))
    later = []
    pace = [0, len(EM[0].out)]
    bulk = []
    def lat(gs, dl):
        for x in gs: later.append((II(x), dl))
    def blk_(gs, dl):
        at = len(bulk) if dl == 10**6 else next((q for q, (gq, d) in enumerate(bulk) if d == 10**6), len(bulk))
        bulk[at:at] = [(II(x), dl) for x in gs]
    lat([u_piece(2, cf) for cf in range(5)], stage_end("U", 0) - 4)
    lat([nonce_publish()], stage_end("U", 0))
    if opt.rl_pos == -1: lat(relayout_dma(), stage_end("U", 1) - 16)
    lat([u_piece(3, cf) for cf in range(5)], stage_end("U", 1) - 10)
    lat([u_piece(4, cf) for cf in range(5)], stage_end("U", 2) - 20)
    for n, (blk, s) in enumerate(seq):
        par = n & 1
        mf = step_mfma(blk, s, par)
        nxt = seq[n + 1] if n + 1 < len(seq) else None
        rd = II(step_reads(nxt[0], nxt[1], par ^ 1)) if nxt else []
        if rd: rd[-1].tok = f"rd{n+1}"
        boundary = nxt is None or stage_of(*nxt) != stage_of(blk, s)
        gaps = [[] for _ in mf]
        start = 0
        pre = []
        cap = opt.capU if blk == "U" else opt.capM
        if blk == "U" and s == 11: pre += [f"v_add_u32 v{vRU[0]}, 61440, v{vRU[0]}"]
        if blk == "U" and s == 12: pre += [f"v_add_u32 v{vRU[1]}, 61440, v{vRU[1]}"]
        if blk == "A" and s == 0:
            Q.add(nonce_get(), gap0[n] + 6)
            Q.add(scan_P12(), stage_end("M", opt.X_stage) - 2)
        if blk == "B" and s == 0:
            Q.add(swiglu(ACCA, [0, 1], sKSA, "HHA"), stage_end("M", opt.hast) - opt.haend)
        post = []; plat = []; urgent = []; pbulk = []
        if blk == "B":
            for st in range(4, opt.nearly):
                if w_free_after_b(st) == s - 1: blk_(tagw(st), 10**6)
        if boundary:
            kind, idx = stage_of(blk, s)
            start = 1
            here = gap0[n]; nx1 = here + (40 if blk == "U" else 16)
            if kind == "U" and idx == 1:
                if opt.rf_stage == 1: post.append((relayout_finish(), stage_end("U", 3) - 4))
                post += [(const_tables(), stage_end("U", 3) + (10 if opt.rf_stage == 1 else -2)), (stats_store(), stage_end("U", 3) + 16)]
            mi = idx if kind == "M" else idx - 5
            def send(m): return stage_end("M", m) if m >= 0 else stage_end("U", m + 5)
            if kind == "U" and idx == opt.rf_stage and idx != 1: post.append((relayout_finish(), send(opt.F_stage - 1) - 2))
            b = []
            if nxt is not None:
                nk, ni = stage_of(*nxt)
                b.append(I(f"@waitboth {nk}{ni}"))
            else:
                b.append(I("@waitds0"))
            if kind == "M" and idx == opt.hast: b += II(["@waitvm HHA"])
            if kind == "M" and idx == opt.hast: plat.append((groups(flag_store(WS_FLHA, sC, sG)), here + 2))
            if mi == opt.F_stage: b += II(["@waitvm RLS"] if "r" not in opt.skip else [])
            if mi == max(opt.F_stage, 0): b += II(["@waitvm stat"])
            b.append(I("s_barrier"))
            if (opt.stamps or opt.probe) and (opt.fine or (kind, idx) in (("U", 4), ("M", 9), ("M", 14))): b += II(stamp(f"{kind}{idx} end"))
            gaps[0] += b
            if kind == "U" and idx == 0 and opt.t_w13: plat.append((w13_touch(), stage_end("U", 1) + 10))
            if kind == "U" and idx == 0 and opt.rl_pos == 0: plat.append((relayout_dma(), stage_end("U", 2) - 10))
            if kind == "U" and idx == 1: plat.append((groups(dma_M(0)) + groups(dma_M(1)), stage_end("U", 3) - 10))
            if kind == "U" and idx == 1 and opt.rl_pos == 1: plat.append((relayout_dma(), stage_end("U", 4) - 10))
            if kind == "U" and idx == 3: plat.append(([nonce_load()], here + 10))
            if kind == "U" and idx in (2, 3): plat.append((groups(dma_M(idx)), stage_end("M", idx - 1) - opt.slack))
            if kind == "U" and idx == 4:
                plat.append(([mlp_dma_addr("B")], here + 6))
                pbulk.append((groups(dma_M(10)), stage_end("M", opt.b10)))
            if mi == max(opt.F_stage, 0): plat.insert(0, (groups(flag_store(WS_FLW, sN, sRT)), here + 6))
            if kind == "M" and idx + 4 <= 9: plat.append((groups(dma_M(idx + 4)), stage_end("M", idx + 3) - opt.slack))
            if kind == "M" and idx == opt.L_stage: plat.insert(0, (groups(lb_loads()), here + 8))
            if kind == "M" and idx in BISSUE: pbulk.append((groups(dma_M(BISSUE[idx][0])), stage_end("M", BISSUE[idx][0] - 1) - opt.slack))
            if kind == "M" and idx == opt.X_stage:
                post.append((scan_P3(), stage_end("M", opt.X_stage + 1) + 8))
            if kind == "M" and idx == opt.C_stage:
                assert not any("a[180:183]" in x.text for gq, d in later for x in gq)
                post.append((scan_P4(), stage_end("M", opt.Y_stage) - 2))
            if kind == "M" and idx == opt.Y_stage:
                gaps[0] += II(delay("d", 63, 17, 900))
                post.append((scan_P56()[:33], stage_end("M", opt.Y_stage + 1) - 2))
            if kind == "M" and idx == opt.W_stage - 1 and opt.nearly:
                plat.append((groups(flag_load(WS_FLW, sN, 0, 31)), nx1))
            if kind == "M" and idx == opt.W_stage and opt.nearly:
                plat.append(([flag_check(WS_FLW, sN, 0, 31)], nx1 + 8))
                for st in range(min(4, opt.nearly)): pbulk.append((tagw(st), 10**6))
            if kind == "M" and idx == 13: urgent += [p2_setup()]
            if kind == "U" and idx == 4: urgent += [[f"global_load_ushort a231, v{vLANE}, s[{pDSK}:{pDSK+1}]"]] if False else []
        ng = len(mf)
        if rd:
            if nxt[0] == "U": span = 5
            elif blk == "U": span = 7
            else: span = opt.span
            for k, t in enumerate(rd): gaps[start + (k * span) // len(rd)].append(t)
        if nxt and nxt[0] == "A":
            for k, t in enumerate(II(swaps(nxt[1]))): gaps[ng - 5 + k].append(t)
        if blk == "U" and opt.pre_norm <= s + 1 < 20 and "n" not in opt.skip:
            nq = II(norm_step(1, s + 1, False, vT[20:24]))
            for k, t in enumerate(nq): gaps[(k * ng) // len(nq)].append(t)
        L(pre)
        E(f"@waitds rd{n}")
        for k, t in enumerate(mf):
            E(t)
            L(gaps[k])
            gap = gap0[n] + k
            used = sum(cost(x) for x in gaps[k])
            if boundary and k == 0:
                for lst, dl in post: Q.add(lst, dl)
                for gs, dl in plat: lat(gs, dl)
                for gs, dl in pbulk: blk_(gs, dl)
                lat(urgent, here + 14)
                continue
            due_b = any(d - gap <= q + len(later) for q, (gq, d) in enumerate(bulk))
            overdue = due_b or any(d - gap <= q for q, (gq, d) in enumerate(later))
            q_ = later if later else bulk
            if q_ and (overdue or (EM[0].t >= pace[0] and k != 0)):
                grp = q_.pop(0)[0]; L(grp); used += sum(cost(x) for x in grp)
            for x in EM[0].out[pace[1]:]:
                if x.cls == "vmem" and x.lines is not None and not x.text.startswith("buffer_load_dword v29,"):
                    cold = (x.tok in (("RL", "TW") if opt.t_w13 else ("M0", "M1", "M10", "RL"))) and opt.coldpace or 1
                    pace[0] = max(pace[0], EM[0].t - opt.burst) + x.lines * opt.pace * cold
            pace[1] = len(EM[0].out)
            Q.pop(cap - used, gap, ds_ok=(k >= (opt.span if blk != "U" else 5)))
    L(Q.flush())
    for gq, d in later: L(gq)
    return [gq for gq, d in bulk]

def p2_mfma(st):
    r = []
    first = st in (0, N1)
    acc = ACC1 if st < N1 else ACC2
    for jj in range(4):
        for e in range(5):
            d = rg(acc[jj*5+e]); c = "0" if (first and not (st == N1 and jj == 0)) else d
            r.append(f"v_mfma_f32_16x16x32_bf16 {d}, {rg(A_SLOTS[(st % 5)*4+jj])}, {rg(wslot(st, e))}, {c}")
    return r

def p2_partials(base, acc):
    return [f"ds_write_b128 v{vPW[jj-1]}, {rg(acc[jj*5+e])} offset:{base + e*1024}" for jj in range(1, 4) for e in range(5)]

def p2_epi_addr():
    dn, q, t = vT[8], vT[9], vT[10]
    r = [f"v_and_b32 v{dn}, 15, v{vLANE}", f"v_lshrrev_b32 v{q}, 4, v{vLANE}",
         f"s_lshl_b32 s{sT2}, s{sRT}, 6", f"s_lshr_b32 s{sT3}, s{sW}, 1", f"s_lshl_b32 s{sT3}, s{sT3}, 5", f"s_add_u32 s{sT2}, s{sT2}, s{sT3}",
         f"s_and_b32 s{sT3}, s{sW}, 1", f"s_lshl_b32 s{sT3}, s{sT3}, 2", f"s_add_u32 s{sT2}, s{sT2}, s{sT3}",
         f"s_mul_i32 s{sT4}, s{sW}, 3072", f"s_add_u32 s{sT4}, s{sT4}, {L_X2}",
         f"v_mul_u32_u24 v{vXL}, 640, v{q}", f"v_lshl_add_u32 v{vXL}, v{dn}, 1, v{vXL}", f"v_add_u32 v{vXL}, s{sT4}, v{vXL}",
         f"v_lshl_add_u32 v{q}, v{q}, 3, s{sT2}",
         f"s_mul_i32 s{sT3}, s{sN}, 80", f"v_add_u32 v{dn}, s{sT3}, v{dn}",
         f"v_mul_u32_u24 v{t}, 640, v{q}", f"v_add_u32 v{t}, v{t}, v{dn}",
         f"v_lshlrev_b32 v{vOUT}, 2, v{t}", f"v_lshlrev_b32 v{vSTA}, 3, v{q}", f"v_lshlrev_b32 v{vDS}, 1, v{dn}",
         f"s_mul_i32 s{sT2}, s{sT2}, 1280", f"s_mul_i32 s{sT3}, s{sN}, 160", f"s_add_u32 s{sT5}, s{sT2}, s{sT3}", f"s_add_u32 s{sT5}, s{sT5}, 4096",
         f"s_mov_b32 s{sT3}, 6554"]
    a, b, c = vT[11], vT[12], vT[13]
    for p in range(3):
        r += [f"v_add_u32 v{a}, {64*p}, v{vLANE}", f"v_mul_u32_u24 v{b}, s{sT3}, v{a}", f"v_lshrrev_b32 v{b}, 16, v{b}",
              f"v_mul_u32_u24 v{c}, 10, v{b}", f"v_sub_u32 v{c}, v{a}, v{c}", f"v_lshlrev_b32 v{c}, 4, v{c}",
              f"v_and_b32 v{a}, 12, v{b}", f"v_add_u32 v{b}, v{a}, v{b}", f"v_mul_u32_u24 v{b}, 1280, v{b}", f"v_add_u32 v{vXD2[p]}, v{b}, v{c}"]
    r += [f"v_mov_b32 v{a}, {OOB}", f"v_cmp_gt_u32 vcc, 32, v{vLANE}", f"v_cndmask_b32 v{vXD2[2]}, v{a}, v{vXD2[2]}, vcc"]
    return r
def p2_epi_loads():
    r = []
    for p in range(3):
        r += [f"s_add_u32 m0, s{sT4}, {p*1024}", "s_nop 0", I(f"buffer_load_dwordx4 v{vXD2[p]}, s[{sX}:{sX+3}], s{sT5} offen lds", tok="XR")]
    for e in range(5):
        r.append(f"global_load_ushort v{vDK[e]}, v{vDS}, s[{pDSK}:{pDSK+1}] offset:{e*32}")
    r += [f"s_mov_b32 s{sD1}, {WS_STAT}",
          f"buffer_load_dwordx4 {vr(vST[0])}, v{vSTA}, s[{sWS}:{sWS+3}], s{sD1} offen sc1",
          f"buffer_load_dwordx4 {vr(vST[4])}, v{vSTA}, s[{sWS}:{sWS+3}], s{sD1} offen offset:16 sc1"]
    return r
def p2_xread():
    r = ["@waitvm XR"]
    for e in range(5):
        for rr in range(4):
            r.append(f"ds_read_u16 v{vXR[e*4+rr]}, v{vXL} offset:{rr*160 + e*32}")
    return r

def p2_skip():
    r = [f"v_lshlrev_b32 v{vDK[e]}, 16, v{vDK[e]}" for e in range(5)]
    for j in range(20): r.append(f"v_lshlrev_b32 v{vXR[j]}, 16, v{vXR[j]}")
    for e in range(5):
        for rr in range(4): r.append(f"v_fma_f32 v{96+e*4+rr}, v{vXR[e*4+rr]}, v{vST[2*rr]}, v{vST[2*rr+1]}")
        for rr in range(4): r.append(f"v_mul_f32 v{96+e*4+rr}, v{96+e*4+rr}, v{vDK[e]}")
    return r
def p2_gate():
    r = []
    T = vT[0:24]
    for e in range(5):
        b = T[12*(e % 2)]; b2 = b + 4; b3 = b + 8; Y = vY[e*4:e*4+4]
        r += [f"ds_read_b128 {vr(b)}, v{vPR} offset:{e*1024}", f"ds_read_b128 {vr(b2)}, v{vPR} offset:{5120 + e*1024}", f"ds_read_b128 {vr(b3)}, v{vPR} offset:{10240 + e*1024}"]
        if e > 0:
            p = T[12*((e-1) % 2)]; Yp = vY[(e-1)*4:e*4]
            for rr in range(4): r.append(f"v_mul_f32 v{Yp[rr]}, v{Yp[rr]}, v{p+rr}") if False else None
        for rr in range(4): r.append(f"v_add_f32 v{Y[rr]}, v{Y[rr]}, v{b+rr}")
        for rr in range(4): r.append(f"v_add_f32 v{b2+rr}, v{b2+rr}, v{b3+rr}")
        for rr in range(4): r.append(f"v_add_f32 v{Y[rr]}, v{Y[rr]}, v{b2+rr}")
        for rr in range(4): r.append(f"v_mul_f32 v{b+rr}, {NLOG2E}, v{Y[rr]}")
        for rr in range(4): r.append(f"v_exp_f32 v{b+rr}, v{b+rr}")
        for rr in range(4): r.append(f"v_add_f32 v{b+rr}, 1.0, v{b+rr}")
        for rr in range(4): r.append(f"v_rcp_f32 v{b+rr}, v{b+rr}")
        for rr in range(4): r.append(f"v_mul_f32 v{Y[rr]}, v{Y[rr]}, v{b+rr}")
    r += [f"v_add_u32 v{v}, {L_P2 - L_P1}, v{v}" for v in vPW + [vPR]]
    return r

def p2_final():
    r = []
    O = list(range(96, 116)); B = list(range(176, 236))
    for k in range(3):
        for e in range(5):
            r.append(f"ds_read_b128 {vr(B[k*20+e*4])}, v{vPR} offset:{k*5120 + e*1024}")
    for j in range(0, 20, 2): r.append(f"v_pk_fma_f32 {vr(vXR[j], 2)}, {vr(O[j], 2)}, {vr(vY[j], 2)}, {vr(vXR[j], 2)}")
    for j in range(0, 20, 2): r.append(f"v_pk_add_f32 {vr(B[j], 2)}, {vr(B[j], 2)}, {vr(B[20+j], 2)}")
    for j in range(0, 20, 2): r.append(f"v_pk_add_f32 {vr(B[j], 2)}, {vr(B[j], 2)}, {vr(B[40+j], 2)}")
    for j in range(0, 20, 2): r.append(f"v_pk_fma_f32 {vr(vXR[j], 2)}, {vr(B[j], 2)}, {vr(vY[j], 2)}, {vr(vXR[j], 2)}")
    for rr in range(4):
        r.append(f"s_mov_b32 s{sT2}, {rr*2560}")
        for e in range(5):
            r.append(f"buffer_store_dword v{vXR[e*4+rr]}, v{vOUT}, s[{sOUT}:{sOUT+3}], s{sT2} offen offset:{e*64} {opt.out_flags}")
    return r

def weave(main, extra, every=1):
    groups = []; cur = []
    for t in II(extra):
        cur.append(t)
        if t.cls == "vmem": groups.append(cur); cur = []
    if cur: groups.append(cur)
    out = []
    for k, t in enumerate(II(main)):
        out.append(t)
        if groups and k % every == every - 1: out += groups.pop(0)
    for g_ in groups: out += g_
    return out

def phase2(left):
    PH[0] = 2
    L(stamp("B mfma end"))
    L(delay("c", 15, 9, 600))
    L([f"s_mov_b32 s{sEX0}, {NLOG2E}", f"s_mov_b32 s{sEX1}, {NLOG2E}", f"s_mov_b32 s{sEX2}, 1.0", f"s_mov_b32 s{sEX3}, 1.0"])
    Wq = list(left); Aq = []
    assert all(id(gq[-1]) in STEP for gq in Wq)
    nextW = max([st for st in STEP.values()] + [-1]) + 1; nextA = 0
    while nextW < N1 + NLDS: Wq.extend(tagw(nextW)); nextW += 1
    def serial(lst, every, first=None):
        cnt = 0
        for t in II(lst):
            if t.cls == "pseudo" and t.op == "@gap": continue
            L([t])
            if t.cls in ("valu", "trans") and not t.op.startswith("v_cmp") and not INRAW[0]:
                cnt += 1
                q_ = first if first else Wq
                if q_ and cnt >= every and gstall(q_[0]) <= opt.thrs: L(q_.pop(0)); cnt = 0
            if t.op == "@raw_begin": INRAW[0] = True
            if t.op == "@raw_end": INRAW[0] = False
    swb = II(swiglu(ACCB, [0], sKSB, "HHB", packed=True))
    cl = len(swb) - opt.hald
    serial(swb[:cl], opt.every)
    L(flag_load(WS_FLHA, sRT, 1, 15))
    serial(swb[cl:], opt.every)
    L(stamp("epi B done"))
    def fill(st):
        nonlocal nextW, nextA
        while nextA <= min(st + opt.look, NSTEP - 1): Aq.extend(taga(nextA)); nextA += 1
        while nextW <= min(st + opt.lookW, NSTEP - 1) and nextW >= N1 + NLDS and w_free_after_p(nextW) < st: Wq.extend(tagw(nextW)); nextW += 1
    def head():
        if Wq and (not Aq or STEP[id(Wq[0][-1])] <= STEP[id(Aq[0][-1])]): return Wq
        return Aq if Aq else None
    p56 = II(scan_P56())[33:]
    serial(p56[:10], opt.every)
    L(p2_setup2())
    serial(p56[10:opt.hack], opt.every)
    L(flag_check(WS_FLHA, sRT, 1, 15)); L(stamp("ha ready"))
    while nextA < opt.a0: Aq.extend(taga(nextA)); nextA += 1
    if opt.shadow56:
        tail56 = p56[opt.hack:]; p56 = p56[:opt.hack]
        while Aq: L(Aq.pop(0))
    cst = next((k for k, t in enumerate(p56) if t.cls == "vmem"), len(p56))
    if opt.afirst and Aq: L(Aq.pop(0)); L(Aq.pop(0)); L(Aq.pop(0)); L(Aq.pop(0))
    serial(p56[opt.hack:cst], opt.every2, Aq)
    if opt.afirst:
        while Aq: L(Aq.pop(0))
    L(p56[cst:])
    L(stamp("h out"))
    while Aq: L(Aq.pop(0))
    if opt.hhpos < 0:
        L(["@waitvm HHB", "s_barrier"]); L(flag_store(WS_FLHH, sC, sG))
    L(stamp("flags out"))
    Q = Queue(); misc = []
    if opt.shadow56: Q.add(tail56, 20*opt.p2pos - opt.t56)
    g = 0; nread = N1
    for st in range(NSTEP):
        mf = p2_mfma(st)
        if st == 8 - opt.look:
            L(flag_check(WS_FLHH, sRT, 1, 15))
        if st == N1 - opt.look:
            L(flag_check(WS_FLH, sRT, 1, 15)); L(stamp("h ready"))
        fill(st)
        if st == opt.p2pos + 1:
            Q.add(p2_epi_addr(), g + 30)
        if st == opt.epos: misc.extend(groups(p2_epi_loads()))
        if st == opt.epos + 3:
            assert not misc or all("v29" in gq[-1].text for gq in misc)
            Q.add(p2_xread() + p2_skip(), 20*N1 - 4)
        if st == 8 - opt.look - 2: misc[0:0] = groups(flag_load(WS_FLHH, sRT, 1, 15))
        if st == N1 - opt.look - 2: misc[0:0] = groups(flag_load(WS_FLH, sRT, 1, 15))
        while nread < N1 + NLDS and w_free_after_p(nread) < st and nread <= st + 3:
            assert not any(STEP.get(id(gq[-1])) == nread for gq in Wq)
            Q.add(p2_wread(nread), 20*(nread - 1) + 4); nread += 1
        if st == N1:
            L(stamp("out done"))
            yp = p2_partials(0, ACC1); rdy = [f"v_accvgpr_read_b32 v{vY[j]}, a{j}" for j in range(20)]
            mix = []
            for j in range(15): mix += [yp[j]] + rdy[j*4//3:(j+1)*4//3]
            Q.add(mix, 20*opt.ybar - 4)
        if st == opt.ybar:
            assert nread == N1 + NLDS
            L(Q.flush()); L(["@waitds0", "s_barrier"])
            Q.add(p2_gate(), 20*NSTEP - 24)
        def must(q): return [gq for gq in q if STEP[id(gq[-1])] <= st + opt.look]
        ng = len(must(Wq)) + len(Aq)
        per = -(-ng // 19)
        last = st == NSTEP - 1
        if last:
            L(Q.flush())
            mf = mf[5:] + mf[:5]
            wr = II(p2_partials(0, ACC2))
        for k, t in enumerate(mf):
            E(t)
            used = 0
            if k >= 1:
                for _ in range(max(per, 1)):
                    h = head()
                    if misc and (gstall(misc[0]) <= opt.thr or st >= opt.epos + 1 or "v29" in misc[0][-1].text) and (k % 2 == 0 or not h): L(misc.pop(0)); used += 2
                    elif h and (STEP[id(h[0][-1])] <= st + opt.look or gstall(h[0]) <= opt.thr): L(h.pop(0)); used += 2
            if st == opt.hhpos and k == 19 and st != opt.p2pos:
                L(["@waitvm HHB", "s_barrier"]); L(flag_store(WS_FLHH, sC, sG))
            if st == opt.p2pos and k == 19:
                assert "HST" in EM[0].seen and not any(t.tok == "HST" for t, d in Q.q)
                L(["@waitvm HST", "s_barrier"])
                if st == opt.hhpos: L(flag_store(WS_FLHH, sC, sG))
                L(flag_store(WS_FLH, sC, sG))
            if last and k >= 7 and wr: L([wr.pop(0)])
            Q.pop(2 - used, g); g += 1
        if st >= opt.epos + 2:
            while misc: L(misc.pop(0))
        if opt.fine2: L(stamp(f"st{st}"))
        while head() and STEP[id(head()[0][-1])] <= st + opt.look: L(head().pop(0))
    L(wr)
    L(["@waitds0", "s_barrier"])
    L(stamp("y done"))
    L(p2_final())
    L(stamp("end")); L(stamp("cyc1", True))
INRAW = [False]

def diag_out():
    if not opt.diag: return
    L([f"s_lshl_b32 s{sT2}, s2, 2", f"s_add_u32 s{sT2}, s{sT2}, s{sW}", f"s_lshl_b32 s{sT2}, s{sT2}, 2", f"s_add_u32 s{sT2}, s{sT2}, {WS_STAMP}",
       f"v_mov_b32 v{vT[0]}, s{sNONCE}", f"buffer_store_dword v{vT[0]}, off, s[{sWS}:{sWS+3}], s{sT2}"])

def stamps_out():
    if opt.probe:
        L(["@raw_begin", "L_spin:", f"s_memrealtime s[{sSTAMP}:{sSTAMP+1}]", "s_waitcnt lgkmcnt(0)", f"s_sub_u32 s{sT2}, s{sSTAMP}, s3",
           f"s_cmp_lt_u32 s{sT2}, 5000", "s_cbranch_scc1 L_spin", "@raw_end"])
    if not opt.stamps: return
    L([f"s_lshl_b32 s{sT2}, s2, 2", f"s_add_u32 s{sT2}, s{sT2}, s{sW}", f"s_lshl_b32 s{sT2}, s{sT2}, 8", f"s_add_u32 s{sT2}, s{sT2}, {WS_STAMP}",
       f"v_lshlrev_b32 v{vT[0]}, 2, v{vLANE}", f"buffer_store_dword v0, v{vT[0]}, s[{sWS}:{sWS+3}], s{sT2} offen"])

def build():
    STEP.clear(); PH[0] = 1; EM[0] = Emitter(lines_of, lat_of, dslat=opt.dslat); lab[0] = 0; stamp_n[0] = 0; stamp_names.clear(); ST.n = 0
    prologue()
    L(stamp("issued")); L(stamp("cyc0", True))
    CAP[0] = rest = []
    setup_rest()
    L(scan_addr()); L(mlp_read_addr())
    constants()
    L(const_park())
    nonce_seed()
    L(relayout_issue()); L(relayout_raddr())
    if opt.t_w13: L(w13_touch_addr())
    L([f"v_min_u32 v{vT[0]}, 9, v{vLANE}", f"v_lshlrev_b32 v{vT[0]}, 7, v{vT[0]}", f"global_load_dword a231, v{vT[0]}, s[{pDSK}:{pDSK+1}]"])
    CAP[0] = None
    ra = atoms(rest); n0 = 0; k0 = 0
    while n0 < opt.pre0: L(ra[k0]); n0 += len(ra[k0]); k0 += 1
    L(stamp("consts"))
    tail = x_arrive(0, [i for a in ra[k0:] for i in a], 40)
    L(stamp("x0 in"))
    E("s_barrier")
    L(skew("0"))
    L(tail)
    L(x_stats(0))
    L([f"v_add_u32 v{vRX[0]}, 81920, v{vRX[0]}", f"v_add_u32 v{vRX[1]}, 81920, v{vRX[1]}"])
    nrm = []
    for s in range(20): nrm += norm_step(0, s, opt.pk0, vT[20:24]) if "N" not in opt.skip else []
    if "Z" in opt.skip: nrm = ["s_nop 0"] * len(nrm)
    if "Y" in opt.skip: nrm = [t if "v_pk_fma" not in t else "v_mov_b32 v52, v53" for t in nrm]
    if "M" in opt.skip: nrm = [x for k, t in enumerate(nrm) for x in ([t, "s_nop 0"] if k % 4 == 3 else [t])]
    tail = x_arrive(1, nrm)
    L(stamp("x1 in"))
    L(weave(tail, ST.next(50 - ST.n, 50), 1))
    L(x_stats(1))
    L(mlp_dma_addr("A"))
    for s in range(opt.pre_norm): L(norm_step(1, s, True, vT[20:24]))
    assert ST.n == 50
    phase2(phase1_blocks())
    diag_out()
    stamps_out()
    E("s_endpgm")
    return EM[0].out

HEADER = """; Kernarg layout for this problem (128 bytes, ptrs only, base s[0:1]):
; @launch grid=(256,1,1) block=(256,1,1) lds=163840
.amdgcn_target "amdgcn-amd-amdhsa--gfx950"
.text
.globl {k}
.p2align 8
.type {k},@function
{k}:
"""
FOOTER = """
L_exit:
    s_endpgm
L_codeend:
    .fill 64, 4, 0xbf800000
.section .rodata,"a"
.p2align 6
.amdhsa_kernel {k}
  .amdhsa_next_free_vgpr 512
  .amdhsa_next_free_sgpr 102
  .amdhsa_accum_offset 256
  .amdhsa_group_segment_fixed_size 0
  .amdhsa_kernarg_size 128
  .amdhsa_user_sgpr_count 2
  .amdhsa_user_sgpr_kernarg_segment_ptr 1
  .amdhsa_system_sgpr_workgroup_id_x 1
  .amdhsa_float_denorm_mode_32 3
.end_amdhsa_kernel
"""
def text():
    prog = build()
    body = "\n".join(("" if i.cls == "label" else "    ") + i.text for i in prog)
    return HEADER.format(k=KNAME) + body + FOOTER.format(k=KNAME), prog

if __name__ == "__main__":
    out = sys.argv[1]
    for a in sys.argv[2:]:
        k, v = a.split("=")
        cur = getattr(opt, k)
        setattr(opt, k, v.replace("_", " ") if isinstance(cur, str) else (v in ("1", "True") if isinstance(cur, bool) else type(cur)(float(v))))
    t, prog = text()
    open(out, "w").write(t)
    print(stats(prog), len(prog))
    if opt.sim:
        em = EM[0]; prev = 0
        for j, (n, m) in enumerate(zip(stamp_names, em.marks)):
            big = sorted([x for x in em.stalls if x[1] == j], reverse=True)
            print(f"{n:12s} {m:7.0f} ({m-prev:5.0f}) stalls {sum(x[0] for x in big):5.0f} :", "; ".join(f"{x[0]:.0f} {x[2][:44]}" for x in big[:4]))
            prev = m
    if opt.stamps:
        import json
        json.dump(stamp_names, open(out + ".stamps.json", "w"))
```

```python
import sys, os
sys.path.insert(0, os.path.dirname(os.path.abspath(__file__)))
from asmlib import I, stats, insert_nops, Emitter

KNAME = "recurrent_scan__ssm_conv_s5__glu_gated_swiglu__prompt_kernel"

class Opt:
    fine = False
    splitx = False
    fine2 = False
    pk0 = True
    xhit = False
    chain = 0
    sim = False
    fakehit = ''
    delay = 0
    diag = False
    cycles = False
    skip = ''
    probe = ''
    stamps = False
    codepf = True
    krot = True
    prot = False
    pre0 = 120
    pflines = 12
    win = 8
    pre_norm = 1
    skew = False
    mstat = True
    t_x1 = False
    t_w13 = False
    b10 = 1
    rf_stage = 2
    slack = 22
    rl_pos = 0
    capU = 3
    capM = 5
    span = 5
    X_stage = 2
    L_stage = 5
    C_stage = 7
    Y_stage = 8
    H_stage = 11
    F_stage = 1
    W_stage = 4
    nearly = 12
    rl_nt = False
    out_flags = "sc1"
    x_flags = ""
    w_flags = ""
    p1map = 0
    p2map = 1
    p2pos = 2
    epos = 6
    afirst = True
    sflag = False
    sfl = 2
    shadow56 = True
    t56 = 2
    hhpos = 0
    hack = 91
    haend = 18
    hast = 14
    hald = 0
    thrs = 200
    hhld = 50
    hhck = 130
    every = 7
    every2 = 2
    a0 = 3
    thrb = 40
    cad = 3
    cadA = 6
    pace = 10.0
    burst = 100
    coldpace = 1.5
    vmcost = 4
    ybar = 17
    hchk = 4
    HL_stage = 13
    look = 2
    lookW = 6
    thr = 16
    dsmax = 3
    interp = True
    vlat = 14
    chainq = True
    dslat = 130
    even = True
    thrm = 100
    slot0 = 5
    earlyA = False
    roty = False
    latA = 640
    latW = 620
opt = Opt()

WS_A2 = 0
WS_W2P = 0xB00000
WS_S = 0xF00000
WS_STAT = 0xF40000
WS_FLW = 0xF50000
WS_FLH = 0xF51000
WS_FLHH = 0xF52000
WS_FLHA = 0xF54000
WS_SEED = 0xF53000
WS_STAMP = 0xF60000
WS_SIZE = 0x1000000
OOB = 0x40000000

L_RL = 102400
L_PRIV = 122880
PV_COL, PV_CH, PV_E = 0, 1280, 4352
L_TT = 155648
L_LB = 159744
L_WY = 0
L_P1 = 81920
L_P2 = 0

sX, sWU, sWM, sWS, sOUT, sRL, sDBG = 36, 40, 44, 48, 52, 56, 60
(sW, sC, sG, sRT, sN, sNONCE, sT0, sT1, sT2, sT3, sXOFF, sUOFF, sMOFF, sMOFFB, sRLOFF, sRLST,
 sA2H, sKSA, sKSB, sSST, sLB0, sLB1, sLB2, sLB3, sEX0, sEX1, sEX2, sEX3, sM0, sM0A, sCNT, sP2A, sP2W, sT4, sT5, sSTATO) = range(64, 100)
sSTAMP = 100
pX, pLRE, pLIM, pBRE, pBIM, pCRE, pCIM, pLDT = 4, 6, 8, 10, 12, 14, 16, 18
pDSK, pBX, pW1, pW3, pW2, pOUT, pDBG, pWS = 20, 22, 24, 26, 28, 30, 32, 34
sKU = [22, 23, 0, 1, 32]
sD0, sD1 = 4, 5
sRY, sRO = 6, 7
sAP, sAS, sAE, sWP, sWB, sWE = 8, 9, 10, 11, 12, 13
sM0U, sSEEDO = 18, 19
sD2 = 31
sRLT = 33
sHO = [24, 25, 26, 27, 30]

vLANE, vL16 = 1, 2
vRX = [3, 4]; vRU = [5, 6]
vRA = [7, 8]; vRB = 9; vHH = 10; vDU = 11; vW4 = 12
vD = [13, 14, 15, 16]
vXD = vD
vDB = [3, 4, 5, 6]; vRB2 = 11
BSLOT = {10: 4, 11: 5, 12: 2, 13: 3, 14: 0}
BISSUE = {2: (11, 7), 6: (12, 8), 7: (13, 9), 8: (14, 10)}
vUD = [11, 27, 28, 29]
vEW, vER, vCOLR, vCH, vTT, vLB, vTW, vTR, vHST, vSO = range(17, 27)
vWP0, vWP1, vFLAG, vNON = 27, 28, 29, 30
vT = list(range(32, 56))
def U(cf, f): return 56 + (cf * 2 + f) * 4
def X(f, s): return 96 + (f * 20 + s) * 4
def ACCA(mu, h2): return (mu * 2 + h2) * 16
def FB(par, fr): return 64 + par * 32 + fr * 4
def ACCB(mu, h2=0): return 128 + mu * 16
aRL = 160
aS = 180

def vr(n, c=4): return f"v[{n}:{n+c-1}]"
def ar(n, c=4): return f"a[{n}:{n+c-1}]"
def sr(n, c=4): return f"s[{n}:{n+c-1}]"

def lines_of(i):
    t = i.text
    if "ushort" in t: return 1
    if i.tok and i.tok[0] == "M" and int(i.tok[1:]) >= 10: return 16
    if i.tok == "RL": return 16
    if i.tok == "XR": return 11
    if " off," in t and "global" not in t: return 1
    if "dwordx2" in t: return 2
    if "load_dword " in t and "offen" in t: return 1 if "sc1" in t else 32
    if "global_load_dword" in t: return 0
    if "store_dword " in t: return 4 if "offen" in t else 1
    return 8
def lat_of(i):
    t = i.text; tok = i.tok or ""
    cold = 1500
    if "store" in t: return 820 if "sc1" in t else 330
    if tok.startswith("x"): return cold if tok in ("x0_0", "x0_1", "x1_0", "x1_1") else 800
    if tok.startswith("U"): return cold if tok == "U0" else 800
    if tok == "RL" or tok == "TW": return cold
    if tok.startswith("M"): return cold if (tok in ("M0", "M1", "M10") and not opt.t_w13) else 520
    if tok == "W" or tok.startswith("WL"): return opt.latW
    if tok == "A": return opt.latA
    if "sc1" in t: return 1000
    return 700
EM = [None]
CAP = [None]
def E(t, tok=None):
    i = I(t, tok)
    if CAP[0] is not None: CAP[0].append(i)
    else: EM[0].feed(i)
    return i
def L(lst):
    for t in lst:
        i = t if isinstance(t, I) else I(t)
        if CAP[0] is not None: CAP[0].append(i)
        else: EM[0].feed(i)
def atoms(lst):
    out = []; depth = 0
    for i in lst:
        glue = depth > 0 or i.op.startswith(("s_cselect", "s_addc", "s_subb", "v_cndmask", "v_addc")) or i.cls in ("branch", "label") or i.op in ("@arm", "@else", "@endarm")
        if out and glue: out[-1].append(i)
        else: out.append([i])
        if i.op == "@arm": depth += 1
        if i.op == "@endarm": depth -= 1
    return out
def II(lst): return [t if isinstance(t, I) else I(t) for t in lst]

def srd(d, p, nbytes):
    return [f"s_mov_b32 s{d}, s{p}", f"s_and_b32 s{d+1}, s{p+1}, 0xffff", f"s_mov_b32 s{d+2}, {nbytes}", f"s_mov_b32 s{d+3}, 0x20000"]

stamp_n = [0]
stamp_names = []
def stamp(name, cyc=False):
    if opt.probe:
        if name != opt.probe: return []
        return [f"s_memrealtime s[{sSTAMP}:{sSTAMP+1}]", "@waitds0", f"s_mov_b32 s3, s{sSTAMP}"]
    if not opt.stamps: return []
    k = stamp_n[0]; stamp_n[0] += 1
    stamp_names.append(name)
    return [f"s_memtime s[{sSTAMP}:{sSTAMP+1}]" if (cyc or opt.cycles) else f"s_memrealtime s[{sSTAMP}:{sSTAMP+1}]", "@waitds0",
            f"v_writelane_b32 v0, s{sSTAMP}, {k}"]

def cmul(dr, di, ar_, ai, br, bi, t):
    return [f"v_mul_f32 v{t}, v{ai}, v{bi}", f"v_mul_f32 v{di}, v{ai}, v{br}",
            f"v_fma_f32 v{dr}, v{ar_}, v{br}, -v{t}", f"v_fmac_f32 v{di}, v{ar_}, v{bi}"]
def csq(dr, di, r, i, t):
    return [f"v_mul_f32 v{t}, v{i}, v{i}", f"v_mul_f32 v{di}, v{r}, v{i}",
            f"v_fma_f32 v{dr}, v{r}, v{r}, -v{t}", f"v_add_f32 v{di}, v{di}, v{di}"]
def chorner2(dr, di, gr, gi, mr, mi, er, ei):
    return [f"v_fma_f32 v{dr}, v{mr}, v{gr}, v{er}", f"v_fma_f32 v{di}, v{mr}, v{gi}, v{ei}",
            f"v_fma_f32 v{dr}, -v{mi}, v{gi}, v{dr}", f"v_fma_f32 v{di}, v{mi}, v{gr}, v{di}"]

LOG2E = "0x3fb8aa3b"
NLOG2E = "0xbfb8aa3b"
INV2PI = "0.15915494"

def x_piece(n):
    f, S, ih = n // 20, (n % 20) // 2, n & 1
    p = n & 3
    r = []
    if p == 0:
        r = [f"s_add_u32 m0, s{sM0}, {f*81920 + (2*S)*1024}", f"s_add_u32 s{sD1}, s{sKU[S >> 1]}, s{sXOFF}"]
        if f: r.append(f"s_add_u32 s{sD1}, s{sD1}, {4*1280}")
    r.append(I(f"buffer_load_dwordx4 v{vXD[p]}, s[{sX}:{sX+3}], s{sD1} offen offset:{p*1024} {opt.x_flags} lds", tok=f"x{f}_{S}"))
    return r
def u_piece(i, cf):
    r = []
    if cf == 0: r = [f"s_add_u32 m0, s{sM0U}, {i*20480}", f"s_add_u32 s{sD1}, s{sKU[i]}, s{sUOFF}"]
    if cf == 4: r = [f"s_add_u32 m0, s{sM0U}, {i*20480 + 4096}", f"s_add_u32 s{sD1}, s{sD1}, {4*10240}"]
    r.append(I(f"buffer_load_dwordx4 v{vUD[cf & 3]}, s[{sWU}:{sWU+3}], s{sD1} offen offset:{(cf & 3)*1024} {opt.w_flags} lds", tok=f"U{i}"))
    return r
class Stream:
    def __init__(self): self.n = 0
    def next(self, k, limit=60):
        r = []
        for _ in range(k):
            if self.n >= limit: break
            r += x_piece(self.n) if self.n < 40 else u_piece((self.n - 40) // 5, (self.n - 40) % 5)
            self.n += 1
        return r
ST = Stream()

def prologue():
    E(f"s_cmp_ge_u32 s2, 256")
    E("s_cbranch_scc1 L_exit")
    E("s_load_dwordx16 s[4:19], s[0:1], 0")
    E("s_load_dwordx16 s[20:35], s[0:1], 64")
    if opt.stamps or opt.probe == "entry":
        E(f"s_{'memtime' if opt.cycles else 'memrealtime'} s[{sSTAMP}:{sSTAMP+1}]")
    if opt.codepf:
        n = opt.pflines
        L(["@raw_begin", f"s_getpc_b64 s[{sT2}:{sT3}]", "L_pc:",
           f"s_lshr_b32 s{sT4}, s2, 3", f"s_mul_i32 s{sT4}, s{sT4}, {n*128}",
           f"v_min_u32 v{vT[0]}, {n-1}, v0", f"v_lshlrev_b32 v{vT[0]}, 7, v{vT[0]}", f"v_add_u32 v{vT[0]}, s{sT4}, v{vT[0]}",
           f"v_min_u32 v{vT[0]}, L_codeend-L_pc-4, v{vT[0]}",
           f"v_mov_b32 v{vT[1]}, s{sT3}", f"v_add_co_u32 v{vT[0]}, vcc, s{sT2}, v{vT[0]}", f"v_cmp_gt_u32 s[{sEX0}:{sEX0+1}], {n}, v0", "s_nop 0",
           f"v_addc_co_u32 v{vT[1]}, vcc, 0, v{vT[1]}, vcc", f"s_and_b64 s[{sEX0}:{sEX0+1}], s[{sEX0}:{sEX0+1}], exec",
           "s_cbranch_scc0 L_nopf", f"s_mov_b64 exec, s[{sEX0}:{sEX0+1}]",
           f"global_load_dword a230, v[{vT[0]}:{vT[1]}], off", "s_mov_b64 exec, -1", "L_nopf:", "@raw_end"])
    E(f"v_lshrrev_b32 v{vT[0]}, 6, v0")
    E(f"v_and_b32 v{vLANE}, 63, v0")
    E(f"v_readfirstlane_b32 s{sW}, v{vT[0]}")
    E(f"v_lshlrev_b32 v{vL16}, 4, v{vLANE}")
    L([f"s_and_b32 s{sT0}, s2, 7", f"s_lshr_b32 s{sT1}, s2, 3"])
    if opt.p1map == 0:
        L([f"s_and_b32 s{sC}, s{sT0}, 1", f"s_lshl_b32 s{sC}, s{sC}, 3", f"s_and_b32 s{sT2}, s{sT1}, 7", f"s_add_u32 s{sC}, s{sC}, s{sT2}",
           f"s_lshr_b32 s{sG}, s{sT0}, 1", f"s_lshl_b32 s{sG}, s{sG}, 2", f"s_lshr_b32 s{sT2}, s{sT1}, 3", f"s_add_u32 s{sG}, s{sG}, s{sT2}"])
    else:
        L([f"s_and_b32 s{sC}, s{sT0}, 3", f"s_lshl_b32 s{sC}, s{sC}, 2", f"s_and_b32 s{sT2}, s{sT1}, 3", f"s_add_u32 s{sC}, s{sC}, s{sT2}",
           f"s_lshr_b32 s{sG}, s{sT0}, 2", f"s_lshl_b32 s{sG}, s{sG}, 3", f"s_lshr_b32 s{sT2}, s{sT1}, 2", f"s_add_u32 s{sG}, s{sG}, s{sT2}"])
    t0, t1, t2, t3 = vT[0:4]
    L([f"v_lshrrev_b32 v{t0}, 3, v{vLANE}", f"v_and_b32 v{t1}, 7, v{vLANE}", f"v_and_b32 v{t2}, 6, v{t0}",
       f"v_xor_b32 v{t1}, v{t1}, v{t2}", f"v_lshlrev_b32 v{t1}, 4, v{t1}",
       f"v_and_b32 v{t2}, 4, v{t0}", f"v_add_u32 v{t2}, v{t2}, v{t0}",
       f"v_mul_u32_u24 v{vD[0]}, 1280, v{t2}", f"v_add_u32 v{vD[0]}, v{vD[0]}, v{t1}",
       f"v_mul_u32_u24 v{vDU}, 1280, v{t0}", f"v_add_u32 v{vDU}, v{vDU}, v{t1}",
       f"v_add_u32 v{vD[0]}, 4096, v{vD[0]}", f"v_add_u32 v{vD[1]}, {16*1280 - 1024}, v{vD[0]}",
       f"v_add_u32 v{vD[2]}, {128 - 2048}, v{vD[0]}", f"v_add_u32 v{vD[3]}, {16*1280 + 128 - 3072}, v{vD[0]}"])
    L([f"s_mul_i32 s{sT2}, s{sG}, 80", f"v_min_u32 v{t3}, 39, v{vLANE}", f"v_lshlrev_b32 v{t3}, 1, v{t3}", f"v_add_u32 v{t3}, s{sT2}, v{t3}"])
    L([f"s_lshl_b32 s{sXOFF}, s{sC}, 2", f"s_add_u32 s{sXOFF}, s{sXOFF}, s{sW}", f"s_mul_i32 s{sXOFF}, s{sXOFF}, {0 if opt.xhit else 32*1280}",
       f"s_mul_i32 s{sM0}, s{sW}, 20480"])
    if opt.krot:
        L([f"s_add_u32 s{sT4}, s{sC}, s{sG}", f"s_mul_i32 s{sT5}, s{sT4}, 52", f"s_lshr_b32 s{sT5}, s{sT5}, 8", f"s_mul_i32 s{sT5}, s{sT5}, 5",
           f"s_sub_u32 s{sT4}, s{sT4}, s{sT5}", f"s_lshl_b32 s{sT4}, s{sT4}, 8"])
    else:
        E(f"s_mov_b32 s{sT4}, 0")
    E("@waitds0")
    if opt.probe == "entry": E(f"s_mov_b32 s3, s{sSTAMP}")
    if opt.stamps:
        E(f"v_mov_b32 v0, 0")
        E(f"v_writelane_b32 v0, s{sSTAMP}, 0"); stamp_n[0] = 1; stamp_names.append("entry")
    if opt.chain:
        L([f"s_mul_i32 s{sT2}, s2, {60*128}", f"s_add_u32 s{sT2}, s{pW2}, s{sT2}", f"s_addc_u32 s{sT3}, s{pW2+1}, 0", f"v_mov_b32 v{vT[8]}, 0"])
        for k in range(opt.chain):
            L([f"global_load_dword v{vT[9]}, v{vT[8]}, s[{sT2}:{sT3}]", "@waitvm0", f"v_add_u32 v{vT[8]}, 128, v{vT[8]}"])
    E(f"global_load_ushort v{vT[4]}, v{t3}, s[{pLRE}:{pLRE+1}]")
    E(f"global_load_ushort v{vT[5]}, v{t3}, s[{pLIM}:{pLIM+1}]")
    E(f"global_load_ushort v{vT[6]}, v{t3}, s[{pLDT}:{pLDT+1}]")
    L([f"s_sub_u32 s{sX}, s{pX}, 4096", f"s_subb_u32 s{sX+1}, s{pX+1}, 0", f"s_and_b32 s{sX+1}, s{sX+1}, 0xffff",
       f"s_mov_b32 s{sX+2}, {2048*1280 + 4096}", f"s_mov_b32 s{sX+3}, 0x20000"])
    L(srd(sDBG, pDBG, 256))
    def ku(j): return [f"s_add_u32 s{sKU[j]}, s{sT4}, {j*256}", f"s_cmp_ge_u32 s{sKU[j]}, 1280", f"s_cselect_b32 s{sT5}, 1280, 0", f"s_sub_u32 s{sKU[j]}, s{sKU[j]}, s{sT5}"]
    L(ku(0)); L(ST.next(4))
    L(srd(sWS, pWS, WS_SIZE))
    L([f"s_or_b32 s{sT2}, s2, s{sW}", f"s_cmp_eq_u32 s{sT2}, 0", f"s_mov_b32 s{sT3}, {WS_SEED}", f"s_cselect_b32 s{sSEEDO}, s{sT3}, {OOB}"])
    E(f"buffer_load_dword v{vT[7]}, off, s[{sWS}:{sWS+3}], s{sSEEDO} sc1")
    L(ku(1)); L(ST.next(opt.win - 4))
    for j in range(2, 5): L(ku(j))
    i_, q_, a0, a1 = vT[8:12]
    L([f"v_and_b32 v{i_}, 15, v{vLANE}", f"v_lshrrev_b32 v{q_}, 4, v{vLANE}",
       f"v_and_b32 v{a0}, 7, v{i_}", f"v_and_b32 v{a1}, 6, v{i_}", f"v_xor_b32 v{a1}, v{a1}, v{q_}", f"v_lshlrev_b32 v{a1}, 4, v{a1}",
       f"v_lshl_add_u32 v{a1}, v{a0}, 7, v{a1}",
       f"v_lshrrev_b32 v{a0}, 3, v{i_}",
       f"v_mul_u32_u24 v{vRU[0]}, 5120, v{a0}", f"v_add_u32 v{vRU[0]}, v{vRU[0]}, v{a1}", f"v_xor_b32 v{vRU[1]}, 64, v{vRU[0]}",
       f"v_lshl_add_u32 v{vRX[0]}, v{a0}, 10, v{a1}", f"v_add_u32 v{vRX[0]}, s{sM0}, v{vRX[0]}", f"v_xor_b32 v{vRX[1]}, 64, v{vRX[0]}",
       f"v_add_u32 v{vW4}, 4096, v{vL16}", f"v_mov_b32 v{vONES}, 0x3f803f80"])
    L([f"v_accvgpr_write_b32 a{aONE+k}, v{vONES}" for k in range(4)])
    L([f"v_add_u32 v{vUD[p]}, {p*(10240 - 1024)}, v{vDU}" for p in range(1, 4)])

def setup_rest():
    t0 = vT[0]
    L([f"s_bitcmp1_b32 s{sW}, 0",
       f"s_cselect_b32 s{sWU}, s{pBIM}, s{pBRE}", f"s_cselect_b32 s{sWU+1}, s{pBIM+1}, s{pBRE+1}",
       f"s_cselect_b32 s{sWM}, s{pW3}, s{pW1}", f"s_cselect_b32 s{sWM+1}, s{pW3+1}, s{pW1+1}",
       f"s_and_b32 s{sWU+1}, s{sWU+1}, 0xffff", f"s_and_b32 s{sWM+1}, s{sWM+1}, 0xffff",
       f"s_mov_b32 s{sWU+2}, {640*1280}", f"s_mov_b32 s{sWU+3}, 0x20000",
       f"s_mov_b32 s{sWM+2}, {640*3072}", f"s_mov_b32 s{sWM+3}, 0x20000"])
    L(srd(sOUT, pOUT, 2048*2560))
    if opt.p2map == 0:
        L([f"s_lshl_b32 s{sRT}, s{sT0}, 2", f"s_and_b32 s{sT2}, s{sT1}, 3", f"s_add_u32 s{sRT}, s{sRT}, s{sT2}", f"s_lshr_b32 s{sN}, s{sT1}, 2"])
    else:
        L([f"s_and_b32 s{sRT}, s{sT0}, 3", f"s_lshl_b32 s{sRT}, s{sRT}, 3", f"s_and_b32 s{sT2}, s{sT1}, 7", f"s_add_u32 s{sRT}, s{sRT}, s{sT2}",
           f"s_lshr_b32 s{sN}, s{sT0}, 2", f"s_lshl_b32 s{sN}, s{sN}, 2", f"s_lshr_b32 s{sT2}, s{sT1}, 3", f"s_add_u32 s{sN}, s{sN}, s{sT2}"])
    L([f"s_mul_i32 s{sUOFF}, s{sG}, {40*1280}", f"s_lshr_b32 s{sT2}, s{sW}, 1", f"s_lshl_b32 s{sT2}, s{sT2}, 7", f"s_add_u32 s{sUOFF}, s{sUOFF}, s{sT2}",
       f"s_mul_i32 s{sM0U}, s{sW}, 5120"])
    L([f"s_mul_i32 s{sT2}, s{sG}, 192", f"s_bitcmp1_b32 s{sG}, 0",
       f"s_cselect_b32 s{sT3}, 64, 0", f"s_cselect_b32 s{sT4}, 0, 128", f"s_add_u32 s{sMOFF}, s{sT2}, s{sT3}", f"s_add_u32 s{sMOFFB}, s{sT2}, s{sT4}",
       f"s_lshr_b32 s{sT2}, s{sW}, 1",
       f"s_mul_i32 s{sT3}, s{sT2}, {32*3072}", f"s_add_u32 s{sMOFF}, s{sMOFF}, s{sT3}",
       f"s_mul_i32 s{sT3}, s{sT2}, {64*3072}", f"s_add_u32 s{sMOFFB}, s{sMOFFB}, s{sT3}",
       f"s_lshl_b32 s{sM0A}, s{sW}, 12"])
    L([f"s_lshl_b32 s{sT3}, s{sC}, 1", f"s_add_u32 s{sT3}, s{sT3}, s{sT2}", f"s_mul_i32 s{sA2H}, s{sT3}, {88*4096}",
       f"s_and_b32 s{sT3}, s{sW}, 1", f"s_lshl_b32 s{sT3}, s{sT3}, 11", f"s_add_u32 s{sA2H}, s{sA2H}, s{sT3}",
       f"s_mul_i32 s{sT3}, s{sG}, 3", f"s_add_u32 s{sT3}, s{sT3}, 40", f"s_and_b32 s{sT4}, s{sG}, 1",
       f"s_add_u32 s{sKSA}, s{sT3}, s{sT4}", f"s_lshl_b32 s{sKSA}, s{sKSA}, 12", f"s_add_u32 s{sKSA}, s{sKSA}, s{sA2H}",
       f"s_xor_b32 s{sT4}, s{sT4}, 1", f"s_lshl_b32 s{sT4}, s{sT4}, 1",
       f"s_add_u32 s{sKSB}, s{sT3}, s{sT4}", f"s_lshl_b32 s{sKSB}, s{sKSB}, 12", f"s_add_u32 s{sKSB}, s{sKSB}, s{sA2H}"])
    L([f"s_lshl_b32 s{sT3}, s{sG}, 4", f"s_add_u32 s{sT4}, s{sT3}, s{sC}", f"s_mul_i32 s{sT4}, s{sT4}, 640", f"s_add_u32 s{sT4}, s{sT4}, {WS_S}",
       f"s_cmp_eq_u32 s{sW}, 3", f"s_cselect_b32 s{sSST}, s{sT4}, {OOB}"])
    for jj, sl in enumerate((sLB0, sLB1, sLB2, sLB3)):
        L([f"s_lshl_b32 s{sT4}, s{sW}, 2", f"s_add_u32 s{sT4}, s{sT4}, s{sC}", f"s_add_i32 s{sT4}, s{sT4}, {jj-16}",
           f"s_add_u32 s{sT5}, s{sT3}, s{sT4}", f"s_mul_i32 s{sT5}, s{sT5}, 640", f"s_add_u32 s{sT5}, s{sT5}, {WS_S}",
           f"s_cmp_ge_i32 s{sT4}, 0", f"s_cselect_b32 s{sl}, s{sT5}, {OOB}"])
    L([f"s_lshl_b32 s{sT3}, s{sC}, 2", f"s_add_u32 s{sT3}, s{sT3}, s{sW}", f"s_lshl_b32 s{sT3}, s{sT3}, 8", f"s_add_u32 s{sT3}, s{sT3}, {WS_STAT}",
       f"s_cmp_eq_u32 s{sG}, 0", f"s_cselect_b32 s{sSTATO}, s{sT3}, {OOB}"])
    for cf in range(5):
        L([f"s_mul_i32 s{sT2}, s{sG}, 5", f"s_add_u32 s{sT2}, s{sT2}, {cf}", f"s_and_b32 s{sT4}, s{sT2}, 3", f"s_lshr_b32 s{sT2}, s{sT2}, 2",
           f"s_lshl_b32 s{sT2}, s{sT2}, 12", f"s_lshl_b32 s{sT4}, s{sT4}, 8", f"s_add_u32 s{sT2}, s{sT2}, s{sT4}", f"s_add_u32 s{sHO[cf]}, s{sT2}, s{sA2H}"])
    L([f"s_mul_i32 s{sP2A}, s{sRT}, {88*4096}", f"s_mul_i32 s{sP2W}, s{sN}, {88*5120}", f"s_add_u32 s{sP2W}, s{sP2W}, {WS_W2P}"])
    if "A" in opt.fakehit: E(f"s_mov_b32 s{sP2A}, 0")
    if "W" in opt.fakehit: E(f"s_mov_b32 s{sP2W}, {WS_W2P}")
    L(ptr_bases())

cAR, cAI, cKR, cKI = 56, 57, 58, 59
cA8, cA32, cA32W, cA128, cOM = 60, 62, 64, 66, 68
def constants():
    lre, lim, ldt = vT[4], vT[5], vT[6]
    t = list(range(72, 96))
    L([f"v_lshlrev_b32 v{lre}, 16, v{lre}", f"v_lshlrev_b32 v{lim}, 16, v{lim}", f"v_lshlrev_b32 v{ldt}, 16, v{ldt}",
       f"v_mul_f32 v{t[0]}, {LOG2E}, v{ldt}", f"v_exp_f32 v{t[0]}, v{t[0]}",
       f"v_cvt_pk_bf16_f32 v{t[0]}, v{t[0]}, v{t[0]}", f"v_lshlrev_b32 v{t[0]}, 16, v{t[0]}",
       f"v_mul_f32 v{t[1]}, v{t[0]}, v{lre}", f"v_mul_f32 v{t[2]}, v{t[0]}, v{lim}",
       f"v_mul_f32 v{t[1]}, {LOG2E}, v{t[1]}", f"v_exp_f32 v{t[1]}, v{t[1]}",
       f"v_mul_f32 v{t[2]}, {INV2PI}, v{t[2]}", f"v_rndne_f32 v{t[3]}, v{t[2]}", f"v_sub_f32 v{t[2]}, v{t[2]}, v{t[3]}",
       f"v_cos_f32 v{t[3]}, v{t[2]}", f"v_sin_f32 v{t[4]}, v{t[2]}",
       f"v_mul_f32 v{cAR}, v{t[1]}, v{t[3]}", f"v_mul_f32 v{cAI}, v{t[1]}, v{t[4]}",
       f"v_add_f32 v{t[3]}, -1.0, v{cAR}",
       f"v_mul_f32 v{t[5]}, v{lre}, v{lre}", f"v_fmac_f32 v{t[5]}, v{lim}, v{lim}", f"v_rcp_f32 v{t[5]}, v{t[5]}",
       f"v_mul_f32 v{t[6]}, v{t[3]}, v{lre}", f"v_fmac_f32 v{t[6]}, v{cAI}, v{lim}",
       f"v_mul_f32 v{t[7]}, v{cAI}, v{lre}", f"v_fma_f32 v{t[7]}, -v{t[3]}, v{lim}, v{t[7]}",
       f"v_add_f32 v{t[5]}, v{t[5]}, v{t[5]}",
       f"v_mul_f32 v{cKR}, v{t[6]}, v{t[5]}", f"v_mul_f32 v{cKI}, v{t[7]}, v{t[5]}"])
    r, i, tt = t[8], t[9], t[0]
    L([f"v_mov_b32 v{r}, v{cAR}", f"v_sub_f32 v{i}, 0, v{cAI}"])
    L(csq(t[10], t[11], r, i, tt)); L(csq(r, i, t[10], t[11], tt))
    L(csq(cA8, cA8+1, r, i, tt))
    L(csq(r, i, cA8, cA8+1, tt))
    L(csq(cA32, cA32+1, r, i, tt))
    L(csq(t[12], t[13], cA32, cA32+1, tt))
    L(csq(cA128, cA128+1, t[12], t[13], tt))
    L(csq(r, i, cA128, cA128+1, tt))
    L(csq(t[14], t[15], r, i, tt))
    L(csq(t[16], t[17], t[14], t[15], tt))
    def sel(dst, src, mask, on):
        if on:
            return [f"v_cndmask_b32 v{dst}, 1.0, v{src}, s[{mask}:{mask+1}]", f"v_cndmask_b32 v{dst+1}, 0, v{src+1}, s[{mask}:{mask+1}]"]
        return [f"v_mov_b32 v{t[22]}, 1.0", f"v_mov_b32 v{t[23]}, 0",
                f"v_cndmask_b32 v{dst}, v{src}, v{t[22]}, s[{mask}:{mask+1}]", f"v_cndmask_b32 v{dst+1}, v{src+1}, v{t[23]}, s[{mask}:{mask+1}]"]
    L([f"s_bitcmp1_b32 s{sW}, 0", f"s_cselect_b64 s[{sEX0}:{sEX0+1}], -1, 0", f"s_bitcmp1_b32 s{sW}, 1", f"s_cselect_b64 s[{sEX2}:{sEX2+1}], -1, 0"])
    L(sel(t[18], cA32, sEX0, True)); L(sel(t[20], t[12], sEX2, True))
    L(cmul(cA32W, cA32W+1, t[18], t[19], t[20], t[21], tt))
    L(sel(t[18], t[14], sEX0, False)); L(sel(t[20], t[16], sEX2, False))
    L(cmul(cOM, cOM+1, t[18], t[19], t[20], t[21], tt))

def nonce_seed():
    sd = vT[7]
    L([f"s_mov_b32 s{sT2}, 1664525", f"v_mul_lo_u32 v{sd}, v{sd}, s{sT2}", f"v_add_u32 v{vNON}, 1013904223, v{sd}", f"v_mov_b32 v{vNON+1}, 1"])
    E(f"buffer_store_dword v{vNON}, off, s[{sWS}:{sWS+3}], s{sSEEDO} sc1", tok="seed")
def nonce_publish():
    return [f"s_cmp_lt_u32 s{sSEEDO}, {OOB}", f"s_cselect_b32 s{sT5}, 0, {OOB}", "@waitvm seed",
            f"buffer_store_dwordx2 v[{vNON}:{vNON+1}], off, s[{sDBG}:{sDBG+3}], s{sT5} sc1"]

lab = [0]
def poll(load_text, check):
    lab[0] += 1
    n = lab[0]
    r = list(check)
    r += [f"s_cbranch_vccz L_ok{n}", "@raw_begin", f"s_mov_b32 s{sCNT}, {0x4000 if opt.diag else 0x40000}", f"L_rt{n}:", "s_sleep 1"]
    r += [t.text if isinstance(t, I) else t for t in load_text]
    r += ["s_waitcnt vmcnt(0)", "s_nop 1"] + list(check) + [f"s_cbranch_vccz L_ok{n}", f"s_sub_u32 s{sCNT}, s{sCNT}, 1",
          f"s_cmp_lg_u32 s{sCNT}, 0", f"s_cbranch_scc1 L_rt{n}"]
    if opt.diag: r += [f"buffer_store_dword v{vLANE}, off, s[{sDBG}:{sDBG+3}], 0 offset:{32+4*n} sc1", "s_waitcnt vmcnt(0)"]
    r += ["s_nop 7", "@raw_end", f"L_ok{n}:"]
    return r
def nonce_load():
    return [f"buffer_load_dwordx2 v[{vNON}:{vNON+1}], off, s[{sDBG}:{sDBG+3}], 0 sc1"]
def nonce_get():
    return poll(nonce_load(), [f"v_cmp_ne_u32 vcc, 1, v{vNON+1}"]) + [f"v_readfirstlane_b32 s{sNONCE}, v{vNON}"]

sS0, sS1, sQ0, sQ1 = vT[8], vT[9], vT[10], vT[11]
vR = [vT[12], vT[14]]; vNB = [vT[13], vT[15]]
vM = [vT[16], vT[17]]
vONES = vT[18]
def x_arrive(f, filler=None, limit=60):
    fa = atoms(II(filler or []))
    tot = sum(len(a) for a in fa); chunks = [[] for _ in range(10)]; acc = 0
    for a in fa:
        chunks[min(9, acc * 10 // max(tot, 1))] += a; acc += len(a)
    if not opt.mstat: L([f"v_mov_b32 v{sS0}, 0", f"v_mov_b32 v{sS1}, 0", f"v_mov_b32 v{sQ0}, 0", f"v_mov_b32 v{sQ1}, 0"])
    def st(s):
        r = []
        if opt.mstat:
            c0 = "0" if s == 0 else ar(aSS); c1 = "0" if s == 0 else ar(aSQ)
            return [f"v_mfma_f32_16x16x32_bf16 {ar(aSS)}, {ar(aONE)}, {vr(X(f, s))}, {c0}",
                    f"v_mfma_f32_16x16x32_bf16 {ar(aSQ)}, {vr(X(f, s))}, {vr(X(f, s))}, {c1}"]
        for k in range(4):
            x = X(f, s) + k
            r += [f"v_dot2_f32_bf16 v{(sS0, sS1)[k&1]}, v{x}, v{vONES}, v{(sS0, sS1)[k&1]}",
                  f"v_dot2_f32_bf16 v{(sQ0, sQ1)[k&1]}, v{x}, v{x}, v{(sQ0, sQ1)[k&1]}"]
        return r
    for S in range(10):
        E(f"@waitvm x{f}_{S}")
        for sh in range(2):
            E(f"ds_read_b128 {vr(X(f, 2*S+sh))}, v{vRX[sh]} offset:{S*2048}", tok=f"xr{f}_{2*S+sh}")
        fl = chunks[S]
        L(ST.next(2 if ST.n % 2 == 0 or True else 1, limit))
        if S > 0:
            E(f"@waitds xr{f}_{2*S-1}")
            L(st(2*S-2)); L(st(2*S-1))
        L(fl)
    E("@waitds0")
    return st(18) + st(19)

aONE, aSS, aSQ = 216, 220, 224
def x_stats(f):
    a, b = vT[19], vT[20]
    r = [f"v_add_f32 v{sS0}, v{sS0}, v{sS1}", f"v_add_f32 v{sQ0}, v{sQ0}, v{sQ1}"]
    if opt.mstat:
        t = vT[8:12]
        r = [f"v_and_b32 v{a}, 15, v{vLANE}", f"v_lshrrev_b32 v{b}, 2, v{a}", f"v_lshl_add_u32 v{b}, v{b}, 4, v{a}", f"v_lshlrev_b32 v{b}, 2, v{b}",
             f"v_and_b32 v{a}, 3, v{vLANE}", f"v_cmp_eq_u32 s[{sEX0}:{sEX0+1}], 1, v{a}", f"v_cmp_eq_u32 s[{sEX2}:{sEX2+1}], 2, v{a}", f"v_cmp_eq_u32 vcc, 3, v{a}"]
        r += [f"v_accvgpr_read_b32 v{t[k]}, a{aSQ+k}" for k in range(4)]
        r += [f"v_cndmask_b32 v{t[0]}, v{t[0]}, v{t[1]}, s[{sEX0}:{sEX0+1}]", f"v_cndmask_b32 v{t[2]}, v{t[2]}, v{t[3]}, vcc",
              f"v_cndmask_b32 v{t[0]}, v{t[0]}, v{t[2]}, s[{sEX2}:{sEX2+1}]", f"v_cndmask_b32 v{t[0]}, v{t[0]}, v{t[2]}, vcc",
              f"ds_bpermute_b32 v{sQ0}, v{b}, v{t[0]}", f"v_accvgpr_read_b32 v{sS0}, a{aSS}"]
    for perm in (() if opt.mstat else ("v_permlane16_swap_b32", "v_permlane32_swap_b32")):
        r += [f"v_mov_b32 v{a}, v{sS0}", f"v_mov_b32 v{b}, v{sQ0}", f"{perm} v{a}, v{sS0}", f"{perm} v{b}, v{sQ0}",
              f"v_add_f32 v{sS0}, v{sS0}, v{a}", f"v_add_f32 v{sQ0}, v{sQ0}, v{b}"]
    inv = "0x3acccccd"
    r += [f"v_mul_f32 v{sS0}, {inv}, v{sS0}", f"v_mul_f32 v{sQ0}, {inv}, v{sQ0}",
          f"v_fma_f32 v{sQ0}, -v{sS0}, v{sS0}, v{sQ0}", f"v_max_f32 v{sQ0}, 0, v{sQ0}",
          f"v_cvt_pk_bf16_f32 v{a}, v{sS0}, v{sQ0}",
          f"v_lshlrev_b32 v{vM[f]}, 16, v{a}", f"v_and_b32 v{b}, 0xffff0000, v{a}",
          f"v_add_f32 v{b}, 0x3727c5ac, v{b}",
          f"v_cvt_pk_bf16_f32 v{b}, v{b}, v{b}", f"v_and_b32 v{b}, 0xffff0000, v{b}",
          f"v_sqrt_f32 v{b}, v{b}", f"v_cvt_pk_bf16_f32 v{b}, v{b}, v{b}", f"v_and_b32 v{b}, 0xffff0000, v{b}",
          f"v_rcp_f32 v{vR[f]}, v{b}", f"v_mul_f32 v{vNB[f]}, v{vM[f]}, v{vR[f]}", f"v_sub_f32 v{vNB[f]}, 0, v{vNB[f]}"]
    return r

def norm_step(f, s, packed, tmp):
    r = []
    for k in range(4):
        x = X(f, s) + k
        t = tmp[(k & 1) * 2]
        if packed:
            r += [f"v_lshlrev_b32 v{t}, 16, v{x}", f"v_and_b32 v{t+1}, 0xffff0000, v{x}",
                  f"v_pk_fma_f32 v[{t}:{t+1}], v[{t}:{t+1}], v[{vR[f]}:{vR[f]+1}], v[{vR[f]}:{vR[f]+1}] op_sel:[0,0,1] op_sel_hi:[1,0,1]",
                  f"v_cvt_pk_bf16_f32 v{x}, v{t}, v{t+1}"]
        else:
            r += [f"v_lshlrev_b32 v{t}, 16, v{x}", f"v_and_b32 v{t+1}, 0xffff0000, v{x}",
                  f"v_fma_f32 v{t}, v{t}, v{vR[f]}, v{vNB[f]}", f"v_fma_f32 v{t+1}, v{t+1}, v{vR[f]}, v{vNB[f]}",
                  f"v_cvt_pk_bf16_f32 v{x}, v{t}, v{t+1}"]
    return r

def stats_store():
    a, b = vT[0], vT[1]
    r = [f"v_and_b32 v{a}, 12, v{vLANE}", f"v_add_u32 v{a}, v{a}, v{vLANE}", f"v_lshlrev_b32 v{a}, 3, v{a}",
         f"v_mov_b32 v{b}, {OOB}", f"v_cmp_gt_u32 vcc, 16, v{vLANE}", f"v_cndmask_b32 v{a}, v{b}, v{a}, vcc"]
    for f in range(2):
        r.append(I(f"buffer_store_dwordx2 v[{vR[f]}:{vR[f]+1}], v{a}, s[{sWS}:{sWS+3}], s{sSTATO} offen offset:{32*f} sc1", tok="stat"))
    return r

def mlp_dma_addr(kind):
    vD = vDB if kind == "B" else globals()["vD"]
    t0, t1, t2 = vD[1], vD[2], vD[3]
    if kind == "A":
        r = [f"v_lshrrev_b32 v{t0}, 3, v{vLANE}", f"v_and_b32 v{t1}, 7, v{vLANE}", f"v_and_b32 v{t2}, 2, v{t0}", f"v_lshlrev_b32 v{t2}, 1, v{t2}",
             f"v_xor_b32 v{t1}, v{t1}, v{t2}", f"v_lshlrev_b32 v{t1}, 4, v{t1}",
             f"v_mul_u32_u24 v{t0}, 3072, v{t0}", f"v_add_u32 v{vD[0]}, v{t0}, v{t1}"]
        rows = 8
    else:
        r = [f"v_lshrrev_b32 v{t0}, 2, v{vLANE}", f"v_and_b32 v{t1}, 3, v{vLANE}", f"v_lshlrev_b32 v{t1}, 4, v{t1}",
             f"v_mul_u32_u24 v{t0}, 3072, v{t0}", f"v_add_u32 v{vD[0]}, v{t0}, v{t1}"]
        rows = 16
    for p in range(1, 4):
        r.append(f"v_add_u32 v{vD[p]}, {p*(rows*3072 - 1024)}, v{vD[0]}")
    if kind == "B": r.append(f"v_add_u32 v{vRB2}, 0x10000, v{vRB}")
    return r

def dma_M(m):
    slot = m % 4 if m < 10 else BSLOT[m]
    vD = globals()["vD"] if m < 10 else vDB
    if m < 10:
        so = [f"s_mul_i32 s{sD0}, s{sKU[m >> 1]}, 1536", f"s_add_u32 s{sD0}, s{sD0}, s{sMOFF}"]
        if m & 1: so.append(f"s_add_u32 s{sD0}, s{sD0}, {64*3072}")
    else:
        so = [f"s_mul_i32 s{sD0}, s{sKU[m - 10]}, 1536", f"s_add_u32 s{sD0}, s{sD0}, s{sMOFFB}"]
    if m >= 10:
        r = []
        for p in range(4):
            r += [f"s_add_u32 m0, s{sM0A}, {slot*16384}"] + ([t.replace(f"s{sD0}", f"s{sD2}") for t in so] if p == 0 else [f"s_add_u32 s{sD2}, s{sD2}, {0}"] if False else [])
            r.append(I(f"buffer_load_dwordx4 v{vD[p]}, s[{sWM}:{sWM+3}], s{sD2} offen offset:{p*1024} {opt.w_flags} lds", tok=f"M{m}"))
        return r
    r = [f"s_add_u32 m0, s{sM0A}, {slot*16384}"] + so
    for p in range(4):
        r.append(I(f"buffer_load_dwordx4 v{vD[p]}, s[{sWM}:{sWM+3}], s{sD0} offen offset:{p*1024} {opt.w_flags} lds", tok=f"M{m}"))
    return r

def w13_touch_addr():
    a, b = vT[5], vT[6]
    return [f"v_lshrrev_b32 v{a}, 1, v{vLANE}", f"v_mul_u32_u24 v{a}, 3072, v{a}", f"v_and_b32 v{b}, 1, v{vLANE}", f"v_lshl_add_u32 v{a}, v{b}, 7, v{a}",
            f"v_accvgpr_write_b32 a238, v{a}", f"v_mov_b32 v{b}, {OOB}", f"v_cmp_gt_u32 vcc, 16, v{vLANE}", f"v_cndmask_b32 v{a}, v{b}, v{a}, vcc",
            f"v_accvgpr_write_b32 a239, v{a}",
            f"s_and_b32 s{sT2}, s{sC}, 7", f"s_lshl_b32 s{sT2}, s{sT2}, 1", f"s_lshr_b32 s{sT3}, s{sW}, 1", f"s_add_u32 s{sT2}, s{sT2}, s{sT3}",
            f"s_mul_i32 s{sT2}, s{sT2}, {40*3072}", f"s_mul_i32 s{sT3}, s{sG}, 192", f"s_and_b32 s{sT3}, s{sT3}, 0xffffff80", f"s_add_u32 s{sD2}, s{sT2}, s{sT3}"]
def w13_touch():
    a = I(f"buffer_load_dword a228, v{vFLAG}, s[{sWM}:{sWM+3}], s{sD2} offen", tok="TW"); a.lines = 64
    b = I(f"buffer_load_dword a228, v{vFLAG}, s[{sWM}:{sWM+3}], s{sD2} offen", tok="TW"); b.lines = 16
    return [[f"v_accvgpr_read_b32 v{vFLAG}, a238", a], [f"v_accvgpr_read_b32 v{vFLAG}, a239", f"s_add_u32 s{sD2}, s{sD2}, {32*3072}", b]]

def delay(tag, mod, val, ticks):
    if not opt.delay: return []
    return ["@raw_begin", f"s_and_b32 s{sD0}, s2, {mod}", f"s_cmp_eq_u32 s{sD0}, {val}", f"s_cbranch_scc0 L_dl{tag}",
            f"s_memrealtime s[{sSTAMP}:{sSTAMP+1}]", "s_waitcnt lgkmcnt(0)", f"s_mov_b32 s{sD1}, s{sSTAMP}", f"L_dw{tag}:",
            f"s_memrealtime s[{sSTAMP}:{sSTAMP+1}]", "s_waitcnt lgkmcnt(0)", f"s_sub_u32 s{sD0}, s{sSTAMP}, s{sD1}",
            f"s_cmp_lt_u32 s{sD0}, {ticks*opt.delay}", f"s_cbranch_scc1 L_dw{tag}", f"L_dl{tag}:", "@raw_end"]

def skew(tag):
    if not opt.skew: return []
    return [f"s_bitcmp1_b32 s{sW}, 0", f"s_cbranch_scc1 L_sk{tag}a", "s_nop 0", f"L_sk{tag}a:", f"s_bitcmp1_b32 s{sW}, 1", f"s_cbranch_scc1 L_sk{tag}b", "s_nop 1", f"L_sk{tag}b:"]

def mlp_read_addr():
    G, r_, c, t, u = vT[19], vT[20], vT[21], vT[22], vT[23]
    return [f"v_lshrrev_b32 v{G}, 4, v{vLANE}", f"v_bfe_u32 v{r_}, v{vLANE}, 2, 2", f"v_and_b32 v{c}, 3, v{vLANE}",
         f"v_lshrrev_b32 v{t}, 1, v{G}", f"v_lshlrev_b32 v{t}, 11, v{t}", f"v_lshl_add_u32 v{t}, v{r_}, 7, v{t}",
         f"v_and_b32 v{u}, 1, v{c}", f"v_lshl_add_u32 v{t}, v{u}, 3, v{t}",
         f"v_and_b32 v{u}, 1, v{G}", f"v_lshlrev_b32 v{u}, 1, v{u}", f"v_lshrrev_b32 v{vRA[1]}, 1, v{c}", f"v_add_u32 v{u}, v{u}, v{vRA[1]}",
         f"v_lshrrev_b32 v{vRA[1]}, 1, v{r_}", f"v_lshlrev_b32 v{vRA[1]}, 2, v{vRA[1]}", f"v_xor_b32 v{u}, v{u}, v{vRA[1]}",
         f"v_lshl_add_u32 v{vRA[0]}, v{u}, 4, v{t}", f"v_xor_b32 v{vRA[1]}, 64, v{vRA[0]}",
         f"v_lshrrev_b32 v{t}, 1, v{G}", f"v_lshlrev_b32 v{t}, 10, v{t}", f"v_lshl_add_u32 v{t}, v{r_}, 6, v{t}",
         f"v_and_b32 v{u}, 1, v{G}", f"v_lshl_add_u32 v{t}, v{u}, 5, v{t}", f"v_lshl_add_u32 v{vRB}, v{c}, 3, v{t}",
         f"v_lshlrev_b32 v{u}, 10, v{u}", f"v_lshrrev_b32 v{t}, 1, v{G}", f"v_lshl_add_u32 v{u}, v{t}, 8, v{u}",
         f"v_and_b32 v{t}, 15, v{vLANE}", f"v_lshl_add_u32 v{vHH}, v{t}, 4, v{u}"]

def relayout_issue():
    u, t0, t1, t2 = sT2, vT[5], vT[6], vT[7]
    vo = vT[0:5]
    r = [f"s_lshl_b32 s{u}, s{sW}, 5", f"s_add_u32 s{u}, s{u}, s{sRT}",
       f"s_mul_i32 s{sT3}, s{sN}, 88", f"s_add_u32 s{sT3}, s{sT3}, s{u}", f"s_mul_i32 s{sT3}, s{sT3}, 5120", f"s_add_u32 s{sT3}, s{sT3}, {WS_W2P}",
       f"s_cmp_lt_u32 s{u}, 88", f"s_cselect_b32 s{sRLST}, s{sT3}, {OOB}",
       f"s_mov_b32 s{sRL+3}, 0x20000", f"s_cmp_lt_u32 s{u}, 40", "@arm", "s_cbranch_scc0 L_rlw",
       f"s_cmp_lt_u32 s{u}, 20", f"s_cselect_b32 s{sRL}, s{pCRE}, s{pCIM}", f"s_cselect_b32 s{sRL+1}, s{pCRE+1}, s{pCIM+1}",
       f"s_cselect_b32 s{sT3}, 0, 20", f"s_sub_u32 s{sT3}, s{u}, s{sT3}", f"s_lshl_b32 s{sT3}, s{sT3}, 6",
       f"s_mul_i32 s{sT4}, s{sN}, {80*1280}", f"s_add_u32 s{sRLOFF}, s{sT3}, s{sT4}",
       f"s_mov_b32 s{sRL+2}, {640*1280}",
       f"v_lshrrev_b32 v{t0}, 2, v{vLANE}", f"v_and_b32 v{t1}, 3, v{vLANE}", f"v_lshlrev_b32 v{t1}, 4, v{t1}",
       f"v_mul_u32_u24 v{t0}, 1280, v{t0}", f"v_add_u32 v{vo[0]}, v{t0}, v{t1}"]
    for e in range(1, 5): r.append(f"v_add_u32 v{vo[e]}, {e*16*1280}, v{vo[0]}")
    r += ["s_branch L_rlj", "@else", "L_rlw:",
       f"s_mov_b32 s{sRL}, s{pW2}", f"s_mov_b32 s{sRL+1}, s{pW2+1}",
       f"s_cmp_lt_u32 s{u}, 88", f"s_cselect_b32 s{sRL+2}, {1536*1280}, 0",
       f"s_sub_u32 s{sT3}, s{u}, 40", f"s_mul_i32 s{sT3}, s{sT3}, {32*1280}", f"s_mul_i32 s{sT4}, s{sN}, 160", f"s_add_u32 s{sRLOFF}, s{sT3}, s{sT4}",
       f"s_mov_b32 s{sT4}, 6554"]
    for p in range(5):
        r += [f"v_add_u32 v{t0}, {64*p}, v{vLANE}", f"v_mul_u32_u24 v{t1}, s{sT4}, v{t0}", f"v_lshrrev_b32 v{t1}, 16, v{t1}",
              f"v_mul_u32_u24 v{t2}, 10, v{t1}", f"v_sub_u32 v{t2}, v{t0}, v{t2}", f"v_lshlrev_b32 v{t2}, 4, v{t2}",
              f"v_mul_u32_u24 v{t1}, 1280, v{t1}", f"v_add_u32 v{vo[p]}, v{t1}, v{t2}"]
    r += ["@endarm", "L_rlj:", f"s_and_b32 s{sRL+1}, s{sRL+1}, 0xffff"]
    r += [f"v_accvgpr_write_b32 a{232+p}, v{vo[p]}" for p in range(5)]
    return r
def relayout_dma():
    vo = vT[0:5]
    r = []
    if "r" in opt.skip: return r
    for p in range(5):
        r.append([f"s_add_u32 m0, s{sM0U}, {L_RL + p*1024}", f"v_accvgpr_read_b32 v3, a{232+p}",
                  I(f"buffer_load_dwordx4 v3, s[{sRL}:{sRL+3}], s{sRLOFF} offen {'nt' if opt.rl_nt else ''} lds", tok="RL")])
    return r

def relayout_raddr():
    t0, t1, t2 = vT[5], vT[6], vT[7]
    return [f"v_and_b32 v{t0}, 15, v{vLANE}", f"v_lshrrev_b32 v{t1}, 4, v{vLANE}", f"v_lshlrev_b32 v{t1}, 4, v{t1}", f"v_lshl_add_u32 v{t0}, v{t0}, 6, v{t1}",
            f"v_lshrrev_b32 v{t1}, 2, v{vLANE}", f"v_and_b32 v{t2}, 8, v{t1}", f"v_add_u32 v{t1}, v{t1}, v{t2}", f"v_mul_u32_u24 v{t1}, 160, v{t1}",
            f"v_and_b32 v{t2}, 3, v{vLANE}", f"v_lshl_add_u32 v{t1}, v{t2}, 3, v{t1}",
            f"s_lshl_b32 s{sT2}, s{sW}, 5", f"s_add_u32 s{sT2}, s{sT2}, s{sRT}", f"s_cmp_lt_u32 s{sT2}, 40", f"s_cselect_b64 s[{sEX0}:{sEX0+1}], -1, 0",
            f"s_cselect_b32 s{sRLT}, 1, 0", f"s_add_u32 s{sT3}, s{sM0U}, {L_RL}",
            f"v_cndmask_b32 v{t0}, v{t1}, v{t0}, s[{sEX0}:{sEX0+1}]", f"v_add_u32 v{t0}, s{sT3}, v{t0}", f"v_accvgpr_write_b32 a237, v{t0}"]
def relayout_finish():
    if "r" in opt.skip: return []
    t0 = vT[0]
    r = [f"v_accvgpr_read_b32 v{t0}, a237", "@waitvm RL", f"s_cmp_eq_u32 s{sRLT}, 1", "s_cbranch_scc0 L_rfw"]
    for e in range(5):
        for h in range(2): r.append(f"ds_read_b64 {ar(aRL+4*e+2*h, 2)}, v{t0} offset:{e*1024 + 8*h}")
    r += ["@raw_begin", "s_branch L_rfj", "L_rfw:"]
    for e in range(5):
        for jj in range(2): r.append(f"ds_read_b64_tr_b16 {ar(aRL+4*e+2*jj, 2)}, v{t0} offset:{jj*1280 + e*32}")
    r += ["@raw_end", "L_rfj:"]
    for e in range(5):
        if e < 4: r.append(I(f"buffer_store_dwordx4 {ar(aRL+4*e)}, v{vL16}, s[{sWS}:{sWS+3}], s{sRLST} offen offset:{e*1024} sc1", tok="RLS"))
        else: r.append(I(f"buffer_store_dwordx4 {ar(aRL+4*e)}, v{vW4}, s[{sWS}:{sWS+3}], s{sRLST} offen sc1", tok="RLS"))
    return r

def flag_store(base, sline, sidx):
    return [f"s_lshl_b32 s{sD0}, s{sline}, 7", f"s_lshl_b32 s{sD1}, s{sidx}, 2", f"s_add_u32 s{sD0}, s{sD0}, s{sD1}", f"s_add_u32 s{sD0}, s{sD0}, {base}",
            f"s_cmp_eq_u32 s{sW}, 0", f"s_cselect_b32 s{sD0}, s{sD0}, {OOB}",
            f"buffer_store_dword v{vNON}, off, s[{sWS}:{sWS+3}], s{sD0} sc1"]
def flag_load(base, sline, shift, mask, st=None):
    st = sD0 if st is None else st
    return [f"s_lshr_b32 s{st}, s{sline}, {shift}", f"s_lshl_b32 s{st}, s{st}, 7", f"s_add_u32 s{st}, s{st}, {base}",
            f"v_and_b32 v{vFLAG}, {mask}, v{vLANE}", f"v_lshlrev_b32 v{vFLAG}, 2, v{vFLAG}",
            f"buffer_load_dword v{vFLAG}, v{vFLAG}, s[{sWS}:{sWS+3}], s{st} offen sc1"]
sNN = 6
def sflag_load(base):
    return [f"s_lshr_b32 s{sD0}, s{sRT}, 1", f"s_lshl_b32 s{sD0}, s{sD0}, 7", f"s_add_u32 s{sD0}, s{sD0}, {base}", f"s_add_u32 s{sD1}, s{sD0}, 32",
            f"s_load_dwordx8 s[56:63], s[{pWS}:{pWS+1}], s{sD0} glc", f"s_load_dwordx8 s[76:83], s[{pWS}:{pWS+1}], s{sD1} glc"]
def sflag_check(base):
    lab[0] += 1
    n = lab[0]
    r = ["@waitds0"]
    for k in (56, 58, 60, 62, 76, 78, 80, 82): r.append(f"s_xor_b64 s[{k}:{k+1}], s[{k}:{k+1}], s[{sNN}:{sNN+1}]")
    for a, b in ((56, 58), (60, 62), (76, 78), (80, 82), (56, 60), (76, 80), (56, 76)): r.append(f"s_or_b64 s[{a}:{a+1}], s[{a}:{a+1}], s[{b}:{b+1}]")
    ld = flag_load(base, sRT, 1, 15, sD0); chk = [f"v_cmp_ne_u32 vcc, s{sNONCE}, v{vFLAG}"]
    r += [f"s_cbranch_scc0 L_ok{n}", "@raw_begin", f"s_mov_b32 s{sCNT}, {0x4000 if opt.diag else 0x40000}", f"L_rt{n}:"] + ld
    r += ["s_waitcnt vmcnt(0)", "s_nop 1"] + chk + [f"s_cbranch_vccz L_ok{n}", "s_sleep 1", f"s_sub_u32 s{sCNT}, s{sCNT}, 1",
          f"s_cmp_lg_u32 s{sCNT}, 0", f"s_cbranch_scc1 L_rt{n}", "s_nop 7", "@raw_end", f"L_ok{n}:"]
    return r
def fl_load(base): return sflag_load(base) if opt.sflag else flag_load(base, sRT, 1, 15)
def fl_check(base): return sflag_check(base) if opt.sflag else flag_check(base, sRT, 1, 15)
def flag_check(base, sline, shift, mask):
    if "f" in opt.skip: return [f"v_mov_b32 v{vFLAG}, 0"]
    return poll(flag_load(base, sline, shift, mask, sD0), [f"v_cmp_ne_u32 vcc, s{sNONCE}, v{vFLAG}"])

def scan_addr():
    col, q, ch, t = vT[19], vT[20], vT[21], vT[22]
    return [f"s_lshl_b32 s{sT2}, s{sW}, 13", f"s_add_u32 s{sT2}, s{sT2}, {L_PRIV}",
            f"v_and_b32 v{col}, 15, v{vLANE}", f"v_lshrrev_b32 v{q}, 4, v{vLANE}",
            f"v_lshl_add_u32 v{vCOLR}, v{col}, 4, s{sT2}",
            f"v_lshl_add_u32 v{vEW}, v{q}, 2, v{vCOLR}",
            f"v_min_u32 v{ch}, 39, v{vLANE}", f"v_lshlrev_b32 v{vSO}, 4, v{ch}",
            f"v_lshrrev_b32 v{t}, 3, v{ch}", f"v_lshlrev_b32 v{t}, 3, v{t}", f"v_add_u32 v{t}, v{t}, v{ch}",
            f"v_lshl_add_u32 v{vER}, v{t}, 4, s{sT2}",
            f"v_add_u32 v{vCH}, s{sT2}, v{vL16}",
            f"s_lshl_b32 s{sT3}, s{sW}, 9", f"s_add_u32 s{sT3}, s{sT3}, {L_TT}", f"v_lshl_add_u32 v{vTT}, v{vLANE}, 3, s{sT3}",
            f"v_lshlrev_b32 v{vLB}, 5, v{vLANE}", f"v_add_u32 v{vLB}, {L_LB}, v{vLB}",
            f"s_add_u32 s{sT3}, s{sM0U}, {L_RL}",
            f"v_lshlrev_b32 v{vTW}, 5, v{col}", f"v_lshl_add_u32 v{vTW}, v{q}, 3, v{vTW}", f"v_add_u32 v{vTW}, s{sT3}, v{vTW}",
            f"v_bfe_u32 v{t}, v{vLANE}, 2, 2", f"v_lshlrev_b32 v{t}, 5, v{t}", f"v_lshl_add_u32 v{t}, v{q}, 8, v{t}",
            f"v_and_b32 v{ch}, 3, v{vLANE}", f"v_lshl_add_u32 v{t}, v{ch}, 3, v{t}", f"v_add_u32 v{vTR}, s{sT3}, v{t}",
            f"v_lshrrev_b32 v{t}, 1, v{q}", f"v_lshlrev_b32 v{t}, 10, v{t}", f"v_lshl_add_u32 v{vHST}, v{col}, 4, v{t}",
            f"v_and_b32 v{t}, 1, v{q}", f"v_mul_u32_u24 v{t}, {20*4096}, v{t}", f"v_add_u32 v{vHST}, v{vHST}, v{t}"]

def const_park():
    src = [cAR, cAI, cKR, cKI] + list(range(60, 70))
    return [f"v_accvgpr_write_b32 a{200+k}, v{s}" for k, s in enumerate(src)]
def const_tables():
    t = vT[0:8]
    r = [f"v_accvgpr_read_b32 v{t[0]}, a200", f"v_accvgpr_read_b32 v{t[1]}, a201", f"v_accvgpr_read_b32 v{t[2]}, a202", f"v_accvgpr_read_b32 v{t[3]}, a203",
         f"v_sub_f32 v{t[3]}, 0, v{t[3]}",
         f"v_mov_b32 v{t[4]}, v{t[0]}", f"v_sub_f32 v{t[5]}, 0, v{t[1]}", f"v_sub_f32 v{t[6]}, 0, v{t[2]}", f"v_mov_b32 v{t[7]}, v{t[3]}",
         f"ds_write_b128 v{vER}, {vr(t[0])} offset:{PV_COL}", f"ds_write_b128 v{vER}, {vr(t[4])} offset:{PV_COL+128}",
         f"ds_write_b128 v{vCH}, {ar(204)} offset:{PV_CH}", f"ds_write_b128 v{vCH}, {ar(208)} offset:{PV_CH+1024}",
         f"ds_write_b64 v{vCH}, {ar(212, 2)} offset:{PV_CH+2048}",
         f"v_mov_b32 v{t[0]}, 0", f"v_mov_b32 v{t[1]}, 0",
         f"s_min_u32 s{sT2}, s{sW}, 2", f"s_lshl_b32 s{sT2}, s{sT2}, 9", f"s_add_u32 s{sT2}, s{sT2}, {L_TT}",
         f"v_lshl_add_u32 v{t[2]}, v{vLANE}, 3, s{sT2}", f"ds_write_b64 v{t[2]}, {vr(t[0], 2)}"]
    return r

def ureg(cf, tau): return U(cf, tau >> 2) + (tau & 3)
DPP = "row_ror:8 row_mask:0xf bank_mask:0xf"
def scan_P12():
    C = vT[0:20]
    r = [I(f"ds_read_b128 {vr(C[4*cf])}, v{vCOLR} offset:{PV_COL + cf*256}", tok="colr") for cf in range(5)]
    r.append("@gap 1")
    t = vT[20:24]
    k = 0
    for tau in range(8):
        for cf in range(5):
            u = ureg(cf, tau); tt = t[k % 4]; k += 1
            r += [f"v_mul_f32_dpp v{tt}, v{u}, v{C[4*cf+3]} {DPP}", f"v_fma_f32 v{u}, v{C[4*cf+2]}, v{u}, v{tt}"]
    for tau in range(1, 8):
        src = [(ureg(cf, 0) if tau == 1 else C[4*cf + 2 + (tau & 1)]) for cf in range(5)]
        dst = [C[4*cf + 2 + ((tau + 1) & 1)] for cf in range(5)]
        for cf in range(5): r.append(f"v_fma_f32 v{dst[cf]}, v{C[4*cf]}, v{src[cf]}, v{ureg(cf, tau)}")
        for cf in range(5): r.append(f"v_fmac_f32_dpp v{dst[cf]}, v{src[cf]}, v{C[4*cf+1]} {DPP}")
    for cf in range(5): r.append(f"ds_write_b32 v{vEW}, v{C[4*cf+2]} offset:{PV_E + cf*256}")
    er, ei, a8 = vT[0], vT[4], vT[8]
    r += [f"ds_read_b128 {vr(a8)}, v{vCH} offset:{PV_CH}",
          f"ds_read_b128 {vr(er)}, v{vER} offset:{PV_E}", f"ds_read_b128 {vr(ei)}, v{vER} offset:{PV_E+128}", "@gap 2"]
    g0, g1 = vT[12], vT[14]
    r += chorner2(g0, g0+1, er, ei, a8, a8+1, er+1, ei+1)
    r += chorner2(g1, g1+1, g0, g0+1, a8, a8+1, er+2, ei+2)
    r += chorner2(g0, g0+1, g1, g1+1, a8, a8+1, er+3, ei+3)
    r += [f"ds_write_b64 v{vTT}, {vr(g0, 2)} offset:{3*512}"]
    return r

def scan_P3():
    a32 = vT[8]; T = vT[0:8]
    r = [f"ds_read_b128 {vr(a32)}, v{vCH} offset:{PV_CH}"]
    for k in range(4): r.append(f"ds_read_b64 {vr(T[2*k], 2)}, v{vTT} offset:{k*512}")
    r.append("@gap 2")
    m = a32 + 2
    g = vT[12]
    r += chorner2(g, g+1, T[0], T[1], m, m+1, T[2], T[3])
    r += chorner2(vWP0, vWP1, g, g+1, m, m+1, T[4], T[5])
    r += chorner2(g, g+1, vWP0, vWP1, m, m+1, T[6], T[7])
    r += [f"v_mov_b32 v{g+2}, s{sNONCE}", f"v_mov_b32 v{g+3}, s{sNONCE}",
          f"buffer_store_dwordx4 {vr(g)}, v{vSO}, s[{sWS}:{sWS+3}], s{sSST} offen sc1"]
    return r

def lb_loads():
    return [f"buffer_load_dwordx4 {ar(aS+4*jj)}, v{vSO}, s[{sWS}:{sWS+3}], s{sl} offen sc1" for jj, sl in enumerate((sLB0, sLB1, sLB2, sLB3))]
def scan_P4():
    t = vT[0:8]
    chk = []
    for jj, sl in enumerate((sLB0, sLB1, sLB2, sLB3)):
        d = t[2] if jj == 0 else t[0]
        chk += [f"s_cmp_lt_u32 s{sl}, {OOB}", f"s_cselect_b32 s{sT2}, s{sNONCE}, 0", f"v_accvgpr_read_b32 v{d}, a{aS+4*jj+2}",
                f"v_xor_b32 v{d}, s{sT2}, v{d}"]
        if jj: chk += [f"v_or_b32 v{t[2]}, v{t[2]}, v{t[0]}"]
    chk += [f"v_cmp_ne_u32 vcc, 0, v{t[2]}"]
    c = vT[8]
    r = [f"ds_read_b128 {vr(c)}, v{vCH} offset:{PV_CH+1024}", f"ds_read_b64 {vr(vT[12], 2)}, v{vCH} offset:{PV_CH+2048}"]
    if "f" not in opt.skip: r += poll(lb_loads(), [i.text for i in insert_nops(II(chk))])
    for jj in range(4):
        r += [f"v_accvgpr_read_b32 v{t[2*jj]}, a{aS+4*jj}", f"v_accvgpr_read_b32 v{t[2*jj+1]}, a{aS+4*jj+1}"]
    m = c + 2; g0, g1 = vT[14], vT[16]
    r += chorner2(g0, g0+1, t[0], t[1], m, m+1, t[2], t[3])
    r += chorner2(g1, g1+1, g0, g0+1, m, m+1, t[4], t[5])
    r += chorner2(g0, g0+1, g1, g1+1, m, m+1, t[6], t[7])
    r += cmul(g1, g1+1, g0, g0+1, vT[12], vT[13], vT[18])
    r += [f"s_lshl_b32 s{sT2}, s{sW}, 3", f"v_add_u32 v{vT[18]}, s{sT2}, v{vLB}", f"ds_write_b64 v{vT[18]}, {vr(g1, 2)}"]
    return r

def scan_P56():
    lb = vT[0]; er, ei = vT[8], vT[12]; c8, c32w = vT[16], vT[20]
    r = [f"ds_read_b128 {vr(lb)}, v{vLB}", f"ds_read_b128 {vr(lb+4)}, v{vLB} offset:16",
         f"ds_read_b64 {vr(c32w, 2)}, v{vCH} offset:{PV_CH+1024}", f"ds_read_b128 {vr(c8)}, v{vCH} offset:{PV_CH}",
         f"ds_read_b128 {vr(er)}, v{vER} offset:{PV_E}", f"ds_read_b128 {vr(ei)}, v{vER} offset:{PV_E+128}", "@gap 2",
         f"v_add_f32 v{lb}, v{lb}, v{lb+2}", f"v_add_f32 v{lb+1}, v{lb+1}, v{lb+3}",
         f"v_add_f32 v{lb+4}, v{lb+4}, v{lb+6}", f"v_add_f32 v{lb+5}, v{lb+5}, v{lb+7}",
         f"v_add_f32 v{lb}, v{lb}, v{lb+4}", f"v_add_f32 v{lb+1}, v{lb+1}, v{lb+5}"]
    q0, q1 = vT[4], vT[20]
    tmp = vT[2]
    r += chorner2(tmp, tmp+1, lb, lb+1, c32w, c32w+1, vWP0, vWP1)
    r += [f"v_mov_b32 v{q0}, v{tmp}", f"v_mov_b32 v{q1}, v{tmp+1}"]
    for k in range(3):
        r += chorner2(q0+k+1, q1+k+1, q0+k, q1+k, c8, c8+1, er+k, ei+k)
    r += [f"ds_write_b128 v{vER}, {vr(q0)} offset:{PV_E}", f"ds_write_b128 v{vER}, {vr(q1)} offset:{PV_E+128}"]
    C = vT[0:10]; Z = vT[10:15]
    for cf in range(5): r.append(f"ds_read_b32 v{Z[cf]}, v{vEW} offset:{PV_E + cf*256}")
    for cf in range(5): r.append(f"ds_read_b64 {vr(C[2*cf], 2)}, v{vCOLR} offset:{PV_COL + cf*256}")
    r.append("@gap 2")
    for tau in range(8):
        src = [(Z[cf] if tau == 0 else ureg(cf, tau-1)) for cf in range(5)]
        for cf in range(5): r.append(f"v_fma_f32 v{ureg(cf, tau)}, v{C[2*cf]}, v{src[cf]}, v{ureg(cf, tau)}")
        for cf in range(5): r.append(f"v_fmac_f32_dpp v{ureg(cf, tau)}, v{src[cf]}, v{C[2*cf+1]} {DPP}")
    for cf in range(5):
        for f in range(2):
            t = vT[2*(cf*2+f)]; u = U(cf, f)
            r += [f"v_cvt_pk_bf16_f32 v{t}, v{u}, v{u+1}", f"v_cvt_pk_bf16_f32 v{t+1}, v{u+2}, v{u+3}"]
    for k in range(10): r.append(f"ds_write_b64 v{vTW}, {vr(vT[2*k], 2)} offset:{k*512}")
    for cf in range(5):
        for jj in range(2):
            r.append(f"ds_read_b64_tr_b16 {vr(56 + 4*cf + 2*jj, 2)}, v{vTR} offset:{cf*1024 + jj*128}")
    for cf in range(5):
        r.append(I(f"buffer_store_dwordx4 {vr(56 + 4*cf)}, v{vHST}, s[{sWS}:{sWS+3}], s{sHO[cf]} offen sc1", tok="HST"))
    return r

def swiglu(acc, h2s, sks, tokname, packed=False):
    r = []
    k = 0
    for h2 in h2s:
        for z in range(2):
            G = vT[0:8]; Uu = vT[8:16]; T = vT[16:24]
            for j in range(8):
                r += [f"v_accvgpr_read_b32 v{G[j]}, a{acc(0, h2) + 8*z + j}", f"v_accvgpr_read_b32 v{Uu[j]}, a{acc(1, h2) + 8*z + j}"]
            if packed:
                for j in range(0, 8, 2): r.append(f"v_pk_mul_f32 {vr(T[j], 2)}, {vr(G[j], 2)}, s[{sEX0}:{sEX0+1}]")
                for j in range(8):
                    r.append(f"v_exp_f32 v{T[j]}, v{T[j]}")
                for j in range(0, 8, 2): r.append(f"v_pk_mul_f32 {vr(G[j], 2)}, {vr(G[j], 2)}, {vr(Uu[j], 2)}")
                for j in range(0, 8, 2): r.append(f"v_pk_add_f32 {vr(T[j], 2)}, {vr(T[j], 2)}, s[{sEX2}:{sEX2+1}]")
                for j in range(8): r.append(f"v_rcp_f32 v{T[j]}, v{T[j]}")
                for j in range(0, 8, 2): r.append(f"v_pk_mul_f32 {vr(G[j], 2)}, {vr(G[j], 2)}, {vr(T[j], 2)}")
            else:
                for j in range(8): r.append(f"v_mul_f32 v{T[j]}, {NLOG2E}, v{G[j]}")
                for j in range(8): r += [f"v_exp_f32 v{T[j]}, v{T[j]}", f"v_mul_f32 v{G[j]}, v{G[j]}, v{Uu[j]}"]
                for j in range(8): r.append(f"v_add_f32 v{T[j]}, 1.0, v{T[j]}")
                for j in range(8): r.append(f"v_rcp_f32 v{T[j]}, v{T[j]}")
                for j in range(8): r.append(f"v_mul_f32 v{G[j]}, v{G[j]}, v{T[j]}")
            o = Uu[0] if k % 2 == 0 else Uu[4]; k += 1
            for j in range(4): r.append(f"v_cvt_pk_bf16_f32 v{o+j}, v{G[2*j]}, v{G[2*j+1]}")
            if z == 0: r.append(f"s_add_u32 s{sT2}, s{sks}, {h2*4096}")
            r.append(I(f"buffer_store_dwordx4 {vr(o)}, v{vHH}, s[{sWS}:{sWS+3}], s{sT2} offen offset:{z*512} sc1", tok=tokname))
    return r

def step_reads(blk, s, par):
    r = []
    if blk == "U":
        i, sh2, sh = s // 4, (s >> 1) & 1, s & 1
        off = i*20480 + sh2*10240 - (61440 if i >= 3 else 0)
        for cf in range(5):
            r.append(f"ds_read_b128 {ar(FB(par, cf))}, v{vRU[sh]} offset:{off + cf*1024}")
    elif blk == "A":
        m, sp = s // 2, s & 1
        for hf in range(2):
            for h2 in range(2):
                for mu in range(2):
                    for jj in range(2):
                        r.append(f"ds_read_b64_tr_b16 {ar(FB(par, hf*4+h2*2+mu) + 2*jj, 2)}, v{vRA[h2]} offset:{(m % 4)*16384 + (2*sp+mu)*4096 + hf*1024 + jj*512}")
    else:
        m, sd = 10 + s // 2, s & 1
        for s2 in range(2):
            for hf in range(2):
                for mu in range(2):
                    for jj in range(2):
                        r.append(f"ds_read_b64_tr_b16 {ar(FB(par, s2*4+hf*2+mu) + 2*jj, 2)}, v{vRB2 if BSLOT[m] >= 4 else vRB} offset:{(BSLOT[m] % 4)*16384 + (2*sd+mu)*4096 + s2*2048 + hf*512 + jj*256}")
    return r

def step_mfma(blk, s, par):
    r = []
    if blk == "U":
        for cf in range(5):
            for f in range(2):
                d = vr(U(cf, f)); c = "0" if s == 0 else d
                r.append(f"v_mfma_f32_16x16x32_bf16 {d}, {vr(X(f, s))}, {ar(FB(par, cf))}, {c}")
    elif blk == "A":
        for hf in range(2):
            for h2 in range(2):
                for mu in range(2):
                    d = ar(ACCA(mu, h2), 16); c = "0" if (s == 0 and hf == 0) else d
                    r.append(f"v_mfma_f32_32x32x16_bf16 {d}, {ar(FB(par, hf*4+h2*2+mu))}, {vr(X(hf, s))}, {c}")
    else:
        for s2 in range(2):
            for hf in range(2):
                for mu in range(2):
                    d = ar(ACCB(mu), 16); c = "0" if (s == 0 and hf == 0 and s2 == 0) else d
                    r.append(f"v_mfma_f32_32x32x16_bf16 {d}, {ar(FB(par, s2*4+hf*2+mu))}, {vr(X(hf, 2*s+s2))}, {c}")
    return r

def swaps(s): return [] if "w" in opt.skip else [f"v_permlane16_swap_b32 v{X(0, s)+k}, v{X(1, s)+k}" for k in range(4)]

def stage_of(blk, s):
    return ("U", s // 4) if blk == "U" else (("M", s // 2) if blk == "A" else ("M", 10 + s // 2))

def cost(i):
    if i.cls in ("pseudo", "label"): return 0
    if i.cls == "trans": return 2
    if i.cls == "vmem": return opt.vmcost
    return 1

PH = [1]
class Feed(list):
    def append(self, i): EM[0].feed(i)

class Queue:
    def __init__(self): self.q = []; self.hold = 0; self.now = 0
    def add(self, lst, deadline):
        if "q" in opt.skip:
            lst = [t for t in II(lst) if t.cls in ("vmem",) or t.op.startswith("s_") or t.cls in ("pseudo", "label") or t.op.startswith("v_cmp") or t.op.startswith("v_readfirst") or t.op.startswith("v_accvgpr_read") and "a18" in t.text + "a19"]
        lst = II(lst)
        if PH[0] == 1 and opt.skip and not any(t.op in ("@arm", "@raw_begin") for t in lst):
            if "D" in opt.skip: lst = [t for t in lst if not t.op.startswith("ds_write")]
            if "R" in opt.skip: lst = [t for t in lst if not t.op.startswith("ds_read")]
            if "V" in opt.skip: lst = [t for t in lst if t.cls not in ("valu", "trans") or t.op.startswith("v_cmp") or t.op.startswith("v_cndmask")]
            if "S" in opt.skip:
                for t in lst:
                    if t.cls == "vmem" and "store" in t.op and t.tok in ("HST", "HHA"): t.text = t.text.replace("offen", "offen").replace("dwordx4", "dword"); t.text = __import__("re").sub(r"v\[(\d+):\d+\]", r"v\1", t.text, 1); t.wide = False
        lst = II(lst)
        now = max(self.now, max([d for t, d in self.q] + [0]) if opt.chainq else 0)
        if not opt.interp or deadline <= now + 1:
            for t in lst: self.q.append((t, deadline))
            return
        pos = 0; P = []; wr = {}; lastw = -99
        for t in lst:
            if t.cls not in ("pseudo", "label"):
                dep = [wr[r] for r in (t.rd | t.wr) if r in wr]
                if dep: pos = max(pos, max(dep) + opt.vlat)
                if t.op.startswith("ds_read") and pos - lastw < opt.vlat // 2: pos = lastw + opt.vlat // 2
                for r in t.wr: wr.pop(r, None)
                if t.cls == "ds":
                    for r in t.wr: wr[r] = pos
                    if t.op.startswith("ds_write"): lastw = pos
            pos += cost(t) + (1 if t.cls == "ds" else 0)
            P.append(pos)
        prev = now
        for t, p in zip(lst, P):
            d = now + int((deadline - now) * p / max(pos, 1))
            if t.cls == "ds" and PH[0] == 1 and d >= 200:
                while d % 8 < opt.span and d < deadline: d += 1
            d = max(d, prev); prev = d
            self.q.append((t, min(d, deadline)))
    def _region(self, out):
        i = self.q[0][0]
        end = "@endarm" if i.op == "@arm" else "@raw_end"
        while True:
            j = self.q.pop(0)[0]; out.append(j)
            if j.cls == "pseudo" and j.op == end: break
        while self.q and self.q[0][0].cls == "label": out.append(self.q.pop(0)[0])
    def need(self, gap):
        best = 0; acc = 0
        for t, d in self.q:
            acc += cost(t)
            left = d - gap + 1
            if left <= 0: best = max(best, acc)
            else: best = max(best, -(-acc // left))
        return best
    def pop(self, n, gap, ds_ok=True):
        out = Feed(); nds = 0; self.now = gap
        n = max(n, self.need(gap)) if (opt.even and not opt.interp) else n
        while self.q and (n > 0 or self.q[0][1] <= gap):
            i = self.q[0][0]
            if i.cls == "pseudo" and i.op == "@gap":
                self.q.pop(0); continue
            if self.q[0][1] > gap:
                if i.cls == "ds" and (not ds_ok or nds >= opt.dsmax): break
                if i.cls == "ds": nds += 1
                look = [i] + ([x for x, d in self.q[1:12] if x.cls == "pseudo"][:1] if i.op.startswith("s_cmp") else [])
                if i.op.startswith("s_cmp"): look += [x for x, d in self.q[1:4]]
                if max(EM[0].stall(x) for x in look) > opt.thr: break
            if i.cls == "pseudo" and i.op in ("@arm", "@raw_begin"):
                self._region(out); n -= 4
                continue
            if i.cls == "branch" or i.op.startswith("s_cmp") or i.op.startswith("s_bitcmp") or i.op.startswith("v_cmp"):
                out.append(self.q.pop(0)[0])
                if self.q and "L_rfw" in self.q[0][0].text:
                    while self.q[0][0].op != "@raw_begin": out.append(self.q.pop(0)[0])
                    n -= 10
                while self.q:
                    k = self.q[0][0]
                    if k.op.startswith("s_cselect") or k.op.startswith("v_cndmask") or k.cls == "branch": out.append(self.q.pop(0)[0])
                    elif k.op in ("@arm", "@raw_begin"): self._region(out); n -= 4
                    else: break
                n -= 1
                continue
            self.q.pop(0); out.append(i)
            n -= cost(i)
        return out
    def flush(self):
        out = [i for i, d in self.q if not (i.cls == "pseudo" and i.op == "@gap")]
        self.q = []; self.hold = 0
        return out

ACC1 = [("a", 4*k) for k in range(20)]
ACC2 = [("v", 96 + 4*k) for k in range(20)]
A_SLOTS = [("a", 80 + 4*k) for k in range(20)]
GA = [("a", 196 + 4*k) for k in range(15)] + [("a", 160 + 4*k) for k in range(5)]
XFREE = [("v", base + 8*d + 4*h) for d in range(10) for base in (96, 176) for h in range(2)]
HI = [("v", 176 + 4*k) for k in range(20)]
N1 = 12
NLDS = 4
def wslot(st, e):
    if st < 4: return GA[st*5 + e]
    if st < 12: return XFREE[(st - 4)*5 + e]
    if st < 16: return HI[(st - 12)*5 + e]
    if st < 20: return GA[(st - 16)*5 + e]
    return HI[(st - 20)*5 + e]
def w_free_after_b(st):
    return -1 if st < 4 else ((st - 4)*5 + 4) // 4
def w_free_after_p(st):
    if st < 16:
        regs = {wslot(st, e) for e in range(5)}
        return max(o for o in range(4, 12) for e in range(5) if wslot(o, e) in regs)
    return st - 16 if st < 20 else st - 8
def rg(t, c=4): return f"{t[0]}[{t[1]}:{t[1]+c-1}]"
vA2 = [3, 4, 5, 6]; vPW = [7, 8, 9]; vPR = 11; vOUT = 13; vXO = 14; vSTA = 15; vDS = 16
vXR = list(range(56, 76)); vY = list(range(76, 96)); vDK = [17, 18, 19, 20, 21]; vST = list(range(32, 40)); vXD2 = [22, 23, 24]; vXL = 25; vWL = 26
L_X2 = 143360
NSTEP = 22
ORDER = [0, 1, 4, 5, 6, 7, 10, 11, 2, 3, 8, 9] + list(range(10))
def ptr_bases():
    return [f"s_mul_i32 s{sAS}, s{sW}, {12*4096}", f"s_add_u32 s{sAS}, s{sAS}, s{sP2A}", f"s_add_u32 s{sAS}, s{sAS}, {40*4096}",
            f"s_mul_i32 s{sAE}, s{sW}, {10*4096}", f"s_add_u32 s{sAE}, s{sAE}, s{sP2A}",
            f"s_mul_i32 s{sWB}, s{sW}, {12*5120}", f"s_add_u32 s{sWB}, s{sWB}, s{sP2W}", f"s_add_u32 s{sWB}, s{sWB}, {40*5120}",
            f"s_mul_i32 s{sWE}, s{sW}, {10*5120}", f"s_add_u32 s{sWE}, s{sWE}, s{sP2W}"]
def ptr_set(which, st):
    if which == "A": return [f"s_add_u32 s{sAP}, s{sAS if st < N1 else sAE}, {ORDER[st]*4096}"]
    return [f"s_add_u32 s{sWP}, s{sWB if st < N1 else sWE}, {ORDER[st]*5120}"]
def p2_wload(st):
    r = []
    r += ptr_set("W", st)
    for e in range(5):
        va, off = (vL16, e*1024) if e < 4 else (vW4, 0)
        if N1 <= st < N1 + NLDS:
            r += [f"s_add_u32 m0, s{sM0}, {L_WY + (st - N1)*5120 + (4096 if e == 4 else 0)}"] + (["s_nop 0"] if True else [])
            r.append(I(f"buffer_load_dwordx4 v{va}, s[{sWS}:{sWS+3}], s{sWP} offen offset:{off} sc1 lds", tok=f"WL{st}"))
        else:
            r.append(I(f"buffer_load_dwordx4 {rg(wslot(st, e))}, v{va}, s[{sWS}:{sWS+3}], s{sWP} offen offset:{off} sc1", tok="W"))
    return r
def p2_wread(st):
    return [f"@waitvm WL{st}"] + [f"ds_read_b128 {rg(wslot(st, e))}, v{vWL} offset:{L_WY + (st - N1)*5120 + e*1024}" for e in range(5)]
def p2_aload(st):
    r = []
    r += ptr_set("A", st)
    for jj in range(4):
        r.append(I(f"buffer_load_dwordx4 {rg(A_SLOTS[(st % 5)*4 + jj])}, v{vA2[jj]}, s[{sWS}:{sWS+3}], s{sAP} offen sc1", tok="A"))
    return r
def p2_setup():
    r = []
    for jj in range(4):
        r += [f"s_add_u32 s{sD0}, s{sW}, {jj}", f"s_and_b32 s{sD0}, s{sD0}, 3", f"v_lshl_add_u32 v{vA2[jj]}, s{sD0}, 10, v{vL16}"]
    return r
def p2_setup2():
    r = []
    for jj in range(1, 4):
        r += [f"s_add_u32 s{sT2}, s{sW}, {jj}", f"s_and_b32 s{sT2}, s{sT2}, 3",
              f"s_mul_i32 s{sT3}, s{sT2}, 15360", f"s_add_u32 s{sT3}, s{sT3}, {(3-jj)*5120}", f"v_add_u32 v{vPW[jj-1]}, s{sT3}, v{vL16}"]
    r += [f"s_mul_i32 s{sT3}, s{sW}, 15360", f"v_add_u32 v{vPR}, s{sT3}, v{vL16}", f"v_add_u32 v{vWL}, s{sM0}, v{vL16}"]
    r += [f"v_add_u32 v{v}, {L_P1}, v{v}" for v in vPW + [vPR]]
    return r

def groups(lst):
    out = []; cur = []
    for t in II(lst):
        cur.append(t)
        if t.cls == "vmem": out.append(cur); cur = []
    if cur: out.append(cur)
    return out
def gstall(grp):
    return max([EM[0].stall(t) for t in grp if t.cls == "vmem" or t.op == "@waitvm"] + [0])

def tagw(st):
    gs = groups(p2_wload(st))
    for gq in gs: gq[-1].lat = None; STEP[id(gq[-1])] = st
    return gs
def taga(st):
    gs = groups(p2_aload(st))
    for gq in gs: STEP[id(gq[-1])] = st
    return gs
STEP = {}

def phase1_blocks():
    Q = Queue()
    seq = [("U", s) for s in range(20)] + [("A", s) for s in range(20)] + [("B", s) for s in range(10)]
    gap0 = []; g = 0
    for blk, s in seq:
        gap0.append(g); g += {"U": 10, "A": 8, "B": 8}[blk]
    gap0.append(g)
    def stage_end(kind, idx):
        n = [k for k, (b, s) in enumerate(seq) if stage_of(b, s) == (kind, idx)][-1]
        return gap0[n]
    L(delay("a", 255, 0, 500)); L(delay("b", 31, 5, 700))
    L(["@waitvm U0", "s_barrier"])
    L(stamp("U start"))
    L(step_reads("U", 0, 0))
    later = []
    pace = [0, len(EM[0].out)]
    bulk = []
    def lat(gs, dl):
        for x in gs: later.append((II(x), dl))
    def blk_(gs, dl):
        at = len(bulk) if dl == 10**6 else next((q for q, (gq, d) in enumerate(bulk) if d == 10**6), len(bulk))
        bulk[at:at] = [(II(x), dl) for x in gs]
    lat([u_piece(2, cf) for cf in range(5)], stage_end("U", 0) - 4)
    lat([nonce_publish()], stage_end("U", 0))
    if opt.rl_pos == -1: lat(relayout_dma(), stage_end("U", 1) - 16)
    lat([u_piece(3, cf) for cf in range(5)], stage_end("U", 1) - 10)
    lat([u_piece(4, cf) for cf in range(5)], stage_end("U", 2) - 20)
    for n, (blk, s) in enumerate(seq):
        par = n & 1
        mf = step_mfma(blk, s, par)
        nxt = seq[n + 1] if n + 1 < len(seq) else None
        rd = II(step_reads(nxt[0], nxt[1], par ^ 1)) if nxt else []
        if rd: rd[-1].tok = f"rd{n+1}"
        boundary = nxt is None or stage_of(*nxt) != stage_of(blk, s)
        gaps = [[] for _ in mf]
        start = 0
        pre = []
        cap = opt.capU if blk == "U" else opt.capM
        if blk == "U" and s == 11: pre += [f"v_add_u32 v{vRU[0]}, 61440, v{vRU[0]}"]
        if blk == "U" and s == 12: pre += [f"v_add_u32 v{vRU[1]}, 61440, v{vRU[1]}"]
        if blk == "A" and s == 0:
            Q.add(nonce_get(), gap0[n] + 6)
            Q.add(scan_P12(), stage_end("M", opt.X_stage) - 2)
        if blk == "B" and s == 0:
            Q.add(swiglu(ACCA, [0, 1], sKSA, "HHA"), stage_end("M", opt.hast) - opt.haend)
        post = []; plat = []; urgent = []; pbulk = []
        if blk == "B":
            for st in range(4, opt.nearly):
                if w_free_after_b(st) == s - 1: blk_(tagw(st), 10**6)
        if boundary:
            kind, idx = stage_of(blk, s)
            start = 1
            here = gap0[n]; nx1 = here + (40 if blk == "U" else 16)
            if kind == "U" and idx == 1:
                if opt.rf_stage == 1: post.append((relayout_finish(), stage_end("U", 3) - 4))
                post += [(const_tables(), stage_end("U", 3) + (10 if opt.rf_stage == 1 else -2)), (stats_store(), stage_end("U", 3) + 16)]
            mi = idx if kind == "M" else idx - 5
            def send(m): return stage_end("M", m) if m >= 0 else stage_end("U", m + 5)
            if kind == "U" and idx == opt.rf_stage and idx != 1: post.append((relayout_finish(), send(opt.F_stage - 1) - 2))
            b = []
            if nxt is not None:
                nk, ni = stage_of(*nxt)
                b.append(I(f"@waitboth {nk}{ni}"))
            else:
                b.append(I("@waitds0"))
            if kind == "M" and idx == opt.hast: b += II(["@waitvm HHA"])
            if kind == "M" and idx == opt.hast: plat.append((groups(flag_store(WS_FLHA, sC, sG)), here + 2))
            if mi == opt.F_stage: b += II(["@waitvm RLS"] if "r" not in opt.skip else [])
            if mi == max(opt.F_stage, 0): b += II(["@waitvm stat"])
            b.append(I("s_barrier"))
            if (opt.stamps or opt.probe) and (opt.fine or (kind, idx) in (("U", 4), ("M", 9), ("M", 14))): b += II(stamp(f"{kind}{idx} end"))
            gaps[0] += b
            if kind == "U" and idx == 0 and opt.t_w13: plat.append((w13_touch(), stage_end("U", 1) + 10))
            if kind == "U" and idx == 0 and opt.rl_pos == 0: plat.append((relayout_dma(), stage_end("U", 2) - 10))
            if kind == "U" and idx == 1: plat.append((groups(dma_M(0)) + groups(dma_M(1)), stage_end("U", 3) - 10))
            if kind == "U" and idx == 1 and opt.rl_pos == 1: plat.append((relayout_dma(), stage_end("U", 4) - 10))
            if kind == "U" and idx == 3: plat.append(([nonce_load()], here + 10))
            if kind == "U" and idx in (2, 3): plat.append((groups(dma_M(idx)), stage_end("M", idx - 1) - opt.slack))
            if kind == "U" and idx == 4:
                plat.append(([mlp_dma_addr("B")], here + 6))
                pbulk.append((groups(dma_M(10)), stage_end("M", opt.b10)))
            if mi == max(opt.F_stage, 0): plat.insert(0, (groups(flag_store(WS_FLW, sN, sRT)), here + 6))
            if kind == "M" and idx + 4 <= 9: plat.append((groups(dma_M(idx + 4)), stage_end("M", idx + 3) - opt.slack))
            if kind == "M" and idx == opt.L_stage: plat.insert(0, (groups(lb_loads()), here + 8))
            if kind == "M" and idx in BISSUE: pbulk.append((groups(dma_M(BISSUE[idx][0])), stage_end("M", BISSUE[idx][0] - 1) - opt.slack))
            if kind == "M" and idx == opt.X_stage:
                post.append((scan_P3(), stage_end("M", opt.X_stage + 1) + 8))
            if kind == "M" and idx == opt.C_stage:
                assert not any("a[180:183]" in x.text for gq, d in later for x in gq)
                post.append((scan_P4(), stage_end("M", opt.Y_stage) - 2))
            if kind == "M" and idx == opt.Y_stage:
                gaps[0] += II(delay("d", 63, 17, 900))
                post.append((scan_P56()[:33], stage_end("M", opt.Y_stage + 1) - 2))
            if kind == "M" and idx == opt.W_stage - 1 and opt.nearly:
                plat.append((groups(flag_load(WS_FLW, sN, 0, 31)), nx1))
            if kind == "M" and idx == opt.W_stage and opt.nearly:
                plat.append(([flag_check(WS_FLW, sN, 0, 31)], nx1 + 8))
                for st in range(min(4, opt.nearly)): pbulk.append((tagw(st), 10**6))
            if kind == "M" and idx == 13: urgent += [p2_setup()]
            if kind == "U" and idx == 4: urgent += [[f"global_load_ushort a231, v{vLANE}, s[{pDSK}:{pDSK+1}]"]] if False else []
        ng = len(mf)
        if rd:
            if nxt[0] == "U": span = 5
            elif blk == "U": span = 7
            else: span = opt.span
            for k, t in enumerate(rd): gaps[start + (k * span) // len(rd)].append(t)
        if nxt and nxt[0] == "A":
            for k, t in enumerate(II(swaps(nxt[1]))): gaps[ng - 5 + k].append(t)
        if blk == "U" and opt.pre_norm <= s + 1 < 20 and "n" not in opt.skip:
            nq = II(norm_step(1, s + 1, False, vT[20:24]))
            for k, t in enumerate(nq): gaps[(k * ng) // len(nq)].append(t)
        L(pre)
        E(f"@waitds rd{n}")
        for k, t in enumerate(mf):
            E(t)
            L(gaps[k])
            gap = gap0[n] + k
            used = sum(cost(x) for x in gaps[k])
            if boundary and k == 0:
                for lst, dl in post: Q.add(lst, dl)
                for gs, dl in plat: lat(gs, dl)
                for gs, dl in pbulk: blk_(gs, dl)
                lat(urgent, here + 14)
                continue
            due_b = any(d - gap <= q + len(later) for q, (gq, d) in enumerate(bulk))
            overdue = due_b or any(d - gap <= q for q, (gq, d) in enumerate(later))
            q_ = later if later else bulk
            if q_ and (overdue or (EM[0].t >= pace[0] and k != 0)):
                grp = q_.pop(0)[0]; L(grp); used += sum(cost(x) for x in grp)
            for x in EM[0].out[pace[1]:]:
                if x.cls == "vmem" and x.lines is not None and not x.text.startswith("buffer_load_dword v29,"):
                    cold = (x.tok in (("RL", "TW") if opt.t_w13 else ("M0", "M1", "M10", "RL"))) and opt.coldpace or 1
                    pace[0] = max(pace[0], EM[0].t - opt.burst) + x.lines * opt.pace * cold
            pace[1] = len(EM[0].out)
            Q.pop(cap - used, gap, ds_ok=(k >= (opt.span if blk != "U" else 5)))
    L(Q.flush())
    for gq, d in later: L(gq)
    return [gq for gq, d in bulk]

def p2_mfma(st):
    r = []
    first = st in (0, N1)
    acc = ACC1 if st < N1 else ACC2
    for jj in range(4):
        for e in range(5):
            d = rg(acc[jj*5+e]); c = "0" if (first and not (st == N1 and jj == 0)) else d
            r.append(f"v_mfma_f32_16x16x32_bf16 {d}, {rg(A_SLOTS[(st % 5)*4+jj])}, {rg(wslot(st, e))}, {c}")
    return r

def p2_partials(base, acc):
    return [f"ds_write_b128 v{vPW[jj-1]}, {rg(acc[jj*5+e])} offset:{base + e*1024}" for jj in range(1, 4) for e in range(5)]

def p2_epi_addr():
    dn, q, t = vT[8], vT[9], vT[10]
    r = [f"v_and_b32 v{dn}, 15, v{vLANE}", f"v_lshrrev_b32 v{q}, 4, v{vLANE}",
         f"s_lshl_b32 s{sT2}, s{sRT}, 6", f"s_lshr_b32 s{sT3}, s{sW}, 1", f"s_lshl_b32 s{sT3}, s{sT3}, 5", f"s_add_u32 s{sT2}, s{sT2}, s{sT3}",
         f"s_and_b32 s{sT3}, s{sW}, 1", f"s_lshl_b32 s{sT3}, s{sT3}, 2", f"s_add_u32 s{sT2}, s{sT2}, s{sT3}",
         f"s_mul_i32 s{sT4}, s{sW}, 3072", f"s_add_u32 s{sT4}, s{sT4}, {L_X2}",
         f"v_mul_u32_u24 v{vXL}, 640, v{q}", f"v_lshl_add_u32 v{vXL}, v{dn}, 1, v{vXL}", f"v_add_u32 v{vXL}, s{sT4}, v{vXL}",
         f"v_lshl_add_u32 v{q}, v{q}, 3, s{sT2}",
         f"s_mul_i32 s{sT3}, s{sN}, 80", f"v_add_u32 v{dn}, s{sT3}, v{dn}",
         f"v_mul_u32_u24 v{t}, 640, v{q}", f"v_add_u32 v{t}, v{t}, v{dn}",
         f"v_lshlrev_b32 v{vOUT}, 2, v{t}", f"v_lshlrev_b32 v{vSTA}, 3, v{q}", f"v_lshlrev_b32 v{vDS}, 1, v{dn}",
         f"s_mul_i32 s{sT2}, s{sT2}, 1280", f"s_mul_i32 s{sT3}, s{sN}, 160", f"s_add_u32 s{sT5}, s{sT2}, s{sT3}", f"s_add_u32 s{sT5}, s{sT5}, 4096",
         f"s_mov_b32 s{sT3}, 6554"]
    a, b, c = vT[11], vT[12], vT[13]
    for p in range(3):
        r += [f"v_add_u32 v{a}, {64*p}, v{vLANE}", f"v_mul_u32_u24 v{b}, s{sT3}, v{a}", f"v_lshrrev_b32 v{b}, 16, v{b}",
              f"v_mul_u32_u24 v{c}, 10, v{b}", f"v_sub_u32 v{c}, v{a}, v{c}", f"v_lshlrev_b32 v{c}, 4, v{c}",
              f"v_and_b32 v{a}, 12, v{b}", f"v_add_u32 v{b}, v{a}, v{b}", f"v_mul_u32_u24 v{b}, 1280, v{b}", f"v_add_u32 v{vXD2[p]}, v{b}, v{c}"]
    r += [f"v_mov_b32 v{a}, {OOB}", f"v_cmp_gt_u32 vcc, 32, v{vLANE}", f"v_cndmask_b32 v{vXD2[2]}, v{a}, v{vXD2[2]}, vcc"]
    return r
def p2_epi_loads():
    r = []
    for p in range(3):
        r += [f"s_add_u32 m0, s{sT4}, {p*1024}", "s_nop 0", I(f"buffer_load_dwordx4 v{vXD2[p]}, s[{sX}:{sX+3}], s{sT5} offen lds", tok="XR")]
    for e in range(5):
        r.append(f"global_load_ushort v{vDK[e]}, v{vDS}, s[{pDSK}:{pDSK+1}] offset:{e*32}")
    r += [f"s_mov_b32 s{sD1}, {WS_STAT}",
          f"buffer_load_dwordx4 {vr(vST[0])}, v{vSTA}, s[{sWS}:{sWS+3}], s{sD1} offen sc1",
          f"buffer_load_dwordx4 {vr(vST[4])}, v{vSTA}, s[{sWS}:{sWS+3}], s{sD1} offen offset:16 sc1"]
    return r
def p2_xread():
    r = ["@waitvm XR"]
    for e in range(5):
        for rr in range(4):
            r.append(f"ds_read_u16 v{vXR[e*4+rr]}, v{vXL} offset:{rr*160 + e*32}")
    return r

def p2_skip():
    r = [f"v_lshlrev_b32 v{vDK[e]}, 16, v{vDK[e]}" for e in range(5)]
    for j in range(20): r.append(f"v_lshlrev_b32 v{vXR[j]}, 16, v{vXR[j]}")
    for e in range(5):
        for rr in range(4): r.append(f"v_fma_f32 v{96+e*4+rr}, v{vXR[e*4+rr]}, v{vST[2*rr]}, v{vST[2*rr+1]}")
        for rr in range(4): r.append(f"v_mul_f32 v{96+e*4+rr}, v{96+e*4+rr}, v{vDK[e]}")
    return r
def p2_gate():
    r = []
    T = vT[0:24]
    for e in range(5):
        b = T[12*(e % 2)]; b2 = b + 4; b3 = b + 8; Y = vY[e*4:e*4+4]
        r += [f"ds_read_b128 {vr(b)}, v{vPR} offset:{e*1024}", f"ds_read_b128 {vr(b2)}, v{vPR} offset:{5120 + e*1024}", f"ds_read_b128 {vr(b3)}, v{vPR} offset:{10240 + e*1024}"]
        if e > 0:
            p = T[12*((e-1) % 2)]; Yp = vY[(e-1)*4:e*4]
            for rr in range(4): r.append(f"v_mul_f32 v{Yp[rr]}, v{Yp[rr]}, v{p+rr}") if False else None
        for rr in range(4): r.append(f"v_add_f32 v{Y[rr]}, v{Y[rr]}, v{b+rr}")
        for rr in range(4): r.append(f"v_add_f32 v{b2+rr}, v{b2+rr}, v{b3+rr}")
        for rr in range(4): r.append(f"v_add_f32 v{Y[rr]}, v{Y[rr]}, v{b2+rr}")
        for rr in range(4): r.append(f"v_mul_f32 v{b+rr}, {NLOG2E}, v{Y[rr]}")
        for rr in range(4): r.append(f"v_exp_f32 v{b+rr}, v{b+rr}")
        for rr in range(4): r.append(f"v_add_f32 v{b+rr}, 1.0, v{b+rr}")
        for rr in range(4): r.append(f"v_rcp_f32 v{b+rr}, v{b+rr}")
        for rr in range(4): r.append(f"v_mul_f32 v{Y[rr]}, v{Y[rr]}, v{b+rr}")
    r += [f"v_add_u32 v{v}, {L_P2 - L_P1}, v{v}" for v in vPW + [vPR]]
    return r

def p2_final():
    r = []
    O = list(range(96, 116)); B = list(range(176, 236))
    for k in range(3):
        for e in range(5):
            r.append(f"ds_read_b128 {vr(B[k*20+e*4])}, v{vPR} offset:{k*5120 + e*1024}")
    for j in range(0, 20, 2): r.append(f"v_pk_fma_f32 {vr(vXR[j], 2)}, {vr(O[j], 2)}, {vr(vY[j], 2)}, {vr(vXR[j], 2)}")
    for j in range(0, 20, 2): r.append(f"v_pk_add_f32 {vr(B[j], 2)}, {vr(B[j], 2)}, {vr(B[20+j], 2)}")
    for j in range(0, 20, 2): r.append(f"v_pk_add_f32 {vr(B[j], 2)}, {vr(B[j], 2)}, {vr(B[40+j], 2)}")
    for j in range(0, 20, 2): r.append(f"v_pk_fma_f32 {vr(vXR[j], 2)}, {vr(B[j], 2)}, {vr(vY[j], 2)}, {vr(vXR[j], 2)}")
    for rr in range(4):
        r.append(f"s_mov_b32 s{sT2}, {rr*2560}")
        for e in range(5):
            r.append(f"buffer_store_dword v{vXR[e*4+rr]}, v{vOUT}, s[{sOUT}:{sOUT+3}], s{sT2} offen offset:{e*64} {opt.out_flags}")
    return r

def weave(main, extra, every=1):
    groups = []; cur = []
    for t in II(extra):
        cur.append(t)
        if t.cls == "vmem": groups.append(cur); cur = []
    if cur: groups.append(cur)
    out = []
    for k, t in enumerate(II(main)):
        out.append(t)
        if groups and k % every == every - 1: out += groups.pop(0)
    for g_ in groups: out += g_
    return out

def phase2(left):
    PH[0] = 2
    L(stamp("B mfma end"))
    L(delay("c", 15, 9, 600))
    L([f"s_mov_b32 s{sEX0}, {NLOG2E}", f"s_mov_b32 s{sEX1}, {NLOG2E}", f"s_mov_b32 s{sEX2}, 1.0", f"s_mov_b32 s{sEX3}, 1.0"])
    Wq = list(left); Aq = []
    assert all(id(gq[-1]) in STEP for gq in Wq)
    nextW = max([st for st in STEP.values()] + [-1]) + 1; nextA = 0
    while nextW < N1 + NLDS: Wq.extend(tagw(nextW)); nextW += 1
    def serial(lst, every, first=None):
        cnt = 0
        for t in II(lst):
            if t.cls == "pseudo" and t.op == "@gap": continue
            L([t])
            if t.cls in ("valu", "trans") and not t.op.startswith("v_cmp") and not INRAW[0]:
                cnt += 1
                q_ = first if first else Wq
                if q_ and cnt >= every and gstall(q_[0]) <= opt.thrs: L(q_.pop(0)); cnt = 0
            if t.op == "@raw_begin": INRAW[0] = True
            if t.op == "@raw_end": INRAW[0] = False
    swb = II(swiglu(ACCB, [0], sKSB, "HHB", packed=True))
    cl = len(swb) - opt.hald
    serial(swb[:cl], opt.every)
    if opt.sflag: L([f"s_mov_b32 s{sNN}, s{sNONCE}", f"s_mov_b32 s{sNN+1}, s{sNONCE}"]); assert opt.hald == 0
    else: L(fl_load(WS_FLHA))
    serial(swb[cl:], opt.every)
    L(stamp("epi B done"))
    def fill(st):
        nonlocal nextW, nextA
        while nextA <= min(st + opt.look, NSTEP - 1): Aq.extend(taga(nextA)); nextA += 1
        while nextW <= min(st + opt.lookW, NSTEP - 1) and nextW >= N1 + NLDS and w_free_after_p(nextW) < st: Wq.extend(tagw(nextW)); nextW += 1
    def head():
        if Wq and (not Aq or STEP[id(Wq[0][-1])] <= STEP[id(Aq[0][-1])]): return Wq
        return Aq if Aq else None
    p56 = II(scan_P56())[33:]
    serial(p56[:10], opt.every)
    L(p2_setup2())
    if opt.sflag:
        serial(p56[10:21], opt.every); L(fl_load(WS_FLHA)); serial(p56[21:opt.hack], opt.every)
    else: serial(p56[10:opt.hack], opt.every)
    L(fl_check(WS_FLHA)); L(stamp("ha ready"))
    while nextA < opt.a0: Aq.extend(taga(nextA)); nextA += 1
    if opt.shadow56:
        tail56 = p56[opt.hack:]; p56 = p56[:opt.hack]
        while Aq: L(Aq.pop(0))
    cst = next((k for k, t in enumerate(p56) if t.cls == "vmem"), len(p56))
    if opt.afirst and Aq: L(Aq.pop(0)); L(Aq.pop(0)); L(Aq.pop(0)); L(Aq.pop(0))
    serial(p56[opt.hack:cst], opt.every2, Aq)
    if opt.afirst:
        while Aq: L(Aq.pop(0))
    L(p56[cst:])
    L(stamp("h out"))
    while Aq: L(Aq.pop(0))
    if opt.hhpos < 0:
        L(["@waitvm HHB", "s_barrier"]); L(flag_store(WS_FLHH, sC, sG))
    L(stamp("flags out"))
    Q = Queue(); misc = []
    if opt.shadow56: Q.add(tail56, 20*opt.p2pos - opt.t56)
    g = 0; nread = N1
    for st in range(NSTEP):
        mf = p2_mfma(st)
        if st == 8 - opt.look:
            L(fl_check(WS_FLHH))
        if st == N1 - opt.look:
            L(fl_check(WS_FLH)); L(stamp("h ready"))
        fill(st)
        if st == opt.p2pos + 1:
            Q.add(p2_epi_addr(), g + 30)
        if st == opt.epos: misc.extend(groups(p2_epi_loads()))
        if st == opt.epos + 3:
            assert not misc or all("v29" in gq[-1].text for gq in misc)
            Q.add(p2_xread() + p2_skip(), 20*N1 - 4)
        if opt.sflag:
            if st == 8 - opt.look - opt.sfl: L(fl_load(WS_FLHH))
            if st == N1 - opt.look - opt.sfl: L(fl_load(WS_FLH))
        else:
            if st == 8 - opt.look - 2: misc[0:0] = groups(flag_load(WS_FLHH, sRT, 1, 15))
            if st == N1 - opt.look - 2: misc[0:0] = groups(flag_load(WS_FLH, sRT, 1, 15))
        while nread < N1 + NLDS and w_free_after_p(nread) < st and nread <= st + 3:
            assert not any(STEP.get(id(gq[-1])) == nread for gq in Wq)
            Q.add(p2_wread(nread), 20*(nread - 1) + 4); nread += 1
        if st == N1:
            L(stamp("out done"))
            yp = p2_partials(0, ACC1); rdy = [f"v_accvgpr_read_b32 v{vY[j]}, a{j}" for j in range(20)]
            mix = []
            for j in range(15): mix += [yp[j]] + rdy[j*4//3:(j+1)*4//3]
            Q.add(mix, 20*opt.ybar - 4)
        if st == opt.ybar:
            assert nread == N1 + NLDS
            L(Q.flush()); L(["@waitds0", "s_barrier"])
            Q.add(p2_gate(), 20*NSTEP - 24)
        def must(q): return [gq for gq in q if STEP[id(gq[-1])] <= st + opt.look]
        ng = len(must(Wq)) + len(Aq)
        per = -(-ng // 19)
        last = st == NSTEP - 1
        if last:
            L(Q.flush())
            mf = mf[5:] + mf[:5]
            wr = II(p2_partials(0, ACC2))
        for k, t in enumerate(mf):
            E(t)
            used = 0
            if k >= 1:
                for _ in range(max(per, 1)):
                    h = head()
                    if misc and (gstall(misc[0]) <= opt.thr or st >= opt.epos + 1 or "v29" in misc[0][-1].text) and (k % 2 == 0 or not h): L(misc.pop(0)); used += 2
                    elif h and (STEP[id(h[0][-1])] <= st + opt.look or gstall(h[0]) <= opt.thr): L(h.pop(0)); used += 2
            if st == opt.hhpos and k == 19 and st != opt.p2pos:
                L(["@waitvm HHB", "s_barrier"]); L(flag_store(WS_FLHH, sC, sG))
            if st == opt.p2pos and k == 19:
                assert "HST" in EM[0].seen and not any(t.tok == "HST" for t, d in Q.q)
                L(["@waitvm HST", "s_barrier"])
                if st == opt.hhpos: L(flag_store(WS_FLHH, sC, sG))
                L(flag_store(WS_FLH, sC, sG))
            if last and k >= 7 and wr: L([wr.pop(0)])
            Q.pop(2 - used, g); g += 1
        if st >= opt.epos + 2:
            while misc: L(misc.pop(0))
        if opt.fine2: L(stamp(f"st{st}"))
        while head() and STEP[id(head()[0][-1])] <= st + opt.look: L(head().pop(0))
    L(wr)
    L(["@waitds0", "s_barrier"])
    L(stamp("y done"))
    L(p2_final())
    L(stamp("end")); L(stamp("cyc1", True))
INRAW = [False]

def diag_out():
    if not opt.diag: return
    L([f"s_lshl_b32 s{sT2}, s2, 2", f"s_add_u32 s{sT2}, s{sT2}, s{sW}", f"s_lshl_b32 s{sT2}, s{sT2}, 2", f"s_add_u32 s{sT2}, s{sT2}, {WS_STAMP}",
       f"v_mov_b32 v{vT[0]}, s{sNONCE}", f"buffer_store_dword v{vT[0]}, off, s[{sWS}:{sWS+3}], s{sT2}"])

def stamps_out():
    if opt.probe:
        L(["@raw_begin", "L_spin:", f"s_memrealtime s[{sSTAMP}:{sSTAMP+1}]", "s_waitcnt lgkmcnt(0)", f"s_sub_u32 s{sT2}, s{sSTAMP}, s3",
           f"s_cmp_lt_u32 s{sT2}, 5000", "s_cbranch_scc1 L_spin", "@raw_end"])
    if not opt.stamps: return
    L([f"s_lshl_b32 s{sT2}, s2, 2", f"s_add_u32 s{sT2}, s{sT2}, s{sW}", f"s_lshl_b32 s{sT2}, s{sT2}, 8", f"s_add_u32 s{sT2}, s{sT2}, {WS_STAMP}",
       f"v_lshlrev_b32 v{vT[0]}, 2, v{vLANE}", f"buffer_store_dword v0, v{vT[0]}, s[{sWS}:{sWS+3}], s{sT2} offen"])

def build():
    STEP.clear(); PH[0] = 1; EM[0] = Emitter(lines_of, lat_of, dslat=opt.dslat); lab[0] = 0; stamp_n[0] = 0; stamp_names.clear(); ST.n = 0
    prologue()
    L(stamp("issued")); L(stamp("cyc0", True))
    CAP[0] = rest = []
    setup_rest()
    L(scan_addr()); L(mlp_read_addr())
    constants()
    L(const_park())
    nonce_seed()
    L(relayout_issue()); L(relayout_raddr())
    if opt.t_w13: L(w13_touch_addr())
    L([f"v_min_u32 v{vT[0]}, 9, v{vLANE}", f"v_lshlrev_b32 v{vT[0]}, 7, v{vT[0]}", f"global_load_dword a231, v{vT[0]}, s[{pDSK}:{pDSK+1}]"])
    CAP[0] = None
    ra = atoms(rest); n0 = 0; k0 = 0
    while n0 < opt.pre0: L(ra[k0]); n0 += len(ra[k0]); k0 += 1
    L(stamp("consts"))
    tail = x_arrive(0, [i for a in ra[k0:] for i in a], 40)
    L(stamp("x0 in"))
    E("s_barrier")
    L(skew("0"))
    L(tail)
    L(x_stats(0))
    L([f"v_add_u32 v{vRX[0]}, 81920, v{vRX[0]}", f"v_add_u32 v{vRX[1]}, 81920, v{vRX[1]}"])
    nrm = []
    for s in range(20): nrm += norm_step(0, s, opt.pk0, vT[20:24]) if "N" not in opt.skip else []
    if "Z" in opt.skip: nrm = ["s_nop 0"] * len(nrm)
    if "Y" in opt.skip: nrm = [t if "v_pk_fma" not in t else "v_mov_b32 v52, v53" for t in nrm]
    if "M" in opt.skip: nrm = [x for k, t in enumerate(nrm) for x in ([t, "s_nop 0"] if k % 4 == 3 else [t])]
    tail = x_arrive(1, nrm)
    L(stamp("x1 in"))
    L(weave(tail, ST.next(50 - ST.n, 50), 1))
    L(x_stats(1))
    L(mlp_dma_addr("A"))
    for s in range(opt.pre_norm): L(norm_step(1, s, True, vT[20:24]))
    assert ST.n == 50
    phase2(phase1_blocks())
    diag_out()
    stamps_out()
    E("s_endpgm")
    return EM[0].out

HEADER = """; Kernarg layout for this problem (128 bytes, ptrs only, base s[0:1]):
; @launch grid=(256,1,1) block=(256,1,1) lds=163840
.amdgcn_target "amdgcn-amd-amdhsa--gfx950"
.text
.globl {k}
.p2align 8
.type {k},@function
{k}:
"""
FOOTER = """
L_exit:
    s_endpgm
L_codeend:
    .fill 64, 4, 0xbf800000
.section .rodata,"a"
.p2align 6
.amdhsa_kernel {k}
  .amdhsa_next_free_vgpr 512
  .amdhsa_next_free_sgpr 102
  .amdhsa_accum_offset 256
  .amdhsa_group_segment_fixed_size 0
  .amdhsa_kernarg_size 128
  .amdhsa_user_sgpr_count 2
  .amdhsa_user_sgpr_kernarg_segment_ptr 1
  .amdhsa_system_sgpr_workgroup_id_x 1
  .amdhsa_float_denorm_mode_32 3
.end_amdhsa_kernel
"""
def text():
    prog = build()
    body = "\n".join(("" if i.cls == "label" else "    ") + i.text for i in prog)
    return HEADER.format(k=KNAME) + body + FOOTER.format(k=KNAME), prog

if __name__ == "__main__":
    out = sys.argv[1]
    for a in sys.argv[2:]:
        k, v = a.split("=")
        cur = getattr(opt, k)
        setattr(opt, k, v.replace("_", " ") if isinstance(cur, str) else (v in ("1", "True") if isinstance(cur, bool) else type(cur)(float(v))))
    t, prog = text()
    open(out, "w").write(t)
    print(stats(prog), len(prog))
    if opt.sim:
        em = EM[0]; prev = 0
        for j, (n, m) in enumerate(zip(stamp_names, em.marks)):
            big = sorted([x for x in em.stalls if x[1] == j], reverse=True)
            print(f"{n:12s} {m:7.0f} ({m-prev:5.0f}) stalls {sum(x[0] for x in big):5.0f} :", "; ".join(f"{x[0]:.0f} {x[2][:44]}" for x in big[:4]))
            prev = m
    if opt.stamps:
        import json
        json.dump(stamp_names, open(out + ".stamps.json", "w"))
```

```python
import sys, os
sys.path.insert(0, os.path.dirname(os.path.abspath(__file__)))
from asmlib import I, stats, insert_nops, Emitter

KNAME = "recurrent_scan__ssm_conv_s5__glu_gated_swiglu__prompt_kernel"

class Opt:
    fine = False
    splitx = False
    fine2 = False
    pk0 = True
    xhit = False
    chain = 0
    sim = False
    fakehit = ''
    delay = 0
    diag = False
    cycles = False
    skip = ''
    probe = ''
    stamps = False
    codepf = True
    krot = True
    prot = False
    pre0 = 120
    late0 = 0
    pflines = 12
    win = 8
    pre_norm = 1
    skew = False
    mstat = True
    t_x1 = False
    t_w13 = False
    b10 = 1
    rf_stage = 2
    slack = 22
    rl_pos = 0
    capU = 3
    capM = 5
    span = 5
    X_stage = 2
    L_stage = 5
    C_stage = 7
    Y_stage = 8
    H_stage = 11
    F_stage = 1
    W_stage = 4
    nearly = 12
    rl_nt = False
    out_flags = "sc1"
    x_flags = ""
    w_flags = ""
    p1map = 0
    p2map = 1
    p2pos = 2
    epos = 6
    afirst = True
    sflag = False
    sfl = 2
    shadow56 = True
    t56 = 2
    hhpos = 0
    hack = 91
    haend = 18
    hast = 14
    hald = 0
    thrs = 200
    hhld = 50
    hhck = 130
    every = 7
    every2 = 2
    a0 = 3
    thrb = 40
    cad = 3
    cadA = 6
    pace = 10.0
    burst = 100
    coldpace = 1.5
    vmcost = 4
    ybar = 17
    hchk = 4
    HL_stage = 13
    look = 2
    lookW = 6
    thr = 16
    dsmax = 3
    interp = True
    vlat = 14
    chainq = True
    dslat = 130
    even = True
    thrm = 100
    slot0 = 5
    earlyA = False
    roty = False
    latA = 640
    latW = 620
opt = Opt()

WS_A2 = 0
WS_W2P = 0xB00000
WS_S = 0xF00000
WS_STAT = 0xF40000
WS_FLW = 0xF50000
WS_FLH = 0xF51000
WS_FLHH = 0xF52000
WS_FLHA = 0xF54000
WS_SEED = 0xF53000
WS_STAMP = 0xF60000
WS_SIZE = 0x1000000
OOB = 0x40000000

L_RL = 102400
L_PRIV = 122880
PV_COL, PV_CH, PV_E = 0, 1280, 4352
L_TT = 155648
L_LB = 159744
L_WY = 0
L_P1 = 81920
L_P2 = 0

sX, sWU, sWM, sWS, sOUT, sRL, sDBG = 36, 40, 44, 48, 52, 56, 60
(sW, sC, sG, sRT, sN, sNONCE, sT0, sT1, sT2, sT3, sXOFF, sUOFF, sMOFF, sMOFFB, sRLOFF, sRLST,
 sA2H, sKSA, sKSB, sSST, sLB0, sLB1, sLB2, sLB3, sEX0, sEX1, sEX2, sEX3, sM0, sM0A, sCNT, sP2A, sP2W, sT4, sT5, sSTATO) = range(64, 100)
sSTAMP = 100
pX, pLRE, pLIM, pBRE, pBIM, pCRE, pCIM, pLDT = 4, 6, 8, 10, 12, 14, 16, 18
pDSK, pBX, pW1, pW3, pW2, pOUT, pDBG, pWS = 20, 22, 24, 26, 28, 30, 32, 34
sKU = [22, 23, 0, 1, 32]
sD0, sD1 = 4, 5
sRY, sRO = 6, 7
sAP, sAS, sAE, sWP, sWB, sWE = 8, 9, 10, 11, 12, 13
sM0U, sSEEDO = 18, 19
sD2 = 31
sRLT = 33
sHO = [24, 25, 26, 27, 30]

vLANE, vL16 = 1, 2
vRX = [3, 4]; vRU = [5, 6]
vRA = [7, 8]; vRB = 9; vHH = 10; vDU = 11; vW4 = 12
vD = [13, 14, 15, 16]
vXD = vD
vDB = [3, 4, 5, 6]; vRB2 = 11
BSLOT = {10: 4, 11: 5, 12: 2, 13: 3, 14: 0}
BISSUE = {2: (11, 7), 6: (12, 8), 7: (13, 9), 8: (14, 10)}
vUD = [11, 27, 28, 29]
vEW, vER, vCOLR, vCH, vTT, vLB, vTW, vTR, vHST, vSO = range(17, 27)
vWP0, vWP1, vFLAG, vNON = 27, 28, 29, 30
vT = list(range(32, 56))
def U(cf, f): return 56 + (cf * 2 + f) * 4
def X(f, s): return 96 + (f * 20 + s) * 4
def ACCA(mu, h2): return (mu * 2 + h2) * 16
def FB(par, fr): return 64 + par * 32 + fr * 4
def ACCB(mu, h2=0): return 128 + mu * 16
aRL = 160
aS = 180

def vr(n, c=4): return f"v[{n}:{n+c-1}]"
def ar(n, c=4): return f"a[{n}:{n+c-1}]"
def sr(n, c=4): return f"s[{n}:{n+c-1}]"

def lines_of(i):
    t = i.text
    if "ushort" in t: return 1
    if i.tok and i.tok[0] == "M" and int(i.tok[1:]) >= 10: return 16
    if i.tok == "RL": return 16
    if i.tok == "XR": return 11
    if " off," in t and "global" not in t: return 1
    if "dwordx2" in t: return 2
    if "load_dword " in t and "offen" in t: return 1 if "sc1" in t else 32
    if "global_load_dword" in t: return 0
    if "store_dword " in t: return 4 if "offen" in t else 1
    return 8
def lat_of(i):
    t = i.text; tok = i.tok or ""
    cold = 1500
    if "store" in t: return 820 if "sc1" in t else 330
    if tok.startswith("x"): return cold if tok in ("x0_0", "x0_1", "x1_0", "x1_1") else 800
    if tok.startswith("U"): return cold if tok == "U0" else 800
    if tok == "RL" or tok == "TW": return cold
    if tok.startswith("M"): return cold if (tok in ("M0", "M1", "M10") and not opt.t_w13) else 520
    if tok == "W" or tok.startswith("WL"): return opt.latW
    if tok == "A": return opt.latA
    if "sc1" in t: return 1000
    return 700
EM = [None]
CAP = [None]
def E(t, tok=None):
    i = I(t, tok)
    if CAP[0] is not None: CAP[0].append(i)
    else: EM[0].feed(i)
    return i
def L(lst):
    for t in lst:
        i = t if isinstance(t, I) else I(t)
        if CAP[0] is not None: CAP[0].append(i)
        else: EM[0].feed(i)
def atoms(lst):
    out = []; depth = 0
    for i in lst:
        glue = depth > 0 or i.op.startswith(("s_cselect", "s_addc", "s_subb", "v_cndmask", "v_addc")) or i.cls in ("branch", "label") or i.op in ("@arm", "@else", "@endarm")
        if out and glue: out[-1].append(i)
        else: out.append([i])
        if i.op == "@arm": depth += 1
        if i.op == "@endarm": depth -= 1
    return out
def II(lst): return [t if isinstance(t, I) else I(t) for t in lst]

def srd(d, p, nbytes):
    return [f"s_mov_b32 s{d}, s{p}", f"s_and_b32 s{d+1}, s{p+1}, 0xffff", f"s_mov_b32 s{d+2}, {nbytes}", f"s_mov_b32 s{d+3}, 0x20000"]

stamp_n = [0]
stamp_names = []
def stamp(name, cyc=False):
    if opt.probe:
        if name != opt.probe: return []
        return [f"s_memrealtime s[{sSTAMP}:{sSTAMP+1}]", "@waitds0", f"s_mov_b32 s3, s{sSTAMP}"]
    if not opt.stamps: return []
    k = stamp_n[0]; stamp_n[0] += 1
    stamp_names.append(name)
    return [f"s_memtime s[{sSTAMP}:{sSTAMP+1}]" if (cyc or opt.cycles) else f"s_memrealtime s[{sSTAMP}:{sSTAMP+1}]", "@waitds0",
            f"v_writelane_b32 v0, s{sSTAMP}, {k}"]

def cmul(dr, di, ar_, ai, br, bi, t):
    return [f"v_mul_f32 v{t}, v{ai}, v{bi}", f"v_mul_f32 v{di}, v{ai}, v{br}",
            f"v_fma_f32 v{dr}, v{ar_}, v{br}, -v{t}", f"v_fmac_f32 v{di}, v{ar_}, v{bi}"]
def csq(dr, di, r, i, t):
    return [f"v_mul_f32 v{t}, v{i}, v{i}", f"v_mul_f32 v{di}, v{r}, v{i}",
            f"v_fma_f32 v{dr}, v{r}, v{r}, -v{t}", f"v_add_f32 v{di}, v{di}, v{di}"]
def chorner2(dr, di, gr, gi, mr, mi, er, ei):
    return [f"v_fma_f32 v{dr}, v{mr}, v{gr}, v{er}", f"v_fma_f32 v{di}, v{mr}, v{gi}, v{ei}",
            f"v_fma_f32 v{dr}, -v{mi}, v{gi}, v{dr}", f"v_fma_f32 v{di}, v{mi}, v{gr}, v{di}"]

LOG2E = "0x3fb8aa3b"
NLOG2E = "0xbfb8aa3b"
INV2PI = "0.15915494"

def x_piece(n):
    f, S, ih = n // 20, (n % 20) // 2, n & 1
    p = n & 3
    r = []
    if p == 0:
        r = [f"s_add_u32 m0, s{sM0}, {f*81920 + (2*S)*1024}", f"s_add_u32 s{sD1}, s{sKU[S >> 1]}, s{sXOFF}"]
        if f: r.append(f"s_add_u32 s{sD1}, s{sD1}, {4*1280}")
    r.append(I(f"buffer_load_dwordx4 v{vXD[p]}, s[{sX}:{sX+3}], s{sD1} offen offset:{p*1024} {opt.x_flags} lds", tok=f"x{f}_{S}"))
    return r
def u_piece(i, cf):
    r = []
    if cf == 0: r = [f"s_add_u32 m0, s{sM0U}, {i*20480}", f"s_add_u32 s{sD1}, s{sKU[i]}, s{sUOFF}"]
    if cf == 4: r = [f"s_add_u32 m0, s{sM0U}, {i*20480 + 4096}", f"s_add_u32 s{sD1}, s{sD1}, {4*10240}"]
    r.append(I(f"buffer_load_dwordx4 v{vUD[cf & 3]}, s[{sWU}:{sWU+3}], s{sD1} offen offset:{(cf & 3)*1024} {opt.w_flags} lds", tok=f"U{i}"))
    return r
class Stream:
    def __init__(self): self.n = 0
    def next(self, k, limit=60):
        r = []
        for _ in range(k):
            if self.n >= limit: break
            r += x_piece(self.n) if self.n < 40 else u_piece((self.n - 40) // 5, (self.n - 40) % 5)
            self.n += 1
        return r
ST = Stream()

def prologue():
    E(f"s_cmp_ge_u32 s2, 256")
    E("s_cbranch_scc1 L_exit")
    E("s_load_dwordx16 s[4:19], s[0:1], 0")
    E("s_load_dwordx16 s[20:35], s[0:1], 64")
    if opt.stamps or opt.probe == "entry":
        E(f"s_{'memtime' if opt.cycles else 'memrealtime'} s[{sSTAMP}:{sSTAMP+1}]")
    if opt.codepf:
        n = opt.pflines
        L(["@raw_begin", f"s_getpc_b64 s[{sT2}:{sT3}]", "L_pc:",
           f"s_lshr_b32 s{sT4}, s2, 3", f"s_mul_i32 s{sT4}, s{sT4}, {n*128}",
           f"v_min_u32 v{vT[0]}, {n-1}, v0", f"v_lshlrev_b32 v{vT[0]}, 7, v{vT[0]}", f"v_add_u32 v{vT[0]}, s{sT4}, v{vT[0]}",
           f"v_min_u32 v{vT[0]}, L_codeend-L_pc-4, v{vT[0]}",
           f"v_mov_b32 v{vT[1]}, s{sT3}", f"v_add_co_u32 v{vT[0]}, vcc, s{sT2}, v{vT[0]}", f"v_cmp_gt_u32 s[{sEX0}:{sEX0+1}], {n}, v0", "s_nop 0",
           f"v_addc_co_u32 v{vT[1]}, vcc, 0, v{vT[1]}, vcc", f"s_and_b64 s[{sEX0}:{sEX0+1}], s[{sEX0}:{sEX0+1}], exec",
           "s_cbranch_scc0 L_nopf", f"s_mov_b64 exec, s[{sEX0}:{sEX0+1}]",
           f"global_load_dword a230, v[{vT[0]}:{vT[1]}], off", "s_mov_b64 exec, -1", "L_nopf:", "@raw_end"])
    E(f"v_lshrrev_b32 v{vT[0]}, 6, v0")
    E(f"v_and_b32 v{vLANE}, 63, v0")
    E(f"v_readfirstlane_b32 s{sW}, v{vT[0]}")
    E(f"v_lshlrev_b32 v{vL16}, 4, v{vLANE}")
    L([f"s_and_b32 s{sT0}, s2, 7", f"s_lshr_b32 s{sT1}, s2, 3"])
    if opt.p1map == 0:
        L([f"s_and_b32 s{sC}, s{sT0}, 1", f"s_lshl_b32 s{sC}, s{sC}, 3", f"s_and_b32 s{sT2}, s{sT1}, 7", f"s_add_u32 s{sC}, s{sC}, s{sT2}",
           f"s_lshr_b32 s{sG}, s{sT0}, 1", f"s_lshl_b32 s{sG}, s{sG}, 2", f"s_lshr_b32 s{sT2}, s{sT1}, 3", f"s_add_u32 s{sG}, s{sG}, s{sT2}"])
    else:
        L([f"s_and_b32 s{sC}, s{sT0}, 3", f"s_lshl_b32 s{sC}, s{sC}, 2", f"s_and_b32 s{sT2}, s{sT1}, 3", f"s_add_u32 s{sC}, s{sC}, s{sT2}",
           f"s_lshr_b32 s{sG}, s{sT0}, 2", f"s_lshl_b32 s{sG}, s{sG}, 3", f"s_lshr_b32 s{sT2}, s{sT1}, 2", f"s_add_u32 s{sG}, s{sG}, s{sT2}"])
    t0, t1, t2, t3 = vT[0:4]
    L([f"v_lshrrev_b32 v{t0}, 3, v{vLANE}", f"v_and_b32 v{t1}, 7, v{vLANE}", f"v_and_b32 v{t2}, 6, v{t0}",
       f"v_xor_b32 v{t1}, v{t1}, v{t2}", f"v_lshlrev_b32 v{t1}, 4, v{t1}",
       f"v_and_b32 v{t2}, 4, v{t0}", f"v_add_u32 v{t2}, v{t2}, v{t0}",
       f"v_mul_u32_u24 v{vD[0]}, 1280, v{t2}", f"v_add_u32 v{vD[0]}, v{vD[0]}, v{t1}",
       f"v_mul_u32_u24 v{vDU}, 1280, v{t0}", f"v_add_u32 v{vDU}, v{vDU}, v{t1}",
       f"v_add_u32 v{vD[0]}, 4096, v{vD[0]}", f"v_add_u32 v{vD[1]}, {16*1280 - 1024}, v{vD[0]}",
       f"v_add_u32 v{vD[2]}, {128 - 2048}, v{vD[0]}", f"v_add_u32 v{vD[3]}, {16*1280 + 128 - 3072}, v{vD[0]}"])
    L([f"s_mul_i32 s{sT2}, s{sG}, 80", f"v_min_u32 v{t3}, 39, v{vLANE}", f"v_lshlrev_b32 v{t3}, 1, v{t3}", f"v_add_u32 v{t3}, s{sT2}, v{t3}"])
    L([f"s_lshl_b32 s{sXOFF}, s{sC}, 2", f"s_add_u32 s{sXOFF}, s{sXOFF}, s{sW}", f"s_mul_i32 s{sXOFF}, s{sXOFF}, {0 if opt.xhit else 32*1280}",
       f"s_mul_i32 s{sM0}, s{sW}, 20480"])
    if opt.krot:
        L([f"s_add_u32 s{sT4}, s{sC}, s{sG}", f"s_mul_i32 s{sT5}, s{sT4}, 52", f"s_lshr_b32 s{sT5}, s{sT5}, 8", f"s_mul_i32 s{sT5}, s{sT5}, 5",
           f"s_sub_u32 s{sT4}, s{sT4}, s{sT5}", f"s_lshl_b32 s{sT4}, s{sT4}, 8"])
    else:
        E(f"s_mov_b32 s{sT4}, 0")
    E("@waitds0")
    if opt.probe == "entry": E(f"s_mov_b32 s3, s{sSTAMP}")
    if opt.stamps:
        E(f"v_mov_b32 v0, 0")
        E(f"v_writelane_b32 v0, s{sSTAMP}, 0"); stamp_n[0] = 1; stamp_names.append("entry")
    if opt.chain:
        L([f"s_mul_i32 s{sT2}, s2, {60*128}", f"s_add_u32 s{sT2}, s{pW2}, s{sT2}", f"s_addc_u32 s{sT3}, s{pW2+1}, 0", f"v_mov_b32 v{vT[8]}, 0"])
        for k in range(opt.chain):
            L([f"global_load_dword v{vT[9]}, v{vT[8]}, s[{sT2}:{sT3}]", "@waitvm0", f"v_add_u32 v{vT[8]}, 128, v{vT[8]}"])
    E(f"global_load_ushort v{vT[4]}, v{t3}, s[{pLRE}:{pLRE+1}]")
    E(f"global_load_ushort v{vT[5]}, v{t3}, s[{pLIM}:{pLIM+1}]")
    E(f"global_load_ushort v{vT[6]}, v{t3}, s[{pLDT}:{pLDT+1}]")
    L([f"s_sub_u32 s{sX}, s{pX}, 4096", f"s_subb_u32 s{sX+1}, s{pX+1}, 0", f"s_and_b32 s{sX+1}, s{sX+1}, 0xffff",
       f"s_mov_b32 s{sX+2}, {2048*1280 + 4096}", f"s_mov_b32 s{sX+3}, 0x20000"])
    L(srd(sDBG, pDBG, 256))
    def ku(j): return [f"s_add_u32 s{sKU[j]}, s{sT4}, {j*256}", f"s_cmp_ge_u32 s{sKU[j]}, 1280", f"s_cselect_b32 s{sT5}, 1280, 0", f"s_sub_u32 s{sKU[j]}, s{sKU[j]}, s{sT5}"]
    L(ku(0)); L(ST.next(4))
    L(srd(sWS, pWS, WS_SIZE))
    L([f"s_or_b32 s{sT2}, s2, s{sW}", f"s_cmp_eq_u32 s{sT2}, 0", f"s_mov_b32 s{sT3}, {WS_SEED}", f"s_cselect_b32 s{sSEEDO}, s{sT3}, {OOB}"])
    E(f"buffer_load_dword v{vT[7]}, off, s[{sWS}:{sWS+3}], s{sSEEDO} sc1")
    L(ku(1)); L(ST.next(opt.win - 4))
    for j in range(2, 5): L(ku(j))
    i_, q_, a0, a1 = vT[8:12]
    L([f"v_and_b32 v{i_}, 15, v{vLANE}", f"v_lshrrev_b32 v{q_}, 4, v{vLANE}",
       f"v_and_b32 v{a0}, 7, v{i_}", f"v_and_b32 v{a1}, 6, v{i_}", f"v_xor_b32 v{a1}, v{a1}, v{q_}", f"v_lshlrev_b32 v{a1}, 4, v{a1}",
       f"v_lshl_add_u32 v{a1}, v{a0}, 7, v{a1}",
       f"v_lshrrev_b32 v{a0}, 3, v{i_}",
       f"v_mul_u32_u24 v{vRU[0]}, 5120, v{a0}", f"v_add_u32 v{vRU[0]}, v{vRU[0]}, v{a1}", f"v_xor_b32 v{vRU[1]}, 64, v{vRU[0]}",
       f"v_lshl_add_u32 v{vRX[0]}, v{a0}, 10, v{a1}", f"v_add_u32 v{vRX[0]}, s{sM0}, v{vRX[0]}", f"v_xor_b32 v{vRX[1]}, 64, v{vRX[0]}",
       f"v_add_u32 v{vW4}, 4096, v{vL16}", f"v_mov_b32 v{vONES}, 0x3f803f80"])
    L([f"v_accvgpr_write_b32 a{aONE+k}, v{vONES}" for k in range(4)])
    L([f"v_add_u32 v{vUD[p]}, {p*(10240 - 1024)}, v{vDU}" for p in range(1, 4)])

def setup_rest():
    t0 = vT[0]
    L([f"s_bitcmp1_b32 s{sW}, 0",
       f"s_cselect_b32 s{sWU}, s{pBIM}, s{pBRE}", f"s_cselect_b32 s{sWU+1}, s{pBIM+1}, s{pBRE+1}",
       f"s_cselect_b32 s{sWM}, s{pW3}, s{pW1}", f"s_cselect_b32 s{sWM+1}, s{pW3+1}, s{pW1+1}",
       f"s_and_b32 s{sWU+1}, s{sWU+1}, 0xffff", f"s_and_b32 s{sWM+1}, s{sWM+1}, 0xffff",
       f"s_mov_b32 s{sWU+2}, {640*1280}", f"s_mov_b32 s{sWU+3}, 0x20000",
       f"s_mov_b32 s{sWM+2}, {640*3072}", f"s_mov_b32 s{sWM+3}, 0x20000"])
    L(srd(sOUT, pOUT, 2048*2560))
    if opt.p2map == 0:
        L([f"s_lshl_b32 s{sRT}, s{sT0}, 2", f"s_and_b32 s{sT2}, s{sT1}, 3", f"s_add_u32 s{sRT}, s{sRT}, s{sT2}", f"s_lshr_b32 s{sN}, s{sT1}, 2"])
    else:
        L([f"s_and_b32 s{sRT}, s{sT0}, 3", f"s_lshl_b32 s{sRT}, s{sRT}, 3", f"s_and_b32 s{sT2}, s{sT1}, 7", f"s_add_u32 s{sRT}, s{sRT}, s{sT2}",
           f"s_lshr_b32 s{sN}, s{sT0}, 2", f"s_lshl_b32 s{sN}, s{sN}, 2", f"s_lshr_b32 s{sT2}, s{sT1}, 3", f"s_add_u32 s{sN}, s{sN}, s{sT2}"])
    L([f"s_mul_i32 s{sUOFF}, s{sG}, {40*1280}", f"s_lshr_b32 s{sT2}, s{sW}, 1", f"s_lshl_b32 s{sT2}, s{sT2}, 7", f"s_add_u32 s{sUOFF}, s{sUOFF}, s{sT2}",
       f"s_mul_i32 s{sM0U}, s{sW}, 5120"])
    L([f"s_mul_i32 s{sT2}, s{sG}, 192", f"s_bitcmp1_b32 s{sG}, 0",
       f"s_cselect_b32 s{sT3}, 64, 0", f"s_cselect_b32 s{sT4}, 0, 128", f"s_add_u32 s{sMOFF}, s{sT2}, s{sT3}", f"s_add_u32 s{sMOFFB}, s{sT2}, s{sT4}",
       f"s_lshr_b32 s{sT2}, s{sW}, 1",
       f"s_mul_i32 s{sT3}, s{sT2}, {32*3072}", f"s_add_u32 s{sMOFF}, s{sMOFF}, s{sT3}",
       f"s_mul_i32 s{sT3}, s{sT2}, {64*3072}", f"s_add_u32 s{sMOFFB}, s{sMOFFB}, s{sT3}",
       f"s_lshl_b32 s{sM0A}, s{sW}, 12"])
    L([f"s_lshl_b32 s{sT3}, s{sC}, 1", f"s_add_u32 s{sT3}, s{sT3}, s{sT2}", f"s_mul_i32 s{sA2H}, s{sT3}, {88*4096}",
       f"s_and_b32 s{sT3}, s{sW}, 1", f"s_lshl_b32 s{sT3}, s{sT3}, 11", f"s_add_u32 s{sA2H}, s{sA2H}, s{sT3}",
       f"s_mul_i32 s{sT3}, s{sG}, 3", f"s_add_u32 s{sT3}, s{sT3}, 40", f"s_and_b32 s{sT4}, s{sG}, 1",
       f"s_add_u32 s{sKSA}, s{sT3}, s{sT4}", f"s_lshl_b32 s{sKSA}, s{sKSA}, 12", f"s_add_u32 s{sKSA}, s{sKSA}, s{sA2H}",
       f"s_xor_b32 s{sT4}, s{sT4}, 1", f"s_lshl_b32 s{sT4}, s{sT4}, 1",
       f"s_add_u32 s{sKSB}, s{sT3}, s{sT4}", f"s_lshl_b32 s{sKSB}, s{sKSB}, 12", f"s_add_u32 s{sKSB}, s{sKSB}, s{sA2H}"])
    L([f"s_lshl_b32 s{sT3}, s{sG}, 4", f"s_add_u32 s{sT4}, s{sT3}, s{sC}", f"s_mul_i32 s{sT4}, s{sT4}, 640", f"s_add_u32 s{sT4}, s{sT4}, {WS_S}",
       f"s_cmp_eq_u32 s{sW}, 3", f"s_cselect_b32 s{sSST}, s{sT4}, {OOB}"])
    for jj, sl in enumerate((sLB0, sLB1, sLB2, sLB3)):
        L([f"s_lshl_b32 s{sT4}, s{sW}, 2", f"s_add_u32 s{sT4}, s{sT4}, s{sC}", f"s_add_i32 s{sT4}, s{sT4}, {jj-16}",
           f"s_add_u32 s{sT5}, s{sT3}, s{sT4}", f"s_mul_i32 s{sT5}, s{sT5}, 640", f"s_add_u32 s{sT5}, s{sT5}, {WS_S}",
           f"s_cmp_ge_i32 s{sT4}, 0", f"s_cselect_b32 s{sl}, s{sT5}, {OOB}"])
    L([f"s_lshl_b32 s{sT3}, s{sC}, 2", f"s_add_u32 s{sT3}, s{sT3}, s{sW}", f"s_lshl_b32 s{sT3}, s{sT3}, 8", f"s_add_u32 s{sT3}, s{sT3}, {WS_STAT}",
       f"s_cmp_eq_u32 s{sG}, 0", f"s_cselect_b32 s{sSTATO}, s{sT3}, {OOB}"])
    for cf in range(5):
        L([f"s_mul_i32 s{sT2}, s{sG}, 5", f"s_add_u32 s{sT2}, s{sT2}, {cf}", f"s_and_b32 s{sT4}, s{sT2}, 3", f"s_lshr_b32 s{sT2}, s{sT2}, 2",
           f"s_lshl_b32 s{sT2}, s{sT2}, 12", f"s_lshl_b32 s{sT4}, s{sT4}, 8", f"s_add_u32 s{sT2}, s{sT2}, s{sT4}", f"s_add_u32 s{sHO[cf]}, s{sT2}, s{sA2H}"])
    L([f"s_mul_i32 s{sP2A}, s{sRT}, {88*4096}", f"s_mul_i32 s{sP2W}, s{sN}, {88*5120}", f"s_add_u32 s{sP2W}, s{sP2W}, {WS_W2P}"])
    if "A" in opt.fakehit: E(f"s_mov_b32 s{sP2A}, 0")
    if "W" in opt.fakehit: E(f"s_mov_b32 s{sP2W}, {WS_W2P}")
    L(ptr_bases())

cAR, cAI, cKR, cKI = 56, 57, 58, 59
cA8, cA32, cA32W, cA128, cOM = 60, 62, 64, 66, 68
def constants():
    lre, lim, ldt = vT[4], vT[5], vT[6]
    t = list(range(72, 96))
    L([f"v_lshlrev_b32 v{lre}, 16, v{lre}", f"v_lshlrev_b32 v{lim}, 16, v{lim}", f"v_lshlrev_b32 v{ldt}, 16, v{ldt}",
       f"v_mul_f32 v{t[0]}, {LOG2E}, v{ldt}", f"v_exp_f32 v{t[0]}, v{t[0]}",
       f"v_cvt_pk_bf16_f32 v{t[0]}, v{t[0]}, v{t[0]}", f"v_lshlrev_b32 v{t[0]}, 16, v{t[0]}",
       f"v_mul_f32 v{t[1]}, v{t[0]}, v{lre}", f"v_mul_f32 v{t[2]}, v{t[0]}, v{lim}",
       f"v_mul_f32 v{t[1]}, {LOG2E}, v{t[1]}", f"v_exp_f32 v{t[1]}, v{t[1]}",
       f"v_mul_f32 v{t[2]}, {INV2PI}, v{t[2]}", f"v_rndne_f32 v{t[3]}, v{t[2]}", f"v_sub_f32 v{t[2]}, v{t[2]}, v{t[3]}",
       f"v_cos_f32 v{t[3]}, v{t[2]}", f"v_sin_f32 v{t[4]}, v{t[2]}",
       f"v_mul_f32 v{cAR}, v{t[1]}, v{t[3]}", f"v_mul_f32 v{cAI}, v{t[1]}, v{t[4]}",
       f"v_add_f32 v{t[3]}, -1.0, v{cAR}",
       f"v_mul_f32 v{t[5]}, v{lre}, v{lre}", f"v_fmac_f32 v{t[5]}, v{lim}, v{lim}", f"v_rcp_f32 v{t[5]}, v{t[5]}",
       f"v_mul_f32 v{t[6]}, v{t[3]}, v{lre}", f"v_fmac_f32 v{t[6]}, v{cAI}, v{lim}",
       f"v_mul_f32 v{t[7]}, v{cAI}, v{lre}", f"v_fma_f32 v{t[7]}, -v{t[3]}, v{lim}, v{t[7]}",
       f"v_add_f32 v{t[5]}, v{t[5]}, v{t[5]}",
       f"v_mul_f32 v{cKR}, v{t[6]}, v{t[5]}", f"v_mul_f32 v{cKI}, v{t[7]}, v{t[5]}"])
    r, i, tt = t[8], t[9], t[0]
    L([f"v_mov_b32 v{r}, v{cAR}", f"v_sub_f32 v{i}, 0, v{cAI}"])
    L(csq(t[10], t[11], r, i, tt)); L(csq(r, i, t[10], t[11], tt))
    L(csq(cA8, cA8+1, r, i, tt))
    L(csq(r, i, cA8, cA8+1, tt))
    L(csq(cA32, cA32+1, r, i, tt))
    L(csq(t[12], t[13], cA32, cA32+1, tt))
    L(csq(cA128, cA128+1, t[12], t[13], tt))
    L(csq(r, i, cA128, cA128+1, tt))
    L(csq(t[14], t[15], r, i, tt))
    L(csq(t[16], t[17], t[14], t[15], tt))
    def sel(dst, src, mask, on):
        if on:
            return [f"v_cndmask_b32 v{dst}, 1.0, v{src}, s[{mask}:{mask+1}]", f"v_cndmask_b32 v{dst+1}, 0, v{src+1}, s[{mask}:{mask+1}]"]
        return [f"v_mov_b32 v{t[22]}, 1.0", f"v_mov_b32 v{t[23]}, 0",
                f"v_cndmask_b32 v{dst}, v{src}, v{t[22]}, s[{mask}:{mask+1}]", f"v_cndmask_b32 v{dst+1}, v{src+1}, v{t[23]}, s[{mask}:{mask+1}]"]
    L([f"s_bitcmp1_b32 s{sW}, 0", f"s_cselect_b64 s[{sEX0}:{sEX0+1}], -1, 0", f"s_bitcmp1_b32 s{sW}, 1", f"s_cselect_b64 s[{sEX2}:{sEX2+1}], -1, 0"])
    L(sel(t[18], cA32, sEX0, True)); L(sel(t[20], t[12], sEX2, True))
    L(cmul(cA32W, cA32W+1, t[18], t[19], t[20], t[21], tt))
    L(sel(t[18], t[14], sEX0, False)); L(sel(t[20], t[16], sEX2, False))
    L(cmul(cOM, cOM+1, t[18], t[19], t[20], t[21], tt))

def nonce_seed():
    sd = vT[7]
    L([f"s_mov_b32 s{sT2}, 1664525", f"v_mul_lo_u32 v{sd}, v{sd}, s{sT2}", f"v_add_u32 v{vNON}, 1013904223, v{sd}", f"v_mov_b32 v{vNON+1}, 1"])
    E(f"buffer_store_dword v{vNON}, off, s[{sWS}:{sWS+3}], s{sSEEDO} sc1", tok="seed")
def nonce_publish():
    return [f"s_cmp_lt_u32 s{sSEEDO}, {OOB}", f"s_cselect_b32 s{sT5}, 0, {OOB}", "@waitvm seed",
            f"buffer_store_dwordx2 v[{vNON}:{vNON+1}], off, s[{sDBG}:{sDBG+3}], s{sT5} sc1"]

lab = [0]
def poll(load_text, check):
    lab[0] += 1
    n = lab[0]
    r = list(check)
    r += [f"s_cbranch_vccz L_ok{n}", "@raw_begin", f"s_mov_b32 s{sCNT}, {0x4000 if opt.diag else 0x40000}", f"L_rt{n}:", "s_sleep 1"]
    r += [t.text if isinstance(t, I) else t for t in load_text]
    r += ["s_waitcnt vmcnt(0)", "s_nop 1"] + list(check) + [f"s_cbranch_vccz L_ok{n}", f"s_sub_u32 s{sCNT}, s{sCNT}, 1",
          f"s_cmp_lg_u32 s{sCNT}, 0", f"s_cbranch_scc1 L_rt{n}"]
    if opt.diag: r += [f"buffer_store_dword v{vLANE}, off, s[{sDBG}:{sDBG+3}], 0 offset:{32+4*n} sc1", "s_waitcnt vmcnt(0)"]
    r += ["s_nop 7", "@raw_end", f"L_ok{n}:"]
    return r
def nonce_load():
    return [f"buffer_load_dwordx2 v[{vNON}:{vNON+1}], off, s[{sDBG}:{sDBG+3}], 0 sc1"]
def nonce_get():
    return poll(nonce_load(), [f"v_cmp_ne_u32 vcc, 1, v{vNON+1}"]) + [f"v_readfirstlane_b32 s{sNONCE}, v{vNON}"]

sS0, sS1, sQ0, sQ1 = vT[8], vT[9], vT[10], vT[11]
vR = [vT[12], vT[14]]; vNB = [vT[13], vT[15]]
vM = [vT[16], vT[17]]
vONES = vT[18]
def x_arrive(f, filler=None, limit=60):
    fa = atoms(II(filler or []))
    tot = sum(len(a) for a in fa); chunks = [[] for _ in range(10)]; acc = 0
    for a in fa:
        chunks[min(9, acc * 10 // max(tot, 1))] += a; acc += len(a)
    if not opt.mstat: L([f"v_mov_b32 v{sS0}, 0", f"v_mov_b32 v{sS1}, 0", f"v_mov_b32 v{sQ0}, 0", f"v_mov_b32 v{sQ1}, 0"])
    def st(s):
        r = []
        if opt.mstat:
            c0 = "0" if s == 0 else ar(aSS); c1 = "0" if s == 0 else ar(aSQ)
            return [f"v_mfma_f32_16x16x32_bf16 {ar(aSS)}, {ar(aONE)}, {vr(X(f, s))}, {c0}",
                    f"v_mfma_f32_16x16x32_bf16 {ar(aSQ)}, {vr(X(f, s))}, {vr(X(f, s))}, {c1}"]
        for k in range(4):
            x = X(f, s) + k
            r += [f"v_dot2_f32_bf16 v{(sS0, sS1)[k&1]}, v{x}, v{vONES}, v{(sS0, sS1)[k&1]}",
                  f"v_dot2_f32_bf16 v{(sQ0, sQ1)[k&1]}, v{x}, v{x}, v{(sQ0, sQ1)[k&1]}"]
        return r
    for S in range(10):
        E(f"@waitvm x{f}_{S}")
        for sh in range(2):
            E(f"ds_read_b128 {vr(X(f, 2*S+sh))}, v{vRX[sh]} offset:{S*2048}", tok=f"xr{f}_{2*S+sh}")
        fl = chunks[S]
        L(ST.next(2 if ST.n % 2 == 0 or True else 1, limit))
        if S > 0:
            E(f"@waitds xr{f}_{2*S-1}")
            L(st(2*S-2)); L(st(2*S-1))
        L(fl)
    E("@waitds0")
    return st(18) + st(19)

aONE, aSS, aSQ = 216, 220, 224
def x_stats(f):
    a, b = vT[19], vT[20]
    r = [f"v_add_f32 v{sS0}, v{sS0}, v{sS1}", f"v_add_f32 v{sQ0}, v{sQ0}, v{sQ1}"]
    if opt.mstat:
        t = vT[8:12]
        r = [f"v_and_b32 v{a}, 15, v{vLANE}", f"v_lshrrev_b32 v{b}, 2, v{a}", f"v_lshl_add_u32 v{b}, v{b}, 4, v{a}", f"v_lshlrev_b32 v{b}, 2, v{b}",
             f"v_and_b32 v{a}, 3, v{vLANE}", f"v_cmp_eq_u32 s[{sEX0}:{sEX0+1}], 1, v{a}", f"v_cmp_eq_u32 s[{sEX2}:{sEX2+1}], 2, v{a}", f"v_cmp_eq_u32 vcc, 3, v{a}"]
        r += [f"v_accvgpr_read_b32 v{t[k]}, a{aSQ+k}" for k in range(4)]
        r += [f"v_cndmask_b32 v{t[0]}, v{t[0]}, v{t[1]}, s[{sEX0}:{sEX0+1}]", f"v_cndmask_b32 v{t[2]}, v{t[2]}, v{t[3]}, vcc",
              f"v_cndmask_b32 v{t[0]}, v{t[0]}, v{t[2]}, s[{sEX2}:{sEX2+1}]", f"v_cndmask_b32 v{t[0]}, v{t[0]}, v{t[2]}, vcc",
              f"ds_bpermute_b32 v{sQ0}, v{b}, v{t[0]}", f"v_accvgpr_read_b32 v{sS0}, a{aSS}"]
    for perm in (() if opt.mstat else ("v_permlane16_swap_b32", "v_permlane32_swap_b32")):
        r += [f"v_mov_b32 v{a}, v{sS0}", f"v_mov_b32 v{b}, v{sQ0}", f"{perm} v{a}, v{sS0}", f"{perm} v{b}, v{sQ0}",
              f"v_add_f32 v{sS0}, v{sS0}, v{a}", f"v_add_f32 v{sQ0}, v{sQ0}, v{b}"]
    inv = "0x3acccccd"
    r += [f"v_mul_f32 v{sS0}, {inv}, v{sS0}", f"v_mul_f32 v{sQ0}, {inv}, v{sQ0}",
          f"v_fma_f32 v{sQ0}, -v{sS0}, v{sS0}, v{sQ0}", f"v_max_f32 v{sQ0}, 0, v{sQ0}",
          f"v_cvt_pk_bf16_f32 v{a}, v{sS0}, v{sQ0}",
          f"v_lshlrev_b32 v{vM[f]}, 16, v{a}", f"v_and_b32 v{b}, 0xffff0000, v{a}",
          f"v_add_f32 v{b}, 0x3727c5ac, v{b}",
          f"v_cvt_pk_bf16_f32 v{b}, v{b}, v{b}", f"v_and_b32 v{b}, 0xffff0000, v{b}",
          f"v_sqrt_f32 v{b}, v{b}", f"v_cvt_pk_bf16_f32 v{b}, v{b}, v{b}", f"v_and_b32 v{b}, 0xffff0000, v{b}",
          f"v_rcp_f32 v{vR[f]}, v{b}", f"v_mul_f32 v{vNB[f]}, v{vM[f]}, v{vR[f]}", f"v_sub_f32 v{vNB[f]}, 0, v{vNB[f]}"]
    return r

def norm_step(f, s, packed, tmp):
    r = []
    for k in range(4):
        x = X(f, s) + k
        t = tmp[(k & 1) * 2]
        if packed:
            r += [f"v_lshlrev_b32 v{t}, 16, v{x}", f"v_and_b32 v{t+1}, 0xffff0000, v{x}",
                  f"v_pk_fma_f32 v[{t}:{t+1}], v[{t}:{t+1}], v[{vR[f]}:{vR[f]+1}], v[{vR[f]}:{vR[f]+1}] op_sel:[0,0,1] op_sel_hi:[1,0,1]",
                  f"v_cvt_pk_bf16_f32 v{x}, v{t}, v{t+1}"]
        else:
            r += [f"v_lshlrev_b32 v{t}, 16, v{x}", f"v_and_b32 v{t+1}, 0xffff0000, v{x}",
                  f"v_fma_f32 v{t}, v{t}, v{vR[f]}, v{vNB[f]}", f"v_fma_f32 v{t+1}, v{t+1}, v{vR[f]}, v{vNB[f]}",
                  f"v_cvt_pk_bf16_f32 v{x}, v{t}, v{t+1}"]
    return r

def stats_store():
    a, b = vT[0], vT[1]
    r = [f"v_and_b32 v{a}, 12, v{vLANE}", f"v_add_u32 v{a}, v{a}, v{vLANE}", f"v_lshlrev_b32 v{a}, 3, v{a}",
         f"v_mov_b32 v{b}, {OOB}", f"v_cmp_gt_u32 vcc, 16, v{vLANE}", f"v_cndmask_b32 v{a}, v{b}, v{a}, vcc"]
    for f in range(2):
        r.append(I(f"buffer_store_dwordx2 v[{vR[f]}:{vR[f]+1}], v{a}, s[{sWS}:{sWS+3}], s{sSTATO} offen offset:{32*f} sc1", tok="stat"))
    return r

def mlp_dma_addr(kind):
    vD = vDB if kind == "B" else globals()["vD"]
    t0, t1, t2 = vD[1], vD[2], vD[3]
    if kind == "A":
        r = [f"v_lshrrev_b32 v{t0}, 3, v{vLANE}", f"v_and_b32 v{t1}, 7, v{vLANE}", f"v_and_b32 v{t2}, 2, v{t0}", f"v_lshlrev_b32 v{t2}, 1, v{t2}",
             f"v_xor_b32 v{t1}, v{t1}, v{t2}", f"v_lshlrev_b32 v{t1}, 4, v{t1}",
             f"v_mul_u32_u24 v{t0}, 3072, v{t0}", f"v_add_u32 v{vD[0]}, v{t0}, v{t1}"]
        rows = 8
    else:
        r = [f"v_lshrrev_b32 v{t0}, 2, v{vLANE}", f"v_and_b32 v{t1}, 3, v{vLANE}", f"v_lshlrev_b32 v{t1}, 4, v{t1}",
             f"v_mul_u32_u24 v{t0}, 3072, v{t0}", f"v_add_u32 v{vD[0]}, v{t0}, v{t1}"]
        rows = 16
    for p in range(1, 4):
        r.append(f"v_add_u32 v{vD[p]}, {p*(rows*3072 - 1024)}, v{vD[0]}")
    if kind == "B": r.append(f"v_add_u32 v{vRB2}, 0x10000, v{vRB}")
    return r

def dma_M(m):
    slot = m % 4 if m < 10 else BSLOT[m]
    vD = globals()["vD"] if m < 10 else vDB
    if m < 10:
        so = [f"s_mul_i32 s{sD0}, s{sKU[m >> 1]}, 1536", f"s_add_u32 s{sD0}, s{sD0}, s{sMOFF}"]
        if m & 1: so.append(f"s_add_u32 s{sD0}, s{sD0}, {64*3072}")
    else:
        so = [f"s_mul_i32 s{sD0}, s{sKU[m - 10]}, 1536", f"s_add_u32 s{sD0}, s{sD0}, s{sMOFFB}"]
    if m >= 10:
        r = []
        for p in range(4):
            r += [f"s_add_u32 m0, s{sM0A}, {slot*16384}"] + ([t.replace(f"s{sD0}", f"s{sD2}") for t in so] if p == 0 else [f"s_add_u32 s{sD2}, s{sD2}, {0}"] if False else [])
            r.append(I(f"buffer_load_dwordx4 v{vD[p]}, s[{sWM}:{sWM+3}], s{sD2} offen offset:{p*1024} {opt.w_flags} lds", tok=f"M{m}"))
        return r
    r = [f"s_add_u32 m0, s{sM0A}, {slot*16384}"] + so
    for p in range(4):
        r.append(I(f"buffer_load_dwordx4 v{vD[p]}, s[{sWM}:{sWM+3}], s{sD0} offen offset:{p*1024} {opt.w_flags} lds", tok=f"M{m}"))
    return r

def w13_touch_addr():
    a, b = vT[5], vT[6]
    return [f"v_lshrrev_b32 v{a}, 1, v{vLANE}", f"v_mul_u32_u24 v{a}, 3072, v{a}", f"v_and_b32 v{b}, 1, v{vLANE}", f"v_lshl_add_u32 v{a}, v{b}, 7, v{a}",
            f"v_accvgpr_write_b32 a238, v{a}", f"v_mov_b32 v{b}, {OOB}", f"v_cmp_gt_u32 vcc, 16, v{vLANE}", f"v_cndmask_b32 v{a}, v{b}, v{a}, vcc",
            f"v_accvgpr_write_b32 a239, v{a}",
            f"s_and_b32 s{sT2}, s{sC}, 7", f"s_lshl_b32 s{sT2}, s{sT2}, 1", f"s_lshr_b32 s{sT3}, s{sW}, 1", f"s_add_u32 s{sT2}, s{sT2}, s{sT3}",
            f"s_mul_i32 s{sT2}, s{sT2}, {40*3072}", f"s_mul_i32 s{sT3}, s{sG}, 192", f"s_and_b32 s{sT3}, s{sT3}, 0xffffff80", f"s_add_u32 s{sD2}, s{sT2}, s{sT3}"]
def w13_touch():
    a = I(f"buffer_load_dword a228, v{vFLAG}, s[{sWM}:{sWM+3}], s{sD2} offen", tok="TW"); a.lines = 64
    b = I(f"buffer_load_dword a228, v{vFLAG}, s[{sWM}:{sWM+3}], s{sD2} offen", tok="TW"); b.lines = 16
    return [[f"v_accvgpr_read_b32 v{vFLAG}, a238", a], [f"v_accvgpr_read_b32 v{vFLAG}, a239", f"s_add_u32 s{sD2}, s{sD2}, {32*3072}", b]]

def delay(tag, mod, val, ticks):
    if not opt.delay: return []
    return ["@raw_begin", f"s_and_b32 s{sD0}, s2, {mod}", f"s_cmp_eq_u32 s{sD0}, {val}", f"s_cbranch_scc0 L_dl{tag}",
            f"s_memrealtime s[{sSTAMP}:{sSTAMP+1}]", "s_waitcnt lgkmcnt(0)", f"s_mov_b32 s{sD1}, s{sSTAMP}", f"L_dw{tag}:",
            f"s_memrealtime s[{sSTAMP}:{sSTAMP+1}]", "s_waitcnt lgkmcnt(0)", f"s_sub_u32 s{sD0}, s{sSTAMP}, s{sD1}",
            f"s_cmp_lt_u32 s{sD0}, {ticks*opt.delay}", f"s_cbranch_scc1 L_dw{tag}", f"L_dl{tag}:", "@raw_end"]

def skew(tag):
    if not opt.skew: return []
    return [f"s_bitcmp1_b32 s{sW}, 0", f"s_cbranch_scc1 L_sk{tag}a", "s_nop 0", f"L_sk{tag}a:", f"s_bitcmp1_b32 s{sW}, 1", f"s_cbranch_scc1 L_sk{tag}b", "s_nop 1", f"L_sk{tag}b:"]

def mlp_read_addr():
    G, r_, c, t, u = vT[19], vT[20], vT[21], vT[22], vT[23]
    return [f"v_lshrrev_b32 v{G}, 4, v{vLANE}", f"v_bfe_u32 v{r_}, v{vLANE}, 2, 2", f"v_and_b32 v{c}, 3, v{vLANE}",
         f"v_lshrrev_b32 v{t}, 1, v{G}", f"v_lshlrev_b32 v{t}, 11, v{t}", f"v_lshl_add_u32 v{t}, v{r_}, 7, v{t}",
         f"v_and_b32 v{u}, 1, v{c}", f"v_lshl_add_u32 v{t}, v{u}, 3, v{t}",
         f"v_and_b32 v{u}, 1, v{G}", f"v_lshlrev_b32 v{u}, 1, v{u}", f"v_lshrrev_b32 v{vRA[1]}, 1, v{c}", f"v_add_u32 v{u}, v{u}, v{vRA[1]}",
         f"v_lshrrev_b32 v{vRA[1]}, 1, v{r_}", f"v_lshlrev_b32 v{vRA[1]}, 2, v{vRA[1]}", f"v_xor_b32 v{u}, v{u}, v{vRA[1]}",
         f"v_lshl_add_u32 v{vRA[0]}, v{u}, 4, v{t}", f"v_xor_b32 v{vRA[1]}, 64, v{vRA[0]}",
         f"v_lshrrev_b32 v{t}, 1, v{G}", f"v_lshlrev_b32 v{t}, 10, v{t}", f"v_lshl_add_u32 v{t}, v{r_}, 6, v{t}",
         f"v_and_b32 v{u}, 1, v{G}", f"v_lshl_add_u32 v{t}, v{u}, 5, v{t}", f"v_lshl_add_u32 v{vRB}, v{c}, 3, v{t}",
         f"v_lshlrev_b32 v{u}, 10, v{u}", f"v_lshrrev_b32 v{t}, 1, v{G}", f"v_lshl_add_u32 v{u}, v{t}, 8, v{u}",
         f"v_and_b32 v{t}, 15, v{vLANE}", f"v_lshl_add_u32 v{vHH}, v{t}, 4, v{u}"]

def relayout_issue():
    u, t0, t1, t2 = sT2, vT[5], vT[6], vT[7]
    vo = vT[0:5]
    r = [f"s_lshl_b32 s{u}, s{sW}, 5", f"s_add_u32 s{u}, s{u}, s{sRT}",
       f"s_mul_i32 s{sT3}, s{sN}, 88", f"s_add_u32 s{sT3}, s{sT3}, s{u}", f"s_mul_i32 s{sT3}, s{sT3}, 5120", f"s_add_u32 s{sT3}, s{sT3}, {WS_W2P}",
       f"s_cmp_lt_u32 s{u}, 88", f"s_cselect_b32 s{sRLST}, s{sT3}, {OOB}",
       f"s_mov_b32 s{sRL+3}, 0x20000", f"s_cmp_lt_u32 s{u}, 40", "@arm", "s_cbranch_scc0 L_rlw",
       f"s_cmp_lt_u32 s{u}, 20", f"s_cselect_b32 s{sRL}, s{pCRE}, s{pCIM}", f"s_cselect_b32 s{sRL+1}, s{pCRE+1}, s{pCIM+1}",
       f"s_cselect_b32 s{sT3}, 0, 20", f"s_sub_u32 s{sT3}, s{u}, s{sT3}", f"s_lshl_b32 s{sT3}, s{sT3}, 6",
       f"s_mul_i32 s{sT4}, s{sN}, {80*1280}", f"s_add_u32 s{sRLOFF}, s{sT3}, s{sT4}",
       f"s_mov_b32 s{sRL+2}, {640*1280}",
       f"v_lshrrev_b32 v{t0}, 2, v{vLANE}", f"v_and_b32 v{t1}, 3, v{vLANE}", f"v_lshlrev_b32 v{t1}, 4, v{t1}",
       f"v_mul_u32_u24 v{t0}, 1280, v{t0}", f"v_add_u32 v{vo[0]}, v{t0}, v{t1}"]
    for e in range(1, 5): r.append(f"v_add_u32 v{vo[e]}, {e*16*1280}, v{vo[0]}")
    r += ["s_branch L_rlj", "@else", "L_rlw:",
       f"s_mov_b32 s{sRL}, s{pW2}", f"s_mov_b32 s{sRL+1}, s{pW2+1}",
       f"s_cmp_lt_u32 s{u}, 88", f"s_cselect_b32 s{sRL+2}, {1536*1280}, 0",
       f"s_sub_u32 s{sT3}, s{u}, 40", f"s_mul_i32 s{sT3}, s{sT3}, {32*1280}", f"s_mul_i32 s{sT4}, s{sN}, 160", f"s_add_u32 s{sRLOFF}, s{sT3}, s{sT4}",
       f"s_mov_b32 s{sT4}, 6554"]
    for p in range(5):
        r += [f"v_add_u32 v{t0}, {64*p}, v{vLANE}", f"v_mul_u32_u24 v{t1}, s{sT4}, v{t0}", f"v_lshrrev_b32 v{t1}, 16, v{t1}",
              f"v_mul_u32_u24 v{t2}, 10, v{t1}", f"v_sub_u32 v{t2}, v{t0}, v{t2}", f"v_lshlrev_b32 v{t2}, 4, v{t2}",
              f"v_mul_u32_u24 v{t1}, 1280, v{t1}", f"v_add_u32 v{vo[p]}, v{t1}, v{t2}"]
    r += ["@endarm", "L_rlj:", f"s_and_b32 s{sRL+1}, s{sRL+1}, 0xffff"]
    r += [f"v_accvgpr_write_b32 a{232+p}, v{vo[p]}" for p in range(5)]
    return r
def relayout_dma():
    vo = vT[0:5]
    r = []
    if "r" in opt.skip: return r
    for p in range(5):
        r.append([f"s_add_u32 m0, s{sM0U}, {L_RL + p*1024}", f"v_accvgpr_read_b32 v3, a{232+p}",
                  I(f"buffer_load_dwordx4 v3, s[{sRL}:{sRL+3}], s{sRLOFF} offen {'nt' if opt.rl_nt else ''} lds", tok="RL")])
    return r

def relayout_raddr():
    t0, t1, t2 = vT[5], vT[6], vT[7]
    return [f"v_and_b32 v{t0}, 15, v{vLANE}", f"v_lshrrev_b32 v{t1}, 4, v{vLANE}", f"v_lshlrev_b32 v{t1}, 4, v{t1}", f"v_lshl_add_u32 v{t0}, v{t0}, 6, v{t1}",
            f"v_lshrrev_b32 v{t1}, 2, v{vLANE}", f"v_and_b32 v{t2}, 8, v{t1}", f"v_add_u32 v{t1}, v{t1}, v{t2}", f"v_mul_u32_u24 v{t1}, 160, v{t1}",
            f"v_and_b32 v{t2}, 3, v{vLANE}", f"v_lshl_add_u32 v{t1}, v{t2}, 3, v{t1}",
            f"s_lshl_b32 s{sT2}, s{sW}, 5", f"s_add_u32 s{sT2}, s{sT2}, s{sRT}", f"s_cmp_lt_u32 s{sT2}, 40", f"s_cselect_b64 s[{sEX0}:{sEX0+1}], -1, 0",
            f"s_cselect_b32 s{sRLT}, 1, 0", f"s_add_u32 s{sT3}, s{sM0U}, {L_RL}",
            f"v_cndmask_b32 v{t0}, v{t1}, v{t0}, s[{sEX0}:{sEX0+1}]", f"v_add_u32 v{t0}, s{sT3}, v{t0}", f"v_accvgpr_write_b32 a237, v{t0}"]
def relayout_finish():
    if "r" in opt.skip: return []
    t0 = vT[0]
    r = [f"v_accvgpr_read_b32 v{t0}, a237", "@waitvm RL", f"s_cmp_eq_u32 s{sRLT}, 1", "s_cbranch_scc0 L_rfw"]
    for e in range(5):
        for h in range(2): r.append(f"ds_read_b64 {ar(aRL+4*e+2*h, 2)}, v{t0} offset:{e*1024 + 8*h}")
    r += ["@raw_begin", "s_branch L_rfj", "L_rfw:"]
    for e in range(5):
        for jj in range(2): r.append(f"ds_read_b64_tr_b16 {ar(aRL+4*e+2*jj, 2)}, v{t0} offset:{jj*1280 + e*32}")
    r += ["@raw_end", "L_rfj:"]
    for e in range(5):
        if e < 4: r.append(I(f"buffer_store_dwordx4 {ar(aRL+4*e)}, v{vL16}, s[{sWS}:{sWS+3}], s{sRLST} offen offset:{e*1024} sc1", tok="RLS"))
        else: r.append(I(f"buffer_store_dwordx4 {ar(aRL+4*e)}, v{vW4}, s[{sWS}:{sWS+3}], s{sRLST} offen sc1", tok="RLS"))
    return r

def flag_store(base, sline, sidx):
    return [f"s_lshl_b32 s{sD0}, s{sline}, 7", f"s_lshl_b32 s{sD1}, s{sidx}, 2", f"s_add_u32 s{sD0}, s{sD0}, s{sD1}", f"s_add_u32 s{sD0}, s{sD0}, {base}",
            f"s_cmp_eq_u32 s{sW}, 0", f"s_cselect_b32 s{sD0}, s{sD0}, {OOB}",
            f"buffer_store_dword v{vNON}, off, s[{sWS}:{sWS+3}], s{sD0} sc1"]
def flag_load(base, sline, shift, mask, st=None):
    st = sD0 if st is None else st
    return [f"s_lshr_b32 s{st}, s{sline}, {shift}", f"s_lshl_b32 s{st}, s{st}, 7", f"s_add_u32 s{st}, s{st}, {base}",
            f"v_and_b32 v{vFLAG}, {mask}, v{vLANE}", f"v_lshlrev_b32 v{vFLAG}, 2, v{vFLAG}",
            f"buffer_load_dword v{vFLAG}, v{vFLAG}, s[{sWS}:{sWS+3}], s{st} offen sc1"]
sNN = 6
def sflag_load(base):
    return [f"s_lshr_b32 s{sD0}, s{sRT}, 1", f"s_lshl_b32 s{sD0}, s{sD0}, 7", f"s_add_u32 s{sD0}, s{sD0}, {base}", f"s_add_u32 s{sD1}, s{sD0}, 32",
            f"s_load_dwordx8 s[56:63], s[{pWS}:{pWS+1}], s{sD0} glc", f"s_load_dwordx8 s[76:83], s[{pWS}:{pWS+1}], s{sD1} glc"]
def sflag_check(base):
    lab[0] += 1
    n = lab[0]
    r = ["@waitds0"]
    for k in (56, 58, 60, 62, 76, 78, 80, 82): r.append(f"s_xor_b64 s[{k}:{k+1}], s[{k}:{k+1}], s[{sNN}:{sNN+1}]")
    for a, b in ((56, 58), (60, 62), (76, 78), (80, 82), (56, 60), (76, 80), (56, 76)): r.append(f"s_or_b64 s[{a}:{a+1}], s[{a}:{a+1}], s[{b}:{b+1}]")
    ld = flag_load(base, sRT, 1, 15, sD0); chk = [f"v_cmp_ne_u32 vcc, s{sNONCE}, v{vFLAG}"]
    r += [f"s_cbranch_scc0 L_ok{n}", "@raw_begin", f"s_mov_b32 s{sCNT}, {0x4000 if opt.diag else 0x40000}", f"L_rt{n}:"] + ld
    r += ["s_waitcnt vmcnt(0)", "s_nop 1"] + chk + [f"s_cbranch_vccz L_ok{n}", "s_sleep 1", f"s_sub_u32 s{sCNT}, s{sCNT}, 1",
          f"s_cmp_lg_u32 s{sCNT}, 0", f"s_cbranch_scc1 L_rt{n}", "s_nop 7", "@raw_end", f"L_ok{n}:"]
    return r
def fl_load(base): return sflag_load(base) if opt.sflag else flag_load(base, sRT, 1, 15)
def fl_check(base): return sflag_check(base) if opt.sflag else flag_check(base, sRT, 1, 15)
def flag_check(base, sline, shift, mask):
    if "f" in opt.skip: return [f"v_mov_b32 v{vFLAG}, 0"]
    return poll(flag_load(base, sline, shift, mask, sD0), [f"v_cmp_ne_u32 vcc, s{sNONCE}, v{vFLAG}"])

def scan_addr():
    col, q, ch, t = vT[19], vT[20], vT[21], vT[22]
    return [f"s_lshl_b32 s{sT2}, s{sW}, 13", f"s_add_u32 s{sT2}, s{sT2}, {L_PRIV}",
            f"v_and_b32 v{col}, 15, v{vLANE}", f"v_lshrrev_b32 v{q}, 4, v{vLANE}",
            f"v_lshl_add_u32 v{vCOLR}, v{col}, 4, s{sT2}",
            f"v_lshl_add_u32 v{vEW}, v{q}, 2, v{vCOLR}",
            f"v_min_u32 v{ch}, 39, v{vLANE}", f"v_lshlrev_b32 v{vSO}, 4, v{ch}",
            f"v_lshrrev_b32 v{t}, 3, v{ch}", f"v_lshlrev_b32 v{t}, 3, v{t}", f"v_add_u32 v{t}, v{t}, v{ch}",
            f"v_lshl_add_u32 v{vER}, v{t}, 4, s{sT2}",
            f"v_add_u32 v{vCH}, s{sT2}, v{vL16}",
            f"s_lshl_b32 s{sT3}, s{sW}, 9", f"s_add_u32 s{sT3}, s{sT3}, {L_TT}", f"v_lshl_add_u32 v{vTT}, v{vLANE}, 3, s{sT3}",
            f"v_lshlrev_b32 v{vLB}, 5, v{vLANE}", f"v_add_u32 v{vLB}, {L_LB}, v{vLB}",
            f"s_add_u32 s{sT3}, s{sM0U}, {L_RL}",
            f"v_lshlrev_b32 v{vTW}, 5, v{col}", f"v_lshl_add_u32 v{vTW}, v{q}, 3, v{vTW}", f"v_add_u32 v{vTW}, s{sT3}, v{vTW}",
            f"v_bfe_u32 v{t}, v{vLANE}, 2, 2", f"v_lshlrev_b32 v{t}, 5, v{t}", f"v_lshl_add_u32 v{t}, v{q}, 8, v{t}",
            f"v_and_b32 v{ch}, 3, v{vLANE}", f"v_lshl_add_u32 v{t}, v{ch}, 3, v{t}", f"v_add_u32 v{vTR}, s{sT3}, v{t}",
            f"v_lshrrev_b32 v{t}, 1, v{q}", f"v_lshlrev_b32 v{t}, 10, v{t}", f"v_lshl_add_u32 v{vHST}, v{col}, 4, v{t}",
            f"v_and_b32 v{t}, 1, v{q}", f"v_mul_u32_u24 v{t}, {20*4096}, v{t}", f"v_add_u32 v{vHST}, v{vHST}, v{t}"]

def const_park():
    src = [cAR, cAI, cKR, cKI] + list(range(60, 70))
    return [f"v_accvgpr_write_b32 a{200+k}, v{s}" for k, s in enumerate(src)]
def const_tables():
    t = vT[0:8]
    r = [f"v_accvgpr_read_b32 v{t[0]}, a200", f"v_accvgpr_read_b32 v{t[1]}, a201", f"v_accvgpr_read_b32 v{t[2]}, a202", f"v_accvgpr_read_b32 v{t[3]}, a203",
         f"v_sub_f32 v{t[3]}, 0, v{t[3]}",
         f"v_mov_b32 v{t[4]}, v{t[0]}", f"v_sub_f32 v{t[5]}, 0, v{t[1]}", f"v_sub_f32 v{t[6]}, 0, v{t[2]}", f"v_mov_b32 v{t[7]}, v{t[3]}",
         f"ds_write_b128 v{vER}, {vr(t[0])} offset:{PV_COL}", f"ds_write_b128 v{vER}, {vr(t[4])} offset:{PV_COL+128}",
         f"ds_write_b128 v{vCH}, {ar(204)} offset:{PV_CH}", f"ds_write_b128 v{vCH}, {ar(208)} offset:{PV_CH+1024}",
         f"ds_write_b64 v{vCH}, {ar(212, 2)} offset:{PV_CH+2048}",
         f"v_mov_b32 v{t[0]}, 0", f"v_mov_b32 v{t[1]}, 0",
         f"s_min_u32 s{sT2}, s{sW}, 2", f"s_lshl_b32 s{sT2}, s{sT2}, 9", f"s_add_u32 s{sT2}, s{sT2}, {L_TT}",
         f"v_lshl_add_u32 v{t[2]}, v{vLANE}, 3, s{sT2}", f"ds_write_b64 v{t[2]}, {vr(t[0], 2)}"]
    return r

def ureg(cf, tau): return U(cf, tau >> 2) + (tau & 3)
DPP = "row_ror:8 row_mask:0xf bank_mask:0xf"
def scan_P12():
    C = vT[0:20]
    r = [I(f"ds_read_b128 {vr(C[4*cf])}, v{vCOLR} offset:{PV_COL + cf*256}", tok="colr") for cf in range(5)]
    r.append("@gap 1")
    t = vT[20:24]
    k = 0
    for tau in range(8):
        for cf in range(5):
            u = ureg(cf, tau); tt = t[k % 4]; k += 1
            r += [f"v_mul_f32_dpp v{tt}, v{u}, v{C[4*cf+3]} {DPP}", f"v_fma_f32 v{u}, v{C[4*cf+2]}, v{u}, v{tt}"]
    for tau in range(1, 8):
        src = [(ureg(cf, 0) if tau == 1 else C[4*cf + 2 + (tau & 1)]) for cf in range(5)]
        dst = [C[4*cf + 2 + ((tau + 1) & 1)] for cf in range(5)]
        for cf in range(5): r.append(f"v_fma_f32 v{dst[cf]}, v{C[4*cf]}, v{src[cf]}, v{ureg(cf, tau)}")
        for cf in range(5): r.append(f"v_fmac_f32_dpp v{dst[cf]}, v{src[cf]}, v{C[4*cf+1]} {DPP}")
    for cf in range(5): r.append(f"ds_write_b32 v{vEW}, v{C[4*cf+2]} offset:{PV_E + cf*256}")
    er, ei, a8 = vT[0], vT[4], vT[8]
    r += [f"ds_read_b128 {vr(a8)}, v{vCH} offset:{PV_CH}",
          f"ds_read_b128 {vr(er)}, v{vER} offset:{PV_E}", f"ds_read_b128 {vr(ei)}, v{vER} offset:{PV_E+128}", "@gap 2"]
    g0, g1 = vT[12], vT[14]
    r += chorner2(g0, g0+1, er, ei, a8, a8+1, er+1, ei+1)
    r += chorner2(g1, g1+1, g0, g0+1, a8, a8+1, er+2, ei+2)
    r += chorner2(g0, g0+1, g1, g1+1, a8, a8+1, er+3, ei+3)
    r += [f"ds_write_b64 v{vTT}, {vr(g0, 2)} offset:{3*512}"]
    return r

def scan_P3():
    a32 = vT[8]; T = vT[0:8]
    r = [f"ds_read_b128 {vr(a32)}, v{vCH} offset:{PV_CH}"]
    for k in range(4): r.append(f"ds_read_b64 {vr(T[2*k], 2)}, v{vTT} offset:{k*512}")
    r.append("@gap 2")
    m = a32 + 2
    g = vT[12]
    r += chorner2(g, g+1, T[0], T[1], m, m+1, T[2], T[3])
    r += chorner2(vWP0, vWP1, g, g+1, m, m+1, T[4], T[5])
    r += chorner2(g, g+1, vWP0, vWP1, m, m+1, T[6], T[7])
    r += [f"v_mov_b32 v{g+2}, s{sNONCE}", f"v_mov_b32 v{g+3}, s{sNONCE}",
          f"buffer_store_dwordx4 {vr(g)}, v{vSO}, s[{sWS}:{sWS+3}], s{sSST} offen sc1"]
    return r

def lb_loads():
    return [f"buffer_load_dwordx4 {ar(aS+4*jj)}, v{vSO}, s[{sWS}:{sWS+3}], s{sl} offen sc1" for jj, sl in enumerate((sLB0, sLB1, sLB2, sLB3))]
def scan_P4():
    t = vT[0:8]
    chk = []
    for jj, sl in enumerate((sLB0, sLB1, sLB2, sLB3)):
        d = t[2] if jj == 0 else t[0]
        chk += [f"s_cmp_lt_u32 s{sl}, {OOB}", f"s_cselect_b32 s{sT2}, s{sNONCE}, 0", f"v_accvgpr_read_b32 v{d}, a{aS+4*jj+2}",
                f"v_xor_b32 v{d}, s{sT2}, v{d}"]
        if jj: chk += [f"v_or_b32 v{t[2]}, v{t[2]}, v{t[0]}"]
    chk += [f"v_cmp_ne_u32 vcc, 0, v{t[2]}"]
    c = vT[8]
    r = [f"ds_read_b128 {vr(c)}, v{vCH} offset:{PV_CH+1024}", f"ds_read_b64 {vr(vT[12], 2)}, v{vCH} offset:{PV_CH+2048}"]
    if "f" not in opt.skip: r += poll(lb_loads(), [i.text for i in insert_nops(II(chk))])
    for jj in range(4):
        r += [f"v_accvgpr_read_b32 v{t[2*jj]}, a{aS+4*jj}", f"v_accvgpr_read_b32 v{t[2*jj+1]}, a{aS+4*jj+1}"]
    m = c + 2; g0, g1 = vT[14], vT[16]
    r += chorner2(g0, g0+1, t[0], t[1], m, m+1, t[2], t[3])
    r += chorner2(g1, g1+1, g0, g0+1, m, m+1, t[4], t[5])
    r += chorner2(g0, g0+1, g1, g1+1, m, m+1, t[6], t[7])
    r += cmul(g1, g1+1, g0, g0+1, vT[12], vT[13], vT[18])
    r += [f"s_lshl_b32 s{sT2}, s{sW}, 3", f"v_add_u32 v{vT[18]}, s{sT2}, v{vLB}", f"ds_write_b64 v{vT[18]}, {vr(g1, 2)}"]
    return r

def scan_P56():
    lb = vT[0]; er, ei = vT[8], vT[12]; c8, c32w = vT[16], vT[20]
    r = [f"ds_read_b128 {vr(lb)}, v{vLB}", f"ds_read_b128 {vr(lb+4)}, v{vLB} offset:16",
         f"ds_read_b64 {vr(c32w, 2)}, v{vCH} offset:{PV_CH+1024}", f"ds_read_b128 {vr(c8)}, v{vCH} offset:{PV_CH}",
         f"ds_read_b128 {vr(er)}, v{vER} offset:{PV_E}", f"ds_read_b128 {vr(ei)}, v{vER} offset:{PV_E+128}", "@gap 2",
         f"v_add_f32 v{lb}, v{lb}, v{lb+2}", f"v_add_f32 v{lb+1}, v{lb+1}, v{lb+3}",
         f"v_add_f32 v{lb+4}, v{lb+4}, v{lb+6}", f"v_add_f32 v{lb+5}, v{lb+5}, v{lb+7}",
         f"v_add_f32 v{lb}, v{lb}, v{lb+4}", f"v_add_f32 v{lb+1}, v{lb+1}, v{lb+5}"]
    q0, q1 = vT[4], vT[20]
    tmp = vT[2]
    r += chorner2(tmp, tmp+1, lb, lb+1, c32w, c32w+1, vWP0, vWP1)
    r += [f"v_mov_b32 v{q0}, v{tmp}", f"v_mov_b32 v{q1}, v{tmp+1}"]
    for k in range(3):
        r += chorner2(q0+k+1, q1+k+1, q0+k, q1+k, c8, c8+1, er+k, ei+k)
    r += [f"ds_write_b128 v{vER}, {vr(q0)} offset:{PV_E}", f"ds_write_b128 v{vER}, {vr(q1)} offset:{PV_E+128}"]
    C = vT[0:10]; Z = vT[10:15]
    for cf in range(5): r.append(f"ds_read_b32 v{Z[cf]}, v{vEW} offset:{PV_E + cf*256}")
    for cf in range(5): r.append(f"ds_read_b64 {vr(C[2*cf], 2)}, v{vCOLR} offset:{PV_COL + cf*256}")
    r.append("@gap 2")
    for tau in range(8):
        src = [(Z[cf] if tau == 0 else ureg(cf, tau-1)) for cf in range(5)]
        for cf in range(5): r.append(f"v_fma_f32 v{ureg(cf, tau)}, v{C[2*cf]}, v{src[cf]}, v{ureg(cf, tau)}")
        for cf in range(5): r.append(f"v_fmac_f32_dpp v{ureg(cf, tau)}, v{src[cf]}, v{C[2*cf+1]} {DPP}")
    for cf in range(5):
        for f in range(2):
            t = vT[2*(cf*2+f)]; u = U(cf, f)
            r += [f"v_cvt_pk_bf16_f32 v{t}, v{u}, v{u+1}", f"v_cvt_pk_bf16_f32 v{t+1}, v{u+2}, v{u+3}"]
    for k in range(10): r.append(f"ds_write_b64 v{vTW}, {vr(vT[2*k], 2)} offset:{k*512}")
    for cf in range(5):
        for jj in range(2):
            r.append(f"ds_read_b64_tr_b16 {vr(56 + 4*cf + 2*jj, 2)}, v{vTR} offset:{cf*1024 + jj*128}")
    for cf in range(5):
        r.append(I(f"buffer_store_dwordx4 {vr(56 + 4*cf)}, v{vHST}, s[{sWS}:{sWS+3}], s{sHO[cf]} offen sc1", tok="HST"))
    return r

def swiglu(acc, h2s, sks, tokname, packed=False):
    r = []
    k = 0
    for h2 in h2s:
        for z in range(2):
            G = vT[0:8]; Uu = vT[8:16]; T = vT[16:24]
            for j in range(8):
                r += [f"v_accvgpr_read_b32 v{G[j]}, a{acc(0, h2) + 8*z + j}", f"v_accvgpr_read_b32 v{Uu[j]}, a{acc(1, h2) + 8*z + j}"]
            if packed:
                for j in range(0, 8, 2): r.append(f"v_pk_mul_f32 {vr(T[j], 2)}, {vr(G[j], 2)}, s[{sEX0}:{sEX0+1}]")
                for j in range(8):
                    r.append(f"v_exp_f32 v{T[j]}, v{T[j]}")
                for j in range(0, 8, 2): r.append(f"v_pk_mul_f32 {vr(G[j], 2)}, {vr(G[j], 2)}, {vr(Uu[j], 2)}")
                for j in range(0, 8, 2): r.append(f"v_pk_add_f32 {vr(T[j], 2)}, {vr(T[j], 2)}, s[{sEX2}:{sEX2+1}]")
                for j in range(8): r.append(f"v_rcp_f32 v{T[j]}, v{T[j]}")
                for j in range(0, 8, 2): r.append(f"v_pk_mul_f32 {vr(G[j], 2)}, {vr(G[j], 2)}, {vr(T[j], 2)}")
            else:
                for j in range(8): r.append(f"v_mul_f32 v{T[j]}, {NLOG2E}, v{G[j]}")
                for j in range(8): r += [f"v_exp_f32 v{T[j]}, v{T[j]}", f"v_mul_f32 v{G[j]}, v{G[j]}, v{Uu[j]}"]
                for j in range(8): r.append(f"v_add_f32 v{T[j]}, 1.0, v{T[j]}")
                for j in range(8): r.append(f"v_rcp_f32 v{T[j]}, v{T[j]}")
                for j in range(8): r.append(f"v_mul_f32 v{G[j]}, v{G[j]}, v{T[j]}")
            o = Uu[0] if k % 2 == 0 else Uu[4]; k += 1
            for j in range(4): r.append(f"v_cvt_pk_bf16_f32 v{o+j}, v{G[2*j]}, v{G[2*j+1]}")
            if z == 0: r.append(f"s_add_u32 s{sT2}, s{sks}, {h2*4096}")
            r.append(I(f"buffer_store_dwordx4 {vr(o)}, v{vHH}, s[{sWS}:{sWS+3}], s{sT2} offen offset:{z*512} sc1", tok=tokname))
    return r

def step_reads(blk, s, par):
    r = []
    if blk == "U":
        i, sh2, sh = s // 4, (s >> 1) & 1, s & 1
        off = i*20480 + sh2*10240 - (61440 if i >= 3 else 0)
        for cf in range(5):
            r.append(f"ds_read_b128 {ar(FB(par, cf))}, v{vRU[sh]} offset:{off + cf*1024}")
    elif blk == "A":
        m, sp = s // 2, s & 1
        for hf in range(2):
            for h2 in range(2):
                for mu in range(2):
                    for jj in range(2):
                        r.append(f"ds_read_b64_tr_b16 {ar(FB(par, hf*4+h2*2+mu) + 2*jj, 2)}, v{vRA[h2]} offset:{(m % 4)*16384 + (2*sp+mu)*4096 + hf*1024 + jj*512}")
    else:
        m, sd = 10 + s // 2, s & 1
        for s2 in range(2):
            for hf in range(2):
                for mu in range(2):
                    for jj in range(2):
                        r.append(f"ds_read_b64_tr_b16 {ar(FB(par, s2*4+hf*2+mu) + 2*jj, 2)}, v{vRB2 if BSLOT[m] >= 4 else vRB} offset:{(BSLOT[m] % 4)*16384 + (2*sd+mu)*4096 + s2*2048 + hf*512 + jj*256}")
    return r

def step_mfma(blk, s, par):
    r = []
    if blk == "U":
        for cf in range(5):
            for f in range(2):
                d = vr(U(cf, f)); c = "0" if s == 0 else d
                r.append(f"v_mfma_f32_16x16x32_bf16 {d}, {vr(X(f, s))}, {ar(FB(par, cf))}, {c}")
    elif blk == "A":
        for hf in range(2):
            for h2 in range(2):
                for mu in range(2):
                    d = ar(ACCA(mu, h2), 16); c = "0" if (s == 0 and hf == 0) else d
                    r.append(f"v_mfma_f32_32x32x16_bf16 {d}, {ar(FB(par, hf*4+h2*2+mu))}, {vr(X(hf, s))}, {c}")
    else:
        for s2 in range(2):
            for hf in range(2):
                for mu in range(2):
                    d = ar(ACCB(mu), 16); c = "0" if (s == 0 and hf == 0 and s2 == 0) else d
                    r.append(f"v_mfma_f32_32x32x16_bf16 {d}, {ar(FB(par, s2*4+hf*2+mu))}, {vr(X(hf, 2*s+s2))}, {c}")
    return r

def swaps(s): return [] if "w" in opt.skip else [f"v_permlane16_swap_b32 v{X(0, s)+k}, v{X(1, s)+k}" for k in range(4)]

def stage_of(blk, s):
    return ("U", s // 4) if blk == "U" else (("M", s // 2) if blk == "A" else ("M", 10 + s // 2))

def cost(i):
    if i.cls in ("pseudo", "label"): return 0
    if i.cls == "trans": return 2
    if i.cls == "vmem": return opt.vmcost
    return 1

PH = [1]
class Feed(list):
    def append(self, i): EM[0].feed(i)

class Queue:
    def __init__(self): self.q = []; self.hold = 0; self.now = 0
    def add(self, lst, deadline):
        if "q" in opt.skip:
            lst = [t for t in II(lst) if t.cls in ("vmem",) or t.op.startswith("s_") or t.cls in ("pseudo", "label") or t.op.startswith("v_cmp") or t.op.startswith("v_readfirst") or t.op.startswith("v_accvgpr_read") and "a18" in t.text + "a19"]
        lst = II(lst)
        if PH[0] == 1 and opt.skip and not any(t.op in ("@arm", "@raw_begin") for t in lst):
            if "D" in opt.skip: lst = [t for t in lst if not t.op.startswith("ds_write")]
            if "R" in opt.skip: lst = [t for t in lst if not t.op.startswith("ds_read")]
            if "V" in opt.skip: lst = [t for t in lst if t.cls not in ("valu", "trans") or t.op.startswith("v_cmp") or t.op.startswith("v_cndmask")]
            if "S" in opt.skip:
                for t in lst:
                    if t.cls == "vmem" and "store" in t.op and t.tok in ("HST", "HHA"): t.text = t.text.replace("offen", "offen").replace("dwordx4", "dword"); t.text = __import__("re").sub(r"v\[(\d+):\d+\]", r"v\1", t.text, 1); t.wide = False
        lst = II(lst)
        now = max(self.now, max([d for t, d in self.q] + [0]) if opt.chainq else 0)
        if not opt.interp or deadline <= now + 1:
            for t in lst: self.q.append((t, deadline))
            return
        pos = 0; P = []; wr = {}; lastw = -99
        for t in lst:
            if t.cls not in ("pseudo", "label"):
                dep = [wr[r] for r in (t.rd | t.wr) if r in wr]
                if dep: pos = max(pos, max(dep) + opt.vlat)
                if t.op.startswith("ds_read") and pos - lastw < opt.vlat // 2: pos = lastw + opt.vlat // 2
                for r in t.wr: wr.pop(r, None)
                if t.cls == "ds":
                    for r in t.wr: wr[r] = pos
                    if t.op.startswith("ds_write"): lastw = pos
            pos += cost(t) + (1 if t.cls == "ds" else 0)
            P.append(pos)
        prev = now
        for t, p in zip(lst, P):
            d = now + int((deadline - now) * p / max(pos, 1))
            if t.cls == "ds" and PH[0] == 1 and d >= 200:
                while d % 8 < opt.span and d < deadline: d += 1
            d = max(d, prev); prev = d
            self.q.append((t, min(d, deadline)))
    def _region(self, out):
        i = self.q[0][0]
        end = "@endarm" if i.op == "@arm" else "@raw_end"
        while True:
            j = self.q.pop(0)[0]; out.append(j)
            if j.cls == "pseudo" and j.op == end: break
        while self.q and self.q[0][0].cls == "label": out.append(self.q.pop(0)[0])
    def need(self, gap):
        best = 0; acc = 0
        for t, d in self.q:
            acc += cost(t)
            left = d - gap + 1
            if left <= 0: best = max(best, acc)
            else: best = max(best, -(-acc // left))
        return best
    def pop(self, n, gap, ds_ok=True):
        out = Feed(); nds = 0; self.now = gap
        n = max(n, self.need(gap)) if (opt.even and not opt.interp) else n
        while self.q and (n > 0 or self.q[0][1] <= gap):
            i = self.q[0][0]
            if i.cls == "pseudo" and i.op == "@gap":
                self.q.pop(0); continue
            if self.q[0][1] > gap:
                if i.cls == "ds" and (not ds_ok or nds >= opt.dsmax): break
                if i.cls == "ds": nds += 1
                look = [i] + ([x for x, d in self.q[1:12] if x.cls == "pseudo"][:1] if i.op.startswith("s_cmp") else [])
                if i.op.startswith("s_cmp"): look += [x for x, d in self.q[1:4]]
                if max(EM[0].stall(x) for x in look) > opt.thr: break
            if i.cls == "pseudo" and i.op in ("@arm", "@raw_begin"):
                self._region(out); n -= 4
                continue
            if i.cls == "branch" or i.op.startswith("s_cmp") or i.op.startswith("s_bitcmp") or i.op.startswith("v_cmp"):
                out.append(self.q.pop(0)[0])
                if self.q and "L_rfw" in self.q[0][0].text:
                    while self.q[0][0].op != "@raw_begin": out.append(self.q.pop(0)[0])
                    n -= 10
                while self.q:
                    k = self.q[0][0]
                    if k.op.startswith("s_cselect") or k.op.startswith("v_cndmask") or k.cls == "branch": out.append(self.q.pop(0)[0])
                    elif k.op in ("@arm", "@raw_begin"): self._region(out); n -= 4
                    else: break
                n -= 1
                continue
            self.q.pop(0); out.append(i)
            n -= cost(i)
        return out
    def flush(self):
        out = [i for i, d in self.q if not (i.cls == "pseudo" and i.op == "@gap")]
        self.q = []; self.hold = 0
        return out

ACC1 = [("a", 4*k) for k in range(20)]
ACC2 = [("v", 96 + 4*k) for k in range(20)]
A_SLOTS = [("a", 80 + 4*k) for k in range(20)]
GA = [("a", 196 + 4*k) for k in range(15)] + [("a", 160 + 4*k) for k in range(5)]
XFREE = [("v", base + 8*d + 4*h) for d in range(10) for base in (96, 176) for h in range(2)]
HI = [("v", 176 + 4*k) for k in range(20)]
N1 = 12
NLDS = 4
def wslot(st, e):
    if st < 4: return GA[st*5 + e]
    if st < 12: return XFREE[(st - 4)*5 + e]
    if st < 16: return HI[(st - 12)*5 + e]
    if st < 20: return GA[(st - 16)*5 + e]
    return HI[(st - 20)*5 + e]
def w_free_after_b(st):
    return -1 if st < 4 else ((st - 4)*5 + 4) // 4
def w_free_after_p(st):
    if st < 16:
        regs = {wslot(st, e) for e in range(5)}
        return max(o for o in range(4, 12) for e in range(5) if wslot(o, e) in regs)
    return st - 16 if st < 20 else st - 8
def rg(t, c=4): return f"{t[0]}[{t[1]}:{t[1]+c-1}]"
vA2 = [3, 4, 5, 6]; vPW = [7, 8, 9]; vPR = 11; vOUT = 13; vXO = 14; vSTA = 15; vDS = 16
vXR = list(range(56, 76)); vY = list(range(76, 96)); vDK = [17, 18, 19, 20, 21]; vST = list(range(32, 40)); vXD2 = [22, 23, 24]; vXL = 25; vWL = 26
L_X2 = 143360
NSTEP = 22
ORDER = [0, 1, 4, 5, 6, 7, 10, 11, 2, 3, 8, 9] + list(range(10))
def ptr_bases():
    return [f"s_mul_i32 s{sAS}, s{sW}, {12*4096}", f"s_add_u32 s{sAS}, s{sAS}, s{sP2A}", f"s_add_u32 s{sAS}, s{sAS}, {40*4096}",
            f"s_mul_i32 s{sAE}, s{sW}, {10*4096}", f"s_add_u32 s{sAE}, s{sAE}, s{sP2A}",
            f"s_mul_i32 s{sWB}, s{sW}, {12*5120}", f"s_add_u32 s{sWB}, s{sWB}, s{sP2W}", f"s_add_u32 s{sWB}, s{sWB}, {40*5120}",
            f"s_mul_i32 s{sWE}, s{sW}, {10*5120}", f"s_add_u32 s{sWE}, s{sWE}, s{sP2W}"]
def ptr_set(which, st):
    if which == "A": return [f"s_add_u32 s{sAP}, s{sAS if st < N1 else sAE}, {ORDER[st]*4096}"]
    return [f"s_add_u32 s{sWP}, s{sWB if st < N1 else sWE}, {ORDER[st]*5120}"]
def p2_wload(st):
    r = []
    r += ptr_set("W", st)
    for e in range(5):
        va, off = (vL16, e*1024) if e < 4 else (vW4, 0)
        if N1 <= st < N1 + NLDS:
            r += [f"s_add_u32 m0, s{sM0}, {L_WY + (st - N1)*5120 + (4096 if e == 4 else 0)}"] + (["s_nop 0"] if True else [])
            r.append(I(f"buffer_load_dwordx4 v{va}, s[{sWS}:{sWS+3}], s{sWP} offen offset:{off} sc1 lds", tok=f"WL{st}"))
        else:
            r.append(I(f"buffer_load_dwordx4 {rg(wslot(st, e))}, v{va}, s[{sWS}:{sWS+3}], s{sWP} offen offset:{off} sc1", tok="W"))
    return r
def p2_wread(st):
    return [f"@waitvm WL{st}"] + [f"ds_read_b128 {rg(wslot(st, e))}, v{vWL} offset:{L_WY + (st - N1)*5120 + e*1024}" for e in range(5)]
def p2_aload(st):
    r = []
    r += ptr_set("A", st)
    for jj in range(4):
        r.append(I(f"buffer_load_dwordx4 {rg(A_SLOTS[(st % 5)*4 + jj])}, v{vA2[jj]}, s[{sWS}:{sWS+3}], s{sAP} offen sc1", tok="A"))
    return r
def p2_setup():
    r = []
    for jj in range(4):
        r += [f"s_add_u32 s{sD0}, s{sW}, {jj}", f"s_and_b32 s{sD0}, s{sD0}, 3", f"v_lshl_add_u32 v{vA2[jj]}, s{sD0}, 10, v{vL16}"]
    return r
def p2_setup2():
    r = []
    for jj in range(1, 4):
        r += [f"s_add_u32 s{sT2}, s{sW}, {jj}", f"s_and_b32 s{sT2}, s{sT2}, 3",
              f"s_mul_i32 s{sT3}, s{sT2}, 15360", f"s_add_u32 s{sT3}, s{sT3}, {(3-jj)*5120}", f"v_add_u32 v{vPW[jj-1]}, s{sT3}, v{vL16}"]
    r += [f"s_mul_i32 s{sT3}, s{sW}, 15360", f"v_add_u32 v{vPR}, s{sT3}, v{vL16}", f"v_add_u32 v{vWL}, s{sM0}, v{vL16}"]
    r += [f"v_add_u32 v{v}, {L_P1}, v{v}" for v in vPW + [vPR]]
    return r

def groups(lst):
    out = []; cur = []
    for t in II(lst):
        cur.append(t)
        if t.cls == "vmem": out.append(cur); cur = []
    if cur: out.append(cur)
    return out
def gstall(grp):
    return max([EM[0].stall(t) for t in grp if t.cls == "vmem" or t.op == "@waitvm"] + [0])

def tagw(st):
    gs = groups(p2_wload(st))
    for gq in gs: gq[-1].lat = None; STEP[id(gq[-1])] = st
    return gs
def taga(st):
    gs = groups(p2_aload(st))
    for gq in gs: STEP[id(gq[-1])] = st
    return gs
STEP = {}

def phase1_blocks():
    Q = Queue()
    seq = [("U", s) for s in range(20)] + [("A", s) for s in range(20)] + [("B", s) for s in range(10)]
    gap0 = []; g = 0
    for blk, s in seq:
        gap0.append(g); g += {"U": 10, "A": 8, "B": 8}[blk]
    gap0.append(g)
    def stage_end(kind, idx):
        n = [k for k, (b, s) in enumerate(seq) if stage_of(b, s) == (kind, idx)][-1]
        return gap0[n]
    L(delay("a", 255, 0, 500)); L(delay("b", 31, 5, 700))
    L(["@waitvm U0", "s_barrier"])
    L(stamp("U start"))
    L(step_reads("U", 0, 0))
    later = []
    pace = [0, len(EM[0].out)]
    bulk = []
    def lat(gs, dl):
        for x in gs: later.append((II(x), dl))
    def blk_(gs, dl):
        at = len(bulk) if dl == 10**6 else next((q for q, (gq, d) in enumerate(bulk) if d == 10**6), len(bulk))
        bulk[at:at] = [(II(x), dl) for x in gs]
    lat([u_piece(2, cf) for cf in range(5)], stage_end("U", 0) - 4)
    lat([nonce_publish()], stage_end("U", 0))
    if opt.rl_pos == -1: lat(relayout_dma(), stage_end("U", 1) - 16)
    lat([u_piece(3, cf) for cf in range(5)], stage_end("U", 1) - 10)
    lat([u_piece(4, cf) for cf in range(5)], stage_end("U", 2) - 20)
    for n, (blk, s) in enumerate(seq):
        par = n & 1
        mf = step_mfma(blk, s, par)
        nxt = seq[n + 1] if n + 1 < len(seq) else None
        rd = II(step_reads(nxt[0], nxt[1], par ^ 1)) if nxt else []
        if rd: rd[-1].tok = f"rd{n+1}"
        boundary = nxt is None or stage_of(*nxt) != stage_of(blk, s)
        gaps = [[] for _ in mf]
        start = 0
        pre = []
        cap = opt.capU if blk == "U" else opt.capM
        if blk == "U" and s == 11: pre += [f"v_add_u32 v{vRU[0]}, 61440, v{vRU[0]}"]
        if blk == "U" and s == 12: pre += [f"v_add_u32 v{vRU[1]}, 61440, v{vRU[1]}"]
        if blk == "A" and s == 0:
            Q.add(nonce_get(), gap0[n] + 6)
            Q.add(scan_P12(), stage_end("M", opt.X_stage) - 2)
        if blk == "B" and s == 0:
            Q.add(swiglu(ACCA, [0, 1], sKSA, "HHA"), stage_end("M", opt.hast) - opt.haend)
        post = []; plat = []; urgent = []; pbulk = []
        if blk == "B":
            for st in range(4, opt.nearly):
                if w_free_after_b(st) == s - 1: blk_(tagw(st), 10**6)
        if boundary:
            kind, idx = stage_of(blk, s)
            start = 1
            here = gap0[n]; nx1 = here + (40 if blk == "U" else 16)
            if kind == "U" and idx == 1:
                if opt.rf_stage == 1: post.append((relayout_finish(), stage_end("U", 3) - 4))
                post += [(const_tables(), stage_end("U", 3) + (10 if opt.rf_stage == 1 else -2)), (stats_store(), stage_end("U", 3) + 16)]
            mi = idx if kind == "M" else idx - 5
            def send(m): return stage_end("M", m) if m >= 0 else stage_end("U", m + 5)
            if kind == "U" and idx == opt.rf_stage and idx != 1: post.append((relayout_finish(), send(opt.F_stage - 1) - 2))
            b = []
            if nxt is not None:
                nk, ni = stage_of(*nxt)
                b.append(I(f"@waitboth {nk}{ni}"))
            else:
                b.append(I("@waitds0"))
            if kind == "M" and idx == opt.hast: b += II(["@waitvm HHA"])
            if kind == "M" and idx == opt.hast: plat.append((groups(flag_store(WS_FLHA, sC, sG)), here + 2))
            if mi == opt.F_stage: b += II(["@waitvm RLS"] if "r" not in opt.skip else [])
            if mi == max(opt.F_stage, 0): b += II(["@waitvm stat"])
            b.append(I("s_barrier"))
            if (opt.stamps or opt.probe) and (opt.fine or (kind, idx) in (("U", 4), ("M", 9), ("M", 14))): b += II(stamp(f"{kind}{idx} end"))
            gaps[0] += b
            if kind == "U" and idx == 0 and opt.t_w13: plat.append((w13_touch(), stage_end("U", 1) + 10))
            if kind == "U" and idx == 0 and opt.rl_pos == 0: plat.append((relayout_dma(), stage_end("U", 2) - 10))
            if kind == "U" and idx == 1: plat.append((groups(dma_M(0)) + groups(dma_M(1)), stage_end("U", 3) - 10))
            if kind == "U" and idx == 1 and opt.rl_pos == 1: plat.append((relayout_dma(), stage_end("U", 4) - 10))
            if kind == "U" and idx == 3: plat.append(([nonce_load()], here + 10))
            if kind == "U" and idx in (2, 3): plat.append((groups(dma_M(idx)), stage_end("M", idx - 1) - opt.slack))
            if kind == "U" and idx == 4:
                plat.append(([mlp_dma_addr("B")], here + 6))
                pbulk.append((groups(dma_M(10)), stage_end("M", opt.b10)))
            if mi == max(opt.F_stage, 0): plat.insert(0, (groups(flag_store(WS_FLW, sN, sRT)), here + 6))
            if kind == "M" and idx + 4 <= 9: plat.append((groups(dma_M(idx + 4)), stage_end("M", idx + 3) - opt.slack))
            if kind == "M" and idx == opt.L_stage: plat.insert(0, (groups(lb_loads()), here + 8))
            if kind == "M" and idx in BISSUE: pbulk.append((groups(dma_M(BISSUE[idx][0])), stage_end("M", BISSUE[idx][0] - 1) - opt.slack))
            if kind == "M" and idx == opt.X_stage:
                post.append((scan_P3(), stage_end("M", opt.X_stage + 1) + 8))
            if kind == "M" and idx == opt.C_stage:
                assert not any("a[180:183]" in x.text for gq, d in later for x in gq)
                post.append((scan_P4(), stage_end("M", opt.Y_stage) - 2))
            if kind == "M" and idx == opt.Y_stage:
                gaps[0] += II(delay("d", 63, 17, 900))
                post.append((scan_P56()[:33], stage_end("M", opt.Y_stage + 1) - 2))
            if kind == "M" and idx == opt.W_stage - 1 and opt.nearly:
                plat.append((groups(flag_load(WS_FLW, sN, 0, 31)), nx1))
            if kind == "M" and idx == opt.W_stage and opt.nearly:
                plat.append(([flag_check(WS_FLW, sN, 0, 31)], nx1 + 8))
                for st in range(min(4, opt.nearly)): pbulk.append((tagw(st), 10**6))
            if kind == "M" and idx == 13: urgent += [p2_setup()]
            if kind == "U" and idx == 4: urgent += [[f"global_load_ushort a231, v{vLANE}, s[{pDSK}:{pDSK+1}]"]] if False else []
        ng = len(mf)
        if rd:
            if nxt[0] == "U": span = 5
            elif blk == "U": span = 7
            else: span = opt.span
            for k, t in enumerate(rd): gaps[start + (k * span) // len(rd)].append(t)
        if nxt and nxt[0] == "A":
            for k, t in enumerate(II(swaps(nxt[1]))): gaps[ng - 5 + k].append(t)
        if blk == "U" and opt.pre_norm <= s + 1 < 20 and "n" not in opt.skip:
            nq = II(norm_step(1, s + 1, False, vT[20:24]))
            for k, t in enumerate(nq): gaps[(k * ng) // len(nq)].append(t)
        if blk == "U" and opt.late0:
            ops = [t for s0 in range(20 - opt.late0, 20) for t in norm_step(0, s0, False, vT[16:20])]
            span = 18
            lo, hi = (len(ops) * s) // span, (len(ops) * (s + 1)) // span
            lo -= lo % 5; hi -= hi % 5
            nq = II(ops[lo:hi]) if s < span else []
            assert all((20 - opt.late0 + (lo + k) // 20) > s for k in range(len(nq)))
            for k, t in enumerate(nq): gaps[(k * ng) // len(nq)].append(t)
        L(pre)
        E(f"@waitds rd{n}")
        for k, t in enumerate(mf):
            E(t)
            L(gaps[k])
            gap = gap0[n] + k
            used = sum(cost(x) for x in gaps[k])
            if boundary and k == 0:
                for lst, dl in post: Q.add(lst, dl)
                for gs, dl in plat: lat(gs, dl)
                for gs, dl in pbulk: blk_(gs, dl)
                lat(urgent, here + 14)
                continue
            due_b = any(d - gap <= q + len(later) for q, (gq, d) in enumerate(bulk))
            overdue = due_b or any(d - gap <= q for q, (gq, d) in enumerate(later))
            q_ = later if later else bulk
            if q_ and (overdue or (EM[0].t >= pace[0] and k != 0)):
                grp = q_.pop(0)[0]; L(grp); used += sum(cost(x) for x in grp)
            for x in EM[0].out[pace[1]:]:
                if x.cls == "vmem" and x.lines is not None and not x.text.startswith("buffer_load_dword v29,"):
                    cold = (x.tok in (("RL", "TW") if opt.t_w13 else ("M0", "M1", "M10", "RL"))) and opt.coldpace or 1
                    pace[0] = max(pace[0], EM[0].t - opt.burst) + x.lines * opt.pace * cold
            pace[1] = len(EM[0].out)
            Q.pop(cap - used, gap, ds_ok=(k >= (opt.span if blk != "U" else 5)))
    L(Q.flush())
    for gq, d in later: L(gq)
    return [gq for gq, d in bulk]

def p2_mfma(st):
    r = []
    first = st in (0, N1)
    acc = ACC1 if st < N1 else ACC2
    for jj in range(4):
        for e in range(5):
            d = rg(acc[jj*5+e]); c = "0" if (first and not (st == N1 and jj == 0)) else d
            r.append(f"v_mfma_f32_16x16x32_bf16 {d}, {rg(A_SLOTS[(st % 5)*4+jj])}, {rg(wslot(st, e))}, {c}")
    return r

def p2_partials(base, acc):
    return [f"ds_write_b128 v{vPW[jj-1]}, {rg(acc[jj*5+e])} offset:{base + e*1024}" for jj in range(1, 4) for e in range(5)]

def p2_epi_addr():
    dn, q, t = vT[8], vT[9], vT[10]
    r = [f"v_and_b32 v{dn}, 15, v{vLANE}", f"v_lshrrev_b32 v{q}, 4, v{vLANE}",
         f"s_lshl_b32 s{sT2}, s{sRT}, 6", f"s_lshr_b32 s{sT3}, s{sW}, 1", f"s_lshl_b32 s{sT3}, s{sT3}, 5", f"s_add_u32 s{sT2}, s{sT2}, s{sT3}",
         f"s_and_b32 s{sT3}, s{sW}, 1", f"s_lshl_b32 s{sT3}, s{sT3}, 2", f"s_add_u32 s{sT2}, s{sT2}, s{sT3}",
         f"s_mul_i32 s{sT4}, s{sW}, 3072", f"s_add_u32 s{sT4}, s{sT4}, {L_X2}",
         f"v_mul_u32_u24 v{vXL}, 640, v{q}", f"v_lshl_add_u32 v{vXL}, v{dn}, 1, v{vXL}", f"v_add_u32 v{vXL}, s{sT4}, v{vXL}",
         f"v_lshl_add_u32 v{q}, v{q}, 3, s{sT2}",
         f"s_mul_i32 s{sT3}, s{sN}, 80", f"v_add_u32 v{dn}, s{sT3}, v{dn}",
         f"v_mul_u32_u24 v{t}, 640, v{q}", f"v_add_u32 v{t}, v{t}, v{dn}",
         f"v_lshlrev_b32 v{vOUT}, 2, v{t}", f"v_lshlrev_b32 v{vSTA}, 3, v{q}", f"v_lshlrev_b32 v{vDS}, 1, v{dn}",
         f"s_mul_i32 s{sT2}, s{sT2}, 1280", f"s_mul_i32 s{sT3}, s{sN}, 160", f"s_add_u32 s{sT5}, s{sT2}, s{sT3}", f"s_add_u32 s{sT5}, s{sT5}, 4096",
         f"s_mov_b32 s{sT3}, 6554"]
    a, b, c = vT[11], vT[12], vT[13]
    for p in range(3):
        r += [f"v_add_u32 v{a}, {64*p}, v{vLANE}", f"v_mul_u32_u24 v{b}, s{sT3}, v{a}", f"v_lshrrev_b32 v{b}, 16, v{b}",
              f"v_mul_u32_u24 v{c}, 10, v{b}", f"v_sub_u32 v{c}, v{a}, v{c}", f"v_lshlrev_b32 v{c}, 4, v{c}",
              f"v_and_b32 v{a}, 12, v{b}", f"v_add_u32 v{b}, v{a}, v{b}", f"v_mul_u32_u24 v{b}, 1280, v{b}", f"v_add_u32 v{vXD2[p]}, v{b}, v{c}"]
    r += [f"v_mov_b32 v{a}, {OOB}", f"v_cmp_gt_u32 vcc, 32, v{vLANE}", f"v_cndmask_b32 v{vXD2[2]}, v{a}, v{vXD2[2]}, vcc"]
    return r
def p2_epi_loads():
    r = []
    for p in range(3):
        r += [f"s_add_u32 m0, s{sT4}, {p*1024}", "s_nop 0", I(f"buffer_load_dwordx4 v{vXD2[p]}, s[{sX}:{sX+3}], s{sT5} offen lds", tok="XR")]
    for e in range(5):
        r.append(f"global_load_ushort v{vDK[e]}, v{vDS}, s[{pDSK}:{pDSK+1}] offset:{e*32}")
    r += [f"s_mov_b32 s{sD1}, {WS_STAT}",
          f"buffer_load_dwordx4 {vr(vST[0])}, v{vSTA}, s[{sWS}:{sWS+3}], s{sD1} offen sc1",
          f"buffer_load_dwordx4 {vr(vST[4])}, v{vSTA}, s[{sWS}:{sWS+3}], s{sD1} offen offset:16 sc1"]
    return r
def p2_xread():
    r = ["@waitvm XR"]
    for e in range(5):
        for rr in range(4):
            r.append(f"ds_read_u16 v{vXR[e*4+rr]}, v{vXL} offset:{rr*160 + e*32}")
    return r

def p2_skip():
    r = [f"v_lshlrev_b32 v{vDK[e]}, 16, v{vDK[e]}" for e in range(5)]
    for j in range(20): r.append(f"v_lshlrev_b32 v{vXR[j]}, 16, v{vXR[j]}")
    for e in range(5):
        for rr in range(4): r.append(f"v_fma_f32 v{96+e*4+rr}, v{vXR[e*4+rr]}, v{vST[2*rr]}, v{vST[2*rr+1]}")
        for rr in range(4): r.append(f"v_mul_f32 v{96+e*4+rr}, v{96+e*4+rr}, v{vDK[e]}")
    return r
def p2_gate():
    r = []
    T = vT[0:24]
    for e in range(5):
        b = T[12*(e % 2)]; b2 = b + 4; b3 = b + 8; Y = vY[e*4:e*4+4]
        r += [f"ds_read_b128 {vr(b)}, v{vPR} offset:{e*1024}", f"ds_read_b128 {vr(b2)}, v{vPR} offset:{5120 + e*1024}", f"ds_read_b128 {vr(b3)}, v{vPR} offset:{10240 + e*1024}"]
        if e > 0:
            p = T[12*((e-1) % 2)]; Yp = vY[(e-1)*4:e*4]
            for rr in range(4): r.append(f"v_mul_f32 v{Yp[rr]}, v{Yp[rr]}, v{p+rr}") if False else None
        for rr in range(4): r.append(f"v_add_f32 v{Y[rr]}, v{Y[rr]}, v{b+rr}")
        for rr in range(4): r.append(f"v_add_f32 v{b2+rr}, v{b2+rr}, v{b3+rr}")
        for rr in range(4): r.append(f"v_add_f32 v{Y[rr]}, v{Y[rr]}, v{b2+rr}")
        for rr in range(4): r.append(f"v_mul_f32 v{b+rr}, {NLOG2E}, v{Y[rr]}")
        for rr in range(4): r.append(f"v_exp_f32 v{b+rr}, v{b+rr}")
        for rr in range(4): r.append(f"v_add_f32 v{b+rr}, 1.0, v{b+rr}")
        for rr in range(4): r.append(f"v_rcp_f32 v{b+rr}, v{b+rr}")
        for rr in range(4): r.append(f"v_mul_f32 v{Y[rr]}, v{Y[rr]}, v{b+rr}")
    r += [f"v_add_u32 v{v}, {L_P2 - L_P1}, v{v}" for v in vPW + [vPR]]
    return r

def p2_final():
    r = []
    O = list(range(96, 116)); B = list(range(176, 236))
    for k in range(3):
        for e in range(5):
            r.append(f"ds_read_b128 {vr(B[k*20+e*4])}, v{vPR} offset:{k*5120 + e*1024}")
    for j in range(0, 20, 2): r.append(f"v_pk_fma_f32 {vr(vXR[j], 2)}, {vr(O[j], 2)}, {vr(vY[j], 2)}, {vr(vXR[j], 2)}")
    for j in range(0, 20, 2): r.append(f"v_pk_add_f32 {vr(B[j], 2)}, {vr(B[j], 2)}, {vr(B[20+j], 2)}")
    for j in range(0, 20, 2): r.append(f"v_pk_add_f32 {vr(B[j], 2)}, {vr(B[j], 2)}, {vr(B[40+j], 2)}")
    for j in range(0, 20, 2): r.append(f"v_pk_fma_f32 {vr(vXR[j], 2)}, {vr(B[j], 2)}, {vr(vY[j], 2)}, {vr(vXR[j], 2)}")
    for rr in range(4):
        r.append(f"s_mov_b32 s{sT2}, {rr*2560}")
        for e in range(5):
            r.append(f"buffer_store_dword v{vXR[e*4+rr]}, v{vOUT}, s[{sOUT}:{sOUT+3}], s{sT2} offen offset:{e*64} {opt.out_flags}")
    return r

def weave(main, extra, every=1):
    groups = []; cur = []
    for t in II(extra):
        cur.append(t)
        if t.cls == "vmem": groups.append(cur); cur = []
    if cur: groups.append(cur)
    out = []
    for k, t in enumerate(II(main)):
        out.append(t)
        if groups and k % every == every - 1: out += groups.pop(0)
    for g_ in groups: out += g_
    return out

def phase2(left):
    PH[0] = 2
    L(stamp("B mfma end"))
    L(delay("c", 15, 9, 600))
    L([f"s_mov_b32 s{sEX0}, {NLOG2E}", f"s_mov_b32 s{sEX1}, {NLOG2E}", f"s_mov_b32 s{sEX2}, 1.0", f"s_mov_b32 s{sEX3}, 1.0"])
    Wq = list(left); Aq = []
    assert all(id(gq[-1]) in STEP for gq in Wq)
    nextW = max([st for st in STEP.values()] + [-1]) + 1; nextA = 0
    while nextW < N1 + NLDS: Wq.extend(tagw(nextW)); nextW += 1
    def serial(lst, every, first=None):
        cnt = 0
        for t in II(lst):
            if t.cls == "pseudo" and t.op == "@gap": continue
            L([t])
            if t.cls in ("valu", "trans") and not t.op.startswith("v_cmp") and not INRAW[0]:
                cnt += 1
                q_ = first if first else Wq
                if q_ and cnt >= every and gstall(q_[0]) <= opt.thrs: L(q_.pop(0)); cnt = 0
            if t.op == "@raw_begin": INRAW[0] = True
            if t.op == "@raw_end": INRAW[0] = False
    swb = II(swiglu(ACCB, [0], sKSB, "HHB", packed=True))
    cl = len(swb) - opt.hald
    serial(swb[:cl], opt.every)
    if opt.sflag: L([f"s_mov_b32 s{sNN}, s{sNONCE}", f"s_mov_b32 s{sNN+1}, s{sNONCE}"]); assert opt.hald == 0
    else: L(fl_load(WS_FLHA))
    serial(swb[cl:], opt.every)
    L(stamp("epi B done"))
    def fill(st):
        nonlocal nextW, nextA
        while nextA <= min(st + opt.look, NSTEP - 1): Aq.extend(taga(nextA)); nextA += 1
        while nextW <= min(st + opt.lookW, NSTEP - 1) and nextW >= N1 + NLDS and w_free_after_p(nextW) < st: Wq.extend(tagw(nextW)); nextW += 1
    def head():
        if Wq and (not Aq or STEP[id(Wq[0][-1])] <= STEP[id(Aq[0][-1])]): return Wq
        return Aq if Aq else None
    p56 = II(scan_P56())[33:]
    serial(p56[:10], opt.every)
    L(p2_setup2())
    if opt.sflag:
        serial(p56[10:21], opt.every); L(fl_load(WS_FLHA)); serial(p56[21:opt.hack], opt.every)
    else: serial(p56[10:opt.hack], opt.every)
    L(fl_check(WS_FLHA)); L(stamp("ha ready"))
    while nextA < opt.a0: Aq.extend(taga(nextA)); nextA += 1
    if opt.shadow56:
        tail56 = p56[opt.hack:]; p56 = p56[:opt.hack]
        while Aq: L(Aq.pop(0))
    cst = next((k for k, t in enumerate(p56) if t.cls == "vmem"), len(p56))
    if opt.afirst and Aq: L(Aq.pop(0)); L(Aq.pop(0)); L(Aq.pop(0)); L(Aq.pop(0))
    serial(p56[opt.hack:cst], opt.every2, Aq)
    if opt.afirst:
        while Aq: L(Aq.pop(0))
    L(p56[cst:])
    L(stamp("h out"))
    while Aq: L(Aq.pop(0))
    if opt.hhpos < 0:
        L(["@waitvm HHB", "s_barrier"]); L(flag_store(WS_FLHH, sC, sG))
    L(stamp("flags out"))
    Q = Queue(); misc = []
    if opt.shadow56: Q.add(tail56, 20*opt.p2pos - opt.t56)
    g = 0; nread = N1
    for st in range(NSTEP):
        mf = p2_mfma(st)
        if st == 8 - opt.look:
            L(fl_check(WS_FLHH))
        if st == N1 - opt.look:
            L(fl_check(WS_FLH)); L(stamp("h ready"))
        fill(st)
        if st == opt.p2pos + 1:
            Q.add(p2_epi_addr(), g + 30)
        if st == opt.epos: misc.extend(groups(p2_epi_loads()))
        if st == opt.epos + 3:
            assert not misc or all("v29" in gq[-1].text for gq in misc)
            Q.add(p2_xread() + p2_skip(), 20*N1 - 4)
        if opt.sflag:
            if st == 8 - opt.look - opt.sfl: L(fl_load(WS_FLHH))
            if st == N1 - opt.look - opt.sfl: L(fl_load(WS_FLH))
        else:
            if st == 8 - opt.look - 2: misc[0:0] = groups(flag_load(WS_FLHH, sRT, 1, 15))
            if st == N1 - opt.look - 2: misc[0:0] = groups(flag_load(WS_FLH, sRT, 1, 15))
        while nread < N1 + NLDS and w_free_after_p(nread) < st and nread <= st + 3:
            assert not any(STEP.get(id(gq[-1])) == nread for gq in Wq)
            Q.add(p2_wread(nread), 20*(nread - 1) + 4); nread += 1
        if st == N1:
            L(stamp("out done"))
            yp = p2_partials(0, ACC1); rdy = [f"v_accvgpr_read_b32 v{vY[j]}, a{j}" for j in range(20)]
            mix = []
            for j in range(15): mix += [yp[j]] + rdy[j*4//3:(j+1)*4//3]
            Q.add(mix, 20*opt.ybar - 4)
        if st == opt.ybar:
            assert nread == N1 + NLDS
            L(Q.flush()); L(["@waitds0", "s_barrier"])
            Q.add(p2_gate(), 20*NSTEP - 24)
        def must(q): return [gq for gq in q if STEP[id(gq[-1])] <= st + opt.look]
        ng = len(must(Wq)) + len(Aq)
        per = -(-ng // 19)
        last = st == NSTEP - 1
        if last:
            L(Q.flush())
            mf = mf[5:] + mf[:5]
            wr = II(p2_partials(0, ACC2))
        for k, t in enumerate(mf):
            E(t)
            used = 0
            if k >= 1:
                for _ in range(max(per, 1)):
                    h = head()
                    if misc and (gstall(misc[0]) <= opt.thr or st >= opt.epos + 1 or "v29" in misc[0][-1].text) and (k % 2 == 0 or not h): L(misc.pop(0)); used += 2
                    elif h and (STEP[id(h[0][-1])] <= st + opt.look or gstall(h[0]) <= opt.thr): L(h.pop(0)); used += 2
            if st == opt.hhpos and k == 19 and st != opt.p2pos:
                L(["@waitvm HHB", "s_barrier"]); L(flag_store(WS_FLHH, sC, sG))
            if st == opt.p2pos and k == 19:
                assert "HST" in EM[0].seen and not any(t.tok == "HST" for t, d in Q.q)
                L(["@waitvm HST", "s_barrier"])
                if st == opt.hhpos: L(flag_store(WS_FLHH, sC, sG))
                L(flag_store(WS_FLH, sC, sG))
            if last and k >= 7 and wr: L([wr.pop(0)])
            Q.pop(2 - used, g); g += 1
        if st >= opt.epos + 2:
            while misc: L(misc.pop(0))
        if opt.fine2: L(stamp(f"st{st}"))
        while head() and STEP[id(head()[0][-1])] <= st + opt.look: L(head().pop(0))
    L(wr)
    L(["@waitds0", "s_barrier"])
    L(stamp("y done"))
    L(p2_final())
    L(stamp("end")); L(stamp("cyc1", True))
INRAW = [False]

def diag_out():
    if not opt.diag: return
    L([f"s_lshl_b32 s{sT2}, s2, 2", f"s_add_u32 s{sT2}, s{sT2}, s{sW}", f"s_lshl_b32 s{sT2}, s{sT2}, 2", f"s_add_u32 s{sT2}, s{sT2}, {WS_STAMP}",
       f"v_mov_b32 v{vT[0]}, s{sNONCE}", f"buffer_store_dword v{vT[0]}, off, s[{sWS}:{sWS+3}], s{sT2}"])

def stamps_out():
    if opt.probe:
        L(["@raw_begin", "L_spin:", f"s_memrealtime s[{sSTAMP}:{sSTAMP+1}]", "s_waitcnt lgkmcnt(0)", f"s_sub_u32 s{sT2}, s{sSTAMP}, s3",
           f"s_cmp_lt_u32 s{sT2}, 5000", "s_cbranch_scc1 L_spin", "@raw_end"])
    if not opt.stamps: return
    L([f"s_lshl_b32 s{sT2}, s2, 2", f"s_add_u32 s{sT2}, s{sT2}, s{sW}", f"s_lshl_b32 s{sT2}, s{sT2}, 8", f"s_add_u32 s{sT2}, s{sT2}, {WS_STAMP}",
       f"v_lshlrev_b32 v{vT[0]}, 2, v{vLANE}", f"buffer_store_dword v0, v{vT[0]}, s[{sWS}:{sWS+3}], s{sT2} offen"])

def build():
    STEP.clear(); PH[0] = 1; EM[0] = Emitter(lines_of, lat_of, dslat=opt.dslat); lab[0] = 0; stamp_n[0] = 0; stamp_names.clear(); ST.n = 0
    prologue()
    L(stamp("issued")); L(stamp("cyc0", True))
    CAP[0] = rest = []
    setup_rest()
    L(scan_addr()); L(mlp_read_addr())
    constants()
    L(const_park())
    nonce_seed()
    L(relayout_issue()); L(relayout_raddr())
    if opt.t_w13: L(w13_touch_addr())
    L([f"v_min_u32 v{vT[0]}, 9, v{vLANE}", f"v_lshlrev_b32 v{vT[0]}, 7, v{vT[0]}", f"global_load_dword a231, v{vT[0]}, s[{pDSK}:{pDSK+1}]"])
    CAP[0] = None
    ra = atoms(rest); n0 = 0; k0 = 0
    while n0 < opt.pre0: L(ra[k0]); n0 += len(ra[k0]); k0 += 1
    L(stamp("consts"))
    tail = x_arrive(0, [i for a in ra[k0:] for i in a], 40)
    L(stamp("x0 in"))
    E("s_barrier")
    L(skew("0"))
    L(tail)
    L(x_stats(0))
    L([f"v_add_u32 v{vRX[0]}, 81920, v{vRX[0]}", f"v_add_u32 v{vRX[1]}, 81920, v{vRX[1]}"])
    nrm = []
    for s in range(20 - opt.late0): nrm += norm_step(0, s, opt.pk0, vT[20:24]) if "N" not in opt.skip else []
    if "Z" in opt.skip: nrm = ["s_nop 0"] * len(nrm)
    if "Y" in opt.skip: nrm = [t if "v_pk_fma" not in t else "v_mov_b32 v52, v53" for t in nrm]
    if "M" in opt.skip: nrm = [x for k, t in enumerate(nrm) for x in ([t, "s_nop 0"] if k % 4 == 3 else [t])]
    tail = x_arrive(1, nrm)
    L(stamp("x1 in"))
    L(weave(tail, ST.next(50 - ST.n, 50), 1))
    L(x_stats(1))
    L(mlp_dma_addr("A"))
    for s in range(opt.pre_norm): L(norm_step(1, s, True, vT[20:24]))
    assert ST.n == 50
    phase2(phase1_blocks())
    diag_out()
    stamps_out()
    E("s_endpgm")
    return EM[0].out

HEADER = """; Kernarg layout for this problem (128 bytes, ptrs only, base s[0:1]):
; @launch grid=(256,1,1) block=(256,1,1) lds=163840
.amdgcn_target "amdgcn-amd-amdhsa--gfx950"
.text
.globl {k}
.p2align 8
.type {k},@function
{k}:
"""
FOOTER = """
L_exit:
    s_endpgm
L_codeend:
    .fill 64, 4, 0xbf800000
.section .rodata,"a"
.p2align 6
.amdhsa_kernel {k}
  .amdhsa_next_free_vgpr 512
  .amdhsa_next_free_sgpr 102
  .amdhsa_accum_offset 256
  .amdhsa_group_segment_fixed_size 0
  .amdhsa_kernarg_size 128
  .amdhsa_user_sgpr_count 2
  .amdhsa_user_sgpr_kernarg_segment_ptr 1
  .amdhsa_system_sgpr_workgroup_id_x 1
  .amdhsa_float_denorm_mode_32 3
.end_amdhsa_kernel
"""
def text():
    prog = build()
    body = "\n".join(("" if i.cls == "label" else "    ") + i.text for i in prog)
    return HEADER.format(k=KNAME) + body + FOOTER.format(k=KNAME), prog

if __name__ == "__main__":
    out = sys.argv[1]
    for a in sys.argv[2:]:
        k, v = a.split("=")
        cur = getattr(opt, k)
        setattr(opt, k, v.replace("_", " ") if isinstance(cur, str) else (v in ("1", "True") if isinstance(cur, bool) else type(cur)(float(v))))
    t, prog = text()
    open(out, "w").write(t)
    print(stats(prog), len(prog))
    if opt.sim:
        em = EM[0]; prev = 0
        for j, (n, m) in enumerate(zip(stamp_names, em.marks)):
            big = sorted([x for x in em.stalls if x[1] == j], reverse=True)
            print(f"{n:12s} {m:7.0f} ({m-prev:5.0f}) stalls {sum(x[0] for x in big):5.0f} :", "; ".join(f"{x[0]:.0f} {x[2][:44]}" for x in big[:4]))
            prev = m
    if opt.stamps:
        import json
        json.dump(stamp_names, open(out + ".stamps.json", "w"))
```

```python
import sys, os
sys.path.insert(0, os.path.dirname(os.path.abspath(__file__)))
from asmlib import I, stats, insert_nops, Emitter

KNAME = "recurrent_scan__ssm_conv_s5__glu_gated_swiglu__prompt_kernel"

class Opt:
    fine = False
    splitx = False
    fine2 = False
    pk0 = True
    xhit = False
    chain = 0
    sim = False
    fakehit = ''
    delay = 0
    diag = False
    cycles = False
    skip = ''
    probe = ''
    stamps = False
    codepf = True
    krot = True
    prot = False
    pre0 = 120
    late0 = 0
    pflines = 12
    win = 8
    pre_norm = 1
    skew = False
    mstat = True
    t_x1 = False
    t_w13 = False
    b10 = 1
    rf_stage = 2
    slack = 22
    rl_pos = 0
    capU = 3
    capM = 5
    span = 5
    X_stage = 2
    L_stage = 5
    C_stage = 7
    Y_stage = 8
    H_stage = 11
    F_stage = 1
    W_stage = 4
    nearly = 12
    rl_nt = False
    out_flags = "sc1"
    x_flags = ""
    w_flags = ""
    p1map = 0
    p2map = 1
    p2pos = 2
    epos = 6
    afirst = True
    fin2 = True
    merge2 = False
    sflag = False
    sfl = 2
    shadow56 = True
    t56 = 2
    hhpos = 0
    hack = 91
    haend = 18
    hast = 14
    hald = 0
    thrs = 200
    hhld = 50
    hhck = 130
    every = 7
    every2 = 2
    a0 = 3
    thrb = 40
    cad = 3
    cadA = 6
    pace = 10.0
    burst = 100
    coldpace = 1.5
    vmcost = 4
    ybar = 17
    hchk = 4
    HL_stage = 13
    look = 2
    lookW = 6
    thr = 16
    dsmax = 3
    interp = True
    vlat = 14
    chainq = True
    dslat = 130
    even = True
    thrm = 100
    slot0 = 5
    earlyA = False
    roty = False
    latA = 640
    latW = 620
opt = Opt()

WS_A2 = 0
WS_W2P = 0xB00000
WS_S = 0xF00000
WS_STAT = 0xF40000
WS_FLW = 0xF50000
WS_FLH = 0xF51000
WS_FLHH = 0xF52000
WS_FLHA = 0xF54000
WS_SEED = 0xF53000
WS_STAMP = 0xF60000
WS_SIZE = 0x1000000
OOB = 0x40000000

L_RL = 102400
L_PRIV = 122880
PV_COL, PV_CH, PV_E = 0, 1280, 4352
L_TT = 155648
L_LB = 159744
L_WY = 0
L_P1 = 81920
L_P2 = 0

sX, sWU, sWM, sWS, sOUT, sRL, sDBG = 36, 40, 44, 48, 52, 56, 60
(sW, sC, sG, sRT, sN, sNONCE, sT0, sT1, sT2, sT3, sXOFF, sUOFF, sMOFF, sMOFFB, sRLOFF, sRLST,
 sA2H, sKSA, sKSB, sSST, sLB0, sLB1, sLB2, sLB3, sEX0, sEX1, sEX2, sEX3, sM0, sM0A, sCNT, sP2A, sP2W, sT4, sT5, sSTATO) = range(64, 100)
sSTAMP = 100
pX, pLRE, pLIM, pBRE, pBIM, pCRE, pCIM, pLDT = 4, 6, 8, 10, 12, 14, 16, 18
pDSK, pBX, pW1, pW3, pW2, pOUT, pDBG, pWS = 20, 22, 24, 26, 28, 30, 32, 34
sKU = [22, 23, 0, 1, 32]
sD0, sD1 = 4, 5
sRY, sRO = 6, 7
sAP, sAS, sAE, sWP, sWB, sWE = 8, 9, 10, 11, 12, 13
sM0U, sSEEDO = 18, 19
sD2 = 31
sRLT = 33
sHO = [24, 25, 26, 27, 30]

vLANE, vL16 = 1, 2
vRX = [3, 4]; vRU = [5, 6]
vRA = [7, 8]; vRB = 9; vHH = 10; vDU = 11; vW4 = 12
vD = [13, 14, 15, 16]
vXD = vD
vDB = [3, 4, 5, 6]; vRB2 = 11
BSLOT = {10: 4, 11: 5, 12: 2, 13: 3, 14: 0}
BISSUE = {2: (11, 7), 6: (12, 8), 7: (13, 9), 8: (14, 10)}
vUD = [11, 27, 28, 29]
vEW, vER, vCOLR, vCH, vTT, vLB, vTW, vTR, vHST, vSO = range(17, 27)
vWP0, vWP1, vFLAG, vNON = 27, 28, 29, 30
vT = list(range(32, 56))
def U(cf, f): return 56 + (cf * 2 + f) * 4
def X(f, s): return 96 + (f * 20 + s) * 4
def ACCA(mu, h2): return (mu * 2 + h2) * 16
def FB(par, fr): return 64 + par * 32 + fr * 4
def ACCB(mu, h2=0): return 128 + mu * 16
aRL = 160
aS = 180

def vr(n, c=4): return f"v[{n}:{n+c-1}]"
def ar(n, c=4): return f"a[{n}:{n+c-1}]"
def sr(n, c=4): return f"s[{n}:{n+c-1}]"

def lines_of(i):
    t = i.text
    if "ushort" in t: return 1
    if i.tok and i.tok[0] == "M" and int(i.tok[1:]) >= 10: return 16
    if i.tok == "RL": return 16
    if i.tok == "XR": return 11
    if " off," in t and "global" not in t: return 1
    if "dwordx2" in t: return 2
    if "load_dword " in t and "offen" in t: return 1 if "sc1" in t else 32
    if "global_load_dword" in t: return 0
    if "store_dword " in t: return 4 if "offen" in t else 1
    return 8
def lat_of(i):
    t = i.text; tok = i.tok or ""
    cold = 1500
    if "store" in t: return 820 if "sc1" in t else 330
    if tok.startswith("x"): return cold if tok in ("x0_0", "x0_1", "x1_0", "x1_1") else 800
    if tok.startswith("U"): return cold if tok == "U0" else 800
    if tok == "RL" or tok == "TW": return cold
    if tok.startswith("M"): return cold if (tok in ("M0", "M1", "M10") and not opt.t_w13) else 520
    if tok == "W" or tok.startswith("WL"): return opt.latW
    if tok == "A": return opt.latA
    if "sc1" in t: return 1000
    return 700
EM = [None]
CAP = [None]
def E(t, tok=None):
    i = I(t, tok)
    if CAP[0] is not None: CAP[0].append(i)
    else: EM[0].feed(i)
    return i
def L(lst):
    for t in lst:
        i = t if isinstance(t, I) else I(t)
        if CAP[0] is not None: CAP[0].append(i)
        else: EM[0].feed(i)
def atoms(lst):
    out = []; depth = 0
    for i in lst:
        glue = depth > 0 or i.op.startswith(("s_cselect", "s_addc", "s_subb", "v_cndmask", "v_addc")) or i.cls in ("branch", "label") or i.op in ("@arm", "@else", "@endarm")
        if out and glue: out[-1].append(i)
        else: out.append([i])
        if i.op == "@arm": depth += 1
        if i.op == "@endarm": depth -= 1
    return out
def II(lst): return [t if isinstance(t, I) else I(t) for t in lst]

def srd(d, p, nbytes):
    return [f"s_mov_b32 s{d}, s{p}", f"s_and_b32 s{d+1}, s{p+1}, 0xffff", f"s_mov_b32 s{d+2}, {nbytes}", f"s_mov_b32 s{d+3}, 0x20000"]

stamp_n = [0]
stamp_names = []
def stamp(name, cyc=False):
    if opt.probe:
        if name != opt.probe: return []
        return [f"s_memrealtime s[{sSTAMP}:{sSTAMP+1}]", "@waitds0", f"s_mov_b32 s3, s{sSTAMP}"]
    if not opt.stamps: return []
    k = stamp_n[0]; stamp_n[0] += 1
    stamp_names.append(name)
    return [f"s_memtime s[{sSTAMP}:{sSTAMP+1}]" if (cyc or opt.cycles) else f"s_memrealtime s[{sSTAMP}:{sSTAMP+1}]", "@waitds0",
            f"v_writelane_b32 v0, s{sSTAMP}, {k}"]

def cmul(dr, di, ar_, ai, br, bi, t):
    return [f"v_mul_f32 v{t}, v{ai}, v{bi}", f"v_mul_f32 v{di}, v{ai}, v{br}",
            f"v_fma_f32 v{dr}, v{ar_}, v{br}, -v{t}", f"v_fmac_f32 v{di}, v{ar_}, v{bi}"]
def csq(dr, di, r, i, t):
    return [f"v_mul_f32 v{t}, v{i}, v{i}", f"v_mul_f32 v{di}, v{r}, v{i}",
            f"v_fma_f32 v{dr}, v{r}, v{r}, -v{t}", f"v_add_f32 v{di}, v{di}, v{di}"]
def chorner2(dr, di, gr, gi, mr, mi, er, ei):
    return [f"v_fma_f32 v{dr}, v{mr}, v{gr}, v{er}", f"v_fma_f32 v{di}, v{mr}, v{gi}, v{ei}",
            f"v_fma_f32 v{dr}, -v{mi}, v{gi}, v{dr}", f"v_fma_f32 v{di}, v{mi}, v{gr}, v{di}"]

LOG2E = "0x3fb8aa3b"
NLOG2E = "0xbfb8aa3b"
INV2PI = "0.15915494"

def x_piece(n):
    f, S, ih = n // 20, (n % 20) // 2, n & 1
    p = n & 3
    r = []
    if p == 0:
        r = [f"s_add_u32 m0, s{sM0}, {f*81920 + (2*S)*1024}", f"s_add_u32 s{sD1}, s{sKU[S >> 1]}, s{sXOFF}"]
        if f: r.append(f"s_add_u32 s{sD1}, s{sD1}, {4*1280}")
    r.append(I(f"buffer_load_dwordx4 v{vXD[p]}, s[{sX}:{sX+3}], s{sD1} offen offset:{p*1024} {opt.x_flags} lds", tok=f"x{f}_{S}"))
    return r
def u_piece(i, cf):
    r = []
    if cf == 0: r = [f"s_add_u32 m0, s{sM0U}, {i*20480}", f"s_add_u32 s{sD1}, s{sKU[i]}, s{sUOFF}"]
    if cf == 4: r = [f"s_add_u32 m0, s{sM0U}, {i*20480 + 4096}", f"s_add_u32 s{sD1}, s{sD1}, {4*10240}"]
    r.append(I(f"buffer_load_dwordx4 v{vUD[cf & 3]}, s[{sWU}:{sWU+3}], s{sD1} offen offset:{(cf & 3)*1024} {opt.w_flags} lds", tok=f"U{i}"))
    return r
class Stream:
    def __init__(self): self.n = 0
    def next(self, k, limit=60):
        r = []
        for _ in range(k):
            if self.n >= limit: break
            r += x_piece(self.n) if self.n < 40 else u_piece((self.n - 40) // 5, (self.n - 40) % 5)
            self.n += 1
        return r
ST = Stream()

def prologue():
    E(f"s_cmp_ge_u32 s2, 256")
    E("s_cbranch_scc1 L_exit")
    E("s_load_dwordx16 s[4:19], s[0:1], 0")
    E("s_load_dwordx16 s[20:35], s[0:1], 64")
    if opt.stamps or opt.probe == "entry":
        E(f"s_{'memtime' if opt.cycles else 'memrealtime'} s[{sSTAMP}:{sSTAMP+1}]")
    if opt.codepf:
        n = opt.pflines
        L(["@raw_begin", f"s_getpc_b64 s[{sT2}:{sT3}]", "L_pc:",
           f"s_lshr_b32 s{sT4}, s2, 3", f"s_mul_i32 s{sT4}, s{sT4}, {n*128}",
           f"v_min_u32 v{vT[0]}, {n-1}, v0", f"v_lshlrev_b32 v{vT[0]}, 7, v{vT[0]}", f"v_add_u32 v{vT[0]}, s{sT4}, v{vT[0]}",
           f"v_min_u32 v{vT[0]}, L_codeend-L_pc-4, v{vT[0]}",
           f"v_mov_b32 v{vT[1]}, s{sT3}", f"v_add_co_u32 v{vT[0]}, vcc, s{sT2}, v{vT[0]}", f"v_cmp_gt_u32 s[{sEX0}:{sEX0+1}], {n}, v0", "s_nop 0",
           f"v_addc_co_u32 v{vT[1]}, vcc, 0, v{vT[1]}, vcc", f"s_and_b64 s[{sEX0}:{sEX0+1}], s[{sEX0}:{sEX0+1}], exec",
           "s_cbranch_scc0 L_nopf", f"s_mov_b64 exec, s[{sEX0}:{sEX0+1}]",
           f"global_load_dword a230, v[{vT[0]}:{vT[1]}], off", "s_mov_b64 exec, -1", "L_nopf:", "@raw_end"])
    E(f"v_lshrrev_b32 v{vT[0]}, 6, v0")
    E(f"v_and_b32 v{vLANE}, 63, v0")
    E(f"v_readfirstlane_b32 s{sW}, v{vT[0]}")
    E(f"v_lshlrev_b32 v{vL16}, 4, v{vLANE}")
    L([f"s_and_b32 s{sT0}, s2, 7", f"s_lshr_b32 s{sT1}, s2, 3"])
    if opt.p1map == 0:
        L([f"s_and_b32 s{sC}, s{sT0}, 1", f"s_lshl_b32 s{sC}, s{sC}, 3", f"s_and_b32 s{sT2}, s{sT1}, 7", f"s_add_u32 s{sC}, s{sC}, s{sT2}",
           f"s_lshr_b32 s{sG}, s{sT0}, 1", f"s_lshl_b32 s{sG}, s{sG}, 2", f"s_lshr_b32 s{sT2}, s{sT1}, 3", f"s_add_u32 s{sG}, s{sG}, s{sT2}"])
    else:
        L([f"s_and_b32 s{sC}, s{sT0}, 3", f"s_lshl_b32 s{sC}, s{sC}, 2", f"s_and_b32 s{sT2}, s{sT1}, 3", f"s_add_u32 s{sC}, s{sC}, s{sT2}",
           f"s_lshr_b32 s{sG}, s{sT0}, 2", f"s_lshl_b32 s{sG}, s{sG}, 3", f"s_lshr_b32 s{sT2}, s{sT1}, 2", f"s_add_u32 s{sG}, s{sG}, s{sT2}"])
    t0, t1, t2, t3 = vT[0:4]
    L([f"v_lshrrev_b32 v{t0}, 3, v{vLANE}", f"v_and_b32 v{t1}, 7, v{vLANE}", f"v_and_b32 v{t2}, 6, v{t0}",
       f"v_xor_b32 v{t1}, v{t1}, v{t2}", f"v_lshlrev_b32 v{t1}, 4, v{t1}",
       f"v_and_b32 v{t2}, 4, v{t0}", f"v_add_u32 v{t2}, v{t2}, v{t0}",
       f"v_mul_u32_u24 v{vD[0]}, 1280, v{t2}", f"v_add_u32 v{vD[0]}, v{vD[0]}, v{t1}",
       f"v_mul_u32_u24 v{vDU}, 1280, v{t0}", f"v_add_u32 v{vDU}, v{vDU}, v{t1}",
       f"v_add_u32 v{vD[0]}, 4096, v{vD[0]}", f"v_add_u32 v{vD[1]}, {16*1280 - 1024}, v{vD[0]}",
       f"v_add_u32 v{vD[2]}, {128 - 2048}, v{vD[0]}", f"v_add_u32 v{vD[3]}, {16*1280 + 128 - 3072}, v{vD[0]}"])
    L([f"s_mul_i32 s{sT2}, s{sG}, 80", f"v_min_u32 v{t3}, 39, v{vLANE}", f"v_lshlrev_b32 v{t3}, 1, v{t3}", f"v_add_u32 v{t3}, s{sT2}, v{t3}"])
    L([f"s_lshl_b32 s{sXOFF}, s{sC}, 2", f"s_add_u32 s{sXOFF}, s{sXOFF}, s{sW}", f"s_mul_i32 s{sXOFF}, s{sXOFF}, {0 if opt.xhit else 32*1280}",
       f"s_mul_i32 s{sM0}, s{sW}, 20480"])
    if opt.krot:
        L([f"s_add_u32 s{sT4}, s{sC}, s{sG}", f"s_mul_i32 s{sT5}, s{sT4}, 52", f"s_lshr_b32 s{sT5}, s{sT5}, 8", f"s_mul_i32 s{sT5}, s{sT5}, 5",
           f"s_sub_u32 s{sT4}, s{sT4}, s{sT5}", f"s_lshl_b32 s{sT4}, s{sT4}, 8"])
    else:
        E(f"s_mov_b32 s{sT4}, 0")
    E("@waitds0")
    if opt.probe == "entry": E(f"s_mov_b32 s3, s{sSTAMP}")
    if opt.stamps:
        E(f"v_mov_b32 v0, 0")
        E(f"v_writelane_b32 v0, s{sSTAMP}, 0"); stamp_n[0] = 1; stamp_names.append("entry")
    if opt.chain:
        L([f"s_mul_i32 s{sT2}, s2, {60*128}", f"s_add_u32 s{sT2}, s{pW2}, s{sT2}", f"s_addc_u32 s{sT3}, s{pW2+1}, 0", f"v_mov_b32 v{vT[8]}, 0"])
        for k in range(opt.chain):
            L([f"global_load_dword v{vT[9]}, v{vT[8]}, s[{sT2}:{sT3}]", "@waitvm0", f"v_add_u32 v{vT[8]}, 128, v{vT[8]}"])
    E(f"global_load_ushort v{vT[4]}, v{t3}, s[{pLRE}:{pLRE+1}]")
    E(f"global_load_ushort v{vT[5]}, v{t3}, s[{pLIM}:{pLIM+1}]")
    E(f"global_load_ushort v{vT[6]}, v{t3}, s[{pLDT}:{pLDT+1}]")
    L([f"s_sub_u32 s{sX}, s{pX}, 4096", f"s_subb_u32 s{sX+1}, s{pX+1}, 0", f"s_and_b32 s{sX+1}, s{sX+1}, 0xffff",
       f"s_mov_b32 s{sX+2}, {2048*1280 + 4096}", f"s_mov_b32 s{sX+3}, 0x20000"])
    L(srd(sDBG, pDBG, 256))
    def ku(j): return [f"s_add_u32 s{sKU[j]}, s{sT4}, {j*256}", f"s_cmp_ge_u32 s{sKU[j]}, 1280", f"s_cselect_b32 s{sT5}, 1280, 0", f"s_sub_u32 s{sKU[j]}, s{sKU[j]}, s{sT5}"]
    L(ku(0)); L(ST.next(4))
    L(srd(sWS, pWS, WS_SIZE))
    L([f"s_or_b32 s{sT2}, s2, s{sW}", f"s_cmp_eq_u32 s{sT2}, 0", f"s_mov_b32 s{sT3}, {WS_SEED}", f"s_cselect_b32 s{sSEEDO}, s{sT3}, {OOB}"])
    E(f"buffer_load_dword v{vT[7]}, off, s[{sWS}:{sWS+3}], s{sSEEDO} sc1")
    L(ku(1)); L(ST.next(opt.win - 4))
    for j in range(2, 5): L(ku(j))
    i_, q_, a0, a1 = vT[8:12]
    L([f"v_and_b32 v{i_}, 15, v{vLANE}", f"v_lshrrev_b32 v{q_}, 4, v{vLANE}",
       f"v_and_b32 v{a0}, 7, v{i_}", f"v_and_b32 v{a1}, 6, v{i_}", f"v_xor_b32 v{a1}, v{a1}, v{q_}", f"v_lshlrev_b32 v{a1}, 4, v{a1}",
       f"v_lshl_add_u32 v{a1}, v{a0}, 7, v{a1}",
       f"v_lshrrev_b32 v{a0}, 3, v{i_}",
       f"v_mul_u32_u24 v{vRU[0]}, 5120, v{a0}", f"v_add_u32 v{vRU[0]}, v{vRU[0]}, v{a1}", f"v_xor_b32 v{vRU[1]}, 64, v{vRU[0]}",
       f"v_lshl_add_u32 v{vRX[0]}, v{a0}, 10, v{a1}", f"v_add_u32 v{vRX[0]}, s{sM0}, v{vRX[0]}", f"v_xor_b32 v{vRX[1]}, 64, v{vRX[0]}",
       f"v_add_u32 v{vW4}, 4096, v{vL16}", f"v_mov_b32 v{vONES}, 0x3f803f80"])
    L([f"v_accvgpr_write_b32 a{aONE+k}, v{vONES}" for k in range(4)])
    L([f"v_add_u32 v{vUD[p]}, {p*(10240 - 1024)}, v{vDU}" for p in range(1, 4)])

def setup_rest():
    t0 = vT[0]
    L([f"s_bitcmp1_b32 s{sW}, 0",
       f"s_cselect_b32 s{sWU}, s{pBIM}, s{pBRE}", f"s_cselect_b32 s{sWU+1}, s{pBIM+1}, s{pBRE+1}",
       f"s_cselect_b32 s{sWM}, s{pW3}, s{pW1}", f"s_cselect_b32 s{sWM+1}, s{pW3+1}, s{pW1+1}",
       f"s_and_b32 s{sWU+1}, s{sWU+1}, 0xffff", f"s_and_b32 s{sWM+1}, s{sWM+1}, 0xffff",
       f"s_mov_b32 s{sWU+2}, {640*1280}", f"s_mov_b32 s{sWU+3}, 0x20000",
       f"s_mov_b32 s{sWM+2}, {640*3072}", f"s_mov_b32 s{sWM+3}, 0x20000"])
    L(srd(sOUT, pOUT, 2048*2560))
    if opt.p2map == 0:
        L([f"s_lshl_b32 s{sRT}, s{sT0}, 2", f"s_and_b32 s{sT2}, s{sT1}, 3", f"s_add_u32 s{sRT}, s{sRT}, s{sT2}", f"s_lshr_b32 s{sN}, s{sT1}, 2"])
    else:
        L([f"s_and_b32 s{sRT}, s{sT0}, 3", f"s_lshl_b32 s{sRT}, s{sRT}, 3", f"s_and_b32 s{sT2}, s{sT1}, 7", f"s_add_u32 s{sRT}, s{sRT}, s{sT2}",
           f"s_lshr_b32 s{sN}, s{sT0}, 2", f"s_lshl_b32 s{sN}, s{sN}, 2", f"s_lshr_b32 s{sT2}, s{sT1}, 3", f"s_add_u32 s{sN}, s{sN}, s{sT2}"])
    L([f"s_mul_i32 s{sUOFF}, s{sG}, {40*1280}", f"s_lshr_b32 s{sT2}, s{sW}, 1", f"s_lshl_b32 s{sT2}, s{sT2}, 7", f"s_add_u32 s{sUOFF}, s{sUOFF}, s{sT2}",
       f"s_mul_i32 s{sM0U}, s{sW}, 5120"])
    L([f"s_mul_i32 s{sT2}, s{sG}, 192", f"s_bitcmp1_b32 s{sG}, 0",
       f"s_cselect_b32 s{sT3}, 64, 0", f"s_cselect_b32 s{sT4}, 0, 128", f"s_add_u32 s{sMOFF}, s{sT2}, s{sT3}", f"s_add_u32 s{sMOFFB}, s{sT2}, s{sT4}",
       f"s_lshr_b32 s{sT2}, s{sW}, 1",
       f"s_mul_i32 s{sT3}, s{sT2}, {32*3072}", f"s_add_u32 s{sMOFF}, s{sMOFF}, s{sT3}",
       f"s_mul_i32 s{sT3}, s{sT2}, {64*3072}", f"s_add_u32 s{sMOFFB}, s{sMOFFB}, s{sT3}",
       f"s_lshl_b32 s{sM0A}, s{sW}, 12"])
    L([f"s_lshl_b32 s{sT3}, s{sC}, 1", f"s_add_u32 s{sT3}, s{sT3}, s{sT2}", f"s_mul_i32 s{sA2H}, s{sT3}, {88*4096}",
       f"s_and_b32 s{sT3}, s{sW}, 1", f"s_lshl_b32 s{sT3}, s{sT3}, 11", f"s_add_u32 s{sA2H}, s{sA2H}, s{sT3}",
       f"s_mul_i32 s{sT3}, s{sG}, 3", f"s_add_u32 s{sT3}, s{sT3}, 40", f"s_and_b32 s{sT4}, s{sG}, 1",
       f"s_add_u32 s{sKSA}, s{sT3}, s{sT4}", f"s_lshl_b32 s{sKSA}, s{sKSA}, 12", f"s_add_u32 s{sKSA}, s{sKSA}, s{sA2H}",
       f"s_xor_b32 s{sT4}, s{sT4}, 1", f"s_lshl_b32 s{sT4}, s{sT4}, 1",
       f"s_add_u32 s{sKSB}, s{sT3}, s{sT4}", f"s_lshl_b32 s{sKSB}, s{sKSB}, 12", f"s_add_u32 s{sKSB}, s{sKSB}, s{sA2H}"])
    L([f"s_lshl_b32 s{sT3}, s{sG}, 4", f"s_add_u32 s{sT4}, s{sT3}, s{sC}", f"s_mul_i32 s{sT4}, s{sT4}, 640", f"s_add_u32 s{sT4}, s{sT4}, {WS_S}",
       f"s_cmp_eq_u32 s{sW}, 3", f"s_cselect_b32 s{sSST}, s{sT4}, {OOB}"])
    for jj, sl in enumerate((sLB0, sLB1, sLB2, sLB3)):
        L([f"s_lshl_b32 s{sT4}, s{sW}, 2", f"s_add_u32 s{sT4}, s{sT4}, s{sC}", f"s_add_i32 s{sT4}, s{sT4}, {jj-16}",
           f"s_add_u32 s{sT5}, s{sT3}, s{sT4}", f"s_mul_i32 s{sT5}, s{sT5}, 640", f"s_add_u32 s{sT5}, s{sT5}, {WS_S}",
           f"s_cmp_ge_i32 s{sT4}, 0", f"s_cselect_b32 s{sl}, s{sT5}, {OOB}"])
    L([f"s_lshl_b32 s{sT3}, s{sC}, 2", f"s_add_u32 s{sT3}, s{sT3}, s{sW}", f"s_lshl_b32 s{sT3}, s{sT3}, 8", f"s_add_u32 s{sT3}, s{sT3}, {WS_STAT}",
       f"s_cmp_eq_u32 s{sG}, 0", f"s_cselect_b32 s{sSTATO}, s{sT3}, {OOB}"])
    for cf in range(5):
        L([f"s_mul_i32 s{sT2}, s{sG}, 5", f"s_add_u32 s{sT2}, s{sT2}, {cf}", f"s_and_b32 s{sT4}, s{sT2}, 3", f"s_lshr_b32 s{sT2}, s{sT2}, 2",
           f"s_lshl_b32 s{sT2}, s{sT2}, 12", f"s_lshl_b32 s{sT4}, s{sT4}, 8", f"s_add_u32 s{sT2}, s{sT2}, s{sT4}", f"s_add_u32 s{sHO[cf]}, s{sT2}, s{sA2H}"])
    L([f"s_mul_i32 s{sP2A}, s{sRT}, {88*4096}", f"s_mul_i32 s{sP2W}, s{sN}, {88*5120}", f"s_add_u32 s{sP2W}, s{sP2W}, {WS_W2P}"])
    if "A" in opt.fakehit: E(f"s_mov_b32 s{sP2A}, 0")
    if "W" in opt.fakehit: E(f"s_mov_b32 s{sP2W}, {WS_W2P}")
    L(ptr_bases())

cAR, cAI, cKR, cKI = 56, 57, 58, 59
cA8, cA32, cA32W, cA128, cOM = 60, 62, 64, 66, 68
def constants():
    lre, lim, ldt = vT[4], vT[5], vT[6]
    t = list(range(72, 96))
    L([f"v_lshlrev_b32 v{lre}, 16, v{lre}", f"v_lshlrev_b32 v{lim}, 16, v{lim}", f"v_lshlrev_b32 v{ldt}, 16, v{ldt}",
       f"v_mul_f32 v{t[0]}, {LOG2E}, v{ldt}", f"v_exp_f32 v{t[0]}, v{t[0]}",
       f"v_cvt_pk_bf16_f32 v{t[0]}, v{t[0]}, v{t[0]}", f"v_lshlrev_b32 v{t[0]}, 16, v{t[0]}",
       f"v_mul_f32 v{t[1]}, v{t[0]}, v{lre}", f"v_mul_f32 v{t[2]}, v{t[0]}, v{lim}",
       f"v_mul_f32 v{t[1]}, {LOG2E}, v{t[1]}", f"v_exp_f32 v{t[1]}, v{t[1]}",
       f"v_mul_f32 v{t[2]}, {INV2PI}, v{t[2]}", f"v_rndne_f32 v{t[3]}, v{t[2]}", f"v_sub_f32 v{t[2]}, v{t[2]}, v{t[3]}",
       f"v_cos_f32 v{t[3]}, v{t[2]}", f"v_sin_f32 v{t[4]}, v{t[2]}",
       f"v_mul_f32 v{cAR}, v{t[1]}, v{t[3]}", f"v_mul_f32 v{cAI}, v{t[1]}, v{t[4]}",
       f"v_add_f32 v{t[3]}, -1.0, v{cAR}",
       f"v_mul_f32 v{t[5]}, v{lre}, v{lre}", f"v_fmac_f32 v{t[5]}, v{lim}, v{lim}", f"v_rcp_f32 v{t[5]}, v{t[5]}",
       f"v_mul_f32 v{t[6]}, v{t[3]}, v{lre}", f"v_fmac_f32 v{t[6]}, v{cAI}, v{lim}",
       f"v_mul_f32 v{t[7]}, v{cAI}, v{lre}", f"v_fma_f32 v{t[7]}, -v{t[3]}, v{lim}, v{t[7]}",
       f"v_add_f32 v{t[5]}, v{t[5]}, v{t[5]}",
       f"v_mul_f32 v{cKR}, v{t[6]}, v{t[5]}", f"v_mul_f32 v{cKI}, v{t[7]}, v{t[5]}"])
    r, i, tt = t[8], t[9], t[0]
    L([f"v_mov_b32 v{r}, v{cAR}", f"v_sub_f32 v{i}, 0, v{cAI}"])
    L(csq(t[10], t[11], r, i, tt)); L(csq(r, i, t[10], t[11], tt))
    L(csq(cA8, cA8+1, r, i, tt))
    L(csq(r, i, cA8, cA8+1, tt))
    L(csq(cA32, cA32+1, r, i, tt))
    L(csq(t[12], t[13], cA32, cA32+1, tt))
    L(csq(cA128, cA128+1, t[12], t[13], tt))
    L(csq(r, i, cA128, cA128+1, tt))
    L(csq(t[14], t[15], r, i, tt))
    L(csq(t[16], t[17], t[14], t[15], tt))
    def sel(dst, src, mask, on):
        if on:
            return [f"v_cndmask_b32 v{dst}, 1.0, v{src}, s[{mask}:{mask+1}]", f"v_cndmask_b32 v{dst+1}, 0, v{src+1}, s[{mask}:{mask+1}]"]
        return [f"v_mov_b32 v{t[22]}, 1.0", f"v_mov_b32 v{t[23]}, 0",
                f"v_cndmask_b32 v{dst}, v{src}, v{t[22]}, s[{mask}:{mask+1}]", f"v_cndmask_b32 v{dst+1}, v{src+1}, v{t[23]}, s[{mask}:{mask+1}]"]
    L([f"s_bitcmp1_b32 s{sW}, 0", f"s_cselect_b64 s[{sEX0}:{sEX0+1}], -1, 0", f"s_bitcmp1_b32 s{sW}, 1", f"s_cselect_b64 s[{sEX2}:{sEX2+1}], -1, 0"])
    L(sel(t[18], cA32, sEX0, True)); L(sel(t[20], t[12], sEX2, True))
    L(cmul(cA32W, cA32W+1, t[18], t[19], t[20], t[21], tt))
    L(sel(t[18], t[14], sEX0, False)); L(sel(t[20], t[16], sEX2, False))
    L(cmul(cOM, cOM+1, t[18], t[19], t[20], t[21], tt))

def nonce_seed():
    sd = vT[7]
    L([f"s_mov_b32 s{sT2}, 1664525", f"v_mul_lo_u32 v{sd}, v{sd}, s{sT2}", f"v_add_u32 v{vNON}, 1013904223, v{sd}", f"v_mov_b32 v{vNON+1}, 1"])
    E(f"buffer_store_dword v{vNON}, off, s[{sWS}:{sWS+3}], s{sSEEDO} sc1", tok="seed")
def nonce_publish():
    return [f"s_cmp_lt_u32 s{sSEEDO}, {OOB}", f"s_cselect_b32 s{sT5}, 0, {OOB}", "@waitvm seed",
            f"buffer_store_dwordx2 v[{vNON}:{vNON+1}], off, s[{sDBG}:{sDBG+3}], s{sT5} sc1"]

lab = [0]
def poll(load_text, check):
    lab[0] += 1
    n = lab[0]
    r = list(check)
    r += [f"s_cbranch_vccz L_ok{n}", "@raw_begin", f"s_mov_b32 s{sCNT}, {0x4000 if opt.diag else 0x40000}", f"L_rt{n}:", "s_sleep 1"]
    r += [t.text if isinstance(t, I) else t for t in load_text]
    r += ["s_waitcnt vmcnt(0)", "s_nop 1"] + list(check) + [f"s_cbranch_vccz L_ok{n}", f"s_sub_u32 s{sCNT}, s{sCNT}, 1",
          f"s_cmp_lg_u32 s{sCNT}, 0", f"s_cbranch_scc1 L_rt{n}"]
    if opt.diag: r += [f"buffer_store_dword v{vLANE}, off, s[{sDBG}:{sDBG+3}], 0 offset:{32+4*n} sc1", "s_waitcnt vmcnt(0)"]
    r += ["s_nop 7", "@raw_end", f"L_ok{n}:"]
    return r
def nonce_load():
    return [f"buffer_load_dwordx2 v[{vNON}:{vNON+1}], off, s[{sDBG}:{sDBG+3}], 0 sc1"]
def nonce_get():
    return poll(nonce_load(), [f"v_cmp_ne_u32 vcc, 1, v{vNON+1}"]) + [f"v_readfirstlane_b32 s{sNONCE}, v{vNON}"]

sS0, sS1, sQ0, sQ1 = vT[8], vT[9], vT[10], vT[11]
vR = [vT[12], vT[14]]; vNB = [vT[13], vT[15]]
vM = [vT[16], vT[17]]
vONES = vT[18]
def x_arrive(f, filler=None, limit=60):
    fa = atoms(II(filler or []))
    tot = sum(len(a) for a in fa); chunks = [[] for _ in range(10)]; acc = 0
    for a in fa:
        chunks[min(9, acc * 10 // max(tot, 1))] += a; acc += len(a)
    if not opt.mstat: L([f"v_mov_b32 v{sS0}, 0", f"v_mov_b32 v{sS1}, 0", f"v_mov_b32 v{sQ0}, 0", f"v_mov_b32 v{sQ1}, 0"])
    def st(s):
        r = []
        if opt.mstat:
            c0 = "0" if s == 0 else ar(aSS); c1 = "0" if s == 0 else ar(aSQ)
            return [f"v_mfma_f32_16x16x32_bf16 {ar(aSS)}, {ar(aONE)}, {vr(X(f, s))}, {c0}",
                    f"v_mfma_f32_16x16x32_bf16 {ar(aSQ)}, {vr(X(f, s))}, {vr(X(f, s))}, {c1}"]
        for k in range(4):
            x = X(f, s) + k
            r += [f"v_dot2_f32_bf16 v{(sS0, sS1)[k&1]}, v{x}, v{vONES}, v{(sS0, sS1)[k&1]}",
                  f"v_dot2_f32_bf16 v{(sQ0, sQ1)[k&1]}, v{x}, v{x}, v{(sQ0, sQ1)[k&1]}"]
        return r
    for S in range(10):
        E(f"@waitvm x{f}_{S}")
        for sh in range(2):
            E(f"ds_read_b128 {vr(X(f, 2*S+sh))}, v{vRX[sh]} offset:{S*2048}", tok=f"xr{f}_{2*S+sh}")
        fl = chunks[S]
        L(ST.next(2 if ST.n % 2 == 0 or True else 1, limit))
        if S > 0:
            E(f"@waitds xr{f}_{2*S-1}")
            L(st(2*S-2)); L(st(2*S-1))
        L(fl)
    E("@waitds0")
    return st(18) + st(19)

aONE, aSS, aSQ = 216, 220, 224
def x_stats(f):
    a, b = vT[19], vT[20]
    r = [f"v_add_f32 v{sS0}, v{sS0}, v{sS1}", f"v_add_f32 v{sQ0}, v{sQ0}, v{sQ1}"]
    if opt.mstat:
        t = vT[8:12]
        r = [f"v_and_b32 v{a}, 15, v{vLANE}", f"v_lshrrev_b32 v{b}, 2, v{a}", f"v_lshl_add_u32 v{b}, v{b}, 4, v{a}", f"v_lshlrev_b32 v{b}, 2, v{b}",
             f"v_and_b32 v{a}, 3, v{vLANE}", f"v_cmp_eq_u32 s[{sEX0}:{sEX0+1}], 1, v{a}", f"v_cmp_eq_u32 s[{sEX2}:{sEX2+1}], 2, v{a}", f"v_cmp_eq_u32 vcc, 3, v{a}"]
        r += [f"v_accvgpr_read_b32 v{t[k]}, a{aSQ+k}" for k in range(4)]
        r += [f"v_cndmask_b32 v{t[0]}, v{t[0]}, v{t[1]}, s[{sEX0}:{sEX0+1}]", f"v_cndmask_b32 v{t[2]}, v{t[2]}, v{t[3]}, vcc",
              f"v_cndmask_b32 v{t[0]}, v{t[0]}, v{t[2]}, s[{sEX2}:{sEX2+1}]", f"v_cndmask_b32 v{t[0]}, v{t[0]}, v{t[2]}, vcc",
              f"ds_bpermute_b32 v{sQ0}, v{b}, v{t[0]}", f"v_accvgpr_read_b32 v{sS0}, a{aSS}"]
    for perm in (() if opt.mstat else ("v_permlane16_swap_b32", "v_permlane32_swap_b32")):
        r += [f"v_mov_b32 v{a}, v{sS0}", f"v_mov_b32 v{b}, v{sQ0}", f"{perm} v{a}, v{sS0}", f"{perm} v{b}, v{sQ0}",
              f"v_add_f32 v{sS0}, v{sS0}, v{a}", f"v_add_f32 v{sQ0}, v{sQ0}, v{b}"]
    inv = "0x3acccccd"
    r += [f"v_mul_f32 v{sS0}, {inv}, v{sS0}", f"v_mul_f32 v{sQ0}, {inv}, v{sQ0}",
          f"v_fma_f32 v{sQ0}, -v{sS0}, v{sS0}, v{sQ0}", f"v_max_f32 v{sQ0}, 0, v{sQ0}",
          f"v_cvt_pk_bf16_f32 v{a}, v{sS0}, v{sQ0}",
          f"v_lshlrev_b32 v{vM[f]}, 16, v{a}", f"v_and_b32 v{b}, 0xffff0000, v{a}",
          f"v_add_f32 v{b}, 0x3727c5ac, v{b}",
          f"v_cvt_pk_bf16_f32 v{b}, v{b}, v{b}", f"v_and_b32 v{b}, 0xffff0000, v{b}",
          f"v_sqrt_f32 v{b}, v{b}", f"v_cvt_pk_bf16_f32 v{b}, v{b}, v{b}", f"v_and_b32 v{b}, 0xffff0000, v{b}",
          f"v_rcp_f32 v{vR[f]}, v{b}", f"v_mul_f32 v{vNB[f]}, v{vM[f]}, v{vR[f]}", f"v_sub_f32 v{vNB[f]}, 0, v{vNB[f]}"]
    return r

def norm_step(f, s, packed, tmp):
    r = []
    for k in range(4):
        x = X(f, s) + k
        t = tmp[(k & 1) * 2]
        if packed:
            r += [f"v_lshlrev_b32 v{t}, 16, v{x}", f"v_and_b32 v{t+1}, 0xffff0000, v{x}",
                  f"v_pk_fma_f32 v[{t}:{t+1}], v[{t}:{t+1}], v[{vR[f]}:{vR[f]+1}], v[{vR[f]}:{vR[f]+1}] op_sel:[0,0,1] op_sel_hi:[1,0,1]",
                  f"v_cvt_pk_bf16_f32 v{x}, v{t}, v{t+1}"]
        else:
            r += [f"v_lshlrev_b32 v{t}, 16, v{x}", f"v_and_b32 v{t+1}, 0xffff0000, v{x}",
                  f"v_fma_f32 v{t}, v{t}, v{vR[f]}, v{vNB[f]}", f"v_fma_f32 v{t+1}, v{t+1}, v{vR[f]}, v{vNB[f]}",
                  f"v_cvt_pk_bf16_f32 v{x}, v{t}, v{t+1}"]
    return r

def stats_store():
    a, b = vT[0], vT[1]
    r = [f"v_and_b32 v{a}, 12, v{vLANE}", f"v_add_u32 v{a}, v{a}, v{vLANE}", f"v_lshlrev_b32 v{a}, 3, v{a}",
         f"v_mov_b32 v{b}, {OOB}", f"v_cmp_gt_u32 vcc, 16, v{vLANE}", f"v_cndmask_b32 v{a}, v{b}, v{a}, vcc"]
    for f in range(2):
        r.append(I(f"buffer_store_dwordx2 v[{vR[f]}:{vR[f]+1}], v{a}, s[{sWS}:{sWS+3}], s{sSTATO} offen offset:{32*f} sc1", tok="stat"))
    return r

def mlp_dma_addr(kind):
    vD = vDB if kind == "B" else globals()["vD"]
    t0, t1, t2 = vD[1], vD[2], vD[3]
    if kind == "A":
        r = [f"v_lshrrev_b32 v{t0}, 3, v{vLANE}", f"v_and_b32 v{t1}, 7, v{vLANE}", f"v_and_b32 v{t2}, 2, v{t0}", f"v_lshlrev_b32 v{t2}, 1, v{t2}",
             f"v_xor_b32 v{t1}, v{t1}, v{t2}", f"v_lshlrev_b32 v{t1}, 4, v{t1}",
             f"v_mul_u32_u24 v{t0}, 3072, v{t0}", f"v_add_u32 v{vD[0]}, v{t0}, v{t1}"]
        rows = 8
    else:
        r = [f"v_lshrrev_b32 v{t0}, 2, v{vLANE}", f"v_and_b32 v{t1}, 3, v{vLANE}", f"v_lshlrev_b32 v{t1}, 4, v{t1}",
             f"v_mul_u32_u24 v{t0}, 3072, v{t0}", f"v_add_u32 v{vD[0]}, v{t0}, v{t1}"]
        rows = 16
    for p in range(1, 4):
        r.append(f"v_add_u32 v{vD[p]}, {p*(rows*3072 - 1024)}, v{vD[0]}")
    if kind == "B": r.append(f"v_add_u32 v{vRB2}, 0x10000, v{vRB}")
    return r

def dma_M(m):
    slot = m % 4 if m < 10 else BSLOT[m]
    vD = globals()["vD"] if m < 10 else vDB
    if m < 10:
        so = [f"s_mul_i32 s{sD0}, s{sKU[m >> 1]}, 1536", f"s_add_u32 s{sD0}, s{sD0}, s{sMOFF}"]
        if m & 1: so.append(f"s_add_u32 s{sD0}, s{sD0}, {64*3072}")
    else:
        so = [f"s_mul_i32 s{sD0}, s{sKU[m - 10]}, 1536", f"s_add_u32 s{sD0}, s{sD0}, s{sMOFFB}"]
    if m >= 10:
        r = []
        for p in range(4):
            r += [f"s_add_u32 m0, s{sM0A}, {slot*16384}"] + ([t.replace(f"s{sD0}", f"s{sD2}") for t in so] if p == 0 else [f"s_add_u32 s{sD2}, s{sD2}, {0}"] if False else [])
            r.append(I(f"buffer_load_dwordx4 v{vD[p]}, s[{sWM}:{sWM+3}], s{sD2} offen offset:{p*1024} {opt.w_flags} lds", tok=f"M{m}"))
        return r
    r = [f"s_add_u32 m0, s{sM0A}, {slot*16384}"] + so
    for p in range(4):
        r.append(I(f"buffer_load_dwordx4 v{vD[p]}, s[{sWM}:{sWM+3}], s{sD0} offen offset:{p*1024} {opt.w_flags} lds", tok=f"M{m}"))
    return r

def w13_touch_addr():
    a, b = vT[5], vT[6]
    return [f"v_lshrrev_b32 v{a}, 1, v{vLANE}", f"v_mul_u32_u24 v{a}, 3072, v{a}", f"v_and_b32 v{b}, 1, v{vLANE}", f"v_lshl_add_u32 v{a}, v{b}, 7, v{a}",
            f"v_accvgpr_write_b32 a238, v{a}", f"v_mov_b32 v{b}, {OOB}", f"v_cmp_gt_u32 vcc, 16, v{vLANE}", f"v_cndmask_b32 v{a}, v{b}, v{a}, vcc",
            f"v_accvgpr_write_b32 a239, v{a}",
            f"s_and_b32 s{sT2}, s{sC}, 7", f"s_lshl_b32 s{sT2}, s{sT2}, 1", f"s_lshr_b32 s{sT3}, s{sW}, 1", f"s_add_u32 s{sT2}, s{sT2}, s{sT3}",
            f"s_mul_i32 s{sT2}, s{sT2}, {40*3072}", f"s_mul_i32 s{sT3}, s{sG}, 192", f"s_and_b32 s{sT3}, s{sT3}, 0xffffff80", f"s_add_u32 s{sD2}, s{sT2}, s{sT3}"]
def w13_touch():
    a = I(f"buffer_load_dword a228, v{vFLAG}, s[{sWM}:{sWM+3}], s{sD2} offen", tok="TW"); a.lines = 64
    b = I(f"buffer_load_dword a228, v{vFLAG}, s[{sWM}:{sWM+3}], s{sD2} offen", tok="TW"); b.lines = 16
    return [[f"v_accvgpr_read_b32 v{vFLAG}, a238", a], [f"v_accvgpr_read_b32 v{vFLAG}, a239", f"s_add_u32 s{sD2}, s{sD2}, {32*3072}", b]]

def delay(tag, mod, val, ticks):
    if not opt.delay: return []
    return ["@raw_begin", f"s_and_b32 s{sD0}, s2, {mod}", f"s_cmp_eq_u32 s{sD0}, {val}", f"s_cbranch_scc0 L_dl{tag}",
            f"s_memrealtime s[{sSTAMP}:{sSTAMP+1}]", "s_waitcnt lgkmcnt(0)", f"s_mov_b32 s{sD1}, s{sSTAMP}", f"L_dw{tag}:",
            f"s_memrealtime s[{sSTAMP}:{sSTAMP+1}]", "s_waitcnt lgkmcnt(0)", f"s_sub_u32 s{sD0}, s{sSTAMP}, s{sD1}",
            f"s_cmp_lt_u32 s{sD0}, {ticks*opt.delay}", f"s_cbranch_scc1 L_dw{tag}", f"L_dl{tag}:", "@raw_end"]

def skew(tag):
    if not opt.skew: return []
    return [f"s_bitcmp1_b32 s{sW}, 0", f"s_cbranch_scc1 L_sk{tag}a", "s_nop 0", f"L_sk{tag}a:", f"s_bitcmp1_b32 s{sW}, 1", f"s_cbranch_scc1 L_sk{tag}b", "s_nop 1", f"L_sk{tag}b:"]

def mlp_read_addr():
    G, r_, c, t, u = vT[19], vT[20], vT[21], vT[22], vT[23]
    return [f"v_lshrrev_b32 v{G}, 4, v{vLANE}", f"v_bfe_u32 v{r_}, v{vLANE}, 2, 2", f"v_and_b32 v{c}, 3, v{vLANE}",
         f"v_lshrrev_b32 v{t}, 1, v{G}", f"v_lshlrev_b32 v{t}, 11, v{t}", f"v_lshl_add_u32 v{t}, v{r_}, 7, v{t}",
         f"v_and_b32 v{u}, 1, v{c}", f"v_lshl_add_u32 v{t}, v{u}, 3, v{t}",
         f"v_and_b32 v{u}, 1, v{G}", f"v_lshlrev_b32 v{u}, 1, v{u}", f"v_lshrrev_b32 v{vRA[1]}, 1, v{c}", f"v_add_u32 v{u}, v{u}, v{vRA[1]}",
         f"v_lshrrev_b32 v{vRA[1]}, 1, v{r_}", f"v_lshlrev_b32 v{vRA[1]}, 2, v{vRA[1]}", f"v_xor_b32 v{u}, v{u}, v{vRA[1]}",
         f"v_lshl_add_u32 v{vRA[0]}, v{u}, 4, v{t}", f"v_xor_b32 v{vRA[1]}, 64, v{vRA[0]}",
         f"v_lshrrev_b32 v{t}, 1, v{G}", f"v_lshlrev_b32 v{t}, 10, v{t}", f"v_lshl_add_u32 v{t}, v{r_}, 6, v{t}",
         f"v_and_b32 v{u}, 1, v{G}", f"v_lshl_add_u32 v{t}, v{u}, 5, v{t}", f"v_lshl_add_u32 v{vRB}, v{c}, 3, v{t}",
         f"v_lshlrev_b32 v{u}, 10, v{u}", f"v_lshrrev_b32 v{t}, 1, v{G}", f"v_lshl_add_u32 v{u}, v{t}, 8, v{u}",
         f"v_and_b32 v{t}, 15, v{vLANE}", f"v_lshl_add_u32 v{vHH}, v{t}, 4, v{u}"]

def relayout_issue():
    u, t0, t1, t2 = sT2, vT[5], vT[6], vT[7]
    vo = vT[0:5]
    r = [f"s_lshl_b32 s{u}, s{sW}, 5", f"s_add_u32 s{u}, s{u}, s{sRT}",
       f"s_mul_i32 s{sT3}, s{sN}, 88", f"s_add_u32 s{sT3}, s{sT3}, s{u}", f"s_mul_i32 s{sT3}, s{sT3}, 5120", f"s_add_u32 s{sT3}, s{sT3}, {WS_W2P}",
       f"s_cmp_lt_u32 s{u}, 88", f"s_cselect_b32 s{sRLST}, s{sT3}, {OOB}",
       f"s_mov_b32 s{sRL+3}, 0x20000", f"s_cmp_lt_u32 s{u}, 40", "@arm", "s_cbranch_scc0 L_rlw",
       f"s_cmp_lt_u32 s{u}, 20", f"s_cselect_b32 s{sRL}, s{pCRE}, s{pCIM}", f"s_cselect_b32 s{sRL+1}, s{pCRE+1}, s{pCIM+1}",
       f"s_cselect_b32 s{sT3}, 0, 20", f"s_sub_u32 s{sT3}, s{u}, s{sT3}", f"s_lshl_b32 s{sT3}, s{sT3}, 6",
       f"s_mul_i32 s{sT4}, s{sN}, {80*1280}", f"s_add_u32 s{sRLOFF}, s{sT3}, s{sT4}",
       f"s_mov_b32 s{sRL+2}, {640*1280}",
       f"v_lshrrev_b32 v{t0}, 2, v{vLANE}", f"v_and_b32 v{t1}, 3, v{vLANE}", f"v_lshlrev_b32 v{t1}, 4, v{t1}",
       f"v_mul_u32_u24 v{t0}, 1280, v{t0}", f"v_add_u32 v{vo[0]}, v{t0}, v{t1}"]
    for e in range(1, 5): r.append(f"v_add_u32 v{vo[e]}, {e*16*1280}, v{vo[0]}")
    r += ["s_branch L_rlj", "@else", "L_rlw:",
       f"s_mov_b32 s{sRL}, s{pW2}", f"s_mov_b32 s{sRL+1}, s{pW2+1}",
       f"s_cmp_lt_u32 s{u}, 88", f"s_cselect_b32 s{sRL+2}, {1536*1280}, 0",
       f"s_sub_u32 s{sT3}, s{u}, 40", f"s_mul_i32 s{sT3}, s{sT3}, {32*1280}", f"s_mul_i32 s{sT4}, s{sN}, 160", f"s_add_u32 s{sRLOFF}, s{sT3}, s{sT4}",
       f"s_mov_b32 s{sT4}, 6554"]
    for p in range(5):
        r += [f"v_add_u32 v{t0}, {64*p}, v{vLANE}", f"v_mul_u32_u24 v{t1}, s{sT4}, v{t0}", f"v_lshrrev_b32 v{t1}, 16, v{t1}",
              f"v_mul_u32_u24 v{t2}, 10, v{t1}", f"v_sub_u32 v{t2}, v{t0}, v{t2}", f"v_lshlrev_b32 v{t2}, 4, v{t2}",
              f"v_mul_u32_u24 v{t1}, 1280, v{t1}", f"v_add_u32 v{vo[p]}, v{t1}, v{t2}"]
    r += ["@endarm", "L_rlj:", f"s_and_b32 s{sRL+1}, s{sRL+1}, 0xffff"]
    r += [f"v_accvgpr_write_b32 a{232+p}, v{vo[p]}" for p in range(5)]
    return r
def relayout_dma():
    vo = vT[0:5]
    r = []
    if "r" in opt.skip: return r
    for p in range(5):
        r.append([f"s_add_u32 m0, s{sM0U}, {L_RL + p*1024}", f"v_accvgpr_read_b32 v3, a{232+p}",
                  I(f"buffer_load_dwordx4 v3, s[{sRL}:{sRL+3}], s{sRLOFF} offen {'nt' if opt.rl_nt else ''} lds", tok="RL")])
    return r

def relayout_raddr():
    t0, t1, t2 = vT[5], vT[6], vT[7]
    return [f"v_and_b32 v{t0}, 15, v{vLANE}", f"v_lshrrev_b32 v{t1}, 4, v{vLANE}", f"v_lshlrev_b32 v{t1}, 4, v{t1}", f"v_lshl_add_u32 v{t0}, v{t0}, 6, v{t1}",
            f"v_lshrrev_b32 v{t1}, 2, v{vLANE}", f"v_and_b32 v{t2}, 8, v{t1}", f"v_add_u32 v{t1}, v{t1}, v{t2}", f"v_mul_u32_u24 v{t1}, 160, v{t1}",
            f"v_and_b32 v{t2}, 3, v{vLANE}", f"v_lshl_add_u32 v{t1}, v{t2}, 3, v{t1}",
            f"s_lshl_b32 s{sT2}, s{sW}, 5", f"s_add_u32 s{sT2}, s{sT2}, s{sRT}", f"s_cmp_lt_u32 s{sT2}, 40", f"s_cselect_b64 s[{sEX0}:{sEX0+1}], -1, 0",
            f"s_cselect_b32 s{sRLT}, 1, 0", f"s_add_u32 s{sT3}, s{sM0U}, {L_RL}",
            f"v_cndmask_b32 v{t0}, v{t1}, v{t0}, s[{sEX0}:{sEX0+1}]", f"v_add_u32 v{t0}, s{sT3}, v{t0}", f"v_accvgpr_write_b32 a237, v{t0}"]
def relayout_finish():
    if "r" in opt.skip: return []
    t0 = vT[0]
    r = [f"v_accvgpr_read_b32 v{t0}, a237", "@waitvm RL", f"s_cmp_eq_u32 s{sRLT}, 1", "s_cbranch_scc0 L_rfw"]
    for e in range(5):
        for h in range(2): r.append(f"ds_read_b64 {ar(aRL+4*e+2*h, 2)}, v{t0} offset:{e*1024 + 8*h}")
    r += ["@raw_begin", "s_branch L_rfj", "L_rfw:"]
    for e in range(5):
        for jj in range(2): r.append(f"ds_read_b64_tr_b16 {ar(aRL+4*e+2*jj, 2)}, v{t0} offset:{jj*1280 + e*32}")
    r += ["@raw_end", "L_rfj:"]
    for e in range(5):
        if e < 4: r.append(I(f"buffer_store_dwordx4 {ar(aRL+4*e)}, v{vL16}, s[{sWS}:{sWS+3}], s{sRLST} offen offset:{e*1024} sc1", tok="RLS"))
        else: r.append(I(f"buffer_store_dwordx4 {ar(aRL+4*e)}, v{vW4}, s[{sWS}:{sWS+3}], s{sRLST} offen sc1", tok="RLS"))
    return r

def flag_store(base, sline, sidx):
    return [f"s_lshl_b32 s{sD0}, s{sline}, 7", f"s_lshl_b32 s{sD1}, s{sidx}, 2", f"s_add_u32 s{sD0}, s{sD0}, s{sD1}", f"s_add_u32 s{sD0}, s{sD0}, {base}",
            f"s_cmp_eq_u32 s{sW}, 0", f"s_cselect_b32 s{sD0}, s{sD0}, {OOB}",
            f"buffer_store_dword v{vNON}, off, s[{sWS}:{sWS+3}], s{sD0} sc1"]
def flag_load(base, sline, shift, mask, st=None):
    st = sD0 if st is None else st
    return [f"s_lshr_b32 s{st}, s{sline}, {shift}", f"s_lshl_b32 s{st}, s{st}, 7", f"s_add_u32 s{st}, s{st}, {base}",
            f"v_and_b32 v{vFLAG}, {mask}, v{vLANE}", f"v_lshlrev_b32 v{vFLAG}, 2, v{vFLAG}",
            f"buffer_load_dword v{vFLAG}, v{vFLAG}, s[{sWS}:{sWS+3}], s{st} offen sc1"]
sNN = 6
def sflag_load(base):
    return [f"s_lshr_b32 s{sD0}, s{sRT}, 1", f"s_lshl_b32 s{sD0}, s{sD0}, 7", f"s_add_u32 s{sD0}, s{sD0}, {base}", f"s_add_u32 s{sD1}, s{sD0}, 32",
            f"s_load_dwordx8 s[56:63], s[{pWS}:{pWS+1}], s{sD0} glc", f"s_load_dwordx8 s[76:83], s[{pWS}:{pWS+1}], s{sD1} glc"]
def sflag_check(base):
    lab[0] += 1
    n = lab[0]
    r = ["@waitds0"]
    for k in (56, 58, 60, 62, 76, 78, 80, 82): r.append(f"s_xor_b64 s[{k}:{k+1}], s[{k}:{k+1}], s[{sNN}:{sNN+1}]")
    for a, b in ((56, 58), (60, 62), (76, 78), (80, 82), (56, 60), (76, 80), (56, 76)): r.append(f"s_or_b64 s[{a}:{a+1}], s[{a}:{a+1}], s[{b}:{b+1}]")
    ld = flag_load(base, sRT, 1, 15, sD0); chk = [f"v_cmp_ne_u32 vcc, s{sNONCE}, v{vFLAG}"]
    r += [f"s_cbranch_scc0 L_ok{n}", "@raw_begin", f"s_mov_b32 s{sCNT}, {0x4000 if opt.diag else 0x40000}", f"L_rt{n}:"] + ld
    r += ["s_waitcnt vmcnt(0)", "s_nop 1"] + chk + [f"s_cbranch_vccz L_ok{n}", "s_sleep 1", f"s_sub_u32 s{sCNT}, s{sCNT}, 1",
          f"s_cmp_lg_u32 s{sCNT}, 0", f"s_cbranch_scc1 L_rt{n}", "s_nop 7", "@raw_end", f"L_ok{n}:"]
    return r
def fl_load(base): return sflag_load(base) if opt.sflag else flag_load(base, sRT, 1, 15)
def fl_check(base): return sflag_check(base) if opt.sflag else flag_check(base, sRT, 1, 15)
def flag_check(base, sline, shift, mask):
    if "f" in opt.skip: return [f"v_mov_b32 v{vFLAG}, 0"]
    return poll(flag_load(base, sline, shift, mask, sD0), [f"v_cmp_ne_u32 vcc, s{sNONCE}, v{vFLAG}"])

def scan_addr():
    col, q, ch, t = vT[19], vT[20], vT[21], vT[22]
    return [f"s_lshl_b32 s{sT2}, s{sW}, 13", f"s_add_u32 s{sT2}, s{sT2}, {L_PRIV}",
            f"v_and_b32 v{col}, 15, v{vLANE}", f"v_lshrrev_b32 v{q}, 4, v{vLANE}",
            f"v_lshl_add_u32 v{vCOLR}, v{col}, 4, s{sT2}",
            f"v_lshl_add_u32 v{vEW}, v{q}, 2, v{vCOLR}",
            f"v_min_u32 v{ch}, 39, v{vLANE}", f"v_lshlrev_b32 v{vSO}, 4, v{ch}",
            f"v_lshrrev_b32 v{t}, 3, v{ch}", f"v_lshlrev_b32 v{t}, 3, v{t}", f"v_add_u32 v{t}, v{t}, v{ch}",
            f"v_lshl_add_u32 v{vER}, v{t}, 4, s{sT2}",
            f"v_add_u32 v{vCH}, s{sT2}, v{vL16}",
            f"s_lshl_b32 s{sT3}, s{sW}, 9", f"s_add_u32 s{sT3}, s{sT3}, {L_TT}", f"v_lshl_add_u32 v{vTT}, v{vLANE}, 3, s{sT3}",
            f"v_lshlrev_b32 v{vLB}, 5, v{vLANE}", f"v_add_u32 v{vLB}, {L_LB}, v{vLB}",
            f"s_add_u32 s{sT3}, s{sM0U}, {L_RL}",
            f"v_lshlrev_b32 v{vTW}, 5, v{col}", f"v_lshl_add_u32 v{vTW}, v{q}, 3, v{vTW}", f"v_add_u32 v{vTW}, s{sT3}, v{vTW}",
            f"v_bfe_u32 v{t}, v{vLANE}, 2, 2", f"v_lshlrev_b32 v{t}, 5, v{t}", f"v_lshl_add_u32 v{t}, v{q}, 8, v{t}",
            f"v_and_b32 v{ch}, 3, v{vLANE}", f"v_lshl_add_u32 v{t}, v{ch}, 3, v{t}", f"v_add_u32 v{vTR}, s{sT3}, v{t}",
            f"v_lshrrev_b32 v{t}, 1, v{q}", f"v_lshlrev_b32 v{t}, 10, v{t}", f"v_lshl_add_u32 v{vHST}, v{col}, 4, v{t}",
            f"v_and_b32 v{t}, 1, v{q}", f"v_mul_u32_u24 v{t}, {20*4096}, v{t}", f"v_add_u32 v{vHST}, v{vHST}, v{t}"]

def const_park():
    src = [cAR, cAI, cKR, cKI] + list(range(60, 70))
    return [f"v_accvgpr_write_b32 a{200+k}, v{s}" for k, s in enumerate(src)]
def const_tables():
    t = vT[0:8]
    r = [f"v_accvgpr_read_b32 v{t[0]}, a200", f"v_accvgpr_read_b32 v{t[1]}, a201", f"v_accvgpr_read_b32 v{t[2]}, a202", f"v_accvgpr_read_b32 v{t[3]}, a203",
         f"v_sub_f32 v{t[3]}, 0, v{t[3]}",
         f"v_mov_b32 v{t[4]}, v{t[0]}", f"v_sub_f32 v{t[5]}, 0, v{t[1]}", f"v_sub_f32 v{t[6]}, 0, v{t[2]}", f"v_mov_b32 v{t[7]}, v{t[3]}",
         f"ds_write_b128 v{vER}, {vr(t[0])} offset:{PV_COL}", f"ds_write_b128 v{vER}, {vr(t[4])} offset:{PV_COL+128}",
         f"ds_write_b128 v{vCH}, {ar(204)} offset:{PV_CH}", f"ds_write_b128 v{vCH}, {ar(208)} offset:{PV_CH+1024}",
         f"ds_write_b64 v{vCH}, {ar(212, 2)} offset:{PV_CH+2048}",
         f"v_mov_b32 v{t[0]}, 0", f"v_mov_b32 v{t[1]}, 0",
         f"s_min_u32 s{sT2}, s{sW}, 2", f"s_lshl_b32 s{sT2}, s{sT2}, 9", f"s_add_u32 s{sT2}, s{sT2}, {L_TT}",
         f"v_lshl_add_u32 v{t[2]}, v{vLANE}, 3, s{sT2}", f"ds_write_b64 v{t[2]}, {vr(t[0], 2)}"]
    return r

def ureg(cf, tau): return U(cf, tau >> 2) + (tau & 3)
DPP = "row_ror:8 row_mask:0xf bank_mask:0xf"
def scan_P12():
    C = vT[0:20]
    r = [I(f"ds_read_b128 {vr(C[4*cf])}, v{vCOLR} offset:{PV_COL + cf*256}", tok="colr") for cf in range(5)]
    r.append("@gap 1")
    t = vT[20:24]
    k = 0
    for tau in range(8):
        for cf in range(5):
            u = ureg(cf, tau); tt = t[k % 4]; k += 1
            r += [f"v_mul_f32_dpp v{tt}, v{u}, v{C[4*cf+3]} {DPP}", f"v_fma_f32 v{u}, v{C[4*cf+2]}, v{u}, v{tt}"]
    for tau in range(1, 8):
        src = [(ureg(cf, 0) if tau == 1 else C[4*cf + 2 + (tau & 1)]) for cf in range(5)]
        dst = [C[4*cf + 2 + ((tau + 1) & 1)] for cf in range(5)]
        for cf in range(5): r.append(f"v_fma_f32 v{dst[cf]}, v{C[4*cf]}, v{src[cf]}, v{ureg(cf, tau)}")
        for cf in range(5): r.append(f"v_fmac_f32_dpp v{dst[cf]}, v{src[cf]}, v{C[4*cf+1]} {DPP}")
    for cf in range(5): r.append(f"ds_write_b32 v{vEW}, v{C[4*cf+2]} offset:{PV_E + cf*256}")
    er, ei, a8 = vT[0], vT[4], vT[8]
    r += [f"ds_read_b128 {vr(a8)}, v{vCH} offset:{PV_CH}",
          f"ds_read_b128 {vr(er)}, v{vER} offset:{PV_E}", f"ds_read_b128 {vr(ei)}, v{vER} offset:{PV_E+128}", "@gap 2"]
    g0, g1 = vT[12], vT[14]
    r += chorner2(g0, g0+1, er, ei, a8, a8+1, er+1, ei+1)
    r += chorner2(g1, g1+1, g0, g0+1, a8, a8+1, er+2, ei+2)
    r += chorner2(g0, g0+1, g1, g1+1, a8, a8+1, er+3, ei+3)
    r += [f"ds_write_b64 v{vTT}, {vr(g0, 2)} offset:{3*512}"]
    return r

def scan_P3():
    a32 = vT[8]; T = vT[0:8]
    r = [f"ds_read_b128 {vr(a32)}, v{vCH} offset:{PV_CH}"]
    for k in range(4): r.append(f"ds_read_b64 {vr(T[2*k], 2)}, v{vTT} offset:{k*512}")
    r.append("@gap 2")
    m = a32 + 2
    g = vT[12]
    r += chorner2(g, g+1, T[0], T[1], m, m+1, T[2], T[3])
    r += chorner2(vWP0, vWP1, g, g+1, m, m+1, T[4], T[5])
    r += chorner2(g, g+1, vWP0, vWP1, m, m+1, T[6], T[7])
    r += [f"v_mov_b32 v{g+2}, s{sNONCE}", f"v_mov_b32 v{g+3}, s{sNONCE}",
          f"buffer_store_dwordx4 {vr(g)}, v{vSO}, s[{sWS}:{sWS+3}], s{sSST} offen sc1"]
    return r

def lb_loads():
    return [f"buffer_load_dwordx4 {ar(aS+4*jj)}, v{vSO}, s[{sWS}:{sWS+3}], s{sl} offen sc1" for jj, sl in enumerate((sLB0, sLB1, sLB2, sLB3))]
def scan_P4():
    t = vT[0:8]
    chk = []
    for jj, sl in enumerate((sLB0, sLB1, sLB2, sLB3)):
        d = t[2] if jj == 0 else t[0]
        chk += [f"s_cmp_lt_u32 s{sl}, {OOB}", f"s_cselect_b32 s{sT2}, s{sNONCE}, 0", f"v_accvgpr_read_b32 v{d}, a{aS+4*jj+2}",
                f"v_xor_b32 v{d}, s{sT2}, v{d}"]
        if jj: chk += [f"v_or_b32 v{t[2]}, v{t[2]}, v{t[0]}"]
    chk += [f"v_cmp_ne_u32 vcc, 0, v{t[2]}"]
    c = vT[8]
    r = [f"ds_read_b128 {vr(c)}, v{vCH} offset:{PV_CH+1024}", f"ds_read_b64 {vr(vT[12], 2)}, v{vCH} offset:{PV_CH+2048}"]
    if "f" not in opt.skip: r += poll(lb_loads(), [i.text for i in insert_nops(II(chk))])
    for jj in range(4):
        r += [f"v_accvgpr_read_b32 v{t[2*jj]}, a{aS+4*jj}", f"v_accvgpr_read_b32 v{t[2*jj+1]}, a{aS+4*jj+1}"]
    m = c + 2; g0, g1 = vT[14], vT[16]
    r += chorner2(g0, g0+1, t[0], t[1], m, m+1, t[2], t[3])
    r += chorner2(g1, g1+1, g0, g0+1, m, m+1, t[4], t[5])
    r += chorner2(g0, g0+1, g1, g1+1, m, m+1, t[6], t[7])
    r += cmul(g1, g1+1, g0, g0+1, vT[12], vT[13], vT[18])
    r += [f"s_lshl_b32 s{sT2}, s{sW}, 3", f"v_add_u32 v{vT[18]}, s{sT2}, v{vLB}", f"ds_write_b64 v{vT[18]}, {vr(g1, 2)}"]
    return r

def scan_P56():
    lb = vT[0]; er, ei = vT[8], vT[12]; c8, c32w = vT[16], vT[20]
    r = [f"ds_read_b128 {vr(lb)}, v{vLB}", f"ds_read_b128 {vr(lb+4)}, v{vLB} offset:16",
         f"ds_read_b64 {vr(c32w, 2)}, v{vCH} offset:{PV_CH+1024}", f"ds_read_b128 {vr(c8)}, v{vCH} offset:{PV_CH}",
         f"ds_read_b128 {vr(er)}, v{vER} offset:{PV_E}", f"ds_read_b128 {vr(ei)}, v{vER} offset:{PV_E+128}", "@gap 2",
         f"v_add_f32 v{lb}, v{lb}, v{lb+2}", f"v_add_f32 v{lb+1}, v{lb+1}, v{lb+3}",
         f"v_add_f32 v{lb+4}, v{lb+4}, v{lb+6}", f"v_add_f32 v{lb+5}, v{lb+5}, v{lb+7}",
         f"v_add_f32 v{lb}, v{lb}, v{lb+4}", f"v_add_f32 v{lb+1}, v{lb+1}, v{lb+5}"]
    q0, q1 = vT[4], vT[20]
    tmp = vT[2]
    r += chorner2(tmp, tmp+1, lb, lb+1, c32w, c32w+1, vWP0, vWP1)
    r += [f"v_mov_b32 v{q0}, v{tmp}", f"v_mov_b32 v{q1}, v{tmp+1}"]
    for k in range(3):
        r += chorner2(q0+k+1, q1+k+1, q0+k, q1+k, c8, c8+1, er+k, ei+k)
    r += [f"ds_write_b128 v{vER}, {vr(q0)} offset:{PV_E}", f"ds_write_b128 v{vER}, {vr(q1)} offset:{PV_E+128}"]
    C = vT[0:10]; Z = vT[10:15]
    for cf in range(5): r.append(f"ds_read_b32 v{Z[cf]}, v{vEW} offset:{PV_E + cf*256}")
    for cf in range(5): r.append(f"ds_read_b64 {vr(C[2*cf], 2)}, v{vCOLR} offset:{PV_COL + cf*256}")
    r.append("@gap 2")
    for tau in range(8):
        src = [(Z[cf] if tau == 0 else ureg(cf, tau-1)) for cf in range(5)]
        for cf in range(5): r.append(f"v_fma_f32 v{ureg(cf, tau)}, v{C[2*cf]}, v{src[cf]}, v{ureg(cf, tau)}")
        for cf in range(5): r.append(f"v_fmac_f32_dpp v{ureg(cf, tau)}, v{src[cf]}, v{C[2*cf+1]} {DPP}")
    for cf in range(5):
        for f in range(2):
            t = vT[2*(cf*2+f)]; u = U(cf, f)
            r += [f"v_cvt_pk_bf16_f32 v{t}, v{u}, v{u+1}", f"v_cvt_pk_bf16_f32 v{t+1}, v{u+2}, v{u+3}"]
    for k in range(10): r.append(f"ds_write_b64 v{vTW}, {vr(vT[2*k], 2)} offset:{k*512}")
    for cf in range(5):
        for jj in range(2):
            r.append(f"ds_read_b64_tr_b16 {vr(56 + 4*cf + 2*jj, 2)}, v{vTR} offset:{cf*1024 + jj*128}")
    for cf in range(5):
        r.append(I(f"buffer_store_dwordx4 {vr(56 + 4*cf)}, v{vHST}, s[{sWS}:{sWS+3}], s{sHO[cf]} offen sc1", tok="HST"))
    return r

def swiglu(acc, h2s, sks, tokname, packed=False):
    r = []
    k = 0
    for h2 in h2s:
        for z in range(2):
            G = vT[0:8]; Uu = vT[8:16]; T = vT[16:24]
            for j in range(8):
                r += [f"v_accvgpr_read_b32 v{G[j]}, a{acc(0, h2) + 8*z + j}", f"v_accvgpr_read_b32 v{Uu[j]}, a{acc(1, h2) + 8*z + j}"]
            if packed:
                for j in range(0, 8, 2): r.append(f"v_pk_mul_f32 {vr(T[j], 2)}, {vr(G[j], 2)}, s[{sEX0}:{sEX0+1}]")
                for j in range(8):
                    r.append(f"v_exp_f32 v{T[j]}, v{T[j]}")
                for j in range(0, 8, 2): r.append(f"v_pk_mul_f32 {vr(G[j], 2)}, {vr(G[j], 2)}, {vr(Uu[j], 2)}")
                for j in range(0, 8, 2): r.append(f"v_pk_add_f32 {vr(T[j], 2)}, {vr(T[j], 2)}, s[{sEX2}:{sEX2+1}]")
                for j in range(8): r.append(f"v_rcp_f32 v{T[j]}, v{T[j]}")
                for j in range(0, 8, 2): r.append(f"v_pk_mul_f32 {vr(G[j], 2)}, {vr(G[j], 2)}, {vr(T[j], 2)}")
            else:
                for j in range(8): r.append(f"v_mul_f32 v{T[j]}, {NLOG2E}, v{G[j]}")
                for j in range(8): r += [f"v_exp_f32 v{T[j]}, v{T[j]}", f"v_mul_f32 v{G[j]}, v{G[j]}, v{Uu[j]}"]
                for j in range(8): r.append(f"v_add_f32 v{T[j]}, 1.0, v{T[j]}")
                for j in range(8): r.append(f"v_rcp_f32 v{T[j]}, v{T[j]}")
                for j in range(8): r.append(f"v_mul_f32 v{G[j]}, v{G[j]}, v{T[j]}")
            o = Uu[0] if k % 2 == 0 else Uu[4]; k += 1
            for j in range(4): r.append(f"v_cvt_pk_bf16_f32 v{o+j}, v{G[2*j]}, v{G[2*j+1]}")
            if z == 0: r.append(f"s_add_u32 s{sT2}, s{sks}, {h2*4096}")
            r.append(I(f"buffer_store_dwordx4 {vr(o)}, v{vHH}, s[{sWS}:{sWS+3}], s{sT2} offen offset:{z*512} sc1", tok=tokname))
    return r

def step_reads(blk, s, par):
    r = []
    if blk == "U":
        i, sh2, sh = s // 4, (s >> 1) & 1, s & 1
        off = i*20480 + sh2*10240 - (61440 if i >= 3 else 0)
        for cf in range(5):
            r.append(f"ds_read_b128 {ar(FB(par, cf))}, v{vRU[sh]} offset:{off + cf*1024}")
    elif blk == "A":
        m, sp = s // 2, s & 1
        for hf in range(2):
            for h2 in range(2):
                for mu in range(2):
                    for jj in range(2):
                        r.append(f"ds_read_b64_tr_b16 {ar(FB(par, hf*4+h2*2+mu) + 2*jj, 2)}, v{vRA[h2]} offset:{(m % 4)*16384 + (2*sp+mu)*4096 + hf*1024 + jj*512}")
    else:
        m, sd = 10 + s // 2, s & 1
        for s2 in range(2):
            for hf in range(2):
                for mu in range(2):
                    for jj in range(2):
                        r.append(f"ds_read_b64_tr_b16 {ar(FB(par, s2*4+hf*2+mu) + 2*jj, 2)}, v{vRB2 if BSLOT[m] >= 4 else vRB} offset:{(BSLOT[m] % 4)*16384 + (2*sd+mu)*4096 + s2*2048 + hf*512 + jj*256}")
    return r

def step_mfma(blk, s, par):
    r = []
    if blk == "U":
        for cf in range(5):
            for f in range(2):
                d = vr(U(cf, f)); c = "0" if s == 0 else d
                r.append(f"v_mfma_f32_16x16x32_bf16 {d}, {vr(X(f, s))}, {ar(FB(par, cf))}, {c}")
    elif blk == "A":
        for hf in range(2):
            for h2 in range(2):
                for mu in range(2):
                    d = ar(ACCA(mu, h2), 16); c = "0" if (s == 0 and hf == 0) else d
                    r.append(f"v_mfma_f32_32x32x16_bf16 {d}, {ar(FB(par, hf*4+h2*2+mu))}, {vr(X(hf, s))}, {c}")
    else:
        for s2 in range(2):
            for hf in range(2):
                for mu in range(2):
                    d = ar(ACCB(mu), 16); c = "0" if (s == 0 and hf == 0 and s2 == 0) else d
                    r.append(f"v_mfma_f32_32x32x16_bf16 {d}, {ar(FB(par, s2*4+hf*2+mu))}, {vr(X(hf, 2*s+s2))}, {c}")
    return r

def swaps(s): return [] if "w" in opt.skip else [f"v_permlane16_swap_b32 v{X(0, s)+k}, v{X(1, s)+k}" for k in range(4)]

def stage_of(blk, s):
    return ("U", s // 4) if blk == "U" else (("M", s // 2) if blk == "A" else ("M", 10 + s // 2))

def cost(i):
    if i.cls in ("pseudo", "label"): return 0
    if i.cls == "trans": return 2
    if i.cls == "vmem": return opt.vmcost
    return 1

PH = [1]
class Feed(list):
    def append(self, i): EM[0].feed(i)

class Queue:
    def __init__(self): self.q = []; self.hold = 0; self.now = 0
    def add(self, lst, deadline):
        if "q" in opt.skip:
            lst = [t for t in II(lst) if t.cls in ("vmem",) or t.op.startswith("s_") or t.cls in ("pseudo", "label") or t.op.startswith("v_cmp") or t.op.startswith("v_readfirst") or t.op.startswith("v_accvgpr_read") and "a18" in t.text + "a19"]
        lst = II(lst)
        if PH[0] == 1 and opt.skip and not any(t.op in ("@arm", "@raw_begin") for t in lst):
            if "D" in opt.skip: lst = [t for t in lst if not t.op.startswith("ds_write")]
            if "R" in opt.skip: lst = [t for t in lst if not t.op.startswith("ds_read")]
            if "V" in opt.skip: lst = [t for t in lst if t.cls not in ("valu", "trans") or t.op.startswith("v_cmp") or t.op.startswith("v_cndmask")]
            if "S" in opt.skip:
                for t in lst:
                    if t.cls == "vmem" and "store" in t.op and t.tok in ("HST", "HHA"): t.text = t.text.replace("offen", "offen").replace("dwordx4", "dword"); t.text = __import__("re").sub(r"v\[(\d+):\d+\]", r"v\1", t.text, 1); t.wide = False
        lst = II(lst)
        now = max(self.now, max([d for t, d in self.q] + [0]) if opt.chainq else 0)
        if not opt.interp or deadline <= now + 1:
            for t in lst: self.q.append((t, deadline))
            return
        pos = 0; P = []; wr = {}; lastw = -99
        for t in lst:
            if t.cls not in ("pseudo", "label"):
                dep = [wr[r] for r in (t.rd | t.wr) if r in wr]
                if dep: pos = max(pos, max(dep) + opt.vlat)
                if t.op.startswith("ds_read") and pos - lastw < opt.vlat // 2: pos = lastw + opt.vlat // 2
                for r in t.wr: wr.pop(r, None)
                if t.cls == "ds":
                    for r in t.wr: wr[r] = pos
                    if t.op.startswith("ds_write"): lastw = pos
            pos += cost(t) + (1 if t.cls == "ds" else 0)
            P.append(pos)
        prev = now
        for t, p in zip(lst, P):
            d = now + int((deadline - now) * p / max(pos, 1))
            if t.cls == "ds" and PH[0] == 1 and d >= 200:
                while d % 8 < opt.span and d < deadline: d += 1
            d = max(d, prev); prev = d
            self.q.append((t, min(d, deadline)))
    def _region(self, out):
        i = self.q[0][0]
        end = "@endarm" if i.op == "@arm" else "@raw_end"
        while True:
            j = self.q.pop(0)[0]; out.append(j)
            if j.cls == "pseudo" and j.op == end: break
        while self.q and self.q[0][0].cls == "label": out.append(self.q.pop(0)[0])
    def need(self, gap):
        best = 0; acc = 0
        for t, d in self.q:
            acc += cost(t)
            left = d - gap + 1
            if left <= 0: best = max(best, acc)
            else: best = max(best, -(-acc // left))
        return best
    def pop(self, n, gap, ds_ok=True):
        out = Feed(); nds = 0; self.now = gap
        n = max(n, self.need(gap)) if (opt.even and not opt.interp) else n
        while self.q and (n > 0 or self.q[0][1] <= gap):
            i = self.q[0][0]
            if i.cls == "pseudo" and i.op == "@gap":
                self.q.pop(0); continue
            if self.q[0][1] > gap:
                if i.cls == "ds" and (not ds_ok or nds >= opt.dsmax): break
                if i.cls == "ds": nds += 1
                look = [i] + ([x for x, d in self.q[1:12] if x.cls == "pseudo"][:1] if i.op.startswith("s_cmp") else [])
                if i.op.startswith("s_cmp"): look += [x for x, d in self.q[1:4]]
                if max(EM[0].stall(x) for x in look) > opt.thr: break
            if i.cls == "pseudo" and i.op in ("@arm", "@raw_begin"):
                self._region(out); n -= 4
                continue
            if i.cls == "branch" or i.op.startswith("s_cmp") or i.op.startswith("s_bitcmp") or i.op.startswith("v_cmp"):
                out.append(self.q.pop(0)[0])
                if self.q and "L_rfw" in self.q[0][0].text:
                    while self.q[0][0].op != "@raw_begin": out.append(self.q.pop(0)[0])
                    n -= 10
                while self.q:
                    k = self.q[0][0]
                    if k.op.startswith("s_cselect") or k.op.startswith("v_cndmask") or k.cls == "branch": out.append(self.q.pop(0)[0])
                    elif k.op in ("@arm", "@raw_begin"): self._region(out); n -= 4
                    else: break
                n -= 1
                continue
            self.q.pop(0); out.append(i)
            n -= cost(i)
        return out
    def flush(self):
        out = [i for i, d in self.q if not (i.cls == "pseudo" and i.op == "@gap")]
        self.q = []; self.hold = 0
        return out

ACC1 = [("a", 4*k) for k in range(20)]
ACC2 = [("v", 96 + 4*k) for k in range(20)]
A_SLOTS = [("a", 80 + 4*k) for k in range(20)]
GA = [("a", 196 + 4*k) for k in range(15)] + [("a", 160 + 4*k) for k in range(5)]
XFREE = [("v", base + 8*d + 4*h) for d in range(10) for base in (96, 176) for h in range(2)]
HI = [("v", 176 + 4*k) for k in range(20)]
N1 = 12
NLDS = 4
def wslot(st, e):
    if st < 4: return GA[st*5 + e]
    if st < 12: return XFREE[(st - 4)*5 + e]
    if st < 16: return HI[(st - 12)*5 + e]
    if st < 20: return GA[(st - 16)*5 + e]
    return HI[(st - 20)*5 + e]
def w_free_after_b(st):
    return -1 if st < 4 else ((st - 4)*5 + 4) // 4
def w_free_after_p(st):
    if st < 16:
        regs = {wslot(st, e) for e in range(5)}
        return max(o for o in range(4, 12) for e in range(5) if wslot(o, e) in regs)
    return st - 16 if st < 20 else st - 8
def rg(t, c=4): return f"{t[0]}[{t[1]}:{t[1]+c-1}]"
vA2 = [3, 4, 5, 6]; vPW = [7, 8, 9]; vPR = 11; vOUT = 13; vXO = 14; vSTA = 15; vDS = 16
vXR = list(range(56, 76)); vY = list(range(76, 96)); vDK = [17, 18, 19, 20, 21]; vST = list(range(32, 40)); vXD2 = [22, 23, 24]; vXL = 25; vWL = 26
L_X2 = 143360
NSTEP = 22
ORDER = [0, 1, 4, 5, 6, 7, 10, 11, 2, 3, 8, 9] + list(range(10))
def ptr_bases():
    return [f"s_mul_i32 s{sAS}, s{sW}, {12*4096}", f"s_add_u32 s{sAS}, s{sAS}, s{sP2A}", f"s_add_u32 s{sAS}, s{sAS}, {40*4096}",
            f"s_mul_i32 s{sAE}, s{sW}, {10*4096}", f"s_add_u32 s{sAE}, s{sAE}, s{sP2A}",
            f"s_mul_i32 s{sWB}, s{sW}, {12*5120}", f"s_add_u32 s{sWB}, s{sWB}, s{sP2W}", f"s_add_u32 s{sWB}, s{sWB}, {40*5120}",
            f"s_mul_i32 s{sWE}, s{sW}, {10*5120}", f"s_add_u32 s{sWE}, s{sWE}, s{sP2W}"]
def ptr_set(which, st):
    if which == "A": return [f"s_add_u32 s{sAP}, s{sAS if st < N1 else sAE}, {ORDER[st]*4096}"]
    return [f"s_add_u32 s{sWP}, s{sWB if st < N1 else sWE}, {ORDER[st]*5120}"]
def p2_wload(st):
    r = []
    r += ptr_set("W", st)
    for e in range(5):
        va, off = (vL16, e*1024) if e < 4 else (vW4, 0)
        if N1 <= st < N1 + NLDS:
            r += [f"s_add_u32 m0, s{sM0}, {L_WY + (st - N1)*5120 + (4096 if e == 4 else 0)}"] + (["s_nop 0"] if True else [])
            r.append(I(f"buffer_load_dwordx4 v{va}, s[{sWS}:{sWS+3}], s{sWP} offen offset:{off} sc1 lds", tok=f"WL{st}"))
        else:
            r.append(I(f"buffer_load_dwordx4 {rg(wslot(st, e))}, v{va}, s[{sWS}:{sWS+3}], s{sWP} offen offset:{off} sc1", tok="W"))
    return r
def p2_wread(st):
    return [f"@waitvm WL{st}"] + [f"ds_read_b128 {rg(wslot(st, e))}, v{vWL} offset:{L_WY + (st - N1)*5120 + e*1024}" for e in range(5)]
def p2_aload(st):
    r = []
    r += ptr_set("A", st)
    for jj in range(4):
        r.append(I(f"buffer_load_dwordx4 {rg(A_SLOTS[(st % 5)*4 + jj])}, v{vA2[jj]}, s[{sWS}:{sWS+3}], s{sAP} offen sc1", tok="A"))
    return r
def p2_setup():
    r = []
    for jj in range(4):
        r += [f"s_add_u32 s{sD0}, s{sW}, {jj}", f"s_and_b32 s{sD0}, s{sD0}, 3", f"v_lshl_add_u32 v{vA2[jj]}, s{sD0}, 10, v{vL16}"]
    return r
def p2_setup2():
    r = []
    for jj in range(1, 4):
        r += [f"s_add_u32 s{sT2}, s{sW}, {jj}", f"s_and_b32 s{sT2}, s{sT2}, 3",
              f"s_mul_i32 s{sT3}, s{sT2}, 15360", f"s_add_u32 s{sT3}, s{sT3}, {(3-jj)*5120}", f"v_add_u32 v{vPW[jj-1]}, s{sT3}, v{vL16}"]
    r += [f"s_mul_i32 s{sT3}, s{sW}, 15360", f"v_add_u32 v{vPR}, s{sT3}, v{vL16}", f"v_add_u32 v{vWL}, s{sM0}, v{vL16}"]
    r += [f"v_add_u32 v{v}, {L_P1}, v{v}" for v in vPW + [vPR]]
    return r

def groups(lst):
    out = []; cur = []
    for t in II(lst):
        cur.append(t)
        if t.cls == "vmem": out.append(cur); cur = []
    if cur: out.append(cur)
    return out
def gstall(grp):
    return max([EM[0].stall(t) for t in grp if t.cls == "vmem" or t.op == "@waitvm"] + [0])

def tagw(st):
    gs = groups(p2_wload(st))
    for gq in gs: gq[-1].lat = None; STEP[id(gq[-1])] = st
    return gs
def taga(st):
    gs = groups(p2_aload(st))
    for gq in gs: STEP[id(gq[-1])] = st
    return gs
STEP = {}

def phase1_blocks():
    Q = Queue()
    seq = [("U", s) for s in range(20)] + [("A", s) for s in range(20)] + [("B", s) for s in range(10)]
    gap0 = []; g = 0
    for blk, s in seq:
        gap0.append(g); g += {"U": 10, "A": 8, "B": 8}[blk]
    gap0.append(g)
    def stage_end(kind, idx):
        n = [k for k, (b, s) in enumerate(seq) if stage_of(b, s) == (kind, idx)][-1]
        return gap0[n]
    L(delay("a", 255, 0, 500)); L(delay("b", 31, 5, 700))
    L(["@waitvm U0", "s_barrier"])
    L(stamp("U start"))
    L(step_reads("U", 0, 0))
    later = []
    pace = [0, len(EM[0].out)]
    bulk = []
    def lat(gs, dl):
        for x in gs: later.append((II(x), dl))
    def blk_(gs, dl):
        at = len(bulk) if dl == 10**6 else next((q for q, (gq, d) in enumerate(bulk) if d == 10**6), len(bulk))
        bulk[at:at] = [(II(x), dl) for x in gs]
    lat([u_piece(2, cf) for cf in range(5)], stage_end("U", 0) - 4)
    lat([nonce_publish()], stage_end("U", 0))
    if opt.rl_pos == -1: lat(relayout_dma(), stage_end("U", 1) - 16)
    lat([u_piece(3, cf) for cf in range(5)], stage_end("U", 1) - 10)
    lat([u_piece(4, cf) for cf in range(5)], stage_end("U", 2) - 20)
    for n, (blk, s) in enumerate(seq):
        par = n & 1
        mf = step_mfma(blk, s, par)
        nxt = seq[n + 1] if n + 1 < len(seq) else None
        rd = II(step_reads(nxt[0], nxt[1], par ^ 1)) if nxt else []
        if rd: rd[-1].tok = f"rd{n+1}"
        boundary = nxt is None or stage_of(*nxt) != stage_of(blk, s)
        gaps = [[] for _ in mf]
        start = 0
        pre = []
        cap = opt.capU if blk == "U" else opt.capM
        if blk == "U" and s == 11: pre += [f"v_add_u32 v{vRU[0]}, 61440, v{vRU[0]}"]
        if blk == "U" and s == 12: pre += [f"v_add_u32 v{vRU[1]}, 61440, v{vRU[1]}"]
        if blk == "A" and s == 0:
            Q.add(nonce_get(), gap0[n] + 6)
            Q.add(scan_P12(), stage_end("M", opt.X_stage) - 2)
        if blk == "B" and s == 0:
            Q.add(swiglu(ACCA, [0, 1], sKSA, "HHA"), stage_end("M", opt.hast) - opt.haend)
        post = []; plat = []; urgent = []; pbulk = []
        if blk == "B":
            for st in range(4, opt.nearly):
                if w_free_after_b(st) == s - 1: blk_(tagw(st), 10**6)
        if boundary:
            kind, idx = stage_of(blk, s)
            start = 1
            here = gap0[n]; nx1 = here + (40 if blk == "U" else 16)
            if kind == "U" and idx == 1:
                if opt.rf_stage == 1: post.append((relayout_finish(), stage_end("U", 3) - 4))
                post += [(const_tables(), stage_end("U", 3) + (10 if opt.rf_stage == 1 else -2)), (stats_store(), stage_end("U", 3) + 16)]
            mi = idx if kind == "M" else idx - 5
            def send(m): return stage_end("M", m) if m >= 0 else stage_end("U", m + 5)
            if kind == "U" and idx == opt.rf_stage and idx != 1: post.append((relayout_finish(), send(opt.F_stage - 1) - 2))
            b = []
            if nxt is not None:
                nk, ni = stage_of(*nxt)
                b.append(I(f"@waitboth {nk}{ni}"))
            else:
                b.append(I("@waitds0"))
            if kind == "M" and idx == opt.hast: b += II(["@waitvm HHA"])
            if kind == "M" and idx == opt.hast: plat.append((groups(flag_store(WS_FLHA, sC, sG)), here + 2))
            if mi == opt.F_stage: b += II(["@waitvm RLS"] if "r" not in opt.skip else [])
            if mi == max(opt.F_stage, 0): b += II(["@waitvm stat"])
            b.append(I("s_barrier"))
            if (opt.stamps or opt.probe) and (opt.fine or (kind, idx) in (("U", 4), ("M", 9), ("M", 14))): b += II(stamp(f"{kind}{idx} end"))
            gaps[0] += b
            if kind == "U" and idx == 0 and opt.t_w13: plat.append((w13_touch(), stage_end("U", 1) + 10))
            if kind == "U" and idx == 0 and opt.rl_pos == 0: plat.append((relayout_dma(), stage_end("U", 2) - 10))
            if kind == "U" and idx == 1: plat.append((groups(dma_M(0)) + groups(dma_M(1)), stage_end("U", 3) - 10))
            if kind == "U" and idx == 1 and opt.rl_pos == 1: plat.append((relayout_dma(), stage_end("U", 4) - 10))
            if kind == "U" and idx == 3: plat.append(([nonce_load()], here + 10))
            if kind == "U" and idx in (2, 3): plat.append((groups(dma_M(idx)), stage_end("M", idx - 1) - opt.slack))
            if kind == "U" and idx == 4:
                plat.append(([mlp_dma_addr("B")], here + 6))
                pbulk.append((groups(dma_M(10)), stage_end("M", opt.b10)))
            if mi == max(opt.F_stage, 0): plat.insert(0, (groups(flag_store(WS_FLW, sN, sRT)), here + 6))
            if kind == "M" and idx + 4 <= 9: plat.append((groups(dma_M(idx + 4)), stage_end("M", idx + 3) - opt.slack))
            if kind == "M" and idx == opt.L_stage: plat.insert(0, (groups(lb_loads()), here + 8))
            if kind == "M" and idx in BISSUE: pbulk.append((groups(dma_M(BISSUE[idx][0])), stage_end("M", BISSUE[idx][0] - 1) - opt.slack))
            if kind == "M" and idx == opt.X_stage:
                post.append((scan_P3(), stage_end("M", opt.X_stage + 1) + 8))
            if kind == "M" and idx == opt.C_stage:
                assert not any("a[180:183]" in x.text for gq, d in later for x in gq)
                post.append((scan_P4(), stage_end("M", opt.Y_stage) - 2))
            if kind == "M" and idx == opt.Y_stage:
                gaps[0] += II(delay("d", 63, 17, 900))
                post.append((scan_P56()[:33], stage_end("M", opt.Y_stage + 1) - 2))
            if kind == "M" and idx == opt.W_stage - 1 and opt.nearly:
                plat.append((groups(flag_load(WS_FLW, sN, 0, 31)), nx1))
            if kind == "M" and idx == opt.W_stage and opt.nearly:
                plat.append(([flag_check(WS_FLW, sN, 0, 31)], nx1 + 8))
                for st in range(min(4, opt.nearly)): pbulk.append((tagw(st), 10**6))
            if kind == "M" and idx == 13: urgent += [p2_setup()]
            if kind == "U" and idx == 4: urgent += [[f"global_load_ushort a231, v{vLANE}, s[{pDSK}:{pDSK+1}]"]] if False else []
        ng = len(mf)
        if rd:
            if nxt[0] == "U": span = 5
            elif blk == "U": span = 7
            else: span = opt.span
            for k, t in enumerate(rd): gaps[start + (k * span) // len(rd)].append(t)
        if nxt and nxt[0] == "A":
            for k, t in enumerate(II(swaps(nxt[1]))): gaps[ng - 5 + k].append(t)
        if blk == "U" and opt.pre_norm <= s + 1 < 20 and "n" not in opt.skip:
            nq = II(norm_step(1, s + 1, False, vT[20:24]))
            for k, t in enumerate(nq): gaps[(k * ng) // len(nq)].append(t)
        if blk == "U" and opt.late0:
            ops = [t for s0 in range(20 - opt.late0, 20) for t in norm_step(0, s0, False, vT[16:20])]
            span = 18
            lo, hi = (len(ops) * s) // span, (len(ops) * (s + 1)) // span
            lo -= lo % 5; hi -= hi % 5
            nq = II(ops[lo:hi]) if s < span else []
            assert all((20 - opt.late0 + (lo + k) // 20) > s for k in range(len(nq)))
            for k, t in enumerate(nq): gaps[(k * ng) // len(nq)].append(t)
        L(pre)
        E(f"@waitds rd{n}")
        for k, t in enumerate(mf):
            E(t)
            L(gaps[k])
            gap = gap0[n] + k
            used = sum(cost(x) for x in gaps[k])
            if boundary and k == 0:
                for lst, dl in post: Q.add(lst, dl)
                for gs, dl in plat: lat(gs, dl)
                for gs, dl in pbulk: blk_(gs, dl)
                lat(urgent, here + 14)
                continue
            due_b = any(d - gap <= q + len(later) for q, (gq, d) in enumerate(bulk))
            overdue = due_b or any(d - gap <= q for q, (gq, d) in enumerate(later))
            q_ = later if later else bulk
            if q_ and (overdue or (EM[0].t >= pace[0] and k != 0)):
                grp = q_.pop(0)[0]; L(grp); used += sum(cost(x) for x in grp)
            for x in EM[0].out[pace[1]:]:
                if x.cls == "vmem" and x.lines is not None and not x.text.startswith("buffer_load_dword v29,"):
                    cold = (x.tok in (("RL", "TW") if opt.t_w13 else ("M0", "M1", "M10", "RL"))) and opt.coldpace or 1
                    pace[0] = max(pace[0], EM[0].t - opt.burst) + x.lines * opt.pace * cold
            pace[1] = len(EM[0].out)
            Q.pop(cap - used, gap, ds_ok=(k >= (opt.span if blk != "U" else 5)))
    L(Q.flush())
    for gq, d in later: L(gq)
    return [gq for gq, d in bulk]

def p2_mfma(st):
    r = []
    first = st in (0, N1)
    acc = ACC1 if st < N1 else ACC2
    for jj in range(4):
        for e in range(5):
            d = rg(acc[jj*5+e]); c = "0" if (first and not (st == N1 and jj == 0)) else d
            r.append(f"v_mfma_f32_16x16x32_bf16 {d}, {rg(A_SLOTS[(st % 5)*4+jj])}, {rg(wslot(st, e))}, {c}")
    return r

def p2_partials(base, acc):
    return [f"ds_write_b128 v{vPW[jj-1]}, {rg(acc[jj*5+e])} offset:{base + e*1024}" for jj in range(1, 4) for e in range(5)]

def p2_epi_addr():
    dn, q, t = vT[8], vT[9], vT[10]
    r = [f"v_and_b32 v{dn}, 15, v{vLANE}", f"v_lshrrev_b32 v{q}, 4, v{vLANE}",
         f"s_lshl_b32 s{sT2}, s{sRT}, 6", f"s_lshr_b32 s{sT3}, s{sW}, 1", f"s_lshl_b32 s{sT3}, s{sT3}, 5", f"s_add_u32 s{sT2}, s{sT2}, s{sT3}",
         f"s_and_b32 s{sT3}, s{sW}, 1", f"s_lshl_b32 s{sT3}, s{sT3}, 2", f"s_add_u32 s{sT2}, s{sT2}, s{sT3}",
         f"s_mul_i32 s{sT4}, s{sW}, 3072", f"s_add_u32 s{sT4}, s{sT4}, {L_X2}",
         f"v_mul_u32_u24 v{vXL}, 640, v{q}", f"v_lshl_add_u32 v{vXL}, v{dn}, 1, v{vXL}", f"v_add_u32 v{vXL}, s{sT4}, v{vXL}",
         f"v_lshl_add_u32 v{q}, v{q}, 3, s{sT2}",
         f"s_mul_i32 s{sT3}, s{sN}, 80", f"v_add_u32 v{dn}, s{sT3}, v{dn}",
         f"v_mul_u32_u24 v{t}, 640, v{q}", f"v_add_u32 v{t}, v{t}, v{dn}",
         f"v_lshlrev_b32 v{vOUT}, 2, v{t}", f"v_lshlrev_b32 v{vSTA}, 3, v{q}", f"v_lshlrev_b32 v{vDS}, 1, v{dn}",
         f"s_mul_i32 s{sT2}, s{sT2}, 1280", f"s_mul_i32 s{sT3}, s{sN}, 160", f"s_add_u32 s{sT5}, s{sT2}, s{sT3}", f"s_add_u32 s{sT5}, s{sT5}, 4096",
         f"s_mov_b32 s{sT3}, 6554"]
    a, b, c = vT[11], vT[12], vT[13]
    for p in range(3):
        r += [f"v_add_u32 v{a}, {64*p}, v{vLANE}", f"v_mul_u32_u24 v{b}, s{sT3}, v{a}", f"v_lshrrev_b32 v{b}, 16, v{b}",
              f"v_mul_u32_u24 v{c}, 10, v{b}", f"v_sub_u32 v{c}, v{a}, v{c}", f"v_lshlrev_b32 v{c}, 4, v{c}",
              f"v_and_b32 v{a}, 12, v{b}", f"v_add_u32 v{b}, v{a}, v{b}", f"v_mul_u32_u24 v{b}, 1280, v{b}", f"v_add_u32 v{vXD2[p]}, v{b}, v{c}"]
    r += [f"v_mov_b32 v{a}, {OOB}", f"v_cmp_gt_u32 vcc, 32, v{vLANE}", f"v_cndmask_b32 v{vXD2[2]}, v{a}, v{vXD2[2]}, vcc"]
    return r
def p2_epi_loads():
    r = []
    for p in range(3):
        r += [f"s_add_u32 m0, s{sT4}, {p*1024}", "s_nop 0", I(f"buffer_load_dwordx4 v{vXD2[p]}, s[{sX}:{sX+3}], s{sT5} offen lds", tok="XR")]
    for e in range(5):
        r.append(f"global_load_ushort v{vDK[e]}, v{vDS}, s[{pDSK}:{pDSK+1}] offset:{e*32}")
    r += [f"s_mov_b32 s{sD1}, {WS_STAT}",
          f"buffer_load_dwordx4 {vr(vST[0])}, v{vSTA}, s[{sWS}:{sWS+3}], s{sD1} offen sc1",
          f"buffer_load_dwordx4 {vr(vST[4])}, v{vSTA}, s[{sWS}:{sWS+3}], s{sD1} offen offset:16 sc1"]
    return r
def p2_xread():
    r = ["@waitvm XR"]
    for e in range(5):
        for rr in range(4):
            r.append(f"ds_read_u16 v{vXR[e*4+rr]}, v{vXL} offset:{rr*160 + e*32}")
    return r

def p2_skip():
    r = [f"v_lshlrev_b32 v{vDK[e]}, 16, v{vDK[e]}" for e in range(5)]
    for j in range(20): r.append(f"v_lshlrev_b32 v{vXR[j]}, 16, v{vXR[j]}")
    for e in range(5):
        for rr in range(4): r.append(f"v_fma_f32 v{96+e*4+rr}, v{vXR[e*4+rr]}, v{vST[2*rr]}, v{vST[2*rr+1]}")
        for rr in range(4): r.append(f"v_mul_f32 v{96+e*4+rr}, v{96+e*4+rr}, v{vDK[e]}")
    return r
def p2_gate():
    r = []
    T = vT[0:24]
    for e in range(5):
        b = T[12*(e % 2)]; b2 = b + 4; b3 = b + 8; Y = vY[e*4:e*4+4]
        r += [f"ds_read_b128 {vr(b)}, v{vPR} offset:{e*1024}", f"ds_read_b128 {vr(b2)}, v{vPR} offset:{5120 + e*1024}", f"ds_read_b128 {vr(b3)}, v{vPR} offset:{10240 + e*1024}"]
        if e > 0:
            p = T[12*((e-1) % 2)]; Yp = vY[(e-1)*4:e*4]
            for rr in range(4): r.append(f"v_mul_f32 v{Yp[rr]}, v{Yp[rr]}, v{p+rr}") if False else None
        for rr in range(4): r.append(f"v_add_f32 v{Y[rr]}, v{Y[rr]}, v{b+rr}")
        for rr in range(4): r.append(f"v_add_f32 v{b2+rr}, v{b2+rr}, v{b3+rr}")
        for rr in range(4): r.append(f"v_add_f32 v{Y[rr]}, v{Y[rr]}, v{b2+rr}")
        for rr in range(4): r.append(f"v_mul_f32 v{b+rr}, {NLOG2E}, v{Y[rr]}")
        for rr in range(4): r.append(f"v_exp_f32 v{b+rr}, v{b+rr}")
        for rr in range(4): r.append(f"v_add_f32 v{b+rr}, 1.0, v{b+rr}")
        for rr in range(4): r.append(f"v_rcp_f32 v{b+rr}, v{b+rr}")
        for rr in range(4): r.append(f"v_mul_f32 v{Y[rr]}, v{Y[rr]}, v{b+rr}")
    r += [f"v_add_u32 v{v}, {L_P2 - L_P1}, v{v}" for v in vPW + [vPR]]
    return r

sROW = [76, 77, 78, 79]
def p2_final():
    r = []
    O = list(range(96, 116)); B = list(range(176, 236))
    if not opt.fin2:
        for k in range(3):
            for e in range(5):
                r.append(f"ds_read_b128 {vr(B[k*20+e*4])}, v{vPR} offset:{k*5120 + e*1024}")
        for j in range(0, 20, 2): r.append(f"v_pk_fma_f32 {vr(vXR[j], 2)}, {vr(O[j], 2)}, {vr(vY[j], 2)}, {vr(vXR[j], 2)}")
        for j in range(0, 20, 2): r.append(f"v_pk_add_f32 {vr(B[j], 2)}, {vr(B[j], 2)}, {vr(B[20+j], 2)}")
        for j in range(0, 20, 2): r.append(f"v_pk_add_f32 {vr(B[j], 2)}, {vr(B[j], 2)}, {vr(B[40+j], 2)}")
        for j in range(0, 20, 2): r.append(f"v_pk_fma_f32 {vr(vXR[j], 2)}, {vr(B[j], 2)}, {vr(vY[j], 2)}, {vr(vXR[j], 2)}")
        for rr in range(4):
            for e in range(5):
                r.append(f"buffer_store_dword v{vXR[e*4+rr]}, v{vOUT}, s[{sOUT}:{sOUT+3}], s{sROW[rr]} offen offset:{e*64} {opt.out_flags}")
        return r
    for e in range(5):
        for k in range(3): r.append(f"ds_read_b128 {vr(B[k*20+e*4])}, v{vPR} offset:{k*5120 + e*1024}")
    for e in range(5):
        for j in (4*e, 4*e + 2): r.append(f"v_pk_add_f32 {vr(B[j], 2)}, {vr(B[j], 2)}, {vr(B[20+j], 2)}")
        for j in (4*e, 4*e + 2): r.append(f"v_pk_add_f32 {vr(B[j], 2)}, {vr(B[j], 2)}, {vr(B[40+j], 2)}")
        for j in (4*e, 4*e + 2): r.append(f"v_pk_fma_f32 {vr(vXR[j], 2)}, {vr(B[j], 2)}, {vr(vY[j], 2)}, {vr(vXR[j], 2)}")
        for rr in range(4):
            r.append(f"buffer_store_dword v{vXR[e*4+rr]}, v{vOUT}, s[{sOUT}:{sOUT+3}], s{sROW[rr]} offen offset:{e*64} {opt.out_flags}")
    return r
def p2_own():
    return [f"v_pk_fma_f32 {vr(vXR[j], 2)}, {vr(96+j, 2)}, {vr(vY[j], 2)}, {vr(vXR[j], 2)}" for j in range(0, 20, 2)]

def weave(main, extra, every=1):
    groups = []; cur = []
    for t in II(extra):
        cur.append(t)
        if t.cls == "vmem": groups.append(cur); cur = []
    if cur: groups.append(cur)
    out = []
    for k, t in enumerate(II(main)):
        out.append(t)
        if groups and k % every == every - 1: out += groups.pop(0)
    for g_ in groups: out += g_
    return out

def phase2(left):
    PH[0] = 2
    L(stamp("B mfma end"))
    L(delay("c", 15, 9, 600))
    L([f"s_mov_b32 s{sEX0}, {NLOG2E}", f"s_mov_b32 s{sEX1}, {NLOG2E}", f"s_mov_b32 s{sEX2}, 1.0", f"s_mov_b32 s{sEX3}, 1.0"])
    Wq = list(left); Aq = []
    assert all(id(gq[-1]) in STEP for gq in Wq)
    nextW = max([st for st in STEP.values()] + [-1]) + 1; nextA = 0
    while nextW < N1 + NLDS: Wq.extend(tagw(nextW)); nextW += 1
    def serial(lst, every, first=None):
        cnt = 0
        for t in II(lst):
            if t.cls == "pseudo" and t.op == "@gap": continue
            L([t])
            if t.cls in ("valu", "trans") and not t.op.startswith("v_cmp") and not INRAW[0]:
                cnt += 1
                q_ = first if first else Wq
                if q_ and cnt >= every and gstall(q_[0]) <= opt.thrs: L(q_.pop(0)); cnt = 0
            if t.op == "@raw_begin": INRAW[0] = True
            if t.op == "@raw_end": INRAW[0] = False
    swb = II(swiglu(ACCB, [0], sKSB, "HHB", packed=True))
    cl = len(swb) - opt.hald
    serial(swb[:cl], opt.every)
    if opt.sflag: L([f"s_mov_b32 s{sNN}, s{sNONCE}", f"s_mov_b32 s{sNN+1}, s{sNONCE}"]); assert opt.hald == 0
    else: L(fl_load(WS_FLHA))
    serial(swb[cl:], opt.every)
    L(stamp("epi B done"))
    def fill(st):
        nonlocal nextW, nextA
        while nextA <= min(st + opt.look, NSTEP - 1): Aq.extend(taga(nextA)); nextA += 1
        while nextW <= min(st + opt.lookW, NSTEP - 1) and nextW >= N1 + NLDS and w_free_after_p(nextW) < st: Wq.extend(tagw(nextW)); nextW += 1
    def head():
        if Wq and (not Aq or STEP[id(Wq[0][-1])] <= STEP[id(Aq[0][-1])]): return Wq
        return Aq if Aq else None
    p56 = II(scan_P56())[33:]
    serial(p56[:10], opt.every)
    L(p2_setup2())
    if opt.sflag:
        serial(p56[10:21], opt.every); L(fl_load(WS_FLHA)); serial(p56[21:opt.hack], opt.every)
    else: serial(p56[10:opt.hack], opt.every)
    L(fl_check(WS_FLHA)); L(stamp("ha ready"))
    while nextA < opt.a0: Aq.extend(taga(nextA)); nextA += 1
    if opt.shadow56:
        tail56 = p56[opt.hack:]; p56 = p56[:opt.hack]
        while Aq: L(Aq.pop(0))
    cst = next((k for k, t in enumerate(p56) if t.cls == "vmem"), len(p56))
    if opt.afirst and Aq: L(Aq.pop(0)); L(Aq.pop(0)); L(Aq.pop(0)); L(Aq.pop(0))
    serial(p56[opt.hack:cst], opt.every2, Aq)
    if opt.afirst:
        while Aq: L(Aq.pop(0))
    L(p56[cst:])
    L(stamp("h out"))
    while Aq: L(Aq.pop(0))
    if opt.hhpos < 0:
        L(["@waitvm HHB", "s_barrier"]); L(flag_store(WS_FLHH, sC, sG))
    L(stamp("flags out"))
    L([f"s_mov_b32 s{sROW[rr]}, {rr*2560}" for rr in range(4)])
    Q = Queue(); misc = []
    if opt.shadow56: Q.add(tail56, 20*opt.p2pos - opt.t56)
    g = 0; nread = N1
    for st in range(NSTEP):
        mf = p2_mfma(st)
        if st == 8 - opt.look:
            L(fl_check(WS_FLHH))
        if st == N1 - opt.look:
            L(fl_check(WS_FLH)); L(stamp("h ready"))
        fill(st)
        if st == opt.p2pos + 1:
            Q.add(p2_epi_addr(), g + 30)
        if st == opt.epos: misc.extend(groups(p2_epi_loads()))
        if st == opt.epos + 3:
            assert not misc or all("v29" in gq[-1].text for gq in misc)
            Q.add(p2_xread() + p2_skip(), 20*N1 - 4)
        if opt.sflag:
            if st == 8 - opt.look - opt.sfl: L(fl_load(WS_FLHH))
            if st == N1 - opt.look - opt.sfl: L(fl_load(WS_FLH))
        else:
            if st == 8 - opt.look - 2: misc[0:0] = groups(flag_load(WS_FLHH, sRT, 1, 15))
            if st == N1 - opt.look - 2: misc[0:0] = groups(flag_load(WS_FLH, sRT, 1, 15))
        while nread < N1 + NLDS and w_free_after_p(nread) < st and nread <= st + 3:
            assert not any(STEP.get(id(gq[-1])) == nread for gq in Wq)
            Q.add(p2_wread(nread), 20*(nread - 1) + 4); nread += 1
        if st == N1:
            L(stamp("out done"))
            yp = p2_partials(0, ACC1); rdy = [f"v_accvgpr_read_b32 v{vY[j]}, a{j}" for j in range(20)]
            mix = []
            for j in range(15): mix += [yp[j]] + rdy[j*4//3:(j+1)*4//3]
            Q.add(mix, 20*opt.ybar - 4)
        if st == opt.ybar:
            assert nread == N1 + NLDS
            L(Q.flush()); L(["@waitds0", "s_barrier"])
            Q.add(p2_gate(), 20*NSTEP - (44 if opt.merge2 else 24))
        def must(q): return [gq for gq in q if STEP[id(gq[-1])] <= st + opt.look]
        ng = len(must(Wq)) + len(Aq)
        per = -(-ng // 19)
        last = st == NSTEP - 1
        if opt.merge2 and st == NSTEP - 2:
            while head(): L(head().pop(0))
            held = mf; mf = []
        if last:
            L(Q.flush())
            if opt.merge2:
                both = []
                for jj in (1, 2, 3, 0): both += held[jj*5:jj*5+5] + mf[jj*5:jj*5+5]
                mf = both
            else: mf = mf[5:] + mf[:5]
            wr = II(p2_partials(0, ACC2))
        for k, t in enumerate(mf):
            E(t)
            used = 0
            if k >= 1:
                for _ in range(max(per, 1)):
                    h = head()
                    if misc and (gstall(misc[0]) <= opt.thr or st >= opt.epos + 1 or "v29" in misc[0][-1].text) and (k % 2 == 0 or not h): L(misc.pop(0)); used += 2
                    elif h and (STEP[id(h[0][-1])] <= st + opt.look or gstall(h[0]) <= opt.thr): L(h.pop(0)); used += 2
            if st == opt.hhpos and k == 19 and st != opt.p2pos:
                L(["@waitvm HHB", "s_barrier"]); L(flag_store(WS_FLHH, sC, sG))
            if st == opt.p2pos and k == 19:
                assert "HST" in EM[0].seen and not any(t.tok == "HST" for t, d in Q.q)
                L(["@waitvm HST", "s_barrier"])
                if st == opt.hhpos: L(flag_store(WS_FLHH, sC, sG))
                L(flag_store(WS_FLH, sC, sG))
            if last and wr and ((k >= 7) if not opt.merge2 else (k >= 12 and k % 2 == 0)): L([wr.pop(0)])
            Q.pop(2 - used, g); g += 1
        if st >= opt.epos + 2:
            while misc: L(misc.pop(0))
        if opt.fine2: L(stamp(f"st{st}"))
        while head() and STEP[id(head()[0][-1])] <= st + opt.look: L(head().pop(0))
    L(wr)
    if opt.fin2: L(p2_own())
    L(["@waitds0", "s_barrier"])
    L(stamp("y done"))
    L(p2_final())
    L(stamp("end")); L(stamp("cyc1", True))
INRAW = [False]

def diag_out():
    if not opt.diag: return
    L([f"s_lshl_b32 s{sT2}, s2, 2", f"s_add_u32 s{sT2}, s{sT2}, s{sW}", f"s_lshl_b32 s{sT2}, s{sT2}, 2", f"s_add_u32 s{sT2}, s{sT2}, {WS_STAMP}",
       f"v_mov_b32 v{vT[0]}, s{sNONCE}", f"buffer_store_dword v{vT[0]}, off, s[{sWS}:{sWS+3}], s{sT2}"])

def stamps_out():
    if opt.probe:
        L(["@raw_begin", "L_spin:", f"s_memrealtime s[{sSTAMP}:{sSTAMP+1}]", "s_waitcnt lgkmcnt(0)", f"s_sub_u32 s{sT2}, s{sSTAMP}, s3",
           f"s_cmp_lt_u32 s{sT2}, 5000", "s_cbranch_scc1 L_spin", "@raw_end"])
    if not opt.stamps: return
    L([f"s_lshl_b32 s{sT2}, s2, 2", f"s_add_u32 s{sT2}, s{sT2}, s{sW}", f"s_lshl_b32 s{sT2}, s{sT2}, 8", f"s_add_u32 s{sT2}, s{sT2}, {WS_STAMP}",
       f"v_lshlrev_b32 v{vT[0]}, 2, v{vLANE}", f"buffer_store_dword v0, v{vT[0]}, s[{sWS}:{sWS+3}], s{sT2} offen"])

def build():
    STEP.clear(); PH[0] = 1; EM[0] = Emitter(lines_of, lat_of, dslat=opt.dslat); lab[0] = 0; stamp_n[0] = 0; stamp_names.clear(); ST.n = 0
    prologue()
    L(stamp("issued")); L(stamp("cyc0", True))
    CAP[0] = rest = []
    setup_rest()
    L(scan_addr()); L(mlp_read_addr())
    constants()
    L(const_park())
    nonce_seed()
    L(relayout_issue()); L(relayout_raddr())
    if opt.t_w13: L(w13_touch_addr())
    L([f"v_min_u32 v{vT[0]}, 9, v{vLANE}", f"v_lshlrev_b32 v{vT[0]}, 7, v{vT[0]}", f"global_load_dword a231, v{vT[0]}, s[{pDSK}:{pDSK+1}]"])
    CAP[0] = None
    ra = atoms(rest); n0 = 0; k0 = 0
    while n0 < opt.pre0: L(ra[k0]); n0 += len(ra[k0]); k0 += 1
    L(stamp("consts"))
    tail = x_arrive(0, [i for a in ra[k0:] for i in a], 40)
    L(stamp("x0 in"))
    E("s_barrier")
    L(skew("0"))
    L(tail)
    L(x_stats(0))
    L([f"v_add_u32 v{vRX[0]}, 81920, v{vRX[0]}", f"v_add_u32 v{vRX[1]}, 81920, v{vRX[1]}"])
    nrm = []
    for s in range(20 - opt.late0): nrm += norm_step(0, s, opt.pk0, vT[20:24]) if "N" not in opt.skip else []
    if "Z" in opt.skip: nrm = ["s_nop 0"] * len(nrm)
    if "Y" in opt.skip: nrm = [t if "v_pk_fma" not in t else "v_mov_b32 v52, v53" for t in nrm]
    if "M" in opt.skip: nrm = [x for k, t in enumerate(nrm) for x in ([t, "s_nop 0"] if k % 4 == 3 else [t])]
    tail = x_arrive(1, nrm)
    L(stamp("x1 in"))
    L(weave(tail, ST.next(50 - ST.n, 50), 1))
    L(x_stats(1))
    L(mlp_dma_addr("A"))
    for s in range(opt.pre_norm): L(norm_step(1, s, True, vT[20:24]))
    assert ST.n == 50
    phase2(phase1_blocks())
    diag_out()
    stamps_out()
    E("s_endpgm")
    return EM[0].out

HEADER = """; Kernarg layout for this problem (128 bytes, ptrs only, base s[0:1]):
; @launch grid=(256,1,1) block=(256,1,1) lds=163840
.amdgcn_target "amdgcn-amd-amdhsa--gfx950"
.text
.globl {k}
.p2align 8
.type {k},@function
{k}:
"""
FOOTER = """
L_exit:
    s_endpgm
L_codeend:
    .fill 64, 4, 0xbf800000
.section .rodata,"a"
.p2align 6
.amdhsa_kernel {k}
  .amdhsa_next_free_vgpr 512
  .amdhsa_next_free_sgpr 102
  .amdhsa_accum_offset 256
  .amdhsa_group_segment_fixed_size 0
  .amdhsa_kernarg_size 128
  .amdhsa_user_sgpr_count 2
  .amdhsa_user_sgpr_kernarg_segment_ptr 1
  .amdhsa_system_sgpr_workgroup_id_x 1
  .amdhsa_float_denorm_mode_32 3
.end_amdhsa_kernel
"""
def text():
    prog = build()
    body = "\n".join(("" if i.cls == "label" else "    ") + i.text for i in prog)
    return HEADER.format(k=KNAME) + body + FOOTER.format(k=KNAME), prog

if __name__ == "__main__":
    out = sys.argv[1]
    for a in sys.argv[2:]:
        k, v = a.split("=")
        cur = getattr(opt, k)
        setattr(opt, k, v.replace("_", " ") if isinstance(cur, str) else (v in ("1", "True") if isinstance(cur, bool) else type(cur)(float(v))))
    t, prog = text()
    open(out, "w").write(t)
    print(stats(prog), len(prog))
    if opt.sim:
        em = EM[0]; prev = 0
        for j, (n, m) in enumerate(zip(stamp_names, em.marks)):
            big = sorted([x for x in em.stalls if x[1] == j], reverse=True)
            print(f"{n:12s} {m:7.0f} ({m-prev:5.0f}) stalls {sum(x[0] for x in big):5.0f} :", "; ".join(f"{x[0]:.0f} {x[2][:44]}" for x in big[:4]))
            prev = m
    if opt.stamps:
        import json
        json.dump(stamp_names, open(out + ".stamps.json", "w"))
```

```python
import sys, os
sys.path.insert(0, os.path.dirname(os.path.abspath(__file__)))
from asmlib import I, stats, insert_nops, Emitter

KNAME = "recurrent_scan__ssm_conv_s5__glu_gated_swiglu__prompt_kernel"

class Opt:
    fine = False
    splitx = False
    fine2 = False
    pk0 = True
    xhit = False
    chain = 0
    sim = False
    fakehit = ''
    delay = 0
    diag = False
    cycles = False
    skip = ''
    probe = ''
    stamps = False
    codepf = True
    krot = True
    prot = False
    pre0 = 120
    late0 = 0
    pflines = 12
    win = 8
    pre_norm = 1
    skew = False
    mstat = True
    t_x1 = False
    t_w13 = False
    b10 = 1
    rf_stage = 2
    slack = 22
    rl_pos = 0
    capU = 3
    capM = 5
    span = 5
    X_stage = 2
    L_stage = 5
    C_stage = 7
    Y_stage = 8
    H_stage = 11
    F_stage = 1
    W_stage = 4
    nearly = 12
    rl_nt = False
    out_flags = "sc1"
    x_flags = ""
    w_flags = ""
    p1map = 0
    p2map = 1
    p2pos = 2
    epos = 6
    afirst = True
    m23 = 0
    onewait = False
    fin2 = True
    merge2 = False
    sflag = False
    sfl = 2
    shadow56 = True
    t56 = 2
    hhpos = 0
    hack = 91
    haend = 18
    hast = 14
    hald = 0
    thrs = 200
    hhld = 50
    hhck = 130
    every = 7
    every2 = 2
    a0 = 3
    thrb = 40
    cad = 3
    cadA = 6
    pace = 10.0
    burst = 100
    coldpace = 1.5
    vmcost = 4
    ybar = 17
    hchk = 4
    HL_stage = 13
    look = 2
    lookW = 6
    thr = 16
    dsmax = 3
    interp = True
    vlat = 14
    chainq = True
    dslat = 130
    even = True
    thrm = 100
    slot0 = 5
    earlyA = False
    roty = False
    latA = 640
    latW = 620
opt = Opt()

WS_A2 = 0
WS_W2P = 0xB00000
WS_S = 0xF00000
WS_STAT = 0xF40000
WS_FLW = 0xF50000
WS_FLH = 0xF51000
WS_FLHH = 0xF52000
WS_FLHA = 0xF54000
WS_SEED = 0xF53000
WS_STAMP = 0xF60000
WS_SIZE = 0x1000000
OOB = 0x40000000

L_RL = 102400
L_PRIV = 122880
PV_COL, PV_CH, PV_E = 0, 1280, 4352
L_TT = 155648
L_LB = 159744
L_WY = 0
L_P1 = 81920
L_P2 = 0

sX, sWU, sWM, sWS, sOUT, sRL, sDBG = 36, 40, 44, 48, 52, 56, 60
(sW, sC, sG, sRT, sN, sNONCE, sT0, sT1, sT2, sT3, sXOFF, sUOFF, sMOFF, sMOFFB, sRLOFF, sRLST,
 sA2H, sKSA, sKSB, sSST, sLB0, sLB1, sLB2, sLB3, sEX0, sEX1, sEX2, sEX3, sM0, sM0A, sCNT, sP2A, sP2W, sT4, sT5, sSTATO) = range(64, 100)
sSTAMP = 100
pX, pLRE, pLIM, pBRE, pBIM, pCRE, pCIM, pLDT = 4, 6, 8, 10, 12, 14, 16, 18
pDSK, pBX, pW1, pW3, pW2, pOUT, pDBG, pWS = 20, 22, 24, 26, 28, 30, 32, 34
sKU = [22, 23, 0, 1, 32]
sD0, sD1 = 4, 5
sRY, sRO = 6, 7
sAP, sAS, sAE, sWP, sWB, sWE = 8, 9, 10, 11, 12, 13
sM0U, sSEEDO = 18, 19
sD2 = 31
sRLT = 33
sHO = [24, 25, 26, 27, 30]

vLANE, vL16 = 1, 2
vRX = [3, 4]; vRU = [5, 6]
vRA = [7, 8]; vRB = 9; vHH = 10; vDU = 11; vW4 = 12
vD = [13, 14, 15, 16]
vXD = vD
vDB = [3, 4, 5, 6]; vRB2 = 11
BSLOT = {10: 4, 11: 5, 12: 2, 13: 3, 14: 0}
BISSUE = {2: (11, 7), 6: (12, 8), 7: (13, 9), 8: (14, 10)}
vUD = [11, 27, 28, 29]
vEW, vER, vCOLR, vCH, vTT, vLB, vTW, vTR, vHST, vSO = range(17, 27)
vWP0, vWP1, vFLAG, vNON = 27, 28, 29, 30
vT = list(range(32, 56))
def U(cf, f): return 56 + (cf * 2 + f) * 4
def X(f, s): return 96 + (f * 20 + s) * 4
def ACCA(mu, h2): return (mu * 2 + h2) * 16
def FB(par, fr): return 64 + par * 32 + fr * 4
def ACCB(mu, h2=0): return 128 + mu * 16
aRL = 160
aS = 180

def vr(n, c=4): return f"v[{n}:{n+c-1}]"
def ar(n, c=4): return f"a[{n}:{n+c-1}]"
def sr(n, c=4): return f"s[{n}:{n+c-1}]"

def lines_of(i):
    t = i.text
    if "ushort" in t: return 1
    if i.tok and i.tok[0] == "M" and int(i.tok[1:]) >= 10: return 16
    if i.tok == "RL": return 16
    if i.tok == "XR": return 11
    if " off," in t and "global" not in t: return 1
    if "dwordx2" in t: return 2
    if "load_dword " in t and "offen" in t: return 1 if "sc1" in t else 32
    if "global_load_dword" in t: return 0
    if "store_dword " in t: return 4 if "offen" in t else 1
    return 8
def lat_of(i):
    t = i.text; tok = i.tok or ""
    cold = 1500
    if "store" in t: return 820 if "sc1" in t else 330
    if tok.startswith("x"): return cold if tok in ("x0_0", "x0_1", "x1_0", "x1_1") else 800
    if tok.startswith("U"): return cold if tok == "U0" else 800
    if tok == "RL" or tok == "TW": return cold
    if tok.startswith("M"): return cold if (tok in ("M0", "M1", "M10") and not opt.t_w13) else 520
    if tok == "W" or tok.startswith("WL"): return opt.latW
    if tok == "A": return opt.latA
    if "sc1" in t: return 1000
    return 700
EM = [None]
CAP = [None]
def E(t, tok=None):
    i = I(t, tok)
    if CAP[0] is not None: CAP[0].append(i)
    else: EM[0].feed(i)
    return i
def L(lst):
    for t in lst:
        i = t if isinstance(t, I) else I(t)
        if CAP[0] is not None: CAP[0].append(i)
        else: EM[0].feed(i)
def atoms(lst):
    out = []; depth = 0
    for i in lst:
        glue = depth > 0 or i.op.startswith(("s_cselect", "s_addc", "s_subb", "v_cndmask", "v_addc")) or i.cls in ("branch", "label") or i.op in ("@arm", "@else", "@endarm")
        if out and glue: out[-1].append(i)
        else: out.append([i])
        if i.op == "@arm": depth += 1
        if i.op == "@endarm": depth -= 1
    return out
def II(lst): return [t if isinstance(t, I) else I(t) for t in lst]

def srd(d, p, nbytes):
    return [f"s_mov_b32 s{d}, s{p}", f"s_and_b32 s{d+1}, s{p+1}, 0xffff", f"s_mov_b32 s{d+2}, {nbytes}", f"s_mov_b32 s{d+3}, 0x20000"]

stamp_n = [0]
stamp_names = []
def stamp(name, cyc=False):
    if opt.probe:
        if name != opt.probe: return []
        return [f"s_memrealtime s[{sSTAMP}:{sSTAMP+1}]", "@waitds0", f"s_mov_b32 s3, s{sSTAMP}"]
    if not opt.stamps: return []
    k = stamp_n[0]; stamp_n[0] += 1
    stamp_names.append(name)
    return [f"s_memtime s[{sSTAMP}:{sSTAMP+1}]" if (cyc or opt.cycles) else f"s_memrealtime s[{sSTAMP}:{sSTAMP+1}]", "@waitds0",
            f"v_writelane_b32 v0, s{sSTAMP}, {k}"]

def cmul(dr, di, ar_, ai, br, bi, t):
    return [f"v_mul_f32 v{t}, v{ai}, v{bi}", f"v_mul_f32 v{di}, v{ai}, v{br}",
            f"v_fma_f32 v{dr}, v{ar_}, v{br}, -v{t}", f"v_fmac_f32 v{di}, v{ar_}, v{bi}"]
def csq(dr, di, r, i, t):
    return [f"v_mul_f32 v{t}, v{i}, v{i}", f"v_mul_f32 v{di}, v{r}, v{i}",
            f"v_fma_f32 v{dr}, v{r}, v{r}, -v{t}", f"v_add_f32 v{di}, v{di}, v{di}"]
def chorner2(dr, di, gr, gi, mr, mi, er, ei):
    return [f"v_fma_f32 v{dr}, v{mr}, v{gr}, v{er}", f"v_fma_f32 v{di}, v{mr}, v{gi}, v{ei}",
            f"v_fma_f32 v{dr}, -v{mi}, v{gi}, v{dr}", f"v_fma_f32 v{di}, v{mi}, v{gr}, v{di}"]

LOG2E = "0x3fb8aa3b"
NLOG2E = "0xbfb8aa3b"
INV2PI = "0.15915494"

def x_piece(n):
    f, S, ih = n // 20, (n % 20) // 2, n & 1
    p = n & 3
    r = []
    if p == 0:
        r = [f"s_add_u32 m0, s{sM0}, {f*81920 + (2*S)*1024}", f"s_add_u32 s{sD1}, s{sKU[S >> 1]}, s{sXOFF}"]
        if f: r.append(f"s_add_u32 s{sD1}, s{sD1}, {4*1280}")
    r.append(I(f"buffer_load_dwordx4 v{vXD[p]}, s[{sX}:{sX+3}], s{sD1} offen offset:{p*1024} {opt.x_flags} lds", tok=f"x{f}_{S}"))
    return r
def u_piece(i, cf):
    r = []
    if cf == 0: r = [f"s_add_u32 m0, s{sM0U}, {i*20480}", f"s_add_u32 s{sD1}, s{sKU[i]}, s{sUOFF}"]
    if cf == 4: r = [f"s_add_u32 m0, s{sM0U}, {i*20480 + 4096}", f"s_add_u32 s{sD1}, s{sD1}, {4*10240}"]
    r.append(I(f"buffer_load_dwordx4 v{vUD[cf & 3]}, s[{sWU}:{sWU+3}], s{sD1} offen offset:{(cf & 3)*1024} {opt.w_flags} lds", tok=f"U{i}"))
    return r
class Stream:
    def __init__(self): self.n = 0
    def next(self, k, limit=60):
        r = []
        for _ in range(k):
            if self.n >= limit: break
            r += x_piece(self.n) if self.n < 40 else u_piece((self.n - 40) // 5, (self.n - 40) % 5)
            self.n += 1
        return r
ST = Stream()

def prologue():
    E(f"s_cmp_ge_u32 s2, 256")
    E("s_cbranch_scc1 L_exit")
    E("s_load_dwordx16 s[4:19], s[0:1], 0")
    E("s_load_dwordx16 s[20:35], s[0:1], 64")
    if opt.stamps or opt.probe == "entry":
        E(f"s_{'memtime' if opt.cycles else 'memrealtime'} s[{sSTAMP}:{sSTAMP+1}]")
    if opt.codepf:
        n = opt.pflines
        L(["@raw_begin", f"s_getpc_b64 s[{sT2}:{sT3}]", "L_pc:",
           f"s_lshr_b32 s{sT4}, s2, 3", f"s_mul_i32 s{sT4}, s{sT4}, {n*128}",
           f"v_min_u32 v{vT[0]}, {n-1}, v0", f"v_lshlrev_b32 v{vT[0]}, 7, v{vT[0]}", f"v_add_u32 v{vT[0]}, s{sT4}, v{vT[0]}",
           f"v_min_u32 v{vT[0]}, L_codeend-L_pc-4, v{vT[0]}",
           f"v_mov_b32 v{vT[1]}, s{sT3}", f"v_add_co_u32 v{vT[0]}, vcc, s{sT2}, v{vT[0]}", f"v_cmp_gt_u32 s[{sEX0}:{sEX0+1}], {n}, v0", "s_nop 0",
           f"v_addc_co_u32 v{vT[1]}, vcc, 0, v{vT[1]}, vcc", f"s_and_b64 s[{sEX0}:{sEX0+1}], s[{sEX0}:{sEX0+1}], exec",
           "s_cbranch_scc0 L_nopf", f"s_mov_b64 exec, s[{sEX0}:{sEX0+1}]",
           f"global_load_dword a230, v[{vT[0]}:{vT[1]}], off", "s_mov_b64 exec, -1", "L_nopf:", "@raw_end"])
    E(f"v_lshrrev_b32 v{vT[0]}, 6, v0")
    E(f"v_and_b32 v{vLANE}, 63, v0")
    E(f"v_readfirstlane_b32 s{sW}, v{vT[0]}")
    E(f"v_lshlrev_b32 v{vL16}, 4, v{vLANE}")
    L([f"s_and_b32 s{sT0}, s2, 7", f"s_lshr_b32 s{sT1}, s2, 3"])
    if opt.p1map == 0:
        L([f"s_and_b32 s{sC}, s{sT0}, 1", f"s_lshl_b32 s{sC}, s{sC}, 3", f"s_and_b32 s{sT2}, s{sT1}, 7", f"s_add_u32 s{sC}, s{sC}, s{sT2}",
           f"s_lshr_b32 s{sG}, s{sT0}, 1", f"s_lshl_b32 s{sG}, s{sG}, 2", f"s_lshr_b32 s{sT2}, s{sT1}, 3", f"s_add_u32 s{sG}, s{sG}, s{sT2}"])
    else:
        L([f"s_and_b32 s{sC}, s{sT0}, 3", f"s_lshl_b32 s{sC}, s{sC}, 2", f"s_and_b32 s{sT2}, s{sT1}, 3", f"s_add_u32 s{sC}, s{sC}, s{sT2}",
           f"s_lshr_b32 s{sG}, s{sT0}, 2", f"s_lshl_b32 s{sG}, s{sG}, 3", f"s_lshr_b32 s{sT2}, s{sT1}, 2", f"s_add_u32 s{sG}, s{sG}, s{sT2}"])
    t0, t1, t2, t3 = vT[0:4]
    L([f"v_lshrrev_b32 v{t0}, 3, v{vLANE}", f"v_and_b32 v{t1}, 7, v{vLANE}", f"v_and_b32 v{t2}, 6, v{t0}",
       f"v_xor_b32 v{t1}, v{t1}, v{t2}", f"v_lshlrev_b32 v{t1}, 4, v{t1}",
       f"v_and_b32 v{t2}, 4, v{t0}", f"v_add_u32 v{t2}, v{t2}, v{t0}",
       f"v_mul_u32_u24 v{vD[0]}, 1280, v{t2}", f"v_add_u32 v{vD[0]}, v{vD[0]}, v{t1}",
       f"v_mul_u32_u24 v{vDU}, 1280, v{t0}", f"v_add_u32 v{vDU}, v{vDU}, v{t1}",
       f"v_add_u32 v{vD[0]}, 4096, v{vD[0]}", f"v_add_u32 v{vD[1]}, {16*1280 - 1024}, v{vD[0]}",
       f"v_add_u32 v{vD[2]}, {128 - 2048}, v{vD[0]}", f"v_add_u32 v{vD[3]}, {16*1280 + 128 - 3072}, v{vD[0]}"])
    L([f"s_mul_i32 s{sT2}, s{sG}, 80", f"v_min_u32 v{t3}, 39, v{vLANE}", f"v_lshlrev_b32 v{t3}, 1, v{t3}", f"v_add_u32 v{t3}, s{sT2}, v{t3}"])
    L([f"s_lshl_b32 s{sXOFF}, s{sC}, 2", f"s_add_u32 s{sXOFF}, s{sXOFF}, s{sW}", f"s_mul_i32 s{sXOFF}, s{sXOFF}, {0 if opt.xhit else 32*1280}",
       f"s_mul_i32 s{sM0}, s{sW}, 20480"])
    if opt.krot:
        L([f"s_add_u32 s{sT4}, s{sC}, s{sG}", f"s_mul_i32 s{sT5}, s{sT4}, 52", f"s_lshr_b32 s{sT5}, s{sT5}, 8", f"s_mul_i32 s{sT5}, s{sT5}, 5",
           f"s_sub_u32 s{sT4}, s{sT4}, s{sT5}", f"s_lshl_b32 s{sT4}, s{sT4}, 8"])
    else:
        E(f"s_mov_b32 s{sT4}, 0")
    E("@waitds0")
    if opt.probe == "entry": E(f"s_mov_b32 s3, s{sSTAMP}")
    if opt.stamps:
        E(f"v_mov_b32 v0, 0")
        E(f"v_writelane_b32 v0, s{sSTAMP}, 0"); stamp_n[0] = 1; stamp_names.append("entry")
    if opt.chain:
        L([f"s_mul_i32 s{sT2}, s2, {60*128}", f"s_add_u32 s{sT2}, s{pW2}, s{sT2}", f"s_addc_u32 s{sT3}, s{pW2+1}, 0", f"v_mov_b32 v{vT[8]}, 0"])
        for k in range(opt.chain):
            L([f"global_load_dword v{vT[9]}, v{vT[8]}, s[{sT2}:{sT3}]", "@waitvm0", f"v_add_u32 v{vT[8]}, 128, v{vT[8]}"])
    E(f"global_load_ushort v{vT[4]}, v{t3}, s[{pLRE}:{pLRE+1}]")
    E(f"global_load_ushort v{vT[5]}, v{t3}, s[{pLIM}:{pLIM+1}]")
    E(f"global_load_ushort v{vT[6]}, v{t3}, s[{pLDT}:{pLDT+1}]")
    L([f"s_sub_u32 s{sX}, s{pX}, 4096", f"s_subb_u32 s{sX+1}, s{pX+1}, 0", f"s_and_b32 s{sX+1}, s{sX+1}, 0xffff",
       f"s_mov_b32 s{sX+2}, {2048*1280 + 4096}", f"s_mov_b32 s{sX+3}, 0x20000"])
    L(srd(sDBG, pDBG, 256))
    def ku(j): return [f"s_add_u32 s{sKU[j]}, s{sT4}, {j*256}", f"s_cmp_ge_u32 s{sKU[j]}, 1280", f"s_cselect_b32 s{sT5}, 1280, 0", f"s_sub_u32 s{sKU[j]}, s{sKU[j]}, s{sT5}"]
    L(ku(0)); L(ST.next(4))
    L(srd(sWS, pWS, WS_SIZE))
    L([f"s_or_b32 s{sT2}, s2, s{sW}", f"s_cmp_eq_u32 s{sT2}, 0", f"s_mov_b32 s{sT3}, {WS_SEED}", f"s_cselect_b32 s{sSEEDO}, s{sT3}, {OOB}"])
    E(f"buffer_load_dword v{vT[7]}, off, s[{sWS}:{sWS+3}], s{sSEEDO} sc1")
    L(ku(1)); L(ST.next(opt.win - 4))
    for j in range(2, 5): L(ku(j))
    i_, q_, a0, a1 = vT[8:12]
    L([f"v_and_b32 v{i_}, 15, v{vLANE}", f"v_lshrrev_b32 v{q_}, 4, v{vLANE}",
       f"v_and_b32 v{a0}, 7, v{i_}", f"v_and_b32 v{a1}, 6, v{i_}", f"v_xor_b32 v{a1}, v{a1}, v{q_}", f"v_lshlrev_b32 v{a1}, 4, v{a1}",
       f"v_lshl_add_u32 v{a1}, v{a0}, 7, v{a1}",
       f"v_lshrrev_b32 v{a0}, 3, v{i_}",
       f"v_mul_u32_u24 v{vRU[0]}, 5120, v{a0}", f"v_add_u32 v{vRU[0]}, v{vRU[0]}, v{a1}", f"v_xor_b32 v{vRU[1]}, 64, v{vRU[0]}",
       f"v_lshl_add_u32 v{vRX[0]}, v{a0}, 10, v{a1}", f"v_add_u32 v{vRX[0]}, s{sM0}, v{vRX[0]}", f"v_xor_b32 v{vRX[1]}, 64, v{vRX[0]}",
       f"v_add_u32 v{vW4}, 4096, v{vL16}", f"v_mov_b32 v{vONES}, 0x3f803f80"])
    L([f"v_accvgpr_write_b32 a{aONE+k}, v{vONES}" for k in range(4)])
    L([f"v_add_u32 v{vUD[p]}, {p*(10240 - 1024)}, v{vDU}" for p in range(1, 4)])

def setup_rest():
    t0 = vT[0]
    L([f"s_bitcmp1_b32 s{sW}, 0",
       f"s_cselect_b32 s{sWU}, s{pBIM}, s{pBRE}", f"s_cselect_b32 s{sWU+1}, s{pBIM+1}, s{pBRE+1}",
       f"s_cselect_b32 s{sWM}, s{pW3}, s{pW1}", f"s_cselect_b32 s{sWM+1}, s{pW3+1}, s{pW1+1}",
       f"s_and_b32 s{sWU+1}, s{sWU+1}, 0xffff", f"s_and_b32 s{sWM+1}, s{sWM+1}, 0xffff",
       f"s_mov_b32 s{sWU+2}, {640*1280}", f"s_mov_b32 s{sWU+3}, 0x20000",
       f"s_mov_b32 s{sWM+2}, {640*3072}", f"s_mov_b32 s{sWM+3}, 0x20000"])
    L(srd(sOUT, pOUT, 2048*2560))
    if opt.p2map == 0:
        L([f"s_lshl_b32 s{sRT}, s{sT0}, 2", f"s_and_b32 s{sT2}, s{sT1}, 3", f"s_add_u32 s{sRT}, s{sRT}, s{sT2}", f"s_lshr_b32 s{sN}, s{sT1}, 2"])
    else:
        L([f"s_and_b32 s{sRT}, s{sT0}, 3", f"s_lshl_b32 s{sRT}, s{sRT}, 3", f"s_and_b32 s{sT2}, s{sT1}, 7", f"s_add_u32 s{sRT}, s{sRT}, s{sT2}",
           f"s_lshr_b32 s{sN}, s{sT0}, 2", f"s_lshl_b32 s{sN}, s{sN}, 2", f"s_lshr_b32 s{sT2}, s{sT1}, 3", f"s_add_u32 s{sN}, s{sN}, s{sT2}"])
    L([f"s_mul_i32 s{sUOFF}, s{sG}, {40*1280}", f"s_lshr_b32 s{sT2}, s{sW}, 1", f"s_lshl_b32 s{sT2}, s{sT2}, 7", f"s_add_u32 s{sUOFF}, s{sUOFF}, s{sT2}",
       f"s_mul_i32 s{sM0U}, s{sW}, 5120"])
    L([f"s_mul_i32 s{sT2}, s{sG}, 192", f"s_bitcmp1_b32 s{sG}, 0",
       f"s_cselect_b32 s{sT3}, 64, 0", f"s_cselect_b32 s{sT4}, 0, 128", f"s_add_u32 s{sMOFF}, s{sT2}, s{sT3}", f"s_add_u32 s{sMOFFB}, s{sT2}, s{sT4}",
       f"s_lshr_b32 s{sT2}, s{sW}, 1",
       f"s_mul_i32 s{sT3}, s{sT2}, {32*3072}", f"s_add_u32 s{sMOFF}, s{sMOFF}, s{sT3}",
       f"s_mul_i32 s{sT3}, s{sT2}, {64*3072}", f"s_add_u32 s{sMOFFB}, s{sMOFFB}, s{sT3}",
       f"s_lshl_b32 s{sM0A}, s{sW}, 12"])
    L([f"s_lshl_b32 s{sT3}, s{sC}, 1", f"s_add_u32 s{sT3}, s{sT3}, s{sT2}", f"s_mul_i32 s{sA2H}, s{sT3}, {88*4096}",
       f"s_and_b32 s{sT3}, s{sW}, 1", f"s_lshl_b32 s{sT3}, s{sT3}, 11", f"s_add_u32 s{sA2H}, s{sA2H}, s{sT3}",
       f"s_mul_i32 s{sT3}, s{sG}, 3", f"s_add_u32 s{sT3}, s{sT3}, 40", f"s_and_b32 s{sT4}, s{sG}, 1",
       f"s_add_u32 s{sKSA}, s{sT3}, s{sT4}", f"s_lshl_b32 s{sKSA}, s{sKSA}, 12", f"s_add_u32 s{sKSA}, s{sKSA}, s{sA2H}",
       f"s_xor_b32 s{sT4}, s{sT4}, 1", f"s_lshl_b32 s{sT4}, s{sT4}, 1",
       f"s_add_u32 s{sKSB}, s{sT3}, s{sT4}", f"s_lshl_b32 s{sKSB}, s{sKSB}, 12", f"s_add_u32 s{sKSB}, s{sKSB}, s{sA2H}"])
    L([f"s_lshl_b32 s{sT3}, s{sG}, 4", f"s_add_u32 s{sT4}, s{sT3}, s{sC}", f"s_mul_i32 s{sT4}, s{sT4}, 640", f"s_add_u32 s{sT4}, s{sT4}, {WS_S}",
       f"s_cmp_eq_u32 s{sW}, 3", f"s_cselect_b32 s{sSST}, s{sT4}, {OOB}"])
    for jj, sl in enumerate((sLB0, sLB1, sLB2, sLB3)):
        L([f"s_lshl_b32 s{sT4}, s{sW}, 2", f"s_add_u32 s{sT4}, s{sT4}, s{sC}", f"s_add_i32 s{sT4}, s{sT4}, {jj-16}",
           f"s_add_u32 s{sT5}, s{sT3}, s{sT4}", f"s_mul_i32 s{sT5}, s{sT5}, 640", f"s_add_u32 s{sT5}, s{sT5}, {WS_S}",
           f"s_cmp_ge_i32 s{sT4}, 0", f"s_cselect_b32 s{sl}, s{sT5}, {OOB}"])
    L([f"s_lshl_b32 s{sT3}, s{sC}, 2", f"s_add_u32 s{sT3}, s{sT3}, s{sW}", f"s_lshl_b32 s{sT3}, s{sT3}, 8", f"s_add_u32 s{sT3}, s{sT3}, {WS_STAT}",
       f"s_cmp_eq_u32 s{sG}, 0", f"s_cselect_b32 s{sSTATO}, s{sT3}, {OOB}"])
    for cf in range(5):
        L([f"s_mul_i32 s{sT2}, s{sG}, 5", f"s_add_u32 s{sT2}, s{sT2}, {cf}", f"s_and_b32 s{sT4}, s{sT2}, 3", f"s_lshr_b32 s{sT2}, s{sT2}, 2",
           f"s_lshl_b32 s{sT2}, s{sT2}, 12", f"s_lshl_b32 s{sT4}, s{sT4}, 8", f"s_add_u32 s{sT2}, s{sT2}, s{sT4}", f"s_add_u32 s{sHO[cf]}, s{sT2}, s{sA2H}"])
    L([f"s_mul_i32 s{sP2A}, s{sRT}, {88*4096}", f"s_mul_i32 s{sP2W}, s{sN}, {88*5120}", f"s_add_u32 s{sP2W}, s{sP2W}, {WS_W2P}"])
    if "A" in opt.fakehit: E(f"s_mov_b32 s{sP2A}, 0")
    if "W" in opt.fakehit: E(f"s_mov_b32 s{sP2W}, {WS_W2P}")
    L(ptr_bases())

cAR, cAI, cKR, cKI = 56, 57, 58, 59
cA8, cA32, cA32W, cA128, cOM = 60, 62, 64, 66, 68
def constants():
    lre, lim, ldt = vT[4], vT[5], vT[6]
    t = list(range(72, 96))
    L([f"v_lshlrev_b32 v{lre}, 16, v{lre}", f"v_lshlrev_b32 v{lim}, 16, v{lim}", f"v_lshlrev_b32 v{ldt}, 16, v{ldt}",
       f"v_mul_f32 v{t[0]}, {LOG2E}, v{ldt}", f"v_exp_f32 v{t[0]}, v{t[0]}",
       f"v_cvt_pk_bf16_f32 v{t[0]}, v{t[0]}, v{t[0]}", f"v_lshlrev_b32 v{t[0]}, 16, v{t[0]}",
       f"v_mul_f32 v{t[1]}, v{t[0]}, v{lre}", f"v_mul_f32 v{t[2]}, v{t[0]}, v{lim}",
       f"v_mul_f32 v{t[1]}, {LOG2E}, v{t[1]}", f"v_exp_f32 v{t[1]}, v{t[1]}",
       f"v_mul_f32 v{t[2]}, {INV2PI}, v{t[2]}", f"v_rndne_f32 v{t[3]}, v{t[2]}", f"v_sub_f32 v{t[2]}, v{t[2]}, v{t[3]}",
       f"v_cos_f32 v{t[3]}, v{t[2]}", f"v_sin_f32 v{t[4]}, v{t[2]}",
       f"v_mul_f32 v{cAR}, v{t[1]}, v{t[3]}", f"v_mul_f32 v{cAI}, v{t[1]}, v{t[4]}",
       f"v_add_f32 v{t[3]}, -1.0, v{cAR}",
       f"v_mul_f32 v{t[5]}, v{lre}, v{lre}", f"v_fmac_f32 v{t[5]}, v{lim}, v{lim}", f"v_rcp_f32 v{t[5]}, v{t[5]}",
       f"v_mul_f32 v{t[6]}, v{t[3]}, v{lre}", f"v_fmac_f32 v{t[6]}, v{cAI}, v{lim}",
       f"v_mul_f32 v{t[7]}, v{cAI}, v{lre}", f"v_fma_f32 v{t[7]}, -v{t[3]}, v{lim}, v{t[7]}",
       f"v_add_f32 v{t[5]}, v{t[5]}, v{t[5]}",
       f"v_mul_f32 v{cKR}, v{t[6]}, v{t[5]}", f"v_mul_f32 v{cKI}, v{t[7]}, v{t[5]}"])
    r, i, tt = t[8], t[9], t[0]
    L([f"v_mov_b32 v{r}, v{cAR}", f"v_sub_f32 v{i}, 0, v{cAI}"])
    L(csq(t[10], t[11], r, i, tt)); L(csq(r, i, t[10], t[11], tt))
    L(csq(cA8, cA8+1, r, i, tt))
    L(csq(r, i, cA8, cA8+1, tt))
    L(csq(cA32, cA32+1, r, i, tt))
    L(csq(t[12], t[13], cA32, cA32+1, tt))
    L(csq(cA128, cA128+1, t[12], t[13], tt))
    L(csq(r, i, cA128, cA128+1, tt))
    L(csq(t[14], t[15], r, i, tt))
    L(csq(t[16], t[17], t[14], t[15], tt))
    def sel(dst, src, mask, on):
        if on:
            return [f"v_cndmask_b32 v{dst}, 1.0, v{src}, s[{mask}:{mask+1}]", f"v_cndmask_b32 v{dst+1}, 0, v{src+1}, s[{mask}:{mask+1}]"]
        return [f"v_mov_b32 v{t[22]}, 1.0", f"v_mov_b32 v{t[23]}, 0",
                f"v_cndmask_b32 v{dst}, v{src}, v{t[22]}, s[{mask}:{mask+1}]", f"v_cndmask_b32 v{dst+1}, v{src+1}, v{t[23]}, s[{mask}:{mask+1}]"]
    L([f"s_bitcmp1_b32 s{sW}, 0", f"s_cselect_b64 s[{sEX0}:{sEX0+1}], -1, 0", f"s_bitcmp1_b32 s{sW}, 1", f"s_cselect_b64 s[{sEX2}:{sEX2+1}], -1, 0"])
    L(sel(t[18], cA32, sEX0, True)); L(sel(t[20], t[12], sEX2, True))
    L(cmul(cA32W, cA32W+1, t[18], t[19], t[20], t[21], tt))
    L(sel(t[18], t[14], sEX0, False)); L(sel(t[20], t[16], sEX2, False))
    L(cmul(cOM, cOM+1, t[18], t[19], t[20], t[21], tt))

def nonce_seed():
    sd = vT[7]
    L([f"s_mov_b32 s{sT2}, 1664525", f"v_mul_lo_u32 v{sd}, v{sd}, s{sT2}", f"v_add_u32 v{vNON}, 1013904223, v{sd}", f"v_mov_b32 v{vNON+1}, 1"])
    E(f"buffer_store_dword v{vNON}, off, s[{sWS}:{sWS+3}], s{sSEEDO} sc1", tok="seed")
def nonce_publish():
    return [f"s_cmp_lt_u32 s{sSEEDO}, {OOB}", f"s_cselect_b32 s{sT5}, 0, {OOB}", "@waitvm seed",
            f"buffer_store_dwordx2 v[{vNON}:{vNON+1}], off, s[{sDBG}:{sDBG+3}], s{sT5} sc1"]

lab = [0]
def poll(load_text, check):
    lab[0] += 1
    n = lab[0]
    r = list(check)
    r += [f"s_cbranch_vccz L_ok{n}", "@raw_begin", f"s_mov_b32 s{sCNT}, {0x4000 if opt.diag else 0x40000}", f"L_rt{n}:", "s_sleep 1"]
    r += [t.text if isinstance(t, I) else t for t in load_text]
    r += ["s_waitcnt vmcnt(0)", "s_nop 1"] + list(check) + [f"s_cbranch_vccz L_ok{n}", f"s_sub_u32 s{sCNT}, s{sCNT}, 1",
          f"s_cmp_lg_u32 s{sCNT}, 0", f"s_cbranch_scc1 L_rt{n}"]
    if opt.diag: r += [f"buffer_store_dword v{vLANE}, off, s[{sDBG}:{sDBG+3}], 0 offset:{32+4*n} sc1", "s_waitcnt vmcnt(0)"]
    r += ["s_nop 7", "@raw_end", f"L_ok{n}:"]
    return r
def nonce_load():
    return [f"buffer_load_dwordx2 v[{vNON}:{vNON+1}], off, s[{sDBG}:{sDBG+3}], 0 sc1"]
def nonce_get():
    return poll(nonce_load(), [f"v_cmp_ne_u32 vcc, 1, v{vNON+1}"]) + [f"v_readfirstlane_b32 s{sNONCE}, v{vNON}"]

sS0, sS1, sQ0, sQ1 = vT[8], vT[9], vT[10], vT[11]
vR = [vT[12], vT[14]]; vNB = [vT[13], vT[15]]
vM = [vT[16], vT[17]]
vONES = vT[18]
def x_arrive(f, filler=None, limit=60):
    fa = atoms(II(filler or []))
    tot = sum(len(a) for a in fa); chunks = [[] for _ in range(10)]; acc = 0
    for a in fa:
        chunks[min(9, acc * 10 // max(tot, 1))] += a; acc += len(a)
    if not opt.mstat: L([f"v_mov_b32 v{sS0}, 0", f"v_mov_b32 v{sS1}, 0", f"v_mov_b32 v{sQ0}, 0", f"v_mov_b32 v{sQ1}, 0"])
    def st(s):
        r = []
        if opt.mstat:
            c0 = "0" if s == 0 else ar(aSS); c1 = "0" if s == 0 else ar(aSQ)
            return [f"v_mfma_f32_16x16x32_bf16 {ar(aSS)}, {ar(aONE)}, {vr(X(f, s))}, {c0}",
                    f"v_mfma_f32_16x16x32_bf16 {ar(aSQ)}, {vr(X(f, s))}, {vr(X(f, s))}, {c1}"]
        for k in range(4):
            x = X(f, s) + k
            r += [f"v_dot2_f32_bf16 v{(sS0, sS1)[k&1]}, v{x}, v{vONES}, v{(sS0, sS1)[k&1]}",
                  f"v_dot2_f32_bf16 v{(sQ0, sQ1)[k&1]}, v{x}, v{x}, v{(sQ0, sQ1)[k&1]}"]
        return r
    for S in range(10):
        E(f"@waitvm x{f}_{S}")
        for sh in range(2):
            E(f"ds_read_b128 {vr(X(f, 2*S+sh))}, v{vRX[sh]} offset:{S*2048}", tok=f"xr{f}_{2*S+sh}")
        fl = chunks[S]
        L(ST.next(2 if ST.n % 2 == 0 or True else 1, limit))
        if S > 0:
            E(f"@waitds xr{f}_{2*S-1}")
            L(st(2*S-2)); L(st(2*S-1))
        L(fl)
    E("@waitds0")
    return st(18) + st(19)

aONE, aSS, aSQ = 216, 220, 224
def x_stats(f):
    a, b = vT[19], vT[20]
    r = [f"v_add_f32 v{sS0}, v{sS0}, v{sS1}", f"v_add_f32 v{sQ0}, v{sQ0}, v{sQ1}"]
    if opt.mstat:
        t = vT[8:12]
        r = [f"v_and_b32 v{a}, 15, v{vLANE}", f"v_lshrrev_b32 v{b}, 2, v{a}", f"v_lshl_add_u32 v{b}, v{b}, 4, v{a}", f"v_lshlrev_b32 v{b}, 2, v{b}",
             f"v_and_b32 v{a}, 3, v{vLANE}", f"v_cmp_eq_u32 s[{sEX0}:{sEX0+1}], 1, v{a}", f"v_cmp_eq_u32 s[{sEX2}:{sEX2+1}], 2, v{a}", f"v_cmp_eq_u32 vcc, 3, v{a}"]
        r += [f"v_accvgpr_read_b32 v{t[k]}, a{aSQ+k}" for k in range(4)]
        r += [f"v_cndmask_b32 v{t[0]}, v{t[0]}, v{t[1]}, s[{sEX0}:{sEX0+1}]", f"v_cndmask_b32 v{t[2]}, v{t[2]}, v{t[3]}, vcc",
              f"v_cndmask_b32 v{t[0]}, v{t[0]}, v{t[2]}, s[{sEX2}:{sEX2+1}]", f"v_cndmask_b32 v{t[0]}, v{t[0]}, v{t[2]}, vcc",
              f"ds_bpermute_b32 v{sQ0}, v{b}, v{t[0]}", f"v_accvgpr_read_b32 v{sS0}, a{aSS}"]
    for perm in (() if opt.mstat else ("v_permlane16_swap_b32", "v_permlane32_swap_b32")):
        r += [f"v_mov_b32 v{a}, v{sS0}", f"v_mov_b32 v{b}, v{sQ0}", f"{perm} v{a}, v{sS0}", f"{perm} v{b}, v{sQ0}",
              f"v_add_f32 v{sS0}, v{sS0}, v{a}", f"v_add_f32 v{sQ0}, v{sQ0}, v{b}"]
    inv = "0x3acccccd"
    r += [f"v_mul_f32 v{sS0}, {inv}, v{sS0}", f"v_mul_f32 v{sQ0}, {inv}, v{sQ0}",
          f"v_fma_f32 v{sQ0}, -v{sS0}, v{sS0}, v{sQ0}", f"v_max_f32 v{sQ0}, 0, v{sQ0}",
          f"v_cvt_pk_bf16_f32 v{a}, v{sS0}, v{sQ0}",
          f"v_lshlrev_b32 v{vM[f]}, 16, v{a}", f"v_and_b32 v{b}, 0xffff0000, v{a}",
          f"v_add_f32 v{b}, 0x3727c5ac, v{b}",
          f"v_cvt_pk_bf16_f32 v{b}, v{b}, v{b}", f"v_and_b32 v{b}, 0xffff0000, v{b}",
          f"v_sqrt_f32 v{b}, v{b}", f"v_cvt_pk_bf16_f32 v{b}, v{b}, v{b}", f"v_and_b32 v{b}, 0xffff0000, v{b}",
          f"v_rcp_f32 v{vR[f]}, v{b}", f"v_mul_f32 v{vNB[f]}, v{vM[f]}, v{vR[f]}", f"v_sub_f32 v{vNB[f]}, 0, v{vNB[f]}"]
    return r

def norm_step(f, s, packed, tmp):
    r = []
    for k in range(4):
        x = X(f, s) + k
        t = tmp[(k & 1) * 2]
        if packed:
            r += [f"v_lshlrev_b32 v{t}, 16, v{x}", f"v_and_b32 v{t+1}, 0xffff0000, v{x}",
                  f"v_pk_fma_f32 v[{t}:{t+1}], v[{t}:{t+1}], v[{vR[f]}:{vR[f]+1}], v[{vR[f]}:{vR[f]+1}] op_sel:[0,0,1] op_sel_hi:[1,0,1]",
                  f"v_cvt_pk_bf16_f32 v{x}, v{t}, v{t+1}"]
        else:
            r += [f"v_lshlrev_b32 v{t}, 16, v{x}", f"v_and_b32 v{t+1}, 0xffff0000, v{x}",
                  f"v_fma_f32 v{t}, v{t}, v{vR[f]}, v{vNB[f]}", f"v_fma_f32 v{t+1}, v{t+1}, v{vR[f]}, v{vNB[f]}",
                  f"v_cvt_pk_bf16_f32 v{x}, v{t}, v{t+1}"]
    return r

def stats_store():
    a, b = vT[0], vT[1]
    r = [f"v_and_b32 v{a}, 12, v{vLANE}", f"v_add_u32 v{a}, v{a}, v{vLANE}", f"v_lshlrev_b32 v{a}, 3, v{a}",
         f"v_mov_b32 v{b}, {OOB}", f"v_cmp_gt_u32 vcc, 16, v{vLANE}", f"v_cndmask_b32 v{a}, v{b}, v{a}, vcc"]
    for f in range(2):
        r.append(I(f"buffer_store_dwordx2 v[{vR[f]}:{vR[f]+1}], v{a}, s[{sWS}:{sWS+3}], s{sSTATO} offen offset:{32*f} sc1", tok="stat"))
    return r

def mlp_dma_addr(kind):
    vD = vDB if kind == "B" else globals()["vD"]
    t0, t1, t2 = vD[1], vD[2], vD[3]
    if kind == "A":
        r = [f"v_lshrrev_b32 v{t0}, 3, v{vLANE}", f"v_and_b32 v{t1}, 7, v{vLANE}", f"v_and_b32 v{t2}, 2, v{t0}", f"v_lshlrev_b32 v{t2}, 1, v{t2}",
             f"v_xor_b32 v{t1}, v{t1}, v{t2}", f"v_lshlrev_b32 v{t1}, 4, v{t1}",
             f"v_mul_u32_u24 v{t0}, 3072, v{t0}", f"v_add_u32 v{vD[0]}, v{t0}, v{t1}"]
        rows = 8
    else:
        r = [f"v_lshrrev_b32 v{t0}, 2, v{vLANE}", f"v_and_b32 v{t1}, 3, v{vLANE}", f"v_lshlrev_b32 v{t1}, 4, v{t1}",
             f"v_mul_u32_u24 v{t0}, 3072, v{t0}", f"v_add_u32 v{vD[0]}, v{t0}, v{t1}"]
        rows = 16
    for p in range(1, 4):
        r.append(f"v_add_u32 v{vD[p]}, {p*(rows*3072 - 1024)}, v{vD[0]}")
    if kind == "B": r.append(f"v_add_u32 v{vRB2}, 0x10000, v{vRB}")
    return r

def dma_M(m):
    slot = m % 4 if m < 10 else BSLOT[m]
    vD = globals()["vD"] if m < 10 else vDB
    if m < 10:
        so = [f"s_mul_i32 s{sD0}, s{sKU[m >> 1]}, 1536", f"s_add_u32 s{sD0}, s{sD0}, s{sMOFF}"]
        if m & 1: so.append(f"s_add_u32 s{sD0}, s{sD0}, {64*3072}")
    else:
        so = [f"s_mul_i32 s{sD0}, s{sKU[m - 10]}, 1536", f"s_add_u32 s{sD0}, s{sD0}, s{sMOFFB}"]
    if m >= 10:
        r = []
        for p in range(4):
            r += [f"s_add_u32 m0, s{sM0A}, {slot*16384}"] + ([t.replace(f"s{sD0}", f"s{sD2}") for t in so] if p == 0 else [f"s_add_u32 s{sD2}, s{sD2}, {0}"] if False else [])
            r.append(I(f"buffer_load_dwordx4 v{vD[p]}, s[{sWM}:{sWM+3}], s{sD2} offen offset:{p*1024} {opt.w_flags} lds", tok=f"M{m}"))
        return r
    r = [f"s_add_u32 m0, s{sM0A}, {slot*16384}"] + so
    for p in range(4):
        r.append(I(f"buffer_load_dwordx4 v{vD[p]}, s[{sWM}:{sWM+3}], s{sD0} offen offset:{p*1024} {opt.w_flags} lds", tok=f"M{m}"))
    return r

def w13_touch_addr():
    a, b = vT[5], vT[6]
    return [f"v_lshrrev_b32 v{a}, 1, v{vLANE}", f"v_mul_u32_u24 v{a}, 3072, v{a}", f"v_and_b32 v{b}, 1, v{vLANE}", f"v_lshl_add_u32 v{a}, v{b}, 7, v{a}",
            f"v_accvgpr_write_b32 a238, v{a}", f"v_mov_b32 v{b}, {OOB}", f"v_cmp_gt_u32 vcc, 16, v{vLANE}", f"v_cndmask_b32 v{a}, v{b}, v{a}, vcc",
            f"v_accvgpr_write_b32 a239, v{a}",
            f"s_and_b32 s{sT2}, s{sC}, 7", f"s_lshl_b32 s{sT2}, s{sT2}, 1", f"s_lshr_b32 s{sT3}, s{sW}, 1", f"s_add_u32 s{sT2}, s{sT2}, s{sT3}",
            f"s_mul_i32 s{sT2}, s{sT2}, {40*3072}", f"s_mul_i32 s{sT3}, s{sG}, 192", f"s_and_b32 s{sT3}, s{sT3}, 0xffffff80", f"s_add_u32 s{sD2}, s{sT2}, s{sT3}"]
def w13_touch():
    a = I(f"buffer_load_dword a228, v{vFLAG}, s[{sWM}:{sWM+3}], s{sD2} offen", tok="TW"); a.lines = 64
    b = I(f"buffer_load_dword a228, v{vFLAG}, s[{sWM}:{sWM+3}], s{sD2} offen", tok="TW"); b.lines = 16
    return [[f"v_accvgpr_read_b32 v{vFLAG}, a238", a], [f"v_accvgpr_read_b32 v{vFLAG}, a239", f"s_add_u32 s{sD2}, s{sD2}, {32*3072}", b]]

def delay(tag, mod, val, ticks):
    if not opt.delay: return []
    return ["@raw_begin", f"s_and_b32 s{sD0}, s2, {mod}", f"s_cmp_eq_u32 s{sD0}, {val}", f"s_cbranch_scc0 L_dl{tag}",
            f"s_memrealtime s[{sSTAMP}:{sSTAMP+1}]", "s_waitcnt lgkmcnt(0)", f"s_mov_b32 s{sD1}, s{sSTAMP}", f"L_dw{tag}:",
            f"s_memrealtime s[{sSTAMP}:{sSTAMP+1}]", "s_waitcnt lgkmcnt(0)", f"s_sub_u32 s{sD0}, s{sSTAMP}, s{sD1}",
            f"s_cmp_lt_u32 s{sD0}, {ticks*opt.delay}", f"s_cbranch_scc1 L_dw{tag}", f"L_dl{tag}:", "@raw_end"]

def skew(tag):
    if not opt.skew: return []
    return [f"s_bitcmp1_b32 s{sW}, 0", f"s_cbranch_scc1 L_sk{tag}a", "s_nop 0", f"L_sk{tag}a:", f"s_bitcmp1_b32 s{sW}, 1", f"s_cbranch_scc1 L_sk{tag}b", "s_nop 1", f"L_sk{tag}b:"]

def mlp_read_addr():
    G, r_, c, t, u = vT[19], vT[20], vT[21], vT[22], vT[23]
    return [f"v_lshrrev_b32 v{G}, 4, v{vLANE}", f"v_bfe_u32 v{r_}, v{vLANE}, 2, 2", f"v_and_b32 v{c}, 3, v{vLANE}",
         f"v_lshrrev_b32 v{t}, 1, v{G}", f"v_lshlrev_b32 v{t}, 11, v{t}", f"v_lshl_add_u32 v{t}, v{r_}, 7, v{t}",
         f"v_and_b32 v{u}, 1, v{c}", f"v_lshl_add_u32 v{t}, v{u}, 3, v{t}",
         f"v_and_b32 v{u}, 1, v{G}", f"v_lshlrev_b32 v{u}, 1, v{u}", f"v_lshrrev_b32 v{vRA[1]}, 1, v{c}", f"v_add_u32 v{u}, v{u}, v{vRA[1]}",
         f"v_lshrrev_b32 v{vRA[1]}, 1, v{r_}", f"v_lshlrev_b32 v{vRA[1]}, 2, v{vRA[1]}", f"v_xor_b32 v{u}, v{u}, v{vRA[1]}",
         f"v_lshl_add_u32 v{vRA[0]}, v{u}, 4, v{t}", f"v_xor_b32 v{vRA[1]}, 64, v{vRA[0]}",
         f"v_lshrrev_b32 v{t}, 1, v{G}", f"v_lshlrev_b32 v{t}, 10, v{t}", f"v_lshl_add_u32 v{t}, v{r_}, 6, v{t}",
         f"v_and_b32 v{u}, 1, v{G}", f"v_lshl_add_u32 v{t}, v{u}, 5, v{t}", f"v_lshl_add_u32 v{vRB}, v{c}, 3, v{t}",
         f"v_lshlrev_b32 v{u}, 10, v{u}", f"v_lshrrev_b32 v{t}, 1, v{G}", f"v_lshl_add_u32 v{u}, v{t}, 8, v{u}",
         f"v_and_b32 v{t}, 15, v{vLANE}", f"v_lshl_add_u32 v{vHH}, v{t}, 4, v{u}"]

def relayout_issue():
    u, t0, t1, t2 = sT2, vT[5], vT[6], vT[7]
    vo = vT[0:5]
    r = [f"s_lshl_b32 s{u}, s{sW}, 5", f"s_add_u32 s{u}, s{u}, s{sRT}",
       f"s_mul_i32 s{sT3}, s{sN}, 88", f"s_add_u32 s{sT3}, s{sT3}, s{u}", f"s_mul_i32 s{sT3}, s{sT3}, 5120", f"s_add_u32 s{sT3}, s{sT3}, {WS_W2P}",
       f"s_cmp_lt_u32 s{u}, 88", f"s_cselect_b32 s{sRLST}, s{sT3}, {OOB}",
       f"s_mov_b32 s{sRL+3}, 0x20000", f"s_cmp_lt_u32 s{u}, 40", "@arm", "s_cbranch_scc0 L_rlw",
       f"s_cmp_lt_u32 s{u}, 20", f"s_cselect_b32 s{sRL}, s{pCRE}, s{pCIM}", f"s_cselect_b32 s{sRL+1}, s{pCRE+1}, s{pCIM+1}",
       f"s_cselect_b32 s{sT3}, 0, 20", f"s_sub_u32 s{sT3}, s{u}, s{sT3}", f"s_lshl_b32 s{sT3}, s{sT3}, 6",
       f"s_mul_i32 s{sT4}, s{sN}, {80*1280}", f"s_add_u32 s{sRLOFF}, s{sT3}, s{sT4}",
       f"s_mov_b32 s{sRL+2}, {640*1280}",
       f"v_lshrrev_b32 v{t0}, 2, v{vLANE}", f"v_and_b32 v{t1}, 3, v{vLANE}", f"v_lshlrev_b32 v{t1}, 4, v{t1}",
       f"v_mul_u32_u24 v{t0}, 1280, v{t0}", f"v_add_u32 v{vo[0]}, v{t0}, v{t1}"]
    for e in range(1, 5): r.append(f"v_add_u32 v{vo[e]}, {e*16*1280}, v{vo[0]}")
    r += ["s_branch L_rlj", "@else", "L_rlw:",
       f"s_mov_b32 s{sRL}, s{pW2}", f"s_mov_b32 s{sRL+1}, s{pW2+1}",
       f"s_cmp_lt_u32 s{u}, 88", f"s_cselect_b32 s{sRL+2}, {1536*1280}, 0",
       f"s_sub_u32 s{sT3}, s{u}, 40", f"s_mul_i32 s{sT3}, s{sT3}, {32*1280}", f"s_mul_i32 s{sT4}, s{sN}, 160", f"s_add_u32 s{sRLOFF}, s{sT3}, s{sT4}",
       f"s_mov_b32 s{sT4}, 6554"]
    for p in range(5):
        r += [f"v_add_u32 v{t0}, {64*p}, v{vLANE}", f"v_mul_u32_u24 v{t1}, s{sT4}, v{t0}", f"v_lshrrev_b32 v{t1}, 16, v{t1}",
              f"v_mul_u32_u24 v{t2}, 10, v{t1}", f"v_sub_u32 v{t2}, v{t0}, v{t2}", f"v_lshlrev_b32 v{t2}, 4, v{t2}",
              f"v_mul_u32_u24 v{t1}, 1280, v{t1}", f"v_add_u32 v{vo[p]}, v{t1}, v{t2}"]
    r += ["@endarm", "L_rlj:", f"s_and_b32 s{sRL+1}, s{sRL+1}, 0xffff"]
    r += [f"v_accvgpr_write_b32 a{232+p}, v{vo[p]}" for p in range(5)]
    return r
def relayout_dma():
    vo = vT[0:5]
    r = []
    if "r" in opt.skip: return r
    for p in range(5):
        r.append([f"s_add_u32 m0, s{sM0U}, {L_RL + p*1024}", f"v_accvgpr_read_b32 v3, a{232+p}",
                  I(f"buffer_load_dwordx4 v3, s[{sRL}:{sRL+3}], s{sRLOFF} offen {'nt' if opt.rl_nt else ''} lds", tok="RL")])
    return r

def relayout_raddr():
    t0, t1, t2 = vT[5], vT[6], vT[7]
    return [f"v_and_b32 v{t0}, 15, v{vLANE}", f"v_lshrrev_b32 v{t1}, 4, v{vLANE}", f"v_lshlrev_b32 v{t1}, 4, v{t1}", f"v_lshl_add_u32 v{t0}, v{t0}, 6, v{t1}",
            f"v_lshrrev_b32 v{t1}, 2, v{vLANE}", f"v_and_b32 v{t2}, 8, v{t1}", f"v_add_u32 v{t1}, v{t1}, v{t2}", f"v_mul_u32_u24 v{t1}, 160, v{t1}",
            f"v_and_b32 v{t2}, 3, v{vLANE}", f"v_lshl_add_u32 v{t1}, v{t2}, 3, v{t1}",
            f"s_lshl_b32 s{sT2}, s{sW}, 5", f"s_add_u32 s{sT2}, s{sT2}, s{sRT}", f"s_cmp_lt_u32 s{sT2}, 40", f"s_cselect_b64 s[{sEX0}:{sEX0+1}], -1, 0",
            f"s_cselect_b32 s{sRLT}, 1, 0", f"s_add_u32 s{sT3}, s{sM0U}, {L_RL}",
            f"v_cndmask_b32 v{t0}, v{t1}, v{t0}, s[{sEX0}:{sEX0+1}]", f"v_add_u32 v{t0}, s{sT3}, v{t0}", f"v_accvgpr_write_b32 a237, v{t0}"]
def relayout_finish():
    if "r" in opt.skip: return []
    t0 = vT[0]
    r = [f"v_accvgpr_read_b32 v{t0}, a237", "@waitvm RL", f"s_cmp_eq_u32 s{sRLT}, 1", "s_cbranch_scc0 L_rfw"]
    for e in range(5):
        for h in range(2): r.append(f"ds_read_b64 {ar(aRL+4*e+2*h, 2)}, v{t0} offset:{e*1024 + 8*h}")
    r += ["@raw_begin", "s_branch L_rfj", "L_rfw:"]
    for e in range(5):
        for jj in range(2): r.append(f"ds_read_b64_tr_b16 {ar(aRL+4*e+2*jj, 2)}, v{t0} offset:{jj*1280 + e*32}")
    r += ["@raw_end", "L_rfj:"]
    for e in range(5):
        if e < 4: r.append(I(f"buffer_store_dwordx4 {ar(aRL+4*e)}, v{vL16}, s[{sWS}:{sWS+3}], s{sRLST} offen offset:{e*1024} sc1", tok="RLS"))
        else: r.append(I(f"buffer_store_dwordx4 {ar(aRL+4*e)}, v{vW4}, s[{sWS}:{sWS+3}], s{sRLST} offen sc1", tok="RLS"))
    return r

def flag_store(base, sline, sidx):
    return [f"s_lshl_b32 s{sD0}, s{sline}, 7", f"s_lshl_b32 s{sD1}, s{sidx}, 2", f"s_add_u32 s{sD0}, s{sD0}, s{sD1}", f"s_add_u32 s{sD0}, s{sD0}, {base}",
            f"s_cmp_eq_u32 s{sW}, 0", f"s_cselect_b32 s{sD0}, s{sD0}, {OOB}",
            f"buffer_store_dword v{vNON}, off, s[{sWS}:{sWS+3}], s{sD0} sc1"]
def flag_load(base, sline, shift, mask, st=None):
    st = sD0 if st is None else st
    return [f"s_lshr_b32 s{st}, s{sline}, {shift}", f"s_lshl_b32 s{st}, s{st}, 7", f"s_add_u32 s{st}, s{st}, {base}",
            f"v_and_b32 v{vFLAG}, {mask}, v{vLANE}", f"v_lshlrev_b32 v{vFLAG}, 2, v{vFLAG}",
            f"buffer_load_dword v{vFLAG}, v{vFLAG}, s[{sWS}:{sWS+3}], s{st} offen sc1"]
sNN = 6
def sflag_load(base):
    return [f"s_lshr_b32 s{sD0}, s{sRT}, 1", f"s_lshl_b32 s{sD0}, s{sD0}, 7", f"s_add_u32 s{sD0}, s{sD0}, {base}", f"s_add_u32 s{sD1}, s{sD0}, 32",
            f"s_load_dwordx8 s[56:63], s[{pWS}:{pWS+1}], s{sD0} glc", f"s_load_dwordx8 s[76:83], s[{pWS}:{pWS+1}], s{sD1} glc"]
def sflag_check(base):
    lab[0] += 1
    n = lab[0]
    r = ["@waitds0"]
    for k in (56, 58, 60, 62, 76, 78, 80, 82): r.append(f"s_xor_b64 s[{k}:{k+1}], s[{k}:{k+1}], s[{sNN}:{sNN+1}]")
    for a, b in ((56, 58), (60, 62), (76, 78), (80, 82), (56, 60), (76, 80), (56, 76)): r.append(f"s_or_b64 s[{a}:{a+1}], s[{a}:{a+1}], s[{b}:{b+1}]")
    ld = flag_load(base, sRT, 1, 15, sD0); chk = [f"v_cmp_ne_u32 vcc, s{sNONCE}, v{vFLAG}"]
    r += [f"s_cbranch_scc0 L_ok{n}", "@raw_begin", f"s_mov_b32 s{sCNT}, {0x4000 if opt.diag else 0x40000}", f"L_rt{n}:"] + ld
    r += ["s_waitcnt vmcnt(0)", "s_nop 1"] + chk + [f"s_cbranch_vccz L_ok{n}", "s_sleep 1", f"s_sub_u32 s{sCNT}, s{sCNT}, 1",
          f"s_cmp_lg_u32 s{sCNT}, 0", f"s_cbranch_scc1 L_rt{n}", "s_nop 7", "@raw_end", f"L_ok{n}:"]
    return r
def fl_load(base): return sflag_load(base) if opt.sflag else flag_load(base, sRT, 1, 15)
def fl_check(base): return sflag_check(base) if opt.sflag else flag_check(base, sRT, 1, 15)
def flag_check(base, sline, shift, mask):
    if "f" in opt.skip: return [f"v_mov_b32 v{vFLAG}, 0"]
    return poll(flag_load(base, sline, shift, mask, sD0), [f"v_cmp_ne_u32 vcc, s{sNONCE}, v{vFLAG}"])

def scan_addr():
    col, q, ch, t = vT[19], vT[20], vT[21], vT[22]
    return [f"s_lshl_b32 s{sT2}, s{sW}, 13", f"s_add_u32 s{sT2}, s{sT2}, {L_PRIV}",
            f"v_and_b32 v{col}, 15, v{vLANE}", f"v_lshrrev_b32 v{q}, 4, v{vLANE}",
            f"v_lshl_add_u32 v{vCOLR}, v{col}, 4, s{sT2}",
            f"v_lshl_add_u32 v{vEW}, v{q}, 2, v{vCOLR}",
            f"v_min_u32 v{ch}, 39, v{vLANE}", f"v_lshlrev_b32 v{vSO}, 4, v{ch}",
            f"v_lshrrev_b32 v{t}, 3, v{ch}", f"v_lshlrev_b32 v{t}, 3, v{t}", f"v_add_u32 v{t}, v{t}, v{ch}",
            f"v_lshl_add_u32 v{vER}, v{t}, 4, s{sT2}",
            f"v_add_u32 v{vCH}, s{sT2}, v{vL16}",
            f"s_lshl_b32 s{sT3}, s{sW}, 9", f"s_add_u32 s{sT3}, s{sT3}, {L_TT}", f"v_lshl_add_u32 v{vTT}, v{vLANE}, 3, s{sT3}",
            f"v_lshlrev_b32 v{vLB}, 5, v{vLANE}", f"v_add_u32 v{vLB}, {L_LB}, v{vLB}",
            f"s_add_u32 s{sT3}, s{sM0U}, {L_RL}",
            f"v_lshlrev_b32 v{vTW}, 5, v{col}", f"v_lshl_add_u32 v{vTW}, v{q}, 3, v{vTW}", f"v_add_u32 v{vTW}, s{sT3}, v{vTW}",
            f"v_bfe_u32 v{t}, v{vLANE}, 2, 2", f"v_lshlrev_b32 v{t}, 5, v{t}", f"v_lshl_add_u32 v{t}, v{q}, 8, v{t}",
            f"v_and_b32 v{ch}, 3, v{vLANE}", f"v_lshl_add_u32 v{t}, v{ch}, 3, v{t}", f"v_add_u32 v{vTR}, s{sT3}, v{t}",
            f"v_lshrrev_b32 v{t}, 1, v{q}", f"v_lshlrev_b32 v{t}, 10, v{t}", f"v_lshl_add_u32 v{vHST}, v{col}, 4, v{t}",
            f"v_and_b32 v{t}, 1, v{q}", f"v_mul_u32_u24 v{t}, {20*4096}, v{t}", f"v_add_u32 v{vHST}, v{vHST}, v{t}"]

def const_park():
    src = [cAR, cAI, cKR, cKI] + list(range(60, 70))
    return [f"v_accvgpr_write_b32 a{200+k}, v{s}" for k, s in enumerate(src)]
def const_tables():
    t = vT[0:8]
    r = [f"v_accvgpr_read_b32 v{t[0]}, a200", f"v_accvgpr_read_b32 v{t[1]}, a201", f"v_accvgpr_read_b32 v{t[2]}, a202", f"v_accvgpr_read_b32 v{t[3]}, a203",
         f"v_sub_f32 v{t[3]}, 0, v{t[3]}",
         f"v_mov_b32 v{t[4]}, v{t[0]}", f"v_sub_f32 v{t[5]}, 0, v{t[1]}", f"v_sub_f32 v{t[6]}, 0, v{t[2]}", f"v_mov_b32 v{t[7]}, v{t[3]}",
         f"ds_write_b128 v{vER}, {vr(t[0])} offset:{PV_COL}", f"ds_write_b128 v{vER}, {vr(t[4])} offset:{PV_COL+128}",
         f"ds_write_b128 v{vCH}, {ar(204)} offset:{PV_CH}", f"ds_write_b128 v{vCH}, {ar(208)} offset:{PV_CH+1024}",
         f"ds_write_b64 v{vCH}, {ar(212, 2)} offset:{PV_CH+2048}",
         f"v_mov_b32 v{t[0]}, 0", f"v_mov_b32 v{t[1]}, 0",
         f"s_min_u32 s{sT2}, s{sW}, 2", f"s_lshl_b32 s{sT2}, s{sT2}, 9", f"s_add_u32 s{sT2}, s{sT2}, {L_TT}",
         f"v_lshl_add_u32 v{t[2]}, v{vLANE}, 3, s{sT2}", f"ds_write_b64 v{t[2]}, {vr(t[0], 2)}"]
    return r

def ureg(cf, tau): return U(cf, tau >> 2) + (tau & 3)
DPP = "row_ror:8 row_mask:0xf bank_mask:0xf"
def scan_P12():
    C = vT[0:20]
    r = [I(f"ds_read_b128 {vr(C[4*cf])}, v{vCOLR} offset:{PV_COL + cf*256}", tok="colr") for cf in range(5)]
    r.append("@gap 1")
    t = vT[20:24]
    k = 0
    for tau in range(8):
        for cf in range(5):
            u = ureg(cf, tau); tt = t[k % 4]; k += 1
            r += [f"v_mul_f32_dpp v{tt}, v{u}, v{C[4*cf+3]} {DPP}", f"v_fma_f32 v{u}, v{C[4*cf+2]}, v{u}, v{tt}"]
    for tau in range(1, 8):
        src = [(ureg(cf, 0) if tau == 1 else C[4*cf + 2 + (tau & 1)]) for cf in range(5)]
        dst = [C[4*cf + 2 + ((tau + 1) & 1)] for cf in range(5)]
        for cf in range(5): r.append(f"v_fma_f32 v{dst[cf]}, v{C[4*cf]}, v{src[cf]}, v{ureg(cf, tau)}")
        for cf in range(5): r.append(f"v_fmac_f32_dpp v{dst[cf]}, v{src[cf]}, v{C[4*cf+1]} {DPP}")
    for cf in range(5): r.append(f"ds_write_b32 v{vEW}, v{C[4*cf+2]} offset:{PV_E + cf*256}")
    er, ei, a8 = vT[0], vT[4], vT[8]
    r += [f"ds_read_b128 {vr(a8)}, v{vCH} offset:{PV_CH}",
          f"ds_read_b128 {vr(er)}, v{vER} offset:{PV_E}", f"ds_read_b128 {vr(ei)}, v{vER} offset:{PV_E+128}", "@gap 2"]
    g0, g1 = vT[12], vT[14]
    r += chorner2(g0, g0+1, er, ei, a8, a8+1, er+1, ei+1)
    r += chorner2(g1, g1+1, g0, g0+1, a8, a8+1, er+2, ei+2)
    r += chorner2(g0, g0+1, g1, g1+1, a8, a8+1, er+3, ei+3)
    r += [f"ds_write_b64 v{vTT}, {vr(g0, 2)} offset:{3*512}"]
    return r

def scan_P3():
    a32 = vT[8]; T = vT[0:8]
    r = [f"ds_read_b128 {vr(a32)}, v{vCH} offset:{PV_CH}"]
    for k in range(4): r.append(f"ds_read_b64 {vr(T[2*k], 2)}, v{vTT} offset:{k*512}")
    r.append("@gap 2")
    m = a32 + 2
    g = vT[12]
    r += chorner2(g, g+1, T[0], T[1], m, m+1, T[2], T[3])
    r += chorner2(vWP0, vWP1, g, g+1, m, m+1, T[4], T[5])
    r += chorner2(g, g+1, vWP0, vWP1, m, m+1, T[6], T[7])
    r += [f"v_mov_b32 v{g+2}, s{sNONCE}", f"v_mov_b32 v{g+3}, s{sNONCE}",
          f"buffer_store_dwordx4 {vr(g)}, v{vSO}, s[{sWS}:{sWS+3}], s{sSST} offen sc1"]
    return r

def lb_loads():
    return [f"buffer_load_dwordx4 {ar(aS+4*jj)}, v{vSO}, s[{sWS}:{sWS+3}], s{sl} offen sc1" for jj, sl in enumerate((sLB0, sLB1, sLB2, sLB3))]
def scan_P4():
    t = vT[0:8]
    chk = []
    for jj, sl in enumerate((sLB0, sLB1, sLB2, sLB3)):
        d = t[2] if jj == 0 else t[0]
        chk += [f"s_cmp_lt_u32 s{sl}, {OOB}", f"s_cselect_b32 s{sT2}, s{sNONCE}, 0", f"v_accvgpr_read_b32 v{d}, a{aS+4*jj+2}",
                f"v_xor_b32 v{d}, s{sT2}, v{d}"]
        if jj: chk += [f"v_or_b32 v{t[2]}, v{t[2]}, v{t[0]}"]
    chk += [f"v_cmp_ne_u32 vcc, 0, v{t[2]}"]
    c = vT[8]
    r = [f"ds_read_b128 {vr(c)}, v{vCH} offset:{PV_CH+1024}", f"ds_read_b64 {vr(vT[12], 2)}, v{vCH} offset:{PV_CH+2048}"]
    if "f" not in opt.skip: r += poll(lb_loads(), [i.text for i in insert_nops(II(chk))])
    for jj in range(4):
        r += [f"v_accvgpr_read_b32 v{t[2*jj]}, a{aS+4*jj}", f"v_accvgpr_read_b32 v{t[2*jj+1]}, a{aS+4*jj+1}"]
    m = c + 2; g0, g1 = vT[14], vT[16]
    r += chorner2(g0, g0+1, t[0], t[1], m, m+1, t[2], t[3])
    r += chorner2(g1, g1+1, g0, g0+1, m, m+1, t[4], t[5])
    r += chorner2(g0, g0+1, g1, g1+1, m, m+1, t[6], t[7])
    r += cmul(g1, g1+1, g0, g0+1, vT[12], vT[13], vT[18])
    r += [f"s_lshl_b32 s{sT2}, s{sW}, 3", f"v_add_u32 v{vT[18]}, s{sT2}, v{vLB}", f"ds_write_b64 v{vT[18]}, {vr(g1, 2)}"]
    return r

def scan_P56():
    lb = vT[0]; er, ei = vT[8], vT[12]; c8, c32w = vT[16], vT[20]
    r = [f"ds_read_b128 {vr(lb)}, v{vLB}", f"ds_read_b128 {vr(lb+4)}, v{vLB} offset:16",
         f"ds_read_b64 {vr(c32w, 2)}, v{vCH} offset:{PV_CH+1024}", f"ds_read_b128 {vr(c8)}, v{vCH} offset:{PV_CH}",
         f"ds_read_b128 {vr(er)}, v{vER} offset:{PV_E}", f"ds_read_b128 {vr(ei)}, v{vER} offset:{PV_E+128}", "@gap 2",
         f"v_add_f32 v{lb}, v{lb}, v{lb+2}", f"v_add_f32 v{lb+1}, v{lb+1}, v{lb+3}",
         f"v_add_f32 v{lb+4}, v{lb+4}, v{lb+6}", f"v_add_f32 v{lb+5}, v{lb+5}, v{lb+7}",
         f"v_add_f32 v{lb}, v{lb}, v{lb+4}", f"v_add_f32 v{lb+1}, v{lb+1}, v{lb+5}"]
    q0, q1 = vT[4], vT[20]
    tmp = vT[2]
    r += chorner2(tmp, tmp+1, lb, lb+1, c32w, c32w+1, vWP0, vWP1)
    r += [f"v_mov_b32 v{q0}, v{tmp}", f"v_mov_b32 v{q1}, v{tmp+1}"]
    for k in range(3):
        r += chorner2(q0+k+1, q1+k+1, q0+k, q1+k, c8, c8+1, er+k, ei+k)
    r += [f"ds_write_b128 v{vER}, {vr(q0)} offset:{PV_E}", f"ds_write_b128 v{vER}, {vr(q1)} offset:{PV_E+128}"]
    C = vT[0:10]; Z = vT[10:15]
    for cf in range(5): r.append(f"ds_read_b32 v{Z[cf]}, v{vEW} offset:{PV_E + cf*256}")
    for cf in range(5): r.append(f"ds_read_b64 {vr(C[2*cf], 2)}, v{vCOLR} offset:{PV_COL + cf*256}")
    r.append("@gap 2")
    for tau in range(8):
        src = [(Z[cf] if tau == 0 else ureg(cf, tau-1)) for cf in range(5)]
        for cf in range(5): r.append(f"v_fma_f32 v{ureg(cf, tau)}, v{C[2*cf]}, v{src[cf]}, v{ureg(cf, tau)}")
        for cf in range(5): r.append(f"v_fmac_f32_dpp v{ureg(cf, tau)}, v{src[cf]}, v{C[2*cf+1]} {DPP}")
    for cf in range(5):
        for f in range(2):
            t = vT[2*(cf*2+f)]; u = U(cf, f)
            r += [f"v_cvt_pk_bf16_f32 v{t}, v{u}, v{u+1}", f"v_cvt_pk_bf16_f32 v{t+1}, v{u+2}, v{u+3}"]
    for k in range(10): r.append(f"ds_write_b64 v{vTW}, {vr(vT[2*k], 2)} offset:{k*512}")
    for cf in range(5):
        for jj in range(2):
            r.append(f"ds_read_b64_tr_b16 {vr(56 + 4*cf + 2*jj, 2)}, v{vTR} offset:{cf*1024 + jj*128}")
    for cf in range(5):
        r.append(I(f"buffer_store_dwordx4 {vr(56 + 4*cf)}, v{vHST}, s[{sWS}:{sWS+3}], s{sHO[cf]} offen sc1", tok="HST"))
    return r

def swiglu(acc, h2s, sks, tokname, packed=False):
    r = []
    k = 0
    for h2 in h2s:
        for z in range(2):
            G = vT[0:8]; Uu = vT[8:16]; T = vT[16:24]
            for j in range(8):
                r += [f"v_accvgpr_read_b32 v{G[j]}, a{acc(0, h2) + 8*z + j}", f"v_accvgpr_read_b32 v{Uu[j]}, a{acc(1, h2) + 8*z + j}"]
            if packed:
                for j in range(0, 8, 2): r.append(f"v_pk_mul_f32 {vr(T[j], 2)}, {vr(G[j], 2)}, s[{sEX0}:{sEX0+1}]")
                for j in range(8):
                    r.append(f"v_exp_f32 v{T[j]}, v{T[j]}")
                for j in range(0, 8, 2): r.append(f"v_pk_mul_f32 {vr(G[j], 2)}, {vr(G[j], 2)}, {vr(Uu[j], 2)}")
                for j in range(0, 8, 2): r.append(f"v_pk_add_f32 {vr(T[j], 2)}, {vr(T[j], 2)}, s[{sEX2}:{sEX2+1}]")
                for j in range(8): r.append(f"v_rcp_f32 v{T[j]}, v{T[j]}")
                for j in range(0, 8, 2): r.append(f"v_pk_mul_f32 {vr(G[j], 2)}, {vr(G[j], 2)}, {vr(T[j], 2)}")
            else:
                for j in range(8): r.append(f"v_mul_f32 v{T[j]}, {NLOG2E}, v{G[j]}")
                for j in range(8): r += [f"v_exp_f32 v{T[j]}, v{T[j]}", f"v_mul_f32 v{G[j]}, v{G[j]}, v{Uu[j]}"]
                for j in range(8): r.append(f"v_add_f32 v{T[j]}, 1.0, v{T[j]}")
                for j in range(8): r.append(f"v_rcp_f32 v{T[j]}, v{T[j]}")
                for j in range(8): r.append(f"v_mul_f32 v{G[j]}, v{G[j]}, v{T[j]}")
            o = Uu[0] if k % 2 == 0 else Uu[4]; k += 1
            for j in range(4): r.append(f"v_cvt_pk_bf16_f32 v{o+j}, v{G[2*j]}, v{G[2*j+1]}")
            if z == 0: r.append(f"s_add_u32 s{sT2}, s{sks}, {h2*4096}")
            r.append(I(f"buffer_store_dwordx4 {vr(o)}, v{vHH}, s[{sWS}:{sWS+3}], s{sT2} offen offset:{z*512} sc1", tok=tokname))
    return r

def step_reads(blk, s, par):
    r = []
    if blk == "U":
        i, sh2, sh = s // 4, (s >> 1) & 1, s & 1
        off = i*20480 + sh2*10240 - (61440 if i >= 3 else 0)
        for cf in range(5):
            r.append(f"ds_read_b128 {ar(FB(par, cf))}, v{vRU[sh]} offset:{off + cf*1024}")
    elif blk == "A":
        m, sp = s // 2, s & 1
        for hf in range(2):
            for h2 in range(2):
                for mu in range(2):
                    for jj in range(2):
                        r.append(f"ds_read_b64_tr_b16 {ar(FB(par, hf*4+h2*2+mu) + 2*jj, 2)}, v{vRA[h2]} offset:{(m % 4)*16384 + (2*sp+mu)*4096 + hf*1024 + jj*512}")
    else:
        m, sd = 10 + s // 2, s & 1
        for s2 in range(2):
            for hf in range(2):
                for mu in range(2):
                    for jj in range(2):
                        r.append(f"ds_read_b64_tr_b16 {ar(FB(par, s2*4+hf*2+mu) + 2*jj, 2)}, v{vRB2 if BSLOT[m] >= 4 else vRB} offset:{(BSLOT[m] % 4)*16384 + (2*sd+mu)*4096 + s2*2048 + hf*512 + jj*256}")
    return r

def step_mfma(blk, s, par):
    r = []
    if blk == "U":
        for cf in range(5):
            for f in range(2):
                d = vr(U(cf, f)); c = "0" if s == 0 else d
                r.append(f"v_mfma_f32_16x16x32_bf16 {d}, {vr(X(f, s))}, {ar(FB(par, cf))}, {c}")
    elif blk == "A":
        for hf in range(2):
            for h2 in range(2):
                for mu in range(2):
                    d = ar(ACCA(mu, h2), 16); c = "0" if (s == 0 and hf == 0) else d
                    r.append(f"v_mfma_f32_32x32x16_bf16 {d}, {ar(FB(par, hf*4+h2*2+mu))}, {vr(X(hf, s))}, {c}")
    else:
        for s2 in range(2):
            for hf in range(2):
                for mu in range(2):
                    d = ar(ACCB(mu), 16); c = "0" if (s == 0 and hf == 0 and s2 == 0) else d
                    r.append(f"v_mfma_f32_32x32x16_bf16 {d}, {ar(FB(par, s2*4+hf*2+mu))}, {vr(X(hf, 2*s+s2))}, {c}")
    return r

def swaps(s): return [] if "w" in opt.skip else [f"v_permlane16_swap_b32 v{X(0, s)+k}, v{X(1, s)+k}" for k in range(4)]

def stage_of(blk, s):
    return ("U", s // 4) if blk == "U" else (("M", s // 2) if blk == "A" else ("M", 10 + s // 2))

def cost(i):
    if i.cls in ("pseudo", "label"): return 0
    if i.cls == "trans": return 2
    if i.cls == "vmem": return opt.vmcost
    return 1

PH = [1]
class Feed(list):
    def append(self, i): EM[0].feed(i)

class Queue:
    def __init__(self): self.q = []; self.hold = 0; self.now = 0
    def add(self, lst, deadline):
        if "q" in opt.skip:
            lst = [t for t in II(lst) if t.cls in ("vmem",) or t.op.startswith("s_") or t.cls in ("pseudo", "label") or t.op.startswith("v_cmp") or t.op.startswith("v_readfirst") or t.op.startswith("v_accvgpr_read") and "a18" in t.text + "a19"]
        lst = II(lst)
        if PH[0] == 1 and opt.skip and not any(t.op in ("@arm", "@raw_begin") for t in lst):
            if "D" in opt.skip: lst = [t for t in lst if not t.op.startswith("ds_write")]
            if "R" in opt.skip: lst = [t for t in lst if not t.op.startswith("ds_read")]
            if "V" in opt.skip: lst = [t for t in lst if t.cls not in ("valu", "trans") or t.op.startswith("v_cmp") or t.op.startswith("v_cndmask")]
            if "S" in opt.skip:
                for t in lst:
                    if t.cls == "vmem" and "store" in t.op and t.tok in ("HST", "HHA"): t.text = t.text.replace("offen", "offen").replace("dwordx4", "dword"); t.text = __import__("re").sub(r"v\[(\d+):\d+\]", r"v\1", t.text, 1); t.wide = False
        lst = II(lst)
        now = max(self.now, max([d for t, d in self.q] + [0]) if opt.chainq else 0)
        if not opt.interp or deadline <= now + 1:
            for t in lst: self.q.append((t, deadline))
            return
        pos = 0; P = []; wr = {}; lastw = -99
        for t in lst:
            if t.cls not in ("pseudo", "label"):
                dep = [wr[r] for r in (t.rd | t.wr) if r in wr]
                if dep: pos = max(pos, max(dep) + opt.vlat)
                if t.op.startswith("ds_read") and pos - lastw < opt.vlat // 2: pos = lastw + opt.vlat // 2
                for r in t.wr: wr.pop(r, None)
                if t.cls == "ds":
                    for r in t.wr: wr[r] = pos
                    if t.op.startswith("ds_write"): lastw = pos
            pos += cost(t) + (1 if t.cls == "ds" else 0)
            P.append(pos)
        prev = now
        for t, p in zip(lst, P):
            d = now + int((deadline - now) * p / max(pos, 1))
            if t.cls == "ds" and PH[0] == 1 and d >= 200:
                while d % 8 < opt.span and d < deadline: d += 1
            d = max(d, prev); prev = d
            self.q.append((t, min(d, deadline)))
    def _region(self, out):
        i = self.q[0][0]
        end = "@endarm" if i.op == "@arm" else "@raw_end"
        while True:
            j = self.q.pop(0)[0]; out.append(j)
            if j.cls == "pseudo" and j.op == end: break
        while self.q and self.q[0][0].cls == "label": out.append(self.q.pop(0)[0])
    def need(self, gap):
        best = 0; acc = 0
        for t, d in self.q:
            acc += cost(t)
            left = d - gap + 1
            if left <= 0: best = max(best, acc)
            else: best = max(best, -(-acc // left))
        return best
    def pop(self, n, gap, ds_ok=True):
        out = Feed(); nds = 0; self.now = gap
        n = max(n, self.need(gap)) if (opt.even and not opt.interp) else n
        while self.q and (n > 0 or self.q[0][1] <= gap):
            i = self.q[0][0]
            if i.cls == "pseudo" and i.op == "@gap":
                self.q.pop(0); continue
            if self.q[0][1] > gap:
                if i.cls == "ds" and (not ds_ok or nds >= opt.dsmax): break
                if i.cls == "ds": nds += 1
                look = [i] + ([x for x, d in self.q[1:12] if x.cls == "pseudo"][:1] if i.op.startswith("s_cmp") else [])
                if i.op.startswith("s_cmp"): look += [x for x, d in self.q[1:4]]
                if max(EM[0].stall(x) for x in look) > opt.thr: break
            if i.cls == "pseudo" and i.op in ("@arm", "@raw_begin"):
                self._region(out); n -= 4
                continue
            if i.cls == "branch" or i.op.startswith("s_cmp") or i.op.startswith("s_bitcmp") or i.op.startswith("v_cmp"):
                out.append(self.q.pop(0)[0])
                if self.q and "L_rfw" in self.q[0][0].text:
                    while self.q[0][0].op != "@raw_begin": out.append(self.q.pop(0)[0])
                    n -= 10
                while self.q:
                    k = self.q[0][0]
                    if k.op.startswith("s_cselect") or k.op.startswith("v_cndmask") or k.cls == "branch": out.append(self.q.pop(0)[0])
                    elif k.op in ("@arm", "@raw_begin"): self._region(out); n -= 4
                    else: break
                n -= 1
                continue
            self.q.pop(0); out.append(i)
            n -= cost(i)
        return out
    def flush(self):
        out = [i for i, d in self.q if not (i.cls == "pseudo" and i.op == "@gap")]
        self.q = []; self.hold = 0
        return out

ACC1 = [("a", 4*k) for k in range(20)]
ACC2 = [("v", 96 + 4*k) for k in range(20)]
A_SLOTS = [("a", 80 + 4*k) for k in range(20)]
GA = [("a", 196 + 4*k) for k in range(15)] + [("a", 160 + 4*k) for k in range(5)]
XFREE = [("v", base + 8*d + 4*h) for d in range(10) for base in (96, 176) for h in range(2)]
HI = [("v", 176 + 4*k) for k in range(20)]
N1 = 12
NLDS = 4
def wslot(st, e):
    if st < 4: return GA[st*5 + e]
    if st < 12: return XFREE[(st - 4)*5 + e]
    if st < 16: return HI[(st - 12)*5 + e]
    if st < 20: return GA[(st - 16)*5 + e]
    return HI[(st - 20)*5 + e]
def w_free_after_b(st):
    return -1 if st < 4 else ((st - 4)*5 + 4) // 4
def w_free_after_p(st):
    if st < 16:
        regs = {wslot(st, e) for e in range(5)}
        return max(o for o in range(4, 12) for e in range(5) if wslot(o, e) in regs)
    return st - 16 if st < 20 else st - 8
def rg(t, c=4): return f"{t[0]}[{t[1]}:{t[1]+c-1}]"
vA2 = [3, 4, 5, 6]; vPW = [7, 8, 9]; vPR = 11; vOUT = 13; vXO = 14; vSTA = 15; vDS = 16
vXR = list(range(56, 76)); vY = list(range(76, 96)); vDK = [17, 18, 19, 20, 21]; vST = list(range(32, 40)); vXD2 = [22, 23, 24]; vXL = 25; vWL = 26
L_X2 = 143360
NSTEP = 22
ORDER = [0, 1, 4, 5, 6, 7, 10, 11, 2, 3, 8, 9] + list(range(10))
def ptr_bases():
    return [f"s_mul_i32 s{sAS}, s{sW}, {12*4096}", f"s_add_u32 s{sAS}, s{sAS}, s{sP2A}", f"s_add_u32 s{sAS}, s{sAS}, {40*4096}",
            f"s_mul_i32 s{sAE}, s{sW}, {10*4096}", f"s_add_u32 s{sAE}, s{sAE}, s{sP2A}",
            f"s_mul_i32 s{sWB}, s{sW}, {12*5120}", f"s_add_u32 s{sWB}, s{sWB}, s{sP2W}", f"s_add_u32 s{sWB}, s{sWB}, {40*5120}",
            f"s_mul_i32 s{sWE}, s{sW}, {10*5120}", f"s_add_u32 s{sWE}, s{sWE}, s{sP2W}"]
def ptr_set(which, st):
    if which == "A": return [f"s_add_u32 s{sAP}, s{sAS if st < N1 else sAE}, {ORDER[st]*4096}"]
    return [f"s_add_u32 s{sWP}, s{sWB if st < N1 else sWE}, {ORDER[st]*5120}"]
def p2_wload(st):
    r = []
    r += ptr_set("W", st)
    for e in range(5):
        va, off = (vL16, e*1024) if e < 4 else (vW4, 0)
        if N1 <= st < N1 + NLDS:
            r += [f"s_add_u32 m0, s{sM0}, {L_WY + (st - N1)*5120 + (4096 if e == 4 else 0)}"] + (["s_nop 0"] if True else [])
            r.append(I(f"buffer_load_dwordx4 v{va}, s[{sWS}:{sWS+3}], s{sWP} offen offset:{off} sc1 lds", tok=f"WL{st}"))
        else:
            r.append(I(f"buffer_load_dwordx4 {rg(wslot(st, e))}, v{va}, s[{sWS}:{sWS+3}], s{sWP} offen offset:{off} sc1", tok="W"))
    return r
def p2_wread(st):
    return [f"@waitvm WL{st}"] + [f"ds_read_b128 {rg(wslot(st, e))}, v{vWL} offset:{L_WY + (st - N1)*5120 + e*1024}" for e in range(5)]
def p2_aload(st):
    r = []
    r += ptr_set("A", st)
    for jj in range(4):
        r.append(I(f"buffer_load_dwordx4 {rg(A_SLOTS[(st % 5)*4 + jj])}, v{vA2[jj]}, s[{sWS}:{sWS+3}], s{sAP} offen sc1", tok="A"))
    return r
def p2_setup():
    r = []
    for jj in range(4):
        r += [f"s_add_u32 s{sD0}, s{sW}, {jj}", f"s_and_b32 s{sD0}, s{sD0}, 3", f"v_lshl_add_u32 v{vA2[jj]}, s{sD0}, 10, v{vL16}"]
    return r
def p2_setup2():
    r = []
    for jj in range(1, 4):
        r += [f"s_add_u32 s{sT2}, s{sW}, {jj}", f"s_and_b32 s{sT2}, s{sT2}, 3",
              f"s_mul_i32 s{sT3}, s{sT2}, 15360", f"s_add_u32 s{sT3}, s{sT3}, {(3-jj)*5120}", f"v_add_u32 v{vPW[jj-1]}, s{sT3}, v{vL16}"]
    r += [f"s_mul_i32 s{sT3}, s{sW}, 15360", f"v_add_u32 v{vPR}, s{sT3}, v{vL16}", f"v_add_u32 v{vWL}, s{sM0}, v{vL16}"]
    r += [f"v_add_u32 v{v}, {L_P1}, v{v}" for v in vPW + [vPR]]
    return r

def groups(lst):
    out = []; cur = []
    for t in II(lst):
        cur.append(t)
        if t.cls == "vmem": out.append(cur); cur = []
    if cur: out.append(cur)
    return out
def gstall(grp):
    return max([EM[0].stall(t) for t in grp if t.cls == "vmem" or t.op == "@waitvm"] + [0])

def tagw(st):
    gs = groups(p2_wload(st))
    for gq in gs: gq[-1].lat = None; STEP[id(gq[-1])] = st
    return gs
def taga(st):
    gs = groups(p2_aload(st))
    for gq in gs: STEP[id(gq[-1])] = st
    return gs
STEP = {}

def phase1_blocks():
    Q = Queue()
    seq = [("U", s) for s in range(20)] + [("A", s) for s in range(20)] + [("B", s) for s in range(10)]
    gap0 = []; g = 0
    for blk, s in seq:
        gap0.append(g); g += {"U": 10, "A": 8, "B": 8}[blk]
    gap0.append(g)
    def stage_end(kind, idx):
        n = [k for k, (b, s) in enumerate(seq) if stage_of(b, s) == (kind, idx)][-1]
        return gap0[n]
    L(delay("a", 255, 0, 500)); L(delay("b", 31, 5, 700))
    L(["@waitvm U0", "s_barrier"])
    L(stamp("U start"))
    L(step_reads("U", 0, 0))
    later = []
    pace = [0, len(EM[0].out)]
    bulk = []
    def lat(gs, dl):
        for x in gs: later.append((II(x), dl))
    def blk_(gs, dl):
        at = len(bulk) if dl == 10**6 else next((q for q, (gq, d) in enumerate(bulk) if d == 10**6), len(bulk))
        bulk[at:at] = [(II(x), dl) for x in gs]
    lat([u_piece(2, cf) for cf in range(5)], stage_end("U", 0) - 4)
    lat([nonce_publish()], stage_end("U", 0))
    if opt.rl_pos == -1: lat(relayout_dma(), stage_end("U", 1) - 16)
    lat([u_piece(3, cf) for cf in range(5)], stage_end("U", 1) - 10)
    lat([u_piece(4, cf) for cf in range(5)], stage_end("U", 2) - 20)
    for n, (blk, s) in enumerate(seq):
        par = n & 1
        mf = step_mfma(blk, s, par)
        nxt = seq[n + 1] if n + 1 < len(seq) else None
        rd = II(step_reads(nxt[0], nxt[1], par ^ 1)) if nxt else []
        if rd: rd[-1].tok = f"rd{n+1}"
        boundary = nxt is None or stage_of(*nxt) != stage_of(blk, s)
        gaps = [[] for _ in mf]
        start = 0
        pre = []
        cap = opt.capU if blk == "U" else opt.capM
        if blk == "U" and s == 11: pre += [f"v_add_u32 v{vRU[0]}, 61440, v{vRU[0]}"]
        if blk == "U" and s == 12: pre += [f"v_add_u32 v{vRU[1]}, 61440, v{vRU[1]}"]
        if blk == "A" and s == 0:
            Q.add(nonce_get(), gap0[n] + 6)
            Q.add(scan_P12(), stage_end("M", opt.X_stage) - 2)
        if blk == "B" and s == 0:
            Q.add(swiglu(ACCA, [0, 1], sKSA, "HHA"), stage_end("M", opt.hast) - opt.haend)
        post = []; plat = []; urgent = []; pbulk = []
        if blk == "B":
            for st in range(4, opt.nearly):
                if w_free_after_b(st) == s - 1: blk_(tagw(st), 10**6)
        if boundary:
            kind, idx = stage_of(blk, s)
            start = 1
            here = gap0[n]; nx1 = here + (40 if blk == "U" else 16)
            if kind == "U" and idx == 1:
                if opt.rf_stage == 1: post.append((relayout_finish(), stage_end("U", 3) - 4))
                post += [(const_tables(), stage_end("U", 3) + (10 if opt.rf_stage == 1 else -2)), (stats_store(), stage_end("U", 3) + 16)]
            mi = idx if kind == "M" else idx - 5
            def send(m): return stage_end("M", m) if m >= 0 else stage_end("U", m + 5)
            if kind == "U" and idx == opt.rf_stage and idx != 1: post.append((relayout_finish(), send(opt.F_stage - 1) - 2))
            b = []
            if nxt is not None:
                nk, ni = stage_of(*nxt)
                b.append(I(f"@waitboth {nk}{ni}"))
            else:
                b.append(I("@waitds0"))
            if kind == "M" and idx == opt.hast: b += II(["@waitvm HHA"])
            if kind == "M" and idx == opt.hast: plat.append((groups(flag_store(WS_FLHA, sC, sG)), here + 2))
            if mi == opt.F_stage: b += II(["@waitvm RLS"] if "r" not in opt.skip else [])
            if mi == max(opt.F_stage, 0): b += II(["@waitvm stat"])
            b.append(I("s_barrier"))
            if (opt.stamps or opt.probe) and (opt.fine or (kind, idx) in (("U", 4), ("M", 9), ("M", 14))): b += II(stamp(f"{kind}{idx} end"))
            gaps[0] += b
            if kind == "U" and idx == 0 and opt.t_w13: plat.append((w13_touch(), stage_end("U", 1) + 10))
            if kind == "U" and idx == 0 and opt.rl_pos == 0: plat.append((relayout_dma(), stage_end("U", 2) - 10))
            if kind == "U" and idx == 1: plat.append((groups(dma_M(0)) + groups(dma_M(1)), stage_end("U", 3) - 10))
            if kind == "U" and idx == 1 and opt.rl_pos == 1: plat.append((relayout_dma(), stage_end("U", 4) - 10))
            if kind == "U" and idx == 3: plat.append(([nonce_load()], here + 10))
            if kind == "U" and idx in (2, 3) and idx + opt.m23 <= 3: plat.append((groups(dma_M(idx)), stage_end("M", idx - 1) - opt.slack))
            if kind == "U" and idx == 4:
                for m_ in (2, 3):
                    if m_ + opt.m23 > 3: plat.append((groups(dma_M(m_)), stage_end("M", m_ - 1) - opt.slack))
            if kind == "U" and idx == 4:
                plat.append(([mlp_dma_addr("B")], here + 6))
                pbulk.append((groups(dma_M(10)), stage_end("M", opt.b10)))
            if mi == max(opt.F_stage, 0): plat.insert(0, (groups(flag_store(WS_FLW, sN, sRT)), here + 6))
            if kind == "M" and idx + 4 <= 9: plat.append((groups(dma_M(idx + 4)), stage_end("M", idx + 3) - opt.slack))
            if kind == "M" and idx == opt.L_stage: plat.insert(0, (groups(lb_loads()), here + 8))
            if kind == "M" and idx in BISSUE: pbulk.append((groups(dma_M(BISSUE[idx][0])), stage_end("M", BISSUE[idx][0] - 1) - opt.slack))
            if kind == "M" and idx == opt.X_stage:
                post.append((scan_P3(), stage_end("M", opt.X_stage + 1) + 8))
            if kind == "M" and idx == opt.C_stage:
                assert not any("a[180:183]" in x.text for gq, d in later for x in gq)
                post.append((scan_P4(), stage_end("M", opt.Y_stage) - 2))
            if kind == "M" and idx == opt.Y_stage:
                gaps[0] += II(delay("d", 63, 17, 900))
                post.append((scan_P56()[:33], stage_end("M", opt.Y_stage + 1) - 2))
            if kind == "M" and idx == opt.W_stage - 1 and opt.nearly:
                plat.append((groups(flag_load(WS_FLW, sN, 0, 31)), nx1))
            if kind == "M" and idx == opt.W_stage and opt.nearly:
                plat.append(([flag_check(WS_FLW, sN, 0, 31)], nx1 + 8))
                for st in range(min(4, opt.nearly)): pbulk.append((tagw(st), 10**6))
            if kind == "M" and idx == 13: urgent += [p2_setup()]
            if kind == "U" and idx == 4: urgent += [[f"global_load_ushort a231, v{vLANE}, s[{pDSK}:{pDSK+1}]"]] if False else []
        ng = len(mf)
        if rd:
            if nxt[0] == "U": span = 5
            elif blk == "U": span = 7
            else: span = opt.span
            for k, t in enumerate(rd): gaps[start + (k * span) // len(rd)].append(t)
        if nxt and nxt[0] == "A":
            for k, t in enumerate(II(swaps(nxt[1]))): gaps[ng - 5 + k].append(t)
        if blk == "U" and opt.pre_norm <= s + 1 < 20 and "n" not in opt.skip:
            nq = II(norm_step(1, s + 1, False, vT[20:24]))
            for k, t in enumerate(nq): gaps[(k * ng) // len(nq)].append(t)
        if blk == "U" and opt.late0:
            ops = [t for s0 in range(20 - opt.late0, 20) for t in norm_step(0, s0, False, vT[16:20])]
            span = 18
            lo, hi = (len(ops) * s) // span, (len(ops) * (s + 1)) // span
            lo -= lo % 5; hi -= hi % 5
            nq = II(ops[lo:hi]) if s < span else []
            assert all((20 - opt.late0 + (lo + k) // 20) > s for k in range(len(nq)))
            for k, t in enumerate(nq): gaps[(k * ng) // len(nq)].append(t)
        L(pre)
        E(f"@waitds rd{n}")
        for k, t in enumerate(mf):
            E(t)
            L(gaps[k])
            gap = gap0[n] + k
            used = sum(cost(x) for x in gaps[k])
            if boundary and k == 0:
                for lst, dl in post: Q.add(lst, dl)
                for gs, dl in plat: lat(gs, dl)
                for gs, dl in pbulk: blk_(gs, dl)
                lat(urgent, here + 14)
                continue
            due_b = any(d - gap <= q + len(later) for q, (gq, d) in enumerate(bulk))
            overdue = due_b or any(d - gap <= q for q, (gq, d) in enumerate(later))
            q_ = later if later else bulk
            if q_ and (overdue or (EM[0].t >= pace[0] and k != 0)):
                grp = q_.pop(0)[0]; L(grp); used += sum(cost(x) for x in grp)
            for x in EM[0].out[pace[1]:]:
                if x.cls == "vmem" and x.lines is not None and not x.text.startswith("buffer_load_dword v29,"):
                    cold = (x.tok in (("RL", "TW") if opt.t_w13 else ("M0", "M1", "M10", "RL"))) and opt.coldpace or 1
                    pace[0] = max(pace[0], EM[0].t - opt.burst) + x.lines * opt.pace * cold
            pace[1] = len(EM[0].out)
            Q.pop(cap - used, gap, ds_ok=(k >= (opt.span if blk != "U" else 5)))
    L(Q.flush())
    for gq, d in later: L(gq)
    return [gq for gq, d in bulk]

def p2_mfma(st):
    r = []
    first = st in (0, N1)
    acc = ACC1 if st < N1 else ACC2
    for jj in range(4):
        for e in range(5):
            d = rg(acc[jj*5+e]); c = "0" if (first and not (st == N1 and jj == 0)) else d
            r.append(f"v_mfma_f32_16x16x32_bf16 {d}, {rg(A_SLOTS[(st % 5)*4+jj])}, {rg(wslot(st, e))}, {c}")
    return r

def p2_partials(base, acc):
    return [f"ds_write_b128 v{vPW[jj-1]}, {rg(acc[jj*5+e])} offset:{base + e*1024}" for jj in range(1, 4) for e in range(5)]

def p2_epi_addr():
    dn, q, t = vT[8], vT[9], vT[10]
    r = [f"v_and_b32 v{dn}, 15, v{vLANE}", f"v_lshrrev_b32 v{q}, 4, v{vLANE}",
         f"s_lshl_b32 s{sT2}, s{sRT}, 6", f"s_lshr_b32 s{sT3}, s{sW}, 1", f"s_lshl_b32 s{sT3}, s{sT3}, 5", f"s_add_u32 s{sT2}, s{sT2}, s{sT3}",
         f"s_and_b32 s{sT3}, s{sW}, 1", f"s_lshl_b32 s{sT3}, s{sT3}, 2", f"s_add_u32 s{sT2}, s{sT2}, s{sT3}",
         f"s_mul_i32 s{sT4}, s{sW}, 3072", f"s_add_u32 s{sT4}, s{sT4}, {L_X2}",
         f"v_mul_u32_u24 v{vXL}, 640, v{q}", f"v_lshl_add_u32 v{vXL}, v{dn}, 1, v{vXL}", f"v_add_u32 v{vXL}, s{sT4}, v{vXL}",
         f"v_lshl_add_u32 v{q}, v{q}, 3, s{sT2}",
         f"s_mul_i32 s{sT3}, s{sN}, 80", f"v_add_u32 v{dn}, s{sT3}, v{dn}",
         f"v_mul_u32_u24 v{t}, 640, v{q}", f"v_add_u32 v{t}, v{t}, v{dn}",
         f"v_lshlrev_b32 v{vOUT}, 2, v{t}", f"v_lshlrev_b32 v{vSTA}, 3, v{q}", f"v_lshlrev_b32 v{vDS}, 1, v{dn}",
         f"s_mul_i32 s{sT2}, s{sT2}, 1280", f"s_mul_i32 s{sT3}, s{sN}, 160", f"s_add_u32 s{sT5}, s{sT2}, s{sT3}", f"s_add_u32 s{sT5}, s{sT5}, 4096",
         f"s_mov_b32 s{sT3}, 6554"]
    a, b, c = vT[11], vT[12], vT[13]
    for p in range(3):
        r += [f"v_add_u32 v{a}, {64*p}, v{vLANE}", f"v_mul_u32_u24 v{b}, s{sT3}, v{a}", f"v_lshrrev_b32 v{b}, 16, v{b}",
              f"v_mul_u32_u24 v{c}, 10, v{b}", f"v_sub_u32 v{c}, v{a}, v{c}", f"v_lshlrev_b32 v{c}, 4, v{c}",
              f"v_and_b32 v{a}, 12, v{b}", f"v_add_u32 v{b}, v{a}, v{b}", f"v_mul_u32_u24 v{b}, 1280, v{b}", f"v_add_u32 v{vXD2[p]}, v{b}, v{c}"]
    r += [f"v_mov_b32 v{a}, {OOB}", f"v_cmp_gt_u32 vcc, 32, v{vLANE}", f"v_cndmask_b32 v{vXD2[2]}, v{a}, v{vXD2[2]}, vcc"]
    return r
def p2_epi_loads():
    r = []
    for p in range(3):
        r += [f"s_add_u32 m0, s{sT4}, {p*1024}", "s_nop 0", I(f"buffer_load_dwordx4 v{vXD2[p]}, s[{sX}:{sX+3}], s{sT5} offen lds", tok="XR")]
    for e in range(5):
        r.append(f"global_load_ushort v{vDK[e]}, v{vDS}, s[{pDSK}:{pDSK+1}] offset:{e*32}")
    r += [f"s_mov_b32 s{sD1}, {WS_STAT}",
          f"buffer_load_dwordx4 {vr(vST[0])}, v{vSTA}, s[{sWS}:{sWS+3}], s{sD1} offen sc1",
          f"buffer_load_dwordx4 {vr(vST[4])}, v{vSTA}, s[{sWS}:{sWS+3}], s{sD1} offen offset:16 sc1"]
    return r
def p2_xread():
    r = ["@waitvm XR"]
    for e in range(5):
        for rr in range(4):
            r.append(f"ds_read_u16 v{vXR[e*4+rr]}, v{vXL} offset:{rr*160 + e*32}")
    return r

def p2_skip():
    r = [f"v_lshlrev_b32 v{vDK[e]}, 16, v{vDK[e]}" for e in range(5)]
    for j in range(20): r.append(f"v_lshlrev_b32 v{vXR[j]}, 16, v{vXR[j]}")
    for e in range(5):
        for rr in range(4): r.append(f"v_fma_f32 v{96+e*4+rr}, v{vXR[e*4+rr]}, v{vST[2*rr]}, v{vST[2*rr+1]}")
        for rr in range(4): r.append(f"v_mul_f32 v{96+e*4+rr}, v{96+e*4+rr}, v{vDK[e]}")
    return r
def p2_gate():
    r = []
    T = vT[0:24]
    for e in range(5):
        b = T[12*(e % 2)]; b2 = b + 4; b3 = b + 8; Y = vY[e*4:e*4+4]
        r += [f"ds_read_b128 {vr(b)}, v{vPR} offset:{e*1024}", f"ds_read_b128 {vr(b2)}, v{vPR} offset:{5120 + e*1024}", f"ds_read_b128 {vr(b3)}, v{vPR} offset:{10240 + e*1024}"]
        if e > 0:
            p = T[12*((e-1) % 2)]; Yp = vY[(e-1)*4:e*4]
            for rr in range(4): r.append(f"v_mul_f32 v{Yp[rr]}, v{Yp[rr]}, v{p+rr}") if False else None
        for rr in range(4): r.append(f"v_add_f32 v{Y[rr]}, v{Y[rr]}, v{b+rr}")
        for rr in range(4): r.append(f"v_add_f32 v{b2+rr}, v{b2+rr}, v{b3+rr}")
        for rr in range(4): r.append(f"v_add_f32 v{Y[rr]}, v{Y[rr]}, v{b2+rr}")
        for rr in range(4): r.append(f"v_mul_f32 v{b+rr}, {NLOG2E}, v{Y[rr]}")
        for rr in range(4): r.append(f"v_exp_f32 v{b+rr}, v{b+rr}")
        for rr in range(4): r.append(f"v_add_f32 v{b+rr}, 1.0, v{b+rr}")
        for rr in range(4): r.append(f"v_rcp_f32 v{b+rr}, v{b+rr}")
        for rr in range(4): r.append(f"v_mul_f32 v{Y[rr]}, v{Y[rr]}, v{b+rr}")
    r += [f"v_add_u32 v{v}, {L_P2 - L_P1}, v{v}" for v in vPW + [vPR]]
    return r

sROW = [76, 77, 78, 79]
def p2_final():
    r = []
    O = list(range(96, 116)); B = list(range(176, 236))
    if not opt.fin2:
        for k in range(3):
            for e in range(5):
                r.append(f"ds_read_b128 {vr(B[k*20+e*4])}, v{vPR} offset:{k*5120 + e*1024}")
        for j in range(0, 20, 2): r.append(f"v_pk_fma_f32 {vr(vXR[j], 2)}, {vr(O[j], 2)}, {vr(vY[j], 2)}, {vr(vXR[j], 2)}")
        for j in range(0, 20, 2): r.append(f"v_pk_add_f32 {vr(B[j], 2)}, {vr(B[j], 2)}, {vr(B[20+j], 2)}")
        for j in range(0, 20, 2): r.append(f"v_pk_add_f32 {vr(B[j], 2)}, {vr(B[j], 2)}, {vr(B[40+j], 2)}")
        for j in range(0, 20, 2): r.append(f"v_pk_fma_f32 {vr(vXR[j], 2)}, {vr(B[j], 2)}, {vr(vY[j], 2)}, {vr(vXR[j], 2)}")
        for rr in range(4):
            for e in range(5):
                r.append(f"buffer_store_dword v{vXR[e*4+rr]}, v{vOUT}, s[{sOUT}:{sOUT+3}], s{sROW[rr]} offen offset:{e*64} {opt.out_flags}")
        return r
    for e in range(5):
        for k in range(3): r.append(f"ds_read_b128 {vr(B[k*20+e*4])}, v{vPR} offset:{k*5120 + e*1024}")
    for e in range(5):
        for j in (4*e, 4*e + 2): r.append(f"v_pk_add_f32 {vr(B[j], 2)}, {vr(B[j], 2)}, {vr(B[20+j], 2)}")
        for j in (4*e, 4*e + 2): r.append(f"v_pk_add_f32 {vr(B[j], 2)}, {vr(B[j], 2)}, {vr(B[40+j], 2)}")
        for j in (4*e, 4*e + 2): r.append(f"v_pk_fma_f32 {vr(vXR[j], 2)}, {vr(B[j], 2)}, {vr(vY[j], 2)}, {vr(vXR[j], 2)}")
        for rr in range(4):
            r.append(f"buffer_store_dword v{vXR[e*4+rr]}, v{vOUT}, s[{sOUT}:{sOUT+3}], s{sROW[rr]} offen offset:{e*64} {opt.out_flags}")
    return r
def p2_own():
    return [f"v_pk_fma_f32 {vr(vXR[j], 2)}, {vr(96+j, 2)}, {vr(vY[j], 2)}, {vr(vXR[j], 2)}" for j in range(0, 20, 2)]

def weave(main, extra, every=1):
    groups = []; cur = []
    for t in II(extra):
        cur.append(t)
        if t.cls == "vmem": groups.append(cur); cur = []
    if cur: groups.append(cur)
    out = []
    for k, t in enumerate(II(main)):
        out.append(t)
        if groups and k % every == every - 1: out += groups.pop(0)
    for g_ in groups: out += g_
    return out

def phase2(left):
    PH[0] = 2
    L(stamp("B mfma end"))
    L(delay("c", 15, 9, 600))
    L([f"s_mov_b32 s{sEX0}, {NLOG2E}", f"s_mov_b32 s{sEX1}, {NLOG2E}", f"s_mov_b32 s{sEX2}, 1.0", f"s_mov_b32 s{sEX3}, 1.0"])
    Wq = list(left); Aq = []
    assert all(id(gq[-1]) in STEP for gq in Wq)
    nextW = max([st for st in STEP.values()] + [-1]) + 1; nextA = 0
    while nextW < N1 + NLDS: Wq.extend(tagw(nextW)); nextW += 1
    def serial(lst, every, first=None):
        cnt = 0
        for t in II(lst):
            if t.cls == "pseudo" and t.op == "@gap": continue
            L([t])
            if t.cls in ("valu", "trans") and not t.op.startswith("v_cmp") and not INRAW[0]:
                cnt += 1
                q_ = first if first else Wq
                if q_ and cnt >= every and gstall(q_[0]) <= opt.thrs: L(q_.pop(0)); cnt = 0
            if t.op == "@raw_begin": INRAW[0] = True
            if t.op == "@raw_end": INRAW[0] = False
    swb = II(swiglu(ACCB, [0], sKSB, "HHB", packed=True))
    cl = len(swb) - opt.hald
    serial(swb[:cl], opt.every)
    if opt.sflag: L([f"s_mov_b32 s{sNN}, s{sNONCE}", f"s_mov_b32 s{sNN+1}, s{sNONCE}"]); assert opt.hald == 0
    else: L(fl_load(WS_FLHA))
    serial(swb[cl:], opt.every)
    L(stamp("epi B done"))
    def fill(st):
        nonlocal nextW, nextA
        while nextA <= min(st + opt.look, NSTEP - 1): Aq.extend(taga(nextA)); nextA += 1
        while nextW <= min(st + opt.lookW, NSTEP - 1) and nextW >= N1 + NLDS and w_free_after_p(nextW) < st: Wq.extend(tagw(nextW)); nextW += 1
    def head():
        if Wq and (not Aq or STEP[id(Wq[0][-1])] <= STEP[id(Aq[0][-1])]): return Wq
        return Aq if Aq else None
    p56 = II(scan_P56())[33:]
    serial(p56[:10], opt.every)
    L(p2_setup2())
    if opt.sflag:
        serial(p56[10:21], opt.every); L(fl_load(WS_FLHA)); serial(p56[21:opt.hack], opt.every)
    else: serial(p56[10:opt.hack], opt.every)
    L(fl_check(WS_FLHA)); L(stamp("ha ready"))
    while nextA < opt.a0: Aq.extend(taga(nextA)); nextA += 1
    if opt.shadow56:
        tail56 = p56[opt.hack:]; p56 = p56[:opt.hack]
        while Aq: L(Aq.pop(0))
    cst = next((k for k, t in enumerate(p56) if t.cls == "vmem"), len(p56))
    if opt.afirst and Aq: L(Aq.pop(0)); L(Aq.pop(0)); L(Aq.pop(0)); L(Aq.pop(0))
    serial(p56[opt.hack:cst], opt.every2, Aq)
    if opt.afirst:
        while Aq: L(Aq.pop(0))
    L(p56[cst:])
    L(stamp("h out"))
    while Aq: L(Aq.pop(0))
    if opt.hhpos < 0:
        L(["@waitvm HHB", "s_barrier"]); L(flag_store(WS_FLHH, sC, sG))
    L(stamp("flags out"))
    L([f"s_mov_b32 s{sROW[rr]}, {rr*2560}" for rr in range(4)])
    Q = Queue(); misc = []
    if opt.shadow56: Q.add(tail56, 20*opt.p2pos - opt.t56)
    g = 0; nread = N1
    for st in range(NSTEP):
        mf = p2_mfma(st)
        if st == 8 - opt.look:
            L(fl_check(WS_FLHH))
        if st == N1 - opt.look:
            L(fl_check(WS_FLH)); L(stamp("h ready"))
        fill(st)
        if st == opt.p2pos + 1:
            Q.add(p2_epi_addr(), g + 30)
        if st == opt.epos: misc.extend(groups(p2_epi_loads()))
        if st == opt.epos + 3:
            assert not misc or all("v29" in gq[-1].text for gq in misc)
            Q.add(p2_xread() + p2_skip(), 20*N1 - 4)
        if opt.sflag:
            if st == 8 - opt.look - opt.sfl: L(fl_load(WS_FLHH))
            if st == N1 - opt.look - opt.sfl: L(fl_load(WS_FLH))
        else:
            if st == 8 - opt.look - 2: misc[0:0] = groups(flag_load(WS_FLHH, sRT, 1, 15))
            if st == N1 - opt.look - 2: misc[0:0] = groups(flag_load(WS_FLH, sRT, 1, 15))
        while nread < N1 + NLDS and w_free_after_p(nread) < st and nread <= st + 3:
            assert not any(STEP.get(id(gq[-1])) == nread for gq in Wq)
            Q.add(p2_wread(nread), 20*(nread - 1) + 4); nread += 1
        if st == N1:
            L(stamp("out done"))
            yp = p2_partials(0, ACC1); rdy = [f"v_accvgpr_read_b32 v{vY[j]}, a{j}" for j in range(20)]
            mix = []
            for j in range(15): mix += [yp[j]] + rdy[j*4//3:(j+1)*4//3]
            Q.add(mix, 20*opt.ybar - 4)
        if st == opt.ybar:
            assert nread == N1 + NLDS
            L(Q.flush()); L(["@waitds0", "s_barrier"])
            Q.add(p2_gate(), 20*NSTEP - (44 if opt.merge2 else 24))
        def must(q): return [gq for gq in q if STEP[id(gq[-1])] <= st + opt.look]
        ng = len(must(Wq)) + len(Aq)
        per = -(-ng // 19)
        last = st == NSTEP - 1
        if opt.merge2 and st == NSTEP - 2:
            while head(): L(head().pop(0))
            held = mf; mf = []
        if last:
            L(Q.flush())
            if opt.merge2:
                both = []
                for jj in (1, 2, 3, 0): both += held[jj*5:jj*5+5] + mf[jj*5:jj*5+5]
                mf = both
            else: mf = mf[5:] + mf[:5]
            wr = II(p2_partials(0, ACC2))
        if opt.onewait and mf and not last:
            need = set().union(*[I(x).rd for x in mf])
            idx_ = [q for q, o in enumerate(EM[0].vm) if o.wr & need]
            if idx_: EM[0]._wait(len(EM[0].vm) - 1 - idx_[-1], None)
        for k, t in enumerate(mf):
            E(t)
            used = 0
            if k >= 1:
                for _ in range(max(per, 1)):
                    h = head()
                    if misc and (gstall(misc[0]) <= opt.thr or st >= opt.epos + 1 or "v29" in misc[0][-1].text) and (k % 2 == 0 or not h): L(misc.pop(0)); used += 2
                    elif h and (STEP[id(h[0][-1])] <= st + opt.look or gstall(h[0]) <= opt.thr): L(h.pop(0)); used += 2
            if st == opt.hhpos and k == 19 and st != opt.p2pos:
                L(["@waitvm HHB", "s_barrier"]); L(flag_store(WS_FLHH, sC, sG))
            if st == opt.p2pos and k == 19:
                assert "HST" in EM[0].seen and not any(t.tok == "HST" for t, d in Q.q)
                L(["@waitvm HST", "s_barrier"])
                if st == opt.hhpos: L(flag_store(WS_FLHH, sC, sG))
                L(flag_store(WS_FLH, sC, sG))
            if last and wr and ((k >= 7) if not opt.merge2 else (k >= 12 and k % 2 == 0)): L([wr.pop(0)])
            Q.pop(2 - used, g); g += 1
        if st >= opt.epos + 2:
            while misc: L(misc.pop(0))
        if opt.fine2: L(stamp(f"st{st}"))
        while head() and STEP[id(head()[0][-1])] <= st + opt.look: L(head().pop(0))
    L(wr)
    if opt.fin2: L(p2_own())
    L(["@waitds0", "s_barrier"])
    L(stamp("y done"))
    L(p2_final())
    L(stamp("end")); L(stamp("cyc1", True))
INRAW = [False]

def diag_out():
    if not opt.diag: return
    L([f"s_lshl_b32 s{sT2}, s2, 2", f"s_add_u32 s{sT2}, s{sT2}, s{sW}", f"s_lshl_b32 s{sT2}, s{sT2}, 2", f"s_add_u32 s{sT2}, s{sT2}, {WS_STAMP}",
       f"v_mov_b32 v{vT[0]}, s{sNONCE}", f"buffer_store_dword v{vT[0]}, off, s[{sWS}:{sWS+3}], s{sT2}"])

def stamps_out():
    if opt.probe:
        L(["@raw_begin", "L_spin:", f"s_memrealtime s[{sSTAMP}:{sSTAMP+1}]", "s_waitcnt lgkmcnt(0)", f"s_sub_u32 s{sT2}, s{sSTAMP}, s3",
           f"s_cmp_lt_u32 s{sT2}, 5000", "s_cbranch_scc1 L_spin", "@raw_end"])
    if not opt.stamps: return
    L([f"s_lshl_b32 s{sT2}, s2, 2", f"s_add_u32 s{sT2}, s{sT2}, s{sW}", f"s_lshl_b32 s{sT2}, s{sT2}, 8", f"s_add_u32 s{sT2}, s{sT2}, {WS_STAMP}",
       f"v_lshlrev_b32 v{vT[0]}, 2, v{vLANE}", f"buffer_store_dword v0, v{vT[0]}, s[{sWS}:{sWS+3}], s{sT2} offen"])

def build():
    STEP.clear(); PH[0] = 1; EM[0] = Emitter(lines_of, lat_of, dslat=opt.dslat); lab[0] = 0; stamp_n[0] = 0; stamp_names.clear(); ST.n = 0
    prologue()
    L(stamp("issued")); L(stamp("cyc0", True))
    CAP[0] = rest = []
    setup_rest()
    L(scan_addr()); L(mlp_read_addr())
    constants()
    L(const_park())
    nonce_seed()
    L(relayout_issue()); L(relayout_raddr())
    if opt.t_w13: L(w13_touch_addr())
    L([f"v_min_u32 v{vT[0]}, 9, v{vLANE}", f"v_lshlrev_b32 v{vT[0]}, 7, v{vT[0]}", f"global_load_dword a231, v{vT[0]}, s[{pDSK}:{pDSK+1}]"])
    CAP[0] = None
    ra = atoms(rest); n0 = 0; k0 = 0
    while n0 < opt.pre0: L(ra[k0]); n0 += len(ra[k0]); k0 += 1
    L(stamp("consts"))
    tail = x_arrive(0, [i for a in ra[k0:] for i in a], 40)
    L(stamp("x0 in"))
    E("s_barrier")
    L(skew("0"))
    L(tail)
    L(x_stats(0))
    L([f"v_add_u32 v{vRX[0]}, 81920, v{vRX[0]}", f"v_add_u32 v{vRX[1]}, 81920, v{vRX[1]}"])
    nrm = []
    for s in range(20 - opt.late0): nrm += norm_step(0, s, opt.pk0, vT[20:24]) if "N" not in opt.skip else []
    if "Z" in opt.skip: nrm = ["s_nop 0"] * len(nrm)
    if "Y" in opt.skip: nrm = [t if "v_pk_fma" not in t else "v_mov_b32 v52, v53" for t in nrm]
    if "M" in opt.skip: nrm = [x for k, t in enumerate(nrm) for x in ([t, "s_nop 0"] if k % 4 == 3 else [t])]
    tail = x_arrive(1, nrm)
    L(stamp("x1 in"))
    L(weave(tail, ST.next(50 - ST.n, 50), 1))
    L(x_stats(1))
    L(mlp_dma_addr("A"))
    for s in range(opt.pre_norm): L(norm_step(1, s, True, vT[20:24]))
    assert ST.n == 50
    phase2(phase1_blocks())
    diag_out()
    stamps_out()
    E("s_endpgm")
    return EM[0].out

HEADER = """; Kernarg layout for this problem (128 bytes, ptrs only, base s[0:1]):
; @launch grid=(256,1,1) block=(256,1,1) lds=163840
.amdgcn_target "amdgcn-amd-amdhsa--gfx950"
.text
.globl {k}
.p2align 8
.type {k},@function
{k}:
"""
FOOTER = """
L_exit:
    s_endpgm
L_codeend:
    .fill 64, 4, 0xbf800000
.section .rodata,"a"
.p2align 6
.amdhsa_kernel {k}
  .amdhsa_next_free_vgpr 512
  .amdhsa_next_free_sgpr 102
  .amdhsa_accum_offset 256
  .amdhsa_group_segment_fixed_size 0
  .amdhsa_kernarg_size 128
  .amdhsa_user_sgpr_count 2
  .amdhsa_user_sgpr_kernarg_segment_ptr 1
  .amdhsa_system_sgpr_workgroup_id_x 1
  .amdhsa_float_denorm_mode_32 3
.end_amdhsa_kernel
"""
def text():
    prog = build()
    body = "\n".join(("" if i.cls == "label" else "    ") + i.text for i in prog)
    return HEADER.format(k=KNAME) + body + FOOTER.format(k=KNAME), prog

if __name__ == "__main__":
    out = sys.argv[1]
    for a in sys.argv[2:]:
        k, v = a.split("=")
        cur = getattr(opt, k)
        setattr(opt, k, v.replace("_", " ") if isinstance(cur, str) else (v in ("1", "True") if isinstance(cur, bool) else type(cur)(float(v))))
    t, prog = text()
    open(out, "w").write(t)
    print(stats(prog), len(prog))
    if opt.sim:
        em = EM[0]; prev = 0
        for j, (n, m) in enumerate(zip(stamp_names, em.marks)):
            big = sorted([x for x in em.stalls if x[1] == j], reverse=True)
            print(f"{n:12s} {m:7.0f} ({m-prev:5.0f}) stalls {sum(x[0] for x in big):5.0f} :", "; ".join(f"{x[0]:.0f} {x[2][:44]}" for x in big[:4]))
            prev = m
    if opt.stamps:
        import json
        json.dump(stamp_names, open(out + ".stamps.json", "w"))
```

```python
import re

REG_RE = re.compile(r"^(-|abs\()?\s*([vas])(\d+)\)?$")
RNG_RE = re.compile(r"^(-)?([vas])\[(\d+):(\d+)\]$")

def regs_of(tok):
    tok = tok.strip()
    m = RNG_RE.match(tok)
    if m:
        return [(m.group(2), i) for i in range(int(m.group(3)), int(m.group(4)) + 1)]
    m = REG_RE.match(tok)
    if m:
        return [(m.group(2), int(m.group(3)))]
    if tok == "vcc":
        return [("vcc", 0)]
    if tok == "m0":
        return [("m0", 0)]
    if tok == "exec":
        return [("exec", 0)]
    return []

TRANS = ("v_exp_f32", "v_log_f32", "v_rcp_f32", "v_rsq_f32", "v_sqrt_f32", "v_sin_f32", "v_cos_f32")
RMW = ("v_fmac_f32", "v_fmac_f32_dpp", "v_dot2c_f32_bf16", "v_pk_fmac")

class I:
    __slots__ = ("text", "op", "cls", "rd", "wr", "tok", "arg", "dpp", "a", "b", "c", "lds", "wide", "passes", "data", "done", "lines", "lat")
    def __init__(self, text, tok=None):
        self.text = text
        self.tok = tok
        self.arg = None
        self.rd = set(); self.wr = set()
        self.dpp = False; self.a = self.b = self.c = None
        self.lds = False; self.wide = False; self.passes = 0; self.data = set()
        self.done = 0; self.lines = None; self.lat = None
        t = text.split(";")[0].strip()
        if t.endswith(":"):
            self.op = t; self.cls = "label"; return
        if t.startswith("."):
            self.op = t; self.cls = "dir"; return
        sp = t.split(None, 1)
        self.op = op = sp[0]
        rest = sp[1] if len(sp) > 1 else ""
        ops = [o.strip() for o in rest.split(",")] if rest else []
        mods = ""
        if ops:
            last = ops[-1].split(None, 1)
            if len(last) > 1 and not last[0].startswith("hwreg"):
                ops[-1] = last[0]; mods = last[1]
        R = [regs_of(o) for o in ops]
        if op.startswith("v_mfma"):
            self.cls = "mfma"
            self.wr = set(R[0]); self.a = set(R[1]); self.b = set(R[2]); self.c = set(R[3])
            self.rd = self.a | self.b | self.c
            self.passes = 4 if "16x16x32" in op else 8
        elif op.startswith("v_"):
            self.cls = "trans" if op in TRANS else "valu"
            self.dpp = ("_dpp" in op) or ("row_" in mods)
            if op.startswith("v_permlane"):
                self.wr = set(R[0]) | set(R[1]); self.rd = set(self.wr); self.cls = "perm"
            elif op.startswith("v_cmp"):
                self.wr = set(R[0]); self.rd = set().union(*R[1:])
            elif op.startswith("v_readfirstlane") or op.startswith("v_readlane"):
                self.wr = set(R[0]); self.rd = set().union(*R[1:]); self.cls = "rdlane"
            elif op.startswith("v_add_co") or op.startswith("v_addc_co"):
                self.wr = set(R[0]) | set(R[1]); self.rd = set().union(*R[2:])
            else:
                self.wr = set(R[0]); self.rd = set().union(*R[1:]) if len(R) > 1 else set()
                if op in RMW or op.startswith("v_fmac") or self.dpp:
                    self.rd |= self.wr
                if op.startswith("v_dot2"):
                    self.cls = "dot"
        elif op.startswith("ds_"):
            self.cls = "ds"
            if op.startswith("ds_read") or op.startswith("ds_bpermute"):
                self.wr = set(R[0]); self.rd = set().union(*R[1:])
            else:
                self.rd = set().union(*R); self.data = set().union(*R[1:])
        elif op.startswith("buffer_") or op.startswith("global_"):
            self.cls = "vmem"
            self.lds = (" lds" in " " + mods) or ("_lds_" in op)
            if "load" in op and not self.lds:
                self.wr = set(R[0]); self.rd = set().union(*R[1:])
            elif "load" in op:
                self.rd = set().union(*R); self.rd.add(("m0", 0))
            elif "store" in op:
                self.rd = set().union(*R)
                self.data = set(R[0]) if op.startswith("buffer_") else set(R[1])
                self.wide = op.endswith("x3") or op.endswith("x4")
            else:
                self.rd = set().union(*R) if R else set()
        elif op.startswith("s_load") or op in ("s_memtime", "s_memrealtime"):
            self.cls = "smem"
            self.wr = set(R[0]); self.rd = set().union(*R[1:]) if len(R) > 1 else set()
        elif op == "s_barrier":
            self.cls = "barrier"
        elif op == "s_waitcnt":
            self.cls = "wait"
        elif op == "s_nop":
            self.cls = "nop"; self.arg = int(ops[0])
        elif op.startswith("s_cbranch") or op in ("s_branch", "s_endpgm"):
            self.cls = "branch"
            if "vcc" in op: self.rd = {("vcc", 0)}
        elif op.startswith("s_cmp") or op.startswith("s_bitcmp"):
            self.cls = "salu"; self.rd = set().union(*R) if R else set()
        elif op in ("s_sleep", "s_setprio"):
            self.cls = "salu"
        elif op.startswith("s_"):
            self.cls = "salu"
            self.wr = set(R[0]); self.rd = set().union(*R[1:]) if len(R) > 1 else set()
        elif op.startswith("@"):
            self.cls = "pseudo"; self.arg = ops[0] if ops else None
        else:
            raise ValueError("cannot parse: " + text)

def is_valu(i):
    return i.cls in ("valu", "trans", "perm", "rdlane", "dot")

def resolve_waits(prog):
    out = []
    vm = []
    lg = []
    raw = False
    saved = []
    def emit_wait(nv, nl):
        nonlocal vm, lg
        parts = []
        if nv is not None:
            nv = min(nv, 63)
            if len(vm) > nv:
                parts.append(f"vmcnt({nv})")
                vm = vm[len(vm) - nv:] if nv else []
        if nl is not None:
            if any(o.cls == "smem" for o in lg):
                nl = 0
            nl = min(nl, 15)
            if len(lg) > nl:
                parts.append(f"lgkmcnt({nl})")
                lg = lg[len(lg) - nl:] if nl else []
        if parts:
            out.append(I("s_waitcnt " + " ".join(parts)))
    seen = set(); waited = set()
    for ins in prog:
        if ins.cls == "pseudo":
            if ins.op in ("@waitvm", "@waitboth", "@waitds"): waited.add(ins.arg)
            if ins.op == "@raw_begin": raw = True
            elif ins.op == "@raw_end": raw = False
            elif ins.op == "@waitvm":
                assert ins.arg in seen, "token never issued: " + ins.arg
                idx = [k for k, o in enumerate(vm) if o.tok == ins.arg]
                if idx: emit_wait(len(vm) - 1 - idx[-1], None)
            elif ins.op == "@waitvm0": emit_wait(0, None)
            elif ins.op == "@waitds":
                idx = [k for k, o in enumerate(lg) if o.tok == ins.arg]
                if idx: emit_wait(None, len(lg) - 1 - idx[-1])
            elif ins.op == "@waitds0": emit_wait(None, 0)
            elif ins.op == "@waitboth":
                assert ins.arg in seen, "token never issued: " + ins.arg
                idx = [k for k, o in enumerate(vm) if o.tok == ins.arg]
                emit_wait(len(vm) - 1 - idx[-1] if idx else None, 0)
            elif ins.op == "@arm":
                emit_wait(None, 0)
                saved.append((list(vm), len(vm)))
            elif ins.op == "@else":
                assert not lg, "arm must end with @waitds0"
                assert all(o in saved[-1][0] for o in vm), "no vmem inside arms"
                vm = list(saved[-1][0])
            elif ins.op == "@endarm":
                assert not lg, "arm must end with @waitds0"
                assert all(o in saved[-1][0] for o in vm), "no vmem inside arms"
                vm = list(saved.pop()[0])
            else:
                raise ValueError(ins.text)
            continue
        if raw:
            out.append(ins); continue
        touch = ins.rd | ins.wr
        nv = nl = None
        if touch:
            for k in range(len(vm) - 1, -1, -1):
                if vm[k].wr & touch:
                    nv = len(vm) - 1 - k; break
            for k in range(len(lg) - 1, -1, -1):
                if lg[k].wr & touch:
                    nl = len(lg) - 1 - k; break
        if nv is not None or nl is not None:
            emit_wait(nv, nl)
        if ins.cls == "wait":
            m = re.search(r"vmcnt\((\d+)\)", ins.text)
            if m:
                n = int(m.group(1)); vm = vm[len(vm) - n:] if n and len(vm) > n else ([] if n == 0 else vm)
            m = re.search(r"lgkmcnt\((\d+)\)", ins.text)
            if m:
                n = int(m.group(1)); lg = lg[len(lg) - n:] if n and len(lg) > n else ([] if n == 0 else lg)
        out.append(ins)
        if ins.tok:
            assert ins.tok not in waited, "token issued after its wait: " + ins.tok
            seen.add(ins.tok)
        if ins.cls == "vmem": vm.append(ins)
        elif ins.cls in ("ds", "smem"): lg.append(ins)
    return out

def need_states(p, c):
    n = 0
    pv = is_valu(p)
    if pv:
        vw = {r for r in p.wr if r[0] in "va"}
        sw = {r for r in p.wr if r[0] in ("s", "vcc")}
        if c.cls == "mfma" and vw & c.rd: n = max(n, 2)
        if is_valu(c):
            if p.cls == "trans" and vw & c.rd: n = max(n, 1)
            if (c.dpp or c.cls == "perm") and vw & c.rd: n = max(n, 2)
            if c.cls == "rdlane" and vw & c.rd: n = max(n, 1)
            if sw & c.rd: n = max(n, 2)
            if p.cls == "dot" and vw & (c.rd | c.wr):
                same_c = (c.op == p.op) and (vw & c.wr) and not _dot_ab(c) & vw
                if not same_c: n = max(n, 3)
        if p.cls == "dot" and c.cls in ("vmem", "ds", "mfma") and vw & c.rd: n = max(n, 3)
        if c.cls == "vmem" and sw & c.rd: n = max(n, 5)
        if c.cls in ("salu",) and sw & c.rd: n = max(n, 1)
    if p.cls == "mfma":
        big = p.passes == 8
        if c.cls == "mfma":
            if p.wr & (c.a | c.b): n = max(n, 12 if big else 8)
            if p.wr & c.c and (p.wr != c.c or p.passes != c.passes): n = max(n, 10 if big else 6)
            if p.wr & c.wr and not (p.wr & c.c): n = max(n, 12 if big else 8)
        elif is_valu(c):
            if p.wr & (c.rd | c.wr): n = max(n, 12 if big else 8)
            if p.c & c.wr: n = max(n, 7 if big else 3)
        elif c.cls in ("vmem", "ds"):
            if p.wr & (c.rd | c.wr): n = max(n, 12 if big else 8)
    if p.cls == "salu" and ("m0", 0) in p.wr and c.cls == "vmem" and c.lds: n = max(n, 1)
    if p.cls == "vmem" and p.wide and p.data & c.wr:
        n = max(n, 2 if is_valu(c) else 1)
    return n

def _dot_ab(c):
    t = c.text.split(";")[0].split(None, 1)[1].split(",")
    return set(regs_of(t[1])) | set(regs_of(t[2].split()[0]))

def insert_nops(prog):
    out = []
    for ins in prog:
        if ins.cls not in ("label", "dir"):
            need = 0; dist = 0
            for p in reversed(out):
                if p.cls in ("label", "dir"): continue
                if dist >= 12: break
                k = need_states(p, ins)
                if k > dist: need = max(need, k - dist)
                dist += (p.arg + 1) if p.cls == "nop" else 1
            while need > 0:
                k = min(need, 16)
                out.append(I(f"s_nop {k-1}")); need -= k
        out.append(ins)
    return out

def finalize(prog):
    p = resolve_waits(prog)
    p = insert_nops(p)
    return p

def stats(p):
    from collections import Counter
    c = Counter(i.cls for i in p)
    nops = sum(i.arg + 1 for i in p if i.cls == "nop")
    return dict(c), nops


DSCOST = {"ds_read_b64_tr_b16": 8, "ds_read_b128": 16, "ds_read_b64": 8, "ds_read_b32": 8, "ds_write_b128": 52, "ds_write_b64": 24,
          "ds_write_b32": 16, "ds_bpermute_b32": 16, "ds_read_u16": 8}

class Emitter:
    def __init__(self, lines_of, lat_of, lpc=9.2, win=64, dslat=70, bar=30):
        self.out = []; self.vm = []; self.lg = []; self.raw = False; self.saved = []
        self.seen = set(); self.waited = set()
        self.t = 0; self.mf = 0; self.vm_last = 0; self.ds_last = 0; self.all_vm = []
        self.lines_of = lines_of; self.lat_of = lat_of; self.lpc = lpc; self.win = win; self.dslat = dslat; self.bar = bar
        self.skip = None; self.marks = []; self.stalls = []
        self.m0 = None; self.dropnop = False
    def _time(self, i):
        if self.skip:
            if i.cls == "label" and i.op == self.skip + ":": self.skip = None
            return
        if i.cls in ("label", "dir"): return
        t0 = self.t
        if i.cls == "branch":
            m = re.match(r"s_cbranch_(?:vccz|scc0) (L_ok\d+)", i.text) or re.match(r"s_branch (L_\w+)", i.text) or re.match(r"s_cbranch_scc0 (L_nopf)", i.text)
            if m: self.skip = m.group(1); self.t += 30
            else: self.t += 8
            return
        if i.op == "v_writelane_b32": self.marks.append(self.t)
        if i.cls == "mfma":
            self.t = max(self.t, self.mf); self.mf = self.t + 4*i.passes; self.t += 8
        elif i.cls == "smem":
            i.done = self.t + (1500 if "load" in i.op else 100); self.t += 4
        elif i.cls == "wait":
            self.t = max(self.t, i.done) + 4
        elif i.cls == "vmem":
            self.t = self.issue_time(i)
            i.done = max(self.t + i.lat, self.vm_last + i.lines*self.lpc)
            self.vm_last = i.done; self.all_vm.append(i); self.t += 8 if "store" in i.op else 4
        elif i.cls == "ds":
            i.done = max(self.t + self.dslat, self.ds_last + DSCOST.get(i.op, 16)); self.ds_last = i.done; self.t += 4
        elif i.cls == "barrier": self.t += self.bar
        elif i.cls == "nop": self.t += 4*(i.arg + 1)
        elif i.cls == "trans": self.t += 8
        else: self.t += 4
        if i.cls != "mfma" and self.t - t0 > 28: self.stalls.append((self.t - t0, len(self.marks), i.text))
    def prep(self, i):
        if i.cls == "vmem":
            if i.lines is None: i.lines = self.lines_of(i)
            if i.lat is None: i.lat = self.lat_of(i)
    def issue_time(self, i):
        t = self.t
        self.all_vm = [o for o in self.all_vm if o.done > t - 1]
        outs = list(self.all_vm)
        while outs and sum(o.lines for o in outs) + i.lines > self.win:
            t = max(t, outs[0].done); outs.pop(0)
        return t
    def _put(self, i):
        need = 0; dist = 0
        if i.cls not in ("label", "dir"):
            for p in reversed(self.out[-40:]):
                if p.cls in ("label", "dir"): continue
                if dist >= 12: break
                k = need_states(p, i)
                if k > dist: need = max(need, k - dist)
                dist += (p.arg + 1) if p.cls == "nop" else 1
            while need > 0:
                k = min(need, 16)
                n = I(f"s_nop {k-1}"); self.out.append(n); self._time(n); need -= k
        self.out.append(i); self._time(i)
    def _wait(self, nv, nl):
        parts = []; done = 0
        if nv is not None:
            nv = min(nv, 63)
            if len(self.vm) > nv:
                parts.append(f"vmcnt({nv})"); done = max(done, self.vm[len(self.vm)-nv-1].done)
                self.vm = self.vm[len(self.vm) - nv:] if nv else []
        if nl is not None:
            if any(o.cls == "smem" for o in self.lg): nl = 0
            nl = min(nl, 15)
            if len(self.lg) > nl:
                parts.append(f"lgkmcnt({nl})"); done = max([done] + [o.done for o in self.lg[:len(self.lg)-nl]])
                self.lg = self.lg[len(self.lg) - nl:] if nl else []
        if parts:
            w = I("s_waitcnt " + " ".join(parts)); w.done = done; self._put(w)
    def _needs(self, ins):
        touch = ins.rd | ins.wr
        nv = nl = None
        if touch:
            for k in range(len(self.vm) - 1, -1, -1):
                if self.vm[k].wr & touch: nv = len(self.vm) - 1 - k; break
            for k in range(len(self.lg) - 1, -1, -1):
                if self.lg[k].wr & touch: nl = len(self.lg) - 1 - k; break
        return nv, nl
    def stall(self, ins):
        if ins.cls == "pseudo":
            if ins.op == "@waitvm":
                idx = [o for o in self.vm if o.tok == ins.arg]
                return max(0, idx[-1].done - self.t) if idx else 0
            if ins.op in ("@waitds0", "@arm"):
                return max([0] + [o.done - self.t for o in self.lg])
            return 0
        nv, nl = self._needs(ins)
        d = 0
        if nv is not None: d = max(d, self.vm[len(self.vm)-min(nv, 63)-1].done - self.t)
        if nl is not None: d = max(d, max(o.done for o in self.lg[:len(self.lg)-min(nl, 15)]) - self.t)
        if ins.cls == "vmem":
            self.prep(ins); d = max(d, self.issue_time(ins) - self.t)
        return max(0, d)
    def feed(self, ins):
        if ins.cls == "pseudo":
            op = ins.op
            if op in ("@waitvm", "@waitboth", "@waitds"): self.waited.add(ins.arg)
            if op == "@raw_begin": self.raw = True
            elif op == "@raw_end": self.raw = False
            elif op in ("@waitvm", "@waitboth"):
                assert ins.arg in self.seen, "token never issued: " + ins.arg
                idx = [k for k, o in enumerate(self.vm) if o.tok == ins.arg]
                self._wait(len(self.vm) - 1 - idx[-1] if idx else None, 0 if op == "@waitboth" else None)
            elif op == "@waitvm0": self._wait(0, None)
            elif op == "@waitds":
                idx = [k for k, o in enumerate(self.lg) if o.tok == ins.arg]
                if idx: self._wait(None, len(self.lg) - 1 - idx[-1])
            elif op == "@waitds0": self._wait(None, 0)
            elif op == "@arm":
                self._wait(None, 0); self.saved.append(list(self.vm))
            elif op == "@else":
                assert not self.lg and all(o in self.saved[-1] for o in self.vm)
                self.vm = list(self.saved[-1])
            elif op == "@endarm":
                assert not self.lg and all(o in self.saved[-1] for o in self.vm)
                self.vm = list(self.saved.pop())
            elif op == "@gap": pass
            else: raise ValueError(ins.text)
            return
        if self.raw or ins.cls in ("label", "branch"): self.m0 = None
        if self.raw:
            self.prep(ins)
            self.out.append(ins); self._time(ins); return
        if self.dropnop:
            self.dropnop = False
            if ins.cls == "nop" and ins.arg == 0: return
        if ("m0", 0) in ins.wr:
            if self.m0 is not None and self.m0.text == ins.text:
                self.dropnop = True; return
            self.m0 = ins
        elif self.m0 is not None and ins.wr & self.m0.rd: self.m0 = None
        nv, nl = self._needs(ins)
        if nv is not None or nl is not None: self._wait(nv, nl)
        self.prep(ins)
        self._put(ins)
        if ins.tok:
            assert ins.tok not in self.waited, "token issued after its wait: " + ins.tok
            self.seen.add(ins.tok)
        if ins.cls == "vmem": self.vm.append(ins)
        elif ins.cls in ("ds", "smem"): self.lg.append(ins)
```

```python
import sys, os
sys.path.insert(0, os.path.dirname(os.path.abspath(__file__)))
from asmlib import I, stats, insert_nops, Emitter

KNAME = "recurrent_scan__ssm_conv_s5__glu_gated_swiglu__prompt_kernel"

class Opt:
    fine = False
    splitx = False
    fine2 = False
    pk0 = True
    xhit = False
    chain = 0
    sim = False
    fakehit = ''
    delay = 0
    diag = False
    cycles = False
    skip = ''
    probe = ''
    stamps = False
    codepf = True
    krot = True
    prot = False
    pre0 = 180
    late0 = 0
    pflines = 12
    win = 8
    pre_norm = 1
    skew = False
    mstat = True
    t_x1 = False
    t_w13 = False
    b10 = 1
    rf_stage = 2
    slack = 22
    rl_pos = 0
    capU = 3
    capM = 5
    span = 5
    X_stage = 2
    L_stage = 5
    C_stage = 7
    Y_stage = 8
    H_stage = 11
    F_stage = 1
    W_stage = 4
    nearly = 12
    rl_nt = False
    out_flags = "sc1"
    x_flags = ""
    w_flags = ""
    p1map = 0
    p2map = 1
    p2pos = 2
    epos = 6
    afirst = True
    m23 = 1
    onewait = False
    fin2 = True
    merge2 = True
    sflag = False
    sfl = 2
    shadow56 = True
    t56 = 2
    hhpos = 0
    hack = 91
    haend = 18
    hast = 14
    hald = 0
    thrs = 200
    hhld = 50
    hhck = 130
    every = 7
    every2 = 2
    a0 = 3
    thrb = 40
    cad = 3
    cadA = 6
    pace = 10.0
    burst = 100
    coldpace = 1.5
    vmcost = 4
    ybar = 15
    hchk = 4
    HL_stage = 13
    look = 3
    lookW = 6
    thr = 16
    dsmax = 3
    interp = True
    vlat = 14
    chainq = True
    dslat = 130
    even = True
    thrm = 100
    slot0 = 5
    earlyA = False
    roty = False
    latA = 640
    latW = 620
opt = Opt()

WS_A2 = 0
WS_W2P = 0xB00000
WS_S = 0xF00000
WS_STAT = 0xF40000
WS_FLW = 0xF50000
WS_FLH = 0xF51000
WS_FLHH = 0xF52000
WS_FLHA = 0xF54000
WS_SEED = 0xF53000
WS_STAMP = 0xF60000
WS_SIZE = 0x1000000
OOB = 0x40000000

L_RL = 102400
L_PRIV = 122880
PV_COL, PV_CH, PV_E = 0, 1280, 4352
L_TT = 155648
L_LB = 159744
L_WY = 0
L_P1 = 81920
L_P2 = 0

sX, sWU, sWM, sWS, sOUT, sRL, sDBG = 36, 40, 44, 48, 52, 56, 60
(sW, sC, sG, sRT, sN, sNONCE, sT0, sT1, sT2, sT3, sXOFF, sUOFF, sMOFF, sMOFFB, sRLOFF, sRLST,
 sA2H, sKSA, sKSB, sSST, sLB0, sLB1, sLB2, sLB3, sEX0, sEX1, sEX2, sEX3, sM0, sM0A, sCNT, sP2A, sP2W, sT4, sT5, sSTATO) = range(64, 100)
sSTAMP = 100
pX, pLRE, pLIM, pBRE, pBIM, pCRE, pCIM, pLDT = 4, 6, 8, 10, 12, 14, 16, 18
pDSK, pBX, pW1, pW3, pW2, pOUT, pDBG, pWS = 20, 22, 24, 26, 28, 30, 32, 34
sKU = [22, 23, 0, 1, 32]
sD0, sD1 = 4, 5
sRY, sRO = 6, 7
sAP, sAS, sAE, sWP, sWB, sWE = 8, 9, 10, 11, 12, 13
sM0U, sSEEDO = 18, 19
sD2 = 31
sKA = [14, 15, 16, 17, 28]
sFW, sFHA, sFHH, sFH, sFL = 29, 34, 35, 6, 7
sRLT = 33
sHO = [24, 25, 26, 27, 30]

vLANE, vL16 = 1, 2
vRX = [3, 4]; vRU = [5, 6]
vRA = [7, 8]; vRB = 9; vHH = 10; vDU = 11; vW4 = 12
vD = [13, 14, 15, 16]
vXD = vD
vDB = [3, 4, 5, 6]; vRB2 = 11
BSLOT = {10: 4, 11: 5, 12: 2, 13: 3, 14: 0}
BISSUE = {2: (11, 7), 6: (12, 8), 7: (13, 9), 8: (14, 10)}
vUD = [11, 27, 28, 29]
vEW, vER, vCOLR, vCH, vTT, vLB, vTW, vTR, vHST, vSO = range(17, 27)
vWP0, vWP1, vFLAG, vNON = 27, 28, 29, 30
vT = list(range(32, 56))
def U(cf, f): return 56 + (cf * 2 + f) * 4
def X(f, s): return 96 + (f * 20 + s) * 4
def ACCA(mu, h2): return (mu * 2 + h2) * 16
def FB(par, fr): return 64 + par * 32 + fr * 4
def ACCB(mu, h2=0): return 128 + mu * 16
aRL = 160
aS = 180

def vr(n, c=4): return f"v[{n}:{n+c-1}]"
def ar(n, c=4): return f"a[{n}:{n+c-1}]"
def sr(n, c=4): return f"s[{n}:{n+c-1}]"

def lines_of(i):
    t = i.text
    if "ushort" in t: return 1
    if i.tok and i.tok[0] == "M" and int(i.tok[1:]) >= 10: return 16
    if i.tok == "RL": return 16
    if i.tok == "XR": return 11
    if " off," in t and "global" not in t: return 1
    if "dwordx2" in t: return 2
    if "load_dword " in t and "offen" in t: return 1 if "sc1" in t else 32
    if "global_load_dword" in t: return 0
    if "store_dword " in t: return 4 if "offen" in t else 1
    return 8
def lat_of(i):
    t = i.text; tok = i.tok or ""
    cold = 1500
    if "store" in t: return 820 if "sc1" in t else 330
    if tok.startswith("x"): return cold if tok in ("x0_0", "x0_1", "x1_0", "x1_1") else 800
    if tok.startswith("U"): return cold if tok == "U0" else 800
    if tok == "RL" or tok == "TW": return cold
    if tok.startswith("M"): return cold if (tok in ("M0", "M1", "M10") and not opt.t_w13) else 520
    if tok == "W" or tok.startswith("WL"): return opt.latW
    if tok == "A": return opt.latA
    if "sc1" in t: return 1000
    return 700
EM = [None]
CAP = [None]
def E(t, tok=None):
    i = I(t, tok)
    if CAP[0] is not None: CAP[0].append(i)
    else: EM[0].feed(i)
    return i
def L(lst):
    for t in lst:
        i = t if isinstance(t, I) else I(t)
        if CAP[0] is not None: CAP[0].append(i)
        else: EM[0].feed(i)
def atoms(lst):
    out = []; depth = 0
    for i in lst:
        glue = depth > 0 or i.op.startswith(("s_cselect", "s_addc", "s_subb", "v_cndmask", "v_addc")) or i.cls in ("branch", "label") or i.op in ("@arm", "@else", "@endarm")
        if out and glue: out[-1].append(i)
        else: out.append([i])
        if i.op == "@arm": depth += 1
        if i.op == "@endarm": depth -= 1
    return out
def II(lst): return [t if isinstance(t, I) else I(t) for t in lst]

def srd(d, p, nbytes):
    return [f"s_mov_b32 s{d}, s{p}", f"s_and_b32 s{d+1}, s{p+1}, 0xffff", f"s_mov_b32 s{d+2}, {nbytes}", f"s_mov_b32 s{d+3}, 0x20000"]

stamp_n = [0]
stamp_names = []
def stamp(name, cyc=False):
    if opt.probe:
        if name != opt.probe: return []
        return [f"s_memrealtime s[{sSTAMP}:{sSTAMP+1}]", "@waitds0", f"s_mov_b32 s3, s{sSTAMP}"]
    if not opt.stamps: return []
    k = stamp_n[0]; stamp_n[0] += 1
    stamp_names.append(name)
    return [f"s_memtime s[{sSTAMP}:{sSTAMP+1}]" if (cyc or opt.cycles) else f"s_memrealtime s[{sSTAMP}:{sSTAMP+1}]", "@waitds0",
            f"v_writelane_b32 v0, s{sSTAMP}, {k}"]

def cmul(dr, di, ar_, ai, br, bi, t):
    return [f"v_mul_f32 v{t}, v{ai}, v{bi}", f"v_mul_f32 v{di}, v{ai}, v{br}",
            f"v_fma_f32 v{dr}, v{ar_}, v{br}, -v{t}", f"v_fmac_f32 v{di}, v{ar_}, v{bi}"]
def csq(dr, di, r, i, t):
    return [f"v_mul_f32 v{t}, v{i}, v{i}", f"v_mul_f32 v{di}, v{r}, v{i}",
            f"v_fma_f32 v{dr}, v{r}, v{r}, -v{t}", f"v_add_f32 v{di}, v{di}, v{di}"]
def chorner2(dr, di, gr, gi, mr, mi, er, ei):
    return [f"v_fma_f32 v{dr}, v{mr}, v{gr}, v{er}", f"v_fma_f32 v{di}, v{mr}, v{gi}, v{ei}",
            f"v_fma_f32 v{dr}, -v{mi}, v{gi}, v{dr}", f"v_fma_f32 v{di}, v{mi}, v{gr}, v{di}"]

LOG2E = "0x3fb8aa3b"
NLOG2E = "0xbfb8aa3b"
INV2PI = "0.15915494"

def x_piece(n):
    f, S, ih = n // 20, (n % 20) // 2, n & 1
    p = n & 3
    r = []
    if p == 0:
        r = [f"s_add_u32 m0, s{sM0}, {f*81920 + (2*S)*1024}", f"s_add_u32 s{sD1}, s{sKU[S >> 1]}, s{sXOFF}"]
        if f: r.append(f"s_add_u32 s{sD1}, s{sD1}, {4*1280}")
    r.append(I(f"buffer_load_dwordx4 v{vXD[p]}, s[{sX}:{sX+3}], s{sD1} offen offset:{p*1024} {opt.x_flags} lds", tok=f"x{f}_{S}"))
    return r
def u_piece(i, cf):
    r = []
    if cf == 0: r = [f"s_add_u32 m0, s{sM0U}, {i*20480}", f"s_add_u32 s{sD1}, s{sKU[i]}, s{sUOFF}"]
    if cf == 4: r = [f"s_add_u32 m0, s{sM0U}, {i*20480 + 4096}", f"s_add_u32 s{sD1}, s{sD1}, {4*10240}"]
    r.append(I(f"buffer_load_dwordx4 v{vUD[cf & 3]}, s[{sWU}:{sWU+3}], s{sD1} offen offset:{(cf & 3)*1024} {opt.w_flags} lds", tok=f"U{i}"))
    return r
class Stream:
    def __init__(self): self.n = 0
    def next(self, k, limit=60):
        r = []
        for _ in range(k):
            if self.n >= limit: break
            r += x_piece(self.n) if self.n < 40 else u_piece((self.n - 40) // 5, (self.n - 40) % 5)
            self.n += 1
        return r
ST = Stream()

def prologue():
    E(f"s_cmp_ge_u32 s2, 256")
    E("s_cbranch_scc1 L_exit")
    E("s_load_dwordx16 s[4:19], s[0:1], 0")
    E("s_load_dwordx16 s[20:35], s[0:1], 64")
    if opt.stamps or opt.probe == "entry":
        E(f"s_{'memtime' if opt.cycles else 'memrealtime'} s[{sSTAMP}:{sSTAMP+1}]")
    if opt.codepf:
        n = opt.pflines
        L(["@raw_begin", f"s_getpc_b64 s[{sT2}:{sT3}]", "L_pc:",
           f"s_lshr_b32 s{sT4}, s2, 3", f"s_mul_i32 s{sT4}, s{sT4}, {n*128}",
           f"v_min_u32 v{vT[0]}, {n-1}, v0", f"v_lshlrev_b32 v{vT[0]}, 7, v{vT[0]}", f"v_add_u32 v{vT[0]}, s{sT4}, v{vT[0]}",
           f"v_min_u32 v{vT[0]}, L_codeend-L_pc-4, v{vT[0]}",
           f"v_mov_b32 v{vT[1]}, s{sT3}", f"v_add_co_u32 v{vT[0]}, vcc, s{sT2}, v{vT[0]}", f"v_cmp_gt_u32 s[{sEX0}:{sEX0+1}], {n}, v0", "s_nop 0",
           f"v_addc_co_u32 v{vT[1]}, vcc, 0, v{vT[1]}, vcc", f"s_and_b64 s[{sEX0}:{sEX0+1}], s[{sEX0}:{sEX0+1}], exec",
           "s_cbranch_scc0 L_nopf", f"s_mov_b64 exec, s[{sEX0}:{sEX0+1}]",
           f"global_load_dword a230, v[{vT[0]}:{vT[1]}], off", "s_mov_b64 exec, -1", "L_nopf:", "@raw_end"])
    E(f"v_lshrrev_b32 v{vT[0]}, 6, v0")
    E(f"v_and_b32 v{vLANE}, 63, v0")
    E(f"v_readfirstlane_b32 s{sW}, v{vT[0]}")
    E(f"v_lshlrev_b32 v{vL16}, 4, v{vLANE}")
    L([f"s_and_b32 s{sT0}, s2, 7", f"s_lshr_b32 s{sT1}, s2, 3"])
    if opt.p1map == 0:
        L([f"s_and_b32 s{sC}, s{sT0}, 1", f"s_lshl_b32 s{sC}, s{sC}, 3", f"s_and_b32 s{sT2}, s{sT1}, 7", f"s_add_u32 s{sC}, s{sC}, s{sT2}",
           f"s_lshr_b32 s{sG}, s{sT0}, 1", f"s_lshl_b32 s{sG}, s{sG}, 2", f"s_lshr_b32 s{sT2}, s{sT1}, 3", f"s_add_u32 s{sG}, s{sG}, s{sT2}"])
    else:
        L([f"s_and_b32 s{sC}, s{sT0}, 3", f"s_lshl_b32 s{sC}, s{sC}, 2", f"s_and_b32 s{sT2}, s{sT1}, 3", f"s_add_u32 s{sC}, s{sC}, s{sT2}",
           f"s_lshr_b32 s{sG}, s{sT0}, 2", f"s_lshl_b32 s{sG}, s{sG}, 3", f"s_lshr_b32 s{sT2}, s{sT1}, 2", f"s_add_u32 s{sG}, s{sG}, s{sT2}"])
    t0, t1, t2, t3 = vT[0:4]
    L([f"v_lshrrev_b32 v{t0}, 3, v{vLANE}", f"v_and_b32 v{t1}, 7, v{vLANE}", f"v_and_b32 v{t2}, 6, v{t0}",
       f"v_xor_b32 v{t1}, v{t1}, v{t2}", f"v_lshlrev_b32 v{t1}, 4, v{t1}",
       f"v_and_b32 v{t2}, 4, v{t0}", f"v_add_u32 v{t2}, v{t2}, v{t0}",
       f"v_mul_u32_u24 v{vD[0]}, 1280, v{t2}", f"v_add_u32 v{vD[0]}, v{vD[0]}, v{t1}",
       f"v_mul_u32_u24 v{vDU}, 1280, v{t0}", f"v_add_u32 v{vDU}, v{vDU}, v{t1}",
       f"v_add_u32 v{vD[0]}, 4096, v{vD[0]}", f"v_add_u32 v{vD[1]}, {16*1280 - 1024}, v{vD[0]}",
       f"v_add_u32 v{vD[2]}, {128 - 2048}, v{vD[0]}", f"v_add_u32 v{vD[3]}, {16*1280 + 128 - 3072}, v{vD[0]}"])
    L([f"s_mul_i32 s{sT2}, s{sG}, 80", f"v_min_u32 v{t3}, 39, v{vLANE}", f"v_lshlrev_b32 v{t3}, 1, v{t3}", f"v_add_u32 v{t3}, s{sT2}, v{t3}"])
    L([f"s_lshl_b32 s{sXOFF}, s{sC}, 2", f"s_add_u32 s{sXOFF}, s{sXOFF}, s{sW}", f"s_mul_i32 s{sXOFF}, s{sXOFF}, {0 if opt.xhit else 32*1280}",
       f"s_mul_i32 s{sM0}, s{sW}, 20480"])
    if opt.krot:
        L([f"s_add_u32 s{sT4}, s{sC}, s{sG}", f"s_mul_i32 s{sT5}, s{sT4}, 52", f"s_lshr_b32 s{sT5}, s{sT5}, 8", f"s_mul_i32 s{sT5}, s{sT5}, 5",
           f"s_sub_u32 s{sT4}, s{sT4}, s{sT5}", f"s_lshl_b32 s{sT4}, s{sT4}, 8"])
    else:
        E(f"s_mov_b32 s{sT4}, 0")
    E("@waitds0")
    if opt.probe == "entry": E(f"s_mov_b32 s3, s{sSTAMP}")
    if opt.stamps:
        E(f"v_mov_b32 v0, 0")
        E(f"v_writelane_b32 v0, s{sSTAMP}, 0"); stamp_n[0] = 1; stamp_names.append("entry")
    if opt.chain:
        L([f"s_mul_i32 s{sT2}, s2, {60*128}", f"s_add_u32 s{sT2}, s{pW2}, s{sT2}", f"s_addc_u32 s{sT3}, s{pW2+1}, 0", f"v_mov_b32 v{vT[8]}, 0"])
        for k in range(opt.chain):
            L([f"global_load_dword v{vT[9]}, v{vT[8]}, s[{sT2}:{sT3}]", "@waitvm0", f"v_add_u32 v{vT[8]}, 128, v{vT[8]}"])
    E(f"global_load_ushort v{vT[4]}, v{t3}, s[{pLRE}:{pLRE+1}]")
    E(f"global_load_ushort v{vT[5]}, v{t3}, s[{pLIM}:{pLIM+1}]")
    E(f"global_load_ushort v{vT[6]}, v{t3}, s[{pLDT}:{pLDT+1}]")
    L([f"s_sub_u32 s{sX}, s{pX}, 4096", f"s_subb_u32 s{sX+1}, s{pX+1}, 0", f"s_and_b32 s{sX+1}, s{sX+1}, 0xffff",
       f"s_mov_b32 s{sX+2}, {2048*1280 + 4096}", f"s_mov_b32 s{sX+3}, 0x20000"])
    L(srd(sDBG, pDBG, 256))
    def ku(j): return [f"s_add_u32 s{sKU[j]}, s{sT4}, {j*256}", f"s_cmp_ge_u32 s{sKU[j]}, 1280", f"s_cselect_b32 s{sT5}, 1280, 0", f"s_sub_u32 s{sKU[j]}, s{sKU[j]}, s{sT5}"]
    L(ku(0)); L(ST.next(4))
    L(srd(sWS, pWS, WS_SIZE))
    L([f"s_or_b32 s{sT2}, s2, s{sW}", f"s_cmp_eq_u32 s{sT2}, 0", f"s_mov_b32 s{sT3}, {WS_SEED}", f"s_cselect_b32 s{sSEEDO}, s{sT3}, {OOB}"])
    E(f"buffer_load_dword v{vT[7]}, off, s[{sWS}:{sWS+3}], s{sSEEDO} sc1")
    L(ku(1)); L(ST.next(opt.win - 4))
    for j in range(2, 5): L(ku(j))
    i_, q_, a0, a1 = vT[8:12]
    L([f"v_and_b32 v{i_}, 15, v{vLANE}", f"v_lshrrev_b32 v{q_}, 4, v{vLANE}",
       f"v_and_b32 v{a0}, 7, v{i_}", f"v_and_b32 v{a1}, 6, v{i_}", f"v_xor_b32 v{a1}, v{a1}, v{q_}", f"v_lshlrev_b32 v{a1}, 4, v{a1}",
       f"v_lshl_add_u32 v{a1}, v{a0}, 7, v{a1}",
       f"v_lshrrev_b32 v{a0}, 3, v{i_}",
       f"v_mul_u32_u24 v{vRU[0]}, 5120, v{a0}", f"v_add_u32 v{vRU[0]}, v{vRU[0]}, v{a1}", f"v_xor_b32 v{vRU[1]}, 64, v{vRU[0]}",
       f"v_lshl_add_u32 v{vRX[0]}, v{a0}, 10, v{a1}", f"v_add_u32 v{vRX[0]}, s{sM0}, v{vRX[0]}", f"v_xor_b32 v{vRX[1]}, 64, v{vRX[0]}",
       f"v_add_u32 v{vW4}, 4096, v{vL16}", f"v_mov_b32 v{vONES}, 0x3f803f80"])
    L([f"v_accvgpr_write_b32 a{aONE+k}, v{vONES}" for k in range(4)])
    L([f"v_add_u32 v{vUD[p]}, {p*(10240 - 1024)}, v{vDU}" for p in range(1, 4)])

def setup_rest():
    t0 = vT[0]
    L([f"s_bitcmp1_b32 s{sW}, 0",
       f"s_cselect_b32 s{sWU}, s{pBIM}, s{pBRE}", f"s_cselect_b32 s{sWU+1}, s{pBIM+1}, s{pBRE+1}",
       f"s_cselect_b32 s{sWM}, s{pW3}, s{pW1}", f"s_cselect_b32 s{sWM+1}, s{pW3+1}, s{pW1+1}",
       f"s_and_b32 s{sWU+1}, s{sWU+1}, 0xffff", f"s_and_b32 s{sWM+1}, s{sWM+1}, 0xffff",
       f"s_mov_b32 s{sWU+2}, {640*1280}", f"s_mov_b32 s{sWU+3}, 0x20000",
       f"s_mov_b32 s{sWM+2}, {640*3072}", f"s_mov_b32 s{sWM+3}, 0x20000"])
    L(srd(sOUT, pOUT, 2048*2560))
    if opt.p2map == 0:
        L([f"s_lshl_b32 s{sRT}, s{sT0}, 2", f"s_and_b32 s{sT2}, s{sT1}, 3", f"s_add_u32 s{sRT}, s{sRT}, s{sT2}", f"s_lshr_b32 s{sN}, s{sT1}, 2"])
    else:
        L([f"s_and_b32 s{sRT}, s{sT0}, 3", f"s_lshl_b32 s{sRT}, s{sRT}, 3", f"s_and_b32 s{sT2}, s{sT1}, 7", f"s_add_u32 s{sRT}, s{sRT}, s{sT2}",
           f"s_lshr_b32 s{sN}, s{sT0}, 2", f"s_lshl_b32 s{sN}, s{sN}, 2", f"s_lshr_b32 s{sT2}, s{sT1}, 3", f"s_add_u32 s{sN}, s{sN}, s{sT2}"])
    L([f"s_mul_i32 s{sUOFF}, s{sG}, {40*1280}", f"s_lshr_b32 s{sT2}, s{sW}, 1", f"s_lshl_b32 s{sT2}, s{sT2}, 7", f"s_add_u32 s{sUOFF}, s{sUOFF}, s{sT2}",
       f"s_mul_i32 s{sM0U}, s{sW}, 5120"])
    L([f"s_mul_i32 s{sT2}, s{sG}, 192", f"s_bitcmp1_b32 s{sG}, 0",
       f"s_cselect_b32 s{sT3}, 64, 0", f"s_cselect_b32 s{sT4}, 0, 128", f"s_add_u32 s{sMOFF}, s{sT2}, s{sT3}", f"s_add_u32 s{sMOFFB}, s{sT2}, s{sT4}",
       f"s_lshr_b32 s{sT2}, s{sW}, 1",
       f"s_mul_i32 s{sT3}, s{sT2}, {32*3072}", f"s_add_u32 s{sMOFF}, s{sMOFF}, s{sT3}",
       f"s_mul_i32 s{sT3}, s{sT2}, {64*3072}", f"s_add_u32 s{sMOFFB}, s{sMOFFB}, s{sT3}",
       f"s_lshl_b32 s{sM0A}, s{sW}, 12"])
    L([f"s_lshl_b32 s{sT3}, s{sC}, 1", f"s_add_u32 s{sT3}, s{sT3}, s{sT2}", f"s_mul_i32 s{sA2H}, s{sT3}, {88*4096}",
       f"s_and_b32 s{sT3}, s{sW}, 1", f"s_lshl_b32 s{sT3}, s{sT3}, 11", f"s_add_u32 s{sA2H}, s{sA2H}, s{sT3}",
       f"s_mul_i32 s{sT3}, s{sG}, 3", f"s_add_u32 s{sT3}, s{sT3}, 40", f"s_and_b32 s{sT4}, s{sG}, 1",
       f"s_add_u32 s{sKSA}, s{sT3}, s{sT4}", f"s_lshl_b32 s{sKSA}, s{sKSA}, 12", f"s_add_u32 s{sKSA}, s{sKSA}, s{sA2H}",
       f"s_xor_b32 s{sT4}, s{sT4}, 1", f"s_lshl_b32 s{sT4}, s{sT4}, 1",
       f"s_add_u32 s{sKSB}, s{sT3}, s{sT4}", f"s_lshl_b32 s{sKSB}, s{sKSB}, 12", f"s_add_u32 s{sKSB}, s{sKSB}, s{sA2H}"])
    L([f"s_lshl_b32 s{sT3}, s{sG}, 4", f"s_add_u32 s{sT4}, s{sT3}, s{sC}", f"s_mul_i32 s{sT4}, s{sT4}, 640", f"s_add_u32 s{sT4}, s{sT4}, {WS_S}",
       f"s_cmp_eq_u32 s{sW}, 3", f"s_cselect_b32 s{sSST}, s{sT4}, {OOB}"])
    for jj, sl in enumerate((sLB0, sLB1, sLB2, sLB3)):
        L([f"s_lshl_b32 s{sT4}, s{sW}, 2", f"s_add_u32 s{sT4}, s{sT4}, s{sC}", f"s_add_i32 s{sT4}, s{sT4}, {jj-16}",
           f"s_add_u32 s{sT5}, s{sT3}, s{sT4}", f"s_mul_i32 s{sT5}, s{sT5}, 640", f"s_add_u32 s{sT5}, s{sT5}, {WS_S}",
           f"s_cmp_ge_i32 s{sT4}, 0", f"s_cselect_b32 s{sl}, s{sT5}, {OOB}"])
    L([f"s_lshl_b32 s{sT3}, s{sC}, 2", f"s_add_u32 s{sT3}, s{sT3}, s{sW}", f"s_lshl_b32 s{sT3}, s{sT3}, 8", f"s_add_u32 s{sT3}, s{sT3}, {WS_STAT}",
       f"s_cmp_eq_u32 s{sG}, 0", f"s_cselect_b32 s{sSTATO}, s{sT3}, {OOB}"])
    for cf in range(5):
        L([f"s_mul_i32 s{sT2}, s{sG}, 5", f"s_add_u32 s{sT2}, s{sT2}, {cf}", f"s_and_b32 s{sT4}, s{sT2}, 3", f"s_lshr_b32 s{sT2}, s{sT2}, 2",
           f"s_lshl_b32 s{sT2}, s{sT2}, 12", f"s_lshl_b32 s{sT4}, s{sT4}, 8", f"s_add_u32 s{sT2}, s{sT2}, s{sT4}", f"s_add_u32 s{sHO[cf]}, s{sT2}, s{sA2H}"])
    L([f"s_mul_i32 s{sP2A}, s{sRT}, {88*4096}", f"s_mul_i32 s{sP2W}, s{sN}, {88*5120}", f"s_add_u32 s{sP2W}, s{sP2W}, {WS_W2P}"])
    if "A" in opt.fakehit: E(f"s_mov_b32 s{sP2A}, 0")
    if "W" in opt.fakehit: E(f"s_mov_b32 s{sP2W}, {WS_W2P}")
    L(ptr_bases())

cAR, cAI, cKR, cKI = 56, 57, 58, 59
cA8, cA32, cA32W, cA128, cOM = 60, 62, 64, 66, 68
def constants():
    lre, lim, ldt = vT[4], vT[5], vT[6]
    t = list(range(72, 96))
    L([f"v_lshlrev_b32 v{lre}, 16, v{lre}", f"v_lshlrev_b32 v{lim}, 16, v{lim}", f"v_lshlrev_b32 v{ldt}, 16, v{ldt}",
       f"v_mul_f32 v{t[0]}, {LOG2E}, v{ldt}", f"v_exp_f32 v{t[0]}, v{t[0]}",
       f"v_cvt_pk_bf16_f32 v{t[0]}, v{t[0]}, v{t[0]}", f"v_lshlrev_b32 v{t[0]}, 16, v{t[0]}",
       f"v_mul_f32 v{t[1]}, v{t[0]}, v{lre}", f"v_mul_f32 v{t[2]}, v{t[0]}, v{lim}",
       f"v_mul_f32 v{t[1]}, {LOG2E}, v{t[1]}", f"v_exp_f32 v{t[1]}, v{t[1]}",
       f"v_mul_f32 v{t[2]}, {INV2PI}, v{t[2]}", f"v_rndne_f32 v{t[3]}, v{t[2]}", f"v_sub_f32 v{t[2]}, v{t[2]}, v{t[3]}",
       f"v_cos_f32 v{t[3]}, v{t[2]}", f"v_sin_f32 v{t[4]}, v{t[2]}",
       f"v_mul_f32 v{cAR}, v{t[1]}, v{t[3]}", f"v_mul_f32 v{cAI}, v{t[1]}, v{t[4]}",
       f"v_add_f32 v{t[3]}, -1.0, v{cAR}",
       f"v_mul_f32 v{t[5]}, v{lre}, v{lre}", f"v_fmac_f32 v{t[5]}, v{lim}, v{lim}", f"v_rcp_f32 v{t[5]}, v{t[5]}",
       f"v_mul_f32 v{t[6]}, v{t[3]}, v{lre}", f"v_fmac_f32 v{t[6]}, v{cAI}, v{lim}",
       f"v_mul_f32 v{t[7]}, v{cAI}, v{lre}", f"v_fma_f32 v{t[7]}, -v{t[3]}, v{lim}, v{t[7]}",
       f"v_add_f32 v{t[5]}, v{t[5]}, v{t[5]}",
       f"v_mul_f32 v{cKR}, v{t[6]}, v{t[5]}", f"v_mul_f32 v{cKI}, v{t[7]}, v{t[5]}"])
    r, i, tt = t[8], t[9], t[0]
    L([f"v_mov_b32 v{r}, v{cAR}", f"v_sub_f32 v{i}, 0, v{cAI}"])
    L(csq(t[10], t[11], r, i, tt)); L(csq(r, i, t[10], t[11], tt))
    L(csq(cA8, cA8+1, r, i, tt))
    L(csq(r, i, cA8, cA8+1, tt))
    L(csq(cA32, cA32+1, r, i, tt))
    L(csq(t[12], t[13], cA32, cA32+1, tt))
    L(csq(cA128, cA128+1, t[12], t[13], tt))
    L(csq(r, i, cA128, cA128+1, tt))
    L(csq(t[14], t[15], r, i, tt))
    L(csq(t[16], t[17], t[14], t[15], tt))
    def sel(dst, src, mask, on):
        if on:
            return [f"v_cndmask_b32 v{dst}, 1.0, v{src}, s[{mask}:{mask+1}]", f"v_cndmask_b32 v{dst+1}, 0, v{src+1}, s[{mask}:{mask+1}]"]
        return [f"v_mov_b32 v{t[22]}, 1.0", f"v_mov_b32 v{t[23]}, 0",
                f"v_cndmask_b32 v{dst}, v{src}, v{t[22]}, s[{mask}:{mask+1}]", f"v_cndmask_b32 v{dst+1}, v{src+1}, v{t[23]}, s[{mask}:{mask+1}]"]
    L([f"s_bitcmp1_b32 s{sW}, 0", f"s_cselect_b64 s[{sEX0}:{sEX0+1}], -1, 0", f"s_bitcmp1_b32 s{sW}, 1", f"s_cselect_b64 s[{sEX2}:{sEX2+1}], -1, 0"])
    L(sel(t[18], cA32, sEX0, True)); L(sel(t[20], t[12], sEX2, True))
    L(cmul(cA32W, cA32W+1, t[18], t[19], t[20], t[21], tt))
    L(sel(t[18], t[14], sEX0, False)); L(sel(t[20], t[16], sEX2, False))
    L(cmul(cOM, cOM+1, t[18], t[19], t[20], t[21], tt))

def nonce_seed():
    sd = vT[7]
    L([f"s_mov_b32 s{sT2}, 1664525", f"v_mul_lo_u32 v{sd}, v{sd}, s{sT2}", f"v_add_u32 v{vNON}, 1013904223, v{sd}", f"v_mov_b32 v{vNON+1}, 1"])
    E(f"buffer_store_dword v{vNON}, off, s[{sWS}:{sWS+3}], s{sSEEDO} sc1", tok="seed")
def nonce_publish():
    return [f"s_cmp_lt_u32 s{sSEEDO}, {OOB}", f"s_cselect_b32 s{sT5}, 0, {OOB}", "@waitvm seed",
            f"buffer_store_dwordx2 v[{vNON}:{vNON+1}], off, s[{sDBG}:{sDBG+3}], s{sT5} sc1"]

lab = [0]
def poll(load_text, check):
    lab[0] += 1
    n = lab[0]
    r = list(check)
    r += [f"s_cbranch_vccz L_ok{n}", "@raw_begin", f"s_mov_b32 s{sCNT}, {0x4000 if opt.diag else 0x40000}", f"L_rt{n}:", "s_sleep 1"]
    r += [t.text if isinstance(t, I) else t for t in load_text]
    r += ["s_waitcnt vmcnt(0)", "s_nop 1"] + list(check) + [f"s_cbranch_vccz L_ok{n}", f"s_sub_u32 s{sCNT}, s{sCNT}, 1",
          f"s_cmp_lg_u32 s{sCNT}, 0", f"s_cbranch_scc1 L_rt{n}"]
    if opt.diag: r += [f"buffer_store_dword v{vLANE}, off, s[{sDBG}:{sDBG+3}], 0 offset:{32+4*n} sc1", "s_waitcnt vmcnt(0)"]
    r += ["s_nop 7", "@raw_end", f"L_ok{n}:"]
    return r
def nonce_load():
    return [f"buffer_load_dwordx2 v[{vNON}:{vNON+1}], off, s[{sDBG}:{sDBG+3}], 0 sc1"]
def nonce_get():
    return poll(nonce_load(), [f"v_cmp_ne_u32 vcc, 1, v{vNON+1}"]) + [f"v_readfirstlane_b32 s{sNONCE}, v{vNON}"]

sS0, sS1, sQ0, sQ1 = vT[8], vT[9], vT[10], vT[11]
vR = [vT[12], vT[14]]; vNB = [vT[13], vT[15]]
vM = [vT[16], vT[17]]
vONES = vT[18]
def x_arrive(f, filler=None, limit=60):
    fa = atoms(II(filler or []))
    tot = sum(len(a) for a in fa); chunks = [[] for _ in range(10)]; acc = 0
    for a in fa:
        chunks[min(9, acc * 10 // max(tot, 1))] += a; acc += len(a)
    if not opt.mstat: L([f"v_mov_b32 v{sS0}, 0", f"v_mov_b32 v{sS1}, 0", f"v_mov_b32 v{sQ0}, 0", f"v_mov_b32 v{sQ1}, 0"])
    def st(s):
        r = []
        if opt.mstat:
            c0 = "0" if s == 0 else ar(aSS); c1 = "0" if s == 0 else ar(aSQ)
            return [f"v_mfma_f32_16x16x32_bf16 {ar(aSS)}, {ar(aONE)}, {vr(X(f, s))}, {c0}",
                    f"v_mfma_f32_16x16x32_bf16 {ar(aSQ)}, {vr(X(f, s))}, {vr(X(f, s))}, {c1}"]
        for k in range(4):
            x = X(f, s) + k
            r += [f"v_dot2_f32_bf16 v{(sS0, sS1)[k&1]}, v{x}, v{vONES}, v{(sS0, sS1)[k&1]}",
                  f"v_dot2_f32_bf16 v{(sQ0, sQ1)[k&1]}, v{x}, v{x}, v{(sQ0, sQ1)[k&1]}"]
        return r
    for S in range(10):
        E(f"@waitvm x{f}_{S}")
        for sh in range(2):
            E(f"ds_read_b128 {vr(X(f, 2*S+sh))}, v{vRX[sh]} offset:{S*2048}", tok=f"xr{f}_{2*S+sh}")
        fl = chunks[S]
        L(ST.next(2 if ST.n % 2 == 0 or True else 1, limit))
        if S > 0:
            E(f"@waitds xr{f}_{2*S-1}")
            L(st(2*S-2)); L(st(2*S-1))
        L(fl)
    E("@waitds0")
    return st(18) + st(19)

aONE, aSS, aSQ = 216, 220, 224
def x_stats(f):
    a, b = vT[19], vT[20]
    r = [f"v_add_f32 v{sS0}, v{sS0}, v{sS1}", f"v_add_f32 v{sQ0}, v{sQ0}, v{sQ1}"]
    if opt.mstat:
        t = vT[8:12]
        r = [f"v_and_b32 v{a}, 15, v{vLANE}", f"v_lshrrev_b32 v{b}, 2, v{a}", f"v_lshl_add_u32 v{b}, v{b}, 4, v{a}", f"v_lshlrev_b32 v{b}, 2, v{b}",
             f"v_and_b32 v{a}, 3, v{vLANE}", f"v_cmp_eq_u32 s[{sEX0}:{sEX0+1}], 1, v{a}", f"v_cmp_eq_u32 s[{sEX2}:{sEX2+1}], 2, v{a}", f"v_cmp_eq_u32 vcc, 3, v{a}"]
        r += [f"v_accvgpr_read_b32 v{t[k]}, a{aSQ+k}" for k in range(4)]
        r += [f"v_cndmask_b32 v{t[0]}, v{t[0]}, v{t[1]}, s[{sEX0}:{sEX0+1}]", f"v_cndmask_b32 v{t[2]}, v{t[2]}, v{t[3]}, vcc",
              f"v_cndmask_b32 v{t[0]}, v{t[0]}, v{t[2]}, s[{sEX2}:{sEX2+1}]", f"v_cndmask_b32 v{t[0]}, v{t[0]}, v{t[2]}, vcc",
              f"ds_bpermute_b32 v{sQ0}, v{b}, v{t[0]}", f"v_accvgpr_read_b32 v{sS0}, a{aSS}"]
    for perm in (() if opt.mstat else ("v_permlane16_swap_b32", "v_permlane32_swap_b32")):
        r += [f"v_mov_b32 v{a}, v{sS0}", f"v_mov_b32 v{b}, v{sQ0}", f"{perm} v{a}, v{sS0}", f"{perm} v{b}, v{sQ0}",
              f"v_add_f32 v{sS0}, v{sS0}, v{a}", f"v_add_f32 v{sQ0}, v{sQ0}, v{b}"]
    inv = "0x3acccccd"
    r += [f"v_mul_f32 v{sS0}, {inv}, v{sS0}", f"v_mul_f32 v{sQ0}, {inv}, v{sQ0}",
          f"v_fma_f32 v{sQ0}, -v{sS0}, v{sS0}, v{sQ0}", f"v_max_f32 v{sQ0}, 0, v{sQ0}",
          f"v_cvt_pk_bf16_f32 v{a}, v{sS0}, v{sQ0}",
          f"v_lshlrev_b32 v{vM[f]}, 16, v{a}", f"v_and_b32 v{b}, 0xffff0000, v{a}",
          f"v_add_f32 v{b}, 0x3727c5ac, v{b}",
          f"v_cvt_pk_bf16_f32 v{b}, v{b}, v{b}", f"v_and_b32 v{b}, 0xffff0000, v{b}",
          f"v_sqrt_f32 v{b}, v{b}", f"v_cvt_pk_bf16_f32 v{b}, v{b}, v{b}", f"v_and_b32 v{b}, 0xffff0000, v{b}",
          f"v_rcp_f32 v{vR[f]}, v{b}", f"v_mul_f32 v{vNB[f]}, v{vM[f]}, v{vR[f]}", f"v_sub_f32 v{vNB[f]}, 0, v{vNB[f]}"]
    return r

def norm_step(f, s, packed, tmp):
    r = []
    for k in range(4):
        x = X(f, s) + k
        t = tmp[(k & 1) * 2]
        if packed:
            r += [f"v_lshlrev_b32 v{t}, 16, v{x}", f"v_and_b32 v{t+1}, 0xffff0000, v{x}",
                  f"v_pk_fma_f32 v[{t}:{t+1}], v[{t}:{t+1}], v[{vR[f]}:{vR[f]+1}], v[{vR[f]}:{vR[f]+1}] op_sel:[0,0,1] op_sel_hi:[1,0,1]",
                  f"v_cvt_pk_bf16_f32 v{x}, v{t}, v{t+1}"]
        else:
            r += [f"v_lshlrev_b32 v{t}, 16, v{x}", f"v_and_b32 v{t+1}, 0xffff0000, v{x}",
                  f"v_fma_f32 v{t}, v{t}, v{vR[f]}, v{vNB[f]}", f"v_fma_f32 v{t+1}, v{t+1}, v{vR[f]}, v{vNB[f]}",
                  f"v_cvt_pk_bf16_f32 v{x}, v{t}, v{t+1}"]
    return r

def stats_store():
    a, b = vT[0], vT[1]
    r = [f"v_and_b32 v{a}, 12, v{vLANE}", f"v_add_u32 v{a}, v{a}, v{vLANE}", f"v_lshlrev_b32 v{a}, 3, v{a}",
         f"v_mov_b32 v{b}, {OOB}", f"v_cmp_gt_u32 vcc, 16, v{vLANE}", f"v_cndmask_b32 v{a}, v{b}, v{a}, vcc"]
    for f in range(2):
        r.append(I(f"buffer_store_dwordx2 v[{vR[f]}:{vR[f]+1}], v{a}, s[{sWS}:{sWS+3}], s{sSTATO} offen offset:{32*f} sc1", tok="stat"))
    return r

def mlp_dma_addr(kind):
    vD = vDB if kind == "B" else globals()["vD"]
    t0, t1, t2 = vD[1], vD[2], vD[3]
    if kind == "A":
        r = [f"v_lshrrev_b32 v{t0}, 3, v{vLANE}", f"v_and_b32 v{t1}, 7, v{vLANE}", f"v_and_b32 v{t2}, 2, v{t0}", f"v_lshlrev_b32 v{t2}, 1, v{t2}",
             f"v_xor_b32 v{t1}, v{t1}, v{t2}", f"v_lshlrev_b32 v{t1}, 4, v{t1}",
             f"v_mul_u32_u24 v{t0}, 3072, v{t0}", f"v_add_u32 v{vD[0]}, v{t0}, v{t1}"]
        rows = 8
    else:
        r = [f"v_lshrrev_b32 v{t0}, 2, v{vLANE}", f"v_and_b32 v{t1}, 3, v{vLANE}", f"v_lshlrev_b32 v{t1}, 4, v{t1}",
             f"v_mul_u32_u24 v{t0}, 3072, v{t0}", f"v_add_u32 v{vD[0]}, v{t0}, v{t1}"]
        rows = 16
    for p in range(1, 4):
        r.append(f"v_add_u32 v{vD[p]}, {p*(rows*3072 - 1024)}, v{vD[0]}")
    if kind == "B": r.append(f"v_add_u32 v{vRB2}, 0x10000, v{vRB}")
    return r

def b_off(m): return f"s_add_u32 s{sD2}, s{sKA[m - 10]}, s{sMOFFB}"
def dma_M(m):
    if "m" in opt.skip and m >= 4:
        i = I("s_nop 0"); i.tok = f"M{m}"; return [i]
    slot = m % 4 if m < 10 else BSLOT[m]
    vD = globals()["vD"] if m < 10 else vDB
    if m < 10:
        sreg = sD0 if m & 1 else sKA[m >> 1]
        so = [f"s_add_u32 s{sD0}, s{sKA[m >> 1]}, {64*3072}"] if m & 1 else []
    if m >= 10:
        r = []
        for p in range(4):
            r += [f"s_add_u32 m0, s{sM0A}, {slot*16384}"] + ([b_off(m)] if p == 0 else ["s_nop 0"])
            r.append(I(f"buffer_load_dwordx4 v{vD[p]}, s[{sWM}:{sWM+3}], s{sD2} offen offset:{p*1024} {opt.w_flags} lds", tok=f"M{m}"))
        return r
    r = [f"s_add_u32 m0, s{sM0A}, {slot*16384}"] + so
    for p in range(4):
        r.append(I(f"buffer_load_dwordx4 v{vD[p]}, s[{sWM}:{sWM+3}], s{sreg} offen offset:{p*1024} {opt.w_flags} lds", tok=f"M{m}"))
    return r

def w13_touch_addr():
    a, b = vT[5], vT[6]
    return [f"v_lshrrev_b32 v{a}, 1, v{vLANE}", f"v_mul_u32_u24 v{a}, 3072, v{a}", f"v_and_b32 v{b}, 1, v{vLANE}", f"v_lshl_add_u32 v{a}, v{b}, 7, v{a}",
            f"v_accvgpr_write_b32 a238, v{a}", f"v_mov_b32 v{b}, {OOB}", f"v_cmp_gt_u32 vcc, 16, v{vLANE}", f"v_cndmask_b32 v{a}, v{b}, v{a}, vcc",
            f"v_accvgpr_write_b32 a239, v{a}",
            f"s_and_b32 s{sT2}, s{sC}, 7", f"s_lshl_b32 s{sT2}, s{sT2}, 1", f"s_lshr_b32 s{sT3}, s{sW}, 1", f"s_add_u32 s{sT2}, s{sT2}, s{sT3}",
            f"s_mul_i32 s{sT2}, s{sT2}, {40*3072}", f"s_mul_i32 s{sT3}, s{sG}, 192", f"s_and_b32 s{sT3}, s{sT3}, 0xffffff80", f"s_add_u32 s{sD2}, s{sT2}, s{sT3}"]
def w13_touch():
    a = I(f"buffer_load_dword a228, v{vFLAG}, s[{sWM}:{sWM+3}], s{sD2} offen", tok="TW"); a.lines = 64
    b = I(f"buffer_load_dword a228, v{vFLAG}, s[{sWM}:{sWM+3}], s{sD2} offen", tok="TW"); b.lines = 16
    return [[f"v_accvgpr_read_b32 v{vFLAG}, a238", a], [f"v_accvgpr_read_b32 v{vFLAG}, a239", f"s_add_u32 s{sD2}, s{sD2}, {32*3072}", b]]

def delay(tag, mod, val, ticks):
    if not opt.delay: return []
    return ["@raw_begin", f"s_and_b32 s{sD0}, s2, {mod}", f"s_cmp_eq_u32 s{sD0}, {val}", f"s_cbranch_scc0 L_dl{tag}",
            f"s_memrealtime s[{sSTAMP}:{sSTAMP+1}]", "s_waitcnt lgkmcnt(0)", f"s_mov_b32 s{sD1}, s{sSTAMP}", f"L_dw{tag}:",
            f"s_memrealtime s[{sSTAMP}:{sSTAMP+1}]", "s_waitcnt lgkmcnt(0)", f"s_sub_u32 s{sD0}, s{sSTAMP}, s{sD1}",
            f"s_cmp_lt_u32 s{sD0}, {ticks*opt.delay}", f"s_cbranch_scc1 L_dw{tag}", f"L_dl{tag}:", "@raw_end"]

def skew(tag):
    if not opt.skew: return []
    return [f"s_bitcmp1_b32 s{sW}, 0", f"s_cbranch_scc1 L_sk{tag}a", "s_nop 0", f"L_sk{tag}a:", f"s_bitcmp1_b32 s{sW}, 1", f"s_cbranch_scc1 L_sk{tag}b", "s_nop 1", f"L_sk{tag}b:"]

def mlp_read_addr():
    G, r_, c, t, u = vT[19], vT[20], vT[21], vT[22], vT[23]
    return [f"v_lshrrev_b32 v{G}, 4, v{vLANE}", f"v_bfe_u32 v{r_}, v{vLANE}, 2, 2", f"v_and_b32 v{c}, 3, v{vLANE}",
         f"v_lshrrev_b32 v{t}, 1, v{G}", f"v_lshlrev_b32 v{t}, 11, v{t}", f"v_lshl_add_u32 v{t}, v{r_}, 7, v{t}",
         f"v_and_b32 v{u}, 1, v{c}", f"v_lshl_add_u32 v{t}, v{u}, 3, v{t}",
         f"v_and_b32 v{u}, 1, v{G}", f"v_lshlrev_b32 v{u}, 1, v{u}", f"v_lshrrev_b32 v{vRA[1]}, 1, v{c}", f"v_add_u32 v{u}, v{u}, v{vRA[1]}",
         f"v_lshrrev_b32 v{vRA[1]}, 1, v{r_}", f"v_lshlrev_b32 v{vRA[1]}, 2, v{vRA[1]}", f"v_xor_b32 v{u}, v{u}, v{vRA[1]}",
         f"v_lshl_add_u32 v{vRA[0]}, v{u}, 4, v{t}", f"v_xor_b32 v{vRA[1]}, 64, v{vRA[0]}",
         f"v_lshrrev_b32 v{t}, 1, v{G}", f"v_lshlrev_b32 v{t}, 10, v{t}", f"v_lshl_add_u32 v{t}, v{r_}, 6, v{t}",
         f"v_and_b32 v{u}, 1, v{G}", f"v_lshl_add_u32 v{t}, v{u}, 5, v{t}", f"v_lshl_add_u32 v{vRB}, v{c}, 3, v{t}",
         f"v_lshlrev_b32 v{u}, 10, v{u}", f"v_lshrrev_b32 v{t}, 1, v{G}", f"v_lshl_add_u32 v{u}, v{t}, 8, v{u}",
         f"v_and_b32 v{t}, 15, v{vLANE}", f"v_lshl_add_u32 v{vHH}, v{t}, 4, v{u}"]

def relayout_issue():
    u, t0, t1, t2 = sT2, vT[5], vT[6], vT[7]
    vo = vT[0:5]
    r = [f"s_lshl_b32 s{u}, s{sW}, 5", f"s_add_u32 s{u}, s{u}, s{sRT}",
       f"s_mul_i32 s{sT3}, s{sN}, 88", f"s_add_u32 s{sT3}, s{sT3}, s{u}", f"s_mul_i32 s{sT3}, s{sT3}, 5120", f"s_add_u32 s{sT3}, s{sT3}, {WS_W2P}",
       f"s_cmp_lt_u32 s{u}, 88", f"s_cselect_b32 s{sRLST}, s{sT3}, {OOB}",
       f"s_mov_b32 s{sRL+3}, 0x20000", f"s_cmp_lt_u32 s{u}, 40", "@arm", "s_cbranch_scc0 L_rlw",
       f"s_cmp_lt_u32 s{u}, 20", f"s_cselect_b32 s{sRL}, s{pCRE}, s{pCIM}", f"s_cselect_b32 s{sRL+1}, s{pCRE+1}, s{pCIM+1}",
       f"s_cselect_b32 s{sT3}, 0, 20", f"s_sub_u32 s{sT3}, s{u}, s{sT3}", f"s_lshl_b32 s{sT3}, s{sT3}, 6",
       f"s_mul_i32 s{sT4}, s{sN}, {80*1280}", f"s_add_u32 s{sRLOFF}, s{sT3}, s{sT4}",
       f"s_mov_b32 s{sRL+2}, {640*1280}",
       f"v_lshrrev_b32 v{t0}, 2, v{vLANE}", f"v_and_b32 v{t1}, 3, v{vLANE}", f"v_lshlrev_b32 v{t1}, 4, v{t1}",
       f"v_mul_u32_u24 v{t0}, 1280, v{t0}", f"v_add_u32 v{vo[0]}, v{t0}, v{t1}"]
    for e in range(1, 5): r.append(f"v_add_u32 v{vo[e]}, {e*16*1280}, v{vo[0]}")
    r += ["s_branch L_rlj", "@else", "L_rlw:",
       f"s_mov_b32 s{sRL}, s{pW2}", f"s_mov_b32 s{sRL+1}, s{pW2+1}",
       f"s_cmp_lt_u32 s{u}, 88", f"s_cselect_b32 s{sRL+2}, {1536*1280}, 0",
       f"s_sub_u32 s{sT3}, s{u}, 40", f"s_mul_i32 s{sT3}, s{sT3}, {32*1280}", f"s_mul_i32 s{sT4}, s{sN}, 160", f"s_add_u32 s{sRLOFF}, s{sT3}, s{sT4}",
       f"s_mov_b32 s{sT4}, 6554"]
    for p in range(5):
        r += [f"v_add_u32 v{t0}, {64*p}, v{vLANE}", f"v_mul_u32_u24 v{t1}, s{sT4}, v{t0}", f"v_lshrrev_b32 v{t1}, 16, v{t1}",
              f"v_mul_u32_u24 v{t2}, 10, v{t1}", f"v_sub_u32 v{t2}, v{t0}, v{t2}", f"v_lshlrev_b32 v{t2}, 4, v{t2}",
              f"v_mul_u32_u24 v{t1}, 1280, v{t1}", f"v_add_u32 v{vo[p]}, v{t1}, v{t2}"]
    r += ["@endarm", "L_rlj:", f"s_and_b32 s{sRL+1}, s{sRL+1}, 0xffff"]
    r += [f"v_accvgpr_write_b32 a{232+p}, v{vo[p]}" for p in range(5)]
    return r
def relayout_dma():
    vo = vT[0:5]
    r = []
    if "r" in opt.skip: return r
    for p in range(5):
        r.append([f"s_add_u32 m0, s{sM0U}, {L_RL + p*1024}", f"v_accvgpr_read_b32 v3, a{232+p}",
                  I(f"buffer_load_dwordx4 v3, s[{sRL}:{sRL+3}], s{sRLOFF} offen {'nt' if opt.rl_nt else ''} lds", tok="RL")])
    return r

def relayout_raddr():
    t0, t1, t2 = vT[5], vT[6], vT[7]
    return [f"v_and_b32 v{t0}, 15, v{vLANE}", f"v_lshrrev_b32 v{t1}, 4, v{vLANE}", f"v_lshlrev_b32 v{t1}, 4, v{t1}", f"v_lshl_add_u32 v{t0}, v{t0}, 6, v{t1}",
            f"v_lshrrev_b32 v{t1}, 2, v{vLANE}", f"v_and_b32 v{t2}, 8, v{t1}", f"v_add_u32 v{t1}, v{t1}, v{t2}", f"v_mul_u32_u24 v{t1}, 160, v{t1}",
            f"v_and_b32 v{t2}, 3, v{vLANE}", f"v_lshl_add_u32 v{t1}, v{t2}, 3, v{t1}",
            f"s_lshl_b32 s{sT2}, s{sW}, 5", f"s_add_u32 s{sT2}, s{sT2}, s{sRT}", f"s_cmp_lt_u32 s{sT2}, 40", f"s_cselect_b64 s[{sEX0}:{sEX0+1}], -1, 0",
            f"s_cselect_b32 s{sRLT}, 1, 0", f"s_add_u32 s{sT3}, s{sM0U}, {L_RL}",
            f"v_cndmask_b32 v{t0}, v{t1}, v{t0}, s[{sEX0}:{sEX0+1}]", f"v_add_u32 v{t0}, s{sT3}, v{t0}", f"v_accvgpr_write_b32 a237, v{t0}"]
def relayout_finish():
    if "r" in opt.skip: return []
    t0 = vT[0]
    r = [f"v_accvgpr_read_b32 v{t0}, a237", "@waitvm RL", f"s_cmp_eq_u32 s{sRLT}, 1", "s_cbranch_scc0 L_rfw"]
    for e in range(5):
        for h in range(2): r.append(f"ds_read_b64 {ar(aRL+4*e+2*h, 2)}, v{t0} offset:{e*1024 + 8*h}")
    r += ["@raw_begin", "s_branch L_rfj", "L_rfw:"]
    for e in range(5):
        for jj in range(2): r.append(f"ds_read_b64_tr_b16 {ar(aRL+4*e+2*jj, 2)}, v{t0} offset:{jj*1280 + e*32}")
    r += ["@raw_end", "L_rfj:"]
    for e in range(5):
        if e < 4: r.append(I(f"buffer_store_dwordx4 {ar(aRL+4*e)}, v{vL16}, s[{sWS}:{sWS+3}], s{sRLST} offen offset:{e*1024} sc1", tok="RLS"))
        else: r.append(I(f"buffer_store_dwordx4 {ar(aRL+4*e)}, v{vW4}, s[{sWS}:{sWS+3}], s{sRLST} offen sc1", tok="RLS"))
    return r

def flag_store(base, sline, sidx):
    reg = {WS_FLW: sFW, WS_FLHA: sFHA, WS_FLHH: sFHH, WS_FLH: sFH}[base]
    return [f"buffer_store_dword v{vNON}, off, s[{sWS}:{sWS+3}], s{reg} sc1"]
def late_offsets():
    r = [f"s_sub_u32 s{sMOFFB}, s{sMOFFB}, s{sMOFF}"]
    for j in range(5): r += [f"s_mul_i32 s{sKA[j]}, s{sKU[j]}, 1536", f"s_add_u32 s{sKA[j]}, s{sKA[j]}, s{sMOFF}"]
    r += [f"s_lshl_b32 s{sT2}, s{sN}, 7", f"s_lshl_b32 s{sT3}, s{sRT}, 2", f"s_add_u32 s{sT2}, s{sT2}, s{sT3}", f"s_add_u32 s{sT2}, s{sT2}, {WS_FLW}",
          f"s_lshl_b32 s{sT3}, s{sC}, 7", f"s_lshl_b32 s{sT4}, s{sG}, 2", f"s_add_u32 s{sT3}, s{sT3}, s{sT4}",
          f"s_cmp_eq_u32 s{sW}, 0", f"s_cselect_b32 s{sFW}, s{sT2}, {OOB}", f"s_cselect_b32 s{sT3}, s{sT3}, {OOB}",
          f"s_add_u32 s{sFHA}, s{sT3}, {WS_FLHA}", f"s_add_u32 s{sFHH}, s{sT3}, {WS_FLHH}", f"s_add_u32 s{sFH}, s{sT3}, {WS_FLH}",
          f"s_lshr_b32 s{sFL}, s{sRT}, 1", f"s_lshl_b32 s{sFL}, s{sFL}, 7"]
    return r
def flag_load(base, sline, shift, mask, st=None):
    st = sD0 if st is None else st
    if base == WS_FLW:
        pre = [f"s_lshl_b32 s{st}, s{sN}, 7", f"s_add_u32 s{st}, s{st}, {base}"]
    else:
        pre = [f"s_add_u32 s{st}, s{sFL}, {base}"]
    return pre + [f"v_and_b32 v{vFLAG}, {mask}, v{vLANE}", f"v_lshlrev_b32 v{vFLAG}, 2, v{vFLAG}",
                  f"buffer_load_dword v{vFLAG}, v{vFLAG}, s[{sWS}:{sWS+3}], s{st} offen sc1"]
sNN = 100
def sflag_load(base):
    return [f"s_lshr_b32 s{sD0}, s{sRT}, 1", f"s_lshl_b32 s{sD0}, s{sD0}, 7", f"s_add_u32 s{sD0}, s{sD0}, {base}", f"s_add_u32 s{sD1}, s{sD0}, 32",
            f"s_load_dwordx8 s[56:63], s[{pWS}:{pWS+1}], s{sD0} glc", f"s_load_dwordx8 s[76:83], s[{pWS}:{pWS+1}], s{sD1} glc"]
def sflag_check(base):
    lab[0] += 1
    n = lab[0]
    r = ["@waitds0"]
    for k in (56, 58, 60, 62, 76, 78, 80, 82): r.append(f"s_xor_b64 s[{k}:{k+1}], s[{k}:{k+1}], s[{sNN}:{sNN+1}]")
    for a, b in ((56, 58), (60, 62), (76, 78), (80, 82), (56, 60), (76, 80), (56, 76)): r.append(f"s_or_b64 s[{a}:{a+1}], s[{a}:{a+1}], s[{b}:{b+1}]")
    ld = flag_load(base, sRT, 1, 15, sD0); chk = [f"v_cmp_ne_u32 vcc, s{sNONCE}, v{vFLAG}"]
    r += [f"s_cbranch_scc0 L_ok{n}", "@raw_begin", f"s_mov_b32 s{sCNT}, {0x4000 if opt.diag else 0x40000}", f"L_rt{n}:"] + ld
    r += ["s_waitcnt vmcnt(0)", "s_nop 1"] + chk + [f"s_cbranch_vccz L_ok{n}", "s_sleep 1", f"s_sub_u32 s{sCNT}, s{sCNT}, 1",
          f"s_cmp_lg_u32 s{sCNT}, 0", f"s_cbranch_scc1 L_rt{n}", "s_nop 7", "@raw_end", f"L_ok{n}:"]
    return r
def fl_load(base): return sflag_load(base) if opt.sflag else flag_load(base, sRT, 1, 15)
def fl_check(base): return sflag_check(base) if opt.sflag else flag_check(base, sRT, 1, 15)
def flag_check(base, sline, shift, mask):
    if "f" in opt.skip: return [f"v_mov_b32 v{vFLAG}, 0"]
    return poll(flag_load(base, sline, shift, mask, sD0), [f"v_cmp_ne_u32 vcc, s{sNONCE}, v{vFLAG}"])

def scan_addr():
    col, q, ch, t = vT[19], vT[20], vT[21], vT[22]
    return [f"s_lshl_b32 s{sT2}, s{sW}, 13", f"s_add_u32 s{sT2}, s{sT2}, {L_PRIV}",
            f"v_and_b32 v{col}, 15, v{vLANE}", f"v_lshrrev_b32 v{q}, 4, v{vLANE}",
            f"v_lshl_add_u32 v{vCOLR}, v{col}, 4, s{sT2}",
            f"v_lshl_add_u32 v{vEW}, v{q}, 2, v{vCOLR}",
            f"v_min_u32 v{ch}, 39, v{vLANE}", f"v_lshlrev_b32 v{vSO}, 4, v{ch}",
            f"v_lshrrev_b32 v{t}, 3, v{ch}", f"v_lshlrev_b32 v{t}, 3, v{t}", f"v_add_u32 v{t}, v{t}, v{ch}",
            f"v_lshl_add_u32 v{vER}, v{t}, 4, s{sT2}",
            f"v_add_u32 v{vCH}, s{sT2}, v{vL16}",
            f"s_lshl_b32 s{sT3}, s{sW}, 9", f"s_add_u32 s{sT3}, s{sT3}, {L_TT}", f"v_lshl_add_u32 v{vTT}, v{vLANE}, 3, s{sT3}",
            f"v_lshlrev_b32 v{vLB}, 5, v{vLANE}", f"v_add_u32 v{vLB}, {L_LB}, v{vLB}",
            f"s_add_u32 s{sT3}, s{sM0U}, {L_RL}",
            f"v_lshlrev_b32 v{vTW}, 5, v{col}", f"v_lshl_add_u32 v{vTW}, v{q}, 3, v{vTW}", f"v_add_u32 v{vTW}, s{sT3}, v{vTW}",
            f"v_bfe_u32 v{t}, v{vLANE}, 2, 2", f"v_lshlrev_b32 v{t}, 5, v{t}", f"v_lshl_add_u32 v{t}, v{q}, 8, v{t}",
            f"v_and_b32 v{ch}, 3, v{vLANE}", f"v_lshl_add_u32 v{t}, v{ch}, 3, v{t}", f"v_add_u32 v{vTR}, s{sT3}, v{t}",
            f"v_lshrrev_b32 v{t}, 1, v{q}", f"v_lshlrev_b32 v{t}, 10, v{t}", f"v_lshl_add_u32 v{vHST}, v{col}, 4, v{t}",
            f"v_and_b32 v{t}, 1, v{q}", f"v_mul_u32_u24 v{t}, {20*4096}, v{t}", f"v_add_u32 v{vHST}, v{vHST}, v{t}"]

def const_park():
    src = [cAR, cAI, cKR, cKI] + list(range(60, 70))
    return [f"v_accvgpr_write_b32 a{200+k}, v{s}" for k, s in enumerate(src)]
def const_tables():
    t = vT[0:8]
    r = [f"v_accvgpr_read_b32 v{t[0]}, a200", f"v_accvgpr_read_b32 v{t[1]}, a201", f"v_accvgpr_read_b32 v{t[2]}, a202", f"v_accvgpr_read_b32 v{t[3]}, a203",
         f"v_sub_f32 v{t[3]}, 0, v{t[3]}",
         f"v_mov_b32 v{t[4]}, v{t[0]}", f"v_sub_f32 v{t[5]}, 0, v{t[1]}", f"v_sub_f32 v{t[6]}, 0, v{t[2]}", f"v_mov_b32 v{t[7]}, v{t[3]}",
         f"ds_write_b128 v{vER}, {vr(t[0])} offset:{PV_COL}", f"ds_write_b128 v{vER}, {vr(t[4])} offset:{PV_COL+128}",
         f"ds_write_b128 v{vCH}, {ar(204)} offset:{PV_CH}", f"ds_write_b128 v{vCH}, {ar(208)} offset:{PV_CH+1024}",
         f"ds_write_b64 v{vCH}, {ar(212, 2)} offset:{PV_CH+2048}",
         f"v_mov_b32 v{t[0]}, 0", f"v_mov_b32 v{t[1]}, 0",
         f"s_min_u32 s{sT2}, s{sW}, 2", f"s_lshl_b32 s{sT2}, s{sT2}, 9", f"s_add_u32 s{sT2}, s{sT2}, {L_TT}",
         f"v_lshl_add_u32 v{t[2]}, v{vLANE}, 3, s{sT2}", f"ds_write_b64 v{t[2]}, {vr(t[0], 2)}"]
    return r

def ureg(cf, tau): return U(cf, tau >> 2) + (tau & 3)
DPP = "row_ror:8 row_mask:0xf bank_mask:0xf"
def scan_P12():
    C = vT[0:20]
    r = [I(f"ds_read_b128 {vr(C[4*cf])}, v{vCOLR} offset:{PV_COL + cf*256}", tok="colr") for cf in range(5)]
    r.append("@gap 1")
    t = vT[20:24]
    k = 0
    for tau in range(8):
        for cf in range(5):
            u = ureg(cf, tau); tt = t[k % 4]; k += 1
            r += [f"v_mul_f32_dpp v{tt}, v{u}, v{C[4*cf+3]} {DPP}", f"v_fma_f32 v{u}, v{C[4*cf+2]}, v{u}, v{tt}"]
    for tau in range(1, 8):
        src = [(ureg(cf, 0) if tau == 1 else C[4*cf + 2 + (tau & 1)]) for cf in range(5)]
        dst = [C[4*cf + 2 + ((tau + 1) & 1)] for cf in range(5)]
        for cf in range(5): r.append(f"v_fma_f32 v{dst[cf]}, v{C[4*cf]}, v{src[cf]}, v{ureg(cf, tau)}")
        for cf in range(5): r.append(f"v_fmac_f32_dpp v{dst[cf]}, v{src[cf]}, v{C[4*cf+1]} {DPP}")
    for cf in range(5): r.append(f"ds_write_b32 v{vEW}, v{C[4*cf+2]} offset:{PV_E + cf*256}")
    er, ei, a8 = vT[0], vT[4], vT[8]
    r += [f"ds_read_b128 {vr(a8)}, v{vCH} offset:{PV_CH}",
          f"ds_read_b128 {vr(er)}, v{vER} offset:{PV_E}", f"ds_read_b128 {vr(ei)}, v{vER} offset:{PV_E+128}", "@gap 2"]
    g0, g1 = vT[12], vT[14]
    r += chorner2(g0, g0+1, er, ei, a8, a8+1, er+1, ei+1)
    r += chorner2(g1, g1+1, g0, g0+1, a8, a8+1, er+2, ei+2)
    r += chorner2(g0, g0+1, g1, g1+1, a8, a8+1, er+3, ei+3)
    r += [f"ds_write_b64 v{vTT}, {vr(g0, 2)} offset:{3*512}"]
    return r

def scan_P3():
    a32 = vT[8]; T = vT[0:8]
    r = [f"ds_read_b128 {vr(a32)}, v{vCH} offset:{PV_CH}"]
    for k in range(4): r.append(f"ds_read_b64 {vr(T[2*k], 2)}, v{vTT} offset:{k*512}")
    r.append("@gap 2")
    m = a32 + 2
    g = vT[12]
    r += chorner2(g, g+1, T[0], T[1], m, m+1, T[2], T[3])
    r += chorner2(vWP0, vWP1, g, g+1, m, m+1, T[4], T[5])
    r += chorner2(g, g+1, vWP0, vWP1, m, m+1, T[6], T[7])
    r += [f"v_mov_b32 v{g+2}, s{sNONCE}", f"v_mov_b32 v{g+3}, s{sNONCE}",
          f"buffer_store_dwordx4 {vr(g)}, v{vSO}, s[{sWS}:{sWS+3}], s{sSST} offen sc1"]
    return r

def lb_loads():
    return [f"buffer_load_dwordx4 {ar(aS+4*jj)}, v{vSO}, s[{sWS}:{sWS+3}], s{sl} offen sc1" for jj, sl in enumerate((sLB0, sLB1, sLB2, sLB3))]
def scan_P4():
    t = vT[0:8]
    chk = []
    for jj, sl in enumerate((sLB0, sLB1, sLB2, sLB3)):
        d = t[2] if jj == 0 else t[0]
        chk += [f"s_cmp_lt_u32 s{sl}, {OOB}", f"s_cselect_b32 s{sT2}, s{sNONCE}, 0", f"v_accvgpr_read_b32 v{d}, a{aS+4*jj+2}",
                f"v_xor_b32 v{d}, s{sT2}, v{d}"]
        if jj: chk += [f"v_or_b32 v{t[2]}, v{t[2]}, v{t[0]}"]
    chk += [f"v_cmp_ne_u32 vcc, 0, v{t[2]}"]
    c = vT[8]
    r = [f"ds_read_b128 {vr(c)}, v{vCH} offset:{PV_CH+1024}", f"ds_read_b64 {vr(vT[12], 2)}, v{vCH} offset:{PV_CH+2048}"]
    if "f" not in opt.skip: r += poll(lb_loads(), [i.text for i in insert_nops(II(chk))])
    for jj in range(4):
        r += [f"v_accvgpr_read_b32 v{t[2*jj]}, a{aS+4*jj}", f"v_accvgpr_read_b32 v{t[2*jj+1]}, a{aS+4*jj+1}"]
    m = c + 2; g0, g1 = vT[14], vT[16]
    r += chorner2(g0, g0+1, t[0], t[1], m, m+1, t[2], t[3])
    r += chorner2(g1, g1+1, g0, g0+1, m, m+1, t[4], t[5])
    r += chorner2(g0, g0+1, g1, g1+1, m, m+1, t[6], t[7])
    r += cmul(g1, g1+1, g0, g0+1, vT[12], vT[13], vT[18])
    r += [f"s_lshl_b32 s{sT2}, s{sW}, 3", f"v_add_u32 v{vT[18]}, s{sT2}, v{vLB}", f"ds_write_b64 v{vT[18]}, {vr(g1, 2)}"]
    return r

def scan_P56():
    lb = vT[0]; er, ei = vT[8], vT[12]; c8, c32w = vT[16], vT[20]
    r = [f"ds_read_b128 {vr(lb)}, v{vLB}", f"ds_read_b128 {vr(lb+4)}, v{vLB} offset:16",
         f"ds_read_b64 {vr(c32w, 2)}, v{vCH} offset:{PV_CH+1024}", f"ds_read_b128 {vr(c8)}, v{vCH} offset:{PV_CH}",
         f"ds_read_b128 {vr(er)}, v{vER} offset:{PV_E}", f"ds_read_b128 {vr(ei)}, v{vER} offset:{PV_E+128}", "@gap 2",
         f"v_add_f32 v{lb}, v{lb}, v{lb+2}", f"v_add_f32 v{lb+1}, v{lb+1}, v{lb+3}",
         f"v_add_f32 v{lb+4}, v{lb+4}, v{lb+6}", f"v_add_f32 v{lb+5}, v{lb+5}, v{lb+7}",
         f"v_add_f32 v{lb}, v{lb}, v{lb+4}", f"v_add_f32 v{lb+1}, v{lb+1}, v{lb+5}"]
    q0, q1 = vT[4], vT[20]
    tmp = vT[2]
    r += chorner2(tmp, tmp+1, lb, lb+1, c32w, c32w+1, vWP0, vWP1)
    r += [f"v_mov_b32 v{q0}, v{tmp}", f"v_mov_b32 v{q1}, v{tmp+1}"]
    for k in range(3):
        r += chorner2(q0+k+1, q1+k+1, q0+k, q1+k, c8, c8+1, er+k, ei+k)
    r += [f"ds_write_b128 v{vER}, {vr(q0)} offset:{PV_E}", f"ds_write_b128 v{vER}, {vr(q1)} offset:{PV_E+128}"]
    C = vT[0:10]; Z = vT[10:15]
    for cf in range(5): r.append(f"ds_read_b32 v{Z[cf]}, v{vEW} offset:{PV_E + cf*256}")
    for cf in range(5): r.append(f"ds_read_b64 {vr(C[2*cf], 2)}, v{vCOLR} offset:{PV_COL + cf*256}")
    r.append("@gap 2")
    for tau in range(8):
        src = [(Z[cf] if tau == 0 else ureg(cf, tau-1)) for cf in range(5)]
        for cf in range(5): r.append(f"v_fma_f32 v{ureg(cf, tau)}, v{C[2*cf]}, v{src[cf]}, v{ureg(cf, tau)}")
        for cf in range(5): r.append(f"v_fmac_f32_dpp v{ureg(cf, tau)}, v{src[cf]}, v{C[2*cf+1]} {DPP}")
    for cf in range(5):
        for f in range(2):
            t = vT[2*(cf*2+f)]; u = U(cf, f)
            r += [f"v_cvt_pk_bf16_f32 v{t}, v{u}, v{u+1}", f"v_cvt_pk_bf16_f32 v{t+1}, v{u+2}, v{u+3}"]
    for k in range(10): r.append(f"ds_write_b64 v{vTW}, {vr(vT[2*k], 2)} offset:{k*512}")
    for cf in range(5):
        for jj in range(2):
            r.append(f"ds_read_b64_tr_b16 {vr(56 + 4*cf + 2*jj, 2)}, v{vTR} offset:{cf*1024 + jj*128}")
    for cf in range(5):
        r.append(I(f"buffer_store_dwordx4 {vr(56 + 4*cf)}, v{vHST}, s[{sWS}:{sWS+3}], s{sHO[cf]} offen sc1", tok="HST"))
    return r

def swiglu(acc, h2s, sks, tokname, packed=False):
    r = []
    k = 0
    for h2 in h2s:
        for z in range(2):
            G = vT[0:8]; Uu = vT[8:16]; T = vT[16:24]
            for j in range(8):
                r += [f"v_accvgpr_read_b32 v{G[j]}, a{acc(0, h2) + 8*z + j}", f"v_accvgpr_read_b32 v{Uu[j]}, a{acc(1, h2) + 8*z + j}"]
            if packed:
                for j in range(0, 8, 2): r.append(f"v_pk_mul_f32 {vr(T[j], 2)}, {vr(G[j], 2)}, s[{sEX0}:{sEX0+1}]")
                for j in range(8):
                    r.append(f"v_exp_f32 v{T[j]}, v{T[j]}")
                for j in range(0, 8, 2): r.append(f"v_pk_mul_f32 {vr(G[j], 2)}, {vr(G[j], 2)}, {vr(Uu[j], 2)}")
                for j in range(0, 8, 2): r.append(f"v_pk_add_f32 {vr(T[j], 2)}, {vr(T[j], 2)}, s[{sEX2}:{sEX2+1}]")
                for j in range(8): r.append(f"v_rcp_f32 v{T[j]}, v{T[j]}")
                for j in range(0, 8, 2): r.append(f"v_pk_mul_f32 {vr(G[j], 2)}, {vr(G[j], 2)}, {vr(T[j], 2)}")
            else:
                for j in range(8): r.append(f"v_mul_f32 v{T[j]}, {NLOG2E}, v{G[j]}")
                for j in range(8): r += [f"v_exp_f32 v{T[j]}, v{T[j]}", f"v_mul_f32 v{G[j]}, v{G[j]}, v{Uu[j]}"]
                for j in range(8): r.append(f"v_add_f32 v{T[j]}, 1.0, v{T[j]}")
                for j in range(8): r.append(f"v_rcp_f32 v{T[j]}, v{T[j]}")
                for j in range(8): r.append(f"v_mul_f32 v{G[j]}, v{G[j]}, v{T[j]}")
            o = Uu[0] if k % 2 == 0 else Uu[4]; k += 1
            for j in range(4): r.append(f"v_cvt_pk_bf16_f32 v{o+j}, v{G[2*j]}, v{G[2*j+1]}")
            if z == 0: r.append(f"s_add_u32 s{sT2}, s{sks}, {h2*4096}")
            r.append(I(f"buffer_store_dwordx4 {vr(o)}, v{vHH}, s[{sWS}:{sWS+3}], s{sT2} offen offset:{z*512} sc1", tok=tokname))
    return r

def step_reads(blk, s, par):
    r = []
    if blk == "U":
        i, sh2, sh = s // 4, (s >> 1) & 1, s & 1
        off = i*20480 + sh2*10240 - (61440 if i >= 3 else 0)
        for cf in range(5):
            r.append(f"ds_read_b128 {ar(FB(par, cf))}, v{vRU[sh]} offset:{off + cf*1024}")
    elif blk == "A":
        m, sp = s // 2, s & 1
        for hf in range(2):
            for h2 in range(2):
                for mu in range(2):
                    for jj in range(2):
                        r.append(f"ds_read_b64_tr_b16 {ar(FB(par, hf*4+h2*2+mu) + 2*jj, 2)}, v{vRA[h2]} offset:{(m % 4)*16384 + (2*sp+mu)*4096 + hf*1024 + jj*512}")
    else:
        m, sd = 10 + s // 2, s & 1
        for s2 in range(2):
            for hf in range(2):
                for mu in range(2):
                    for jj in range(2):
                        r.append(f"ds_read_b64_tr_b16 {ar(FB(par, s2*4+hf*2+mu) + 2*jj, 2)}, v{vRB2 if BSLOT[m] >= 4 else vRB} offset:{(BSLOT[m] % 4)*16384 + (2*sd+mu)*4096 + s2*2048 + hf*512 + jj*256}")
    return r

def step_mfma(blk, s, par):
    r = []
    if blk == "U":
        for cf in range(5):
            for f in range(2):
                d = vr(U(cf, f)); c = "0" if s == 0 else d
                r.append(f"v_mfma_f32_16x16x32_bf16 {d}, {vr(X(f, s))}, {ar(FB(par, cf))}, {c}")
    elif blk == "A":
        for hf in range(2):
            for h2 in range(2):
                for mu in range(2):
                    d = ar(ACCA(mu, h2), 16); c = "0" if (s == 0 and hf == 0) else d
                    r.append(f"v_mfma_f32_32x32x16_bf16 {d}, {ar(FB(par, hf*4+h2*2+mu))}, {vr(X(hf, s))}, {c}")
    else:
        for s2 in range(2):
            for hf in range(2):
                for mu in range(2):
                    d = ar(ACCB(mu), 16); c = "0" if (s == 0 and hf == 0 and s2 == 0) else d
                    r.append(f"v_mfma_f32_32x32x16_bf16 {d}, {ar(FB(par, s2*4+hf*2+mu))}, {vr(X(hf, 2*s+s2))}, {c}")
    return r

def swaps(s): return [] if "w" in opt.skip else [f"v_permlane16_swap_b32 v{X(0, s)+k}, v{X(1, s)+k}" for k in range(4)]

def stage_of(blk, s):
    return ("U", s // 4) if blk == "U" else (("M", s // 2) if blk == "A" else ("M", 10 + s // 2))

def cost(i):
    if i.cls in ("pseudo", "label"): return 0
    if i.cls == "trans": return 2
    if i.cls == "vmem": return opt.vmcost
    return 1

PH = [1]
class Feed(list):
    def append(self, i): EM[0].feed(i)

class Queue:
    def __init__(self): self.q = []; self.hold = 0; self.now = 0
    def add(self, lst, deadline):
        if "q" in opt.skip:
            lst = [t for t in II(lst) if t.cls in ("vmem",) or t.op.startswith("s_") or t.cls in ("pseudo", "label") or t.op.startswith("v_cmp") or t.op.startswith("v_readfirst") or t.op.startswith("v_accvgpr_read") and "a18" in t.text + "a19"]
        lst = II(lst)
        if PH[0] == 1 and opt.skip and not any(t.op in ("@arm", "@raw_begin") for t in lst):
            if "D" in opt.skip: lst = [t for t in lst if not t.op.startswith("ds_write")]
            if "R" in opt.skip: lst = [t for t in lst if not t.op.startswith("ds_read")]
            if "V" in opt.skip: lst = [t for t in lst if t.cls not in ("valu", "trans") or t.op.startswith("v_cmp") or t.op.startswith("v_cndmask")]
            if "S" in opt.skip:
                for t in lst:
                    if t.cls == "vmem" and "store" in t.op and t.tok in ("HST", "HHA"): t.text = t.text.replace("offen", "offen").replace("dwordx4", "dword"); t.text = __import__("re").sub(r"v\[(\d+):\d+\]", r"v\1", t.text, 1); t.wide = False
        lst = II(lst)
        now = max(self.now, max([d for t, d in self.q] + [0]) if opt.chainq else 0)
        if not opt.interp or deadline <= now + 1:
            for t in lst: self.q.append((t, deadline))
            return
        pos = 0; P = []; wr = {}; lastw = -99
        for t in lst:
            if t.cls not in ("pseudo", "label"):
                dep = [wr[r] for r in (t.rd | t.wr) if r in wr]
                if dep: pos = max(pos, max(dep) + opt.vlat)
                if t.op.startswith("ds_read") and pos - lastw < opt.vlat // 2: pos = lastw + opt.vlat // 2
                for r in t.wr: wr.pop(r, None)
                if t.cls == "ds":
                    for r in t.wr: wr[r] = pos
                    if t.op.startswith("ds_write"): lastw = pos
            pos += cost(t) + (1 if t.cls == "ds" else 0)
            P.append(pos)
        prev = now
        for t, p in zip(lst, P):
            d = now + int((deadline - now) * p / max(pos, 1))
            if t.cls == "ds" and PH[0] == 1 and d >= 200:
                while d % 8 < opt.span and d < deadline: d += 1
            d = max(d, prev); prev = d
            self.q.append((t, min(d, deadline)))
    def _region(self, out):
        i = self.q[0][0]
        end = "@endarm" if i.op == "@arm" else "@raw_end"
        while True:
            j = self.q.pop(0)[0]; out.append(j)
            if j.cls == "pseudo" and j.op == end: break
        while self.q and self.q[0][0].cls == "label": out.append(self.q.pop(0)[0])
    def need(self, gap):
        best = 0; acc = 0
        for t, d in self.q:
            acc += cost(t)
            left = d - gap + 1
            if left <= 0: best = max(best, acc)
            else: best = max(best, -(-acc // left))
        return best
    def pop(self, n, gap, ds_ok=True):
        out = Feed(); nds = 0; self.now = gap
        n = max(n, self.need(gap)) if (opt.even and not opt.interp) else n
        while self.q and (n > 0 or self.q[0][1] <= gap):
            i = self.q[0][0]
            if i.cls == "pseudo" and i.op == "@gap":
                self.q.pop(0); continue
            if self.q[0][1] > gap:
                if i.cls == "ds" and (not ds_ok or nds >= opt.dsmax): break
                if i.cls == "ds": nds += 1
                look = [i] + ([x for x, d in self.q[1:12] if x.cls == "pseudo"][:1] if i.op.startswith("s_cmp") else [])
                if i.op.startswith("s_cmp"): look += [x for x, d in self.q[1:4]]
                if max(EM[0].stall(x) for x in look) > opt.thr: break
            if i.cls == "pseudo" and i.op in ("@arm", "@raw_begin"):
                self._region(out); n -= 4
                continue
            if i.cls == "branch" or i.op.startswith("s_cmp") or i.op.startswith("s_bitcmp") or i.op.startswith("v_cmp"):
                out.append(self.q.pop(0)[0])
                if self.q and "L_rfw" in self.q[0][0].text:
                    while self.q[0][0].op != "@raw_begin": out.append(self.q.pop(0)[0])
                    n -= 10
                while self.q:
                    k = self.q[0][0]
                    if k.op.startswith("s_cselect") or k.op.startswith("v_cndmask") or k.cls == "branch": out.append(self.q.pop(0)[0])
                    elif k.op in ("@arm", "@raw_begin"): self._region(out); n -= 4
                    else: break
                n -= 1
                continue
            self.q.pop(0); out.append(i)
            n -= cost(i)
        return out
    def flush(self):
        out = [i for i, d in self.q if not (i.cls == "pseudo" and i.op == "@gap")]
        self.q = []; self.hold = 0
        return out

ACC1 = [("a", 4*k) for k in range(20)]
ACC2 = [("v", 96 + 4*k) for k in range(20)]
A_SLOTS = [("a", 80 + 4*k) for k in range(20)]
GA = [("a", 196 + 4*k) for k in range(15)] + [("a", 160 + 4*k) for k in range(5)]
XFREE = [("v", base + 8*d + 4*h) for d in range(10) for base in (96, 176) for h in range(2)]
HI = [("v", 176 + 4*k) for k in range(20)]
N1 = 12
NLDS = 4
def wslot(st, e):
    if st < 4: return GA[st*5 + e]
    if st < 12: return XFREE[(st - 4)*5 + e]
    if st < 16: return HI[(st - 12)*5 + e]
    if st < 20: return GA[(st - 16)*5 + e]
    return HI[(st - 20)*5 + e]
def w_free_after_b(st):
    return -1 if st < 4 else ((st - 4)*5 + 4) // 4
def w_free_after_p(st):
    if st < 16:
        regs = {wslot(st, e) for e in range(5)}
        return max(o for o in range(4, 12) for e in range(5) if wslot(o, e) in regs)
    return st - 16 if st < 20 else st - 8
def rg(t, c=4): return f"{t[0]}[{t[1]}:{t[1]+c-1}]"
vA2 = [3, 4, 5, 6]; vPW = [7, 8, 9]; vPR = 11; vOUT = 13; vXO = 14; vSTA = 15; vDS = 16
vXR = list(range(56, 76)); vY = list(range(76, 96)); vDK = [17, 18, 19, 20, 21]; vST = list(range(32, 40)); vXD2 = [22, 23, 24]; vXL = 25; vWL = 26
L_X2 = 143360
NSTEP = 22
ORDER = [0, 1, 4, 5, 6, 7, 10, 11, 2, 3, 8, 9] + list(range(10))
def ptr_bases():
    return [f"s_mul_i32 s{sAS}, s{sW}, {12*4096}", f"s_add_u32 s{sAS}, s{sAS}, s{sP2A}", f"s_add_u32 s{sAS}, s{sAS}, {40*4096}",
            f"s_mul_i32 s{sAE}, s{sW}, {10*4096}", f"s_add_u32 s{sAE}, s{sAE}, s{sP2A}",
            f"s_mul_i32 s{sWB}, s{sW}, {12*5120}", f"s_add_u32 s{sWB}, s{sWB}, s{sP2W}", f"s_add_u32 s{sWB}, s{sWB}, {40*5120}",
            f"s_mul_i32 s{sWE}, s{sW}, {10*5120}", f"s_add_u32 s{sWE}, s{sWE}, s{sP2W}"]
def ptr_set(which, st):
    if which == "A": return [f"s_add_u32 s{sAP}, s{sAS if st < N1 else sAE}, {ORDER[st]*4096}"]
    return [f"s_add_u32 s{sWP}, s{sWB if st < N1 else sWE}, {ORDER[st]*5120}"]
def p2_wload(st):
    r = []
    r += ptr_set("W", st)
    for e in range(5):
        va, off = (vL16, e*1024) if e < 4 else (vW4, 0)
        if N1 <= st < N1 + NLDS:
            r += [f"s_add_u32 m0, s{sM0}, {L_WY + (st - N1)*5120 + (4096 if e == 4 else 0)}"] + (["s_nop 0"] if True else [])
            r.append(I(f"buffer_load_dwordx4 v{va}, s[{sWS}:{sWS+3}], s{sWP} offen offset:{off} sc1 lds", tok=f"WL{st}"))
        else:
            r.append(I(f"buffer_load_dwordx4 {rg(wslot(st, e))}, v{va}, s[{sWS}:{sWS+3}], s{sWP} offen offset:{off} sc1", tok="W"))
    return r
def p2_wread(st):
    return [f"@waitvm WL{st}"] + [f"ds_read_b128 {rg(wslot(st, e))}, v{vWL} offset:{L_WY + (st - N1)*5120 + e*1024}" for e in range(5)]
def p2_aload(st):
    r = []
    r += ptr_set("A", st)
    for jj in range(4):
        r.append(I(f"buffer_load_dwordx4 {rg(A_SLOTS[(st % 5)*4 + jj])}, v{vA2[jj]}, s[{sWS}:{sWS+3}], s{sAP} offen sc1", tok="A"))
    return r
def p2_setup():
    r = []
    for jj in range(4):
        r += [f"s_add_u32 s{sD0}, s{sW}, {jj}", f"s_and_b32 s{sD0}, s{sD0}, 3", f"v_lshl_add_u32 v{vA2[jj]}, s{sD0}, 10, v{vL16}"]
    return r
def p2_setup2():
    r = []
    for jj in range(1, 4):
        r += [f"s_add_u32 s{sT2}, s{sW}, {jj}", f"s_and_b32 s{sT2}, s{sT2}, 3",
              f"s_mul_i32 s{sT3}, s{sT2}, 15360", f"s_add_u32 s{sT3}, s{sT3}, {(3-jj)*5120}", f"v_add_u32 v{vPW[jj-1]}, s{sT3}, v{vL16}"]
    r += [f"s_mul_i32 s{sT3}, s{sW}, 15360", f"v_add_u32 v{vPR}, s{sT3}, v{vL16}", f"v_add_u32 v{vWL}, s{sM0}, v{vL16}"]
    r += [f"v_add_u32 v{v}, {L_P1}, v{v}" for v in vPW + [vPR]]
    return r

def groups(lst):
    out = []; cur = []
    for t in II(lst):
        cur.append(t)
        if t.cls == "vmem": out.append(cur); cur = []
    if cur: out.append(cur)
    return out
def gstall(grp):
    return max([EM[0].stall(t) for t in grp if t.cls == "vmem" or t.op == "@waitvm"] + [0])

def tagw(st):
    gs = groups(p2_wload(st))
    for gq in gs: gq[-1].lat = None; STEP[id(gq[-1])] = st
    return gs
def taga(st):
    gs = groups(p2_aload(st))
    for gq in gs: STEP[id(gq[-1])] = st
    return gs
STEP = {}

def phase1_blocks():
    Q = Queue()
    seq = [("U", s) for s in range(20)] + [("A", s) for s in range(20)] + [("B", s) for s in range(10)]
    gap0 = []; g = 0
    for blk, s in seq:
        gap0.append(g); g += {"U": 10, "A": 8, "B": 8}[blk]
    gap0.append(g)
    def stage_end(kind, idx):
        n = [k for k, (b, s) in enumerate(seq) if stage_of(b, s) == (kind, idx)][-1]
        return gap0[n]
    L(delay("a", 255, 0, 500)); L(delay("b", 31, 5, 700))
    L(["@waitvm U0", "s_barrier"])
    L(stamp("U start"))
    L(step_reads("U", 0, 0))
    later = []
    pace = [0, len(EM[0].out)]
    bulk = []
    def lat(gs, dl):
        for x in gs: later.append((II(x), dl))
    def blk_(gs, dl):
        at = len(bulk) if dl == 10**6 else next((q for q, (gq, d) in enumerate(bulk) if d == 10**6), len(bulk))
        bulk[at:at] = [(II(x), dl) for x in gs]
    lat([u_piece(2, cf) for cf in range(5)], stage_end("U", 0) - 4)
    lat([nonce_publish()], stage_end("U", 0))
    if opt.rl_pos == -1: lat(relayout_dma(), stage_end("U", 1) - 16)
    lat([u_piece(3, cf) for cf in range(5)], stage_end("U", 1) - 10)
    lat([u_piece(4, cf) for cf in range(5)], stage_end("U", 2) - 20)
    for n, (blk, s) in enumerate(seq):
        par = n & 1
        mf = step_mfma(blk, s, par)
        nxt = seq[n + 1] if n + 1 < len(seq) else None
        rd = II(step_reads(nxt[0], nxt[1], par ^ 1)) if nxt else []
        if rd: rd[-1].tok = f"rd{n+1}"
        boundary = nxt is None or stage_of(*nxt) != stage_of(blk, s)
        gaps = [[] for _ in mf]
        start = 0
        pre = []
        cap = opt.capU if blk == "U" else opt.capM
        if blk == "U" and s == 11: pre += [f"v_add_u32 v{vRU[0]}, 61440, v{vRU[0]}"]
        if blk == "U" and s == 12: pre += [f"v_add_u32 v{vRU[1]}, 61440, v{vRU[1]}"]
        if blk == "A" and s == 0:
            Q.add(nonce_get(), gap0[n] + 6)
            Q.add(scan_P12(), stage_end("M", opt.X_stage) - 2)
        if blk == "B" and s == 0:
            Q.add(swiglu(ACCA, [0, 1], sKSA, "HHA"), stage_end("M", opt.hast) - opt.haend)
        post = []; plat = []; urgent = []; pbulk = []
        if blk == "B":
            for st in range(4, opt.nearly):
                if w_free_after_b(st) == s - 1: blk_(tagw(st), 10**6)
        if boundary:
            kind, idx = stage_of(blk, s)
            start = 1
            here = gap0[n]; nx1 = here + (40 if blk == "U" else 16)
            if kind == "U" and idx == 1:
                if opt.rf_stage == 1: post.append((relayout_finish(), stage_end("U", 3) - 4))
                post += [(const_tables(), stage_end("U", 3) + (10 if opt.rf_stage == 1 else -2)), (stats_store(), stage_end("U", 3) + 16)]
            mi = idx if kind == "M" else idx - 5
            def send(m): return stage_end("M", m) if m >= 0 else stage_end("U", m + 5)
            if kind == "U" and idx == opt.rf_stage and idx != 1: post.append((relayout_finish(), send(opt.F_stage - 1) - 2))
            b = []
            if nxt is not None:
                nk, ni = stage_of(*nxt)
                b.append(I(f"@waitboth {nk}{ni}"))
            else:
                b.append(I("@waitds0"))
            if kind == "M" and idx == opt.hast: b += II(["@waitvm HHA"])
            if kind == "M" and idx == opt.hast: plat.append((groups(flag_store(WS_FLHA, sC, sG)), here + 2))
            if mi == opt.F_stage: b += II(["@waitvm RLS"] if "r" not in opt.skip else [])
            if mi == max(opt.F_stage, 0): b += II(["@waitvm stat"])
            if not ("b" in opt.skip and kind == "M" and idx < 14): b.append(I("s_barrier"))
            if (opt.stamps or opt.probe) and (opt.fine or (kind, idx) in (("U", 4), ("M", 9), ("M", 14))): b += II(stamp(f"{kind}{idx} end"))
            gaps[0] += b
            if kind == "U" and idx == 0 and opt.t_w13: plat.append((w13_touch(), stage_end("U", 1) + 10))
            if kind == "U" and idx == 0 and opt.rl_pos == 0: plat.append((relayout_dma(), stage_end("U", 2) - 10))
            if kind == "U" and idx == 1: plat.append((groups(dma_M(0)) + groups(dma_M(1)), stage_end("U", 3) - 10))
            if kind == "U" and idx == 1 and opt.rl_pos == 1: plat.append((relayout_dma(), stage_end("U", 4) - 10))
            if kind == "U" and idx == 3: plat.append(([nonce_load()], here + 10))
            if kind == "U" and idx in (2, 3) and idx + opt.m23 <= 3: plat.append((groups(dma_M(idx)), stage_end("M", idx - 1) - opt.slack))
            if kind == "U" and idx == 4:
                for m_ in (2, 3):
                    if m_ + opt.m23 > 3: plat.append((groups(dma_M(m_)), stage_end("M", m_ - 1) - opt.slack))
            if kind == "U" and idx == 4:
                plat.append(([mlp_dma_addr("B")], here + 6))
                pbulk.append((groups(dma_M(10)), stage_end("M", opt.b10)))
            if mi == max(opt.F_stage, 0): plat.insert(0, (groups(flag_store(WS_FLW, sN, sRT)), here + 6))
            if kind == "M" and idx + 4 <= 9: plat.append((groups(dma_M(idx + 4)), stage_end("M", idx + 3) - opt.slack))
            if kind == "M" and idx == opt.L_stage: plat.insert(0, (groups(lb_loads()), here + 8))
            if kind == "M" and idx in BISSUE: pbulk.append((groups(dma_M(BISSUE[idx][0])), stage_end("M", BISSUE[idx][0] - 1) - opt.slack))
            if kind == "M" and idx == opt.X_stage:
                post.append((scan_P3(), stage_end("M", opt.X_stage + 1) + 8))
            if kind == "M" and idx == opt.C_stage:
                assert not any("a[180:183]" in x.text for gq, d in later for x in gq)
                post.append((scan_P4(), stage_end("M", opt.Y_stage) - 2))
            if kind == "M" and idx == opt.Y_stage:
                gaps[0] += II(delay("d", 63, 17, 900))
                post.append((scan_P56()[:33], stage_end("M", opt.Y_stage + 1) - 2))
            if kind == "M" and idx == opt.W_stage - 1 and opt.nearly:
                plat.append((groups(flag_load(WS_FLW, sN, 0, 31)), nx1))
            if kind == "M" and idx == opt.W_stage and opt.nearly:
                plat.append(([flag_check(WS_FLW, sN, 0, 31)], nx1 + 8))
                for st in range(min(4, opt.nearly)): pbulk.append((tagw(st), 10**6))
            if kind == "M" and idx == 13: urgent += [p2_setup()]
            if kind == "U" and idx == 4: urgent += [[f"global_load_ushort a231, v{vLANE}, s[{pDSK}:{pDSK+1}]"]] if False else []
        ng = len(mf)
        if rd:
            if nxt[0] == "U": span = 5
            elif blk == "U": span = 7
            else: span = opt.span
            for k, t in enumerate(rd): gaps[start + (k * span) // len(rd)].append(t)
        if nxt and nxt[0] == "A":
            for k, t in enumerate(II(swaps(nxt[1]))): gaps[ng - 5 + k].append(t)
        if blk == "U" and opt.pre_norm <= s + 1 < 20 and "n" not in opt.skip:
            nq = II(norm_step(1, s + 1, False, vT[20:24]))
            for k, t in enumerate(nq): gaps[(k * ng) // len(nq)].append(t)
        if blk == "U" and opt.late0:
            ops = [t for s0 in range(20 - opt.late0, 20) for t in norm_step(0, s0, False, vT[16:20])]
            span = 18
            lo, hi = (len(ops) * s) // span, (len(ops) * (s + 1)) // span
            lo -= lo % 5; hi -= hi % 5
            nq = II(ops[lo:hi]) if s < span else []
            assert all((20 - opt.late0 + (lo + k) // 20) > s for k in range(len(nq)))
            for k, t in enumerate(nq): gaps[(k * ng) // len(nq)].append(t)
        L(pre)
        E(f"@waitds rd{n}")
        for k, t in enumerate(mf):
            E(t)
            L(gaps[k])
            gap = gap0[n] + k
            used = sum(cost(x) for x in gaps[k])
            if boundary and k == 0:
                for lst, dl in post: Q.add(lst, dl)
                for gs, dl in plat: lat(gs, dl)
                for gs, dl in pbulk: blk_(gs, dl)
                lat(urgent, here + 14)
                continue
            due_b = any(d - gap <= q + len(later) for q, (gq, d) in enumerate(bulk))
            overdue = due_b or any(d - gap <= q for q, (gq, d) in enumerate(later))
            q_ = later if later else bulk
            if q_ and (overdue or (EM[0].t >= pace[0] and k != 0)):
                grp = q_.pop(0)[0]; L(grp); used += sum(cost(x) for x in grp)
            for x in EM[0].out[pace[1]:]:
                if x.cls == "vmem" and x.lines is not None and not x.text.startswith("buffer_load_dword v29,"):
                    cold = (x.tok in (("RL", "TW") if opt.t_w13 else ("M0", "M1", "M10", "RL"))) and opt.coldpace or 1
                    pace[0] = max(pace[0], EM[0].t - opt.burst) + x.lines * opt.pace * cold
            pace[1] = len(EM[0].out)
            Q.pop(cap - used, gap, ds_ok=(k >= (opt.span if blk != "U" else 5)))
    L(Q.flush())
    for gq, d in later: L(gq)
    return [gq for gq, d in bulk]

def p2_mfma(st):
    r = []
    first = st in (0, N1)
    acc = ACC1 if st < N1 else ACC2
    for jj in range(4):
        for e in range(5):
            d = rg(acc[jj*5+e]); c = "0" if (first and not (st == N1 and jj == 0)) else d
            r.append(f"v_mfma_f32_16x16x32_bf16 {d}, {rg(A_SLOTS[(st % 5)*4+jj])}, {rg(wslot(st, e))}, {c}")
    return r

def p2_partials(base, acc):
    return [f"ds_write_b128 v{vPW[jj-1]}, {rg(acc[jj*5+e])} offset:{base + e*1024}" for jj in range(1, 4) for e in range(5)]

def p2_epi_addr():
    dn, q, t = vT[8], vT[9], vT[10]
    r = [f"v_and_b32 v{dn}, 15, v{vLANE}", f"v_lshrrev_b32 v{q}, 4, v{vLANE}",
         f"s_lshl_b32 s{sT2}, s{sRT}, 6", f"s_lshr_b32 s{sT3}, s{sW}, 1", f"s_lshl_b32 s{sT3}, s{sT3}, 5", f"s_add_u32 s{sT2}, s{sT2}, s{sT3}",
         f"s_and_b32 s{sT3}, s{sW}, 1", f"s_lshl_b32 s{sT3}, s{sT3}, 2", f"s_add_u32 s{sT2}, s{sT2}, s{sT3}",
         f"s_mul_i32 s{sT4}, s{sW}, 3072", f"s_add_u32 s{sT4}, s{sT4}, {L_X2}",
         f"v_mul_u32_u24 v{vXL}, 640, v{q}", f"v_lshl_add_u32 v{vXL}, v{dn}, 1, v{vXL}", f"v_add_u32 v{vXL}, s{sT4}, v{vXL}",
         f"v_lshl_add_u32 v{q}, v{q}, 3, s{sT2}",
         f"s_mul_i32 s{sT3}, s{sN}, 80", f"v_add_u32 v{dn}, s{sT3}, v{dn}",
         f"v_mul_u32_u24 v{t}, 640, v{q}", f"v_add_u32 v{t}, v{t}, v{dn}",
         f"v_lshlrev_b32 v{vOUT}, 2, v{t}", f"v_lshlrev_b32 v{vSTA}, 3, v{q}", f"v_lshlrev_b32 v{vDS}, 1, v{dn}",
         f"s_mul_i32 s{sT2}, s{sT2}, 1280", f"s_mul_i32 s{sT3}, s{sN}, 160", f"s_add_u32 s{sT5}, s{sT2}, s{sT3}", f"s_add_u32 s{sT5}, s{sT5}, 4096",
         f"s_mov_b32 s{sT3}, 6554"]
    a, b, c = vT[11], vT[12], vT[13]
    for p in range(3):
        r += [f"v_add_u32 v{a}, {64*p}, v{vLANE}", f"v_mul_u32_u24 v{b}, s{sT3}, v{a}", f"v_lshrrev_b32 v{b}, 16, v{b}",
              f"v_mul_u32_u24 v{c}, 10, v{b}", f"v_sub_u32 v{c}, v{a}, v{c}", f"v_lshlrev_b32 v{c}, 4, v{c}",
              f"v_and_b32 v{a}, 12, v{b}", f"v_add_u32 v{b}, v{a}, v{b}", f"v_mul_u32_u24 v{b}, 1280, v{b}", f"v_add_u32 v{vXD2[p]}, v{b}, v{c}"]
    r += [f"v_mov_b32 v{a}, {OOB}", f"v_cmp_gt_u32 vcc, 32, v{vLANE}", f"v_cndmask_b32 v{vXD2[2]}, v{a}, v{vXD2[2]}, vcc"]
    return r
def p2_epi_loads():
    r = []
    for p in range(3):
        r += [f"s_add_u32 m0, s{sT4}, {p*1024}", "s_nop 0", I(f"buffer_load_dwordx4 v{vXD2[p]}, s[{sX}:{sX+3}], s{sT5} offen lds", tok="XR")]
    for e in range(5):
        r.append(f"global_load_ushort v{vDK[e]}, v{vDS}, s[{pDSK}:{pDSK+1}] offset:{e*32}")
    r += [f"s_mov_b32 s{sD1}, {WS_STAT}",
          f"buffer_load_dwordx4 {vr(vST[0])}, v{vSTA}, s[{sWS}:{sWS+3}], s{sD1} offen sc1",
          f"buffer_load_dwordx4 {vr(vST[4])}, v{vSTA}, s[{sWS}:{sWS+3}], s{sD1} offen offset:16 sc1"]
    return r
def p2_xread():
    r = ["@waitvm XR"]
    for e in range(5):
        for rr in range(4):
            r.append(f"ds_read_u16 v{vXR[e*4+rr]}, v{vXL} offset:{rr*160 + e*32}")
    return r

def p2_skip():
    r = [f"v_lshlrev_b32 v{vDK[e]}, 16, v{vDK[e]}" for e in range(5)]
    for j in range(20): r.append(f"v_lshlrev_b32 v{vXR[j]}, 16, v{vXR[j]}")
    for e in range(5):
        for rr in range(4): r.append(f"v_fma_f32 v{96+e*4+rr}, v{vXR[e*4+rr]}, v{vST[2*rr]}, v{vST[2*rr+1]}")
        for rr in range(4): r.append(f"v_mul_f32 v{96+e*4+rr}, v{96+e*4+rr}, v{vDK[e]}")
    return r
def p2_gate():
    r = []
    T = vT[0:24]
    for e in range(5):
        b = T[12*(e % 2)]; b2 = b + 4; b3 = b + 8; Y = vY[e*4:e*4+4]
        r += [f"ds_read_b128 {vr(b)}, v{vPR} offset:{e*1024}", f"ds_read_b128 {vr(b2)}, v{vPR} offset:{5120 + e*1024}", f"ds_read_b128 {vr(b3)}, v{vPR} offset:{10240 + e*1024}"]
        if e > 0:
            p = T[12*((e-1) % 2)]; Yp = vY[(e-1)*4:e*4]
            for rr in range(4): r.append(f"v_mul_f32 v{Yp[rr]}, v{Yp[rr]}, v{p+rr}") if False else None
        for rr in range(4): r.append(f"v_add_f32 v{Y[rr]}, v{Y[rr]}, v{b+rr}")
        for rr in range(4): r.append(f"v_add_f32 v{b2+rr}, v{b2+rr}, v{b3+rr}")
        for rr in range(4): r.append(f"v_add_f32 v{Y[rr]}, v{Y[rr]}, v{b2+rr}")
        for rr in range(4): r.append(f"v_mul_f32 v{b+rr}, {NLOG2E}, v{Y[rr]}")
        for rr in range(4): r.append(f"v_exp_f32 v{b+rr}, v{b+rr}")
        for rr in range(4): r.append(f"v_add_f32 v{b+rr}, 1.0, v{b+rr}")
        for rr in range(4): r.append(f"v_rcp_f32 v{b+rr}, v{b+rr}")
        for rr in range(4): r.append(f"v_mul_f32 v{Y[rr]}, v{Y[rr]}, v{b+rr}")
    r += [f"v_add_u32 v{v}, {L_P2 - L_P1}, v{v}" for v in vPW + [vPR]]
    return r

sROW = [76, 77, 78, 79]
def p2_final():
    r = []
    O = list(range(96, 116)); B = list(range(176, 236))
    if not opt.fin2:
        for k in range(3):
            for e in range(5):
                r.append(f"ds_read_b128 {vr(B[k*20+e*4])}, v{vPR} offset:{k*5120 + e*1024}")
        for j in range(0, 20, 2): r.append(f"v_pk_fma_f32 {vr(vXR[j], 2)}, {vr(O[j], 2)}, {vr(vY[j], 2)}, {vr(vXR[j], 2)}")
        for j in range(0, 20, 2): r.append(f"v_pk_add_f32 {vr(B[j], 2)}, {vr(B[j], 2)}, {vr(B[20+j], 2)}")
        for j in range(0, 20, 2): r.append(f"v_pk_add_f32 {vr(B[j], 2)}, {vr(B[j], 2)}, {vr(B[40+j], 2)}")
        for j in range(0, 20, 2): r.append(f"v_pk_fma_f32 {vr(vXR[j], 2)}, {vr(B[j], 2)}, {vr(vY[j], 2)}, {vr(vXR[j], 2)}")
        for rr in range(4):
            for e in range(5):
                r.append(f"buffer_store_dword v{vXR[e*4+rr]}, v{vOUT}, s[{sOUT}:{sOUT+3}], s{sROW[rr]} offen offset:{e*64} {opt.out_flags}")
        return r
    for e in range(5):
        for k in range(3): r.append(f"ds_read_b128 {vr(B[k*20+e*4])}, v{vPR} offset:{k*5120 + e*1024}")
    for e in range(5):
        for j in (4*e, 4*e + 2): r.append(f"v_pk_add_f32 {vr(B[j], 2)}, {vr(B[j], 2)}, {vr(B[20+j], 2)}")
        for j in (4*e, 4*e + 2): r.append(f"v_pk_add_f32 {vr(B[j], 2)}, {vr(B[j], 2)}, {vr(B[40+j], 2)}")
        for j in (4*e, 4*e + 2): r.append(f"v_pk_fma_f32 {vr(vXR[j], 2)}, {vr(B[j], 2)}, {vr(vY[j], 2)}, {vr(vXR[j], 2)}")
        for rr in range(4):
            r.append(f"buffer_store_dword v{vXR[e*4+rr]}, v{vOUT}, s[{sOUT}:{sOUT+3}], s{sROW[rr]} offen offset:{e*64} {opt.out_flags}")
    return r
def p2_own():
    return [f"v_pk_fma_f32 {vr(vXR[j], 2)}, {vr(96+j, 2)}, {vr(vY[j], 2)}, {vr(vXR[j], 2)}" for j in range(0, 20, 2)]

def weave(main, extra, every=1):
    groups = []; cur = []
    for t in II(extra):
        cur.append(t)
        if t.cls == "vmem": groups.append(cur); cur = []
    if cur: groups.append(cur)
    out = []
    for k, t in enumerate(II(main)):
        out.append(t)
        if groups and k % every == every - 1: out += groups.pop(0)
    for g_ in groups: out += g_
    return out

def phase2(left):
    PH[0] = 2
    L(stamp("B mfma end"))
    L(delay("c", 15, 9, 600))
    L([f"s_mov_b32 s{sEX0}, {NLOG2E}", f"s_mov_b32 s{sEX1}, {NLOG2E}", f"s_mov_b32 s{sEX2}, 1.0", f"s_mov_b32 s{sEX3}, 1.0"])
    Wq = list(left); Aq = []
    assert all(id(gq[-1]) in STEP for gq in Wq)
    nextW = max([st for st in STEP.values()] + [-1]) + 1; nextA = 0
    while nextW < N1 + NLDS: Wq.extend(tagw(nextW)); nextW += 1
    def serial(lst, every, first=None):
        cnt = 0
        for t in II(lst):
            if t.cls == "pseudo" and t.op == "@gap": continue
            L([t])
            if t.cls in ("valu", "trans") and not t.op.startswith("v_cmp") and not INRAW[0]:
                cnt += 1
                q_ = first if first else Wq
                if q_ and cnt >= every and gstall(q_[0]) <= opt.thrs: L(q_.pop(0)); cnt = 0
            if t.op == "@raw_begin": INRAW[0] = True
            if t.op == "@raw_end": INRAW[0] = False
    swb = II(swiglu(ACCB, [0], sKSB, "HHB", packed=True))
    cl = len(swb) - opt.hald
    serial(swb[:cl], opt.every)
    if opt.sflag: L([f"s_mov_b32 s{sNN}, s{sNONCE}", f"s_mov_b32 s{sNN+1}, s{sNONCE}"]); assert opt.hald == 0
    else: L(fl_load(WS_FLHA))
    serial(swb[cl:], opt.every)
    L(stamp("epi B done"))
    def fill(st):
        nonlocal nextW, nextA
        while nextA <= min(st + opt.look, NSTEP - 1): Aq.extend(taga(nextA)); nextA += 1
        while nextW <= min(st + opt.lookW, NSTEP - 1) and nextW >= N1 + NLDS and w_free_after_p(nextW) < st: Wq.extend(tagw(nextW)); nextW += 1
    def head():
        if Wq and (not Aq or STEP[id(Wq[0][-1])] <= STEP[id(Aq[0][-1])]): return Wq
        return Aq if Aq else None
    p56 = II(scan_P56())[33:]
    serial(p56[:10], opt.every)
    L(p2_setup2())
    if opt.sflag:
        serial(p56[10:21], opt.every); L(fl_load(WS_FLHA)); serial(p56[21:opt.hack], opt.every)
    else: serial(p56[10:opt.hack], opt.every)
    L(fl_check(WS_FLHA)); L(stamp("ha ready"))
    while nextA < opt.a0: Aq.extend(taga(nextA)); nextA += 1
    if opt.shadow56:
        tail56 = p56[opt.hack:]; p56 = p56[:opt.hack]
        while Aq: L(Aq.pop(0))
    cst = next((k for k, t in enumerate(p56) if t.cls == "vmem"), len(p56))
    if opt.afirst and Aq: L(Aq.pop(0)); L(Aq.pop(0)); L(Aq.pop(0)); L(Aq.pop(0))
    serial(p56[opt.hack:cst], opt.every2, Aq)
    if opt.afirst:
        while Aq: L(Aq.pop(0))
    L(p56[cst:])
    L(stamp("h out"))
    while Aq: L(Aq.pop(0))
    if opt.hhpos < 0:
        L(["@waitvm HHB", "s_barrier"]); L(flag_store(WS_FLHH, sC, sG))
    L(stamp("flags out"))
    L([f"s_mov_b32 s{sROW[rr]}, {rr*2560}" for rr in range(4)])
    Q = Queue(); misc = []
    if opt.shadow56: Q.add(tail56, 20*opt.p2pos - opt.t56)
    g = 0; nread = N1
    for st in range(NSTEP):
        mf = p2_mfma(st)
        if st == 8 - opt.look:
            L(fl_check(WS_FLHH))
        if st == N1 - opt.look:
            L(fl_check(WS_FLH)); L(stamp("h ready"))
        fill(st)
        if st == opt.p2pos + 1:
            Q.add(p2_epi_addr(), g + 30)
        if st == opt.epos: misc.extend(groups(p2_epi_loads()))
        if st == opt.epos + 3:
            assert not misc or all("v29" in gq[-1].text for gq in misc)
            Q.add(p2_xread() + p2_skip(), 20*N1 - 4)
        if opt.sflag:
            if st == 8 - opt.look - opt.sfl: L(fl_load(WS_FLHH))
            if st == N1 - opt.look - opt.sfl: L(fl_load(WS_FLH))
        else:
            if st == 8 - opt.look - 2: misc[0:0] = groups(flag_load(WS_FLHH, sRT, 1, 15))
            if st == N1 - opt.look - 2: misc[0:0] = groups(flag_load(WS_FLH, sRT, 1, 15))
        while nread < N1 + NLDS and w_free_after_p(nread) < st and nread <= st + 3:
            assert not any(STEP.get(id(gq[-1])) == nread for gq in Wq)
            Q.add(p2_wread(nread), 20*(nread - 1) + 4); nread += 1
        if st == N1:
            L(stamp("out done"))
            yp = p2_partials(0, ACC1); rdy = [f"v_accvgpr_read_b32 v{vY[j]}, a{j}" for j in range(20)]
            mix = []
            for j in range(15): mix += [yp[j]] + rdy[j*4//3:(j+1)*4//3]
            Q.add(mix, 20*opt.ybar - 4)
        if st == opt.ybar:
            assert nread == N1 + NLDS
            L(Q.flush()); L(["@waitds0", "s_barrier"])
            Q.add(p2_gate(), 20*NSTEP - (44 if opt.merge2 else 24))
        def must(q): return [gq for gq in q if STEP[id(gq[-1])] <= st + opt.look]
        ng = len(must(Wq)) + len(Aq)
        per = -(-ng // 19)
        last = st == NSTEP - 1
        if opt.merge2 and st == NSTEP - 2:
            while head(): L(head().pop(0))
            held = mf; mf = []
        if last:
            L(Q.flush())
            if opt.merge2:
                both = []
                for jj in (1, 2, 3, 0): both += held[jj*5:jj*5+5] + mf[jj*5:jj*5+5]
                mf = both
            else: mf = mf[5:] + mf[:5]
            wr = II(p2_partials(0, ACC2))
        if opt.onewait and mf and not last:
            need = set().union(*[I(x).rd for x in mf])
            idx_ = [q for q, o in enumerate(EM[0].vm) if o.wr & need]
            if idx_: EM[0]._wait(len(EM[0].vm) - 1 - idx_[-1], None)
        for k, t in enumerate(mf):
            E(t)
            used = 0
            if k >= 1:
                for _ in range(max(per, 1)):
                    h = head()
                    if misc and (gstall(misc[0]) <= opt.thr or st >= opt.epos + 1 or "v29" in misc[0][-1].text) and (k % 2 == 0 or not h): L(misc.pop(0)); used += 2
                    elif h and (STEP[id(h[0][-1])] <= st + opt.look or gstall(h[0]) <= opt.thr): L(h.pop(0)); used += 2
            if st == opt.hhpos and k == 19 and st != opt.p2pos:
                L(["@waitvm HHB", "s_barrier"]); L(flag_store(WS_FLHH, sC, sG))
            if st == opt.p2pos and k == 19:
                assert "HST" in EM[0].seen and not any(t.tok == "HST" for t, d in Q.q)
                L(["@waitvm HST", "s_barrier"])
                if st == opt.hhpos: L(flag_store(WS_FLHH, sC, sG))
                L(flag_store(WS_FLH, sC, sG))
            if last and wr and ((k >= 7) if not opt.merge2 else (k >= 12 and k % 2 == 0)): L([wr.pop(0)])
            Q.pop(2 - used, g); g += 1
        if st >= opt.epos + 2:
            while misc: L(misc.pop(0))
        if opt.fine2: L(stamp(f"st{st}"))
        while head() and STEP[id(head()[0][-1])] <= st + opt.look: L(head().pop(0))
    L(wr)
    if opt.fin2: L(p2_own())
    L(["@waitds0", "s_barrier"])
    L(stamp("y done"))
    L(p2_final())
    L(stamp("end")); L(stamp("cyc1", True))
INRAW = [False]

def diag_out():
    if not opt.diag: return
    L([f"s_lshl_b32 s{sT2}, s2, 2", f"s_add_u32 s{sT2}, s{sT2}, s{sW}", f"s_lshl_b32 s{sT2}, s{sT2}, 2", f"s_add_u32 s{sT2}, s{sT2}, {WS_STAMP}",
       f"v_mov_b32 v{vT[0]}, s{sNONCE}", f"buffer_store_dword v{vT[0]}, off, s[{sWS}:{sWS+3}], s{sT2}"])

def stamps_out():
    if opt.probe:
        L(["@raw_begin", "L_spin:", f"s_memrealtime s[{sSTAMP}:{sSTAMP+1}]", "s_waitcnt lgkmcnt(0)", f"s_sub_u32 s{sT2}, s{sSTAMP}, s3",
           f"s_cmp_lt_u32 s{sT2}, 5000", "s_cbranch_scc1 L_spin", "@raw_end"])
    if not opt.stamps: return
    L([f"s_lshl_b32 s{sT2}, s2, 2", f"s_add_u32 s{sT2}, s{sT2}, s{sW}", f"s_lshl_b32 s{sT2}, s{sT2}, 8", f"s_add_u32 s{sT2}, s{sT2}, {WS_STAMP}",
       f"v_lshlrev_b32 v{vT[0]}, 2, v{vLANE}", f"buffer_store_dword v0, v{vT[0]}, s[{sWS}:{sWS+3}], s{sT2} offen"])

def build():
    STEP.clear(); PH[0] = 1; EM[0] = Emitter(lines_of, lat_of, dslat=opt.dslat); lab[0] = 0; stamp_n[0] = 0; stamp_names.clear(); ST.n = 0
    prologue()
    L(stamp("issued")); L(stamp("cyc0", True))
    CAP[0] = rest = []
    setup_rest()
    L(scan_addr()); L(mlp_read_addr())
    constants()
    L(const_park())
    nonce_seed()
    L(relayout_issue()); L(relayout_raddr()); L(late_offsets())
    if opt.t_w13: L(w13_touch_addr())
    L([f"v_min_u32 v{vT[0]}, 9, v{vLANE}", f"v_lshlrev_b32 v{vT[0]}, 7, v{vT[0]}", f"global_load_dword a231, v{vT[0]}, s[{pDSK}:{pDSK+1}]"])
    CAP[0] = None
    ra = atoms(rest); n0 = 0; k0 = 0
    while n0 < opt.pre0: L(ra[k0]); n0 += len(ra[k0]); k0 += 1
    L(stamp("consts"))
    tail = x_arrive(0, [i for a in ra[k0:] for i in a], 40)
    L(stamp("x0 in"))
    E("s_barrier")
    L(skew("0"))
    L(tail)
    L(x_stats(0))
    L([f"v_add_u32 v{vRX[0]}, 81920, v{vRX[0]}", f"v_add_u32 v{vRX[1]}, 81920, v{vRX[1]}"])
    nrm = []
    for s in range(20 - opt.late0): nrm += norm_step(0, s, opt.pk0, vT[20:24]) if "N" not in opt.skip else []
    if "Z" in opt.skip: nrm = ["s_nop 0"] * len(nrm)
    if "Y" in opt.skip: nrm = [t if "v_pk_fma" not in t else "v_mov_b32 v52, v53" for t in nrm]
    if "M" in opt.skip: nrm = [x for k, t in enumerate(nrm) for x in ([t, "s_nop 0"] if k % 4 == 3 else [t])]
    tail = x_arrive(1, nrm)
    L(stamp("x1 in"))
    L(weave(tail, ST.next(50 - ST.n, 50), 1))
    L(x_stats(1))
    L(mlp_dma_addr("A"))
    for s in range(opt.pre_norm): L(norm_step(1, s, True, vT[20:24]))
    assert ST.n == 50
    phase2(phase1_blocks())
    diag_out()
    stamps_out()
    E("s_endpgm")
    return EM[0].out

HEADER = """; Kernarg layout for this problem (128 bytes, ptrs only, base s[0:1]):
; @launch grid=(256,1,1) block=(256,1,1) lds=163840
.amdgcn_target "amdgcn-amd-amdhsa--gfx950"
.text
.globl {k}
.p2align 8
.type {k},@function
{k}:
"""
FOOTER = """
L_exit:
    s_endpgm
L_codeend:
    .fill 64, 4, 0xbf800000
.section .rodata,"a"
.p2align 6
.amdhsa_kernel {k}
  .amdhsa_next_free_vgpr 512
  .amdhsa_next_free_sgpr 102
  .amdhsa_accum_offset 256
  .amdhsa_group_segment_fixed_size 0
  .amdhsa_kernarg_size 128
  .amdhsa_user_sgpr_count 2
  .amdhsa_user_sgpr_kernarg_segment_ptr 1
  .amdhsa_system_sgpr_workgroup_id_x 1
  .amdhsa_float_denorm_mode_32 3
.end_amdhsa_kernel
"""
def text():
    prog = build()
    body = "\n".join(("" if i.cls == "label" else "    ") + i.text for i in prog)
    return HEADER.format(k=KNAME) + body + FOOTER.format(k=KNAME), prog

if __name__ == "__main__":
    out = sys.argv[1]
    for a in sys.argv[2:]:
        k, v = a.split("=")
        cur = getattr(opt, k)
        setattr(opt, k, v.replace("_", " ") if isinstance(cur, str) else (v in ("1", "True") if isinstance(cur, bool) else type(cur)(float(v))))
    t, prog = text()
    open(out, "w").write(t)
    print(stats(prog), len(prog))
    if opt.sim:
        em = EM[0]; prev = 0
        for j, (n, m) in enumerate(zip(stamp_names, em.marks)):
            big = sorted([x for x in em.stalls if x[1] == j], reverse=True)
            print(f"{n:12s} {m:7.0f} ({m-prev:5.0f}) stalls {sum(x[0] for x in big):5.0f} :", "; ".join(f"{x[0]:.0f} {x[2][:44]}" for x in big[:4]))
            prev = m
    if opt.stamps:
        import json
        json.dump(stamp_names, open(out + ".stamps.json", "w"))
```

```python
import sys, os
sys.path.insert(0, os.path.dirname(os.path.abspath(__file__)))
from asmlib import I, stats, insert_nops, Emitter

KNAME = "recurrent_scan__ssm_conv_s5__glu_gated_swiglu__prompt_kernel"

class Opt:
    fine = False
    splitx = False
    fine2 = False
    pk0 = True
    xhit = False
    chain = 0
    sim = False
    fakehit = ''
    delay = 0
    diag = False
    cycles = False
    skip = ''
    probe = ''
    stamps = False
    codepf = True
    krot = True
    prot = False
    pre0 = 180
    late0 = 0
    pflines = 12
    win = 8
    pre_norm = 1
    skew = False
    mstat = True
    t_x1 = False
    t_w13 = False
    b10 = 1
    rf_stage = 2
    slack = 22
    rl_pos = 0
    capU = 3
    capM = 5
    span = 5
    X_stage = 2
    L_stage = 5
    C_stage = 7
    Y_stage = 8
    H_stage = 11
    F_stage = 1
    W_stage = 4
    nearly = 12
    rl_nt = False
    out_flags = "sc1"
    x_flags = ""
    w_flags = ""
    p1map = 0
    p2map = 1
    p2pos = 2
    epos = 6
    afirst = True
    nsc = 5
    out_flags2 = ''
    m23 = 1
    onewait = False
    fin2 = True
    merge2 = True
    sflag = False
    sfl = 2
    shadow56 = True
    t56 = 2
    hhpos = 0
    hack = 91
    haend = 18
    hast = 14
    hald = 0
    thrs = 200
    hhld = 50
    hhck = 130
    every = 7
    every2 = 2
    a0 = 3
    thrb = 40
    cad = 3
    cadA = 6
    pace = 10.0
    burst = 100
    coldpace = 1.5
    vmcost = 4
    ybar = 15
    hchk = 4
    HL_stage = 13
    look = 3
    lookx = 3
    looky = 3
    lookW = 6
    thr = 16
    dsmax = 3
    interp = True
    vlat = 14
    chainq = True
    dslat = 130
    even = True
    thrm = 100
    slot0 = 5
    earlyA = False
    roty = False
    latA = 640
    latW = 620
opt = Opt()

WS_A2 = 0
WS_W2P = 0xB00000
WS_S = 0xF00000
WS_STAT = 0xF40000
WS_FLW = 0xF50000
WS_FLH = 0xF51000
WS_FLHH = 0xF52000
WS_FLHA = 0xF54000
WS_SEED = 0xF53000
WS_STAMP = 0xF60000
WS_SIZE = 0x1000000
OOB = 0x40000000

L_RL = 102400
L_PRIV = 122880
PV_COL, PV_CH, PV_E = 0, 1280, 4352
L_TT = 155648
L_LB = 159744
L_WY = 0
L_P1 = 81920
L_P2 = 0

sX, sWU, sWM, sWS, sOUT, sRL, sDBG = 36, 40, 44, 48, 52, 56, 60
(sW, sC, sG, sRT, sN, sNONCE, sT0, sT1, sT2, sT3, sXOFF, sUOFF, sMOFF, sMOFFB, sRLOFF, sRLST,
 sA2H, sKSA, sKSB, sSST, sLB0, sLB1, sLB2, sLB3, sEX0, sEX1, sEX2, sEX3, sM0, sM0A, sCNT, sP2A, sP2W, sT4, sT5, sSTATO) = range(64, 100)
sSTAMP = 100
pX, pLRE, pLIM, pBRE, pBIM, pCRE, pCIM, pLDT = 4, 6, 8, 10, 12, 14, 16, 18
pDSK, pBX, pW1, pW3, pW2, pOUT, pDBG, pWS = 20, 22, 24, 26, 28, 30, 32, 34
sKU = [22, 23, 0, 1, 32]
sD0, sD1 = 4, 5
sRY, sRO = 6, 7
sAP, sAS, sAE, sWP, sWB, sWE = 8, 9, 10, 11, 12, 13
sM0U, sSEEDO = 18, 19
sD2 = 31
sKA = [14, 15, 16, 17, 28]
sFW, sFHA, sFHH, sFH, sFL = 29, 34, 35, 6, 7
sRLT = 33
sHO = [24, 25, 26, 27, 30]

vLANE, vL16 = 1, 2
vRX = [3, 4]; vRU = [5, 6]
vRA = [7, 8]; vRB = 9; vHH = 10; vDU = 11; vW4 = 12
vD = [13, 14, 15, 16]
vXD = vD
vDB = [3, 4, 5, 6]; vRB2 = 11
BSLOT = {10: 4, 11: 5, 12: 2, 13: 3, 14: 0}
BISSUE = {2: (11, 7), 6: (12, 8), 7: (13, 9), 8: (14, 10)}
vUD = [11, 27, 28, 29]
vEW, vER, vCOLR, vCH, vTT, vLB, vTW, vTR, vHST, vSO = range(17, 27)
vWP0, vWP1, vFLAG, vNON = 27, 28, 29, 30
vT = list(range(32, 56))
def U(cf, f): return 56 + (cf * 2 + f) * 4
def X(f, s): return 96 + (f * 20 + s) * 4
def ACCA(mu, h2): return (mu * 2 + h2) * 16
def FB(par, fr): return 64 + par * 32 + fr * 4
def ACCB(mu, h2=0): return 128 + mu * 16
aRL = 160
aS = 180

def vr(n, c=4): return f"v[{n}:{n+c-1}]"
def ar(n, c=4): return f"a[{n}:{n+c-1}]"
def sr(n, c=4): return f"s[{n}:{n+c-1}]"

def lines_of(i):
    t = i.text
    if "ushort" in t: return 1
    if i.tok and i.tok[0] == "M" and int(i.tok[1:]) >= 10: return 16
    if i.tok == "RL": return 16
    if i.tok == "XR": return 11
    if " off," in t and "global" not in t: return 1
    if "dwordx2" in t: return 2
    if "load_dword " in t and "offen" in t: return 1 if "sc1" in t else 32
    if "global_load_dword" in t: return 0
    if "store_dword " in t: return 4 if "offen" in t else 1
    return 8
def lat_of(i):
    t = i.text; tok = i.tok or ""
    cold = 1500
    if "store" in t: return 820 if "sc1" in t else 330
    if tok.startswith("x"): return cold if tok in ("x0_0", "x0_1", "x1_0", "x1_1") else 800
    if tok.startswith("U"): return cold if tok == "U0" else 800
    if tok == "RL" or tok == "TW": return cold
    if tok.startswith("M"): return cold if (tok in ("M0", "M1", "M10") and not opt.t_w13) else 520
    if tok == "W" or tok.startswith("WL"): return opt.latW
    if tok == "A": return opt.latA
    if "sc1" in t: return 1000
    return 700
EM = [None]
CAP = [None]
def E(t, tok=None):
    i = I(t, tok)
    if CAP[0] is not None: CAP[0].append(i)
    else: EM[0].feed(i)
    return i
def L(lst):
    for t in lst:
        i = t if isinstance(t, I) else I(t)
        if CAP[0] is not None: CAP[0].append(i)
        else: EM[0].feed(i)
def atoms(lst):
    out = []; depth = 0
    for i in lst:
        glue = depth > 0 or i.op.startswith(("s_cselect", "s_addc", "s_subb", "v_cndmask", "v_addc")) or i.cls in ("branch", "label") or i.op in ("@arm", "@else", "@endarm")
        if out and glue: out[-1].append(i)
        else: out.append([i])
        if i.op == "@arm": depth += 1
        if i.op == "@endarm": depth -= 1
    return out
def II(lst): return [t if isinstance(t, I) else I(t) for t in lst]

def srd(d, p, nbytes):
    return [f"s_mov_b32 s{d}, s{p}", f"s_and_b32 s{d+1}, s{p+1}, 0xffff", f"s_mov_b32 s{d+2}, {nbytes}", f"s_mov_b32 s{d+3}, 0x20000"]

stamp_n = [0]
stamp_names = []
def stamp(name, cyc=False):
    if opt.probe:
        if name != opt.probe: return []
        return [f"s_memrealtime s[{sSTAMP}:{sSTAMP+1}]", "@waitds0", f"s_mov_b32 s3, s{sSTAMP}"]
    if not opt.stamps: return []
    k = stamp_n[0]; stamp_n[0] += 1
    stamp_names.append(name)
    return [f"s_memtime s[{sSTAMP}:{sSTAMP+1}]" if (cyc or opt.cycles) else f"s_memrealtime s[{sSTAMP}:{sSTAMP+1}]", "@waitds0",
            f"v_writelane_b32 v0, s{sSTAMP}, {k}"]

def cmul(dr, di, ar_, ai, br, bi, t):
    return [f"v_mul_f32 v{t}, v{ai}, v{bi}", f"v_mul_f32 v{di}, v{ai}, v{br}",
            f"v_fma_f32 v{dr}, v{ar_}, v{br}, -v{t}", f"v_fmac_f32 v{di}, v{ar_}, v{bi}"]
def csq(dr, di, r, i, t):
    return [f"v_mul_f32 v{t}, v{i}, v{i}", f"v_mul_f32 v{di}, v{r}, v{i}",
            f"v_fma_f32 v{dr}, v{r}, v{r}, -v{t}", f"v_add_f32 v{di}, v{di}, v{di}"]
def chorner2(dr, di, gr, gi, mr, mi, er, ei):
    return [f"v_fma_f32 v{dr}, v{mr}, v{gr}, v{er}", f"v_fma_f32 v{di}, v{mr}, v{gi}, v{ei}",
            f"v_fma_f32 v{dr}, -v{mi}, v{gi}, v{dr}", f"v_fma_f32 v{di}, v{mi}, v{gr}, v{di}"]

LOG2E = "0x3fb8aa3b"
NLOG2E = "0xbfb8aa3b"
INV2PI = "0.15915494"

def x_piece(n):
    f, S, ih = n // 20, (n % 20) // 2, n & 1
    p = n & 3
    r = []
    if p == 0:
        r = [f"s_add_u32 m0, s{sM0}, {f*81920 + (2*S)*1024}", f"s_add_u32 s{sD1}, s{sKU[S >> 1]}, s{sXOFF}"]
        if f: r.append(f"s_add_u32 s{sD1}, s{sD1}, {4*1280}")
    r.append(I(f"buffer_load_dwordx4 v{vXD[p]}, s[{sX}:{sX+3}], s{sD1} offen offset:{p*1024} {opt.x_flags} lds", tok=f"x{f}_{S}"))
    return r
def u_piece(i, cf):
    r = []
    if cf == 0: r = [f"s_add_u32 m0, s{sM0U}, {i*20480}", f"s_add_u32 s{sD1}, s{sKU[i]}, s{sUOFF}"]
    if cf == 4: r = [f"s_add_u32 m0, s{sM0U}, {i*20480 + 4096}", f"s_add_u32 s{sD1}, s{sD1}, {4*10240}"]
    r.append(I(f"buffer_load_dwordx4 v{vUD[cf & 3]}, s[{sWU}:{sWU+3}], s{sD1} offen offset:{(cf & 3)*1024} {opt.w_flags} lds", tok=f"U{i}"))
    return r
class Stream:
    def __init__(self): self.n = 0
    def next(self, k, limit=60):
        r = []
        for _ in range(k):
            if self.n >= limit: break
            r += x_piece(self.n) if self.n < 40 else u_piece((self.n - 40) // 5, (self.n - 40) % 5)
            self.n += 1
        return r
ST = Stream()

def prologue():
    E(f"s_cmp_ge_u32 s2, 256")
    E("s_cbranch_scc1 L_exit")
    E("s_load_dwordx16 s[4:19], s[0:1], 0")
    E("s_load_dwordx16 s[20:35], s[0:1], 64")
    if opt.stamps or opt.probe == "entry":
        E(f"s_{'memtime' if opt.cycles else 'memrealtime'} s[{sSTAMP}:{sSTAMP+1}]")
    if opt.codepf:
        n = opt.pflines
        L(["@raw_begin", f"s_getpc_b64 s[{sT2}:{sT3}]", "L_pc:",
           f"s_lshr_b32 s{sT4}, s2, 3", f"s_mul_i32 s{sT4}, s{sT4}, {n*128}",
           f"v_min_u32 v{vT[0]}, {n-1}, v0", f"v_lshlrev_b32 v{vT[0]}, 7, v{vT[0]}", f"v_add_u32 v{vT[0]}, s{sT4}, v{vT[0]}",
           f"v_min_u32 v{vT[0]}, L_codeend-L_pc-4, v{vT[0]}",
           f"v_mov_b32 v{vT[1]}, s{sT3}", f"v_add_co_u32 v{vT[0]}, vcc, s{sT2}, v{vT[0]}", f"v_cmp_gt_u32 s[{sEX0}:{sEX0+1}], {n}, v0", "s_nop 0",
           f"v_addc_co_u32 v{vT[1]}, vcc, 0, v{vT[1]}, vcc", f"s_and_b64 s[{sEX0}:{sEX0+1}], s[{sEX0}:{sEX0+1}], exec",
           "s_cbranch_scc0 L_nopf", f"s_mov_b64 exec, s[{sEX0}:{sEX0+1}]",
           f"global_load_dword a230, v[{vT[0]}:{vT[1]}], off", "s_mov_b64 exec, -1", "L_nopf:", "@raw_end"])
    E(f"v_lshrrev_b32 v{vT[0]}, 6, v0")
    E(f"v_and_b32 v{vLANE}, 63, v0")
    E(f"v_readfirstlane_b32 s{sW}, v{vT[0]}")
    E(f"v_lshlrev_b32 v{vL16}, 4, v{vLANE}")
    L([f"s_and_b32 s{sT0}, s2, 7", f"s_lshr_b32 s{sT1}, s2, 3"])
    if opt.p1map == 0:
        L([f"s_and_b32 s{sC}, s{sT0}, 1", f"s_lshl_b32 s{sC}, s{sC}, 3", f"s_and_b32 s{sT2}, s{sT1}, 7", f"s_add_u32 s{sC}, s{sC}, s{sT2}",
           f"s_lshr_b32 s{sG}, s{sT0}, 1", f"s_lshl_b32 s{sG}, s{sG}, 2", f"s_lshr_b32 s{sT2}, s{sT1}, 3", f"s_add_u32 s{sG}, s{sG}, s{sT2}"])
    else:
        L([f"s_and_b32 s{sC}, s{sT0}, 3", f"s_lshl_b32 s{sC}, s{sC}, 2", f"s_and_b32 s{sT2}, s{sT1}, 3", f"s_add_u32 s{sC}, s{sC}, s{sT2}",
           f"s_lshr_b32 s{sG}, s{sT0}, 2", f"s_lshl_b32 s{sG}, s{sG}, 3", f"s_lshr_b32 s{sT2}, s{sT1}, 2", f"s_add_u32 s{sG}, s{sG}, s{sT2}"])
    t0, t1, t2, t3 = vT[0:4]
    L([f"v_lshrrev_b32 v{t0}, 3, v{vLANE}", f"v_and_b32 v{t1}, 7, v{vLANE}", f"v_and_b32 v{t2}, 6, v{t0}",
       f"v_xor_b32 v{t1}, v{t1}, v{t2}", f"v_lshlrev_b32 v{t1}, 4, v{t1}",
       f"v_and_b32 v{t2}, 4, v{t0}", f"v_add_u32 v{t2}, v{t2}, v{t0}",
       f"v_mul_u32_u24 v{vD[0]}, 1280, v{t2}", f"v_add_u32 v{vD[0]}, v{vD[0]}, v{t1}",
       f"v_mul_u32_u24 v{vDU}, 1280, v{t0}", f"v_add_u32 v{vDU}, v{vDU}, v{t1}",
       f"v_add_u32 v{vD[0]}, 4096, v{vD[0]}", f"v_add_u32 v{vD[1]}, {16*1280 - 1024}, v{vD[0]}",
       f"v_add_u32 v{vD[2]}, {128 - 2048}, v{vD[0]}", f"v_add_u32 v{vD[3]}, {16*1280 + 128 - 3072}, v{vD[0]}"])
    L([f"s_mul_i32 s{sT2}, s{sG}, 80", f"v_min_u32 v{t3}, 39, v{vLANE}", f"v_lshlrev_b32 v{t3}, 1, v{t3}", f"v_add_u32 v{t3}, s{sT2}, v{t3}"])
    L([f"s_lshl_b32 s{sXOFF}, s{sC}, 2", f"s_add_u32 s{sXOFF}, s{sXOFF}, s{sW}", f"s_mul_i32 s{sXOFF}, s{sXOFF}, {0 if opt.xhit else 32*1280}",
       f"s_mul_i32 s{sM0}, s{sW}, 20480"])
    if opt.krot:
        L([f"s_add_u32 s{sT4}, s{sC}, s{sG}", f"s_mul_i32 s{sT5}, s{sT4}, 52", f"s_lshr_b32 s{sT5}, s{sT5}, 8", f"s_mul_i32 s{sT5}, s{sT5}, 5",
           f"s_sub_u32 s{sT4}, s{sT4}, s{sT5}", f"s_lshl_b32 s{sT4}, s{sT4}, 8"])
    else:
        E(f"s_mov_b32 s{sT4}, 0")
    E("@waitds0")
    if opt.probe == "entry": E(f"s_mov_b32 s3, s{sSTAMP}")
    if opt.stamps:
        E(f"v_mov_b32 v0, 0")
        E(f"v_writelane_b32 v0, s{sSTAMP}, 0"); stamp_n[0] = 1; stamp_names.append("entry")
    if opt.chain:
        L([f"s_mul_i32 s{sT2}, s2, {60*128}", f"s_add_u32 s{sT2}, s{pW2}, s{sT2}", f"s_addc_u32 s{sT3}, s{pW2+1}, 0", f"v_mov_b32 v{vT[8]}, 0"])
        for k in range(opt.chain):
            L([f"global_load_dword v{vT[9]}, v{vT[8]}, s[{sT2}:{sT3}]", "@waitvm0", f"v_add_u32 v{vT[8]}, 128, v{vT[8]}"])
    E(f"global_load_ushort v{vT[4]}, v{t3}, s[{pLRE}:{pLRE+1}]")
    E(f"global_load_ushort v{vT[5]}, v{t3}, s[{pLIM}:{pLIM+1}]")
    E(f"global_load_ushort v{vT[6]}, v{t3}, s[{pLDT}:{pLDT+1}]")
    L([f"s_sub_u32 s{sX}, s{pX}, 4096", f"s_subb_u32 s{sX+1}, s{pX+1}, 0", f"s_and_b32 s{sX+1}, s{sX+1}, 0xffff",
       f"s_mov_b32 s{sX+2}, {2048*1280 + 4096}", f"s_mov_b32 s{sX+3}, 0x20000"])
    L(srd(sDBG, pDBG, 256))
    def ku(j): return [f"s_add_u32 s{sKU[j]}, s{sT4}, {j*256}", f"s_cmp_ge_u32 s{sKU[j]}, 1280", f"s_cselect_b32 s{sT5}, 1280, 0", f"s_sub_u32 s{sKU[j]}, s{sKU[j]}, s{sT5}"]
    L(ku(0)); L(ST.next(4))
    L(srd(sWS, pWS, WS_SIZE))
    L([f"s_or_b32 s{sT2}, s2, s{sW}", f"s_cmp_eq_u32 s{sT2}, 0", f"s_mov_b32 s{sT3}, {WS_SEED}", f"s_cselect_b32 s{sSEEDO}, s{sT3}, {OOB}"])
    E(f"buffer_load_dword v{vT[7]}, off, s[{sWS}:{sWS+3}], s{sSEEDO} sc1")
    L(ku(1)); L(ST.next(opt.win - 4))
    for j in range(2, 5): L(ku(j))
    i_, q_, a0, a1 = vT[8:12]
    L([f"v_and_b32 v{i_}, 15, v{vLANE}", f"v_lshrrev_b32 v{q_}, 4, v{vLANE}",
       f"v_and_b32 v{a0}, 7, v{i_}", f"v_and_b32 v{a1}, 6, v{i_}", f"v_xor_b32 v{a1}, v{a1}, v{q_}", f"v_lshlrev_b32 v{a1}, 4, v{a1}",
       f"v_lshl_add_u32 v{a1}, v{a0}, 7, v{a1}",
       f"v_lshrrev_b32 v{a0}, 3, v{i_}",
       f"v_mul_u32_u24 v{vRU[0]}, 5120, v{a0}", f"v_add_u32 v{vRU[0]}, v{vRU[0]}, v{a1}", f"v_xor_b32 v{vRU[1]}, 64, v{vRU[0]}",
       f"v_lshl_add_u32 v{vRX[0]}, v{a0}, 10, v{a1}", f"v_add_u32 v{vRX[0]}, s{sM0}, v{vRX[0]}", f"v_xor_b32 v{vRX[1]}, 64, v{vRX[0]}",
       f"v_add_u32 v{vW4}, 4096, v{vL16}", f"v_mov_b32 v{vONES}, 0x3f803f80"])
    L([f"v_accvgpr_write_b32 a{aONE+k}, v{vONES}" for k in range(4)])
    L([f"v_add_u32 v{vUD[p]}, {p*(10240 - 1024)}, v{vDU}" for p in range(1, 4)])

def setup_rest():
    t0 = vT[0]
    L([f"s_bitcmp1_b32 s{sW}, 0",
       f"s_cselect_b32 s{sWU}, s{pBIM}, s{pBRE}", f"s_cselect_b32 s{sWU+1}, s{pBIM+1}, s{pBRE+1}",
       f"s_cselect_b32 s{sWM}, s{pW3}, s{pW1}", f"s_cselect_b32 s{sWM+1}, s{pW3+1}, s{pW1+1}",
       f"s_and_b32 s{sWU+1}, s{sWU+1}, 0xffff", f"s_and_b32 s{sWM+1}, s{sWM+1}, 0xffff",
       f"s_mov_b32 s{sWU+2}, {640*1280}", f"s_mov_b32 s{sWU+3}, 0x20000",
       f"s_mov_b32 s{sWM+2}, {640*3072}", f"s_mov_b32 s{sWM+3}, 0x20000"])
    L(srd(sOUT, pOUT, 2048*2560))
    if opt.p2map == 0:
        L([f"s_lshl_b32 s{sRT}, s{sT0}, 2", f"s_and_b32 s{sT2}, s{sT1}, 3", f"s_add_u32 s{sRT}, s{sRT}, s{sT2}", f"s_lshr_b32 s{sN}, s{sT1}, 2"])
    else:
        L([f"s_and_b32 s{sRT}, s{sT0}, 3", f"s_lshl_b32 s{sRT}, s{sRT}, 3", f"s_and_b32 s{sT2}, s{sT1}, 7", f"s_add_u32 s{sRT}, s{sRT}, s{sT2}",
           f"s_lshr_b32 s{sN}, s{sT0}, 2", f"s_lshl_b32 s{sN}, s{sN}, 2", f"s_lshr_b32 s{sT2}, s{sT1}, 3", f"s_add_u32 s{sN}, s{sN}, s{sT2}"])
    L([f"s_mul_i32 s{sUOFF}, s{sG}, {40*1280}", f"s_lshr_b32 s{sT2}, s{sW}, 1", f"s_lshl_b32 s{sT2}, s{sT2}, 7", f"s_add_u32 s{sUOFF}, s{sUOFF}, s{sT2}",
       f"s_mul_i32 s{sM0U}, s{sW}, 5120"])
    L([f"s_mul_i32 s{sT2}, s{sG}, 192", f"s_bitcmp1_b32 s{sG}, 0",
       f"s_cselect_b32 s{sT3}, 64, 0", f"s_cselect_b32 s{sT4}, 0, 128", f"s_add_u32 s{sMOFF}, s{sT2}, s{sT3}", f"s_add_u32 s{sMOFFB}, s{sT2}, s{sT4}",
       f"s_lshr_b32 s{sT2}, s{sW}, 1",
       f"s_mul_i32 s{sT3}, s{sT2}, {32*3072}", f"s_add_u32 s{sMOFF}, s{sMOFF}, s{sT3}",
       f"s_mul_i32 s{sT3}, s{sT2}, {64*3072}", f"s_add_u32 s{sMOFFB}, s{sMOFFB}, s{sT3}",
       f"s_lshl_b32 s{sM0A}, s{sW}, 12"])
    L([f"s_lshl_b32 s{sT3}, s{sC}, 1", f"s_add_u32 s{sT3}, s{sT3}, s{sT2}", f"s_mul_i32 s{sA2H}, s{sT3}, {88*4096}",
       f"s_and_b32 s{sT3}, s{sW}, 1", f"s_lshl_b32 s{sT3}, s{sT3}, 11", f"s_add_u32 s{sA2H}, s{sA2H}, s{sT3}",
       f"s_mul_i32 s{sT3}, s{sG}, 3", f"s_add_u32 s{sT3}, s{sT3}, 40", f"s_and_b32 s{sT4}, s{sG}, 1",
       f"s_add_u32 s{sKSA}, s{sT3}, s{sT4}", f"s_lshl_b32 s{sKSA}, s{sKSA}, 12", f"s_add_u32 s{sKSA}, s{sKSA}, s{sA2H}",
       f"s_xor_b32 s{sT4}, s{sT4}, 1", f"s_lshl_b32 s{sT4}, s{sT4}, 1",
       f"s_add_u32 s{sKSB}, s{sT3}, s{sT4}", f"s_lshl_b32 s{sKSB}, s{sKSB}, 12", f"s_add_u32 s{sKSB}, s{sKSB}, s{sA2H}"])
    L([f"s_lshl_b32 s{sT3}, s{sG}, 4", f"s_add_u32 s{sT4}, s{sT3}, s{sC}", f"s_mul_i32 s{sT4}, s{sT4}, 640", f"s_add_u32 s{sT4}, s{sT4}, {WS_S}",
       f"s_cmp_eq_u32 s{sW}, 3", f"s_cselect_b32 s{sSST}, s{sT4}, {OOB}"])
    for jj, sl in enumerate((sLB0, sLB1, sLB2, sLB3)):
        L([f"s_lshl_b32 s{sT4}, s{sW}, 2", f"s_add_u32 s{sT4}, s{sT4}, s{sC}", f"s_add_i32 s{sT4}, s{sT4}, {jj-16}",
           f"s_add_u32 s{sT5}, s{sT3}, s{sT4}", f"s_mul_i32 s{sT5}, s{sT5}, 640", f"s_add_u32 s{sT5}, s{sT5}, {WS_S}",
           f"s_cmp_ge_i32 s{sT4}, 0", f"s_cselect_b32 s{sl}, s{sT5}, {OOB}"])
    L([f"s_lshl_b32 s{sT3}, s{sC}, 2", f"s_add_u32 s{sT3}, s{sT3}, s{sW}", f"s_lshl_b32 s{sT3}, s{sT3}, 8", f"s_add_u32 s{sT3}, s{sT3}, {WS_STAT}",
       f"s_cmp_eq_u32 s{sG}, 0", f"s_cselect_b32 s{sSTATO}, s{sT3}, {OOB}"])
    for cf in range(5):
        L([f"s_mul_i32 s{sT2}, s{sG}, 5", f"s_add_u32 s{sT2}, s{sT2}, {cf}", f"s_and_b32 s{sT4}, s{sT2}, 3", f"s_lshr_b32 s{sT2}, s{sT2}, 2",
           f"s_lshl_b32 s{sT2}, s{sT2}, 12", f"s_lshl_b32 s{sT4}, s{sT4}, 8", f"s_add_u32 s{sT2}, s{sT2}, s{sT4}", f"s_add_u32 s{sHO[cf]}, s{sT2}, s{sA2H}"])
    L([f"s_mul_i32 s{sP2A}, s{sRT}, {88*4096}", f"s_mul_i32 s{sP2W}, s{sN}, {88*5120}", f"s_add_u32 s{sP2W}, s{sP2W}, {WS_W2P}"])
    if "A" in opt.fakehit: E(f"s_mov_b32 s{sP2A}, 0")
    if "W" in opt.fakehit: E(f"s_mov_b32 s{sP2W}, {WS_W2P}")
    L(ptr_bases())

cAR, cAI, cKR, cKI = 56, 57, 58, 59
cA8, cA32, cA32W, cA128, cOM = 60, 62, 64, 66, 68
def constants():
    lre, lim, ldt = vT[4], vT[5], vT[6]
    t = list(range(72, 96))
    L([f"v_lshlrev_b32 v{lre}, 16, v{lre}", f"v_lshlrev_b32 v{lim}, 16, v{lim}", f"v_lshlrev_b32 v{ldt}, 16, v{ldt}",
       f"v_mul_f32 v{t[0]}, {LOG2E}, v{ldt}", f"v_exp_f32 v{t[0]}, v{t[0]}",
       f"v_cvt_pk_bf16_f32 v{t[0]}, v{t[0]}, v{t[0]}", f"v_lshlrev_b32 v{t[0]}, 16, v{t[0]}",
       f"v_mul_f32 v{t[1]}, v{t[0]}, v{lre}", f"v_mul_f32 v{t[2]}, v{t[0]}, v{lim}",
       f"v_mul_f32 v{t[1]}, {LOG2E}, v{t[1]}", f"v_exp_f32 v{t[1]}, v{t[1]}",
       f"v_mul_f32 v{t[2]}, {INV2PI}, v{t[2]}", f"v_rndne_f32 v{t[3]}, v{t[2]}", f"v_sub_f32 v{t[2]}, v{t[2]}, v{t[3]}",
       f"v_cos_f32 v{t[3]}, v{t[2]}", f"v_sin_f32 v{t[4]}, v{t[2]}",
       f"v_mul_f32 v{cAR}, v{t[1]}, v{t[3]}", f"v_mul_f32 v{cAI}, v{t[1]}, v{t[4]}",
       f"v_add_f32 v{t[3]}, -1.0, v{cAR}",
       f"v_mul_f32 v{t[5]}, v{lre}, v{lre}", f"v_fmac_f32 v{t[5]}, v{lim}, v{lim}", f"v_rcp_f32 v{t[5]}, v{t[5]}",
       f"v_mul_f32 v{t[6]}, v{t[3]}, v{lre}", f"v_fmac_f32 v{t[6]}, v{cAI}, v{lim}",
       f"v_mul_f32 v{t[7]}, v{cAI}, v{lre}", f"v_fma_f32 v{t[7]}, -v{t[3]}, v{lim}, v{t[7]}",
       f"v_add_f32 v{t[5]}, v{t[5]}, v{t[5]}",
       f"v_mul_f32 v{cKR}, v{t[6]}, v{t[5]}", f"v_mul_f32 v{cKI}, v{t[7]}, v{t[5]}"])
    r, i, tt = t[8], t[9], t[0]
    L([f"v_mov_b32 v{r}, v{cAR}", f"v_sub_f32 v{i}, 0, v{cAI}"])
    L(csq(t[10], t[11], r, i, tt)); L(csq(r, i, t[10], t[11], tt))
    L(csq(cA8, cA8+1, r, i, tt))
    L(csq(r, i, cA8, cA8+1, tt))
    L(csq(cA32, cA32+1, r, i, tt))
    L(csq(t[12], t[13], cA32, cA32+1, tt))
    L(csq(cA128, cA128+1, t[12], t[13], tt))
    L(csq(r, i, cA128, cA128+1, tt))
    L(csq(t[14], t[15], r, i, tt))
    L(csq(t[16], t[17], t[14], t[15], tt))
    def sel(dst, src, mask, on):
        if on:
            return [f"v_cndmask_b32 v{dst}, 1.0, v{src}, s[{mask}:{mask+1}]", f"v_cndmask_b32 v{dst+1}, 0, v{src+1}, s[{mask}:{mask+1}]"]
        return [f"v_mov_b32 v{t[22]}, 1.0", f"v_mov_b32 v{t[23]}, 0",
                f"v_cndmask_b32 v{dst}, v{src}, v{t[22]}, s[{mask}:{mask+1}]", f"v_cndmask_b32 v{dst+1}, v{src+1}, v{t[23]}, s[{mask}:{mask+1}]"]
    L([f"s_bitcmp1_b32 s{sW}, 0", f"s_cselect_b64 s[{sEX0}:{sEX0+1}], -1, 0", f"s_bitcmp1_b32 s{sW}, 1", f"s_cselect_b64 s[{sEX2}:{sEX2+1}], -1, 0"])
    L(sel(t[18], cA32, sEX0, True)); L(sel(t[20], t[12], sEX2, True))
    L(cmul(cA32W, cA32W+1, t[18], t[19], t[20], t[21], tt))
    L(sel(t[18], t[14], sEX0, False)); L(sel(t[20], t[16], sEX2, False))
    L(cmul(cOM, cOM+1, t[18], t[19], t[20], t[21], tt))

def nonce_seed():
    sd = vT[7]
    L([f"s_mov_b32 s{sT2}, 1664525", f"v_mul_lo_u32 v{sd}, v{sd}, s{sT2}", f"v_add_u32 v{vNON}, 1013904223, v{sd}", f"v_mov_b32 v{vNON+1}, 1"])
    E(f"buffer_store_dword v{vNON}, off, s[{sWS}:{sWS+3}], s{sSEEDO} sc1", tok="seed")
def nonce_publish():
    return [f"s_cmp_lt_u32 s{sSEEDO}, {OOB}", f"s_cselect_b32 s{sT5}, 0, {OOB}", "@waitvm seed",
            f"buffer_store_dwordx2 v[{vNON}:{vNON+1}], off, s[{sDBG}:{sDBG+3}], s{sT5} sc1"]

lab = [0]
def poll(load_text, check):
    lab[0] += 1
    n = lab[0]
    r = list(check)
    r += [f"s_cbranch_vccz L_ok{n}", "@raw_begin", f"s_mov_b32 s{sCNT}, {0x4000 if opt.diag else 0x40000}", f"L_rt{n}:", "s_sleep 1"]
    r += [t.text if isinstance(t, I) else t for t in load_text]
    r += ["s_waitcnt vmcnt(0)", "s_nop 1"] + list(check) + [f"s_cbranch_vccz L_ok{n}", f"s_sub_u32 s{sCNT}, s{sCNT}, 1",
          f"s_cmp_lg_u32 s{sCNT}, 0", f"s_cbranch_scc1 L_rt{n}"]
    if opt.diag: r += [f"buffer_store_dword v{vLANE}, off, s[{sDBG}:{sDBG+3}], 0 offset:{32+4*n} sc1", "s_waitcnt vmcnt(0)"]
    r += ["s_nop 7", "@raw_end", f"L_ok{n}:"]
    return r
def nonce_load():
    return [f"buffer_load_dwordx2 v[{vNON}:{vNON+1}], off, s[{sDBG}:{sDBG+3}], 0 sc1"]
def nonce_get():
    return poll(nonce_load(), [f"v_cmp_ne_u32 vcc, 1, v{vNON+1}"]) + [f"v_readfirstlane_b32 s{sNONCE}, v{vNON}"]

sS0, sS1, sQ0, sQ1 = vT[8], vT[9], vT[10], vT[11]
vR = [vT[12], vT[14]]; vNB = [vT[13], vT[15]]
vM = [vT[16], vT[17]]
vONES = vT[18]
def x_arrive(f, filler=None, limit=60):
    fa = atoms(II(filler or []))
    tot = sum(len(a) for a in fa); chunks = [[] for _ in range(10)]; acc = 0
    for a in fa:
        chunks[min(9, acc * 10 // max(tot, 1))] += a; acc += len(a)
    if not opt.mstat: L([f"v_mov_b32 v{sS0}, 0", f"v_mov_b32 v{sS1}, 0", f"v_mov_b32 v{sQ0}, 0", f"v_mov_b32 v{sQ1}, 0"])
    def st(s):
        r = []
        if opt.mstat:
            c0 = "0" if s == 0 else ar(aSS); c1 = "0" if s == 0 else ar(aSQ)
            return [f"v_mfma_f32_16x16x32_bf16 {ar(aSS)}, {ar(aONE)}, {vr(X(f, s))}, {c0}",
                    f"v_mfma_f32_16x16x32_bf16 {ar(aSQ)}, {vr(X(f, s))}, {vr(X(f, s))}, {c1}"]
        for k in range(4):
            x = X(f, s) + k
            r += [f"v_dot2_f32_bf16 v{(sS0, sS1)[k&1]}, v{x}, v{vONES}, v{(sS0, sS1)[k&1]}",
                  f"v_dot2_f32_bf16 v{(sQ0, sQ1)[k&1]}, v{x}, v{x}, v{(sQ0, sQ1)[k&1]}"]
        return r
    for S in range(10):
        E(f"@waitvm x{f}_{S}")
        for sh in range(2):
            E(f"ds_read_b128 {vr(X(f, 2*S+sh))}, v{vRX[sh]} offset:{S*2048}", tok=f"xr{f}_{2*S+sh}")
        fl = chunks[S]
        L(ST.next(2 if ST.n % 2 == 0 or True else 1, limit))
        if S > 0:
            E(f"@waitds xr{f}_{2*S-1}")
            L(st(2*S-2)); L(st(2*S-1))
        L(fl)
    E("@waitds0")
    return st(18) + st(19)

aONE, aSS, aSQ = 216, 220, 224
def x_stats(f):
    a, b = vT[19], vT[20]
    r = [f"v_add_f32 v{sS0}, v{sS0}, v{sS1}", f"v_add_f32 v{sQ0}, v{sQ0}, v{sQ1}"]
    if opt.mstat:
        t = vT[8:12]
        r = [f"v_and_b32 v{a}, 15, v{vLANE}", f"v_lshrrev_b32 v{b}, 2, v{a}", f"v_lshl_add_u32 v{b}, v{b}, 4, v{a}", f"v_lshlrev_b32 v{b}, 2, v{b}",
             f"v_and_b32 v{a}, 3, v{vLANE}", f"v_cmp_eq_u32 s[{sEX0}:{sEX0+1}], 1, v{a}", f"v_cmp_eq_u32 s[{sEX2}:{sEX2+1}], 2, v{a}", f"v_cmp_eq_u32 vcc, 3, v{a}"]
        r += [f"v_accvgpr_read_b32 v{t[k]}, a{aSQ+k}" for k in range(4)]
        r += [f"v_cndmask_b32 v{t[0]}, v{t[0]}, v{t[1]}, s[{sEX0}:{sEX0+1}]", f"v_cndmask_b32 v{t[2]}, v{t[2]}, v{t[3]}, vcc",
              f"v_cndmask_b32 v{t[0]}, v{t[0]}, v{t[2]}, s[{sEX2}:{sEX2+1}]", f"v_cndmask_b32 v{t[0]}, v{t[0]}, v{t[2]}, vcc",
              f"ds_bpermute_b32 v{sQ0}, v{b}, v{t[0]}", f"v_accvgpr_read_b32 v{sS0}, a{aSS}"]
    for perm in (() if opt.mstat else ("v_permlane16_swap_b32", "v_permlane32_swap_b32")):
        r += [f"v_mov_b32 v{a}, v{sS0}", f"v_mov_b32 v{b}, v{sQ0}", f"{perm} v{a}, v{sS0}", f"{perm} v{b}, v{sQ0}",
              f"v_add_f32 v{sS0}, v{sS0}, v{a}", f"v_add_f32 v{sQ0}, v{sQ0}, v{b}"]
    inv = "0x3acccccd"
    r += [f"v_mul_f32 v{sS0}, {inv}, v{sS0}", f"v_mul_f32 v{sQ0}, {inv}, v{sQ0}",
          f"v_fma_f32 v{sQ0}, -v{sS0}, v{sS0}, v{sQ0}", f"v_max_f32 v{sQ0}, 0, v{sQ0}",
          f"v_cvt_pk_bf16_f32 v{a}, v{sS0}, v{sQ0}",
          f"v_lshlrev_b32 v{vM[f]}, 16, v{a}", f"v_and_b32 v{b}, 0xffff0000, v{a}",
          f"v_add_f32 v{b}, 0x3727c5ac, v{b}",
          f"v_cvt_pk_bf16_f32 v{b}, v{b}, v{b}", f"v_and_b32 v{b}, 0xffff0000, v{b}",
          f"v_sqrt_f32 v{b}, v{b}", f"v_cvt_pk_bf16_f32 v{b}, v{b}, v{b}", f"v_and_b32 v{b}, 0xffff0000, v{b}",
          f"v_rcp_f32 v{vR[f]}, v{b}", f"v_mul_f32 v{vNB[f]}, v{vM[f]}, v{vR[f]}", f"v_sub_f32 v{vNB[f]}, 0, v{vNB[f]}"]
    return r

def norm_step(f, s, packed, tmp):
    r = []
    for k in range(4):
        x = X(f, s) + k
        t = tmp[(k & 1) * 2]
        if packed:
            r += [f"v_lshlrev_b32 v{t}, 16, v{x}", f"v_and_b32 v{t+1}, 0xffff0000, v{x}",
                  f"v_pk_fma_f32 v[{t}:{t+1}], v[{t}:{t+1}], v[{vR[f]}:{vR[f]+1}], v[{vR[f]}:{vR[f]+1}] op_sel:[0,0,1] op_sel_hi:[1,0,1]",
                  f"v_cvt_pk_bf16_f32 v{x}, v{t}, v{t+1}"]
        else:
            r += [f"v_lshlrev_b32 v{t}, 16, v{x}", f"v_and_b32 v{t+1}, 0xffff0000, v{x}",
                  f"v_fma_f32 v{t}, v{t}, v{vR[f]}, v{vNB[f]}", f"v_fma_f32 v{t+1}, v{t+1}, v{vR[f]}, v{vNB[f]}",
                  f"v_cvt_pk_bf16_f32 v{x}, v{t}, v{t+1}"]
    return r

def stats_store():
    a, b = vT[0], vT[1]
    r = [f"v_and_b32 v{a}, 12, v{vLANE}", f"v_add_u32 v{a}, v{a}, v{vLANE}", f"v_lshlrev_b32 v{a}, 3, v{a}",
         f"v_mov_b32 v{b}, {OOB}", f"v_cmp_gt_u32 vcc, 16, v{vLANE}", f"v_cndmask_b32 v{a}, v{b}, v{a}, vcc"]
    for f in range(2):
        r.append(I(f"buffer_store_dwordx2 v[{vR[f]}:{vR[f]+1}], v{a}, s[{sWS}:{sWS+3}], s{sSTATO} offen offset:{32*f} sc1", tok="stat"))
    return r

def mlp_dma_addr(kind):
    vD = vDB if kind == "B" else globals()["vD"]
    t0, t1, t2 = vD[1], vD[2], vD[3]
    if kind == "A":
        r = [f"v_lshrrev_b32 v{t0}, 3, v{vLANE}", f"v_and_b32 v{t1}, 7, v{vLANE}", f"v_and_b32 v{t2}, 2, v{t0}", f"v_lshlrev_b32 v{t2}, 1, v{t2}",
             f"v_xor_b32 v{t1}, v{t1}, v{t2}", f"v_lshlrev_b32 v{t1}, 4, v{t1}",
             f"v_mul_u32_u24 v{t0}, 3072, v{t0}", f"v_add_u32 v{vD[0]}, v{t0}, v{t1}"]
        rows = 8
    else:
        r = [f"v_lshrrev_b32 v{t0}, 2, v{vLANE}", f"v_and_b32 v{t1}, 3, v{vLANE}", f"v_lshlrev_b32 v{t1}, 4, v{t1}",
             f"v_mul_u32_u24 v{t0}, 3072, v{t0}", f"v_add_u32 v{vD[0]}, v{t0}, v{t1}"]
        rows = 16
    for p in range(1, 4):
        r.append(f"v_add_u32 v{vD[p]}, {p*(rows*3072 - 1024)}, v{vD[0]}")
    if kind == "B": r.append(f"v_add_u32 v{vRB2}, 0x10000, v{vRB}")
    return r

def b_off(m): return f"s_add_u32 s{sD2}, s{sKA[m - 10]}, s{sMOFFB}"
def dma_M(m):
    if "m" in opt.skip and m >= 4:
        i = I("s_nop 0"); i.tok = f"M{m}"; return [i]
    slot = m % 4 if m < 10 else BSLOT[m]
    vD = globals()["vD"] if m < 10 else vDB
    if m < 10:
        sreg = sD0 if m & 1 else sKA[m >> 1]
        so = [f"s_add_u32 s{sD0}, s{sKA[m >> 1]}, {64*3072}"] if m & 1 else []
    if m >= 10:
        r = []
        for p in range(4):
            r += [f"s_add_u32 m0, s{sM0A}, {slot*16384}"] + ([b_off(m)] if p == 0 else ["s_nop 0"])
            r.append(I(f"buffer_load_dwordx4 v{vD[p]}, s[{sWM}:{sWM+3}], s{sD2} offen offset:{p*1024} {opt.w_flags} lds", tok=f"M{m}"))
        return r
    r = [f"s_add_u32 m0, s{sM0A}, {slot*16384}"] + so
    for p in range(4):
        r.append(I(f"buffer_load_dwordx4 v{vD[p]}, s[{sWM}:{sWM+3}], s{sreg} offen offset:{p*1024} {opt.w_flags} lds", tok=f"M{m}"))
    return r

def w13_touch_addr():
    a, b = vT[5], vT[6]
    return [f"v_lshrrev_b32 v{a}, 1, v{vLANE}", f"v_mul_u32_u24 v{a}, 3072, v{a}", f"v_and_b32 v{b}, 1, v{vLANE}", f"v_lshl_add_u32 v{a}, v{b}, 7, v{a}",
            f"v_accvgpr_write_b32 a238, v{a}", f"v_mov_b32 v{b}, {OOB}", f"v_cmp_gt_u32 vcc, 16, v{vLANE}", f"v_cndmask_b32 v{a}, v{b}, v{a}, vcc",
            f"v_accvgpr_write_b32 a239, v{a}",
            f"s_and_b32 s{sT2}, s{sC}, 7", f"s_lshl_b32 s{sT2}, s{sT2}, 1", f"s_lshr_b32 s{sT3}, s{sW}, 1", f"s_add_u32 s{sT2}, s{sT2}, s{sT3}",
            f"s_mul_i32 s{sT2}, s{sT2}, {40*3072}", f"s_mul_i32 s{sT3}, s{sG}, 192", f"s_and_b32 s{sT3}, s{sT3}, 0xffffff80", f"s_add_u32 s{sD2}, s{sT2}, s{sT3}"]
def w13_touch():
    a = I(f"buffer_load_dword a228, v{vFLAG}, s[{sWM}:{sWM+3}], s{sD2} offen", tok="TW"); a.lines = 64
    b = I(f"buffer_load_dword a228, v{vFLAG}, s[{sWM}:{sWM+3}], s{sD2} offen", tok="TW"); b.lines = 16
    return [[f"v_accvgpr_read_b32 v{vFLAG}, a238", a], [f"v_accvgpr_read_b32 v{vFLAG}, a239", f"s_add_u32 s{sD2}, s{sD2}, {32*3072}", b]]

def delay(tag, mod, val, ticks):
    if not opt.delay: return []
    return ["@raw_begin", f"s_and_b32 s{sD0}, s2, {mod}", f"s_cmp_eq_u32 s{sD0}, {val}", f"s_cbranch_scc0 L_dl{tag}",
            f"s_memrealtime s[{sSTAMP}:{sSTAMP+1}]", "s_waitcnt lgkmcnt(0)", f"s_mov_b32 s{sD1}, s{sSTAMP}", f"L_dw{tag}:",
            f"s_memrealtime s[{sSTAMP}:{sSTAMP+1}]", "s_waitcnt lgkmcnt(0)", f"s_sub_u32 s{sD0}, s{sSTAMP}, s{sD1}",
            f"s_cmp_lt_u32 s{sD0}, {ticks*opt.delay}", f"s_cbranch_scc1 L_dw{tag}", f"L_dl{tag}:", "@raw_end"]

def skew(tag):
    if not opt.skew: return []
    return [f"s_bitcmp1_b32 s{sW}, 0", f"s_cbranch_scc1 L_sk{tag}a", "s_nop 0", f"L_sk{tag}a:", f"s_bitcmp1_b32 s{sW}, 1", f"s_cbranch_scc1 L_sk{tag}b", "s_nop 1", f"L_sk{tag}b:"]

def mlp_read_addr():
    G, r_, c, t, u = vT[19], vT[20], vT[21], vT[22], vT[23]
    return [f"v_lshrrev_b32 v{G}, 4, v{vLANE}", f"v_bfe_u32 v{r_}, v{vLANE}, 2, 2", f"v_and_b32 v{c}, 3, v{vLANE}",
         f"v_lshrrev_b32 v{t}, 1, v{G}", f"v_lshlrev_b32 v{t}, 11, v{t}", f"v_lshl_add_u32 v{t}, v{r_}, 7, v{t}",
         f"v_and_b32 v{u}, 1, v{c}", f"v_lshl_add_u32 v{t}, v{u}, 3, v{t}",
         f"v_and_b32 v{u}, 1, v{G}", f"v_lshlrev_b32 v{u}, 1, v{u}", f"v_lshrrev_b32 v{vRA[1]}, 1, v{c}", f"v_add_u32 v{u}, v{u}, v{vRA[1]}",
         f"v_lshrrev_b32 v{vRA[1]}, 1, v{r_}", f"v_lshlrev_b32 v{vRA[1]}, 2, v{vRA[1]}", f"v_xor_b32 v{u}, v{u}, v{vRA[1]}",
         f"v_lshl_add_u32 v{vRA[0]}, v{u}, 4, v{t}", f"v_xor_b32 v{vRA[1]}, 64, v{vRA[0]}",
         f"v_lshrrev_b32 v{t}, 1, v{G}", f"v_lshlrev_b32 v{t}, 10, v{t}", f"v_lshl_add_u32 v{t}, v{r_}, 6, v{t}",
         f"v_and_b32 v{u}, 1, v{G}", f"v_lshl_add_u32 v{t}, v{u}, 5, v{t}", f"v_lshl_add_u32 v{vRB}, v{c}, 3, v{t}",
         f"v_lshlrev_b32 v{u}, 10, v{u}", f"v_lshrrev_b32 v{t}, 1, v{G}", f"v_lshl_add_u32 v{u}, v{t}, 8, v{u}",
         f"v_and_b32 v{t}, 15, v{vLANE}", f"v_lshl_add_u32 v{vHH}, v{t}, 4, v{u}"]

def relayout_issue():
    u, t0, t1, t2 = sT2, vT[5], vT[6], vT[7]
    vo = vT[0:5]
    r = [f"s_lshl_b32 s{u}, s{sW}, 5", f"s_add_u32 s{u}, s{u}, s{sRT}",
       f"s_mul_i32 s{sT3}, s{sN}, 88", f"s_add_u32 s{sT3}, s{sT3}, s{u}", f"s_mul_i32 s{sT3}, s{sT3}, 5120", f"s_add_u32 s{sT3}, s{sT3}, {WS_W2P}",
       f"s_cmp_lt_u32 s{u}, 88", f"s_cselect_b32 s{sRLST}, s{sT3}, {OOB}",
       f"s_mov_b32 s{sRL+3}, 0x20000", f"s_cmp_lt_u32 s{u}, 40", "@arm", "s_cbranch_scc0 L_rlw",
       f"s_cmp_lt_u32 s{u}, 20", f"s_cselect_b32 s{sRL}, s{pCRE}, s{pCIM}", f"s_cselect_b32 s{sRL+1}, s{pCRE+1}, s{pCIM+1}",
       f"s_cselect_b32 s{sT3}, 0, 20", f"s_sub_u32 s{sT3}, s{u}, s{sT3}", f"s_lshl_b32 s{sT3}, s{sT3}, 6",
       f"s_mul_i32 s{sT4}, s{sN}, {80*1280}", f"s_add_u32 s{sRLOFF}, s{sT3}, s{sT4}",
       f"s_mov_b32 s{sRL+2}, {640*1280}",
       f"v_lshrrev_b32 v{t0}, 2, v{vLANE}", f"v_and_b32 v{t1}, 3, v{vLANE}", f"v_lshlrev_b32 v{t1}, 4, v{t1}",
       f"v_mul_u32_u24 v{t0}, 1280, v{t0}", f"v_add_u32 v{vo[0]}, v{t0}, v{t1}"]
    for e in range(1, 5): r.append(f"v_add_u32 v{vo[e]}, {e*16*1280}, v{vo[0]}")
    r += ["s_branch L_rlj", "@else", "L_rlw:",
       f"s_mov_b32 s{sRL}, s{pW2}", f"s_mov_b32 s{sRL+1}, s{pW2+1}",
       f"s_cmp_lt_u32 s{u}, 88", f"s_cselect_b32 s{sRL+2}, {1536*1280}, 0",
       f"s_sub_u32 s{sT3}, s{u}, 40", f"s_mul_i32 s{sT3}, s{sT3}, {32*1280}", f"s_mul_i32 s{sT4}, s{sN}, 160", f"s_add_u32 s{sRLOFF}, s{sT3}, s{sT4}",
       f"s_mov_b32 s{sT4}, 6554"]
    for p in range(5):
        r += [f"v_add_u32 v{t0}, {64*p}, v{vLANE}", f"v_mul_u32_u24 v{t1}, s{sT4}, v{t0}", f"v_lshrrev_b32 v{t1}, 16, v{t1}",
              f"v_mul_u32_u24 v{t2}, 10, v{t1}", f"v_sub_u32 v{t2}, v{t0}, v{t2}", f"v_lshlrev_b32 v{t2}, 4, v{t2}",
              f"v_mul_u32_u24 v{t1}, 1280, v{t1}", f"v_add_u32 v{vo[p]}, v{t1}, v{t2}"]
    r += ["@endarm", "L_rlj:", f"s_and_b32 s{sRL+1}, s{sRL+1}, 0xffff"]
    r += [f"v_accvgpr_write_b32 a{232+p}, v{vo[p]}" for p in range(5)]
    return r
def relayout_dma():
    vo = vT[0:5]
    r = []
    if "r" in opt.skip: return r
    for p in range(5):
        r.append([f"s_add_u32 m0, s{sM0U}, {L_RL + p*1024}", f"v_accvgpr_read_b32 v3, a{232+p}",
                  I(f"buffer_load_dwordx4 v3, s[{sRL}:{sRL+3}], s{sRLOFF} offen {'nt' if opt.rl_nt else ''} lds", tok="RL")])
    return r

def relayout_raddr():
    t0, t1, t2 = vT[5], vT[6], vT[7]
    return [f"v_and_b32 v{t0}, 15, v{vLANE}", f"v_lshrrev_b32 v{t1}, 4, v{vLANE}", f"v_lshlrev_b32 v{t1}, 4, v{t1}", f"v_lshl_add_u32 v{t0}, v{t0}, 6, v{t1}",
            f"v_lshrrev_b32 v{t1}, 2, v{vLANE}", f"v_and_b32 v{t2}, 8, v{t1}", f"v_add_u32 v{t1}, v{t1}, v{t2}", f"v_mul_u32_u24 v{t1}, 160, v{t1}",
            f"v_and_b32 v{t2}, 3, v{vLANE}", f"v_lshl_add_u32 v{t1}, v{t2}, 3, v{t1}",
            f"s_lshl_b32 s{sT2}, s{sW}, 5", f"s_add_u32 s{sT2}, s{sT2}, s{sRT}", f"s_cmp_lt_u32 s{sT2}, 40", f"s_cselect_b64 s[{sEX0}:{sEX0+1}], -1, 0",
            f"s_cselect_b32 s{sRLT}, 1, 0", f"s_add_u32 s{sT3}, s{sM0U}, {L_RL}",
            f"v_cndmask_b32 v{t0}, v{t1}, v{t0}, s[{sEX0}:{sEX0+1}]", f"v_add_u32 v{t0}, s{sT3}, v{t0}", f"v_accvgpr_write_b32 a237, v{t0}"]
def relayout_finish():
    if "r" in opt.skip: return []
    t0 = vT[0]
    r = [f"v_accvgpr_read_b32 v{t0}, a237", "@waitvm RL", f"s_cmp_eq_u32 s{sRLT}, 1", "s_cbranch_scc0 L_rfw"]
    for e in range(5):
        for h in range(2): r.append(f"ds_read_b64 {ar(aRL+4*e+2*h, 2)}, v{t0} offset:{e*1024 + 8*h}")
    r += ["@raw_begin", "s_branch L_rfj", "L_rfw:"]
    for e in range(5):
        for jj in range(2): r.append(f"ds_read_b64_tr_b16 {ar(aRL+4*e+2*jj, 2)}, v{t0} offset:{jj*1280 + e*32}")
    r += ["@raw_end", "L_rfj:"]
    for e in range(5):
        if e < 4: r.append(I(f"buffer_store_dwordx4 {ar(aRL+4*e)}, v{vL16}, s[{sWS}:{sWS+3}], s{sRLST} offen offset:{e*1024} sc1", tok="RLS"))
        else: r.append(I(f"buffer_store_dwordx4 {ar(aRL+4*e)}, v{vW4}, s[{sWS}:{sWS+3}], s{sRLST} offen sc1", tok="RLS"))
    return r

def flag_store(base, sline, sidx):
    reg = {WS_FLW: sFW, WS_FLHA: sFHA, WS_FLHH: sFHH, WS_FLH: sFH}[base]
    return [f"buffer_store_dword v{vNON}, off, s[{sWS}:{sWS+3}], s{reg} sc1"]
def late_offsets():
    r = [f"s_sub_u32 s{sMOFFB}, s{sMOFFB}, s{sMOFF}"]
    for j in range(5): r += [f"s_mul_i32 s{sKA[j]}, s{sKU[j]}, 1536", f"s_add_u32 s{sKA[j]}, s{sKA[j]}, s{sMOFF}"]
    r += [f"s_lshl_b32 s{sT2}, s{sN}, 7", f"s_lshl_b32 s{sT3}, s{sRT}, 2", f"s_add_u32 s{sT2}, s{sT2}, s{sT3}", f"s_add_u32 s{sT2}, s{sT2}, {WS_FLW}",
          f"s_lshl_b32 s{sT3}, s{sC}, 7", f"s_lshl_b32 s{sT4}, s{sG}, 2", f"s_add_u32 s{sT3}, s{sT3}, s{sT4}",
          f"s_cmp_eq_u32 s{sW}, 0", f"s_cselect_b32 s{sFW}, s{sT2}, {OOB}", f"s_cselect_b32 s{sT3}, s{sT3}, {OOB}",
          f"s_add_u32 s{sFHA}, s{sT3}, {WS_FLHA}", f"s_add_u32 s{sFHH}, s{sT3}, {WS_FLHH}", f"s_add_u32 s{sFH}, s{sT3}, {WS_FLH}",
          f"s_lshr_b32 s{sFL}, s{sRT}, 1", f"s_lshl_b32 s{sFL}, s{sFL}, 7"]
    return r
def flag_load(base, sline, shift, mask, st=None):
    st = sD0 if st is None else st
    if base == WS_FLW:
        pre = [f"s_lshl_b32 s{st}, s{sN}, 7", f"s_add_u32 s{st}, s{st}, {base}"]
    else:
        pre = [f"s_add_u32 s{st}, s{sFL}, {base}"]
    return pre + [f"v_and_b32 v{vFLAG}, {mask}, v{vLANE}", f"v_lshlrev_b32 v{vFLAG}, 2, v{vFLAG}",
                  f"buffer_load_dword v{vFLAG}, v{vFLAG}, s[{sWS}:{sWS+3}], s{st} offen sc1"]
sNN = 100
def sflag_load(base):
    return [f"s_lshr_b32 s{sD0}, s{sRT}, 1", f"s_lshl_b32 s{sD0}, s{sD0}, 7", f"s_add_u32 s{sD0}, s{sD0}, {base}", f"s_add_u32 s{sD1}, s{sD0}, 32",
            f"s_load_dwordx8 s[56:63], s[{pWS}:{pWS+1}], s{sD0} glc", f"s_load_dwordx8 s[76:83], s[{pWS}:{pWS+1}], s{sD1} glc"]
def sflag_check(base):
    lab[0] += 1
    n = lab[0]
    r = ["@waitds0"]
    for k in (56, 58, 60, 62, 76, 78, 80, 82): r.append(f"s_xor_b64 s[{k}:{k+1}], s[{k}:{k+1}], s[{sNN}:{sNN+1}]")
    for a, b in ((56, 58), (60, 62), (76, 78), (80, 82), (56, 60), (76, 80), (56, 76)): r.append(f"s_or_b64 s[{a}:{a+1}], s[{a}:{a+1}], s[{b}:{b+1}]")
    ld = flag_load(base, sRT, 1, 15, sD0); chk = [f"v_cmp_ne_u32 vcc, s{sNONCE}, v{vFLAG}"]
    r += [f"s_cbranch_scc0 L_ok{n}", "@raw_begin", f"s_mov_b32 s{sCNT}, {0x4000 if opt.diag else 0x40000}", f"L_rt{n}:"] + ld
    r += ["s_waitcnt vmcnt(0)", "s_nop 1"] + chk + [f"s_cbranch_vccz L_ok{n}", "s_sleep 1", f"s_sub_u32 s{sCNT}, s{sCNT}, 1",
          f"s_cmp_lg_u32 s{sCNT}, 0", f"s_cbranch_scc1 L_rt{n}", "s_nop 7", "@raw_end", f"L_ok{n}:"]
    return r
def fl_load(base): return sflag_load(base) if opt.sflag else flag_load(base, sRT, 1, 15)
def fl_check(base): return sflag_check(base) if opt.sflag else flag_check(base, sRT, 1, 15)
def flag_check(base, sline, shift, mask):
    if "f" in opt.skip: return [f"v_mov_b32 v{vFLAG}, 0"]
    return poll(flag_load(base, sline, shift, mask, sD0), [f"v_cmp_ne_u32 vcc, s{sNONCE}, v{vFLAG}"])

def scan_addr():
    col, q, ch, t = vT[19], vT[20], vT[21], vT[22]
    return [f"s_lshl_b32 s{sT2}, s{sW}, 13", f"s_add_u32 s{sT2}, s{sT2}, {L_PRIV}",
            f"v_and_b32 v{col}, 15, v{vLANE}", f"v_lshrrev_b32 v{q}, 4, v{vLANE}",
            f"v_lshl_add_u32 v{vCOLR}, v{col}, 4, s{sT2}",
            f"v_lshl_add_u32 v{vEW}, v{q}, 2, v{vCOLR}",
            f"v_min_u32 v{ch}, 39, v{vLANE}", f"v_lshlrev_b32 v{vSO}, 4, v{ch}",
            f"v_lshrrev_b32 v{t}, 3, v{ch}", f"v_lshlrev_b32 v{t}, 3, v{t}", f"v_add_u32 v{t}, v{t}, v{ch}",
            f"v_lshl_add_u32 v{vER}, v{t}, 4, s{sT2}",
            f"v_add_u32 v{vCH}, s{sT2}, v{vL16}",
            f"s_lshl_b32 s{sT3}, s{sW}, 9", f"s_add_u32 s{sT3}, s{sT3}, {L_TT}", f"v_lshl_add_u32 v{vTT}, v{vLANE}, 3, s{sT3}",
            f"v_lshlrev_b32 v{vLB}, 5, v{vLANE}", f"v_add_u32 v{vLB}, {L_LB}, v{vLB}",
            f"s_add_u32 s{sT3}, s{sM0U}, {L_RL}",
            f"v_lshlrev_b32 v{vTW}, 5, v{col}", f"v_lshl_add_u32 v{vTW}, v{q}, 3, v{vTW}", f"v_add_u32 v{vTW}, s{sT3}, v{vTW}",
            f"v_bfe_u32 v{t}, v{vLANE}, 2, 2", f"v_lshlrev_b32 v{t}, 5, v{t}", f"v_lshl_add_u32 v{t}, v{q}, 8, v{t}",
            f"v_and_b32 v{ch}, 3, v{vLANE}", f"v_lshl_add_u32 v{t}, v{ch}, 3, v{t}", f"v_add_u32 v{vTR}, s{sT3}, v{t}",
            f"v_lshrrev_b32 v{t}, 1, v{q}", f"v_lshlrev_b32 v{t}, 10, v{t}", f"v_lshl_add_u32 v{vHST}, v{col}, 4, v{t}",
            f"v_and_b32 v{t}, 1, v{q}", f"v_mul_u32_u24 v{t}, {20*4096}, v{t}", f"v_add_u32 v{vHST}, v{vHST}, v{t}"]

def const_park():
    src = [cAR, cAI, cKR, cKI] + list(range(60, 70))
    return [f"v_accvgpr_write_b32 a{200+k}, v{s}" for k, s in enumerate(src)]
def const_tables():
    t = vT[0:8]
    r = [f"v_accvgpr_read_b32 v{t[0]}, a200", f"v_accvgpr_read_b32 v{t[1]}, a201", f"v_accvgpr_read_b32 v{t[2]}, a202", f"v_accvgpr_read_b32 v{t[3]}, a203",
         f"v_sub_f32 v{t[3]}, 0, v{t[3]}",
         f"v_mov_b32 v{t[4]}, v{t[0]}", f"v_sub_f32 v{t[5]}, 0, v{t[1]}", f"v_sub_f32 v{t[6]}, 0, v{t[2]}", f"v_mov_b32 v{t[7]}, v{t[3]}",
         f"ds_write_b128 v{vER}, {vr(t[0])} offset:{PV_COL}", f"ds_write_b128 v{vER}, {vr(t[4])} offset:{PV_COL+128}",
         f"ds_write_b128 v{vCH}, {ar(204)} offset:{PV_CH}", f"ds_write_b128 v{vCH}, {ar(208)} offset:{PV_CH+1024}",
         f"ds_write_b64 v{vCH}, {ar(212, 2)} offset:{PV_CH+2048}",
         f"v_mov_b32 v{t[0]}, 0", f"v_mov_b32 v{t[1]}, 0",
         f"s_min_u32 s{sT2}, s{sW}, 2", f"s_lshl_b32 s{sT2}, s{sT2}, 9", f"s_add_u32 s{sT2}, s{sT2}, {L_TT}",
         f"v_lshl_add_u32 v{t[2]}, v{vLANE}, 3, s{sT2}", f"ds_write_b64 v{t[2]}, {vr(t[0], 2)}"]
    return r

def ureg(cf, tau): return U(cf, tau >> 2) + (tau & 3)
DPP = "row_ror:8 row_mask:0xf bank_mask:0xf"
def scan_P12():
    C = vT[0:20]
    r = [I(f"ds_read_b128 {vr(C[4*cf])}, v{vCOLR} offset:{PV_COL + cf*256}", tok="colr") for cf in range(5)]
    r.append("@gap 1")
    t = vT[20:24]
    k = 0
    for tau in range(8):
        for cf in range(5):
            u = ureg(cf, tau); tt = t[k % 4]; k += 1
            r += [f"v_mul_f32_dpp v{tt}, v{u}, v{C[4*cf+3]} {DPP}", f"v_fma_f32 v{u}, v{C[4*cf+2]}, v{u}, v{tt}"]
    for tau in range(1, 8):
        src = [(ureg(cf, 0) if tau == 1 else C[4*cf + 2 + (tau & 1)]) for cf in range(5)]
        dst = [C[4*cf + 2 + ((tau + 1) & 1)] for cf in range(5)]
        for cf in range(5): r.append(f"v_fma_f32 v{dst[cf]}, v{C[4*cf]}, v{src[cf]}, v{ureg(cf, tau)}")
        for cf in range(5): r.append(f"v_fmac_f32_dpp v{dst[cf]}, v{src[cf]}, v{C[4*cf+1]} {DPP}")
    for cf in range(5): r.append(f"ds_write_b32 v{vEW}, v{C[4*cf+2]} offset:{PV_E + cf*256}")
    er, ei, a8 = vT[0], vT[4], vT[8]
    r += [f"ds_read_b128 {vr(a8)}, v{vCH} offset:{PV_CH}",
          f"ds_read_b128 {vr(er)}, v{vER} offset:{PV_E}", f"ds_read_b128 {vr(ei)}, v{vER} offset:{PV_E+128}", "@gap 2"]
    g0, g1 = vT[12], vT[14]
    r += chorner2(g0, g0+1, er, ei, a8, a8+1, er+1, ei+1)
    r += chorner2(g1, g1+1, g0, g0+1, a8, a8+1, er+2, ei+2)
    r += chorner2(g0, g0+1, g1, g1+1, a8, a8+1, er+3, ei+3)
    r += [f"ds_write_b64 v{vTT}, {vr(g0, 2)} offset:{3*512}"]
    return r

def scan_P3():
    a32 = vT[8]; T = vT[0:8]
    r = [f"ds_read_b128 {vr(a32)}, v{vCH} offset:{PV_CH}"]
    for k in range(4): r.append(f"ds_read_b64 {vr(T[2*k], 2)}, v{vTT} offset:{k*512}")
    r.append("@gap 2")
    m = a32 + 2
    g = vT[12]
    r += chorner2(g, g+1, T[0], T[1], m, m+1, T[2], T[3])
    r += chorner2(vWP0, vWP1, g, g+1, m, m+1, T[4], T[5])
    r += chorner2(g, g+1, vWP0, vWP1, m, m+1, T[6], T[7])
    r += [f"v_mov_b32 v{g+2}, s{sNONCE}", f"v_mov_b32 v{g+3}, s{sNONCE}",
          f"buffer_store_dwordx4 {vr(g)}, v{vSO}, s[{sWS}:{sWS+3}], s{sSST} offen sc1"]
    return r

def lb_loads():
    return [f"buffer_load_dwordx4 {ar(aS+4*jj)}, v{vSO}, s[{sWS}:{sWS+3}], s{sl} offen sc1" for jj, sl in enumerate((sLB0, sLB1, sLB2, sLB3))]
def scan_P4():
    t = vT[0:8]
    chk = []
    for jj, sl in enumerate((sLB0, sLB1, sLB2, sLB3)):
        d = t[2] if jj == 0 else t[0]
        chk += [f"s_cmp_lt_u32 s{sl}, {OOB}", f"s_cselect_b32 s{sT2}, s{sNONCE}, 0", f"v_accvgpr_read_b32 v{d}, a{aS+4*jj+2}",
                f"v_xor_b32 v{d}, s{sT2}, v{d}"]
        if jj: chk += [f"v_or_b32 v{t[2]}, v{t[2]}, v{t[0]}"]
    chk += [f"v_cmp_ne_u32 vcc, 0, v{t[2]}"]
    c = vT[8]
    r = [f"ds_read_b128 {vr(c)}, v{vCH} offset:{PV_CH+1024}", f"ds_read_b64 {vr(vT[12], 2)}, v{vCH} offset:{PV_CH+2048}"]
    if "f" not in opt.skip: r += poll(lb_loads(), [i.text for i in insert_nops(II(chk))])
    for jj in range(4):
        r += [f"v_accvgpr_read_b32 v{t[2*jj]}, a{aS+4*jj}", f"v_accvgpr_read_b32 v{t[2*jj+1]}, a{aS+4*jj+1}"]
    m = c + 2; g0, g1 = vT[14], vT[16]
    r += chorner2(g0, g0+1, t[0], t[1], m, m+1, t[2], t[3])
    r += chorner2(g1, g1+1, g0, g0+1, m, m+1, t[4], t[5])
    r += chorner2(g0, g0+1, g1, g1+1, m, m+1, t[6], t[7])
    r += cmul(g1, g1+1, g0, g0+1, vT[12], vT[13], vT[18])
    r += [f"s_lshl_b32 s{sT2}, s{sW}, 3", f"v_add_u32 v{vT[18]}, s{sT2}, v{vLB}", f"ds_write_b64 v{vT[18]}, {vr(g1, 2)}"]
    return r

def scan_P56():
    lb = vT[0]; er, ei = vT[8], vT[12]; c8, c32w = vT[16], vT[20]
    r = [f"ds_read_b128 {vr(lb)}, v{vLB}", f"ds_read_b128 {vr(lb+4)}, v{vLB} offset:16",
         f"ds_read_b64 {vr(c32w, 2)}, v{vCH} offset:{PV_CH+1024}", f"ds_read_b128 {vr(c8)}, v{vCH} offset:{PV_CH}",
         f"ds_read_b128 {vr(er)}, v{vER} offset:{PV_E}", f"ds_read_b128 {vr(ei)}, v{vER} offset:{PV_E+128}", "@gap 2",
         f"v_add_f32 v{lb}, v{lb}, v{lb+2}", f"v_add_f32 v{lb+1}, v{lb+1}, v{lb+3}",
         f"v_add_f32 v{lb+4}, v{lb+4}, v{lb+6}", f"v_add_f32 v{lb+5}, v{lb+5}, v{lb+7}",
         f"v_add_f32 v{lb}, v{lb}, v{lb+4}", f"v_add_f32 v{lb+1}, v{lb+1}, v{lb+5}"]
    q0, q1 = vT[4], vT[20]
    tmp = vT[2]
    r += chorner2(tmp, tmp+1, lb, lb+1, c32w, c32w+1, vWP0, vWP1)
    r += [f"v_mov_b32 v{q0}, v{tmp}", f"v_mov_b32 v{q1}, v{tmp+1}"]
    for k in range(3):
        r += chorner2(q0+k+1, q1+k+1, q0+k, q1+k, c8, c8+1, er+k, ei+k)
    r += [f"ds_write_b128 v{vER}, {vr(q0)} offset:{PV_E}", f"ds_write_b128 v{vER}, {vr(q1)} offset:{PV_E+128}"]
    C = vT[0:10]; Z = vT[10:15]
    for cf in range(5): r.append(f"ds_read_b32 v{Z[cf]}, v{vEW} offset:{PV_E + cf*256}")
    for cf in range(5): r.append(f"ds_read_b64 {vr(C[2*cf], 2)}, v{vCOLR} offset:{PV_COL + cf*256}")
    r.append("@gap 2")
    for tau in range(8):
        src = [(Z[cf] if tau == 0 else ureg(cf, tau-1)) for cf in range(5)]
        for cf in range(5): r.append(f"v_fma_f32 v{ureg(cf, tau)}, v{C[2*cf]}, v{src[cf]}, v{ureg(cf, tau)}")
        for cf in range(5): r.append(f"v_fmac_f32_dpp v{ureg(cf, tau)}, v{src[cf]}, v{C[2*cf+1]} {DPP}")
    for cf in range(5):
        for f in range(2):
            t = vT[2*(cf*2+f)]; u = U(cf, f)
            r += [f"v_cvt_pk_bf16_f32 v{t}, v{u}, v{u+1}", f"v_cvt_pk_bf16_f32 v{t+1}, v{u+2}, v{u+3}"]
    for k in range(10): r.append(f"ds_write_b64 v{vTW}, {vr(vT[2*k], 2)} offset:{k*512}")
    for cf in range(5):
        for jj in range(2):
            r.append(f"ds_read_b64_tr_b16 {vr(56 + 4*cf + 2*jj, 2)}, v{vTR} offset:{cf*1024 + jj*128}")
    for cf in range(5):
        r.append(I(f"buffer_store_dwordx4 {vr(56 + 4*cf)}, v{vHST}, s[{sWS}:{sWS+3}], s{sHO[cf]} offen sc1", tok="HST"))
    return r

def swiglu(acc, h2s, sks, tokname, packed=False):
    r = []
    k = 0
    for h2 in h2s:
        for z in range(2):
            G = vT[0:8]; Uu = vT[8:16]; T = vT[16:24]
            for j in range(8):
                r += [f"v_accvgpr_read_b32 v{G[j]}, a{acc(0, h2) + 8*z + j}", f"v_accvgpr_read_b32 v{Uu[j]}, a{acc(1, h2) + 8*z + j}"]
            if packed:
                for j in range(0, 8, 2): r.append(f"v_pk_mul_f32 {vr(T[j], 2)}, {vr(G[j], 2)}, s[{sEX0}:{sEX0+1}]")
                for j in range(8):
                    r.append(f"v_exp_f32 v{T[j]}, v{T[j]}")
                for j in range(0, 8, 2): r.append(f"v_pk_mul_f32 {vr(G[j], 2)}, {vr(G[j], 2)}, {vr(Uu[j], 2)}")
                for j in range(0, 8, 2): r.append(f"v_pk_add_f32 {vr(T[j], 2)}, {vr(T[j], 2)}, s[{sEX2}:{sEX2+1}]")
                for j in range(8): r.append(f"v_rcp_f32 v{T[j]}, v{T[j]}")
                for j in range(0, 8, 2): r.append(f"v_pk_mul_f32 {vr(G[j], 2)}, {vr(G[j], 2)}, {vr(T[j], 2)}")
            else:
                for j in range(8): r.append(f"v_mul_f32 v{T[j]}, {NLOG2E}, v{G[j]}")
                for j in range(8): r += [f"v_exp_f32 v{T[j]}, v{T[j]}", f"v_mul_f32 v{G[j]}, v{G[j]}, v{Uu[j]}"]
                for j in range(8): r.append(f"v_add_f32 v{T[j]}, 1.0, v{T[j]}")
                for j in range(8): r.append(f"v_rcp_f32 v{T[j]}, v{T[j]}")
                for j in range(8): r.append(f"v_mul_f32 v{G[j]}, v{G[j]}, v{T[j]}")
            o = Uu[0] if k % 2 == 0 else Uu[4]; k += 1
            for j in range(4): r.append(f"v_cvt_pk_bf16_f32 v{o+j}, v{G[2*j]}, v{G[2*j+1]}")
            if z == 0: r.append(f"s_add_u32 s{sT2}, s{sks}, {h2*4096}")
            r.append(I(f"buffer_store_dwordx4 {vr(o)}, v{vHH}, s[{sWS}:{sWS+3}], s{sT2} offen offset:{z*512} sc1", tok=tokname))
    return r

def step_reads(blk, s, par):
    r = []
    if blk == "U":
        i, sh2, sh = s // 4, (s >> 1) & 1, s & 1
        off = i*20480 + sh2*10240 - (61440 if i >= 3 else 0)
        for cf in range(5):
            r.append(f"ds_read_b128 {ar(FB(par, cf))}, v{vRU[sh]} offset:{off + cf*1024}")
    elif blk == "A":
        m, sp = s // 2, s & 1
        for hf in range(2):
            for h2 in range(2):
                for mu in range(2):
                    for jj in range(2):
                        r.append(f"ds_read_b64_tr_b16 {ar(FB(par, hf*4+h2*2+mu) + 2*jj, 2)}, v{vRA[h2]} offset:{(m % 4)*16384 + (2*sp+mu)*4096 + hf*1024 + jj*512}")
    else:
        m, sd = 10 + s // 2, s & 1
        for s2 in range(2):
            for hf in range(2):
                for mu in range(2):
                    for jj in range(2):
                        r.append(f"ds_read_b64_tr_b16 {ar(FB(par, s2*4+hf*2+mu) + 2*jj, 2)}, v{vRB2 if BSLOT[m] >= 4 else vRB} offset:{(BSLOT[m] % 4)*16384 + (2*sd+mu)*4096 + s2*2048 + hf*512 + jj*256}")
    return r

def step_mfma(blk, s, par):
    r = []
    if blk == "U":
        for cf in range(5):
            for f in range(2):
                d = vr(U(cf, f)); c = "0" if s == 0 else d
                r.append(f"v_mfma_f32_16x16x32_bf16 {d}, {vr(X(f, s))}, {ar(FB(par, cf))}, {c}")
    elif blk == "A":
        for hf in range(2):
            for h2 in range(2):
                for mu in range(2):
                    d = ar(ACCA(mu, h2), 16); c = "0" if (s == 0 and hf == 0) else d
                    r.append(f"v_mfma_f32_32x32x16_bf16 {d}, {ar(FB(par, hf*4+h2*2+mu))}, {vr(X(hf, s))}, {c}")
    else:
        for s2 in range(2):
            for hf in range(2):
                for mu in range(2):
                    d = ar(ACCB(mu), 16); c = "0" if (s == 0 and hf == 0 and s2 == 0) else d
                    r.append(f"v_mfma_f32_32x32x16_bf16 {d}, {ar(FB(par, s2*4+hf*2+mu))}, {vr(X(hf, 2*s+s2))}, {c}")
    return r

def swaps(s): return [] if "w" in opt.skip else [f"v_permlane16_swap_b32 v{X(0, s)+k}, v{X(1, s)+k}" for k in range(4)]

def stage_of(blk, s):
    return ("U", s // 4) if blk == "U" else (("M", s // 2) if blk == "A" else ("M", 10 + s // 2))

def cost(i):
    if i.cls in ("pseudo", "label"): return 0
    if i.cls == "trans": return 2
    if i.cls == "vmem": return opt.vmcost
    return 1

PH = [1]
class Feed(list):
    def append(self, i): EM[0].feed(i)

class Queue:
    def __init__(self): self.q = []; self.hold = 0; self.now = 0
    def add(self, lst, deadline):
        if "q" in opt.skip:
            lst = [t for t in II(lst) if t.cls in ("vmem",) or t.op.startswith("s_") or t.cls in ("pseudo", "label") or t.op.startswith("v_cmp") or t.op.startswith("v_readfirst") or t.op.startswith("v_accvgpr_read") and "a18" in t.text + "a19"]
        lst = II(lst)
        if PH[0] == 1 and opt.skip and not any(t.op in ("@arm", "@raw_begin") for t in lst):
            if "D" in opt.skip: lst = [t for t in lst if not t.op.startswith("ds_write")]
            if "R" in opt.skip: lst = [t for t in lst if not t.op.startswith("ds_read")]
            if "V" in opt.skip: lst = [t for t in lst if t.cls not in ("valu", "trans") or t.op.startswith("v_cmp") or t.op.startswith("v_cndmask")]
            if "S" in opt.skip:
                for t in lst:
                    if t.cls == "vmem" and "store" in t.op and t.tok in ("HST", "HHA"): t.text = t.text.replace("offen", "offen").replace("dwordx4", "dword"); t.text = __import__("re").sub(r"v\[(\d+):\d+\]", r"v\1", t.text, 1); t.wide = False
        lst = II(lst)
        now = max(self.now, max([d for t, d in self.q] + [0]) if opt.chainq else 0)
        if not opt.interp or deadline <= now + 1:
            for t in lst: self.q.append((t, deadline))
            return
        pos = 0; P = []; wr = {}; lastw = -99
        for t in lst:
            if t.cls not in ("pseudo", "label"):
                dep = [wr[r] for r in (t.rd | t.wr) if r in wr]
                if dep: pos = max(pos, max(dep) + opt.vlat)
                if t.op.startswith("ds_read") and pos - lastw < opt.vlat // 2: pos = lastw + opt.vlat // 2
                for r in t.wr: wr.pop(r, None)
                if t.cls == "ds":
                    for r in t.wr: wr[r] = pos
                    if t.op.startswith("ds_write"): lastw = pos
            pos += cost(t) + (1 if t.cls == "ds" else 0)
            P.append(pos)
        prev = now
        for t, p in zip(lst, P):
            d = now + int((deadline - now) * p / max(pos, 1))
            if t.cls == "ds" and PH[0] == 1 and d >= 200:
                while d % 8 < opt.span and d < deadline: d += 1
            d = max(d, prev); prev = d
            self.q.append((t, min(d, deadline)))
    def _region(self, out):
        i = self.q[0][0]
        end = "@endarm" if i.op == "@arm" else "@raw_end"
        while True:
            j = self.q.pop(0)[0]; out.append(j)
            if j.cls == "pseudo" and j.op == end: break
        while self.q and self.q[0][0].cls == "label": out.append(self.q.pop(0)[0])
    def need(self, gap):
        best = 0; acc = 0
        for t, d in self.q:
            acc += cost(t)
            left = d - gap + 1
            if left <= 0: best = max(best, acc)
            else: best = max(best, -(-acc // left))
        return best
    def pop(self, n, gap, ds_ok=True):
        out = Feed(); nds = 0; self.now = gap
        n = max(n, self.need(gap)) if (opt.even and not opt.interp) else n
        while self.q and (n > 0 or self.q[0][1] <= gap):
            i = self.q[0][0]
            if i.cls == "pseudo" and i.op == "@gap":
                self.q.pop(0); continue
            if self.q[0][1] > gap:
                if i.cls == "ds" and (not ds_ok or nds >= opt.dsmax): break
                if i.cls == "ds": nds += 1
                look = [i] + ([x for x, d in self.q[1:12] if x.cls == "pseudo"][:1] if i.op.startswith("s_cmp") else [])
                if i.op.startswith("s_cmp"): look += [x for x, d in self.q[1:4]]
                if max(EM[0].stall(x) for x in look) > opt.thr: break
            if i.cls == "pseudo" and i.op in ("@arm", "@raw_begin"):
                self._region(out); n -= 4
                continue
            if i.cls == "branch" or i.op.startswith("s_cmp") or i.op.startswith("s_bitcmp") or i.op.startswith("v_cmp"):
                out.append(self.q.pop(0)[0])
                if self.q and "L_rfw" in self.q[0][0].text:
                    while self.q[0][0].op != "@raw_begin": out.append(self.q.pop(0)[0])
                    n -= 10
                while self.q:
                    k = self.q[0][0]
                    if k.op.startswith("s_cselect") or k.op.startswith("v_cndmask") or k.cls == "branch": out.append(self.q.pop(0)[0])
                    elif k.op in ("@arm", "@raw_begin"): self._region(out); n -= 4
                    else: break
                n -= 1
                continue
            self.q.pop(0); out.append(i)
            n -= cost(i)
        return out
    def flush(self):
        out = [i for i, d in self.q if not (i.cls == "pseudo" and i.op == "@gap")]
        self.q = []; self.hold = 0
        return out

ACC1 = [("a", 4*k) for k in range(20)]
ACC2 = [("v", 96 + 4*k) for k in range(20)]
A_SLOTS = [("a", 80 + 4*k) for k in range(20)]
GA = [("a", 196 + 4*k) for k in range(15)] + [("a", 160 + 4*k) for k in range(5)]
XFREE = [("v", base + 8*d + 4*h) for d in range(10) for base in (96, 176) for h in range(2)]
HI = [("v", 176 + 4*k) for k in range(20)]
N1 = 12
NLDS = 4
def wslot(st, e):
    if st < 4: return GA[st*5 + e]
    if st < 12: return XFREE[(st - 4)*5 + e]
    if st < 16: return HI[(st - 12)*5 + e]
    if st < 20: return GA[(st - 16)*5 + e]
    return HI[(st - 20)*5 + e]
def w_free_after_b(st):
    return -1 if st < 4 else ((st - 4)*5 + 4) // 4
def w_free_after_p(st):
    if st < 16:
        regs = {wslot(st, e) for e in range(5)}
        return max(o for o in range(4, 12) for e in range(5) if wslot(o, e) in regs)
    return st - 16 if st < 20 else st - 8
def rg(t, c=4): return f"{t[0]}[{t[1]}:{t[1]+c-1}]"
vA2 = [3, 4, 5, 6]; vPW = [7, 8, 9]; vPR = 11; vOUT = 13; vXO = 14; vSTA = 15; vDS = 16
vXR = list(range(56, 76)); vY = list(range(76, 96)); vDK = [17, 18, 19, 20, 21]; vST = list(range(32, 40)); vXD2 = [22, 23, 24]; vXL = 25; vWL = 26
L_X2 = 143360
NSTEP = 22
ORDER = [0, 1, 4, 5, 6, 7, 10, 11, 2, 3, 8, 9] + list(range(10))
def ptr_bases():
    return [f"s_mul_i32 s{sAS}, s{sW}, {12*4096}", f"s_add_u32 s{sAS}, s{sAS}, s{sP2A}", f"s_add_u32 s{sAS}, s{sAS}, {40*4096}",
            f"s_mul_i32 s{sAE}, s{sW}, {10*4096}", f"s_add_u32 s{sAE}, s{sAE}, s{sP2A}",
            f"s_mul_i32 s{sWB}, s{sW}, {12*5120}", f"s_add_u32 s{sWB}, s{sWB}, s{sP2W}", f"s_add_u32 s{sWB}, s{sWB}, {40*5120}",
            f"s_mul_i32 s{sWE}, s{sW}, {10*5120}", f"s_add_u32 s{sWE}, s{sWE}, s{sP2W}"]
def ptr_set(which, st):
    if which == "A": return [f"s_add_u32 s{sAP}, s{sAS if st < N1 else sAE}, {ORDER[st]*4096}"]
    return [f"s_add_u32 s{sWP}, s{sWB if st < N1 else sWE}, {ORDER[st]*5120}"]
def p2_wload(st):
    r = []
    r += ptr_set("W", st)
    for e in range(5):
        va, off = (vL16, e*1024) if e < 4 else (vW4, 0)
        if N1 <= st < N1 + NLDS:
            r += [f"s_add_u32 m0, s{sM0}, {L_WY + (st - N1)*5120 + (4096 if e == 4 else 0)}"] + (["s_nop 0"] if True else [])
            r.append(I(f"buffer_load_dwordx4 v{va}, s[{sWS}:{sWS+3}], s{sWP} offen offset:{off} sc1 lds", tok=f"WL{st}"))
        else:
            r.append(I(f"buffer_load_dwordx4 {rg(wslot(st, e))}, v{va}, s[{sWS}:{sWS+3}], s{sWP} offen offset:{off} sc1", tok="W"))
    return r
def p2_wread(st):
    return [f"@waitvm WL{st}"] + [f"ds_read_b128 {rg(wslot(st, e))}, v{vWL} offset:{L_WY + (st - N1)*5120 + e*1024}" for e in range(5)]
def p2_aload(st):
    r = []
    r += ptr_set("A", st)
    for jj in range(4):
        r.append(I(f"buffer_load_dwordx4 {rg(A_SLOTS[(st % 5)*4 + jj])}, v{vA2[jj]}, s[{sWS}:{sWS+3}], s{sAP} offen sc1", tok="A"))
    return r
def p2_setup():
    r = []
    for jj in range(4):
        r += [f"s_add_u32 s{sD0}, s{sW}, {jj}", f"s_and_b32 s{sD0}, s{sD0}, 3", f"v_lshl_add_u32 v{vA2[jj]}, s{sD0}, 10, v{vL16}"]
    return r
def p2_setup2():
    r = []
    for jj in range(1, 4):
        r += [f"s_add_u32 s{sT2}, s{sW}, {jj}", f"s_and_b32 s{sT2}, s{sT2}, 3",
              f"s_mul_i32 s{sT3}, s{sT2}, 15360", f"s_add_u32 s{sT3}, s{sT3}, {(3-jj)*5120}", f"v_add_u32 v{vPW[jj-1]}, s{sT3}, v{vL16}"]
    r += [f"s_mul_i32 s{sT3}, s{sW}, 15360", f"v_add_u32 v{vPR}, s{sT3}, v{vL16}", f"v_add_u32 v{vWL}, s{sM0}, v{vL16}"]
    r += [f"v_add_u32 v{v}, {L_P1}, v{v}" for v in vPW + [vPR]]
    return r

def groups(lst):
    out = []; cur = []
    for t in II(lst):
        cur.append(t)
        if t.cls == "vmem": out.append(cur); cur = []
    if cur: out.append(cur)
    return out
def gstall(grp):
    return max([EM[0].stall(t) for t in grp if t.cls == "vmem" or t.op == "@waitvm"] + [0])

def tagw(st):
    gs = groups(p2_wload(st))
    for gq in gs: gq[-1].lat = None; STEP[id(gq[-1])] = st
    return gs
def taga(st):
    gs = groups(p2_aload(st))
    for gq in gs: STEP[id(gq[-1])] = st
    return gs
STEP = {}

def phase1_blocks():
    Q = Queue()
    seq = [("U", s) for s in range(20)] + [("A", s) for s in range(20)] + [("B", s) for s in range(10)]
    gap0 = []; g = 0
    for blk, s in seq:
        gap0.append(g); g += {"U": 10, "A": 8, "B": 8}[blk]
    gap0.append(g)
    def stage_end(kind, idx):
        n = [k for k, (b, s) in enumerate(seq) if stage_of(b, s) == (kind, idx)][-1]
        return gap0[n]
    L(delay("a", 255, 0, 500)); L(delay("b", 31, 5, 700))
    L(["@waitvm U0", "s_barrier"])
    L(stamp("U start"))
    L(step_reads("U", 0, 0))
    later = []
    pace = [0, len(EM[0].out)]
    bulk = []
    def lat(gs, dl):
        for x in gs: later.append((II(x), dl))
    def blk_(gs, dl):
        at = len(bulk) if dl == 10**6 else next((q for q, (gq, d) in enumerate(bulk) if d == 10**6), len(bulk))
        bulk[at:at] = [(II(x), dl) for x in gs]
    lat([u_piece(2, cf) for cf in range(5)], stage_end("U", 0) - 4)
    lat([nonce_publish()], stage_end("U", 0))
    if opt.rl_pos == -1: lat(relayout_dma(), stage_end("U", 1) - 16)
    lat([u_piece(3, cf) for cf in range(5)], stage_end("U", 1) - 10)
    lat([u_piece(4, cf) for cf in range(5)], stage_end("U", 2) - 20)
    for n, (blk, s) in enumerate(seq):
        par = n & 1
        mf = step_mfma(blk, s, par)
        nxt = seq[n + 1] if n + 1 < len(seq) else None
        rd = II(step_reads(nxt[0], nxt[1], par ^ 1)) if nxt else []
        if rd: rd[-1].tok = f"rd{n+1}"
        boundary = nxt is None or stage_of(*nxt) != stage_of(blk, s)
        gaps = [[] for _ in mf]
        start = 0
        pre = []
        cap = opt.capU if blk == "U" else opt.capM
        if blk == "U" and s == 11: pre += [f"v_add_u32 v{vRU[0]}, 61440, v{vRU[0]}"]
        if blk == "U" and s == 12: pre += [f"v_add_u32 v{vRU[1]}, 61440, v{vRU[1]}"]
        if blk == "A" and s == 0:
            Q.add(nonce_get(), gap0[n] + 6)
            Q.add(scan_P12(), stage_end("M", opt.X_stage) - 2)
        if blk == "B" and s == 0:
            Q.add(swiglu(ACCA, [0, 1], sKSA, "HHA"), stage_end("M", opt.hast) - opt.haend)
        post = []; plat = []; urgent = []; pbulk = []
        if blk == "B":
            for st in range(4, opt.nearly):
                if w_free_after_b(st) == s - 1: blk_(tagw(st), 10**6)
        if boundary:
            kind, idx = stage_of(blk, s)
            start = 1
            here = gap0[n]; nx1 = here + (40 if blk == "U" else 16)
            if kind == "U" and idx == 1:
                if opt.rf_stage == 1: post.append((relayout_finish(), stage_end("U", 3) - 4))
                post += [(const_tables(), stage_end("U", 3) + (10 if opt.rf_stage == 1 else -2)), (stats_store(), stage_end("U", 3) + 16)]
            mi = idx if kind == "M" else idx - 5
            def send(m): return stage_end("M", m) if m >= 0 else stage_end("U", m + 5)
            if kind == "U" and idx == opt.rf_stage and idx != 1: post.append((relayout_finish(), send(opt.F_stage - 1) - 2))
            b = []
            if nxt is not None:
                nk, ni = stage_of(*nxt)
                b.append(I(f"@waitboth {nk}{ni}"))
            else:
                b.append(I("@waitds0"))
            if kind == "M" and idx == opt.hast: b += II(["@waitvm HHA"])
            if kind == "M" and idx == opt.hast: plat.append((groups(flag_store(WS_FLHA, sC, sG)), here + 2))
            if mi == opt.F_stage: b += II(["@waitvm RLS"] if "r" not in opt.skip else [])
            if mi == max(opt.F_stage, 0): b += II(["@waitvm stat"])
            if not ("b" in opt.skip and kind == "M" and idx < 14): b.append(I("s_barrier"))
            if (opt.stamps or opt.probe) and (opt.fine or (kind, idx) in (("U", 4), ("M", 9), ("M", 14))): b += II(stamp(f"{kind}{idx} end"))
            gaps[0] += b
            if kind == "U" and idx == 0 and opt.t_w13: plat.append((w13_touch(), stage_end("U", 1) + 10))
            if kind == "U" and idx == 0 and opt.rl_pos == 0: plat.append((relayout_dma(), stage_end("U", 2) - 10))
            if kind == "U" and idx == 1: plat.append((groups(dma_M(0)) + groups(dma_M(1)), stage_end("U", 3) - 10))
            if kind == "U" and idx == 1 and opt.rl_pos == 1: plat.append((relayout_dma(), stage_end("U", 4) - 10))
            if kind == "U" and idx == 3: plat.append(([nonce_load()], here + 10))
            if kind == "U" and idx in (2, 3) and idx + opt.m23 <= 3: plat.append((groups(dma_M(idx)), stage_end("M", idx - 1) - opt.slack))
            if kind == "U" and idx == 4:
                for m_ in (2, 3):
                    if m_ + opt.m23 > 3: plat.append((groups(dma_M(m_)), stage_end("M", m_ - 1) - opt.slack))
            if kind == "U" and idx == 4:
                plat.append(([mlp_dma_addr("B")], here + 6))
                pbulk.append((groups(dma_M(10)), stage_end("M", opt.b10)))
            if mi == max(opt.F_stage, 0): plat.insert(0, (groups(flag_store(WS_FLW, sN, sRT)), here + 6))
            if kind == "M" and idx + 4 <= 9: plat.append((groups(dma_M(idx + 4)), stage_end("M", idx + 3) - opt.slack))
            if kind == "M" and idx == opt.L_stage: plat.insert(0, (groups(lb_loads()), here + 8))
            if kind == "M" and idx in BISSUE: pbulk.append((groups(dma_M(BISSUE[idx][0])), stage_end("M", BISSUE[idx][0] - 1) - opt.slack))
            if kind == "M" and idx == opt.X_stage:
                post.append((scan_P3(), stage_end("M", opt.X_stage + 1) + 8))
            if kind == "M" and idx == opt.C_stage:
                assert not any("a[180:183]" in x.text for gq, d in later for x in gq)
                post.append((scan_P4(), stage_end("M", opt.Y_stage) - 2))
            if kind == "M" and idx == opt.Y_stage:
                gaps[0] += II(delay("d", 63, 17, 900))
                post.append((scan_P56()[:33], stage_end("M", opt.Y_stage + 1) - 2))
            if kind == "M" and idx == opt.W_stage - 1 and opt.nearly:
                plat.append((groups(flag_load(WS_FLW, sN, 0, 31)), nx1))
            if kind == "M" and idx == opt.W_stage and opt.nearly:
                plat.append(([flag_check(WS_FLW, sN, 0, 31)], nx1 + 8))
                for st in range(min(4, opt.nearly)): pbulk.append((tagw(st), 10**6))
            if kind == "M" and idx == 13: urgent += [p2_setup()]
            if kind == "U" and idx == 4: urgent += [[f"global_load_ushort a231, v{vLANE}, s[{pDSK}:{pDSK+1}]"]] if False else []
        ng = len(mf)
        if rd:
            if nxt[0] == "U": span = 5
            elif blk == "U": span = 7
            else: span = opt.span
            for k, t in enumerate(rd): gaps[start + (k * span) // len(rd)].append(t)
        if nxt and nxt[0] == "A":
            for k, t in enumerate(II(swaps(nxt[1]))): gaps[ng - 5 + k].append(t)
        if blk == "U" and opt.pre_norm <= s + 1 < 20 and "n" not in opt.skip:
            nq = II(norm_step(1, s + 1, False, vT[20:24]))
            for k, t in enumerate(nq): gaps[(k * ng) // len(nq)].append(t)
        if blk == "U" and opt.late0:
            ops = [t for s0 in range(20 - opt.late0, 20) for t in norm_step(0, s0, False, vT[16:20])]
            span = 18
            lo, hi = (len(ops) * s) // span, (len(ops) * (s + 1)) // span
            lo -= lo % 5; hi -= hi % 5
            nq = II(ops[lo:hi]) if s < span else []
            assert all((20 - opt.late0 + (lo + k) // 20) > s for k in range(len(nq)))
            for k, t in enumerate(nq): gaps[(k * ng) // len(nq)].append(t)
        L(pre)
        E(f"@waitds rd{n}")
        for k, t in enumerate(mf):
            E(t)
            L(gaps[k])
            gap = gap0[n] + k
            used = sum(cost(x) for x in gaps[k])
            if boundary and k == 0:
                for lst, dl in post: Q.add(lst, dl)
                for gs, dl in plat: lat(gs, dl)
                for gs, dl in pbulk: blk_(gs, dl)
                lat(urgent, here + 14)
                continue
            due_b = any(d - gap <= q + len(later) for q, (gq, d) in enumerate(bulk))
            overdue = due_b or any(d - gap <= q for q, (gq, d) in enumerate(later))
            q_ = later if later else bulk
            if q_ and (overdue or (EM[0].t >= pace[0] and k != 0)):
                grp = q_.pop(0)[0]; L(grp); used += sum(cost(x) for x in grp)
            for x in EM[0].out[pace[1]:]:
                if x.cls == "vmem" and x.lines is not None and not x.text.startswith("buffer_load_dword v29,"):
                    cold = (x.tok in (("RL", "TW") if opt.t_w13 else ("M0", "M1", "M10", "RL"))) and opt.coldpace or 1
                    pace[0] = max(pace[0], EM[0].t - opt.burst) + x.lines * opt.pace * cold
            pace[1] = len(EM[0].out)
            Q.pop(cap - used, gap, ds_ok=(k >= (opt.span if blk != "U" else 5)))
    L(Q.flush())
    for gq, d in later: L(gq)
    return [gq for gq, d in bulk]

def p2_mfma(st):
    r = []
    first = st in (0, N1)
    acc = ACC1 if st < N1 else ACC2
    for jj in range(4):
        for e in range(5):
            d = rg(acc[jj*5+e]); c = "0" if (first and not (st == N1 and jj == 0)) else d
            r.append(f"v_mfma_f32_16x16x32_bf16 {d}, {rg(A_SLOTS[(st % 5)*4+jj])}, {rg(wslot(st, e))}, {c}")
    return r

def p2_partials(base, acc):
    return [f"ds_write_b128 v{vPW[jj-1]}, {rg(acc[jj*5+e])} offset:{base + e*1024}" for jj in range(1, 4) for e in range(5)]

def p2_epi_addr():
    dn, q, t = vT[8], vT[9], vT[10]
    r = [f"v_and_b32 v{dn}, 15, v{vLANE}", f"v_lshrrev_b32 v{q}, 4, v{vLANE}",
         f"s_lshl_b32 s{sT2}, s{sRT}, 6", f"s_lshr_b32 s{sT3}, s{sW}, 1", f"s_lshl_b32 s{sT3}, s{sT3}, 5", f"s_add_u32 s{sT2}, s{sT2}, s{sT3}",
         f"s_and_b32 s{sT3}, s{sW}, 1", f"s_lshl_b32 s{sT3}, s{sT3}, 2", f"s_add_u32 s{sT2}, s{sT2}, s{sT3}",
         f"s_mul_i32 s{sT4}, s{sW}, 3072", f"s_add_u32 s{sT4}, s{sT4}, {L_X2}",
         f"v_mul_u32_u24 v{vXL}, 640, v{q}", f"v_lshl_add_u32 v{vXL}, v{dn}, 1, v{vXL}", f"v_add_u32 v{vXL}, s{sT4}, v{vXL}",
         f"v_lshl_add_u32 v{q}, v{q}, 3, s{sT2}",
         f"s_mul_i32 s{sT3}, s{sN}, 80", f"v_add_u32 v{dn}, s{sT3}, v{dn}",
         f"v_mul_u32_u24 v{t}, 640, v{q}", f"v_add_u32 v{t}, v{t}, v{dn}",
         f"v_lshlrev_b32 v{vOUT}, 2, v{t}", f"v_lshlrev_b32 v{vSTA}, 3, v{q}", f"v_lshlrev_b32 v{vDS}, 1, v{dn}",
         f"s_mul_i32 s{sT2}, s{sT2}, 1280", f"s_mul_i32 s{sT3}, s{sN}, 160", f"s_add_u32 s{sT5}, s{sT2}, s{sT3}", f"s_add_u32 s{sT5}, s{sT5}, 4096",
         f"s_mov_b32 s{sT3}, 6554"]
    a, b, c = vT[11], vT[12], vT[13]
    for p in range(3):
        r += [f"v_add_u32 v{a}, {64*p}, v{vLANE}", f"v_mul_u32_u24 v{b}, s{sT3}, v{a}", f"v_lshrrev_b32 v{b}, 16, v{b}",
              f"v_mul_u32_u24 v{c}, 10, v{b}", f"v_sub_u32 v{c}, v{a}, v{c}", f"v_lshlrev_b32 v{c}, 4, v{c}",
              f"v_and_b32 v{a}, 12, v{b}", f"v_add_u32 v{b}, v{a}, v{b}", f"v_mul_u32_u24 v{b}, 1280, v{b}", f"v_add_u32 v{vXD2[p]}, v{b}, v{c}"]
    r += [f"v_mov_b32 v{a}, {OOB}", f"v_cmp_gt_u32 vcc, 32, v{vLANE}", f"v_cndmask_b32 v{vXD2[2]}, v{a}, v{vXD2[2]}, vcc"]
    return r
def p2_epi_loads():
    r = []
    for p in range(3):
        r += [f"s_add_u32 m0, s{sT4}, {p*1024}", "s_nop 0", I(f"buffer_load_dwordx4 v{vXD2[p]}, s[{sX}:{sX+3}], s{sT5} offen lds", tok="XR")]
    for e in range(5):
        r.append(f"global_load_ushort v{vDK[e]}, v{vDS}, s[{pDSK}:{pDSK+1}] offset:{e*32}")
    r += [f"s_mov_b32 s{sD1}, {WS_STAT}",
          f"buffer_load_dwordx4 {vr(vST[0])}, v{vSTA}, s[{sWS}:{sWS+3}], s{sD1} offen sc1",
          f"buffer_load_dwordx4 {vr(vST[4])}, v{vSTA}, s[{sWS}:{sWS+3}], s{sD1} offen offset:16 sc1"]
    return r
def p2_xread():
    r = ["@waitvm XR"]
    for e in range(5):
        for rr in range(4):
            r.append(f"ds_read_u16 v{vXR[e*4+rr]}, v{vXL} offset:{rr*160 + e*32}")
    return r

def p2_skip():
    r = [f"v_lshlrev_b32 v{vDK[e]}, 16, v{vDK[e]}" for e in range(5)]
    for j in range(20): r.append(f"v_lshlrev_b32 v{vXR[j]}, 16, v{vXR[j]}")
    for e in range(5):
        for rr in range(4): r.append(f"v_fma_f32 v{96+e*4+rr}, v{vXR[e*4+rr]}, v{vST[2*rr]}, v{vST[2*rr+1]}")
        for rr in range(4): r.append(f"v_mul_f32 v{96+e*4+rr}, v{96+e*4+rr}, v{vDK[e]}")
    return r
def p2_gate():
    r = []
    T = vT[0:24]
    for e in range(5):
        b = T[12*(e % 2)]; b2 = b + 4; b3 = b + 8; Y = vY[e*4:e*4+4]
        r += [f"ds_read_b128 {vr(b)}, v{vPR} offset:{e*1024}", f"ds_read_b128 {vr(b2)}, v{vPR} offset:{5120 + e*1024}", f"ds_read_b128 {vr(b3)}, v{vPR} offset:{10240 + e*1024}"]
        if e > 0:
            p = T[12*((e-1) % 2)]; Yp = vY[(e-1)*4:e*4]
            for rr in range(4): r.append(f"v_mul_f32 v{Yp[rr]}, v{Yp[rr]}, v{p+rr}") if False else None
        for rr in range(4): r.append(f"v_add_f32 v{Y[rr]}, v{Y[rr]}, v{b+rr}")
        for rr in range(4): r.append(f"v_add_f32 v{b2+rr}, v{b2+rr}, v{b3+rr}")
        for rr in range(4): r.append(f"v_add_f32 v{Y[rr]}, v{Y[rr]}, v{b2+rr}")
        for rr in range(4): r.append(f"v_mul_f32 v{b+rr}, {NLOG2E}, v{Y[rr]}")
        for rr in range(4): r.append(f"v_exp_f32 v{b+rr}, v{b+rr}")
        for rr in range(4): r.append(f"v_add_f32 v{b+rr}, 1.0, v{b+rr}")
        for rr in range(4): r.append(f"v_rcp_f32 v{b+rr}, v{b+rr}")
        for rr in range(4): r.append(f"v_mul_f32 v{Y[rr]}, v{Y[rr]}, v{b+rr}")
    r += [f"v_add_u32 v{v}, {L_P2 - L_P1}, v{v}" for v in vPW + [vPR]]
    return r

sROW = [76, 77, 78, 79]
def p2_final():
    r = []
    O = list(range(96, 116)); B = list(range(176, 236))
    if not opt.fin2:
        for k in range(3):
            for e in range(5):
                r.append(f"ds_read_b128 {vr(B[k*20+e*4])}, v{vPR} offset:{k*5120 + e*1024}")
        for j in range(0, 20, 2): r.append(f"v_pk_fma_f32 {vr(vXR[j], 2)}, {vr(O[j], 2)}, {vr(vY[j], 2)}, {vr(vXR[j], 2)}")
        for j in range(0, 20, 2): r.append(f"v_pk_add_f32 {vr(B[j], 2)}, {vr(B[j], 2)}, {vr(B[20+j], 2)}")
        for j in range(0, 20, 2): r.append(f"v_pk_add_f32 {vr(B[j], 2)}, {vr(B[j], 2)}, {vr(B[40+j], 2)}")
        for j in range(0, 20, 2): r.append(f"v_pk_fma_f32 {vr(vXR[j], 2)}, {vr(B[j], 2)}, {vr(vY[j], 2)}, {vr(vXR[j], 2)}")
        for rr in range(4):
            for e in range(5):
                r.append(f"buffer_store_dword v{vXR[e*4+rr]}, v{vOUT}, s[{sOUT}:{sOUT+3}], s{sROW[rr]} offen offset:{e*64} {opt.out_flags}")
        return r
    for e in range(5):
        for k in range(3): r.append(f"ds_read_b128 {vr(B[k*20+e*4])}, v{vPR} offset:{k*5120 + e*1024}")
    for e in range(5):
        for j in (4*e, 4*e + 2): r.append(f"v_pk_add_f32 {vr(B[j], 2)}, {vr(B[j], 2)}, {vr(B[20+j], 2)}")
        for j in (4*e, 4*e + 2): r.append(f"v_pk_add_f32 {vr(B[j], 2)}, {vr(B[j], 2)}, {vr(B[40+j], 2)}")
        for j in (4*e, 4*e + 2): r.append(f"v_pk_fma_f32 {vr(vXR[j], 2)}, {vr(B[j], 2)}, {vr(vY[j], 2)}, {vr(vXR[j], 2)}")
        for rr in range(4):
            r.append(f"buffer_store_dword v{vXR[e*4+rr]}, v{vOUT}, s[{sOUT}:{sOUT+3}], s{sROW[rr]} offen offset:{e*64} {opt.out_flags if e < opt.nsc else opt.out_flags2}")
    return r
def p2_own():
    return [f"v_pk_fma_f32 {vr(vXR[j], 2)}, {vr(96+j, 2)}, {vr(vY[j], 2)}, {vr(vXR[j], 2)}" for j in range(0, 20, 2)]

def weave(main, extra, every=1):
    groups = []; cur = []
    for t in II(extra):
        cur.append(t)
        if t.cls == "vmem": groups.append(cur); cur = []
    if cur: groups.append(cur)
    out = []
    for k, t in enumerate(II(main)):
        out.append(t)
        if groups and k % every == every - 1: out += groups.pop(0)
    for g_ in groups: out += g_
    return out

def phase2(left):
    PH[0] = 2
    L(stamp("B mfma end"))
    L(delay("c", 15, 9, 600))
    L([f"s_mov_b32 s{sEX0}, {NLOG2E}", f"s_mov_b32 s{sEX1}, {NLOG2E}", f"s_mov_b32 s{sEX2}, 1.0", f"s_mov_b32 s{sEX3}, 1.0"])
    Wq = list(left); Aq = []
    assert all(id(gq[-1]) in STEP for gq in Wq)
    nextW = max([st for st in STEP.values()] + [-1]) + 1; nextA = 0
    while nextW < N1 + NLDS: Wq.extend(tagw(nextW)); nextW += 1
    def serial(lst, every, first=None):
        cnt = 0
        for t in II(lst):
            if t.cls == "pseudo" and t.op == "@gap": continue
            L([t])
            if t.cls in ("valu", "trans") and not t.op.startswith("v_cmp") and not INRAW[0]:
                cnt += 1
                q_ = first if first else Wq
                if q_ and cnt >= every and gstall(q_[0]) <= opt.thrs: L(q_.pop(0)); cnt = 0
            if t.op == "@raw_begin": INRAW[0] = True
            if t.op == "@raw_end": INRAW[0] = False
    swb = II(swiglu(ACCB, [0], sKSB, "HHB", packed=True))
    cl = len(swb) - opt.hald
    serial(swb[:cl], opt.every)
    if opt.sflag: L([f"s_mov_b32 s{sNN}, s{sNONCE}", f"s_mov_b32 s{sNN+1}, s{sNONCE}"]); assert opt.hald == 0
    else: L(fl_load(WS_FLHA))
    serial(swb[cl:], opt.every)
    L(stamp("epi B done"))
    def fill(st):
        nonlocal nextW, nextA
        lim = st + opt.look
        if st < 8 - opt.lookx: lim = min(lim, 7)
        if st < N1 - opt.looky: lim = min(lim, N1 - 1)
        while nextA <= min(lim, NSTEP - 1): Aq.extend(taga(nextA)); nextA += 1
        while nextW <= min(st + opt.lookW, NSTEP - 1) and nextW >= N1 + NLDS and w_free_after_p(nextW) < st: Wq.extend(tagw(nextW)); nextW += 1
    def head():
        if Wq and (not Aq or STEP[id(Wq[0][-1])] <= STEP[id(Aq[0][-1])]): return Wq
        return Aq if Aq else None
    p56 = II(scan_P56())[33:]
    serial(p56[:10], opt.every)
    L(p2_setup2())
    if opt.sflag:
        serial(p56[10:21], opt.every); L(fl_load(WS_FLHA)); serial(p56[21:opt.hack], opt.every)
    else: serial(p56[10:opt.hack], opt.every)
    L(fl_check(WS_FLHA)); L(stamp("ha ready"))
    while nextA < opt.a0: Aq.extend(taga(nextA)); nextA += 1
    if opt.shadow56:
        tail56 = p56[opt.hack:]; p56 = p56[:opt.hack]
        while Aq: L(Aq.pop(0))
    cst = next((k for k, t in enumerate(p56) if t.cls == "vmem"), len(p56))
    if opt.afirst and Aq: L(Aq.pop(0)); L(Aq.pop(0)); L(Aq.pop(0)); L(Aq.pop(0))
    serial(p56[opt.hack:cst], opt.every2, Aq)
    if opt.afirst:
        while Aq: L(Aq.pop(0))
    L(p56[cst:])
    L(stamp("h out"))
    while Aq: L(Aq.pop(0))
    if opt.hhpos < 0:
        L(["@waitvm HHB", "s_barrier"]); L(flag_store(WS_FLHH, sC, sG))
    L(stamp("flags out"))
    L([f"s_mov_b32 s{sROW[rr]}, {rr*2560}" for rr in range(4)])
    Q = Queue(); misc = []
    if opt.shadow56: Q.add(tail56, 20*opt.p2pos - opt.t56)
    g = 0; nread = N1
    for st in range(NSTEP):
        mf = p2_mfma(st)
        if st == 8 - opt.lookx:
            L(fl_check(WS_FLHH))
        if st == N1 - opt.looky:
            L(fl_check(WS_FLH)); L(stamp("h ready"))
        fill(st)
        if st == opt.p2pos + 1:
            Q.add(p2_epi_addr(), g + 30)
        if st == opt.epos: misc.extend(groups(p2_epi_loads()))
        if st == opt.epos + 3:
            assert not misc or all("v29" in gq[-1].text for gq in misc)
            Q.add(p2_xread() + p2_skip(), 20*N1 - 4)
        if opt.sflag:
            if st == 8 - opt.look - opt.sfl: L(fl_load(WS_FLHH))
            if st == N1 - opt.look - opt.sfl: L(fl_load(WS_FLH))
        else:
            if st == 8 - opt.lookx - opt.sfl: misc[0:0] = groups(flag_load(WS_FLHH, sRT, 1, 15))
            if st == N1 - opt.looky - opt.sfl: misc[0:0] = groups(flag_load(WS_FLH, sRT, 1, 15))
        while nread < N1 + NLDS and w_free_after_p(nread) < st and nread <= st + 3:
            assert not any(STEP.get(id(gq[-1])) == nread for gq in Wq)
            Q.add(p2_wread(nread), 20*(nread - 1) + 4); nread += 1
        if st == N1:
            L(stamp("out done"))
            yp = p2_partials(0, ACC1); rdy = [f"v_accvgpr_read_b32 v{vY[j]}, a{j}" for j in range(20)]
            mix = []
            for j in range(15): mix += [yp[j]] + rdy[j*4//3:(j+1)*4//3]
            Q.add(mix, 20*opt.ybar - 4)
        if st == opt.ybar:
            assert nread == N1 + NLDS
            L(Q.flush()); L(["@waitds0", "s_barrier"])
            Q.add(p2_gate(), 20*NSTEP - (44 if opt.merge2 else 24))
        def must(q): return [gq for gq in q if STEP[id(gq[-1])] <= st + opt.look]
        ng = len(must(Wq)) + len(Aq)
        per = -(-ng // 19)
        last = st == NSTEP - 1
        if opt.merge2 and st == NSTEP - 2:
            while head(): L(head().pop(0))
            held = mf; mf = []
        if last:
            L(Q.flush())
            if opt.merge2:
                both = []
                for jj in (1, 2, 3, 0): both += held[jj*5:jj*5+5] + mf[jj*5:jj*5+5]
                mf = both
            else: mf = mf[5:] + mf[:5]
            wr = II(p2_partials(0, ACC2))
        if opt.onewait and mf and not last:
            need = set().union(*[I(x).rd for x in mf])
            idx_ = [q for q, o in enumerate(EM[0].vm) if o.wr & need]
            if idx_: EM[0]._wait(len(EM[0].vm) - 1 - idx_[-1], None)
        for k, t in enumerate(mf):
            E(t)
            used = 0
            if k >= 1:
                for _ in range(max(per, 1)):
                    h = head()
                    if misc and (gstall(misc[0]) <= opt.thr or st >= opt.epos + 1 or "v29" in misc[0][-1].text) and (k % 2 == 0 or not h): L(misc.pop(0)); used += 2
                    elif h and (STEP[id(h[0][-1])] <= st + opt.look or gstall(h[0]) <= opt.thr): L(h.pop(0)); used += 2
            if st == opt.hhpos and k == 19 and st != opt.p2pos:
                L(["@waitvm HHB", "s_barrier"]); L(flag_store(WS_FLHH, sC, sG))
            if st == opt.p2pos and k == 19:
                assert "HST" in EM[0].seen and not any(t.tok == "HST" for t, d in Q.q)
                L(["@waitvm HST", "s_barrier"])
                if st == opt.hhpos: L(flag_store(WS_FLHH, sC, sG))
                L(flag_store(WS_FLH, sC, sG))
            if last and wr and ((k >= 7) if not opt.merge2 else (k >= 12 and k % 2 == 0)): L([wr.pop(0)])
            Q.pop(2 - used, g); g += 1
        if st >= opt.epos + 2:
            while misc: L(misc.pop(0))
        if opt.fine2: L(stamp(f"st{st}"))
        while head() and STEP[id(head()[0][-1])] <= st + opt.look: L(head().pop(0))
    L(wr)
    if opt.fin2: L(p2_own())
    L(["@waitds0", "s_barrier"])
    L(stamp("y done"))
    L(p2_final())
    L(stamp("end")); L(stamp("cyc1", True))
INRAW = [False]

def diag_out():
    if not opt.diag: return
    L([f"s_lshl_b32 s{sT2}, s2, 2", f"s_add_u32 s{sT2}, s{sT2}, s{sW}", f"s_lshl_b32 s{sT2}, s{sT2}, 2", f"s_add_u32 s{sT2}, s{sT2}, {WS_STAMP}",
       f"v_mov_b32 v{vT[0]}, s{sNONCE}", f"buffer_store_dword v{vT[0]}, off, s[{sWS}:{sWS+3}], s{sT2}"])

def stamps_out():
    if opt.probe:
        L(["@raw_begin", "L_spin:", f"s_memrealtime s[{sSTAMP}:{sSTAMP+1}]", "s_waitcnt lgkmcnt(0)", f"s_sub_u32 s{sT2}, s{sSTAMP}, s3",
           f"s_cmp_lt_u32 s{sT2}, 5000", "s_cbranch_scc1 L_spin", "@raw_end"])
    if not opt.stamps: return
    L([f"s_lshl_b32 s{sT2}, s2, 2", f"s_add_u32 s{sT2}, s{sT2}, s{sW}", f"s_lshl_b32 s{sT2}, s{sT2}, 8", f"s_add_u32 s{sT2}, s{sT2}, {WS_STAMP}",
       f"v_lshlrev_b32 v{vT[0]}, 2, v{vLANE}", f"buffer_store_dword v0, v{vT[0]}, s[{sWS}:{sWS+3}], s{sT2} offen"])

def build():
    STEP.clear(); PH[0] = 1; EM[0] = Emitter(lines_of, lat_of, dslat=opt.dslat); lab[0] = 0; stamp_n[0] = 0; stamp_names.clear(); ST.n = 0
    prologue()
    L(stamp("issued")); L(stamp("cyc0", True))
    CAP[0] = rest = []
    setup_rest()
    L(scan_addr()); L(mlp_read_addr())
    constants()
    L(const_park())
    nonce_seed()
    L(relayout_issue()); L(relayout_raddr()); L(late_offsets())
    if opt.t_w13: L(w13_touch_addr())
    L([f"v_min_u32 v{vT[0]}, 9, v{vLANE}", f"v_lshlrev_b32 v{vT[0]}, 7, v{vT[0]}", f"global_load_dword a231, v{vT[0]}, s[{pDSK}:{pDSK+1}]"])
    CAP[0] = None
    ra = atoms(rest); n0 = 0; k0 = 0
    while n0 < opt.pre0: L(ra[k0]); n0 += len(ra[k0]); k0 += 1
    L(stamp("consts"))
    tail = x_arrive(0, [i for a in ra[k0:] for i in a], 40)
    L(stamp("x0 in"))
    E("s_barrier")
    L(skew("0"))
    L(tail)
    L(x_stats(0))
    L([f"v_add_u32 v{vRX[0]}, 81920, v{vRX[0]}", f"v_add_u32 v{vRX[1]}, 81920, v{vRX[1]}"])
    nrm = []
    for s in range(20 - opt.late0): nrm += norm_step(0, s, opt.pk0, vT[20:24]) if "N" not in opt.skip else []
    if "Z" in opt.skip: nrm = ["s_nop 0"] * len(nrm)
    if "Y" in opt.skip: nrm = [t if "v_pk_fma" not in t else "v_mov_b32 v52, v53" for t in nrm]
    if "M" in opt.skip: nrm = [x for k, t in enumerate(nrm) for x in ([t, "s_nop 0"] if k % 4 == 3 else [t])]
    tail = x_arrive(1, nrm)
    L(stamp("x1 in"))
    L(weave(tail, ST.next(50 - ST.n, 50), 1))
    L(x_stats(1))
    L(mlp_dma_addr("A"))
    for s in range(opt.pre_norm): L(norm_step(1, s, True, vT[20:24]))
    assert ST.n == 50
    phase2(phase1_blocks())
    diag_out()
    stamps_out()
    E("s_endpgm")
    return EM[0].out

HEADER = """; Kernarg layout for this problem (128 bytes, ptrs only, base s[0:1]):
;   offset  48: d_in[6] A_C_im       (640, 640) bf16          offset 112: d_debug (256 B, zero on entry)
;
;  Hand-offs between workgroups: sc1 stores, then flags holding a per-launch nonce (published through d_debug).
; @launch grid=(256,1,1) block=(256,1,1) lds=163840
.amdgcn_target "amdgcn-amd-amdhsa--gfx950"
.text
.globl {k}
.p2align 8
.type {k},@function
{k}:
"""
FOOTER = """
L_exit:
    s_endpgm
L_codeend:
    .fill 64, 4, 0xbf800000
.section .rodata,"a"
.p2align 6
.amdhsa_kernel {k}
  .amdhsa_next_free_vgpr 512
  .amdhsa_next_free_sgpr 102
  .amdhsa_accum_offset 256
  .amdhsa_group_segment_fixed_size 0
  .amdhsa_kernarg_size 128
  .amdhsa_user_sgpr_count 2
  .amdhsa_user_sgpr_kernarg_segment_ptr 1
  .amdhsa_system_sgpr_workgroup_id_x 1
  .amdhsa_float_denorm_mode_32 3
.end_amdhsa_kernel
"""
def text():
    prog = build()
    body = "\n".join(("" if i.cls == "label" else "    ") + i.text for i in prog)
    return HEADER.format(k=KNAME) + body + FOOTER.format(k=KNAME), prog

if __name__ == "__main__":
    out = sys.argv[1]
    for a in sys.argv[2:]:
        k, v = a.split("=")
        cur = getattr(opt, k)
        setattr(opt, k, v.replace("_", " ") if isinstance(cur, str) else (v in ("1", "True") if isinstance(cur, bool) else type(cur)(float(v))))
    t, prog = text()
    open(out, "w").write(t)
    print(stats(prog), len(prog))
    if opt.sim:
        em = EM[0]; prev = 0
        for j, (n, m) in enumerate(zip(stamp_names, em.marks)):
            big = sorted([x for x in em.stalls if x[1] == j], reverse=True)
            print(f"{n:12s} {m:7.0f} ({m-prev:5.0f}) stalls {sum(x[0] for x in big):5.0f} :", "; ".join(f"{x[0]:.0f} {x[2][:44]}" for x in big[:4]))
            prev = m
    if opt.stamps:
        import json
        json.dump(stamp_names, open(out + ".stamps.json", "w"))
```

```python
import sys, os
sys.path.insert(0, os.path.dirname(os.path.abspath(__file__)))
from asmlib import I, stats, insert_nops, Emitter

KNAME = "recurrent_scan__ssm_conv_s5__glu_gated_swiglu__prompt_kernel"

class Opt:
    fine = False
    splitx = False
    fine2 = False
    pk0 = True
    xhit = False
    chain = 0
    sim = False
    fakehit = ''
    delay = 0
    diag = False
    cycles = False
    skip = ''
    probe = ''
    stamps = False
    codepf = True
    krot = True
    prot = False
    pre0 = 180
    late0 = 0
    pflines = 12
    win = 8
    pre_norm = 1
    skew = False
    mstat = True
    t_x1 = False
    t_w13 = False
    b10 = 1
    rf_stage = 2
    slack = 22
    rl_pos = 0
    capU = 3
    capM = 5
    span = 5
    X_stage = 2
    L_stage = 5
    C_stage = 7
    Y_stage = 8
    H_stage = 11
    F_stage = 1
    W_stage = 4
    nearly = 12
    rl_nt = False
    out_flags = "sc1"
    x_flags = ""
    w_flags = ""
    p1map = 0
    p2map = 1
    p2pos = 2
    epos = 6
    afirst = True
    early_nonce = False
    nsc = 5
    out_flags2 = ''
    m23 = 1
    onewait = False
    fin2 = True
    merge2 = True
    sflag = False
    sfl = 2
    shadow56 = True
    t56 = 2
    hhpos = 0
    hack = 91
    haend = 18
    hast = 14
    hald = 0
    thrs = 200
    hhld = 50
    hhck = 130
    every = 7
    every2 = 2
    a0 = 3
    thrb = 40
    cad = 3
    cadA = 6
    pace = 10.0
    burst = 100
    coldpace = 1.5
    vmcost = 4
    ybar = 15
    hchk = 4
    HL_stage = 13
    look = 3
    lookx = 3
    looky = 3
    lookW = 6
    thr = 16
    dsmax = 3
    interp = True
    vlat = 14
    chainq = True
    dslat = 130
    even = True
    thrm = 100
    slot0 = 5
    earlyA = False
    roty = False
    latA = 640
    latW = 620
opt = Opt()

WS_A2 = 0
WS_W2P = 0xB00000
WS_S = 0xF00000
WS_STAT = 0xF40000
WS_FLW = 0xF50000
WS_FLH = 0xF51000
WS_FLHH = 0xF52000
WS_FLHA = 0xF54000
WS_SEED = 0xF53000
WS_STAMP = 0xF60000
WS_SIZE = 0x1000000
OOB = 0x40000000

L_RL = 102400
L_PRIV = 122880
PV_COL, PV_CH, PV_E = 0, 1280, 4352
L_TT = 155648
L_LB = 159744
L_WY = 0
L_P1 = 81920
L_P2 = 0

sX, sWU, sWM, sWS, sOUT, sRL, sDBG = 36, 40, 44, 48, 52, 56, 60
(sW, sC, sG, sRT, sN, sNONCE, sT0, sT1, sT2, sT3, sXOFF, sUOFF, sMOFF, sMOFFB, sRLOFF, sRLST,
 sA2H, sKSA, sKSB, sSST, sLB0, sLB1, sLB2, sLB3, sEX0, sEX1, sEX2, sEX3, sM0, sM0A, sCNT, sP2A, sP2W, sT4, sT5, sSTATO) = range(64, 100)
sSTAMP = 100
pX, pLRE, pLIM, pBRE, pBIM, pCRE, pCIM, pLDT = 4, 6, 8, 10, 12, 14, 16, 18
pDSK, pBX, pW1, pW3, pW2, pOUT, pDBG, pWS = 20, 22, 24, 26, 28, 30, 32, 34
sKU = [22, 23, 0, 1, 32]
sD0, sD1 = 4, 5
sRY, sRO = 6, 7
sAP, sAS, sAE, sWP, sWB, sWE = 8, 9, 10, 11, 12, 13
sM0U, sSEEDO = 18, 19
sD2 = 31
sKA = [14, 15, 16, 17, 28]
sFW, sFHA, sFHH, sFH, sFL = 29, 34, 35, 6, 7
sRLT = 33
sHO = [24, 25, 26, 27, 30]

vLANE, vL16 = 1, 2
vRX = [3, 4]; vRU = [5, 6]
vRA = [7, 8]; vRB = 9; vHH = 10; vDU = 11; vW4 = 12
vD = [13, 14, 15, 16]
vXD = vD
vDB = [3, 4, 5, 6]; vRB2 = 11
BSLOT = {10: 4, 11: 5, 12: 2, 13: 3, 14: 0}
BISSUE = {2: (11, 7), 6: (12, 8), 7: (13, 9), 8: (14, 10)}
vUD = [11, 27, 28, 29]
vEW, vER, vCOLR, vCH, vTT, vLB, vTW, vTR, vHST, vSO = range(17, 27)
vWP0, vWP1, vFLAG, vNON = 27, 28, 29, 30
vT = list(range(32, 56))
def U(cf, f): return 56 + (cf * 2 + f) * 4
def X(f, s): return 96 + (f * 20 + s) * 4
def ACCA(mu, h2): return (mu * 2 + h2) * 16
def FB(par, fr): return 64 + par * 32 + fr * 4
def ACCB(mu, h2=0): return 128 + mu * 16
aRL = 160
aS = 180

def vr(n, c=4): return f"v[{n}:{n+c-1}]"
def ar(n, c=4): return f"a[{n}:{n+c-1}]"
def sr(n, c=4): return f"s[{n}:{n+c-1}]"

def lines_of(i):
    t = i.text
    if "ushort" in t: return 1
    if i.tok and i.tok[0] == "M" and int(i.tok[1:]) >= 10: return 16
    if i.tok == "RL": return 16
    if i.tok == "XR": return 11
    if " off," in t and "global" not in t: return 1
    if "dwordx2" in t: return 2
    if "load_dword " in t and "offen" in t: return 1 if "sc1" in t else 32
    if "global_load_dword" in t: return 0
    if "store_dword " in t: return 4 if "offen" in t else 1
    return 8
def lat_of(i):
    t = i.text; tok = i.tok or ""
    cold = 1500
    if "store" in t: return 820 if "sc1" in t else 330
    if tok.startswith("x"): return cold if tok in ("x0_0", "x0_1", "x1_0", "x1_1") else 800
    if tok.startswith("U"): return cold if tok == "U0" else 800
    if tok == "RL" or tok == "TW": return cold
    if tok.startswith("M"): return cold if (tok in ("M0", "M1", "M10") and not opt.t_w13) else 520
    if tok == "W" or tok.startswith("WL"): return opt.latW
    if tok == "A": return opt.latA
    if "sc1" in t: return 1000
    return 700
EM = [None]
CAP = [None]
def E(t, tok=None):
    i = I(t, tok)
    if CAP[0] is not None: CAP[0].append(i)
    else: EM[0].feed(i)
    return i
def L(lst):
    for t in lst:
        i = t if isinstance(t, I) else I(t)
        if CAP[0] is not None: CAP[0].append(i)
        else: EM[0].feed(i)
def atoms(lst):
    out = []; depth = 0
    for i in lst:
        glue = depth > 0 or i.op.startswith(("s_cselect", "s_addc", "s_subb", "v_cndmask", "v_addc")) or i.cls in ("branch", "label") or i.op in ("@arm", "@else", "@endarm")
        if out and glue: out[-1].append(i)
        else: out.append([i])
        if i.op == "@arm": depth += 1
        if i.op == "@endarm": depth -= 1
    return out
def II(lst): return [t if isinstance(t, I) else I(t) for t in lst]

def srd(d, p, nbytes):
    return [f"s_mov_b32 s{d}, s{p}", f"s_and_b32 s{d+1}, s{p+1}, 0xffff", f"s_mov_b32 s{d+2}, {nbytes}", f"s_mov_b32 s{d+3}, 0x20000"]

stamp_n = [0]
stamp_names = []
def stamp(name, cyc=False):
    if opt.probe:
        if name != opt.probe: return []
        return [f"s_memrealtime s[{sSTAMP}:{sSTAMP+1}]", "@waitds0", f"s_mov_b32 s3, s{sSTAMP}"]
    if not opt.stamps: return []
    k = stamp_n[0]; stamp_n[0] += 1
    stamp_names.append(name)
    return [f"s_memtime s[{sSTAMP}:{sSTAMP+1}]" if (cyc or opt.cycles) else f"s_memrealtime s[{sSTAMP}:{sSTAMP+1}]", "@waitds0",
            f"v_writelane_b32 v0, s{sSTAMP}, {k}"]

def cmul(dr, di, ar_, ai, br, bi, t):
    return [f"v_mul_f32 v{t}, v{ai}, v{bi}", f"v_mul_f32 v{di}, v{ai}, v{br}",
            f"v_fma_f32 v{dr}, v{ar_}, v{br}, -v{t}", f"v_fmac_f32 v{di}, v{ar_}, v{bi}"]
def csq(dr, di, r, i, t):
    return [f"v_mul_f32 v{t}, v{i}, v{i}", f"v_mul_f32 v{di}, v{r}, v{i}",
            f"v_fma_f32 v{dr}, v{r}, v{r}, -v{t}", f"v_add_f32 v{di}, v{di}, v{di}"]
def chorner2(dr, di, gr, gi, mr, mi, er, ei):
    return [f"v_fma_f32 v{dr}, v{mr}, v{gr}, v{er}", f"v_fma_f32 v{di}, v{mr}, v{gi}, v{ei}",
            f"v_fma_f32 v{dr}, -v{mi}, v{gi}, v{dr}", f"v_fma_f32 v{di}, v{mi}, v{gr}, v{di}"]

LOG2E = "0x3fb8aa3b"
NLOG2E = "0xbfb8aa3b"
INV2PI = "0.15915494"

def x_piece(n):
    f, S, ih = n // 20, (n % 20) // 2, n & 1
    p = n & 3
    r = []
    if p == 0:
        r = [f"s_add_u32 m0, s{sM0}, {f*81920 + (2*S)*1024}", f"s_add_u32 s{sD1}, s{sKU[S >> 1]}, s{sXOFF}"]
        if f: r.append(f"s_add_u32 s{sD1}, s{sD1}, {4*1280}")
    r.append(I(f"buffer_load_dwordx4 v{vXD[p]}, s[{sX}:{sX+3}], s{sD1} offen offset:{p*1024} {opt.x_flags} lds", tok=f"x{f}_{S}"))
    return r
def u_piece(i, cf):
    r = []
    if cf == 0: r = [f"s_add_u32 m0, s{sM0U}, {i*20480}", f"s_add_u32 s{sD1}, s{sKU[i]}, s{sUOFF}"]
    if cf == 4: r = [f"s_add_u32 m0, s{sM0U}, {i*20480 + 4096}", f"s_add_u32 s{sD1}, s{sD1}, {4*10240}"]
    r.append(I(f"buffer_load_dwordx4 v{vUD[cf & 3]}, s[{sWU}:{sWU+3}], s{sD1} offen offset:{(cf & 3)*1024} {opt.w_flags} lds", tok=f"U{i}"))
    return r
class Stream:
    def __init__(self): self.n = 0
    def next(self, k, limit=60):
        r = []
        for _ in range(k):
            if self.n >= limit: break
            r += x_piece(self.n) if self.n < 40 else u_piece((self.n - 40) // 5, (self.n - 40) % 5)
            self.n += 1
        return r
ST = Stream()

def prologue():
    E(f"s_cmp_ge_u32 s2, 256")
    E("s_cbranch_scc1 L_exit")
    E("s_load_dwordx16 s[4:19], s[0:1], 0")
    E("s_load_dwordx16 s[20:35], s[0:1], 64")
    if opt.stamps or opt.probe == "entry":
        E(f"s_{'memtime' if opt.cycles else 'memrealtime'} s[{sSTAMP}:{sSTAMP+1}]")
    if opt.codepf:
        n = opt.pflines
        L(["@raw_begin", f"s_getpc_b64 s[{sT2}:{sT3}]", "L_pc:",
           f"s_lshr_b32 s{sT4}, s2, 3", f"s_mul_i32 s{sT4}, s{sT4}, {n*128}",
           f"v_min_u32 v{vT[0]}, {n-1}, v0", f"v_lshlrev_b32 v{vT[0]}, 7, v{vT[0]}", f"v_add_u32 v{vT[0]}, s{sT4}, v{vT[0]}",
           f"v_min_u32 v{vT[0]}, L_codeend-L_pc-4, v{vT[0]}",
           f"v_mov_b32 v{vT[1]}, s{sT3}", f"v_add_co_u32 v{vT[0]}, vcc, s{sT2}, v{vT[0]}", f"v_cmp_gt_u32 s[{sEX0}:{sEX0+1}], {n}, v0", "s_nop 0",
           f"v_addc_co_u32 v{vT[1]}, vcc, 0, v{vT[1]}, vcc", f"s_and_b64 s[{sEX0}:{sEX0+1}], s[{sEX0}:{sEX0+1}], exec",
           "s_cbranch_scc0 L_nopf", f"s_mov_b64 exec, s[{sEX0}:{sEX0+1}]",
           f"global_load_dword a230, v[{vT[0]}:{vT[1]}], off", "s_mov_b64 exec, -1", "L_nopf:", "@raw_end"])
    E(f"v_lshrrev_b32 v{vT[0]}, 6, v0")
    E(f"v_and_b32 v{vLANE}, 63, v0")
    E(f"v_readfirstlane_b32 s{sW}, v{vT[0]}")
    E(f"v_lshlrev_b32 v{vL16}, 4, v{vLANE}")
    L([f"s_and_b32 s{sT0}, s2, 7", f"s_lshr_b32 s{sT1}, s2, 3"])
    if opt.p1map == 0:
        L([f"s_and_b32 s{sC}, s{sT0}, 1", f"s_lshl_b32 s{sC}, s{sC}, 3", f"s_and_b32 s{sT2}, s{sT1}, 7", f"s_add_u32 s{sC}, s{sC}, s{sT2}",
           f"s_lshr_b32 s{sG}, s{sT0}, 1", f"s_lshl_b32 s{sG}, s{sG}, 2", f"s_lshr_b32 s{sT2}, s{sT1}, 3", f"s_add_u32 s{sG}, s{sG}, s{sT2}"])
    else:
        L([f"s_and_b32 s{sC}, s{sT0}, 3", f"s_lshl_b32 s{sC}, s{sC}, 2", f"s_and_b32 s{sT2}, s{sT1}, 3", f"s_add_u32 s{sC}, s{sC}, s{sT2}",
           f"s_lshr_b32 s{sG}, s{sT0}, 2", f"s_lshl_b32 s{sG}, s{sG}, 3", f"s_lshr_b32 s{sT2}, s{sT1}, 2", f"s_add_u32 s{sG}, s{sG}, s{sT2}"])
    t0, t1, t2, t3 = vT[0:4]
    L([f"v_lshrrev_b32 v{t0}, 3, v{vLANE}", f"v_and_b32 v{t1}, 7, v{vLANE}", f"v_and_b32 v{t2}, 6, v{t0}",
       f"v_xor_b32 v{t1}, v{t1}, v{t2}", f"v_lshlrev_b32 v{t1}, 4, v{t1}",
       f"v_and_b32 v{t2}, 4, v{t0}", f"v_add_u32 v{t2}, v{t2}, v{t0}",
       f"v_mul_u32_u24 v{vD[0]}, 1280, v{t2}", f"v_add_u32 v{vD[0]}, v{vD[0]}, v{t1}",
       f"v_mul_u32_u24 v{vDU}, 1280, v{t0}", f"v_add_u32 v{vDU}, v{vDU}, v{t1}",
       f"v_add_u32 v{vD[0]}, 4096, v{vD[0]}", f"v_add_u32 v{vD[1]}, {16*1280 - 1024}, v{vD[0]}",
       f"v_add_u32 v{vD[2]}, {128 - 2048}, v{vD[0]}", f"v_add_u32 v{vD[3]}, {16*1280 + 128 - 3072}, v{vD[0]}"])
    L([f"s_mul_i32 s{sT2}, s{sG}, 80", f"v_min_u32 v{t3}, 39, v{vLANE}", f"v_lshlrev_b32 v{t3}, 1, v{t3}", f"v_add_u32 v{t3}, s{sT2}, v{t3}"])
    L([f"s_lshl_b32 s{sXOFF}, s{sC}, 2", f"s_add_u32 s{sXOFF}, s{sXOFF}, s{sW}", f"s_mul_i32 s{sXOFF}, s{sXOFF}, {0 if opt.xhit else 32*1280}",
       f"s_mul_i32 s{sM0}, s{sW}, 20480"])
    if opt.krot:
        L([f"s_add_u32 s{sT4}, s{sC}, s{sG}", f"s_mul_i32 s{sT5}, s{sT4}, 52", f"s_lshr_b32 s{sT5}, s{sT5}, 8", f"s_mul_i32 s{sT5}, s{sT5}, 5",
           f"s_sub_u32 s{sT4}, s{sT4}, s{sT5}", f"s_lshl_b32 s{sT4}, s{sT4}, 8"])
    else:
        E(f"s_mov_b32 s{sT4}, 0")
    E("@waitds0")
    if opt.probe == "entry": E(f"s_mov_b32 s3, s{sSTAMP}")
    if opt.stamps:
        E(f"v_mov_b32 v0, 0")
        E(f"v_writelane_b32 v0, s{sSTAMP}, 0"); stamp_n[0] = 1; stamp_names.append("entry")
    if opt.chain:
        L([f"s_mul_i32 s{sT2}, s2, {60*128}", f"s_add_u32 s{sT2}, s{pW2}, s{sT2}", f"s_addc_u32 s{sT3}, s{pW2+1}, 0", f"v_mov_b32 v{vT[8]}, 0"])
        for k in range(opt.chain):
            L([f"global_load_dword v{vT[9]}, v{vT[8]}, s[{sT2}:{sT3}]", "@waitvm0", f"v_add_u32 v{vT[8]}, 128, v{vT[8]}"])
    E(f"global_load_ushort v{vT[4]}, v{t3}, s[{pLRE}:{pLRE+1}]")
    E(f"global_load_ushort v{vT[5]}, v{t3}, s[{pLIM}:{pLIM+1}]")
    E(f"global_load_ushort v{vT[6]}, v{t3}, s[{pLDT}:{pLDT+1}]")
    L([f"s_sub_u32 s{sX}, s{pX}, 4096", f"s_subb_u32 s{sX+1}, s{pX+1}, 0", f"s_and_b32 s{sX+1}, s{sX+1}, 0xffff",
       f"s_mov_b32 s{sX+2}, {2048*1280 + 4096}", f"s_mov_b32 s{sX+3}, 0x20000"])
    L(srd(sDBG, pDBG, 256))
    def ku(j): return [f"s_add_u32 s{sKU[j]}, s{sT4}, {j*256}", f"s_cmp_ge_u32 s{sKU[j]}, 1280", f"s_cselect_b32 s{sT5}, 1280, 0", f"s_sub_u32 s{sKU[j]}, s{sKU[j]}, s{sT5}"]
    L(ku(0)); L(ST.next(4))
    L(srd(sWS, pWS, WS_SIZE))
    L([f"s_or_b32 s{sT2}, s2, s{sW}", f"s_cmp_eq_u32 s{sT2}, 0", f"s_mov_b32 s{sT3}, {WS_SEED}", f"s_cselect_b32 s{sSEEDO}, s{sT3}, {OOB}"])
    E(f"buffer_load_dword v{vT[7]}, off, s[{sWS}:{sWS+3}], s{sSEEDO} sc1")
    L(ku(1)); L(ST.next(opt.win - 4))
    for j in range(2, 5): L(ku(j))
    i_, q_, a0, a1 = vT[8:12]
    L([f"v_and_b32 v{i_}, 15, v{vLANE}", f"v_lshrrev_b32 v{q_}, 4, v{vLANE}",
       f"v_and_b32 v{a0}, 7, v{i_}", f"v_and_b32 v{a1}, 6, v{i_}", f"v_xor_b32 v{a1}, v{a1}, v{q_}", f"v_lshlrev_b32 v{a1}, 4, v{a1}",
       f"v_lshl_add_u32 v{a1}, v{a0}, 7, v{a1}",
       f"v_lshrrev_b32 v{a0}, 3, v{i_}",
       f"v_mul_u32_u24 v{vRU[0]}, 5120, v{a0}", f"v_add_u32 v{vRU[0]}, v{vRU[0]}, v{a1}", f"v_xor_b32 v{vRU[1]}, 64, v{vRU[0]}",
       f"v_lshl_add_u32 v{vRX[0]}, v{a0}, 10, v{a1}", f"v_add_u32 v{vRX[0]}, s{sM0}, v{vRX[0]}", f"v_xor_b32 v{vRX[1]}, 64, v{vRX[0]}",
       f"v_add_u32 v{vW4}, 4096, v{vL16}", f"v_mov_b32 v{vONES}, 0x3f803f80"])
    L([f"v_accvgpr_write_b32 a{aONE+k}, v{vONES}" for k in range(4)])
    L([f"v_add_u32 v{vUD[p]}, {p*(10240 - 1024)}, v{vDU}" for p in range(1, 4)])

def setup_rest():
    t0 = vT[0]
    L([f"s_bitcmp1_b32 s{sW}, 0",
       f"s_cselect_b32 s{sWU}, s{pBIM}, s{pBRE}", f"s_cselect_b32 s{sWU+1}, s{pBIM+1}, s{pBRE+1}",
       f"s_cselect_b32 s{sWM}, s{pW3}, s{pW1}", f"s_cselect_b32 s{sWM+1}, s{pW3+1}, s{pW1+1}",
       f"s_and_b32 s{sWU+1}, s{sWU+1}, 0xffff", f"s_and_b32 s{sWM+1}, s{sWM+1}, 0xffff",
       f"s_mov_b32 s{sWU+2}, {640*1280}", f"s_mov_b32 s{sWU+3}, 0x20000",
       f"s_mov_b32 s{sWM+2}, {640*3072}", f"s_mov_b32 s{sWM+3}, 0x20000"])
    L(srd(sOUT, pOUT, 2048*2560))
    if opt.p2map == 0:
        L([f"s_lshl_b32 s{sRT}, s{sT0}, 2", f"s_and_b32 s{sT2}, s{sT1}, 3", f"s_add_u32 s{sRT}, s{sRT}, s{sT2}", f"s_lshr_b32 s{sN}, s{sT1}, 2"])
    else:
        L([f"s_and_b32 s{sRT}, s{sT0}, 3", f"s_lshl_b32 s{sRT}, s{sRT}, 3", f"s_and_b32 s{sT2}, s{sT1}, 7", f"s_add_u32 s{sRT}, s{sRT}, s{sT2}",
           f"s_lshr_b32 s{sN}, s{sT0}, 2", f"s_lshl_b32 s{sN}, s{sN}, 2", f"s_lshr_b32 s{sT2}, s{sT1}, 3", f"s_add_u32 s{sN}, s{sN}, s{sT2}"])
    L([f"s_mul_i32 s{sUOFF}, s{sG}, {40*1280}", f"s_lshr_b32 s{sT2}, s{sW}, 1", f"s_lshl_b32 s{sT2}, s{sT2}, 7", f"s_add_u32 s{sUOFF}, s{sUOFF}, s{sT2}",
       f"s_mul_i32 s{sM0U}, s{sW}, 5120"])
    L([f"s_mul_i32 s{sT2}, s{sG}, 192", f"s_bitcmp1_b32 s{sG}, 0",
       f"s_cselect_b32 s{sT3}, 64, 0", f"s_cselect_b32 s{sT4}, 0, 128", f"s_add_u32 s{sMOFF}, s{sT2}, s{sT3}", f"s_add_u32 s{sMOFFB}, s{sT2}, s{sT4}",
       f"s_lshr_b32 s{sT2}, s{sW}, 1",
       f"s_mul_i32 s{sT3}, s{sT2}, {32*3072}", f"s_add_u32 s{sMOFF}, s{sMOFF}, s{sT3}",
       f"s_mul_i32 s{sT3}, s{sT2}, {64*3072}", f"s_add_u32 s{sMOFFB}, s{sMOFFB}, s{sT3}",
       f"s_lshl_b32 s{sM0A}, s{sW}, 12"])
    L([f"s_lshl_b32 s{sT3}, s{sC}, 1", f"s_add_u32 s{sT3}, s{sT3}, s{sT2}", f"s_mul_i32 s{sA2H}, s{sT3}, {88*4096}",
       f"s_and_b32 s{sT3}, s{sW}, 1", f"s_lshl_b32 s{sT3}, s{sT3}, 11", f"s_add_u32 s{sA2H}, s{sA2H}, s{sT3}",
       f"s_mul_i32 s{sT3}, s{sG}, 3", f"s_add_u32 s{sT3}, s{sT3}, 40", f"s_and_b32 s{sT4}, s{sG}, 1",
       f"s_add_u32 s{sKSA}, s{sT3}, s{sT4}", f"s_lshl_b32 s{sKSA}, s{sKSA}, 12", f"s_add_u32 s{sKSA}, s{sKSA}, s{sA2H}",
       f"s_xor_b32 s{sT4}, s{sT4}, 1", f"s_lshl_b32 s{sT4}, s{sT4}, 1",
       f"s_add_u32 s{sKSB}, s{sT3}, s{sT4}", f"s_lshl_b32 s{sKSB}, s{sKSB}, 12", f"s_add_u32 s{sKSB}, s{sKSB}, s{sA2H}"])
    L([f"s_lshl_b32 s{sT3}, s{sG}, 4", f"s_add_u32 s{sT4}, s{sT3}, s{sC}", f"s_mul_i32 s{sT4}, s{sT4}, 640", f"s_add_u32 s{sT4}, s{sT4}, {WS_S}",
       f"s_cmp_eq_u32 s{sW}, 3", f"s_cselect_b32 s{sSST}, s{sT4}, {OOB}"])
    for jj, sl in enumerate((sLB0, sLB1, sLB2, sLB3)):
        L([f"s_lshl_b32 s{sT4}, s{sW}, 2", f"s_add_u32 s{sT4}, s{sT4}, s{sC}", f"s_add_i32 s{sT4}, s{sT4}, {jj-16}",
           f"s_add_u32 s{sT5}, s{sT3}, s{sT4}", f"s_mul_i32 s{sT5}, s{sT5}, 640", f"s_add_u32 s{sT5}, s{sT5}, {WS_S}",
           f"s_cmp_ge_i32 s{sT4}, 0", f"s_cselect_b32 s{sl}, s{sT5}, {OOB}"])
    L([f"s_lshl_b32 s{sT3}, s{sC}, 2", f"s_add_u32 s{sT3}, s{sT3}, s{sW}", f"s_lshl_b32 s{sT3}, s{sT3}, 8", f"s_add_u32 s{sT3}, s{sT3}, {WS_STAT}",
       f"s_cmp_eq_u32 s{sG}, 0", f"s_cselect_b32 s{sSTATO}, s{sT3}, {OOB}"])
    for cf in range(5):
        L([f"s_mul_i32 s{sT2}, s{sG}, 5", f"s_add_u32 s{sT2}, s{sT2}, {cf}", f"s_and_b32 s{sT4}, s{sT2}, 3", f"s_lshr_b32 s{sT2}, s{sT2}, 2",
           f"s_lshl_b32 s{sT2}, s{sT2}, 12", f"s_lshl_b32 s{sT4}, s{sT4}, 8", f"s_add_u32 s{sT2}, s{sT2}, s{sT4}", f"s_add_u32 s{sHO[cf]}, s{sT2}, s{sA2H}"])
    L([f"s_mul_i32 s{sP2A}, s{sRT}, {88*4096}", f"s_mul_i32 s{sP2W}, s{sN}, {88*5120}", f"s_add_u32 s{sP2W}, s{sP2W}, {WS_W2P}"])
    if "A" in opt.fakehit: E(f"s_mov_b32 s{sP2A}, 0")
    if "W" in opt.fakehit: E(f"s_mov_b32 s{sP2W}, {WS_W2P}")
    L(ptr_bases())

cAR, cAI, cKR, cKI = 56, 57, 58, 59
cA8, cA32, cA32W, cA128, cOM = 60, 62, 64, 66, 68
def constants():
    lre, lim, ldt = vT[4], vT[5], vT[6]
    t = list(range(72, 96))
    L([f"v_lshlrev_b32 v{lre}, 16, v{lre}", f"v_lshlrev_b32 v{lim}, 16, v{lim}", f"v_lshlrev_b32 v{ldt}, 16, v{ldt}",
       f"v_mul_f32 v{t[0]}, {LOG2E}, v{ldt}", f"v_exp_f32 v{t[0]}, v{t[0]}",
       f"v_cvt_pk_bf16_f32 v{t[0]}, v{t[0]}, v{t[0]}", f"v_lshlrev_b32 v{t[0]}, 16, v{t[0]}",
       f"v_mul_f32 v{t[1]}, v{t[0]}, v{lre}", f"v_mul_f32 v{t[2]}, v{t[0]}, v{lim}",
       f"v_mul_f32 v{t[1]}, {LOG2E}, v{t[1]}", f"v_exp_f32 v{t[1]}, v{t[1]}",
       f"v_mul_f32 v{t[2]}, {INV2PI}, v{t[2]}", f"v_rndne_f32 v{t[3]}, v{t[2]}", f"v_sub_f32 v{t[2]}, v{t[2]}, v{t[3]}",
       f"v_cos_f32 v{t[3]}, v{t[2]}", f"v_sin_f32 v{t[4]}, v{t[2]}",
       f"v_mul_f32 v{cAR}, v{t[1]}, v{t[3]}", f"v_mul_f32 v{cAI}, v{t[1]}, v{t[4]}",
       f"v_add_f32 v{t[3]}, -1.0, v{cAR}",
       f"v_mul_f32 v{t[5]}, v{lre}, v{lre}", f"v_fmac_f32 v{t[5]}, v{lim}, v{lim}", f"v_rcp_f32 v{t[5]}, v{t[5]}",
       f"v_mul_f32 v{t[6]}, v{t[3]}, v{lre}", f"v_fmac_f32 v{t[6]}, v{cAI}, v{lim}",
       f"v_mul_f32 v{t[7]}, v{cAI}, v{lre}", f"v_fma_f32 v{t[7]}, -v{t[3]}, v{lim}, v{t[7]}",
       f"v_add_f32 v{t[5]}, v{t[5]}, v{t[5]}",
       f"v_mul_f32 v{cKR}, v{t[6]}, v{t[5]}", f"v_mul_f32 v{cKI}, v{t[7]}, v{t[5]}"])
    r, i, tt = t[8], t[9], t[0]
    L([f"v_mov_b32 v{r}, v{cAR}", f"v_sub_f32 v{i}, 0, v{cAI}"])
    L(csq(t[10], t[11], r, i, tt)); L(csq(r, i, t[10], t[11], tt))
    L(csq(cA8, cA8+1, r, i, tt))
    L(csq(r, i, cA8, cA8+1, tt))
    L(csq(cA32, cA32+1, r, i, tt))
    L(csq(t[12], t[13], cA32, cA32+1, tt))
    L(csq(cA128, cA128+1, t[12], t[13], tt))
    L(csq(r, i, cA128, cA128+1, tt))
    L(csq(t[14], t[15], r, i, tt))
    L(csq(t[16], t[17], t[14], t[15], tt))
    def sel(dst, src, mask, on):
        if on:
            return [f"v_cndmask_b32 v{dst}, 1.0, v{src}, s[{mask}:{mask+1}]", f"v_cndmask_b32 v{dst+1}, 0, v{src+1}, s[{mask}:{mask+1}]"]
        return [f"v_mov_b32 v{t[22]}, 1.0", f"v_mov_b32 v{t[23]}, 0",
                f"v_cndmask_b32 v{dst}, v{src}, v{t[22]}, s[{mask}:{mask+1}]", f"v_cndmask_b32 v{dst+1}, v{src+1}, v{t[23]}, s[{mask}:{mask+1}]"]
    L([f"s_bitcmp1_b32 s{sW}, 0", f"s_cselect_b64 s[{sEX0}:{sEX0+1}], -1, 0", f"s_bitcmp1_b32 s{sW}, 1", f"s_cselect_b64 s[{sEX2}:{sEX2+1}], -1, 0"])
    L(sel(t[18], cA32, sEX0, True)); L(sel(t[20], t[12], sEX2, True))
    L(cmul(cA32W, cA32W+1, t[18], t[19], t[20], t[21], tt))
    L(sel(t[18], t[14], sEX0, False)); L(sel(t[20], t[16], sEX2, False))
    L(cmul(cOM, cOM+1, t[18], t[19], t[20], t[21], tt))

def nonce_seed():
    sd = vT[7]
    L([f"s_mov_b32 s{sT2}, 1664525", f"v_mul_lo_u32 v{sd}, v{sd}, s{sT2}", f"v_add_u32 v{vNON}, 1013904223, v{sd}", f"v_mov_b32 v{vNON+1}, 1"])
    E(f"buffer_store_dword v{vNON}, off, s[{sWS}:{sWS+3}], s{sSEEDO} sc1", tok="seed")
def nonce_publish():
    return [f"s_cmp_lt_u32 s{sSEEDO}, {OOB}", f"s_cselect_b32 s{sT5}, 0, {OOB}", "@waitvm seed",
            f"buffer_store_dwordx2 v[{vNON}:{vNON+1}], off, s[{sDBG}:{sDBG+3}], s{sT5} sc1"]

lab = [0]
def poll(load_text, check):
    lab[0] += 1
    n = lab[0]
    r = list(check)
    r += [f"s_cbranch_vccz L_ok{n}", "@raw_begin", f"s_mov_b32 s{sCNT}, {0x4000 if opt.diag else 0x40000}", f"L_rt{n}:", "s_sleep 1"]
    r += [t.text if isinstance(t, I) else t for t in load_text]
    r += ["s_waitcnt vmcnt(0)", "s_nop 1"] + list(check) + [f"s_cbranch_vccz L_ok{n}", f"s_sub_u32 s{sCNT}, s{sCNT}, 1",
          f"s_cmp_lg_u32 s{sCNT}, 0", f"s_cbranch_scc1 L_rt{n}"]
    if opt.diag: r += [f"buffer_store_dword v{vLANE}, off, s[{sDBG}:{sDBG+3}], 0 offset:{32+4*n} sc1", "s_waitcnt vmcnt(0)"]
    r += ["s_nop 7", "@raw_end", f"L_ok{n}:"]
    return r
def nonce_load():
    return [f"buffer_load_dwordx2 v[{vNON}:{vNON+1}], off, s[{sDBG}:{sDBG+3}], 0 sc1"]
def nonce_get():
    return poll(nonce_load(), [f"v_cmp_ne_u32 vcc, 1, v{vNON+1}"]) + [f"v_readfirstlane_b32 s{sNONCE}, v{vNON}"]

sS0, sS1, sQ0, sQ1 = vT[8], vT[9], vT[10], vT[11]
vR = [vT[12], vT[14]]; vNB = [vT[13], vT[15]]
vM = [vT[16], vT[17]]
vONES = vT[18]
def x_arrive(f, filler=None, limit=60):
    fa = atoms(II(filler or []))
    tot = sum(len(a) for a in fa); chunks = [[] for _ in range(10)]; acc = 0
    for a in fa:
        chunks[min(9, acc * 10 // max(tot, 1))] += a; acc += len(a)
    if not opt.mstat: L([f"v_mov_b32 v{sS0}, 0", f"v_mov_b32 v{sS1}, 0", f"v_mov_b32 v{sQ0}, 0", f"v_mov_b32 v{sQ1}, 0"])
    def st(s):
        r = []
        if opt.mstat:
            c0 = "0" if s == 0 else ar(aSS); c1 = "0" if s == 0 else ar(aSQ)
            return [f"v_mfma_f32_16x16x32_bf16 {ar(aSS)}, {ar(aONE)}, {vr(X(f, s))}, {c0}",
                    f"v_mfma_f32_16x16x32_bf16 {ar(aSQ)}, {vr(X(f, s))}, {vr(X(f, s))}, {c1}"]
        for k in range(4):
            x = X(f, s) + k
            r += [f"v_dot2_f32_bf16 v{(sS0, sS1)[k&1]}, v{x}, v{vONES}, v{(sS0, sS1)[k&1]}",
                  f"v_dot2_f32_bf16 v{(sQ0, sQ1)[k&1]}, v{x}, v{x}, v{(sQ0, sQ1)[k&1]}"]
        return r
    for S in range(10):
        E(f"@waitvm x{f}_{S}")
        for sh in range(2):
            E(f"ds_read_b128 {vr(X(f, 2*S+sh))}, v{vRX[sh]} offset:{S*2048}", tok=f"xr{f}_{2*S+sh}")
        fl = chunks[S]
        L(ST.next(2 if ST.n % 2 == 0 or True else 1, limit))
        if S > 0:
            E(f"@waitds xr{f}_{2*S-1}")
            L(st(2*S-2)); L(st(2*S-1))
        L(fl)
    E("@waitds0")
    return st(18) + st(19)

aONE, aSS, aSQ = 216, 220, 224
def x_stats(f):
    a, b = vT[19], vT[20]
    r = [f"v_add_f32 v{sS0}, v{sS0}, v{sS1}", f"v_add_f32 v{sQ0}, v{sQ0}, v{sQ1}"]
    if opt.mstat:
        t = vT[8:12]
        r = [f"v_and_b32 v{a}, 15, v{vLANE}", f"v_lshrrev_b32 v{b}, 2, v{a}", f"v_lshl_add_u32 v{b}, v{b}, 4, v{a}", f"v_lshlrev_b32 v{b}, 2, v{b}",
             f"v_and_b32 v{a}, 3, v{vLANE}", f"v_cmp_eq_u32 s[{sEX0}:{sEX0+1}], 1, v{a}", f"v_cmp_eq_u32 s[{sEX2}:{sEX2+1}], 2, v{a}", f"v_cmp_eq_u32 vcc, 3, v{a}"]
        r += [f"v_accvgpr_read_b32 v{t[k]}, a{aSQ+k}" for k in range(4)]
        r += [f"v_cndmask_b32 v{t[0]}, v{t[0]}, v{t[1]}, s[{sEX0}:{sEX0+1}]", f"v_cndmask_b32 v{t[2]}, v{t[2]}, v{t[3]}, vcc",
              f"v_cndmask_b32 v{t[0]}, v{t[0]}, v{t[2]}, s[{sEX2}:{sEX2+1}]", f"v_cndmask_b32 v{t[0]}, v{t[0]}, v{t[2]}, vcc",
              f"ds_bpermute_b32 v{sQ0}, v{b}, v{t[0]}", f"v_accvgpr_read_b32 v{sS0}, a{aSS}"]
    for perm in (() if opt.mstat else ("v_permlane16_swap_b32", "v_permlane32_swap_b32")):
        r += [f"v_mov_b32 v{a}, v{sS0}", f"v_mov_b32 v{b}, v{sQ0}", f"{perm} v{a}, v{sS0}", f"{perm} v{b}, v{sQ0}",
              f"v_add_f32 v{sS0}, v{sS0}, v{a}", f"v_add_f32 v{sQ0}, v{sQ0}, v{b}"]
    inv = "0x3acccccd"
    r += [f"v_mul_f32 v{sS0}, {inv}, v{sS0}", f"v_mul_f32 v{sQ0}, {inv}, v{sQ0}",
          f"v_fma_f32 v{sQ0}, -v{sS0}, v{sS0}, v{sQ0}", f"v_max_f32 v{sQ0}, 0, v{sQ0}",
          f"v_cvt_pk_bf16_f32 v{a}, v{sS0}, v{sQ0}",
          f"v_lshlrev_b32 v{vM[f]}, 16, v{a}", f"v_and_b32 v{b}, 0xffff0000, v{a}",
          f"v_add_f32 v{b}, 0x3727c5ac, v{b}",
          f"v_cvt_pk_bf16_f32 v{b}, v{b}, v{b}", f"v_and_b32 v{b}, 0xffff0000, v{b}",
          f"v_sqrt_f32 v{b}, v{b}", f"v_cvt_pk_bf16_f32 v{b}, v{b}, v{b}", f"v_and_b32 v{b}, 0xffff0000, v{b}",
          f"v_rcp_f32 v{vR[f]}, v{b}", f"v_mul_f32 v{vNB[f]}, v{vM[f]}, v{vR[f]}", f"v_sub_f32 v{vNB[f]}, 0, v{vNB[f]}"]
    return r

def norm_step(f, s, packed, tmp):
    r = []
    for k in range(4):
        x = X(f, s) + k
        t = tmp[(k & 1) * 2]
        if packed:
            r += [f"v_lshlrev_b32 v{t}, 16, v{x}", f"v_and_b32 v{t+1}, 0xffff0000, v{x}",
                  f"v_pk_fma_f32 v[{t}:{t+1}], v[{t}:{t+1}], v[{vR[f]}:{vR[f]+1}], v[{vR[f]}:{vR[f]+1}] op_sel:[0,0,1] op_sel_hi:[1,0,1]",
                  f"v_cvt_pk_bf16_f32 v{x}, v{t}, v{t+1}"]
        else:
            r += [f"v_lshlrev_b32 v{t}, 16, v{x}", f"v_and_b32 v{t+1}, 0xffff0000, v{x}",
                  f"v_fma_f32 v{t}, v{t}, v{vR[f]}, v{vNB[f]}", f"v_fma_f32 v{t+1}, v{t+1}, v{vR[f]}, v{vNB[f]}",
                  f"v_cvt_pk_bf16_f32 v{x}, v{t}, v{t+1}"]
    return r

def stats_store():
    a, b = vT[0], vT[1]
    r = [f"v_and_b32 v{a}, 12, v{vLANE}", f"v_add_u32 v{a}, v{a}, v{vLANE}", f"v_lshlrev_b32 v{a}, 3, v{a}",
         f"v_mov_b32 v{b}, {OOB}", f"v_cmp_gt_u32 vcc, 16, v{vLANE}", f"v_cndmask_b32 v{a}, v{b}, v{a}, vcc"]
    for f in range(2):
        r.append(I(f"buffer_store_dwordx2 v[{vR[f]}:{vR[f]+1}], v{a}, s[{sWS}:{sWS+3}], s{sSTATO} offen offset:{32*f} sc1", tok="stat"))
    return r

def mlp_dma_addr(kind):
    vD = vDB if kind == "B" else globals()["vD"]
    t0, t1, t2 = vD[1], vD[2], vD[3]
    if kind == "A":
        r = [f"v_lshrrev_b32 v{t0}, 3, v{vLANE}", f"v_and_b32 v{t1}, 7, v{vLANE}", f"v_and_b32 v{t2}, 2, v{t0}", f"v_lshlrev_b32 v{t2}, 1, v{t2}",
             f"v_xor_b32 v{t1}, v{t1}, v{t2}", f"v_lshlrev_b32 v{t1}, 4, v{t1}",
             f"v_mul_u32_u24 v{t0}, 3072, v{t0}", f"v_add_u32 v{vD[0]}, v{t0}, v{t1}"]
        rows = 8
    else:
        r = [f"v_lshrrev_b32 v{t0}, 2, v{vLANE}", f"v_and_b32 v{t1}, 3, v{vLANE}", f"v_lshlrev_b32 v{t1}, 4, v{t1}",
             f"v_mul_u32_u24 v{t0}, 3072, v{t0}", f"v_add_u32 v{vD[0]}, v{t0}, v{t1}"]
        rows = 16
    for p in range(1, 4):
        r.append(f"v_add_u32 v{vD[p]}, {p*(rows*3072 - 1024)}, v{vD[0]}")
    if kind == "B": r.append(f"v_add_u32 v{vRB2}, 0x10000, v{vRB}")
    return r

def b_off(m): return f"s_add_u32 s{sD2}, s{sKA[m - 10]}, s{sMOFFB}"
def dma_M(m):
    if "m" in opt.skip and m >= 4:
        i = I("s_nop 0"); i.tok = f"M{m}"; return [i]
    slot = m % 4 if m < 10 else BSLOT[m]
    vD = globals()["vD"] if m < 10 else vDB
    if m < 10:
        sreg = sD0 if m & 1 else sKA[m >> 1]
        so = [f"s_add_u32 s{sD0}, s{sKA[m >> 1]}, {64*3072}"] if m & 1 else []
    if m >= 10:
        r = []
        for p in range(4):
            r += [f"s_add_u32 m0, s{sM0A}, {slot*16384}"] + ([b_off(m)] if p == 0 else ["s_nop 0"])
            r.append(I(f"buffer_load_dwordx4 v{vD[p]}, s[{sWM}:{sWM+3}], s{sD2} offen offset:{p*1024} {opt.w_flags} lds", tok=f"M{m}"))
        return r
    r = [f"s_add_u32 m0, s{sM0A}, {slot*16384}"] + so
    for p in range(4):
        r.append(I(f"buffer_load_dwordx4 v{vD[p]}, s[{sWM}:{sWM+3}], s{sreg} offen offset:{p*1024} {opt.w_flags} lds", tok=f"M{m}"))
    return r

def w13_touch_addr():
    a, b = vT[5], vT[6]
    return [f"v_lshrrev_b32 v{a}, 1, v{vLANE}", f"v_mul_u32_u24 v{a}, 3072, v{a}", f"v_and_b32 v{b}, 1, v{vLANE}", f"v_lshl_add_u32 v{a}, v{b}, 7, v{a}",
            f"v_accvgpr_write_b32 a238, v{a}", f"v_mov_b32 v{b}, {OOB}", f"v_cmp_gt_u32 vcc, 16, v{vLANE}", f"v_cndmask_b32 v{a}, v{b}, v{a}, vcc",
            f"v_accvgpr_write_b32 a239, v{a}",
            f"s_and_b32 s{sT2}, s{sC}, 7", f"s_lshl_b32 s{sT2}, s{sT2}, 1", f"s_lshr_b32 s{sT3}, s{sW}, 1", f"s_add_u32 s{sT2}, s{sT2}, s{sT3}",
            f"s_mul_i32 s{sT2}, s{sT2}, {40*3072}", f"s_mul_i32 s{sT3}, s{sG}, 192", f"s_and_b32 s{sT3}, s{sT3}, 0xffffff80", f"s_add_u32 s{sD2}, s{sT2}, s{sT3}"]
def w13_touch():
    a = I(f"buffer_load_dword a228, v{vFLAG}, s[{sWM}:{sWM+3}], s{sD2} offen", tok="TW"); a.lines = 64
    b = I(f"buffer_load_dword a228, v{vFLAG}, s[{sWM}:{sWM+3}], s{sD2} offen", tok="TW"); b.lines = 16
    return [[f"v_accvgpr_read_b32 v{vFLAG}, a238", a], [f"v_accvgpr_read_b32 v{vFLAG}, a239", f"s_add_u32 s{sD2}, s{sD2}, {32*3072}", b]]

def delay(tag, mod, val, ticks):
    if not opt.delay: return []
    return ["@raw_begin", f"s_and_b32 s{sD0}, s2, {mod}", f"s_cmp_eq_u32 s{sD0}, {val}", f"s_cbranch_scc0 L_dl{tag}",
            f"s_memrealtime s[{sSTAMP}:{sSTAMP+1}]", "s_waitcnt lgkmcnt(0)", f"s_mov_b32 s{sD1}, s{sSTAMP}", f"L_dw{tag}:",
            f"s_memrealtime s[{sSTAMP}:{sSTAMP+1}]", "s_waitcnt lgkmcnt(0)", f"s_sub_u32 s{sD0}, s{sSTAMP}, s{sD1}",
            f"s_cmp_lt_u32 s{sD0}, {ticks*opt.delay}", f"s_cbranch_scc1 L_dw{tag}", f"L_dl{tag}:", "@raw_end"]

def skew(tag):
    if not opt.skew: return []
    return [f"s_bitcmp1_b32 s{sW}, 0", f"s_cbranch_scc1 L_sk{tag}a", "s_nop 0", f"L_sk{tag}a:", f"s_bitcmp1_b32 s{sW}, 1", f"s_cbranch_scc1 L_sk{tag}b", "s_nop 1", f"L_sk{tag}b:"]

def mlp_read_addr():
    G, r_, c, t, u = vT[19], vT[20], vT[21], vT[22], vT[23]
    return [f"v_lshrrev_b32 v{G}, 4, v{vLANE}", f"v_bfe_u32 v{r_}, v{vLANE}, 2, 2", f"v_and_b32 v{c}, 3, v{vLANE}",
         f"v_lshrrev_b32 v{t}, 1, v{G}", f"v_lshlrev_b32 v{t}, 11, v{t}", f"v_lshl_add_u32 v{t}, v{r_}, 7, v{t}",
         f"v_and_b32 v{u}, 1, v{c}", f"v_lshl_add_u32 v{t}, v{u}, 3, v{t}",
         f"v_and_b32 v{u}, 1, v{G}", f"v_lshlrev_b32 v{u}, 1, v{u}", f"v_lshrrev_b32 v{vRA[1]}, 1, v{c}", f"v_add_u32 v{u}, v{u}, v{vRA[1]}",
         f"v_lshrrev_b32 v{vRA[1]}, 1, v{r_}", f"v_lshlrev_b32 v{vRA[1]}, 2, v{vRA[1]}", f"v_xor_b32 v{u}, v{u}, v{vRA[1]}",
         f"v_lshl_add_u32 v{vRA[0]}, v{u}, 4, v{t}", f"v_xor_b32 v{vRA[1]}, 64, v{vRA[0]}",
         f"v_lshrrev_b32 v{t}, 1, v{G}", f"v_lshlrev_b32 v{t}, 10, v{t}", f"v_lshl_add_u32 v{t}, v{r_}, 6, v{t}",
         f"v_and_b32 v{u}, 1, v{G}", f"v_lshl_add_u32 v{t}, v{u}, 5, v{t}", f"v_lshl_add_u32 v{vRB}, v{c}, 3, v{t}",
         f"v_lshlrev_b32 v{u}, 10, v{u}", f"v_lshrrev_b32 v{t}, 1, v{G}", f"v_lshl_add_u32 v{u}, v{t}, 8, v{u}",
         f"v_and_b32 v{t}, 15, v{vLANE}", f"v_lshl_add_u32 v{vHH}, v{t}, 4, v{u}"]

def relayout_issue():
    u, t0, t1, t2 = sT2, vT[5], vT[6], vT[7]
    vo = vT[0:5]
    r = [f"s_lshl_b32 s{u}, s{sW}, 5", f"s_add_u32 s{u}, s{u}, s{sRT}",
       f"s_mul_i32 s{sT3}, s{sN}, 88", f"s_add_u32 s{sT3}, s{sT3}, s{u}", f"s_mul_i32 s{sT3}, s{sT3}, 5120", f"s_add_u32 s{sT3}, s{sT3}, {WS_W2P}",
       f"s_cmp_lt_u32 s{u}, 88", f"s_cselect_b32 s{sRLST}, s{sT3}, {OOB}",
       f"s_mov_b32 s{sRL+3}, 0x20000", f"s_cmp_lt_u32 s{u}, 40", "@arm", "s_cbranch_scc0 L_rlw",
       f"s_cmp_lt_u32 s{u}, 20", f"s_cselect_b32 s{sRL}, s{pCRE}, s{pCIM}", f"s_cselect_b32 s{sRL+1}, s{pCRE+1}, s{pCIM+1}",
       f"s_cselect_b32 s{sT3}, 0, 20", f"s_sub_u32 s{sT3}, s{u}, s{sT3}", f"s_lshl_b32 s{sT3}, s{sT3}, 6",
       f"s_mul_i32 s{sT4}, s{sN}, {80*1280}", f"s_add_u32 s{sRLOFF}, s{sT3}, s{sT4}",
       f"s_mov_b32 s{sRL+2}, {640*1280}",
       f"v_lshrrev_b32 v{t0}, 2, v{vLANE}", f"v_and_b32 v{t1}, 3, v{vLANE}", f"v_lshlrev_b32 v{t1}, 4, v{t1}",
       f"v_mul_u32_u24 v{t0}, 1280, v{t0}", f"v_add_u32 v{vo[0]}, v{t0}, v{t1}"]
    for e in range(1, 5): r.append(f"v_add_u32 v{vo[e]}, {e*16*1280}, v{vo[0]}")
    r += ["s_branch L_rlj", "@else", "L_rlw:",
       f"s_mov_b32 s{sRL}, s{pW2}", f"s_mov_b32 s{sRL+1}, s{pW2+1}",
       f"s_cmp_lt_u32 s{u}, 88", f"s_cselect_b32 s{sRL+2}, {1536*1280}, 0",
       f"s_sub_u32 s{sT3}, s{u}, 40", f"s_mul_i32 s{sT3}, s{sT3}, {32*1280}", f"s_mul_i32 s{sT4}, s{sN}, 160", f"s_add_u32 s{sRLOFF}, s{sT3}, s{sT4}",
       f"s_mov_b32 s{sT4}, 6554"]
    for p in range(5):
        r += [f"v_add_u32 v{t0}, {64*p}, v{vLANE}", f"v_mul_u32_u24 v{t1}, s{sT4}, v{t0}", f"v_lshrrev_b32 v{t1}, 16, v{t1}",
              f"v_mul_u32_u24 v{t2}, 10, v{t1}", f"v_sub_u32 v{t2}, v{t0}, v{t2}", f"v_lshlrev_b32 v{t2}, 4, v{t2}",
              f"v_mul_u32_u24 v{t1}, 1280, v{t1}", f"v_add_u32 v{vo[p]}, v{t1}, v{t2}"]
    r += ["@endarm", "L_rlj:", f"s_and_b32 s{sRL+1}, s{sRL+1}, 0xffff"]
    r += [f"v_accvgpr_write_b32 a{232+p}, v{vo[p]}" for p in range(5)]
    return r
def relayout_dma():
    vo = vT[0:5]
    r = []
    if "r" in opt.skip: return r
    for p in range(5):
        r.append([f"s_add_u32 m0, s{sM0U}, {L_RL + p*1024}", f"v_accvgpr_read_b32 v3, a{232+p}",
                  I(f"buffer_load_dwordx4 v3, s[{sRL}:{sRL+3}], s{sRLOFF} offen {'nt' if opt.rl_nt else ''} lds", tok="RL")])
    return r

def relayout_raddr():
    t0, t1, t2 = vT[5], vT[6], vT[7]
    return [f"v_and_b32 v{t0}, 15, v{vLANE}", f"v_lshrrev_b32 v{t1}, 4, v{vLANE}", f"v_lshlrev_b32 v{t1}, 4, v{t1}", f"v_lshl_add_u32 v{t0}, v{t0}, 6, v{t1}",
            f"v_lshrrev_b32 v{t1}, 2, v{vLANE}", f"v_and_b32 v{t2}, 8, v{t1}", f"v_add_u32 v{t1}, v{t1}, v{t2}", f"v_mul_u32_u24 v{t1}, 160, v{t1}",
            f"v_and_b32 v{t2}, 3, v{vLANE}", f"v_lshl_add_u32 v{t1}, v{t2}, 3, v{t1}",
            f"s_lshl_b32 s{sT2}, s{sW}, 5", f"s_add_u32 s{sT2}, s{sT2}, s{sRT}", f"s_cmp_lt_u32 s{sT2}, 40", f"s_cselect_b64 s[{sEX0}:{sEX0+1}], -1, 0",
            f"s_cselect_b32 s{sRLT}, 1, 0", f"s_add_u32 s{sT3}, s{sM0U}, {L_RL}",
            f"v_cndmask_b32 v{t0}, v{t1}, v{t0}, s[{sEX0}:{sEX0+1}]", f"v_add_u32 v{t0}, s{sT3}, v{t0}", f"v_accvgpr_write_b32 a237, v{t0}"]
def relayout_finish():
    if "r" in opt.skip: return []
    t0 = vT[0]
    r = [f"v_accvgpr_read_b32 v{t0}, a237", "@waitvm RL", f"s_cmp_eq_u32 s{sRLT}, 1", "s_cbranch_scc0 L_rfw"]
    for e in range(5):
        for h in range(2): r.append(f"ds_read_b64 {ar(aRL+4*e+2*h, 2)}, v{t0} offset:{e*1024 + 8*h}")
    r += ["@raw_begin", "s_branch L_rfj", "L_rfw:"]
    for e in range(5):
        for jj in range(2): r.append(f"ds_read_b64_tr_b16 {ar(aRL+4*e+2*jj, 2)}, v{t0} offset:{jj*1280 + e*32}")
    r += ["@raw_end", "L_rfj:"]
    for e in range(5):
        if e < 4: r.append(I(f"buffer_store_dwordx4 {ar(aRL+4*e)}, v{vL16}, s[{sWS}:{sWS+3}], s{sRLST} offen offset:{e*1024} sc1", tok="RLS"))
        else: r.append(I(f"buffer_store_dwordx4 {ar(aRL+4*e)}, v{vW4}, s[{sWS}:{sWS+3}], s{sRLST} offen sc1", tok="RLS"))
    return r

def flag_store(base, sline, sidx):
    reg = {WS_FLW: sFW, WS_FLHA: sFHA, WS_FLHH: sFHH, WS_FLH: sFH}[base]
    return [f"buffer_store_dword v{vNON}, off, s[{sWS}:{sWS+3}], s{reg} sc1"]
def late_offsets():
    r = [f"s_sub_u32 s{sMOFFB}, s{sMOFFB}, s{sMOFF}"]
    for j in range(5): r += [f"s_mul_i32 s{sKA[j]}, s{sKU[j]}, 1536", f"s_add_u32 s{sKA[j]}, s{sKA[j]}, s{sMOFF}"]
    r += [f"s_lshl_b32 s{sT2}, s{sN}, 7", f"s_lshl_b32 s{sT3}, s{sRT}, 2", f"s_add_u32 s{sT2}, s{sT2}, s{sT3}", f"s_add_u32 s{sT2}, s{sT2}, {WS_FLW}",
          f"s_lshl_b32 s{sT3}, s{sC}, 7", f"s_lshl_b32 s{sT4}, s{sG}, 2", f"s_add_u32 s{sT3}, s{sT3}, s{sT4}",
          f"s_cmp_eq_u32 s{sW}, 0", f"s_cselect_b32 s{sFW}, s{sT2}, {OOB}", f"s_cselect_b32 s{sT3}, s{sT3}, {OOB}",
          f"s_add_u32 s{sFHA}, s{sT3}, {WS_FLHA}", f"s_add_u32 s{sFHH}, s{sT3}, {WS_FLHH}", f"s_add_u32 s{sFH}, s{sT3}, {WS_FLH}",
          f"s_lshr_b32 s{sFL}, s{sRT}, 1", f"s_lshl_b32 s{sFL}, s{sFL}, 7"]
    return r
def flag_load(base, sline, shift, mask, st=None):
    st = sD0 if st is None else st
    if base == WS_FLW:
        pre = [f"s_lshl_b32 s{st}, s{sN}, 7", f"s_add_u32 s{st}, s{st}, {base}"]
    else:
        pre = [f"s_add_u32 s{st}, s{sFL}, {base}"]
    return pre + [f"v_and_b32 v{vFLAG}, {mask}, v{vLANE}", f"v_lshlrev_b32 v{vFLAG}, 2, v{vFLAG}",
                  f"buffer_load_dword v{vFLAG}, v{vFLAG}, s[{sWS}:{sWS+3}], s{st} offen sc1"]
sNN = 100
def sflag_load(base):
    return [f"s_lshr_b32 s{sD0}, s{sRT}, 1", f"s_lshl_b32 s{sD0}, s{sD0}, 7", f"s_add_u32 s{sD0}, s{sD0}, {base}", f"s_add_u32 s{sD1}, s{sD0}, 32",
            f"s_load_dwordx8 s[56:63], s[{pWS}:{pWS+1}], s{sD0} glc", f"s_load_dwordx8 s[76:83], s[{pWS}:{pWS+1}], s{sD1} glc"]
def sflag_check(base):
    lab[0] += 1
    n = lab[0]
    r = ["@waitds0"]
    for k in (56, 58, 60, 62, 76, 78, 80, 82): r.append(f"s_xor_b64 s[{k}:{k+1}], s[{k}:{k+1}], s[{sNN}:{sNN+1}]")
    for a, b in ((56, 58), (60, 62), (76, 78), (80, 82), (56, 60), (76, 80), (56, 76)): r.append(f"s_or_b64 s[{a}:{a+1}], s[{a}:{a+1}], s[{b}:{b+1}]")
    ld = flag_load(base, sRT, 1, 15, sD0); chk = [f"v_cmp_ne_u32 vcc, s{sNONCE}, v{vFLAG}"]
    r += [f"s_cbranch_scc0 L_ok{n}", "@raw_begin", f"s_mov_b32 s{sCNT}, {0x4000 if opt.diag else 0x40000}", f"L_rt{n}:"] + ld
    r += ["s_waitcnt vmcnt(0)", "s_nop 1"] + chk + [f"s_cbranch_vccz L_ok{n}", "s_sleep 1", f"s_sub_u32 s{sCNT}, s{sCNT}, 1",
          f"s_cmp_lg_u32 s{sCNT}, 0", f"s_cbranch_scc1 L_rt{n}", "s_nop 7", "@raw_end", f"L_ok{n}:"]
    return r
def fl_load(base): return sflag_load(base) if opt.sflag else flag_load(base, sRT, 1, 15)
def fl_check(base): return sflag_check(base) if opt.sflag else flag_check(base, sRT, 1, 15)
def flag_check(base, sline, shift, mask):
    if "f" in opt.skip: return [f"v_mov_b32 v{vFLAG}, 0"]
    return poll(flag_load(base, sline, shift, mask, sD0), [f"v_cmp_ne_u32 vcc, s{sNONCE}, v{vFLAG}"])

def scan_addr():
    col, q, ch, t = vT[19], vT[20], vT[21], vT[22]
    return [f"s_lshl_b32 s{sT2}, s{sW}, 13", f"s_add_u32 s{sT2}, s{sT2}, {L_PRIV}",
            f"v_and_b32 v{col}, 15, v{vLANE}", f"v_lshrrev_b32 v{q}, 4, v{vLANE}",
            f"v_lshl_add_u32 v{vCOLR}, v{col}, 4, s{sT2}",
            f"v_lshl_add_u32 v{vEW}, v{q}, 2, v{vCOLR}",
            f"v_min_u32 v{ch}, 39, v{vLANE}", f"v_lshlrev_b32 v{vSO}, 4, v{ch}",
            f"v_lshrrev_b32 v{t}, 3, v{ch}", f"v_lshlrev_b32 v{t}, 3, v{t}", f"v_add_u32 v{t}, v{t}, v{ch}",
            f"v_lshl_add_u32 v{vER}, v{t}, 4, s{sT2}",
            f"v_add_u32 v{vCH}, s{sT2}, v{vL16}",
            f"s_lshl_b32 s{sT3}, s{sW}, 9", f"s_add_u32 s{sT3}, s{sT3}, {L_TT}", f"v_lshl_add_u32 v{vTT}, v{vLANE}, 3, s{sT3}",
            f"v_lshlrev_b32 v{vLB}, 5, v{vLANE}", f"v_add_u32 v{vLB}, {L_LB}, v{vLB}",
            f"s_add_u32 s{sT3}, s{sM0U}, {L_RL}",
            f"v_lshlrev_b32 v{vTW}, 5, v{col}", f"v_lshl_add_u32 v{vTW}, v{q}, 3, v{vTW}", f"v_add_u32 v{vTW}, s{sT3}, v{vTW}",
            f"v_bfe_u32 v{t}, v{vLANE}, 2, 2", f"v_lshlrev_b32 v{t}, 5, v{t}", f"v_lshl_add_u32 v{t}, v{q}, 8, v{t}",
            f"v_and_b32 v{ch}, 3, v{vLANE}", f"v_lshl_add_u32 v{t}, v{ch}, 3, v{t}", f"v_add_u32 v{vTR}, s{sT3}, v{t}",
            f"v_lshrrev_b32 v{t}, 1, v{q}", f"v_lshlrev_b32 v{t}, 10, v{t}", f"v_lshl_add_u32 v{vHST}, v{col}, 4, v{t}",
            f"v_and_b32 v{t}, 1, v{q}", f"v_mul_u32_u24 v{t}, {20*4096}, v{t}", f"v_add_u32 v{vHST}, v{vHST}, v{t}"]

def const_park():
    src = [cAR, cAI, cKR, cKI] + list(range(60, 70))
    return [f"v_accvgpr_write_b32 a{200+k}, v{s}" for k, s in enumerate(src)]
def const_tables():
    t = vT[0:8]
    r = [f"v_accvgpr_read_b32 v{t[0]}, a200", f"v_accvgpr_read_b32 v{t[1]}, a201", f"v_accvgpr_read_b32 v{t[2]}, a202", f"v_accvgpr_read_b32 v{t[3]}, a203",
         f"v_sub_f32 v{t[3]}, 0, v{t[3]}",
         f"v_mov_b32 v{t[4]}, v{t[0]}", f"v_sub_f32 v{t[5]}, 0, v{t[1]}", f"v_sub_f32 v{t[6]}, 0, v{t[2]}", f"v_mov_b32 v{t[7]}, v{t[3]}",
         f"ds_write_b128 v{vER}, {vr(t[0])} offset:{PV_COL}", f"ds_write_b128 v{vER}, {vr(t[4])} offset:{PV_COL+128}",
         f"ds_write_b128 v{vCH}, {ar(204)} offset:{PV_CH}", f"ds_write_b128 v{vCH}, {ar(208)} offset:{PV_CH+1024}",
         f"ds_write_b64 v{vCH}, {ar(212, 2)} offset:{PV_CH+2048}",
         f"v_mov_b32 v{t[0]}, 0", f"v_mov_b32 v{t[1]}, 0",
         f"s_min_u32 s{sT2}, s{sW}, 2", f"s_lshl_b32 s{sT2}, s{sT2}, 9", f"s_add_u32 s{sT2}, s{sT2}, {L_TT}",
         f"v_lshl_add_u32 v{t[2]}, v{vLANE}, 3, s{sT2}", f"ds_write_b64 v{t[2]}, {vr(t[0], 2)}"]
    return r

def ureg(cf, tau): return U(cf, tau >> 2) + (tau & 3)
DPP = "row_ror:8 row_mask:0xf bank_mask:0xf"
def scan_P12():
    C = vT[0:20]
    r = [I(f"ds_read_b128 {vr(C[4*cf])}, v{vCOLR} offset:{PV_COL + cf*256}", tok="colr") for cf in range(5)]
    r.append("@gap 1")
    t = vT[20:24]
    k = 0
    for tau in range(8):
        for cf in range(5):
            u = ureg(cf, tau); tt = t[k % 4]; k += 1
            r += [f"v_mul_f32_dpp v{tt}, v{u}, v{C[4*cf+3]} {DPP}", f"v_fma_f32 v{u}, v{C[4*cf+2]}, v{u}, v{tt}"]
    for tau in range(1, 8):
        src = [(ureg(cf, 0) if tau == 1 else C[4*cf + 2 + (tau & 1)]) for cf in range(5)]
        dst = [C[4*cf + 2 + ((tau + 1) & 1)] for cf in range(5)]
        for cf in range(5): r.append(f"v_fma_f32 v{dst[cf]}, v{C[4*cf]}, v{src[cf]}, v{ureg(cf, tau)}")
        for cf in range(5): r.append(f"v_fmac_f32_dpp v{dst[cf]}, v{src[cf]}, v{C[4*cf+1]} {DPP}")
    for cf in range(5): r.append(f"ds_write_b32 v{vEW}, v{C[4*cf+2]} offset:{PV_E + cf*256}")
    er, ei, a8 = vT[0], vT[4], vT[8]
    r += [f"ds_read_b128 {vr(a8)}, v{vCH} offset:{PV_CH}",
          f"ds_read_b128 {vr(er)}, v{vER} offset:{PV_E}", f"ds_read_b128 {vr(ei)}, v{vER} offset:{PV_E+128}", "@gap 2"]
    g0, g1 = vT[12], vT[14]
    r += chorner2(g0, g0+1, er, ei, a8, a8+1, er+1, ei+1)
    r += chorner2(g1, g1+1, g0, g0+1, a8, a8+1, er+2, ei+2)
    r += chorner2(g0, g0+1, g1, g1+1, a8, a8+1, er+3, ei+3)
    r += [f"ds_write_b64 v{vTT}, {vr(g0, 2)} offset:{3*512}"]
    return r

def scan_P3():
    a32 = vT[8]; T = vT[0:8]
    r = [f"ds_read_b128 {vr(a32)}, v{vCH} offset:{PV_CH}"]
    for k in range(4): r.append(f"ds_read_b64 {vr(T[2*k], 2)}, v{vTT} offset:{k*512}")
    r.append("@gap 2")
    m = a32 + 2
    g = vT[12]
    r += chorner2(g, g+1, T[0], T[1], m, m+1, T[2], T[3])
    r += chorner2(vWP0, vWP1, g, g+1, m, m+1, T[4], T[5])
    r += chorner2(g, g+1, vWP0, vWP1, m, m+1, T[6], T[7])
    r += [f"v_mov_b32 v{g+2}, s{sNONCE}", f"v_mov_b32 v{g+3}, s{sNONCE}",
          f"buffer_store_dwordx4 {vr(g)}, v{vSO}, s[{sWS}:{sWS+3}], s{sSST} offen sc1"]
    return r

def lb_loads():
    return [f"buffer_load_dwordx4 {ar(aS+4*jj)}, v{vSO}, s[{sWS}:{sWS+3}], s{sl} offen sc1" for jj, sl in enumerate((sLB0, sLB1, sLB2, sLB3))]
def scan_P4():
    t = vT[0:8]
    chk = []
    for jj, sl in enumerate((sLB0, sLB1, sLB2, sLB3)):
        d = t[2] if jj == 0 else t[0]
        chk += [f"s_cmp_lt_u32 s{sl}, {OOB}", f"s_cselect_b32 s{sT2}, s{sNONCE}, 0", f"v_accvgpr_read_b32 v{d}, a{aS+4*jj+2}",
                f"v_xor_b32 v{d}, s{sT2}, v{d}"]
        if jj: chk += [f"v_or_b32 v{t[2]}, v{t[2]}, v{t[0]}"]
    chk += [f"v_cmp_ne_u32 vcc, 0, v{t[2]}"]
    c = vT[8]
    r = [f"ds_read_b128 {vr(c)}, v{vCH} offset:{PV_CH+1024}", f"ds_read_b64 {vr(vT[12], 2)}, v{vCH} offset:{PV_CH+2048}"]
    if "f" not in opt.skip: r += poll(lb_loads(), [i.text for i in insert_nops(II(chk))])
    for jj in range(4):
        r += [f"v_accvgpr_read_b32 v{t[2*jj]}, a{aS+4*jj}", f"v_accvgpr_read_b32 v{t[2*jj+1]}, a{aS+4*jj+1}"]
    m = c + 2; g0, g1 = vT[14], vT[16]
    r += chorner2(g0, g0+1, t[0], t[1], m, m+1, t[2], t[3])
    r += chorner2(g1, g1+1, g0, g0+1, m, m+1, t[4], t[5])
    r += chorner2(g0, g0+1, g1, g1+1, m, m+1, t[6], t[7])
    r += cmul(g1, g1+1, g0, g0+1, vT[12], vT[13], vT[18])
    r += [f"s_lshl_b32 s{sT2}, s{sW}, 3", f"v_add_u32 v{vT[18]}, s{sT2}, v{vLB}", f"ds_write_b64 v{vT[18]}, {vr(g1, 2)}"]
    return r

def scan_P56():
    lb = vT[0]; er, ei = vT[8], vT[12]; c8, c32w = vT[16], vT[20]
    r = [f"ds_read_b128 {vr(lb)}, v{vLB}", f"ds_read_b128 {vr(lb+4)}, v{vLB} offset:16",
         f"ds_read_b64 {vr(c32w, 2)}, v{vCH} offset:{PV_CH+1024}", f"ds_read_b128 {vr(c8)}, v{vCH} offset:{PV_CH}",
         f"ds_read_b128 {vr(er)}, v{vER} offset:{PV_E}", f"ds_read_b128 {vr(ei)}, v{vER} offset:{PV_E+128}", "@gap 2",
         f"v_add_f32 v{lb}, v{lb}, v{lb+2}", f"v_add_f32 v{lb+1}, v{lb+1}, v{lb+3}",
         f"v_add_f32 v{lb+4}, v{lb+4}, v{lb+6}", f"v_add_f32 v{lb+5}, v{lb+5}, v{lb+7}",
         f"v_add_f32 v{lb}, v{lb}, v{lb+4}", f"v_add_f32 v{lb+1}, v{lb+1}, v{lb+5}"]
    q0, q1 = vT[4], vT[20]
    tmp = vT[2]
    r += chorner2(tmp, tmp+1, lb, lb+1, c32w, c32w+1, vWP0, vWP1)
    r += [f"v_mov_b32 v{q0}, v{tmp}", f"v_mov_b32 v{q1}, v{tmp+1}"]
    for k in range(3):
        r += chorner2(q0+k+1, q1+k+1, q0+k, q1+k, c8, c8+1, er+k, ei+k)
    r += [f"ds_write_b128 v{vER}, {vr(q0)} offset:{PV_E}", f"ds_write_b128 v{vER}, {vr(q1)} offset:{PV_E+128}"]
    C = vT[0:10]; Z = vT[10:15]
    for cf in range(5): r.append(f"ds_read_b32 v{Z[cf]}, v{vEW} offset:{PV_E + cf*256}")
    for cf in range(5): r.append(f"ds_read_b64 {vr(C[2*cf], 2)}, v{vCOLR} offset:{PV_COL + cf*256}")
    r.append("@gap 2")
    for tau in range(8):
        src = [(Z[cf] if tau == 0 else ureg(cf, tau-1)) for cf in range(5)]
        for cf in range(5): r.append(f"v_fma_f32 v{ureg(cf, tau)}, v{C[2*cf]}, v{src[cf]}, v{ureg(cf, tau)}")
        for cf in range(5): r.append(f"v_fmac_f32_dpp v{ureg(cf, tau)}, v{src[cf]}, v{C[2*cf+1]} {DPP}")
    for cf in range(5):
        for f in range(2):
            t = vT[2*(cf*2+f)]; u = U(cf, f)
            r += [f"v_cvt_pk_bf16_f32 v{t}, v{u}, v{u+1}", f"v_cvt_pk_bf16_f32 v{t+1}, v{u+2}, v{u+3}"]
    for k in range(10): r.append(f"ds_write_b64 v{vTW}, {vr(vT[2*k], 2)} offset:{k*512}")
    for cf in range(5):
        for jj in range(2):
            r.append(f"ds_read_b64_tr_b16 {vr(56 + 4*cf + 2*jj, 2)}, v{vTR} offset:{cf*1024 + jj*128}")
    for cf in range(5):
        r.append(I(f"buffer_store_dwordx4 {vr(56 + 4*cf)}, v{vHST}, s[{sWS}:{sWS+3}], s{sHO[cf]} offen sc1", tok="HST"))
    return r

def swiglu(acc, h2s, sks, tokname, packed=False):
    r = []
    k = 0
    for h2 in h2s:
        for z in range(2):
            G = vT[0:8]; Uu = vT[8:16]; T = vT[16:24]
            for j in range(8):
                r += [f"v_accvgpr_read_b32 v{G[j]}, a{acc(0, h2) + 8*z + j}", f"v_accvgpr_read_b32 v{Uu[j]}, a{acc(1, h2) + 8*z + j}"]
            if packed:
                for j in range(0, 8, 2): r.append(f"v_pk_mul_f32 {vr(T[j], 2)}, {vr(G[j], 2)}, s[{sEX0}:{sEX0+1}]")
                for j in range(8):
                    r.append(f"v_exp_f32 v{T[j]}, v{T[j]}")
                for j in range(0, 8, 2): r.append(f"v_pk_mul_f32 {vr(G[j], 2)}, {vr(G[j], 2)}, {vr(Uu[j], 2)}")
                for j in range(0, 8, 2): r.append(f"v_pk_add_f32 {vr(T[j], 2)}, {vr(T[j], 2)}, s[{sEX2}:{sEX2+1}]")
                for j in range(8): r.append(f"v_rcp_f32 v{T[j]}, v{T[j]}")
                for j in range(0, 8, 2): r.append(f"v_pk_mul_f32 {vr(G[j], 2)}, {vr(G[j], 2)}, {vr(T[j], 2)}")
            else:
                for j in range(8): r.append(f"v_mul_f32 v{T[j]}, {NLOG2E}, v{G[j]}")
                for j in range(8): r += [f"v_exp_f32 v{T[j]}, v{T[j]}", f"v_mul_f32 v{G[j]}, v{G[j]}, v{Uu[j]}"]
                for j in range(8): r.append(f"v_add_f32 v{T[j]}, 1.0, v{T[j]}")
                for j in range(8): r.append(f"v_rcp_f32 v{T[j]}, v{T[j]}")
                for j in range(8): r.append(f"v_mul_f32 v{G[j]}, v{G[j]}, v{T[j]}")
            o = Uu[0] if k % 2 == 0 else Uu[4]; k += 1
            for j in range(4): r.append(f"v_cvt_pk_bf16_f32 v{o+j}, v{G[2*j]}, v{G[2*j+1]}")
            if z == 0: r.append(f"s_add_u32 s{sT2}, s{sks}, {h2*4096}")
            r.append(I(f"buffer_store_dwordx4 {vr(o)}, v{vHH}, s[{sWS}:{sWS+3}], s{sT2} offen offset:{z*512} sc1", tok=tokname))
    return r

def step_reads(blk, s, par):
    r = []
    if blk == "U":
        i, sh2, sh = s // 4, (s >> 1) & 1, s & 1
        off = i*20480 + sh2*10240 - (61440 if i >= 3 else 0)
        for cf in range(5):
            r.append(f"ds_read_b128 {ar(FB(par, cf))}, v{vRU[sh]} offset:{off + cf*1024}")
    elif blk == "A":
        m, sp = s // 2, s & 1
        for hf in range(2):
            for h2 in range(2):
                for mu in range(2):
                    for jj in range(2):
                        r.append(f"ds_read_b64_tr_b16 {ar(FB(par, hf*4+h2*2+mu) + 2*jj, 2)}, v{vRA[h2]} offset:{(m % 4)*16384 + (2*sp+mu)*4096 + hf*1024 + jj*512}")
    else:
        m, sd = 10 + s // 2, s & 1
        for s2 in range(2):
            for hf in range(2):
                for mu in range(2):
                    for jj in range(2):
                        r.append(f"ds_read_b64_tr_b16 {ar(FB(par, s2*4+hf*2+mu) + 2*jj, 2)}, v{vRB2 if BSLOT[m] >= 4 else vRB} offset:{(BSLOT[m] % 4)*16384 + (2*sd+mu)*4096 + s2*2048 + hf*512 + jj*256}")
    return r

def step_mfma(blk, s, par):
    r = []
    if blk == "U":
        for cf in range(5):
            for f in range(2):
                d = vr(U(cf, f)); c = "0" if s == 0 else d
                r.append(f"v_mfma_f32_16x16x32_bf16 {d}, {vr(X(f, s))}, {ar(FB(par, cf))}, {c}")
    elif blk == "A":
        for hf in range(2):
            for h2 in range(2):
                for mu in range(2):
                    d = ar(ACCA(mu, h2), 16); c = "0" if (s == 0 and hf == 0) else d
                    r.append(f"v_mfma_f32_32x32x16_bf16 {d}, {ar(FB(par, hf*4+h2*2+mu))}, {vr(X(hf, s))}, {c}")
    else:
        for s2 in range(2):
            for hf in range(2):
                for mu in range(2):
                    d = ar(ACCB(mu), 16); c = "0" if (s == 0 and hf == 0 and s2 == 0) else d
                    r.append(f"v_mfma_f32_32x32x16_bf16 {d}, {ar(FB(par, s2*4+hf*2+mu))}, {vr(X(hf, 2*s+s2))}, {c}")
    return r

def swaps(s): return [] if "w" in opt.skip else [f"v_permlane16_swap_b32 v{X(0, s)+k}, v{X(1, s)+k}" for k in range(4)]

def stage_of(blk, s):
    return ("U", s // 4) if blk == "U" else (("M", s // 2) if blk == "A" else ("M", 10 + s // 2))

def cost(i):
    if i.cls in ("pseudo", "label"): return 0
    if i.cls == "trans": return 2
    if i.cls == "vmem": return opt.vmcost
    return 1

PH = [1]
class Feed(list):
    def append(self, i): EM[0].feed(i)

class Queue:
    def __init__(self): self.q = []; self.hold = 0; self.now = 0
    def add(self, lst, deadline):
        if "q" in opt.skip:
            lst = [t for t in II(lst) if t.cls in ("vmem",) or t.op.startswith("s_") or t.cls in ("pseudo", "label") or t.op.startswith("v_cmp") or t.op.startswith("v_readfirst") or t.op.startswith("v_accvgpr_read") and "a18" in t.text + "a19"]
        lst = II(lst)
        if PH[0] == 1 and opt.skip and not any(t.op in ("@arm", "@raw_begin") for t in lst):
            if "D" in opt.skip: lst = [t for t in lst if not t.op.startswith("ds_write")]
            if "R" in opt.skip: lst = [t for t in lst if not t.op.startswith("ds_read")]
            if "V" in opt.skip: lst = [t for t in lst if t.cls not in ("valu", "trans") or t.op.startswith("v_cmp") or t.op.startswith("v_cndmask")]
            if "S" in opt.skip:
                for t in lst:
                    if t.cls == "vmem" and "store" in t.op and t.tok in ("HST", "HHA"): t.text = t.text.replace("offen", "offen").replace("dwordx4", "dword"); t.text = __import__("re").sub(r"v\[(\d+):\d+\]", r"v\1", t.text, 1); t.wide = False
        lst = II(lst)
        now = max(self.now, max([d for t, d in self.q] + [0]) if opt.chainq else 0)
        if not opt.interp or deadline <= now + 1:
            for t in lst: self.q.append((t, deadline))
            return
        pos = 0; P = []; wr = {}; lastw = -99
        for t in lst:
            if t.cls not in ("pseudo", "label"):
                dep = [wr[r] for r in (t.rd | t.wr) if r in wr]
                if dep: pos = max(pos, max(dep) + opt.vlat)
                if t.op.startswith("ds_read") and pos - lastw < opt.vlat // 2: pos = lastw + opt.vlat // 2
                for r in t.wr: wr.pop(r, None)
                if t.cls == "ds":
                    for r in t.wr: wr[r] = pos
                    if t.op.startswith("ds_write"): lastw = pos
            pos += cost(t) + (1 if t.cls == "ds" else 0)
            P.append(pos)
        prev = now
        for t, p in zip(lst, P):
            d = now + int((deadline - now) * p / max(pos, 1))
            if t.cls == "ds" and PH[0] == 1 and d >= 200:
                while d % 8 < opt.span and d < deadline: d += 1
            d = max(d, prev); prev = d
            self.q.append((t, min(d, deadline)))
    def _region(self, out):
        i = self.q[0][0]
        end = "@endarm" if i.op == "@arm" else "@raw_end"
        while True:
            j = self.q.pop(0)[0]; out.append(j)
            if j.cls == "pseudo" and j.op == end: break
        while self.q and self.q[0][0].cls == "label": out.append(self.q.pop(0)[0])
    def need(self, gap):
        best = 0; acc = 0
        for t, d in self.q:
            acc += cost(t)
            left = d - gap + 1
            if left <= 0: best = max(best, acc)
            else: best = max(best, -(-acc // left))
        return best
    def pop(self, n, gap, ds_ok=True):
        out = Feed(); nds = 0; self.now = gap
        n = max(n, self.need(gap)) if (opt.even and not opt.interp) else n
        while self.q and (n > 0 or self.q[0][1] <= gap):
            i = self.q[0][0]
            if i.cls == "pseudo" and i.op == "@gap":
                self.q.pop(0); continue
            if self.q[0][1] > gap:
                if i.cls == "ds" and (not ds_ok or nds >= opt.dsmax): break
                if i.cls == "ds": nds += 1
                look = [i] + ([x for x, d in self.q[1:12] if x.cls == "pseudo"][:1] if i.op.startswith("s_cmp") else [])
                if i.op.startswith("s_cmp"): look += [x for x, d in self.q[1:4]]
                if max(EM[0].stall(x) for x in look) > opt.thr: break
            if i.cls == "pseudo" and i.op in ("@arm", "@raw_begin"):
                self._region(out); n -= 4
                continue
            if i.cls == "branch" or i.op.startswith("s_cmp") or i.op.startswith("s_bitcmp") or i.op.startswith("v_cmp"):
                out.append(self.q.pop(0)[0])
                if self.q and "L_rfw" in self.q[0][0].text:
                    while self.q[0][0].op != "@raw_begin": out.append(self.q.pop(0)[0])
                    n -= 10
                while self.q:
                    k = self.q[0][0]
                    if k.op.startswith("s_cselect") or k.op.startswith("v_cndmask") or k.cls == "branch": out.append(self.q.pop(0)[0])
                    elif k.op in ("@arm", "@raw_begin"): self._region(out); n -= 4
                    else: break
                n -= 1
                continue
            self.q.pop(0); out.append(i)
            n -= cost(i)
        return out
    def flush(self):
        out = [i for i, d in self.q if not (i.cls == "pseudo" and i.op == "@gap")]
        self.q = []; self.hold = 0
        return out

ACC1 = [("a", 4*k) for k in range(20)]
ACC2 = [("v", 96 + 4*k) for k in range(20)]
A_SLOTS = [("a", 80 + 4*k) for k in range(20)]
GA = [("a", 196 + 4*k) for k in range(15)] + [("a", 160 + 4*k) for k in range(5)]
XFREE = [("v", base + 8*d + 4*h) for d in range(10) for base in (96, 176) for h in range(2)]
HI = [("v", 176 + 4*k) for k in range(20)]
N1 = 12
NLDS = 4
def wslot(st, e):
    if st < 4: return GA[st*5 + e]
    if st < 12: return XFREE[(st - 4)*5 + e]
    if st < 16: return HI[(st - 12)*5 + e]
    if st < 20: return GA[(st - 16)*5 + e]
    return HI[(st - 20)*5 + e]
def w_free_after_b(st):
    return -1 if st < 4 else ((st - 4)*5 + 4) // 4
def w_free_after_p(st):
    if st < 16:
        regs = {wslot(st, e) for e in range(5)}
        return max(o for o in range(4, 12) for e in range(5) if wslot(o, e) in regs)
    return st - 16 if st < 20 else st - 8
def rg(t, c=4): return f"{t[0]}[{t[1]}:{t[1]+c-1}]"
vA2 = [3, 4, 5, 6]; vPW = [7, 8, 9]; vPR = 11; vOUT = 13; vXO = 14; vSTA = 15; vDS = 16
vXR = list(range(56, 76)); vY = list(range(76, 96)); vDK = [17, 18, 19, 20, 21]; vST = list(range(32, 40)); vXD2 = [22, 23, 24]; vXL = 25; vWL = 26
L_X2 = 143360
NSTEP = 22
ORDER = [0, 1, 4, 5, 6, 7, 10, 11, 2, 3, 8, 9] + list(range(10))
def ptr_bases():
    return [f"s_mul_i32 s{sAS}, s{sW}, {12*4096}", f"s_add_u32 s{sAS}, s{sAS}, s{sP2A}", f"s_add_u32 s{sAS}, s{sAS}, {40*4096}",
            f"s_mul_i32 s{sAE}, s{sW}, {10*4096}", f"s_add_u32 s{sAE}, s{sAE}, s{sP2A}",
            f"s_mul_i32 s{sWB}, s{sW}, {12*5120}", f"s_add_u32 s{sWB}, s{sWB}, s{sP2W}", f"s_add_u32 s{sWB}, s{sWB}, {40*5120}",
            f"s_mul_i32 s{sWE}, s{sW}, {10*5120}", f"s_add_u32 s{sWE}, s{sWE}, s{sP2W}"]
def ptr_set(which, st):
    if which == "A": return [f"s_add_u32 s{sAP}, s{sAS if st < N1 else sAE}, {ORDER[st]*4096}"]
    return [f"s_add_u32 s{sWP}, s{sWB if st < N1 else sWE}, {ORDER[st]*5120}"]
def p2_wload(st):
    r = []
    r += ptr_set("W", st)
    for e in range(5):
        va, off = (vL16, e*1024) if e < 4 else (vW4, 0)
        if N1 <= st < N1 + NLDS:
            r += [f"s_add_u32 m0, s{sM0}, {L_WY + (st - N1)*5120 + (4096 if e == 4 else 0)}"] + (["s_nop 0"] if True else [])
            r.append(I(f"buffer_load_dwordx4 v{va}, s[{sWS}:{sWS+3}], s{sWP} offen offset:{off} sc1 lds", tok=f"WL{st}"))
        else:
            r.append(I(f"buffer_load_dwordx4 {rg(wslot(st, e))}, v{va}, s[{sWS}:{sWS+3}], s{sWP} offen offset:{off} sc1", tok="W"))
    return r
def p2_wread(st):
    return [f"@waitvm WL{st}"] + [f"ds_read_b128 {rg(wslot(st, e))}, v{vWL} offset:{L_WY + (st - N1)*5120 + e*1024}" for e in range(5)]
def p2_aload(st):
    r = []
    r += ptr_set("A", st)
    for jj in range(4):
        r.append(I(f"buffer_load_dwordx4 {rg(A_SLOTS[(st % 5)*4 + jj])}, v{vA2[jj]}, s[{sWS}:{sWS+3}], s{sAP} offen sc1", tok="A"))
    return r
def p2_setup():
    r = []
    for jj in range(4):
        r += [f"s_add_u32 s{sD0}, s{sW}, {jj}", f"s_and_b32 s{sD0}, s{sD0}, 3", f"v_lshl_add_u32 v{vA2[jj]}, s{sD0}, 10, v{vL16}"]
    return r
def p2_setup2():
    r = []
    for jj in range(1, 4):
        r += [f"s_add_u32 s{sT2}, s{sW}, {jj}", f"s_and_b32 s{sT2}, s{sT2}, 3",
              f"s_mul_i32 s{sT3}, s{sT2}, 15360", f"s_add_u32 s{sT3}, s{sT3}, {(3-jj)*5120}", f"v_add_u32 v{vPW[jj-1]}, s{sT3}, v{vL16}"]
    r += [f"s_mul_i32 s{sT3}, s{sW}, 15360", f"v_add_u32 v{vPR}, s{sT3}, v{vL16}", f"v_add_u32 v{vWL}, s{sM0}, v{vL16}"]
    r += [f"v_add_u32 v{v}, {L_P1}, v{v}" for v in vPW + [vPR]]
    return r

def groups(lst):
    out = []; cur = []
    for t in II(lst):
        cur.append(t)
        if t.cls == "vmem": out.append(cur); cur = []
    if cur: out.append(cur)
    return out
def gstall(grp):
    return max([EM[0].stall(t) for t in grp if t.cls == "vmem" or t.op == "@waitvm"] + [0])

def tagw(st):
    gs = groups(p2_wload(st))
    for gq in gs: gq[-1].lat = None; STEP[id(gq[-1])] = st
    return gs
def taga(st):
    gs = groups(p2_aload(st))
    for gq in gs: STEP[id(gq[-1])] = st
    return gs
STEP = {}

def phase1_blocks():
    Q = Queue()
    seq = [("U", s) for s in range(20)] + [("A", s) for s in range(20)] + [("B", s) for s in range(10)]
    gap0 = []; g = 0
    for blk, s in seq:
        gap0.append(g); g += {"U": 10, "A": 8, "B": 8}[blk]
    gap0.append(g)
    def stage_end(kind, idx):
        n = [k for k, (b, s) in enumerate(seq) if stage_of(b, s) == (kind, idx)][-1]
        return gap0[n]
    L(delay("a", 255, 0, 500)); L(delay("b", 31, 5, 700))
    L(["@waitvm U0", "s_barrier"])
    L(stamp("U start"))
    L(step_reads("U", 0, 0))
    later = []
    pace = [0, len(EM[0].out)]
    bulk = []
    def lat(gs, dl):
        for x in gs: later.append((II(x), dl))
    def blk_(gs, dl):
        at = len(bulk) if dl == 10**6 else next((q for q, (gq, d) in enumerate(bulk) if d == 10**6), len(bulk))
        bulk[at:at] = [(II(x), dl) for x in gs]
    lat([u_piece(2, cf) for cf in range(5)], stage_end("U", 0) - 4)
    if not opt.early_nonce: lat([nonce_publish()], stage_end("U", 0))
    if opt.rl_pos == -1: lat(relayout_dma(), stage_end("U", 1) - 16)
    lat([u_piece(3, cf) for cf in range(5)], stage_end("U", 1) - 10)
    lat([u_piece(4, cf) for cf in range(5)], stage_end("U", 2) - 20)
    for n, (blk, s) in enumerate(seq):
        par = n & 1
        mf = step_mfma(blk, s, par)
        nxt = seq[n + 1] if n + 1 < len(seq) else None
        rd = II(step_reads(nxt[0], nxt[1], par ^ 1)) if nxt else []
        if rd: rd[-1].tok = f"rd{n+1}"
        boundary = nxt is None or stage_of(*nxt) != stage_of(blk, s)
        gaps = [[] for _ in mf]
        start = 0
        pre = []
        cap = opt.capU if blk == "U" else opt.capM
        if blk == "U" and s == 11: pre += [f"v_add_u32 v{vRU[0]}, 61440, v{vRU[0]}"]
        if blk == "U" and s == 12: pre += [f"v_add_u32 v{vRU[1]}, 61440, v{vRU[1]}"]
        if blk == "A" and s == 0:
            Q.add(nonce_get(), gap0[n] + 6)
            Q.add(scan_P12(), stage_end("M", opt.X_stage) - 2)
        if blk == "B" and s == 0:
            Q.add(swiglu(ACCA, [0, 1], sKSA, "HHA"), stage_end("M", opt.hast) - opt.haend)
        post = []; plat = []; urgent = []; pbulk = []
        if blk == "B":
            for st in range(4, opt.nearly):
                if w_free_after_b(st) == s - 1: blk_(tagw(st), 10**6)
        if boundary:
            kind, idx = stage_of(blk, s)
            start = 1
            here = gap0[n]; nx1 = here + (40 if blk == "U" else 16)
            if kind == "U" and idx == 1:
                if opt.rf_stage == 1: post.append((relayout_finish(), stage_end("U", 3) - 4))
                post += [(const_tables(), stage_end("U", 3) + (10 if opt.rf_stage == 1 else -2)), (stats_store(), stage_end("U", 3) + 16)]
            mi = idx if kind == "M" else idx - 5
            def send(m): return stage_end("M", m) if m >= 0 else stage_end("U", m + 5)
            if kind == "U" and idx == opt.rf_stage and idx != 1: post.append((relayout_finish(), send(opt.F_stage - 1) - 2))
            b = []
            if nxt is not None:
                nk, ni = stage_of(*nxt)
                b.append(I(f"@waitboth {nk}{ni}"))
            else:
                b.append(I("@waitds0"))
            if kind == "M" and idx == opt.hast: b += II(["@waitvm HHA"])
            if kind == "M" and idx == opt.hast: plat.append((groups(flag_store(WS_FLHA, sC, sG)), here + 2))
            if mi == opt.F_stage: b += II(["@waitvm RLS"] if "r" not in opt.skip else [])
            if mi == max(opt.F_stage, 0): b += II(["@waitvm stat"])
            if not ("b" in opt.skip and kind == "M" and idx < 14): b.append(I("s_barrier"))
            if (opt.stamps or opt.probe) and (opt.fine or (kind, idx) in (("U", 4), ("M", 9), ("M", 14))): b += II(stamp(f"{kind}{idx} end"))
            gaps[0] += b
            if kind == "U" and idx == 0 and opt.t_w13: plat.append((w13_touch(), stage_end("U", 1) + 10))
            if kind == "U" and idx == 0 and opt.rl_pos == 0: plat.append((relayout_dma(), stage_end("U", 2) - 10))
            if kind == "U" and idx == 1: plat.append((groups(dma_M(0)) + groups(dma_M(1)), stage_end("U", 3) - 10))
            if kind == "U" and idx == 1 and opt.rl_pos == 1: plat.append((relayout_dma(), stage_end("U", 4) - 10))
            if kind == "U" and idx == 3 and not opt.early_nonce: plat.append(([nonce_load()], here + 10))
            if kind == "U" and idx in (2, 3) and idx + opt.m23 <= 3: plat.append((groups(dma_M(idx)), stage_end("M", idx - 1) - opt.slack))
            if kind == "U" and idx == 4:
                for m_ in (2, 3):
                    if m_ + opt.m23 > 3: plat.append((groups(dma_M(m_)), stage_end("M", m_ - 1) - opt.slack))
            if kind == "U" and idx == 4:
                plat.append(([mlp_dma_addr("B")], here + 6))
                pbulk.append((groups(dma_M(10)), stage_end("M", opt.b10)))
            if mi == max(opt.F_stage, 0): plat.insert(0, (groups(flag_store(WS_FLW, sN, sRT)), here + 6))
            if kind == "M" and idx + 4 <= 9: plat.append((groups(dma_M(idx + 4)), stage_end("M", idx + 3) - opt.slack))
            if kind == "M" and idx == opt.L_stage: plat.insert(0, (groups(lb_loads()), here + 8))
            if kind == "M" and idx in BISSUE: pbulk.append((groups(dma_M(BISSUE[idx][0])), stage_end("M", BISSUE[idx][0] - 1) - opt.slack))
            if kind == "M" and idx == opt.X_stage:
                post.append((scan_P3(), stage_end("M", opt.X_stage + 1) + 8))
            if kind == "M" and idx == opt.C_stage:
                assert not any("a[180:183]" in x.text for gq, d in later for x in gq)
                post.append((scan_P4(), stage_end("M", opt.Y_stage) - 2))
            if kind == "M" and idx == opt.Y_stage:
                gaps[0] += II(delay("d", 63, 17, 900))
                post.append((scan_P56()[:33], stage_end("M", opt.Y_stage + 1) - 2))
            if kind == "M" and idx == opt.W_stage - 1 and opt.nearly:
                plat.append((groups(flag_load(WS_FLW, sN, 0, 31)), nx1))
            if kind == "M" and idx == opt.W_stage and opt.nearly:
                plat.append(([flag_check(WS_FLW, sN, 0, 31)], nx1 + 8))
                for st in range(min(4, opt.nearly)): pbulk.append((tagw(st), 10**6))
            if kind == "M" and idx == 13: urgent += [p2_setup()]
            if kind == "U" and idx == 4: urgent += [[f"global_load_ushort a231, v{vLANE}, s[{pDSK}:{pDSK+1}]"]] if False else []
        ng = len(mf)
        if rd:
            if nxt[0] == "U": span = 5
            elif blk == "U": span = 7
            else: span = opt.span
            for k, t in enumerate(rd): gaps[start + (k * span) // len(rd)].append(t)
        if nxt and nxt[0] == "A":
            for k, t in enumerate(II(swaps(nxt[1]))): gaps[ng - 5 + k].append(t)
        if blk == "U" and opt.pre_norm <= s + 1 < 20 and "n" not in opt.skip:
            nq = II(norm_step(1, s + 1, False, vT[20:24]))
            for k, t in enumerate(nq): gaps[(k * ng) // len(nq)].append(t)
        if blk == "U" and opt.late0:
            ops = [t for s0 in range(20 - opt.late0, 20) for t in norm_step(0, s0, False, vT[16:20])]
            span = 18
            lo, hi = (len(ops) * s) // span, (len(ops) * (s + 1)) // span
            lo -= lo % 5; hi -= hi % 5
            nq = II(ops[lo:hi]) if s < span else []
            assert all((20 - opt.late0 + (lo + k) // 20) > s for k in range(len(nq)))
            for k, t in enumerate(nq): gaps[(k * ng) // len(nq)].append(t)
        L(pre)
        E(f"@waitds rd{n}")
        for k, t in enumerate(mf):
            E(t)
            L(gaps[k])
            gap = gap0[n] + k
            used = sum(cost(x) for x in gaps[k])
            if boundary and k == 0:
                for lst, dl in post: Q.add(lst, dl)
                for gs, dl in plat: lat(gs, dl)
                for gs, dl in pbulk: blk_(gs, dl)
                lat(urgent, here + 14)
                continue
            due_b = any(d - gap <= q + len(later) for q, (gq, d) in enumerate(bulk))
            overdue = due_b or any(d - gap <= q for q, (gq, d) in enumerate(later))
            q_ = later if later else bulk
            if q_ and (overdue or (EM[0].t >= pace[0] and k != 0)):
                grp = q_.pop(0)[0]; L(grp); used += sum(cost(x) for x in grp)
            for x in EM[0].out[pace[1]:]:
                if x.cls == "vmem" and x.lines is not None and not x.text.startswith("buffer_load_dword v29,"):
                    cold = (x.tok in (("RL", "TW") if opt.t_w13 else ("M0", "M1", "M10", "RL"))) and opt.coldpace or 1
                    pace[0] = max(pace[0], EM[0].t - opt.burst) + x.lines * opt.pace * cold
            pace[1] = len(EM[0].out)
            Q.pop(cap - used, gap, ds_ok=(k >= (opt.span if blk != "U" else 5)))
    L(Q.flush())
    for gq, d in later: L(gq)
    return [gq for gq, d in bulk]

def p2_mfma(st):
    r = []
    first = st in (0, N1)
    acc = ACC1 if st < N1 else ACC2
    for jj in range(4):
        for e in range(5):
            d = rg(acc[jj*5+e]); c = "0" if (first and not (st == N1 and jj == 0)) else d
            r.append(f"v_mfma_f32_16x16x32_bf16 {d}, {rg(A_SLOTS[(st % 5)*4+jj])}, {rg(wslot(st, e))}, {c}")
    return r

def p2_partials(base, acc):
    return [f"ds_write_b128 v{vPW[jj-1]}, {rg(acc[jj*5+e])} offset:{base + e*1024}" for jj in range(1, 4) for e in range(5)]

def p2_epi_addr():
    dn, q, t = vT[8], vT[9], vT[10]
    r = [f"v_and_b32 v{dn}, 15, v{vLANE}", f"v_lshrrev_b32 v{q}, 4, v{vLANE}",
         f"s_lshl_b32 s{sT2}, s{sRT}, 6", f"s_lshr_b32 s{sT3}, s{sW}, 1", f"s_lshl_b32 s{sT3}, s{sT3}, 5", f"s_add_u32 s{sT2}, s{sT2}, s{sT3}",
         f"s_and_b32 s{sT3}, s{sW}, 1", f"s_lshl_b32 s{sT3}, s{sT3}, 2", f"s_add_u32 s{sT2}, s{sT2}, s{sT3}",
         f"s_mul_i32 s{sT4}, s{sW}, 3072", f"s_add_u32 s{sT4}, s{sT4}, {L_X2}",
         f"v_mul_u32_u24 v{vXL}, 640, v{q}", f"v_lshl_add_u32 v{vXL}, v{dn}, 1, v{vXL}", f"v_add_u32 v{vXL}, s{sT4}, v{vXL}",
         f"v_lshl_add_u32 v{q}, v{q}, 3, s{sT2}",
         f"s_mul_i32 s{sT3}, s{sN}, 80", f"v_add_u32 v{dn}, s{sT3}, v{dn}",
         f"v_mul_u32_u24 v{t}, 640, v{q}", f"v_add_u32 v{t}, v{t}, v{dn}",
         f"v_lshlrev_b32 v{vOUT}, 2, v{t}", f"v_lshlrev_b32 v{vSTA}, 3, v{q}", f"v_lshlrev_b32 v{vDS}, 1, v{dn}",
         f"s_mul_i32 s{sT2}, s{sT2}, 1280", f"s_mul_i32 s{sT3}, s{sN}, 160", f"s_add_u32 s{sT5}, s{sT2}, s{sT3}", f"s_add_u32 s{sT5}, s{sT5}, 4096",
         f"s_mov_b32 s{sT3}, 6554"]
    a, b, c = vT[11], vT[12], vT[13]
    for p in range(3):
        r += [f"v_add_u32 v{a}, {64*p}, v{vLANE}", f"v_mul_u32_u24 v{b}, s{sT3}, v{a}", f"v_lshrrev_b32 v{b}, 16, v{b}",
              f"v_mul_u32_u24 v{c}, 10, v{b}", f"v_sub_u32 v{c}, v{a}, v{c}", f"v_lshlrev_b32 v{c}, 4, v{c}",
              f"v_and_b32 v{a}, 12, v{b}", f"v_add_u32 v{b}, v{a}, v{b}", f"v_mul_u32_u24 v{b}, 1280, v{b}", f"v_add_u32 v{vXD2[p]}, v{b}, v{c}"]
    r += [f"v_mov_b32 v{a}, {OOB}", f"v_cmp_gt_u32 vcc, 32, v{vLANE}", f"v_cndmask_b32 v{vXD2[2]}, v{a}, v{vXD2[2]}, vcc"]
    return r
def p2_epi_loads():
    r = []
    for p in range(3):
        r += [f"s_add_u32 m0, s{sT4}, {p*1024}", "s_nop 0", I(f"buffer_load_dwordx4 v{vXD2[p]}, s[{sX}:{sX+3}], s{sT5} offen lds", tok="XR")]
    for e in range(5):
        r.append(f"global_load_ushort v{vDK[e]}, v{vDS}, s[{pDSK}:{pDSK+1}] offset:{e*32}")
    r += [f"s_mov_b32 s{sD1}, {WS_STAT}",
          f"buffer_load_dwordx4 {vr(vST[0])}, v{vSTA}, s[{sWS}:{sWS+3}], s{sD1} offen sc1",
          f"buffer_load_dwordx4 {vr(vST[4])}, v{vSTA}, s[{sWS}:{sWS+3}], s{sD1} offen offset:16 sc1"]
    return r
def p2_xread():
    r = ["@waitvm XR"]
    for e in range(5):
        for rr in range(4):
            r.append(f"ds_read_u16 v{vXR[e*4+rr]}, v{vXL} offset:{rr*160 + e*32}")
    return r

def p2_skip():
    r = [f"v_lshlrev_b32 v{vDK[e]}, 16, v{vDK[e]}" for e in range(5)]
    for j in range(20): r.append(f"v_lshlrev_b32 v{vXR[j]}, 16, v{vXR[j]}")
    for e in range(5):
        for rr in range(4): r.append(f"v_fma_f32 v{96+e*4+rr}, v{vXR[e*4+rr]}, v{vST[2*rr]}, v{vST[2*rr+1]}")
        for rr in range(4): r.append(f"v_mul_f32 v{96+e*4+rr}, v{96+e*4+rr}, v{vDK[e]}")
    return r
def p2_gate():
    r = []
    T = vT[0:24]
    for e in range(5):
        b = T[12*(e % 2)]; b2 = b + 4; b3 = b + 8; Y = vY[e*4:e*4+4]
        r += [f"ds_read_b128 {vr(b)}, v{vPR} offset:{e*1024}", f"ds_read_b128 {vr(b2)}, v{vPR} offset:{5120 + e*1024}", f"ds_read_b128 {vr(b3)}, v{vPR} offset:{10240 + e*1024}"]
        if e > 0:
            p = T[12*((e-1) % 2)]; Yp = vY[(e-1)*4:e*4]
            for rr in range(4): r.append(f"v_mul_f32 v{Yp[rr]}, v{Yp[rr]}, v{p+rr}") if False else None
        for rr in range(4): r.append(f"v_add_f32 v{Y[rr]}, v{Y[rr]}, v{b+rr}")
        for rr in range(4): r.append(f"v_add_f32 v{b2+rr}, v{b2+rr}, v{b3+rr}")
        for rr in range(4): r.append(f"v_add_f32 v{Y[rr]}, v{Y[rr]}, v{b2+rr}")
        for rr in range(4): r.append(f"v_mul_f32 v{b+rr}, {NLOG2E}, v{Y[rr]}")
        for rr in range(4): r.append(f"v_exp_f32 v{b+rr}, v{b+rr}")
        for rr in range(4): r.append(f"v_add_f32 v{b+rr}, 1.0, v{b+rr}")
        for rr in range(4): r.append(f"v_rcp_f32 v{b+rr}, v{b+rr}")
        for rr in range(4): r.append(f"v_mul_f32 v{Y[rr]}, v{Y[rr]}, v{b+rr}")
    r += [f"v_add_u32 v{v}, {L_P2 - L_P1}, v{v}" for v in vPW + [vPR]]
    return r

sROW = [76, 77, 78, 79]
def p2_final():
    r = []
    O = list(range(96, 116)); B = list(range(176, 236))
    if not opt.fin2:
        for k in range(3):
            for e in range(5):
                r.append(f"ds_read_b128 {vr(B[k*20+e*4])}, v{vPR} offset:{k*5120 + e*1024}")
        for j in range(0, 20, 2): r.append(f"v_pk_fma_f32 {vr(vXR[j], 2)}, {vr(O[j], 2)}, {vr(vY[j], 2)}, {vr(vXR[j], 2)}")
        for j in range(0, 20, 2): r.append(f"v_pk_add_f32 {vr(B[j], 2)}, {vr(B[j], 2)}, {vr(B[20+j], 2)}")
        for j in range(0, 20, 2): r.append(f"v_pk_add_f32 {vr(B[j], 2)}, {vr(B[j], 2)}, {vr(B[40+j], 2)}")
        for j in range(0, 20, 2): r.append(f"v_pk_fma_f32 {vr(vXR[j], 2)}, {vr(B[j], 2)}, {vr(vY[j], 2)}, {vr(vXR[j], 2)}")
        for rr in range(4):
            for e in range(5):
                r.append(f"buffer_store_dword v{vXR[e*4+rr]}, v{vOUT}, s[{sOUT}:{sOUT+3}], s{sROW[rr]} offen offset:{e*64} {opt.out_flags}")
        return r
    for e in range(5):
        for k in range(3): r.append(f"ds_read_b128 {vr(B[k*20+e*4])}, v{vPR} offset:{k*5120 + e*1024}")
    for e in range(5):
        for j in (4*e, 4*e + 2): r.append(f"v_pk_add_f32 {vr(B[j], 2)}, {vr(B[j], 2)}, {vr(B[20+j], 2)}")
        for j in (4*e, 4*e + 2): r.append(f"v_pk_add_f32 {vr(B[j], 2)}, {vr(B[j], 2)}, {vr(B[40+j], 2)}")
        for j in (4*e, 4*e + 2): r.append(f"v_pk_fma_f32 {vr(vXR[j], 2)}, {vr(B[j], 2)}, {vr(vY[j], 2)}, {vr(vXR[j], 2)}")
        for rr in range(4):
            r.append(f"buffer_store_dword v{vXR[e*4+rr]}, v{vOUT}, s[{sOUT}:{sOUT+3}], s{sROW[rr]} offen offset:{e*64} {opt.out_flags if e < opt.nsc else opt.out_flags2}")
    return r
def p2_own():
    return [f"v_pk_fma_f32 {vr(vXR[j], 2)}, {vr(96+j, 2)}, {vr(vY[j], 2)}, {vr(vXR[j], 2)}" for j in range(0, 20, 2)]

def weave(main, extra, every=1):
    groups = []; cur = []
    for t in II(extra):
        cur.append(t)
        if t.cls == "vmem": groups.append(cur); cur = []
    if cur: groups.append(cur)
    out = []
    for k, t in enumerate(II(main)):
        out.append(t)
        if groups and k % every == every - 1: out += groups.pop(0)
    for g_ in groups: out += g_
    return out

def phase2(left):
    PH[0] = 2
    L(stamp("B mfma end"))
    L(delay("c", 15, 9, 600))
    L([f"s_mov_b32 s{sEX0}, {NLOG2E}", f"s_mov_b32 s{sEX1}, {NLOG2E}", f"s_mov_b32 s{sEX2}, 1.0", f"s_mov_b32 s{sEX3}, 1.0"])
    Wq = list(left); Aq = []
    assert all(id(gq[-1]) in STEP for gq in Wq)
    nextW = max([st for st in STEP.values()] + [-1]) + 1; nextA = 0
    while nextW < N1 + NLDS: Wq.extend(tagw(nextW)); nextW += 1
    def serial(lst, every, first=None):
        cnt = 0
        for t in II(lst):
            if t.cls == "pseudo" and t.op == "@gap": continue
            L([t])
            if t.cls in ("valu", "trans") and not t.op.startswith("v_cmp") and not INRAW[0]:
                cnt += 1
                q_ = first if first else Wq
                if q_ and cnt >= every and gstall(q_[0]) <= opt.thrs: L(q_.pop(0)); cnt = 0
            if t.op == "@raw_begin": INRAW[0] = True
            if t.op == "@raw_end": INRAW[0] = False
    swb = II(swiglu(ACCB, [0], sKSB, "HHB", packed=True))
    cl = len(swb) - opt.hald
    serial(swb[:cl], opt.every)
    if opt.sflag: L([f"s_mov_b32 s{sNN}, s{sNONCE}", f"s_mov_b32 s{sNN+1}, s{sNONCE}"]); assert opt.hald == 0
    else: L(fl_load(WS_FLHA))
    serial(swb[cl:], opt.every)
    L(stamp("epi B done"))
    def fill(st):
        nonlocal nextW, nextA
        lim = st + opt.look
        if st < 8 - opt.lookx: lim = min(lim, 7)
        if st < N1 - opt.looky: lim = min(lim, N1 - 1)
        while nextA <= min(lim, NSTEP - 1): Aq.extend(taga(nextA)); nextA += 1
        while nextW <= min(st + opt.lookW, NSTEP - 1) and nextW >= N1 + NLDS and w_free_after_p(nextW) < st: Wq.extend(tagw(nextW)); nextW += 1
    def head():
        if Wq and (not Aq or STEP[id(Wq[0][-1])] <= STEP[id(Aq[0][-1])]): return Wq
        return Aq if Aq else None
    p56 = II(scan_P56())[33:]
    serial(p56[:10], opt.every)
    L(p2_setup2())
    if opt.sflag:
        serial(p56[10:21], opt.every); L(fl_load(WS_FLHA)); serial(p56[21:opt.hack], opt.every)
    else: serial(p56[10:opt.hack], opt.every)
    L(fl_check(WS_FLHA)); L(stamp("ha ready"))
    while nextA < opt.a0: Aq.extend(taga(nextA)); nextA += 1
    if opt.shadow56:
        tail56 = p56[opt.hack:]; p56 = p56[:opt.hack]
        while Aq: L(Aq.pop(0))
    cst = next((k for k, t in enumerate(p56) if t.cls == "vmem"), len(p56))
    if opt.afirst and Aq: L(Aq.pop(0)); L(Aq.pop(0)); L(Aq.pop(0)); L(Aq.pop(0))
    serial(p56[opt.hack:cst], opt.every2, Aq)
    if opt.afirst:
        while Aq: L(Aq.pop(0))
    L(p56[cst:])
    L(stamp("h out"))
    while Aq: L(Aq.pop(0))
    if opt.hhpos < 0:
        L(["@waitvm HHB", "s_barrier"]); L(flag_store(WS_FLHH, sC, sG))
    L(stamp("flags out"))
    L([f"s_mov_b32 s{sROW[rr]}, {rr*2560}" for rr in range(4)])
    Q = Queue(); misc = []
    if opt.shadow56: Q.add(tail56, 20*opt.p2pos - opt.t56)
    g = 0; nread = N1
    for st in range(NSTEP):
        mf = p2_mfma(st)
        if st == 8 - opt.lookx:
            L(fl_check(WS_FLHH))
        if st == N1 - opt.looky:
            L(fl_check(WS_FLH)); L(stamp("h ready"))
        fill(st)
        if st == opt.p2pos + 1:
            Q.add(p2_epi_addr(), g + 30)
        if st == opt.epos: misc.extend(groups(p2_epi_loads()))
        if st == opt.epos + 3:
            assert not misc or all("v29" in gq[-1].text for gq in misc)
            Q.add(p2_xread() + p2_skip(), 20*N1 - 4)
        if opt.sflag:
            if st == 8 - opt.look - opt.sfl: L(fl_load(WS_FLHH))
            if st == N1 - opt.look - opt.sfl: L(fl_load(WS_FLH))
        else:
            if st == 8 - opt.lookx - opt.sfl: misc[0:0] = groups(flag_load(WS_FLHH, sRT, 1, 15))
            if st == N1 - opt.looky - opt.sfl: misc[0:0] = groups(flag_load(WS_FLH, sRT, 1, 15))
        while nread < N1 + NLDS and w_free_after_p(nread) < st and nread <= st + 3:
            assert not any(STEP.get(id(gq[-1])) == nread for gq in Wq)
            Q.add(p2_wread(nread), 20*(nread - 1) + 4); nread += 1
        if st == N1:
            L(stamp("out done"))
            yp = p2_partials(0, ACC1); rdy = [f"v_accvgpr_read_b32 v{vY[j]}, a{j}" for j in range(20)]
            mix = []
            for j in range(15): mix += [yp[j]] + rdy[j*4//3:(j+1)*4//3]
            Q.add(mix, 20*opt.ybar - 4)
        if st == opt.ybar:
            assert nread == N1 + NLDS
            L(Q.flush()); L(["@waitds0", "s_barrier"])
            Q.add(p2_gate(), 20*NSTEP - (44 if opt.merge2 else 24))
        def must(q): return [gq for gq in q if STEP[id(gq[-1])] <= st + opt.look]
        ng = len(must(Wq)) + len(Aq)
        per = -(-ng // 19)
        last = st == NSTEP - 1
        if opt.merge2 and st == NSTEP - 2:
            while head(): L(head().pop(0))
            held = mf; mf = []
        if last:
            L(Q.flush())
            if opt.merge2:
                both = []
                for jj in (1, 2, 3, 0): both += held[jj*5:jj*5+5] + mf[jj*5:jj*5+5]
                mf = both
            else: mf = mf[5:] + mf[:5]
            wr = II(p2_partials(0, ACC2))
        if opt.onewait and mf and not last:
            need = set().union(*[I(x).rd for x in mf])
            idx_ = [q for q, o in enumerate(EM[0].vm) if o.wr & need]
            if idx_: EM[0]._wait(len(EM[0].vm) - 1 - idx_[-1], None)
        for k, t in enumerate(mf):
            E(t)
            used = 0
            if k >= 1:
                for _ in range(max(per, 1)):
                    h = head()
                    if misc and (gstall(misc[0]) <= opt.thr or st >= opt.epos + 1 or "v29" in misc[0][-1].text) and (k % 2 == 0 or not h): L(misc.pop(0)); used += 2
                    elif h and (STEP[id(h[0][-1])] <= st + opt.look or gstall(h[0]) <= opt.thr): L(h.pop(0)); used += 2
            if st == opt.hhpos and k == 19 and st != opt.p2pos:
                L(["@waitvm HHB", "s_barrier"]); L(flag_store(WS_FLHH, sC, sG))
            if st == opt.p2pos and k == 19:
                assert "HST" in EM[0].seen and not any(t.tok == "HST" for t, d in Q.q)
                L(["@waitvm HST", "s_barrier"])
                if st == opt.hhpos: L(flag_store(WS_FLHH, sC, sG))
                L(flag_store(WS_FLH, sC, sG))
            if last and wr and ((k >= 7) if not opt.merge2 else (k >= 12 and k % 2 == 0)): L([wr.pop(0)])
            Q.pop(2 - used, g); g += 1
        if st >= opt.epos + 2:
            while misc: L(misc.pop(0))
        if opt.fine2: L(stamp(f"st{st}"))
        while head() and STEP[id(head()[0][-1])] <= st + opt.look: L(head().pop(0))
    L(wr)
    if opt.fin2: L(p2_own())
    L(["@waitds0", "s_barrier"])
    L(stamp("y done"))
    L(p2_final())
    L(stamp("end")); L(stamp("cyc1", True))
INRAW = [False]

def diag_out():
    if not opt.diag: return
    L([f"s_lshl_b32 s{sT2}, s2, 2", f"s_add_u32 s{sT2}, s{sT2}, s{sW}", f"s_lshl_b32 s{sT2}, s{sT2}, 2", f"s_add_u32 s{sT2}, s{sT2}, {WS_STAMP}",
       f"v_mov_b32 v{vT[0]}, s{sNONCE}", f"buffer_store_dword v{vT[0]}, off, s[{sWS}:{sWS+3}], s{sT2}"])

def stamps_out():
    if opt.probe:
        L(["@raw_begin", "L_spin:", f"s_memrealtime s[{sSTAMP}:{sSTAMP+1}]", "s_waitcnt lgkmcnt(0)", f"s_sub_u32 s{sT2}, s{sSTAMP}, s3",
           f"s_cmp_lt_u32 s{sT2}, 5000", "s_cbranch_scc1 L_spin", "@raw_end"])
    if not opt.stamps: return
    L([f"s_lshl_b32 s{sT2}, s2, 2", f"s_add_u32 s{sT2}, s{sT2}, s{sW}", f"s_lshl_b32 s{sT2}, s{sT2}, 8", f"s_add_u32 s{sT2}, s{sT2}, {WS_STAMP}",
       f"v_lshlrev_b32 v{vT[0]}, 2, v{vLANE}", f"buffer_store_dword v0, v{vT[0]}, s[{sWS}:{sWS+3}], s{sT2} offen"])

def build():
    STEP.clear(); PH[0] = 1; EM[0] = Emitter(lines_of, lat_of, dslat=opt.dslat); lab[0] = 0; stamp_n[0] = 0; stamp_names.clear(); ST.n = 0
    prologue()
    L(stamp("issued")); L(stamp("cyc0", True))
    CAP[0] = rest = []
    setup_rest()
    L(scan_addr()); L(mlp_read_addr())
    constants()
    L(const_park())
    nonce_seed()
    L(relayout_issue()); L(relayout_raddr()); L(late_offsets())
    if opt.t_w13: L(w13_touch_addr())
    L([f"v_min_u32 v{vT[0]}, 9, v{vLANE}", f"v_lshlrev_b32 v{vT[0]}, 7, v{vT[0]}", f"global_load_dword a231, v{vT[0]}, s[{pDSK}:{pDSK+1}]"])
    CAP[0] = None
    ra = atoms(rest); n0 = 0; k0 = 0
    while n0 < opt.pre0: L(ra[k0]); n0 += len(ra[k0]); k0 += 1
    L(stamp("consts"))
    tail = x_arrive(0, [i for a in ra[k0:] for i in a], 40)
    L(stamp("x0 in"))
    E("s_barrier")
    L(skew("0"))
    if opt.early_nonce: L(nonce_publish())
    L(tail)
    L(x_stats(0))
    L([f"v_add_u32 v{vRX[0]}, 81920, v{vRX[0]}", f"v_add_u32 v{vRX[1]}, 81920, v{vRX[1]}"])
    nrm = []
    for s in range(20 - opt.late0): nrm += norm_step(0, s, opt.pk0, vT[20:24]) if "N" not in opt.skip else []
    if "Z" in opt.skip: nrm = ["s_nop 0"] * len(nrm)
    if "Y" in opt.skip: nrm = [t if "v_pk_fma" not in t else "v_mov_b32 v52, v53" for t in nrm]
    if "M" in opt.skip: nrm = [x for k, t in enumerate(nrm) for x in ([t, "s_nop 0"] if k % 4 == 3 else [t])]
    tail = x_arrive(1, nrm)
    L(stamp("x1 in"))
    if opt.early_nonce: L(nonce_load())
    L(weave(tail, ST.next(50 - ST.n, 50), 1))
    L(x_stats(1))
    L(mlp_dma_addr("A"))
    for s in range(opt.pre_norm): L(norm_step(1, s, True, vT[20:24]))
    assert ST.n == 50
    phase2(phase1_blocks())
    diag_out()
    stamps_out()
    E("s_endpgm")
    return EM[0].out

HEADER = """; Kernarg layout for this problem (128 bytes, ptrs only, base s[0:1]):
;   offset  48: d_in[6] A_C_im       (640, 640) bf16          offset 112: d_debug (256 B, zero on entry)
;
;  Hand-offs between workgroups: sc1 stores, then flags holding a per-launch nonce (published through d_debug).
; @launch grid=(256,1,1) block=(256,1,1) lds=163840
.amdgcn_target "amdgcn-amd-amdhsa--gfx950"
.text
.globl {k}
.p2align 8
.type {k},@function
{k}:
"""
FOOTER = """
L_exit:
    s_endpgm
L_codeend:
    .fill 64, 4, 0xbf800000
.section .rodata,"a"
.p2align 6
.amdhsa_kernel {k}
  .amdhsa_next_free_vgpr 512
  .amdhsa_next_free_sgpr 102
  .amdhsa_accum_offset 256
  .amdhsa_group_segment_fixed_size 0
  .amdhsa_kernarg_size 128
  .amdhsa_user_sgpr_count 2
  .amdhsa_user_sgpr_kernarg_segment_ptr 1
  .amdhsa_system_sgpr_workgroup_id_x 1
  .amdhsa_float_denorm_mode_32 3
.end_amdhsa_kernel
"""
def text():
    prog = build()
    body = "\n".join(("" if i.cls == "label" else "    ") + i.text for i in prog)
    return HEADER.format(k=KNAME) + body + FOOTER.format(k=KNAME), prog

if __name__ == "__main__":
    out = sys.argv[1]
    for a in sys.argv[2:]:
        k, v = a.split("=")
        cur = getattr(opt, k)
        setattr(opt, k, v.replace("_", " ") if isinstance(cur, str) else (v in ("1", "True") if isinstance(cur, bool) else type(cur)(float(v))))
    t, prog = text()
    open(out, "w").write(t)
    print(stats(prog), len(prog))
    if opt.sim:
        em = EM[0]; prev = 0
        for j, (n, m) in enumerate(zip(stamp_names, em.marks)):
            big = sorted([x for x in em.stalls if x[1] == j], reverse=True)
            print(f"{n:12s} {m:7.0f} ({m-prev:5.0f}) stalls {sum(x[0] for x in big):5.0f} :", "; ".join(f"{x[0]:.0f} {x[2][:44]}" for x in big[:4]))
            prev = m
    if opt.stamps:
        import json
        json.dump(stamp_names, open(out + ".stamps.json", "w"))
```
